```python
import torch

def _softmax(x, axis=-1):
    return torch.softmax(x, dim=axis)

def _gelu(x):
    return torch.nn.functional.gelu(x, approximate='tanh')

def _silu(x):
    return torch.nn.functional.silu(x)

def _sigmoid(x):
    return torch.sigmoid(x)

def _layernorm(x, axis=-1, eps=1e-05):
    m = x.mean(dim=axis, keepdim=True)
    v = x.var(dim=axis, keepdim=True, unbiased=False)
    return (x - m) / torch.sqrt(v + eps)

def _scatter_add(tgt, idx, src, axis=0):
    return tgt.clone().index_add_(axis, idx, src)

def _segment_sum(src, seg, n):
    out = torch.zeros((n,) + src.shape[1:], dtype=src.dtype)
    return out.index_add_(0, seg, src)

def _pad(x, pw):
    flat = tuple((v for pair in reversed(pw) for v in pair))
    return torch.nn.functional.pad(x, flat)
kernel_name = 'parallel_sum__compressed_kv_cla__mixer_gmlp__prompt'

def setup_inputs():

    _w = lambda a: (lambda t: t.to(torch.bfloat16) if t.is_floating_point() else t)(torch.as_tensor(a))

    def _A_setup():
        B, H, Sq, Sk, D, M = (1, 32, 2048, 2048, 128, 512)
        Dc = 4 * D
        return {'x': _w((lambda *s: torch.randn(*s, dtype=torch.bfloat16) * 0.05)(B, Sq, M)), 'c_kv': _w((lambda *s: torch.randn(*s, dtype=torch.bfloat16) * 1.6)(B, Sk, Dc)), 'w_q': _w((lambda *s: torch.randn(*s, dtype=torch.bfloat16) * 1.6)(M, H, D) * M ** (-0.5)), 'w_uk': _w((lambda *s: torch.randn(*s, dtype=torch.bfloat16) * 1.6)(Dc, H, D) * Dc ** (-0.5)), 'w_uv': _w((lambda *s: torch.randn(*s, dtype=torch.bfloat16) * 1.6)(Dc, H, D) * Dc ** (-0.5)), 'w_o': _w((lambda *s: torch.randn(*s, dtype=torch.bfloat16) * 1.6)(H, D, M) * (H * D) ** (-0.5))}
    _A_in = _A_setup()

    def _B_setup():
        B, S, D, F = (1, 2048, 512, 1376)
        Fh = F // 2
        return {'x': _w((lambda *s: torch.randn(*s, dtype=torch.bfloat16) * 0.05)(B, S, D)), 'w_in': _w((lambda *s: torch.randn(*s, dtype=torch.bfloat16) * 0.4)(D, 2 * Fh)), 'w_sp': _w(0.01 * (lambda *s: torch.randn(*s, dtype=torch.bfloat16) * 0.4)(S, S)), 'b_sp': _w(1.0 + 0.01 * (lambda *s: torch.randn(*s, dtype=torch.bfloat16) * 0.05)(S)), 'w_out': _w((lambda *s: torch.randn(*s, dtype=torch.bfloat16) * 0.05)(Fh, D))}
    _B_in = _B_setup()
    return {'A_x': _A_in['x'], 'A_c_kv': _A_in['c_kv'], 'A_w_q': _A_in['w_q'], 'A_w_uk': _A_in['w_uk'], 'A_w_uv': _A_in['w_uv'], 'A_w_o': _A_in['w_o'], 'B_x': _B_in['x'], 'B_w_in': _B_in['w_in'], 'B_w_sp': _B_in['w_sp'], 'B_b_sp': _B_in['b_sp'], 'B_w_out': _B_in['w_out']}

def reference(A_x, A_c_kv, A_w_q, A_w_uk, A_w_uv, A_w_o, B_x, B_w_in, B_w_sp, B_b_sp, B_w_out):

    def _A_ref(x, c_kv, w_q, w_uk, w_uv, w_o):
        B, Sq, M = (x.shape[0], x.shape[1], x.shape[2])
        Sk = c_kv.shape[1]
        H, D = (w_q.shape[1], w_q.shape[2])
        q = torch.einsum('bqm,mhd->bhqd', x, w_q)
        k = torch.einsum('bkc,chd->bhkd', c_kv, w_uk)
        v = torch.einsum('bkc,chd->bhkd', c_kv, w_uv)
        scores = torch.einsum('bhqd,bhkd->bhqk', q, k) * D ** (-0.5)
        off = Sk - Sq
        qi = torch.arange(Sq)[:, None]
        kj = torch.arange(Sk)[None, :]
        cmask = kj <= qi + off
        scores = torch.where(cmask[None, None], scores, -1000000000.0)
        p = _softmax(scores, axis=-1)
        ctx = torch.einsum('bhqk,bhkd->bhqd', p, v)
        return torch.einsum('bhqd,hdm->bqm', ctx, w_o)

    def _B_ref(x, w_in, w_sp, b_sp, w_out):
        B, S, D = x.shape
        F = w_in.shape[-1]
        Fh = F // 2
        z = _gelu(torch.einsum('bsd,df->bsf', x, w_in))
        z1 = z[..., :Fh].clone()
        z2 = _layernorm(z[..., Fh:], axis=-1)
        g = torch.einsum('ts,bsf->btf', w_sp, z2) + b_sp[None, :, None]
        return torch.einsum('bsf,fd->bsd', z1 * g, w_out)
    x = A_x
    xn = _layernorm(x, axis=-1)
    return x + _A_ref(xn, A_c_kv, A_w_q, A_w_uk, A_w_uv, A_w_o) + _B_ref(xn, B_w_in, B_w_sp, B_b_sp, B_w_out)
```

```python
def v(n, c=1):
    return f"v{n}" if c == 1 else f"v[{n}:{n + c - 1}]"


def a(n, c=1):
    return f"a{n}" if c == 1 else f"a[{n}:{n + c - 1}]"


def s(n, c=1):
    return f"s{n}" if c == 1 else f"s[{n}:{n + c - 1}]"


def R(spec, c=1):
    return (v if spec[0] == 'v' else a)(spec[1], c)


def I(text):
    return ('i', text)


def VM(text, tag=None):
    return ('vm', text, tag)


def LG(text, tag=None):
    return ('lg', text, tag)


def WVM(tag):
    return ('wvm', tag)


def WLG(tag):
    return ('wlg', tag)


WVM0 = ('wvm0',)
WLG0 = ('wlg0',)
WALL0 = ('wall0',)


def mfma(d, A, B, C=None):
    ds = R(d, 16)
    cs = ds if C is None else ("0" if C == 0 else R(C, 16))
    return ('i', f"v_mfma_f32_32x32x16_bf16 {ds}, {R(A, 4)}, {R(B, 4)}, {cs}")


def flat(items):
    out = []
    for it in items:
        if isinstance(it, list):
            out.extend(flat(it))
        elif isinstance(it, str):
            for line in it.split("\n"):
                line = line.strip()
                if line:
                    out.append(('i', line))
        else:
            out.append(it)
    return out


def weave(main, fillers, start=0, end=None, lead=False):
    n = len(main)
    if end is None:
        end = n
    gaps = [[] for _ in range(n + 1)]
    ng = end - start
    nf = len(fillers)
    for i, f in enumerate(fillers):
        g = start + (i * ng) // nf if nf else 0
        gaps[g + (0 if lead else 1)].append(f)
    out = list(gaps[0])
    for i, m in enumerate(main):
        out.append(m)
        out.extend(gaps[i + 1])
    return flat(out)


def place(main, gapmap):
    out = list(gapmap.get(-1, []))
    for i, m in enumerate(main):
        out.append(m)
        out.extend(gapmap.get(i, []))
    return flat(out)


class Kern:
    def __init__(self, name):
        self.name = name
        self.lines = []
        self.vm = []
        self.lg = []
        self.lg_has_smem = False

    def raw(self, text):
        self.lines.append(text)

    def label(self, name):
        self.lines.append(f"{name}:")

    def comment(self, text):
        self.lines.append(f"    ; {text}")

    def set_state(self, vm=None, lg=None):
        if vm is not None:
            self.vm = list(vm)
        if lg is not None:
            self.lg = list(lg)

    def _wait(self, fifo, tag, nm, mx):
        last = -1
        for i, t in enumerate(fifo):
            if t == tag:
                last = i
        if last < 0:
            return fifo
        n = len(fifo) - 1 - last
        n = min(n, mx)
        self.lines.append(f"    s_waitcnt {nm}({n})")
        return fifo[len(fifo) - n:] if n else []

    def emit(self, *items):
        for it in flat(list(items)):
            k = it[0]
            if k == 'i':
                if it[1].endswith(":"):
                    self.lines.append(it[1])
                else:
                    self.lines.append("    " + it[1])
            elif k == 'vm':
                self.lines.append("    " + it[1])
                self.vm.append(it[2])
                assert len(self.vm) <= 63, "vmcnt overflow"
            elif k == 'lg':
                self.lines.append("    " + it[1])
                self.lg.append(it[2])
            elif k == 'wvm':
                self.vm = self._wait(self.vm, it[1], "vmcnt", 63)
            elif k == 'wlg':
                self.lg = self._wait(self.lg, it[1], "lgkmcnt", 15)
            elif k == 'wvm0':
                self.lines.append("    s_waitcnt vmcnt(0)")
                self.vm = []
            elif k == 'wlg0':
                self.lines.append("    s_waitcnt lgkmcnt(0)")
                self.lg = []
            elif k == 'wall0':
                self.lines.append("    s_waitcnt vmcnt(0) lgkmcnt(0)")
                self.vm = []
                self.lg = []
            else:
                raise ValueError(it)

    def text(self, nvgpr, accum, nsgpr=102):
        t = [f".globl {self.name}", ".p2align 8", f".type {self.name},@function", f"{self.name}:"]
        t += self.lines
        desc = [
            f".amdhsa_kernel {self.name}",
            f"  .amdhsa_next_free_vgpr {nvgpr}",
            f"  .amdhsa_next_free_sgpr {nsgpr}",
            f"  .amdhsa_accum_offset {accum}",
            "  .amdhsa_group_segment_fixed_size 0",
            "  .amdhsa_kernarg_size 112",
            "  .amdhsa_user_sgpr_count 2",
            "  .amdhsa_user_sgpr_kernarg_segment_ptr 1",
            "  .amdhsa_system_sgpr_workgroup_id_x 1",
            ".end_amdhsa_kernel",
        ]
        return "\n".join(t), "\n".join(desc)


def srd(dst, ptr, nbytes):
    return [
        f"s_mov_b32 s{dst}, s{ptr}",
        f"s_mov_b32 s{dst + 1}, s{ptr + 1}",
        f"s_mov_b32 s{dst + 2}, {nbytes:#x}",
        f"s_mov_b32 s{dst + 3}, 0x20000",
    ]


def fbits(x):
    import struct
    return "0x%08x" % struct.unpack("<I", struct.pack("<f", x))[0]


import os
PROF = os.environ.get("PROF", "0") == "1"
WS_PROF = 0x8000000


def stamp(k, i):
    if not PROF:
        return
    k.emit("s_memtime s[78:79]", WLG0, f"s_mov_b32 s{80 + i}, s78")


def stamp_init(k):
    if not PROF:
        return
    for i in range(16):
        k.emit(f"s_mov_b32 s{80 + i}, 0")


def stamp_store(k, kidx, SS, sW, vt):
    if not PROF:
        return
    k.emit("s_mov_b64 exec, -1")
    for i in range(16):
        k.emit(f"v_mov_b32 v{vt + i}, s{80 + i}")
    k.emit(f"s_lshl_b32 s78, s2, 2\ns_add_u32 s78, s78, s{sW}\ns_lshl_b32 s78, s78, 6\ns_add_u32 s78, s78, {WS_PROF + kidx * 65536}")
    k.emit(f"v_mov_b32 v{vt + 16}, 0\ns_mov_b64 exec, 1")
    for i in range(4):
        k.emit(f"buffer_store_dwordx4 v[{vt + 4 * i}:{vt + 4 * i + 3}], v{vt + 16}, s[{SS}:{SS + 3}], s78 offen offset:{16 * i}")
```

```python
WS_XN = 0x0000000
WS_KF = 0x0200000
WS_VF = 0x1200000
WS_Z1 = 0x2200000
WS_Z2N = 0x2500000
WS_STAT = 0x2800000
WS_CTXU = 0x2900000
WS_SIZE = 0x10000000

CTXU_STEPS = 304

KA_X, KA_CKV, KA_WQ, KA_WUK, KA_WUV, KA_WO, KA_BX, KA_WIN, KA_WSP, KA_BSP, KA_WOUT, KA_OUT, KA_DBG, KA_WS = [
    8 * i for i in range(14)]

LOG2E = 1.4426950408889634
GELU_C0 = -2.0 * LOG2E * 0.7978845608028654
GELU_C1 = GELU_C0 * 0.044715
QSCALE = LOG2E / (128.0 ** 0.5)
LN_EPS = 1e-5
```

```python
from asmlib import *
from common import *

SX, SC, SW, SI, SS, SD = 8, 12, 16, 20, 24, 28
sW, sRB, sCB, sNB, sMB, sRS, sCH = 32, 33, 34, 35, 36, 37, 38
sWI, sWM, sT, sXO, sCK, sWK, sBM, sIT, sKO, sT2 = 56, 57, 58, 59, 60, 61, 62, 63, 64, 65
sONES, sSTAT, sCNT = 66, 67, 68

vCD = 1
vWD = 9
vCR = 17
vWR = 21
vL16 = 33
vWID = 34
vWIR = 37
vX = 39
vT = 40
ZACC = 64
XF = 128
aWF = 64
aST = 128

RING = 65536
SLOT = 24576
SCR = 131072


def acc(t):
    return ('v', 64 + 16 * t) if t < 12 else ('a', (t - 12) * 16)


def win_dma(j):
    out = []
    for p in range(2):
        g = [I(f"s_add_u32 m0, s{sWM}, {(j % 4) * SLOT + p * 12288}"),
             I(f"s_add_u32 s{sT}, s{sWI}, {j * 64 * 2752 + p * 1376}")]
        for i in range(3):
            g.append(VM(f"buffer_load_dwordx4 {v(vWID + i)}, {s(SI, 4)}, s{sT} offen offset:{1024 * i} lds", f"wi{j}"))
        out.append(g)
    return out


def kv_dma(buf, half, tag):
    out = []
    base = buf * 65536 + half * 32768
    vreg = vCD if half == 0 else vWD
    srd_ = SC if half == 0 else SW
    so = sCK if half == 0 else sWK
    for i in range(8):
        g = []
        if i % 4 == 0:
            g.append(I(f"s_add_u32 m0, s{sBM}, {base + (i // 4) * 4096}"))
            g.append(I("s_nop 0"))
        g.append(VM(f"buffer_load_dwordx4 {v(vreg + i)}, {s(srd_, 4)}, s{so} offen offset:{1024 * (i % 4)} lds", tag))
        if i == 7:
            g.append(I(f"s_add_u32 s{so}, s{so}, {128 if half == 0 else 64 * 8192}"))
        out.append(g)
    return out


def kv_reads(c):
    buf, k16 = (c // 4) % 2, c % 4
    fb = aWF + (c % 2) * 32
    out = []
    for ks in range(4):
        out.append(LG(f"ds_read_b128 {a(fb + 4 * ks, 4)}, {v(vCR + buf * 8 + k16)} offset:{ks * 4096}", f"r{c % 2}"))
    for d in range(4):
        for sec in range(2):
            out.append(LG(f"ds_read_b64_tr_b16 {a(fb + 16 + 4 * d + 2 * sec, 2)}, {v(vWR + buf * 8 + d)} "
                          f"offset:{k16 * 8192 + sec * 2048}", f"r{c % 2}"))
    return out


def kv_mfmas(c, vtype, first=False):
    fb = aWF + (c % 2) * 32
    out = []
    for ks in range(4):
        for d in range(4):
            cf, wf = ('a', fb + 4 * ks), ('a', fb + 16 + 4 * d)
            A, B = (cf, wf) if vtype else (wf, cf)
            out.append(mfma(acc(ks * 4 + d), A, B, 0 if first else None))
    return out


def interleave(x, y):
    out = []
    n = max(len(x), len(y))
    for i in range(n):
        if i < len(x):
            out.append(x[i])
        if i < len(y):
            out.append(y[i])
    return out


def kv_substep(k, c, vtype, first=False):
    E = k.emit
    E(WLG(f"r{c % 2}"))
    fill = []
    if c % 4 == 3:
        E(WVM0, "s_barrier")
        fill = interleave(kv_reads(c + 1), kv_dma(c // 4, 0, "kv"))
    elif c % 4 == 0:
        fill = interleave(kv_reads(c + 1), kv_dma(1 - c // 4, 1, "kv"))
    else:
        fill = kv_reads(c + 1)
    if c == 1:
        fill = fill + [[I(f"s_cmp_eq_u32 s{sIT}, 3"),
                        I(f"s_cselect_b32 s{SC + 2}, 0, s{SC + 2}"),
                        I(f"s_cselect_b32 s{SW + 2}, 0, s{SW + 2}")]]
    E(weave(kv_mfmas(c, vtype, first), fill, 0, 14))


def gelu(regs, vC0, vC1, tmp):
    out = []
    for i in range(0, len(regs), 4):
        g = regs[i:i + 4]
        t = [tmp + j for j in range(4)]
        for x, tt in zip(g, t):
            out.append(f"v_mul_f32 v{tt}, v{x}, v{x}")
        for x, tt in zip(g, t):
            out.append(f"v_fma_f32 v{tt}, v{tt}, v{vC1}, v{vC0}")
        for x, tt in zip(g, t):
            out.append(f"v_mul_f32 v{tt}, v{tt}, v{x}")
        for x, tt in zip(g, t):
            out.append(f"v_exp_f32 v{tt}, v{tt}")
        for x, tt in zip(g, t):
            out.append(f"v_add_f32 v{tt}, 1.0, v{tt}")
        for x, tt in zip(g, t):
            out.append(f"v_rcp_f32 v{tt}, v{tt}")
        for x, tt in zip(g, t):
            out.append(f"v_mul_f32 v{x}, v{x}, v{tt}")
    return out


def z_gemm(k, z2):
    E = k.emit

    def reads(c):
        j, cs = c // 4, c % 4
        slot = j % 4
        areg = vWIR + (slot // 2)
        base = (slot % 2) * SLOT + cs * 3072
        fb = aWF + (c % 2) * 12
        out = []
        for f in range(3):
            for sec in range(2):
                out.append(LG(f"ds_read_b64_tr_b16 {a(fb + 4 * f + 2 * sec, 2)}, {v(areg)} "
                              f"offset:{base + sec * 768 + f * 64}", f"z{c % 2}"))
        return out

    def mf(c):
        fb = aWF + (c % 2) * 12
        out = []
        for f in range(3):
            wf, xf = ('a', fb + 4 * f), ('v', XF + 4 * c)
            A, B = (xf, wf) if z2 else (wf, xf)
            out.append(mfma(('v', ZACC + 16 * f), A, B, 0 if c == 0 else None))
        return out

    E(reads(0))
    for c in range(32):
        E(WLG(f"z{c % 2}"))
        fill = []
        if c % 4 == 3:
            j = c // 4
            if j < 7:
                E(WVM(f"wi{j + 1}"))
            E("s_barrier")
            if c + 1 < 32:
                fill += reads(c + 1)
            if j + 4 < 8:
                fill += win_dma(j + 4)
            if j == 7:
                fill += kv_dma(1, 0, "kv")
        else:
            fill += reads(c + 1)
        E(weave(mf(c), fill, 0, 3, lead=True))


def build():
    k = Kern("k1_kernel")
    E = k.emit
    E("s_cmp_ge_u32 s2, 256\ns_cbranch_scc1 K1_END")
    stamp_init(k)
    stamp(k, 0)
    E(f"s_load_dwordx4 s[40:43], s[0:1], {KA_X}")
    E(f"s_load_dwordx4 s[44:47], s[0:1], {KA_WUK}")
    E(f"s_load_dwordx2 s[48:49], s[0:1], {KA_WIN}")
    E(f"s_load_dwordx4 s[52:55], s[0:1], {KA_DBG}")
    E("v_lshrrev_b32 v1, 6, v0\nv_and_b32 v0, 63, v0")
    E(f"s_lshr_b32 s{sRB}, s2, 3\ns_and_b32 s{sCB}, s2, 7")
    E(f"v_readfirstlane_b32 s{sW}, v1")
    E(f"s_and_b32 s{sNB}, s{sRB}, 3\ns_lshl_b32 s{sT}, s{sCB}, 2\ns_add_u32 s{sNB}, s{sNB}, s{sT}")
    E(f"s_lshr_b32 s{sMB}, s{sRB}, 2")
    E(f"s_and_b32 s{sRS}, s{sW}, 1\ns_lshr_b32 s{sCH}, s{sW}, 1")
    E("v_and_b32 v40, 31, v0\nv_lshrrev_b32 v41, 5, v0\nv_lshrrev_b32 v42, 4, v0")
    E("v_bfe_u32 v43, v0, 2, 2\nv_and_b32 v44, 3, v0\nv_bfe_u32 v45, v0, 4, 1")
    E(f"v_lshlrev_b32 v{vL16}, 4, v0")
    E(f"v_lshlrev_b32 v{vX}, 10, v40\nv_lshl_add_u32 v{vX}, v41, 4, v{vX}")
    E(f"s_lshl_b32 s{sT}, s{sCH}, 9\nv_add_u32 v{vX}, s{sT}, v{vX}")
    E(f"s_lshl_b32 s{sXO}, s{sRB}, 16\ns_lshl_b32 s{sT}, s{sRS}, 15\ns_add_u32 s{sXO}, s{sXO}, s{sT}")
    E("s_waitcnt lgkmcnt(0)")
    E(srd(SX, 40, 2048 * 1024), srd(SC, 42, 2048 * 1024), srd(SI, 48, 512 * 2752), srd(SS, 54, WS_SIZE), srd(SD, 52, 256))
    E(f"s_cmp_lt_u32 s{sNB}, 16\ns_cselect_b32 s{SW}, s44, s46\ns_cselect_b32 s{SW + 1}, s45, s47")
    E(f"s_mov_b32 s{SW + 2}, {512 * 8192:#x}\ns_mov_b32 s{SW + 3}, 0x20000")
    for j in range(16):
        E(VM(f"buffer_load_dwordx4 {v(XF + 4 * j, 4)}, v{vX}, {s(SX, 4)}, s{sXO} offen offset:{32 * j}", "x"))
    for i in range(3):
        E(f"v_add_u32 v46, {64 * i}, v0")
        E("v_mul_u32_u24 v47, 43691, v46\nv_lshrrev_b32 v47, 19, v47")
        E("v_mul_u32_u24 v48, 12, v47\nv_sub_u32 v48, v46, v48")
        E("v_mul_u32_u24 v47, 2752, v47")
        E(f"v_lshl_add_u32 v{vWID + i}, v48, 4, v47")
        if i:
            E(f"v_subrev_u32 v{vWID + i}, {1024 * i}, v{vWID + i}")
    E(f"s_mul_i32 s{sWI}, s{sW}, {16 * 2752}\ns_mul_i32 s{sT}, s{sCB}, 192\ns_add_u32 s{sWI}, s{sWI}, s{sT}")
    E(f"s_mul_i32 s{sWM}, s{sW}, 3072\ns_add_u32 s{sWM}, s{sWM}, {RING}")
    for j in range(4):
        E(win_dma(j))
    E("v_lshl_add_u32 v46, v41, 3, v43\nv_mul_u32_u24 v46, 192, v46")
    E("v_lshl_add_u32 v46, v45, 5, v46\nv_lshl_add_u32 v46, v44, 3, v46")
    E(f"s_mul_i32 s{sT}, s{sCH}, 12288\ns_add_u32 s{sT}, s{sT}, {RING}")
    E(f"v_add_u32 v{vWIR}, s{sT}, v46\nv_add_u32 v{vWIR + 1}, {2 * SLOT}, v{vWIR}")
    E("v_lshrrev_b32 v46, 3, v0\nv_lshlrev_b32 v46, 10, v46\nv_and_b32 v47, 7, v0\nv_xor_b32 v47, v47, v42")
    E("v_lshl_add_u32 v48, v47, 4, v46\nv_xor_b32 v47, 4, v47\nv_lshl_add_u32 v49, v47, 4, v46")
    for i in range(8):
        E(f"v_add_u32 v{vCD + i}, {i * 8192 - (i % 4) * 1024}, v{48 + (i % 2)}")
    E("v_bfe_u32 v46, v0, 2, 3\nv_xor_b32 v46, v46, v41")
    E("v_lshlrev_b32 v47, 13, v41\nv_lshl_add_u32 v47, v44, 4, v47")
    E("v_lshl_add_u32 v48, v46, 6, v47\nv_xor_b32 v46, 2, v46\nv_lshl_add_u32 v49, v46, 6, v47")
    for i in range(8):
        E(f"v_add_u32 v{vWD + i}, {2 * i * 8192 - (i % 4) * 1024}, v{48 + (i % 2)}")
    E("v_bfe_u32 v46, v0, 1, 3\nv_xor_b32 v46, v46, v41")
    E(f"s_lshl_b32 s{sT}, s{sRS}, 14\nv_lshlrev_b32 v47, 7, v40\nv_add_u32 v47, s{sT}, v47")
    for k16 in range(4):
        E(f"v_xor_b32 v48, {2 * k16}, v46\nv_lshl_add_u32 v{vCR + k16}, v48, 4, v47")
        E(f"v_add_u32 v{vCR + 8 + k16}, 0x10000, v{vCR + k16}")
    E("v_lshl_add_u32 v46, v41, 3, v43\nv_lshlrev_b32 v46, 9, v46")
    E("v_lshl_add_u32 v46, v45, 5, v46\nv_lshl_add_u32 v46, v44, 3, v46")
    E(f"s_lshl_b32 s{sT}, s{sCH}, 8\ns_add_u32 s{sT}, s{sT}, 32768\nv_add_u32 v46, s{sT}, v46")
    for d in range(4):
        E(f"v_xor_b32 v48, {d}, v43\nv_lshl_add_u32 v{vWR + d}, v48, 6, v46")
        E(f"v_add_u32 v{vWR + 8 + d}, 0x10000, v{vWR + d}")
    E(f"s_lshl_b32 s{sCK}, s{sMB}, 18\ns_lshl_b32 s{sT}, s{sW}, 16\ns_add_u32 s{sCK}, s{sCK}, s{sT}")
    E(f"s_lshl_b32 s{sWK}, s{sW}, 17\ns_and_b32 s{sT}, s{sNB}, 15\ns_lshl_b32 s{sT}, s{sT}, 9\ns_add_u32 s{sWK}, s{sWK}, s{sT}")
    E(f"s_lshl_b32 s{sBM}, s{sW}, 13")
    E(f"s_mov_b32 s{sONES}, 0x3f803f80")
    for i in range(4):
        E(f"v_mov_b32 v{50 + i}, 0")
    E(WVM("x"))
    stamp(k, 1)
    for j in range(64):
        E(f"v_dot2_f32_bf16 v{50 + (j % 2)}, v{XF + j}, s{sONES}, v{50 + (j % 2)}")
        E(f"v_dot2_f32_bf16 v{52 + (j % 2)}, v{XF + j}, v{XF + j}, v{52 + (j % 2)}")
    E("s_nop 2\nv_add_f32 v50, v50, v51\nv_add_f32 v51, v52, v53")
    E("v_mov_b32 v52, v50\nv_mov_b32 v53, v51\ns_nop 1")
    E("v_permlane32_swap_b32 v50, v52\nv_permlane32_swap_b32 v51, v53")
    E("s_nop 1\nv_add_f32 v50, v50, v52\nv_add_f32 v51, v51, v53")
    E(f"s_lshl_b32 s{sT}, s{sRS}, 15\ns_lshl_b32 s{sT2}, s{sCH}, 14\ns_add_u32 s{sT}, s{sT}, s{sT2}")
    E(f"v_lshlrev_b32 v46, 3, v40\nv_add_u32 v46, s{sT}, v46\nv_xor_b32 v47, 0x4000, v46")
    E(f"v_add_u32 v48, s{sT}, v{vL16}")
    E(LG("ds_write_b64 v47, v[50:51]"), WLG0, "s_barrier")
    E(LG("ds_read_b64 v[52:53], v46"), WLG0)
    E("v_add_f32 v50, v50, v52\nv_add_f32 v51, v51, v53")
    E(f"v_mul_f32 v50, {fbits(1 / 512)}, v50\nv_mul_f32 v51, {fbits(1 / 512)}, v51")
    E("v_fma_f32 v51, -v50, v50, v51\nv_max_f32 v51, 0, v51")
    E(f"v_add_f32 v51, {fbits(LN_EPS)}, v51\nv_rsq_f32 v51, v51\ns_nop 0")
    E("v_mul_f32 v50, v50, v51\nv_sub_f32 v50, 0, v50")
    for j in range(16):
        for i in range(4):
            x = XF + 4 * j + i
            t0, t1 = 54 + 2 * (i % 2), 55 + 2 * (i % 2)
            E(f"v_lshlrev_b32 v{t0}, 16, v{x}\nv_and_b32 v{t1}, 0xffff0000, v{x}")
            E(f"v_fma_f32 v{t0}, v{t0}, v51, v50\nv_fma_f32 v{t1}, v{t1}, v51, v50")
            E(f"v_cvt_pk_bf16_f32 v{x}, v{t0}, v{t1}")
        E(LG(f"ds_write_b128 v48, {v(XF + 4 * j, 4)} offset:{1024 * j}"))
    E(WLG0, "s_barrier")
    E(f"s_lshl_b32 s{sT}, s{sCB}, 13\ns_lshl_b32 s{sT2}, s{sW}, 11\ns_add_u32 s{sT}, s{sT}, s{sT2}")
    E(f"v_add_u32 v46, s{sT}, v{vL16}")
    E(LG("ds_read_b128 v[52:55], v46", "c0"), LG("ds_read_b128 v[56:59], v46 offset:1024", "c1"))
    E(f"s_lshl_b32 s{sT}, s{sRS}, 15\nv_add_u32 v47, s{sT}, v{vL16}")
    E(f"s_lshl_b32 s{sT2}, s{sRB}, 16\ns_add_u32 s{sT2}, s{sT2}, {WS_XN}")
    E(WLG("c1"))
    E(VM(f"buffer_store_dwordx4 v[52:55], v46, {s(SS, 4)}, s{sT2} offen"))
    E(VM(f"buffer_store_dwordx4 v[56:59], v46, {s(SS, 4)}, s{sT2} offen offset:1024"))
    for c in range(32):
        E(LG(f"ds_read_b128 {v(XF + 4 * c, 4)}, v47 offset:{1024 * c}"))
    E(WLG0, WVM("wi0"), "s_barrier")
    stamp(k, 2)
    E(kv_dma(0, 0, "kv"), kv_dma(0, 1, "kv"))
    E(f"v_mov_b32 v60, {fbits(GELU_C0)}\nv_mov_b32 v61, {fbits(GELU_C1)}")
    E(f"s_cmp_eq_u32 s{sCH}, 1\ns_cbranch_scc1 K1_Z2")
    st = (list(k.vm), list(k.lg))
    zr = list(range(ZACC, ZACC + 48))
    z_gemm(k, False)
    stamp(k, 3)
    E("s_nop 15")
    E(gelu(zr, 60, 61, 52))
    E(f"s_cmp_lg_u32 s{sCB}, 7\ns_cbranch_scc1 K1_Z1_NOMASK")
    for r in zr[8:]:
        E(f"v_mov_b32 v{r}, 0")
    E("K1_Z1_NOMASK:")
    E(f"s_lshl_b32 s{sT}, s{sRB}, 1\ns_add_u32 s{sT}, s{sT}, s{sRS}\ns_mul_i32 s{sT}, s{sT}, 48")
    E(f"s_mul_i32 s{sT2}, s{sCB}, 6\ns_add_u32 s{sT}, s{sT}, s{sT2}\ns_lshl_b32 s{sT}, s{sT}, 10")
    E(f"s_add_u32 s{sT}, s{sT}, {WS_Z1}\ns_add_u32 s{sT2}, s{sT}, 4096")
    for fg in range(6):
        b = ZACC + 8 * fg
        for i in range(4):
            E(f"v_cvt_pk_bf16_f32 v{b + i}, v{b + 2 * i}, v{b + 2 * i + 1}")
        E(VM(f"buffer_store_dwordx4 {v(b, 4)}, v{vL16}, {s(SS, 4)}, s{sT if fg < 4 else sT2} offen offset:{1024 * (fg % 4)}"))
    E("s_branch K1_KV")
    k.set_state(*st)
    E("K1_Z2:")
    z_gemm(k, True)
    stamp(k, 3)
    E("s_nop 15")
    E(gelu(zr, 60, 61, 52))
    E(f"s_cmp_lg_u32 s{sCB}, 7\ns_cbranch_scc1 K1_Z2_NOMASK")
    E("v_cmp_gt_u32 vcc, 16, v40\ns_nop 1")
    for r in zr[:16]:
        E(f"v_cndmask_b32 v{r}, 0, v{r}, vcc")
    for r in zr[16:]:
        E(f"v_mov_b32 v{r}, 0")
    E("K1_Z2_NOMASK:")
    for r in range(16):
        z0, z1, z2_ = ZACC + r, ZACC + 16 + r, ZACC + 32 + r
        E(f"v_add_f32 v{XF + r}, v{z0}, v{z1}\nv_mul_f32 v{XF + 16 + r}, v{z0}, v{z0}")
        E(f"v_add_f32 v{XF + r}, v{XF + r}, v{z2_}\nv_fmac_f32 v{XF + 16 + r}, v{z1}, v{z1}")
        E(f"v_fmac_f32 v{XF + 16 + r}, v{z2_}, v{z2_}")
    for r in range(48):
        E(f"v_accvgpr_write_b32 a{aST + r}, v{ZACC + r}")
    E(f"s_mul_i32 s{sT}, s{sRS}, 9216\ns_add_u32 s{sT}, s{sT}, {SCR}")
    E(f"v_mul_u32_u24 v46, {4 * 144}, v41\nv_lshl_add_u32 v46, v40, 2, v46\nv_add_u32 v46, s{sT}, v46")
    for stt in range(2):
        for r in range(16):
            srow = 8 * (r // 4) + r % 4
            E(LG(f"ds_write_b32 v46, v{XF + 16 * stt + r} offset:{(stt * 32 + srow) * 144}"))
    E(f"v_mul_u32_u24 v47, 144, v0\nv_add_u32 v47, s{sT}, v47")
    E(WLG0)
    for i in range(8):
        E(LG(f"ds_read_b128 {v(XF + 32 + 4 * i, 4)}, v47 offset:{16 * i}"))
    E(WLG0)
    for stride in (16, 8, 4, 2, 1):
        for i in range(stride):
            E(f"v_add_f32 v{XF + 32 + i}, v{XF + 32 + i}, v{XF + 32 + stride + i}")
    E(f"s_lshl_b32 s{sSTAT}, s{sRB}, 1\ns_add_u32 s{sSTAT}, s{sSTAT}, s{sRS}\ns_lshl_b32 s{sCNT}, s{sSTAT}, 2")
    E(f"s_lshl_b32 s{sSTAT}, s{sSTAT}, 11\ns_add_u32 s{sSTAT}, s{sSTAT}, {WS_STAT}")
    E(f"s_lshl_b32 s{sT}, s{sCB}, 8\ns_add_u32 s{sT}, s{sT}, s{sSTAT}")
    E("v_lshlrev_b32 v46, 2, v0")
    E(VM(f"buffer_store_dword v{XF + 32}, v46, {s(SS, 4)}, s{sT} offen sc0 sc1"))
    E(WVM0)
    E("v_mov_b32 v47, 1\nv_mov_b32 v48, 0\nv_cmp_eq_u32 vcc, 0, v0\ns_and_saveexec_b64 s[70:71], vcc")
    E(VM(f"buffer_atomic_add v47, v48, {s(SD, 4)}, s{sCNT} offen sc1"))
    E("s_mov_b64 exec, s[70:71]")
    E("K1_KV:")
    k.set_state([], [])
    stamp(k, 4)
    E(WALL0, "s_barrier")
    stamp(k, 5)
    E(f"s_mov_b32 s{sIT}, 0")
    E(kv_reads(0))
    E(f"s_cmp_ge_u32 s{sNB}, 16\ns_cbranch_scc1 K1_VPRE")
    st = (list(k.vm), list(k.lg))
    for vtype in (False, True):
        nm = "V" if vtype else "K"
        k.set_state(*st)
        if vtype:
            E("K1_VPRE:")
        kv_substep(k, 0, vtype, first=True)
        st1 = (list(k.vm), list(k.lg))
        E(f"s_branch K1_{nm}C1")
        E(f"K1_{nm}LOOP:")
        k.set_state(["kv"] * 8, ["r0"] * 12)
        kv_substep(k, 0, vtype)
        E(f"K1_{nm}C1:")
        for c in range(1, 8):
            kv_substep(k, c, vtype)
        E(f"s_add_u32 s{sIT}, s{sIT}, 1\ns_cmp_lt_u32 s{sIT}, 4\ns_cbranch_scc1 K1_{nm}LOOP")
        if not vtype:
            E("s_branch K1_EPI")
    E("K1_EPI:")
    k.set_state([], [])
    E(WALL0, "s_nop 15")
    stamp(k, 6)
    E(f"s_lshl_b32 s{sKO}, s{sNB}, 1\ns_add_u32 s{sKO}, s{sKO}, s{sCH}\ns_lshl_b32 s{sKO}, s{sKO}, 6")
    E(f"s_lshl_b32 s{sT}, s{sMB}, 3\ns_add_u32 s{sKO}, s{sKO}, s{sT}\ns_lshl_b32 s{sT}, s{sRS}, 2\ns_add_u32 s{sKO}, s{sKO}, s{sT}")
    E(f"s_lshl_b32 s{sKO}, s{sKO}, 13\ns_add_u32 s{sKO}, s{sKO}, {WS_KF}")
    for ks in range(4):
        for d in range(4):
            t = acc(ks * 4 + d)
            if d % 2 == 0:
                E(f"s_add_u32 s{sT}, s{sKO}, {ks * 8192 + (d // 2) * 4096}")
            for g in range(2):
                if t[0] == 'v':
                    b = t[1] + 8 * g
                else:
                    b = 40 + 8 * ((2 * d + g) % 3)
                    for i in range(8):
                        E(f"v_accvgpr_read_b32 v{b + i}, a{t[1] + 8 * g + i}")
                for i in range(4):
                    E(f"v_cvt_pk_bf16_f32 v{b + i}, v{b + 2 * i}, v{b + 2 * i + 1}")
                E(VM(f"buffer_store_dwordx4 {v(b, 4)}, v{vL16}, {s(SS, 4)}, s{sT} offen offset:{1024 * ((2 * d + g) % 4)}"))
    stamp(k, 7)
    E(f"s_cmp_eq_u32 s{sCH}, 0\ns_cbranch_scc1 K1_FIN_BAR")
    E("v_mov_b32 v64, 0")
    E("K1_POLL:")
    E(f"buffer_load_dword v65, v64, {s(SD, 4)}, s{sCNT} offen sc1")
    E("s_waitcnt vmcnt(0)\nv_readfirstlane_b32 s72, v65\ns_cmp_ge_u32 s72, 8\ns_cbranch_scc1 K1_FIN_BAR")
    E("s_sleep 2\ns_branch K1_POLL")
    E("K1_FIN_BAR:")
    E("s_barrier")
    stamp(k, 8)
    E(f"s_cmp_eq_u32 s{sCH}, 0\ns_cbranch_scc1 K1_DONE")
    k.set_state([], [])
    E("v_lshlrev_b32 v64, 2, v0\nv_and_b32 v40, 31, v0\nv_lshrrev_b32 v41, 5, v0")
    for i in range(8):
        E(VM(f"buffer_load_dword v{66 + i}, v64, {s(SS, 4)}, s{sSTAT} offen offset:{256 * i} sc0 sc1"))
    for r in range(48):
        E(f"v_accvgpr_read_b32 v{128 + r}, a{aST + r}")
    E(WVM0)
    E("v_add_f32 v66, v66, v67\nv_add_f32 v68, v68, v69\nv_add_f32 v70, v70, v71\nv_add_f32 v72, v72, v73")
    E("v_add_f32 v66, v66, v68\nv_add_f32 v70, v70, v72\nv_add_f32 v66, v66, v70")
    E("v_mov_b32 v67, v66\ns_nop 1\nv_permlane32_swap_b32 v66, v67\ns_nop 1")
    E(f"v_mul_f32 v66, {fbits(1 / 688)}, v66\nv_mul_f32 v67, {fbits(1 / 688)}, v67")
    E("v_fma_f32 v67, -v66, v66, v67\nv_max_f32 v67, 0, v67")
    E(f"v_add_f32 v67, {fbits(LN_EPS)}, v67\nv_rsq_f32 v67, v67\ns_nop 0")
    E("v_mul_f32 v66, v66, v67\nv_sub_f32 v66, 0, v66")
    E(f"s_lshl_b32 s{sT}, s{sRS}, 8\ns_add_u32 s{sT}, s{sT}, {SCR}")
    E(f"v_lshlrev_b32 v68, 2, v40\nv_add_u32 v68, s{sT}, v68")
    E(LG("ds_write_b32 v68, v67"), LG("ds_write_b32 v68, v66 offset:128"))
    E(f"v_lshlrev_b32 v69, 4, v41\nv_add_u32 v69, s{sT}, v69")
    E(WLG0)
    for g in range(4):
        E(LG(f"ds_read_b128 {v(80 + 4 * g, 4)}, v69 offset:{32 * g}"))
        E(LG(f"ds_read_b128 {v(96 + 4 * g, 4)}, v69 offset:{128 + 32 * g}"))
    E(f"s_mul_i32 s{sT}, s{sCB}, 384\ns_lshl_b32 s{sT2}, s{sRB}, 2\ns_add_u32 s{sT}, s{sT}, s{sT2}")
    E(f"s_lshl_b32 s{sT2}, s{sRS}, 1\ns_add_u32 s{sT}, s{sT}, s{sT2}\ns_lshl_b32 s{sT}, s{sT}, 10\ns_add_u32 s{sT}, s{sT}, {WS_Z2N}")
    E(WLG0)
    for f in range(3):
        for r in range(16):
            x = 128 + 16 * f + r
            E(f"v_fma_f32 v{x}, v{x}, v{80 + r}, v{96 + r}")
        for g in range(2):
            b = 128 + 16 * f + 8 * g
            for i in range(4):
                E(f"v_cvt_pk_bf16_f32 v{b + i}, v{b + 2 * i}, v{b + 2 * i + 1}")
            E("s_nop 1")
            E(f"v_permlane32_swap_b32 v{b}, v{b + 2}\nv_permlane32_swap_b32 v{b + 1}, v{b + 3}")
            E("s_nop 1")
            E(VM(f"buffer_store_dwordx4 {v(b, 4)}, v{vL16}, {s(SS, 4)}, s{sT} offen offset:{1024 * g}"))
        if f < 2:
            E(f"s_add_u32 s{sT}, s{sT}, {128 * 1024}")
    E("K1_DONE:")
    E(WVM0)
    stamp(k, 9)
    stamp_store(k, 0, SS, sW, 200)
    E("K1_END:")
    E("s_endpgm")
    return k.text(512, 256)
```

```python
from asmlib import *
from common import *
import os

THRESH = float(os.environ.get("THRESH", "16.0"))
BUDGET = int(os.environ.get("BUDGET", "24"))

SQ, SP, SB, SS = 8, 12, 16, 20
sW, sHD, sPI, sG, sRS = 32, 33, 34, 35, 36
sT, sT2, sNA, sU, sJ, sN, sLAST, sQB = 37, 38, 39, 40, 41, 42, 43, 44
sKB, sVB, sKO, sVO, sMK, sMV = 45, 46, 47, 48, 49, 50
sTH = (51, 52)
sLO = (53, 54)
sXN, sWQ, sWM, sBLK, sW8 = 55, 56, 57, 58, 59
sGP, sGZ, sGM = 60, 61, 62

vL16, vKc, vKn, vVp, vVc, vD, vNEG = 1, 2, 3, 4, 5, 6, 7
vLs = ((8, 9), (10, 11))
vNM = (12, 13)
vM = 14
vT = 20
vQD = 32
vQR = 36
S = (48, 64)
NEGM = (80, 96)
PB = 112
QBS = 144
aO = 0
aQ = 128
aK = 192
aV = 224

KB0, VB0, SPARE = 0, 65536, 131072
NEG = -1.0e30


def P(buf, x, i=0):
    return PB + (buf * 2 + x) * 8 + i


def kv_dma(which):
    so, sm = (sKO, sMK) if which == 'K' else (sVO, sMV)
    out = []
    for i in range(8):
        g = []
        if i == 0:
            g += [I(f"s_mov_b32 m0, s{sm}"), I("s_nop 0")]
        if i == 4:
            g += [I(f"s_add_u32 m0, s{sm}, 4096"), I(f"s_add_u32 s{so}, s{so}, 4096")]
        g.append(VM(f"buffer_load_dwordx4 v{vL16}, {s(SS, 4)}, s{so} offen offset:{1024 * (i % 4)} lds", "kv"))
        out.append(g)
    return out


def seq_off(dst, base, ahead):
    return [
        f"s_add_u32 s{sT}, s{sU}, {ahead}",
        f"s_sub_u32 s{sT2}, s{sT}, s{sNA}",
        f"s_cmp_lt_u32 s{sT}, s{sNA}",
        f"s_cselect_b32 s{sT2}, s{sT}, s{sT2}",
        f"s_lshl_b32 s{sT2}, s{sT2}, 15",
        f"s_add_u32 s{dst}, s{base}, s{sT2}",
        f"s_cmp_gt_u32 s{sT}, 16",
        f"s_cselect_b32 s{dst}, 0x20000000, s{dst}",
    ]


def qk(x):
    return [mfma(('v', S[x]), ('a', aK + 4 * d), ('a', aQ + (x * 8 + d) * 4), ('v', NEGM[x]) if d == 0 else None)
            for d in range(8)]


def pv(x, buf):
    out = []
    for g in range(2):
        for ds in range(4):
            out.append(mfma(('a', aO + (x * 4 + ds) * 16), ('a', aV + (ds * 2 + g) * 4), ('v', P(buf, x, 4 * g))))
    return out


def kreads(areg, th):
    return [LG(f"ds_read_b128 {a(aK + 4 * d, 4)}, v{areg} offset:{th * 8192 + d * 1024}", "k") for d in range(8)]


def vreads(areg, th):
    order = [0, 2, 4, 6, 1, 3, 5, 7]
    return [LG(f"ds_read_b128 {a(aV + 4 * f, 4)}, v{areg} offset:{th * 8192 + f * 1024}", "v") for f in order]


def sm_max(x):
    b = S[x]
    m = vM
    return [
        (4, I(f"v_max3_f32 v{m}, v{b}, v{b + 1}, v{b + 2}")),
        (4, I(f"v_max3_f32 v{m + 1}, v{b + 3}, v{b + 4}, v{b + 5}")),
        (4, I(f"v_max3_f32 v{m + 2}, v{b + 6}, v{b + 7}, v{b + 8}")),
        (4, I(f"v_max3_f32 v{m + 3}, v{b + 9}, v{b + 10}, v{b + 11}")),
        (4, I(f"v_max3_f32 v{m + 4}, v{b + 12}, v{b + 13}, v{b + 14}")),
        (4, I(f"v_max3_f32 v{m}, v{m}, v{m + 1}, v{b + 15}")),
        (4, I(f"v_max3_f32 v{m + 2}, v{m + 2}, v{m + 3}, v{m + 4}")),
        (4, I(f"v_max_f32 v{m}, v{m}, v{m + 2}")),
    ]


def sm_chk(x, buf):
    return (12, [I(f"v_cmp_lt_f32 vcc, s{sTH[x]}, v{vM}"), I("s_nop 0"),
                 I(f"s_cbranch_vccnz K2_RARE_{x}_{buf}"), I(f"K2_RET_{x}_{buf}:")])


def sm_exp(x, buf):
    b = S[x]
    items = []
    for i in range(8):
        items.append((8, I(f"v_exp_f32 v{b + 2 * i}, v{b + 2 * i}")))
        items.append((8, I(f"v_exp_f32 v{b + 2 * i + 1}, v{b + 2 * i + 1}")))
        if i > 0:
            items += sm_fin(x, buf, i - 1)
    items += [(4, I("s_nop 0"))] + sm_fin(x, buf, 7)
    return items


def sm_fin(x, buf, i):
    b = S[x]
    return [
        (4, I(f"v_add_f32 v{vLs[x][0]}, v{vLs[x][0]}, v{b + 2 * i}")),
        (4, I(f"v_add_f32 v{vLs[x][1]}, v{vLs[x][1]}, v{b + 2 * i + 1}")),
        (4, I(f"v_cvt_pk_bf16_f32 v{P(buf, x, i)}, v{b + 2 * i}, v{b + 2 * i + 1}")),
    ]


def schedule_loop():
    NG = 64
    gaps = [[] for _ in range(NG + 24)]
    used = [0] * (NG + 24)

    def fixed(g, cost, item):
        gaps[g].append(item)
        used[g] += cost

    for i, r in enumerate(vreads(vVp, 1)):
        fixed(0 + (i * 12) // 8, 4, r)
    for i, r in enumerate(kreads(vKc, 1)):
        fixed(16 + (i * 10) // 8, 4, r)
    for i, r in enumerate(vreads(vVc, 0)):
        fixed(32 + (i * 12) // 8, 4, r)
    for i, r in enumerate(kreads(vKn, 0)):
        fixed(48 + (i * 12) // 8, 4, r)
    so = [I(x) for x in seq_off(sKO, sKB, 2)]
    fixed(26, 16, so[:4])
    fixed(27, 16, so[4:])
    fixed(28, 8, [WALL0, I("s_barrier")])
    so = [I(x) for x in seq_off(sVO, sVB, 1)]
    fixed(44, 16, so[:4])
    fixed(45, 16, so[4:])
    for i, g in enumerate(kv_dma('K')):
        fixed(29 + 2 * i, 4 * len(g) + 4, g)
    for i, g in enumerate(kv_dma('V')):
        fixed(46 + 2 * i, 4 * len(g) + 4, g)
    for g in range(NG, NG + 24):
        used[g] = used[g - NG]
    for half in range(2):
        G = 8 + 32 * half
        buf = half
        ea = sm_exp(0, buf)
        eb = sm_exp(1, buf)
        state = {'g': G + 1}

        def put(early, ci, dry=False):
            cost, item = ci
            g = max(state['g'], early)
            while used[g] + cost > BUDGET + 4 or used[g] >= BUDGET:
                g += 1
            if dry:
                return g
            gaps[g].append(item)
            used[g] += cost
            if g >= NG:
                used[g - NG] += cost
            state['g'] = g
            return g

        for it in sm_max(0):
            put(G + 1, it)
        assert put(G + 1, sm_chk(0, buf)) <= G + 7
        n1 = 0
        while put(G + 1, ea[n1], dry=True) < G + 9:
            put(G + 1, ea[n1])
            n1 += 1
        for it in sm_max(1):
            put(G + 9, it)
        assert put(G + 9, sm_chk(1, buf)) <= G + 15
        for it in ea[n1:]:
            assert put(G + 9, it) <= G + 23
        for it in eb:
            last = put(G + 9, it)
            assert last <= G + 31, last
    wrapped = []
    for g in range(NG, NG + 24):
        wrapped += gaps[g]
    gm = {}
    for g in range(NG):
        gm[g] = (gaps[g + NG] if g < 24 else []) + gaps[g]
    return gm, wrapped, used[:NG]


def rare_path(k, x, buf):
    E = k.emit
    t = vT
    E(f"K2_RARE_{x}_{buf}:")
    E(f"v_mov_b32 v{t}, v{vM}\ns_nop 1\nv_permlane32_swap_b32 v{vM}, v{t}\ns_nop 1")
    E(f"v_max_f32 v{t}, v{t}, v{vM}\nv_ceil_f32 v{t}, v{t}\nv_max_f32 v{t}, s{sLO[x]}, v{t}")
    E(f"v_max_f32 v{t + 1}, 0, v{t}\nv_sub_f32 v{t + 1}, 0, v{t + 1}\nv_exp_f32 v{t + 1}, v{t + 1}")
    for r in range(16):
        E(f"v_sub_f32 v{S[x] + r}, v{S[x] + r}, v{t}")
        E(f"v_sub_f32 v{NEGM[x] + r}, v{NEGM[x] + r}, v{t}")
    E(f"v_sub_f32 v{vNM[x]}, v{vNM[x]}, v{t}")
    E(f"v_mul_f32 v{vLs[x][0]}, v{vLs[x][0]}, v{t + 1}\nv_mul_f32 v{vLs[x][1]}, v{vLs[x][1]}, v{t + 1}")
    for i in range(8):
        p = P(1 - buf, x, i)
        E(f"v_lshlrev_b32 v{t + 2}, 16, v{p}\nv_and_b32 v{t + 3}, 0xffff0000, v{p}")
        E(f"v_mul_f32 v{t + 2}, v{t + 2}, v{t + 1}\nv_mul_f32 v{t + 3}, v{t + 3}, v{t + 1}")
        E(f"v_cvt_pk_bf16_f32 v{p}, v{t + 2}, v{t + 3}")
    E("s_nop 15")
    for r in range(0, 64, 4):
        for i in range(4):
            E(f"v_accvgpr_read_b32 v{t + 2 + i}, a{aO + x * 64 + r + i}")
        for i in range(4):
            E(f"v_mul_f32 v{t + 2 + i}, v{t + 2 + i}, v{t + 1}")
        for i in range(4):
            E(f"v_accvgpr_write_b32 a{aO + x * 64 + r + i}, v{t + 2 + i}")
    E(f"s_mov_b32 s{sTH[x]}, {fbits(THRESH)}\ns_mov_b32 s{sLO[x]}, 0\ns_nop 1")
    E(f"s_branch K2_RET_{x}_{buf}")


def mask_path(k, x, th):
    E = k.emit
    E(f"K2_MASK_{x}_{th}:")
    for r in range(16):
        c = 32 * th - 32 * x + 8 * (r // 4) + r % 4
        E(f"v_cmp_gt_i32 vcc, {c}, v{vD}\ns_nop 1\nv_cndmask_b32 v{NEGM[x] + r}, v{vNM[x]}, v{vNEG}, vcc")
    E(f"s_nop 1\ns_branch K2_MRET_{x}_{th}")


def mask_call(x, th):
    return [I(f"s_cmp_lg_u32 s{sLAST}, 0"), I(f"s_cbranch_scc1 K2_MASK_{x}_{th}"), I(f"K2_MRET_{x}_{th}:")]


def qproj(k):
    E = k.emit
    QACC = 48
    aXN = 0
    aWF = 192

    def wq_dma(j):
        g = [I(f"s_add_u32 m0, s{sWM}, {j * 16384}"), I(f"s_add_u32 s{sT}, s{sWQ}, {j * 64 * 8192}")]
        for i in range(4):
            g.append(VM(f"buffer_load_dwordx4 v{vQD + i}, {s(SQ, 4)}, s{sT} offen offset:{1024 * i} lds", f"wq{j}"))
        return g

    def xn_loads(j):
        out = []
        for x in range(2):
            g = [I(f"s_add_u32 s{sT}, s{sXN}, {x * 32768 + j * 4096}")]
            for cs in range(4):
                g.append(VM(f"buffer_load_dwordx4 {a(aXN + (j % 4) * 32 + (x * 4 + cs) * 4, 4)}, v{vL16}, {s(SS, 4)}, "
                            f"s{sT} offen offset:{1024 * cs}", f"xn{j}"))
            out.append(g)
        return out

    def reads(c):
        j, cs = c // 4, c % 4
        fb = aWF + (c % 2) * 16
        out = []
        for d in range(4):
            for sec in range(2):
                out.append(LG(f"ds_read_b64_tr_b16 {a(fb + 4 * d + 2 * sec, 2)}, v{vQR + (j // 4) * 4 + d} "
                              f"offset:{(j % 4) * 16384 + cs * 4096 + sec * 1024}", f"q{c % 2}"))
        return out

    def mf(c):
        j, cs = c // 4, c % 4
        fb = aWF + (c % 2) * 16
        out = []
        for d in range(4):
            for x in range(2):
                out.append(mfma(('v', QACC + (x * 4 + d) * 16), ('a', fb + 4 * d),
                                ('a', aXN + (j % 4) * 32 + (x * 4 + cs) * 4), 0 if c == 0 else None))
        return out

    for j in range(4):
        E(wq_dma(j), xn_loads(j))
    for j in range(4, 7):
        E(wq_dma(j))
    E(WVM("wq0"), "s_barrier")
    E(reads(0))
    for c in range(32):
        j, cs = c // 4, c % 4
        E(WLG(f"q{c % 2}"))
        if cs == 0:
            E(WVM(f"xn{j}"))
        fill = []
        if cs == 3:
            if j < 7:
                E(WVM(f"wq{j + 1}"))
            E("s_barrier")
        if c + 1 < 32:
            fill += reads(c + 1)
        if cs == 0 and j == 1:
            fill += [wq_dma(7)]
        if cs == 0 and 1 <= j <= 4:
            fill += xn_loads(j + 3)
        if cs == 3 and j in (1, 3, 5):
            if j == 1:
                pre = [I(f"s_mov_b32 s{sKO}, s{sKB}"), I(f"s_mov_b32 s{sMK}, s{sW8}")]
                fill += [pre] + kv_dma('K')
            elif j == 3:
                pre = [I(f"s_add_u32 s{sKO}, s{sKB}, 32768"), I(f"s_add_u32 s{sMK}, s{sW8}, 32768")]
                fill += [pre] + kv_dma('K')
            else:
                pre = [I(f"s_mov_b32 s{sVO}, s{sVB}"), I(f"s_add_u32 s{sMV}, s{sW8}, {VB0}")]
                fill += [pre] + kv_dma('V')
        E(weave(mf(c), fill, 0, 8))
    E("s_nop 15")
    E(f"v_mov_b32 v{vT}, {fbits(QSCALE)}\nv_mov_b32 v{vT + 1}, {fbits(QSCALE)}")
    E(f"v_add_u32 v{vT + 2}, s{sW8}, v{vL16}\nv_add_u32 v{vT + 3}, {SPARE}, v{vT + 2}\nv_add_u32 v{vT + 2}, {VB0 + 32768}, v{vT + 2}")
    for x in range(2):
        for d in range(4):
            for g in range(2):
                b = QACC + (x * 4 + d) * 16 + 8 * g
                for i in range(4):
                    E(f"v_pk_mul_f32 {v(b + 2 * i, 2)}, {v(b + 2 * i, 2)}, {v(vT, 2)}")
                for i in range(4):
                    E(f"v_cvt_pk_bf16_f32 v{b + i}, v{b + 2 * i}, v{b + 2 * i + 1}")
                E(LG(f"ds_write_b128 v{vT + 3 - x}, {v(b, 4)} offset:{(2 * d + g) * 1024}"))
    E(WALL0, "s_barrier")
    E(f"s_lshl_b32 s{sT}, s{sRS}, 13\nv_add_u32 v{vT + 2}, s{sT}, v{vL16}")
    E(f"v_add_u32 v{vT + 3}, {SPARE}, v{vT + 2}\nv_add_u32 v{vT + 2}, {VB0 + 32768}, v{vT + 2}")
    for x in range(2):
        for f in range(8):
            E(LG(f"ds_read_b128 {a(aQ + (x * 8 + f) * 4, 4)}, v{vT + 3 - x} offset:{f * 1024}"))
    for x in range(2):
        for f in range(8):
            E(LG(f"ds_read_b128 {v(QBS + (x * 8 + f) * 4, 4)}, v{vT + 3 - x} offset:{16384 + f * 1024}"))
    E(kreads(vKc, 0))
    E(WLG0)


def merge(k, keep):
    E = k.emit
    send = 1 - keep
    t = vT
    wr = []
    for i in range(16):
        wr.append(LG(f"ds_write_b128 v{t + 4 + i // 8}, {a(aO + send * 64 + 4 * i, 4)} offset:{(i % 8) * 1024}"))
    E(LG(f"ds_read_b64 {v(t + 8, 2)}, v{t + 4}", "mb"))
    E(pv(send, 1))
    E(WLG("mb"))
    fac = [
        f"v_min_f32 v{t}, v{vNM[keep]}, v{t + 8}",
        f"v_sub_f32 v{t + 1}, v{t}, v{vNM[keep]}",
        f"v_sub_f32 v{t + 2}, v{t}, v{t + 8}",
        f"v_exp_f32 v{t + 1}, v{t + 1}",
        f"v_exp_f32 v{t + 2}, v{t + 2}",
        f"s_nop 0",
        f"v_mul_f32 v{t}, v{vLs[keep][0]}, v{t + 1}",
        f"v_fmac_f32 v{t}, v{t + 9}, v{t + 2}",
        f"v_rcp_f32 v{t}, v{t}",
        f"s_nop 0",
        f"v_mul_f32 v{t + 1}, v{t + 1}, v{t}",
        f"v_mul_f32 v{t + 2}, v{t + 2}, v{t}",
    ]
    m = pv(keep, 1)
    E(m[0], fac[:6], m[1], fac[6:], weave(m[2:], wr, 0, 6))
    E(WLG0, "s_barrier")
    RX = S[0]
    for i in range(16):
        E(LG(f"ds_read_b128 {v(RX + 4 * i, 4)}, v{t + 6 + i // 8} offset:{(i % 8) * 1024}", f"rx{i}"))
    for f in range(8):
        E(WLG(f"rx{2 * f + 1}"))
        b = RX + 8 * f
        for i in range(8):
            E(f"v_accvgpr_read_b32 v{PB + (i % 8)}, a{aO + keep * 64 + 8 * f + i}")
        for i in range(8):
            E(f"v_mul_f32 v{b + i}, v{b + i}, v{t + 2}")
        for i in range(8):
            E(f"v_fmac_f32 v{b + i}, v{PB + i}, v{t + 1}")
        for i in range(4):
            E(f"v_cvt_pk_bf16_f32 v{b + i}, v{b + 2 * i}, v{b + 2 * i + 1}")
        E(VM(f"buffer_store_dwordx4 {v(b, 4)}, v{vL16}, {s(SS, 4)}, s{sT if f < 4 else sT2} offen offset:{1024 * (f % 4)} sc1"))


def gphase(k):
    E = k.emit
    ZR = 48
    aWS = 128
    vPD = 32
    vPR = 40

    def dma(st):
        out = []
        for i in range(8):
            g = []
            if i % 4 == 0:
                g += [I(f"s_add_u32 m0, s{sGM}, {(st % 5) * 8192 + (i // 4) * 4096}"),
                      I(f"s_add_u32 s{sT}, s{sGP}, {st * 128}")]
            g.append(VM(f"buffer_load_dwordx4 v{vPD + i}, {s(SP, 4)}, s{sT} offen offset:{1024 * (i % 4)} lds", f"g{st}"))
            out.append(g)
        return out

    def zl(st):
        out = []
        for f in range(3):
            g = [I(f"s_add_u32 s{sT2}, s{sGZ}, {f * 128 * 1024 + st * 4096}")]
            for ks in range(4):
                g.append(VM(f"buffer_load_dwordx4 {v(ZR + (st % 3) * 48 + (f * 4 + ks) * 4, 4)}, v{vL16}, {s(SS, 4)}, "
                            f"s{sT2} offen offset:{1024 * ks}", f"g{st}"))
            out.append(g)
        return out

    def reads(st):
        out = []
        for ks in range(4):
            for ts in range(2):
                out.append(LG(f"ds_read_b128 {a(aWS + (st % 2) * 32 + (ts * 4 + ks) * 4, 4)}, v{vPR + ks} "
                              f"offset:{(st % 5) * 8192 + ts * 4096}", f"p{st}"))
        return out

    def mf(st):
        out = []
        for ks in range(4):
            for f in range(3):
                for ts in range(2):
                    out.append(mfma(('a', (ts * 3 + f) * 16), ('v', ZR + (st % 3) * 48 + (f * 4 + ks) * 4),
                                    ('a', aWS + (st % 2) * 32 + (ts * 4 + ks) * 4), 0 if (st == 0 and ks == 0) else None))
        return out

    E("v_and_b32 v20, 31, v0\nv_lshrrev_b32 v21, 5, v0\nv_lshrrev_b32 v22, 4, v0")
    E("v_lshrrev_b32 v23, 3, v0\nv_lshlrev_b32 v23, 12, v23\nv_and_b32 v24, 7, v0\nv_xor_b32 v24, v24, v22")
    E("v_lshl_add_u32 v25, v24, 4, v23\nv_xor_b32 v24, 4, v24\nv_lshl_add_u32 v26, v24, 4, v23")
    for i in range(8):
        E(f"v_add_u32 v{vPD + i}, {i * 8 * 4096 - (i % 4) * 1024}, v{25 + (i % 2)}")
    E(f"s_mul_i32 s{sGM}, s{sW}, 40960")
    E("v_bfe_u32 v23, v0, 1, 3\nv_xor_b32 v23, v23, v21")
    E(f"v_lshlrev_b32 v24, 7, v20\nv_add_u32 v24, s{sGM}, v24")
    for ks in range(4):
        E(f"v_xor_b32 v25, {2 * ks}, v23\nv_lshl_add_u32 v{vPR + ks}, v25, 4, v24")
    E(f"s_lshl_b32 s{sGP}, s{sHD}, 18\ns_lshl_b32 s{sT}, s{sW}, 10\ns_add_u32 s{sGP}, s{sGP}, s{sT}")
    E(f"s_mul_i32 s{sGZ}, s{sPI}, 384\ns_lshl_b32 s{sT}, s{sW}, 5\ns_add_u32 s{sGZ}, s{sGZ}, s{sT}")
    E(f"s_lshl_b32 s{sGZ}, s{sGZ}, 10\ns_add_u32 s{sGZ}, s{sGZ}, {WS_Z2N}")
    E(WALL0, "s_barrier")
    for st in range(3):
        E(dma(st), zl(st))
    E(WVM("g0"), reads(0))
    for st in range(8):
        E(WLG(f"p{st}"))
        m = mf(st)
        gm = {}
        if st + 1 < 8:
            gm[11] = [WVM(f"g{st + 1}")] + reads(st + 1)
        E(place(m, gm))
        if st + 3 < 8:
            E(dma(st + 3), zl(st + 3))
    E(f"v_add_u32 v20, s{sGM}, v{vL16}")
    E(f"s_lshl_b32 s{sT}, s{sHD}, 1\ns_add_u32 s{sT}, s{sT}, s{sG}")
    E(f"s_mul_i32 s{sT2}, s{sPI}, 6\ns_mul_i32 s{sGP}, s{sRS}, 3\ns_add_u32 s{sT2}, s{sT2}, s{sGP}")
    E(f"s_mul_i32 s{sGP}, s{sT}, 48\ns_add_u32 s{sGP}, s{sGP}, s{sT2}\ns_lshl_b32 s{sGP}, s{sGP}, 10\ns_add_u32 s{sGP}, s{sGP}, {WS_Z1}")
    E(f"s_mul_i32 s{sGZ}, s{sT}, {CTXU_STEPS}\ns_add_u32 s{sGZ}, s{sGZ}, s{sT2}\ns_add_u32 s{sGZ}, s{sGZ}, 256")
    E(f"s_lshl_b32 s{sGZ}, s{sGZ}, 10\ns_add_u32 s{sGZ}, s{sGZ}, {WS_CTXU}")
    E(f"s_lshl_b32 s{sT}, s{sT}, 6\nv_and_b32 v21, 31, v0\nv_lshlrev_b32 v21, 1, v21")
    for i in range(3):
        E(VM(f"buffer_load_dwordx4 {v(192 + 4 * i, 4)}, v{vL16}, {s(SS, 4)}, s{sGP} offen offset:{1024 * i}"))
    E(VM(f"buffer_load_ushort v204, v21, {s(SB, 4)}, s{sT} offen"))
    E("s_nop 7")
    for ts in range(2):
        for f in range(3):
            for q in range(4):
                E(LG(f"ds_write_b128 v20, {a((ts * 3 + f) * 16 + 4 * q, 4)} offset:{((ts * 6 + f * 2) * 2 + q) * 1024}"))
    E(f"s_mul_i32 s{sT}, s{sW}, 6144\nv_add_u32 v21, s{sT}, v{vL16}\nv_add_u32 v22, 81920, v21")
    E(WLG0, "s_barrier")
    for i in range(3):
        for w in range(4):
            for q in range(2):
                E(LG(f"ds_read_b128 {v(48 + i * 32 + w * 8 + q * 4, 4)}, v{21 + w // 2} "
                     f"offset:{(w % 2) * 40960 + i * 2048 + q * 1024}", f"x{i}"))
    E(WVM0, "v_lshlrev_b32 v204, 16, v204")
    for i in range(3):
        E(WLG(f"x{i}"))
        b = 48 + i * 32
        for r in range(8):
            E(f"v_add_f32 v{b + r}, v{b + r}, v{b + 8 + r}\nv_add_f32 v{b + 16 + r}, v{b + 16 + r}, v{b + 24 + r}")
        for r in range(8):
            E(f"v_add3_f32_placeholder")
        for r in range(4):
            z = 192 + 4 * i + r
            E(f"v_lshlrev_b32 v24, 16, v{z}\nv_and_b32 v25, 0xffff0000, v{z}")
            E(f"v_mul_f32 v{b + 2 * r}, v{b + 2 * r}, v24\nv_mul_f32 v{b + 2 * r + 1}, v{b + 2 * r + 1}, v25")
        for r in range(4):
            E(f"v_cvt_pk_bf16_f32 v{b + r}, v{b + 2 * r}, v{b + 2 * r + 1}")
        E(VM(f"buffer_store_dwordx4 {v(b, 4)}, v{vL16}, {s(SS, 4)}, s{sGZ} offen offset:{1024 * i} sc1"))
    out = []
    cnt = 0
    for line in k.lines:
        if "v_add3_f32_placeholder" in line:
            i, r = cnt // 8, cnt % 8
            b = 48 + i * 32
            out.append(f"    v_add_f32 v{b + r}, v{b + r}, v{b + 16 + r}")
            out.append(f"    v_add_f32 v{b + r}, v{b + r}, v204")
            cnt += 1
        else:
            out.append(line)
    k.lines = out


def build():
    k = Kern("k2_kernel")
    E = k.emit
    E("s_cmp_ge_u32 s2, 256\ns_cbranch_scc1 K2_END")
    stamp_init(k)
    stamp(k, 0)
    E(f"s_load_dwordx2 s[64:65], s[0:1], {KA_WQ}")
    E(f"s_load_dwordx4 s[68:71], s[0:1], {KA_WSP}")
    E(f"s_load_dwordx2 s[66:67], s[0:1], {KA_WS}")
    E("v_lshrrev_b32 v1, 6, v0\nv_and_b32 v0, 63, v0")
    E(f"s_and_b32 s{sHD}, s2, 7\ns_lshl_b32 s{sHD}, s{sHD}, 2\ns_lshr_b32 s{sT}, s2, 3\ns_lshr_b32 s{sPI}, s{sT}, 2")
    E(f"v_readfirstlane_b32 s{sW}, v1")
    E(f"s_and_b32 s{sT}, s{sT}, 3\ns_add_u32 s{sHD}, s{sHD}, s{sT}")
    E(f"s_and_b32 s{sRS}, s{sW}, 1\ns_lshr_b32 s{sG}, s{sW}, 1\ns_lshl_b32 s{sW8}, s{sW}, 13")
    E(f"s_sub_u32 s{sNA}, 16, s{sPI}")
    E(f"v_lshlrev_b32 v{vL16}, 4, v0")
    E("v_and_b32 v20, 31, v0\nv_lshrrev_b32 v21, 5, v0\nv_lshrrev_b32 v22, 4, v0")
    E("v_bfe_u32 v23, v0, 2, 2\nv_and_b32 v24, 3, v0\nv_bfe_u32 v25, v0, 4, 1")
    E("v_xor_b32 v26, v23, v22\nv_lshlrev_b32 v27, 13, v22\nv_lshl_add_u32 v27, v26, 6, v27\nv_lshl_add_u32 v27, v24, 4, v27")
    for i in range(4):
        E(f"v_add_u32 v{vQD + i}, {i * (32768 - 1024)}, v27")
    E("v_lshl_add_u32 v26, v21, 3, v23\nv_lshlrev_b32 v26, 8, v26\nv_lshl_add_u32 v26, v25, 5, v26\nv_lshl_add_u32 v26, v24, 3, v26")
    for d in range(4):
        E(f"v_xor_b32 v27, {d}, v23\nv_lshl_add_u32 v{vQR + d}, v27, 6, v26\nv_add_u32 v{vQR + 4 + d}, 0x10000, v{vQR + d}")
    E(f"s_lshl_b32 s{sT}, s{sG}, 14\nv_add_u32 v{vKc}, s{sT}, v{vL16}\nv_add_u32 v{vKn}, 32768, v{vKc}")
    E(f"v_add_u32 v{vVc}, {VB0}, v{vKc}")
    E(f"s_sub_i32 s{sT}, s{sRS}, s{sG}\ns_lshl_b32 s{sT}, s{sT}, 6\nv_lshlrev_b32 v26, 2, v21\nv_sub_u32 v{vD}, v20, v26\nv_add_u32 v{vD}, s{sT}, v{vD}")
    E(f"v_mov_b32 v{vNEG}, {fbits(NEG)}")
    E(f"s_lshl_b32 s{sKB}, s{sHD}, 19\ns_add_u32 s{sKB}, s{sKB}, s{sW8}\ns_add_u32 s{sVB}, s{sKB}, {WS_VF}\ns_add_u32 s{sKB}, s{sKB}, {WS_KF}")
    E(f"s_sub_u32 s{sT}, 15, s{sPI}\ns_cmp_eq_u32 s{sG}, 0\ns_cselect_b32 s{sT}, s{sT}, s{sPI}")
    E(f"s_lshl_b32 s{sT}, s{sT}, 2\ns_lshl_b32 s{sT2}, s{sRS}, 1\ns_add_u32 s{sT}, s{sT}, s{sT2}\ns_lshl_b32 s{sXN}, s{sT}, 15\ns_add_u32 s{sXN}, s{sXN}, {WS_XN}")
    E(f"s_lshl_b32 s{sWQ}, s{sW}, 17\ns_lshl_b32 s{sT}, s{sHD}, 8\ns_add_u32 s{sWQ}, s{sWQ}, s{sT}\ns_lshl_b32 s{sWM}, s{sW}, 12")
    E("s_waitcnt lgkmcnt(0)")
    E(srd(SQ, 64, 512 * 8192), srd(SP, 68, 2048 * 4096), srd(SB, 70, 4096), srd(SS, 66, WS_SIZE))
    qproj(k)
    stamp(k, 1)
    E(f"s_mov_b32 s{sU}, 0\ns_mov_b32 s{sBLK}, 0\ns_mov_b32 s{sN}, s{sNA}\ns_sub_u32 s{sQB}, 15, s{sPI}")
    E(f"s_mov_b32 s{sMK}, s{sW8}\ns_add_u32 s{sMV}, s{sW8}, {VB0 + 32768}")
    E("K2_BLOCK:")
    k.set_state([], [])
    gm, wrapped, used = schedule_loop()
    wtxt = [it[1] for it in flat(wrapped)]
    for r in range(16):
        E(f"v_mov_b32 v{P(1, 0) + r}, 0\nv_mov_b32 v{NEGM[0] + r}, 0\nv_mov_b32 v{NEGM[1] + r}, 0")
        late = f"v_exp_f32 v{S[1] + r}, v{S[1] + r}" in wtxt
        E(f"v_mov_b32 v{S[1] + r}, {'v%d' % vNEG if late else '0'}")
    assert not any(f"v{S[0] + r}," in w or w.endswith(f"v{S[0] + r}") for w in wtxt for r in range(16))
    for r in (8, 9, 10, 11, 12, 13):
        E(f"v_mov_b32 v{r}, 0")
    E(f"v_mov_b32 v{vVp}, v{vVc}")
    for x in range(2):
        E(f"s_mov_b32 s{sTH[x]}, 0xff800000\ns_mov_b32 s{sLO[x]}, 0xff800000")
    for i in range(8):
        E(mfma(('a', aO + 16 * i), ('v', P(1, 0)), ('v', P(1, 0)), 0))
    E(f"s_mov_b32 s{sJ}, 1")
    E("K2_LOOP:")
    k.set_state(["kv"] * 16, ["k"] * 8)
    E(f"s_cmp_eq_u32 s{sJ}, s{sN}\ns_cselect_b32 s{sLAST}, 1, 0")
    main = qk(0) + qk(1) + pv(0, 1) + pv(1, 1) + qk(0) + qk(1) + pv(0, 0) + pv(1, 0)
    gm[-1] = mask_call(0, 0) + [WLG("k")]
    gm[7] = gm[7] + mask_call(1, 0)
    gm[15] = gm[15] + [WLG("v")]
    gm[31] = gm[31] + mask_call(0, 1) + [WLG("k")]
    gm[39] = gm[39] + mask_call(1, 1)
    gm[47] = gm[47] + [WLG("v")]
    gm[62] = gm[62] + [I(f"v_mov_b32 v{vVp}, v{vVc}"), I(f"v_xor_b32 v{vVc}, 0x8000, v{vVc}"),
                       I(f"v_xor_b32 v{vKc}, 0x8000, v{vKc}"), I(f"v_xor_b32 v{vKn}, 0x8000, v{vKn}"),
                       I(f"s_xor_b32 s{sMK}, s{sMK}, 0x8000"), I(f"s_xor_b32 s{sMV}, s{sMV}, 0x8000")]
    gm[63] = gm[63] + [I(f"s_add_u32 s{sU}, s{sU}, 1"), I(f"s_add_u32 s{sJ}, s{sJ}, 1"),
                       I(f"s_cmp_le_u32 s{sJ}, s{sN}"), I("s_cbranch_scc1 K2_LOOP")]
    E(place(main, gm))
    E(vreads(vVp, 1))
    E(wrapped)
    t = vT
    for x in range(2):
        E(f"v_add_f32 v{vLs[x][0]}, v{vLs[x][0]}, v{vLs[x][1]}")
    for x in range(2):
        E(f"v_mov_b32 v{vLs[x][1]}, v{vLs[x][0]}")
    E("s_nop 1")
    for x in range(2):
        E(f"v_permlane32_swap_b32 v{vLs[x][0]}, v{vLs[x][1]}")
    E("s_nop 1")
    for x in range(2):
        E(f"v_add_f32 v{vLs[x][0]}, v{vLs[x][0]}, v{vLs[x][1]}")
    E(f"v_add_u32 v{t + 4}, s{sW8}, v{vL16}\nv_and_b32 v{t + 5}, 0x18000, v{vVp}\nv_add_u32 v{t + 5}, v{t + 5}, v{t + 4}")
    E(f"v_add_u32 v{t + 4}, {SPARE}, v{t + 4}\nv_xor_b32 v{t + 6}, 0x4000, v{t + 4}\nv_xor_b32 v{t + 7}, 0x4000, v{t + 5}")
    E(f"s_cmp_eq_u32 s{sG}, 0\ns_cselect_b64 vcc, -1, 0\ns_nop 1")
    E(f"v_cndmask_b32 v{t + 8}, v{vNM[0]}, v{vNM[1]}, vcc\nv_cndmask_b32 v{t + 9}, v{vLs[0][0]}, v{vLs[1][0]}, vcc")
    E(LG(f"ds_write_b64 v{t + 6}, {v(t + 8, 2)}"))
    E(f"s_lshl_b32 s{sT}, s{sQB}, 2\ns_lshl_b32 s{sT2}, s{sRS}, 1\ns_add_u32 s{sT}, s{sT}, s{sT2}\ns_add_u32 s{sT}, s{sT}, s{sG}")
    E(f"s_mul_i32 s{sT}, s{sT}, {CTXU_STEPS}\ns_lshl_b32 s{sT2}, s{sHD}, 3\ns_add_u32 s{sT}, s{sT}, s{sT2}")
    E(f"s_lshl_b32 s{sT}, s{sT}, 10\ns_add_u32 s{sT}, s{sT}, {WS_CTXU}\ns_add_u32 s{sT2}, s{sT}, 4096")
    E(WLG0, "s_barrier")
    E(f"s_cmp_eq_u32 s{sG}, 1\ns_cbranch_scc1 K2_MERGE1")
    st = (list(k.vm), list(k.lg))
    merge(k, 0)
    E("s_branch K2_MERGED")
    k.set_state(*st)
    E("K2_MERGE1:")
    merge(k, 1)
    E("K2_MERGED:")
    E(f"s_cmp_eq_u32 s{sBLK}, 1\ns_cbranch_scc1 K2_G")
    stamp(k, 2)
    for r in range(64):
        E(f"v_accvgpr_write_b32 a{aQ + r}, v{QBS + r}")
    E(f"s_mov_b32 s{sBLK}, 1\ns_add_u32 s{sN}, s{sPI}, 1\ns_mov_b32 s{sQB}, s{sPI}")
    E("s_branch K2_BLOCK")
    for x in range(2):
        for buf in range(2):
            rare_path(k, x, buf)
            mask_path(k, x, buf)
    E("K2_G:")
    k.set_state([], [])
    stamp(k, 3)
    gphase(k)
    E(WVM0)
    stamp(k, 4)
    stamp_store(k, 1, SS, sW, 208)
    E("K2_END:")
    E("s_endpgm")
    return k.text(512, 256)
```

```python
from asmlib import *
from common import *

LDS = 163840
SO, SU, SX, SOUT, SS = 8, 12, 16, 20, 24
sW, sT, sT2, sQB, sMBk, sA, sAU, sB, sBU, sM = 32, 33, 34, 35, 36, 37, 38, 39, 40, 41
vL16 = 1
vBD = 2
vBR = 10
AR = 32
aWF = 64
NST = 19
NSLOT = 4


def build():
    k = Kern("k3_kernel")
    E = k.emit
    E("s_cmp_ge_u32 s2, 256\ns_cbranch_scc1 K3_END")
    stamp_init(k)
    stamp(k, 0)
    E(f"s_load_dwordx2 s[64:65], s[0:1], {KA_WO}")
    E(f"s_load_dwordx4 s[68:71], s[0:1], {KA_WOUT}")
    E(f"s_load_dwordx2 s[66:67], s[0:1], {KA_WS}")
    E(f"s_load_dwordx2 s[72:73], s[0:1], {KA_X}")
    E("v_lshrrev_b32 v1, 6, v0\nv_mov_b32 v31, v0\nv_and_b32 v0, 63, v0")
    E(f"s_and_b32 s{sQB}, s2, 7\ns_lshl_b32 s{sQB}, s{sQB}, 2\ns_lshr_b32 s{sT}, s2, 3\ns_lshr_b32 s{sMBk}, s{sT}, 2")
    E(f"v_readfirstlane_b32 s{sW}, v1")
    E(f"s_and_b32 s{sT}, s{sT}, 3\ns_add_u32 s{sQB}, s{sQB}, s{sT}")
    E(f"v_lshlrev_b32 v{vL16}, 4, v0")
    E("v_lshrrev_b32 v21, 5, v0\nv_bfe_u32 v23, v0, 2, 2\nv_and_b32 v24, 3, v0\nv_bfe_u32 v25, v0, 4, 1")
    E("v_lshrrev_b32 v26, 3, v0\nv_lshlrev_b32 v26, 10, v26\nv_bfe_u32 v27, v0, 2, 1\nv_xor_b32 v27, v27, v25")
    E("v_lshl_add_u32 v26, v27, 6, v26\nv_lshl_add_u32 v26, v24, 4, v26")
    for i in range(8):
        E(f"v_add_u32 v{vBD + i}, {i * 8192 - (i % 4) * 1024}, v26")
    E(f"s_mul_i32 s{sM}, s{sW}, {NSLOT * 8192}")
    E("v_lshl_add_u32 v26, v21, 2, v23\nv_lshlrev_b32 v26, 7, v26\nv_lshl_add_u32 v26, v25, 5, v26\nv_lshl_add_u32 v26, v24, 3, v26")
    E(f"v_add_u32 v26, s{sM}, v26\nv_lshrrev_b32 v27, 1, v23")
    E(f"v_lshl_add_u32 v{vBR}, v27, 6, v26\nv_xor_b32 v27, 1, v27\nv_lshl_add_u32 v{vBR + 1}, v27, 6, v26")
    E(f"s_mul_i32 s{sA}, s{sQB}, {2 * CTXU_STEPS}\ns_mul_i32 s{sT}, s{sW}, 12\ns_add_u32 s{sAU}, s{sA}, s{sT}\ns_add_u32 s{sAU}, s{sAU}, 256")
    E(f"s_lshl_b32 s{sT}, s{sW}, 6\ns_add_u32 s{sA}, s{sA}, s{sT}")
    E(f"s_lshl_b32 s{sA}, s{sA}, 10\ns_add_u32 s{sA}, s{sA}, {WS_CTXU}\ns_lshl_b32 s{sAU}, s{sAU}, 10\ns_add_u32 s{sAU}, s{sAU}, {WS_CTXU}")
    E(f"s_lshl_b32 s{sT}, s{sMBk}, 7\ns_lshl_b32 s{sB}, s{sW}, 20\ns_add_u32 s{sB}, s{sB}, s{sT}")
    E(f"s_mul_i32 s{sBU}, s{sW}, {192 * 1024}\ns_add_u32 s{sBU}, s{sBU}, s{sT}")
    E("s_waitcnt lgkmcnt(0)")
    E(srd(SO, 64, 4096 * 1024), srd(SU, 68, 688 * 1024), srd(SX, 72, 2048 * 1024), srd(SOUT, 70, 2048 * 1024), srd(SS, 66, WS_SIZE))

    def dma(st):
        out = []
        srd_, base, off = (SO, sB, st * 65536) if st < 16 else (SU, sBU, (st - 16) * 65536)
        for i in range(8):
            g = []
            if i % 4 == 0:
                g += [I(f"s_add_u32 m0, s{sM}, {(st % NSLOT) * 8192 + (i // 4) * 4096}"), I(f"s_add_u32 s{sT}, s{base}, {off}")]
            g.append(VM(f"buffer_load_dwordx4 v{vBD + i}, {s(srd_, 4)}, s{sT} offen offset:{1024 * (i % 4)} lds", f"g{st}"))
            out.append(g)
        return out

    def al(st):
        out = []
        base, off = (sA, st * 4096) if st < 16 else (sAU, (st - 16) * 4096)
        for qs in range(2):
            g = [I(f"s_add_u32 s{sT2}, s{base}, {off + qs * CTXU_STEPS * 1024}")]
            for ks in range(4):
                g.append(VM(f"buffer_load_dwordx4 {v(AR + (st % 3) * 32 + (qs * 4 + ks) * 4, 4)}, v{vL16}, {s(SS, 4)}, "
                            f"s{sT2} offen offset:{1024 * ks}", f"g{st}"))
            out.append(g)
        return out

    def reads(st):
        out = []
        for ks in range(4):
            for ms in range(2):
                for sec in range(2):
                    out.append(LG(f"ds_read_b64_tr_b16 {a(aWF + (st % 2) * 32 + (ms * 4 + ks) * 4 + 2 * sec, 2)}, v{vBR + ms} "
                                  f"offset:{(st % NSLOT) * 8192 + ks * 2048 + sec * 1024}", f"p{st}"))
        return out

    def mf(st):
        out = []
        for ks in range(4):
            for ms in range(2):
                for qs in range(2):
                    out.append(mfma(('a', (ms * 2 + qs) * 16), ('a', aWF + (st % 2) * 32 + (ms * 4 + ks) * 4),
                                    ('v', AR + (st % 3) * 32 + (qs * 4 + ks) * 4), 0 if (st == 0 and ks == 0) else None))
        return out

    for st in range(3):
        E(dma(st), al(st))
    E(WVM("g0"), reads(0))
    for st in range(NST):
        E(WLG(f"p{st}"))
        gm = {}
        if st + 1 < NST:
            gm[7] = [WVM(f"g{st + 1}")] + reads(st + 1)
        E(place(mf(st), gm))
        if st + 3 < NST:
            E(dma(st + 3), al(st + 3))
    stamp(k, 1)
    E("v_and_b32 v20, 31, v0\nv_mul_u32_u24 v20, 272, v20\nv_lshl_add_u32 v20, v21, 4, v20")
    E(f"v_add_u32 v20, s{sM}, v20")
    E("v_lshrrev_b32 v22, 2, v31\nv_and_b32 v23, 3, v31\nv_mul_u32_u24 v24, 272, v22\nv_lshl_add_u32 v24, v23, 6, v24\nv_add_u32 v25, 0x10000, v24")
    E("v_lshlrev_b32 v26, 10, v22\nv_lshl_add_u32 v26, v23, 5, v26")
    E(f"s_lshl_b32 s{sT}, s{sQB}, 16\ns_lshl_b32 s{sT2}, s{sMBk}, 7\ns_add_u32 s{sT}, s{sT}, s{sT2}")
    E(VM(f"buffer_load_dwordx4 v[128:131], v26, {s(SX, 4)}, s{sT} offen"))
    E(VM(f"buffer_load_dwordx4 v[132:135], v26, {s(SX, 4)}, s{sT} offen offset:16"))
    E("s_nop 7")
    for ms in range(2):
        for qs in range(2):
            for i in range(4):
                E(LG(f"ds_write_b128 v20, {a((ms * 2 + qs) * 16 + 4 * i, 4)} offset:{qs * 32 * 272 + ms * 128 + i * 32}"))
    E(WLG0, "s_barrier")
    for w in range(4):
        for i in range(4):
            E(LG(f"ds_read_b128 {v(32 + w * 16 + 4 * i, 4)}, v{24 + w // 2} offset:{(w % 2) * 32768 + 16 * i}"))
    E(WALL0)
    for r in range(16):
        E(f"v_add_f32 v{32 + r}, v{32 + r}, v{48 + r}\nv_add_f32 v{64 + r}, v{64 + r}, v{80 + r}")
    for r in range(16):
        E(f"v_add_f32 v{32 + r}, v{32 + r}, v{64 + r}")
    for r in range(8):
        E(f"v_lshlrev_b32 v{48 + 2 * r}, 16, v{128 + r}\nv_and_b32 v{49 + 2 * r}, 0xffff0000, v{128 + r}")
    for r in range(16):
        E(f"v_add_f32 v{32 + r}, v{32 + r}, v{48 + r}")
    for r in range(8):
        E(f"v_cvt_pk_bf16_f32 v{32 + r}, v{32 + 2 * r}, v{33 + 2 * r}")
    E(VM(f"buffer_store_dwordx4 v[32:35], v26, {s(SOUT, 4)}, s{sT} offen"))
    E(VM(f"buffer_store_dwordx4 v[36:39], v26, {s(SOUT, 4)}, s{sT} offen offset:16"))
    if PROF:
        E(WVM0)
    stamp(k, 2)
    stamp_store(k, 2, SS, sW, 136)
    E("K3_END:")
    E("s_endpgm")
    return k.text(288, 160)
```

```python
import sys, importlib
sys.path.insert(0, "gen")
NAME = "parallel_sum__compressed_kv_cla__mixer_gmlp__prompt"

def main(out=None, only=None):
    import k1
    kerns = [("k1_kernel", k1, 256, 256, 163840)]
    try:
        import k2
        kerns.append(("k2_kernel", k2, 256, 256, 163840))
    except ImportError:
        pass
    try:
        import k3
        kerns.append(("k3_kernel", k3, 256, getattr(k3, "THREADS", 256), k3.LDS))
    except ImportError:
        pass
    ref = open(f"cdna_kernels/{NAME}.s.ref").read().split("\n")
    head = [l for l in ref if l.startswith(";") and "@launch" not in l and "Override launch" not in l and "grid=ceil" not in l]
    lines = list(head)
    for nm, mod, g, b, lds in kerns:
        lines.append(f"; @launch kernel={nm} grid=({g},1,1) block=({b},1,1) lds={lds}")
    lines.append('.amdgcn_target "amdgcn-amd-amdhsa--gfx950"')
    lines.append(".text")
    descs = []
    for nm, mod, g, b, lds in kerns:
        t, d = mod.build()
        lines.append(t)
        descs.append(d)
    lines.append("L_CODE_END:")
    lines.append("    s_endpgm")
    lines.append('.section .rodata,"a"')
    for d in descs:
        lines.append(".p2align 6")
        lines.append(d)
    path = out or f"cdna_kernels/{NAME}.s"
    open(path, "w").write("\n".join(lines) + "\n")
    print("wrote", path)

if __name__ == "__main__":
    main(*sys.argv[1:])
```

```python
def v(n, c=1):
    return f"v{n}" if c == 1 else f"v[{n}:{n + c - 1}]"


def a(n, c=1):
    return f"a{n}" if c == 1 else f"a[{n}:{n + c - 1}]"


def s(n, c=1):
    return f"s{n}" if c == 1 else f"s[{n}:{n + c - 1}]"


def R(spec, c=1):
    return (v if spec[0] == 'v' else a)(spec[1], c)


def I(text):
    return ('i', text)


def VM(text, tag=None):
    return ('vm', text, tag)


def LG(text, tag=None):
    return ('lg', text, tag)


def VMG(text, tag):
    return ('vmg', text, tag)


def WVMG(tag):
    return ('wvmg', tag)


def WVM(tag):
    return ('wvm', tag)


def WLG(tag):
    return ('wlg', tag)


WVM0 = ('wvm0',)
WLG0 = ('wlg0',)
WALL0 = ('wall0',)


def mfma(d, A, B, C=None):
    ds = R(d, 16)
    cs = ds if C is None else ("0" if C == 0 else R(C, 16))
    return ('i', f"v_mfma_f32_32x32x16_bf16 {ds}, {R(A, 4)}, {R(B, 4)}, {cs}")


def flat(items):
    out = []
    for it in items:
        if isinstance(it, list):
            out.extend(flat(it))
        elif isinstance(it, str):
            for line in it.split("\n"):
                line = line.strip()
                if line:
                    out.append(('i', line))
        else:
            out.append(it)
    return out


def weave(main, fillers, start=0, end=None, lead=False):
    n = len(main)
    if end is None:
        end = n
    gaps = [[] for _ in range(n + 1)]
    ng = end - start
    nf = len(fillers)
    for i, f in enumerate(fillers):
        g = start + (i * ng) // nf if nf else 0
        gaps[g + (0 if lead else 1)].append(f)
    out = list(gaps[0])
    for i, m in enumerate(main):
        out.append(m)
        out.extend(gaps[i + 1])
    return flat(out)


def place(main, gapmap):
    out = list(gapmap.get(-1, []))
    for i, m in enumerate(main):
        out.append(m)
        out.extend(gapmap.get(i, []))
    return flat(out)


class Kern:
    def __init__(self, name):
        self.name = name
        self.lines = []
        self.vm = []
        self.lg = []
        self.lg_has_smem = False

    def raw(self, text):
        self.lines.append(text)

    def label(self, name):
        self.lines.append(f"{name}:")

    def comment(self, text):
        self.lines.append(f"    ; {text}")

    def set_state(self, vm=None, lg=None):
        if vm is not None:
            self.vm = list(vm)
        if lg is not None:
            self.lg = list(lg)

    def _wait(self, fifo, tag, nm, mx):
        last = -1
        for i, t in enumerate(fifo):
            if t == tag:
                last = i
        if last < 0:
            return fifo
        n = sum(1 for t in fifo[last + 1:] if not (isinstance(t, tuple) and t[0] == 'ghost'))
        if n > mx:
            n = mx
            cnt = 0
            last = len(fifo)
            while cnt < mx:
                last -= 1
                if not (isinstance(fifo[last], tuple) and fifo[last][0] == 'ghost'):
                    cnt += 1
            last -= 1
        self.lines.append(f"    s_waitcnt {nm}({n})")
        return fifo[last + 1:]

    def _wait_ghost(self, tag):
        idx = [i for i, t in enumerate(self.vm) if t == ('ghost', tag)]
        if not idx:
            return
        n = len(self.vm) - 1 - idx[-1]
        self.lines.append(f"    s_waitcnt vmcnt({n})")
        self.vm = [t for i, t in enumerate(self.vm) if not (i <= idx[-1] and isinstance(t, tuple))]

    def emit(self, *items):
        for it in flat(list(items)):
            k = it[0]
            if k == 'i':
                if it[1].endswith(":"):
                    self.lines.append(it[1])
                else:
                    self.lines.append("    " + it[1])
            elif k == 'vm':
                if len(self.vm) >= 60:
                    keep = self.vm[-48:]
                    n = sum(1 for t in keep if not isinstance(t, tuple))
                    self.lines.append(f"    s_waitcnt vmcnt({n})    ; auto")
                    self.vm = [t for t in self.vm[:-48] if isinstance(t, tuple)] + keep
                self.lines.append("    " + it[1])
                self.vm.append(it[2])
                assert len(self.vm) <= 63, "vmcnt overflow"
            elif k == 'vmg':
                self.lines.append("    " + it[1])
                self.vm.append(('ghost', it[2]))
                assert len(self.vm) <= 63, "vmcnt overflow"
            elif k == 'wvmg':
                self._wait_ghost(it[1])
            elif k == 'lg':
                self.lines.append("    " + it[1])
                self.lg.append(it[2])
            elif k == 'wvm':
                self.vm = self._wait(self.vm, it[1], "vmcnt", 63)
            elif k == 'wlg':
                self.lg = self._wait(self.lg, it[1], "lgkmcnt", 15)
            elif k == 'wvm0':
                self.lines.append("    s_waitcnt vmcnt(0)")
                self.vm = []
            elif k == 'wlg0':
                self.lines.append("    s_waitcnt lgkmcnt(0)")
                self.lg = []
            elif k == 'reset':
                self.vm = self.vm[-1:]
                self.lg = []
            elif k == 'wall0':
                self.lines.append("    s_waitcnt vmcnt(0) lgkmcnt(0)")
                self.vm = []
                self.lg = []
            else:
                raise ValueError(it)

    def text(self, nvgpr, accum, nsgpr=102):
        t = [f".globl {self.name}", ".p2align 8", f".type {self.name},@function", f"{self.name}:"]
        t += self.lines
        desc = [
            f".amdhsa_kernel {self.name}",
            f"  .amdhsa_next_free_vgpr {nvgpr}",
            f"  .amdhsa_next_free_sgpr {nsgpr}",
            f"  .amdhsa_accum_offset {accum}",
            "  .amdhsa_group_segment_fixed_size 0",
            "  .amdhsa_kernarg_size 112",
            "  .amdhsa_user_sgpr_count 2",
            "  .amdhsa_user_sgpr_kernarg_segment_ptr 1",
            "  .amdhsa_system_sgpr_workgroup_id_x 1",
            ".end_amdhsa_kernel",
        ]
        return "\n".join(t), "\n".join(desc)


def srd(dst, ptr, nbytes):
    return [
        f"s_mov_b32 s{dst}, s{ptr}",
        f"s_mov_b32 s{dst + 1}, s{ptr + 1}",
        f"s_mov_b32 s{dst + 2}, {nbytes:#x}",
        f"s_mov_b32 s{dst + 3}, 0x20000",
    ]


def fbits(x):
    import struct
    return "0x%08x" % struct.unpack("<I", struct.pack("<f", x))[0]


import os
PROF = os.environ.get("PROF", "0") == "1"
WS_PROF = 0x8000000


def stamp(k, i):
    if not PROF:
        return
    k.emit("s_memtime s[78:79]", WLG0, f"s_mov_b32 s{80 + i}, s78")


def stamp_init(k):
    if not PROF:
        return
    for i in range(16):
        k.emit(f"s_mov_b32 s{80 + i}, 0")
    k.emit("s_memrealtime s[78:79]", WLG0, "s_mov_b32 s93, s78")


def stamp_store(k, kidx, SS, sW, vt):
    if not PROF:
        return
    k.emit("s_memrealtime s[78:79]", WLG0, "s_mov_b32 s94, s78")
    k.emit("s_memtime s[78:79]", WLG0, "s_mov_b32 s92, s78")
    k.emit("s_mov_b64 exec, -1")
    for i in range(16):
        k.emit(f"v_mov_b32 v{vt + i}, s{80 + i}")
    k.emit(f"s_lshl_b32 s78, s2, 2\ns_add_u32 s78, s78, s{sW}\ns_lshl_b32 s78, s78, 6\ns_add_u32 s78, s78, {WS_PROF + kidx * 65536}")
    k.emit(f"v_mov_b32 v{vt + 16}, 0\ns_mov_b64 exec, 1")
    for i in range(4):
        k.emit(f"buffer_store_dwordx4 v[{vt + 4 * i}:{vt + 4 * i + 3}], v{vt + 16}, s[{SS}:{SS + 3}], s78 offen offset:{16 * i}")


_uid = [0]


def wave0(sW, items):
    _uid[0] += 1
    lab = f"L_W0_{_uid[0]}"
    return [I(f"s_cmp_lg_u32 s{sW}, 0"), I(f"s_cbranch_scc1 {lab}")] + flat(items) + [I(f"{lab}:")]


def flag_set(sW, SD, sIDX, vt):
    return wave0(sW, [I(f"v_mov_b32 v{vt}, 1"), I(f"v_mov_b32 v{vt + 1}, 0"), I("s_mov_b64 exec, 1"),
                      VMG(f"buffer_store_byte v{vt}, v{vt + 1}, s[{SD}:{SD + 3}], s{sIDX} offen sc0 sc1", "flag"),
                      I("s_mov_b64 exec, -1")])


def flag_poll_issue(sW, SD, sIDX, n, vt):
    return wave0(sW, [I(f"v_and_b32 v{vt}, {n - 1}, v0"),
                      VMG(f"buffer_load_ubyte v{vt + 1}, v{vt}, s[{SD}:{SD + 3}], s{sIDX} offen sc0 sc1", "poll")])


def flag_poll_check(sW, SD, sIDX, vt):
    _uid[0] += 1
    u = _uid[0]
    return wave0(sW, [WVMG("poll"), I(f"v_cmp_ne_u32 vcc, 1, v{vt + 1}"), I("s_nop 1"), I(f"s_cbranch_vccz L_POK_{u}"),
                      I(f"L_PLP_{u}:"), I("s_sleep 2"),
                      I(f"buffer_load_ubyte v{vt + 1}, v{vt}, s[{SD}:{SD + 3}], s{sIDX} offen sc0 sc1"), I("s_waitcnt vmcnt(0)"),
                      I(f"v_cmp_ne_u32 vcc, 1, v{vt + 1}"), I("s_nop 1"), I(f"s_cbranch_vccnz L_PLP_{u}"),
                      I(f"L_POK_{u}:")])


def flag_acquired(sW):
    return wave0(sW, [WVMG("inv")])


def lstamp(k, vreg, idx):
    if PROF:
        k.emit("s_memtime s[78:79]", WLG0, f"v_writelane_b32 v{vreg}, s78, {idx}")


def lstamp_store(k, kidx, vreg, vtmp, SS, sW):
    if PROF:
        k.emit(f"s_lshl_b32 s78, s2, 2\ns_add_u32 s78, s78, s{sW}\ns_lshl_b32 s78, s78, 8\ns_add_u32 s78, s78, {WS_PROF + 0x200000 + kidx * 0x100000}\nv_lshlrev_b32 v{vtmp}, 2, v0")
        k.emit(f"buffer_store_dword v{vreg}, v{vtmp}, s[{SS}:{SS + 3}], s78 offen")
```

```python
WS_XN = 0x0000000
WS_KF = 0x0200000
WS_VF = 0x1200000
WS_Z1 = 0x2200000
WS_Z2N = 0x2500000
WS_STAT = 0x2800000
WS_CTXU = 0x2900000
WS_SIZE = 0x10000000

CTXU_STEPS = 304

KA_X, KA_CKV, KA_WQ, KA_WUK, KA_WUV, KA_WO, KA_BX, KA_WIN, KA_WSP, KA_BSP, KA_WOUT, KA_OUT, KA_DBG, KA_WS = [
    8 * i for i in range(14)]

LOG2E = 1.4426950408889634
GELU_C0 = -2.0 * LOG2E * 0.7978845608028654
GELU_C1 = GELU_C0 * 0.044715
QSCALE = LOG2E / (128.0 ** 0.5)
LN_EPS = 1e-5
WS_Z2R = 0x4000000
WS_WP = 0x5000000
WS_PART = WS_KF
WS_FLAG3 = 0x2880000
```

```python
from asmlib import *
from common import *

import os
KVST = os.environ.get("KVST", "sc1")
NOPF = os.environ.get("NOPF", "0") == "1"
EXP = os.environ.get("EXP", "")
SX, SC, SW, SI, SS, SD, SPF = 8, 12, 16, 20, 24, 28, 72
sW, sRB, sCB, sNB, sMB, sRS, sCH = 32, 33, 34, 35, 36, 37, 38
sT, sT2, sCK, sWK, sW8, sW2, sKO, sWI, sXN, sCNT, sONES, sWB, sDO = 56, 57, 58, 59, 60, 61, 62, 63, 64, 65, 66, 67, 68
sXO = 39

vCD = 1
vUD = 9
vCR = 17
vBR = 25
vL16 = 31
vF = 32
vT = 40
STG = 64
vQD, vQR, vPF = 64, 68, 76
WF = 96
ACC = (128, 192)
SLOT = 49152
UREG = (3, 4, 0, 1)


def A(ks, cs):
    return ('a', (ks * 32 + cs) * 4)


def seg_off(byte):
    return byte // 65536, byte % 65536


def a_dma(j):
    out = []
    base = (j % 3) * SLOT
    for i in range(8):
        g = []
        if i % 4 == 0:
            g += [I(f"s_add_u32 m0, s{sW8}, {base + (i // 4) * 4096}"), I(f"s_add_u32 s{sDO}, s{sCK}, {j * 128}")]
        g.append(VM(f"buffer_load_dwordx4 v{vCD + i}, {s(SC, 4)}, s{sDO} offen offset:{1024 * (i % 4)} lds", f"p{j}"))
        out.append(g)
    return out


def b_dma(j):
    out = []
    for i in range(4):
        g = []
        if i == 0:
            g += [I(f"s_add_u32 m0, s{sW2}, {(j % 3) * SLOT + 32768}"), I(f"s_add_u32 s{sDO}, s{sWB}, {j * 64 * 8192}")]
        g.append(VM(f"buffer_load_dwordx4 v{vQD + i}, {s(SW, 4)}, s{sDO} offen offset:{1024 * i} lds", f"p{j}"))
        out.append(g)
    return out


def unit_dma(u):
    out = []
    base = UREG[u] * 32768
    off = (u % 2) * 256 * 8192 + (2 + u // 2) * 128
    for i in range(8):
        g = []
        if i % 4 == 0:
            g += [I(f"s_add_u32 m0, s{sW8}, {base + (i // 4) * 4096}"), I(f"s_add_u32 s{sDO}, s{sWK}, {off}")]
        g.append(VM(f"buffer_load_dwordx4 v{vUD + i}, {s(SW, 4)}, s{sDO} offen offset:{1024 * (i % 4)} lds", f"u{u}"))
        out.append(g)
    return out


def zslot(z):
    return (z + 2) % 5


def z_dma(z):
    out = []
    base = zslot(z) * 32768
    for p in range(2):
        for i in range(3):
            g = []
            if i == 0:
                g += [I(f"s_add_u32 m0, s{sW8}, {base + p * 4096}"), I(f"s_add_u32 s{sDO}, s{sWI}, {z * 64 * 2752 + p * 1376}")]
            g.append(VM(f"buffer_load_dwordx4 v{vCD + i}, {s(SI, 4)}, s{sDO} offen offset:{1024 * i} lds", f"z{z}"))
            out.append(g)
    return out


def pa_reads(c):
    j, cs = c // 4, c % 4
    slot = j % 3
    sg, off = (0, slot * SLOT) if slot == 0 else (1, (slot - 1) * SLOT)
    out = [LG(f"ds_read_b128 {R(A(ks, c), 4)}, v{vCR + sg * 4 + cs} offset:{off + ks * 4096}", f"r{c}") for ks in range(2)]
    fb = WF + (c % 2) * 16
    for d in range(4):
        for sec in range(2):
            out.append(LG(f"ds_read_b64_tr_b16 {v(fb + 4 * d + 2 * sec, 2)}, v{vQR + sg * 4 + d} "
                          f"offset:{off + cs * 4096 + sec * 1024}", f"r{c}"))
    return out


def pa_mf(c, vtype):
    fb = WF + (c % 2) * 16
    out = []
    for d in range(4):
        for ks in range(2):
            cf, wf = A(ks, c), ('v', fb + 4 * d)
            X, Y = (cf, wf) if vtype else (wf, cf)
            out.append(mfma(('v', ACC[d // 2] + (ks * 2 + d % 2) * 16), X, Y, 0 if c == 0 else None))
    return out


def pb_reads(c):
    u = c // 16
    sg, off = seg_off(UREG[u] * 32768 + (c % 16) * 2048)
    fb = WF + (c % 4) * 8
    return [LG(f"ds_read_b64_tr_b16 {v(fb + 4 * d2 + 2 * sec, 2)}, v{vBR + sg * 2 + d2} offset:{off + sec * 512}", f"s{c}")
            for d2 in range(2) for sec in range(2)]


def pb_mf(c, vtype):
    p, cs = 2 + c // 32, c % 32
    fb = WF + (c % 4) * 8
    out = []
    for d2 in range(2):
        for ks in range(2):
            cf, wf = A(ks, cs), ('v', fb + 4 * d2)
            X, Y = (cf, wf) if vtype else (wf, cf)
            out.append(mfma(('v', ACC[p % 2] + (ks * 2 + d2) * 16), X, Y, 0 if cs == 0 else None))
    return out


def kv_epi(p, staged=False):
    out = []
    for ks in range(2):
        for d2 in range(2):
            for g in range(2):
                b = ACC[p % 2] + (ks * 2 + d2) * 16 + 8 * g
                grp = []
                if d2 == 0 and g == 0:
                    grp.append(I(f"s_add_u32 s{sT2}, s{sKO}, {(p // 2) * 64 * 8192 + ks * 8192 + (p % 2) * 4096}"))
                if staged:
                    b = STG + ((ks * 2 + d2) * 2 + g) * 4
                else:
                    grp += [I(f"v_cvt_pk_bf16_f32 v{b + i}, v{b + 2 * i}, v{b + 2 * i + 1}") for i in range(2)]
                    out.append(grp)
                    grp = [I(f"v_cvt_pk_bf16_f32 v{b + i}, v{b + 2 * i}, v{b + 2 * i + 1}") for i in range(2, 4)]
                grp.append(VM(f"buffer_store_dwordx4 {v(b, 4)}, v{vL16}, {s(SS, 4)}, s{sT2} offen offset:{(2 * d2 + g) * 1024} {KVST}", "st"))
                out.append(grp)
    return out


def XF(c):
    return A(c % 2, c // 2)


def xn_loads():
    out = []
    for c in range(32):
        g = []
        if c % 4 == 0:
            g.append(I(f"s_add_u32 s{sXO}, s{sXN}, {(c // 4) * 4096}"))
        g.append(VM(f"buffer_load_dwordx4 {R(XF(c), 4)}, v{vL16}, {s(SS, 4)}, s{sXO} offen offset:{(c % 4) * 1024} sc1", f"xn{c // 4}"))
        out.append(g)
    return out


def gelu(regs, vC0, vC1, tmp):
    out = []
    for i in range(0, len(regs), 4):
        g = regs[i:i + 4]
        t = [tmp + j for j in range(4)]
        for op in ("v_mul_f32 v{t}, v{x}, v{x}", "v_fma_f32 v{t}, v{t}, v{c1}, v{c0}", "v_mul_f32 v{t}, v{t}, v{x}",
                   "v_exp_f32 v{t}, v{t}", "v_add_f32 v{t}, 1.0, v{t}", "v_rcp_f32 v{t}, v{t}", "v_mul_f32 v{x}, v{x}, v{t}"):
            for x, tt in zip(g, t):
                out.append(op.format(t=tt, x=x, c0=vC0, c1=vC1))
    return out


def ln_code():
    o = []
    for i in range(4):
        o.append(f"v_mov_b32 v{48 + i}, 0")
    for r in range(2):
        for i in range(4):
            o.append(f"v_dot2_f32_bf16 v{48 + r}, v{40 + 4 * r + i}, s{sONES}, v{48 + r}")
            o.append(f"v_dot2_f32_bf16 v{50 + r}, v{40 + 4 * r + i}, v{40 + 4 * r + i}, v{50 + r}")
    o += ["s_nop 2", "v_permlane32_swap_b32 v48, v49", "v_permlane32_swap_b32 v50, v51", "s_nop 1",
          "v_add_f32 v48, v48, v49", "v_add_f32 v50, v50, v51", "s_nop 1",
          "v_permlane16_swap_b32 v48, v50", "s_nop 1", "v_add_f32 v48, v48, v50"]
    for sh in (8, 4, 2, 1):
        o += ["s_nop 1", f"v_add_f32_dpp v48, v48, v48 row_ror:{sh} row_mask:0xf bank_mask:0xf"]
    o += ["s_nop 1", f"v_mul_f32 v48, {fbits(1 / 512)}, v48", "s_nop 0",
          "v_readlane_b32 s40, v48, 0", "v_readlane_b32 s41, v48, 16", "v_readlane_b32 s42, v48, 32", "v_readlane_b32 s43, v48, 48",
          "s_nop 1"]
    for r in range(2):
        m, q = 40 + 2 * r, 41 + 2 * r
        a_, b_ = 52 + 2 * r, 53 + 2 * r
        o += [f"v_mov_b32 v{b_}, s{m}", f"v_mov_b32 v{a_}, s{q}", f"v_fma_f32 v{a_}, -v{b_}, v{b_}, v{a_}", f"v_max_f32 v{a_}, 0, v{a_}",
              f"v_add_f32 v{a_}, {fbits(LN_EPS)}, v{a_}", f"v_rsq_f32 v{a_}, v{a_}", "s_nop 0",
              f"v_mul_f32 v{b_}, v{b_}, v{a_}", f"v_sub_f32 v{b_}, 0, v{b_}"]
    for r in range(2):
        for i in range(4):
            x = 40 + 4 * r + i
            o += [f"v_lshlrev_b32 v56, 16, v{x}", f"v_and_b32 v57, 0xffff0000, v{x}",
                  f"v_fma_f32 v56, v56, v{52 + 2 * r}, v{53 + 2 * r}", f"v_fma_f32 v57, v57, v{52 + 2 * r}, v{53 + 2 * r}",
                  f"v_cvt_pk_bf16_f32 v{x}, v56, v57"]
    return o


def kv_phase(k, vtype):
    E = k.emit
    extra = {}

    def add(c, groups):
        extra.setdefault(c, []).extend(groups)

    def spread(c0, c1, groups):
        n = len(groups)
        for i, g in enumerate(groups):
            add(c0 + (i * (c1 - c0)) // n, [g])

    ldp = lambda sr, so, i: [VM(f"buffer_load_dwordx4 {v(vPF, 4)}, v{vL16}, {s(sr, 4)}, s{so} offen offset:{1024 * i}", "pf")]
    pf0 = [ldp(SC, 77, i) for i in range(2)] + [ldp(SPF, 76, i) for i in range(4)]
    pf0 += [[I(f"s_mov_b32 s{SPF}, s70"), I(f"s_mov_b32 s{SPF + 1}, s71")] + ldp(SPF, 76, 0)] + [ldp(SPF, 76, i) for i in range(1, 4)]
    pf0 += [ldp(SI, 77, i) for i in range(2)]
    ln = ln_code()
    lng = [[I(x) for x in ln[i:i + 4]] for i in range(0, len(ln), 4)]
    lng.append([LG("ds_write_b128 v58, v[40:43]"), LG("ds_write_b128 v58, v[44:47] offset:16")])
    xst = [[LG("ds_read_b128 v[40:43], v59", "xr"), LG("ds_read_b128 v[44:47], v59 offset:1024", "xr")],
           [WLG("xr"), VM(f"buffer_store_dwordx4 v[40:43], v62, {s(SS, 4)}, s69 offen sc1", "xs")],
           [I(f"v_add_u32 v62, 4096, v62"), VM(f"buffer_store_dwordx4 v[44:47], v62, {s(SS, 4)}, s69 offen sc1", "xs")]]
    spread(12, 15, xst)
    spread(0, 3, a_dma(2) + b_dma(2))
    spread(3, 11, lng)
    E(pf0)
    E(WVM("p0"), "s_barrier")
    stamp(k, 6)
    E(pa_reads(0))
    for c in range(32):
        E(WLG(f"r{c}"))
        fill = []
        if c % 4 == 3:
            j = c // 4
            lstamp(k, 63, 3 * j)
            if j < 7:
                E(WVM(f"p{j + 1}"))
            else:
                E(WVM("u0"))
            if j == 5:
                E(WVM("xs"))
            if j == 2:
                E(WLG0)
            lstamp(k, 63, 3 * j + 1)
            E("s_barrier")
            lstamp(k, 63, 3 * j + 2)
            if j + 3 < 8:
                post = a_dma(j + 3) + b_dma(j + 3)
            elif j == 5:
                post = unit_dma(0) + unit_dma(1)[:4]
            elif j == 6:
                post = unit_dma(1)[4:] + unit_dma(2)
            else:
                post = []
            if j == 5:
                post = [flag_set(sW, SD, 2, 46)] + post
            if j < 7:
                spread(c, c + 4, post)
        if c < 31:
            fill += pa_reads(c + 1)
            fill = interleave(fill, extra.get(c, []))
            E(weave(pa_mf(c, vtype), fill, 0, 8))
        else:
            m = pa_mf(c, vtype)
            stg = []
            for tl in range(4):
                for g in range(2):
                    b = ACC[0] + tl * 16 + 8 * g
                    stg += [I(f"v_cvt_pk_bf16_f32 v{STG + (tl * 2 + g) * 4 + i}, v{b + 2 * i}, v{b + 2 * i + 1}") for i in range(4)]
            order = [0, 2, 1, 3]
            E(m[:4], pb_reads(0), m[4], m[5])
            seq = [stg[o * 8:(o + 1) * 8] for o in order]
            E(seq[0], m[6], seq[1], m[7], pb_reads(1), seq[2], seq[3])
    stamp(k, 7)
    extra.clear()
    wi = []
    for i in range(3):
        wi.append([I(x) for x in (f"v_add_u32 v46, {64 * i}, v0", "v_mul_u32_u24 v47, 43691, v46", "v_lshrrev_b32 v47, 19, v47",
                                  "v_mul_u32_u24 v48, 12, v47")])
        wi.append([I(x) for x in ("v_sub_u32 v48, v46, v48", "v_mul_u32_u24 v47, 2752, v47", f"v_lshl_add_u32 v{vCD + i}, v48, 4, v47",
                                  f"v_subrev_u32 v{vCD + i}, {1024 * i}, v{vCD + i}")])
    wi.append([I(x) for x in (f"v_lshl_add_u32 v46, v{vF + 1}, 3, v{vF + 3}", "v_mul_u32_u24 v46, 192, v46",
                              f"v_lshl_add_u32 v46, v{vF + 5}, 5, v46", f"v_lshl_add_u32 v46, v{vF + 4}, 3, v46")])
    wi.append([I(x) for x in (f"s_lshl_b32 s{sT}, s{sCH}, 12", f"v_add_u32 v{vCR}, s{sT}, v46", f"v_add_u32 v{vCR + 1}, 0x10000, v{vCR}",
                              f"v_add_u32 v{vCR + 2}, 0x20000, v{vCR}")])
    spread(0, 6, unit_dma(3))
    spread(0, 6, wi)
    spread(7, 13, z_dma(0))
    spread(0, 15, kv_epi(0, staged=True))
    spread(15, 32, kv_epi(1))
    spread(33, 64, kv_epi(2))
    add(8, [flag_poll_issue(sW, SD, sCNT, 8, 50)])
    add(26, [flag_poll_check(sW, SD, sCNT, 50)])
    spread(34, 62, xn_loads())
    pf = [[I(f"s_mov_b32 s{SPF}, s44"), I(f"s_mov_b32 s{SPF + 1}, s45")] +
          [VM(f"buffer_load_dwordx4 v[52:55], v{vL16}, {s(SPF, 4)}, s76 offen", "pf")]]
    pf += [[VM(f"buffer_load_dwordx4 v[52:55], v{vL16}, {s(SPF, 4)}, s76 offen offset:{1024 * i}", "pf")] for i in range(1, 4)]
    if not NOPF:
        spread(20, 28, pf)
    for c in range(64):
        n = c + 2
        fill = []
        if n < 64:
            if n % 16 == 0:
                u = n // 16
                lstamp(k, 63, 21 + 3 * u)
                E(WLG(f"s{n - 1}"), WVM(f"u{u}"))
                lstamp(k, 63, 22 + 3 * u)
                E("s_barrier")
                lstamp(k, 63, 23 + 3 * u)
                spread(c + (6 if u == 3 else 0), c + 12, z_dma(u))
            fill += pb_reads(n)
        E(WLG(f"s{c}"))
        if c == 32:
            stamp(k, 8)
        E(weave(pb_mf(c, vtype), interleave(fill, extra.get(c, [])), 0, 4))
    for c in extra:
        assert c < 64


def interleave(x, y):
    out = []
    n = max(len(x), len(y))
    for i in range(n):
        if i < len(x):
            out.append(x[i])
        if i < len(y):
            out.append(y[i])
    return out


def z_phase(k, z2):
    E = k.emit
    ZACC = ACC[0]
    ZW = WF

    def reads(c):
        z, cs = c // 4, c % 4
        sg, off = seg_off(zslot(z) * 32768 + cs * 8192)
        fb = ZW + (c % 2) * 12
        return [LG(f"ds_read_b64_tr_b16 {v(fb + 4 * f + 2 * sec, 2)}, v{vCR + sg} offset:{off + sec * 768 + f * 64}", f"y{c}")
                for f in range(3) for sec in range(2)]

    def mf(c):
        fb = ZW + (c % 2) * 12
        out = []
        for f in range(3):
            wf, xf = ('v', fb + 4 * f), XF(c)
            X, Y = (xf, wf) if z2 else (wf, xf)
            out.append(mfma(('v', ZACC + 16 * f), X, Y, 0 if c == 0 else None))
        return out

    epi = kv_epi(3)
    lstamp(k, 63, 33)
    E(WVM("z0"), "s_barrier")
    lstamp(k, 63, 34)
    E(reads(0), z_dma(4))
    lstamp(k, 63, 35)
    for c in range(32):
        E(WLG(f"y{c}"))
        if c % 4 == 0:
            E(WVM(f"xn{c // 4}"))
        fill = []
        if c % 4 == 3 and c < 31:
            z = c // 4
            lstamp(k, 63, 36 + 3 * z)
            E(WVM(f"z{z + 1}"))
            lstamp(k, 63, 37 + 3 * z)
            E("s_barrier")
            lstamp(k, 63, 38 + 3 * z)
            fill += reads(c + 1)
            if z + 5 < 8:
                fill += z_dma(z + 5)
        elif c < 31:
            fill += reads(c + 1)
        if c % 2 == 1:
            fill += [epi[c // 2]]
        E(weave(mf(c), fill, 0, 3, lead=True))


def build():
    k = Kern("k1_kernel")
    E = k.emit
    E("s_cmp_ge_u32 s2, 256\ns_cbranch_scc1 K1_END")
    code_prefetch(k, "L_CODE_END", 0, 120)
    stamp_init(k)
    stamp(k, 0)
    E(f"s_load_dwordx4 s[40:43], s[0:1], {KA_X}")
    E(f"s_load_dwordx4 s[44:47], s[0:1], {KA_WUK}")
    E(f"s_load_dwordx2 s[48:49], s[0:1], {KA_WIN}")
    E(f"s_load_dwordx4 s[52:55], s[0:1], {KA_DBG}")
    E("v_lshrrev_b32 v1, 6, v0\nv_and_b32 v0, 63, v0")
    E(f"s_lshr_b32 s{sRB}, s2, 3\ns_and_b32 s{sCB}, s2, 7")
    E(f"v_readfirstlane_b32 s{sW}, v1")
    E(f"s_and_b32 s{sNB}, s{sRB}, 3\ns_lshl_b32 s{sT}, s{sCB}, 2\ns_add_u32 s{sNB}, s{sNB}, s{sT}")
    E(f"s_lshr_b32 s{sMB}, s{sRB}, 2")
    E(f"s_and_b32 s{sRS}, s{sW}, 1\ns_lshr_b32 s{sCH}, s{sW}, 1\ns_lshl_b32 s{sW8}, s{sW}, 13\ns_lshl_b32 s{sW2}, s{sW}, 12")
    f0 = vF
    E(f"v_and_b32 v{f0}, 31, v0\nv_lshrrev_b32 v{f0 + 1}, 5, v0\nv_lshrrev_b32 v{f0 + 2}, 4, v0")
    E(f"v_bfe_u32 v{f0 + 3}, v0, 2, 2\nv_and_b32 v{f0 + 4}, 3, v0\nv_bfe_u32 v{f0 + 5}, v0, 4, 1")
    E(f"v_lshlrev_b32 v{vL16}, 4, v0")
    E(f"v_lshrrev_b32 v46, 3, v0\nv_lshlrev_b32 v50, 13, v46\nv_lshlrev_b32 v46, 10, v46\nv_and_b32 v47, 7, v0\nv_xor_b32 v47, v47, v{f0 + 2}")
    E("v_lshl_add_u32 v48, v47, 4, v46\nv_xor_b32 v47, 4, v47\nv_lshl_add_u32 v49, v47, 4, v46")
    for i in range(8):
        E(f"v_add_u32 v{vCD + i}, {i * 8192 - (i % 4) * 1024}, v{48 + (i % 2)}")
    E(f"v_bfe_u32 v47, v0, 2, 1\nv_xor_b32 v47, v47, v{f0 + 5}\nv_lshl_add_u32 v50, v47, 6, v50\nv_lshl_add_u32 v50, v{f0 + 4}, 4, v50")
    for i in range(8):
        E(f"v_add_u32 v{vUD + i}, {i * 65536 - (i % 4) * 1024}, v50")
    E(f"s_lshl_b32 s{sCK}, s{sMB}, 18\ns_lshl_b32 s{sT}, s{sW}, 16\ns_add_u32 s{sCK}, s{sCK}, s{sT}")
    E(f"s_and_b32 s{sT}, s{sNB}, 15\ns_lshl_b32 s{sT}, s{sT}, 9\ns_lshl_b32 s{sWK}, s{sW}, 19\ns_add_u32 s{sWK}, s{sWK}, s{sT}")
    E(f"s_lshl_b32 s{sWB}, s{sW}, 17\ns_add_u32 s{sWB}, s{sWB}, s{sT}")
    E(f"s_lshl_b32 s{sT2}, s2, 13\ns_lshl_b32 s{sT}, s{sW}, 11\ns_add_u32 s{sT2}, s{sT2}, s{sT}")
    E(f"v_xor_b32 v46, v{f0 + 3}, v{f0 + 2}\nv_lshlrev_b32 v47, 13, v{f0 + 2}\nv_lshl_add_u32 v47, v46, 6, v47\nv_lshl_add_u32 v47, v{f0 + 4}, 4, v47")
    for i in range(4):
        E(f"v_add_u32 v{vQD + i}, {i * (32768 - 1024)}, v47")
    E("s_waitcnt lgkmcnt(0)")
    E(srd(SX, 40, 2048 * 1024), srd(SC, 42, 2048 * 1024))
    E(VM(f"buffer_load_dwordx4 v[40:43], v{vL16}, {s(SX, 4)}, s{sT2} offen", "x"))
    E(VM(f"buffer_load_dwordx4 v[44:47], v{vL16}, {s(SX, 4)}, s{sT2} offen offset:1024", "x"))
    E(f"s_cmp_lt_u32 s{sNB}, 16\ns_cselect_b32 s{SW}, s44, s46\ns_cselect_b32 s{SW + 1}, s45, s47")
    E(f"s_mov_b32 s{SW + 2}, {512 * 8192:#x}\ns_mov_b32 s{SW + 3}, 0x20000")
    for j in range(2):
        E(a_dma(j), b_dma(j))
    E(srd(SI, 48, 512 * 2752), srd(SS, 54, WS_SIZE), srd(SD, 52, 256))
    E(f"s_lshl_b32 s{sT}, s2, 2\ns_add_u32 s{sT}, s{sT}, s{sW}\ns_lshl_b32 s76, s{sT}, 12\ns_lshl_b32 s77, s{sT}, 11")
    E(srd(SPF, 44, 512 * 8192))
    E("s_mov_b32 s70, s46\ns_mov_b32 s71, s47")
    E(f"s_load_dwordx2 s[44:45], s[0:1], {KA_WQ}")
    E(f"v_bfe_u32 v48, v0, 1, 3\nv_xor_b32 v48, v48, v{f0 + 1}\nv_lshlrev_b32 v49, 7, v{f0}\nv_add_u32 v49, s{sW8}, v49")
    for k16 in range(4):
        E(f"v_xor_b32 v50, {2 * k16}, v48\nv_lshl_add_u32 v{vCR + k16}, v50, 4, v49\nv_add_u32 v{vCR + 4 + k16}, {SLOT}, v{vCR + k16}")
    E(f"v_lshl_add_u32 v48, v{f0 + 1}, 3, v{f0 + 3}\nv_lshlrev_b32 v48, 8, v48\nv_lshl_add_u32 v48, v{f0 + 5}, 5, v48\nv_lshl_add_u32 v48, v{f0 + 4}, 3, v48\nv_add_u32 v48, 32768, v48")
    for d in range(4):
        E(f"v_xor_b32 v49, {d}, v{f0 + 3}\nv_lshl_add_u32 v{vQR + d}, v49, 6, v48\nv_add_u32 v{vQR + 4 + d}, {SLOT}, v{vQR + d}")
    E(f"v_lshl_add_u32 v48, v{f0 + 1}, 3, v{f0 + 3}\nv_lshlrev_b32 v48, 7, v48\nv_lshl_add_u32 v48, v{f0 + 5}, 5, v48\nv_lshl_add_u32 v48, v{f0 + 4}, 3, v48")
    E(f"v_lshrrev_b32 v49, 1, v{f0 + 3}\nv_lshl_add_u32 v{vBR}, v49, 6, v48\nv_xor_b32 v49, 1, v49\nv_lshl_add_u32 v{vBR + 1}, v49, 6, v48")
    for sg in (1, 2):
        for d2 in range(2):
            E(f"v_add_u32 v{vBR + 2 * sg + d2}, {sg * 65536}, v{vBR + d2}")
    E(f"s_lshl_b32 s{sKO}, s{sNB}, 7\ns_lshl_b32 s{sT}, s{sMB}, 3\ns_add_u32 s{sKO}, s{sKO}, s{sT}\ns_lshl_b32 s{sT}, s{sW}, 1\ns_add_u32 s{sKO}, s{sKO}, s{sT}")
    E(f"s_lshl_b32 s{sKO}, s{sKO}, 13\ns_add_u32 s{sKO}, s{sKO}, {WS_KF}")
    E(f"s_mul_i32 s{sWI}, s{sW}, {16 * 2752}\ns_mul_i32 s{sT}, s{sCB}, 192\ns_add_u32 s{sWI}, s{sWI}, s{sT}")
    E(f"s_lshl_b32 s{sXN}, s{sRB}, 16\ns_lshl_b32 s{sT}, s{sRS}, 15\ns_add_u32 s{sXN}, s{sXN}, s{sT}\ns_add_u32 s{sXN}, s{sXN}, {WS_XN}")
    E(f"s_lshl_b32 s{sCNT}, s{sRB}, 3\ns_mov_b32 s{sONES}, 0x3f803f80")
    E(f"s_lshr_b32 s{sT2}, s2, 2\ns_lshl_b32 s{sT2}, s{sT2}, 15\ns_and_b32 s{sT}, s2, 3\ns_lshl_b32 s{sT}, s{sT}, 7\ns_add_u32 s{sT2}, s{sT2}, s{sT}")
    E(f"s_add_u32 s{sT2}, s{sT2}, s{sW8}\ns_add_u32 s69, s{sT2}, {WS_XN}")
    E(f"s_lshl_b32 s{sT}, s{sW}, 5\ns_add_u32 s{sT}, s{sT}, {3 * SLOT}\nv_lshlrev_b32 v58, 7, v0\nv_add_u32 v58, s{sT}, v58")
    E(f"s_lshl_b32 s{sT}, s{sW}, 11\ns_add_u32 s{sT}, s{sT}, {3 * SLOT}\nv_add_u32 v59, s{sT}, v{vL16}")
    E("v_lshrrev_b32 v62, 3, v0\nv_lshlrev_b32 v62, 9, v62\nv_and_b32 v48, 7, v0\nv_lshl_add_u32 v62, v48, 4, v62")
    E("s_waitcnt lgkmcnt(0)")
    stamp(k, 1)
    E(f"s_cmp_ge_u32 s{sNB}, 16\ns_cbranch_scc1 K1_V")
    st = (list(k.vm), list(k.lg))
    kv_phase(k, False)
    E("s_branch K1_Z")
    k.set_state(*st)
    E("K1_V:")
    kv_phase(k, True)
    E("K1_Z:")
    stamp(k, 2)
    E(f"v_mov_b32 v60, {fbits(GELU_C0)}\nv_mov_b32 v61, {fbits(GELU_C1)}")
    E(f"s_cmp_eq_u32 s{sCH}, 1\ns_cbranch_scc1 K1_Z2")
    st = (list(k.vm), list(k.lg))
    ZACC = ACC[0]
    zr = list(range(ZACC, ZACC + 48))
    z_phase(k, False)
    stamp(k, 3)
    E(f"s_lshl_b32 s{sT}, s{sRB}, 1\ns_add_u32 s{sT}, s{sT}, s{sRS}\ns_mul_i32 s{sT}, s{sT}, 48")
    E(f"s_mul_i32 s{sT2}, s{sCB}, 6\ns_add_u32 s{sT}, s{sT}, s{sT2}\ns_lshl_b32 s{sT}, s{sT}, 10")
    E(f"s_add_u32 s{sT}, s{sT}, {WS_Z1}\ns_add_u32 s{sT2}, s{sT}, 4096\ns_nop 7")
    E(f"s_cmp_lg_u32 s{sCB}, 7\ns_cbranch_scc1 K1_Z1_NOMASK")
    for r in zr[8:]:
        E(f"v_mov_b32 v{r}, 0")
    E("K1_Z1_NOMASK:")
    for fg in range(6):
        b = ZACC + 8 * fg
        E(gelu(list(range(b, b + 8)), 60, 61, 52))
        for i in range(4):
            E(f"v_cvt_pk_bf16_f32 v{b + i}, v{b + 2 * i}, v{b + 2 * i + 1}")
        E(VM(f"buffer_store_dwordx4 {v(b, 4)}, v{vL16}, {s(SS, 4)}, s{sT if fg < 4 else sT2} offen offset:{1024 * (fg % 4)} sc1"))
    E("s_branch K1_DONE")
    k.set_state(*st)
    E("K1_Z2:")
    z_phase(k, True)
    stamp(k, 3)
    E(f"s_mul_i32 s{sT}, s{sCB}, 384\ns_lshl_b32 s{sT2}, s{sRB}, 2\ns_add_u32 s{sT}, s{sT}, s{sT2}")
    E(f"s_lshl_b32 s{sT2}, s{sRS}, 1\ns_add_u32 s{sT}, s{sT}, s{sT2}\ns_lshl_b32 s{sT}, s{sT}, 10\ns_add_u32 s{sT}, s{sT}, {WS_Z2R}\ns_nop 7")
    E(f"s_cmp_lg_u32 s{sCB}, 7\ns_cbranch_scc1 K1_Z2_NOMASK")
    E(f"v_cmp_gt_u32 vcc, 16, v{vF}\ns_nop 1")
    for r in zr[:16]:
        E(f"v_cndmask_b32 v{r}, 0, v{r}, vcc")
    for r in zr[16:]:
        E(f"v_mov_b32 v{r}, 0")
    E("K1_Z2_NOMASK:")
    E(gelu(zr, 60, 61, 52))
    SQ = 64
    for r in range(16):
        z0, z1, z2_ = ZACC + r, ZACC + 16 + r, ZACC + 32 + r
        E(f"v_add_f32 v{SQ + r}, v{z0}, v{z1}\nv_mul_f32 v{SQ + 16 + r}, v{z0}, v{z0}")
        E(f"v_add_f32 v{SQ + r}, v{SQ + r}, v{z2_}\nv_fmac_f32 v{SQ + 16 + r}, v{z1}, v{z1}")
        E(f"v_fmac_f32 v{SQ + 16 + r}, v{z2_}, v{z2_}")
    SCR = zslot(3) * 32768
    E(f"s_mul_i32 s{sT2}, s{sRS}, 9216\ns_add_u32 s{sT2}, s{sT2}, {SCR}")
    E(f"v_mul_u32_u24 v46, {4 * 144}, v{vF + 1}\nv_lshl_add_u32 v46, v{vF}, 2, v46\nv_add_u32 v46, s{sT2}, v46")
    for stt in range(2):
        for r in range(16):
            srow = 8 * (r // 4) + r % 4
            E(LG(f"ds_write_b32 v46, v{SQ + 16 * stt + r} offset:{(stt * 32 + srow) * 144}"))
    E(f"v_mul_u32_u24 v47, 144, v0\nv_add_u32 v47, s{sT2}, v47")
    for f in range(3):
        for g in range(2):
            b = ZACC + 16 * f + 8 * g
            for i in range(4):
                E(f"v_cvt_pk_bf16_f32 v{b + i}, v{b + 2 * i}, v{b + 2 * i + 1}")
            E("s_nop 1")
            E(f"v_permlane32_swap_b32 v{b}, v{b + 2}\nv_permlane32_swap_b32 v{b + 1}, v{b + 3}")
            E("s_nop 1")
            E(VM(f"buffer_store_dwordx4 {v(b, 4)}, v{vL16}, {s(SS, 4)}, s{sT} offen offset:{1024 * g} sc1"))
        if f < 2:
            E(f"s_add_u32 s{sT}, s{sT}, {128 * 1024}")
    E(WLG0)
    for i in range(8):
        E(LG(f"ds_read_b128 {v(SQ + 4 * i, 4)}, v47 offset:{16 * i}"))
    E(f"s_lshl_b32 s{sT}, s{sRB}, 1\ns_add_u32 s{sT}, s{sT}, s{sRS}\ns_lshl_b32 s{sT}, s{sT}, 11\ns_add_u32 s{sT}, s{sT}, {WS_STAT}")
    E(f"s_lshl_b32 s{sT2}, s{sCB}, 8\ns_add_u32 s{sT}, s{sT}, s{sT2}\nv_lshlrev_b32 v46, 2, v0")
    E(WLG0)
    for stride in (16, 8, 4, 2, 1):
        for i in range(stride):
            E(f"v_add_f32 v{SQ + i}, v{SQ + i}, v{SQ + stride + i}")
    E(VM(f"buffer_store_dword v{SQ}, v46, {s(SS, 4)}, s{sT} offen"))
    E("K1_DONE:")
    if PROF:
        stamp(k, 4)
        E(WVM0)
    stamp(k, 5)
    lstamp_store(k, 0, 63, 59, SS, sW)
    stamp_store(k, 0, SS, sW, 96)
    E("K1_END:")
    E("s_endpgm")
    return k.text(512, 256)
```

```python
from asmlib import *
from common import *
import os

THRESH = float(os.environ.get("THRESH", "16.0"))
BUDGET = int(os.environ.get("BUDGET", "25"))
EXP = os.environ.get("EXP2", "")

SQ, SP, SB, SS, SD = 8, 12, 16, 20, 24
sW, sHD, sPI, sG, sRS = 32, 33, 34, 35, 36
sT, sT2, sU, sSW, sSW2, sJUMP, sTL, sTD = 37, 38, 39, 40, 41, 42, 43, 44
sKN, sKO2, sVO, sVO2, sMK, sMV = 45, 46, 47, 48, 49, 50
sTH = (51, 52)
sLO = (53, 54)
sXN, sWQ, sWM, sW8, sDO = 55, 56, 57, 59, 58
sGP, sGZ, sGM, sFL, sPF = 60, 61, 62, 63, 76
NINF = "0xff800000"

vL16, vKc, vKn, vVp, vVc, vD0, vNEG = 1, 2, 3, 4, 5, 6, 7
vLs = ((8, 9), (10, 11))
vNM = (12, 13)
vM = 14
vLSV = (30, 31)
vT = 20
vQD = 32
vQR = 36
S = (48, 64)
NEGM = (80, 96)
PB = 112
QBS = 144
ZT = 208
aO, aQ, aK, aV = 0, 128, 192, 224

KB0, VB0, SPARE = 0, 65536, 131072
NEG = -1.0e30


def P(buf, x, i=0):
    return PB + (buf * 2 + x) * 8 + i


def dma4(so, tag="kv"):
    return [VM(f"buffer_load_dwordx4 v{vL16}, {s(SS, 4)}, s{so} offen offset:{1024 * i} lds", tag) for i in range(4)]


def qk(x):
    return [mfma(('v', S[x]), ('a', aK + 4 * d), ('a', aQ + (x * 8 + d) * 4), ('v', NEGM[x]) if d == 0 else None)
            for d in range(8)]


def pv(x, buf):
    return [mfma(('a', aO + (x * 4 + ds) * 16), ('a', aV + (ds * 2 + g) * 4), ('v', P(buf, x, 4 * g)))
            for g in range(2) for ds in range(4)]


def kreads(areg, th):
    return [LG(f"ds_read_b128 {a(aK + 4 * d, 4)}, v{areg} offset:{th * 8192 + d * 1024}", "k") for d in range(8)]


def vreads(areg, th):
    return [LG(f"ds_read_b128 {a(aV + 4 * f, 4)}, v{areg} offset:{th * 8192 + f * 1024}", "v") for f in (0, 2, 4, 6, 1, 3, 5, 7)]


def sm_max(x):
    b, m = S[x], vM
    return [(4, I(t)) for t in (
        f"v_max3_f32 v{m}, v{b}, v{b + 1}, v{b + 2}", f"v_max3_f32 v{m + 1}, v{b + 3}, v{b + 4}, v{b + 5}",
        f"v_max3_f32 v{m + 2}, v{b + 6}, v{b + 7}, v{b + 8}", f"v_max3_f32 v{m + 3}, v{b + 9}, v{b + 10}, v{b + 11}",
        f"v_max3_f32 v{m + 4}, v{b + 12}, v{b + 13}, v{b + 14}", f"v_max3_f32 v{m}, v{m}, v{m + 1}, v{b + 15}",
        f"v_max3_f32 v{m + 2}, v{m + 2}, v{m + 3}, v{m + 4}", f"v_max_f32 v{m}, v{m}, v{m + 2}")]


def sm_chk(x, buf):
    return (8, [I(f"v_cmp_lt_f32 vcc, s{sTH[x]}, v{vM}"), I(f"s_cbranch_vccnz K2_RARE_{x}_{buf}"), I(f"K2_RET_{x}_{buf}:")])


def sm_fin(x, buf, i):
    b = S[x]
    return [(4, I(f"v_add_f32 v{vLs[x][0]}, v{vLs[x][0]}, v{b + 2 * i}")),
            (4, I(f"v_add_f32 v{vLs[x][1]}, v{vLs[x][1]}, v{b + 2 * i + 1}")),
            (4, I(f"v_cvt_pk_bf16_f32 v{P(buf, x, i)}, v{b + 2 * i}, v{b + 2 * i + 1}"))]


def sm_exp(x, buf):
    b = S[x]
    items = []
    for i in range(8):
        items.append((8, I(f"v_exp_f32 v{b + 2 * i}, v{b + 2 * i}")))
        items.append((8, I(f"v_exp_f32 v{b + 2 * i + 1}, v{b + 2 * i + 1}")))
        if i > 0:
            items += sm_fin(x, buf, i - 1)
    return items + sm_fin(x, buf, 7)


def schedule_loop():
    NG = 64
    gaps = [[] for _ in range(NG + 24)]
    used = [0] * (NG + 24)

    def fixed(g, cost, item):
        gaps[g].append(item)
        used[g] += cost

    for i, r in enumerate(vreads(vVp, 1)):
        fixed(0 + (i * 12) // 8, 4, r)
    for i, r in enumerate(kreads(vKc, 1)):
        fixed(16 + (i * 10) // 8, 4, r)
    for i, r in enumerate(vreads(vVc, 0)):
        fixed(32 + (i * 12) // 8, 4, r)
    for i, r in enumerate(kreads(vKn, 0)):
        fixed(48 + (i * 12) // 8, 4, r)
    fixed(24, 8, [I(f"s_add_u32 s{sVO}, s{sKN}, {WS_VF - WS_KF}"), I(f"s_add_u32 s{sVO2}, s{sKN}, {WS_VF - WS_KF + 4096}")])
    fixed(25, 12, [I(f"s_cmp_eq_u32 s{sU}, s{sSW2}"), I(f"s_cselect_b32 s{sT}, s{sJUMP}, 0x4000"), I(f"s_add_u32 s{sKN}, s{sKN}, s{sT}")])
    fixed(27, 8, [I(f"s_add_u32 s{sKO2}, s{sKN}, 4096"), I(f"s_mov_b32 m0, s{sMK}")])
    fixed(28, 8, [I("s_waitcnt vmcnt(1) lgkmcnt(0)"), ('reset',), I("s_barrier")])
    fixed(61, 12, [VM(f"buffer_load_dwordx4 {v(ZT + 40, 4)}, v{vL16}, {s(SP, 4)}, s{sPF} offen", "pf"), I(f"s_add_u32 s{sPF}, s{sPF}, 0x100000")])
    g = 29
    for so, nxt in ((sKN, f"s_add_u32 m0, s{sMK}, 4096"), (sKO2, f"s_mov_b32 m0, s{sMV}"), (sVO, f"s_add_u32 m0, s{sMV}, 4096"), (sVO2, None)):
        for i, d in enumerate(dma4(so)):
            fixed(g, 10, d)
            if i == 3 and nxt:
                fixed(g + 1, 4, I(nxt))
            g += 2
    fixed(31, 8, None)
    fixed(62, 24, None)
    fixed(63, 16, None)
    for g in range(NG, NG + 24):
        used[g] = used[g - NG]
    for half in range(2):
        G = 8 + 32 * half
        buf = half
        ea, eb = sm_exp(0, buf), sm_exp(1, buf)
        state = {'g': G + 1}

        def put(early, ci, dry=False):
            cost, item = ci
            g = max(state['g'], early)
            while used[g] + cost > BUDGET + 4 or used[g] >= BUDGET:
                g += 1
            if dry:
                return g
            gaps[g].append(item)
            used[g] += cost
            if g >= NG:
                used[g - NG] += cost
            state['g'] = g
            return g

        for it in sm_max(0):
            put(G + 1, it)
        assert put(G + 1, sm_chk(0, buf)) <= G + 7
        n1 = 0
        while put(G + 1, ea[n1], dry=True) < G + 9:
            put(G + 1, ea[n1])
            n1 += 1
        for it in sm_max(1):
            put(G + 9, it)
        assert put(G + 9, sm_chk(1, buf)) <= G + 15
        for it in ea[n1:]:
            assert put(G + 9, it) <= G + 23
        for it in eb:
            last = put(G + 9, it)
            assert last <= G + 31, last
    gaps = [[x for x in g if x is not None] for g in gaps]
    wrapped = []
    for g in range(NG, NG + 24):
        wrapped += gaps[g]
    gm = {g: (gaps[g + NG] if g < 24 else []) + gaps[g] for g in range(NG)}
    return gm, wrapped


def rare_path(k, x, buf):
    E = k.emit
    t = vT
    L = f"{x}_{buf}"
    E(f"K2_RARE_{L}:")
    E(f"s_mov_b32 s{sTH[x]}, {fbits(THRESH)}")
    E(f"s_cmp_lt_u32 s{sTL}, s{sTD}\ns_cbranch_scc1 K2_RNM_{L}")
    E(f"s_sub_i32 s{sT}, s{sTD}, s{sTL}\ns_lshl_b32 s{sT}, s{sT}, 6\ns_add_i32 s{sT}, s{sT}, {32 * x - 32 * buf}")
    E(f"v_add_u32 v{t}, s{sT}, v{vD0}")
    for r0 in range(0, 16, 4):
        for r in range(r0, r0 + 4):
            E(f"v_cmp_gt_i32 s[{64 + 2 * (r % 4)}:{65 + 2 * (r % 4)}], {8 * (r // 4) + r % 4}, v{t}")
        for r in range(r0, r0 + 4):
            E(f"v_cndmask_b32 v{S[x] + r}, v{S[x] + r}, v{vNEG}, s[{64 + 2 * (r % 4)}:{65 + 2 * (r % 4)}]")
    E([it for _, it in sm_max(x)])
    if buf == 0:
        E(f"s_mov_b32 s{sTH[x]}, {NINF}")
    E(f"s_cmp_lg_u32 s{sLO[x]}, 0\ns_cbranch_scc1 K2_RNM_{L}")
    E(f"v_cmp_lt_f32 vcc, {fbits(THRESH)}, v{vM}\ns_nop 0\ns_cbranch_vccz K2_RET_{L}")
    E(f"K2_RNM_{L}:")
    E(f"v_mov_b32 v{t}, v{vM}\ns_nop 1\nv_permlane32_swap_b32 v{vM}, v{t}\ns_nop 1")
    E(f"v_max_f32 v{t}, v{t}, v{vM}\nv_ceil_f32 v{t}, v{t}\nv_max_f32 v{t}, s{sLO[x]}, v{t}")
    E(f"v_sub_f32 v{vNM[x]}, v{vNM[x]}, v{t}")
    for r in range(16):
        E(f"v_sub_f32 v{S[x] + r}, v{S[x] + r}, v{t}")
        E(f"v_mov_b32 v{NEGM[x] + r}, v{vNM[x]}")
    E(f"s_cmp_eq_u32 s{sLO[x]}, 0\ns_cbranch_scc1 K2_RSC_{L}")
    E(f"v_add_f32 v{vLSV[x]}, v{vLs[x][0]}, v{vLs[x][1]}\nv_mov_b32 v{vLs[x][0]}, 0\nv_mov_b32 v{vLs[x][1]}, 0")
    E(f"s_mov_b32 s{sLO[x]}, 0\ns_branch K2_RET_{L}")
    E(f"K2_RSC_{L}:")
    E(f"v_sub_f32 v{t + 1}, 0, v{t}\nv_exp_f32 v{t + 1}, v{t + 1}\ns_nop 0")
    E(f"v_mul_f32 v{vLs[x][0]}, v{vLs[x][0]}, v{t + 1}\nv_mul_f32 v{vLs[x][1]}, v{vLs[x][1]}, v{t + 1}")
    for i in range(8):
        p = P(1 - buf, x, i)
        E(f"v_lshlrev_b32 v{t + 2}, 16, v{p}\nv_and_b32 v{t + 3}, 0xffff0000, v{p}")
        E(f"v_mul_f32 v{t + 2}, v{t + 2}, v{t + 1}\nv_mul_f32 v{t + 3}, v{t + 3}, v{t + 1}")
        E(f"v_cvt_pk_bf16_f32 v{p}, v{t + 2}, v{t + 3}")
    E("s_nop 15")
    for r in range(0, 64, 4):
        for i in range(4):
            E(f"v_accvgpr_read_b32 v{t + 2 + i}, a{aO + x * 64 + r + i}")
        for i in range(4):
            E(f"v_mul_f32 v{t + 2 + i}, v{t + 2 + i}, v{t + 1}")
        for i in range(4):
            E(f"v_accvgpr_write_b32 a{aO + x * 64 + r + i}, v{t + 2 + i}")
    E(f"s_nop 1\ns_branch K2_RET_{L}")


def ctx_addr(sqb_expr, x_in_addr):
    pass


def hooks(k):
    E = k.emit
    E("K2_SWITCH:")
    E(f"s_cmp_eq_u32 s{sG}, 0\ns_cbranch_scc1 K2_SW0")
    for r in range(64):
        E(f"v_accvgpr_write_b32 a{aQ + r}, v{QBS + r}")
    for r in range(32):
        E(f"v_mov_b32 v{NEGM[0] + r}, 0")
    E(f"v_mov_b32 v{vNM[0]}, 0\nv_mov_b32 v{vNM[1]}, 0")
    for x in range(2):
        E(f"s_mov_b32 s{sTH[x]}, {NINF}\ns_mov_b32 s{sLO[x]}, {NINF}")
    E(f"s_mov_b32 s{sTL}, 17\ns_sub_u32 s{sTD}, 15, s{sPI}\ns_lshl_b32 s{sTD}, s{sTD}, 1\ns_add_u32 s{sTD}, s{sTD}, s{sRS}")
    E("s_branch K2_SWRET")
    E("K2_SW0:")
    E(f"v_and_b32 v{ZT}, 31, v0\nbuffer_load_ubyte v{ZT + 1}, v{ZT}, {s(SD, 4)}, s{sFL} offen sc0 sc1")
    E("s_branch K2_SWRET")
    E("K2_FINB:")
    E(f"s_cmp_eq_u32 s{sG}, 0\ns_cbranch_scc1 K2_FB0")
    t = ZT
    for x in range(2):
        E(f"v_mov_b32 v{t + x}, v{vLSV[x]}")
    E("s_nop 1")
    for x in range(2):
        E(f"v_permlane32_swap_b32 v{vLSV[x]}, v{t + x}")
    E("s_nop 1")
    for x in range(2):
        E(f"v_add_f32 v{t + x}, v{t + x}, v{vLSV[x]}\nv_rcp_f32 v{t + x}, v{t + x}")
    E(f"s_lshl_b32 s{sT}, s{sPI}, 2\ns_lshl_b32 s{sT2}, s{sRS}, 1\ns_add_u32 s{sT}, s{sT}, s{sT2}")
    E(f"s_mul_i32 s{sT}, s{sT}, {CTXU_STEPS}\ns_lshl_b32 s{sT2}, s{sHD}, 3\ns_add_u32 s{sT}, s{sT}, s{sT2}")
    E(f"s_lshl_b32 s{sT}, s{sT}, 10\ns_add_u32 s{sT}, s{sT}, {WS_CTXU}\ns_nop 7")
    for x in range(2):
        for f in range(8):
            b = t + 8 + 8 * (f % 4)
            for i in range(8):
                E(f"v_accvgpr_read_b32 v{b + i}, a{aO + x * 64 + 8 * f + i}")
            for i in range(8):
                E(f"v_mul_f32 v{b + i}, v{b + i}, v{t + x}")
            for i in range(4):
                E(f"v_cvt_pk_bf16_f32 v{b + i}, v{b + 2 * i}, v{b + 2 * i + 1}")
            E(f"buffer_store_dwordx4 {v(b, 4)}, v{vL16}, {s(SS, 4)}, s{sT} offen offset:{1024 * (f % 4)} sc1")
            if f == 3:
                E(f"s_add_u32 s{sT}, s{sT}, 4096")
            if f == 7 and x == 0:
                E(f"s_add_u32 s{sT}, s{sT}, {CTXU_STEPS * 1024 - 4096}")
    for i in range(4):
        E(f"v_mov_b32 v{t + 4 + i}, 0")
    E("s_nop 1")
    for i in range(8):
        E(mfma(('a', aO + 16 * i), ('v', t + 4), ('v', t + 4), 0))
    E("s_branch K2_FBRET")
    E("K2_FB0:")
    E("s_waitcnt vmcnt(2)")
    E(f"v_cmp_ne_u32 vcc, 1, v{ZT + 1}\ns_nop 1\ns_cbranch_vccz K2_FBOK")
    E(f"K2_FBLP:\ns_sleep 2\nbuffer_load_ubyte v{ZT + 1}, v{ZT}, {s(SD, 4)}, s{sFL} offen sc0 sc1\ns_waitcnt vmcnt(0)")
    E(f"v_cmp_ne_u32 vcc, 1, v{ZT + 1}\ns_nop 1\ns_cbranch_vccnz K2_FBLP")
    E("K2_FBOK:\ns_branch K2_FBRET")


QACC = 48
aXN = 0
aWF = 192


def wq_dma(j):
    g = [I(f"s_add_u32 m0, s{sWM}, {j * 16384}"), I(f"s_add_u32 s{sDO}, s{sWQ}, {j * 64 * 8192}")]
    for i in range(4):
        g.append(VM(f"buffer_load_dwordx4 v{vQD + i}, {s(SQ, 4)}, s{sDO} offen offset:{1024 * i} lds", f"wq{j}"))
    return [g]


def xn_loads(j):
    out = []
    for x in range(2):
        g = [I(f"s_add_u32 s{sDO}, s{sXN}, {x * 32768 + j * 4096}")]
        for cs in range(4):
            g.append(VM(f"buffer_load_dwordx4 {a(aXN + (j % 4) * 32 + (x * 4 + cs) * 4, 4)}, v{vL16}, {s(SS, 4)}, "
                        f"s{sDO} offen offset:{1024 * cs}", f"xn{j}"))
        out.append(g)
    return out


def znorm():
    ld = [[I(x) for x in (f"s_lshr_b32 s{sGM}, s2, 3", f"s_and_b32 s{sGP}, s2, 7", f"s_lshl_b32 s{sT}, s{sGM}, 1", f"s_add_u32 s{sT}, s{sT}, s{sG}",
                          f"s_lshl_b32 s{sT}, s{sT}, 11", f"s_add_u32 s{sT}, s{sT}, {WS_STAT}", f"v_lshlrev_b32 v{ZT}, 2, v0")]]
    for i in range(0, 8, 2):
        ld.append([VM(f"buffer_load_dword v{ZT + 4 + i + e}, v{ZT}, {s(SS, 4)}, s{sT} offen offset:{256 * (i + e)}", "zn") for e in range(2)])
    ld.append([I(x) for x in (f"s_mul_i32 s{sGZ}, s{sGP}, 384", f"s_lshl_b32 s{sT}, s{sGM}, 2", f"s_add_u32 s{sGZ}, s{sGZ}, s{sT}",
                              f"s_add_u32 s{sGZ}, s{sGZ}, s{sW}", f"s_lshl_b32 s{sGZ}, s{sGZ}, 10")])
    for f in range(3):
        ld.append([I(f"s_add_u32 s{sT}, s{sGZ}, {WS_Z2R + f * 128 * 1024}"),
                   VM(f"buffer_load_dwordx4 {v(ZT + 12 + 4 * f, 4)}, v{vL16}, {s(SS, 4)}, s{sT} offen", "zn")])
    z = ZT + 4
    AB = ZT + 24
    c = [WVM("zn")]
    c += flat([f"v_add_f32 v{z}, v{z}, v{z + 1}\nv_add_f32 v{z + 2}, v{z + 2}, v{z + 3}\nv_add_f32 v{z + 4}, v{z + 4}, v{z + 5}\nv_add_f32 v{z + 6}, v{z + 6}, v{z + 7}",
               f"v_add_f32 v{z}, v{z}, v{z + 2}\nv_add_f32 v{z + 4}, v{z + 4}, v{z + 6}\nv_add_f32 v{z}, v{z}, v{z + 4}",
               f"v_mul_f32 v{z}, {fbits(1 / 688)}, v{z}\nv_mov_b32 v{z + 1}, v{z}\ns_nop 1\nv_permlane32_swap_b32 v{z}, v{z + 1}\ns_nop 1",
               f"v_fma_f32 v{z + 1}, -v{z}, v{z}, v{z + 1}\nv_max_f32 v{z + 1}, 0, v{z + 1}\nv_add_f32 v{z + 1}, {fbits(LN_EPS)}, v{z + 1}\nv_rsq_f32 v{z + 1}, v{z + 1}\ns_nop 0",
               f"v_mul_f32 v{z}, v{z}, v{z + 1}\nv_sub_f32 v{z}, 0, v{z}",
               f"s_lshl_b32 s{sT}, s{sW}, 8\ns_add_u32 s{sT}, s{sT}, {SPARE}",
               f"v_lshlrev_b32 v{z + 2}, 2, v20\nv_add_u32 v{z + 2}, s{sT}, v{z + 2}"])
    c += [LG(f"ds_write_b32 v{z + 2}, v{z + 1}", "zw"), LG(f"ds_write_b32 v{z + 2}, v{z} offset:128", "zw")]
    c += flat([f"s_lshl_b32 s{sT2}, s{sRS}, 6\ns_add_u32 s{sT}, s{sT}, s{sT2}\nv_lshlrev_b32 v{z + 3}, 5, v21\nv_add_u32 v{z + 3}, s{sT}, v{z + 3}"])
    for i in range(2):
        c += [LG(f"ds_read_b128 {v(AB + 4 * i, 4)}, v{z + 3} offset:{16 * i}", "zr"),
              LG(f"ds_read_b128 {v(AB + 8 + 4 * i, 4)}, v{z + 3} offset:{128 + 16 * i}", "zr")]
    c += flat([f"s_lshl_b32 s{sGP}, s{sGP}, 5\ns_add_u32 s{sGP}, s{sGP}, s{sGM}\ns_nop 0\ns_nop 0"])
    c += [WLG("zr")]
    for f in range(3):
        for i in range(4):
            x_ = ZT + 12 + 4 * f + i
            c += flat([f"v_lshlrev_b32 v{z}, 16, v{x_}\nv_and_b32 v{z + 1}, 0xffff0000, v{x_}",
                       f"v_fma_f32 v{z}, v{z}, v{AB + 2 * i}, v{AB + 8 + 2 * i}\nv_fma_f32 v{z + 1}, v{z + 1}, v{AB + 2 * i + 1}, v{AB + 9 + 2 * i}",
                       f"v_cvt_pk_bf16_f32 v{x_}, v{z}, v{z + 1}"])
        c += [I(f"s_add_u32 s{sT}, s{sGZ}, {WS_Z2N + f * 128 * 1024}"),
              VM(f"buffer_store_dwordx4 {v(ZT + 12 + 4 * f, 4)}, v{vL16}, {s(SS, 4)}, s{sT} offen sc1", "zs")]
    cg = [c[i:i + 4] for i in range(0, len(c), 4)]
    return ld, cg


def qproj(k):
    E = k.emit
    extra = {}

    def spread(c0, c1, groups):
        n = len(groups)
        for i, g in enumerate(groups):
            extra.setdefault(c0 + (i * (c1 - c0)) // n, []).append(g)

    def rd(c, fb):
        j, cs = c // 4, c % 4
        return [LG(f"ds_read_b64_tr_b16 {a(fb + 4 * d + 2 * sec, 2)}, v{vQR + (j // 4) * 4 + d} "
                   f"offset:{(j % 4) * 16384 + cs * 4096 + sec * 1024}", f"q{c}") for d in range(4) for sec in range(2)]

    def fbuf(c):
        return aWF + (c % 4) * 16

    def mf1(c, d, x):
        j, cs = c // 4, c % 4
        return mfma(('v', QACC + (x * 4 + d) * 16), ('a', fbuf(c) + 4 * d), ('a', aXN + (j % 4) * 32 + (x * 4 + cs) * 4),
                    0 if c == 0 else None)

    zl, zc = znorm()
    spread(0, 2, wq_dma(2) + xn_loads(2))
    spread(2, 4, wq_dma(3) + xn_loads(3))
    spread(4, 8, wq_dma(4) + xn_loads(4) + wq_dma(5) + zl)
    spread(8, 12, xn_loads(5) + wq_dma(6) + wq_dma(7))
    spread(12, 16, xn_loads(6))
    spread(16, 20, xn_loads(7))
    spread(13, 21, zc)

    def kvpre(base, pre, so, so2):
        return [[I(f"s_add_u32 m0, s{sW8}, {base}")] + [I(x) for x in pre] + dma4(so),
                [I(f"s_add_u32 m0, s{sW8}, {base + 4096}"), I("s_nop 0")] + dma4(so2)]

    E(WVM("wq0"), "s_barrier")
    stamp(k, 6)
    E(rd(0, fbuf(0)), rd(1, fbuf(1)))
    for c in range(28):
        j, cs = c // 4, c % 4
        n = c + 2
        if n % 4 == 0:
            lstamp(k, 19, 3 * (n // 4))
            E(WLG(f"q{n - 1}"), WVM(f"wq{n // 4}"))
            if n // 4 == 6:
                E(WVM("zs"))
            lstamp(k, 19, 3 * (n // 4) + 1)
            E("s_barrier")
            jj = n // 4
            if jj == 2:
                spread(c + 6, c + 8, kvpre(0, [f"s_add_u32 s{sKO2}, s{sKN}, 4096"], sKN, sKO2))
            if jj == 4:
                spread(c + 4, c + 7, kvpre(32768, [f"s_add_u32 s{sVO}, s{sKN}, {WS_VF - WS_KF}", f"s_add_u32 s{sVO2}, s{sVO}, 4096",
                                                   f"s_add_u32 s{sKN}, s{sKN}, 0x4000", f"s_add_u32 s{sKO2}, s{sKN}, 4096"], sKN, sKO2))
            if jj == 6:
                spread(c, c + 4, [flag_set(sW, SD, sGP, ZT)] + kvpre(VB0, ["s_nop 0"], sVO, sVO2))
        E(WLG(f"q{c}"))
        if cs == 0:
            E(WVM(f"xn{j}"))
            lstamp(k, 19, 3 * j + 2)
        fill = rd(n, fbuf(n)) + extra.get(c, [])
        E(weave([mf1(c, d, x) for d in range(4) for x in range(2)], fill, 0, 8))
    E(rd(30, fbuf(30)), rd(31, fbuf(31)))
    E(f"v_mov_b32 v{vT}, {fbits(QSCALE)}\nv_mov_b32 v{vT + 1}, {fbits(QSCALE)}")
    E(f"v_add_u32 v{vT + 2}, s{sW8}, v{vL16}\nv_add_u32 v{vT + 3}, {SPARE}, v{vT + 2}\nv_add_u32 v{vT + 2}, {VB0 + 32768}, v{vT + 2}")
    E(WVM("xn7"), WLG0, "s_barrier")

    def epi(d, x):
        out = []
        for g in range(2):
            b = QACC + (x * 4 + d) * 16 + 8 * g
            out.append([I(f"v_mul_f32 v{b + i}, v{vT}, v{b + i}") for i in range(8)])
            out.append([I(f"v_cvt_pk_bf16_f32 v{b + i}, v{b + 2 * i}, v{b + 2 * i + 1}") for i in range(4)] +
                       [LG(f"ds_write_b128 v{vT + 3 - x}, {v(b, 4)} offset:{(2 * d + g) * 1024}")])
        return out

    tiles = [(d, x) for x in range(2) for d in range(4)]
    for i, (d, x) in enumerate(tiles):
        m = [mf1(c, d, x) for c in range(28, 32)]
        if i == 0:
            E(m)
        else:
            e = epi(*tiles[i - 1])
            E(m[0], m[1], e[0], e[1], m[2], e[2], m[3], e[3])
    stamp(k, 7)
    E("s_nop 15")
    E(epi(*tiles[-1]))
    E(WALL0, "s_barrier")
    E(f"s_lshl_b32 s{sT}, s{sRS}, 13\nv_add_u32 v{vT + 4}, s{sT}, v{vL16}")
    E(f"v_add_u32 v{vT + 5}, {SPARE}, v{vT + 4}\nv_add_u32 v{vT + 4}, {VB0 + 32768}, v{vT + 4}")
    E(kreads(vKc, 0))
    for x in range(2):
        for f in range(8):
            E(LG(f"ds_read_b128 {a(aQ + (x * 8 + f) * 4, 4)}, v{vT + 3 - x} offset:{f * 1024}"))
    for x in range(2):
        for f in range(8):
            E(LG(f"ds_read_b128 {v(QBS + (x * 8 + f) * 4, 4)}, v{vT + 5 - x} offset:{f * 1024}"))


ZRING = (144, 192, 48, 96)
aWS = 128
vPD = 32
vPR = 40
NGS = 5


def g_slot(st):
    return (st % NGS) * 32768


def g_dma(st):
    out = []
    for i in range(8):
        g = []
        if i % 4 == 0:
            g += [I(f"s_add_u32 m0, s{sW8}, {g_slot(st) + (i // 4) * 4096}"), I(f"s_add_u32 s{sDO}, s{sGP}, {st * 128}")]
        g.append(VM(f"buffer_load_dwordx4 v{vPD + i}, {s(SP, 4)}, s{sDO} offen offset:{1024 * (i % 4)} lds", f"g{st}"))
        out.append(g)
    return out


def g_zl(st):
    out = []
    for f in range(3):
        for ks in range(4):
            g = []
            if ks == 0:
                g.append(I(f"s_add_u32 s{sGM}, s{sGZ}, {f * 128 * 1024 + st * 4096}"))
            g.append(VM(f"buffer_load_dwordx4 {v(ZRING[st % 4] + (f * 4 + ks) * 4, 4)}, v{vL16}, {s(SS, 4)}, "
                        f"s{sGM} offen offset:{1024 * ks} sc1", f"g{st}"))
            out.append(g)
    return out


def g_setup():
    o = [f"v_lshrrev_b32 v{ZT + 32}, 4, v0\nv_lshrrev_b32 v{ZT + 33}, 3, v0\nv_lshlrev_b32 v{ZT + 33}, 12, v{ZT + 33}\nv_and_b32 v{ZT + 34}, 7, v0\nv_xor_b32 v{ZT + 34}, v{ZT + 34}, v{ZT + 32}",
         f"v_lshl_add_u32 v{ZT + 35}, v{ZT + 34}, 4, v{ZT + 33}\nv_xor_b32 v{ZT + 34}, 4, v{ZT + 34}\nv_lshl_add_u32 v{ZT + 36}, v{ZT + 34}, 4, v{ZT + 33}"]
    for i in range(8):
        o.append(f"v_add_u32 v{vPD + i}, {i * 8 * 4096 - (i % 4) * 1024}, v{ZT + 35 + (i % 2)}")
    o.append(f"v_lshrrev_b32 v{ZT + 32}, 5, v0\nv_bfe_u32 v{ZT + 33}, v0, 1, 3\nv_xor_b32 v{ZT + 33}, v{ZT + 33}, v{ZT + 32}")
    o.append(f"v_and_b32 v{ZT + 34}, 31, v0\nv_lshlrev_b32 v{ZT + 34}, 7, v{ZT + 34}\nv_add_u32 v{ZT + 34}, s{sW8}, v{ZT + 34}")
    for ks in range(4):
        o.append(f"v_xor_b32 v{ZT + 35}, {2 * ks}, v{ZT + 33}\nv_lshl_add_u32 v{vPR + ks}, v{ZT + 35}, 4, v{ZT + 34}\nv_add_u32 v{vPR + 4 + ks}, 0x10000, v{vPR + ks}")
    o.append(f"s_lshl_b32 s{sGP}, s{sHD}, 18\ns_lshl_b32 s{sGM}, s{sW}, 10\ns_add_u32 s{sGP}, s{sGP}, s{sGM}")
    o.append(f"s_mul_i32 s{sGZ}, s{sPI}, 384\ns_lshl_b32 s{sGM}, s{sW}, 5\ns_add_u32 s{sGZ}, s{sGZ}, s{sGM}")
    o.append(f"s_lshl_b32 s{sGZ}, s{sGZ}, 10\ns_add_u32 s{sGZ}, s{sGZ}, {WS_Z2N}")
    return o


def merge(k, keep):
    E = k.emit
    send = 1 - keep
    t = vT
    wr = [LG(f"ds_write_b128 v{t + 4 + i // 8}, {a(aO + send * 64 + 4 * i, 4)} offset:{(i % 8) * 1024}") for i in range(16)]
    E(LG(f"ds_read_b64 {v(t + 8, 2)}, v{t + 4}", "mb"))
    pre = g_dma(0) + g_zl(0) + g_dma(1) + g_zl(1)
    E(weave(pv(send, 1), pre[:20], 0, 8))
    E(WLG("mb"))
    fac = [f"v_min_f32 v{t}, v{vNM[keep]}, v{t + 8}", f"v_sub_f32 v{t + 1}, v{t}, v{vNM[keep]}", f"v_sub_f32 v{t + 2}, v{t}, v{t + 8}",
           f"v_exp_f32 v{t + 1}, v{t + 1}", f"v_exp_f32 v{t + 2}, v{t + 2}", "s_nop 0",
           f"v_mul_f32 v{t}, v{vLs[keep][0]}, v{t + 1}", f"v_fmac_f32 v{t}, v{t + 9}, v{t + 2}", f"v_rcp_f32 v{t}, v{t}", "s_nop 0",
           f"v_mul_f32 v{t + 1}, v{t + 1}, v{t}", f"v_mul_f32 v{t + 2}, v{t + 2}, v{t}"]
    m = pv(keep, 1)
    E(m[0], fac[:6], m[1], fac[6:], weave(m[2:], wr, 0, 6))
    E(WLG0, "s_barrier")
    RX = S[0]
    for i in range(16):
        E(LG(f"ds_read_b128 {v(RX + 4 * i, 4)}, v{t + 6 + i // 8} offset:{(i % 8) * 1024}", f"rx{i}"))
    E(pre[20:])
    for f in range(8):
        E(WLG(f"rx{2 * f + 1}"))
        b = RX + 8 * f
        for i in range(8):
            E(f"v_accvgpr_read_b32 v{PB + i}, a{aO + keep * 64 + 8 * f + i}")
        for i in range(8):
            E(f"v_mul_f32 v{b + i}, v{b + i}, v{t + 2}")
        for i in range(8):
            E(f"v_fmac_f32 v{b + i}, v{PB + i}, v{t + 1}")
        for i in range(4):
            E(f"v_cvt_pk_bf16_f32 v{b + i}, v{b + 2 * i}, v{b + 2 * i + 1}")
        E(VM(f"buffer_store_dwordx4 {v(b, 4)}, v{vL16}, {s(SS, 4)}, s{sT if f < 4 else sT2} offen offset:{1024 * (f % 4)} sc1", "cs"))


def gphase(k):
    E = k.emit

    def reads(st):
        o = g_slot(st)
        sg, off = (0, o) if o < 65536 else (1, o - 65536)
        out = []
        for ks in range(4):
            for ts in range(2):
                if off + ts * 4096 < 65536:
                    out.append(LG(f"ds_read_b128 {a(aWS + (st % 2) * 32 + (ts * 4 + ks) * 4, 4)}, v{vPR + sg * 4 + ks} "
                                  f"offset:{off + ts * 4096}", f"p{st}"))
                else:
                    out.append(LG(f"ds_read_b128 {a(aWS + (st % 2) * 32 + (ts * 4 + ks) * 4, 4)}, v{ZT + 40 + ks} "
                                  f"offset:{off - 65536 + ts * 4096}", f"p{st}"))
        return out

    def mf(st):
        return [mfma(('a', (ts * 3 + f) * 16), ('v', ZRING[st % 4] + (f * 4 + ks) * 4),
                     ('a', aWS + (st % 2) * 32 + (ts * 4 + ks) * 4), 0 if (st == 0 and ks == 0) else None)
                for ks in range(4) for f in range(3) for ts in range(2)]

    for ks in range(4):
        E(f"v_add_u32 v{ZT + 40 + ks}, 0x20000, v{vPR + ks}")
    E(f"s_load_dwordx2 s[64:65], s[0:1], {KA_WO}\ns_load_dwordx2 s[66:67], s[0:1], {KA_WOUT}", WLG0)
    E("s_barrier")
    E(g_dma(2), g_zl(2))
    E(WVM("g0"))
    stamp(k, 10)
    E(reads(0))
    for st in range(8):
        E(WLG(f"p{st}"))
        ld = (g_dma(st + 3) + g_zl(st + 3)) if st + 3 < 8 else []
        m = mf(st)
        first = weave(m[:14], ld, 0, 14)
        second = ([WVM(f"g{st + 1}")] + weave(m[14:], reads(st + 1), 0, 8, lead=True)) if st + 1 < 8 else m[14:]
        if st == 5:
            fin = flat([f"s_lshl_b32 s{sT}, s{sHD}, 1\ns_add_u32 s{sT}, s{sT}, s{sG}",
                        f"s_mul_i32 s{sT2}, s{sPI}, 6\ns_mul_i32 s{sGP}, s{sRS}, 3\ns_add_u32 s{sT2}, s{sT2}, s{sGP}",
                        f"s_mul_i32 s{sGP}, s{sT}, 48\ns_add_u32 s{sGP}, s{sGP}, s{sT2}\ns_lshl_b32 s{sGP}, s{sGP}, 10\ns_add_u32 s{sGP}, s{sGP}, {WS_Z1}",
                        f"s_mul_i32 s{sGZ}, s{sT}, {CTXU_STEPS}\ns_add_u32 s{sGZ}, s{sGZ}, s{sT2}\ns_add_u32 s{sGZ}, s{sGZ}, 256",
                        f"s_lshl_b32 s{sGZ}, s{sGZ}, 10\ns_add_u32 s{sGZ}, s{sGZ}, {WS_CTXU}",
                        f"s_lshl_b32 s{sT}, s{sT}, 6\nv_and_b32 v21, 31, v0\nv_lshlrev_b32 v21, 1, v21"])
            fin += [VM(f"buffer_load_dwordx4 {v(4 + 4 * i, 4)}, v{vL16}, {s(SS, 4)}, s{sGP} offen offset:{1024 * i}", "fin") for i in range(3)]
            fin += [VM(f"buffer_load_ushort v16, v21, {s(SB, 4)}, s{sT} offen", "fin")]
            fin += flat([f"s_lshl_b32 s{sPF}, s2, 5\ns_add_u32 s{sPF}, s{sPF}, {WS_FLAG3}\nv_mov_b32 v17, 0\nv_and_b32 v18, 7, v0\nv_lshlrev_b32 v18, 2, v18"])
            fin += [VM(f"buffer_store_dword v17, v18, {s(SS, 4)}, s{sPF} offen", "pf")]
            fin += flat([f"s_mov_b32 s{SQ}, s64\ns_mov_b32 s{SQ + 1}, s65\ns_mov_b32 s{SP}, s66\ns_mov_b32 s{SP + 1}, s67\ns_mov_b32 s{SP + 2}, {688 * 1024:#x}",
                         f"s_lshl_b32 s{sPF}, s2, 2\ns_add_u32 s{sPF}, s{sPF}, s{sW}\ns_lshl_b32 s{sT}, s{sPF}, 12\ns_lshl_b32 s{sPF}, s{sPF}, 10"])
            fin += [VM(f"buffer_load_dwordx4 {v(ZT + 32, 4)}, v{vL16}, {s(SQ, 4)}, s{sT} offen offset:{1024 * i}", "pf") for i in range(4)]
            fin += [VM(f"buffer_load_dwordx4 {v(ZT + 32, 4)}, v{vL16}, {s(SP, 4)}, s{sPF} offen", "pf")]
            fin += flat([f"s_mul_i32 s{sT}, s{sW}, 24576\nv_add_u32 v20, s{sT}, v{vL16}",
                         f"s_mul_i32 s{sT}, s{sW}, 6144\nv_add_u32 v21, s{sT}, v{vL16}\nv_add_u32 v22, 49152, v21"])
            first = weave(m[:14], [fin[i:i + 3] for i in range(0, len(fin), 3)], 0, 14)
        lstamp(k, 19, 32 + 3 * st)
        E(first)
        lstamp(k, 19, 33 + 3 * st)
        E(second[:1])
        lstamp(k, 19, 34 + 3 * st)
        E(second[1:])
    stamp(k, 11)
    E("s_barrier\ns_nop 7")
    for ts in range(2):
        for f in range(3):
            for q in range(4):
                E(LG(f"ds_write_b128 v20, {a((ts * 3 + f) * 16 + 4 * q, 4)} offset:{((ts * 6 + f * 2) * 2 + q) * 1024}"))
    E(WLG0, "s_barrier")
    for i in range(3):
        for w in range(4):
            for q in range(2):
                E(LG(f"ds_read_b128 {v(48 + i * 32 + w * 8 + q * 4, 4)}, v{21 + w // 2} "
                     f"offset:{(w % 2) * 24576 + i * 2048 + q * 1024}", f"x{i}"))
    E(WVM("fin"), "v_lshlrev_b32 v16, 16, v16")
    for i in range(3):
        E(WLG(f"x{i}"))
        b = 48 + i * 32
        for r in range(8):
            E(f"v_add_f32 v{b + r}, v{b + r}, v{b + 8 + r}\nv_add_f32 v{b + 16 + r}, v{b + 16 + r}, v{b + 24 + r}")
        for r in range(8):
            E(f"v_add_f32 v{b + r}, v{b + r}, v16")
        for r in range(8):
            E(f"v_add_f32 v{b + r}, v{b + r}, v{b + 16 + r}")
        for r in range(4):
            z = 4 + 4 * i + r
            E(f"v_lshlrev_b32 v24, 16, v{z}\nv_and_b32 v25, 0xffff0000, v{z}")
            E(f"v_mul_f32 v{b + 2 * r}, v{b + 2 * r}, v24\nv_mul_f32 v{b + 2 * r + 1}, v{b + 2 * r + 1}, v25")
        for r in range(4):
            E(f"v_cvt_pk_bf16_f32 v{b + r}, v{b + 2 * r}, v{b + 2 * r + 1}")
        E(VM(f"buffer_store_dwordx4 {v(b, 4)}, v{vL16}, {s(SS, 4)}, s{sGZ} offen offset:{1024 * i} sc1"))


def build():
    k = Kern("k2_kernel")
    E = k.emit
    E("s_cmp_ge_u32 s2, 256\ns_cbranch_scc1 K2_END")
    code_prefetch(k, "k3_kernel", 0, 248)
    stamp_init(k)
    stamp(k, 0)
    E(f"s_load_dwordx2 s[64:65], s[0:1], {KA_WQ}")
    E(f"s_load_dwordx4 s[72:75], s[0:1], {KA_DBG}")
    E(f"s_load_dwordx4 s[68:71], s[0:1], {KA_WSP}")
    E("v_lshrrev_b32 v1, 6, v0\nv_and_b32 v0, 63, v0")
    E(f"s_and_b32 s{sHD}, s2, 7\ns_lshl_b32 s{sHD}, s{sHD}, 2\ns_lshr_b32 s{sT}, s2, 3\ns_lshr_b32 s{sPI}, s{sT}, 2")
    E(f"v_readfirstlane_b32 s{sW}, v1")
    E(f"s_and_b32 s{sT}, s{sT}, 3\ns_add_u32 s{sHD}, s{sHD}, s{sT}")
    E(f"s_and_b32 s{sRS}, s{sW}, 1\ns_lshr_b32 s{sG}, s{sW}, 1\ns_lshl_b32 s{sW8}, s{sW}, 13")
    E(f"v_lshlrev_b32 v{vL16}, 4, v0")
    E("v_and_b32 v20, 31, v0\nv_lshrrev_b32 v21, 5, v0\nv_lshrrev_b32 v22, 4, v0")
    E("v_bfe_u32 v23, v0, 2, 2\nv_and_b32 v24, 3, v0\nv_bfe_u32 v25, v0, 4, 1")
    E("v_xor_b32 v26, v23, v22\nv_lshlrev_b32 v27, 13, v22\nv_lshl_add_u32 v27, v26, 6, v27\nv_lshl_add_u32 v27, v24, 4, v27")
    for i in range(4):
        E(f"v_add_u32 v{vQD + i}, {i * (32768 - 1024)}, v27")
    E(f"s_sub_u32 s{sT}, 15, s{sPI}\ns_cmp_eq_u32 s{sG}, 0\ns_cselect_b32 s{sT}, s{sT}, s{sPI}")
    E(f"s_lshl_b32 s{sTD}, s{sT}, 1\ns_add_u32 s{sTD}, s{sTD}, s{sRS}\ns_lshl_b32 s{sXN}, s{sTD}, 16\ns_add_u32 s{sXN}, s{sXN}, {WS_XN}")
    E(f"s_lshl_b32 s{sWQ}, s{sW}, 17\ns_lshl_b32 s{sT}, s{sHD}, 8\ns_add_u32 s{sWQ}, s{sWQ}, s{sT}\ns_lshl_b32 s{sWM}, s{sW}, 12")
    E("s_waitcnt lgkmcnt(0)")
    E(srd(SQ, 64, 512 * 8192), srd(SS, 74, WS_SIZE))
    for j in range(2):
        E(wq_dma(j), xn_loads(j))
    E(srd(SP, 68, 2048 * 4096), srd(SB, 70, 4096), srd(SD, 72, 256))
    E("v_lshl_add_u32 v26, v21, 3, v23\nv_lshlrev_b32 v26, 8, v26\nv_lshl_add_u32 v26, v25, 5, v26\nv_lshl_add_u32 v26, v24, 3, v26")
    for d in range(4):
        E(f"v_xor_b32 v27, {d}, v23\nv_lshl_add_u32 v{vQR + d}, v27, 6, v26\nv_add_u32 v{vQR + 4 + d}, 0x10000, v{vQR + d}")
    E(f"s_lshl_b32 s{sT}, s{sG}, 14\nv_add_u32 v{vKc}, s{sT}, v{vL16}\nv_add_u32 v{vKn}, 32768, v{vKc}\nv_add_u32 v{vVc}, {VB0}, v{vKc}\nv_mov_b32 v{vVp}, v{vVc}")
    E(f"v_lshlrev_b32 v26, 2, v21\nv_sub_u32 v{vD0}, v20, v26\nv_mov_b32 v{vNEG}, {fbits(NEG)}")
    E(f"s_lshl_b32 s{sKN}, s{sHD}, 19\ns_lshl_b32 s{sT}, s{sRS}, 13\ns_add_u32 s{sKN}, s{sKN}, s{sT}\ns_add_u32 s{sKN}, s{sKN}, {WS_KF}")
    E(f"s_lshl_b32 s{sT}, s{sPI}, 1\ns_add_u32 s{sT}, s{sT}, 2\ns_sub_u32 s{sT2}, 18, s{sT}\ns_lshl_b32 s{sT2}, s{sT2}, 14")
    E(f"s_cmp_eq_u32 s{sG}, 0\ns_cselect_b32 s{sSW}, 8, s{sT}\ns_cselect_b32 s{sJUMP}, 0x4000, s{sT2}\ns_sub_u32 s{sSW2}, s{sSW}, 2")
    E(f"s_lshl_b32 s{sFL}, s{sPI}, 5\ns_lshl_b32 s{sPF}, s2, 2\ns_add_u32 s{sPF}, s{sPF}, s{sW}\ns_lshl_b32 s{sPF}, s{sPF}, 10")
    stamp(k, 5)
    qproj(k)
    gm, wrapped = schedule_loop()
    wtxt = [it[1] for it in flat(wrapped)]
    for r in range(16):
        E(f"v_mov_b32 v{P(1, 0) + r}, 0\nv_mov_b32 v{NEGM[0] + r}, 0\nv_mov_b32 v{NEGM[1] + r}, 0")
        late = f"v_exp_f32 v{S[1] + r}, v{S[1] + r}" in wtxt
        E(f"v_mov_b32 v{S[1] + r}, {'v%d' % vNEG if late else '0'}")
    assert not any(f"v{S[0] + r}," in w or w.endswith(f"v{S[0] + r}") for w in wtxt for r in range(16))
    for r in (8, 9, 10, 11, 12, 13):
        E(f"v_mov_b32 v{r}, 0")
    for x in range(2):
        E(f"s_mov_b32 s{sTH[x]}, {NINF}\ns_mov_b32 s{sLO[x]}, {NINF}")
    for i in range(8):
        E(mfma(('a', aO + 16 * i), ('v', P(1, 0)), ('v', P(1, 0)), 0))
    E(f"s_mov_b32 s{sU}, 0\ns_mov_b32 s{sTL}, 0\ns_mov_b32 s{sMK}, s{sW8}\ns_add_u32 s{sMV}, s{sW8}, {VB0 + 32768}")
    E(WLG0)
    stamp(k, 1)
    E("K2_LOOP:")
    k.set_state(["kv"] * 16, ["k"] * 8)
    main = qk(0) + qk(1) + pv(0, 1) + pv(1, 1) + qk(0) + qk(1) + pv(0, 0) + pv(1, 0)
    gm[-1] = [I(f"s_cmp_eq_u32 s{sU}, s{sSW}"), I("s_cbranch_scc1 K2_SWITCH"), I("K2_SWRET:"), WLG("k")]
    if PROF:
        gm[-1] = [I("s_memtime s[78:79]"), WLG0, I(f"s_mov_b32 m0, s{sU}"), I("s_nop 0"), I(f"v_writelane_b32 v255, s78, m0")] + gm[-1]
    gm[0] = gm[0] + [I(f"s_cmp_ge_u32 s{sTL}, s{sTD}"), I(f"s_cselect_b32 s{sTH[0]}, {NINF}, s{sTH[0]}"), I(f"s_cselect_b32 s{sTH[1]}, {NINF}, s{sTH[1]}")]
    gm[15] = gm[15] + [WLG("v")]
    gm[31] = gm[31] + [I(f"s_cmp_eq_u32 s{sU}, s{sSW}"), I("s_cbranch_scc1 K2_FINB"), I("K2_FBRET:")]
    gm[47] = gm[47] + [WLG("v")]
    gm[62] = gm[62] + [I(f"v_mov_b32 v{vVp}, v{vVc}"), I(f"v_xor_b32 v{vVc}, 0x8000, v{vVc}"),
                       I(f"v_xor_b32 v{vKc}, 0x8000, v{vKc}"), I(f"v_xor_b32 v{vKn}, 0x8000, v{vKn}"),
                       I(f"s_xor_b32 s{sMK}, s{sMK}, 0x8000"), I(f"s_xor_b32 s{sMV}, s{sMV}, 0x8000")]
    gm[63] = gm[63] + [I(f"s_add_u32 s{sTL}, s{sTL}, 1"), I(f"s_add_u32 s{sU}, s{sU}, 1"),
                       I(f"s_cmp_lt_u32 s{sU}, 17"), I("s_cbranch_scc1 K2_LOOP")]
    E(place(main, gm))
    stamp(k, 8)
    if PROF:
        E(f"s_lshl_b32 s78, s2, 2\ns_add_u32 s78, s78, s{sW}\ns_lshl_b32 s78, s78, 8\ns_add_u32 s78, s78, {WS_PROF + 0x100000}\nv_lshlrev_b32 v254, 2, v0")
        E(f"buffer_store_dword v255, v254, {s(SS, 4)}, s78 offen")
    E(vreads(vVp, 1))
    E(wrapped)
    t = vT
    for x in range(2):
        E(f"v_add_f32 v{vLs[x][0]}, v{vLs[x][0]}, v{vLs[x][1]}")
    for x in range(2):
        E(f"v_mov_b32 v{vLs[x][1]}, v{vLs[x][0]}")
    E(f"v_add_u32 v{t + 4}, s{sW8}, v{vL16}\nv_and_b32 v{t + 5}, 0x18000, v{vVp}")
    for x in range(2):
        E(f"v_permlane32_swap_b32 v{vLs[x][0]}, v{vLs[x][1]}")
    E(f"v_add_u32 v{t + 5}, v{t + 5}, v{t + 4}\nv_add_u32 v{t + 4}, {SPARE}, v{t + 4}")
    for x in range(2):
        E(f"v_add_f32 v{vLs[x][0]}, v{vLs[x][0]}, v{vLs[x][1]}")
    E(f"s_cmp_eq_u32 s{sG}, 0\ns_cselect_b64 vcc, -1, 0")
    E(f"v_xor_b32 v{t + 6}, 0x4000, v{t + 4}\nv_xor_b32 v{t + 7}, 0x4000, v{t + 5}")
    E(f"v_cndmask_b32 v{t + 8}, v{vNM[0]}, v{vNM[1]}, vcc\nv_cndmask_b32 v{t + 9}, v{vLs[0][0]}, v{vLs[1][0]}, vcc")
    E(LG(f"ds_write_b64 v{t + 6}, {v(t + 8, 2)}"))
    E(g_setup())
    E(f"s_sub_u32 s{sT}, 15, s{sPI}\ns_lshl_b32 s{sT}, s{sT}, 2\ns_lshl_b32 s{sT2}, s{sRS}, 1\ns_add_u32 s{sT}, s{sT}, s{sT2}\ns_add_u32 s{sT}, s{sT}, s{sG}")
    E(f"s_mul_i32 s{sT}, s{sT}, {CTXU_STEPS}\ns_lshl_b32 s{sT2}, s{sHD}, 3\ns_add_u32 s{sT}, s{sT}, s{sT2}")
    E(f"s_lshl_b32 s{sT}, s{sT}, 10\ns_add_u32 s{sT}, s{sT}, {WS_CTXU}\ns_add_u32 s{sT2}, s{sT}, 4096")
    E(WALL0, "s_barrier")
    E(f"s_cmp_eq_u32 s{sG}, 1\ns_cbranch_scc1 K2_MERGE1")
    st = (list(k.vm), list(k.lg))
    merge(k, 0)
    E("s_branch K2_G")
    k.set_state(*st)
    E("K2_MERGE1:")
    merge(k, 1)
    E("K2_G:")
    stamp(k, 3)
    gphase(k)
    if PROF:
        E(WVM0)
    stamp(k, 4)
    lstamp_store(k, 1, 19, 23, SS, sW)
    if PROF:
        E(f"s_mov_b32 s95, s{sPI}")
    stamp_store(k, 1, SS, sW, 208)
    E("K2_END:")
    E("s_endpgm")
    for x in range(2):
        for buf in range(2):
            rare_path(k, x, buf)
    hooks(k)
    return k.text(512, 256)
```

```python
from asmlib import *
from common import *

LDS = 163840
THREADS = 256
SO, SU, SX, SOUT, SS, SD = 8, 12, 16, 20, 24, 28
sW, sT, sT2, sRBk, sCBk, sKQ, sA, sAU, sB, sBU, sW4, sQH, sMH, sP, sFL = 32, 33, 34, 35, 36, 37, 38, 39, 40, 41, 42, 43, 44, 45, 46
vL16 = 1
vBD = 2
vAR = 6
vBR = 10
FB = 32
ACC = 64
NST = 19
NSLOT = 5


def build():
    k = Kern("k3_kernel")
    E = k.emit
    E("s_cmp_ge_u32 s2, 256\ns_cbranch_scc1 K3_END")
    code_prefetch(k, "L_CODE_END", 0, 140)
    stamp_init(k)
    stamp(k, 0)
    E(f"s_load_dwordx2 s[64:65], s[0:1], {KA_WO}")
    E(f"s_load_dwordx4 s[68:71], s[0:1], {KA_WOUT}")
    E(f"s_load_dwordx4 s[72:75], s[0:1], {KA_DBG}")
    E(f"s_load_dwordx2 s[66:67], s[0:1], {KA_X}")
    E("v_lshrrev_b32 v1, 6, v0\nv_and_b32 v0, 63, v0")
    E(f"s_and_b32 s{sKQ}, s2, 3\ns_bfe_u32 s{sRBk}, s2, 0x10002\ns_lshl_b32 s{sRBk}, s{sRBk}, 3\ns_bfe_u32 s{sT}, s2, 0x30003\ns_add_u32 s{sRBk}, s{sRBk}, s{sT}")
    E(f"v_readfirstlane_b32 s{sW}, v1")
    E(f"s_lshr_b32 s{sCBk}, s2, 6")
    E(f"v_lshlrev_b32 v{vL16}, 4, v0")
    E("v_and_b32 v20, 31, v0\nv_lshrrev_b32 v21, 5, v0\nv_lshrrev_b32 v22, 4, v0\nv_bfe_u32 v23, v0, 2, 2\nv_and_b32 v24, 3, v0\nv_bfe_u32 v25, v0, 4, 1")
    E("v_xor_b32 v26, v23, v22\nv_lshlrev_b32 v27, 10, v22\nv_lshl_add_u32 v27, v26, 6, v27\nv_lshl_add_u32 v27, v24, 4, v27")
    for i in range(4):
        E(f"v_add_u32 v{vBD + i}, {i * 3072}, v27")
    E(f"s_lshl_b32 s{sW4}, s{sW}, 12\ns_and_b32 s{sQH}, s{sW}, 1\ns_lshr_b32 s{sMH}, s{sW}, 1")
    E(f"s_lshl_b32 s{sA}, s{sRBk}, 2\ns_add_u32 s{sA}, s{sA}, s{sW}\ns_mul_i32 s{sA}, s{sA}, {CTXU_STEPS}")
    E(f"s_mul_i32 s{sT}, s{sKQ}, 12\ns_add_u32 s{sAU}, s{sA}, s{sT}\ns_add_u32 s{sAU}, s{sAU}, 256\ns_lshl_b32 s{sT}, s{sKQ}, 6\ns_add_u32 s{sA}, s{sA}, s{sT}")
    E(f"s_lshl_b32 s{sA}, s{sA}, 10\ns_add_u32 s{sA}, s{sA}, {WS_CTXU}\ns_lshl_b32 s{sAU}, s{sAU}, 10\ns_add_u32 s{sAU}, s{sAU}, {WS_CTXU}")
    E(f"s_lshl_b32 s{sT}, s{sCBk}, 8\ns_lshl_b32 s{sT2}, s{sW}, 14\ns_add_u32 s{sT}, s{sT}, s{sT2}\ns_lshl_b32 s{sB}, s{sKQ}, 20\ns_add_u32 s{sB}, s{sB}, s{sT}")
    E(f"s_mul_i32 s{sBU}, s{sKQ}, {192 * 1024}\ns_add_u32 s{sBU}, s{sBU}, s{sT}")
    E("s_waitcnt lgkmcnt(0)")
    E(srd(SO, 64, 4096 * 1024), srd(SS, 74, WS_SIZE))

    def dma(st):
        out = []
        base = (st % NSLOT) * 32768
        sa, offa = (sA, st * 4096) if st < 16 else (sAU, (st - 16) * 4096)
        srd_, sb, offb = (SO, sB, st * 65536) if st < 16 else (SU, sBU, (st - 16) * 65536)
        for i in range(4):
            g = []
            if i == 0:
                g += [I(f"s_add_u32 m0, s{sW4}, {base}"), I(f"s_add_u32 s{sT}, s{sa}, {offa}")]
            g.append(VM(f"buffer_load_dwordx4 v{vL16}, {s(SS, 4)}, s{sT} offen offset:{1024 * i} lds", f"g{st}"))
            out.append(g)
        for i in range(4):
            g = []
            if i == 0:
                g += [I(f"s_add_u32 m0, s{sW4}, {base + 16384}"), I(f"s_add_u32 s{sT}, s{sb}, {offb}")]
            g.append(VM(f"buffer_load_dwordx4 v{vBD + i}, {s(srd_, 4)}, s{sT} offen offset:{1024 * i} lds", f"g{st}"))
            out.append(g)
        return out

    def reads(c):
        st, ks = c // 4, c % 4
        byte = (st % NSLOT) * 32768
        sg, off = byte // 65536, byte % 65536
        fb = FB + (c % 2) * 16
        out = [LG(f"ds_read_b128 {v(fb + 4 * qi, 4)}, v{vAR + sg} offset:{off + qi * 4096 + ks * 1024}", f"r{c}") for qi in range(2)]
        for mi in range(2):
            for sec in range(2):
                out.append(LG(f"ds_read_b64_tr_b16 {v(fb + 8 + 4 * mi + 2 * sec, 2)}, v{vBR + sg * 2 + mi} "
                              f"offset:{off + ks * 4096 + sec * 2048}", f"r{c}"))
        return out

    def mf(c):
        fb = FB + (c % 2) * 16
        return [mfma(('v', ACC + (qi * 2 + mi) * 16), ('v', fb + 8 + 4 * mi), ('v', fb + 4 * qi), 0 if c == 0 else None)
                for mi in range(2) for qi in range(2)]

    for st in range(NSLOT - 1):
        E(dma(st))
    E(srd(SU, 68, 688 * 1024), srd(SX, 66, 2048 * 1024), srd(SOUT, 70, 2048 * 1024), srd(SD, 72, 256))
    E(f"s_lshl_b32 s{sT}, s{sQH}, 13\nv_add_u32 v{vAR}, s{sT}, v{vL16}\nv_add_u32 v{vAR + 1}, 0x10000, v{vAR}\nv_add_u32 v{vAR + 2}, 0x20000, v{vAR}")
    E("v_lshl_add_u32 v26, v21, 2, v23\nv_lshlrev_b32 v26, 8, v26\nv_lshl_add_u32 v26, v25, 5, v26\nv_lshl_add_u32 v26, v24, 3, v26\nv_add_u32 v26, 16384, v26")
    E(f"s_lshl_b32 s{sT}, s{sMH}, 1\nv_xor_b32 v27, s{sT}, v23\nv_lshl_add_u32 v{vBR}, v27, 6, v26\nv_xor_b32 v27, 1, v27\nv_lshl_add_u32 v{vBR + 1}, v27, 6, v26")
    for sg in (1, 2):
        for mi in range(2):
            E(f"v_add_u32 v{vBR + 2 * sg + mi}, {sg * 65536}, v{vBR + mi}")
    E(f"s_lshr_b32 s{sP}, s2, 2\ns_lshl_b32 s{sP}, s{sP}, 18\ns_add_u32 s{sP}, s{sP}, {WS_PART}\ns_lshr_b32 s{sFL}, s2, 2\ns_lshl_b32 s{sFL}, s{sFL}, 7\ns_add_u32 s{sFL}, s{sFL}, {WS_FLAG3}")
    E(dma(NSLOT - 1))
    E(WVM("g0"), "s_barrier")
    stamp(k, 3)
    E(reads(0))
    pend = []
    NC = NST * 4
    for c in range(NC):
        E(WLG(f"r{c}"))
        if c % 4 == 3 and c + 1 < NC:
            st = c // 4
            E(WVM(f"g{st + 1}"), "s_barrier")
            if st + NSLOT < NST:
                pend = dma(st + NSLOT)
        fill = reads(c + 1) if c + 1 < NC else []
        take, pend = pend[:2], pend[2:]
        fill = fill[:3] + take[:1] + fill[3:] + take[1:]
        if c == NC - 8:
            xa = flat([f"s_lshl_b32 s{sT2}, s{sRBk}, 17\ns_lshl_b32 s{sT}, s{sKQ}, 15\ns_add_u32 s{sT2}, s{sT2}, s{sT}\ns_lshl_b32 s{sT}, s{sCBk}, 8",
                       f"s_add_u32 s{sT2}, s{sT2}, s{sT}\ns_lshl_b32 s{sT}, s{sW}, 6\ns_add_u32 s{sT2}, s{sT2}, s{sT}",
                       "v_lshlrev_b32 v26, 10, v20\nv_lshl_add_u32 v27, v21, 4, v26\nv_lshl_add_u32 v26, v21, 3, v26"])
            xa += [VM(f"buffer_load_dwordx2 {v(128 + 2 * i, 2)}, v26, {s(SX, 4)}, s{sT2} offen offset:{16 * i}", "x") for i in range(4)]
            fill.append(xa)
        E(weave(mf(c), fill, 0, 4))
    stamp(k, 1)
    E("s_barrier")
    E(f"s_lshl_b32 s{sT}, s{sMH}, 13\nv_add_u32 v28, s{sT}, v{vL16}\ns_nop 7")
    for qi in range(2):
        E(f"s_lshl_b32 s{sA}, s{sQH}, 1\ns_add_u32 s{sA}, s{sA}, {qi}\ns_cmp_eq_u32 s{sA}, s{sKQ}\ns_cbranch_scc1 K3_OWN{qi}")
        E(f"s_lshl_b32 s{sA}, s{sA}, 2\ns_add_u32 s{sA}, s{sA}, s{sKQ}\ns_lshl_b32 s{sA}, s{sA}, 14\ns_add_u32 s{sA}, s{sA}, s{sP}\ns_add_u32 s{sB}, s{sA}, 4096")
        for mi in range(2):
            for q in range(4):
                E(f"buffer_store_dwordx4 {v(ACC + (qi * 2 + mi) * 16 + 4 * q, 4)}, v28, {s(SS, 4)}, s{sA if mi == 0 else sB} offen offset:{1024 * q} sc1")
        E(f"s_branch K3_SENT{qi}")
        E(f"K3_OWN{qi}:")
        for mi in range(2):
            for q in range(4):
                E(f"ds_write_b128 v28, {v(ACC + (qi * 2 + mi) * 16 + 4 * q, 4)} offset:{mi * 4096 + 1024 * q}")
        E(f"K3_SENT{qi}:")
    E(WALL0, "s_barrier")
    stamp(k, 4)
    E(f"v_add_u32 v28, s{sW4}, v{vL16}\nv_mov_b32 v29, 0")
    for q in range(4):
        E(LG(f"ds_read_b128 {v(ACC + 4 * q, 4)}, v28 offset:{1024 * q}"))
    E(f"s_cmp_lg_u32 s{sW}, 0\ns_cbranch_scc1 K3_WAITED")
    E(f"v_mov_b32 v30, 1\ns_add_u32 s{sT}, s{sFL}, s{sKQ}\ns_mov_b64 exec, 1\nbuffer_store_byte v30, v29, {s(SS, 4)}, s{sT} offen sc0 sc1\ns_mov_b64 exec, -1")
    E("K3_POLL:")
    E(f"buffer_load_dword v30, v29, {s(SS, 4)}, s{sFL} offen sc0 sc1\ns_waitcnt vmcnt(0)")
    E("v_readfirstlane_b32 s47, v30\ns_cmp_eq_u32 s47, 0x01010101\ns_cbranch_scc1 K3_WAITED\ns_sleep 1\ns_branch K3_POLL")
    E("K3_WAITED:")
    E("s_barrier")
    stamp(k, 5)
    E(f"s_lshl_b32 s{sA}, s{sKQ}, 16\ns_add_u32 s{sA}, s{sA}, s{sP}")
    for j in range(1, 4):
        E(f"s_add_u32 s{sT}, s{sKQ}, {j}\ns_and_b32 s{sT}, s{sT}, 3\ns_lshl_b32 s{sT}, s{sT}, 14\ns_add_u32 s{sT}, s{sT}, s{sA}")
        for q in range(4):
            E(VM(f"buffer_load_dwordx4 {v(ACC + 16 * j + 4 * q, 4)}, v28, {s(SS, 4)}, s{sT} offen offset:{1024 * q} sc1", f"pp{j}"))
    E(WLG0)
    for r in range(8):
        E(f"v_lshlrev_b32 v30, 16, v{128 + r}\nv_and_b32 v31, 0xffff0000, v{128 + r}")
        E(f"v_add_f32 v{ACC + 2 * r}, v{ACC + 2 * r}, v30\nv_add_f32 v{ACC + 2 * r + 1}, v{ACC + 2 * r + 1}, v31")
    for j in range(1, 4):
        E(WVM(f"pp{j}"))
        for r in range(16):
            E(f"v_add_f32 v{ACC + r}, v{ACC + r}, v{ACC + 16 * j + r}")
    for r in range(8):
        E(f"v_cvt_pk_bf16_f32 v{ACC + r}, v{ACC + 2 * r}, v{ACC + 2 * r + 1}")
    E("s_nop 1")
    for g in range(2):
        b = ACC + 4 * g
        E(f"v_permlane32_swap_b32 v{b}, v{b + 2}\nv_permlane32_swap_b32 v{b + 1}, v{b + 3}")
    E("s_nop 1")
    for g in range(2):
        E(VM(f"buffer_store_dwordx4 {v(ACC + 4 * g, 4)}, v27, {s(SOUT, 4)}, s{sT2} offen offset:{32 * g}"))
    if PROF:
        E(WVM0)
    stamp(k, 2)
    stamp_store(k, 2, SS, sW, 136)
    E("K3_END:")
    E("s_endpgm")
    return k.text(160, 160)
```

```python
def v(n, c=1):
    return f"v{n}" if c == 1 else f"v[{n}:{n + c - 1}]"


def a(n, c=1):
    return f"a{n}" if c == 1 else f"a[{n}:{n + c - 1}]"


def s(n, c=1):
    return f"s{n}" if c == 1 else f"s[{n}:{n + c - 1}]"


def R(spec, c=1):
    return (v if spec[0] == 'v' else a)(spec[1], c)


def I(text):
    return ('i', text)


def VM(text, tag=None):
    return ('vm', text, tag)


def LG(text, tag=None):
    return ('lg', text, tag)


def VMG(text, tag):
    return ('vmg', text, tag)


def WVMG(tag):
    return ('wvmg', tag)


def WVM(tag):
    return ('wvm', tag)


def WLG(tag):
    return ('wlg', tag)


WVM0 = ('wvm0',)
WLG0 = ('wlg0',)
WALL0 = ('wall0',)


def mfma(d, A, B, C=None):
    ds = R(d, 16)
    cs = ds if C is None else ("0" if C == 0 else R(C, 16))
    return ('i', f"v_mfma_f32_32x32x16_bf16 {ds}, {R(A, 4)}, {R(B, 4)}, {cs}")


def flat(items):
    out = []
    for it in items:
        if isinstance(it, list):
            out.extend(flat(it))
        elif isinstance(it, str):
            for line in it.split("\n"):
                line = line.strip()
                if line:
                    out.append(('i', line))
        else:
            out.append(it)
    return out


def weave(main, fillers, start=0, end=None, lead=False):
    n = len(main)
    if end is None:
        end = n
    gaps = [[] for _ in range(n + 1)]
    ng = end - start
    nf = len(fillers)
    for i, f in enumerate(fillers):
        g = start + (i * ng) // nf if nf else 0
        gaps[g + (0 if lead else 1)].append(f)
    out = list(gaps[0])
    for i, m in enumerate(main):
        out.append(m)
        out.extend(gaps[i + 1])
    return flat(out)


def place(main, gapmap):
    out = list(gapmap.get(-1, []))
    for i, m in enumerate(main):
        out.append(m)
        out.extend(gapmap.get(i, []))
    return flat(out)


class Kern:
    def __init__(self, name):
        self.name = name
        self.lines = []
        self.vm = []
        self.lg = []
        self.lg_has_smem = False

    def raw(self, text):
        self.lines.append(text)

    def label(self, name):
        self.lines.append(f"{name}:")

    def comment(self, text):
        self.lines.append(f"    ; {text}")

    def set_state(self, vm=None, lg=None):
        if vm is not None:
            self.vm = list(vm)
        if lg is not None:
            self.lg = list(lg)

    def _wait(self, fifo, tag, nm, mx):
        last = -1
        for i, t in enumerate(fifo):
            if t == tag:
                last = i
        if last < 0:
            return fifo
        n = sum(1 for t in fifo[last + 1:] if not (isinstance(t, tuple) and t[0] == 'ghost'))
        if n > mx:
            n = mx
            cnt = 0
            last = len(fifo)
            while cnt < mx:
                last -= 1
                if not (isinstance(fifo[last], tuple) and fifo[last][0] == 'ghost'):
                    cnt += 1
            last -= 1
        self.lines.append(f"    s_waitcnt {nm}({n})")
        return fifo[last + 1:]

    def _wait_ghost(self, tag):
        idx = [i for i, t in enumerate(self.vm) if t == ('ghost', tag)]
        if not idx:
            return
        n = len(self.vm) - 1 - idx[-1]
        self.lines.append(f"    s_waitcnt vmcnt({n})")
        self.vm = [t for i, t in enumerate(self.vm) if not (i <= idx[-1] and isinstance(t, tuple))]

    def emit(self, *items):
        for it in flat(list(items)):
            k = it[0]
            if k == 'i':
                if it[1].endswith(":"):
                    self.lines.append(it[1])
                else:
                    self.lines.append("    " + it[1])
            elif k == 'vm':
                if len(self.vm) >= 60:
                    keep = self.vm[-48:]
                    n = sum(1 for t in keep if not isinstance(t, tuple))
                    self.lines.append(f"    s_waitcnt vmcnt({n})    ; auto")
                    self.vm = [t for t in self.vm[:-48] if isinstance(t, tuple)] + keep
                self.lines.append("    " + it[1])
                self.vm.append(it[2])
                assert len(self.vm) <= 63, "vmcnt overflow"
            elif k == 'vmg':
                self.lines.append("    " + it[1])
                self.vm.append(('ghost', it[2]))
                assert len(self.vm) <= 63, "vmcnt overflow"
            elif k == 'wvmg':
                self._wait_ghost(it[1])
            elif k == 'lg':
                self.lines.append("    " + it[1])
                self.lg.append(it[2])
            elif k == 'wvm':
                self.vm = self._wait(self.vm, it[1], "vmcnt", 63)
            elif k == 'wlg':
                self.lg = self._wait(self.lg, it[1], "lgkmcnt", 15)
            elif k == 'wvm0':
                self.lines.append("    s_waitcnt vmcnt(0)")
                self.vm = []
            elif k == 'wlg0':
                self.lines.append("    s_waitcnt lgkmcnt(0)")
                self.lg = []
            elif k == 'reset':
                self.vm = self.vm[-1:]
                self.lg = []
            elif k == 'wall0':
                self.lines.append("    s_waitcnt vmcnt(0) lgkmcnt(0)")
                self.vm = []
                self.lg = []
            else:
                raise ValueError(it)

    def text(self, nvgpr, accum, nsgpr=102):
        t = [f".globl {self.name}", ".p2align 8", f".type {self.name},@function", f"{self.name}:"]
        t += self.lines
        desc = [
            f".amdhsa_kernel {self.name}",
            f"  .amdhsa_next_free_vgpr {nvgpr}",
            f"  .amdhsa_next_free_sgpr {nsgpr}",
            f"  .amdhsa_accum_offset {accum}",
            "  .amdhsa_group_segment_fixed_size 0",
            "  .amdhsa_kernarg_size 112",
            "  .amdhsa_user_sgpr_count 2",
            "  .amdhsa_user_sgpr_kernarg_segment_ptr 1",
            "  .amdhsa_system_sgpr_workgroup_id_x 1",
            ".end_amdhsa_kernel",
        ]
        return "\n".join(t), "\n".join(desc)


def srd(dst, ptr, nbytes):
    return [
        f"s_mov_b32 s{dst}, s{ptr}",
        f"s_mov_b32 s{dst + 1}, s{ptr + 1}",
        f"s_mov_b32 s{dst + 2}, {nbytes:#x}",
        f"s_mov_b32 s{dst + 3}, 0x20000",
    ]


def fbits(x):
    import struct
    return "0x%08x" % struct.unpack("<I", struct.pack("<f", x))[0]


import os
PROF = os.environ.get("PROF", "0") == "1"
WS_PROF = 0x8000000


def stamp(k, i):
    if not PROF:
        return
    k.emit("s_memtime s[78:79]", WLG0, f"s_mov_b32 s{80 + i}, s78")


def stamp_init(k):
    if not PROF:
        return
    for i in range(16):
        k.emit(f"s_mov_b32 s{80 + i}, 0")
    k.emit("s_memrealtime s[78:79]", WLG0, "s_mov_b32 s93, s78")


def stamp_store(k, kidx, SS, sW, vt):
    if not PROF:
        return
    k.emit("s_memrealtime s[78:79]", WLG0, "s_mov_b32 s94, s78")
    k.emit("s_memtime s[78:79]", WLG0, "s_mov_b32 s92, s78")
    k.emit("s_mov_b64 exec, -1")
    for i in range(16):
        k.emit(f"v_mov_b32 v{vt + i}, s{80 + i}")
    k.emit(f"s_lshl_b32 s78, s2, 2\ns_add_u32 s78, s78, s{sW}\ns_lshl_b32 s78, s78, 6\ns_add_u32 s78, s78, {WS_PROF + kidx * 65536}")
    k.emit(f"v_mov_b32 v{vt + 16}, 0\ns_mov_b64 exec, 1")
    for i in range(4):
        k.emit(f"buffer_store_dwordx4 v[{vt + 4 * i}:{vt + 4 * i + 3}], v{vt + 16}, s[{SS}:{SS + 3}], s78 offen offset:{16 * i}")


_uid = [0]


def wave0(sW, items):
    _uid[0] += 1
    lab = f"L_W0_{_uid[0]}"
    return [I(f"s_cmp_lg_u32 s{sW}, 0"), I(f"s_cbranch_scc1 {lab}")] + flat(items) + [I(f"{lab}:")]


def flag_set(sW, SD, sIDX, vt):
    return wave0(sW, [I(f"v_mov_b32 v{vt}, 1"), I(f"v_mov_b32 v{vt + 1}, 0"), I("s_mov_b64 exec, 1"),
                      VMG(f"buffer_store_byte v{vt}, v{vt + 1}, s[{SD}:{SD + 3}], s{sIDX} offen sc0 sc1", "flag"),
                      I("s_mov_b64 exec, -1")])


def flag_poll_issue(sW, SD, sIDX, n, vt):
    return wave0(sW, [I(f"v_and_b32 v{vt}, {n - 1}, v0"),
                      VMG(f"buffer_load_ubyte v{vt + 1}, v{vt}, s[{SD}:{SD + 3}], s{sIDX} offen sc0 sc1", "poll")])


def flag_poll_check(sW, SD, sIDX, vt):
    _uid[0] += 1
    u = _uid[0]
    return wave0(sW, [WVMG("poll"), I(f"v_cmp_ne_u32 vcc, 1, v{vt + 1}"), I("s_nop 1"), I(f"s_cbranch_vccz L_POK_{u}"),
                      I(f"L_PLP_{u}:"), I("s_sleep 2"),
                      I(f"buffer_load_ubyte v{vt + 1}, v{vt}, s[{SD}:{SD + 3}], s{sIDX} offen sc0 sc1"), I("s_waitcnt vmcnt(0)"),
                      I(f"v_cmp_ne_u32 vcc, 1, v{vt + 1}"), I("s_nop 1"), I(f"s_cbranch_vccnz L_PLP_{u}"),
                      I(f"L_POK_{u}:")])


def flag_acquired(sW):
    return wave0(sW, [WVMG("inv")])


def lstamp(k, vreg, idx):
    if PROF:
        k.emit("s_memtime s[78:79]", WLG0, f"v_writelane_b32 v{vreg}, s78, {idx}")


def lstamp_store(k, kidx, vreg, vtmp, SS, sW):
    if PROF:
        k.emit(f"s_lshl_b32 s78, s2, 2\ns_add_u32 s78, s78, s{sW}\ns_lshl_b32 s78, s78, 8\ns_add_u32 s78, s78, {WS_PROF + 0x200000 + kidx * 0x100000}\nv_lshlrev_b32 v{vtmp}, 2, v0")
        k.emit(f"buffer_store_dword v{vreg}, v{vtmp}, s[{SS}:{SS + 3}], s78 offen")


CODEPF = os.environ.get("CODEPF", "1") == "1"


def code_prefetch(k, end_label, vtid, vdst, tag="cpf"):
    if not CODEPF:
        return
    lab = f"L_PC_{k.name}"
    k.emit("s_getpc_b64 s[96:97]", f"{lab}:")
    k.emit(f"s_mov_b32 s98, {end_label}-{lab}\ns_mov_b32 s99, 0x20000\ns_lshr_b32 s100, s2, 3\ns_lshl_b32 s100, s100, 12")
    k.emit(f"v_lshlrev_b32 v{vdst + 4}, 4, v{vtid}")
    k.emit(VM(f"buffer_load_dwordx4 v[{vdst}:{vdst + 3}], v{vdst + 4}, s[96:99], s100 offen", tag))
```

```python
def v(n, c=1):
    return f"v{n}" if c == 1 else f"v[{n}:{n + c - 1}]"


def a(n, c=1):
    return f"a{n}" if c == 1 else f"a[{n}:{n + c - 1}]"


def s(n, c=1):
    return f"s{n}" if c == 1 else f"s[{n}:{n + c - 1}]"


def R(spec, c=1):
    return (v if spec[0] == 'v' else a)(spec[1], c)


def I(text):
    return ('i', text)


def VM(text, tag=None):
    return ('vm', text, tag)


def LG(text, tag=None):
    return ('lg', text, tag)


def VMG(text, tag):
    return ('vmg', text, tag)


def WVMG(tag):
    return ('wvmg', tag)


def WVM(tag):
    return ('wvm', tag)


def WLG(tag):
    return ('wlg', tag)


WVM0 = ('wvm0',)
WLG0 = ('wlg0',)
WALL0 = ('wall0',)


def mfma(d, A, B, C=None):
    ds = R(d, 16)
    cs = ds if C is None else ("0" if C == 0 else R(C, 16))
    return ('i', f"v_mfma_f32_32x32x16_bf16 {ds}, {R(A, 4)}, {R(B, 4)}, {cs}")


def flat(items):
    out = []
    for it in items:
        if isinstance(it, list):
            out.extend(flat(it))
        elif isinstance(it, str):
            for line in it.split("\n"):
                line = line.strip()
                if line:
                    out.append(('i', line))
        else:
            out.append(it)
    return out


def weave(main, fillers, start=0, end=None, lead=False):
    n = len(main)
    if end is None:
        end = n
    gaps = [[] for _ in range(n + 1)]
    ng = end - start
    nf = len(fillers)
    for i, f in enumerate(fillers):
        g = start + (i * ng) // nf if nf else 0
        gaps[g + (0 if lead else 1)].append(f)
    out = list(gaps[0])
    for i, m in enumerate(main):
        out.append(m)
        out.extend(gaps[i + 1])
    return flat(out)


def place(main, gapmap):
    out = list(gapmap.get(-1, []))
    for i, m in enumerate(main):
        out.append(m)
        out.extend(gapmap.get(i, []))
    return flat(out)


class Kern:
    def __init__(self, name):
        self.name = name
        self.lines = []
        self.vm = []
        self.lg = []
        self.lg_has_smem = False

    def raw(self, text):
        self.lines.append(text)

    def label(self, name):
        self.lines.append(f"{name}:")

    def comment(self, text):
        self.lines.append(f"    ; {text}")

    def set_state(self, vm=None, lg=None):
        if vm is not None:
            self.vm = list(vm)
        if lg is not None:
            self.lg = list(lg)

    def _wait(self, fifo, tag, nm, mx):
        last = -1
        for i, t in enumerate(fifo):
            if t == tag:
                last = i
        if last < 0:
            return fifo
        n = sum(1 for t in fifo[last + 1:] if not (isinstance(t, tuple) and t[0] == 'ghost'))
        if n > mx:
            n = mx
            cnt = 0
            last = len(fifo)
            while cnt < mx:
                last -= 1
                if not (isinstance(fifo[last], tuple) and fifo[last][0] == 'ghost'):
                    cnt += 1
            last -= 1
        self.lines.append(f"    s_waitcnt {nm}({n})")
        return fifo[last + 1:]

    def _wait_ghost(self, tag):
        idx = [i for i, t in enumerate(self.vm) if t == ('ghost', tag)]
        if not idx:
            return
        n = len(self.vm) - 1 - idx[-1]
        self.lines.append(f"    s_waitcnt vmcnt({n})")
        self.vm = [t for i, t in enumerate(self.vm) if not (i <= idx[-1] and isinstance(t, tuple))]

    def emit(self, *items):
        for it in flat(list(items)):
            k = it[0]
            if k == 'i':
                if it[1].endswith(":"):
                    self.lines.append(it[1])
                else:
                    self.lines.append("    " + it[1])
            elif k == 'vm':
                if len(self.vm) >= 60:
                    keep = self.vm[-48:]
                    n = sum(1 for t in keep if not isinstance(t, tuple))
                    self.lines.append(f"    s_waitcnt vmcnt({n})    ; auto")
                    self.vm = [t for t in self.vm[:-48] if isinstance(t, tuple)] + keep
                self.lines.append("    " + it[1])
                self.vm.append(it[2])
                assert len(self.vm) <= 63, "vmcnt overflow"
            elif k == 'vmg':
                self.lines.append("    " + it[1])
                self.vm.append(('ghost', it[2]))
                assert len(self.vm) <= 63, "vmcnt overflow"
            elif k == 'wvmg':
                self._wait_ghost(it[1])
            elif k == 'lg':
                self.lines.append("    " + it[1])
                self.lg.append(it[2])
            elif k == 'wvm':
                self.vm = self._wait(self.vm, it[1], "vmcnt", 63)
            elif k == 'wlg':
                self.lg = self._wait(self.lg, it[1], "lgkmcnt", 15)
            elif k == 'wvm0':
                self.lines.append("    s_waitcnt vmcnt(0)")
                self.vm = []
            elif k == 'wlg0':
                self.lines.append("    s_waitcnt lgkmcnt(0)")
                self.lg = []
            elif k == 'reset':
                self.vm = self.vm[-1:]
                self.lg = []
            elif k == 'wall0':
                self.lines.append("    s_waitcnt vmcnt(0) lgkmcnt(0)")
                self.vm = []
                self.lg = []
            else:
                raise ValueError(it)

    def text(self, nvgpr, accum, nsgpr=102):
        t = [f".globl {self.name}", ".p2align 8", f".type {self.name},@function", f"{self.name}:"]
        t += self.lines
        desc = [
            f".amdhsa_kernel {self.name}",
            f"  .amdhsa_next_free_vgpr {nvgpr}",
            f"  .amdhsa_next_free_sgpr {nsgpr}",
            f"  .amdhsa_accum_offset {accum}",
            "  .amdhsa_group_segment_fixed_size 0",
            "  .amdhsa_kernarg_size 112",
            "  .amdhsa_user_sgpr_count 2",
            "  .amdhsa_user_sgpr_kernarg_segment_ptr 1",
            "  .amdhsa_system_sgpr_workgroup_id_x 1",
            ".end_amdhsa_kernel",
        ]
        return "\n".join(t), "\n".join(desc)


def srd(dst, ptr, nbytes):
    return [
        f"s_mov_b32 s{dst}, s{ptr}",
        f"s_mov_b32 s{dst + 1}, s{ptr + 1}",
        f"s_mov_b32 s{dst + 2}, {nbytes:#x}",
        f"s_mov_b32 s{dst + 3}, 0x20000",
    ]


def fbits(x):
    import struct
    return "0x%08x" % struct.unpack("<I", struct.pack("<f", x))[0]


import os
PROF = os.environ.get("PROF", "0") == "1"
WS_PROF = 0x8000000


def stamp(k, i):
    if not PROF:
        return
    k.emit("s_memtime s[78:79]", WLG0, f"s_mov_b32 s{80 + i}, s78")


def stamp_init(k):
    if not PROF:
        return
    for i in range(16):
        k.emit(f"s_mov_b32 s{80 + i}, 0")
    k.emit("s_memrealtime s[78:79]", WLG0, "s_mov_b32 s93, s78")


def stamp_store(k, kidx, SS, sW, vt):
    if not PROF:
        return
    k.emit("s_memrealtime s[78:79]", WLG0, "s_mov_b32 s94, s78")
    k.emit("s_memtime s[78:79]", WLG0, "s_mov_b32 s92, s78")
    k.emit("s_mov_b64 exec, -1")
    for i in range(16):
        k.emit(f"v_mov_b32 v{vt + i}, s{80 + i}")
    k.emit(f"s_lshl_b32 s78, s2, 2\ns_add_u32 s78, s78, s{sW}\ns_lshl_b32 s78, s78, 6\ns_add_u32 s78, s78, {WS_PROF + kidx * 65536}")
    k.emit(f"v_mov_b32 v{vt + 16}, 0\ns_mov_b64 exec, 1")
    for i in range(4):
        k.emit(f"buffer_store_dwordx4 v[{vt + 4 * i}:{vt + 4 * i + 3}], v{vt + 16}, s[{SS}:{SS + 3}], s78 offen offset:{16 * i}")


_uid = [0]


def wave0(sW, items):
    _uid[0] += 1
    lab = f"L_W0_{_uid[0]}"
    return [I(f"s_cmp_lg_u32 s{sW}, 0"), I(f"s_cbranch_scc1 {lab}")] + flat(items) + [I(f"{lab}:")]


def flag_set(sW, SD, sIDX, vt):
    return wave0(sW, [I(f"v_mov_b32 v{vt}, 1"), I(f"v_mov_b32 v{vt + 1}, 0"), I("s_mov_b64 exec, 1"),
                      VMG(f"buffer_store_byte v{vt}, v{vt + 1}, s[{SD}:{SD + 3}], s{sIDX} offen sc0 sc1", "flag"),
                      I("s_mov_b64 exec, -1")])


def flag_poll_issue(sW, SD, sIDX, n, vt):
    return wave0(sW, [I(f"v_and_b32 v{vt}, {n - 1}, v0"),
                      VMG(f"buffer_load_ubyte v{vt + 1}, v{vt}, s[{SD}:{SD + 3}], s{sIDX} offen sc0 sc1", "poll")])


def flag_poll_check(sW, SD, sIDX, vt):
    _uid[0] += 1
    u = _uid[0]
    return wave0(sW, [WVMG("poll"), I(f"v_cmp_ne_u32 vcc, 1, v{vt + 1}"), I("s_nop 1"), I(f"s_cbranch_vccz L_POK_{u}"),
                      I(f"L_PLP_{u}:"), I("s_sleep 2"),
                      I(f"buffer_load_ubyte v{vt + 1}, v{vt}, s[{SD}:{SD + 3}], s{sIDX} offen sc0 sc1"), I("s_waitcnt vmcnt(0)"),
                      I(f"v_cmp_ne_u32 vcc, 1, v{vt + 1}"), I("s_nop 1"), I(f"s_cbranch_vccnz L_PLP_{u}"),
                      I(f"L_POK_{u}:")])


def flag_acquired(sW):
    return wave0(sW, [WVMG("inv")])


def lstamp(k, vreg, idx):
    if PROF and os.environ.get("PROF2"):
        k.emit("s_memtime s[78:79]", WLG0, f"v_writelane_b32 v{vreg}, s78, {idx}")


def lstamp_store(k, kidx, vreg, vtmp, SS, sW):
    if PROF:
        k.emit(f"s_lshl_b32 s78, s2, 2\ns_add_u32 s78, s78, s{sW}\ns_lshl_b32 s78, s78, 8\ns_add_u32 s78, s78, {WS_PROF + 0x200000 + kidx * 0x100000}\nv_lshlrev_b32 v{vtmp}, 2, v0")
        k.emit(f"buffer_store_dword v{vreg}, v{vtmp}, s[{SS}:{SS + 3}], s78 offen")


CODEPF = os.environ.get("CODEPF", "1") == "1"


def code_prefetch(k, end_label, vtid, vdst, tag="cpf"):
    if not CODEPF:
        return
    lab = f"L_PC_{k.name}"
    k.emit("s_getpc_b64 s[96:97]", f"{lab}:")
    k.emit(f"s_mov_b32 s98, {end_label}-{lab}\ns_mov_b32 s99, 0x20000\ns_lshr_b32 s100, s2, 3\ns_lshl_b32 s100, s100, 12")
    k.emit(f"v_lshlrev_b32 v{vdst + 4}, 4, v{vtid}")
    k.emit(VM(f"buffer_load_dwordx4 v[{vdst}:{vdst + 3}], v{vdst + 4}, s[96:99], s100 offen", tag))


def rstamp(k, vreg, idx):
    if PROF:
        k.emit("s_memtime s[78:79]", WLG0, f"v_writelane_b32 v{vreg}, s78, {idx}")
        k.emit("s_memrealtime s[78:79]", WLG0, f"v_writelane_b32 v{vreg}, s78, {idx + 1}")
```

```python
from asmlib import *
from common import *

import os
KVST = os.environ.get("KVST", "sc1")
NOPF = os.environ.get("NOPF", "0") == "1"
EXP = os.environ.get("EXP", "")
SX, SC, SW, SI, SS, SD, SPF = 8, 12, 16, 20, 24, 28, 72
sW, sRB, sCB, sNB, sMB, sRS, sCH = 32, 33, 34, 35, 36, 37, 38
sT, sT2, sCK, sWK, sW8, sW2, sKO, sWI, sXN, sCNT, sONES, sWB, sDO = 56, 57, 58, 59, 60, 61, 62, 63, 64, 65, 66, 67, 68
sXO = 39

vCD = 1
vUD = 9
vCR = 17
vBR = 25
vL16 = 31
vF = 32
vT = 40
STG = 64
vQD, vQR, vPF = 64, 68, 76
WF = 96
ACC = (128, 192)
SLOT = 49152
UREG = (3, 4, 0, 1)


def A(ks, cs):
    return ('a', (ks * 32 + cs) * 4)


def seg_off(byte):
    return byte // 65536, byte % 65536


def a_dma(j):
    out = []
    base = (j % 3) * SLOT
    for i in range(8):
        g = []
        if i % 4 == 0:
            g += [I(f"s_add_u32 m0, s{sW8}, {base + (i // 4) * 4096}"), I(f"s_add_u32 s{sDO}, s{sCK}, {j * 128}")]
        g.append(VM(f"buffer_load_dwordx4 v{vCD + i}, {s(SC, 4)}, s{sDO} offen offset:{1024 * (i % 4)} lds", f"p{j}"))
        out.append(g)
    return out


def b_dma(j):
    out = []
    for i in range(4):
        g = []
        if i == 0:
            g += [I(f"s_add_u32 m0, s{sW2}, {(j % 3) * SLOT + 32768}"), I(f"s_add_u32 s{sDO}, s{sWB}, {j * 64 * 8192}")]
        g.append(VM(f"buffer_load_dwordx4 v{vQD + i}, {s(SW, 4)}, s{sDO} offen offset:{1024 * i} lds", f"p{j}"))
        out.append(g)
    return out


def unit_dma(u):
    out = []
    base = UREG[u] * 32768
    off = (u % 2) * 256 * 8192 + (2 + u // 2) * 128
    for i in range(8):
        g = []
        if i % 4 == 0:
            g += [I(f"s_add_u32 m0, s{sW8}, {base + (i // 4) * 4096}"), I(f"s_add_u32 s{sDO}, s{sWK}, {off}")]
        g.append(VM(f"buffer_load_dwordx4 v{vUD + i}, {s(SW, 4)}, s{sDO} offen offset:{1024 * (i % 4)} lds", f"u{u}"))
        out.append(g)
    return out


def zslot(z):
    return (z + 2) % 5


def z_dma(z, xn_only=False, w_only=False):
    out = []
    base = zslot(z) * 32768
    for p in range(2):
        if not xn_only:
            for i in range(3):
                g = []
                if i == 0:
                    g += [I(f"s_add_u32 m0, s{sW8}, {base + p * 4096}"), I(f"s_add_u32 s{sDO}, s{sWI}, {z * 64 * 2752 + p * 1376}")]
                g.append(VM(f"buffer_load_dwordx4 v{vCD + i}, {s(SI, 4)}, s{sDO} offen offset:{1024 * i} lds", f"z{z}"))
                out.append(g)
        if not w_only:
            out.append([I(f"s_add_u32 m0, s{sW8}, {base + p * 4096 + 3072}"), I(f"s_add_u32 s{sDO}, s{sXN}, {p * 32768 + z * 4096}"),
                        VM(f"buffer_load_dwordx4 v{vL16}, {s(SS, 4)}, s{sDO} offen sc1 lds", f"z{z}")])
    return out


def pa_reads(c):
    j, cs = c // 4, c % 4
    slot = j % 3
    sg, off = (0, slot * SLOT) if slot == 0 else (1, (slot - 1) * SLOT)
    out = [LG(f"ds_read_b128 {R(A(ks, c), 4)}, v{vCR + sg * 4 + cs} offset:{off + ks * 4096}", f"r{c}") for ks in range(2)]
    fb = WF + (c % 2) * 16
    for d in range(4):
        for sec in range(2):
            out.append(LG(f"ds_read_b64_tr_b16 {v(fb + 4 * d + 2 * sec, 2)}, v{vQR + sg * 4 + d} "
                          f"offset:{off + cs * 4096 + sec * 1024}", f"r{c}"))
    return out


def pa_mf(c, vtype):
    fb = WF + (c % 2) * 16
    out = []
    for d in range(4):
        for ks in range(2):
            cf, wf = A(ks, c), ('v', fb + 4 * d)
            X, Y = (cf, wf) if vtype else (wf, cf)
            out.append(mfma(('v', ACC[d // 2] + (ks * 2 + d % 2) * 16), X, Y, 0 if c == 0 else None))
    return out


def pb_reads(c):
    u = c // 16
    sg, off = seg_off(UREG[u] * 32768 + (c % 16) * 2048)
    fb = WF + (c % 4) * 8
    return [LG(f"ds_read_b64_tr_b16 {v(fb + 4 * d2 + 2 * sec, 2)}, v{vBR + sg * 2 + d2} offset:{off + sec * 512}", f"s{c}")
            for d2 in range(2) for sec in range(2)]


def pb_mf(c, vtype):
    p, cs = 2 + c // 32, c % 32
    fb = WF + (c % 4) * 8
    out = []
    for d2 in range(2):
        for ks in range(2):
            cf, wf = A(ks, cs), ('v', fb + 4 * d2)
            X, Y = (cf, wf) if vtype else (wf, cf)
            out.append(mfma(('v', ACC[p % 2] + (ks * 2 + d2) * 16), X, Y, 0 if cs == 0 else None))
    return out


def kv_epi(p, staged=False):
    out = []
    for ks in range(2):
        for d2 in range(2):
            for g in range(2):
                b = ACC[p % 2] + (ks * 2 + d2) * 16 + 8 * g
                grp = []
                if d2 == 0 and g == 0:
                    grp.append(I(f"s_add_u32 s{sT2}, s{sKO}, {(p // 2) * 64 * 8192 + ks * 8192 + (p % 2) * 4096}"))
                if staged:
                    b = STG + ((ks * 2 + d2) * 2 + g) * 4
                else:
                    grp += [I(f"v_cvt_pk_bf16_f32 v{b + i}, v{b + 2 * i}, v{b + 2 * i + 1}") for i in range(2)]
                    out.append(grp)
                    grp = [I(f"v_cvt_pk_bf16_f32 v{b + i}, v{b + 2 * i}, v{b + 2 * i + 1}") for i in range(2, 4)]
                grp.append(VM(f"buffer_store_dwordx4 {v(b, 4)}, v{vL16}, {s(SS, 4)}, s{sT2} offen offset:{(2 * d2 + g) * 1024} {KVST}", "st"))
                out.append(grp)
    return out


def XF(c):
    return A(c % 2, c // 2)


def xn_loads():
    out = []
    for c in range(32):
        g = []
        if c % 4 == 0:
            g.append(I(f"s_add_u32 s{sXO}, s{sXN}, {(c // 4) * 4096}"))
        g.append(VM(f"buffer_load_dwordx4 {R(XF(c), 4)}, v{vL16}, {s(SS, 4)}, s{sXO} offen offset:{(c % 4) * 1024} sc1", f"xn{c // 4}"))
        out.append(g)
    return out


def gelu(regs, vC0, vC1, tmp):
    out = []
    for i in range(0, len(regs), 4):
        g = regs[i:i + 4]
        t = [tmp + j for j in range(4)]
        for op in ("v_mul_f32 v{t}, v{x}, v{x}", "v_fma_f32 v{t}, v{t}, v{c1}, v{c0}", "v_mul_f32 v{t}, v{t}, v{x}",
                   "v_exp_f32 v{t}, v{t}", "v_add_f32 v{t}, 1.0, v{t}", "v_rcp_f32 v{t}, v{t}", "v_mul_f32 v{x}, v{x}, v{t}"):
            for x, tt in zip(g, t):
                out.append(op.format(t=tt, x=x, c0=vC0, c1=vC1))
    return out


def ln_code():
    o = []
    for i in range(4):
        o.append(f"v_mov_b32 v{48 + i}, 0")
    for r in range(2):
        for i in range(4):
            o.append(f"v_dot2_f32_bf16 v{48 + r}, v{40 + 4 * r + i}, s{sONES}, v{48 + r}")
            o.append(f"v_dot2_f32_bf16 v{50 + r}, v{40 + 4 * r + i}, v{40 + 4 * r + i}, v{50 + r}")
    o += ["s_nop 2", "v_permlane32_swap_b32 v48, v49", "v_permlane32_swap_b32 v50, v51", "s_nop 1",
          "v_add_f32 v48, v48, v49", "v_add_f32 v50, v50, v51", "s_nop 1",
          "v_permlane16_swap_b32 v48, v50", "s_nop 1", "v_add_f32 v48, v48, v50"]
    for sh in (8, 4, 2, 1):
        o += ["s_nop 1", f"v_add_f32_dpp v48, v48, v48 row_ror:{sh} row_mask:0xf bank_mask:0xf"]
    o += ["s_nop 1", f"v_mul_f32 v48, {fbits(1 / 512)}, v48", "s_nop 0",
          "v_readlane_b32 s40, v48, 0", "v_readlane_b32 s41, v48, 16", "v_readlane_b32 s42, v48, 32", "v_readlane_b32 s43, v48, 48",
          "s_nop 1"]
    for r in range(2):
        m, q = 40 + 2 * r, 41 + 2 * r
        a_, b_ = 52 + 2 * r, 53 + 2 * r
        o += [f"v_mov_b32 v{b_}, s{m}", f"v_mov_b32 v{a_}, s{q}", f"v_fma_f32 v{a_}, -v{b_}, v{b_}, v{a_}", f"v_max_f32 v{a_}, 0, v{a_}",
              f"v_add_f32 v{a_}, {fbits(LN_EPS)}, v{a_}", f"v_rsq_f32 v{a_}, v{a_}", "s_nop 0",
              f"v_mul_f32 v{b_}, v{b_}, v{a_}", f"v_sub_f32 v{b_}, 0, v{b_}"]
    for r in range(2):
        for i in range(4):
            x = 40 + 4 * r + i
            o += [f"v_lshlrev_b32 v56, 16, v{x}", f"v_and_b32 v57, 0xffff0000, v{x}",
                  f"v_fma_f32 v56, v56, v{52 + 2 * r}, v{53 + 2 * r}", f"v_fma_f32 v57, v57, v{52 + 2 * r}, v{53 + 2 * r}",
                  f"v_cvt_pk_bf16_f32 v{x}, v56, v57"]
    return o


def kv_phase(k, vtype):
    E = k.emit
    extra = {}

    def add(c, groups):
        extra.setdefault(c, []).extend(groups)

    def spread(c0, c1, groups):
        n = len(groups)
        for i, g in enumerate(groups):
            add(c0 + (i * (c1 - c0)) // n, [g])

    ldp = lambda sr, so, i: [VM(f"buffer_load_dwordx4 {v(vPF, 4)}, v{vL16}, {s(sr, 4)}, s{so} offen offset:{1024 * i}", "pf")]
    ldh = lambda sr, so, off: [I(f"s_add_u32 s{sT}, s{so}, {off}"), VM(f"buffer_load_dwordx4 {v(vPF, 4)}, v61, {s(sr, 4)}, s{sT} offen", "pf")]
    pf0 = [ldp(SC, 77, i) for i in range(2)] + [ldh(SPF, 76, 128 * 8192), ldh(SPF, 76, 256 * 8192)]
    pf1 = [ldh(SPF, 76, 384 * 8192)]
    pf2 = [ldh(SPF, 76, 256 + r * 128 * 8192) for r in range(4)] + [ldp(SI, 77, i) for i in range(2)]
    add(1, pf1)
    spread(8, 20, pf2)
    ln = ln_code()
    lng = [[I(x) for x in ln[i:i + 4]] for i in range(0, len(ln), 4)]
    lng.append([LG("ds_write_b128 v58, v[40:43]"), LG("ds_write_b128 v58, v[44:47] offset:16")])
    xst = [[LG("ds_read_b128 v[40:43], v59", "xr"), LG("ds_read_b128 v[44:47], v59 offset:1024", "xr")],
           [WLG("xr"), VM(f"buffer_store_dwordx4 v[40:43], v62, {s(SS, 4)}, s69 offen sc1", "xs")],
           [I(f"v_add_u32 v62, 4096, v62"), VM(f"buffer_store_dwordx4 v[44:47], v62, {s(SS, 4)}, s69 offen sc1", "xs")]]
    spread(12, 15, xst)
    spread(0, 3, a_dma(2) + b_dma(2))
    spread(3, 11, lng)
    E(pf0)
    E(WVM("p0"), "s_barrier")
    stamp(k, 6)
    E(pa_reads(0))
    for c in range(32):
        E(WLG(f"r{c}"))
        fill = []
        if c % 4 == 3:
            j = c // 4
            lstamp(k, 63, 3 * j)
            if j < 7:
                E(WVM(f"p{j + 1}"))
            else:
                E(WVM("u0"))
            if j == 5:
                E(WVM("xs"))
            if j == 2:
                E(WLG0)
            lstamp(k, 63, 3 * j + 1)
            E("s_barrier")
            lstamp(k, 63, 3 * j + 2)
            if j + 3 < 8:
                post = a_dma(j + 3) + b_dma(j + 3)
            elif j == 5:
                post = unit_dma(0) + unit_dma(1)[:4]
            elif j == 6:
                post = unit_dma(1)[4:] + unit_dma(2)
            else:
                post = []
            if j == 5:
                post = post + [flag_set(sW, SD, 2, 46)]
            if j < 7:
                spread(c, c + 4, post)
        if c < 31:
            fill += pa_reads(c + 1)
            fill = interleave(fill, extra.get(c, []))
            E(weave(pa_mf(c, vtype), fill, 0, 8))
        else:
            m = pa_mf(c, vtype)
            stg = []
            for tl in range(4):
                for g in range(2):
                    b = ACC[0] + tl * 16 + 8 * g
                    stg += [I(f"v_cvt_pk_bf16_f32 v{STG + (tl * 2 + g) * 4 + i}, v{b + 2 * i}, v{b + 2 * i + 1}") for i in range(4)]
            order = [0, 2, 1, 3]
            E(m[:4], pb_reads(0), m[4], m[5])
            seq = [stg[o * 8:(o + 1) * 8] for o in order]
            E(seq[0], m[6], seq[1], m[7], pb_reads(1), seq[2], seq[3])
    stamp(k, 7)
    extra.clear()
    wi = []
    for i in range(3):
        wi.append([I(x) for x in (f"v_add_u32 v46, {64 * i}, v0", "v_mul_u32_u24 v47, 43691, v46", "v_lshrrev_b32 v47, 19, v47",
                                  "v_mul_u32_u24 v48, 12, v47")])
        wi.append([I(x) for x in ("v_sub_u32 v48, v46, v48", "v_mul_u32_u24 v47, 2752, v47", f"v_lshl_add_u32 v{vCD + i}, v48, 4, v47",
                                  f"v_subrev_u32 v{vCD + i}, {1024 * i}, v{vCD + i}")])
    wi.append([I(x) for x in (f"v_lshl_add_u32 v46, v{vF + 1}, 3, v{vF + 3}", "v_mul_u32_u24 v46, 192, v46",
                              f"v_lshl_add_u32 v46, v{vF + 5}, 5, v46", f"v_lshl_add_u32 v46, v{vF + 4}, 3, v46")])
    wi.append([I(x) for x in (f"s_lshl_b32 s{sT}, s{sCH}, 12", f"v_add_u32 v{vCR}, s{sT}, v46", f"v_add_u32 v{vCR + 1}, 0x10000, v{vCR}",
                              f"v_add_u32 v{vCR + 2}, 0x20000, v{vCR}")])
    wi.append([I(x) for x in (f"s_lshl_b32 s{sT}, s{sRS}, 12", f"s_add_u32 s{sT}, s{sT}, 3072", f"v_add_u32 v{vCR + 3}, s{sT}, v{vL16}",
                              f"v_add_u32 v{vCR + 4}, 0x10000, v{vCR + 3}", f"v_add_u32 v{vCR + 5}, 0x20000, v{vCR + 3}")])
    spread(0, 6, unit_dma(3))
    spread(0, 6, wi)
    spread(7, 13, z_dma(0, w_only=True))
    spread(0, 15, kv_epi(0, staged=True))
    spread(15, 32, kv_epi(1))
    spread(33, 64, kv_epi(2))
    add(13, [flag_poll_issue(sW, SD, sCNT, 8, 50)])
    add(29, [flag_poll_check(sW, SD, sCNT, 50)])
    pf = [[I(f"s_mov_b32 s{SPF}, s44"), I(f"s_mov_b32 s{SPF + 1}, s45")] +
          [VM(f"buffer_load_dwordx4 v[52:55], v{vL16}, {s(SPF, 4)}, s70 offen", "pf")]]
    pf += [[VM(f"buffer_load_dwordx4 v[52:55], v{vL16}, {s(SPF, 4)}, s70 offen offset:{1024 * i}", "pf")] for i in range(1, 4)]
    if not NOPF:
        spread(50, 62, pf)
    for c in range(64):
        n = c + 2
        fill = []
        if n < 64:
            if n % 16 == 0:
                u = n // 16
                lstamp(k, 63, 21 + 3 * u)
                E(WLG(f"s{n - 1}"), WVM(f"u{u}"))
                lstamp(k, 63, 22 + 3 * u)
                E("s_barrier")
                lstamp(k, 63, 23 + 3 * u)
                if u == 1:
                    spread(c, c + 12, z_dma(1, w_only=True))
                elif u == 2:
                    spread(c, c + 14, z_dma(0, xn_only=True) + z_dma(1, xn_only=True) + z_dma(2))
                else:
                    spread(c, c + 14, z_dma(3))
            fill += pb_reads(n)
        E(WLG(f"s{c}"))
        if c == 32:
            stamp(k, 8)
        E(weave(pb_mf(c, vtype), interleave(fill, extra.get(c, [])), 0, 4))
    for c in extra:
        assert c < 64


def interleave(x, y):
    out = []
    n = max(len(x), len(y))
    for i in range(n):
        if i < len(x):
            out.append(x[i])
        if i < len(y):
            out.append(y[i])
    return out


def z_phase(k, z2):
    E = k.emit
    ZACC = ACC[0]
    LA = 3

    def fbuf(c):
        return (c % 4) * 16

    def reads(c):
        z, cs = c // 4, c % 4
        sg, off = seg_off(zslot(z) * 32768 + cs * 8192)
        fb = fbuf(c)
        out = [LG(f"ds_read_b128 {a(fb + 12, 4)}, v{vCR + 3 + sg} offset:{off}", f"y{c}")]
        out += [LG(f"ds_read_b64_tr_b16 {a(fb + 4 * f + 2 * sec, 2)}, v{vCR + sg} offset:{off + sec * 768 + f * 64}", f"y{c}")
                for f in range(3) for sec in range(2)]
        return out

    def mf(c):
        fb = fbuf(c)
        out = []
        for f in range(3):
            wf, xf = ('a', fb + 4 * f), ('a', fb + 12)
            X, Y = (xf, wf) if z2 else (wf, xf)
            out.append(mfma(('v', ZACC + 16 * f), X, Y, 0 if c == 0 else None))
        return out

    epi = kv_epi(3)
    lstamp(k, 63, 33)
    E(WVM("z0"), "s_barrier")
    lstamp(k, 63, 34)
    for c in range(LA):
        E(reads(c))
    pend = z_dma(4)
    for c in range(32):
        n = c + LA
        if n < 32 and n % 4 == 0:
            z = n // 4
            lstamp(k, 63, 33 + 3 * z)
            E(WLG(f"y{n - 1}"), WVM(f"z{z}"))
            lstamp(k, 63, 34 + 3 * z)
            E("s_barrier")
            if z + 4 < 8:
                pend = pend + z_dma(z + 4)
        E(WLG(f"y{c}"))
        r_ = reads(n) if n < 32 else []
        take, pend = pend[:3], pend[3:]
        gm_ = {i: r_[(i * 7) // 3:((i + 1) * 7) // 3] + take[i:i + 1] for i in range(3)}
        if c % 2 == 1:
            gm_[1] = gm_[1] + [epi[c // 2]]
        E(place(mf(c), gm_))


def build():
    k = Kern("k1_kernel")
    E = k.emit
    E("s_cmp_ge_u32 s2, 256\ns_cbranch_scc1 K1_END")
    code_prefetch(k, "L_CODE_END", 0, 120)
    stamp_init(k)
    stamp(k, 0)
    E(f"s_load_dwordx4 s[40:43], s[0:1], {KA_X}")
    E(f"s_load_dwordx4 s[44:47], s[0:1], {KA_WUK}")
    E(f"s_load_dwordx2 s[48:49], s[0:1], {KA_WIN}")
    E(f"s_load_dwordx4 s[52:55], s[0:1], {KA_DBG}")
    E("v_lshrrev_b32 v1, 6, v0\nv_and_b32 v0, 63, v0")
    E(f"s_lshr_b32 s{sRB}, s2, 3\ns_and_b32 s{sCB}, s2, 7")
    E(f"v_readfirstlane_b32 s{sW}, v1")
    E(f"s_and_b32 s{sNB}, s{sRB}, 3\ns_lshl_b32 s{sT}, s{sCB}, 2\ns_add_u32 s{sNB}, s{sNB}, s{sT}")
    E(f"s_lshr_b32 s{sMB}, s{sRB}, 2")
    E(f"s_and_b32 s{sRS}, s{sW}, 1\ns_lshr_b32 s{sCH}, s{sW}, 1\ns_lshl_b32 s{sW8}, s{sW}, 13\ns_lshl_b32 s{sW2}, s{sW}, 12")
    f0 = vF
    E(f"v_and_b32 v{f0}, 31, v0\nv_lshrrev_b32 v{f0 + 1}, 5, v0\nv_lshrrev_b32 v{f0 + 2}, 4, v0")
    E(f"v_bfe_u32 v{f0 + 3}, v0, 2, 2\nv_and_b32 v{f0 + 4}, 3, v0\nv_bfe_u32 v{f0 + 5}, v0, 4, 1")
    E(f"v_lshlrev_b32 v{vL16}, 4, v0")
    E(f"v_lshrrev_b32 v46, 3, v0\nv_lshlrev_b32 v50, 13, v46\nv_lshlrev_b32 v46, 10, v46\nv_and_b32 v47, 7, v0\nv_xor_b32 v47, v47, v{f0 + 2}")
    E("v_lshl_add_u32 v48, v47, 4, v46\nv_xor_b32 v47, 4, v47\nv_lshl_add_u32 v49, v47, 4, v46")
    for i in range(8):
        E(f"v_add_u32 v{vCD + i}, {i * 8192 - (i % 4) * 1024}, v{48 + (i % 2)}")
    E(f"v_bfe_u32 v47, v0, 2, 1\nv_xor_b32 v47, v47, v{f0 + 5}\nv_lshl_add_u32 v50, v47, 6, v50\nv_lshl_add_u32 v50, v{f0 + 4}, 4, v50")
    for i in range(8):
        E(f"v_add_u32 v{vUD + i}, {i * 65536 - (i % 4) * 1024}, v50")
    E(f"s_lshl_b32 s{sCK}, s{sMB}, 18\ns_lshl_b32 s{sT}, s{sW}, 16\ns_add_u32 s{sCK}, s{sCK}, s{sT}")
    E(f"s_and_b32 s{sT}, s{sNB}, 15\ns_lshl_b32 s{sT}, s{sT}, 9\ns_lshl_b32 s{sWK}, s{sW}, 19\ns_add_u32 s{sWK}, s{sWK}, s{sT}")
    E(f"s_lshl_b32 s{sWB}, s{sW}, 17\ns_add_u32 s{sWB}, s{sWB}, s{sT}")
    E(f"s_lshl_b32 s{sT2}, s2, 13\ns_lshl_b32 s{sT}, s{sW}, 11\ns_add_u32 s{sT2}, s{sT2}, s{sT}")
    E(f"v_xor_b32 v46, v{f0 + 3}, v{f0 + 2}\nv_lshlrev_b32 v47, 13, v{f0 + 2}\nv_lshl_add_u32 v47, v46, 6, v47\nv_lshl_add_u32 v47, v{f0 + 4}, 4, v47")
    for i in range(4):
        E(f"v_add_u32 v{vQD + i}, {i * (32768 - 1024)}, v47")
    E("s_waitcnt lgkmcnt(0)")
    E(srd(SX, 40, 2048 * 1024), srd(SC, 42, 2048 * 1024))
    E(VM(f"buffer_load_dwordx4 v[40:43], v{vL16}, {s(SX, 4)}, s{sT2} offen", "x"))
    E(VM(f"buffer_load_dwordx4 v[44:47], v{vL16}, {s(SX, 4)}, s{sT2} offen offset:1024", "x"))
    E(f"s_cmp_lt_u32 s{sNB}, 16\ns_cselect_b32 s{SW}, s44, s46\ns_cselect_b32 s{SW + 1}, s45, s47")
    E(f"s_mov_b32 s{SW + 2}, {512 * 8192:#x}\ns_mov_b32 s{SW + 3}, 0x20000")
    for j in range(2):
        E(a_dma(j), b_dma(j))
    E(srd(SI, 48, 512 * 2752), srd(SS, 54, WS_SIZE), srd(SD, 52, 256))
    E(f"s_lshl_b32 s{sT}, s2, 2\ns_add_u32 s{sT}, s{sT}, s{sW}\ns_lshl_b32 s70, s{sT}, 12\ns_lshl_b32 s77, s{sT}, 11\ns_and_b32 s76, s77, 0xfffff")
    E(f"s_cmp_lt_u32 s2, 128\ns_cselect_b32 s{SPF}, s44, s46\ns_cselect_b32 s{SPF + 1}, s45, s47\ns_mov_b32 s{SPF + 2}, {512 * 8192:#x}\ns_mov_b32 s{SPF + 3}, 0x20000")
    E(f"v_lshlrev_b32 v61, 9, v{f0 + 2}\nv_and_b32 v48, 15, v0\nv_lshl_add_u32 v61, v48, 4, v61")
    E(f"s_load_dwordx2 s[44:45], s[0:1], {KA_WQ}")
    E(f"v_bfe_u32 v48, v0, 1, 3\nv_xor_b32 v48, v48, v{f0 + 1}\nv_lshlrev_b32 v49, 7, v{f0}\nv_add_u32 v49, s{sW8}, v49")
    for k16 in range(4):
        E(f"v_xor_b32 v50, {2 * k16}, v48\nv_lshl_add_u32 v{vCR + k16}, v50, 4, v49\nv_add_u32 v{vCR + 4 + k16}, {SLOT}, v{vCR + k16}")
    E(f"v_lshl_add_u32 v48, v{f0 + 1}, 3, v{f0 + 3}\nv_lshlrev_b32 v48, 8, v48\nv_lshl_add_u32 v48, v{f0 + 5}, 5, v48\nv_lshl_add_u32 v48, v{f0 + 4}, 3, v48\nv_add_u32 v48, 32768, v48")
    for d in range(4):
        E(f"v_xor_b32 v49, {d}, v{f0 + 3}\nv_lshl_add_u32 v{vQR + d}, v49, 6, v48\nv_add_u32 v{vQR + 4 + d}, {SLOT}, v{vQR + d}")
    E(f"v_lshl_add_u32 v48, v{f0 + 1}, 3, v{f0 + 3}\nv_lshlrev_b32 v48, 7, v48\nv_lshl_add_u32 v48, v{f0 + 5}, 5, v48\nv_lshl_add_u32 v48, v{f0 + 4}, 3, v48")
    E(f"v_lshrrev_b32 v49, 1, v{f0 + 3}\nv_lshl_add_u32 v{vBR}, v49, 6, v48\nv_xor_b32 v49, 1, v49\nv_lshl_add_u32 v{vBR + 1}, v49, 6, v48")
    for sg in (1, 2):
        for d2 in range(2):
            E(f"v_add_u32 v{vBR + 2 * sg + d2}, {sg * 65536}, v{vBR + d2}")
    E(f"s_lshl_b32 s{sKO}, s{sNB}, 7\ns_lshl_b32 s{sT}, s{sMB}, 3\ns_add_u32 s{sKO}, s{sKO}, s{sT}\ns_lshl_b32 s{sT}, s{sW}, 1\ns_add_u32 s{sKO}, s{sKO}, s{sT}")
    E(f"s_lshl_b32 s{sKO}, s{sKO}, 13\ns_add_u32 s{sKO}, s{sKO}, {WS_KF}")
    E(f"s_mul_i32 s{sWI}, s{sW}, {16 * 2752}\ns_mul_i32 s{sT}, s{sCB}, 192\ns_add_u32 s{sWI}, s{sWI}, s{sT}")
    E(f"s_lshl_b32 s{sXN}, s{sRB}, 16\ns_lshl_b32 s{sT}, s{sW}, 10\ns_add_u32 s{sXN}, s{sXN}, s{sT}\ns_add_u32 s{sXN}, s{sXN}, {WS_XN}")
    E(f"s_lshl_b32 s{sCNT}, s{sRB}, 3\ns_mov_b32 s{sONES}, 0x3f803f80")
    E(f"s_lshr_b32 s{sT2}, s2, 2\ns_lshl_b32 s{sT2}, s{sT2}, 15\ns_and_b32 s{sT}, s2, 3\ns_lshl_b32 s{sT}, s{sT}, 7\ns_add_u32 s{sT2}, s{sT2}, s{sT}")
    E(f"s_add_u32 s{sT2}, s{sT2}, s{sW8}\ns_add_u32 s69, s{sT2}, {WS_XN}")
    E(f"s_lshl_b32 s{sT}, s{sW}, 5\ns_add_u32 s{sT}, s{sT}, {3 * SLOT}\nv_lshlrev_b32 v58, 7, v0\nv_add_u32 v58, s{sT}, v58")
    E(f"s_lshl_b32 s{sT}, s{sW}, 11\ns_add_u32 s{sT}, s{sT}, {3 * SLOT}\nv_add_u32 v59, s{sT}, v{vL16}")
    E("v_lshrrev_b32 v62, 3, v0\nv_lshlrev_b32 v62, 9, v62\nv_and_b32 v48, 7, v0\nv_lshl_add_u32 v62, v48, 4, v62")
    E("s_waitcnt lgkmcnt(0)")
    stamp(k, 1)
    E(f"s_cmp_ge_u32 s{sNB}, 16\ns_cbranch_scc1 K1_V")
    st = (list(k.vm), list(k.lg))
    kv_phase(k, False)
    E("s_branch K1_Z")
    k.set_state(*st)
    E("K1_V:")
    kv_phase(k, True)
    E("K1_Z:")
    stamp(k, 2)
    E(f"v_mov_b32 v60, {fbits(GELU_C0)}\nv_mov_b32 v61, {fbits(GELU_C1)}")
    E(f"s_cmp_eq_u32 s{sCH}, 1\ns_cbranch_scc1 K1_Z2")
    st = (list(k.vm), list(k.lg))
    ZACC = ACC[0]
    zr = list(range(ZACC, ZACC + 48))
    z_phase(k, False)
    stamp(k, 3)
    E(f"s_lshl_b32 s{sT}, s{sRB}, 1\ns_add_u32 s{sT}, s{sT}, s{sRS}\ns_mul_i32 s{sT}, s{sT}, 48")
    E(f"s_mul_i32 s{sT2}, s{sCB}, 6\ns_add_u32 s{sT}, s{sT}, s{sT2}\ns_lshl_b32 s{sT}, s{sT}, 10")
    E(f"s_add_u32 s{sT}, s{sT}, {WS_Z1}\ns_add_u32 s{sT2}, s{sT}, 4096\ns_nop 7")
    E(f"s_cmp_lg_u32 s{sCB}, 7\ns_cbranch_scc1 K1_Z1_NOMASK")
    for r in zr[8:]:
        E(f"v_mov_b32 v{r}, 0")
    E("K1_Z1_NOMASK:")
    for fg in range(6):
        b = ZACC + 8 * fg
        E(gelu(list(range(b, b + 8)), 60, 61, 52))
        for i in range(4):
            E(f"v_cvt_pk_bf16_f32 v{b + i}, v{b + 2 * i}, v{b + 2 * i + 1}")
        E(VM(f"buffer_store_dwordx4 {v(b, 4)}, v{vL16}, {s(SS, 4)}, s{sT if fg < 4 else sT2} offen offset:{1024 * (fg % 4)} sc1"))
    E("s_branch K1_DONE")
    k.set_state(*st)
    E("K1_Z2:")
    z_phase(k, True)
    stamp(k, 3)
    E(f"s_mul_i32 s{sT}, s{sCB}, 384\ns_lshl_b32 s{sT2}, s{sRB}, 2\ns_add_u32 s{sT}, s{sT}, s{sT2}")
    E(f"s_lshl_b32 s{sT2}, s{sRS}, 1\ns_add_u32 s{sT}, s{sT}, s{sT2}\ns_lshl_b32 s{sT}, s{sT}, 10\ns_add_u32 s{sT}, s{sT}, {WS_Z2R}\ns_nop 7")
    E(f"s_cmp_lg_u32 s{sCB}, 7\ns_cbranch_scc1 K1_Z2_NOMASK")
    E(f"v_cmp_gt_u32 vcc, 16, v{vF}\ns_nop 1")
    for r in zr[:16]:
        E(f"v_cndmask_b32 v{r}, 0, v{r}, vcc")
    for r in zr[16:]:
        E(f"v_mov_b32 v{r}, 0")
    E("K1_Z2_NOMASK:")
    E(gelu(zr, 60, 61, 52))
    SQ = 64
    for r in range(16):
        z0, z1, z2_ = ZACC + r, ZACC + 16 + r, ZACC + 32 + r
        E(f"v_add_f32 v{SQ + r}, v{z0}, v{z1}\nv_mul_f32 v{SQ + 16 + r}, v{z0}, v{z0}")
        E(f"v_add_f32 v{SQ + r}, v{SQ + r}, v{z2_}\nv_fmac_f32 v{SQ + 16 + r}, v{z1}, v{z1}")
        E(f"v_fmac_f32 v{SQ + 16 + r}, v{z2_}, v{z2_}")
    SCR = zslot(3) * 32768
    E(f"s_mul_i32 s{sT2}, s{sRS}, 9216\ns_add_u32 s{sT2}, s{sT2}, {SCR}")
    E(f"v_mul_u32_u24 v46, {4 * 144}, v{vF + 1}\nv_lshl_add_u32 v46, v{vF}, 2, v46\nv_add_u32 v46, s{sT2}, v46")
    for stt in range(2):
        for r in range(16):
            srow = 8 * (r // 4) + r % 4
            E(LG(f"ds_write_b32 v46, v{SQ + 16 * stt + r} offset:{(stt * 32 + srow) * 144}"))
    E(f"v_mul_u32_u24 v47, 144, v0\nv_add_u32 v47, s{sT2}, v47")
    for f in range(3):
        for g in range(2):
            b = ZACC + 16 * f + 8 * g
            for i in range(4):
                E(f"v_cvt_pk_bf16_f32 v{b + i}, v{b + 2 * i}, v{b + 2 * i + 1}")
            E("s_nop 1")
            E(f"v_permlane32_swap_b32 v{b}, v{b + 2}\nv_permlane32_swap_b32 v{b + 1}, v{b + 3}")
            E("s_nop 1")
            E(VM(f"buffer_store_dwordx4 {v(b, 4)}, v{vL16}, {s(SS, 4)}, s{sT} offen offset:{1024 * g} sc1"))
        if f < 2:
            E(f"s_add_u32 s{sT}, s{sT}, {128 * 1024}")
    E(WLG0)
    for i in range(8):
        E(LG(f"ds_read_b128 {v(SQ + 4 * i, 4)}, v47 offset:{16 * i}"))
    E(f"s_lshl_b32 s{sT}, s{sRB}, 1\ns_add_u32 s{sT}, s{sT}, s{sRS}\ns_lshl_b32 s{sT}, s{sT}, 11\ns_add_u32 s{sT}, s{sT}, {WS_STAT}")
    E(f"s_lshl_b32 s{sT2}, s{sCB}, 8\ns_add_u32 s{sT}, s{sT}, s{sT2}\nv_lshlrev_b32 v46, 2, v0")
    E(WLG0)
    for stride in (16, 8, 4, 2, 1):
        for i in range(stride):
            E(f"v_add_f32 v{SQ + i}, v{SQ + i}, v{SQ + stride + i}")
    E(VM(f"buffer_store_dword v{SQ}, v46, {s(SS, 4)}, s{sT} offen"))
    E("K1_DONE:")
    if PROF:
        stamp(k, 4)
        E(WVM0)
    stamp(k, 5)
    lstamp_store(k, 0, 63, 59, SS, sW)
    stamp_store(k, 0, SS, sW, 96)
    E("K1_END:")
    E("s_endpgm")
    return k.text(512, 256)
```

```python
from asmlib import *
from common import *
import os

THRESH = float(os.environ.get("THRESH", "16.0"))
BUDGET = int(os.environ.get("BUDGET", "25"))
EXP = os.environ.get("EXP2", "")

SQ, SP, SB, SS, SD = 8, 12, 16, 20, 24
sW, sHD, sPI, sG, sRS = 32, 33, 34, 35, 36
sT, sT2, sU, sSW, sSW2, sJUMP, sTL, sTD = 37, 38, 39, 40, 41, 42, 43, 44
sKN, sKO2, sVO, sVO2, sMK, sMV = 45, 46, 47, 48, 49, 50
sTH = (51, 52)
sLO = (53, 54)
sXN, sWQ, sWM, sW8, sDO = 55, 56, 57, 59, 58
sGP, sGZ, sGM, sFL, sPF, sEV, sDG = 60, 61, 62, 63, 76, 77, 31
NINF = "0xff800000"

vL16, vKc, vKn, vVp, vVc, vD0, vNEG = 1, 2, 3, 4, 5, 6, 7
vLs = ((8, 9), (10, 11))
vNM = (12, 13)
vM = 14
vLSV = (30, 31)
vT = 20
vQD = 32
vQR = 36
S = (48, 64)
NEGM = (80, 96)
PB = 112
QBS = 144
ZT = 208
NEGB = 208
MSK = 224
vPL = 240
aO, aQ, aK, aV = 0, 128, 192, 224

KB0, VB0, SPARE = 0, 65536, 131072
NEG = -1.0e30


def P(buf, x, i=0):
    return PB + (buf * 2 + x) * 8 + i


def dma4(so, tag="kv"):
    return [VM(f"buffer_load_dwordx4 v{vL16}, {s(SS, 4)}, s{so} offen offset:{1024 * i} lds", tag) for i in range(4)]


def qk(x, cin=None):
    return [mfma(('v', S[x]), ('a', aK + 4 * d), ('a', aQ + (x * 8 + d) * 4), ('v', NEGM[x] if cin is None else cin) if d == 0 else None)
            for d in range(8)]


def pv(x, buf):
    return [mfma(('a', aO + (x * 4 + ds) * 16), ('a', aV + (ds * 2 + g) * 4), ('v', P(buf, x, 4 * g)))
            for g in range(2) for ds in range(4)]


def kreads(areg, th):
    return [LG(f"ds_read_b128 {a(aK + 4 * d, 4)}, v{areg} offset:{th * 8192 + d * 1024}", "k") for d in range(8)]


def vreads(areg, th):
    return [LG(f"ds_read_b128 {a(aV + 4 * f, 4)}, v{areg} offset:{th * 8192 + f * 1024}", "v") for f in (0, 2, 4, 6, 1, 3, 5, 7)]


def sm_max(x):
    b, m = S[x], vM
    return [(4, I(t)) for t in (
        f"v_max3_f32 v{m}, v{b}, v{b + 1}, v{b + 2}", f"v_max3_f32 v{m + 1}, v{b + 3}, v{b + 4}, v{b + 5}",
        f"v_max3_f32 v{m + 2}, v{b + 6}, v{b + 7}, v{b + 8}", f"v_max3_f32 v{m + 3}, v{b + 9}, v{b + 10}, v{b + 11}",
        f"v_max3_f32 v{m + 4}, v{b + 12}, v{b + 13}, v{b + 14}", f"v_max3_f32 v{m}, v{m}, v{m + 1}, v{b + 15}",
        f"v_max3_f32 v{m + 2}, v{m + 2}, v{m + 3}, v{m + 4}", f"v_max_f32 v{m}, v{m}, v{m + 2}")]


def sm_chk(x, buf):
    return (8, [I(f"v_cmp_lt_f32 vcc, s{sTH[x]}, v{vM}"), I(f"s_cbranch_vccnz K2_RARE_{x}_{buf}"), I(f"K2_RET_{x}_{buf}:")])


def sm_fin(x, buf, i):
    b = S[x]
    return [(4, I(f"v_add_f32 v{vLs[x][0]}, v{vLs[x][0]}, v{b + 2 * i}")),
            (4, I(f"v_add_f32 v{vLs[x][1]}, v{vLs[x][1]}, v{b + 2 * i + 1}")),
            (4, I(f"v_cvt_pk_bf16_f32 v{P(buf, x, i)}, v{b + 2 * i}, v{b + 2 * i + 1}"))]


def sm_exp(x, buf):
    b = S[x]
    items = []
    for i in range(8):
        items.append((8, I(f"v_exp_f32 v{b + 2 * i}, v{b + 2 * i}")))
        items.append((8, I(f"v_exp_f32 v{b + 2 * i + 1}, v{b + 2 * i + 1}")))
        if i > 0:
            items += sm_fin(x, buf, i - 1)
    return items + sm_fin(x, buf, 7)


CAP = int(os.environ.get("CAP", "24"))


def schedule_loop(diag=False, pin=None):
    NG = 64
    T = NG + 16
    mem = [[] for _ in range(T)]
    alu = [[] for _ in range(T)]
    used = [0] * NG
    sfx = "D" if diag else ""

    def fixed(g, cost, item, is_mem=True):
        (mem if is_mem else alu)[g].append(item)
        used[g % NG] += cost

    def spread_mem(g0, n, items):
        for i, r in enumerate(items):
            fixed(g0 + (i * n) // len(items), 4, r)

    spread_mem(0, 13, vreads(vVp, 1))
    spread_mem(16, 10, kreads(vKc, 1))
    spread_mem(32, 13, vreads(vVc, 0))
    spread_mem(48, 13, kreads(vKn, 0))
    BAR = 27
    fixed(BAR, 8, [I("s_waitcnt vmcnt(1) lgkmcnt(0)"), ('reset',), I("s_barrier")])
    g = BAR + 1
    dgaps = []
    for so in (sKN, sKO2, sVO, sVO2):
        for d in dma4(so):
            fixed(g, 4, d)
            dgaps.append(g)
            g += 2
    fixed(g, 4, VM(f"buffer_load_dwordx4 {v(ZT + 40, 4)}, v{vL16}, {s(SP, 4)}, s{sPF} offen", "pf"))
    gpf = g
    tail = {15: [WLG("v")], 47: [WLG("v")], 63: []}
    for g_ in (15, 47):
        used[g_] += 4
    used[63] += 4 + 13 + 13
    used[31] += 13
    jobs = []

    def job(name, cost, item, e, l, deps=()):
        jobs.append(dict(name=name, cost=cost, item=item, e=e, l=l, deps=list(deps)))

    job("vo", 4, I(f"s_add_u32 s{sVO}, s{sKN}, {WS_VF - WS_KF}"), 0, BAR - 2)
    job("vo2", 4, I(f"s_add_u32 s{sVO2}, s{sKN}, {WS_VF - WS_KF + 4096}"), 0, BAR - 2)
    job("kn", 12, [I(f"s_cmp_eq_u32 s{sU}, s{sSW2}"), I(f"s_cselect_b32 s{sKO2}, s{sJUMP}, 0x4000"), I(f"s_add_u32 s{sKN}, s{sKN}, s{sKO2}")],
        0, BAR - 1, ["vo", "vo2"])
    job("ko2", 4, I(f"s_add_u32 s{sKO2}, s{sKN}, 4096"), 0, BAR, ["kn"])
    job("m0a", 4, I(f"s_mov_b32 m0, s{sMK}"), 0, BAR)
    job("m0b", 4, I(f"s_add_u32 m0, s{sMK}, 4096"), dgaps[3], dgaps[4] - 1)
    job("m0c", 4, I(f"s_mov_b32 m0, s{sMV}"), dgaps[7], dgaps[8] - 1)
    job("m0d", 4, I(f"s_add_u32 m0, s{sMV}, 4096"), dgaps[11], dgaps[12] - 1)
    job("pfa", 4, I(f"s_add_u32 s{sPF}, s{sPF}, 0x100000"), gpf, 63)
    job("xk", 4, I(f"s_xor_b32 s{sMK}, s{sMK}, 0x8000"), dgaps[4], 63, ["m0b"])
    job("xv", 4, I(f"s_xor_b32 s{sMV}, s{sMV}, 0x8000"), dgaps[12], 63, ["m0d"])
    job("vp", 4, I(f"v_mov_b32 v{vVp}, v{vVc}"), 13, 44)
    job("vc", 4, I(f"v_xor_b32 v{vVc}, 0x8000, v{vVc}"), 45, 63, ["vp"])
    job("kc", 4, I(f"v_xor_b32 v{vKc}, 0x8000, v{vKc}"), 26, 63)
    job("kx", 4, I(f"v_xor_b32 v{vKn}, 0x8000, v{vKn}"), 61, 63)
    job("tl", 4, I(f"s_add_u32 s{sTL}, s{sTL}, 1"), 56, 63)
    job("u", 4, I(f"s_add_u32 s{sU}, s{sU}, 1"), 32, 63)
    for half in range(2):
        G = 8 + 32 * half
        for x in range(2):
            e0 = G + 1 + 8 * x
            pre = f"{half}{x}"
            prev = [f"{half}0chk"] if x == 1 else []
            if diag and half == x:
                for r in range(16):
                    job(f"{pre}mk{r}", 4, I(f"v_min_f32 v{S[x] + r}, v{S[x] + r}, v{MSK + r}"), e0, e0 + 5, prev)
                prev = prev + [f"{pre}mk{r}" for r in range(16)]
            for i, (c, it) in enumerate(sm_max(x)):
                job(f"{pre}m{i}", c, it, e0, e0 + 6, prev + ([f"{pre}m{i - 1}"] if i else []))
            job(f"{pre}chk", 13, [I(f"v_cmp_lt_f32 vcc, s{sTH[x]}, v{vM}"), I(f"s_cbranch_vccnz K2_RARE_{x}_{half}"), I(f"K2_RET{sfx}_{x}_{half}:")],
                e0, e0 + 6, [f"{pre}m7"])
            dl = G + 23 + 8 * x
            b_ = S[x]
            for r in range(16):
                job(f"{pre}e{r}", 8, I(f"v_exp_f32 v{b_ + r}, v{b_ + r}"), e0, dl - 1, [f"{pre}chk"] + ([f"{pre}e{r - 1}"] if r else []))
            for i in range(8):
                f3 = sm_fin(x, half, i)
                job(f"{pre}a{2 * i}", 4, f3[0][1], e0, dl, [f"{pre}e{2 * i + 1}"])
                job(f"{pre}a{2 * i + 1}", 4, f3[1][1], e0, dl, [f"{pre}a{2 * i}"])
                job(f"{pre}c{i}", 4, f3[2][1], e0, dl, [f"{pre}a{2 * i + 1}"])
    if pin is not None:
        for j in jobs:
            if j['name'] in pin:
                j['e'] = j['l'] = pin[j['name']]
            else:
                j['l'] = min(j['l'], 63)
    done = {}
    rest = list(jobs)
    order = list(range(9, NG + 9))
    remaining = sum(j['cost'] for j in jobs)
    for gi, g in enumerate(order):
        gm_ = g % NG
        free_after = sum(max(0, CAP - used[h % NG]) for h in order[gi + 1:])
        while True:
            cand = []
            for j in rest:
                e, l = j['e'], j['l']
                if l < 9 or (e < 9 and j['name'][0] not in "01" and False):
                    e, l = e + NG, l + NG
                if e <= g and all(d in done for d in j['deps']):
                    cand.append((l, j))
            if not cand:
                break
            cand.sort(key=lambda z: z[0])
            room = CAP - used[gm_]
            pick = None
            for l, j in cand:
                if j['cost'] <= room:
                    pick = j
                    break
            if pick is None:
                urgent = [j for l, j in cand if l <= g]
                if urgent:
                    pick = urgent[0]
                elif remaining > free_after and room > -4 and room + 4 >= min(j['cost'] for _, j in cand):
                    pick = min((j for _, j in cand), key=lambda j: j['cost'])
                else:
                    break
            alu[g].append(pick['item'])
            used[gm_] += pick['cost']
            remaining -= pick['cost']
            done[pick['name']] = g
            rest.remove(pick)
    assert not rest, [j['name'] for j in rest]
    for j in jobs:
        l = j['l'] + (NG if j['l'] < 9 else 0)
        assert done[j['name']] <= l, (j['name'], done[j['name']], l)
    est = sum(max(32, 8 + u) for u in used)
    if os.environ.get("SCHED"):
        print("loop estimate", est, used)
    wrapped = []
    for g in range(NG, T):
        wrapped += [it for it in alu[g] if "v_" in str(it) and "s_cselect" not in str(it)]
    gm = {}
    for g in range(NG):
        gm[g] = mem[g] + (alu[g + NG] if g + NG < T else []) + alu[g] + tail.get(g, [])
    return gm, wrapped, {n: g for n, g in done.items() if g >= NG}


def rare_ret(L):
    return f"s_cmp_eq_u32 s{sDG}, 0\ns_cbranch_scc1 K2_RET_{L}\ns_branch K2_RETD_{L}"


def rare_path(k, x, buf):
    E = k.emit
    t = vT
    L = f"{x}_{buf}"
    E(f"K2_RARE_{L}:")
    E(f"s_mov_b32 s{sTH[x]}, {fbits(THRESH)}")
    E(f"v_mov_b32 v{t}, v{vM}\ns_nop 1\nv_permlane32_swap_b32 v{vM}, v{t}\ns_nop 1")
    E(f"v_max_f32 v{t}, v{t}, v{vM}\nv_ceil_f32 v{t}, v{t}\nv_max_f32 v{t}, s{sLO[x]}, v{t}")
    E(f"v_sub_f32 v{vNM[x]}, v{vNM[x]}, v{t}")
    for r in range(16):
        E(f"v_sub_f32 v{S[x] + r}, v{S[x] + r}, v{t}")
        E(f"v_mov_b32 v{NEGM[x] + r}, v{vNM[x]}")
    E(f"s_cmp_eq_u32 s{sLO[x]}, 0\ns_cbranch_scc1 K2_RSC_{L}")
    E(f"v_add_f32 v{vLSV[x]}, v{vLs[x][0]}, v{vLs[x][1]}\nv_mov_b32 v{vLs[x][0]}, 0\nv_mov_b32 v{vLs[x][1]}, 0")
    E(f"s_mov_b32 s{sLO[x]}, 0", rare_ret(L))
    E(f"K2_RSC_{L}:")
    E(f"v_sub_f32 v{t + 1}, 0, v{t}\nv_exp_f32 v{t + 1}, v{t + 1}\ns_nop 0")
    E(f"v_mul_f32 v{vLs[x][0]}, v{vLs[x][0]}, v{t + 1}\nv_mul_f32 v{vLs[x][1]}, v{vLs[x][1]}, v{t + 1}")
    for i in range(8):
        p = P(1 - buf, x, i)
        E(f"v_lshlrev_b32 v{t + 2}, 16, v{p}\nv_and_b32 v{t + 3}, 0xffff0000, v{p}")
        E(f"v_mul_f32 v{t + 2}, v{t + 2}, v{t + 1}\nv_mul_f32 v{t + 3}, v{t + 3}, v{t + 1}")
        E(f"v_cvt_pk_bf16_f32 v{p}, v{t + 2}, v{t + 3}")
    E("s_nop 15")
    for r in range(0, 64, 4):
        for i in range(4):
            E(f"v_accvgpr_read_b32 v{t + 2 + i}, a{aO + x * 64 + r + i}")
        for i in range(4):
            E(f"v_mul_f32 v{t + 2 + i}, v{t + 2 + i}, v{t + 1}")
        for i in range(4):
            E(f"v_accvgpr_write_b32 a{aO + x * 64 + r + i}, v{t + 2 + i}")
    E(rare_ret(L))


def ctx_addr(sqb_expr, x_in_addr):
    pass


def hooks(k):
    E = k.emit
    E("K2_EVENT:")
    E(f"s_mov_b32 s{sDG}, 0\ns_cmp_lg_u32 s{sU}, s{sSW}\ns_cbranch_scc1 K2_EV2")
    E(f"s_cmp_eq_u32 s{sG}, 0\ns_cbranch_scc1 K2_SW0")
    for r in range(64):
        E(f"v_accvgpr_write_b32 a{aQ + r}, v{QBS + r}")
    for r in range(32):
        E(f"v_mov_b32 v{NEGM[0] + r}, 0")
    E(f"v_mov_b32 v{vNM[0]}, 0\nv_mov_b32 v{vNM[1]}, 0")
    for x in range(2):
        E(f"s_mov_b32 s{sTH[x]}, {NINF}\ns_mov_b32 s{sLO[x]}, {NINF}")
    E(f"s_mov_b32 s{sTL}, 17\ns_sub_u32 s{sTD}, 15, s{sPI}\ns_lshl_b32 s{sTD}, s{sTD}, 1\ns_add_u32 s{sTD}, s{sTD}, s{sRS}")
    E("s_branch K2_EV2")
    E("K2_SW0:")
    E(f"v_and_b32 v{vPL}, 31, v0\nbuffer_load_ubyte v{vPL + 1}, v{vPL}, {s(SD, 4)}, s{sFL} offen sc0 sc1")
    E("K2_EV2:")
    E(f"s_cmp_lt_u32 s{sTL}, s{sTD}\ns_cbranch_scc0 K2_EV3")
    E(f"s_sub_u32 s{sEV}, s{sTD}, s{sTL}\ns_add_u32 s{sEV}, s{sEV}, s{sU}\ns_cmp_gt_u32 s{sSW}, s{sU}\ns_cselect_b32 s{sT}, s{sSW}, 99\ns_min_u32 s{sEV}, s{sEV}, s{sT}")
    E("s_branch K2_SWRET")
    E("K2_EV3:")
    E(f"s_add_u32 s{sEV}, s{sU}, 1\ns_cmp_eq_u32 s{sTL}, s{sTD}\ns_cbranch_scc0 K2_EVFULL")
    E(f"s_mov_b32 s{sDG}, 1\ns_branch K2_SWRETD")
    E("K2_EVFULL:")
    for r in range(32):
        E(f"v_mov_b32 v{NEGM[0] + r}, v{vNEG}")
    E(f"s_mov_b32 s{sTH[0]}, 0x7f800000\ns_mov_b32 s{sTH[1]}, 0x7f800000\ns_branch K2_SWRET")
    E("K2_FINB:")
    E(f"s_cmp_eq_u32 s{sG}, 0\ns_cbranch_scc1 K2_FB0")
    t = QBS
    E(f"s_cmp_eq_u32 s{sLO[0]}, 0\ns_cbranch_scc1 K2_FB1")
    for x in range(2):
        E(f"v_add_f32 v{vLSV[x]}, v{vLs[x][0]}, v{vLs[x][1]}\nv_mov_b32 v{vLs[x][0]}, 0\nv_mov_b32 v{vLs[x][1]}, 0\nv_sub_f32 v{vNM[x]}, 0, v{vNEG}")
    E("K2_FB1:")
    for x in range(2):
        E(f"v_mov_b32 v{t + 2 * x}, v{vLSV[x]}")
    E("s_nop 1")
    for x in range(2):
        E(f"v_permlane32_swap_b32 v{vLSV[x]}, v{t + 2 * x}")
    E("s_nop 1")
    for x in range(2):
        E(f"v_add_f32 v{t + 2 * x}, v{t + 2 * x}, v{vLSV[x]}\nv_rcp_f32 v{t + 2 * x}, v{t + 2 * x}")
    E(f"s_lshl_b32 s{sT}, s{sPI}, 2\ns_lshl_b32 s{sT2}, s{sRS}, 1\ns_add_u32 s{sT}, s{sT}, s{sT2}")
    for x in range(2):
        E(f"v_mov_b32 v{t + 2 * x + 1}, v{t + 2 * x}")
    E(f"s_mul_i32 s{sT}, s{sT}, {CTXU_STEPS}\ns_lshl_b32 s{sT2}, s{sHD}, 3\ns_add_u32 s{sT}, s{sT}, s{sT2}")
    E(f"s_lshl_b32 s{sT}, s{sT}, 10\ns_add_u32 s{sT}, s{sT}, {WS_CTXU}")
    for i in range(4):
        E(f"v_mov_b32 v{t + 4 + i}, 0")
    for x in range(2):
        for f in range(8):
            b = t + 8 + 8 * (f % 4)
            for i in range(8):
                E(f"v_accvgpr_read_b32 v{b + i}, a{aO + x * 64 + 8 * f + i}")
            if f % 2 == 1:
                E(mfma(('a', aO + x * 64 + 8 * (f - 1)), ('v', t + 4), ('v', t + 4), 0))
            for i in range(4):
                E(f"v_pk_mul_f32 {v(b + 2 * i, 2)}, {v(b + 2 * i, 2)}, {v(t + 2 * x, 2)}")
            for i in range(4):
                E(f"v_cvt_pk_bf16_f32 v{b + i}, v{b + 2 * i}, v{b + 2 * i + 1}")
            E(f"buffer_store_dwordx4 {v(b, 4)}, v{vL16}, {s(SS, 4)}, s{sT} offen offset:{1024 * (f % 4)} sc1")
            if f == 3:
                E(f"s_add_u32 s{sT}, s{sT}, 4096")
            if f == 7 and x == 0:
                E(f"s_add_u32 s{sT}, s{sT}, {CTXU_STEPS * 1024 - 4096}")
    E("s_branch K2_FBOK")
    E("K2_FB0:")
    E("s_waitcnt vmcnt(2)")
    E(f"v_cmp_ne_u32 vcc, 1, v{vPL + 1}\ns_nop 1\ns_cbranch_vccz K2_FBOK")
    E(f"K2_FBLP:\ns_sleep 2\nbuffer_load_ubyte v{vPL + 1}, v{vPL}, {s(SD, 4)}, s{sFL} offen sc0 sc1\ns_waitcnt vmcnt(0)")
    E(f"v_cmp_ne_u32 vcc, 1, v{vPL + 1}\ns_nop 1\ns_cbranch_vccnz K2_FBLP")
    E(f"K2_FBOK:\ns_cmp_eq_u32 s{sDG}, 0\ns_cbranch_scc1 K2_FBRET\ns_branch K2_FBRETD")


QACC = 48
aXN = 0
aWF = 192


def wq_dma(j):
    out = []
    for i in range(4):
        g = []
        if i == 0:
            g += [I(f"s_add_u32 m0, s{sWM}, {j * 16384}"), I(f"s_add_u32 s{sDO}, s{sWQ}, {j * 64 * 8192}")]
        g.append(VM(f"buffer_load_dwordx4 v{vQD + i}, {s(SQ, 4)}, s{sDO} offen offset:{1024 * i} lds", f"wq{j}"))
        out.append(g)
    return out


def xn_loads(j):
    out = []
    for x in range(2):
        for cs in range(4):
            g = []
            if cs == 0:
                g.append(I(f"s_add_u32 s{sDO}, s{sXN}, {x * 32768 + j * 4096}"))
            g.append(VM(f"buffer_load_dwordx4 {a(aXN + (j % 4) * 32 + (x * 4 + cs) * 4, 4)}, v{vL16}, {s(SS, 4)}, "
                        f"s{sDO} offen offset:{1024 * cs}", f"xn{j}"))
            out.append(g)
    return out


def znorm():
    ld = [[I(x) for x in (f"s_lshr_b32 s{sGM}, s2, 3", f"s_and_b32 s{sGP}, s2, 7", f"s_lshl_b32 s{sT}, s{sGM}, 1", f"s_add_u32 s{sT}, s{sT}, s{sG}",
                          f"s_lshl_b32 s{sT}, s{sT}, 11", f"s_add_u32 s{sT}, s{sT}, {WS_STAT}", f"v_lshlrev_b32 v{ZT}, 2, v0")]]
    for i in range(0, 8, 2):
        ld.append([VM(f"buffer_load_dword v{ZT + 4 + i + e}, v{ZT}, {s(SS, 4)}, s{sT} offen offset:{256 * (i + e)}", "zn") for e in range(2)])
    ld.append([I(x) for x in (f"s_mul_i32 s{sGZ}, s{sGP}, 384", f"s_lshl_b32 s{sT}, s{sGM}, 2", f"s_add_u32 s{sGZ}, s{sGZ}, s{sT}",
                              f"s_add_u32 s{sGZ}, s{sGZ}, s{sW}", f"s_lshl_b32 s{sGZ}, s{sGZ}, 10")])
    for f in range(3):
        ld.append([I(f"s_add_u32 s{sT}, s{sGZ}, {WS_Z2R + f * 128 * 1024}"),
                   VM(f"buffer_load_dwordx4 {v(ZT + 12 + 4 * f, 4)}, v{vL16}, {s(SS, 4)}, s{sT} offen", "zn")])
    z = ZT + 4
    AB = ZT + 24
    c = [WVM("zn")]
    c += flat([f"v_add_f32 v{z}, v{z}, v{z + 1}\nv_add_f32 v{z + 2}, v{z + 2}, v{z + 3}\nv_add_f32 v{z + 4}, v{z + 4}, v{z + 5}\nv_add_f32 v{z + 6}, v{z + 6}, v{z + 7}",
               f"v_add_f32 v{z}, v{z}, v{z + 2}\nv_add_f32 v{z + 4}, v{z + 4}, v{z + 6}\nv_add_f32 v{z}, v{z}, v{z + 4}",
               f"v_mul_f32 v{z}, {fbits(1 / 688)}, v{z}\nv_mov_b32 v{z + 1}, v{z}\ns_nop 1\nv_permlane32_swap_b32 v{z}, v{z + 1}\ns_nop 1",
               f"v_fma_f32 v{z + 1}, -v{z}, v{z}, v{z + 1}\nv_max_f32 v{z + 1}, 0, v{z + 1}\nv_add_f32 v{z + 1}, {fbits(LN_EPS)}, v{z + 1}\nv_rsq_f32 v{z + 1}, v{z + 1}\ns_nop 0",
               f"v_mul_f32 v{z}, v{z}, v{z + 1}\nv_sub_f32 v{z}, 0, v{z}",
               f"s_lshl_b32 s{sT}, s{sW}, 8\ns_add_u32 s{sT}, s{sT}, {SPARE}",
               f"v_lshlrev_b32 v{z + 2}, 2, v20\nv_add_u32 v{z + 2}, s{sT}, v{z + 2}"])
    c += [LG(f"ds_write_b32 v{z + 2}, v{z + 1}", "zw"), LG(f"ds_write_b32 v{z + 2}, v{z} offset:128", "zw")]
    c += flat([f"s_lshl_b32 s{sT2}, s{sRS}, 6\ns_add_u32 s{sT}, s{sT}, s{sT2}\nv_lshlrev_b32 v{z + 3}, 5, v21\nv_add_u32 v{z + 3}, s{sT}, v{z + 3}"])
    for i in range(2):
        c += [LG(f"ds_read_b128 {v(AB + 4 * i, 4)}, v{z + 3} offset:{16 * i}", "zr"),
              LG(f"ds_read_b128 {v(AB + 8 + 4 * i, 4)}, v{z + 3} offset:{128 + 16 * i}", "zr")]
    c += flat([f"s_lshl_b32 s{sGP}, s{sGP}, 5\ns_add_u32 s{sGP}, s{sGP}, s{sGM}\ns_nop 0\ns_nop 0"])
    c += [WLG("zr")]
    for f in range(3):
        for i in range(4):
            x_ = ZT + 12 + 4 * f + i
            c += flat([f"v_lshlrev_b32 v{z}, 16, v{x_}\nv_and_b32 v{z + 1}, 0xffff0000, v{x_}",
                       f"v_fma_f32 v{z}, v{z}, v{AB + 2 * i}, v{AB + 8 + 2 * i}\nv_fma_f32 v{z + 1}, v{z + 1}, v{AB + 2 * i + 1}, v{AB + 9 + 2 * i}",
                       f"v_cvt_pk_bf16_f32 v{x_}, v{z}, v{z + 1}"])
        c += [I(f"s_add_u32 s{sT}, s{sGZ}, {WS_Z2N + f * 128 * 1024}"),
              VM(f"buffer_store_dwordx4 {v(ZT + 12 + 4 * f, 4)}, v{vL16}, {s(SS, 4)}, s{sT} offen sc1", "zs")]
    cg = [c[i:i + 4] for i in range(0, len(c), 4)]
    return ld, cg


def qproj(k):
    E = k.emit
    extra = {}

    def spread(c0, c1, groups):
        n = len(groups)
        for i, g in enumerate(groups):
            extra.setdefault(c0 + (i * (c1 - c0)) // n, []).append(g)

    def rd(c, fb):
        j, cs = c // 4, c % 4
        return [LG(f"ds_read_b64_tr_b16 {a(fb + 4 * d + 2 * sec, 2)}, v{vQR + (j // 4) * 4 + d} "
                   f"offset:{(j % 4) * 16384 + cs * 4096 + sec * 1024}", f"q{c}") for d in range(4) for sec in range(2)]

    def fbuf(c):
        return aWF + (c % 4) * 16

    def mf1(c, d, x):
        j, cs = c // 4, c % 4
        return mfma(('v', QACC + (x * 4 + d) * 16), ('a', fbuf(c) + 4 * d), ('a', aXN + (j % 4) * 32 + (x * 4 + cs) * 4),
                    0 if c == 0 else None)

    zl, zc = znorm()

    def kvpre(base, pre, so, so2, tag="kv"):
        d1, d2 = dma4(so, tag), dma4(so2, tag)
        return [[I(f"s_add_u32 m0, s{sW8}, {base}")] + [I(x) for x in pre] + [d1[0]]] + [[d] for d in d1[1:]] + \
               [[I(f"s_add_u32 m0, s{sW8}, {base + 4096}"), I("s_nop 0"), d2[0]]] + [[d] for d in d2[1:]]

    k0 = kvpre(0, [f"s_add_u32 s{sKO2}, s{sKN}, 4096"], sKN, sKO2, "k0")
    k1 = kvpre(32768, [f"s_add_u32 s{sVO}, s{sKN}, {WS_VF - WS_KF}", f"s_add_u32 s{sVO2}, s{sVO}, 4096",
                       f"s_add_u32 s{sKN}, s{sKN}, 0x4000", f"s_add_u32 s{sKO2}, s{sKN}, 4096"], sKN, sKO2)
    v0_ = kvpre(VB0, ["s_nop 0"], sVO, sVO2)
    q = []
    for e, grp in ((0, wq_dma(2) + xn_loads(2) + wq_dma(3) + xn_loads(3) + wq_dma(4)), (4, xn_loads(4)), (0, wq_dma(5)), (8, xn_loads(5)),
                   (0, wq_dma(6) + zl), (12, xn_loads(6)), (0, wq_dma(7)), (16, xn_loads(7)), (6, k0), (14, k1)):
        q += [(e, g) for g in grp]
    RATE = 4
    c_ = 0
    n_ = 0
    for e, g in q:
        if e > c_:
            c_, n_ = e, 0
        extra.setdefault(c_, []).append(g)
        n_ += 1
        if n_ == RATE:
            c_, n_ = c_ + 1, 0
    assert c_ <= 27, c_
    valu = {}
    for i, g in enumerate(zc):
        valu.setdefault(19 + (i * 8) // len(zc), []).append(g)

    E(WVM("wq0"), "s_barrier")
    stamp(k, 6)
    E(rd(0, fbuf(0)), rd(1, fbuf(1)))
    for c in range(28):
        j, cs = c // 4, c % 4
        n = c + 2
        if n % 4 == 0:
            lstamp(k, 19, 3 * (n // 4))
            E(WLG(f"q{n - 1}"), WVM(f"wq{n // 4}"))
            lstamp(k, 19, 3 * (n // 4) + 1)
            E("s_barrier")
        E(WLG(f"q{c}"))
        if cs == 0:
            E(WVM(f"xn{j}"))
            lstamp(k, 19, 3 * j + 2)
        r_ = rd(n, fbuf(n))
        ex, va = extra.get(c, []), valu.get(c, [])
        gm_ = {}
        for i in range(8):
            gm_[i] = [r_[i]] + ([ex[i // 2]] if (i % 2 == 0 and i // 2 < len(ex)) else []) + [va[z] for z in range(len(va)) if (z * 8) // len(va) == i]
        E(place([mf1(c, d, x) for d in range(4) for x in range(2)], gm_))
    E(rd(30, fbuf(30)), rd(31, fbuf(31)))
    E(f"v_mov_b32 v{vT}, {fbits(QSCALE)}\nv_mov_b32 v{vT + 1}, {fbits(QSCALE)}")
    E(f"v_add_u32 v{vT + 2}, s{sW8}, v{vL16}\nv_add_u32 v{vT + 3}, {SPARE}, v{vT + 2}\nv_add_u32 v{vT + 2}, {VB0 + 32768}, v{vT + 2}")
    E(WVM("xn7"), WLG0, "s_barrier")

    def epi(d, x):
        out = []
        for g in range(2):
            b = QACC + (x * 4 + d) * 16 + 8 * g
            out.append([I(f"v_mul_f32 v{b + i}, v{vT}, v{b + i}") for i in range(8)])
            out.append([I(f"v_cvt_pk_bf16_f32 v{b + i}, v{b + 2 * i}, v{b + 2 * i + 1}") for i in range(4)] +
                       [LG(f"ds_write_b128 v{vT + 3 - x}, {v(b, 4)} offset:{(2 * d + g) * 1024}")])
        return out

    tiles = [(d, x) for x in range(2) for d in range(4)]
    for i, (d, x) in enumerate(tiles):
        m = [mf1(c, d, x) for c in range(28, 32)]
        if i == 0:
            E(m[0], v0_[0], m[1:])
        else:
            e = epi(*tiles[i - 1])
            E(m[0], v0_[i], m[1], e[0], e[1], m[2], e[2], m[3], e[3])
    stamp(k, 7)
    E("s_nop 15")
    E(epi(*tiles[-1]))
    E(WVM("k0"), WVM("zs"), WLG0, "s_barrier")
    E(flag_set(sW, SD, sGP, ZT))
    E(VM(f"buffer_load_dwordx4 {v(ZT + 40, 4)}, v{vL16}, {s(SP, 4)}, s{sPF} offen", "pf"), f"s_add_u32 s{sPF}, s{sPF}, 0x100000")
    E(f"s_lshl_b32 s{sT}, s{sRS}, 13\nv_add_u32 v{vT + 4}, s{sT}, v{vL16}")
    E(f"v_add_u32 v{vT + 5}, {SPARE}, v{vT + 4}\nv_add_u32 v{vT + 4}, {VB0 + 32768}, v{vT + 4}")
    E(kreads(vKc, 0))
    for x in range(2):
        for f in range(8):
            E(LG(f"ds_read_b128 {a(aQ + (x * 8 + f) * 4, 4)}, v{vT + 3 - x} offset:{f * 1024}"))
    for x in range(2):
        for f in range(8):
            E(LG(f"ds_read_b128 {v(QBS + (x * 8 + f) * 4, 4)}, v{vT + 5 - x} offset:{f * 1024}"))


ZRING = (('v', 144), ('v', 192), ('a', 128), ('a', 176))
vWS = 48
vPD = 32
vPR = 40
NGS = 5


def g_slot(st):
    return (0, 1, 3, 2, 4)[st % NGS] * 32768


def zreg(st, i):
    kind, base = ZRING[st % 4]
    return (kind, base + i * 4)


def sprinkle(items, groups):
    items = flat(items)
    n, m = len(items), len(groups)
    out, gi = [], 0
    for i, it in enumerate(items):
        while gi < m and gi * n <= i * m:
            out.append(groups[gi])
            gi += 1
        out.append(it)
    return flat(out + groups[gi:])


def g_dma(st):
    out = []
    for i in range(8):
        g = []
        if i % 4 == 0:
            g += [I(f"s_add_u32 m0, s{sW8}, {g_slot(st) + (i // 4) * 4096}"), I(f"s_add_u32 s{sDO}, s{sGP}, {st * 128}")]
        g.append(VM(f"buffer_load_dwordx4 v{vPD + i}, {s(SP, 4)}, s{sDO} offen offset:{1024 * (i % 4)} lds", f"g{st}"))
        out.append(g)
    return out


def g_zl(st):
    out = []
    for f in range(3):
        for ks in range(4):
            g = []
            if ks == 0:
                g.append(I(f"s_add_u32 s{sGM}, s{sGZ}, {f * 128 * 1024 + st * 4096}"))
            g.append(VM(f"buffer_load_dwordx4 {R(zreg(st, f * 4 + ks), 4)}, v{vL16}, {s(SS, 4)}, "
                        f"s{sGM} offen offset:{1024 * ks} sc1", f"g{st}"))
            out.append(g)
    return out


def g_setup():
    o = [f"v_lshrrev_b32 v{ZT + 32}, 4, v0\nv_lshrrev_b32 v{ZT + 33}, 3, v0\nv_lshlrev_b32 v{ZT + 33}, 12, v{ZT + 33}\nv_and_b32 v{ZT + 34}, 7, v0\nv_xor_b32 v{ZT + 34}, v{ZT + 34}, v{ZT + 32}",
         f"v_lshl_add_u32 v{ZT + 35}, v{ZT + 34}, 4, v{ZT + 33}\nv_xor_b32 v{ZT + 34}, 4, v{ZT + 34}\nv_lshl_add_u32 v{ZT + 36}, v{ZT + 34}, 4, v{ZT + 33}"]
    for i in range(8):
        o.append(f"v_add_u32 v{vPD + i}, {i * 8 * 4096 - (i % 4) * 1024}, v{ZT + 35 + (i % 2)}")
    o.append(f"v_lshrrev_b32 v{ZT + 32}, 5, v0\nv_bfe_u32 v{ZT + 33}, v0, 1, 3\nv_xor_b32 v{ZT + 33}, v{ZT + 33}, v{ZT + 32}")
    o.append(f"v_and_b32 v{ZT + 34}, 31, v0\nv_lshlrev_b32 v{ZT + 34}, 7, v{ZT + 34}\nv_add_u32 v{ZT + 34}, s{sW8}, v{ZT + 34}")
    for ks in range(4):
        o.append(f"v_xor_b32 v{ZT + 35}, {2 * ks}, v{ZT + 33}\nv_lshl_add_u32 v{vPR + ks}, v{ZT + 35}, 4, v{ZT + 34}\nv_add_u32 v{vPR + 4 + ks}, 0x10000, v{vPR + ks}")
    o.append(f"s_lshl_b32 s{sGP}, s{sHD}, 18\ns_lshl_b32 s{sDO}, s{sW}, 10\ns_add_u32 s{sGP}, s{sGP}, s{sDO}")
    o.append(f"s_mul_i32 s{sGZ}, s{sPI}, 384\ns_lshl_b32 s{sGM}, s{sW}, 5\ns_add_u32 s{sGZ}, s{sGZ}, s{sGM}")
    o.append(f"s_lshl_b32 s{sGZ}, s{sGZ}, 10\ns_add_u32 s{sGZ}, s{sGZ}, {WS_Z2N}")
    return o


def merge(k, keep):
    E = k.emit
    send = 1 - keep
    t = vT
    wr = [LG(f"ds_write_b128 v{t + 4 + i // 8}, {a(aO + send * 64 + 4 * i, 4)} offset:{(i % 8) * 1024}") for i in range(16)]
    E(LG(f"ds_read_b64 {v(t + 8, 2)}, v{t + 4}", "mb"))
    d0, d1 = g_dma(0), g_dma(1)
    E(weave(pv(send, 1), d0, 0, 8))
    E(WLG("mb"))
    fac = [f"v_min_f32 v{t}, v{vNM[keep]}, v{t + 8}", f"v_sub_f32 v{t + 2}, v{t}, v{vNM[keep]}", f"v_sub_f32 v{t + 8}, v{t}, v{t + 8}",
           f"v_exp_f32 v{t + 2}, v{t + 2}", f"v_exp_f32 v{t + 8}, v{t + 8}", "s_nop 0",
           f"v_mul_f32 v{t}, v{vLs[keep][0]}, v{t + 2}", f"v_fmac_f32 v{t}, v{t + 9}, v{t + 8}", f"v_rcp_f32 v{t}, v{t}", "s_nop 0",
           f"v_mul_f32 v{t + 2}, v{t + 2}, v{t}", f"v_mul_f32 v{t + 8}, v{t + 8}, v{t}", f"v_mov_b32 v{t + 3}, v{t + 2}", f"v_mov_b32 v{t + 9}, v{t + 8}"]
    m = pv(keep, 1)
    E(m[0], d1[0], fac[:6], m[1], d1[1], fac[6:], weave(m[2:], interleave2(wr, d1[2:]), 0, 6))
    E(WLG0, "s_barrier")
    RX = S[0]
    for i in range(16):
        E(LG(f"ds_read_b128 {v(RX + 4 * i, 4)}, v{t + 6 + i // 8} offset:{(i % 8) * 1024}", f"rx{i}"))
    body = []
    for f in range(8):
        b = RX + 8 * f
        body += [I(f"v_accvgpr_read_b32 v{PB + i}, a{aO + keep * 64 + 8 * f + i}") for i in range(8)]
        body += [WLG(f"rx{2 * f + 1}")]
        body += [I(f"v_pk_mul_f32 {v(b + 2 * i, 2)}, {v(b + 2 * i, 2)}, {v(t + 8, 2)}") for i in range(4)]
        body += [I(f"v_pk_fma_f32 {v(b + 2 * i, 2)}, {v(PB + 2 * i, 2)}, {v(t + 2, 2)}, {v(b + 2 * i, 2)}") for i in range(4)]
        body += [I(f"v_cvt_pk_bf16_f32 v{PB + 8 + 4 * (f % 4) + i}, v{b + 2 * i}, v{b + 2 * i + 1}") for i in range(4)]
        body += [VM(f"buffer_store_dwordx4 {v(PB + 8 + 4 * (f % 4), 4)}, v{vL16}, {s(SS, 4)}, s{sT if f < 4 else sT2} offen offset:{1024 * (f % 4)} sc1", "cs")]
    E(sprinkle(body, g_zl(1)))


def interleave2(x, y):
    out = []
    n = max(len(x), len(y))
    for i in range(n):
        out += x[(i * len(x)) // n:((i + 1) * len(x)) // n] + y[(i * len(y)) // n:((i + 1) * len(y)) // n]
    return out


def gphase(k):
    E = k.emit

    def reads(st):
        o = g_slot(st)
        sg, off = (0, o) if o < 65536 else (1, o - 65536)
        out = []
        for ks in range(4):
            for ts in range(2):
                if off + ts * 4096 < 65536:
                    out.append(LG(f"ds_read_b128 {v(vWS + (st % 2) * 32 + (ts * 4 + ks) * 4, 4)}, v{vPR + sg * 4 + ks} "
                                  f"offset:{off + ts * 4096}", f"p{st}"))
                else:
                    out.append(LG(f"ds_read_b128 {v(vWS + (st % 2) * 32 + (ts * 4 + ks) * 4, 4)}, v{ZT + 40 + ks} "
                                  f"offset:{off - 65536 + ts * 4096}", f"p{st}"))
        return out

    def mf(st):
        return [mfma(('a', (ts * 3 + f) * 16), zreg(st, f * 4 + ks),
                     ('v', vWS + (st % 2) * 32 + (ts * 4 + ks) * 4), 0 if (st == 0 and ks == 0) else None)
                for ks in range(4) for f in range(3) for ts in range(2)]

    for ks in range(4):
        E(f"v_add_u32 v{ZT + 40 + ks}, 0x20000, v{vPR + ks}")
    E(f"s_load_dwordx2 s[64:65], s[0:1], {KA_WO}\ns_load_dwordx2 s[66:67], s[0:1], {KA_WOUT}", WLG0)
    E("s_barrier")
    E(WVM("g0"))
    stamp(k, 10)
    E(reads(0))
    sched = {st: g_dma(st + 2) + g_zl(st + 2) for st in range(6)}
    for st in range(8):
        E(WLG(f"p{st}"))
        ld = sched.get(st, [])
        m = mf(st)
        n1 = (len(ld) * 14) // 24
        first = weave(m[:14], ld[:n1], 0, 14)
        second = ([WVM(f"g{st + 1}")] + weave(m[14:], interleave2(reads(st + 1), ld[n1:]), 0, 9)) if st + 1 < 8 else m[14:]
        if st == 6:
            fin = flat([f"s_lshl_b32 s{sT}, s{sHD}, 1\ns_add_u32 s{sT}, s{sT}, s{sG}",
                        f"s_mul_i32 s{sT2}, s{sPI}, 6\ns_mul_i32 s{sGP}, s{sRS}, 3\ns_add_u32 s{sT2}, s{sT2}, s{sGP}",
                        f"s_mul_i32 s{sGP}, s{sT}, 48\ns_add_u32 s{sGP}, s{sGP}, s{sT2}\ns_lshl_b32 s{sGP}, s{sGP}, 10\ns_add_u32 s{sGP}, s{sGP}, {WS_Z1}",
                        f"s_mul_i32 s{sGZ}, s{sT}, {CTXU_STEPS}\ns_add_u32 s{sGZ}, s{sGZ}, s{sT2}\ns_add_u32 s{sGZ}, s{sGZ}, 256",
                        f"s_lshl_b32 s{sGZ}, s{sGZ}, 10\ns_add_u32 s{sGZ}, s{sGZ}, {WS_CTXU}",
                        f"s_lshl_b32 s{sT}, s{sT}, 6\nv_and_b32 v21, 31, v0\nv_lshlrev_b32 v21, 1, v21"])
            fin += [VM(f"buffer_load_dwordx4 {v(4 + 4 * i, 4)}, v{vL16}, {s(SS, 4)}, s{sGP} offen offset:{1024 * i}", "fin") for i in range(3)]
            fin += [VM(f"buffer_load_ushort v16, v21, {s(SB, 4)}, s{sT} offen", "fin")]
            fin += flat([f"s_lshl_b32 s{sPF}, s2, 5\ns_add_u32 s{sPF}, s{sPF}, {WS_FLAG3}\nv_mov_b32 v17, 0\nv_and_b32 v18, 7, v0\nv_lshlrev_b32 v18, 2, v18"])
            fin += [VM(f"buffer_store_dword v17, v18, {s(SS, 4)}, s{sPF} offen", "pf")]
            fin += flat([f"s_mov_b32 s{SQ}, s64\ns_mov_b32 s{SQ + 1}, s65\ns_mov_b32 s{SP}, s66\ns_mov_b32 s{SP + 1}, s67\ns_mov_b32 s{SP + 2}, {688 * 1024:#x}",
                         f"s_lshl_b32 s{sPF}, s2, 2\ns_add_u32 s{sPF}, s{sPF}, s{sW}\ns_lshl_b32 s{sT}, s{sPF}, 12\ns_lshl_b32 s{sPF}, s{sPF}, 10"])
            fin += [VM(f"buffer_load_dwordx4 {v(ZT + 32, 4)}, v{vL16}, {s(SQ, 4)}, s{sT} offen offset:{1024 * i}", "pf") for i in range(4)]
            fin += [VM(f"buffer_load_dwordx4 {v(ZT + 32, 4)}, v{vL16}, {s(SP, 4)}, s{sPF} offen", "pf")]
            fin += flat([f"s_mul_i32 s{sT}, s{sW}, 24576\nv_add_u32 v20, s{sT}, v{vL16}",
                         f"s_mul_i32 s{sT}, s{sW}, 6144\nv_add_u32 v21, s{sT}, v{vL16}\nv_add_u32 v22, 49152, v21"])
            first = weave(m[:14], [fin[i:i + 3] for i in range(0, len(fin), 3)], 0, 14)
        lstamp(k, 19, 32 + 3 * st)
        E(first)
        lstamp(k, 19, 33 + 3 * st)
        E(second[:1])
        lstamp(k, 19, 34 + 3 * st)
        E(second[1:])
    stamp(k, 11)
    E("s_barrier\ns_nop 7")
    for ts in range(2):
        for f in range(3):
            for q in range(4):
                E(LG(f"ds_write_b128 v20, {a((ts * 3 + f) * 16 + 4 * q, 4)} offset:{((ts * 6 + f * 2) * 2 + q) * 1024}"))
    E(WLG0, "s_barrier")
    for i in range(3):
        for w in range(4):
            for q in range(2):
                E(LG(f"ds_read_b128 {v(48 + i * 32 + w * 8 + q * 4, 4)}, v{21 + w // 2} "
                     f"offset:{(w % 2) * 24576 + i * 2048 + q * 1024}", f"x{i}"))
    E(WVM("fin"), "v_lshlrev_b32 v16, 16, v16")
    for i in range(3):
        E(WLG(f"x{i}"))
        b = 48 + i * 32
        for r in range(8):
            E(f"v_add_f32 v{b + r}, v{b + r}, v{b + 8 + r}\nv_add_f32 v{b + 16 + r}, v{b + 16 + r}, v{b + 24 + r}")
        for r in range(8):
            E(f"v_add_f32 v{b + r}, v{b + r}, v16")
        for r in range(8):
            E(f"v_add_f32 v{b + r}, v{b + r}, v{b + 16 + r}")
        for r in range(4):
            z = 4 + 4 * i + r
            E(f"v_lshlrev_b32 v24, 16, v{z}\nv_and_b32 v25, 0xffff0000, v{z}")
            E(f"v_mul_f32 v{b + 2 * r}, v{b + 2 * r}, v24\nv_mul_f32 v{b + 2 * r + 1}, v{b + 2 * r + 1}, v25")
        for r in range(4):
            E(f"v_cvt_pk_bf16_f32 v{b + r}, v{b + 2 * r}, v{b + 2 * r + 1}")
        E(VM(f"buffer_store_dwordx4 {v(b, 4)}, v{vL16}, {s(SS, 4)}, s{sGZ} offen offset:{1024 * i} sc1"))


def build():
    k = Kern("k2_kernel")
    E = k.emit
    E("s_cmp_ge_u32 s2, 256\ns_cbranch_scc1 K2_END")
    code_prefetch(k, "k3_kernel", 0, 248)
    stamp_init(k)
    stamp(k, 0)
    E(f"s_load_dwordx2 s[64:65], s[0:1], {KA_WQ}")
    E(f"s_load_dwordx4 s[72:75], s[0:1], {KA_DBG}")
    E(f"s_load_dwordx4 s[68:71], s[0:1], {KA_WSP}")
    E("v_lshrrev_b32 v1, 6, v0\nv_and_b32 v0, 63, v0")
    E(f"s_and_b32 s{sHD}, s2, 7\ns_lshl_b32 s{sHD}, s{sHD}, 2\ns_lshr_b32 s{sT}, s2, 3\ns_lshr_b32 s{sPI}, s{sT}, 2")
    E(f"v_readfirstlane_b32 s{sW}, v1")
    E(f"s_and_b32 s{sT}, s{sT}, 3\ns_add_u32 s{sHD}, s{sHD}, s{sT}")
    E(f"s_and_b32 s{sRS}, s{sW}, 1\ns_lshr_b32 s{sG}, s{sW}, 1\ns_lshl_b32 s{sW8}, s{sW}, 13")
    E(f"v_lshlrev_b32 v{vL16}, 4, v0")
    E("v_and_b32 v20, 31, v0\nv_lshrrev_b32 v21, 5, v0\nv_lshrrev_b32 v22, 4, v0")
    E("v_bfe_u32 v23, v0, 2, 2\nv_and_b32 v24, 3, v0\nv_bfe_u32 v25, v0, 4, 1")
    E("v_xor_b32 v26, v23, v22\nv_lshlrev_b32 v27, 13, v22\nv_lshl_add_u32 v27, v26, 6, v27\nv_lshl_add_u32 v27, v24, 4, v27")
    for i in range(4):
        E(f"v_add_u32 v{vQD + i}, {i * (32768 - 1024)}, v27")
    E(f"s_sub_u32 s{sT}, 15, s{sPI}\ns_cmp_eq_u32 s{sG}, 0\ns_cselect_b32 s{sT}, s{sT}, s{sPI}")
    E(f"s_lshl_b32 s{sTD}, s{sT}, 1\ns_add_u32 s{sTD}, s{sTD}, s{sRS}\ns_lshl_b32 s{sXN}, s{sTD}, 16\ns_add_u32 s{sXN}, s{sXN}, {WS_XN}")
    E(f"s_lshl_b32 s{sWQ}, s{sW}, 17\ns_lshl_b32 s{sT}, s{sHD}, 8\ns_add_u32 s{sWQ}, s{sWQ}, s{sT}\ns_lshl_b32 s{sWM}, s{sW}, 12")
    E("s_waitcnt lgkmcnt(0)")
    E(srd(SQ, 64, 512 * 8192), srd(SS, 74, WS_SIZE))
    for j in range(2):
        E(wq_dma(j), xn_loads(j))
    E(srd(SP, 68, 2048 * 4096), srd(SB, 70, 4096), srd(SD, 72, 256))
    E("v_lshl_add_u32 v26, v21, 3, v23\nv_lshlrev_b32 v26, 8, v26\nv_lshl_add_u32 v26, v25, 5, v26\nv_lshl_add_u32 v26, v24, 3, v26")
    for d in range(4):
        E(f"v_xor_b32 v27, {d}, v23\nv_lshl_add_u32 v{vQR + d}, v27, 6, v26\nv_add_u32 v{vQR + 4 + d}, 0x10000, v{vQR + d}")
    E(f"s_lshl_b32 s{sT}, s{sG}, 14\nv_add_u32 v{vKc}, s{sT}, v{vL16}\nv_add_u32 v{vKn}, 32768, v{vKc}\nv_add_u32 v{vVc}, {VB0}, v{vKc}\nv_mov_b32 v{vVp}, v{vVc}")
    E(f"v_lshlrev_b32 v26, 2, v21\nv_sub_u32 v{vD0}, v20, v26\nv_mov_b32 v{vNEG}, {fbits(NEG)}")
    E(f"s_lshl_b32 s{sKN}, s{sHD}, 19\ns_lshl_b32 s{sT}, s{sRS}, 13\ns_add_u32 s{sKN}, s{sKN}, s{sT}\ns_add_u32 s{sKN}, s{sKN}, {WS_KF}")
    E(f"s_lshl_b32 s{sT}, s{sPI}, 1\ns_add_u32 s{sT}, s{sT}, 2\ns_sub_u32 s{sT2}, 18, s{sT}\ns_lshl_b32 s{sT2}, s{sT2}, 14")
    E(f"s_cmp_eq_u32 s{sG}, 0\ns_cselect_b32 s{sSW}, 8, s{sT}\ns_cselect_b32 s{sJUMP}, 0x4000, s{sT2}\ns_sub_u32 s{sSW2}, s{sSW}, 2")
    E(f"s_lshl_b32 s{sFL}, s{sPI}, 5\ns_lshl_b32 s{sPF}, s2, 2\ns_add_u32 s{sPF}, s{sPF}, s{sW}\ns_lshl_b32 s{sPF}, s{sPF}, 10")
    stamp(k, 5)
    rstamp(k, 19, 24)
    qproj(k)
    gm, wrapped, pin = schedule_loop()
    gmd, wrapped_d, pin_d = schedule_loop(True, pin)
    assert pin == pin_d
    wtxt = [it[1] for it in flat(wrapped)]
    for r in range(16):
        E(f"v_mov_b32 v{P(1, 0) + r}, 0\nv_mov_b32 v{NEGM[0] + r}, 0\nv_mov_b32 v{NEGM[1] + r}, 0")
        late = f"v_exp_f32 v{S[1] + r}, v{S[1] + r}" in wtxt
        E(f"v_mov_b32 v{S[1] + r}, {'v%d' % vNEG if late else '0'}")
    assert not any(f"v{S[0] + r}," in w or w.endswith(f"v{S[0] + r}") for w in wtxt for r in range(16))
    for r in (8, 9, 10, 11, 12, 13):
        E(f"v_mov_b32 v{r}, 0")
    E(f"v_mov_b32 v{vT}, 0x7f800000")
    for r0 in range(0, 16, 4):
        for r in range(r0, r0 + 4):
            E(f"v_cmp_gt_i32 s[{64 + 2 * (r % 4)}:{65 + 2 * (r % 4)}], {8 * (r // 4) + r % 4}, v{vD0}\nv_mov_b32 v{NEGB + r}, v{vNEG}")
        for r in range(r0, r0 + 4):
            E(f"v_cndmask_b32 v{MSK + r}, v{vT}, v{vNEG}, s[{64 + 2 * (r % 4)}:{65 + 2 * (r % 4)}]")
    E(f"s_mov_b32 s{sEV}, 0\ns_mov_b32 s{sDG}, 0")
    for x in range(2):
        E(f"s_mov_b32 s{sTH[x]}, {NINF}\ns_mov_b32 s{sLO[x]}, {NINF}")
    for i in range(8):
        E(mfma(('a', aO + 16 * i), ('v', P(1, 0)), ('v', P(1, 0)), 0))
    E(f"s_mov_b32 s{sU}, 0\ns_mov_b32 s{sTL}, 0\ns_mov_b32 s{sMK}, s{sW8}\ns_add_u32 s{sMV}, s{sW8}, {VB0 + 32768}")
    E(WLG0)
    stamp(k, 1)
    rstamp(k, 19, 26)
    def body(gm_, diag):
        sf = "D" if diag else ""
        k.set_state(["kv"] * 16 + ["pf"], ["k"] * 8)
        main = qk(0) + qk(1) + pv(0, 1) + pv(1, 1) + qk(0, NEGB if diag else None) + qk(1) + pv(0, 0) + pv(1, 0)
        gm_[-1] = [I(f"K2_SWRET{sf}:"), WLG("k")]
        gm_[31] = gm_[31] + [I(f"s_cmp_eq_u32 s{sU}, s{sSW}"), I("s_cbranch_scc1 K2_FINB"), I(f"K2_FBRET{sf}:")]
        gm_[63] = gm_[63] + [I(f"s_cmp_lt_u32 s{sU}, 17"), I("s_cbranch_scc1 K2_LOOP")]
        E(place(main, gm_))

    E("K2_LOOP:")
    if PROF:
        E("s_memtime s[78:79]", "s_waitcnt lgkmcnt(0)", f"s_mov_b32 m0, s{sU}", "s_nop 0", "v_writelane_b32 v255, s78, m0")
    E(f"s_cmp_eq_u32 s{sU}, s{sEV}\ns_cbranch_scc1 K2_EVENT")
    body(gm, False)
    E("K2_TAIL:")
    stamp(k, 8)
    rstamp(k, 19, 28)
    if PROF:
        E(f"s_lshl_b32 s78, s2, 2\ns_add_u32 s78, s78, s{sW}\ns_lshl_b32 s78, s78, 8\ns_add_u32 s78, s78, {WS_PROF + 0x100000}\nv_lshlrev_b32 v254, 2, v0")
        E(f"buffer_store_dword v255, v254, {s(SS, 4)}, s78 offen")
    E(vreads(vVp, 1))
    gs = g_setup()
    E(gs[-2:])
    t = vT
    tl = flat(wrapped)
    for x in range(2):
        tl += flat([f"v_add_f32 v{vLs[x][0]}, v{vLs[x][0]}, v{vLs[x][1]}"])
    for x in range(2):
        tl += flat([f"v_mov_b32 v{vLs[x][1]}, v{vLs[x][0]}"])
    tl += flat([f"v_add_u32 v{t + 4}, s{sW8}, v{vL16}\nv_and_b32 v{t + 5}, 0x18000, v{vVp}"])
    for x in range(2):
        tl += flat([f"v_permlane32_swap_b32 v{vLs[x][0]}, v{vLs[x][1]}"])
    tl += flat([f"v_add_u32 v{t + 5}, v{t + 5}, v{t + 4}\nv_add_u32 v{t + 4}, {SPARE}, v{t + 4}"])
    for x in range(2):
        tl += flat([f"v_add_f32 v{vLs[x][0]}, v{vLs[x][0]}, v{vLs[x][1]}"])
    tl += [[I(f"s_cmp_eq_u32 s{sG}, 0"), I("s_cselect_b64 vcc, -1, 0")]]
    tl += flat([f"v_xor_b32 v{t + 6}, 0x4000, v{t + 4}\nv_xor_b32 v{t + 7}, 0x4000, v{t + 5}",
                f"v_cndmask_b32 v{t + 8}, v{vNM[0]}, v{vNM[1]}, vcc\nv_cndmask_b32 v{t + 9}, v{vLs[0][0]}, v{vLs[1][0]}, vcc"])
    tl += [LG(f"ds_write_b64 v{t + 6}, {v(t + 8, 2)}")]
    tl += flat(gs[:-2])
    tl += flat([f"s_sub_u32 s{sT}, 15, s{sPI}\ns_lshl_b32 s{sT}, s{sT}, 2\ns_lshl_b32 s{sT2}, s{sRS}, 1\ns_add_u32 s{sT}, s{sT}, s{sT2}\ns_add_u32 s{sT}, s{sT}, s{sG}",
                f"s_mul_i32 s{sT}, s{sT}, {CTXU_STEPS}\ns_lshl_b32 s{sT2}, s{sHD}, 3\ns_add_u32 s{sT}, s{sT}, s{sT2}",
                f"s_lshl_b32 s{sT}, s{sT}, 10\ns_add_u32 s{sT}, s{sT}, {WS_CTXU}\ns_add_u32 s{sT2}, s{sT}, 4096"])
    zz = g_zl(0)
    out_, gi = [], 0
    for i, it in enumerate(tl):
        while gi < len(zz) and gi * len(tl) <= i * len(zz):
            out_.append(zz[gi])
            gi += 1
        out_.append(it)
    E(out_, zz[gi:])
    E(WVM("pf"), WLG0, "s_barrier")
    E(f"s_cmp_eq_u32 s{sG}, 1\ns_cbranch_scc1 K2_MERGE1")
    st = (list(k.vm), list(k.lg))
    merge(k, 0)
    E("s_branch K2_G")
    k.set_state(*st)
    E("K2_MERGE1:")
    merge(k, 1)
    E("K2_G:")
    stamp(k, 3)
    gphase(k)
    if PROF:
        E(WVM0)
    stamp(k, 4)
    rstamp(k, 19, 30)
    lstamp_store(k, 1, 19, 23, SS, sW)
    if PROF:
        E(f"s_mov_b32 s95, s{sPI}")
    stamp_store(k, 1, SS, sW, 208)
    E("K2_END:")
    E("s_endpgm")
    for x in range(2):
        for buf in range(2):
            rare_path(k, x, buf)
    hooks(k)
    body(gmd, True)
    E("s_branch K2_TAIL")
    return k.text(512, 256)
```

```python
from asmlib import *
from common import *

LDS = 163840
THREADS = 256
SO, SU, SX, SOUT, SS, SD = 8, 12, 16, 20, 24, 28
sW, sT, sT2, sRBk, sCBk, sKQ, sA, sAU, sB, sBU, sW4, sQH, sMH, sP, sFL = 32, 33, 34, 35, 36, 37, 38, 39, 40, 41, 42, 43, 44, 45, 46
vL16 = 1
vBD = 2
vAR = 6
vBR = 10
FB = 32
ACC = 64
NST = 19
NSLOT = 5


def build():
    k = Kern("k3_kernel")
    E = k.emit
    E("s_cmp_ge_u32 s2, 256\ns_cbranch_scc1 K3_END")
    code_prefetch(k, "L_CODE_END", 0, 140)
    stamp_init(k)
    stamp(k, 0)
    E(f"s_load_dwordx2 s[64:65], s[0:1], {KA_WO}")
    E(f"s_load_dwordx4 s[68:71], s[0:1], {KA_WOUT}")
    E(f"s_load_dwordx4 s[72:75], s[0:1], {KA_DBG}")
    E(f"s_load_dwordx2 s[66:67], s[0:1], {KA_X}")
    E("v_lshrrev_b32 v1, 6, v0\nv_and_b32 v0, 63, v0")
    E(f"s_and_b32 s{sKQ}, s2, 3\ns_bfe_u32 s{sRBk}, s2, 0x10002\ns_lshl_b32 s{sRBk}, s{sRBk}, 3\ns_bfe_u32 s{sT}, s2, 0x30003\ns_add_u32 s{sRBk}, s{sRBk}, s{sT}")
    E(f"v_readfirstlane_b32 s{sW}, v1")
    E(f"s_lshr_b32 s{sCBk}, s2, 6")
    E(f"v_lshlrev_b32 v{vL16}, 4, v0")
    E("v_and_b32 v20, 31, v0\nv_lshrrev_b32 v21, 5, v0\nv_lshrrev_b32 v22, 4, v0\nv_bfe_u32 v23, v0, 2, 2\nv_and_b32 v24, 3, v0\nv_bfe_u32 v25, v0, 4, 1")
    E("v_xor_b32 v26, v23, v22\nv_lshlrev_b32 v27, 10, v22\nv_lshl_add_u32 v27, v26, 6, v27\nv_lshl_add_u32 v27, v24, 4, v27")
    for i in range(4):
        E(f"v_add_u32 v{vBD + i}, {i * 3072}, v27")
    E(f"s_lshl_b32 s{sW4}, s{sW}, 12\ns_and_b32 s{sQH}, s{sW}, 1\ns_lshr_b32 s{sMH}, s{sW}, 1")
    E(f"s_lshl_b32 s{sA}, s{sRBk}, 2\ns_add_u32 s{sA}, s{sA}, s{sW}\ns_mul_i32 s{sA}, s{sA}, {CTXU_STEPS}")
    E(f"s_mul_i32 s{sT}, s{sKQ}, 12\ns_add_u32 s{sAU}, s{sA}, s{sT}\ns_add_u32 s{sAU}, s{sAU}, 256\ns_lshl_b32 s{sT}, s{sKQ}, 6\ns_add_u32 s{sA}, s{sA}, s{sT}")
    E(f"s_lshl_b32 s{sA}, s{sA}, 10\ns_add_u32 s{sA}, s{sA}, {WS_CTXU}\ns_lshl_b32 s{sAU}, s{sAU}, 10\ns_add_u32 s{sAU}, s{sAU}, {WS_CTXU}")
    E(f"s_lshl_b32 s{sT}, s{sCBk}, 8\ns_lshl_b32 s{sT2}, s{sW}, 14\ns_add_u32 s{sT}, s{sT}, s{sT2}\ns_lshl_b32 s{sB}, s{sKQ}, 20\ns_add_u32 s{sB}, s{sB}, s{sT}")
    E(f"s_mul_i32 s{sBU}, s{sKQ}, {192 * 1024}\ns_add_u32 s{sBU}, s{sBU}, s{sT}")
    E("s_waitcnt lgkmcnt(0)")
    E(srd(SO, 64, 4096 * 1024), srd(SS, 74, WS_SIZE))

    def dma(st):
        out = []
        base = (st % NSLOT) * 32768
        sa, offa = (sA, st * 4096) if st < 16 else (sAU, (st - 16) * 4096)
        srd_, sb, offb = (SO, sB, st * 65536) if st < 16 else (SU, sBU, (st - 16) * 65536)
        for i in range(4):
            g = []
            if i == 0:
                g += [I(f"s_add_u32 m0, s{sW4}, {base}"), I(f"s_add_u32 s{sT}, s{sa}, {offa}")]
            g.append(VM(f"buffer_load_dwordx4 v{vL16}, {s(SS, 4)}, s{sT} offen offset:{1024 * i} lds", f"g{st}"))
            out.append(g)
        for i in range(4):
            g = []
            if i == 0:
                g += [I(f"s_add_u32 m0, s{sW4}, {base + 16384}"), I(f"s_add_u32 s{sT}, s{sb}, {offb}")]
            g.append(VM(f"buffer_load_dwordx4 v{vBD + i}, {s(srd_, 4)}, s{sT} offen offset:{1024 * i} lds", f"g{st}"))
            out.append(g)
        return out

    def reads(c):
        st, ks = c // 4, c % 4
        byte = (st % NSLOT) * 32768
        sg, off = byte // 65536, byte % 65536
        fb = FB + (c % 2) * 16
        out = [LG(f"ds_read_b128 {v(fb + 4 * qi, 4)}, v{vAR + sg} offset:{off + qi * 4096 + ks * 1024}", f"r{c}") for qi in range(2)]
        for mi in range(2):
            for sec in range(2):
                out.append(LG(f"ds_read_b64_tr_b16 {v(fb + 8 + 4 * mi + 2 * sec, 2)}, v{vBR + sg * 2 + mi} "
                              f"offset:{off + ks * 4096 + sec * 2048}", f"r{c}"))
        return out

    def mf(c):
        fb = FB + (c % 2) * 16
        return [mfma(('v', ACC + (qi * 2 + mi) * 16), ('v', fb + 8 + 4 * mi), ('v', fb + 4 * qi), 0 if c == 0 else None)
                for mi in range(2) for qi in range(2)]

    for st in range(2):
        E(dma(st))
    E(srd(SU, 68, 688 * 1024), srd(SX, 66, 2048 * 1024), srd(SOUT, 70, 2048 * 1024), srd(SD, 72, 256))
    E(f"s_lshl_b32 s{sT}, s{sQH}, 13\nv_add_u32 v{vAR}, s{sT}, v{vL16}\nv_add_u32 v{vAR + 1}, 0x10000, v{vAR}\nv_add_u32 v{vAR + 2}, 0x20000, v{vAR}")
    E("v_lshl_add_u32 v26, v21, 2, v23\nv_lshlrev_b32 v26, 8, v26\nv_lshl_add_u32 v26, v25, 5, v26\nv_lshl_add_u32 v26, v24, 3, v26\nv_add_u32 v26, 16384, v26")
    E(f"s_lshl_b32 s{sT}, s{sMH}, 1\nv_xor_b32 v27, s{sT}, v23\nv_lshl_add_u32 v{vBR}, v27, 6, v26\nv_xor_b32 v27, 1, v27\nv_lshl_add_u32 v{vBR + 1}, v27, 6, v26")
    for sg in (1, 2):
        for mi in range(2):
            E(f"v_add_u32 v{vBR + 2 * sg + mi}, {sg * 65536}, v{vBR + mi}")
    E(f"s_lshr_b32 s{sP}, s2, 2\ns_lshl_b32 s{sP}, s{sP}, 17\ns_add_u32 s{sP}, s{sP}, {WS_PART}\ns_lshr_b32 s{sFL}, s2, 2\ns_lshl_b32 s{sFL}, s{sFL}, 7\ns_add_u32 s{sFL}, s{sFL}, {WS_FLAG3}")
    E(dma(2))
    E(WVM("g0"), "s_barrier")
    stamp(k, 3)
    E(reads(0))
    pend = dma(3) + dma(4)
    NC = NST * 4
    for c in range(NC):
        E(WLG(f"r{c}"))
        if c % 4 == 3 and c + 1 < NC:
            st = c // 4
            E(WVM(f"g{st + 1}"), "s_barrier")
            if st + NSLOT < NST:
                pend = pend + dma(st + NSLOT)
        r_ = reads(c + 1) if c + 1 < NC else []
        nt = 3 if len(pend) > 8 else 2
        take, pend = pend[:nt], pend[nt:]
        fill = []
        if c == NC - 8:
            xa = flat([f"s_lshl_b32 s{sT2}, s{sRBk}, 17\ns_lshl_b32 s{sT}, s{sKQ}, 15\ns_add_u32 s{sT2}, s{sT2}, s{sT}\ns_lshl_b32 s{sT}, s{sCBk}, 8",
                       f"s_add_u32 s{sT2}, s{sT2}, s{sT}\ns_lshl_b32 s{sT}, s{sW}, 6\ns_add_u32 s{sT2}, s{sT2}, s{sT}",
                       "v_lshlrev_b32 v26, 10, v20\nv_lshl_add_u32 v27, v21, 4, v26\nv_lshl_add_u32 v26, v21, 3, v26"])
            xa += [VM(f"buffer_load_dwordx2 {v(128 + 2 * i, 2)}, v26, {s(SX, 4)}, s{sT2} offen offset:{16 * i}", "x") for i in range(4)]
            fill.append(xa)
        gm_ = {0: r_[0:2] + take[0:1], 1: r_[2:4] + take[2:3], 2: r_[4:6] + take[1:2], 3: fill}
        if len(take) == 3:
            gm_[1], gm_[2] = r_[2:4] + take[1:2], r_[4:6] + take[2:3]
        E(place(mf(c), gm_))
    stamp(k, 1)
    E("s_barrier")
    E(f"s_lshl_b32 s{sT}, s{sMH}, 13\nv_add_u32 v28, s{sT}, v{vL16}\ns_lshl_b32 s{sT}, s{sMH}, 12\nv_add_u32 v31, s{sT}, v{vL16}\ns_nop 7")
    for qi in range(2):
        E(f"s_lshl_b32 s{sA}, s{sQH}, 1\ns_add_u32 s{sA}, s{sA}, {qi}\ns_cmp_eq_u32 s{sA}, s{sKQ}\ns_cbranch_scc1 K3_OWN{qi}")
        E(f"s_lshl_b32 s{sA}, s{sA}, 2\ns_add_u32 s{sA}, s{sA}, s{sKQ}\ns_lshl_b32 s{sA}, s{sA}, 13\ns_add_u32 s{sA}, s{sA}, s{sP}")
        for mi in range(2):
            b = ACC + (qi * 2 + mi) * 16
            for r in range(8):
                E(f"v_cvt_pk_bf16_f32 v{b + r}, v{b + 2 * r}, v{b + 2 * r + 1}")
            for q in range(2):
                E(f"buffer_store_dwordx4 {v(b + 4 * q, 4)}, v31, {s(SS, 4)}, s{sA} offen offset:{mi * 2048 + 1024 * q} sc1")
        E(f"s_branch K3_SENT{qi}")
        E(f"K3_OWN{qi}:")
        for mi in range(2):
            for q in range(4):
                E(f"ds_write_b128 v28, {v(ACC + (qi * 2 + mi) * 16 + 4 * q, 4)} offset:{mi * 4096 + 1024 * q}")
        E(f"K3_SENT{qi}:")
    E(WALL0, "s_barrier")
    stamp(k, 4)
    E(f"v_add_u32 v28, s{sW4}, v{vL16}\nv_mov_b32 v29, 0")
    for q in range(4):
        E(LG(f"ds_read_b128 {v(ACC + 4 * q, 4)}, v28 offset:{1024 * q}"))
    E(f"s_cmp_lg_u32 s{sW}, 0\ns_cbranch_scc1 K3_WAITED")
    E(f"v_mov_b32 v30, 1\ns_add_u32 s{sT}, s{sFL}, s{sKQ}\ns_mov_b64 exec, 1\nbuffer_store_byte v30, v29, {s(SS, 4)}, s{sT} offen sc0 sc1\ns_mov_b64 exec, -1")
    E("K3_POLL:")
    E(f"buffer_load_dword v30, v29, {s(SS, 4)}, s{sFL} offen sc0 sc1\ns_waitcnt vmcnt(0)")
    E("v_readfirstlane_b32 s47, v30\ns_cmp_eq_u32 s47, 0x01010101\ns_cbranch_scc1 K3_WAITED\ns_sleep 1\ns_branch K3_POLL")
    E("K3_WAITED:")
    E("s_barrier")
    stamp(k, 5)
    E(f"s_lshl_b32 s{sA}, s{sKQ}, 15\ns_add_u32 s{sA}, s{sA}, s{sP}\ns_lshl_b32 s{sT}, s{sW}, 11\ns_add_u32 s{sA}, s{sA}, s{sT}")
    for j in range(1, 4):
        E(f"s_add_u32 s{sT}, s{sKQ}, {j}\ns_and_b32 s{sT}, s{sT}, 3\ns_lshl_b32 s{sT}, s{sT}, 13\ns_add_u32 s{sT}, s{sT}, s{sA}")
        for q in range(2):
            E(VM(f"buffer_load_dwordx4 {v(ACC + 16 * j + 4 * q, 4)}, v{vL16}, {s(SS, 4)}, s{sT} offen offset:{1024 * q} sc1", f"pp{j}"))
    E(WLG0)
    for j in range(4):
        src = 128 if j == 0 else ACC + 16 * j
        if j:
            E(WVM(f"pp{j}"))
        for r in range(8):
            E(f"v_lshlrev_b32 v30, 16, v{src + r}\nv_and_b32 v31, 0xffff0000, v{src + r}")
            E(f"v_add_f32 v{ACC + 2 * r}, v{ACC + 2 * r}, v30\nv_add_f32 v{ACC + 2 * r + 1}, v{ACC + 2 * r + 1}, v31")
    for r in range(8):
        E(f"v_cvt_pk_bf16_f32 v{ACC + r}, v{ACC + 2 * r}, v{ACC + 2 * r + 1}")
    E("s_nop 1")
    for g in range(2):
        b = ACC + 4 * g
        E(f"v_permlane32_swap_b32 v{b}, v{b + 2}\nv_permlane32_swap_b32 v{b + 1}, v{b + 3}")
    E("s_nop 1")
    for g in range(2):
        E(VM(f"buffer_store_dwordx4 {v(ACC + 4 * g, 4)}, v27, {s(SOUT, 4)}, s{sT2} offen offset:{32 * g}"))
    if PROF:
        E(WVM0)
    stamp(k, 2)
    stamp_store(k, 2, SS, sW, 136)
    E("K3_END:")
    E("s_endpgm")
    return k.text(160, 160)
```

```python
WS_XN = 0x0000000
WS_KF = 0x0200000
WS_VF = 0x1200000
WS_Z1 = 0x2200000
WS_Z2N = 0x2500000
WS_STAT = 0x2800000
WS_CTXU = 0x2900000
WS_SIZE = 0x10000000

CTXU_STEPS = 304

KA_X, KA_CKV, KA_WQ, KA_WUK, KA_WUV, KA_WO, KA_BX, KA_WIN, KA_WSP, KA_BSP, KA_WOUT, KA_OUT, KA_DBG, KA_WS = [
    8 * i for i in range(14)]

LOG2E = 1.4426950408889634
GELU_C0 = -2.0 * LOG2E * 0.7978845608028654
GELU_C1 = GELU_C0 * 0.044715
QSCALE = LOG2E / (128.0 ** 0.5)
LN_EPS = 1e-5
WS_Z2R = 0x4000000
WS_WP = 0x5000000
WS_PART = WS_KF
WS_FLAG3 = 0x2880000
WS_FLAG2 = 0x2890000

import os as _os
_SH = int(_os.environ.get("WSSHIFT", "0"), 0)
for _n in ("WS_XN", "WS_KF", "WS_VF", "WS_Z1", "WS_Z2N", "WS_STAT", "WS_CTXU", "WS_Z2R", "WS_WP", "WS_PART", "WS_FLAG3", "WS_FLAG2"):
    globals()[_n] += _SH
```

```python
from asmlib import *
from common import *

import os
KVST = os.environ.get("KVST", "sc1")
NOPF = os.environ.get("NOPF", "0") == "1"
EXP = os.environ.get("EXP", "")
SX, SC, SW, SI, SS, SD, SPF = 8, 12, 16, 20, 24, 28, 72
sW, sRB, sCB, sNB, sMB, sRS, sCH = 32, 33, 34, 35, 36, 37, 38
sT, sT2, sCK, sWK, sW8, sW2, sKO, sWI, sXN, sCNT, sONES, sWB, sDO = 56, 57, 58, 59, 60, 61, 62, 63, 64, 65, 66, 67, 68
sXO = 39

vCD = 1
vUD = 9
vCR = 17
vBR = 25
vL16 = 31
vF = 32
vT = 40
STG = 64
vQD, vQR, vPF = 64, 68, 76
WF = 96
ACC = (128, 192)
SLOT = 49152
UREG = (3, 4, 0, 1)


def A(ks, cs):
    return ('a', (ks * 32 + cs) * 4)


def seg_off(byte):
    return byte // 65536, byte % 65536


def a_dma(j):
    out = []
    base = (j % 3) * SLOT
    for i in range(8):
        g = []
        if i % 4 == 0:
            g += [I(f"s_add_u32 m0, s{sW8}, {base + (i // 4) * 4096}"), I(f"s_add_u32 s{sDO}, s{sCK}, {j * 128}")]
        g.append(VM(f"buffer_load_dwordx4 v{vCD + i}, {s(SC, 4)}, s{sDO} offen offset:{1024 * (i % 4)} lds", f"p{j}"))
        out.append(g)
    return out


def b_dma(j):
    out = []
    for i in range(4):
        g = []
        if i == 0:
            g += [I(f"s_add_u32 m0, s{sW2}, {(j % 3) * SLOT + 32768}"), I(f"s_add_u32 s{sDO}, s{sWB}, {j * 64 * 8192}")]
        g.append(VM(f"buffer_load_dwordx4 v{vQD + i}, {s(SW, 4)}, s{sDO} offen offset:{1024 * i} lds", f"p{j}"))
        out.append(g)
    return out


def unit_dma(u):
    out = []
    base = UREG[u] * 32768
    off = (u % 2) * 256 * 8192 + (2 + u // 2) * 128
    for i in range(8):
        g = []
        if i % 4 == 0:
            g += [I(f"s_add_u32 m0, s{sW8}, {base + (i // 4) * 4096}"), I(f"s_add_u32 s{sDO}, s{sWK}, {off}")]
        g.append(VM(f"buffer_load_dwordx4 v{vUD + i}, {s(SW, 4)}, s{sDO} offen offset:{1024 * (i % 4)} lds", f"u{u}"))
        out.append(g)
    return out


def zslot(z):
    return (z + 2) % 5


def z_dma(z, xn_only=False, w_only=False):
    out = []
    base = zslot(z) * 32768
    for p in range(2):
        if not xn_only:
            for i in range(3):
                g = []
                if i == 0:
                    g += [I(f"s_add_u32 m0, s{sW8}, {base + p * 4096}"), I(f"s_add_u32 s{sDO}, s{sWI}, {z * 64 * 2752 + p * 1376}")]
                g.append(VM(f"buffer_load_dwordx4 v{vCD + i}, {s(SI, 4)}, s{sDO} offen offset:{1024 * i} lds", f"z{z}"))
                out.append(g)
        if not w_only:
            out.append([I(f"s_add_u32 m0, s{sW8}, {base + p * 4096 + 3072}"), I(f"s_add_u32 s{sDO}, s{sXN}, {p * 32768 + z * 4096}"),
                        VM(f"buffer_load_dwordx4 v{vL16}, {s(SS, 4)}, s{sDO} offen sc1 lds", f"z{z}")])
    return out


def pa_reads(c):
    j, cs = c // 4, c % 4
    slot = j % 3
    sg, off = (0, slot * SLOT) if slot == 0 else (1, (slot - 1) * SLOT)
    out = [LG(f"ds_read_b128 {R(A(ks, c), 4)}, v{vCR + sg * 4 + cs} offset:{off + ks * 4096}", f"r{c}") for ks in range(2)]
    fb = WF + (c % 2) * 16
    for d in range(4):
        for sec in range(2):
            out.append(LG(f"ds_read_b64_tr_b16 {v(fb + 4 * d + 2 * sec, 2)}, v{vQR + sg * 4 + d} "
                          f"offset:{off + cs * 4096 + sec * 1024}", f"r{c}"))
    return out


def pa_mf(c, vtype):
    fb = WF + (c % 2) * 16
    out = []
    for d in range(4):
        for ks in range(2):
            cf, wf = A(ks, c), ('v', fb + 4 * d)
            X, Y = (cf, wf) if vtype else (wf, cf)
            out.append(mfma(('v', ACC[d // 2] + (ks * 2 + d % 2) * 16), X, Y, 0 if c == 0 else None))
    return out


def pb_reads(c):
    u = c // 16
    sg, off = seg_off(UREG[u] * 32768 + (c % 16) * 2048)
    fb = WF + (c % 4) * 8
    return [LG(f"ds_read_b64_tr_b16 {v(fb + 4 * d2 + 2 * sec, 2)}, v{vBR + sg * 2 + d2} offset:{off + sec * 512}", f"s{c}")
            for d2 in range(2) for sec in range(2)]


def pb_mf(c, vtype):
    p, cs = 2 + c // 32, c % 32
    fb = WF + (c % 4) * 8
    out = []
    for d2 in range(2):
        for ks in range(2):
            cf, wf = A(ks, cs), ('v', fb + 4 * d2)
            X, Y = (cf, wf) if vtype else (wf, cf)
            out.append(mfma(('v', ACC[p % 2] + (ks * 2 + d2) * 16), X, Y, 0 if cs == 0 else None))
    return out


def kv_epi(p, staged=False):
    out = []
    for ks in range(2):
        for d2 in range(2):
            for g in range(2):
                b = ACC[p % 2] + (ks * 2 + d2) * 16 + 8 * g
                grp = []
                if d2 == 0 and g == 0:
                    grp.append(I(f"s_add_u32 s{sT2}, s{sKO}, {(p // 2) * 64 * 8192 + ks * 8192 + (p % 2) * 4096}"))
                if staged:
                    b = STG + ((ks * 2 + d2) * 2 + g) * 4
                else:
                    grp += [I(f"v_cvt_pk_bf16_f32 v{b + i}, v{b + 2 * i}, v{b + 2 * i + 1}") for i in range(2)]
                    out.append(grp)
                    grp = [I(f"v_cvt_pk_bf16_f32 v{b + i}, v{b + 2 * i}, v{b + 2 * i + 1}") for i in range(2, 4)]
                grp.append(VM(f"buffer_store_dwordx4 {v(b, 4)}, v{vL16}, {s(SS, 4)}, s{sT2} offen offset:{(2 * d2 + g) * 1024} {KVST}", "st"))
                out.append(grp)
    return out


def XF(c):
    return A(c % 2, c // 2)


def xn_loads():
    out = []
    for c in range(32):
        g = []
        if c % 4 == 0:
            g.append(I(f"s_add_u32 s{sXO}, s{sXN}, {(c // 4) * 4096}"))
        g.append(VM(f"buffer_load_dwordx4 {R(XF(c), 4)}, v{vL16}, {s(SS, 4)}, s{sXO} offen offset:{(c % 4) * 1024} sc1", f"xn{c // 4}"))
        out.append(g)
    return out


def gelu(regs, vC0, vC1, tmp):
    out = []
    for i in range(0, len(regs), 4):
        g = regs[i:i + 4]
        t = [tmp + j for j in range(4)]
        for op in ("v_mul_f32 v{t}, v{x}, v{x}", "v_fma_f32 v{t}, v{t}, v{c1}, v{c0}", "v_mul_f32 v{t}, v{t}, v{x}",
                   "v_exp_f32 v{t}, v{t}", "v_add_f32 v{t}, 1.0, v{t}", "v_rcp_f32 v{t}, v{t}", "v_mul_f32 v{x}, v{x}, v{t}"):
            for x, tt in zip(g, t):
                out.append(op.format(t=tt, x=x, c0=vC0, c1=vC1))
    return out


def ln_code():
    o = []
    for i in range(4):
        o.append(f"v_mov_b32 v{48 + i}, 0")
    for r in range(2):
        for i in range(4):
            o.append(f"v_dot2_f32_bf16 v{48 + r}, v{40 + 4 * r + i}, s{sONES}, v{48 + r}")
            o.append(f"v_dot2_f32_bf16 v{50 + r}, v{40 + 4 * r + i}, v{40 + 4 * r + i}, v{50 + r}")
    o += ["s_nop 2", "v_permlane32_swap_b32 v48, v49", "v_permlane32_swap_b32 v50, v51", "s_nop 1",
          "v_add_f32 v48, v48, v49", "v_add_f32 v50, v50, v51", "s_nop 1",
          "v_permlane16_swap_b32 v48, v50", "s_nop 1", "v_add_f32 v48, v48, v50"]
    for sh in (8, 4, 2, 1):
        o += ["s_nop 1", f"v_add_f32_dpp v48, v48, v48 row_ror:{sh} row_mask:0xf bank_mask:0xf"]
    o += ["s_nop 1", f"v_mul_f32 v48, {fbits(1 / 512)}, v48", "s_nop 0",
          "v_readlane_b32 s40, v48, 0", "v_readlane_b32 s41, v48, 16", "v_readlane_b32 s42, v48, 32", "v_readlane_b32 s43, v48, 48",
          "s_nop 1"]
    for r in range(2):
        m, q = 40 + 2 * r, 41 + 2 * r
        a_, b_ = 52 + 2 * r, 53 + 2 * r
        o += [f"v_mov_b32 v{b_}, s{m}", f"v_mov_b32 v{a_}, s{q}", f"v_fma_f32 v{a_}, -v{b_}, v{b_}, v{a_}", f"v_max_f32 v{a_}, 0, v{a_}",
              f"v_add_f32 v{a_}, {fbits(LN_EPS)}, v{a_}", f"v_rsq_f32 v{a_}, v{a_}", "s_nop 0",
              f"v_mul_f32 v{b_}, v{b_}, v{a_}", f"v_sub_f32 v{b_}, 0, v{b_}"]
    for r in range(2):
        for i in range(4):
            x = 40 + 4 * r + i
            o += [f"v_lshlrev_b32 v56, 16, v{x}", f"v_and_b32 v57, 0xffff0000, v{x}",
                  f"v_fma_f32 v56, v56, v{52 + 2 * r}, v{53 + 2 * r}", f"v_fma_f32 v57, v57, v{52 + 2 * r}, v{53 + 2 * r}",
                  f"v_cvt_pk_bf16_f32 v{x}, v56, v57"]
    return o


def kv_phase(k, vtype):
    E = k.emit
    extra = {}

    def add(c, groups):
        extra.setdefault(c, []).extend(groups)

    def spread(c0, c1, groups):
        n = len(groups)
        for i, g in enumerate(groups):
            add(c0 + (i * (c1 - c0)) // n, [g])

    ldp = lambda sr, so, i: [VM(f"buffer_load_dwordx4 {v(vPF, 4)}, v{vL16}, {s(sr, 4)}, s{so} offen offset:{1024 * i}", "pf")]
    ldh = lambda sr, so, off: [I(f"s_add_u32 s{sT}, s{so}, {off}"), VM(f"buffer_load_dwordx4 {v(vPF, 4)}, v61, {s(sr, 4)}, s{sT} offen", "pf")]
    pf0 = [ldp(SC, 77, i) for i in range(2)] + [ldh(SPF, 76, 128 * 8192), ldh(SPF, 76, 256 * 8192)]
    pf1 = [ldh(SPF, 76, 384 * 8192)]
    pf2 = [ldh(SPF, 76, 256 + r * 128 * 8192) for r in range(4)] + [ldp(SI, 77, i) for i in range(2)]
    add(1, pf1)
    spread(8, 20, pf2)
    ln = ln_code()
    lng = [[I(x) for x in ln[i:i + 4]] for i in range(0, len(ln), 4)]
    lng.append([LG("ds_write_b128 v58, v[40:43]"), LG("ds_write_b128 v58, v[44:47] offset:16")])
    xst = [[LG("ds_read_b128 v[40:43], v59", "xr"), LG("ds_read_b128 v[44:47], v59 offset:1024", "xr")],
           [WLG("xr"), VM(f"buffer_store_dwordx4 v[40:43], v62, {s(SS, 4)}, s69 offen sc1", "xs")],
           [I(f"v_add_u32 v62, 4096, v62"), VM(f"buffer_store_dwordx4 v[44:47], v62, {s(SS, 4)}, s69 offen sc1", "xs")]]
    if "noxs" not in EXP:
        spread(12, 15, xst)
    spread(0, 3, a_dma(2) + b_dma(2))
    spread(3, 11, lng)
    E(pf0)
    E(WVM("p0"), "s_barrier")
    stamp(k, 6)
    E(pa_reads(0))
    for c in range(32):
        E(WLG(f"r{c}"))
        fill = []
        if c % 4 == 3:
            j = c // 4
            lstamp(k, 63, 3 * j)
            if j < 7:
                E(WVM(f"p{j + 1}"))
            else:
                E(WVM("u0"))
            if j == 5:
                E(WVM("xs"))
            if j == 2:
                E(WLG0)
            lstamp(k, 63, 3 * j + 1)
            E("s_barrier")
            lstamp(k, 63, 3 * j + 2)
            if j + 3 < 8:
                post = a_dma(j + 3) + b_dma(j + 3)
            elif j == 5:
                post = unit_dma(0) + unit_dma(1)[:4]
            elif j == 6:
                post = unit_dma(1)[4:] + unit_dma(2)
            else:
                post = []
            if j == 5 and "noflag" not in EXP:
                post = post + [flag_set(sW, SD, 2, 46)]
            if j < 7:
                spread(c, c + 4, post)
        if c < 31:
            fill += pa_reads(c + 1)
            fill = interleave(fill, extra.get(c, []))
            E(weave(pa_mf(c, vtype), fill, 0, 8))
        else:
            m = pa_mf(c, vtype)
            stg = []
            for tl in range(4):
                for g in range(2):
                    b = ACC[0] + tl * 16 + 8 * g
                    stg += [I(f"v_cvt_pk_bf16_f32 v{STG + (tl * 2 + g) * 4 + i}, v{b + 2 * i}, v{b + 2 * i + 1}") for i in range(4)]
            order = [0, 2, 1, 3]
            E(m[:4], pb_reads(0), m[4], m[5])
            seq = [stg[o * 8:(o + 1) * 8] for o in order]
            E(seq[0], m[6], seq[1], m[7], pb_reads(1), seq[2], seq[3])
    stamp(k, 7)
    extra.clear()
    wi = []
    for i in range(3):
        wi.append([I(x) for x in (f"v_add_u32 v46, {64 * i}, v0", "v_mul_u32_u24 v47, 43691, v46", "v_lshrrev_b32 v47, 19, v47",
                                  "v_mul_u32_u24 v48, 12, v47")])
        wi.append([I(x) for x in ("v_sub_u32 v48, v46, v48", "v_mul_u32_u24 v47, 2752, v47", f"v_lshl_add_u32 v{vCD + i}, v48, 4, v47",
                                  f"v_subrev_u32 v{vCD + i}, {1024 * i}, v{vCD + i}")])
    wi.append([I(x) for x in (f"v_lshl_add_u32 v46, v{vF + 1}, 3, v{vF + 3}", "v_mul_u32_u24 v46, 192, v46",
                              f"v_lshl_add_u32 v46, v{vF + 5}, 5, v46", f"v_lshl_add_u32 v46, v{vF + 4}, 3, v46")])
    wi.append([I(x) for x in (f"s_lshl_b32 s{sT}, s{sCH}, 12", f"v_add_u32 v{vCR}, s{sT}, v46", f"v_add_u32 v{vCR + 1}, 0x10000, v{vCR}",
                              f"v_add_u32 v{vCR + 2}, 0x20000, v{vCR}")])
    wi.append([I(x) for x in (f"s_lshl_b32 s{sT}, s{sRS}, 12", f"s_add_u32 s{sT}, s{sT}, 3072", f"v_add_u32 v{vCR + 3}, s{sT}, v{vL16}",
                              f"v_add_u32 v{vCR + 4}, 0x10000, v{vCR + 3}", f"v_add_u32 v{vCR + 5}, 0x20000, v{vCR + 3}")])
    spread(0, 6, unit_dma(3))
    spread(0, 6, wi)
    spread(7, 13, z_dma(0, w_only=True))
    spread(0, 15, kv_epi(0, staged=True))
    spread(15, 32, kv_epi(1))
    spread(33, 64, kv_epi(2))
    if "noflag" not in EXP:
        add(13, [flag_poll_issue(sW, SD, sCNT, 8, 50)])
        add(29, [flag_poll_check(sW, SD, sCNT, 50)])
    pf = [[I(f"s_mov_b32 s{SPF}, s44"), I(f"s_mov_b32 s{SPF + 1}, s45")] +
          [VM(f"buffer_load_dwordx4 v[52:55], v{vL16}, {s(SPF, 4)}, s70 offen", "pf")]]
    pf += [[VM(f"buffer_load_dwordx4 v[52:55], v{vL16}, {s(SPF, 4)}, s70 offen offset:{1024 * i}", "pf")] for i in range(1, 4)]
    if not NOPF:
        spread(50, 62, pf)
    for c in range(64):
        n = c + 2
        fill = []
        if n < 64:
            if n % 16 == 0:
                u = n // 16
                lstamp(k, 63, 21 + 3 * u)
                E(WLG(f"s{n - 1}"), WVM(f"u{u}"))
                lstamp(k, 63, 22 + 3 * u)
                E("s_barrier")
                lstamp(k, 63, 23 + 3 * u)
                if u == 1:
                    spread(c, c + 12, z_dma(1, w_only=True))
                elif u == 2:
                    spread(c, c + 14, z_dma(0, xn_only=True) + z_dma(1, xn_only=True) + z_dma(2))
                else:
                    spread(c, c + 14, z_dma(3))
            fill += pb_reads(n)
        E(WLG(f"s{c}"))
        if c == 32:
            stamp(k, 8)
        E(weave(pb_mf(c, vtype), interleave(fill, extra.get(c, [])), 0, 4))
    for c in extra:
        assert c < 64


def interleave(x, y):
    out = []
    n = max(len(x), len(y))
    for i in range(n):
        if i < len(x):
            out.append(x[i])
        if i < len(y):
            out.append(y[i])
    return out


def z_phase(k, z2):
    E = k.emit
    ZACC = ACC[0]
    LA = 3

    def fbuf(c):
        return (c % 4) * 16

    def reads(c):
        z, cs = c // 4, c % 4
        sg, off = seg_off(zslot(z) * 32768 + cs * 8192)
        fb = fbuf(c)
        out = [LG(f"ds_read_b128 {a(fb + 12, 4)}, v{vCR + 3 + sg} offset:{off}", f"y{c}")]
        out += [LG(f"ds_read_b64_tr_b16 {a(fb + 4 * f + 2 * sec, 2)}, v{vCR + sg} offset:{off + sec * 768 + f * 64}", f"y{c}")
                for f in range(3) for sec in range(2)]
        return out

    def mf(c):
        fb = fbuf(c)
        out = []
        for f in range(3):
            wf, xf = ('a', fb + 4 * f), ('a', fb + 12)
            X, Y = (xf, wf) if z2 else (wf, xf)
            out.append(mfma(('v', ZACC + 16 * f), X, Y, 0 if c == 0 else None))
        return out

    epi = kv_epi(3)
    lstamp(k, 63, 33)
    E(WVM("z0"), "s_barrier")
    lstamp(k, 63, 34)
    for c in range(LA):
        E(reads(c))
    pend = z_dma(4)
    for c in range(32):
        n = c + LA
        if n < 32 and n % 4 == 0:
            z = n // 4
            lstamp(k, 63, 33 + 3 * z)
            E(WLG(f"y{n - 1}"), WVM(f"z{z}"))
            lstamp(k, 63, 34 + 3 * z)
            E("s_barrier")
            if z + 4 < 8:
                pend = pend + z_dma(z + 4)
        E(WLG(f"y{c}"))
        r_ = reads(n) if n < 32 else []
        take, pend = pend[:3], pend[3:]
        gm_ = {i: r_[(i * 7) // 3:((i + 1) * 7) // 3] + take[i:i + 1] for i in range(3)}
        if c % 2 == 1:
            gm_[1] = gm_[1] + [epi[c // 2]]
        E(place(mf(c), gm_))


def build():
    k = Kern("k1_kernel")
    E = k.emit
    E("s_cmp_ge_u32 s2, 256\ns_cbranch_scc1 K1_END")
    code_prefetch(k, "L_CODE_END", 0, 120)
    stamp_init(k)
    stamp(k, 0)
    E(f"s_load_dwordx4 s[40:43], s[0:1], {KA_X}")
    E(f"s_load_dwordx4 s[44:47], s[0:1], {KA_WUK}")
    E(f"s_load_dwordx2 s[48:49], s[0:1], {KA_WIN}")
    E(f"s_load_dwordx4 s[52:55], s[0:1], {KA_DBG}")
    E("v_lshrrev_b32 v1, 6, v0\nv_and_b32 v0, 63, v0")
    E(f"s_lshr_b32 s{sRB}, s2, 3\ns_and_b32 s{sCB}, s2, 7")
    E(f"v_readfirstlane_b32 s{sW}, v1")
    E(f"s_and_b32 s{sNB}, s{sRB}, 3\ns_lshl_b32 s{sT}, s{sCB}, 2\ns_add_u32 s{sNB}, s{sNB}, s{sT}")
    E(f"s_lshr_b32 s{sMB}, s{sRB}, 2")
    E(f"s_and_b32 s{sRS}, s{sW}, 1\ns_lshr_b32 s{sCH}, s{sW}, 1\ns_lshl_b32 s{sW8}, s{sW}, 13\ns_lshl_b32 s{sW2}, s{sW}, 12")
    f0 = vF
    E(f"v_and_b32 v{f0}, 31, v0\nv_lshrrev_b32 v{f0 + 1}, 5, v0\nv_lshrrev_b32 v{f0 + 2}, 4, v0")
    E(f"v_bfe_u32 v{f0 + 3}, v0, 2, 2\nv_and_b32 v{f0 + 4}, 3, v0\nv_bfe_u32 v{f0 + 5}, v0, 4, 1")
    E(f"v_lshlrev_b32 v{vL16}, 4, v0")
    E(f"v_lshrrev_b32 v46, 3, v0\nv_lshlrev_b32 v50, 13, v46\nv_lshlrev_b32 v46, 10, v46\nv_and_b32 v47, 7, v0\nv_xor_b32 v47, v47, v{f0 + 2}")
    E("v_lshl_add_u32 v48, v47, 4, v46\nv_xor_b32 v47, 4, v47\nv_lshl_add_u32 v49, v47, 4, v46")
    for i in range(8):
        E(f"v_add_u32 v{vCD + i}, {i * 8192 - (i % 4) * 1024}, v{48 + (i % 2)}")
    E(f"v_bfe_u32 v47, v0, 2, 1\nv_xor_b32 v47, v47, v{f0 + 5}\nv_lshl_add_u32 v50, v47, 6, v50\nv_lshl_add_u32 v50, v{f0 + 4}, 4, v50")
    for i in range(8):
        E(f"v_add_u32 v{vUD + i}, {i * 65536 - (i % 4) * 1024}, v50")
    E(f"s_lshl_b32 s{sCK}, s{sMB}, 18\ns_lshl_b32 s{sT}, s{sW}, 16\ns_add_u32 s{sCK}, s{sCK}, s{sT}")
    E(f"s_and_b32 s{sT}, s{sNB}, 15\ns_lshl_b32 s{sT}, s{sT}, 9\ns_lshl_b32 s{sWK}, s{sW}, 19\ns_add_u32 s{sWK}, s{sWK}, s{sT}")
    E(f"s_lshl_b32 s{sWB}, s{sW}, 17\ns_add_u32 s{sWB}, s{sWB}, s{sT}")
    E(f"s_lshl_b32 s{sT2}, s2, 13\ns_lshl_b32 s{sT}, s{sW}, 11\ns_add_u32 s{sT2}, s{sT2}, s{sT}")
    E(f"v_xor_b32 v46, v{f0 + 3}, v{f0 + 2}\nv_lshlrev_b32 v47, 13, v{f0 + 2}\nv_lshl_add_u32 v47, v46, 6, v47\nv_lshl_add_u32 v47, v{f0 + 4}, 4, v47")
    for i in range(4):
        E(f"v_add_u32 v{vQD + i}, {i * (32768 - 1024)}, v47")
    E("s_waitcnt lgkmcnt(0)")
    E(srd(SX, 40, 2048 * 1024), srd(SC, 42, 2048 * 1024))
    E(VM(f"buffer_load_dwordx4 v[40:43], v{vL16}, {s(SX, 4)}, s{sT2} offen", "x"))
    E(VM(f"buffer_load_dwordx4 v[44:47], v{vL16}, {s(SX, 4)}, s{sT2} offen offset:1024", "x"))
    E(f"s_cmp_lt_u32 s{sNB}, 16\ns_cselect_b32 s{SW}, s44, s46\ns_cselect_b32 s{SW + 1}, s45, s47")
    E(f"s_mov_b32 s{SW + 2}, {512 * 8192:#x}\ns_mov_b32 s{SW + 3}, 0x20000")
    for j in range(2):
        E(a_dma(j), b_dma(j))
    E(srd(SI, 48, 512 * 2752), srd(SS, 54, WS_SIZE), srd(SD, 52, 256))
    E(f"s_lshl_b32 s{sT}, s2, 2\ns_add_u32 s{sT}, s{sT}, s{sW}\ns_lshl_b32 s70, s{sT}, 12\ns_lshl_b32 s77, s{sT}, 11\ns_and_b32 s76, s77, 0xfffff")
    E(f"s_cmp_lt_u32 s2, 128\ns_cselect_b32 s{SPF}, s44, s46\ns_cselect_b32 s{SPF + 1}, s45, s47\ns_mov_b32 s{SPF + 2}, {512 * 8192:#x}\ns_mov_b32 s{SPF + 3}, 0x20000")
    E(f"v_lshlrev_b32 v61, 9, v{f0 + 2}\nv_and_b32 v48, 15, v0\nv_lshl_add_u32 v61, v48, 4, v61")
    E(f"s_load_dwordx2 s[44:45], s[0:1], {KA_WQ}")
    E(f"v_bfe_u32 v48, v0, 1, 3\nv_xor_b32 v48, v48, v{f0 + 1}\nv_lshlrev_b32 v49, 7, v{f0}\nv_add_u32 v49, s{sW8}, v49")
    for k16 in range(4):
        E(f"v_xor_b32 v50, {2 * k16}, v48\nv_lshl_add_u32 v{vCR + k16}, v50, 4, v49\nv_add_u32 v{vCR + 4 + k16}, {SLOT}, v{vCR + k16}")
    E(f"v_lshl_add_u32 v48, v{f0 + 1}, 3, v{f0 + 3}\nv_lshlrev_b32 v48, 8, v48\nv_lshl_add_u32 v48, v{f0 + 5}, 5, v48\nv_lshl_add_u32 v48, v{f0 + 4}, 3, v48\nv_add_u32 v48, 32768, v48")
    for d in range(4):
        E(f"v_xor_b32 v49, {d}, v{f0 + 3}\nv_lshl_add_u32 v{vQR + d}, v49, 6, v48\nv_add_u32 v{vQR + 4 + d}, {SLOT}, v{vQR + d}")
    E(f"v_lshl_add_u32 v48, v{f0 + 1}, 3, v{f0 + 3}\nv_lshlrev_b32 v48, 7, v48\nv_lshl_add_u32 v48, v{f0 + 5}, 5, v48\nv_lshl_add_u32 v48, v{f0 + 4}, 3, v48")
    E(f"v_lshrrev_b32 v49, 1, v{f0 + 3}\nv_lshl_add_u32 v{vBR}, v49, 6, v48\nv_xor_b32 v49, 1, v49\nv_lshl_add_u32 v{vBR + 1}, v49, 6, v48")
    for sg in (1, 2):
        for d2 in range(2):
            E(f"v_add_u32 v{vBR + 2 * sg + d2}, {sg * 65536}, v{vBR + d2}")
    E(f"s_lshl_b32 s{sKO}, s{sNB}, 7\ns_lshl_b32 s{sT}, s{sMB}, 3\ns_add_u32 s{sKO}, s{sKO}, s{sT}\ns_lshl_b32 s{sT}, s{sW}, 1\ns_add_u32 s{sKO}, s{sKO}, s{sT}")
    E(f"s_lshl_b32 s{sKO}, s{sKO}, 13\ns_add_u32 s{sKO}, s{sKO}, {WS_KF}")
    E(f"s_mul_i32 s{sWI}, s{sW}, {16 * 2752}\ns_mul_i32 s{sT}, s{sCB}, 192\ns_add_u32 s{sWI}, s{sWI}, s{sT}")
    E(f"s_lshl_b32 s{sXN}, s{sRB}, 16\ns_lshl_b32 s{sT}, s{sW}, 10\ns_add_u32 s{sXN}, s{sXN}, s{sT}\ns_add_u32 s{sXN}, s{sXN}, {WS_XN}")
    E(f"s_lshl_b32 s{sCNT}, s{sRB}, 3\ns_mov_b32 s{sONES}, 0x3f803f80")
    E(f"s_lshr_b32 s{sT2}, s2, 2\ns_lshl_b32 s{sT2}, s{sT2}, 15\ns_and_b32 s{sT}, s2, 3\ns_lshl_b32 s{sT}, s{sT}, 7\ns_add_u32 s{sT2}, s{sT2}, s{sT}")
    E(f"s_add_u32 s{sT2}, s{sT2}, s{sW8}\ns_add_u32 s69, s{sT2}, {WS_XN}")
    E(f"s_lshl_b32 s{sT}, s{sW}, 5\ns_add_u32 s{sT}, s{sT}, {3 * SLOT}\nv_lshlrev_b32 v58, 7, v0\nv_add_u32 v58, s{sT}, v58")
    E(f"s_lshl_b32 s{sT}, s{sW}, 11\ns_add_u32 s{sT}, s{sT}, {3 * SLOT}\nv_add_u32 v59, s{sT}, v{vL16}")
    E("v_lshrrev_b32 v62, 3, v0\nv_lshlrev_b32 v62, 9, v62\nv_and_b32 v48, 7, v0\nv_lshl_add_u32 v62, v48, 4, v62")
    E("s_waitcnt lgkmcnt(0)")
    stamp(k, 1)
    E(f"s_cmp_ge_u32 s{sNB}, 16\ns_cbranch_scc1 K1_V")
    st = (list(k.vm), list(k.lg))
    kv_phase(k, False)
    E("s_branch K1_Z")
    k.set_state(*st)
    E("K1_V:")
    kv_phase(k, True)
    E("K1_Z:")
    stamp(k, 2)
    E(f"v_mov_b32 v60, {fbits(GELU_C0)}\nv_mov_b32 v61, {fbits(GELU_C1)}")
    E(f"s_cmp_eq_u32 s{sCH}, 1\ns_cbranch_scc1 K1_Z2")
    st = (list(k.vm), list(k.lg))
    ZACC = ACC[0]
    zr = list(range(ZACC, ZACC + 48))
    z_phase(k, False)
    stamp(k, 3)
    E(f"s_lshl_b32 s{sT}, s{sRB}, 1\ns_add_u32 s{sT}, s{sT}, s{sRS}\ns_mul_i32 s{sT}, s{sT}, 48")
    E(f"s_mul_i32 s{sT2}, s{sCB}, 6\ns_add_u32 s{sT}, s{sT}, s{sT2}\ns_lshl_b32 s{sT}, s{sT}, 10")
    E(f"s_add_u32 s{sT}, s{sT}, {WS_Z1}\ns_add_u32 s{sT2}, s{sT}, 4096\ns_nop 7")
    E(f"s_cmp_lg_u32 s{sCB}, 7\ns_cbranch_scc1 K1_Z1_NOMASK")
    for r in zr[8:]:
        E(f"v_mov_b32 v{r}, 0")
    E("K1_Z1_NOMASK:")
    for fg in range(6):
        b = ZACC + 8 * fg
        E(gelu(list(range(b, b + 8)), 60, 61, 52))
        for i in range(4):
            E(f"v_cvt_pk_bf16_f32 v{b + i}, v{b + 2 * i}, v{b + 2 * i + 1}")
        E(VM(f"buffer_store_dwordx4 {v(b, 4)}, v{vL16}, {s(SS, 4)}, s{sT if fg < 4 else sT2} offen offset:{1024 * (fg % 4)} sc1"))
    E("s_branch K1_DONE")
    k.set_state(*st)
    E("K1_Z2:")
    z_phase(k, True)
    stamp(k, 3)
    E(f"s_mul_i32 s{sT}, s{sCB}, 384\ns_lshl_b32 s{sT2}, s{sRB}, 2\ns_add_u32 s{sT}, s{sT}, s{sT2}")
    E(f"s_lshl_b32 s{sT2}, s{sRS}, 1\ns_add_u32 s{sT}, s{sT}, s{sT2}\ns_lshl_b32 s{sT}, s{sT}, 10\ns_add_u32 s{sT}, s{sT}, {WS_Z2R}\ns_nop 7")
    E(f"s_cmp_lg_u32 s{sCB}, 7\ns_cbranch_scc1 K1_Z2_NOMASK")
    E(f"v_cmp_gt_u32 vcc, 16, v{vF}\ns_nop 1")
    for r in zr[:16]:
        E(f"v_cndmask_b32 v{r}, 0, v{r}, vcc")
    for r in zr[16:]:
        E(f"v_mov_b32 v{r}, 0")
    E("K1_Z2_NOMASK:")
    E(gelu(zr, 60, 61, 52))
    SQ = 64
    for r in range(16):
        z0, z1, z2_ = ZACC + r, ZACC + 16 + r, ZACC + 32 + r
        E(f"v_add_f32 v{SQ + r}, v{z0}, v{z1}\nv_mul_f32 v{SQ + 16 + r}, v{z0}, v{z0}")
        E(f"v_add_f32 v{SQ + r}, v{SQ + r}, v{z2_}\nv_fmac_f32 v{SQ + 16 + r}, v{z1}, v{z1}")
        E(f"v_fmac_f32 v{SQ + 16 + r}, v{z2_}, v{z2_}")
    SCR = zslot(3) * 32768
    E(f"s_mul_i32 s{sT2}, s{sRS}, 9216\ns_add_u32 s{sT2}, s{sT2}, {SCR}")
    E(f"v_mul_u32_u24 v46, {4 * 144}, v{vF + 1}\nv_lshl_add_u32 v46, v{vF}, 2, v46\nv_add_u32 v46, s{sT2}, v46")
    for stt in range(2):
        for r in range(16):
            srow = 8 * (r // 4) + r % 4
            E(LG(f"ds_write_b32 v46, v{SQ + 16 * stt + r} offset:{(stt * 32 + srow) * 144}"))
    E(f"v_mul_u32_u24 v47, 144, v0\nv_add_u32 v47, s{sT2}, v47")
    for f in range(3):
        for g in range(2):
            b = ZACC + 16 * f + 8 * g
            for i in range(4):
                E(f"v_cvt_pk_bf16_f32 v{b + i}, v{b + 2 * i}, v{b + 2 * i + 1}")
            E("s_nop 1")
            E(f"v_permlane32_swap_b32 v{b}, v{b + 2}\nv_permlane32_swap_b32 v{b + 1}, v{b + 3}")
            E("s_nop 1")
            E(VM(f"buffer_store_dwordx4 {v(b, 4)}, v{vL16}, {s(SS, 4)}, s{sT} offen offset:{1024 * g} sc1"))
        if f < 2:
            E(f"s_add_u32 s{sT}, s{sT}, {128 * 1024}")
    E(WLG0)
    for i in range(8):
        E(LG(f"ds_read_b128 {v(SQ + 4 * i, 4)}, v47 offset:{16 * i}"))
    E(f"s_lshl_b32 s{sT}, s{sRB}, 1\ns_add_u32 s{sT}, s{sT}, s{sRS}\ns_lshl_b32 s{sT}, s{sT}, 11\ns_add_u32 s{sT}, s{sT}, {WS_STAT}")
    E(f"s_lshl_b32 s{sT2}, s{sCB}, 8\ns_add_u32 s{sT}, s{sT}, s{sT2}\nv_lshlrev_b32 v46, 2, v0")
    E(WLG0)
    for stride in (16, 8, 4, 2, 1):
        for i in range(stride):
            E(f"v_add_f32 v{SQ + i}, v{SQ + i}, v{SQ + stride + i}")
    E(VM(f"buffer_store_dword v{SQ}, v46, {s(SS, 4)}, s{sT} offen"))
    E("K1_DONE:")
    if PROF:
        stamp(k, 4)
        E(WVM0)
    stamp(k, 5)
    lstamp_store(k, 0, 63, 59, SS, sW)
    stamp_store(k, 0, SS, sW, 96)
    E("K1_END:")
    E("s_endpgm")
    return k.text(512, 256)
```

```python
from asmlib import *
from common import *
import os

THRESH = float(os.environ.get("THRESH", "32.0"))
BUDGET = int(os.environ.get("BUDGET", "25"))
EXP = os.environ.get("EXP2", "")

SQ, SP, SB, SS, SD = 8, 12, 16, 20, 24
sW, sHD, sPI, sG, sRS = 32, 33, 34, 35, 36
sT, sT2, sU, sSW, sSW2, sJUMP, sTL, sTD = 37, 38, 39, 40, 41, 42, 43, 44
sKN, sKO2, sVO, sVO2, sMK, sMV = 45, 46, 47, 48, 49, 50
sTH = (51, 52)
sLO = (53, 54)
sXN, sWQ, sWM, sW8, sDO = 55, 56, 57, 59, 58
sGP, sGZ, sGM, sFL, sPF, sEV, sDG = 60, 61, 62, 63, 76, 77, 31
NINF = "0xff800000"

vL16, vKc, vKn, vVp, vVc, vD0, vNEG = 1, 2, 3, 4, 5, 6, 7
vLs = ((8, 9), (10, 11))
vNM = (12, 13)
vM = 14
vLSV = (30, 31)
vT = 20
vQD = 32
vQR = 36
S = (48, 64)
NEGM = (80, 96)
PB = 112
QBS = 144
ZT = 208
NEGB = 208
MSK = 224
vPL = 240
aO, aQ, aK, aV = 0, 128, 192, 224

KB0, VB0, SPARE = 0, 65536, 131072
NEG = -1.0e30


def P(buf, x, i=0):
    return PB + (buf * 2 + x) * 8 + i


def dma4(so, tag="kv"):
    return [VM(f"buffer_load_dwordx4 v{vL16}, {s(SS, 4)}, s{so} offen offset:{1024 * i} lds", tag) for i in range(4)]


def qk(x, cin=None):
    return [mfma(('v', S[x]), ('a', aK + 4 * d), ('a', aQ + (x * 8 + d) * 4), ('v', NEGM[x] if cin is None else cin) if d == 0 else None)
            for d in range(8)]


def pv(x, buf):
    return [mfma(('a', aO + (x * 4 + ds) * 16), ('a', aV + (ds * 2 + g) * 4), ('v', P(buf, x, 4 * g)))
            for g in range(2) for ds in range(4)]


def kreads(areg, th):
    return [LG(f"ds_read_b128 {a(aK + 4 * d, 4)}, v{areg} offset:{th * 8192 + d * 1024}", "k") for d in range(8)]


def vreads(areg, th):
    return [LG(f"ds_read_b128 {a(aV + 4 * f, 4)}, v{areg} offset:{th * 8192 + f * 1024}", "v") for f in (0, 2, 4, 6, 1, 3, 5, 7)]


def sm_max(x):
    b, m = S[x], vM
    return [(4, I(t)) for t in (
        f"v_max3_f32 v{m}, v{b}, v{b + 1}, v{b + 2}", f"v_max3_f32 v{m + 1}, v{b + 3}, v{b + 4}, v{b + 5}",
        f"v_max3_f32 v{m + 2}, v{b + 6}, v{b + 7}, v{b + 8}", f"v_max3_f32 v{m + 3}, v{b + 9}, v{b + 10}, v{b + 11}",
        f"v_max3_f32 v{m + 4}, v{b + 12}, v{b + 13}, v{b + 14}", f"v_max3_f32 v{m}, v{m}, v{m + 1}, v{b + 15}",
        f"v_max3_f32 v{m + 2}, v{m + 2}, v{m + 3}, v{m + 4}", f"v_max_f32 v{m}, v{m}, v{m + 2}")]


def sm_chk(x, buf):
    return (8, [I(f"v_cmp_lt_f32 vcc, s{sTH[x]}, v{vM}"), I(f"s_cbranch_vccnz K2_RARE_{x}_{buf}"), I(f"K2_RET_{x}_{buf}:")])


def sm_fin(x, buf, i):
    b = S[x]
    return [(4, I(f"v_add_f32 v{vLs[x][0]}, v{vLs[x][0]}, v{b + 2 * i}")),
            (4, I(f"v_add_f32 v{vLs[x][1]}, v{vLs[x][1]}, v{b + 2 * i + 1}")),
            (4, I(f"v_cvt_pk_bf16_f32 v{P(buf, x, i)}, v{b + 2 * i}, v{b + 2 * i + 1}"))]


def sm_exp(x, buf):
    b = S[x]
    items = []
    for i in range(8):
        items.append((8, I(f"v_exp_f32 v{b + 2 * i}, v{b + 2 * i}")))
        items.append((8, I(f"v_exp_f32 v{b + 2 * i + 1}, v{b + 2 * i + 1}")))
        if i > 0:
            items += sm_fin(x, buf, i - 1)
    return items + sm_fin(x, buf, 7)


CAP = int(os.environ.get("CAP", "24"))


def schedule_loop(diag=False, pin=None):
    NG = 64
    T = NG + 16
    mem = [[] for _ in range(T)]
    alu = [[] for _ in range(T)]
    used = [0] * NG
    sfx = "D" if diag else ""

    def fixed(g, cost, item, is_mem=True):
        (mem if is_mem else alu)[g].append(item)
        used[g % NG] += cost

    def spread_mem(g0, n, items):
        for i, r in enumerate(items):
            fixed(g0 + (i * n) // len(items), 4, r)

    spread_mem(0, 13, vreads(vVp, 1))
    spread_mem(16, 10, kreads(vKc, 1))
    spread_mem(32, 13, vreads(vVc, 0))
    spread_mem(48, 13, kreads(vKn, 0))
    BAR = int(os.environ.get("BAR", "27"))
    fixed(BAR, 8, [I("s_waitcnt vmcnt(1) lgkmcnt(0)"), ('reset',), I("s_barrier")])
    g = BAR + 1
    dgaps = []
    for so in (sKN, sKO2, sVO, sVO2):
        for d in dma4(so):
            fixed(g, 4, d)
            dgaps.append(g)
            g += 2
    fixed(g, 4, VM(f"buffer_load_dwordx4 {v(ZT + 40, 4)}, v{vL16}, {s(SP, 4)}, s{sPF} offen", "pf"))
    gpf = g
    tail = {15: [WLG("v")], 47: [WLG("v")], 63: []}
    for g_ in (15, 47):
        used[g_] += 4
    used[63] += 4 + 13 + 13
    used[31] += 13
    jobs = []

    def job(name, cost, item, e, l, deps=()):
        jobs.append(dict(name=name, cost=cost, item=item, e=e, l=l, deps=list(deps)))

    job("vo", 4, I(f"s_add_u32 s{sVO}, s{sKN}, {WS_VF - WS_KF}"), 0, BAR - 2)
    job("vo2", 4, I(f"s_add_u32 s{sVO2}, s{sKN}, {WS_VF - WS_KF + 4096}"), 0, BAR - 2)
    job("kn", 12, [I(f"s_cmp_eq_u32 s{sU}, s{sSW2}"), I(f"s_cselect_b32 s{sKO2}, s{sJUMP}, 0x4000"), I(f"s_add_u32 s{sKN}, s{sKN}, s{sKO2}")],
        0, BAR - 1, ["vo", "vo2"])
    job("ko2", 4, I(f"s_add_u32 s{sKO2}, s{sKN}, 4096"), 0, BAR, ["kn"])
    job("m0a", 4, I(f"s_mov_b32 m0, s{sMK}"), 0, BAR)
    job("m0b", 4, I(f"s_add_u32 m0, s{sMK}, 4096"), dgaps[3], dgaps[4] - 1)
    job("m0c", 4, I(f"s_mov_b32 m0, s{sMV}"), dgaps[7], dgaps[8] - 1)
    job("m0d", 4, I(f"s_add_u32 m0, s{sMV}, 4096"), dgaps[11], dgaps[12] - 1)
    job("pfa", 4, I(f"s_add_u32 s{sPF}, s{sPF}, 0x100000"), gpf, 63)
    job("xk", 4, I(f"s_xor_b32 s{sMK}, s{sMK}, 0x8000"), dgaps[4], 63, ["m0b"])
    job("xv", 4, I(f"s_xor_b32 s{sMV}, s{sMV}, 0x8000"), dgaps[12], 63, ["m0d"])
    job("vp", 4, I(f"v_mov_b32 v{vVp}, v{vVc}"), 13, 44)
    job("vc", 4, I(f"v_xor_b32 v{vVc}, 0x8000, v{vVc}"), 45, 63, ["vp"])
    job("kc", 4, I(f"v_xor_b32 v{vKc}, 0x8000, v{vKc}"), 26, 63)
    job("kx", 4, I(f"v_xor_b32 v{vKn}, 0x8000, v{vKn}"), 61, 63)
    job("tl", 4, I(f"s_add_u32 s{sTL}, s{sTL}, 1"), 56, 63)
    job("u", 4, I(f"s_add_u32 s{sU}, s{sU}, 1"), 32, 63)
    for half in range(2):
        G = 8 + 32 * half
        for x in range(2):
            e0 = G + 1 + 8 * x
            pre = f"{half}{x}"
            prev = [f"{half}0chk"] if x == 1 else []
            if diag and half == x:
                for r in range(16):
                    job(f"{pre}mk{r}", 4, I(f"v_min_f32 v{S[x] + r}, v{S[x] + r}, v{MSK + r}"), e0, e0 + 5, prev)
                prev = prev + [f"{pre}mk{r}" for r in range(16)]
            for i, (c, it) in enumerate(sm_max(x)):
                job(f"{pre}m{i}", c, it, e0, e0 + 6, prev + ([f"{pre}m{i - 1}"] if i else []))
            job(f"{pre}chk", 13, [I(f"v_cmp_lt_f32 vcc, s{sTH[x]}, v{vM}"), I(f"s_cbranch_vccnz K2_RARE_{x}_{half}"), I(f"K2_RET{sfx}_{x}_{half}:")],
                e0, e0 + 6, [f"{pre}m7"])
            dl = G + 23 + 8 * x
            b_ = S[x]
            for r in range(16):
                job(f"{pre}e{r}", 8, I(f"v_exp_f32 v{b_ + r}, v{b_ + r}"), e0, dl - 1, [f"{pre}chk"] + ([f"{pre}e{r - 1}"] if r else []))
            for i in range(8):
                f3 = sm_fin(x, half, i)
                job(f"{pre}a{2 * i}", 4, f3[0][1], e0, dl, [f"{pre}e{2 * i + 1}"])
                job(f"{pre}a{2 * i + 1}", 4, f3[1][1], e0, dl, [f"{pre}a{2 * i}"])
                job(f"{pre}c{i}", 4, f3[2][1], e0, dl, [f"{pre}a{2 * i + 1}"])
    if pin is not None:
        for j in jobs:
            if j['name'] in pin:
                j['e'] = j['l'] = pin[j['name']]
            else:
                j['l'] = min(j['l'], 63)
    done = {}
    rest = list(jobs)
    order = list(range(9, NG + 9))
    remaining = sum(j['cost'] for j in jobs)
    for gi, g in enumerate(order):
        gm_ = g % NG
        free_after = sum(max(0, CAP - used[h % NG]) for h in order[gi + 1:])
        while True:
            cand = []
            for j in rest:
                e, l = j['e'], j['l']
                if l < 9 or (e < 9 and j['name'][0] not in "01" and False):
                    e, l = e + NG, l + NG
                if e <= g and all(d in done for d in j['deps']):
                    cand.append((l, j))
            if not cand:
                break
            cand.sort(key=lambda z: z[0])
            room = CAP - used[gm_]
            pick = None
            for l, j in cand:
                if j['cost'] <= room:
                    pick = j
                    break
            if pick is None:
                urgent = [j for l, j in cand if l <= g]
                if urgent:
                    pick = urgent[0]
                elif remaining > free_after and room > -4 and room + 4 >= min(j['cost'] for _, j in cand):
                    pick = min((j for _, j in cand), key=lambda j: j['cost'])
                else:
                    break
            alu[g].append(pick['item'])
            used[gm_] += pick['cost']
            remaining -= pick['cost']
            done[pick['name']] = g
            rest.remove(pick)
    assert not rest, [j['name'] for j in rest]
    for j in jobs:
        l = j['l'] + (NG if j['l'] < 9 else 0)
        assert done[j['name']] <= l, (j['name'], done[j['name']], l)
    est = sum(max(32, 8 + u) for u in used)
    if os.environ.get("SCHED"):
        print("loop estimate", est, used)
    wrapped = []
    for g in range(NG, T):
        wrapped += [it for it in alu[g] if "v_" in str(it) and "s_cselect" not in str(it)]
    gm = {}
    for g in range(NG):
        gm[g] = mem[g] + (alu[g + NG] if g + NG < T else []) + alu[g] + tail.get(g, [])
    return gm, wrapped, {n: g for n, g in done.items() if g >= NG}


def rare_ret(L):
    return f"s_cmp_eq_u32 s{sDG}, 0\ns_cbranch_scc1 K2_RET_{L}\ns_branch K2_RETD_{L}"


def rare_path(k, x, buf):
    E = k.emit
    t = vT
    L = f"{x}_{buf}"
    E(f"K2_RARE_{L}:")
    E(f"s_mov_b32 s{sTH[x]}, {fbits(THRESH)}")
    E(f"v_mov_b32 v{t}, v{vM}\ns_nop 1\nv_permlane32_swap_b32 v{vM}, v{t}\ns_nop 1")
    E(f"v_max_f32 v{t}, v{t}, v{vM}\nv_ceil_f32 v{t}, v{t}\nv_max_f32 v{t}, s{sLO[x]}, v{t}")
    E(f"v_sub_f32 v{vNM[x]}, v{vNM[x]}, v{t}")
    for r in range(16):
        E(f"v_sub_f32 v{S[x] + r}, v{S[x] + r}, v{t}")
        E(f"v_mov_b32 v{NEGM[x] + r}, v{vNM[x]}")
    E(f"s_cmp_eq_u32 s{sLO[x]}, 0\ns_cbranch_scc1 K2_RSC_{L}")
    E(f"v_add_f32 v{vLSV[x]}, v{vLs[x][0]}, v{vLs[x][1]}\nv_mov_b32 v{vLs[x][0]}, 0\nv_mov_b32 v{vLs[x][1]}, 0")
    E(f"s_mov_b32 s{sLO[x]}, 0", rare_ret(L))
    E(f"K2_RSC_{L}:")
    E(f"v_sub_f32 v{t + 1}, 0, v{t}\nv_exp_f32 v{t + 1}, v{t + 1}\ns_nop 0")
    E(f"v_mul_f32 v{vLs[x][0]}, v{vLs[x][0]}, v{t + 1}\nv_mul_f32 v{vLs[x][1]}, v{vLs[x][1]}, v{t + 1}")
    for i in range(8):
        p = P(1 - buf, x, i)
        E(f"v_lshlrev_b32 v{t + 2}, 16, v{p}\nv_and_b32 v{t + 3}, 0xffff0000, v{p}")
        E(f"v_mul_f32 v{t + 2}, v{t + 2}, v{t + 1}\nv_mul_f32 v{t + 3}, v{t + 3}, v{t + 1}")
        E(f"v_cvt_pk_bf16_f32 v{p}, v{t + 2}, v{t + 3}")
    E("s_nop 15")
    for r in range(0, 64, 4):
        for i in range(4):
            E(f"v_accvgpr_read_b32 v{t + 2 + i}, a{aO + x * 64 + r + i}")
        for i in range(4):
            E(f"v_mul_f32 v{t + 2 + i}, v{t + 2 + i}, v{t + 1}")
        for i in range(4):
            E(f"v_accvgpr_write_b32 a{aO + x * 64 + r + i}, v{t + 2 + i}")
    E(rare_ret(L))


def ctx_addr(sqb_expr, x_in_addr):
    pass


def hooks(k):
    E = k.emit
    E("K2_EVENT:")
    E(f"s_mov_b32 s{sDG}, 0\ns_cmp_lg_u32 s{sU}, s{sSW}\ns_cbranch_scc1 K2_EV2")
    E(f"s_cmp_eq_u32 s{sG}, 0\ns_cbranch_scc1 K2_SW0")
    for r in range(64):
        E(f"v_accvgpr_write_b32 a{aQ + r}, v{QBS + r}")
    for r in range(32):
        E(f"v_mov_b32 v{NEGM[0] + r}, 0")
    E(f"v_mov_b32 v{vNM[0]}, 0\nv_mov_b32 v{vNM[1]}, 0")
    for x in range(2):
        E(f"s_mov_b32 s{sTH[x]}, {NINF}\ns_mov_b32 s{sLO[x]}, {NINF}")
    E(f"s_mov_b32 s{sTL}, 17\ns_sub_u32 s{sTD}, 15, s{sPI}\ns_lshl_b32 s{sTD}, s{sTD}, 1\ns_add_u32 s{sTD}, s{sTD}, s{sRS}")
    E("s_branch K2_EV2")
    E("K2_SW0:")
    E(f"v_and_b32 v{vPL}, 31, v0\nbuffer_load_ubyte v{vPL + 1}, v{vPL}, {s(SD, 4)}, s{sFL} offen sc0 sc1")
    E("K2_EV2:")
    E(f"s_cmp_lt_u32 s{sTL}, s{sTD}\ns_cbranch_scc0 K2_EV3")
    E(f"s_sub_u32 s{sEV}, s{sTD}, s{sTL}\ns_add_u32 s{sEV}, s{sEV}, s{sU}\ns_cmp_gt_u32 s{sSW}, s{sU}\ns_cselect_b32 s{sT}, s{sSW}, 99\ns_min_u32 s{sEV}, s{sEV}, s{sT}")
    E("s_branch K2_SWRET")
    E("K2_EV3:")
    E(f"s_add_u32 s{sEV}, s{sU}, 1\ns_cmp_eq_u32 s{sTL}, s{sTD}\ns_cbranch_scc0 K2_EVFULL")
    E(f"s_mov_b32 s{sDG}, 1\ns_branch K2_SWRETD")
    E("K2_EVFULL:")
    for r in range(32):
        E(f"v_mov_b32 v{NEGM[0] + r}, v{vNEG}")
    E(f"s_mov_b32 s{sTH[0]}, 0x7f800000\ns_mov_b32 s{sTH[1]}, 0x7f800000\ns_branch K2_SWRET")
    E("K2_FINB:")
    E(f"s_cmp_eq_u32 s{sG}, 0\ns_cbranch_scc1 K2_FB0")
    t = QBS
    E(f"s_cmp_eq_u32 s{sLO[0]}, 0\ns_cbranch_scc1 K2_FB1")
    for x in range(2):
        E(f"v_add_f32 v{vLSV[x]}, v{vLs[x][0]}, v{vLs[x][1]}\nv_mov_b32 v{vLs[x][0]}, 0\nv_mov_b32 v{vLs[x][1]}, 0\nv_sub_f32 v{vNM[x]}, 0, v{vNEG}")
    E("K2_FB1:")
    for x in range(2):
        E(f"v_mov_b32 v{t + 2 * x}, v{vLSV[x]}")
    E("s_nop 1")
    for x in range(2):
        E(f"v_permlane32_swap_b32 v{vLSV[x]}, v{t + 2 * x}")
    E("s_nop 1")
    for x in range(2):
        E(f"v_add_f32 v{t + 2 * x}, v{t + 2 * x}, v{vLSV[x]}\nv_rcp_f32 v{t + 2 * x}, v{t + 2 * x}")
    E(f"s_lshl_b32 s{sT}, s{sPI}, 2\ns_lshl_b32 s{sT2}, s{sRS}, 1\ns_add_u32 s{sT}, s{sT}, s{sT2}")
    for x in range(2):
        E(f"v_mov_b32 v{t + 2 * x + 1}, v{t + 2 * x}")
    E(f"s_mul_i32 s{sT}, s{sT}, {CTXU_STEPS}\ns_lshl_b32 s{sT2}, s{sHD}, 3\ns_add_u32 s{sT}, s{sT}, s{sT2}")
    E(f"s_lshl_b32 s{sT}, s{sT}, 10\ns_add_u32 s{sT}, s{sT}, {WS_CTXU}")
    for i in range(4):
        E(f"v_mov_b32 v{t + 4 + i}, 0")
    for x in range(2):
        for f in range(8):
            b = t + 8 + 8 * (f % 4)
            for i in range(8):
                E(f"v_accvgpr_read_b32 v{b + i}, a{aO + x * 64 + 8 * f + i}")
            if f % 2 == 1:
                E(mfma(('a', aO + x * 64 + 8 * (f - 1)), ('v', t + 4), ('v', t + 4), 0))
            for i in range(4):
                E(f"v_pk_mul_f32 {v(b + 2 * i, 2)}, {v(b + 2 * i, 2)}, {v(t + 2 * x, 2)}")
            for i in range(4):
                E(f"v_cvt_pk_bf16_f32 v{b + i}, v{b + 2 * i}, v{b + 2 * i + 1}")
            E(f"buffer_store_dwordx4 {v(b, 4)}, v{vL16}, {s(SS, 4)}, s{sT} offen offset:{1024 * (f % 4)} sc1")
            if f == 3:
                E(f"s_add_u32 s{sT}, s{sT}, 4096")
            if f == 7 and x == 0:
                E(f"s_add_u32 s{sT}, s{sT}, {CTXU_STEPS * 1024 - 4096}")
    E("s_branch K2_FBOK")
    E("K2_FB0:")
    E("s_waitcnt vmcnt(2)")
    E(f"v_cmp_ne_u32 vcc, 1, v{vPL + 1}\ns_nop 1\ns_cbranch_vccz K2_FBOK")
    E(f"K2_FBLP:\ns_sleep 2\nbuffer_load_ubyte v{vPL + 1}, v{vPL}, {s(SD, 4)}, s{sFL} offen sc0 sc1\ns_waitcnt vmcnt(0)")
    E(f"v_cmp_ne_u32 vcc, 1, v{vPL + 1}\ns_nop 1\ns_cbranch_vccnz K2_FBLP")
    E(f"K2_FBOK:\ns_cmp_eq_u32 s{sDG}, 0\ns_cbranch_scc1 K2_FBRET\ns_branch K2_FBRETD")


QACC = 48
aXN = 0
aWF = 192


def wq_dma(j):
    out = []
    for i in range(4):
        g = []
        if i == 0:
            g += [I(f"s_add_u32 m0, s{sWM}, {j * 16384}"), I(f"s_add_u32 s{sDO}, s{sWQ}, {j * 64 * 8192}")]
        g.append(VM(f"buffer_load_dwordx4 v{vQD + i}, {s(SQ, 4)}, s{sDO} offen offset:{1024 * i} lds", f"wq{j}"))
        out.append(g)
    return out


def xn_loads(j):
    out = []
    for x in range(2):
        for cs in range(4):
            g = []
            if cs == 0:
                g.append(I(f"s_add_u32 s{sDO}, s{sXN}, {x * 32768 + j * 4096}"))
            g.append(VM(f"buffer_load_dwordx4 {a(aXN + (j % 4) * 32 + (x * 4 + cs) * 4, 4)}, v{vL16}, {s(SS, 4)}, "
                        f"s{sDO} offen offset:{1024 * cs}", f"xn{j}"))
            out.append(g)
    return out


def znorm():
    ld = [[I(x) for x in (f"s_lshr_b32 s{sGM}, s2, 3", f"s_and_b32 s{sGP}, s2, 7", f"s_lshl_b32 s{sT}, s{sGM}, 1", f"s_add_u32 s{sT}, s{sT}, s{sG}",
                          f"s_lshl_b32 s{sT}, s{sT}, 11", f"s_add_u32 s{sT}, s{sT}, {WS_STAT}", f"v_lshlrev_b32 v{ZT}, 2, v0")]]
    for i in range(0, 8, 2):
        ld.append([VM(f"buffer_load_dword v{ZT + 4 + i + e}, v{ZT}, {s(SS, 4)}, s{sT} offen offset:{256 * (i + e)}", "zn") for e in range(2)])
    ld.append([I(x) for x in (f"s_mul_i32 s{sGZ}, s{sGP}, 384", f"s_lshl_b32 s{sT}, s{sGM}, 2", f"s_add_u32 s{sGZ}, s{sGZ}, s{sT}",
                              f"s_add_u32 s{sGZ}, s{sGZ}, s{sW}", f"s_lshl_b32 s{sGZ}, s{sGZ}, 10")])
    for f in range(3):
        ld.append([I(f"s_add_u32 s{sT}, s{sGZ}, {WS_Z2R + f * 128 * 1024}"),
                   VM(f"buffer_load_dwordx4 {v(ZT + 12 + 4 * f, 4)}, v{vL16}, {s(SS, 4)}, s{sT} offen", "zn")])
    z = ZT + 4
    AB = ZT + 24
    c = [WVM("zn")]
    c += flat([f"v_add_f32 v{z}, v{z}, v{z + 1}\nv_add_f32 v{z + 2}, v{z + 2}, v{z + 3}\nv_add_f32 v{z + 4}, v{z + 4}, v{z + 5}\nv_add_f32 v{z + 6}, v{z + 6}, v{z + 7}",
               f"v_add_f32 v{z}, v{z}, v{z + 2}\nv_add_f32 v{z + 4}, v{z + 4}, v{z + 6}\nv_add_f32 v{z}, v{z}, v{z + 4}",
               f"v_mul_f32 v{z}, {fbits(1 / 688)}, v{z}\nv_mov_b32 v{z + 1}, v{z}\ns_nop 1\nv_permlane32_swap_b32 v{z}, v{z + 1}\ns_nop 1",
               f"v_fma_f32 v{z + 1}, -v{z}, v{z}, v{z + 1}\nv_max_f32 v{z + 1}, 0, v{z + 1}\nv_add_f32 v{z + 1}, {fbits(LN_EPS)}, v{z + 1}\nv_rsq_f32 v{z + 1}, v{z + 1}\ns_nop 0",
               f"v_mul_f32 v{z}, v{z}, v{z + 1}\nv_sub_f32 v{z}, 0, v{z}",
               f"s_lshl_b32 s{sT}, s{sW}, 8\ns_add_u32 s{sT}, s{sT}, {SPARE}",
               f"v_lshlrev_b32 v{z + 2}, 2, v20\nv_add_u32 v{z + 2}, s{sT}, v{z + 2}"])
    c += [LG(f"ds_write_b32 v{z + 2}, v{z + 1}", "zw"), LG(f"ds_write_b32 v{z + 2}, v{z} offset:128", "zw")]
    c += flat([f"s_lshl_b32 s{sT2}, s{sRS}, 6\ns_add_u32 s{sT}, s{sT}, s{sT2}\nv_lshlrev_b32 v{z + 3}, 5, v21\nv_add_u32 v{z + 3}, s{sT}, v{z + 3}"])
    for i in range(2):
        c += [LG(f"ds_read_b128 {v(AB + 4 * i, 4)}, v{z + 3} offset:{16 * i}", "zr"),
              LG(f"ds_read_b128 {v(AB + 8 + 4 * i, 4)}, v{z + 3} offset:{128 + 16 * i}", "zr")]
    c += flat([f"s_lshl_b32 s{sGP}, s{sGP}, 5\ns_add_u32 s{sGP}, s{sGP}, s{sGM}\ns_nop 0\ns_nop 0"])
    c += [WLG("zr")]
    for f in range(3):
        for i in range(4):
            x_ = ZT + 12 + 4 * f + i
            c += flat([f"v_lshlrev_b32 v{z}, 16, v{x_}\nv_and_b32 v{z + 1}, 0xffff0000, v{x_}",
                       f"v_fma_f32 v{z}, v{z}, v{AB + 2 * i}, v{AB + 8 + 2 * i}\nv_fma_f32 v{z + 1}, v{z + 1}, v{AB + 2 * i + 1}, v{AB + 9 + 2 * i}",
                       f"v_cvt_pk_bf16_f32 v{x_}, v{z}, v{z + 1}"])
        c += [I(f"s_add_u32 s{sT}, s{sGZ}, {WS_Z2N + f * 128 * 1024}"),
              VM(f"buffer_store_dwordx4 {v(ZT + 12 + 4 * f, 4)}, v{vL16}, {s(SS, 4)}, s{sT} offen sc1", "zs")]
    cg = [c[i:i + 4] for i in range(0, len(c), 4)]
    return ld, cg


def qproj(k):
    E = k.emit
    extra = {}

    def spread(c0, c1, groups):
        n = len(groups)
        for i, g in enumerate(groups):
            extra.setdefault(c0 + (i * (c1 - c0)) // n, []).append(g)

    def rd(c, fb):
        j, cs = c // 4, c % 4
        return [LG(f"ds_read_b64_tr_b16 {a(fb + 4 * d + 2 * sec, 2)}, v{vQR + (j // 4) * 4 + d} "
                   f"offset:{(j % 4) * 16384 + cs * 4096 + sec * 1024}", f"q{c}") for d in range(4) for sec in range(2)]

    def fbuf(c):
        return aWF + (c % 4) * 16

    def mf1(c, d, x):
        j, cs = c // 4, c % 4
        return mfma(('v', QACC + (x * 4 + d) * 16), ('a', fbuf(c) + 4 * d), ('a', aXN + (j % 4) * 32 + (x * 4 + cs) * 4),
                    0 if c == 0 else None)

    zl, zc = znorm()

    def kvpre(base, pre, so, so2, tag="kv"):
        d1, d2 = dma4(so, tag), dma4(so2, tag)
        return [[I(f"s_add_u32 m0, s{sW8}, {base}")] + [I(x) for x in pre] + [d1[0]]] + [[d] for d in d1[1:]] + \
               [[I(f"s_add_u32 m0, s{sW8}, {base + 4096}"), I("s_nop 0"), d2[0]]] + [[d] for d in d2[1:]]

    k0 = kvpre(0, [f"s_add_u32 s{sKO2}, s{sKN}, 4096"], sKN, sKO2, "k0")
    k1 = kvpre(32768, [f"s_add_u32 s{sVO}, s{sKN}, {WS_VF - WS_KF}", f"s_add_u32 s{sVO2}, s{sVO}, 4096",
                       f"s_add_u32 s{sKN}, s{sKN}, 0x4000", f"s_add_u32 s{sKO2}, s{sKN}, 4096"], sKN, sKO2)
    v0_ = kvpre(VB0, ["s_nop 0"], sVO, sVO2)
    q = []
    for e, grp in ((0, wq_dma(2) + xn_loads(2) + wq_dma(3) + xn_loads(3) + wq_dma(4)), (4, xn_loads(4)), (0, wq_dma(5)), (8, xn_loads(5)),
                   (0, wq_dma(6) + zl), (12, xn_loads(6)), (0, wq_dma(7)), (16, xn_loads(7)), (6, k0), (14, k1)):
        q += [(e, g) for g in grp]
    RATE = 4
    c_ = 0
    n_ = 0
    for e, g in q:
        if e > c_:
            c_, n_ = e, 0
        extra.setdefault(c_, []).append(g)
        n_ += 1
        if n_ == RATE:
            c_, n_ = c_ + 1, 0
    assert c_ <= 27, c_
    valu = {}
    for i, g in enumerate(zc):
        valu.setdefault(19 + (i * 8) // len(zc), []).append(g)

    E(WVM("wq0"), "s_barrier")
    stamp(k, 6)
    E(rd(0, fbuf(0)), rd(1, fbuf(1)))
    for c in range(28):
        j, cs = c // 4, c % 4
        n = c + 2
        if n % 4 == 0:
            lstamp(k, 19, 3 * (n // 4))
            E(WLG(f"q{n - 1}"), WVM(f"wq{n // 4}"))
            lstamp(k, 19, 3 * (n // 4) + 1)
            E("s_barrier")
        E(WLG(f"q{c}"))
        if cs == 0:
            E(WVM(f"xn{j}"))
            lstamp(k, 19, 3 * j + 2)
        r_ = rd(n, fbuf(n))
        ex, va = extra.get(c, []), valu.get(c, [])
        gm_ = {}
        for i in range(8):
            gm_[i] = [r_[i]] + ([ex[i // 2]] if (i % 2 == 0 and i // 2 < len(ex)) else []) + [va[z] for z in range(len(va)) if (z * 8) // len(va) == i]
        E(place([mf1(c, d, x) for d in range(4) for x in range(2)], gm_))
    E(rd(30, fbuf(30)), rd(31, fbuf(31)))
    E(f"v_mov_b32 v{vT}, {fbits(QSCALE)}\nv_mov_b32 v{vT + 1}, {fbits(QSCALE)}")
    E(f"v_add_u32 v{vT + 2}, s{sW8}, v{vL16}\nv_add_u32 v{vT + 3}, {SPARE}, v{vT + 2}\nv_add_u32 v{vT + 2}, {VB0 + 32768}, v{vT + 2}")
    E(WVM("xn7"), WLG0, "s_barrier")

    def epi(d, x):
        out = []
        for g in range(2):
            b = QACC + (x * 4 + d) * 16 + 8 * g
            out.append([I(f"v_mul_f32 v{b + i}, v{vT}, v{b + i}") for i in range(8)])
            out.append([I(f"v_cvt_pk_bf16_f32 v{b + i}, v{b + 2 * i}, v{b + 2 * i + 1}") for i in range(4)] +
                       [LG(f"ds_write_b128 v{vT + 3 - x}, {v(b, 4)} offset:{(2 * d + g) * 1024}")])
        return out

    tiles = [(d, x) for x in range(2) for d in range(4)]
    for i, (d, x) in enumerate(tiles):
        m = [mf1(c, d, x) for c in range(28, 32)]
        if i == 0:
            E(m[0], v0_[0], m[1:])
        else:
            e = epi(*tiles[i - 1])
            E(m[0], v0_[i], m[1], e[0], e[1], m[2], e[2], m[3], e[3])
    stamp(k, 7)
    E("s_nop 15")
    E(epi(*tiles[-1]))
    E(WVM("k0"), WVM("zs"), WLG0, "s_barrier")
    E(flag_set(sW, SD, sGP, ZT))
    E(VM(f"buffer_load_dwordx4 {v(ZT + 40, 4)}, v{vL16}, {s(SP, 4)}, s{sPF} offen", "pf"), f"s_add_u32 s{sPF}, s{sPF}, 0x100000")
    E(f"s_lshl_b32 s{sT}, s{sRS}, 13\nv_add_u32 v{vT + 4}, s{sT}, v{vL16}")
    E(f"v_add_u32 v{vT + 5}, {SPARE}, v{vT + 4}\nv_add_u32 v{vT + 4}, {VB0 + 32768}, v{vT + 4}")
    E(kreads(vKc, 0))
    for x in range(2):
        for f in range(8):
            E(LG(f"ds_read_b128 {a(aQ + (x * 8 + f) * 4, 4)}, v{vT + 3 - x} offset:{f * 1024}"))
    for x in range(2):
        for f in range(8):
            E(LG(f"ds_read_b128 {v(QBS + (x * 8 + f) * 4, 4)}, v{vT + 5 - x} offset:{f * 1024}"))


ZRING = (('v', 144), ('v', 192), ('a', 128), ('a', 176))
vWS = 48
vPD = 32
vPR = 40
NGS = 5


def g_slot(st):
    return (0, 1, 3, 2, 4)[st % NGS] * 32768


def zreg(st, i):
    kind, base = ZRING[st % 4]
    return (kind, base + i * 4)


def sprinkle(items, groups):
    items = flat(items)
    n, m = len(items), len(groups)
    out, gi = [], 0
    for i, it in enumerate(items):
        while gi < m and gi * n <= i * m:
            out.append(groups[gi])
            gi += 1
        out.append(it)
    return flat(out + groups[gi:])


def g_dma(st):
    out = []
    for i in range(8):
        g = []
        if i % 4 == 0:
            g += [I(f"s_add_u32 m0, s{sW8}, {g_slot(st) + (i // 4) * 4096}"), I(f"s_add_u32 s{sDO}, s{sGP}, {st * 128}")]
        g.append(VM(f"buffer_load_dwordx4 v{vPD + i}, {s(SP, 4)}, s{sDO} offen offset:{1024 * (i % 4)} lds", f"g{st}"))
        out.append(g)
    return out


def g_zl(st):
    out = []
    for f in range(3):
        for ks in range(4):
            g = []
            if ks == 0:
                g.append(I(f"s_add_u32 s{sGM}, s{sGZ}, {f * 128 * 1024 + st * 4096}"))
            g.append(VM(f"buffer_load_dwordx4 {R(zreg(st, f * 4 + ks), 4)}, v{vL16}, {s(SS, 4)}, "
                        f"s{sGM} offen offset:{1024 * ks} sc1", f"g{st}"))
            out.append(g)
    return out


def g_setup():
    o = [f"v_lshrrev_b32 v{ZT + 32}, 4, v0\nv_lshrrev_b32 v{ZT + 33}, 3, v0\nv_lshlrev_b32 v{ZT + 33}, 12, v{ZT + 33}\nv_and_b32 v{ZT + 34}, 7, v0\nv_xor_b32 v{ZT + 34}, v{ZT + 34}, v{ZT + 32}",
         f"v_lshl_add_u32 v{ZT + 35}, v{ZT + 34}, 4, v{ZT + 33}\nv_xor_b32 v{ZT + 34}, 4, v{ZT + 34}\nv_lshl_add_u32 v{ZT + 36}, v{ZT + 34}, 4, v{ZT + 33}"]
    for i in range(8):
        o.append(f"v_add_u32 v{vPD + i}, {i * 8 * 4096 - (i % 4) * 1024}, v{ZT + 35 + (i % 2)}")
    o.append(f"v_lshrrev_b32 v{ZT + 32}, 5, v0\nv_bfe_u32 v{ZT + 33}, v0, 1, 3\nv_xor_b32 v{ZT + 33}, v{ZT + 33}, v{ZT + 32}")
    o.append(f"v_and_b32 v{ZT + 34}, 31, v0\nv_lshlrev_b32 v{ZT + 34}, 7, v{ZT + 34}\nv_add_u32 v{ZT + 34}, s{sW8}, v{ZT + 34}")
    for ks in range(4):
        o.append(f"v_xor_b32 v{ZT + 35}, {2 * ks}, v{ZT + 33}\nv_lshl_add_u32 v{vPR + ks}, v{ZT + 35}, 4, v{ZT + 34}\nv_add_u32 v{vPR + 4 + ks}, 0x10000, v{vPR + ks}")
    o.append(f"s_lshl_b32 s{sGP}, s{sHD}, 18\ns_lshl_b32 s{sDO}, s{sW}, 10\ns_add_u32 s{sGP}, s{sGP}, s{sDO}")
    o.append(f"s_mul_i32 s{sGZ}, s{sPI}, 384\ns_lshl_b32 s{sGM}, s{sW}, 5\ns_add_u32 s{sGZ}, s{sGZ}, s{sGM}")
    o.append(f"s_lshl_b32 s{sGZ}, s{sGZ}, 10\ns_add_u32 s{sGZ}, s{sGZ}, {WS_Z2N}")
    return o


def merge(k, keep):
    E = k.emit
    send = 1 - keep
    t = vT
    wr = [LG(f"ds_write_b128 v{t + 4 + i // 8}, {a(aO + send * 64 + 4 * i, 4)} offset:{(i % 8) * 1024}") for i in range(16)]
    E(LG(f"ds_read_b64 {v(t + 8, 2)}, v{t + 4}", "mb"))
    d0, d1 = g_dma(0), g_dma(1)
    E(weave(pv(send, 1), d0, 0, 8))
    E(WLG("mb"))
    fac = [f"v_min_f32 v{t}, v{vNM[keep]}, v{t + 8}", f"v_sub_f32 v{t + 2}, v{t}, v{vNM[keep]}", f"v_sub_f32 v{t + 8}, v{t}, v{t + 8}",
           f"v_exp_f32 v{t + 2}, v{t + 2}", f"v_exp_f32 v{t + 8}, v{t + 8}", "s_nop 0",
           f"v_mul_f32 v{t}, v{vLs[keep][0]}, v{t + 2}", f"v_fmac_f32 v{t}, v{t + 9}, v{t + 8}", f"v_rcp_f32 v{t}, v{t}", "s_nop 0",
           f"v_mul_f32 v{t + 2}, v{t + 2}, v{t}", f"v_mul_f32 v{t + 8}, v{t + 8}, v{t}", f"v_mov_b32 v{t + 3}, v{t + 2}", f"v_mov_b32 v{t + 9}, v{t + 8}"]
    m = pv(keep, 1)
    E(m[0], d1[0], fac[:6], m[1], d1[1], fac[6:], weave(m[2:], interleave2(wr, d1[2:]), 0, 6))
    E(WLG0, "s_barrier")
    RX = S[0]
    for i in range(16):
        E(LG(f"ds_read_b128 {v(RX + 4 * i, 4)}, v{t + 6 + i // 8} offset:{(i % 8) * 1024}", f"rx{i}"))
    body = []
    for f in range(8):
        b = RX + 8 * f
        body += [I(f"v_accvgpr_read_b32 v{PB + i}, a{aO + keep * 64 + 8 * f + i}") for i in range(8)]
        body += [WLG(f"rx{2 * f + 1}")]
        body += [I(f"v_pk_mul_f32 {v(b + 2 * i, 2)}, {v(b + 2 * i, 2)}, {v(t + 8, 2)}") for i in range(4)]
        body += [I(f"v_pk_fma_f32 {v(b + 2 * i, 2)}, {v(PB + 2 * i, 2)}, {v(t + 2, 2)}, {v(b + 2 * i, 2)}") for i in range(4)]
        body += [I(f"v_cvt_pk_bf16_f32 v{PB + 8 + 4 * (f % 4) + i}, v{b + 2 * i}, v{b + 2 * i + 1}") for i in range(4)]
        body += [VM(f"buffer_store_dwordx4 {v(PB + 8 + 4 * (f % 4), 4)}, v{vL16}, {s(SS, 4)}, s{sT if f < 4 else sT2} offen offset:{1024 * (f % 4)} sc1", "cs")]
    E(sprinkle(body, g_zl(1)))


def interleave2(x, y):
    out = []
    n = max(len(x), len(y))
    for i in range(n):
        out += x[(i * len(x)) // n:((i + 1) * len(x)) // n] + y[(i * len(y)) // n:((i + 1) * len(y)) // n]
    return out


def gphase(k):
    E = k.emit

    def reads(st):
        o = g_slot(st)
        sg, off = (0, o) if o < 65536 else (1, o - 65536)
        out = []
        for ks in range(4):
            for ts in range(2):
                if off + ts * 4096 < 65536:
                    out.append(LG(f"ds_read_b128 {v(vWS + (st % 2) * 32 + (ts * 4 + ks) * 4, 4)}, v{vPR + sg * 4 + ks} "
                                  f"offset:{off + ts * 4096}", f"p{st}"))
                else:
                    out.append(LG(f"ds_read_b128 {v(vWS + (st % 2) * 32 + (ts * 4 + ks) * 4, 4)}, v{ZT + 40 + ks} "
                                  f"offset:{off - 65536 + ts * 4096}", f"p{st}"))
        return out

    def mf(st):
        return [mfma(('a', (ts * 3 + f) * 16), zreg(st, f * 4 + ks),
                     ('v', vWS + (st % 2) * 32 + (ts * 4 + ks) * 4), 0 if (st == 0 and ks == 0) else None)
                for ks in range(4) for f in range(3) for ts in range(2)]

    for ks in range(4):
        E(f"v_add_u32 v{ZT + 40 + ks}, 0x20000, v{vPR + ks}")
    E(f"s_load_dwordx2 s[64:65], s[0:1], {KA_WO}\ns_load_dwordx2 s[66:67], s[0:1], {KA_WOUT}", WLG0)
    E("s_barrier")
    E(WVM("g0"))
    stamp(k, 10)
    E(reads(0))
    sched = {st: g_dma(st + 2) + g_zl(st + 2) for st in range(6)}
    for st in range(8):
        E(WLG(f"p{st}"))
        ld = sched.get(st, [])
        m = mf(st)
        n1 = (len(ld) * 14) // 24
        first = weave(m[:14], ld[:n1], 0, 14)
        second = ([WVM(f"g{st + 1}")] + weave(m[14:], interleave2(reads(st + 1), ld[n1:]), 0, 9)) if st + 1 < 8 else m[14:]
        if st == 6:
            fin = flat([f"s_lshl_b32 s{sT}, s{sHD}, 1\ns_add_u32 s{sT}, s{sT}, s{sG}",
                        f"s_mul_i32 s{sT2}, s{sPI}, 6\ns_mul_i32 s{sGP}, s{sRS}, 3\ns_add_u32 s{sT2}, s{sT2}, s{sGP}",
                        f"s_mul_i32 s{sGP}, s{sT}, 48\ns_add_u32 s{sGP}, s{sGP}, s{sT2}\ns_lshl_b32 s{sGP}, s{sGP}, 10\ns_add_u32 s{sGP}, s{sGP}, {WS_Z1}",
                        f"s_mul_i32 s{sGZ}, s{sT}, {CTXU_STEPS}\ns_add_u32 s{sGZ}, s{sGZ}, s{sT2}\ns_add_u32 s{sGZ}, s{sGZ}, 256",
                        f"s_lshl_b32 s{sGZ}, s{sGZ}, 10\ns_add_u32 s{sGZ}, s{sGZ}, {WS_CTXU}",
                        f"s_lshl_b32 s{sT}, s{sT}, 6\nv_and_b32 v21, 31, v0\nv_lshlrev_b32 v21, 1, v21"])
            fin += [VM(f"buffer_load_dwordx4 {v(4 + 4 * i, 4)}, v{vL16}, {s(SS, 4)}, s{sGP} offen offset:{1024 * i}", "fin") for i in range(3)]
            fin += [VM(f"buffer_load_ushort v16, v21, {s(SB, 4)}, s{sT} offen", "fin")]
            fin += flat([f"s_lshl_b32 s{sPF}, s2, 5\ns_add_u32 s{sPF}, s{sPF}, {WS_FLAG3}\nv_mov_b32 v17, 0\nv_and_b32 v18, 7, v0\nv_lshlrev_b32 v18, 2, v18"])
            fin += [VM(f"buffer_store_dword v17, v18, {s(SS, 4)}, s{sPF} offen", "pf")]
            fin += flat([f"s_mov_b32 s{SQ}, s64\ns_mov_b32 s{SQ + 1}, s65\ns_mov_b32 s{SP}, s66\ns_mov_b32 s{SP + 1}, s67\ns_mov_b32 s{SP + 2}, {688 * 1024:#x}",
                         f"s_lshl_b32 s{sPF}, s2, 2\ns_add_u32 s{sPF}, s{sPF}, s{sW}\ns_lshl_b32 s{sT}, s{sPF}, 12\ns_lshl_b32 s{sPF}, s{sPF}, 10"])
            fin += [VM(f"buffer_load_dwordx4 {v(ZT + 32, 4)}, v{vL16}, {s(SQ, 4)}, s{sT} offen offset:{1024 * i}", "pf") for i in range(0 if "nowo" in EXP else 4)]
            fin += [VM(f"buffer_load_dwordx4 {v(ZT + 32, 4)}, v{vL16}, {s(SP, 4)}, s{sPF} offen", "pf")]
            fin += flat([f"s_mul_i32 s{sT}, s{sW}, 24576\nv_add_u32 v20, s{sT}, v{vL16}",
                         f"s_mul_i32 s{sT}, s{sW}, 6144\nv_add_u32 v21, s{sT}, v{vL16}\nv_add_u32 v22, 49152, v21"])
            first = weave(m[:14], [fin[i:i + 3] for i in range(0, len(fin), 3)], 0, 14)
        lstamp(k, 19, 32 + 3 * st)
        E(first)
        lstamp(k, 19, 33 + 3 * st)
        E(second[:1])
        lstamp(k, 19, 34 + 3 * st)
        E(second[1:])
    stamp(k, 11)
    E("s_barrier\ns_nop 7")
    for ts in range(2):
        for f in range(3):
            for q in range(4):
                E(LG(f"ds_write_b128 v20, {a((ts * 3 + f) * 16 + 4 * q, 4)} offset:{((ts * 6 + f * 2) * 2 + q) * 1024}"))
    E(WLG0, "s_barrier")
    for i in range(3):
        for w in range(4):
            for q in range(2):
                E(LG(f"ds_read_b128 {v(48 + i * 32 + w * 8 + q * 4, 4)}, v{21 + w // 2} "
                     f"offset:{(w % 2) * 24576 + i * 2048 + q * 1024}", f"x{i}"))
    E(WVM("fin"), "v_lshlrev_b32 v16, 16, v16")
    for i in range(3):
        E(WLG(f"x{i}"))
        b = 48 + i * 32
        for r in range(8):
            E(f"v_add_f32 v{b + r}, v{b + r}, v{b + 8 + r}\nv_add_f32 v{b + 16 + r}, v{b + 16 + r}, v{b + 24 + r}")
        for r in range(8):
            E(f"v_add_f32 v{b + r}, v{b + r}, v16")
        for r in range(8):
            E(f"v_add_f32 v{b + r}, v{b + r}, v{b + 16 + r}")
        for r in range(4):
            z = 4 + 4 * i + r
            E(f"v_lshlrev_b32 v24, 16, v{z}\nv_and_b32 v25, 0xffff0000, v{z}")
            E(f"v_mul_f32 v{b + 2 * r}, v{b + 2 * r}, v24\nv_mul_f32 v{b + 2 * r + 1}, v{b + 2 * r + 1}, v25")
        for r in range(4):
            E(f"v_cvt_pk_bf16_f32 v{b + r}, v{b + 2 * r}, v{b + 2 * r + 1}")
        E(VM(f"buffer_store_dwordx4 {v(b, 4)}, v{vL16}, {s(SS, 4)}, s{sGZ} offen offset:{1024 * i} sc1"))


def build():
    k = Kern("k2_kernel")
    E = k.emit
    E("s_cmp_ge_u32 s2, 256\ns_cbranch_scc1 K2_END")
    code_prefetch(k, "k3_kernel", 0, 248)
    stamp_init(k)
    stamp(k, 0)
    E(f"s_load_dwordx2 s[64:65], s[0:1], {KA_WQ}")
    E(f"s_load_dwordx4 s[72:75], s[0:1], {KA_DBG}")
    E(f"s_load_dwordx4 s[68:71], s[0:1], {KA_WSP}")
    E("v_lshrrev_b32 v1, 6, v0\nv_and_b32 v0, 63, v0")
    E(f"s_and_b32 s{sHD}, s2, 7\ns_lshl_b32 s{sHD}, s{sHD}, 2\ns_lshr_b32 s{sT}, s2, 3\ns_lshr_b32 s{sPI}, s{sT}, 2")
    E(f"v_readfirstlane_b32 s{sW}, v1")
    E(f"s_and_b32 s{sT}, s{sT}, 3\ns_add_u32 s{sHD}, s{sHD}, s{sT}")
    E(f"s_and_b32 s{sRS}, s{sW}, 1\ns_lshr_b32 s{sG}, s{sW}, 1\ns_lshl_b32 s{sW8}, s{sW}, 13")
    E(f"v_lshlrev_b32 v{vL16}, 4, v0")
    E("v_and_b32 v20, 31, v0\nv_lshrrev_b32 v21, 5, v0\nv_lshrrev_b32 v22, 4, v0")
    E("v_bfe_u32 v23, v0, 2, 2\nv_and_b32 v24, 3, v0\nv_bfe_u32 v25, v0, 4, 1")
    E("v_xor_b32 v26, v23, v22\nv_lshlrev_b32 v27, 13, v22\nv_lshl_add_u32 v27, v26, 6, v27\nv_lshl_add_u32 v27, v24, 4, v27")
    for i in range(4):
        E(f"v_add_u32 v{vQD + i}, {i * (32768 - 1024)}, v27")
    E(f"s_sub_u32 s{sT}, 15, s{sPI}\ns_cmp_eq_u32 s{sG}, 0\ns_cselect_b32 s{sT}, s{sT}, s{sPI}")
    E(f"s_lshl_b32 s{sTD}, s{sT}, 1\ns_add_u32 s{sTD}, s{sTD}, s{sRS}\ns_lshl_b32 s{sXN}, s{sTD}, 16\ns_add_u32 s{sXN}, s{sXN}, {WS_XN}")
    E(f"s_lshl_b32 s{sWQ}, s{sW}, 17\ns_lshl_b32 s{sT}, s{sHD}, 8\ns_add_u32 s{sWQ}, s{sWQ}, s{sT}\ns_lshl_b32 s{sWM}, s{sW}, 12")
    E("s_waitcnt lgkmcnt(0)")
    E(srd(SQ, 64, 512 * 8192), srd(SS, 74, WS_SIZE))
    for j in range(2):
        E(wq_dma(j), xn_loads(j))
    E(srd(SP, 68, 2048 * 4096), srd(SB, 70, 4096), srd(SD, 72, 256))
    E("v_lshl_add_u32 v26, v21, 3, v23\nv_lshlrev_b32 v26, 8, v26\nv_lshl_add_u32 v26, v25, 5, v26\nv_lshl_add_u32 v26, v24, 3, v26")
    for d in range(4):
        E(f"v_xor_b32 v27, {d}, v23\nv_lshl_add_u32 v{vQR + d}, v27, 6, v26\nv_add_u32 v{vQR + 4 + d}, 0x10000, v{vQR + d}")
    E(f"s_lshl_b32 s{sT}, s{sG}, 14\nv_add_u32 v{vKc}, s{sT}, v{vL16}\nv_add_u32 v{vKn}, 32768, v{vKc}\nv_add_u32 v{vVc}, {VB0}, v{vKc}\nv_mov_b32 v{vVp}, v{vVc}")
    E(f"v_lshlrev_b32 v26, 2, v21\nv_sub_u32 v{vD0}, v20, v26\nv_mov_b32 v{vNEG}, {fbits(NEG)}")
    E(f"s_lshl_b32 s{sKN}, s{sHD}, 19\ns_lshl_b32 s{sT}, s{sRS}, 13\ns_add_u32 s{sKN}, s{sKN}, s{sT}\ns_add_u32 s{sKN}, s{sKN}, {WS_KF}")
    E(f"s_lshl_b32 s{sT}, s{sPI}, 1\ns_add_u32 s{sT}, s{sT}, 2\ns_sub_u32 s{sT2}, 18, s{sT}\ns_lshl_b32 s{sT2}, s{sT2}, 14")
    E(f"s_cmp_eq_u32 s{sG}, 0\ns_cselect_b32 s{sSW}, 8, s{sT}\ns_cselect_b32 s{sJUMP}, 0x4000, s{sT2}\ns_sub_u32 s{sSW2}, s{sSW}, 2")
    E(f"s_lshl_b32 s{sFL}, s{sPI}, 5\ns_lshl_b32 s{sPF}, s2, 2\ns_add_u32 s{sPF}, s{sPF}, s{sW}\ns_lshl_b32 s{sPF}, s{sPF}, 10")
    if "nowsp" in EXP:
        E(f"s_mov_b32 s{sPF}, 0x1000000")
    stamp(k, 5)
    rstamp(k, 19, 24)
    qproj(k)
    gm, wrapped, pin = schedule_loop()
    gmd, wrapped_d, pin_d = schedule_loop(True, pin)
    assert pin == pin_d
    wtxt = [it[1] for it in flat(wrapped)]
    for r in range(16):
        E(f"v_mov_b32 v{P(1, 0) + r}, 0\nv_mov_b32 v{NEGM[0] + r}, 0\nv_mov_b32 v{NEGM[1] + r}, 0")
        late = f"v_exp_f32 v{S[1] + r}, v{S[1] + r}" in wtxt
        E(f"v_mov_b32 v{S[1] + r}, {'v%d' % vNEG if late else '0'}")
    assert not any(f"v{S[0] + r}," in w or w.endswith(f"v{S[0] + r}") for w in wtxt for r in range(16))
    for r in (8, 9, 10, 11, 12, 13):
        E(f"v_mov_b32 v{r}, 0")
    E(f"v_mov_b32 v{vT}, 0x7f800000")
    for r0 in range(0, 16, 4):
        for r in range(r0, r0 + 4):
            E(f"v_cmp_gt_i32 s[{64 + 2 * (r % 4)}:{65 + 2 * (r % 4)}], {8 * (r // 4) + r % 4}, v{vD0}\nv_mov_b32 v{NEGB + r}, v{vNEG}")
        for r in range(r0, r0 + 4):
            E(f"v_cndmask_b32 v{MSK + r}, v{vT}, v{vNEG}, s[{64 + 2 * (r % 4)}:{65 + 2 * (r % 4)}]")
    E(f"s_mov_b32 s{sEV}, 0\ns_mov_b32 s{sDG}, 0")
    for x in range(2):
        E(f"s_mov_b32 s{sTH[x]}, {NINF}\ns_mov_b32 s{sLO[x]}, {NINF}")
    for i in range(8):
        E(mfma(('a', aO + 16 * i), ('v', P(1, 0)), ('v', P(1, 0)), 0))
    E(f"s_mov_b32 s{sU}, 0\ns_mov_b32 s{sTL}, 0\ns_mov_b32 s{sMK}, s{sW8}\ns_add_u32 s{sMV}, s{sW8}, {VB0 + 32768}")
    E(WLG0)
    stamp(k, 1)
    rstamp(k, 19, 26)
    def body(gm_, diag):
        sf = "D" if diag else ""
        k.set_state(["kv"] * 16 + ["pf"], ["k"] * 8)
        main = qk(0) + qk(1) + pv(0, 1) + pv(1, 1) + qk(0, NEGB if diag else None) + qk(1) + pv(0, 0) + pv(1, 0)
        gm_[-1] = [I(f"K2_SWRET{sf}:"), WLG("k")]
        gm_[31] = gm_[31] + [I(f"s_cmp_eq_u32 s{sU}, s{sSW}"), I("s_cbranch_scc1 K2_FINB"), I(f"K2_FBRET{sf}:")]
        gm_[63] = gm_[63] + [I(f"s_cmp_lt_u32 s{sU}, 17"), I("s_cbranch_scc1 K2_LOOP")]
        E(place(main, gm_))

    if os.environ.get("ALIGN"):
        E(f".p2align {os.environ['ALIGN']}")
    E("K2_LOOP:")
    if PROF and os.environ.get("PROF2"):
        E("s_memtime s[78:79]", "s_waitcnt lgkmcnt(0)", f"s_mov_b32 m0, s{sU}", "s_nop 0", "v_writelane_b32 v255, s78, m0")
    E(f"s_cmp_eq_u32 s{sU}, s{sEV}\ns_cbranch_scc1 K2_EVENT")
    body(gm, False)
    E("K2_TAIL:")
    stamp(k, 8)
    rstamp(k, 19, 28)
    if PROF:
        E(f"s_lshl_b32 s78, s2, 2\ns_add_u32 s78, s78, s{sW}\ns_lshl_b32 s78, s78, 8\ns_add_u32 s78, s78, {WS_PROF + 0x100000}\nv_lshlrev_b32 v254, 2, v0")
        E(f"buffer_store_dword v255, v254, {s(SS, 4)}, s78 offen")
    E(vreads(vVp, 1))
    gs = g_setup()
    E(gs[-2:])
    t = vT
    tl = flat(wrapped)
    for x in range(2):
        tl += flat([f"v_add_f32 v{vLs[x][0]}, v{vLs[x][0]}, v{vLs[x][1]}"])
    for x in range(2):
        tl += flat([f"v_mov_b32 v{vLs[x][1]}, v{vLs[x][0]}"])
    tl += flat([f"v_add_u32 v{t + 4}, s{sW8}, v{vL16}\nv_and_b32 v{t + 5}, 0x18000, v{vVp}"])
    for x in range(2):
        tl += flat([f"v_permlane32_swap_b32 v{vLs[x][0]}, v{vLs[x][1]}"])
    tl += flat([f"v_add_u32 v{t + 5}, v{t + 5}, v{t + 4}\nv_add_u32 v{t + 4}, {SPARE}, v{t + 4}"])
    for x in range(2):
        tl += flat([f"v_add_f32 v{vLs[x][0]}, v{vLs[x][0]}, v{vLs[x][1]}"])
    tl += [[I(f"s_cmp_eq_u32 s{sG}, 0"), I("s_cselect_b64 vcc, -1, 0")]]
    tl += flat([f"v_xor_b32 v{t + 6}, 0x4000, v{t + 4}\nv_xor_b32 v{t + 7}, 0x4000, v{t + 5}",
                f"v_cndmask_b32 v{t + 8}, v{vNM[0]}, v{vNM[1]}, vcc\nv_cndmask_b32 v{t + 9}, v{vLs[0][0]}, v{vLs[1][0]}, vcc"])
    tl += [LG(f"ds_write_b64 v{t + 6}, {v(t + 8, 2)}")]
    tl += flat(gs[:-2])
    tl += flat([f"s_sub_u32 s{sT}, 15, s{sPI}\ns_lshl_b32 s{sT}, s{sT}, 2\ns_lshl_b32 s{sT2}, s{sRS}, 1\ns_add_u32 s{sT}, s{sT}, s{sT2}\ns_add_u32 s{sT}, s{sT}, s{sG}",
                f"s_mul_i32 s{sT}, s{sT}, {CTXU_STEPS}\ns_lshl_b32 s{sT2}, s{sHD}, 3\ns_add_u32 s{sT}, s{sT}, s{sT2}",
                f"s_lshl_b32 s{sT}, s{sT}, 10\ns_add_u32 s{sT}, s{sT}, {WS_CTXU}\ns_add_u32 s{sT2}, s{sT}, 4096"])
    zz = g_zl(0)
    out_, gi = [], 0
    for i, it in enumerate(tl):
        while gi < len(zz) and gi * len(tl) <= i * len(zz):
            out_.append(zz[gi])
            gi += 1
        out_.append(it)
    E(out_, zz[gi:])
    E(WVM("pf"), WLG0, "s_barrier")
    E(f"s_cmp_eq_u32 s{sG}, 1\ns_cbranch_scc1 K2_MERGE1")
    st = (list(k.vm), list(k.lg))
    merge(k, 0)
    E("s_branch K2_G")
    k.set_state(*st)
    E("K2_MERGE1:")
    merge(k, 1)
    E("K2_G:")
    stamp(k, 3)
    gphase(k)
    if PROF:
        E(WVM0)
    stamp(k, 4)
    rstamp(k, 19, 30)
    lstamp_store(k, 1, 19, 23, SS, sW)
    if PROF:
        E(f"s_mov_b32 s95, s{sPI}")
    stamp_store(k, 1, SS, sW, 208)
    E("K2_END:")
    E("s_endpgm")
    for x in range(2):
        for buf in range(2):
            rare_path(k, x, buf)
    hooks(k)
    body(gmd, True)
    E("s_branch K2_TAIL")
    return k.text(512, 256)
```

```python
from asmlib import *
from common import *

import os
KVST = os.environ.get("KVST", "sc1")
NOPF = os.environ.get("NOPF", "0") == "1"
EXP = os.environ.get("EXP", "")
SX, SC, SW, SI, SS, SD, SPF = 8, 12, 16, 20, 24, 28, 72
sW, sRB, sCB, sNB, sMB, sRS, sCH = 32, 33, 34, 35, 36, 37, 38
sT, sT2, sCK, sWK, sW8, sW2, sKO, sWI, sXN, sCNT, sONES, sWB, sDO = 56, 57, 58, 59, 60, 61, 62, 63, 64, 65, 66, 67, 68
sXO = 39

vCD = 1
vUD = 9
vCR = 17
vBR = 25
vL16 = 31
vF = 32
vT = 40
STG = 64
vQD, vQR, vPF = 64, 68, 76
WF = 96
ACC = (128, 192)
SLOT = 49152
UREG = (3, 4, 0, 1)


def A(ks, cs):
    return ('a', (ks * 32 + cs) * 4)


def seg_off(byte):
    return byte // 65536, byte % 65536


def a_dma(j):
    out = []
    base = (j % 3) * SLOT
    for i in range(8):
        g = []
        if i % 4 == 0:
            g += [I(f"s_add_u32 m0, s{sW8}, {base + (i // 4) * 4096}"), I(f"s_add_u32 s{sDO}, s{sCK}, {j * 128}")]
        g.append(VM(f"buffer_load_dwordx4 v{vCD + i}, {s(SC, 4)}, s{sDO} offen offset:{1024 * (i % 4)} lds", f"p{j}"))
        out.append(g)
    return out


def b_dma(j):
    out = []
    for i in range(4):
        g = []
        if i == 0:
            g += [I(f"s_add_u32 m0, s{sW2}, {(j % 3) * SLOT + 32768}"), I(f"s_add_u32 s{sDO}, s{sWB}, {j * 64 * 8192}")]
        g.append(VM(f"buffer_load_dwordx4 v{vQD + i}, {s(SW, 4)}, s{sDO} offen offset:{1024 * i} lds", f"p{j}"))
        out.append(g)
    return out


def unit_dma(u):
    out = []
    base = UREG[u] * 32768
    off = (u % 2) * 256 * 8192 + (2 + u // 2) * 128
    for i in range(8):
        g = []
        if i % 4 == 0:
            g += [I(f"s_add_u32 m0, s{sW8}, {base + (i // 4) * 4096}"), I(f"s_add_u32 s{sDO}, s{sWK}, {off}")]
        g.append(VM(f"buffer_load_dwordx4 v{vUD + i}, {s(SW, 4)}, s{sDO} offen offset:{1024 * (i % 4)} lds", f"u{u}"))
        out.append(g)
    return out


def zslot(z):
    return (z + 2) % 5


def z_dma(z, xn_only=False, w_only=False):
    out = []
    base = zslot(z) * 32768
    for p in range(2):
        if not xn_only:
            for i in range(3):
                g = []
                if i == 0:
                    g += [I(f"s_add_u32 m0, s{sW8}, {base + p * 4096}"), I(f"s_add_u32 s{sDO}, s{sWI}, {z * 64 * 2752 + p * 1376}")]
                g.append(VM(f"buffer_load_dwordx4 v{vCD + i}, {s(SI, 4)}, s{sDO} offen offset:{1024 * i} lds", f"z{z}"))
                out.append(g)
        if not w_only:
            out.append([I(f"s_add_u32 m0, s{sW8}, {base + p * 4096 + 3072}"), I(f"s_add_u32 s{sDO}, s{sXN}, {p * 32768 + z * 4096}"),
                        VM(f"buffer_load_dwordx4 v{vL16}, {s(SS, 4)}, s{sDO} offen sc1 lds", f"z{z}")])
    return out


def pa_reads(c):
    j, cs = c // 4, c % 4
    slot = j % 3
    sg, off = (0, slot * SLOT) if slot == 0 else (1, (slot - 1) * SLOT)
    out = [LG(f"ds_read_b128 {R(A(ks, c), 4)}, v{vCR + sg * 4 + cs} offset:{off + ks * 4096}", f"r{c}") for ks in range(2)]
    fb = WF + (c % 2) * 16
    for d in range(4):
        for sec in range(2):
            out.append(LG(f"ds_read_b64_tr_b16 {v(fb + 4 * d + 2 * sec, 2)}, v{vQR + sg * 4 + d} "
                          f"offset:{off + cs * 4096 + sec * 1024}", f"r{c}"))
    return out


def pa_mf(c, vtype):
    fb = WF + (c % 2) * 16
    out = []
    for d in range(4):
        for ks in range(2):
            cf, wf = A(ks, c), ('v', fb + 4 * d)
            X, Y = (cf, wf) if vtype else (wf, cf)
            out.append(mfma(('v', ACC[d // 2] + (ks * 2 + d % 2) * 16), X, Y, 0 if c == 0 else None))
    return out


def pb_reads(c):
    u = c // 16
    sg, off = seg_off(UREG[u] * 32768 + (c % 16) * 2048)
    fb = WF + (c % 4) * 8
    return [LG(f"ds_read_b64_tr_b16 {v(fb + 4 * d2 + 2 * sec, 2)}, v{vBR + sg * 2 + d2} offset:{off + sec * 512}", f"s{c}")
            for d2 in range(2) for sec in range(2)]


def pb_mf(c, vtype):
    p, cs = 2 + c // 32, c % 32
    fb = WF + (c % 4) * 8
    out = []
    for d2 in range(2):
        for ks in range(2):
            cf, wf = A(ks, cs), ('v', fb + 4 * d2)
            X, Y = (cf, wf) if vtype else (wf, cf)
            out.append(mfma(('v', ACC[p % 2] + (ks * 2 + d2) * 16), X, Y, 0 if cs == 0 else None))
    return out


def kv_epi(p, staged=False):
    out = []
    for ks in range(2):
        for d2 in range(2):
            for g in range(2):
                b = ACC[p % 2] + (ks * 2 + d2) * 16 + 8 * g
                grp = []
                if d2 == 0 and g == 0:
                    grp.append(I(f"s_add_u32 s{sT2}, s{sKO}, {(p // 2) * 64 * 8192 + ks * 8192 + (p % 2) * 4096}"))
                if staged:
                    b = STG + ((ks * 2 + d2) * 2 + g) * 4
                else:
                    grp += [I(f"v_cvt_pk_bf16_f32 v{b + i}, v{b + 2 * i}, v{b + 2 * i + 1}") for i in range(2)]
                    out.append(grp)
                    grp = [I(f"v_cvt_pk_bf16_f32 v{b + i}, v{b + 2 * i}, v{b + 2 * i + 1}") for i in range(2, 4)]
                grp.append(VM(f"buffer_store_dwordx4 {v(b, 4)}, v{vL16}, {s(SS, 4)}, s{sT2} offen offset:{(2 * d2 + g) * 1024} {KVST}", "st"))
                out.append(grp)
    return out


def XF(c):
    return A(c % 2, c // 2)


def xn_loads():
    out = []
    for c in range(32):
        g = []
        if c % 4 == 0:
            g.append(I(f"s_add_u32 s{sXO}, s{sXN}, {(c // 4) * 4096}"))
        g.append(VM(f"buffer_load_dwordx4 {R(XF(c), 4)}, v{vL16}, {s(SS, 4)}, s{sXO} offen offset:{(c % 4) * 1024} sc1", f"xn{c // 4}"))
        out.append(g)
    return out


def gelu(regs, vC0, vC1, tmp):
    out = []
    for i in range(0, len(regs), 4):
        g = regs[i:i + 4]
        t = [tmp + j for j in range(4)]
        for op in ("v_mul_f32 v{t}, v{x}, v{x}", "v_fma_f32 v{t}, v{t}, v{c1}, v{c0}", "v_mul_f32 v{t}, v{t}, v{x}",
                   "v_exp_f32 v{t}, v{t}", "v_add_f32 v{t}, 1.0, v{t}", "v_rcp_f32 v{t}, v{t}", "v_mul_f32 v{x}, v{x}, v{t}"):
            for x, tt in zip(g, t):
                out.append(op.format(t=tt, x=x, c0=vC0, c1=vC1))
    return out


def ln_code():
    o = []
    for i in range(4):
        o.append(f"v_mov_b32 v{48 + i}, 0")
    for r in range(2):
        for i in range(4):
            o.append(f"v_dot2_f32_bf16 v{48 + r}, v{40 + 4 * r + i}, s{sONES}, v{48 + r}")
            o.append(f"v_dot2_f32_bf16 v{50 + r}, v{40 + 4 * r + i}, v{40 + 4 * r + i}, v{50 + r}")
    o += ["s_nop 2", "v_permlane32_swap_b32 v48, v49", "v_permlane32_swap_b32 v50, v51", "s_nop 1",
          "v_add_f32 v48, v48, v49", "v_add_f32 v50, v50, v51", "s_nop 1",
          "v_permlane16_swap_b32 v48, v50", "s_nop 1", "v_add_f32 v48, v48, v50"]
    for sh in (8, 4, 2, 1):
        o += ["s_nop 1", f"v_add_f32_dpp v48, v48, v48 row_ror:{sh} row_mask:0xf bank_mask:0xf"]
    o += ["s_nop 1", f"v_mul_f32 v48, {fbits(1 / 512)}, v48", "s_nop 0",
          "v_readlane_b32 s40, v48, 0", "v_readlane_b32 s41, v48, 16", "v_readlane_b32 s42, v48, 32", "v_readlane_b32 s43, v48, 48",
          "s_nop 1"]
    for r in range(2):
        m, q = 40 + 2 * r, 41 + 2 * r
        a_, b_ = 52 + 2 * r, 53 + 2 * r
        o += [f"v_mov_b32 v{b_}, s{m}", f"v_mov_b32 v{a_}, s{q}", f"v_fma_f32 v{a_}, -v{b_}, v{b_}, v{a_}", f"v_max_f32 v{a_}, 0, v{a_}",
              f"v_add_f32 v{a_}, {fbits(LN_EPS)}, v{a_}", f"v_rsq_f32 v{a_}, v{a_}", "s_nop 0",
              f"v_mul_f32 v{b_}, v{b_}, v{a_}", f"v_sub_f32 v{b_}, 0, v{b_}"]
    for r in range(2):
        for i in range(4):
            x = 40 + 4 * r + i
            o += [f"v_lshlrev_b32 v56, 16, v{x}", f"v_and_b32 v57, 0xffff0000, v{x}",
                  f"v_fma_f32 v56, v56, v{52 + 2 * r}, v{53 + 2 * r}", f"v_fma_f32 v57, v57, v{52 + 2 * r}, v{53 + 2 * r}",
                  f"v_cvt_pk_bf16_f32 v{x}, v56, v57"]
    return o


def kv_phase(k, vtype):
    E = k.emit
    extra = {}

    def add(c, groups):
        extra.setdefault(c, []).extend(groups)

    def spread(c0, c1, groups):
        n = len(groups)
        for i, g in enumerate(groups):
            add(c0 + (i * (c1 - c0)) // n, [g])

    ldp = lambda sr, so, i: [VM(f"buffer_load_dwordx4 {v(vPF, 4)}, v{vL16}, {s(sr, 4)}, s{so} offen offset:{1024 * i}", "pf")]
    ldh = lambda sr, so, off: [I(f"s_add_u32 s{sT}, s{so}, {off}"), VM(f"buffer_load_dwordx4 {v(vPF, 4)}, v61, {s(sr, 4)}, s{sT} offen", "pf")]
    pf0 = [ldp(SC, 77, i) for i in range(2)] + [ldh(SPF, 76, 128 * 8192), ldh(SPF, 76, 256 * 8192)]
    pf1 = [ldh(SPF, 76, 384 * 8192)]
    pf2 = [ldh(SPF, 76, 256 + r * 128 * 8192) for r in range(4)] + [ldp(SI, 77, i) for i in range(2)]
    if "noown" in EXP:
        pf0, pf1, pf2 = [], [], []
    add(1, pf1)
    if pf2:
        spread(8, 20, pf2)
    ln = ln_code()
    lng = [[I(x) for x in ln[i:i + 4]] for i in range(0, len(ln), 4)]
    lng.append([LG("ds_write_b128 v58, v[40:43]"), LG("ds_write_b128 v58, v[44:47] offset:16")])
    xst = [[LG("ds_read_b128 v[40:43], v59", "xr"), LG("ds_read_b128 v[44:47], v59 offset:1024", "xr")],
           [WLG("xr"), VM(f"buffer_store_dwordx4 v[40:43], v62, {s(SS, 4)}, s69 offen sc1", "xs")],
           [I(f"v_add_u32 v62, 4096, v62"), VM(f"buffer_store_dwordx4 v[44:47], v62, {s(SS, 4)}, s69 offen sc1", "xs")]]
    if "noxs" not in EXP:
        spread(12, 15, xst)
    spread(0, 3, a_dma(2) + b_dma(2))
    spread(3, 11, lng)
    E(pf0)
    E(WVM("p0"), "s_barrier")
    stamp(k, 6)
    E(pa_reads(0))
    for c in range(32):
        E(WLG(f"r{c}"))
        fill = []
        if c % 4 == 3:
            j = c // 4
            lstamp(k, 63, 3 * j)
            if j < 7:
                E(WVM(f"p{j + 1}"))
            else:
                E(WVM("u0"))
            if j == 5:
                E(WVM("xs"))
            if j == 2:
                E(WLG0)
            lstamp(k, 63, 3 * j + 1)
            E("s_barrier")
            lstamp(k, 63, 3 * j + 2)
            if j + 3 < 8:
                post = a_dma(j + 3) + b_dma(j + 3)
            elif j == 5:
                post = unit_dma(0) + unit_dma(1)[:4]
            elif j == 6:
                post = unit_dma(1)[4:] + unit_dma(2)
            else:
                post = []
            if j == 5 and "noflag" not in EXP:
                post = post + [flag_set(sW, SD, 2, 46)]
            if j < 7:
                spread(c, c + 4, post)
        if c < 31:
            fill += pa_reads(c + 1)
            fill = interleave(fill, extra.get(c, []))
            E(weave(pa_mf(c, vtype), fill, 0, 8))
        else:
            m = pa_mf(c, vtype)
            stg = []
            for tl in range(4):
                for g in range(2):
                    b = ACC[0] + tl * 16 + 8 * g
                    stg += [I(f"v_cvt_pk_bf16_f32 v{STG + (tl * 2 + g) * 4 + i}, v{b + 2 * i}, v{b + 2 * i + 1}") for i in range(4)]
            order = [0, 2, 1, 3]
            E(m[:4], pb_reads(0), m[4], m[5])
            seq = [stg[o * 8:(o + 1) * 8] for o in order]
            E(seq[0], m[6], seq[1], m[7], pb_reads(1), seq[2], seq[3])
    stamp(k, 7)
    extra.clear()
    wi = []
    for i in range(3):
        wi.append([I(x) for x in (f"v_add_u32 v46, {64 * i}, v0", "v_mul_u32_u24 v47, 43691, v46", "v_lshrrev_b32 v47, 19, v47",
                                  "v_mul_u32_u24 v48, 12, v47")])
        wi.append([I(x) for x in ("v_sub_u32 v48, v46, v48", "v_mul_u32_u24 v47, 2752, v47", f"v_lshl_add_u32 v{vCD + i}, v48, 4, v47",
                                  f"v_subrev_u32 v{vCD + i}, {1024 * i}, v{vCD + i}")])
    wi.append([I(x) for x in (f"v_lshl_add_u32 v46, v{vF + 1}, 3, v{vF + 3}", "v_mul_u32_u24 v46, 192, v46",
                              f"v_lshl_add_u32 v46, v{vF + 5}, 5, v46", f"v_lshl_add_u32 v46, v{vF + 4}, 3, v46")])
    wi.append([I(x) for x in (f"s_lshl_b32 s{sT}, s{sCH}, 12", f"v_add_u32 v{vCR}, s{sT}, v46", f"v_add_u32 v{vCR + 1}, 0x10000, v{vCR}",
                              f"v_add_u32 v{vCR + 2}, 0x20000, v{vCR}")])
    wi.append([I(x) for x in (f"s_lshl_b32 s{sT}, s{sRS}, 12", f"s_add_u32 s{sT}, s{sT}, 3072", f"v_add_u32 v{vCR + 3}, s{sT}, v{vL16}",
                              f"v_add_u32 v{vCR + 4}, 0x10000, v{vCR + 3}", f"v_add_u32 v{vCR + 5}, 0x20000, v{vCR + 3}")])
    spread(0, 6, unit_dma(3))
    spread(0, 6, wi)
    spread(7, 13, z_dma(0, w_only=True))
    spread(0, 15, kv_epi(0, staged=True))
    spread(15, 32, kv_epi(1))
    spread(33, 64, kv_epi(2))
    if "noflag" not in EXP:
        add(13, [flag_poll_issue(sW, SD, sCNT, 8, 50)])
        add(29, [flag_poll_check(sW, SD, sCNT, 50)])
    pf = [[I(f"s_mov_b32 s{SPF}, s44"), I(f"s_mov_b32 s{SPF + 1}, s45")] +
          [VM(f"buffer_load_dwordx4 v[52:55], v{vL16}, {s(SPF, 4)}, s70 offen", "pf")]]
    pf += [[VM(f"buffer_load_dwordx4 v[52:55], v{vL16}, {s(SPF, 4)}, s70 offen offset:{1024 * i}", "pf")] for i in range(1, 4)]
    if not NOPF:
        spread(50, 62, pf)
    for c in range(64):
        n = c + 2
        fill = []
        if n < 64:
            if n % 16 == 0:
                u = n // 16
                lstamp(k, 63, 21 + 3 * u)
                E(WLG(f"s{n - 1}"), WVM(f"u{u}"))
                lstamp(k, 63, 22 + 3 * u)
                E("s_barrier")
                lstamp(k, 63, 23 + 3 * u)
                if u == 1:
                    spread(c, c + 12, z_dma(1, w_only=True))
                elif u == 2:
                    spread(c, c + 14, z_dma(0, xn_only=True) + z_dma(1, xn_only=True) + z_dma(2))
                else:
                    spread(c, c + 14, z_dma(3))
            fill += pb_reads(n)
        E(WLG(f"s{c}"))
        if c == 32:
            stamp(k, 8)
        E(weave(pb_mf(c, vtype), interleave(fill, extra.get(c, [])), 0, 4))
    for c in extra:
        assert c < 64


def interleave(x, y):
    out = []
    n = max(len(x), len(y))
    for i in range(n):
        if i < len(x):
            out.append(x[i])
        if i < len(y):
            out.append(y[i])
    return out


def z_phase(k, z2):
    E = k.emit
    ZACC = ACC[0]
    LA = 3

    def fbuf(c):
        return (c % 4) * 16

    def reads(c):
        z, cs = c // 4, c % 4
        sg, off = seg_off(zslot(z) * 32768 + cs * 8192)
        fb = fbuf(c)
        out = [LG(f"ds_read_b128 {a(fb + 12, 4)}, v{vCR + 3 + sg} offset:{off}", f"y{c}")]
        out += [LG(f"ds_read_b64_tr_b16 {a(fb + 4 * f + 2 * sec, 2)}, v{vCR + sg} offset:{off + sec * 768 + f * 64}", f"y{c}")
                for f in range(3) for sec in range(2)]
        return out

    def mf(c):
        fb = fbuf(c)
        out = []
        for f in range(3):
            wf, xf = ('a', fb + 4 * f), ('a', fb + 12)
            X, Y = (xf, wf) if z2 else (wf, xf)
            out.append(mfma(('v', ZACC + 16 * f), X, Y, 0 if c == 0 else None))
        return out

    epi = kv_epi(3)
    lstamp(k, 63, 33)
    E(WVM("z0"), "s_barrier")
    lstamp(k, 63, 34)
    for c in range(LA):
        E(reads(c))
    pend = z_dma(4)
    for c in range(32):
        n = c + LA
        if n < 32 and n % 4 == 0:
            z = n // 4
            lstamp(k, 63, 33 + 3 * z)
            E(WLG(f"y{n - 1}"), WVM(f"z{z}"))
            lstamp(k, 63, 34 + 3 * z)
            E("s_barrier")
            if z + 4 < 8:
                pend = pend + z_dma(z + 4)
        E(WLG(f"y{c}"))
        r_ = reads(n) if n < 32 else []
        take, pend = pend[:3], pend[3:]
        gm_ = {i: r_[(i * 7) // 3:((i + 1) * 7) // 3] + take[i:i + 1] for i in range(3)}
        if c % 2 == 1:
            gm_[1] = gm_[1] + [epi[c // 2]]
        E(place(mf(c), gm_))


def build():
    k = Kern("k1_kernel")
    E = k.emit
    E("s_cmp_ge_u32 s2, 256\ns_cbranch_scc1 K1_END")
    code_prefetch(k, "L_CODE_END", 0, 120)
    stamp_init(k)
    stamp(k, 0)
    E(f"s_load_dwordx4 s[40:43], s[0:1], {KA_X}")
    E(f"s_load_dwordx4 s[44:47], s[0:1], {KA_WUK}")
    E(f"s_load_dwordx2 s[48:49], s[0:1], {KA_WIN}")
    E(f"s_load_dwordx4 s[52:55], s[0:1], {KA_DBG}")
    E("v_lshrrev_b32 v1, 6, v0\nv_and_b32 v0, 63, v0")
    E(f"s_lshr_b32 s{sRB}, s2, 3\ns_and_b32 s{sCB}, s2, 7")
    E(f"v_readfirstlane_b32 s{sW}, v1")
    E(f"s_and_b32 s{sNB}, s{sRB}, 3\ns_lshl_b32 s{sT}, s{sCB}, 2\ns_add_u32 s{sNB}, s{sNB}, s{sT}")
    E(f"s_lshr_b32 s{sMB}, s{sRB}, 2")
    E(f"s_and_b32 s{sRS}, s{sW}, 1\ns_lshr_b32 s{sCH}, s{sW}, 1\ns_lshl_b32 s{sW8}, s{sW}, 13\ns_lshl_b32 s{sW2}, s{sW}, 12")
    f0 = vF
    E(f"v_and_b32 v{f0}, 31, v0\nv_lshrrev_b32 v{f0 + 1}, 5, v0\nv_lshrrev_b32 v{f0 + 2}, 4, v0")
    E(f"v_bfe_u32 v{f0 + 3}, v0, 2, 2\nv_and_b32 v{f0 + 4}, 3, v0\nv_bfe_u32 v{f0 + 5}, v0, 4, 1")
    E(f"v_lshlrev_b32 v{vL16}, 4, v0")
    E(f"v_lshrrev_b32 v46, 3, v0\nv_lshlrev_b32 v50, 13, v46\nv_lshlrev_b32 v46, 10, v46\nv_and_b32 v47, 7, v0\nv_xor_b32 v47, v47, v{f0 + 2}")
    E("v_lshl_add_u32 v48, v47, 4, v46\nv_xor_b32 v47, 4, v47\nv_lshl_add_u32 v49, v47, 4, v46")
    for i in range(8):
        E(f"v_add_u32 v{vCD + i}, {i * 8192 - (i % 4) * 1024}, v{48 + (i % 2)}")
    E(f"v_bfe_u32 v47, v0, 2, 1\nv_xor_b32 v47, v47, v{f0 + 5}\nv_lshl_add_u32 v50, v47, 6, v50\nv_lshl_add_u32 v50, v{f0 + 4}, 4, v50")
    for i in range(8):
        E(f"v_add_u32 v{vUD + i}, {i * 65536 - (i % 4) * 1024}, v50")
    E(f"s_lshl_b32 s{sCK}, s{sMB}, 18\ns_lshl_b32 s{sT}, s{sW}, 16\ns_add_u32 s{sCK}, s{sCK}, s{sT}")
    E(f"s_and_b32 s{sT}, s{sNB}, 15\ns_lshl_b32 s{sT}, s{sT}, 9\ns_lshl_b32 s{sWK}, s{sW}, 19\ns_add_u32 s{sWK}, s{sWK}, s{sT}")
    E(f"s_lshl_b32 s{sWB}, s{sW}, 17\ns_add_u32 s{sWB}, s{sWB}, s{sT}")
    E(f"s_lshl_b32 s{sT2}, s2, 13\ns_lshl_b32 s{sT}, s{sW}, 11\ns_add_u32 s{sT2}, s{sT2}, s{sT}")
    E(f"v_xor_b32 v46, v{f0 + 3}, v{f0 + 2}\nv_lshlrev_b32 v47, 13, v{f0 + 2}\nv_lshl_add_u32 v47, v46, 6, v47\nv_lshl_add_u32 v47, v{f0 + 4}, 4, v47")
    for i in range(4):
        E(f"v_add_u32 v{vQD + i}, {i * (32768 - 1024)}, v47")
    E("s_waitcnt lgkmcnt(0)")
    E(srd(SX, 40, 2048 * 1024), srd(SC, 42, 2048 * 1024))
    E(VM(f"buffer_load_dwordx4 v[40:43], v{vL16}, {s(SX, 4)}, s{sT2} offen", "x"))
    E(VM(f"buffer_load_dwordx4 v[44:47], v{vL16}, {s(SX, 4)}, s{sT2} offen offset:1024", "x"))
    E(f"s_cmp_lt_u32 s{sNB}, 16\ns_cselect_b32 s{SW}, s44, s46\ns_cselect_b32 s{SW + 1}, s45, s47")
    E(f"s_mov_b32 s{SW + 2}, {512 * 8192:#x}\ns_mov_b32 s{SW + 3}, 0x20000")
    for j in range(2):
        E(a_dma(j), b_dma(j))
    E(srd(SI, 48, 512 * 2752), srd(SS, 54, WS_SIZE), srd(SD, 52, 256))
    E(f"s_lshl_b32 s{sT}, s2, 2\ns_add_u32 s{sT}, s{sT}, s{sW}\ns_lshl_b32 s70, s{sT}, 12\ns_lshl_b32 s77, s{sT}, 11\ns_and_b32 s76, s77, 0xfffff")
    E(f"s_cmp_lt_u32 s2, 128\ns_cselect_b32 s{SPF}, s44, s46\ns_cselect_b32 s{SPF + 1}, s45, s47\ns_mov_b32 s{SPF + 2}, {512 * 8192:#x}\ns_mov_b32 s{SPF + 3}, 0x20000")
    E(f"v_lshlrev_b32 v61, 9, v{f0 + 2}\nv_and_b32 v48, 15, v0\nv_lshl_add_u32 v61, v48, 4, v61")
    E(f"s_load_dwordx2 s[44:45], s[0:1], {KA_WQ}")
    E(f"v_bfe_u32 v48, v0, 1, 3\nv_xor_b32 v48, v48, v{f0 + 1}\nv_lshlrev_b32 v49, 7, v{f0}\nv_add_u32 v49, s{sW8}, v49")
    for k16 in range(4):
        E(f"v_xor_b32 v50, {2 * k16}, v48\nv_lshl_add_u32 v{vCR + k16}, v50, 4, v49\nv_add_u32 v{vCR + 4 + k16}, {SLOT}, v{vCR + k16}")
    E(f"v_lshl_add_u32 v48, v{f0 + 1}, 3, v{f0 + 3}\nv_lshlrev_b32 v48, 8, v48\nv_lshl_add_u32 v48, v{f0 + 5}, 5, v48\nv_lshl_add_u32 v48, v{f0 + 4}, 3, v48\nv_add_u32 v48, 32768, v48")
    for d in range(4):
        E(f"v_xor_b32 v49, {d}, v{f0 + 3}\nv_lshl_add_u32 v{vQR + d}, v49, 6, v48\nv_add_u32 v{vQR + 4 + d}, {SLOT}, v{vQR + d}")
    E(f"v_lshl_add_u32 v48, v{f0 + 1}, 3, v{f0 + 3}\nv_lshlrev_b32 v48, 7, v48\nv_lshl_add_u32 v48, v{f0 + 5}, 5, v48\nv_lshl_add_u32 v48, v{f0 + 4}, 3, v48")
    E(f"v_lshrrev_b32 v49, 1, v{f0 + 3}\nv_lshl_add_u32 v{vBR}, v49, 6, v48\nv_xor_b32 v49, 1, v49\nv_lshl_add_u32 v{vBR + 1}, v49, 6, v48")
    for sg in (1, 2):
        for d2 in range(2):
            E(f"v_add_u32 v{vBR + 2 * sg + d2}, {sg * 65536}, v{vBR + d2}")
    E(f"s_lshl_b32 s{sKO}, s{sNB}, 7\ns_lshl_b32 s{sT}, s{sMB}, 3\ns_add_u32 s{sKO}, s{sKO}, s{sT}\ns_lshl_b32 s{sT}, s{sW}, 1\ns_add_u32 s{sKO}, s{sKO}, s{sT}")
    E(f"s_lshl_b32 s{sKO}, s{sKO}, 13\ns_add_u32 s{sKO}, s{sKO}, {WS_KF}")
    E(f"s_mul_i32 s{sWI}, s{sW}, {16 * 2752}\ns_mul_i32 s{sT}, s{sCB}, 192\ns_add_u32 s{sWI}, s{sWI}, s{sT}")
    E(f"s_lshl_b32 s{sXN}, s{sRB}, 16\ns_lshl_b32 s{sT}, s{sW}, 10\ns_add_u32 s{sXN}, s{sXN}, s{sT}\ns_add_u32 s{sXN}, s{sXN}, {WS_XN}")
    E(f"s_lshl_b32 s{sCNT}, s{sRB}, 3\ns_mov_b32 s{sONES}, 0x3f803f80")
    E(f"s_lshr_b32 s{sT2}, s2, 2\ns_lshl_b32 s{sT2}, s{sT2}, 15\ns_and_b32 s{sT}, s2, 3\ns_lshl_b32 s{sT}, s{sT}, 7\ns_add_u32 s{sT2}, s{sT2}, s{sT}")
    E(f"s_add_u32 s{sT2}, s{sT2}, s{sW8}\ns_add_u32 s69, s{sT2}, {WS_XN}")
    E(f"s_lshl_b32 s{sT}, s{sW}, 5\ns_add_u32 s{sT}, s{sT}, {3 * SLOT}\nv_lshlrev_b32 v58, 7, v0\nv_add_u32 v58, s{sT}, v58")
    E(f"s_lshl_b32 s{sT}, s{sW}, 11\ns_add_u32 s{sT}, s{sT}, {3 * SLOT}\nv_add_u32 v59, s{sT}, v{vL16}")
    E("v_lshrrev_b32 v62, 3, v0\nv_lshlrev_b32 v62, 9, v62\nv_and_b32 v48, 7, v0\nv_lshl_add_u32 v62, v48, 4, v62")
    E("s_waitcnt lgkmcnt(0)")
    stamp(k, 1)
    E(f"s_cmp_ge_u32 s{sNB}, 16\ns_cbranch_scc1 K1_V")
    st = (list(k.vm), list(k.lg))
    kv_phase(k, False)
    E("s_branch K1_Z")
    k.set_state(*st)
    E("K1_V:")
    kv_phase(k, True)
    E("K1_Z:")
    stamp(k, 2)
    E(f"v_mov_b32 v60, {fbits(GELU_C0)}\nv_mov_b32 v61, {fbits(GELU_C1)}")
    E(f"s_cmp_eq_u32 s{sCH}, 1\ns_cbranch_scc1 K1_Z2")
    st = (list(k.vm), list(k.lg))
    ZACC = ACC[0]
    zr = list(range(ZACC, ZACC + 48))
    z_phase(k, False)
    stamp(k, 3)
    E(f"s_lshl_b32 s{sT}, s{sRB}, 1\ns_add_u32 s{sT}, s{sT}, s{sRS}\ns_mul_i32 s{sT}, s{sT}, 48")
    E(f"s_mul_i32 s{sT2}, s{sCB}, 6\ns_add_u32 s{sT}, s{sT}, s{sT2}\ns_lshl_b32 s{sT}, s{sT}, 10")
    E(f"s_add_u32 s{sT}, s{sT}, {WS_Z1}\ns_add_u32 s{sT2}, s{sT}, 4096\ns_nop 7")
    E(f"s_cmp_lg_u32 s{sCB}, 7\ns_cbranch_scc1 K1_Z1_NOMASK")
    for r in zr[8:]:
        E(f"v_mov_b32 v{r}, 0")
    E("K1_Z1_NOMASK:")
    for fg in range(6):
        b = ZACC + 8 * fg
        E(gelu(list(range(b, b + 8)), 60, 61, 52))
        for i in range(4):
            E(f"v_cvt_pk_bf16_f32 v{b + i}, v{b + 2 * i}, v{b + 2 * i + 1}")
        E(VM(f"buffer_store_dwordx4 {v(b, 4)}, v{vL16}, {s(SS, 4)}, s{sT if fg < 4 else sT2} offen offset:{1024 * (fg % 4)} sc1"))
    E("s_branch K1_DONE")
    k.set_state(*st)
    E("K1_Z2:")
    z_phase(k, True)
    stamp(k, 3)
    E(f"s_mul_i32 s{sT}, s{sCB}, 384\ns_lshl_b32 s{sT2}, s{sRB}, 2\ns_add_u32 s{sT}, s{sT}, s{sT2}")
    E(f"s_lshl_b32 s{sT2}, s{sRS}, 1\ns_add_u32 s{sT}, s{sT}, s{sT2}\ns_lshl_b32 s{sT}, s{sT}, 10\ns_add_u32 s{sT}, s{sT}, {WS_Z2R}\ns_nop 7")
    E(f"s_cmp_lg_u32 s{sCB}, 7\ns_cbranch_scc1 K1_Z2_NOMASK")
    E(f"v_cmp_gt_u32 vcc, 16, v{vF}\ns_nop 1")
    for r in zr[:16]:
        E(f"v_cndmask_b32 v{r}, 0, v{r}, vcc")
    for r in zr[16:]:
        E(f"v_mov_b32 v{r}, 0")
    E("K1_Z2_NOMASK:")
    E(gelu(zr, 60, 61, 52))
    SQ = 64
    for r in range(16):
        z0, z1, z2_ = ZACC + r, ZACC + 16 + r, ZACC + 32 + r
        E(f"v_add_f32 v{SQ + r}, v{z0}, v{z1}\nv_mul_f32 v{SQ + 16 + r}, v{z0}, v{z0}")
        E(f"v_add_f32 v{SQ + r}, v{SQ + r}, v{z2_}\nv_fmac_f32 v{SQ + 16 + r}, v{z1}, v{z1}")
        E(f"v_fmac_f32 v{SQ + 16 + r}, v{z2_}, v{z2_}")
    SCR = zslot(3) * 32768
    E(f"s_mul_i32 s{sT2}, s{sRS}, 9216\ns_add_u32 s{sT2}, s{sT2}, {SCR}")
    E(f"v_mul_u32_u24 v46, {4 * 144}, v{vF + 1}\nv_lshl_add_u32 v46, v{vF}, 2, v46\nv_add_u32 v46, s{sT2}, v46")
    for stt in range(2):
        for r in range(16):
            srow = 8 * (r // 4) + r % 4
            E(LG(f"ds_write_b32 v46, v{SQ + 16 * stt + r} offset:{(stt * 32 + srow) * 144}"))
    E(f"v_mul_u32_u24 v47, 144, v0\nv_add_u32 v47, s{sT2}, v47")
    for f in range(3):
        for g in range(2):
            b = ZACC + 16 * f + 8 * g
            for i in range(4):
                E(f"v_cvt_pk_bf16_f32 v{b + i}, v{b + 2 * i}, v{b + 2 * i + 1}")
            E("s_nop 1")
            E(f"v_permlane32_swap_b32 v{b}, v{b + 2}\nv_permlane32_swap_b32 v{b + 1}, v{b + 3}")
            E("s_nop 1")
            E(VM(f"buffer_store_dwordx4 {v(b, 4)}, v{vL16}, {s(SS, 4)}, s{sT} offen offset:{1024 * g} sc1"))
        if f < 2:
            E(f"s_add_u32 s{sT}, s{sT}, {128 * 1024}")
    E(WLG0)
    for i in range(8):
        E(LG(f"ds_read_b128 {v(SQ + 4 * i, 4)}, v47 offset:{16 * i}"))
    E(f"s_lshl_b32 s{sT}, s{sRB}, 1\ns_add_u32 s{sT}, s{sT}, s{sRS}\ns_lshl_b32 s{sT}, s{sT}, 11\ns_add_u32 s{sT}, s{sT}, {WS_STAT}")
    E(f"s_lshl_b32 s{sT2}, s{sCB}, 8\ns_add_u32 s{sT}, s{sT}, s{sT2}\nv_lshlrev_b32 v46, 2, v0")
    E(WLG0)
    for stride in (16, 8, 4, 2, 1):
        for i in range(stride):
            E(f"v_add_f32 v{SQ + i}, v{SQ + i}, v{SQ + stride + i}")
    E(VM(f"buffer_store_dword v{SQ}, v46, {s(SS, 4)}, s{sT} offen"))
    E("K1_DONE:")
    if PROF:
        stamp(k, 4)
        E(WVM0)
    stamp(k, 5)
    lstamp_store(k, 0, 63, 59, SS, sW)
    stamp_store(k, 0, SS, sW, 96)
    E("K1_END:")
    E("s_endpgm")
    return k.text(512, 256)
```

```python
from asmlib import *
from common import *

import os
KVST = os.environ.get("KVST", "sc1")
NOPF = os.environ.get("NOPF", "0") == "1"
EXP = os.environ.get("EXP", "")
SX, SC, SW, SI, SS, SD, SPF = 8, 12, 16, 20, 24, 28, 72
sW, sRB, sCB, sNB, sMB, sRS, sCH = 32, 33, 34, 35, 36, 37, 38
sT, sT2, sCK, sWK, sW8, sW2, sKO, sWI, sXN, sCNT, sONES, sWB, sDO = 56, 57, 58, 59, 60, 61, 62, 63, 64, 65, 66, 67, 68
sXO = 39

vCD = 1
vUD = 9
vCR = 17
vBR = 25
vL16 = 31
vF = 32
vT = 40
STG = 64
vQD, vQR, vPF = 64, 68, 76
WF = 96
ACC = (128, 192)
SLOT = 49152
UREG = (3, 4, 0, 1)


def A(ks, cs):
    return ('a', (ks * 32 + cs) * 4)


def seg_off(byte):
    return byte // 65536, byte % 65536


def a_dma(j):
    out = []
    base = (j % 3) * SLOT
    for i in range(8):
        g = []
        if i % 4 == 0:
            g += [I(f"s_add_u32 m0, s{sW8}, {base + (i // 4) * 4096}"), I(f"s_add_u32 s{sDO}, s{sCK}, {j * 128}")]
        g.append(VM(f"buffer_load_dwordx4 v{vCD + i}, {s(SC, 4)}, s{sDO} offen offset:{1024 * (i % 4)} lds", f"p{j}"))
        out.append(g)
    return out


def b_dma(j):
    out = []
    for i in range(4):
        g = []
        if i == 0:
            g += [I(f"s_add_u32 m0, s{sW2}, {(j % 3) * SLOT + 32768}"), I(f"s_add_u32 s{sDO}, s{sWB}, {j * 64 * 8192}")]
        g.append(VM(f"buffer_load_dwordx4 v{vQD + i}, {s(SW, 4)}, s{sDO} offen offset:{1024 * i} lds", f"p{j}"))
        out.append(g)
    return out


def unit_dma(u):
    out = []
    base = UREG[u] * 32768
    off = (u % 2) * 256 * 8192 + (2 + u // 2) * 128
    for i in range(8):
        g = []
        if i % 4 == 0:
            g += [I(f"s_add_u32 m0, s{sW8}, {base + (i // 4) * 4096}"), I(f"s_add_u32 s{sDO}, s{sWK}, {off}")]
        g.append(VM(f"buffer_load_dwordx4 v{vUD + i}, {s(SW, 4)}, s{sDO} offen offset:{1024 * (i % 4)} lds", f"u{u}"))
        out.append(g)
    return out


def zslot(z):
    return (z + 2) % 5


def z_dma(z, xn_only=False, w_only=False):
    out = []
    base = zslot(z) * 32768
    for p in range(2):
        if not xn_only:
            for i in range(3):
                g = []
                if i == 0:
                    g += [I(f"s_add_u32 m0, s{sW8}, {base + p * 4096}"), I(f"s_add_u32 s{sDO}, s{sWI}, {z * 64 * 2752 + p * 1376}")]
                g.append(VM(f"buffer_load_dwordx4 v{vCD + i}, {s(SI, 4)}, s{sDO} offen offset:{1024 * i} lds", f"z{z}"))
                out.append(g)
        if not w_only:
            out.append([I(f"s_add_u32 m0, s{sW8}, {base + p * 4096 + 3072}"), I(f"s_add_u32 s{sDO}, s{sXN}, {p * 32768 + z * 4096}"),
                        VM(f"buffer_load_dwordx4 v{vL16}, {s(SS, 4)}, s{sDO} offen sc1 lds", f"z{z}")])
    return out


def pa_reads(c):
    j, cs = c // 4, c % 4
    slot = j % 3
    sg, off = (0, slot * SLOT) if slot == 0 else (1, (slot - 1) * SLOT)
    out = [LG(f"ds_read_b128 {R(A(ks, c), 4)}, v{vCR + sg * 4 + cs} offset:{off + ks * 4096}", f"r{c}") for ks in range(2)]
    fb = WF + (c % 2) * 16
    for d in range(4):
        for sec in range(2):
            out.append(LG(f"ds_read_b64_tr_b16 {v(fb + 4 * d + 2 * sec, 2)}, v{vQR + sg * 4 + d} "
                          f"offset:{off + cs * 4096 + sec * 1024}", f"r{c}"))
    return out


def pa_mf(c, vtype):
    fb = WF + (c % 2) * 16
    out = []
    for d in range(4):
        for ks in range(2):
            cf, wf = A(ks, c), ('v', fb + 4 * d)
            X, Y = (cf, wf) if vtype else (wf, cf)
            out.append(mfma(('v', ACC[d // 2] + (ks * 2 + d % 2) * 16), X, Y, 0 if c == 0 else None))
    return out


def pb_reads(c):
    u = c // 16
    sg, off = seg_off(UREG[u] * 32768 + (c % 16) * 2048)
    fb = WF + (c % 4) * 8
    return [LG(f"ds_read_b64_tr_b16 {v(fb + 4 * d2 + 2 * sec, 2)}, v{vBR + sg * 2 + d2} offset:{off + sec * 512}", f"s{c}")
            for d2 in range(2) for sec in range(2)]


def pb_mf(c, vtype):
    p, cs = 2 + c // 32, c % 32
    fb = WF + (c % 4) * 8
    out = []
    for d2 in range(2):
        for ks in range(2):
            cf, wf = A(ks, cs), ('v', fb + 4 * d2)
            X, Y = (cf, wf) if vtype else (wf, cf)
            out.append(mfma(('v', ACC[p % 2] + (ks * 2 + d2) * 16), X, Y, 0 if cs == 0 else None))
    return out


def kv_epi(p, staged=False):
    out = []
    for ks in range(2):
        for d2 in range(2):
            for g in range(2):
                b = ACC[p % 2] + (ks * 2 + d2) * 16 + 8 * g
                grp = []
                if d2 == 0 and g == 0:
                    grp.append(I(f"s_add_u32 s{sT2}, s{sKO}, {(p // 2) * 64 * 8192 + ks * 8192 + (p % 2) * 4096}"))
                if staged:
                    b = STG + ((ks * 2 + d2) * 2 + g) * 4
                else:
                    grp += [I(f"v_cvt_pk_bf16_f32 v{b + i}, v{b + 2 * i}, v{b + 2 * i + 1}") for i in range(2)]
                    out.append(grp)
                    grp = [I(f"v_cvt_pk_bf16_f32 v{b + i}, v{b + 2 * i}, v{b + 2 * i + 1}") for i in range(2, 4)]
                grp.append(VM(f"buffer_store_dwordx4 {v(b, 4)}, v{vL16}, {s(SS, 4)}, s{sT2} offen offset:{(2 * d2 + g) * 1024} {KVST}", "st"))
                out.append(grp)
    return out


def XF(c):
    return A(c % 2, c // 2)


def xn_loads():
    out = []
    for c in range(32):
        g = []
        if c % 4 == 0:
            g.append(I(f"s_add_u32 s{sXO}, s{sXN}, {(c // 4) * 4096}"))
        g.append(VM(f"buffer_load_dwordx4 {R(XF(c), 4)}, v{vL16}, {s(SS, 4)}, s{sXO} offen offset:{(c % 4) * 1024} sc1", f"xn{c // 4}"))
        out.append(g)
    return out


def gelu(regs, vC0, vC1, tmp):
    out = []
    for i in range(0, len(regs), 4):
        g = regs[i:i + 4]
        t = [tmp + j for j in range(4)]
        for op in ("v_mul_f32 v{t}, v{x}, v{x}", "v_fma_f32 v{t}, v{t}, v{c1}, v{c0}", "v_mul_f32 v{t}, v{t}, v{x}",
                   "v_exp_f32 v{t}, v{t}", "v_add_f32 v{t}, 1.0, v{t}", "v_rcp_f32 v{t}, v{t}", "v_mul_f32 v{x}, v{x}, v{t}"):
            for x, tt in zip(g, t):
                out.append(op.format(t=tt, x=x, c0=vC0, c1=vC1))
    return out


def ln_code():
    o = []
    for i in range(4):
        o.append(f"v_mov_b32 v{48 + i}, 0")
    for r in range(2):
        for i in range(4):
            o.append(f"v_dot2_f32_bf16 v{48 + r}, v{40 + 4 * r + i}, s{sONES}, v{48 + r}")
            o.append(f"v_dot2_f32_bf16 v{50 + r}, v{40 + 4 * r + i}, v{40 + 4 * r + i}, v{50 + r}")
    o += ["s_nop 2", "v_permlane32_swap_b32 v48, v49", "v_permlane32_swap_b32 v50, v51", "s_nop 1",
          "v_add_f32 v48, v48, v49", "v_add_f32 v50, v50, v51", "s_nop 1",
          "v_permlane16_swap_b32 v48, v50", "s_nop 1", "v_add_f32 v48, v48, v50"]
    for sh in (8, 4, 2, 1):
        o += ["s_nop 1", f"v_add_f32_dpp v48, v48, v48 row_ror:{sh} row_mask:0xf bank_mask:0xf"]
    o += ["s_nop 1", f"v_mul_f32 v48, {fbits(1 / 512)}, v48", "s_nop 0",
          "v_readlane_b32 s40, v48, 0", "v_readlane_b32 s41, v48, 16", "v_readlane_b32 s42, v48, 32", "v_readlane_b32 s43, v48, 48",
          "s_nop 1"]
    for r in range(2):
        m, q = 40 + 2 * r, 41 + 2 * r
        a_, b_ = 52 + 2 * r, 53 + 2 * r
        o += [f"v_mov_b32 v{b_}, s{m}", f"v_mov_b32 v{a_}, s{q}", f"v_fma_f32 v{a_}, -v{b_}, v{b_}, v{a_}", f"v_max_f32 v{a_}, 0, v{a_}",
              f"v_add_f32 v{a_}, {fbits(LN_EPS)}, v{a_}", f"v_rsq_f32 v{a_}, v{a_}", "s_nop 0",
              f"v_mul_f32 v{b_}, v{b_}, v{a_}", f"v_sub_f32 v{b_}, 0, v{b_}"]
    for r in range(2):
        for i in range(4):
            x = 40 + 4 * r + i
            o += [f"v_lshlrev_b32 v56, 16, v{x}", f"v_and_b32 v57, 0xffff0000, v{x}",
                  f"v_fma_f32 v56, v56, v{52 + 2 * r}, v{53 + 2 * r}", f"v_fma_f32 v57, v57, v{52 + 2 * r}, v{53 + 2 * r}",
                  f"v_cvt_pk_bf16_f32 v{x}, v56, v57"]
    return o


def kv_phase(k, vtype):
    E = k.emit
    extra = {}

    def add(c, groups):
        extra.setdefault(c, []).extend(groups)

    def spread(c0, c1, groups):
        n = len(groups)
        for i, g in enumerate(groups):
            add(c0 + (i * (c1 - c0)) // n, [g])

    ldp = lambda sr, so, i: [VM(f"buffer_load_dwordx4 {v(vPF, 4)}, v{vL16}, {s(sr, 4)}, s{so} offen offset:{1024 * i}", "pf")]
    ldh = lambda sr, so, off: [I(f"s_add_u32 s{sT}, s{so}, {off}"), VM(f"buffer_load_dwordx4 {v(vPF, 4)}, v61, {s(sr, 4)}, s{sT} offen", "pf")]
    pf0 = [ldp(SC, 77, i) for i in range(2)] + [ldh(SPF, 76, 128 * 8192), ldh(SPF, 76, 256 * 8192)]
    pf1 = [ldh(SPF, 76, 384 * 8192)]
    pf2 = [ldh(SPF, 76, 256 + r * 128 * 8192) for r in range(4)] + [ldp(SI, 77, i) for i in range(2)]
    if "noown" in EXP:
        pf0, pf1, pf2 = [], [], []
    if "pfall" in EXP:
        pf0, pf1, pf2 = pf0 + pf1 + pf2, [], []
    if "pf01" in EXP:
        pf0, pf1 = pf0 + pf1, []
    add(1, pf1)
    if pf2:
        a_, b_ = [int(x) for x in os.environ.get("PF2", "8,20").split(",")]
        spread(a_, b_, pf2)
    ln = ln_code()
    lng = [[I(x) for x in ln[i:i + 4]] for i in range(0, len(ln), 4)]
    lng.append([LG("ds_write_b128 v58, v[40:43]"), LG("ds_write_b128 v58, v[44:47] offset:16")])
    xst = [[LG("ds_read_b128 v[40:43], v59", "xr"), LG("ds_read_b128 v[44:47], v59 offset:1024", "xr")],
           [WLG("xr"), VM(f"buffer_store_dwordx4 v[40:43], v62, {s(SS, 4)}, s69 offen sc1", "xs")],
           [I(f"v_add_u32 v62, 4096, v62"), VM(f"buffer_store_dwordx4 v[44:47], v62, {s(SS, 4)}, s69 offen sc1", "xs")]]
    if "noxs" not in EXP:
        spread(12, 15, xst)
    spread(0, 3, a_dma(2) + b_dma(2))
    spread(3, 11, lng)
    E(pf0)
    E(WVM("p0"), "s_barrier")
    stamp(k, 6)
    E(pa_reads(0))
    for c in range(32):
        E(WLG(f"r{c}"))
        fill = []
        if c % 4 == 3:
            j = c // 4
            lstamp(k, 63, 3 * j)
            if j < 7:
                E(WVM(f"p{j + 1}"))
            else:
                E(WVM("u0"))
            if j == 5:
                E(WVM("xs"))
            if j == 2:
                E(WLG0)
            lstamp(k, 63, 3 * j + 1)
            E("s_barrier")
            lstamp(k, 63, 3 * j + 2)
            if j + 3 < 8:
                post = a_dma(j + 3) + b_dma(j + 3)
            elif j == 5:
                post = unit_dma(0) + unit_dma(1)[:4]
            elif j == 6:
                post = unit_dma(1)[4:] + unit_dma(2)
            else:
                post = []
            if j == 5 and "noflag" not in EXP:
                post = post + [flag_set(sW, SD, 2, 46)]
            if j < 7:
                spread(c, c + 4, post)
        if c < 31:
            fill += pa_reads(c + 1)
            fill = interleave(fill, extra.get(c, []))
            E(weave(pa_mf(c, vtype), fill, 0, 8))
        else:
            m = pa_mf(c, vtype)
            stg = []
            for tl in range(4):
                for g in range(2):
                    b = ACC[0] + tl * 16 + 8 * g
                    stg += [I(f"v_cvt_pk_bf16_f32 v{STG + (tl * 2 + g) * 4 + i}, v{b + 2 * i}, v{b + 2 * i + 1}") for i in range(4)]
            order = [0, 2, 1, 3]
            E(m[:4], pb_reads(0), m[4], m[5])
            seq = [stg[o * 8:(o + 1) * 8] for o in order]
            E(seq[0], m[6], seq[1], m[7], pb_reads(1), seq[2], seq[3])
    stamp(k, 7)
    extra.clear()
    wi = []
    for i in range(3):
        wi.append([I(x) for x in (f"v_add_u32 v46, {64 * i}, v0", "v_mul_u32_u24 v47, 43691, v46", "v_lshrrev_b32 v47, 19, v47",
                                  "v_mul_u32_u24 v48, 12, v47")])
        wi.append([I(x) for x in ("v_sub_u32 v48, v46, v48", "v_mul_u32_u24 v47, 2752, v47", f"v_lshl_add_u32 v{vCD + i}, v48, 4, v47",
                                  f"v_subrev_u32 v{vCD + i}, {1024 * i}, v{vCD + i}")])
    wi.append([I(x) for x in (f"v_lshl_add_u32 v46, v{vF + 1}, 3, v{vF + 3}", "v_mul_u32_u24 v46, 192, v46",
                              f"v_lshl_add_u32 v46, v{vF + 5}, 5, v46", f"v_lshl_add_u32 v46, v{vF + 4}, 3, v46")])
    wi.append([I(x) for x in (f"s_lshl_b32 s{sT}, s{sCH}, 12", f"v_add_u32 v{vCR}, s{sT}, v46", f"v_add_u32 v{vCR + 1}, 0x10000, v{vCR}",
                              f"v_add_u32 v{vCR + 2}, 0x20000, v{vCR}")])
    wi.append([I(x) for x in (f"s_lshl_b32 s{sT}, s{sRS}, 12", f"s_add_u32 s{sT}, s{sT}, 3072", f"v_add_u32 v{vCR + 3}, s{sT}, v{vL16}",
                              f"v_add_u32 v{vCR + 4}, 0x10000, v{vCR + 3}", f"v_add_u32 v{vCR + 5}, 0x20000, v{vCR + 3}")])
    spread(0, 6, unit_dma(3))
    spread(0, 6, wi)
    spread(7, 13, z_dma(0, w_only=True))
    spread(0, 15, kv_epi(0, staged=True))
    spread(15, 32, kv_epi(1))
    spread(33, 64, kv_epi(2))
    if "noflag" not in EXP:
        add(13, [flag_poll_issue(sW, SD, sCNT, 8, 50)])
        add(29, [flag_poll_check(sW, SD, sCNT, 50)])
    pf = [[I(f"s_mov_b32 s{SPF}, s44"), I(f"s_mov_b32 s{SPF + 1}, s45")] +
          [VM(f"buffer_load_dwordx4 v[52:55], v{vL16}, {s(SPF, 4)}, s70 offen", "pf")]]
    pf += [[VM(f"buffer_load_dwordx4 v[52:55], v{vL16}, {s(SPF, 4)}, s70 offen offset:{1024 * i}", "pf")] for i in range(1, 4)]
    if not NOPF:
        a_, b_ = [int(x) for x in os.environ.get("PFQ", "50,62").split(",")]
        spread(a_, b_, pf)
    for c in range(64):
        n = c + 2
        fill = []
        if n < 64:
            if n % 16 == 0:
                u = n // 16
                lstamp(k, 63, 21 + 3 * u)
                E(WLG(f"s{n - 1}"), WVM(f"u{u}"))
                lstamp(k, 63, 22 + 3 * u)
                E("s_barrier")
                lstamp(k, 63, 23 + 3 * u)
                if u == 1:
                    spread(c, c + 12, z_dma(1, w_only=True))
                elif u == 2:
                    spread(c, c + 14, z_dma(0, xn_only=True) + z_dma(1, xn_only=True) + z_dma(2))
                else:
                    spread(c, c + 14, z_dma(3))
            fill += pb_reads(n)
        E(WLG(f"s{c}"))
        if c == 32:
            stamp(k, 8)
        E(weave(pb_mf(c, vtype), interleave(fill, extra.get(c, [])), 0, 4))
    for c in extra:
        assert c < 64


def interleave(x, y):
    out = []
    n = max(len(x), len(y))
    for i in range(n):
        if i < len(x):
            out.append(x[i])
        if i < len(y):
            out.append(y[i])
    return out


def z_phase(k, z2):
    E = k.emit
    ZACC = ACC[0]
    LA = 3

    def fbuf(c):
        return (c % 4) * 16

    def reads(c):
        z, cs = c // 4, c % 4
        sg, off = seg_off(zslot(z) * 32768 + cs * 8192)
        fb = fbuf(c)
        out = [LG(f"ds_read_b128 {a(fb + 12, 4)}, v{vCR + 3 + sg} offset:{off}", f"y{c}")]
        out += [LG(f"ds_read_b64_tr_b16 {a(fb + 4 * f + 2 * sec, 2)}, v{vCR + sg} offset:{off + sec * 768 + f * 64}", f"y{c}")
                for f in range(3) for sec in range(2)]
        return out

    def mf(c):
        fb = fbuf(c)
        out = []
        for f in range(3):
            wf, xf = ('a', fb + 4 * f), ('a', fb + 12)
            X, Y = (xf, wf) if z2 else (wf, xf)
            out.append(mfma(('v', ZACC + 16 * f), X, Y, 0 if c == 0 else None))
        return out

    epi = kv_epi(3)
    lstamp(k, 63, 33)
    E(WVM("z0"), "s_barrier")
    lstamp(k, 63, 34)
    for c in range(LA):
        E(reads(c))
    pend = z_dma(4)
    for c in range(32):
        n = c + LA
        if n < 32 and n % 4 == 0:
            z = n // 4
            lstamp(k, 63, 33 + 3 * z)
            E(WLG(f"y{n - 1}"), WVM(f"z{z}"))
            lstamp(k, 63, 34 + 3 * z)
            E("s_barrier")
            if z + 4 < 8:
                pend = pend + z_dma(z + 4)
        E(WLG(f"y{c}"))
        r_ = reads(n) if n < 32 else []
        take, pend = pend[:3], pend[3:]
        gm_ = {i: r_[(i * 7) // 3:((i + 1) * 7) // 3] + take[i:i + 1] for i in range(3)}
        if c % 2 == 1:
            gm_[1] = gm_[1] + [epi[c // 2]]
        E(place(mf(c), gm_))


def build():
    k = Kern("k1_kernel")
    E = k.emit
    E("s_cmp_ge_u32 s2, 256\ns_cbranch_scc1 K1_END")
    code_prefetch(k, "L_CODE_END", 0, 120)
    stamp_init(k)
    stamp(k, 0)
    E(f"s_load_dwordx4 s[40:43], s[0:1], {KA_X}")
    E(f"s_load_dwordx4 s[44:47], s[0:1], {KA_WUK}")
    E(f"s_load_dwordx2 s[48:49], s[0:1], {KA_WIN}")
    E(f"s_load_dwordx4 s[52:55], s[0:1], {KA_DBG}")
    E("v_lshrrev_b32 v1, 6, v0\nv_and_b32 v0, 63, v0")
    E(f"s_lshr_b32 s{sRB}, s2, 3\ns_and_b32 s{sCB}, s2, 7")
    E(f"v_readfirstlane_b32 s{sW}, v1")
    E(f"s_and_b32 s{sNB}, s{sRB}, 3\ns_lshl_b32 s{sT}, s{sCB}, 2\ns_add_u32 s{sNB}, s{sNB}, s{sT}")
    E(f"s_lshr_b32 s{sMB}, s{sRB}, 2")
    E(f"s_and_b32 s{sRS}, s{sW}, 1\ns_lshr_b32 s{sCH}, s{sW}, 1\ns_lshl_b32 s{sW8}, s{sW}, 13\ns_lshl_b32 s{sW2}, s{sW}, 12")
    f0 = vF
    E(f"v_and_b32 v{f0}, 31, v0\nv_lshrrev_b32 v{f0 + 1}, 5, v0\nv_lshrrev_b32 v{f0 + 2}, 4, v0")
    E(f"v_bfe_u32 v{f0 + 3}, v0, 2, 2\nv_and_b32 v{f0 + 4}, 3, v0\nv_bfe_u32 v{f0 + 5}, v0, 4, 1")
    E(f"v_lshlrev_b32 v{vL16}, 4, v0")
    E(f"v_lshrrev_b32 v46, 3, v0\nv_lshlrev_b32 v50, 13, v46\nv_lshlrev_b32 v46, 10, v46\nv_and_b32 v47, 7, v0\nv_xor_b32 v47, v47, v{f0 + 2}")
    E("v_lshl_add_u32 v48, v47, 4, v46\nv_xor_b32 v47, 4, v47\nv_lshl_add_u32 v49, v47, 4, v46")
    for i in range(8):
        E(f"v_add_u32 v{vCD + i}, {i * 8192 - (i % 4) * 1024}, v{48 + (i % 2)}")
    E(f"v_bfe_u32 v47, v0, 2, 1\nv_xor_b32 v47, v47, v{f0 + 5}\nv_lshl_add_u32 v50, v47, 6, v50\nv_lshl_add_u32 v50, v{f0 + 4}, 4, v50")
    for i in range(8):
        E(f"v_add_u32 v{vUD + i}, {i * 65536 - (i % 4) * 1024}, v50")
    E(f"s_lshl_b32 s{sCK}, s{sMB}, 18\ns_lshl_b32 s{sT}, s{sW}, 16\ns_add_u32 s{sCK}, s{sCK}, s{sT}")
    E(f"s_and_b32 s{sT}, s{sNB}, 15\ns_lshl_b32 s{sT}, s{sT}, 9\ns_lshl_b32 s{sWK}, s{sW}, 19\ns_add_u32 s{sWK}, s{sWK}, s{sT}")
    E(f"s_lshl_b32 s{sWB}, s{sW}, 17\ns_add_u32 s{sWB}, s{sWB}, s{sT}")
    E(f"s_lshl_b32 s{sT2}, s2, 13\ns_lshl_b32 s{sT}, s{sW}, 11\ns_add_u32 s{sT2}, s{sT2}, s{sT}")
    E(f"v_xor_b32 v46, v{f0 + 3}, v{f0 + 2}\nv_lshlrev_b32 v47, 13, v{f0 + 2}\nv_lshl_add_u32 v47, v46, 6, v47\nv_lshl_add_u32 v47, v{f0 + 4}, 4, v47")
    for i in range(4):
        E(f"v_add_u32 v{vQD + i}, {i * (32768 - 1024)}, v47")
    E("s_waitcnt lgkmcnt(0)")
    E(srd(SX, 40, 2048 * 1024), srd(SC, 42, 2048 * 1024))
    E(VM(f"buffer_load_dwordx4 v[40:43], v{vL16}, {s(SX, 4)}, s{sT2} offen", "x"))
    E(VM(f"buffer_load_dwordx4 v[44:47], v{vL16}, {s(SX, 4)}, s{sT2} offen offset:1024", "x"))
    E(f"s_cmp_lt_u32 s{sNB}, 16\ns_cselect_b32 s{SW}, s44, s46\ns_cselect_b32 s{SW + 1}, s45, s47")
    E(f"s_mov_b32 s{SW + 2}, {512 * 8192:#x}\ns_mov_b32 s{SW + 3}, 0x20000")
    for j in range(2):
        E(a_dma(j), b_dma(j))
    E(srd(SI, 48, 512 * 2752), srd(SS, 54, WS_SIZE), srd(SD, 52, 256))
    E(f"s_lshl_b32 s{sT}, s2, 2\ns_add_u32 s{sT}, s{sT}, s{sW}\ns_lshl_b32 s70, s{sT}, 12\ns_lshl_b32 s77, s{sT}, 11\ns_and_b32 s76, s77, 0xfffff")
    E(f"s_cmp_lt_u32 s2, 128\ns_cselect_b32 s{SPF}, s44, s46\ns_cselect_b32 s{SPF + 1}, s45, s47\ns_mov_b32 s{SPF + 2}, {512 * 8192:#x}\ns_mov_b32 s{SPF + 3}, 0x20000")
    E(f"v_lshlrev_b32 v61, 9, v{f0 + 2}\nv_and_b32 v48, 15, v0\nv_lshl_add_u32 v61, v48, 4, v61")
    E(f"s_load_dwordx2 s[44:45], s[0:1], {KA_WQ}")
    E(f"v_bfe_u32 v48, v0, 1, 3\nv_xor_b32 v48, v48, v{f0 + 1}\nv_lshlrev_b32 v49, 7, v{f0}\nv_add_u32 v49, s{sW8}, v49")
    for k16 in range(4):
        E(f"v_xor_b32 v50, {2 * k16}, v48\nv_lshl_add_u32 v{vCR + k16}, v50, 4, v49\nv_add_u32 v{vCR + 4 + k16}, {SLOT}, v{vCR + k16}")
    E(f"v_lshl_add_u32 v48, v{f0 + 1}, 3, v{f0 + 3}\nv_lshlrev_b32 v48, 8, v48\nv_lshl_add_u32 v48, v{f0 + 5}, 5, v48\nv_lshl_add_u32 v48, v{f0 + 4}, 3, v48\nv_add_u32 v48, 32768, v48")
    for d in range(4):
        E(f"v_xor_b32 v49, {d}, v{f0 + 3}\nv_lshl_add_u32 v{vQR + d}, v49, 6, v48\nv_add_u32 v{vQR + 4 + d}, {SLOT}, v{vQR + d}")
    E(f"v_lshl_add_u32 v48, v{f0 + 1}, 3, v{f0 + 3}\nv_lshlrev_b32 v48, 7, v48\nv_lshl_add_u32 v48, v{f0 + 5}, 5, v48\nv_lshl_add_u32 v48, v{f0 + 4}, 3, v48")
    E(f"v_lshrrev_b32 v49, 1, v{f0 + 3}\nv_lshl_add_u32 v{vBR}, v49, 6, v48\nv_xor_b32 v49, 1, v49\nv_lshl_add_u32 v{vBR + 1}, v49, 6, v48")
    for sg in (1, 2):
        for d2 in range(2):
            E(f"v_add_u32 v{vBR + 2 * sg + d2}, {sg * 65536}, v{vBR + d2}")
    E(f"s_lshl_b32 s{sKO}, s{sNB}, 7\ns_lshl_b32 s{sT}, s{sMB}, 3\ns_add_u32 s{sKO}, s{sKO}, s{sT}\ns_lshl_b32 s{sT}, s{sW}, 1\ns_add_u32 s{sKO}, s{sKO}, s{sT}")
    E(f"s_lshl_b32 s{sKO}, s{sKO}, 13\ns_add_u32 s{sKO}, s{sKO}, {WS_KF}")
    E(f"s_mul_i32 s{sWI}, s{sW}, {16 * 2752}\ns_mul_i32 s{sT}, s{sCB}, 192\ns_add_u32 s{sWI}, s{sWI}, s{sT}")
    E(f"s_lshl_b32 s{sXN}, s{sRB}, 16\ns_lshl_b32 s{sT}, s{sW}, 10\ns_add_u32 s{sXN}, s{sXN}, s{sT}\ns_add_u32 s{sXN}, s{sXN}, {WS_XN}")
    E(f"s_lshl_b32 s{sCNT}, s{sRB}, 3\ns_mov_b32 s{sONES}, 0x3f803f80")
    E(f"s_lshr_b32 s{sT2}, s2, 2\ns_lshl_b32 s{sT2}, s{sT2}, 15\ns_and_b32 s{sT}, s2, 3\ns_lshl_b32 s{sT}, s{sT}, 7\ns_add_u32 s{sT2}, s{sT2}, s{sT}")
    E(f"s_add_u32 s{sT2}, s{sT2}, s{sW8}\ns_add_u32 s69, s{sT2}, {WS_XN}")
    E(f"s_lshl_b32 s{sT}, s{sW}, 5\ns_add_u32 s{sT}, s{sT}, {3 * SLOT}\nv_lshlrev_b32 v58, 7, v0\nv_add_u32 v58, s{sT}, v58")
    E(f"s_lshl_b32 s{sT}, s{sW}, 11\ns_add_u32 s{sT}, s{sT}, {3 * SLOT}\nv_add_u32 v59, s{sT}, v{vL16}")
    E("v_lshrrev_b32 v62, 3, v0\nv_lshlrev_b32 v62, 9, v62\nv_and_b32 v48, 7, v0\nv_lshl_add_u32 v62, v48, 4, v62")
    E("s_waitcnt lgkmcnt(0)")
    stamp(k, 1)
    E(f"s_cmp_ge_u32 s{sNB}, 16\ns_cbranch_scc1 K1_V")
    st = (list(k.vm), list(k.lg))
    kv_phase(k, False)
    E("s_branch K1_Z")
    k.set_state(*st)
    E("K1_V:")
    kv_phase(k, True)
    E("K1_Z:")
    stamp(k, 2)
    E(f"v_mov_b32 v60, {fbits(GELU_C0)}\nv_mov_b32 v61, {fbits(GELU_C1)}")
    E(f"s_cmp_eq_u32 s{sCH}, 1\ns_cbranch_scc1 K1_Z2")
    st = (list(k.vm), list(k.lg))
    ZACC = ACC[0]
    zr = list(range(ZACC, ZACC + 48))
    z_phase(k, False)
    stamp(k, 3)
    E(f"s_lshl_b32 s{sT}, s{sRB}, 1\ns_add_u32 s{sT}, s{sT}, s{sRS}\ns_mul_i32 s{sT}, s{sT}, 48")
    E(f"s_mul_i32 s{sT2}, s{sCB}, 6\ns_add_u32 s{sT}, s{sT}, s{sT2}\ns_lshl_b32 s{sT}, s{sT}, 10")
    E(f"s_add_u32 s{sT}, s{sT}, {WS_Z1}\ns_add_u32 s{sT2}, s{sT}, 4096\ns_nop 7")
    E(f"s_cmp_lg_u32 s{sCB}, 7\ns_cbranch_scc1 K1_Z1_NOMASK")
    for r in zr[8:]:
        E(f"v_mov_b32 v{r}, 0")
    E("K1_Z1_NOMASK:")
    for fg in range(6):
        b = ZACC + 8 * fg
        E(gelu(list(range(b, b + 8)), 60, 61, 52))
        for i in range(4):
            E(f"v_cvt_pk_bf16_f32 v{b + i}, v{b + 2 * i}, v{b + 2 * i + 1}")
        E(VM(f"buffer_store_dwordx4 {v(b, 4)}, v{vL16}, {s(SS, 4)}, s{sT if fg < 4 else sT2} offen offset:{1024 * (fg % 4)} sc1"))
    E("s_branch K1_DONE")
    k.set_state(*st)
    E("K1_Z2:")
    z_phase(k, True)
    stamp(k, 3)
    E(f"s_mul_i32 s{sT}, s{sCB}, 384\ns_lshl_b32 s{sT2}, s{sRB}, 2\ns_add_u32 s{sT}, s{sT}, s{sT2}")
    E(f"s_lshl_b32 s{sT2}, s{sRS}, 1\ns_add_u32 s{sT}, s{sT}, s{sT2}\ns_lshl_b32 s{sT}, s{sT}, 10\ns_add_u32 s{sT}, s{sT}, {WS_Z2R}\ns_nop 7")
    E(f"s_cmp_lg_u32 s{sCB}, 7\ns_cbranch_scc1 K1_Z2_NOMASK")
    E(f"v_cmp_gt_u32 vcc, 16, v{vF}\ns_nop 1")
    for r in zr[:16]:
        E(f"v_cndmask_b32 v{r}, 0, v{r}, vcc")
    for r in zr[16:]:
        E(f"v_mov_b32 v{r}, 0")
    E("K1_Z2_NOMASK:")
    E(gelu(zr, 60, 61, 52))
    SQ = 64
    for r in range(16):
        z0, z1, z2_ = ZACC + r, ZACC + 16 + r, ZACC + 32 + r
        E(f"v_add_f32 v{SQ + r}, v{z0}, v{z1}\nv_mul_f32 v{SQ + 16 + r}, v{z0}, v{z0}")
        E(f"v_add_f32 v{SQ + r}, v{SQ + r}, v{z2_}\nv_fmac_f32 v{SQ + 16 + r}, v{z1}, v{z1}")
        E(f"v_fmac_f32 v{SQ + 16 + r}, v{z2_}, v{z2_}")
    SCR = zslot(3) * 32768
    E(f"s_mul_i32 s{sT2}, s{sRS}, 9216\ns_add_u32 s{sT2}, s{sT2}, {SCR}")
    E(f"v_mul_u32_u24 v46, {4 * 144}, v{vF + 1}\nv_lshl_add_u32 v46, v{vF}, 2, v46\nv_add_u32 v46, s{sT2}, v46")
    for stt in range(2):
        for r in range(16):
            srow = 8 * (r // 4) + r % 4
            E(LG(f"ds_write_b32 v46, v{SQ + 16 * stt + r} offset:{(stt * 32 + srow) * 144}"))
    E(f"v_mul_u32_u24 v47, 144, v0\nv_add_u32 v47, s{sT2}, v47")
    for f in range(3):
        for g in range(2):
            b = ZACC + 16 * f + 8 * g
            for i in range(4):
                E(f"v_cvt_pk_bf16_f32 v{b + i}, v{b + 2 * i}, v{b + 2 * i + 1}")
            E("s_nop 1")
            E(f"v_permlane32_swap_b32 v{b}, v{b + 2}\nv_permlane32_swap_b32 v{b + 1}, v{b + 3}")
            E("s_nop 1")
            E(VM(f"buffer_store_dwordx4 {v(b, 4)}, v{vL16}, {s(SS, 4)}, s{sT} offen offset:{1024 * g} sc1"))
        if f < 2:
            E(f"s_add_u32 s{sT}, s{sT}, {128 * 1024}")
    E(WLG0)
    for i in range(8):
        E(LG(f"ds_read_b128 {v(SQ + 4 * i, 4)}, v47 offset:{16 * i}"))
    E(f"s_lshl_b32 s{sT}, s{sRB}, 1\ns_add_u32 s{sT}, s{sT}, s{sRS}\ns_lshl_b32 s{sT}, s{sT}, 11\ns_add_u32 s{sT}, s{sT}, {WS_STAT}")
    E(f"s_lshl_b32 s{sT2}, s{sCB}, 8\ns_add_u32 s{sT}, s{sT}, s{sT2}\nv_lshlrev_b32 v46, 2, v0")
    E(WLG0)
    for stride in (16, 8, 4, 2, 1):
        for i in range(stride):
            E(f"v_add_f32 v{SQ + i}, v{SQ + i}, v{SQ + stride + i}")
    E(VM(f"buffer_store_dword v{SQ}, v46, {s(SS, 4)}, s{sT} offen"))
    E("K1_DONE:")
    if PROF:
        stamp(k, 4)
        E(WVM0)
    stamp(k, 5)
    lstamp_store(k, 0, 63, 59, SS, sW)
    stamp_store(k, 0, SS, sW, 96)
    E("K1_END:")
    E("s_endpgm")
    return k.text(512, 256)
```

```python
from asmlib import *
from common import *

import os
KVST = os.environ.get("KVST", "sc1")
NOPF = os.environ.get("NOPF", "0") == "1"
EXP = os.environ.get("EXP", "")
SX, SC, SW, SI, SS, SD, SPF = 8, 12, 16, 20, 24, 28, 72
sW, sRB, sCB, sNB, sMB, sRS, sCH = 32, 33, 34, 35, 36, 37, 38
sT, sT2, sCK, sWK, sW8, sW2, sKO, sWI, sXN, sCNT, sONES, sWB, sDO = 56, 57, 58, 59, 60, 61, 62, 63, 64, 65, 66, 67, 68
sXO = 39

vCD = 1
vUD = 9
vCR = 17
vBR = 25
vL16 = 31
vF = 32
vT = 40
STG = 64
vQD, vQR, vPF = 64, 68, 76
WF = 96
ACC = (128, 192)
SLOT = 49152
UREG = (3, 4, 0, 1)


def A(ks, cs):
    return ('a', (ks * 32 + cs) * 4)


def seg_off(byte):
    return byte // 65536, byte % 65536


def a_dma(j):
    out = []
    base = (j % 3) * SLOT
    for i in range(8):
        g = []
        if i % 4 == 0:
            g += [I(f"s_add_u32 m0, s{sW8}, {base + (i // 4) * 4096}"), I(f"s_add_u32 s{sDO}, s{sCK}, {j * 128}")]
        g.append(VM(f"buffer_load_dwordx4 v{vCD + i}, {s(SC, 4)}, s{sDO} offen offset:{1024 * (i % 4)} lds", f"p{j}"))
        out.append(g)
    return out


def b_dma(j):
    out = []
    for i in range(4):
        g = []
        if i == 0:
            g += [I(f"s_add_u32 m0, s{sW2}, {(j % 3) * SLOT + 32768}"), I(f"s_add_u32 s{sDO}, s{sWB}, {j * 64 * 8192}")]
        g.append(VM(f"buffer_load_dwordx4 v{vQD + i}, {s(SW, 4)}, s{sDO} offen offset:{1024 * i} lds", f"p{j}"))
        out.append(g)
    return out


def unit_dma(u):
    out = []
    base = UREG[u] * 32768
    off = (u % 2) * 256 * 8192 + (2 + u // 2) * 128
    for i in range(8):
        g = []
        if i % 4 == 0:
            g += [I(f"s_add_u32 m0, s{sW8}, {base + (i // 4) * 4096}"), I(f"s_add_u32 s{sDO}, s{sWK}, {off}")]
        g.append(VM(f"buffer_load_dwordx4 v{vUD + i}, {s(SW, 4)}, s{sDO} offen offset:{1024 * (i % 4)} lds", f"u{u}"))
        out.append(g)
    return out


def zslot(z):
    return (z + 2) % 5


def z_dma(z, xn_only=False, w_only=False):
    out = []
    base = zslot(z) * 32768
    for p in range(2):
        if not xn_only:
            for i in range(3):
                g = []
                if i == 0:
                    g += [I(f"s_add_u32 m0, s{sW8}, {base + p * 4096}"), I(f"s_add_u32 s{sDO}, s{sWI}, {z * 64 * 2752 + p * 1376}")]
                g.append(VM(f"buffer_load_dwordx4 v{vCD + i}, {s(SI, 4)}, s{sDO} offen offset:{1024 * i} lds", f"z{z}"))
                out.append(g)
        if not w_only:
            out.append([I(f"s_add_u32 m0, s{sW8}, {base + p * 4096 + 3072}"), I(f"s_add_u32 s{sDO}, s{sXN}, {p * 32768 + z * 4096}"),
                        VM(f"buffer_load_dwordx4 v{vL16}, {s(SS, 4)}, s{sDO} offen sc1 lds", f"z{z}")])
    return out


def pa_reads(c):
    j, cs = c // 4, c % 4
    slot = j % 3
    sg, off = (0, slot * SLOT) if slot == 0 else (1, (slot - 1) * SLOT)
    out = [LG(f"ds_read_b128 {R(A(ks, c), 4)}, v{vCR + sg * 4 + cs} offset:{off + ks * 4096}", f"r{c}") for ks in range(2)]
    fb = WF + (c % 2) * 16
    for d in range(4):
        for sec in range(2):
            out.append(LG(f"ds_read_b64_tr_b16 {v(fb + 4 * d + 2 * sec, 2)}, v{vQR + sg * 4 + d} "
                          f"offset:{off + cs * 4096 + sec * 1024}", f"r{c}"))
    return out


def pa_mf(c, vtype):
    fb = WF + (c % 2) * 16
    out = []
    for d in range(4):
        for ks in range(2):
            cf, wf = A(ks, c), ('v', fb + 4 * d)
            X, Y = (cf, wf) if vtype else (wf, cf)
            out.append(mfma(('v', ACC[d // 2] + (ks * 2 + d % 2) * 16), X, Y, 0 if c == 0 else None))
    return out


def pb_reads(c):
    u = c // 16
    sg, off = seg_off(UREG[u] * 32768 + (c % 16) * 2048)
    fb = WF + (c % 4) * 8
    return [LG(f"ds_read_b64_tr_b16 {v(fb + 4 * d2 + 2 * sec, 2)}, v{vBR + sg * 2 + d2} offset:{off + sec * 512}", f"s{c}")
            for d2 in range(2) for sec in range(2)]


def pb_mf(c, vtype):
    p, cs = 2 + c // 32, c % 32
    fb = WF + (c % 4) * 8
    out = []
    for d2 in range(2):
        for ks in range(2):
            cf, wf = A(ks, cs), ('v', fb + 4 * d2)
            X, Y = (cf, wf) if vtype else (wf, cf)
            out.append(mfma(('v', ACC[p % 2] + (ks * 2 + d2) * 16), X, Y, 0 if cs == 0 else None))
    return out


def kv_epi(p, staged=False):
    out = []
    for ks in range(2):
        for d2 in range(2):
            for g in range(2):
                b = ACC[p % 2] + (ks * 2 + d2) * 16 + 8 * g
                grp = []
                if d2 == 0 and g == 0:
                    grp.append(I(f"s_add_u32 s{sT2}, s{sKO}, {(p // 2) * 64 * 8192 + ks * 8192 + (p % 2) * 4096}"))
                if staged:
                    b = STG + ((ks * 2 + d2) * 2 + g) * 4
                else:
                    grp += [I(f"v_cvt_pk_bf16_f32 v{b + i}, v{b + 2 * i}, v{b + 2 * i + 1}") for i in range(2)]
                    out.append(grp)
                    grp = [I(f"v_cvt_pk_bf16_f32 v{b + i}, v{b + 2 * i}, v{b + 2 * i + 1}") for i in range(2, 4)]
                grp.append(VM(f"buffer_store_dwordx4 {v(b, 4)}, v{vL16}, {s(SS, 4)}, s{sT2} offen offset:{(2 * d2 + g) * 1024} {KVST}", "st"))
                out.append(grp)
    return out


def XF(c):
    return A(c % 2, c // 2)


def xn_loads():
    out = []
    for c in range(32):
        g = []
        if c % 4 == 0:
            g.append(I(f"s_add_u32 s{sXO}, s{sXN}, {(c // 4) * 4096}"))
        g.append(VM(f"buffer_load_dwordx4 {R(XF(c), 4)}, v{vL16}, {s(SS, 4)}, s{sXO} offen offset:{(c % 4) * 1024} sc1", f"xn{c // 4}"))
        out.append(g)
    return out


def gelu(regs, vC0, vC1, tmp):
    out = []
    for i in range(0, len(regs), 4):
        g = regs[i:i + 4]
        t = [tmp + j for j in range(4)]
        for op in ("v_mul_f32 v{t}, v{x}, v{x}", "v_fma_f32 v{t}, v{t}, v{c1}, v{c0}", "v_mul_f32 v{t}, v{t}, v{x}",
                   "v_exp_f32 v{t}, v{t}", "v_add_f32 v{t}, 1.0, v{t}", "v_rcp_f32 v{t}, v{t}", "v_mul_f32 v{x}, v{x}, v{t}"):
            for x, tt in zip(g, t):
                out.append(op.format(t=tt, x=x, c0=vC0, c1=vC1))
    return out


def ln_code():
    o = []
    for i in range(4):
        o.append(f"v_mov_b32 v{48 + i}, 0")
    for r in range(2):
        for i in range(4):
            o.append(f"v_dot2_f32_bf16 v{48 + r}, v{40 + 4 * r + i}, s{sONES}, v{48 + r}")
            o.append(f"v_dot2_f32_bf16 v{50 + r}, v{40 + 4 * r + i}, v{40 + 4 * r + i}, v{50 + r}")
    o += ["s_nop 2", "v_permlane32_swap_b32 v48, v49", "v_permlane32_swap_b32 v50, v51", "s_nop 1",
          "v_add_f32 v48, v48, v49", "v_add_f32 v50, v50, v51", "s_nop 1",
          "v_permlane16_swap_b32 v48, v50", "s_nop 1", "v_add_f32 v48, v48, v50"]
    for sh in (8, 4, 2, 1):
        o += ["s_nop 1", f"v_add_f32_dpp v48, v48, v48 row_ror:{sh} row_mask:0xf bank_mask:0xf"]
    o += ["s_nop 1", f"v_mul_f32 v48, {fbits(1 / 512)}, v48", "s_nop 0",
          "v_readlane_b32 s40, v48, 0", "v_readlane_b32 s41, v48, 16", "v_readlane_b32 s42, v48, 32", "v_readlane_b32 s43, v48, 48",
          "s_nop 1"]
    for r in range(2):
        m, q = 40 + 2 * r, 41 + 2 * r
        a_, b_ = 52 + 2 * r, 53 + 2 * r
        o += [f"v_mov_b32 v{b_}, s{m}", f"v_mov_b32 v{a_}, s{q}", f"v_fma_f32 v{a_}, -v{b_}, v{b_}, v{a_}", f"v_max_f32 v{a_}, 0, v{a_}",
              f"v_add_f32 v{a_}, {fbits(LN_EPS)}, v{a_}", f"v_rsq_f32 v{a_}, v{a_}", "s_nop 0",
              f"v_mul_f32 v{b_}, v{b_}, v{a_}", f"v_sub_f32 v{b_}, 0, v{b_}"]
    for r in range(2):
        for i in range(4):
            x = 40 + 4 * r + i
            o += [f"v_lshlrev_b32 v56, 16, v{x}", f"v_and_b32 v57, 0xffff0000, v{x}",
                  f"v_fma_f32 v56, v56, v{52 + 2 * r}, v{53 + 2 * r}", f"v_fma_f32 v57, v57, v{52 + 2 * r}, v{53 + 2 * r}",
                  f"v_cvt_pk_bf16_f32 v{x}, v56, v57"]
    return o


def kv_phase(k, vtype):
    E = k.emit
    extra = {}

    def add(c, groups):
        extra.setdefault(c, []).extend(groups)

    def spread(c0, c1, groups):
        n = len(groups)
        for i, g in enumerate(groups):
            add(c0 + (i * (c1 - c0)) // n, [g])

    ldp = lambda sr, so, i: [VM(f"buffer_load_dwordx4 {v(vPF, 4)}, v{vL16}, {s(sr, 4)}, s{so} offen offset:{1024 * i}", "pf")]
    ldh = lambda sr, so, off: [I(f"s_add_u32 s{sT}, s{so}, {off}"), VM(f"buffer_load_dwordx4 {v(vPF, 4)}, v61, {s(sr, 4)}, s{sT} offen", "pf")]
    pf0 = [ldp(SC, 77, i) for i in range(2)] + [ldh(SPF, 76, 128 * 8192), ldh(SPF, 76, 256 * 8192)]
    pf1 = [ldh(SPF, 76, 384 * 8192)]
    pf2 = [ldh(SPF, 76, 256 + r * 128 * 8192) for r in range(4)] + [ldp(SI, 77, i) for i in range(2)]
    if "noown" in EXP:
        pf0, pf1, pf2 = [], [], []
    if "pfall" in EXP:
        pf0, pf1, pf2 = pf0 + pf1 + pf2, [], []
    if "pf01" in EXP:
        pf0, pf1 = pf0 + pf1, []
    add(1, pf1)
    if pf2:
        a_, b_ = [int(x) for x in os.environ.get("PF2", "8,20").split(",")]
        spread(a_, b_, pf2)
    ln = ln_code()
    lng = [[I(x) for x in ln[i:i + 4]] for i in range(0, len(ln), 4)]
    lng.append([LG("ds_write_b128 v58, v[40:43]"), LG("ds_write_b128 v58, v[44:47] offset:16")])
    xst = [[LG("ds_read_b128 v[40:43], v59", "xr"), LG("ds_read_b128 v[44:47], v59 offset:1024", "xr")],
           [WLG("xr"), VM(f"buffer_store_dwordx4 v[40:43], v62, {s(SS, 4)}, s69 offen sc1", "xs")],
           [I(f"v_add_u32 v62, 4096, v62"), VM(f"buffer_store_dwordx4 v[44:47], v62, {s(SS, 4)}, s69 offen sc1", "xs")]]
    if "noxs" not in EXP:
        spread(12, 15, xst)
    spread(0, 3, a_dma(2) + b_dma(2))
    spread(3, 11, lng)
    E(pf0)
    E(WVM("p0"), "s_barrier")
    stamp(k, 6)
    E(pa_reads(0))
    for c in range(32):
        E(WLG(f"r{c}"))
        fill = []
        if c % 4 == 3:
            j = c // 4
            lstamp(k, 63, 3 * j)
            if j < 7:
                E(WVM(f"p{j + 1}"))
            else:
                E(WVM("u0"))
            if j == 5:
                E(WVM("xs"))
            if j == 2:
                E(WLG0)
            lstamp(k, 63, 3 * j + 1)
            E("s_barrier")
            lstamp(k, 63, 3 * j + 2)
            if j + 3 < 8:
                post = a_dma(j + 3) + b_dma(j + 3)
            elif j == 5:
                post = unit_dma(0) + unit_dma(1)[:4]
            elif j == 6:
                post = unit_dma(1)[4:] + unit_dma(2)
            else:
                post = []
            if j == 5 and "noflag" not in EXP:
                post = post + [flag_set(sW, SD, 2, 46)]
            if j < 7:
                spread(c, c + 4, post)
        if c < 31:
            fill += pa_reads(c + 1)
            fill = interleave(fill, extra.get(c, []))
            E(weave(pa_mf(c, vtype), fill, 0, 8))
        else:
            m = pa_mf(c, vtype)
            stg = []
            for tl in range(4):
                for g in range(2):
                    b = ACC[0] + tl * 16 + 8 * g
                    stg += [I(f"v_cvt_pk_bf16_f32 v{STG + (tl * 2 + g) * 4 + i}, v{b + 2 * i}, v{b + 2 * i + 1}") for i in range(4)]
            order = [0, 2, 1, 3]
            E(m[:4], pb_reads(0), m[4], m[5])
            seq = [stg[o * 8:(o + 1) * 8] for o in order]
            E(seq[0], m[6], seq[1], m[7], pb_reads(1), seq[2], seq[3])
    stamp(k, 7)
    extra.clear()
    wi = []
    for i in range(3):
        wi.append([I(x) for x in (f"v_add_u32 v46, {64 * i}, v0", "v_mul_u32_u24 v47, 43691, v46", "v_lshrrev_b32 v47, 19, v47",
                                  "v_mul_u32_u24 v48, 12, v47")])
        wi.append([I(x) for x in ("v_sub_u32 v48, v46, v48", "v_mul_u32_u24 v47, 2752, v47", f"v_lshl_add_u32 v{vCD + i}, v48, 4, v47",
                                  f"v_subrev_u32 v{vCD + i}, {1024 * i}, v{vCD + i}")])
    wi.append([I(x) for x in (f"v_lshl_add_u32 v46, v{vF + 1}, 3, v{vF + 3}", "v_mul_u32_u24 v46, 192, v46",
                              f"v_lshl_add_u32 v46, v{vF + 5}, 5, v46", f"v_lshl_add_u32 v46, v{vF + 4}, 3, v46")])
    wi.append([I(x) for x in (f"s_lshl_b32 s{sT}, s{sCH}, 12", f"v_add_u32 v{vCR}, s{sT}, v46", f"v_add_u32 v{vCR + 1}, 0x10000, v{vCR}",
                              f"v_add_u32 v{vCR + 2}, 0x20000, v{vCR}")])
    wi.append([I(x) for x in (f"s_lshl_b32 s{sT}, s{sRS}, 12", f"s_add_u32 s{sT}, s{sT}, 3072", f"v_add_u32 v{vCR + 3}, s{sT}, v{vL16}",
                              f"v_add_u32 v{vCR + 4}, 0x10000, v{vCR + 3}", f"v_add_u32 v{vCR + 5}, 0x20000, v{vCR + 3}")])
    spread(0, 6, unit_dma(3))
    spread(0, 6, wi)
    add(40, [wave0(sW, [I("v_mov_b32 v47, 0"), I(f"s_lshl_b32 s{sT}, s{sCB}, 8"), I(f"s_add_u32 s{sT}, s{sT}, s{sRB}"), I(f"s_add_u32 s{sT}, s{sT}, {WS_FLAG2}"),
                        I("s_mov_b64 exec, 1"), VMG(f"buffer_store_byte v47, v47, {s(SS, 4)}, s{sT} offen", "fz"), I("s_mov_b64 exec, -1")])])
    spread(7, 13, z_dma(0, w_only=True))
    spread(0, 15, kv_epi(0, staged=True))
    spread(15, 32, kv_epi(1))
    spread(33, 64, kv_epi(2))
    if "noflag" not in EXP:
        add(13, [flag_poll_issue(sW, SD, sCNT, 8, 50)])
        add(29, [flag_poll_check(sW, SD, sCNT, 50)])
    pf = [[I(f"s_mov_b32 s{SPF}, s44"), I(f"s_mov_b32 s{SPF + 1}, s45")] +
          [VM(f"buffer_load_dwordx4 v[52:55], v{vL16}, {s(SPF, 4)}, s70 offen", "pf")]]
    pf += [[VM(f"buffer_load_dwordx4 v[52:55], v{vL16}, {s(SPF, 4)}, s70 offen offset:{1024 * i}", "pf")] for i in range(1, 4)]
    if not NOPF:
        a_, b_ = [int(x) for x in os.environ.get("PFQ", "50,62").split(",")]
        spread(a_, b_, pf)
    for c in range(64):
        n = c + 2
        fill = []
        if n < 64:
            if n % 16 == 0:
                u = n // 16
                lstamp(k, 63, 21 + 3 * u)
                E(WLG(f"s{n - 1}"), WVM(f"u{u}"))
                lstamp(k, 63, 22 + 3 * u)
                E("s_barrier")
                lstamp(k, 63, 23 + 3 * u)
                if u == 1:
                    spread(c, c + 12, z_dma(1, w_only=True))
                elif u == 2:
                    spread(c, c + 14, z_dma(0, xn_only=True) + z_dma(1, xn_only=True) + z_dma(2))
                else:
                    spread(c, c + 14, z_dma(3))
            fill += pb_reads(n)
        E(WLG(f"s{c}"))
        if c == 32:
            stamp(k, 8)
        E(weave(pb_mf(c, vtype), interleave(fill, extra.get(c, [])), 0, 4))
    for c in extra:
        assert c < 64


def interleave(x, y):
    out = []
    n = max(len(x), len(y))
    for i in range(n):
        if i < len(x):
            out.append(x[i])
        if i < len(y):
            out.append(y[i])
    return out


def z_phase(k, z2):
    E = k.emit
    ZACC = ACC[0]
    LA = 3

    def fbuf(c):
        return (c % 4) * 16

    def reads(c):
        z, cs = c // 4, c % 4
        sg, off = seg_off(zslot(z) * 32768 + cs * 8192)
        fb = fbuf(c)
        out = [LG(f"ds_read_b128 {a(fb + 12, 4)}, v{vCR + 3 + sg} offset:{off}", f"y{c}")]
        out += [LG(f"ds_read_b64_tr_b16 {a(fb + 4 * f + 2 * sec, 2)}, v{vCR + sg} offset:{off + sec * 768 + f * 64}", f"y{c}")
                for f in range(3) for sec in range(2)]
        return out

    def mf(c):
        fb = fbuf(c)
        out = []
        for f in range(3):
            wf, xf = ('a', fb + 4 * f), ('a', fb + 12)
            X, Y = (xf, wf) if z2 else (wf, xf)
            out.append(mfma(('v', ZACC + 16 * f), X, Y, 0 if c == 0 else None))
        return out

    epi = kv_epi(3)
    lstamp(k, 63, 33)
    E(WVM("z0"), "s_barrier")
    lstamp(k, 63, 34)
    for c in range(LA):
        E(reads(c))
    pend = z_dma(4)
    for c in range(32):
        n = c + LA
        if n < 32 and n % 4 == 0:
            z = n // 4
            lstamp(k, 63, 33 + 3 * z)
            E(WLG(f"y{n - 1}"), WVM(f"z{z}"))
            lstamp(k, 63, 34 + 3 * z)
            E("s_barrier")
            if z + 4 < 8:
                pend = pend + z_dma(z + 4)
        E(WLG(f"y{c}"))
        r_ = reads(n) if n < 32 else []
        ZR = int(os.environ.get("ZR", "2"))
        ZE = int(os.environ.get("ZE", "16"))
        take, pend = pend[:ZR], pend[ZR:]
        gm_ = {i: r_[(i * 7) // 3:((i + 1) * 7) // 3] + take[i:i + 1] for i in range(3)}
        for e_ in range(16):
            if ZE + (e_ * (32 - ZE)) // 16 == c:
                gm_[2] = gm_[2] + [epi[e_]]
        E(place(mf(c), gm_))


def build():
    k = Kern("k1_kernel")
    E = k.emit
    E("s_cmp_ge_u32 s2, 256\ns_cbranch_scc1 K1_END")
    code_prefetch(k, "L_CODE_END", 0, 120)
    stamp_init(k)
    stamp(k, 0)
    E(f"s_load_dwordx4 s[40:43], s[0:1], {KA_X}")
    E(f"s_load_dwordx4 s[44:47], s[0:1], {KA_WUK}")
    E(f"s_load_dwordx2 s[48:49], s[0:1], {KA_WIN}")
    E(f"s_load_dwordx4 s[52:55], s[0:1], {KA_DBG}")
    E("v_lshrrev_b32 v1, 6, v0\nv_and_b32 v0, 63, v0")
    E(f"s_lshr_b32 s{sRB}, s2, 3\ns_and_b32 s{sCB}, s2, 7")
    E(f"v_readfirstlane_b32 s{sW}, v1")
    E(f"s_and_b32 s{sNB}, s{sRB}, 3\ns_lshl_b32 s{sT}, s{sCB}, 2\ns_add_u32 s{sNB}, s{sNB}, s{sT}")
    E(f"s_lshr_b32 s{sMB}, s{sRB}, 2")
    E(f"s_and_b32 s{sRS}, s{sW}, 1\ns_lshr_b32 s{sCH}, s{sW}, 1\ns_lshl_b32 s{sW8}, s{sW}, 13\ns_lshl_b32 s{sW2}, s{sW}, 12")
    f0 = vF
    E(f"v_and_b32 v{f0}, 31, v0\nv_lshrrev_b32 v{f0 + 1}, 5, v0\nv_lshrrev_b32 v{f0 + 2}, 4, v0")
    E(f"v_bfe_u32 v{f0 + 3}, v0, 2, 2\nv_and_b32 v{f0 + 4}, 3, v0\nv_bfe_u32 v{f0 + 5}, v0, 4, 1")
    E(f"v_lshlrev_b32 v{vL16}, 4, v0")
    E(f"v_lshrrev_b32 v46, 3, v0\nv_lshlrev_b32 v50, 13, v46\nv_lshlrev_b32 v46, 10, v46\nv_and_b32 v47, 7, v0\nv_xor_b32 v47, v47, v{f0 + 2}")
    E("v_lshl_add_u32 v48, v47, 4, v46\nv_xor_b32 v47, 4, v47\nv_lshl_add_u32 v49, v47, 4, v46")
    for i in range(8):
        E(f"v_add_u32 v{vCD + i}, {i * 8192 - (i % 4) * 1024}, v{48 + (i % 2)}")
    E(f"v_bfe_u32 v47, v0, 2, 1\nv_xor_b32 v47, v47, v{f0 + 5}\nv_lshl_add_u32 v50, v47, 6, v50\nv_lshl_add_u32 v50, v{f0 + 4}, 4, v50")
    for i in range(8):
        E(f"v_add_u32 v{vUD + i}, {i * 65536 - (i % 4) * 1024}, v50")
    E(f"s_lshl_b32 s{sCK}, s{sMB}, 18\ns_lshl_b32 s{sT}, s{sW}, 16\ns_add_u32 s{sCK}, s{sCK}, s{sT}")
    E(f"s_and_b32 s{sT}, s{sNB}, 15\ns_lshl_b32 s{sT}, s{sT}, 9\ns_lshl_b32 s{sWK}, s{sW}, 19\ns_add_u32 s{sWK}, s{sWK}, s{sT}")
    E(f"s_lshl_b32 s{sWB}, s{sW}, 17\ns_add_u32 s{sWB}, s{sWB}, s{sT}")
    E(f"s_lshl_b32 s{sT2}, s2, 13\ns_lshl_b32 s{sT}, s{sW}, 11\ns_add_u32 s{sT2}, s{sT2}, s{sT}")
    E(f"v_xor_b32 v46, v{f0 + 3}, v{f0 + 2}\nv_lshlrev_b32 v47, 13, v{f0 + 2}\nv_lshl_add_u32 v47, v46, 6, v47\nv_lshl_add_u32 v47, v{f0 + 4}, 4, v47")
    for i in range(4):
        E(f"v_add_u32 v{vQD + i}, {i * (32768 - 1024)}, v47")
    E("s_waitcnt lgkmcnt(0)")
    E(srd(SX, 40, 2048 * 1024), srd(SC, 42, 2048 * 1024))
    E(VM(f"buffer_load_dwordx4 v[40:43], v{vL16}, {s(SX, 4)}, s{sT2} offen", "x"))
    E(VM(f"buffer_load_dwordx4 v[44:47], v{vL16}, {s(SX, 4)}, s{sT2} offen offset:1024", "x"))
    E(f"s_cmp_lt_u32 s{sNB}, 16\ns_cselect_b32 s{SW}, s44, s46\ns_cselect_b32 s{SW + 1}, s45, s47")
    E(f"s_mov_b32 s{SW + 2}, {512 * 8192:#x}\ns_mov_b32 s{SW + 3}, 0x20000")
    for j in range(2):
        E(a_dma(j), b_dma(j))
    E(srd(SI, 48, 512 * 2752), srd(SS, 54, WS_SIZE), srd(SD, 52, 256))
    E(f"s_lshl_b32 s{sT}, s2, 2\ns_add_u32 s{sT}, s{sT}, s{sW}\ns_lshl_b32 s70, s{sT}, 12\ns_lshl_b32 s77, s{sT}, 11\ns_and_b32 s76, s77, 0xfffff")
    E(f"s_cmp_lt_u32 s2, 128\ns_cselect_b32 s{SPF}, s44, s46\ns_cselect_b32 s{SPF + 1}, s45, s47\ns_mov_b32 s{SPF + 2}, {512 * 8192:#x}\ns_mov_b32 s{SPF + 3}, 0x20000")
    E(f"v_lshlrev_b32 v61, 9, v{f0 + 2}\nv_and_b32 v48, 15, v0\nv_lshl_add_u32 v61, v48, 4, v61")
    E(f"s_load_dwordx2 s[44:45], s[0:1], {KA_WQ}")
    E(f"v_bfe_u32 v48, v0, 1, 3\nv_xor_b32 v48, v48, v{f0 + 1}\nv_lshlrev_b32 v49, 7, v{f0}\nv_add_u32 v49, s{sW8}, v49")
    for k16 in range(4):
        E(f"v_xor_b32 v50, {2 * k16}, v48\nv_lshl_add_u32 v{vCR + k16}, v50, 4, v49\nv_add_u32 v{vCR + 4 + k16}, {SLOT}, v{vCR + k16}")
    E(f"v_lshl_add_u32 v48, v{f0 + 1}, 3, v{f0 + 3}\nv_lshlrev_b32 v48, 8, v48\nv_lshl_add_u32 v48, v{f0 + 5}, 5, v48\nv_lshl_add_u32 v48, v{f0 + 4}, 3, v48\nv_add_u32 v48, 32768, v48")
    for d in range(4):
        E(f"v_xor_b32 v49, {d}, v{f0 + 3}\nv_lshl_add_u32 v{vQR + d}, v49, 6, v48\nv_add_u32 v{vQR + 4 + d}, {SLOT}, v{vQR + d}")
    E(f"v_lshl_add_u32 v48, v{f0 + 1}, 3, v{f0 + 3}\nv_lshlrev_b32 v48, 7, v48\nv_lshl_add_u32 v48, v{f0 + 5}, 5, v48\nv_lshl_add_u32 v48, v{f0 + 4}, 3, v48")
    E(f"v_lshrrev_b32 v49, 1, v{f0 + 3}\nv_lshl_add_u32 v{vBR}, v49, 6, v48\nv_xor_b32 v49, 1, v49\nv_lshl_add_u32 v{vBR + 1}, v49, 6, v48")
    for sg in (1, 2):
        for d2 in range(2):
            E(f"v_add_u32 v{vBR + 2 * sg + d2}, {sg * 65536}, v{vBR + d2}")
    E(f"s_lshl_b32 s{sKO}, s{sNB}, 7\ns_lshl_b32 s{sT}, s{sMB}, 3\ns_add_u32 s{sKO}, s{sKO}, s{sT}\ns_lshl_b32 s{sT}, s{sW}, 1\ns_add_u32 s{sKO}, s{sKO}, s{sT}")
    E(f"s_lshl_b32 s{sKO}, s{sKO}, 13\ns_add_u32 s{sKO}, s{sKO}, {WS_KF}")
    E(f"s_mul_i32 s{sWI}, s{sW}, {16 * 2752}\ns_mul_i32 s{sT}, s{sCB}, 192\ns_add_u32 s{sWI}, s{sWI}, s{sT}")
    E(f"s_lshl_b32 s{sXN}, s{sRB}, 16\ns_lshl_b32 s{sT}, s{sW}, 10\ns_add_u32 s{sXN}, s{sXN}, s{sT}\ns_add_u32 s{sXN}, s{sXN}, {WS_XN}")
    E(f"s_lshl_b32 s{sCNT}, s{sRB}, 3\ns_mov_b32 s{sONES}, 0x3f803f80")
    E(f"s_lshr_b32 s{sT2}, s2, 2\ns_lshl_b32 s{sT2}, s{sT2}, 15\ns_and_b32 s{sT}, s2, 3\ns_lshl_b32 s{sT}, s{sT}, 7\ns_add_u32 s{sT2}, s{sT2}, s{sT}")
    E(f"s_add_u32 s{sT2}, s{sT2}, s{sW8}\ns_add_u32 s69, s{sT2}, {WS_XN}")
    E(f"s_lshl_b32 s{sT}, s{sW}, 5\ns_add_u32 s{sT}, s{sT}, {3 * SLOT}\nv_lshlrev_b32 v58, 7, v0\nv_add_u32 v58, s{sT}, v58")
    E(f"s_lshl_b32 s{sT}, s{sW}, 11\ns_add_u32 s{sT}, s{sT}, {3 * SLOT}\nv_add_u32 v59, s{sT}, v{vL16}")
    E("v_lshrrev_b32 v62, 3, v0\nv_lshlrev_b32 v62, 9, v62\nv_and_b32 v48, 7, v0\nv_lshl_add_u32 v62, v48, 4, v62")
    E("s_waitcnt lgkmcnt(0)")
    stamp(k, 1)
    E(f"s_cmp_ge_u32 s{sNB}, 16\ns_cbranch_scc1 K1_V")
    st = (list(k.vm), list(k.lg))
    kv_phase(k, False)
    E("s_branch K1_Z")
    k.set_state(*st)
    E("K1_V:")
    kv_phase(k, True)
    E("K1_Z:")
    stamp(k, 2)
    E(f"v_mov_b32 v60, {fbits(GELU_C0)}\nv_mov_b32 v61, {fbits(GELU_C1)}")
    E(f"s_cmp_eq_u32 s{sCH}, 1\ns_cbranch_scc1 K1_Z2")
    st = (list(k.vm), list(k.lg))
    ZACC = ACC[0]
    zr = list(range(ZACC, ZACC + 48))
    z_phase(k, False)
    stamp(k, 3)
    E(f"s_lshl_b32 s{sT}, s{sRB}, 1\ns_add_u32 s{sT}, s{sT}, s{sRS}\ns_mul_i32 s{sT}, s{sT}, 48")
    E(f"s_mul_i32 s{sT2}, s{sCB}, 6\ns_add_u32 s{sT}, s{sT}, s{sT2}\ns_lshl_b32 s{sT}, s{sT}, 10")
    E(f"s_add_u32 s{sT}, s{sT}, {WS_Z1}\ns_add_u32 s{sT2}, s{sT}, 4096\ns_nop 7")
    E(f"s_cmp_lg_u32 s{sCB}, 7\ns_cbranch_scc1 K1_Z1_NOMASK")
    for r in zr[8:]:
        E(f"v_mov_b32 v{r}, 0")
    E("K1_Z1_NOMASK:")
    for fg in range(6):
        b = ZACC + 8 * fg
        E(gelu(list(range(b, b + 8)), 60, 61, 52))
        for i in range(4):
            E(f"v_cvt_pk_bf16_f32 v{b + i}, v{b + 2 * i}, v{b + 2 * i + 1}")
        E(VM(f"buffer_store_dwordx4 {v(b, 4)}, v{vL16}, {s(SS, 4)}, s{sT if fg < 4 else sT2} offen offset:{1024 * (fg % 4)} sc1"))
    E("s_branch K1_DONE")
    k.set_state(*st)
    E("K1_Z2:")
    z_phase(k, True)
    stamp(k, 3)
    E(f"s_mul_i32 s{sT}, s{sCB}, 384\ns_lshl_b32 s{sT2}, s{sRB}, 2\ns_add_u32 s{sT}, s{sT}, s{sT2}")
    E(f"s_lshl_b32 s{sT2}, s{sRS}, 1\ns_add_u32 s{sT}, s{sT}, s{sT2}\ns_lshl_b32 s{sT}, s{sT}, 10\ns_add_u32 s{sT}, s{sT}, {WS_Z2R}\ns_nop 7")
    E(f"s_cmp_lg_u32 s{sCB}, 7\ns_cbranch_scc1 K1_Z2_NOMASK")
    E(f"v_cmp_gt_u32 vcc, 16, v{vF}\ns_nop 1")
    for r in zr[:16]:
        E(f"v_cndmask_b32 v{r}, 0, v{r}, vcc")
    for r in zr[16:]:
        E(f"v_mov_b32 v{r}, 0")
    E("K1_Z2_NOMASK:")
    E(gelu(zr, 60, 61, 52))
    SQ = 64
    for r in range(16):
        z0, z1, z2_ = ZACC + r, ZACC + 16 + r, ZACC + 32 + r
        E(f"v_add_f32 v{SQ + r}, v{z0}, v{z1}\nv_mul_f32 v{SQ + 16 + r}, v{z0}, v{z0}")
        E(f"v_add_f32 v{SQ + r}, v{SQ + r}, v{z2_}\nv_fmac_f32 v{SQ + 16 + r}, v{z1}, v{z1}")
        E(f"v_fmac_f32 v{SQ + 16 + r}, v{z2_}, v{z2_}")
    SCR = zslot(3) * 32768
    E(f"s_mul_i32 s{sT2}, s{sRS}, 9216\ns_add_u32 s{sT2}, s{sT2}, {SCR}")
    E(f"v_mul_u32_u24 v46, {4 * 144}, v{vF + 1}\nv_lshl_add_u32 v46, v{vF}, 2, v46\nv_add_u32 v46, s{sT2}, v46")
    for stt in range(2):
        for r in range(16):
            srow = 8 * (r // 4) + r % 4
            E(LG(f"ds_write_b32 v46, v{SQ + 16 * stt + r} offset:{(stt * 32 + srow) * 144}"))
    E(f"v_mul_u32_u24 v47, 144, v0\nv_add_u32 v47, s{sT2}, v47")
    for f in range(3):
        for g in range(2):
            b = ZACC + 16 * f + 8 * g
            for i in range(4):
                E(f"v_cvt_pk_bf16_f32 v{b + i}, v{b + 2 * i}, v{b + 2 * i + 1}")
            E("s_nop 1")
            E(f"v_permlane32_swap_b32 v{b}, v{b + 2}\nv_permlane32_swap_b32 v{b + 1}, v{b + 3}")
            E("s_nop 1")
            E(VM(f"buffer_store_dwordx4 {v(b, 4)}, v{vL16}, {s(SS, 4)}, s{sT} offen offset:{1024 * g} sc1"))
        if f < 2:
            E(f"s_add_u32 s{sT}, s{sT}, {128 * 1024}")
    E(WLG0)
    for i in range(8):
        E(LG(f"ds_read_b128 {v(SQ + 4 * i, 4)}, v47 offset:{16 * i}"))
    E(f"s_lshl_b32 s{sT}, s{sRB}, 1\ns_add_u32 s{sT}, s{sT}, s{sRS}\ns_lshl_b32 s{sT}, s{sT}, 11\ns_add_u32 s{sT}, s{sT}, {WS_STAT}")
    E(f"s_lshl_b32 s{sT2}, s{sCB}, 8\ns_add_u32 s{sT}, s{sT}, s{sT2}\nv_lshlrev_b32 v46, 2, v0")
    E(WLG0)
    for stride in (16, 8, 4, 2, 1):
        for i in range(stride):
            E(f"v_add_f32 v{SQ + i}, v{SQ + i}, v{SQ + stride + i}")
    E(VM(f"buffer_store_dword v{SQ}, v46, {s(SS, 4)}, s{sT} offen"))
    E("K1_DONE:")
    if PROF:
        stamp(k, 4)
        E(WVM0)
    stamp(k, 5)
    lstamp_store(k, 0, 63, 59, SS, sW)
    stamp_store(k, 0, SS, sW, 96)
    E("K1_END:")
    E("s_endpgm")
    return k.text(512, 256)
```

```python
from asmlib import *
from common import *
import os

THRESH = float(os.environ.get("THRESH", "32.0"))
BUDGET = int(os.environ.get("BUDGET", "25"))
EXP = os.environ.get("EXP2", "")

SQ, SP, SB, SS, SD = 8, 12, 16, 20, 24
sW, sHD, sPI, sG, sRS = 32, 33, 34, 35, 36
sT, sT2, sU, sSW, sSW2, sJUMP, sTL, sTD = 37, 38, 39, 40, 41, 42, 43, 44
sKN, sKO2, sVO, sVO2, sMK, sMV = 45, 46, 47, 48, 49, 50
sTH = (51, 52)
sLO = (53, 54)
sXN, sWQ, sWM, sW8, sDO = 55, 56, 57, 59, 58
sGP, sGZ, sGM, sFL, sPF, sEV, sDG = 60, 61, 62, 63, 76, 77, 31
NINF = "0xff800000"

vL16, vKc, vKn, vVp, vVc, vD0, vNEG = 1, 2, 3, 4, 5, 6, 7
vLs = ((8, 9), (10, 11))
vNM = (12, 13)
vM = 14
vLSV = (30, 31)
vT = 20
vQD = 32
vQR = 36
S = (48, 64)
NEGM = (80, 96)
PB = 112
QBS = 144
ZT = 208
NEGB = 208
MSK = 224
vPL = 240
aO, aQ, aK, aV = 0, 128, 192, 224

KB0, VB0, SPARE = 0, 65536, 131072
NEG = -1.0e30


def P(buf, x, i=0):
    return PB + (buf * 2 + x) * 8 + i


def dma4(so, tag="kv"):
    return [VM(f"buffer_load_dwordx4 v{vL16}, {s(SS, 4)}, s{so} offen offset:{1024 * i} lds", tag) for i in range(4)]


def qk(x, cin=None):
    return [mfma(('v', S[x]), ('a', aK + 4 * d), ('a', aQ + (x * 8 + d) * 4), ('v', NEGM[x] if cin is None else cin) if d == 0 else None)
            for d in range(8)]


def pv(x, buf):
    return [mfma(('a', aO + (x * 4 + ds) * 16), ('a', aV + (ds * 2 + g) * 4), ('v', P(buf, x, 4 * g)))
            for g in range(2) for ds in range(4)]


def kreads(areg, th):
    return [LG(f"ds_read_b128 {a(aK + 4 * d, 4)}, v{areg} offset:{th * 8192 + d * 1024}", "k") for d in range(8)]


def vreads(areg, th):
    return [LG(f"ds_read_b128 {a(aV + 4 * f, 4)}, v{areg} offset:{th * 8192 + f * 1024}", "v") for f in (0, 2, 4, 6, 1, 3, 5, 7)]


def sm_max(x):
    b, m = S[x], vM
    return [(4, I(t)) for t in (
        f"v_max3_f32 v{m}, v{b}, v{b + 1}, v{b + 2}", f"v_max3_f32 v{m + 1}, v{b + 3}, v{b + 4}, v{b + 5}",
        f"v_max3_f32 v{m + 2}, v{b + 6}, v{b + 7}, v{b + 8}", f"v_max3_f32 v{m + 3}, v{b + 9}, v{b + 10}, v{b + 11}",
        f"v_max3_f32 v{m + 4}, v{b + 12}, v{b + 13}, v{b + 14}", f"v_max3_f32 v{m}, v{m}, v{m + 1}, v{b + 15}",
        f"v_max3_f32 v{m + 2}, v{m + 2}, v{m + 3}, v{m + 4}", f"v_max_f32 v{m}, v{m}, v{m + 2}")]


def sm_chk(x, buf):
    return (8, [I(f"v_cmp_lt_f32 vcc, s{sTH[x]}, v{vM}"), I(f"s_cbranch_vccnz K2_RARE_{x}_{buf}"), I(f"K2_RET_{x}_{buf}:")])


def sm_fin(x, buf, i):
    b = S[x]
    return [(4, I(f"v_add_f32 v{vLs[x][0]}, v{vLs[x][0]}, v{b + 2 * i}")),
            (4, I(f"v_add_f32 v{vLs[x][1]}, v{vLs[x][1]}, v{b + 2 * i + 1}")),
            (4, I(f"v_cvt_pk_bf16_f32 v{P(buf, x, i)}, v{b + 2 * i}, v{b + 2 * i + 1}"))]


def sm_exp(x, buf):
    b = S[x]
    items = []
    for i in range(8):
        items.append((8, I(f"v_exp_f32 v{b + 2 * i}, v{b + 2 * i}")))
        items.append((8, I(f"v_exp_f32 v{b + 2 * i + 1}, v{b + 2 * i + 1}")))
        if i > 0:
            items += sm_fin(x, buf, i - 1)
    return items + sm_fin(x, buf, 7)


CAP = int(os.environ.get("CAP", "24"))


def schedule_loop(var='', pin=None):
    NG = 64
    T = NG + 16
    mem = [[] for _ in range(T)]
    alu = [[] for _ in range(T)]
    used = [0] * NG
    sfx = var
    diag, first = var == 'D', var == 'F'

    def fixed(g, cost, item, is_mem=True):
        (mem if is_mem else alu)[g].append(item)
        used[g % NG] += cost

    def spread_mem(g0, n, items):
        for i, r in enumerate(items):
            fixed(g0 + (i * n) // len(items), 4, r)

    spread_mem(0, 13, vreads(vVp, 1))
    spread_mem(16, 10, kreads(vKc, 1))
    spread_mem(32, 13, vreads(vVc, 0))
    spread_mem(48, 13, kreads(vKn, 0))
    BAR = int(os.environ.get("BAR", "27"))
    fixed(BAR, 8, [I("s_waitcnt vmcnt(1) lgkmcnt(0)"), ('reset',), I("s_barrier")])
    g = BAR + 1
    dgaps = []
    for so in (sKN, sKO2, sVO, sVO2):
        for d in dma4(so):
            fixed(g, 8, d)
            dgaps.append(g)
            g += 2
    fixed(g, 8, VM(f"buffer_load_dwordx4 {v(ZT + 40, 4)}, v{vL16}, {s(SP, 4)}, s{sPF} offen", "pf"))
    gpf = g
    tail = {15: [WLG("v")], 47: [WLG("v")], 63: []}
    for g_ in (15, 47):
        used[g_] += 4
    used[63] += 4 + 13 + 13
    if var:
        used[31] += 13
    jobs = []

    def job(name, cost, item, e, l, deps=(), later=None):
        jobs.append(dict(name=name, cost=cost, item=item, e=e, l=l, deps=list(deps), later=later))

    job("vo", 4, I(f"s_add_u32 s{sVO}, s{sKN}, {WS_VF - WS_KF}"), 0, BAR - 2)
    job("vo2", 4, I(f"s_add_u32 s{sVO2}, s{sKN}, {WS_VF - WS_KF + 4096}"), 0, BAR - 2)
    job("kn", 12, [I(f"s_cmp_eq_u32 s{sU}, s{sSW2}"), I(f"s_cselect_b32 s{sKO2}, s{sJUMP}, 0x4000"), I(f"s_add_u32 s{sKN}, s{sKN}, s{sKO2}")],
        0, BAR - 1, ["vo", "vo2"])
    job("ko2", 4, I(f"s_add_u32 s{sKO2}, s{sKN}, 4096"), 0, BAR, ["kn"])
    job("m0a", 4, I(f"s_mov_b32 m0, s{sMK}"), 0, BAR)
    job("m0b", 4, I(f"s_add_u32 m0, s{sMK}, 4096"), dgaps[3], dgaps[4] - 1)
    job("m0c", 4, I(f"s_mov_b32 m0, s{sMV}"), dgaps[7], dgaps[8] - 1)
    job("m0d", 4, I(f"s_add_u32 m0, s{sMV}, 4096"), dgaps[11], dgaps[12] - 1)
    job("pfa", 4, I(f"s_add_u32 s{sPF}, s{sPF}, 0x100000"), gpf, 63)
    job("xk", 4, I(f"s_xor_b32 s{sMK}, s{sMK}, 0x8000"), dgaps[4], 63, ["m0b"])
    job("xv", 4, I(f"s_xor_b32 s{sMV}, s{sMV}, 0x8000"), dgaps[12], 63, ["m0d"])
    job("vp", 4, I(f"v_mov_b32 v{vVp}, v{vVc}"), 13, 44)
    job("vc", 4, I(f"v_xor_b32 v{vVc}, 0x8000, v{vVc}"), 45, 63, ["vp"])
    job("kc", 4, I(f"v_xor_b32 v{vKc}, 0x8000, v{vKc}"), 26, 63)
    job("kx", 4, I(f"v_xor_b32 v{vKn}, 0x8000, v{vKn}"), 61, 63)
    job("tl", 4, I(f"s_add_u32 s{sTL}, s{sTL}, 1"), 56, 63)
    job("u", 4, I(f"s_add_u32 s{sU}, s{sU}, 1"), 32, 63)
    for half in range(2):
        G = 8 + 32 * half
        for x in range(2):
            e0 = G + 1 + 8 * x
            pre = f"{half}{x}"
            prev = [f"{half}0chk"] if x == 1 else []
            if diag and half == x:
                for r in range(16):
                    job(f"{pre}mk{r}", 4, I(f"v_min_f32 v{S[x] + r}, v{S[x] + r}, v{MSK + r}"), e0, e0 + 4, prev)
                prev = prev + [f"{pre}mk{r}" for r in range(16)]
            for i, (c, it) in enumerate(sm_max(x)):
                job(f"{pre}m{i}", c, it, e0, e0 + 5, prev + ([f"{pre}m{i - 1}"] if i else []))
            dl = G + 23 + 8 * x
            b_ = S[x]
            if first and half == 0:
                d_ = vT + x
                job(f"{pre}f0", 4, I(f"v_mov_b32 v{d_}, v{vM}"), e0, e0 + 8, [f"{pre}m7"])
                job(f"{pre}f1", 8, [I("s_nop 0"), I(f"v_permlane32_swap_b32 v{vM}, v{d_}")], e0, e0 + 9, [f"{pre}f0"], later=f"{pre}f0")
                job(f"{pre}chk", 12, [I(f"v_max_f32 v{d_}, v{d_}, v{vM}"), I(f"v_ceil_f32 v{d_}, v{d_}"), I(f"v_sub_f32 v{vNM[x]}, 0, v{d_}")],
                    e0, e0 + 10, [f"{pre}f1"], later=f"{pre}f1")
                job(f"{pre}ls", 12, [I(f"v_add_f32 v{vLSV[x]}, v{vLs[x][0]}, v{vLs[x][1]}"), I(f"v_mov_b32 v{vLs[x][0]}, 0"), I(f"v_mov_b32 v{vLs[x][1]}, 0")],
                    e0, e0 + 8)
                for r in range(16):
                    job(f"{pre}s{r}", 4, I(f"v_sub_f32 v{b_ + r}, v{b_ + r}, v{d_}"), e0, dl - 2, [f"{pre}chk", f"{pre}ls"])
                    job(f"{pre}n{r}", 4, I(f"v_mov_b32 v{NEGM[x] + r}, v{vNM[x]}"), e0, dl - 1, [f"{pre}chk"])
            else:
                job(f"{pre}cmp", 4, I(f"v_cmp_lt_f32 vcc, s{sTH[x]}, v{vM}"), e0, e0 + 5, [f"{pre}m7"])
                job(f"{pre}chk", 9, [I(f"s_cbranch_vccnz K2_RARE_{x}_{half}"), I(f"K2_RET{sfx}_{x}_{half}:")],
                    e0, e0 + 6, [f"{pre}cmp"], later=f"{pre}cmp")
            for r in range(16):
                job(f"{pre}e{r}", 8, I(f"v_exp_f32 v{b_ + r}, v{b_ + r}"), e0, dl - 1,
                    [f"{pre}s{r}" if (first and half == 0) else f"{pre}chk"] + ([f"{pre}e{r - 1}"] if r else []))
            for i in range(8):
                f3 = sm_fin(x, half, i)
                job(f"{pre}a{2 * i}", 4, f3[0][1], e0, dl, [f"{pre}e{2 * i + 1}"])
                job(f"{pre}a{2 * i + 1}", 4, f3[1][1], e0, dl, [f"{pre}a{2 * i}"])
                job(f"{pre}c{i}", 4, f3[2][1], e0, dl, [f"{pre}a{2 * i + 1}"])
    if pin is not None:
        for j in jobs:
            if j['name'] in pin:
                j['e'] = j['l'] = pin[j['name']]
            else:
                j['l'] = min(j['l'], 63)
    done = {}
    rest = list(jobs)
    order = list(range(9, NG + 9))
    remaining = sum(j['cost'] for j in jobs)
    for gi, g in enumerate(order):
        gm_ = g % NG
        free_after = sum(max(0, CAP - used[h % NG]) for h in order[gi + 1:])
        while True:
            cand = []
            for j in rest:
                e, l = j['e'], j['l']
                if l < 9 or (e < 9 and j['name'][0] not in "01" and False):
                    e, l = e + NG, l + NG
                if e <= g and all(d in done for d in j['deps']) and (j['later'] is None or done[j['later']] < g):
                    cand.append((l, j))
            if not cand:
                break
            cand.sort(key=lambda z: z[0])
            room = CAP - used[gm_]
            pick = None
            for l, j in cand:
                if j['cost'] <= room:
                    pick = j
                    break
            if pick is None:
                urgent = [j for l, j in cand if l <= g]
                if urgent:
                    pick = urgent[0]
                elif remaining > free_after and room > -4 and room + 4 >= min(j['cost'] for _, j in cand):
                    pick = min((j for _, j in cand), key=lambda j: j['cost'])
                else:
                    break
            alu[g].append(pick['item'])
            used[gm_] += pick['cost']
            remaining -= pick['cost']
            done[pick['name']] = g
            rest.remove(pick)
    assert not rest, [j['name'] for j in rest]
    for j in jobs:
        l = j['l'] + (NG if j['l'] < 9 else 0)
        assert done[j['name']] <= l, (j['name'], done[j['name']], l)
    est = sum(max(32, 8 + u) for u in used)
    if os.environ.get("SCHED"):
        print("loop estimate", est, used)
    wrapped = []
    for g in range(NG, T):
        wrapped += [it for it in alu[g] if "v_" in str(it) and "s_cselect" not in str(it)]
    gm = {}
    for g in range(NG):
        gm[g] = mem[g] + (alu[g + NG] if g + NG < T else []) + alu[g] + tail.get(g, [])
    return gm, wrapped, {n: g for n, g in done.items() if g >= NG}


def rare_ret(L):
    r = f"s_cmp_eq_u32 s{sDG}, 0\ns_cbranch_scc1 K2_RET_{L}\n"
    if L.endswith("_1"):
        r += f"s_cmp_eq_u32 s{sDG}, 2\ns_cbranch_scc1 K2_RETF_{L}\n"
    return r + f"s_branch K2_RETD_{L}"


def rare_path(k, x, buf):
    E = k.emit
    t = vT
    L = f"{x}_{buf}"
    E(f"K2_RARE_{L}:")
    E(f"s_mov_b32 s{sTH[x]}, {fbits(THRESH)}")
    E(f"v_mov_b32 v{t}, v{vM}\ns_nop 1\nv_permlane32_swap_b32 v{vM}, v{t}\ns_nop 1")
    E(f"v_max_f32 v{t}, v{t}, v{vM}\nv_ceil_f32 v{t}, v{t}\nv_max_f32 v{t}, s{sLO[x]}, v{t}")
    E(f"v_sub_f32 v{vNM[x]}, v{vNM[x]}, v{t}")
    for r in range(16):
        E(f"v_sub_f32 v{S[x] + r}, v{S[x] + r}, v{t}")
        E(f"v_mov_b32 v{NEGM[x] + r}, v{vNM[x]}")
    E(f"s_cmp_eq_u32 s{sLO[x]}, 0\ns_cbranch_scc1 K2_RSC_{L}")
    E(f"v_add_f32 v{vLSV[x]}, v{vLs[x][0]}, v{vLs[x][1]}\nv_mov_b32 v{vLs[x][0]}, 0\nv_mov_b32 v{vLs[x][1]}, 0")
    E(f"s_mov_b32 s{sLO[x]}, 0", rare_ret(L))
    E(f"K2_RSC_{L}:")
    E(f"v_sub_f32 v{t + 1}, 0, v{t}\nv_exp_f32 v{t + 1}, v{t + 1}\ns_nop 0")
    E(f"v_mul_f32 v{vLs[x][0]}, v{vLs[x][0]}, v{t + 1}\nv_mul_f32 v{vLs[x][1]}, v{vLs[x][1]}, v{t + 1}")
    for i in range(8):
        p = P(1 - buf, x, i)
        E(f"v_lshlrev_b32 v{t + 2}, 16, v{p}\nv_and_b32 v{t + 3}, 0xffff0000, v{p}")
        E(f"v_mul_f32 v{t + 2}, v{t + 2}, v{t + 1}\nv_mul_f32 v{t + 3}, v{t + 3}, v{t + 1}")
        E(f"v_cvt_pk_bf16_f32 v{p}, v{t + 2}, v{t + 3}")
    E("s_nop 15")
    for r in range(0, 64, 4):
        for i in range(4):
            E(f"v_accvgpr_read_b32 v{t + 2 + i}, a{aO + x * 64 + r + i}")
        for i in range(4):
            E(f"v_mul_f32 v{t + 2 + i}, v{t + 2 + i}, v{t + 1}")
        for i in range(4):
            E(f"v_accvgpr_write_b32 a{aO + x * 64 + r + i}, v{t + 2 + i}")
    E(rare_ret(L))


def ctx_addr(sqb_expr, x_in_addr):
    pass


def hooks(k):
    E = k.emit
    E("K2_EVENT:")
    E(f"s_mov_b32 s{sDG}, 0\ns_cmp_lg_u32 s{sU}, s{sSW}\ns_cbranch_scc1 K2_EV2")
    E(f"s_cmp_eq_u32 s{sG}, 0\ns_cbranch_scc1 K2_SW0")
    for r in range(64):
        E(f"v_accvgpr_write_b32 a{aQ + r}, v{QBS + r}")
    for r in range(32):
        E(f"v_mov_b32 v{NEGM[0] + r}, 0")
    E(f"v_mov_b32 v{vNM[0]}, 0\nv_mov_b32 v{vNM[1]}, 0")
    for x in range(2):
        E(f"s_mov_b32 s{sTH[x]}, {NINF}\ns_mov_b32 s{sLO[x]}, {NINF}")
    E(f"s_mov_b32 s{sTL}, 17\ns_sub_u32 s{sTD}, 15, s{sPI}\ns_lshl_b32 s{sTD}, s{sTD}, 1\ns_add_u32 s{sTD}, s{sTD}, s{sRS}")
    E("s_branch K2_EV2")
    E("K2_SW0:")
    E(f"s_cmp_eq_u32 s{sU}, 9\ns_cbranch_scc1 K2_SW1")
    E(f"v_and_b32 v{vPL}, 31, v0\nbuffer_load_ubyte v{vPL + 1}, v{vPL}, {s(SS, 4)}, s{sFL} offen sc0 sc1\ns_mov_b32 s{sSW}, 9\ns_branch K2_EV2")
    E("K2_SW1:\ns_waitcnt vmcnt(17)")
    E(f"v_cmp_ne_u32 vcc, 1, v{vPL + 1}\ns_nop 1\ns_cbranch_vccz K2_EV2")
    E(f"K2_FBLP:\ns_sleep 2\nbuffer_load_ubyte v{vPL + 1}, v{vPL}, {s(SS, 4)}, s{sFL} offen sc0 sc1\ns_waitcnt vmcnt(0)")
    E(f"v_cmp_ne_u32 vcc, 1, v{vPL + 1}\ns_nop 1\ns_cbranch_vccnz K2_FBLP")
    E("K2_EV2:")
    E(f"s_cmp_lt_u32 s{sTL}, s{sTD}\ns_cbranch_scc0 K2_EV3")
    E(f"s_cmp_eq_u32 s{sLO[0]}, 0\ns_cbranch_scc1 K2_EV4")
    for x in range(2):
        E(f"s_mov_b32 s{sTH[x]}, {fbits(THRESH)}\ns_mov_b32 s{sLO[x]}, 0")
    E(f"s_add_u32 s{sEV}, s{sU}, 1\ns_mov_b32 s{sDG}, 2\ns_branch K2_SWRETF")
    E("K2_EV4:")
    E(f"s_sub_u32 s{sEV}, s{sTD}, s{sTL}\ns_add_u32 s{sEV}, s{sEV}, s{sU}\ns_cmp_gt_u32 s{sSW}, s{sU}\ns_cselect_b32 s{sT}, s{sSW}, 99\ns_min_u32 s{sEV}, s{sEV}, s{sT}")
    E("s_branch K2_SWRET")
    E("K2_EV3:")
    E(f"s_add_u32 s{sEV}, s{sU}, 1\ns_mov_b32 s{sDG}, 1\ns_cmp_eq_u32 s{sTL}, s{sTD}\ns_cbranch_scc1 K2_SWRETD")
    for r in range(32):
        E(f"v_mov_b32 v{NEGM[0] + r}, v{vNEG}")
    E(f"s_mov_b32 s{sTH[0]}, 0x7f800000\ns_mov_b32 s{sTH[1]}, 0x7f800000\ns_branch K2_SWRETD")
    E("K2_FINB:")
    t = QBS
    E(f"s_cmp_eq_u32 s{sLO[0]}, 0\ns_cbranch_scc1 K2_FB1")
    for x in range(2):
        E(f"v_add_f32 v{vLSV[x]}, v{vLs[x][0]}, v{vLs[x][1]}\nv_mov_b32 v{vLs[x][0]}, 0\nv_mov_b32 v{vLs[x][1]}, 0\nv_sub_f32 v{vNM[x]}, 0, v{vNEG}")
    E("K2_FB1:")
    for x in range(2):
        E(f"v_mov_b32 v{t + 2 * x}, v{vLSV[x]}")
    E("s_nop 1")
    for x in range(2):
        E(f"v_permlane32_swap_b32 v{vLSV[x]}, v{t + 2 * x}")
    E("s_nop 1")
    for x in range(2):
        E(f"v_add_f32 v{t + 2 * x}, v{t + 2 * x}, v{vLSV[x]}\nv_rcp_f32 v{t + 2 * x}, v{t + 2 * x}")
    E(f"s_lshl_b32 s{sT}, s{sPI}, 2\ns_lshl_b32 s{sT2}, s{sRS}, 1\ns_add_u32 s{sT}, s{sT}, s{sT2}")
    for x in range(2):
        E(f"v_mov_b32 v{t + 2 * x + 1}, v{t + 2 * x}")
    E(f"s_mul_i32 s{sT}, s{sT}, {CTXU_STEPS}\ns_lshl_b32 s{sT2}, s{sHD}, 3\ns_add_u32 s{sT}, s{sT}, s{sT2}")
    E(f"s_lshl_b32 s{sT}, s{sT}, 10\ns_add_u32 s{sT}, s{sT}, {WS_CTXU}")
    for i in range(4):
        E(f"v_mov_b32 v{t + 4 + i}, 0")
    for x in range(2):
        for f in range(8):
            b = t + 8 + 8 * (f % 4)
            for i in range(8):
                E(f"v_accvgpr_read_b32 v{b + i}, a{aO + x * 64 + 8 * f + i}")
            if f % 2 == 1:
                E(mfma(('a', aO + x * 64 + 8 * (f - 1)), ('v', t + 4), ('v', t + 4), 0))
            for i in range(4):
                E(f"v_pk_mul_f32 {v(b + 2 * i, 2)}, {v(b + 2 * i, 2)}, {v(t + 2 * x, 2)}")
            for i in range(4):
                E(f"v_cvt_pk_bf16_f32 v{b + i}, v{b + 2 * i}, v{b + 2 * i + 1}")
            E(f"buffer_store_dwordx4 {v(b, 4)}, v{vL16}, {s(SS, 4)}, s{sT} offen offset:{1024 * (f % 4)} sc1")
            if f == 3:
                E(f"s_add_u32 s{sT}, s{sT}, 4096")
            if f == 7 and x == 0:
                E(f"s_add_u32 s{sT}, s{sT}, {CTXU_STEPS * 1024 - 4096}")
    E(f"s_cmp_eq_u32 s{sDG}, 2\ns_cbranch_scc1 K2_FBRETF\ns_branch K2_FBRETD")


QACC = 48
aXN = 0
aWF = 192


def wq_dma(j):
    out = []
    for i in range(4):
        g = []
        if i == 0:
            g += [I(f"s_add_u32 m0, s{sWM}, {j * 16384}"), I(f"s_add_u32 s{sDO}, s{sWQ}, {j * 64 * 8192}")]
        g.append(VM(f"buffer_load_dwordx4 v{vQD + i}, {s(SQ, 4)}, s{sDO} offen offset:{1024 * i} lds", f"wq{j}"))
        out.append(g)
    return out


def xn_loads(j):
    out = []
    for x in range(2):
        for cs in range(4):
            g = []
            if cs == 0:
                g.append(I(f"s_add_u32 s{sDO}, s{sXN}, {x * 32768 + j * 4096}"))
            g.append(VM(f"buffer_load_dwordx4 {a(aXN + (j % 4) * 32 + (x * 4 + cs) * 4, 4)}, v{vL16}, {s(SS, 4)}, "
                        f"s{sDO} offen offset:{1024 * cs}", f"xn{j}"))
            out.append(g)
    return out


def znorm():
    ld = [[I(x) for x in (f"s_lshr_b32 s{sGM}, s2, 3", f"s_and_b32 s{sGP}, s2, 7", f"s_lshl_b32 s{sT}, s{sGM}, 1", f"s_add_u32 s{sT}, s{sT}, s{sG}",
                          f"s_lshl_b32 s{sT}, s{sT}, 11", f"s_add_u32 s{sT}, s{sT}, {WS_STAT}", f"v_lshlrev_b32 v{ZT}, 2, v0")]]
    for i in range(0, 8, 2):
        ld.append([VM(f"buffer_load_dword v{ZT + 4 + i + e}, v{ZT}, {s(SS, 4)}, s{sT} offen offset:{256 * (i + e)}", "zn") for e in range(2)])
    ld.append([I(x) for x in (f"s_mul_i32 s{sGZ}, s{sGP}, 384", f"s_lshl_b32 s{sT}, s{sGM}, 2", f"s_add_u32 s{sGZ}, s{sGZ}, s{sT}",
                              f"s_add_u32 s{sGZ}, s{sGZ}, s{sW}", f"s_lshl_b32 s{sGZ}, s{sGZ}, 10")])
    for f in range(3):
        ld.append([I(f"s_add_u32 s{sT}, s{sGZ}, {WS_Z2R + f * 128 * 1024}"),
                   VM(f"buffer_load_dwordx4 {v(ZT + 12 + 4 * f, 4)}, v{vL16}, {s(SS, 4)}, s{sT} offen", "zn")])
    z = ZT + 4
    AB = ZT + 24
    c = [WVM("zn")]
    c += flat([f"v_add_f32 v{z}, v{z}, v{z + 1}\nv_add_f32 v{z + 2}, v{z + 2}, v{z + 3}\nv_add_f32 v{z + 4}, v{z + 4}, v{z + 5}\nv_add_f32 v{z + 6}, v{z + 6}, v{z + 7}",
               f"v_add_f32 v{z}, v{z}, v{z + 2}\nv_add_f32 v{z + 4}, v{z + 4}, v{z + 6}\nv_add_f32 v{z}, v{z}, v{z + 4}",
               f"v_mul_f32 v{z}, {fbits(1 / 688)}, v{z}\nv_mov_b32 v{z + 1}, v{z}\ns_nop 1\nv_permlane32_swap_b32 v{z}, v{z + 1}\ns_nop 1",
               f"v_fma_f32 v{z + 1}, -v{z}, v{z}, v{z + 1}\nv_max_f32 v{z + 1}, 0, v{z + 1}\nv_add_f32 v{z + 1}, {fbits(LN_EPS)}, v{z + 1}\nv_rsq_f32 v{z + 1}, v{z + 1}\ns_nop 0",
               f"v_mul_f32 v{z}, v{z}, v{z + 1}\nv_sub_f32 v{z}, 0, v{z}",
               f"s_lshl_b32 s{sT}, s{sW}, 8\ns_add_u32 s{sT}, s{sT}, {SPARE}",
               f"v_lshlrev_b32 v{z + 2}, 2, v20\nv_add_u32 v{z + 2}, s{sT}, v{z + 2}"])
    c += [LG(f"ds_write_b32 v{z + 2}, v{z + 1}", "zw"), LG(f"ds_write_b32 v{z + 2}, v{z} offset:128", "zw")]
    c += flat([f"s_lshl_b32 s{sT2}, s{sRS}, 6\ns_add_u32 s{sT}, s{sT}, s{sT2}\nv_lshlrev_b32 v{z + 3}, 5, v21\nv_add_u32 v{z + 3}, s{sT}, v{z + 3}"])
    for i in range(2):
        c += [LG(f"ds_read_b128 {v(AB + 4 * i, 4)}, v{z + 3} offset:{16 * i}", "zr"),
              LG(f"ds_read_b128 {v(AB + 8 + 4 * i, 4)}, v{z + 3} offset:{128 + 16 * i}", "zr")]
    c += flat([f"s_lshl_b32 s{sGP}, s{sGP}, 8\ns_add_u32 s{sGP}, s{sGP}, s{sGM}\ns_add_u32 s{sGP}, s{sGP}, {WS_FLAG2}\ns_nop 0"])
    c += [WLG("zr")]
    for f in range(3):
        for i in range(4):
            x_ = ZT + 12 + 4 * f + i
            c += flat([f"v_lshlrev_b32 v{z}, 16, v{x_}\nv_and_b32 v{z + 1}, 0xffff0000, v{x_}",
                       f"v_fma_f32 v{z}, v{z}, v{AB + 2 * i}, v{AB + 8 + 2 * i}\nv_fma_f32 v{z + 1}, v{z + 1}, v{AB + 2 * i + 1}, v{AB + 9 + 2 * i}",
                       f"v_cvt_pk_bf16_f32 v{x_}, v{z}, v{z + 1}"])
        c += [I(f"s_add_u32 s{sT}, s{sGZ}, {WS_Z2N + f * 128 * 1024}"),
              VM(f"buffer_store_dwordx4 {v(ZT + 12 + 4 * f, 4)}, v{vL16}, {s(SS, 4)}, s{sT} offen sc1", "zs")]
    cg = [c[i:i + 4] for i in range(0, len(c), 4)]
    return ld, cg


def qproj(k):
    E = k.emit
    extra = {}

    def spread(c0, c1, groups):
        n = len(groups)
        for i, g in enumerate(groups):
            extra.setdefault(c0 + (i * (c1 - c0)) // n, []).append(g)

    def rd(c, fb):
        j, cs = c // 4, c % 4
        return [LG(f"ds_read_b64_tr_b16 {a(fb + 4 * d + 2 * sec, 2)}, v{vQR + (j // 4) * 4 + d} "
                   f"offset:{(j % 4) * 16384 + cs * 4096 + sec * 1024}", f"q{c}") for d in range(4) for sec in range(2)]

    def fbuf(c):
        return aWF + (c % 4) * 16

    def mf1(c, d, x):
        j, cs = c // 4, c % 4
        return mfma(('v', QACC + (x * 4 + d) * 16), ('a', fbuf(c) + 4 * d), ('a', aXN + (j % 4) * 32 + (x * 4 + cs) * 4),
                    0 if c == 0 else None)

    zl, zc = znorm()

    def kvpre(base, pre, so, so2, tag="kv"):
        d1, d2 = dma4(so, tag), dma4(so2, tag)
        return [[I(f"s_add_u32 m0, s{sW8}, {base}")] + [I(x) for x in pre] + [d1[0]]] + [[d] for d in d1[1:]] + \
               [[I(f"s_add_u32 m0, s{sW8}, {base + 4096}"), I("s_nop 0"), d2[0]]] + [[d] for d in d2[1:]]

    k0 = kvpre(0, [f"s_add_u32 s{sKO2}, s{sKN}, 4096"], sKN, sKO2, "k0")
    k1 = kvpre(32768, [f"s_add_u32 s{sVO}, s{sKN}, {WS_VF - WS_KF}", f"s_add_u32 s{sVO2}, s{sVO}, 4096",
                       f"s_add_u32 s{sKN}, s{sKN}, 0x4000", f"s_add_u32 s{sKO2}, s{sKN}, 4096"], sKN, sKO2)
    v0_ = kvpre(VB0, ["s_nop 0"], sVO, sVO2)
    q = []
    for e, grp in ((0, wq_dma(2) + xn_loads(2) + wq_dma(3) + xn_loads(3) + wq_dma(4)), (4, xn_loads(4)), (0, wq_dma(5)), (8, xn_loads(5)),
                   (0, wq_dma(6) + zl), (12, xn_loads(6)), (0, wq_dma(7)), (16, xn_loads(7)), (6, k0), (14, k1)):
        q += [(e, g) for g in grp]
    RATE = 4
    c_ = 0
    n_ = 0
    for e, g in q:
        if e > c_:
            c_, n_ = e, 0
        extra.setdefault(c_, []).append(g)
        n_ += 1
        if n_ == RATE:
            c_, n_ = c_ + 1, 0
    assert c_ <= 27, c_
    valu = {}
    for i, g in enumerate(zc):
        valu.setdefault(19 + (i * 8) // len(zc), []).append(g)

    E(WVM("wq0"), "s_barrier")
    stamp(k, 6)
    E(rd(0, fbuf(0)), rd(1, fbuf(1)))
    for c in range(28):
        j, cs = c // 4, c % 4
        n = c + 2
        if n % 4 == 0:
            lstamp(k, 19, 3 * (n // 4))
            E(WLG(f"q{n - 1}"), WVM(f"wq{n // 4}"))
            lstamp(k, 19, 3 * (n // 4) + 1)
            E("s_barrier")
        E(WLG(f"q{c}"))
        if cs == 0:
            E(WVM(f"xn{j}"))
            lstamp(k, 19, 3 * j + 2)
        r_ = rd(n, fbuf(n))
        ex, va = extra.get(c, []), valu.get(c, [])
        gm_ = {}
        for i in range(8):
            gm_[i] = [r_[i]] + ([ex[i // 2]] if (i % 2 == 0 and i // 2 < len(ex)) else []) + [va[z] for z in range(len(va)) if (z * 8) // len(va) == i]
        E(place([mf1(c, d, x) for d in range(4) for x in range(2)], gm_))
    E(rd(30, fbuf(30)), rd(31, fbuf(31)))
    E(f"v_mov_b32 v{vT}, {fbits(QSCALE)}\nv_mov_b32 v{vT + 1}, {fbits(QSCALE)}")
    E(f"v_add_u32 v{vT + 2}, s{sW8}, v{vL16}\nv_add_u32 v{vT + 3}, {SPARE}, v{vT + 2}\nv_add_u32 v{vT + 2}, {VB0 + 32768}, v{vT + 2}")
    E(WVM("xn7"), WLG0, "s_barrier")

    def epi(d, x):
        out = []
        for g in range(2):
            b = QACC + (x * 4 + d) * 16 + 8 * g
            out.append([I(f"v_mul_f32 v{b + i}, v{vT}, v{b + i}") for i in range(8)])
            out.append([I(f"v_cvt_pk_bf16_f32 v{b + i}, v{b + 2 * i}, v{b + 2 * i + 1}") for i in range(4)] +
                       [LG(f"ds_write_b128 v{vT + 3 - x}, {v(b, 4)} offset:{(2 * d + g) * 1024}")])
        return out

    tiles = [(d, x) for x in range(2) for d in range(4)]
    for i, (d, x) in enumerate(tiles):
        m = [mf1(c, d, x) for c in range(28, 32)]
        if i == 0:
            E(m[0], v0_[0], m[1:])
        else:
            e = epi(*tiles[i - 1])
            E(m[0], v0_[i], m[1], e[0], e[1], m[2], e[2], m[3], e[3])
    stamp(k, 7)
    E("s_nop 15")
    E(epi(*tiles[-1]))
    E(WVM("k0"), WVM("zs"), WLG0, "s_barrier")
    E(flag_set(sW, SS, sGP, ZT))
    E(VM(f"buffer_load_dwordx4 {v(ZT + 40, 4)}, v{vL16}, {s(SP, 4)}, s{sPF} offen", "pf"), f"s_add_u32 s{sPF}, s{sPF}, 0x100000")
    E(f"s_lshl_b32 s{sT}, s{sRS}, 13\nv_add_u32 v{vT + 4}, s{sT}, v{vL16}")
    E(f"v_add_u32 v{vT + 5}, {SPARE}, v{vT + 4}\nv_add_u32 v{vT + 4}, {VB0 + 32768}, v{vT + 4}")
    E(kreads(vKc, 0))
    for x in range(2):
        for f in range(8):
            E(LG(f"ds_read_b128 {a(aQ + (x * 8 + f) * 4, 4)}, v{vT + 3 - x} offset:{f * 1024}"))
    for x in range(2):
        for f in range(8):
            E(LG(f"ds_read_b128 {v(QBS + (x * 8 + f) * 4, 4)}, v{vT + 5 - x} offset:{f * 1024}"))


ZRING = (('v', 144), ('v', 192), ('a', 128), ('a', 176))
vWS = 48
vPD = 32
vPR = 40
NGS = 5


def g_slot(st):
    return (0, 1, 3, 2, 4)[st % NGS] * 32768


def zreg(st, i):
    kind, base = ZRING[st % 4]
    return (kind, base + i * 4)


def sprinkle(items, groups):
    items = flat(items)
    n, m = len(items), len(groups)
    out, gi = [], 0
    for i, it in enumerate(items):
        while gi < m and gi * n <= i * m:
            out.append(groups[gi])
            gi += 1
        out.append(it)
    return flat(out + groups[gi:])


def g_dma(st):
    out = []
    for i in range(8):
        g = []
        if i % 4 == 0:
            g += [I(f"s_add_u32 m0, s{sW8}, {g_slot(st) + (i // 4) * 4096}"), I(f"s_add_u32 s{sDO}, s{sGP}, {st * 128}")]
        g.append(VM(f"buffer_load_dwordx4 v{vPD + i}, {s(SP, 4)}, s{sDO} offen offset:{1024 * (i % 4)} lds", f"g{st}"))
        out.append(g)
    return out


def g_zl(st):
    out = []
    for f in range(3):
        for ks in range(4):
            g = []
            if ks == 0:
                g.append(I(f"s_add_u32 s{sGM}, s{sGZ}, {f * 128 * 1024 + st * 4096}"))
            g.append(VM(f"buffer_load_dwordx4 {R(zreg(st, f * 4 + ks), 4)}, v{vL16}, {s(SS, 4)}, "
                        f"s{sGM} offen offset:{1024 * ks} sc1", f"g{st}"))
            out.append(g)
    return out


def g_setup():
    o = [f"v_lshrrev_b32 v{ZT + 32}, 4, v0\nv_lshrrev_b32 v{ZT + 33}, 3, v0\nv_lshlrev_b32 v{ZT + 33}, 12, v{ZT + 33}\nv_and_b32 v{ZT + 34}, 7, v0\nv_xor_b32 v{ZT + 34}, v{ZT + 34}, v{ZT + 32}",
         f"v_lshl_add_u32 v{ZT + 35}, v{ZT + 34}, 4, v{ZT + 33}\nv_xor_b32 v{ZT + 34}, 4, v{ZT + 34}\nv_lshl_add_u32 v{ZT + 36}, v{ZT + 34}, 4, v{ZT + 33}"]
    for i in range(8):
        o.append(f"v_add_u32 v{vPD + i}, {i * 8 * 4096 - (i % 4) * 1024}, v{ZT + 35 + (i % 2)}")
    o.append(f"v_lshrrev_b32 v{ZT + 32}, 5, v0\nv_bfe_u32 v{ZT + 33}, v0, 1, 3\nv_xor_b32 v{ZT + 33}, v{ZT + 33}, v{ZT + 32}")
    o.append(f"v_and_b32 v{ZT + 34}, 31, v0\nv_lshlrev_b32 v{ZT + 34}, 7, v{ZT + 34}\nv_add_u32 v{ZT + 34}, s{sW8}, v{ZT + 34}")
    for ks in range(4):
        o.append(f"v_xor_b32 v{ZT + 35}, {2 * ks}, v{ZT + 33}\nv_lshl_add_u32 v{vPR + ks}, v{ZT + 35}, 4, v{ZT + 34}\nv_add_u32 v{vPR + 4 + ks}, 0x10000, v{vPR + ks}")
    o.append(f"s_lshl_b32 s{sGP}, s{sHD}, 18\ns_lshl_b32 s{sDO}, s{sW}, 10\ns_add_u32 s{sGP}, s{sGP}, s{sDO}")
    o.append(f"s_mul_i32 s{sGZ}, s{sPI}, 384\ns_lshl_b32 s{sGM}, s{sW}, 5\ns_add_u32 s{sGZ}, s{sGZ}, s{sGM}")
    o.append(f"s_lshl_b32 s{sGZ}, s{sGZ}, 10\ns_add_u32 s{sGZ}, s{sGZ}, {WS_Z2N}")
    return o


def merge(k, keep):
    E = k.emit
    send = 1 - keep
    t = vT
    wr = [LG(f"ds_write_b128 v{t + 4 + i // 8}, {a(aO + send * 64 + 4 * i, 4)} offset:{(i % 8) * 1024}") for i in range(16)]
    E(LG(f"ds_read_b64 {v(t + 8, 2)}, v{t + 4}", "mb"))
    d0, d1 = g_dma(0), g_dma(1)
    E(weave(pv(send, 1), d0, 0, 8))
    E(WLG("mb"))
    fac = [f"v_min_f32 v{t}, v{vNM[keep]}, v{t + 8}", f"v_sub_f32 v{t + 2}, v{t}, v{vNM[keep]}", f"v_sub_f32 v{t + 8}, v{t}, v{t + 8}",
           f"v_exp_f32 v{t + 2}, v{t + 2}", f"v_exp_f32 v{t + 8}, v{t + 8}", "s_nop 0",
           f"v_mul_f32 v{t}, v{vLs[keep][0]}, v{t + 2}", f"v_fmac_f32 v{t}, v{t + 9}, v{t + 8}", f"v_rcp_f32 v{t}, v{t}", "s_nop 0",
           f"v_mul_f32 v{t + 2}, v{t + 2}, v{t}", f"v_mul_f32 v{t + 8}, v{t + 8}, v{t}", f"v_mov_b32 v{t + 3}, v{t + 2}", f"v_mov_b32 v{t + 9}, v{t + 8}"]
    m = pv(keep, 1)
    E(m[0], d1[0], fac[:6], m[1], d1[1], fac[6:], weave(m[2:], interleave2(wr, d1[2:]), 0, 6))
    E(WLG0, "s_barrier")
    RX = S[0]
    for i in range(16):
        E(LG(f"ds_read_b128 {v(RX + 4 * i, 4)}, v{t + 6 + i // 8} offset:{(i % 8) * 1024}", f"rx{i}"))
    body = []
    for f in range(8):
        b = RX + 8 * f
        body += [I(f"v_accvgpr_read_b32 v{PB + i}, a{aO + keep * 64 + 8 * f + i}") for i in range(8)]
        body += [WLG(f"rx{2 * f + 1}")]
        body += [I(f"v_pk_mul_f32 {v(b + 2 * i, 2)}, {v(b + 2 * i, 2)}, {v(t + 8, 2)}") for i in range(4)]
        body += [I(f"v_pk_fma_f32 {v(b + 2 * i, 2)}, {v(PB + 2 * i, 2)}, {v(t + 2, 2)}, {v(b + 2 * i, 2)}") for i in range(4)]
        body += [I(f"v_cvt_pk_bf16_f32 v{PB + 8 + 4 * (f % 4) + i}, v{b + 2 * i}, v{b + 2 * i + 1}") for i in range(4)]
        body += [VM(f"buffer_store_dwordx4 {v(PB + 8 + 4 * (f % 4), 4)}, v{vL16}, {s(SS, 4)}, s{sT if f < 4 else sT2} offen offset:{1024 * (f % 4)} sc1", "cs")]
    E(sprinkle(body, g_zl(1)))


def interleave2(x, y):
    out = []
    n = max(len(x), len(y))
    for i in range(n):
        out += x[(i * len(x)) // n:((i + 1) * len(x)) // n] + y[(i * len(y)) // n:((i + 1) * len(y)) // n]
    return out


def gphase(k):
    E = k.emit

    def reads(st):
        o = g_slot(st)
        sg, off = (0, o) if o < 65536 else (1, o - 65536)
        out = []
        for ks in range(4):
            for ts in range(2):
                if off + ts * 4096 < 65536:
                    out.append(LG(f"ds_read_b128 {v(vWS + (st % 2) * 32 + (ts * 4 + ks) * 4, 4)}, v{vPR + sg * 4 + ks} "
                                  f"offset:{off + ts * 4096}", f"p{st}"))
                else:
                    out.append(LG(f"ds_read_b128 {v(vWS + (st % 2) * 32 + (ts * 4 + ks) * 4, 4)}, v{ZT + 40 + ks} "
                                  f"offset:{off - 65536 + ts * 4096}", f"p{st}"))
        return out

    def mf(st):
        return [mfma(('a', (ts * 3 + f) * 16), zreg(st, f * 4 + ks),
                     ('v', vWS + (st % 2) * 32 + (ts * 4 + ks) * 4), 0 if (st == 0 and ks == 0) else None)
                for ks in range(4) for f in range(3) for ts in range(2)]

    for ks in range(4):
        E(f"v_add_u32 v{ZT + 40 + ks}, 0x20000, v{vPR + ks}")
    E(f"s_load_dwordx2 s[64:65], s[0:1], {KA_WO}\ns_load_dwordx2 s[66:67], s[0:1], {KA_WOUT}", WLG0)
    E("s_barrier")
    E(WVM("g0"))
    stamp(k, 10)
    E(reads(0))
    sched = {st: g_dma(st + 2) + g_zl(st + 2) for st in range(6)}
    for st in range(8):
        E(WLG(f"p{st}"))
        ld = sched.get(st, [])
        m = mf(st)
        n1 = (len(ld) * 14) // 24
        first = weave(m[:14], ld[:n1], 0, 14)
        second = ([WVM(f"g{st + 1}")] + weave(m[14:], interleave2(reads(st + 1), ld[n1:]), 0, 9)) if st + 1 < 8 else m[14:]
        if st == 6:
            fin = flat([f"s_lshl_b32 s{sT}, s{sHD}, 1\ns_add_u32 s{sT}, s{sT}, s{sG}",
                        f"s_mul_i32 s{sT2}, s{sPI}, 6\ns_mul_i32 s{sGP}, s{sRS}, 3\ns_add_u32 s{sT2}, s{sT2}, s{sGP}",
                        f"s_mul_i32 s{sGP}, s{sT}, 48\ns_add_u32 s{sGP}, s{sGP}, s{sT2}\ns_lshl_b32 s{sGP}, s{sGP}, 10\ns_add_u32 s{sGP}, s{sGP}, {WS_Z1}",
                        f"s_mul_i32 s{sGZ}, s{sT}, {CTXU_STEPS}\ns_add_u32 s{sGZ}, s{sGZ}, s{sT2}\ns_add_u32 s{sGZ}, s{sGZ}, 256",
                        f"s_lshl_b32 s{sGZ}, s{sGZ}, 10\ns_add_u32 s{sGZ}, s{sGZ}, {WS_CTXU}",
                        f"s_lshl_b32 s{sT}, s{sT}, 6\nv_and_b32 v21, 31, v0\nv_lshlrev_b32 v21, 1, v21"])
            fin += [VM(f"buffer_load_dwordx4 {v(4 + 4 * i, 4)}, v{vL16}, {s(SS, 4)}, s{sGP} offen offset:{1024 * i}", "fin") for i in range(3)]
            fin += [VM(f"buffer_load_ushort v16, v21, {s(SB, 4)}, s{sT} offen", "fin")]
            fin += flat([f"s_lshl_b32 s{sPF}, s2, 5\ns_add_u32 s{sPF}, s{sPF}, {WS_FLAG3}\nv_mov_b32 v17, 0\nv_and_b32 v18, 7, v0\nv_lshlrev_b32 v18, 2, v18"])
            fin += [VM(f"buffer_store_dword v17, v18, {s(SS, 4)}, s{sPF} offen", "pf")]
            fin += flat([f"s_mov_b32 s{SQ}, s64\ns_mov_b32 s{SQ + 1}, s65\ns_mov_b32 s{SP}, s66\ns_mov_b32 s{SP + 1}, s67\ns_mov_b32 s{SP + 2}, {688 * 1024:#x}",
                         f"s_lshl_b32 s{sPF}, s2, 2\ns_add_u32 s{sPF}, s{sPF}, s{sW}\ns_lshl_b32 s{sT}, s{sPF}, 12\ns_lshl_b32 s{sPF}, s{sPF}, 10"])
            fin += [VM(f"buffer_load_dwordx4 {v(ZT + 32, 4)}, v{vL16}, {s(SQ, 4)}, s{sT} offen offset:{1024 * i}", "pf") for i in range(0 if "nowo" in EXP else 4)]
            fin += [VM(f"buffer_load_dwordx4 {v(ZT + 32, 4)}, v{vL16}, {s(SP, 4)}, s{sPF} offen", "pf")]
            fin += flat([f"v_add_u32 v20, s{sW8}, v{vL16}\nv_add_u32 v21, 0x10000, v20\ns_lshl_b32 s{sT}, s{sW}, 15\nv_add_u32 v25, s{sT}, v{vL16}"])
            for j in range(1, 4):
                fin += flat([f"s_add_u32 s{sT}, s{sW}, {j}\ns_and_b32 s{sT}, s{sT}, 3\ns_lshl_b32 s{sT}, s{sT}, 13\nv_add_u32 v{21 + j}, s{sT}, v25"])
            first = weave(m[:14], [fin[i:i + 3] for i in range(0, len(fin), 3)], 0, 14)
        lstamp(k, 19, 32 + 3 * st)
        E(first)
        lstamp(k, 19, 33 + 3 * st)
        E(second[:1])
        lstamp(k, 19, 34 + 3 * st)
        E(second[1:])
    stamp(k, 11)
    E("s_nop 7")
    for d in range(4):
        E(f"s_cmp_eq_u32 s{sW}, {d}\ns_cbranch_scc1 K2_GO{d}")
        for i in range(3):
            fr = 3 * d + i
            for q in range(2):
                E(f"ds_write_b128 v{20 + d // 2}, {a(fr * 8 + 4 * q, 4)} offset:{(d % 2) * 32768 + (i * 2 + q) * 1024}")
        E(f"s_branch K2_GN{d}\nK2_GO{d}:")
        for i in range(3):
            for r in range(8):
                E(f"v_accvgpr_read_b32 v{48 + i * 32 + r}, a{(3 * d + i) * 8 + r}")
        E(f"K2_GN{d}:")
    E(WLG0, "s_barrier")
    for i in range(3):
        for j in range(1, 4):
            for q in range(2):
                E(LG(f"ds_read_b128 {v(48 + i * 32 + j * 8 + q * 4, 4)}, v{21 + j} offset:{(i * 2 + q) * 1024}", f"x{i}"))
    E(WVM("fin"), "v_lshlrev_b32 v16, 16, v16")
    for i in range(3):
        E(WLG(f"x{i}"))
        b = 48 + i * 32
        for r in range(8):
            E(f"v_add_f32 v{b + r}, v{b + r}, v{b + 8 + r}\nv_add_f32 v{b + 16 + r}, v{b + 16 + r}, v{b + 24 + r}")
        for r in range(8):
            E(f"v_add_f32 v{b + r}, v{b + r}, v16")
        for r in range(8):
            E(f"v_add_f32 v{b + r}, v{b + r}, v{b + 16 + r}")
        for r in range(4):
            z = 4 + 4 * i + r
            E(f"v_lshlrev_b32 v26, 16, v{z}\nv_and_b32 v27, 0xffff0000, v{z}")
            E(f"v_mul_f32 v{b + 2 * r}, v{b + 2 * r}, v26\nv_mul_f32 v{b + 2 * r + 1}, v{b + 2 * r + 1}, v27")
        for r in range(4):
            E(f"v_cvt_pk_bf16_f32 v{b + r}, v{b + 2 * r}, v{b + 2 * r + 1}")
        E(VM(f"buffer_store_dwordx4 {v(b, 4)}, v{vL16}, {s(SS, 4)}, s{sGZ} offen offset:{1024 * i} sc1"))


def build():
    k = Kern("k2_kernel")
    E = k.emit
    E("s_cmp_ge_u32 s2, 256\ns_cbranch_scc1 K2_END")
    code_prefetch(k, "k3_kernel", 0, 248)
    stamp_init(k)
    stamp(k, 0)
    E(f"s_load_dwordx2 s[64:65], s[0:1], {KA_WQ}")
    E(f"s_load_dwordx4 s[72:75], s[0:1], {KA_DBG}")
    E(f"s_load_dwordx4 s[68:71], s[0:1], {KA_WSP}")
    E("v_lshrrev_b32 v1, 6, v0\nv_and_b32 v0, 63, v0")
    E(f"s_and_b32 s{sHD}, s2, 7\ns_lshl_b32 s{sHD}, s{sHD}, 2\ns_lshr_b32 s{sT}, s2, 3\ns_lshr_b32 s{sPI}, s{sT}, 2")
    E(f"v_readfirstlane_b32 s{sW}, v1")
    E(f"s_and_b32 s{sT}, s{sT}, 3\ns_add_u32 s{sHD}, s{sHD}, s{sT}")
    E(f"s_and_b32 s{sRS}, s{sW}, 1\ns_lshr_b32 s{sG}, s{sW}, 1\ns_lshl_b32 s{sW8}, s{sW}, 13")
    E(f"v_lshlrev_b32 v{vL16}, 4, v0")
    E("v_and_b32 v20, 31, v0\nv_lshrrev_b32 v21, 5, v0\nv_lshrrev_b32 v22, 4, v0")
    E("v_bfe_u32 v23, v0, 2, 2\nv_and_b32 v24, 3, v0\nv_bfe_u32 v25, v0, 4, 1")
    E("v_xor_b32 v26, v23, v22\nv_lshlrev_b32 v27, 13, v22\nv_lshl_add_u32 v27, v26, 6, v27\nv_lshl_add_u32 v27, v24, 4, v27")
    for i in range(4):
        E(f"v_add_u32 v{vQD + i}, {i * (32768 - 1024)}, v27")
    E(f"s_sub_u32 s{sT}, 15, s{sPI}\ns_cmp_eq_u32 s{sG}, 0\ns_cselect_b32 s{sT}, s{sT}, s{sPI}")
    E(f"s_lshl_b32 s{sTD}, s{sT}, 1\ns_add_u32 s{sTD}, s{sTD}, s{sRS}\ns_lshl_b32 s{sXN}, s{sTD}, 16\ns_add_u32 s{sXN}, s{sXN}, {WS_XN}")
    E(f"s_lshl_b32 s{sWQ}, s{sW}, 17\ns_lshl_b32 s{sT}, s{sHD}, 8\ns_add_u32 s{sWQ}, s{sWQ}, s{sT}\ns_lshl_b32 s{sWM}, s{sW}, 12")
    E("s_waitcnt lgkmcnt(0)")
    E(srd(SQ, 64, 512 * 8192), srd(SS, 74, WS_SIZE))
    for j in range(2):
        E(wq_dma(j), xn_loads(j))
    E(srd(SP, 68, 2048 * 4096), srd(SB, 70, 4096), srd(SD, 72, 256))
    E("v_lshl_add_u32 v26, v21, 3, v23\nv_lshlrev_b32 v26, 8, v26\nv_lshl_add_u32 v26, v25, 5, v26\nv_lshl_add_u32 v26, v24, 3, v26")
    for d in range(4):
        E(f"v_xor_b32 v27, {d}, v23\nv_lshl_add_u32 v{vQR + d}, v27, 6, v26\nv_add_u32 v{vQR + 4 + d}, 0x10000, v{vQR + d}")
    E(f"s_lshl_b32 s{sT}, s{sG}, 14\nv_add_u32 v{vKc}, s{sT}, v{vL16}\nv_add_u32 v{vKn}, 32768, v{vKc}\nv_add_u32 v{vVc}, {VB0}, v{vKc}\nv_mov_b32 v{vVp}, v{vVc}")
    E(f"v_lshlrev_b32 v26, 2, v21\nv_sub_u32 v{vD0}, v20, v26\nv_mov_b32 v{vNEG}, {fbits(NEG)}")
    E(f"s_lshl_b32 s{sKN}, s{sHD}, 19\ns_lshl_b32 s{sT}, s{sRS}, 13\ns_add_u32 s{sKN}, s{sKN}, s{sT}\ns_add_u32 s{sKN}, s{sKN}, {WS_KF}")
    E(f"s_lshl_b32 s{sT}, s{sPI}, 1\ns_add_u32 s{sT}, s{sT}, 2\ns_sub_u32 s{sT2}, 18, s{sT}\ns_lshl_b32 s{sT2}, s{sT2}, 14")
    E(f"s_cmp_eq_u32 s{sG}, 0\ns_cselect_b32 s{sSW}, 8, s{sT}\ns_cselect_b32 s{sJUMP}, 0x4000, s{sT2}\ns_sub_u32 s{sSW2}, s{sSW}, 2")
    E(f"s_lshl_b32 s{sFL}, s{sPI}, 8\ns_add_u32 s{sFL}, s{sFL}, {WS_FLAG2}\ns_lshl_b32 s{sPF}, s2, 2\ns_add_u32 s{sPF}, s{sPF}, s{sW}\ns_lshl_b32 s{sPF}, s{sPF}, 10")
    if "nowsp" in EXP:
        E(f"s_mov_b32 s{sPF}, 0x1000000")
    stamp(k, 5)
    rstamp(k, 19, 24)
    qproj(k)
    gm, wrapped, pin = schedule_loop()
    gmd, wrapped_d, pin_d = schedule_loop('D', pin)
    gmf, wrapped_f, pin_f = schedule_loop('F', pin)
    assert pin == pin_d and pin == pin_f
    wtxt = [it[1] for it in flat(wrapped)]
    for r in range(16):
        E(f"v_mov_b32 v{P(1, 0) + r}, 0\nv_mov_b32 v{NEGM[0] + r}, 0\nv_mov_b32 v{NEGM[1] + r}, 0")
        late = f"v_exp_f32 v{S[1] + r}, v{S[1] + r}" in wtxt
        E(f"v_mov_b32 v{S[1] + r}, {'v%d' % vNEG if late else '0'}")
    assert not any(f"v{S[0] + r}," in w or w.endswith(f"v{S[0] + r}") for w in wtxt for r in range(16))
    for r in (8, 9, 10, 11, 12, 13):
        E(f"v_mov_b32 v{r}, 0")
    E(f"v_mov_b32 v{vT}, 0x7f800000")
    for r0 in range(0, 16, 4):
        for r in range(r0, r0 + 4):
            E(f"v_cmp_gt_i32 s[{64 + 2 * (r % 4)}:{65 + 2 * (r % 4)}], {8 * (r // 4) + r % 4}, v{vD0}\nv_mov_b32 v{NEGB + r}, v{vNEG}")
        for r in range(r0, r0 + 4):
            E(f"v_cndmask_b32 v{MSK + r}, v{vT}, v{vNEG}, s[{64 + 2 * (r % 4)}:{65 + 2 * (r % 4)}]")
    E(f"s_mov_b32 s{sEV}, 0\ns_mov_b32 s{sDG}, 0")
    for x in range(2):
        E(f"s_mov_b32 s{sTH[x]}, {NINF}\ns_mov_b32 s{sLO[x]}, {NINF}")
    for i in range(8):
        E(mfma(('a', aO + 16 * i), ('v', P(1, 0)), ('v', P(1, 0)), 0))
    E(f"s_mov_b32 s{sU}, 0\ns_mov_b32 s{sTL}, 0\ns_mov_b32 s{sMK}, s{sW8}\ns_add_u32 s{sMV}, s{sW8}, {VB0 + 32768}")
    E(WLG0)
    stamp(k, 1)
    rstamp(k, 19, 26)
    def body(gm_, sf):
        diag = sf == "D"
        k.set_state(["kv"] * 16 + ["pf"], ["k"] * 8)
        main = qk(0) + qk(1) + pv(0, 1) + pv(1, 1) + qk(0, NEGB if diag else None) + qk(1) + pv(0, 0) + pv(1, 0)
        gm_[-1] = [I(f"K2_SWRET{sf}:"), WLG("k")]
        if sf:
            gm_[31] = gm_[31] + [I(f"s_cmp_eq_u32 s{sU}, s{sSW}"), I("s_cbranch_scc1 K2_FINB"), I(f"K2_FBRET{sf}:")]
        gm_[63] = gm_[63] + [I(f"s_cmp_lt_u32 s{sU}, 17"), I("s_cbranch_scc1 K2_LOOP")]
        bd = place(main, gm_)

        def drop(it):
            tx = it[1] if len(it) > 1 and isinstance(it[1], str) else ""
            if "nodma" in EXP and ("buffer_load" in tx): return True
            if "nobar" in EXP and tx == "s_barrier": return True
            if "nowait" in EXP and ("s_waitcnt" in tx or it[0] in ('wlg',)): return True
            if "noread" in EXP and tx.startswith("ds_read"): return True
            if "nobr" in EXP and ("K2_RARE" in tx or "K2_FINB" in tx): return True
            return False
        E([it for it in bd if not drop(it)])

    E(".p2align 6")
    for _ in range(int(os.environ.get("PAD", "0"))):
        E("s_nop 0")
    E("K2_LOOP:")
    if PROF and os.environ.get("PROF2"):
        E("s_memtime s[78:79]", "s_waitcnt lgkmcnt(0)", f"s_mov_b32 m0, s{sU}", "s_nop 0", "v_writelane_b32 v255, s78, m0")
    E(f"s_cmp_eq_u32 s{sU}, s{sEV}\ns_cbranch_scc1 K2_EVENT")
    body(gm, '')
    E("K2_TAIL:")
    stamp(k, 8)
    rstamp(k, 19, 28)
    if PROF:
        E(f"s_lshl_b32 s78, s2, 2\ns_add_u32 s78, s78, s{sW}\ns_lshl_b32 s78, s78, 8\ns_add_u32 s78, s78, {WS_PROF + 0x100000}\nv_lshlrev_b32 v254, 2, v0")
        E(f"buffer_store_dword v255, v254, {s(SS, 4)}, s78 offen")
    E(vreads(vVp, 1))
    gs = g_setup()
    E(gs[-2:])
    t = vT
    tl = flat(wrapped)
    for x in range(2):
        tl += flat([f"v_add_f32 v{vLs[x][0]}, v{vLs[x][0]}, v{vLs[x][1]}"])
    for x in range(2):
        tl += flat([f"v_mov_b32 v{vLs[x][1]}, v{vLs[x][0]}"])
    tl += flat([f"v_add_u32 v{t + 4}, s{sW8}, v{vL16}\nv_and_b32 v{t + 5}, 0x18000, v{vVp}"])
    for x in range(2):
        tl += flat([f"v_permlane32_swap_b32 v{vLs[x][0]}, v{vLs[x][1]}"])
    tl += flat([f"v_add_u32 v{t + 5}, v{t + 5}, v{t + 4}\nv_add_u32 v{t + 4}, {SPARE}, v{t + 4}"])
    for x in range(2):
        tl += flat([f"v_add_f32 v{vLs[x][0]}, v{vLs[x][0]}, v{vLs[x][1]}"])
    tl += [[I(f"s_cmp_eq_u32 s{sG}, 0"), I("s_cselect_b64 vcc, -1, 0")]]
    tl += flat([f"v_xor_b32 v{t + 6}, 0x4000, v{t + 4}\nv_xor_b32 v{t + 7}, 0x4000, v{t + 5}",
                f"v_cndmask_b32 v{t + 8}, v{vNM[0]}, v{vNM[1]}, vcc\nv_cndmask_b32 v{t + 9}, v{vLs[0][0]}, v{vLs[1][0]}, vcc"])
    tl += [LG(f"ds_write_b64 v{t + 6}, {v(t + 8, 2)}")]
    tl += flat(gs[:-2])
    tl += flat([f"s_sub_u32 s{sT}, 15, s{sPI}\ns_lshl_b32 s{sT}, s{sT}, 2\ns_lshl_b32 s{sT2}, s{sRS}, 1\ns_add_u32 s{sT}, s{sT}, s{sT2}\ns_add_u32 s{sT}, s{sT}, s{sG}",
                f"s_mul_i32 s{sT}, s{sT}, {CTXU_STEPS}\ns_lshl_b32 s{sT2}, s{sHD}, 3\ns_add_u32 s{sT}, s{sT}, s{sT2}",
                f"s_lshl_b32 s{sT}, s{sT}, 10\ns_add_u32 s{sT}, s{sT}, {WS_CTXU}\ns_add_u32 s{sT2}, s{sT}, 4096"])
    zz = g_zl(0)
    out_, gi = [], 0
    for i, it in enumerate(tl):
        while gi < len(zz) and gi * len(tl) <= i * len(zz):
            out_.append(zz[gi])
            gi += 1
        out_.append(it)
    E(out_, zz[gi:])
    E(WVM("pf"), WLG0, "s_barrier")
    E(f"s_cmp_eq_u32 s{sG}, 1\ns_cbranch_scc1 K2_MERGE1")
    st = (list(k.vm), list(k.lg))
    merge(k, 0)
    E("s_branch K2_G")
    k.set_state(*st)
    E("K2_MERGE1:")
    merge(k, 1)
    E("K2_G:")
    stamp(k, 3)
    gphase(k)
    if PROF:
        E(WVM0)
    stamp(k, 4)
    rstamp(k, 19, 30)
    lstamp_store(k, 1, 19, 28, SS, sW)
    if PROF:
        E(f"s_mov_b32 s95, s{sPI}")
    stamp_store(k, 1, SS, sW, 208)
    E("K2_END:")
    E("s_endpgm")
    for x in range(2):
        for buf in range(2):
            rare_path(k, x, buf)
    hooks(k)
    body(gmd, 'D')
    E("s_branch K2_TAIL")
    body(gmf, 'F')
    E("s_branch K2_TAIL")
    return k.text(512, 256)
```

```python
def v(n, c=1):
    return f"v{n}" if c == 1 else f"v[{n}:{n + c - 1}]"


def a(n, c=1):
    return f"a{n}" if c == 1 else f"a[{n}:{n + c - 1}]"


def s(n, c=1):
    return f"s{n}" if c == 1 else f"s[{n}:{n + c - 1}]"


def R(spec, c=1):
    return (v if spec[0] == 'v' else a)(spec[1], c)


def I(text):
    return ('i', text)


def VM(text, tag=None):
    return ('vm', text, tag)


def LG(text, tag=None):
    return ('lg', text, tag)


def VMG(text, tag):
    return ('vmg', text, tag)


def WVMG(tag):
    return ('wvmg', tag)


def WVM(tag):
    return ('wvm', tag)


def WLG(tag):
    return ('wlg', tag)


WVM0 = ('wvm0',)
WLG0 = ('wlg0',)
WALL0 = ('wall0',)


def mfma(d, A, B, C=None):
    ds = R(d, 16)
    cs = ds if C is None else ("0" if C == 0 else R(C, 16))
    return ('i', f"v_mfma_f32_32x32x16_bf16 {ds}, {R(A, 4)}, {R(B, 4)}, {cs}")


def flat(items):
    out = []
    for it in items:
        if isinstance(it, list):
            out.extend(flat(it))
        elif isinstance(it, str):
            for line in it.split("\n"):
                line = line.strip()
                if line:
                    out.append(('i', line))
        else:
            out.append(it)
    return out


def weave(main, fillers, start=0, end=None, lead=False):
    n = len(main)
    if end is None:
        end = n
    gaps = [[] for _ in range(n + 1)]
    ng = end - start
    nf = len(fillers)
    for i, f in enumerate(fillers):
        g = start + (i * ng) // nf if nf else 0
        gaps[g + (0 if lead else 1)].append(f)
    out = list(gaps[0])
    for i, m in enumerate(main):
        out.append(m)
        out.extend(gaps[i + 1])
    return flat(out)


def place(main, gapmap):
    out = list(gapmap.get(-1, []))
    for i, m in enumerate(main):
        out.append(m)
        out.extend(gapmap.get(i, []))
    return flat(out)


class Kern:
    def __init__(self, name):
        self.name = name
        self.lines = []
        self.vm = []
        self.lg = []
        self.lg_has_smem = False

    def raw(self, text):
        self.lines.append(text)

    def label(self, name):
        self.lines.append(f"{name}:")

    def comment(self, text):
        self.lines.append(f"    ; {text}")

    def set_state(self, vm=None, lg=None):
        if vm is not None:
            self.vm = list(vm)
        if lg is not None:
            self.lg = list(lg)

    def _wait(self, fifo, tag, nm, mx):
        last = -1
        for i, t in enumerate(fifo):
            if t == tag:
                last = i
        if last < 0:
            return fifo
        n = sum(1 for t in fifo[last + 1:] if not (isinstance(t, tuple) and t[0] == 'ghost'))
        if n > mx:
            n = mx
            cnt = 0
            last = len(fifo)
            while cnt < mx:
                last -= 1
                if not (isinstance(fifo[last], tuple) and fifo[last][0] == 'ghost'):
                    cnt += 1
            last -= 1
        self.lines.append(f"    s_waitcnt {nm}({n})")
        return fifo[last + 1:]

    def _wait_ghost(self, tag):
        idx = [i for i, t in enumerate(self.vm) if t == ('ghost', tag)]
        if not idx:
            return
        n = len(self.vm) - 1 - idx[-1]
        self.lines.append(f"    s_waitcnt vmcnt({n})")
        self.vm = [t for i, t in enumerate(self.vm) if not (i <= idx[-1] and isinstance(t, tuple))]

    def emit(self, *items):
        for it in flat(list(items)):
            k = it[0]
            if k == 'i':
                if it[1].endswith(":"):
                    self.lines.append(it[1])
                else:
                    self.lines.append("    " + it[1])
            elif k == 'vm':
                if len(self.vm) >= 60:
                    keep = self.vm[-48:]
                    n = sum(1 for t in keep if not isinstance(t, tuple))
                    self.lines.append(f"    s_waitcnt vmcnt({n})    ; auto")
                    self.vm = [t for t in self.vm[:-48] if isinstance(t, tuple)] + keep
                self.lines.append("    " + it[1])
                self.vm.append(it[2])
                assert len(self.vm) <= 63, "vmcnt overflow"
            elif k == 'vmg':
                self.lines.append("    " + it[1])
                self.vm.append(('ghost', it[2]))
                assert len(self.vm) <= 63, "vmcnt overflow"
            elif k == 'wvmg':
                self._wait_ghost(it[1])
            elif k == 'lg':
                self.lines.append("    " + it[1])
                self.lg.append(it[2])
            elif k == 'wvm':
                self.vm = self._wait(self.vm, it[1], "vmcnt", 63)
            elif k == 'wlg':
                self.lg = self._wait(self.lg, it[1], "lgkmcnt", 15)
            elif k == 'wvm0':
                self.lines.append("    s_waitcnt vmcnt(0)")
                self.vm = []
            elif k == 'wlg0':
                self.lines.append("    s_waitcnt lgkmcnt(0)")
                self.lg = []
            elif k == 'reset':
                self.vm = self.vm[-1:]
                self.lg = []
            elif k == 'wall0':
                self.lines.append("    s_waitcnt vmcnt(0) lgkmcnt(0)")
                self.vm = []
                self.lg = []
            else:
                raise ValueError(it)

    def text(self, nvgpr, accum, nsgpr=102):
        t = [f".globl {self.name}", ".p2align 8", f".type {self.name},@function", f"{self.name}:"]
        t += self.lines
        desc = [
            f".amdhsa_kernel {self.name}",
            f"  .amdhsa_next_free_vgpr {nvgpr}",
            f"  .amdhsa_next_free_sgpr {nsgpr}",
            f"  .amdhsa_accum_offset {accum}",
            "  .amdhsa_group_segment_fixed_size 0",
            "  .amdhsa_kernarg_size 112",
            "  .amdhsa_user_sgpr_count 2",
            "  .amdhsa_user_sgpr_kernarg_segment_ptr 1",
            "  .amdhsa_system_sgpr_workgroup_id_x 1",
            ".end_amdhsa_kernel",
        ]
        return "\n".join(t), "\n".join(desc)


def srd(dst, ptr, nbytes):
    return [
        f"s_mov_b32 s{dst}, s{ptr}",
        f"s_mov_b32 s{dst + 1}, s{ptr + 1}",
        f"s_mov_b32 s{dst + 2}, {nbytes:#x}",
        f"s_mov_b32 s{dst + 3}, 0x20000",
    ]


def fbits(x):
    import struct
    return "0x%08x" % struct.unpack("<I", struct.pack("<f", x))[0]


import os
PROF = os.environ.get("PROF", "0") == "1"
WS_PROF = 0x8000000


def stamp(k, i):
    if not PROF:
        return
    k.emit("s_memtime s[78:79]", WLG0, f"s_mov_b32 s{80 + i}, s78")


def stamp_init(k):
    if not PROF:
        return
    for i in range(16):
        k.emit(f"s_mov_b32 s{80 + i}, 0")
    k.emit("s_memrealtime s[78:79]", WLG0, "s_mov_b32 s93, s78")


def stamp_store(k, kidx, SS, sW, vt):
    if not PROF:
        return
    k.emit("s_memrealtime s[78:79]", WLG0, "s_mov_b32 s94, s78")
    k.emit("s_memtime s[78:79]", WLG0, "s_mov_b32 s92, s78")
    k.emit("s_mov_b64 exec, -1")
    for i in range(16):
        k.emit(f"v_mov_b32 v{vt + i}, s{80 + i}")
    k.emit(f"s_lshl_b32 s78, s2, 2\ns_add_u32 s78, s78, s{sW}\ns_lshl_b32 s78, s78, 6\ns_add_u32 s78, s78, {WS_PROF + kidx * 65536}")
    k.emit(f"v_mov_b32 v{vt + 16}, 0\ns_mov_b64 exec, 1")
    for i in range(4):
        k.emit(f"buffer_store_dwordx4 v[{vt + 4 * i}:{vt + 4 * i + 3}], v{vt + 16}, s[{SS}:{SS + 3}], s78 offen offset:{16 * i}")


_uid = [0]


def wave0(sW, items):
    _uid[0] += 1
    lab = f"L_W0_{_uid[0]}"
    return [I(f"s_cmp_lg_u32 s{sW}, 0"), I(f"s_cbranch_scc1 {lab}")] + flat(items) + [I(f"{lab}:")]


def flag_set(sW, SD, sIDX, vt):
    return wave0(sW, [I(f"v_mov_b32 v{vt}, 1"), I(f"v_mov_b32 v{vt + 1}, 0"), I("s_mov_b64 exec, 1"),
                      VMG(f"buffer_store_byte v{vt}, v{vt + 1}, s[{SD}:{SD + 3}], s{sIDX} offen sc0 sc1", "flag"),
                      I("s_mov_b64 exec, -1")])


def flag_poll_issue(sW, SD, sIDX, n, vt):
    return wave0(sW, [I(f"v_and_b32 v{vt}, {n - 1}, v0"),
                      VMG(f"buffer_load_ubyte v{vt + 1}, v{vt}, s[{SD}:{SD + 3}], s{sIDX} offen sc0 sc1", "poll")])


def flag_poll_check(sW, SD, sIDX, vt):
    _uid[0] += 1
    u = _uid[0]
    return wave0(sW, [WVMG("poll"), I(f"v_cmp_ne_u32 vcc, 1, v{vt + 1}"), I("s_nop 1"), I(f"s_cbranch_vccz L_POK_{u}"),
                      I(f"L_PLP_{u}:"), I("s_sleep 2"),
                      I(f"buffer_load_ubyte v{vt + 1}, v{vt}, s[{SD}:{SD + 3}], s{sIDX} offen sc0 sc1"), I("s_waitcnt vmcnt(0)"),
                      I(f"v_cmp_ne_u32 vcc, 1, v{vt + 1}"), I("s_nop 1"), I(f"s_cbranch_vccnz L_PLP_{u}"),
                      I(f"L_POK_{u}:")])


def flag_acquired(sW):
    return wave0(sW, [WVMG("inv")])


def lstamp(k, vreg, idx):
    if PROF and os.environ.get("PROF2"):
        k.emit("s_memtime s[78:79]", WLG0, f"v_writelane_b32 v{vreg}, s78, {idx}")


def lstamp_store(k, kidx, vreg, vtmp, SS, sW):
    if PROF:
        k.emit(f"s_lshl_b32 s78, s2, 2\ns_add_u32 s78, s78, s{sW}\ns_lshl_b32 s78, s78, 8\ns_add_u32 s78, s78, {WS_PROF + 0x200000 + kidx * 0x100000}\nv_lshlrev_b32 v{vtmp}, 2, v0")
        k.emit(f"buffer_store_dword v{vreg}, v{vtmp}, s[{SS}:{SS + 3}], s78 offen")


CODEPF = os.environ.get("CODEPF", "1") == "1"


def code_prefetch(k, end_label, vtid, vdst, tag="cpf"):
    if not CODEPF:
        return
    lab = f"L_PC_{k.name}"
    k.emit("s_getpc_b64 s[96:97]", f"{lab}:")
    k.emit(f"s_mov_b32 s98, {end_label}-{lab}\ns_mov_b32 s99, 0x20000\ns_lshr_b32 s100, s2, 3\ns_lshl_b32 s100, s100, 12")
    k.emit(f"v_lshlrev_b32 v{vdst + 4}, 4, v{vtid}")
    k.emit(VM(f"buffer_load_dwordx4 v[{vdst}:{vdst + 3}], v{vdst + 4}, s[96:99], s100 offen", tag))


def rstamp(k, vreg, idx):
    if PROF:
        k.emit("s_memtime s[78:79]", WLG0, f"v_writelane_b32 v{vreg}, s78, {idx}")
        k.emit("s_memrealtime s[78:79]", WLG0, f"v_writelane_b32 v{vreg}, s78, {idx + 1}")


def poll_all_issue(sW, SR, soff, stride, n, vt):
    sh = stride.bit_length() - 1
    it = [I(f"v_lshlrev_b32 v{vt}, {sh}, v0")]
    for i in range(n):
        it.append(VMG(f"buffer_load_dword v{vt + 1 + i}, v{vt}, s[{SR}:{SR + 3}], {soff} offen offset:{64 * i * stride} sc0 sc1", "poll"))
    return wave0(sW, it)


def poll_all_check(sW, SR, soff, stride, n, vt, val):
    _uid[0] += 1
    u = _uid[0]

    def test(br):
        o = []
        for i in range(1, n):
            o.append(I(f"v_and_b32 v{vt + 1}, v{vt + 1}, v{vt + 1 + i}"))
        return o + [I(f"v_cmp_ne_u32 vcc, {val:#x}, v{vt + 1}"), I("s_nop 1"), I(br)]

    it = [WVMG("poll")] + test(f"s_cbranch_vccz L_POK_{u}") + [I(f"L_PLP_{u}:"), I("s_sleep 4")]
    for i in range(n):
        it.append(I(f"buffer_load_dword v{vt + 1 + i}, v{vt}, s[{SR}:{SR + 3}], {soff} offen offset:{64 * i * stride} sc0 sc1"))
    it += [I("s_waitcnt vmcnt(0)")] + test(f"s_cbranch_vccnz L_PLP_{u}") + [I(f"L_POK_{u}:")]
    return wave0(sW, it)
```

```python
WS_XN = 0x0000000
WS_KF = 0x0200000
WS_VF = 0x1200000
WS_Z1 = 0x2200000
WS_Z2N = 0x2500000
WS_STAT = 0x2800000
WS_CTXU = 0x2900000
WS_SIZE = 0x10000000

CTXU_STEPS = 304

KA_X, KA_CKV, KA_WQ, KA_WUK, KA_WUV, KA_WO, KA_BX, KA_WIN, KA_WSP, KA_BSP, KA_WOUT, KA_OUT, KA_DBG, KA_WS = [
    8 * i for i in range(14)]

LOG2E = 1.4426950408889634
GELU_C0 = -2.0 * LOG2E * 0.7978845608028654
GELU_C1 = GELU_C0 * 0.044715
QSCALE = LOG2E / (128.0 ** 0.5)
LN_EPS = 1e-5
WS_Z2R = 0x4000000
WS_WP = 0x5000000
WS_PART = WS_KF
WS_FLAG3 = 0x2880000
WS_FLAG2 = 0x2890000
WS_FCTX = 0x28A0000
WS_FU = 0x28A2000
WS_PART2 = 0x4400000
WS_FP1 = 0x28A4000
WS_FZ = 0x28A6000

import os as _os
MERGE12 = _os.environ.get("MERGE12", "1") == "1"
KNAME = "parallel_sum__compressed_kv_cla__mixer_gmlp__prompt_kernel"
MERGE23 = _os.environ.get("MERGE23", "1") == "1"
_SH = int(_os.environ.get("WSSHIFT", "0"), 0)
for _n in ("WS_XN", "WS_KF", "WS_VF", "WS_Z1", "WS_Z2N", "WS_STAT", "WS_CTXU", "WS_Z2R", "WS_WP", "WS_PART", "WS_FLAG3", "WS_FLAG2", "WS_FCTX", "WS_FU", "WS_PART2", "WS_FP1", "WS_FZ"):
    globals()[_n] += _SH
```

```python
from asmlib import *
from common import *

import os
KVST = os.environ.get("KVST", "sc1")
NOPF = os.environ.get("NOPF", "0") == "1"
EXP = os.environ.get("EXP", "")
SX, SC, SW, SI, SS, SD, SPF = 8, 12, 16, 20, 24, 28, 72
sW, sRB, sCB, sNB, sMB, sRS, sCH = 32, 33, 34, 35, 36, 37, 38
sT, sT2, sCK, sWK, sW8, sW2, sKO, sWI, sXN, sCNT, sONES, sWB, sDO = 56, 57, 58, 59, 60, 61, 62, 63, 64, 65, 66, 67, 68
sXO = 39

vCD = 1
vUD = 9
vCR = 17
vBR = 25
vL16 = 31
vF = 32
vT = 40
STG = 64
vQD, vQR, vPF = 64, 68, 76
WF = 96
ACC = (128, 192)
SLOT = 49152
UREG = (3, 4, 0, 1)


def A(ks, cs):
    return ('a', (ks * 32 + cs) * 4)


def seg_off(byte):
    return byte // 65536, byte % 65536


def a_dma(j):
    out = []
    base = (j % 3) * SLOT
    for i in range(8):
        g = []
        if i % 4 == 0:
            g += [I(f"s_add_u32 m0, s{sW8}, {base + (i // 4) * 4096}"), I(f"s_add_u32 s{sDO}, s{sCK}, {j * 128}")]
        g.append(VM(f"buffer_load_dwordx4 v{vCD + i}, {s(SC, 4)}, s{sDO} offen offset:{1024 * (i % 4)} lds", f"p{j}"))
        out.append(g)
    return out


def b_dma(j):
    out = []
    for i in range(4):
        g = []
        if i == 0:
            g += [I(f"s_add_u32 m0, s{sW2}, {(j % 3) * SLOT + 32768}"), I(f"s_add_u32 s{sDO}, s{sWB}, {j * 64 * 8192}")]
        g.append(VM(f"buffer_load_dwordx4 v{vQD + i}, {s(SW, 4)}, s{sDO} offen offset:{1024 * i} lds", f"p{j}"))
        out.append(g)
    return out


def unit_dma(u):
    out = []
    base = UREG[u] * 32768
    off = (u % 2) * 256 * 8192 + (2 + u // 2) * 128
    for i in range(8):
        g = []
        if i % 4 == 0:
            g += [I(f"s_add_u32 m0, s{sW8}, {base + (i // 4) * 4096}"), I(f"s_add_u32 s{sDO}, s{sWK}, {off}")]
        g.append(VM(f"buffer_load_dwordx4 v{vUD + i}, {s(SW, 4)}, s{sDO} offen offset:{1024 * (i % 4)} lds", f"u{u}"))
        out.append(g)
    return out


def zslot(z):
    return (z + 2) % 5


def z_dma(z, xn_only=False, w_only=False):
    out = []
    base = zslot(z) * 32768
    for p in range(2):
        if not xn_only:
            for i in range(3):
                g = []
                if i == 0:
                    g += [I(f"s_add_u32 m0, s{sW8}, {base + p * 4096}"), I(f"s_add_u32 s{sDO}, s{sWI}, {z * 64 * 2752 + p * 1376}")]
                g.append(VM(f"buffer_load_dwordx4 v{vCD + i}, {s(SI, 4)}, s{sDO} offen offset:{1024 * i} lds", f"z{z}"))
                out.append(g)
        if not w_only:
            out.append([I(f"s_add_u32 m0, s{sW8}, {base + p * 4096 + 3072}"), I(f"s_add_u32 s{sDO}, s{sXN}, {p * 32768 + z * 4096}"),
                        VM(f"buffer_load_dwordx4 v{vL16}, {s(SS, 4)}, s{sDO} offen sc1 lds", f"z{z}")])
    return out


def pa_reads(c):
    j, cs = c // 4, c % 4
    slot = j % 3
    sg, off = (0, slot * SLOT) if slot == 0 else (1, (slot - 1) * SLOT)
    out = [LG(f"ds_read_b128 {R(A(ks, c), 4)}, v{vCR + sg * 4 + cs} offset:{off + ks * 4096}", f"r{c}") for ks in range(2)]
    fb = WF + (c % 2) * 16
    for d in range(4):
        for sec in range(2):
            out.append(LG(f"ds_read_b64_tr_b16 {v(fb + 4 * d + 2 * sec, 2)}, v{vQR + sg * 4 + d} "
                          f"offset:{off + cs * 4096 + sec * 1024}", f"r{c}"))
    return out


def pa_mf(c, vtype):
    fb = WF + (c % 2) * 16
    out = []
    for d in range(4):
        for ks in range(2):
            cf, wf = A(ks, c), ('v', fb + 4 * d)
            X, Y = (cf, wf) if vtype else (wf, cf)
            out.append(mfma(('v', ACC[d // 2] + (ks * 2 + d % 2) * 16), X, Y, 0 if c == 0 else None))
    return out


def pb_reads(c):
    u = c // 16
    sg, off = seg_off(UREG[u] * 32768 + (c % 16) * 2048)
    fb = WF + (c % 4) * 8
    return [LG(f"ds_read_b64_tr_b16 {v(fb + 4 * d2 + 2 * sec, 2)}, v{vBR + sg * 2 + d2} offset:{off + sec * 512}", f"s{c}")
            for d2 in range(2) for sec in range(2)]


def pb_mf(c, vtype):
    p, cs = 2 + c // 32, c % 32
    fb = WF + (c % 4) * 8
    out = []
    for d2 in range(2):
        for ks in range(2):
            cf, wf = A(ks, cs), ('v', fb + 4 * d2)
            X, Y = (cf, wf) if vtype else (wf, cf)
            out.append(mfma(('v', ACC[p % 2] + (ks * 2 + d2) * 16), X, Y, 0 if cs == 0 else None))
    return out


def kv_epi(p, staged=False):
    out = []
    for ks in range(2):
        for d2 in range(2):
            for g in range(2):
                b = ACC[p % 2] + (ks * 2 + d2) * 16 + 8 * g
                grp = []
                if d2 == 0 and g == 0:
                    grp.append(I(f"s_add_u32 s{sT2}, s{sKO}, {(p // 2) * 64 * 8192 + ks * 8192 + (p % 2) * 4096}"))
                if staged:
                    b = STG + ((ks * 2 + d2) * 2 + g) * 4
                else:
                    grp += [I(f"v_cvt_pk_bf16_f32 v{b + i}, v{b + 2 * i}, v{b + 2 * i + 1}") for i in range(2)]
                    out.append(grp)
                    grp = [I(f"v_cvt_pk_bf16_f32 v{b + i}, v{b + 2 * i}, v{b + 2 * i + 1}") for i in range(2, 4)]
                grp.append(VM(f"buffer_store_dwordx4 {v(b, 4)}, v{vL16}, {s(SS, 4)}, s{sT2} offen offset:{(2 * d2 + g) * 1024} {KVST}", "st"))
                out.append(grp)
    return out


def XF(c):
    return A(c % 2, c // 2)


def xn_loads():
    out = []
    for c in range(32):
        g = []
        if c % 4 == 0:
            g.append(I(f"s_add_u32 s{sXO}, s{sXN}, {(c // 4) * 4096}"))
        g.append(VM(f"buffer_load_dwordx4 {R(XF(c), 4)}, v{vL16}, {s(SS, 4)}, s{sXO} offen offset:{(c % 4) * 1024} sc1", f"xn{c // 4}"))
        out.append(g)
    return out


def gelu(regs, vC0, vC1, tmp):
    out = []
    for i in range(0, len(regs), 4):
        g = regs[i:i + 4]
        t = [tmp + j for j in range(4)]
        for op in ("v_mul_f32 v{t}, v{x}, v{x}", "v_fma_f32 v{t}, v{t}, v{c1}, v{c0}", "v_mul_f32 v{t}, v{t}, v{x}",
                   "v_exp_f32 v{t}, v{t}", "v_add_f32 v{t}, 1.0, v{t}", "v_rcp_f32 v{t}, v{t}", "v_mul_f32 v{x}, v{x}, v{t}"):
            for x, tt in zip(g, t):
                out.append(op.format(t=tt, x=x, c0=vC0, c1=vC1))
    return out


def ln_code():
    o = []
    for i in range(4):
        o.append(f"v_mov_b32 v{48 + i}, 0")
    for r in range(2):
        for i in range(4):
            o.append(f"v_dot2_f32_bf16 v{48 + r}, v{40 + 4 * r + i}, s{sONES}, v{48 + r}")
            o.append(f"v_dot2_f32_bf16 v{50 + r}, v{40 + 4 * r + i}, v{40 + 4 * r + i}, v{50 + r}")
    o += ["s_nop 2", "v_permlane32_swap_b32 v48, v49", "v_permlane32_swap_b32 v50, v51", "s_nop 1",
          "v_add_f32 v48, v48, v49", "v_add_f32 v50, v50, v51", "s_nop 1",
          "v_permlane16_swap_b32 v48, v50", "s_nop 1", "v_add_f32 v48, v48, v50"]
    for sh in (8, 4, 2, 1):
        o += ["s_nop 1", f"v_add_f32_dpp v48, v48, v48 row_ror:{sh} row_mask:0xf bank_mask:0xf"]
    o += ["s_nop 1", f"v_mul_f32 v48, {fbits(1 / 512)}, v48", "s_nop 0",
          "v_readlane_b32 s40, v48, 0", "v_readlane_b32 s41, v48, 16", "v_readlane_b32 s42, v48, 32", "v_readlane_b32 s43, v48, 48",
          "s_nop 1"]
    for r in range(2):
        m, q = 40 + 2 * r, 41 + 2 * r
        a_, b_ = 52 + 2 * r, 53 + 2 * r
        o += [f"v_mov_b32 v{b_}, s{m}", f"v_mov_b32 v{a_}, s{q}", f"v_fma_f32 v{a_}, -v{b_}, v{b_}, v{a_}", f"v_max_f32 v{a_}, 0, v{a_}",
              f"v_add_f32 v{a_}, {fbits(LN_EPS)}, v{a_}", f"v_rsq_f32 v{a_}, v{a_}", "s_nop 0",
              f"v_mul_f32 v{b_}, v{b_}, v{a_}", f"v_sub_f32 v{b_}, 0, v{b_}"]
    for r in range(2):
        for i in range(4):
            x = 40 + 4 * r + i
            o += [f"v_lshlrev_b32 v56, 16, v{x}", f"v_and_b32 v57, 0xffff0000, v{x}",
                  f"v_fma_f32 v56, v56, v{52 + 2 * r}, v{53 + 2 * r}", f"v_fma_f32 v57, v57, v{52 + 2 * r}, v{53 + 2 * r}",
                  f"v_cvt_pk_bf16_f32 v{x}, v56, v57"]
    return o


def kv_phase(k, vtype):
    E = k.emit
    extra = {}

    def add(c, groups):
        extra.setdefault(c, []).extend(groups)

    def spread(c0, c1, groups):
        n = len(groups)
        for i, g in enumerate(groups):
            add(c0 + (i * (c1 - c0)) // n, [g])

    ldp = lambda sr, so, i: [VM(f"buffer_load_dwordx4 {v(vPF, 4)}, v{vL16}, {s(sr, 4)}, s{so} offen offset:{1024 * i}", "pf")]
    ldh = lambda sr, so, off: [I(f"s_add_u32 s{sT}, s{so}, {off}"), VM(f"buffer_load_dwordx4 {v(vPF, 4)}, v61, {s(sr, 4)}, s{sT} offen", "pf")]
    pf0 = [ldp(SC, 77, i) for i in range(2)] + [ldh(SPF, 76, 128 * 8192), ldh(SPF, 76, 256 * 8192)]
    pf1 = [ldh(SPF, 76, 384 * 8192)]
    pf2 = [ldh(SPF, 76, 256 + r * 128 * 8192) for r in range(4)] + [ldp(SI, 77, i) for i in range(2)]
    if "noown" in EXP:
        pf0, pf1, pf2 = [], [], []
    if "pfall" in EXP:
        pf0, pf1, pf2 = pf0 + pf1 + pf2, [], []
    if "pf01" in EXP:
        pf0, pf1 = pf0 + pf1, []
    add(1, pf1)
    if pf2:
        a_, b_ = [int(x) for x in os.environ.get("PF2", "8,20").split(",")]
        spread(a_, b_, pf2)
    ln = ln_code()
    lng = [[I(x) for x in ln[i:i + 4]] for i in range(0, len(ln), 4)]
    lng.append([LG("ds_write_b128 v58, v[40:43]"), LG("ds_write_b128 v58, v[44:47] offset:16")])
    xst = [[LG("ds_read_b128 v[40:43], v59", "xr"), LG("ds_read_b128 v[44:47], v59 offset:1024", "xr")],
           [WLG("xr"), VM(f"buffer_store_dwordx4 v[40:43], v62, {s(SS, 4)}, s69 offen sc1", "xs")],
           [I(f"v_add_u32 v62, 4096, v62"), VM(f"buffer_store_dwordx4 v[44:47], v62, {s(SS, 4)}, s69 offen sc1", "xs")]]
    if "noxs" not in EXP:
        spread(12, 15, xst)
    zf = [I("v_mov_b32 v60, 0"), I(f"s_lshl_b32 s{sT}, s{sCB}, 8"), I(f"s_add_u32 s{sT}, s{sT}, s{sRB}"), I(f"s_add_u32 s{sT}, s{sT}, {WS_FLAG2}"),
          I("s_mov_b64 exec, 1"), VMG(f"buffer_store_byte v60, v60, {s(SS, 4)}, s{sT} offen sc0 sc1", "fz")]
    for base, sh in ((WS_FCTX, 4), (WS_FU, 4), (WS_FP1, 4), (WS_FLAG3, 5)):
        zf += [I(f"s_lshl_b32 s{sT}, s2, {sh}"), I(f"s_add_u32 s{sT}, s{sT}, {base}"), VMG(f"buffer_store_dword v60, v60, {s(SS, 4)}, s{sT} offen sc0 sc1", "fz")]
    add(6, [wave0(sW, zf + [I("s_mov_b64 exec, -1")])])
    spread(0, 3, a_dma(2) + b_dma(2))
    spread(3, 11, lng)
    E(pf0)
    E(WVM("p0"), "s_barrier")
    stamp(k, 6)
    E(pa_reads(0))
    for c in range(32):
        E(WLG(f"r{c}"))
        fill = []
        if c % 4 == 3:
            j = c // 4
            lstamp(k, 63, 3 * j)
            if j < 7:
                E(WVM(f"p{j + 1}"))
            else:
                E(WVM("u0"))
            if j == 5:
                E(WVM("xs"))
            if j == 2:
                E(WLG0)
            lstamp(k, 63, 3 * j + 1)
            E("s_barrier")
            lstamp(k, 63, 3 * j + 2)
            if j + 3 < 8:
                post = a_dma(j + 3) + b_dma(j + 3)
            elif j == 5:
                post = unit_dma(0) + unit_dma(1)[:4]
            elif j == 6:
                post = unit_dma(1)[4:] + unit_dma(2)
            else:
                post = []
            if j == 5 and "noflag" not in EXP:
                post = post + [wave0(sW, [WVMG("fz")]), flag_set(sW, SD, 2, 46)]
            if j < 7:
                spread(c, c + 4, post)
        if c < 31:
            fill += pa_reads(c + 1)
            fill = interleave(fill, extra.get(c, []))
            E(weave(pa_mf(c, vtype), fill, 0, 8))
        else:
            m = pa_mf(c, vtype)
            stg = []
            for tl in range(4):
                for g in range(2):
                    b = ACC[0] + tl * 16 + 8 * g
                    stg += [I(f"v_cvt_pk_bf16_f32 v{STG + (tl * 2 + g) * 4 + i}, v{b + 2 * i}, v{b + 2 * i + 1}") for i in range(4)]
            order = [0, 2, 1, 3]
            E(m[:4], pb_reads(0), m[4], m[5])
            seq = [stg[o * 8:(o + 1) * 8] for o in order]
            E(seq[0], m[6], seq[1], m[7], pb_reads(1), seq[2], seq[3])
    stamp(k, 7)
    extra.clear()
    wi = []
    for i in range(3):
        wi.append([I(x) for x in (f"v_add_u32 v46, {64 * i}, v0", "v_mul_u32_u24 v47, 43691, v46", "v_lshrrev_b32 v47, 19, v47",
                                  "v_mul_u32_u24 v48, 12, v47")])
        wi.append([I(x) for x in ("v_sub_u32 v48, v46, v48", "v_mul_u32_u24 v47, 2752, v47", f"v_lshl_add_u32 v{vCD + i}, v48, 4, v47",
                                  f"v_subrev_u32 v{vCD + i}, {1024 * i}, v{vCD + i}")])
    wi.append([I(x) for x in (f"v_lshl_add_u32 v46, v{vF + 1}, 3, v{vF + 3}", "v_mul_u32_u24 v46, 192, v46",
                              f"v_lshl_add_u32 v46, v{vF + 5}, 5, v46", f"v_lshl_add_u32 v46, v{vF + 4}, 3, v46")])
    wi.append([I(x) for x in (f"s_lshl_b32 s{sT}, s{sCH}, 12", f"v_add_u32 v{vCR}, s{sT}, v46", f"v_add_u32 v{vCR + 1}, 0x10000, v{vCR}",
                              f"v_add_u32 v{vCR + 2}, 0x20000, v{vCR}")])
    wi.append([I(x) for x in (f"s_lshl_b32 s{sT}, s{sRS}, 12", f"s_add_u32 s{sT}, s{sT}, 3072", f"v_add_u32 v{vCR + 3}, s{sT}, v{vL16}",
                              f"v_add_u32 v{vCR + 4}, 0x10000, v{vCR + 3}", f"v_add_u32 v{vCR + 5}, 0x20000, v{vCR + 3}")])
    spread(0, 6, unit_dma(3))
    spread(0, 6, wi)
    spread(7, 13, z_dma(0, w_only=True))
    spread(0, 15, kv_epi(0, staged=True))
    spread(15, 32, kv_epi(1))
    spread(33, 64, kv_epi(2))
    if "noflag" not in EXP:
        if MERGE12:
            add(13, [poll_all_issue(sW, SD, "0", 4, 1, 50)])
            add(29, [poll_all_check(sW, SD, "0", 4, 1, 50, 0x01010101)])
        else:
            add(13, [flag_poll_issue(sW, SD, sCNT, 8, 50)])
            add(29, [flag_poll_check(sW, SD, sCNT, 50)])
    pf = [[I(f"s_mov_b32 s{SPF}, s44"), I(f"s_mov_b32 s{SPF + 1}, s45")] +
          [VM(f"buffer_load_dwordx4 v[52:55], v{vL16}, {s(SPF, 4)}, s70 offen", "pf")]]
    pf += [[VM(f"buffer_load_dwordx4 v[52:55], v{vL16}, {s(SPF, 4)}, s70 offen offset:{1024 * i}", "pf")] for i in range(1, 4)]
    if not NOPF:
        a_, b_ = [int(x) for x in os.environ.get("PFQ", "50,62").split(",")]
        spread(a_, b_, pf)
    for c in range(64):
        n = c + 2
        fill = []
        if n < 64:
            if n % 16 == 0:
                u = n // 16
                lstamp(k, 63, 21 + 3 * u)
                E(WLG(f"s{n - 1}"), WVM(f"u{u}"))
                lstamp(k, 63, 22 + 3 * u)
                E("s_barrier")
                lstamp(k, 63, 23 + 3 * u)
                if u == 1:
                    spread(c, c + 12, z_dma(1, w_only=True))
                elif u == 2:
                    spread(c, c + 14, z_dma(0, xn_only=True) + z_dma(1, xn_only=True) + z_dma(2))
                else:
                    spread(c, c + 14, z_dma(3))
            fill += pb_reads(n)
        E(WLG(f"s{c}"))
        if c == 32:
            stamp(k, 8)
        E(weave(pb_mf(c, vtype), interleave(fill, extra.get(c, [])), 0, 4))
    for c in extra:
        assert c < 64


def interleave(x, y):
    out = []
    n = max(len(x), len(y))
    for i in range(n):
        if i < len(x):
            out.append(x[i])
        if i < len(y):
            out.append(y[i])
    return out


def z_phase(k, z2):
    E = k.emit
    ZACC = ACC[0]
    LA = 3

    def fbuf(c):
        return (c % 4) * 16

    def reads(c):
        z, cs = c // 4, c % 4
        sg, off = seg_off(zslot(z) * 32768 + cs * 8192)
        fb = fbuf(c)
        out = [LG(f"ds_read_b128 {a(fb + 12, 4)}, v{vCR + 3 + sg} offset:{off}", f"y{c}")]
        out += [LG(f"ds_read_b64_tr_b16 {a(fb + 4 * f + 2 * sec, 2)}, v{vCR + sg} offset:{off + sec * 768 + f * 64}", f"y{c}")
                for f in range(3) for sec in range(2)]
        return out

    def mf(c):
        fb = fbuf(c)
        out = []
        for f in range(3):
            wf, xf = ('a', fb + 4 * f), ('a', fb + 12)
            X, Y = (xf, wf) if z2 else (wf, xf)
            out.append(mfma(('v', ZACC + 16 * f), X, Y, 0 if c == 0 else None))
        return out

    epi = kv_epi(3)
    lstamp(k, 63, 33)
    E(WVM("z0"), "s_barrier")
    lstamp(k, 63, 34)
    for c in range(LA):
        E(reads(c))
    pend = z_dma(4)
    for c in range(32):
        n = c + LA
        if n < 32 and n % 4 == 0:
            z = n // 4
            lstamp(k, 63, 33 + 3 * z)
            E(WLG(f"y{n - 1}"), WVM(f"z{z}"))
            lstamp(k, 63, 34 + 3 * z)
            E("s_barrier")
            if z + 4 < 8:
                pend = pend + z_dma(z + 4)
        E(WLG(f"y{c}"))
        r_ = reads(n) if n < 32 else []
        ZR = int(os.environ.get("ZR", "2"))
        ZE = int(os.environ.get("ZE", "16"))
        take, pend = pend[:ZR], pend[ZR:]
        gm_ = {i: r_[(i * 7) // 3:((i + 1) * 7) // 3] + take[i:i + 1] for i in range(3)}
        for e_ in range(16):
            if ZE + (e_ * (32 - ZE)) // 16 == c:
                gm_[2] = gm_[2] + [epi[e_]]
        E(place(mf(c), gm_))


def build():
    k = Kern(KNAME if MERGE12 else "k1_kernel")
    E = k.emit
    E("s_cmp_ge_u32 s2, 256\ns_cbranch_scc1 " + ("K2_END" if MERGE12 else "K1_END"))
    code_prefetch(k, "L_CODE_END", 0, 120)
    stamp_init(k)
    stamp(k, 0)
    E(f"s_load_dwordx4 s[40:43], s[0:1], {KA_X}")
    E(f"s_load_dwordx4 s[44:47], s[0:1], {KA_WUK}")
    E(f"s_load_dwordx2 s[48:49], s[0:1], {KA_WIN}")
    E(f"s_load_dwordx4 s[52:55], s[0:1], {KA_DBG}")
    E("v_lshrrev_b32 v1, 6, v0\nv_and_b32 v0, 63, v0")
    E(f"s_lshr_b32 s{sRB}, s2, 3\ns_and_b32 s{sCB}, s2, 7")
    E(f"v_readfirstlane_b32 s{sW}, v1")
    E(f"s_and_b32 s{sNB}, s{sRB}, 3\ns_lshl_b32 s{sT}, s{sCB}, 2\ns_add_u32 s{sNB}, s{sNB}, s{sT}")
    E(f"s_lshr_b32 s{sMB}, s{sRB}, 2")
    E(f"s_and_b32 s{sRS}, s{sW}, 1\ns_lshr_b32 s{sCH}, s{sW}, 1\ns_lshl_b32 s{sW8}, s{sW}, 13\ns_lshl_b32 s{sW2}, s{sW}, 12")
    f0 = vF
    E(f"v_and_b32 v{f0}, 31, v0\nv_lshrrev_b32 v{f0 + 1}, 5, v0\nv_lshrrev_b32 v{f0 + 2}, 4, v0")
    E(f"v_bfe_u32 v{f0 + 3}, v0, 2, 2\nv_and_b32 v{f0 + 4}, 3, v0\nv_bfe_u32 v{f0 + 5}, v0, 4, 1")
    E(f"v_lshlrev_b32 v{vL16}, 4, v0")
    E(f"v_lshrrev_b32 v46, 3, v0\nv_lshlrev_b32 v50, 13, v46\nv_lshlrev_b32 v46, 10, v46\nv_and_b32 v47, 7, v0\nv_xor_b32 v47, v47, v{f0 + 2}")
    E("v_lshl_add_u32 v48, v47, 4, v46\nv_xor_b32 v47, 4, v47\nv_lshl_add_u32 v49, v47, 4, v46")
    for i in range(8):
        E(f"v_add_u32 v{vCD + i}, {i * 8192 - (i % 4) * 1024}, v{48 + (i % 2)}")
    E(f"v_bfe_u32 v47, v0, 2, 1\nv_xor_b32 v47, v47, v{f0 + 5}\nv_lshl_add_u32 v50, v47, 6, v50\nv_lshl_add_u32 v50, v{f0 + 4}, 4, v50")
    for i in range(8):
        E(f"v_add_u32 v{vUD + i}, {i * 65536 - (i % 4) * 1024}, v50")
    E(f"s_lshl_b32 s{sCK}, s{sMB}, 18\ns_lshl_b32 s{sT}, s{sW}, 16\ns_add_u32 s{sCK}, s{sCK}, s{sT}")
    E(f"s_and_b32 s{sT}, s{sNB}, 15\ns_lshl_b32 s{sT}, s{sT}, 9\ns_lshl_b32 s{sWK}, s{sW}, 19\ns_add_u32 s{sWK}, s{sWK}, s{sT}")
    E(f"s_lshl_b32 s{sWB}, s{sW}, 17\ns_add_u32 s{sWB}, s{sWB}, s{sT}")
    E(f"s_lshl_b32 s{sT2}, s2, 13\ns_lshl_b32 s{sT}, s{sW}, 11\ns_add_u32 s{sT2}, s{sT2}, s{sT}")
    E(f"v_xor_b32 v46, v{f0 + 3}, v{f0 + 2}\nv_lshlrev_b32 v47, 13, v{f0 + 2}\nv_lshl_add_u32 v47, v46, 6, v47\nv_lshl_add_u32 v47, v{f0 + 4}, 4, v47")
    for i in range(4):
        E(f"v_add_u32 v{vQD + i}, {i * (32768 - 1024)}, v47")
    E("s_waitcnt lgkmcnt(0)")
    E(srd(SX, 40, 2048 * 1024), srd(SC, 42, 2048 * 1024))
    E(VM(f"buffer_load_dwordx4 v[40:43], v{vL16}, {s(SX, 4)}, s{sT2} offen", "x"))
    E(VM(f"buffer_load_dwordx4 v[44:47], v{vL16}, {s(SX, 4)}, s{sT2} offen offset:1024", "x"))
    E(f"s_cmp_lt_u32 s{sNB}, 16\ns_cselect_b32 s{SW}, s44, s46\ns_cselect_b32 s{SW + 1}, s45, s47")
    E(f"s_mov_b32 s{SW + 2}, {512 * 8192:#x}\ns_mov_b32 s{SW + 3}, 0x20000")
    for j in range(2):
        E(a_dma(j), b_dma(j))
    E(srd(SI, 48, 512 * 2752), srd(SS, 54, WS_SIZE), srd(SD, 52, 256))
    E(f"s_lshl_b32 s{sT}, s2, 2\ns_add_u32 s{sT}, s{sT}, s{sW}\ns_lshl_b32 s70, s{sT}, 12\ns_lshl_b32 s77, s{sT}, 11\ns_and_b32 s76, s77, 0xfffff")
    E(f"s_cmp_lt_u32 s2, 128\ns_cselect_b32 s{SPF}, s44, s46\ns_cselect_b32 s{SPF + 1}, s45, s47\ns_mov_b32 s{SPF + 2}, {512 * 8192:#x}\ns_mov_b32 s{SPF + 3}, 0x20000")
    E(f"v_lshlrev_b32 v61, 9, v{f0 + 2}\nv_and_b32 v48, 15, v0\nv_lshl_add_u32 v61, v48, 4, v61")
    E(f"s_load_dwordx2 s[44:45], s[0:1], {KA_WQ}")
    E(f"v_bfe_u32 v48, v0, 1, 3\nv_xor_b32 v48, v48, v{f0 + 1}\nv_lshlrev_b32 v49, 7, v{f0}\nv_add_u32 v49, s{sW8}, v49")
    for k16 in range(4):
        E(f"v_xor_b32 v50, {2 * k16}, v48\nv_lshl_add_u32 v{vCR + k16}, v50, 4, v49\nv_add_u32 v{vCR + 4 + k16}, {SLOT}, v{vCR + k16}")
    E(f"v_lshl_add_u32 v48, v{f0 + 1}, 3, v{f0 + 3}\nv_lshlrev_b32 v48, 8, v48\nv_lshl_add_u32 v48, v{f0 + 5}, 5, v48\nv_lshl_add_u32 v48, v{f0 + 4}, 3, v48\nv_add_u32 v48, 32768, v48")
    for d in range(4):
        E(f"v_xor_b32 v49, {d}, v{f0 + 3}\nv_lshl_add_u32 v{vQR + d}, v49, 6, v48\nv_add_u32 v{vQR + 4 + d}, {SLOT}, v{vQR + d}")
    E(f"v_lshl_add_u32 v48, v{f0 + 1}, 3, v{f0 + 3}\nv_lshlrev_b32 v48, 7, v48\nv_lshl_add_u32 v48, v{f0 + 5}, 5, v48\nv_lshl_add_u32 v48, v{f0 + 4}, 3, v48")
    E(f"v_lshrrev_b32 v49, 1, v{f0 + 3}\nv_lshl_add_u32 v{vBR}, v49, 6, v48\nv_xor_b32 v49, 1, v49\nv_lshl_add_u32 v{vBR + 1}, v49, 6, v48")
    for sg in (1, 2):
        for d2 in range(2):
            E(f"v_add_u32 v{vBR + 2 * sg + d2}, {sg * 65536}, v{vBR + d2}")
    E(f"s_lshl_b32 s{sKO}, s{sNB}, 7\ns_lshl_b32 s{sT}, s{sMB}, 3\ns_add_u32 s{sKO}, s{sKO}, s{sT}\ns_lshl_b32 s{sT}, s{sW}, 1\ns_add_u32 s{sKO}, s{sKO}, s{sT}")
    E(f"s_lshl_b32 s{sKO}, s{sKO}, 13\ns_add_u32 s{sKO}, s{sKO}, {WS_KF}")
    E(f"s_mul_i32 s{sWI}, s{sW}, {16 * 2752}\ns_mul_i32 s{sT}, s{sCB}, 192\ns_add_u32 s{sWI}, s{sWI}, s{sT}")
    E(f"s_lshl_b32 s{sXN}, s{sRB}, 16\ns_lshl_b32 s{sT}, s{sW}, 10\ns_add_u32 s{sXN}, s{sXN}, s{sT}\ns_add_u32 s{sXN}, s{sXN}, {WS_XN}")
    E(f"s_lshl_b32 s{sCNT}, s{sRB}, 3\ns_mov_b32 s{sONES}, 0x3f803f80")
    E(f"s_lshr_b32 s{sT2}, s2, 2\ns_lshl_b32 s{sT2}, s{sT2}, 15\ns_and_b32 s{sT}, s2, 3\ns_lshl_b32 s{sT}, s{sT}, 7\ns_add_u32 s{sT2}, s{sT2}, s{sT}")
    E(f"s_add_u32 s{sT2}, s{sT2}, s{sW8}\ns_add_u32 s69, s{sT2}, {WS_XN}")
    E(f"s_lshl_b32 s{sT}, s{sW}, 5\ns_add_u32 s{sT}, s{sT}, {3 * SLOT}\nv_lshlrev_b32 v58, 7, v0\nv_add_u32 v58, s{sT}, v58")
    E(f"s_lshl_b32 s{sT}, s{sW}, 11\ns_add_u32 s{sT}, s{sT}, {3 * SLOT}\nv_add_u32 v59, s{sT}, v{vL16}")
    E("v_lshrrev_b32 v62, 3, v0\nv_lshlrev_b32 v62, 9, v62\nv_and_b32 v48, 7, v0\nv_lshl_add_u32 v62, v48, 4, v62")
    E("s_waitcnt lgkmcnt(0)")
    stamp(k, 1)
    E(f"s_cmp_ge_u32 s{sNB}, 16\ns_cbranch_scc1 K1_V")
    st = (list(k.vm), list(k.lg))
    kv_phase(k, False)
    E("s_branch K1_Z")
    k.set_state(*st)
    E("K1_V:")
    kv_phase(k, True)
    E("K1_Z:")
    stamp(k, 2)
    E(f"v_mov_b32 v60, {fbits(GELU_C0)}\nv_mov_b32 v61, {fbits(GELU_C1)}")
    E(f"s_cmp_eq_u32 s{sCH}, 1\ns_cbranch_scc1 K1_Z2")
    st = (list(k.vm), list(k.lg))
    ZACC = ACC[0]
    zr = list(range(ZACC, ZACC + 48))
    z_phase(k, False)
    stamp(k, 3)
    E(f"s_lshl_b32 s{sT}, s{sRB}, 1\ns_add_u32 s{sT}, s{sT}, s{sRS}\ns_mul_i32 s{sT}, s{sT}, 48")
    E(f"s_mul_i32 s{sT2}, s{sCB}, 6\ns_add_u32 s{sT}, s{sT}, s{sT2}\ns_lshl_b32 s{sT}, s{sT}, 10")
    E(f"s_add_u32 s{sT}, s{sT}, {WS_Z1}\ns_add_u32 s{sT2}, s{sT}, 4096\ns_nop 7")
    E(f"s_cmp_lg_u32 s{sCB}, 7\ns_cbranch_scc1 K1_Z1_NOMASK")
    for r in zr[8:]:
        E(f"v_mov_b32 v{r}, 0")
    E("K1_Z1_NOMASK:")
    for fg in range(6):
        b = ZACC + 8 * fg
        E(gelu(list(range(b, b + 8)), 60, 61, 52))
        for i in range(4):
            E(f"v_cvt_pk_bf16_f32 v{b + i}, v{b + 2 * i}, v{b + 2 * i + 1}")
        E(VM(f"buffer_store_dwordx4 {v(b, 4)}, v{vL16}, {s(SS, 4)}, s{sT if fg < 4 else sT2} offen offset:{1024 * (fg % 4)} sc1"))
    E("s_branch K1_DONE")
    k.set_state(*st)
    E("K1_Z2:")
    z_phase(k, True)
    stamp(k, 3)
    E(f"s_mul_i32 s{sT}, s{sCB}, 384\ns_lshl_b32 s{sT2}, s{sRB}, 2\ns_add_u32 s{sT}, s{sT}, s{sT2}")
    E(f"s_lshl_b32 s{sT2}, s{sRS}, 1\ns_add_u32 s{sT}, s{sT}, s{sT2}\ns_lshl_b32 s{sT}, s{sT}, 10\ns_add_u32 s{sT}, s{sT}, {WS_Z2R}\ns_nop 7")
    E(f"s_cmp_lg_u32 s{sCB}, 7\ns_cbranch_scc1 K1_Z2_NOMASK")
    E(f"v_cmp_gt_u32 vcc, 16, v{vF}\ns_nop 1")
    for r in zr[:16]:
        E(f"v_cndmask_b32 v{r}, 0, v{r}, vcc")
    for r in zr[16:]:
        E(f"v_mov_b32 v{r}, 0")
    E("K1_Z2_NOMASK:")
    E(gelu(zr, 60, 61, 52))
    SQ = 64
    for r in range(16):
        z0, z1, z2_ = ZACC + r, ZACC + 16 + r, ZACC + 32 + r
        E(f"v_add_f32 v{SQ + r}, v{z0}, v{z1}\nv_mul_f32 v{SQ + 16 + r}, v{z0}, v{z0}")
        E(f"v_add_f32 v{SQ + r}, v{SQ + r}, v{z2_}\nv_fmac_f32 v{SQ + 16 + r}, v{z1}, v{z1}")
        E(f"v_fmac_f32 v{SQ + 16 + r}, v{z2_}, v{z2_}")
    SCR = zslot(3) * 32768
    E(f"s_mul_i32 s{sT2}, s{sRS}, 9216\ns_add_u32 s{sT2}, s{sT2}, {SCR}")
    E(f"v_mul_u32_u24 v46, {4 * 144}, v{vF + 1}\nv_lshl_add_u32 v46, v{vF}, 2, v46\nv_add_u32 v46, s{sT2}, v46")
    for stt in range(2):
        for r in range(16):
            srow = 8 * (r // 4) + r % 4
            E(LG(f"ds_write_b32 v46, v{SQ + 16 * stt + r} offset:{(stt * 32 + srow) * 144}"))
    E(f"v_mul_u32_u24 v47, 144, v0\nv_add_u32 v47, s{sT2}, v47")
    for f in range(3):
        for g in range(2):
            b = ZACC + 16 * f + 8 * g
            for i in range(4):
                E(f"v_cvt_pk_bf16_f32 v{b + i}, v{b + 2 * i}, v{b + 2 * i + 1}")
            E("s_nop 1")
            E(f"v_permlane32_swap_b32 v{b}, v{b + 2}\nv_permlane32_swap_b32 v{b + 1}, v{b + 3}")
            E("s_nop 1")
            E(VM(f"buffer_store_dwordx4 {v(b, 4)}, v{vL16}, {s(SS, 4)}, s{sT} offen offset:{1024 * g} sc1"))
        if f < 2:
            E(f"s_add_u32 s{sT}, s{sT}, {128 * 1024}")
    E(WLG0)
    for i in range(8):
        E(LG(f"ds_read_b128 {v(SQ + 4 * i, 4)}, v47 offset:{16 * i}"))
    E(f"s_lshl_b32 s{sT}, s{sRB}, 1\ns_add_u32 s{sT}, s{sT}, s{sRS}\ns_lshl_b32 s{sT}, s{sT}, 11\ns_add_u32 s{sT}, s{sT}, {WS_STAT}")
    E(f"s_lshl_b32 s{sT2}, s{sCB}, 8\ns_add_u32 s{sT}, s{sT}, s{sT2}\nv_lshlrev_b32 v46, 2, v0")
    E(WLG0)
    for stride in (16, 8, 4, 2, 1):
        for i in range(stride):
            E(f"v_add_f32 v{SQ + i}, v{SQ + i}, v{SQ + stride + i}")
    E(VM(f"buffer_store_dword v{SQ}, v46, {s(SS, 4)}, s{sT} offen sc1"))
    E("K1_DONE:")
    if PROF:
        stamp(k, 4)
        if not MERGE12:
            E(WVM0)
    stamp(k, 5)
    lstamp_store(k, 0, 63, 59, SS, sW)
    stamp_store(k, 0, SS, sW, 96)
    if MERGE12:
        import k2
        E("s_mov_b64 exec, -1")
        k.set_state(["p1s"], [])
        k2.build(k)
        return k.text(512, 256)
    E("K1_END:")
    E("s_endpgm")
    return k.text(512, 256)
```

```python
from asmlib import *
from common import *
import os

THRESH = float(os.environ.get("THRESH", "32.0"))
BUDGET = int(os.environ.get("BUDGET", "25"))
EXP = os.environ.get("EXP2", "")

SQ, SP, SB, SS, SD = 8, 12, 16, 20, 24
sW, sHD, sPI, sG, sRS = 32, 33, 34, 35, 36
sT, sT2, sU, sSW, sSW2, sJUMP, sTL, sTD = 37, 38, 39, 40, 41, 42, 43, 44
sKN, sKO2, sVO, sVO2, sMK, sMV = 45, 46, 47, 48, 49, 50
sTH = (51, 52)
sLO = (53, 54)
sXN, sWQ, sWM, sW8, sDO = 55, 56, 57, 59, 58
sGP, sGZ, sGM, sFL, sPF, sEV, sDG = 60, 61, 62, 63, 76, 77, 31
NINF = "0xff800000"
SC1 = " sc1" if MERGE12 else ""

vL16, vKc, vKn, vVp, vVc, vD0, vNEG = 1, 2, 3, 4, 5, 6, 7
vLs = ((8, 9), (10, 11))
vNM = (12, 13)
vM = 14
vLSV = (30, 31)
vT = 20
vQD = 32
vQR = 36
S = (48, 64)
NEGM = (80, 96)
PB = 112
QBS = 144
ZT = 208
NEGB = 208
MSK = 224
vPL = 240
aO, aQ, aK, aV = 0, 128, 192, 224

KB0, VB0, SPARE = 0, 65536, 131072
NEG = -1.0e30


def P(buf, x, i=0):
    return PB + (buf * 2 + x) * 8 + i


def dma4(so, tag="kv"):
    return [VM(f"buffer_load_dwordx4 v{vL16}, {s(SS, 4)}, s{so} offen offset:{1024 * i}{SC1} lds", tag) for i in range(4)]


def qk(x, cin=None):
    return [mfma(('v', S[x]), ('a', aK + 4 * d), ('a', aQ + (x * 8 + d) * 4), ('v', NEGM[x] if cin is None else cin) if d == 0 else None)
            for d in range(8)]


def pv(x, buf):
    return [mfma(('a', aO + (x * 4 + ds) * 16), ('a', aV + (ds * 2 + g) * 4), ('v', P(buf, x, 4 * g)))
            for g in range(2) for ds in range(4)]


def kreads(areg, th):
    return [LG(f"ds_read_b128 {a(aK + 4 * d, 4)}, v{areg} offset:{th * 8192 + d * 1024}", "k") for d in range(8)]


def vreads(areg, th):
    return [LG(f"ds_read_b128 {a(aV + 4 * f, 4)}, v{areg} offset:{th * 8192 + f * 1024}", "v") for f in (0, 2, 4, 6, 1, 3, 5, 7)]


def sm_max(x):
    b, m = S[x], vM
    return [(4, I(t)) for t in (
        f"v_max3_f32 v{m}, v{b}, v{b + 1}, v{b + 2}", f"v_max3_f32 v{m + 1}, v{b + 3}, v{b + 4}, v{b + 5}",
        f"v_max3_f32 v{m + 2}, v{b + 6}, v{b + 7}, v{b + 8}", f"v_max3_f32 v{m + 3}, v{b + 9}, v{b + 10}, v{b + 11}",
        f"v_max3_f32 v{m + 4}, v{b + 12}, v{b + 13}, v{b + 14}", f"v_max3_f32 v{m}, v{m}, v{m + 1}, v{b + 15}",
        f"v_max3_f32 v{m + 2}, v{m + 2}, v{m + 3}, v{m + 4}", f"v_max_f32 v{m}, v{m}, v{m + 2}")]


def sm_chk(x, buf):
    return (8, [I(f"v_cmp_lt_f32 vcc, s{sTH[x]}, v{vM}"), I(f"s_cbranch_vccnz K2_RARE_{x}_{buf}"), I(f"K2_RET_{x}_{buf}:")])


def sm_fin(x, buf, i):
    b = S[x]
    return [(4, I(f"v_add_f32 v{vLs[x][0]}, v{vLs[x][0]}, v{b + 2 * i}")),
            (4, I(f"v_add_f32 v{vLs[x][1]}, v{vLs[x][1]}, v{b + 2 * i + 1}")),
            (4, I(f"v_cvt_pk_bf16_f32 v{P(buf, x, i)}, v{b + 2 * i}, v{b + 2 * i + 1}"))]


def sm_exp(x, buf):
    b = S[x]
    items = []
    for i in range(8):
        items.append((8, I(f"v_exp_f32 v{b + 2 * i}, v{b + 2 * i}")))
        items.append((8, I(f"v_exp_f32 v{b + 2 * i + 1}, v{b + 2 * i + 1}")))
        if i > 0:
            items += sm_fin(x, buf, i - 1)
    return items + sm_fin(x, buf, 7)


CAP = int(os.environ.get("CAP", "24"))


def schedule_loop(var='', pin=None):
    NG = 64
    T = NG + 16
    mem = [[] for _ in range(T)]
    alu = [[] for _ in range(T)]
    used = [0] * NG
    sfx = var
    diag, first = var == 'D', var == 'F'

    def fixed(g, cost, item, is_mem=True):
        (mem if is_mem else alu)[g].append(item)
        used[g % NG] += cost

    def spread_mem(g0, n, items):
        for i, r in enumerate(items):
            fixed(g0 + (i * n) // len(items), 4, r)

    spread_mem(0, 13, vreads(vVp, 1))
    spread_mem(16, 10, kreads(vKc, 1))
    spread_mem(32, 13, vreads(vVc, 0))
    spread_mem(48, 13, kreads(vKn, 0))
    BAR = int(os.environ.get("BAR", "27"))
    fixed(BAR, 8, [I("s_waitcnt vmcnt(1) lgkmcnt(0)"), ('reset',), I("s_barrier")])
    g = BAR + 1
    dgaps = []
    for so in (sKN, sKO2, sVO, sVO2):
        for d in dma4(so):
            fixed(g, 8, d)
            dgaps.append(g)
            g += 2
    fixed(g, 8, VM(f"buffer_load_dwordx4 {v(ZT + 40, 4)}, v{vL16}, {s(SP, 4)}, s{sPF} offen", "pf"))
    gpf = g
    tail = {15: [WLG("v")], 47: [WLG("v")], 63: []}
    for g_ in (15, 47):
        used[g_] += 4
    used[63] += 4 + 13 + 13
    if var:
        used[31] += 13
    jobs = []

    def job(name, cost, item, e, l, deps=(), later=None):
        jobs.append(dict(name=name, cost=cost, item=item, e=e, l=l, deps=list(deps), later=later))

    job("vo", 4, I(f"s_add_u32 s{sVO}, s{sKN}, {WS_VF - WS_KF}"), 0, BAR - 2)
    job("vo2", 4, I(f"s_add_u32 s{sVO2}, s{sKN}, {WS_VF - WS_KF + 4096}"), 0, BAR - 2)
    job("kn", 12, [I(f"s_cmp_eq_u32 s{sU}, s{sSW2}"), I(f"s_cselect_b32 s{sKO2}, s{sJUMP}, 0x4000"), I(f"s_add_u32 s{sKN}, s{sKN}, s{sKO2}")],
        0, BAR - 1, ["vo", "vo2"])
    job("ko2", 4, I(f"s_add_u32 s{sKO2}, s{sKN}, 4096"), 0, BAR, ["kn"])
    job("m0a", 4, I(f"s_mov_b32 m0, s{sMK}"), 0, BAR)
    job("m0b", 4, I(f"s_add_u32 m0, s{sMK}, 4096"), dgaps[3], dgaps[4] - 1)
    job("m0c", 4, I(f"s_mov_b32 m0, s{sMV}"), dgaps[7], dgaps[8] - 1)
    job("m0d", 4, I(f"s_add_u32 m0, s{sMV}, 4096"), dgaps[11], dgaps[12] - 1)
    job("pfa", 4, I(f"s_add_u32 s{sPF}, s{sPF}, 0x100000"), gpf, 63)
    job("xk", 4, I(f"s_xor_b32 s{sMK}, s{sMK}, 0x8000"), dgaps[4], 63, ["m0b"])
    job("xv", 4, I(f"s_xor_b32 s{sMV}, s{sMV}, 0x8000"), dgaps[12], 63, ["m0d"])
    job("vp", 4, I(f"v_mov_b32 v{vVp}, v{vVc}"), 13, 44)
    job("vc", 4, I(f"v_xor_b32 v{vVc}, 0x8000, v{vVc}"), 45, 63, ["vp"])
    job("kc", 4, I(f"v_xor_b32 v{vKc}, 0x8000, v{vKc}"), 26, 63)
    job("kx", 4, I(f"v_xor_b32 v{vKn}, 0x8000, v{vKn}"), 61, 63)
    job("tl", 4, I(f"s_add_u32 s{sTL}, s{sTL}, 1"), 56, 63)
    job("u", 4, I(f"s_add_u32 s{sU}, s{sU}, 1"), 32, 63)
    for half in range(2):
        G = 8 + 32 * half
        for x in range(2):
            e0 = G + 1 + 8 * x
            pre = f"{half}{x}"
            prev = [f"{half}0chk"] if x == 1 else []
            if diag and half == x:
                for r in range(16):
                    job(f"{pre}mk{r}", 4, I(f"v_min_f32 v{S[x] + r}, v{S[x] + r}, v{MSK + r}"), e0, e0 + 4, prev)
                prev = prev + [f"{pre}mk{r}" for r in range(16)]
            for i, (c, it) in enumerate(sm_max(x)):
                job(f"{pre}m{i}", c, it, e0, e0 + 5, prev + ([f"{pre}m{i - 1}"] if i else []))
            dl = G + 23 + 8 * x
            b_ = S[x]
            if first and half == 0:
                d_ = vT + x
                job(f"{pre}f0", 4, I(f"v_mov_b32 v{d_}, v{vM}"), e0, e0 + 8, [f"{pre}m7"])
                job(f"{pre}f1", 8, [I("s_nop 0"), I(f"v_permlane32_swap_b32 v{vM}, v{d_}")], e0, e0 + 9, [f"{pre}f0"], later=f"{pre}f0")
                job(f"{pre}chk", 12, [I(f"v_max_f32 v{d_}, v{d_}, v{vM}"), I(f"v_ceil_f32 v{d_}, v{d_}"), I(f"v_sub_f32 v{vNM[x]}, 0, v{d_}")],
                    e0, e0 + 10, [f"{pre}f1"], later=f"{pre}f1")
                job(f"{pre}ls", 12, [I(f"v_add_f32 v{vLSV[x]}, v{vLs[x][0]}, v{vLs[x][1]}"), I(f"v_mov_b32 v{vLs[x][0]}, 0"), I(f"v_mov_b32 v{vLs[x][1]}, 0")],
                    e0, e0 + 8)
                for r in range(16):
                    job(f"{pre}s{r}", 4, I(f"v_sub_f32 v{b_ + r}, v{b_ + r}, v{d_}"), e0, dl - 2, [f"{pre}chk", f"{pre}ls"])
                    job(f"{pre}n{r}", 4, I(f"v_mov_b32 v{NEGM[x] + r}, v{vNM[x]}"), e0, dl - 1, [f"{pre}chk"])
            else:
                job(f"{pre}cmp", 4, I(f"v_cmp_lt_f32 vcc, s{sTH[x]}, v{vM}"), e0, e0 + 5, [f"{pre}m7"])
                job(f"{pre}chk", 9, [I(f"s_cbranch_vccnz K2_RARE_{x}_{half}"), I(f"K2_RET{sfx}_{x}_{half}:")],
                    e0, e0 + 6, [f"{pre}cmp"], later=f"{pre}cmp")
            for r in range(16):
                job(f"{pre}e{r}", 8, I(f"v_exp_f32 v{b_ + r}, v{b_ + r}"), e0, dl - 1,
                    [f"{pre}s{r}" if (first and half == 0) else f"{pre}chk"] + ([f"{pre}e{r - 1}"] if r else []))
            for i in range(8):
                f3 = sm_fin(x, half, i)
                job(f"{pre}a{2 * i}", 4, f3[0][1], e0, dl, [f"{pre}e{2 * i + 1}"])
                job(f"{pre}a{2 * i + 1}", 4, f3[1][1], e0, dl, [f"{pre}a{2 * i}"])
                job(f"{pre}c{i}", 4, f3[2][1], e0, dl, [f"{pre}a{2 * i + 1}"])
    if pin is not None:
        for j in jobs:
            if j['name'] in pin:
                j['e'] = j['l'] = pin[j['name']]
            else:
                j['l'] = min(j['l'], 63)
    done = {}
    rest = list(jobs)
    order = list(range(9, NG + 9))
    remaining = sum(j['cost'] for j in jobs)
    for gi, g in enumerate(order):
        gm_ = g % NG
        free_after = sum(max(0, CAP - used[h % NG]) for h in order[gi + 1:])
        while True:
            cand = []
            for j in rest:
                e, l = j['e'], j['l']
                if l < 9 or (e < 9 and j['name'][0] not in "01" and False):
                    e, l = e + NG, l + NG
                if e <= g and all(d in done for d in j['deps']) and (j['later'] is None or done[j['later']] < g):
                    cand.append((l, j))
            if not cand:
                break
            cand.sort(key=lambda z: z[0])
            room = CAP - used[gm_]
            pick = None
            for l, j in cand:
                if j['cost'] <= room:
                    pick = j
                    break
            if pick is None:
                urgent = [j for l, j in cand if l <= g]
                if urgent:
                    pick = urgent[0]
                elif remaining > free_after and room > -4 and room + 4 >= min(j['cost'] for _, j in cand):
                    pick = min((j for _, j in cand), key=lambda j: j['cost'])
                else:
                    break
            alu[g].append(pick['item'])
            used[gm_] += pick['cost']
            remaining -= pick['cost']
            done[pick['name']] = g
            rest.remove(pick)
    assert not rest, [j['name'] for j in rest]
    for j in jobs:
        l = j['l'] + (NG if j['l'] < 9 else 0)
        assert done[j['name']] <= l, (j['name'], done[j['name']], l)
    est = sum(max(32, 8 + u) for u in used)
    if os.environ.get("SCHED"):
        print("loop estimate", est, used)
    wrapped = []
    for g in range(NG, T):
        wrapped += [it for it in alu[g] if "v_" in str(it) and "s_cselect" not in str(it)]
    gm = {}
    for g in range(NG):
        gm[g] = mem[g] + (alu[g + NG] if g + NG < T else []) + alu[g] + tail.get(g, [])
    return gm, wrapped, {n: g for n, g in done.items() if g >= NG}


def rare_ret(L):
    r = f"s_cmp_eq_u32 s{sDG}, 0\ns_cbranch_scc1 K2_RET_{L}\n"
    if L.endswith("_1"):
        r += f"s_cmp_eq_u32 s{sDG}, 2\ns_cbranch_scc1 K2_RETF_{L}\n"
    return r + f"s_branch K2_RETD_{L}"


def rare_path(k, x, buf):
    E = k.emit
    t = vT
    L = f"{x}_{buf}"
    E(f"K2_RARE_{L}:")
    E(f"s_mov_b32 s{sTH[x]}, {fbits(THRESH)}")
    E(f"v_mov_b32 v{t}, v{vM}\ns_nop 1\nv_permlane32_swap_b32 v{vM}, v{t}\ns_nop 1")
    E(f"v_max_f32 v{t}, v{t}, v{vM}\nv_ceil_f32 v{t}, v{t}\nv_max_f32 v{t}, s{sLO[x]}, v{t}")
    E(f"v_sub_f32 v{vNM[x]}, v{vNM[x]}, v{t}")
    for r in range(16):
        E(f"v_sub_f32 v{S[x] + r}, v{S[x] + r}, v{t}")
        E(f"v_mov_b32 v{NEGM[x] + r}, v{vNM[x]}")
    E(f"s_cmp_eq_u32 s{sLO[x]}, 0\ns_cbranch_scc1 K2_RSC_{L}")
    E(f"v_add_f32 v{vLSV[x]}, v{vLs[x][0]}, v{vLs[x][1]}\nv_mov_b32 v{vLs[x][0]}, 0\nv_mov_b32 v{vLs[x][1]}, 0")
    E(f"s_mov_b32 s{sLO[x]}, 0", rare_ret(L))
    E(f"K2_RSC_{L}:")
    E(f"v_sub_f32 v{t + 1}, 0, v{t}\nv_exp_f32 v{t + 1}, v{t + 1}\ns_nop 0")
    E(f"v_mul_f32 v{vLs[x][0]}, v{vLs[x][0]}, v{t + 1}\nv_mul_f32 v{vLs[x][1]}, v{vLs[x][1]}, v{t + 1}")
    for i in range(8):
        p = P(1 - buf, x, i)
        E(f"v_lshlrev_b32 v{t + 2}, 16, v{p}\nv_and_b32 v{t + 3}, 0xffff0000, v{p}")
        E(f"v_mul_f32 v{t + 2}, v{t + 2}, v{t + 1}\nv_mul_f32 v{t + 3}, v{t + 3}, v{t + 1}")
        E(f"v_cvt_pk_bf16_f32 v{p}, v{t + 2}, v{t + 3}")
    E("s_nop 15")
    for r in range(0, 64, 4):
        for i in range(4):
            E(f"v_accvgpr_read_b32 v{t + 2 + i}, a{aO + x * 64 + r + i}")
        for i in range(4):
            E(f"v_mul_f32 v{t + 2 + i}, v{t + 2 + i}, v{t + 1}")
        for i in range(4):
            E(f"v_accvgpr_write_b32 a{aO + x * 64 + r + i}, v{t + 2 + i}")
    E(rare_ret(L))


def ctx_addr(sqb_expr, x_in_addr):
    pass


def hooks(k):
    E = k.emit
    E("K2_EVENT:")
    if MERGE12:
        E(f"s_cmp_lg_u32 s{sU}, 1\ns_cbranch_scc1 K2_EV0\ns_cmp_lg_u32 s{sW}, 0\ns_cbranch_scc1 K2_EV0")
        E(f"v_mov_b32 v{vPL}, 1\nv_mov_b32 v{vPL + 1}, 0\ns_mov_b64 exec, 1\nbuffer_store_byte v{vPL}, v{vPL + 1}, {s(SS, 4)}, s{sGP} offen sc0 sc1\ns_mov_b64 exec, -1")
        E("K2_EV0:")
    E(f"s_mov_b32 s{sDG}, 0\ns_cmp_lg_u32 s{sU}, s{sSW}\ns_cbranch_scc1 K2_EV2")
    E(f"s_cmp_eq_u32 s{sG}, 0\ns_cbranch_scc1 K2_SW0")
    for r in range(64):
        E(f"v_accvgpr_write_b32 a{aQ + r}, v{QBS + r}")
    for r in range(32):
        E(f"v_mov_b32 v{NEGM[0] + r}, 0")
    E(f"v_mov_b32 v{vNM[0]}, 0\nv_mov_b32 v{vNM[1]}, 0")
    for x in range(2):
        E(f"s_mov_b32 s{sTH[x]}, {NINF}\ns_mov_b32 s{sLO[x]}, {NINF}")
    E(f"s_mov_b32 s{sTL}, 17\ns_sub_u32 s{sTD}, 15, s{sPI}\ns_lshl_b32 s{sTD}, s{sTD}, 1\ns_add_u32 s{sTD}, s{sTD}, s{sRS}")
    E("s_branch K2_EV2")
    E("K2_SW0:")
    E(f"s_cmp_eq_u32 s{sU}, 9\ns_cbranch_scc1 K2_SW1")
    E(f"v_and_b32 v{vPL}, 31, v0\nbuffer_load_ubyte v{vPL + 1}, v{vPL}, {s(SS, 4)}, s{sFL} offen sc0 sc1\ns_mov_b32 s{sSW}, 9\ns_branch K2_EV2")
    E("K2_SW1:\ns_waitcnt vmcnt(17)")
    E(f"v_cmp_ne_u32 vcc, 1, v{vPL + 1}\ns_nop 1\ns_cbranch_vccz K2_EV2")
    E(f"K2_FBLP:\ns_sleep 2\nbuffer_load_ubyte v{vPL + 1}, v{vPL}, {s(SS, 4)}, s{sFL} offen sc0 sc1\ns_waitcnt vmcnt(0)")
    E(f"v_cmp_ne_u32 vcc, 1, v{vPL + 1}\ns_nop 1\ns_cbranch_vccnz K2_FBLP")
    E("K2_EV2:")
    E(f"s_cmp_lt_u32 s{sTL}, s{sTD}\ns_cbranch_scc0 K2_EV3")
    E(f"s_cmp_eq_u32 s{sLO[0]}, 0\ns_cbranch_scc1 K2_EV4")
    for x in range(2):
        E(f"s_mov_b32 s{sTH[x]}, {fbits(THRESH)}\ns_mov_b32 s{sLO[x]}, 0")
    E(f"s_add_u32 s{sEV}, s{sU}, 1\ns_mov_b32 s{sDG}, 2\ns_branch K2_SWRETF")
    E("K2_EV4:")
    E(f"s_sub_u32 s{sEV}, s{sTD}, s{sTL}\ns_add_u32 s{sEV}, s{sEV}, s{sU}\ns_cmp_gt_u32 s{sSW}, s{sU}\ns_cselect_b32 s{sT}, s{sSW}, 99\ns_min_u32 s{sEV}, s{sEV}, s{sT}")
    E("s_branch K2_SWRET")
    E("K2_EV3:")
    E(f"s_add_u32 s{sEV}, s{sU}, 1\ns_mov_b32 s{sDG}, 1\ns_cmp_eq_u32 s{sTL}, s{sTD}\ns_cbranch_scc1 K2_SWRETD")
    for r in range(32):
        E(f"v_mov_b32 v{NEGM[0] + r}, v{vNEG}")
    E(f"s_mov_b32 s{sTH[0]}, 0x7f800000\ns_mov_b32 s{sTH[1]}, 0x7f800000\ns_branch K2_SWRETD")
    E("K2_FINB:")
    t = QBS
    E(f"s_cmp_eq_u32 s{sLO[0]}, 0\ns_cbranch_scc1 K2_FB1")
    for x in range(2):
        E(f"v_add_f32 v{vLSV[x]}, v{vLs[x][0]}, v{vLs[x][1]}\nv_mov_b32 v{vLs[x][0]}, 0\nv_mov_b32 v{vLs[x][1]}, 0\nv_sub_f32 v{vNM[x]}, 0, v{vNEG}")
    E("K2_FB1:")
    for x in range(2):
        E(f"v_mov_b32 v{t + 2 * x}, v{vLSV[x]}")
    E("s_nop 1")
    for x in range(2):
        E(f"v_permlane32_swap_b32 v{vLSV[x]}, v{t + 2 * x}")
    E("s_nop 1")
    for x in range(2):
        E(f"v_add_f32 v{t + 2 * x}, v{t + 2 * x}, v{vLSV[x]}\nv_rcp_f32 v{t + 2 * x}, v{t + 2 * x}")
    E(f"s_lshl_b32 s{sT}, s{sPI}, 2\ns_lshl_b32 s{sT2}, s{sRS}, 1\ns_add_u32 s{sT}, s{sT}, s{sT2}")
    for x in range(2):
        E(f"v_mov_b32 v{t + 2 * x + 1}, v{t + 2 * x}")
    E(f"s_mul_i32 s{sT}, s{sT}, {CTXU_STEPS}\ns_lshl_b32 s{sT2}, s{sHD}, 3\ns_add_u32 s{sT}, s{sT}, s{sT2}")
    E(f"s_lshl_b32 s{sT}, s{sT}, 10\ns_add_u32 s{sT}, s{sT}, {WS_CTXU}")
    for i in range(4):
        E(f"v_mov_b32 v{t + 4 + i}, 0")
    for x in range(2):
        for f in range(8):
            b = t + 8 + 8 * (f % 4)
            for i in range(8):
                E(f"v_accvgpr_read_b32 v{b + i}, a{aO + x * 64 + 8 * f + i}")
            if f % 2 == 1:
                E(mfma(('a', aO + x * 64 + 8 * (f - 1)), ('v', t + 4), ('v', t + 4), 0))
            for i in range(4):
                E(f"v_pk_mul_f32 {v(b + 2 * i, 2)}, {v(b + 2 * i, 2)}, {v(t + 2 * x, 2)}")
            for i in range(4):
                E(f"v_cvt_pk_bf16_f32 v{b + i}, v{b + 2 * i}, v{b + 2 * i + 1}")
            E(f"buffer_store_dwordx4 {v(b, 4)}, v{vL16}, {s(SS, 4)}, s{sT} offen offset:{1024 * (f % 4)} sc1")
            if f == 3:
                E(f"s_add_u32 s{sT}, s{sT}, 4096")
            if f == 7 and x == 0:
                E(f"s_add_u32 s{sT}, s{sT}, {CTXU_STEPS * 1024 - 4096}")
    E(f"s_cmp_eq_u32 s{sDG}, 2\ns_cbranch_scc1 K2_FBRETF\ns_branch K2_FBRETD")


QACC = 48
aXN = 0
aWF = 192


def wq_dma(j):
    out = []
    for i in range(4):
        g = []
        if i == 0:
            g += [I(f"s_add_u32 m0, s{sWM}, {j * 16384}"), I(f"s_add_u32 s{sDO}, s{sWQ}, {j * 64 * 8192}")]
        g.append(VM(f"buffer_load_dwordx4 v{vQD + i}, {s(SQ, 4)}, s{sDO} offen offset:{1024 * i} lds", f"wq{j}"))
        out.append(g)
    return out


def xn_loads(j):
    out = []
    for x in range(2):
        for cs in range(4):
            g = []
            if cs == 0:
                g.append(I(f"s_add_u32 s{sDO}, s{sXN}, {x * 32768 + j * 4096}"))
            g.append(VM(f"buffer_load_dwordx4 {a(aXN + (j % 4) * 32 + (x * 4 + cs) * 4, 4)}, v{vL16}, {s(SS, 4)}, "
                        f"s{sDO} offen offset:{1024 * cs}{SC1}", f"xn{j}"))
            out.append(g)
    return out


def znorm():
    ld = [[I(x) for x in (f"s_lshr_b32 s{sGM}, s2, 3", f"s_and_b32 s{sGP}, s2, 7", f"s_lshl_b32 s{sT}, s{sGM}, 1", f"s_add_u32 s{sT}, s{sT}, s{sG}",
                          f"s_lshl_b32 s{sT}, s{sT}, 11", f"s_add_u32 s{sT}, s{sT}, {WS_STAT}", f"v_lshlrev_b32 v{ZT}, 2, v0")]]
    for i in range(0, 8, 2):
        ld.append([VM(f"buffer_load_dword v{ZT + 4 + i + e}, v{ZT}, {s(SS, 4)}, s{sT} offen offset:{256 * (i + e)}{SC1}", "zn") for e in range(2)])
    ld.append([I(x) for x in (f"s_mul_i32 s{sGZ}, s{sGP}, 384", f"s_lshl_b32 s{sT}, s{sGM}, 2", f"s_add_u32 s{sGZ}, s{sGZ}, s{sT}",
                              f"s_add_u32 s{sGZ}, s{sGZ}, s{sW}", f"s_lshl_b32 s{sGZ}, s{sGZ}, 10")])
    for f in range(3):
        ld.append([I(f"s_add_u32 s{sT}, s{sGZ}, {WS_Z2R + f * 128 * 1024}"),
                   VM(f"buffer_load_dwordx4 {v(ZT + 12 + 4 * f, 4)}, v{vL16}, {s(SS, 4)}, s{sT} offen{SC1}", "zn")])
    z = ZT + 4
    AB = ZT + 24
    c = [WVM("zn")]
    c += flat([f"v_add_f32 v{z}, v{z}, v{z + 1}\nv_add_f32 v{z + 2}, v{z + 2}, v{z + 3}\nv_add_f32 v{z + 4}, v{z + 4}, v{z + 5}\nv_add_f32 v{z + 6}, v{z + 6}, v{z + 7}",
               f"v_add_f32 v{z}, v{z}, v{z + 2}\nv_add_f32 v{z + 4}, v{z + 4}, v{z + 6}\nv_add_f32 v{z}, v{z}, v{z + 4}",
               f"v_mul_f32 v{z}, {fbits(1 / 688)}, v{z}\nv_mov_b32 v{z + 1}, v{z}\ns_nop 1\nv_permlane32_swap_b32 v{z}, v{z + 1}\ns_nop 1",
               f"v_fma_f32 v{z + 1}, -v{z}, v{z}, v{z + 1}\nv_max_f32 v{z + 1}, 0, v{z + 1}\nv_add_f32 v{z + 1}, {fbits(LN_EPS)}, v{z + 1}\nv_rsq_f32 v{z + 1}, v{z + 1}\ns_nop 0",
               f"v_mul_f32 v{z}, v{z}, v{z + 1}\nv_sub_f32 v{z}, 0, v{z}",
               f"s_lshl_b32 s{sT}, s{sW}, 8\ns_add_u32 s{sT}, s{sT}, {SPARE}",
               f"v_lshlrev_b32 v{z + 2}, 2, v20\nv_add_u32 v{z + 2}, s{sT}, v{z + 2}"])
    c += [LG(f"ds_write_b32 v{z + 2}, v{z + 1}", "zw"), LG(f"ds_write_b32 v{z + 2}, v{z} offset:128", "zw")]
    c += flat([f"s_lshl_b32 s{sT2}, s{sRS}, 6\ns_add_u32 s{sT}, s{sT}, s{sT2}\nv_lshlrev_b32 v{z + 3}, 5, v21\nv_add_u32 v{z + 3}, s{sT}, v{z + 3}"])
    for i in range(2):
        c += [LG(f"ds_read_b128 {v(AB + 4 * i, 4)}, v{z + 3} offset:{16 * i}", "zr"),
              LG(f"ds_read_b128 {v(AB + 8 + 4 * i, 4)}, v{z + 3} offset:{128 + 16 * i}", "zr")]
    c += flat([f"s_lshl_b32 s{sGP}, s{sGP}, 8\ns_add_u32 s{sGP}, s{sGP}, s{sGM}\ns_add_u32 s{sGP}, s{sGP}, {WS_FLAG2}\ns_nop 0"])
    c += [WLG("zr")]
    for f in range(3):
        for i in range(4):
            x_ = ZT + 12 + 4 * f + i
            c += flat([f"v_lshlrev_b32 v{z}, 16, v{x_}\nv_and_b32 v{z + 1}, 0xffff0000, v{x_}",
                       f"v_fma_f32 v{z}, v{z}, v{AB + 2 * i}, v{AB + 8 + 2 * i}\nv_fma_f32 v{z + 1}, v{z + 1}, v{AB + 2 * i + 1}, v{AB + 9 + 2 * i}",
                       f"v_cvt_pk_bf16_f32 v{x_}, v{z}, v{z + 1}"])
        c += [I(f"s_add_u32 s{sT}, s{sGZ}, {WS_Z2N + f * 128 * 1024}"),
              VM(f"buffer_store_dwordx4 {v(ZT + 12 + 4 * f, 4)}, v{vL16}, {s(SS, 4)}, s{sT} offen sc1", "zs")]
    cg = [c[i:i + 4] for i in range(0, len(c), 4)]
    return ld, cg


def qproj(k):
    E = k.emit
    extra = {}

    def spread(c0, c1, groups):
        n = len(groups)
        for i, g in enumerate(groups):
            extra.setdefault(c0 + (i * (c1 - c0)) // n, []).append(g)

    def rd(c, fb):
        j, cs = c // 4, c % 4
        return [LG(f"ds_read_b64_tr_b16 {a(fb + 4 * d + 2 * sec, 2)}, v{vQR + (j // 4) * 4 + d} "
                   f"offset:{(j % 4) * 16384 + cs * 4096 + sec * 1024}", f"q{c}") for d in range(4) for sec in range(2)]

    def fbuf(c):
        return aWF + (c % 4) * 16

    def mf1(c, d, x):
        j, cs = c // 4, c % 4
        return mfma(('v', QACC + (x * 4 + d) * 16), ('a', fbuf(c) + 4 * d), ('a', aXN + (j % 4) * 32 + (x * 4 + cs) * 4),
                    0 if c == 0 else None)

    zl, zc = znorm()

    def kvpre(base, pre, so, so2, tag="kv"):
        d1, d2 = dma4(so, tag), dma4(so2, tag)
        return [[I(f"s_add_u32 m0, s{sW8}, {base}")] + [I(x) for x in pre] + [d1[0]]] + [[d] for d in d1[1:]] + \
               [[I(f"s_add_u32 m0, s{sW8}, {base + 4096}"), I("s_nop 0"), d2[0]]] + [[d] for d in d2[1:]]

    k0 = kvpre(0, [f"s_add_u32 s{sKO2}, s{sKN}, 4096"], sKN, sKO2, "k0")
    k1 = kvpre(32768, [f"s_add_u32 s{sVO}, s{sKN}, {WS_VF - WS_KF}", f"s_add_u32 s{sVO2}, s{sVO}, 4096",
                       f"s_add_u32 s{sKN}, s{sKN}, 0x4000", f"s_add_u32 s{sKO2}, s{sKN}, 4096"], sKN, sKO2)
    v0_ = kvpre(VB0, ["s_nop 0"], sVO, sVO2)
    q = []
    if MERGE12:
        order_ = ((0, wq_dma(2) + xn_loads(2) + wq_dma(3) + xn_loads(3) + wq_dma(4)), (4, xn_loads(4)), (0, wq_dma(5)), (8, xn_loads(5)),
                  (0, wq_dma(6)), (12, xn_loads(6)), (0, wq_dma(7)), (16, xn_loads(7)), (22, k0 + zl))
    else:
        order_ = ((0, wq_dma(2) + xn_loads(2) + wq_dma(3) + xn_loads(3) + wq_dma(4)), (4, xn_loads(4)), (0, wq_dma(5)), (8, xn_loads(5)),
                  (0, wq_dma(6) + zl), (12, xn_loads(6)), (0, wq_dma(7)), (16, xn_loads(7)), (6, k0), (14, k1))
    for e, grp in order_:
        q += [(e, g) for g in grp]
    RATE = 4
    c_ = 0
    n_ = 0
    for e, g in q:
        if e > c_:
            c_, n_ = e, 0
        extra.setdefault(c_, []).append(g)
        n_ += 1
        if n_ == RATE:
            c_, n_ = c_ + 1, 0
    assert c_ <= 27, c_
    valu = {}
    if not MERGE12:
        for i, g in enumerate(zc):
            valu.setdefault(19 + (i * 8) // len(zc), []).append(g)
    else:
        valu[18] = [[I(f"s_mov_b32 s{sT}, {WS_FP1}")] + poll_all_issue(sW, SS, f"s{sT}", 16, 4, 176)]

    E(WVM("wq0"), "s_barrier")
    stamp(k, 6)
    E(rd(0, fbuf(0)), rd(1, fbuf(1)))
    for c in range(28):
        j, cs = c // 4, c % 4
        n = c + 2
        if n % 4 == 0:
            lstamp(k, 19, 3 * (n // 4))
            E(WLG(f"q{n - 1}"), WVM(f"wq{n // 4}"))
            lstamp(k, 19, 3 * (n // 4) + 1)
            if MERGE12 and n == 24:
                E(poll_all_check(sW, SS, f"s{sT}", 16, 4, 176, 1))
            E("s_barrier")
            if MERGE12 and n == 4:
                E(f"s_lshl_b32 s{sT}, s2, 4\ns_add_u32 s{sT}, s{sT}, {WS_FP1}", flag_set(sW, SS, sT, 176))
        E(WLG(f"q{c}"))
        if cs == 0:
            E(WVM(f"xn{j}"))
            lstamp(k, 19, 3 * j + 2)
        r_ = rd(n, fbuf(n))
        ex, va = extra.get(c, []), valu.get(c, [])
        gm_ = {}
        for i in range(8):
            gm_[i] = [r_[i]] + ([ex[i // 2]] if (i % 2 == 0 and i // 2 < len(ex)) else []) + [va[z] for z in range(len(va)) if (z * 8) // len(va) == i]
        E(place([mf1(c, d, x) for d in range(4) for x in range(2)], gm_))
    E(rd(30, fbuf(30)), rd(31, fbuf(31)))
    E(f"v_mov_b32 v{vT}, {fbits(QSCALE)}\nv_mov_b32 v{vT + 1}, {fbits(QSCALE)}")
    E(f"v_add_u32 v{vT + 2}, s{sW8}, v{vL16}\nv_add_u32 v{vT + 3}, {SPARE}, v{vT + 2}\nv_add_u32 v{vT + 2}, {VB0 + 32768}, v{vT + 2}")
    E(WVM("xn7"), WLG0, "s_barrier")

    def epi(d, x):
        out = []
        for g in range(2):
            b = QACC + (x * 4 + d) * 16 + 8 * g
            out.append([I(f"v_mul_f32 v{b + i}, v{vT}, v{b + i}") for i in range(8)])
            out.append([I(f"v_cvt_pk_bf16_f32 v{b + i}, v{b + 2 * i}, v{b + 2 * i + 1}") for i in range(4)] +
                       [LG(f"ds_write_b128 v{vT + 3 - x}, {v(b, 4)} offset:{(2 * d + g) * 1024}")])
        return out

    tiles = [(d, x) for x in range(2) for d in range(4)]
    for i, (d, x) in enumerate(tiles):
        m = [mf1(c, d, x) for c in range(28, 32)]
        kv2 = (k1 + v0_)[2 * i:2 * i + 2] if MERGE12 else [v0_[i], []]
        if i == 0:
            E(m[0], kv2[0], m[1], m[2], kv2[1], m[3])
        else:
            e = epi(*tiles[i - 1])
            E(m[0], kv2[0], m[1], e[0], e[1], m[2], kv2[1], e[2], m[3], e[3])
    stamp(k, 7)
    E("s_nop 15")
    E(epi(*tiles[-1]))
    E(WVM("k0"), WVM("zs"), WLG0, "s_barrier")
    if not MERGE12:
        E(flag_set(sW, SS, sGP, ZT))
    k.zc = zc
    E(f"s_lshl_b32 s{sT}, s{sRS}, 13\nv_add_u32 v{vT + 4}, s{sT}, v{vL16}")
    E(f"v_add_u32 v{vT + 5}, {SPARE}, v{vT + 4}\nv_add_u32 v{vT + 4}, {VB0 + 32768}, v{vT + 4}")
    E(kreads(vKc, 0))
    for x in range(2):
        for f in range(8):
            E(LG(f"ds_read_b128 {a(aQ + (x * 8 + f) * 4, 4)}, v{vT + 3 - x} offset:{f * 1024}"))
    for x in range(2):
        for f in range(8):
            E(LG(f"ds_read_b128 {v(QBS + (x * 8 + f) * 4, 4)}, v{vT + 5 - x} offset:{f * 1024}"))


ZRING = (('v', 144), ('v', 192), ('a', 128), ('a', 176))
vWS = 48
vPD = 32
vPR = 40
NGS = 5


def g_slot(st):
    return (0, 1, 3, 2, 4)[st % NGS] * 32768


def zreg(st, i):
    kind, base = ZRING[st % 4]
    return (kind, base + i * 4)


def sprinkle(items, groups):
    items = flat(items)
    n, m = len(items), len(groups)
    out, gi = [], 0
    for i, it in enumerate(items):
        while gi < m and gi * n <= i * m:
            out.append(groups[gi])
            gi += 1
        out.append(it)
    return flat(out + groups[gi:])


def g_dma(st):
    out = []
    for i in range(8):
        g = []
        if i % 4 == 0:
            g += [I(f"s_add_u32 m0, s{sW8}, {g_slot(st) + (i // 4) * 4096}"), I(f"s_add_u32 s{sDO}, s{sGP}, {st * 128}")]
        g.append(VM(f"buffer_load_dwordx4 v{vPD + i}, {s(SP, 4)}, s{sDO} offen offset:{1024 * (i % 4)} lds", f"g{st}"))
        out.append(g)
    return out


def g_zl(st):
    out = []
    for f in range(3):
        for ks in range(4):
            g = []
            if ks == 0:
                g.append(I(f"s_add_u32 s{sGM}, s{sGZ}, {f * 128 * 1024 + st * 4096}"))
            g.append(VM(f"buffer_load_dwordx4 {R(zreg(st, f * 4 + ks), 4)}, v{vL16}, {s(SS, 4)}, "
                        f"s{sGM} offen offset:{1024 * ks} sc1", f"g{st}"))
            out.append(g)
    return out


def g_setup():
    o = [f"v_lshrrev_b32 v{ZT + 32}, 4, v0\nv_lshrrev_b32 v{ZT + 33}, 3, v0\nv_lshlrev_b32 v{ZT + 33}, 12, v{ZT + 33}\nv_and_b32 v{ZT + 34}, 7, v0\nv_xor_b32 v{ZT + 34}, v{ZT + 34}, v{ZT + 32}",
         f"v_lshl_add_u32 v{ZT + 35}, v{ZT + 34}, 4, v{ZT + 33}\nv_xor_b32 v{ZT + 34}, 4, v{ZT + 34}\nv_lshl_add_u32 v{ZT + 36}, v{ZT + 34}, 4, v{ZT + 33}"]
    for i in range(8):
        o.append(f"v_add_u32 v{vPD + i}, {i * 8 * 4096 - (i % 4) * 1024}, v{ZT + 35 + (i % 2)}")
    o.append(f"v_lshrrev_b32 v{ZT + 32}, 5, v0\nv_bfe_u32 v{ZT + 33}, v0, 1, 3\nv_xor_b32 v{ZT + 33}, v{ZT + 33}, v{ZT + 32}")
    o.append(f"v_and_b32 v{ZT + 34}, 31, v0\nv_lshlrev_b32 v{ZT + 34}, 7, v{ZT + 34}\nv_add_u32 v{ZT + 34}, s{sW8}, v{ZT + 34}")
    for ks in range(4):
        o.append(f"v_xor_b32 v{ZT + 35}, {2 * ks}, v{ZT + 33}\nv_lshl_add_u32 v{vPR + ks}, v{ZT + 35}, 4, v{ZT + 34}\nv_add_u32 v{vPR + 4 + ks}, 0x10000, v{vPR + ks}")
    o.append(f"s_lshl_b32 s{sGP}, s{sHD}, 18\ns_lshl_b32 s{sDO}, s{sW}, 10\ns_add_u32 s{sGP}, s{sGP}, s{sDO}")
    o.append(f"s_mul_i32 s{sGZ}, s{sPI}, 384\ns_lshl_b32 s{sGM}, s{sW}, 5\ns_add_u32 s{sGZ}, s{sGZ}, s{sGM}")
    o.append(f"s_lshl_b32 s{sGZ}, s{sGZ}, 10\ns_add_u32 s{sGZ}, s{sGZ}, {WS_Z2N}")
    return o


def merge(k, keep):
    E = k.emit
    send = 1 - keep
    t = vT
    wr = [LG(f"ds_write_b128 v{t + 4 + i // 8}, {a(aO + send * 64 + 4 * i, 4)} offset:{(i % 8) * 1024}") for i in range(16)]
    E(LG(f"ds_read_b64 {v(t + 8, 2)}, v{t + 4}", "mb"))
    d0, d1 = g_dma(0), g_dma(1)
    E(weave(pv(send, 1), d0, 0, 8))
    E(WLG("mb"))
    fac = [f"v_min_f32 v{t}, v{vNM[keep]}, v{t + 8}", f"v_sub_f32 v{t + 2}, v{t}, v{vNM[keep]}", f"v_sub_f32 v{t + 8}, v{t}, v{t + 8}",
           f"v_exp_f32 v{t + 2}, v{t + 2}", f"v_exp_f32 v{t + 8}, v{t + 8}", "s_nop 0",
           f"v_mul_f32 v{t}, v{vLs[keep][0]}, v{t + 2}", f"v_fmac_f32 v{t}, v{t + 9}, v{t + 8}", f"v_rcp_f32 v{t}, v{t}", "s_nop 0",
           f"v_mul_f32 v{t + 2}, v{t + 2}, v{t}", f"v_mul_f32 v{t + 8}, v{t + 8}, v{t}", f"v_mov_b32 v{t + 3}, v{t + 2}", f"v_mov_b32 v{t + 9}, v{t + 8}"]
    m = pv(keep, 1)
    E(m[0], d1[0], fac[:6], m[1], d1[1], fac[6:], weave(m[2:], interleave2(wr, d1[2:]), 0, 6))
    E(WLG0, "s_barrier")
    RX = S[0]
    for i in range(16):
        E(LG(f"ds_read_b128 {v(RX + 4 * i, 4)}, v{t + 6 + i // 8} offset:{(i % 8) * 1024}", f"rx{i}"))
    body = []
    for f in range(8):
        b = RX + 8 * f
        body += [I(f"v_accvgpr_read_b32 v{PB + i}, a{aO + keep * 64 + 8 * f + i}") for i in range(8)]
        body += [WLG(f"rx{2 * f + 1}")]
        body += [I(f"v_pk_mul_f32 {v(b + 2 * i, 2)}, {v(b + 2 * i, 2)}, {v(t + 8, 2)}") for i in range(4)]
        body += [I(f"v_pk_fma_f32 {v(b + 2 * i, 2)}, {v(PB + 2 * i, 2)}, {v(t + 2, 2)}, {v(b + 2 * i, 2)}") for i in range(4)]
        body += [I(f"v_cvt_pk_bf16_f32 v{PB + 8 + 4 * (f % 4) + i}, v{b + 2 * i}, v{b + 2 * i + 1}") for i in range(4)]
        body += [VM(f"buffer_store_dwordx4 {v(PB + 8 + 4 * (f % 4), 4)}, v{vL16}, {s(SS, 4)}, s{sT if f < 4 else sT2} offen offset:{1024 * (f % 4)} sc1", "cs")]
    E(sprinkle(body, g_zl(1)))


def interleave2(x, y):
    out = []
    n = max(len(x), len(y))
    for i in range(n):
        out += x[(i * len(x)) // n:((i + 1) * len(x)) // n] + y[(i * len(y)) // n:((i + 1) * len(y)) // n]
    return out


def gphase(k):
    E = k.emit

    def reads(st):
        o = g_slot(st)
        sg, off = (0, o) if o < 65536 else (1, o - 65536)
        out = []
        for ks in range(4):
            for ts in range(2):
                if off + ts * 4096 < 65536:
                    out.append(LG(f"ds_read_b128 {v(vWS + (st % 2) * 32 + (ts * 4 + ks) * 4, 4)}, v{vPR + sg * 4 + ks} "
                                  f"offset:{off + ts * 4096}", f"p{st}"))
                else:
                    out.append(LG(f"ds_read_b128 {v(vWS + (st % 2) * 32 + (ts * 4 + ks) * 4, 4)}, v{ZT + 40 + ks} "
                                  f"offset:{off - 65536 + ts * 4096}", f"p{st}"))
        return out

    def mf(st):
        return [mfma(('a', (ts * 3 + f) * 16), zreg(st, f * 4 + ks),
                     ('v', vWS + (st % 2) * 32 + (ts * 4 + ks) * 4), 0 if (st == 0 and ks == 0) else None)
                for ks in range(4) for f in range(3) for ts in range(2)]

    for ks in range(4):
        E(f"v_add_u32 v{ZT + 40 + ks}, 0x20000, v{vPR + ks}")
    E(f"s_load_dwordx2 s[64:65], s[0:1], {KA_WO}\ns_load_dwordx2 s[66:67], s[0:1], {KA_WOUT}", WLG0)
    E("s_barrier")
    E(WVM("g0"))
    stamp(k, 10)
    E(reads(0))
    sched = {st: g_dma(st + 2) + g_zl(st + 2) for st in range(6)}
    for st in range(8):
        E(WLG(f"p{st}"))
        ld = sched.get(st, [])
        m = mf(st)
        n1 = (len(ld) * 14) // 24
        first = weave(m[:14], ld[:n1], 0, 14)
        second = ([WVM(f"g{st + 1}")] + weave(m[14:], interleave2(reads(st + 1), ld[n1:]), 0, 9)) if st + 1 < 8 else m[14:]
        if st == 6:
            fin = flat([f"s_lshl_b32 s{sT}, s{sHD}, 1\ns_add_u32 s{sT}, s{sT}, s{sG}",
                        f"s_mul_i32 s{sT2}, s{sPI}, 6\ns_mul_i32 s{sGP}, s{sRS}, 3\ns_add_u32 s{sT2}, s{sT2}, s{sGP}",
                        f"s_mul_i32 s{sGP}, s{sT}, 48\ns_add_u32 s{sGP}, s{sGP}, s{sT2}\ns_lshl_b32 s{sGP}, s{sGP}, 10\ns_add_u32 s{sGP}, s{sGP}, {WS_Z1}",
                        f"s_mul_i32 s{sGZ}, s{sT}, {CTXU_STEPS}\ns_add_u32 s{sGZ}, s{sGZ}, s{sT2}\ns_add_u32 s{sGZ}, s{sGZ}, 256",
                        f"s_lshl_b32 s{sGZ}, s{sGZ}, 10\ns_add_u32 s{sGZ}, s{sGZ}, {WS_CTXU}",
                        f"s_lshl_b32 s{sT}, s{sT}, 6\nv_and_b32 v21, 31, v0\nv_lshlrev_b32 v21, 1, v21"])
            fin += [VM(f"buffer_load_dwordx4 {v(4 + 4 * i, 4)}, v{vL16}, {s(SS, 4)}, s{sGP} offen offset:{1024 * i}{SC1}", "fin") for i in range(3)]
            fin += [VM(f"buffer_load_ushort v16, v21, {s(SB, 4)}, s{sT} offen", "fin")]
            fin += flat([f"s_mov_b32 s{SQ}, s64\ns_mov_b32 s{SQ + 1}, s65\ns_mov_b32 s{SP}, s66\ns_mov_b32 s{SP + 1}, s67\ns_mov_b32 s{SP + 2}, {688 * 1024:#x}",
                         f"s_lshl_b32 s{sPF}, s2, 2\ns_add_u32 s{sPF}, s{sPF}, s{sW}\ns_lshl_b32 s{sT}, s{sPF}, 12\ns_lshl_b32 s{sPF}, s{sPF}, 10"])
            fin += [VM(f"buffer_load_dwordx4 {v(ZT + 32, 4)}, v{vL16}, {s(SQ, 4)}, s{sT} offen offset:{1024 * i}", "pf") for i in range(0 if "nowo" in EXP else 4)]
            fin += [VM(f"buffer_load_dwordx4 {v(ZT + 32, 4)}, v{vL16}, {s(SP, 4)}, s{sPF} offen", "pf")]
            fin += flat([f"v_add_u32 v20, s{sW8}, v{vL16}\nv_add_u32 v21, 0x10000, v20\ns_lshl_b32 s{sT}, s{sW}, 15\nv_add_u32 v25, s{sT}, v{vL16}"])
            for j in range(1, 4):
                fin += flat([f"s_add_u32 s{sT}, s{sW}, {j}\ns_and_b32 s{sT}, s{sT}, 3\ns_lshl_b32 s{sT}, s{sT}, 13\nv_add_u32 v{21 + j}, s{sT}, v25"])
            first = weave(m[:14], [fin[i:i + 3] for i in range(0, len(fin), 3)], 0, 14)
        if MERGE23 and st == 2:
            E(WVM("cs"), "s_barrier")
            E(f"s_lshl_b32 s{sT}, s{sPI}, 5\ns_add_u32 s{sT}, s{sT}, s{sHD}\ns_lshl_b32 s{sT}, s{sT}, 4\ns_add_u32 s{sT}, s{sT}, {WS_FCTX}")
            E(flag_set(sW, SS, sT, 17))
        if MERGE23 and st == 7:
            E(f"s_bfe_u32 s{sT}, s2, 0x10002\ns_lshl_b32 s{sT}, s{sT}, 3\ns_bfe_u32 s{sT2}, s2, 0x30003\ns_add_u32 s{sT}, s{sT}, s{sT2}\ns_sub_u32 s{sT2}, 15, s{sT}\ns_min_u32 s{sT}, s{sT}, s{sT2}")
            E(f"s_lshl_b32 s{sT}, s{sT}, 9\ns_and_b32 s{sT2}, s2, 3\ns_lshl_b32 s{sT2}, s{sT2}, 7\ns_add_u32 s{sT}, s{sT}, s{sT2}\ns_add_u32 s{sFL}, s{sT}, {WS_FCTX}")
            E(wave0(sW, [I("v_and_b32 v17, 7, v0"), I("v_lshlrev_b32 v17, 4, v17"),
                         VMG(f"buffer_load_ubyte v18, v17, {s(SS, 4)}, s{sFL} offen sc0 sc1", "poll")]))
        lstamp(k, 19, 32 + 3 * st)
        E(first)
        lstamp(k, 19, 33 + 3 * st)
        E(second[:1])
        lstamp(k, 19, 34 + 3 * st)
        E(second[1:])
    stamp(k, 11)
    E("s_nop 7")
    for d in range(4):
        E(f"s_cmp_eq_u32 s{sW}, {d}\ns_cbranch_scc1 K2_GO{d}")
        for i in range(3):
            fr = 3 * d + i
            for q in range(2):
                E(f"ds_write_b128 v{20 + d // 2}, {a(fr * 8 + 4 * q, 4)} offset:{(d % 2) * 32768 + (i * 2 + q) * 1024}")
        E(f"s_branch K2_GN{d}\nK2_GO{d}:")
        for i in range(3):
            for r in range(8):
                E(f"v_accvgpr_read_b32 v{48 + i * 32 + r}, a{(3 * d + i) * 8 + r}")
        E(f"K2_GN{d}:")
    if MERGE23:
        E(flag_poll_check(sW, SS, sFL, 17))
    E(WLG0, "s_barrier")
    for i in range(3):
        for j in range(1, 4):
            for q in range(2):
                E(LG(f"ds_read_b128 {v(48 + i * 32 + j * 8 + q * 4, 4)}, v{21 + j} offset:{(i * 2 + q) * 1024}", f"x{i}"))
    E(WVM("fin"), "v_lshlrev_b32 v16, 16, v16")
    for i in range(3):
        E(WLG(f"x{i}"))
        b = 48 + i * 32
        for r in range(8):
            E(f"v_add_f32 v{b + r}, v{b + r}, v{b + 8 + r}\nv_add_f32 v{b + 16 + r}, v{b + 16 + r}, v{b + 24 + r}")
        for r in range(8):
            E(f"v_add_f32 v{b + r}, v{b + r}, v16")
        for r in range(8):
            E(f"v_add_f32 v{b + r}, v{b + r}, v{b + 16 + r}")
        for r in range(4):
            z = 4 + 4 * i + r
            E(f"v_lshlrev_b32 v26, 16, v{z}\nv_and_b32 v27, 0xffff0000, v{z}")
            E(f"v_mul_f32 v{b + 2 * r}, v{b + 2 * r}, v26\nv_mul_f32 v{b + 2 * r + 1}, v{b + 2 * r + 1}, v27")
        for r in range(4):
            E(f"v_cvt_pk_bf16_f32 v{b + r}, v{b + 2 * r}, v{b + 2 * r + 1}")
        E(VM(f"buffer_store_dwordx4 {v(b, 4)}, v{vL16}, {s(SS, 4)}, s{sGZ} offen offset:{1024 * i} sc1", "us"))


def build(k=None):
    merged = k is not None
    if not merged:
        k = Kern("k2_kernel")
    E = k.emit
    if not merged:
        E("s_cmp_ge_u32 s2, 256\ns_cbranch_scc1 K2_END")
        code_prefetch(k, "L_CODE_END" if MERGE23 else "k3_kernel", 0, 248)
    stamp_init(k)
    stamp(k, 0)
    E(f"s_load_dwordx2 s[64:65], s[0:1], {KA_WQ}")
    E(f"s_load_dwordx4 s[72:75], s[0:1], {KA_DBG}")
    E(f"s_load_dwordx4 s[68:71], s[0:1], {KA_WSP}")
    if not merged:
        E("v_lshrrev_b32 v1, 6, v0\nv_and_b32 v0, 63, v0")
    E(f"s_and_b32 s{sHD}, s2, 7\ns_lshl_b32 s{sHD}, s{sHD}, 2\ns_lshr_b32 s{sT}, s2, 3\ns_lshr_b32 s{sPI}, s{sT}, 2")
    if not merged:
        E(f"v_readfirstlane_b32 s{sW}, v1")
    E(f"s_and_b32 s{sT}, s{sT}, 3\ns_add_u32 s{sHD}, s{sHD}, s{sT}")
    E(f"s_and_b32 s{sRS}, s{sW}, 1\ns_lshr_b32 s{sG}, s{sW}, 1\ns_lshl_b32 s{sW8}, s{sW}, 13")
    E(f"v_lshlrev_b32 v{vL16}, 4, v0")
    E("v_and_b32 v20, 31, v0\nv_lshrrev_b32 v21, 5, v0\nv_lshrrev_b32 v22, 4, v0")
    E("v_bfe_u32 v23, v0, 2, 2\nv_and_b32 v24, 3, v0\nv_bfe_u32 v25, v0, 4, 1")
    E("v_xor_b32 v26, v23, v22\nv_lshlrev_b32 v27, 13, v22\nv_lshl_add_u32 v27, v26, 6, v27\nv_lshl_add_u32 v27, v24, 4, v27")
    for i in range(4):
        E(f"v_add_u32 v{vQD + i}, {i * (32768 - 1024)}, v27")
    E(f"s_sub_u32 s{sT}, 15, s{sPI}\ns_cmp_eq_u32 s{sG}, 0\ns_cselect_b32 s{sT}, s{sT}, s{sPI}")
    E(f"s_lshl_b32 s{sTD}, s{sT}, 1\ns_add_u32 s{sTD}, s{sTD}, s{sRS}\ns_lshl_b32 s{sXN}, s{sTD}, 16\ns_add_u32 s{sXN}, s{sXN}, {WS_XN}")
    E(f"s_lshl_b32 s{sWQ}, s{sW}, 17\ns_lshl_b32 s{sT}, s{sHD}, 8\ns_add_u32 s{sWQ}, s{sWQ}, s{sT}\ns_lshl_b32 s{sWM}, s{sW}, 12")
    E("s_waitcnt lgkmcnt(0)")
    E(srd(SQ, 64, 512 * 8192), srd(SS, 74, WS_SIZE))
    if merged:
        E("s_barrier")
    for j in range(2):
        E(wq_dma(j), xn_loads(j))
    E(srd(SP, 68, 2048 * 4096), srd(SB, 70, 4096), srd(SD, 72, 256))
    E("v_lshl_add_u32 v26, v21, 3, v23\nv_lshlrev_b32 v26, 8, v26\nv_lshl_add_u32 v26, v25, 5, v26\nv_lshl_add_u32 v26, v24, 3, v26")
    for d in range(4):
        E(f"v_xor_b32 v27, {d}, v23\nv_lshl_add_u32 v{vQR + d}, v27, 6, v26\nv_add_u32 v{vQR + 4 + d}, 0x10000, v{vQR + d}")
    E(f"s_lshl_b32 s{sT}, s{sG}, 14\nv_add_u32 v{vKc}, s{sT}, v{vL16}\nv_add_u32 v{vKn}, 32768, v{vKc}\nv_add_u32 v{vVc}, {VB0}, v{vKc}\nv_mov_b32 v{vVp}, v{vVc}")
    E(f"v_lshlrev_b32 v26, 2, v21\nv_sub_u32 v{vD0}, v20, v26\nv_mov_b32 v{vNEG}, {fbits(NEG)}")
    E(f"s_lshl_b32 s{sKN}, s{sHD}, 19\ns_lshl_b32 s{sT}, s{sRS}, 13\ns_add_u32 s{sKN}, s{sKN}, s{sT}\ns_add_u32 s{sKN}, s{sKN}, {WS_KF}")
    E(f"s_lshl_b32 s{sT}, s{sPI}, 1\ns_add_u32 s{sT}, s{sT}, 2\ns_sub_u32 s{sT2}, 18, s{sT}\ns_lshl_b32 s{sT2}, s{sT2}, 14")
    E(f"s_cmp_eq_u32 s{sG}, 0\ns_cselect_b32 s{sSW}, 8, s{sT}\ns_cselect_b32 s{sJUMP}, 0x4000, s{sT2}\ns_sub_u32 s{sSW2}, s{sSW}, 2")
    E(f"s_lshl_b32 s{sFL}, s{sPI}, 8\ns_add_u32 s{sFL}, s{sFL}, {WS_FLAG2}\ns_lshl_b32 s{sPF}, s2, 2\ns_add_u32 s{sPF}, s{sPF}, s{sW}\ns_lshl_b32 s{sPF}, s{sPF}, 10")
    if "nowsp" in EXP:
        E(f"s_mov_b32 s{sPF}, 0x1000000")
    stamp(k, 5)
    rstamp(k, 19, 24)
    qproj(k)
    if MERGE12:
        E(WLG0, "s_barrier")
        E("v_and_b32 v20, 31, v0\nv_lshrrev_b32 v21, 5, v0", k.zc)
    E(VM(f"buffer_load_dwordx4 {v(ZT + 40, 4)}, v{vL16}, {s(SP, 4)}, s{sPF} offen", "pf"), f"s_add_u32 s{sPF}, s{sPF}, 0x100000")
    gm, wrapped, pin = schedule_loop()
    gmd, wrapped_d, pin_d = schedule_loop('D', pin)
    gmf, wrapped_f, pin_f = schedule_loop('F', pin)
    assert pin == pin_d and pin == pin_f
    wtxt = [it[1] for it in flat(wrapped)]
    for r in range(16):
        E(f"v_mov_b32 v{P(1, 0) + r}, 0\nv_mov_b32 v{NEGM[0] + r}, 0\nv_mov_b32 v{NEGM[1] + r}, 0")
        late = f"v_exp_f32 v{S[1] + r}, v{S[1] + r}" in wtxt
        E(f"v_mov_b32 v{S[1] + r}, {'v%d' % vNEG if late else '0'}")
    assert not any(f"v{S[0] + r}," in w or w.endswith(f"v{S[0] + r}") for w in wtxt for r in range(16))
    for r in (8, 9, 10, 11, 12, 13):
        E(f"v_mov_b32 v{r}, 0")
    E(f"v_mov_b32 v{vT}, 0x7f800000")
    for r0 in range(0, 16, 4):
        for r in range(r0, r0 + 4):
            E(f"v_cmp_gt_i32 s[{64 + 2 * (r % 4)}:{65 + 2 * (r % 4)}], {8 * (r // 4) + r % 4}, v{vD0}\nv_mov_b32 v{NEGB + r}, v{vNEG}")
        for r in range(r0, r0 + 4):
            E(f"v_cndmask_b32 v{MSK + r}, v{vT}, v{vNEG}, s[{64 + 2 * (r % 4)}:{65 + 2 * (r % 4)}]")
    E(f"s_mov_b32 s{sEV}, 0\ns_mov_b32 s{sDG}, 0")
    for x in range(2):
        E(f"s_mov_b32 s{sTH[x]}, {NINF}\ns_mov_b32 s{sLO[x]}, {NINF}")
    for i in range(8):
        E(mfma(('a', aO + 16 * i), ('v', P(1, 0)), ('v', P(1, 0)), 0))
    E(f"s_mov_b32 s{sU}, 0\ns_mov_b32 s{sTL}, 0\ns_mov_b32 s{sMK}, s{sW8}\ns_add_u32 s{sMV}, s{sW8}, {VB0 + 32768}")
    E(WLG0)
    stamp(k, 1)
    rstamp(k, 19, 26)
    def body(gm_, sf):
        diag = sf == "D"
        k.set_state(["kv"] * 16 + ["pf"], ["k"] * 8)
        main = qk(0) + qk(1) + pv(0, 1) + pv(1, 1) + qk(0, NEGB if diag else None) + qk(1) + pv(0, 0) + pv(1, 0)
        gm_[-1] = [I(f"K2_SWRET{sf}:"), WLG("k")]
        if sf:
            gm_[31] = gm_[31] + [I(f"s_cmp_eq_u32 s{sU}, s{sSW}"), I("s_cbranch_scc1 K2_FINB"), I(f"K2_FBRET{sf}:")]
        gm_[63] = gm_[63] + [I(f"s_cmp_lt_u32 s{sU}, 17"), I("s_cbranch_scc1 K2_LOOP")]
        bd = place(main, gm_)

        def drop(it):
            tx = it[1] if len(it) > 1 and isinstance(it[1], str) else ""
            if "nodma" in EXP and ("buffer_load" in tx): return True
            if "nobar" in EXP and tx == "s_barrier": return True
            if "nowait" in EXP and ("s_waitcnt" in tx or it[0] in ('wlg',)): return True
            if "noread" in EXP and tx.startswith("ds_read"): return True
            if "nobr" in EXP and ("K2_RARE" in tx or "K2_FINB" in tx): return True
            return False
        E([it for it in bd if not drop(it)])

    E(".p2align 6")
    for _ in range(int(os.environ.get("PAD", "0"))):
        E("s_nop 0")
    E("K2_LOOP:")
    if PROF and os.environ.get("PROF2"):
        E("s_memtime s[78:79]", "s_waitcnt lgkmcnt(0)", f"s_mov_b32 m0, s{sU}", "s_nop 0", "v_writelane_b32 v255, s78, m0")
    E(f"s_cmp_eq_u32 s{sU}, s{sEV}\ns_cbranch_scc1 K2_EVENT")
    body(gm, '')
    E("K2_TAIL:")
    stamp(k, 8)
    rstamp(k, 19, 28)
    if PROF:
        E(f"s_lshl_b32 s78, s2, 2\ns_add_u32 s78, s78, s{sW}\ns_lshl_b32 s78, s78, 8\ns_add_u32 s78, s78, {WS_PROF + 0x100000}\nv_lshlrev_b32 v254, 2, v0")
        E(f"buffer_store_dword v255, v254, {s(SS, 4)}, s78 offen")
    E(vreads(vVp, 1))
    gs = g_setup()
    E(gs[-2:])
    t = vT
    tl = flat(wrapped)
    for x in range(2):
        tl += flat([f"v_add_f32 v{vLs[x][0]}, v{vLs[x][0]}, v{vLs[x][1]}"])
    for x in range(2):
        tl += flat([f"v_mov_b32 v{vLs[x][1]}, v{vLs[x][0]}"])
    tl += flat([f"v_add_u32 v{t + 4}, s{sW8}, v{vL16}\nv_and_b32 v{t + 5}, 0x18000, v{vVp}"])
    for x in range(2):
        tl += flat([f"v_permlane32_swap_b32 v{vLs[x][0]}, v{vLs[x][1]}"])
    tl += flat([f"v_add_u32 v{t + 5}, v{t + 5}, v{t + 4}\nv_add_u32 v{t + 4}, {SPARE}, v{t + 4}"])
    for x in range(2):
        tl += flat([f"v_add_f32 v{vLs[x][0]}, v{vLs[x][0]}, v{vLs[x][1]}"])
    tl += [[I(f"s_cmp_eq_u32 s{sG}, 0"), I("s_cselect_b64 vcc, -1, 0")]]
    tl += flat([f"v_xor_b32 v{t + 6}, 0x4000, v{t + 4}\nv_xor_b32 v{t + 7}, 0x4000, v{t + 5}",
                f"v_cndmask_b32 v{t + 8}, v{vNM[0]}, v{vNM[1]}, vcc\nv_cndmask_b32 v{t + 9}, v{vLs[0][0]}, v{vLs[1][0]}, vcc"])
    tl += [LG(f"ds_write_b64 v{t + 6}, {v(t + 8, 2)}")]
    tl += flat(gs[:-2])
    tl += flat([f"s_sub_u32 s{sT}, 15, s{sPI}\ns_lshl_b32 s{sT}, s{sT}, 2\ns_lshl_b32 s{sT2}, s{sRS}, 1\ns_add_u32 s{sT}, s{sT}, s{sT2}\ns_add_u32 s{sT}, s{sT}, s{sG}",
                f"s_mul_i32 s{sT}, s{sT}, {CTXU_STEPS}\ns_lshl_b32 s{sT2}, s{sHD}, 3\ns_add_u32 s{sT}, s{sT}, s{sT2}",
                f"s_lshl_b32 s{sT}, s{sT}, 10\ns_add_u32 s{sT}, s{sT}, {WS_CTXU}\ns_add_u32 s{sT2}, s{sT}, 4096"])
    zz = g_zl(0)
    out_, gi = [], 0
    for i, it in enumerate(tl):
        while gi < len(zz) and gi * len(tl) <= i * len(zz):
            out_.append(zz[gi])
            gi += 1
        out_.append(it)
    E(out_, zz[gi:])
    E(WVM("pf"), WLG0, "s_barrier")
    E(f"s_cmp_eq_u32 s{sG}, 1\ns_cbranch_scc1 K2_MERGE1")
    st = (list(k.vm), list(k.lg))
    merge(k, 0)
    E("s_branch K2_G")
    k.set_state(*st)
    E("K2_MERGE1:")
    merge(k, 1)
    E("K2_G:")
    stamp(k, 3)
    gphase(k)
    if PROF and not MERGE23:
        E(WVM0)
    stamp(k, 4)
    rstamp(k, 19, 30)
    lstamp_store(k, 1, 19, 28, SS, sW)
    if PROF:
        E(f"s_mov_b32 s95, s{sPI}")
    stamp_store(k, 1, SS, sW, 208)
    if MERGE23:
        import k3
        E(f"s_mov_b64 exec, -1\ns_lshl_b32 s{sT}, s{sHD}, 3\ns_add_u32 s{sT}, s{sT}, s{sPI}\ns_lshl_b32 s{sT}, s{sT}, 4\ns_add_u32 s50, s{sT}, {WS_FU}")
        k3.build(k)
    E("K2_END:")
    E("s_endpgm")
    for x in range(2):
        for buf in range(2):
            rare_path(k, x, buf)
    hooks(k)
    body(gmd, 'D')
    E("s_branch K2_TAIL")
    body(gmf, 'F')
    E("s_branch K2_TAIL")
    if merged:
        return
    return k.text(512, 256)
```

```python
from asmlib import *
from common import *

LDS = 163840
THREADS = 256
SO, SU, SX, SOUT, SS, SD = 8, 12, 16, 20, 24, 28
sW, sT, sT2, sRBk, sCBk, sKQ, sA, sAU, sB, sBU, sW4, sQH, sMH, sP, sFL = 32, 33, 34, 35, 36, 37, 38, 39, 40, 41, 42, 43, 44, 45, 46
vL16 = 1
vBD = 2
vAR = 6
vBR = 10
FB = 32
ACC = 64
NST = 19
NSLOT = 5


def build(k=None):
    merged = k is not None
    if not merged:
        k = Kern("k3_kernel")
    E = k.emit
    SC = " sc1" if merged else ""
    if not merged:
        E("s_cmp_ge_u32 s2, 256\ns_cbranch_scc1 K3_END")
        code_prefetch(k, "L_CODE_END", 0, 140)
    stamp_init(k)
    stamp(k, 0)
    E(f"s_load_dwordx2 s[64:65], s[0:1], {KA_WO}")
    E(f"s_load_dwordx4 s[68:71], s[0:1], {KA_WOUT}")
    E(f"s_load_dwordx4 s[72:75], s[0:1], {KA_DBG}")
    E(f"s_load_dwordx2 s[66:67], s[0:1], {KA_X}")
    if not merged:
        E("v_lshrrev_b32 v1, 6, v0\nv_and_b32 v0, 63, v0")
    E(f"s_and_b32 s{sKQ}, s2, 3\ns_bfe_u32 s{sRBk}, s2, 0x10002\ns_lshl_b32 s{sRBk}, s{sRBk}, 3\ns_bfe_u32 s{sT}, s2, 0x30003\ns_add_u32 s{sRBk}, s{sRBk}, s{sT}")
    if not merged:
        E(f"v_readfirstlane_b32 s{sW}, v1")
    E(f"s_lshr_b32 s{sCBk}, s2, 6")
    E(f"v_lshlrev_b32 v{vL16}, 4, v0")
    E("v_and_b32 v20, 31, v0\nv_lshrrev_b32 v21, 5, v0\nv_lshrrev_b32 v22, 4, v0\nv_bfe_u32 v23, v0, 2, 2\nv_and_b32 v24, 3, v0\nv_bfe_u32 v25, v0, 4, 1")
    E("v_xor_b32 v26, v23, v22\nv_lshlrev_b32 v27, 10, v22\nv_lshl_add_u32 v27, v26, 6, v27\nv_lshl_add_u32 v27, v24, 4, v27")
    for i in range(4):
        E(f"v_add_u32 v{vBD + i}, {i * 3072}, v27")
    E(f"s_lshl_b32 s{sW4}, s{sW}, 12\ns_and_b32 s{sQH}, s{sW}, 1\ns_lshr_b32 s{sMH}, s{sW}, 1")
    E(f"s_lshl_b32 s{sA}, s{sRBk}, 2\ns_add_u32 s{sA}, s{sA}, s{sW}\ns_mul_i32 s{sA}, s{sA}, {CTXU_STEPS}")
    E(f"s_mul_i32 s{sT}, s{sKQ}, 12\ns_add_u32 s{sAU}, s{sA}, s{sT}\ns_add_u32 s{sAU}, s{sAU}, 256\ns_lshl_b32 s{sT}, s{sKQ}, 6\ns_add_u32 s{sA}, s{sA}, s{sT}")
    E(f"s_lshl_b32 s{sA}, s{sA}, 10\ns_add_u32 s{sA}, s{sA}, {WS_CTXU}\ns_lshl_b32 s{sAU}, s{sAU}, 10\ns_add_u32 s{sAU}, s{sAU}, {WS_CTXU}")
    E(f"s_lshl_b32 s{sT}, s{sCBk}, 8\ns_lshl_b32 s{sT2}, s{sW}, 14\ns_add_u32 s{sT}, s{sT}, s{sT2}\ns_lshl_b32 s{sB}, s{sKQ}, 20\ns_add_u32 s{sB}, s{sB}, s{sT}")
    E(f"s_mul_i32 s{sBU}, s{sKQ}, {192 * 1024}\ns_add_u32 s{sBU}, s{sBU}, s{sT}")
    E("s_waitcnt lgkmcnt(0)")
    E(srd(SO, 64, 4096 * 1024), srd(SS, 74, WS_SIZE))

    def dma(st):
        out = []
        base = (st % NSLOT) * 32768
        sa, offa = (sA, st * 4096) if st < 16 else (sAU, (st - 16) * 4096)
        srd_, sb, offb = (SO, sB, st * 65536) if st < 16 else (SU, sBU, (st - 16) * 65536)
        for i in range(4):
            g = []
            if i == 0:
                g += [I(f"s_add_u32 m0, s{sW4}, {base}"), I(f"s_add_u32 s{sT}, s{sa}, {offa}")]
            g.append(VM(f"buffer_load_dwordx4 v{vL16}, {s(SS, 4)}, s{sT} offen offset:{1024 * i}{SC} lds", f"g{st}"))
            out.append(g)
        for i in range(4):
            g = []
            if i == 0:
                g += [I(f"s_add_u32 m0, s{sW4}, {base + 16384}"), I(f"s_add_u32 s{sT}, s{sb}, {offb}")]
            g.append(VM(f"buffer_load_dwordx4 v{vBD + i}, {s(srd_, 4)}, s{sT} offen offset:{1024 * i} lds", f"g{st}"))
            out.append(g)
        return out

    def reads(c):
        st, ks = c // 4, c % 4
        byte = (st % NSLOT) * 32768
        sg, off = byte // 65536, byte % 65536
        fb = FB + (c % 2) * 16
        out = [LG(f"ds_read_b128 {v(fb + 4 * qi, 4)}, v{vAR + sg} offset:{off + qi * 4096 + ks * 1024}", f"r{c}") for qi in range(2)]
        for mi in range(2):
            for sec in range(2):
                out.append(LG(f"ds_read_b64_tr_b16 {v(fb + 8 + 4 * mi + 2 * sec, 2)}, v{vBR + sg * 2 + mi} "
                              f"offset:{off + ks * 4096 + sec * 2048}", f"r{c}"))
        return out

    def mf(c):
        fb = FB + (c % 2) * 16
        return [mfma(('v', ACC + (qi * 2 + mi) * 16), ('v', fb + 8 + 4 * mi), ('v', fb + 4 * qi), 0 if c == 0 else None)
                for mi in range(2) for qi in range(2)]

    if merged:
        E("s_barrier")
    for st in range(2):
        E(dma(st))
    E(srd(SU, 68, 688 * 1024), srd(SX, 66, 2048 * 1024), srd(SOUT, 70, 2048 * 1024), srd(SD, 72, 256))
    E(f"s_lshl_b32 s{sT}, s{sQH}, 13\nv_add_u32 v{vAR}, s{sT}, v{vL16}\nv_add_u32 v{vAR + 1}, 0x10000, v{vAR}\nv_add_u32 v{vAR + 2}, 0x20000, v{vAR}")
    E("v_lshl_add_u32 v26, v21, 2, v23\nv_lshlrev_b32 v26, 8, v26\nv_lshl_add_u32 v26, v25, 5, v26\nv_lshl_add_u32 v26, v24, 3, v26\nv_add_u32 v26, 16384, v26")
    E(f"s_lshl_b32 s{sT}, s{sMH}, 1\nv_xor_b32 v27, s{sT}, v23\nv_lshl_add_u32 v{vBR}, v27, 6, v26\nv_xor_b32 v27, 1, v27\nv_lshl_add_u32 v{vBR + 1}, v27, 6, v26")
    for sg in (1, 2):
        for mi in range(2):
            E(f"v_add_u32 v{vBR + 2 * sg + mi}, {sg * 65536}, v{vBR + mi}")
    E(f"s_lshr_b32 s{sP}, s2, 2\ns_lshl_b32 s{sP}, s{sP}, 17\ns_add_u32 s{sP}, s{sP}, {WS_PART2 if merged else WS_PART}\ns_lshr_b32 s{sFL}, s2, 2\ns_lshl_b32 s{sFL}, s{sFL}, 7\ns_add_u32 s{sFL}, s{sFL}, {WS_FLAG3}")
    E(dma(2))
    E(WVM("g0"), "s_barrier")
    stamp(k, 3)
    E(reads(0))
    pend = dma(3) + dma(4)
    NC = NST * 4
    for c in range(NC):
        E(WLG(f"r{c}"))
        if c % 4 == 3 and c + 1 < NC:
            st = c // 4
            E(WVM(f"g{st + 1}"))
            if merged and st == 10:
                E(flag_poll_check(sW, SS, 51, 140))
            E("s_barrier")
            if merged and st == 0:
                E(flag_set(sW, SS, 50, 140))
            if merged and st == 7:
                E(f"s_lshl_b32 s51, s{sRBk}, 8\ns_lshl_b32 s52, s{sKQ}, 5\ns_add_u32 s51, s51, s52\ns_add_u32 s51, s51, {WS_FU}")
                E(wave0(sW, [I("v_and_b32 v140, 1, v0"), I("v_lshlrev_b32 v140, 7, v140"), I("v_and_b32 v141, 2, v0"), I("v_lshl_add_u32 v140, v141, 3, v140"),
                             VMG(f"buffer_load_ubyte v141, v140, {s(SS, 4)}, s51 offen sc0 sc1", "poll")]))
            if st + NSLOT < NST:
                pend = pend + dma(st + NSLOT)
        r_ = reads(c + 1) if c + 1 < NC else []
        nt = 3 if len(pend) > 8 else 2
        take, pend = pend[:nt], pend[nt:]
        fill = []
        if c == NC - 8:
            xa = flat([f"s_lshl_b32 s{sT2}, s{sRBk}, 17\ns_lshl_b32 s{sT}, s{sKQ}, 15\ns_add_u32 s{sT2}, s{sT2}, s{sT}\ns_lshl_b32 s{sT}, s{sCBk}, 8",
                       f"s_add_u32 s{sT2}, s{sT2}, s{sT}\ns_lshl_b32 s{sT}, s{sW}, 6\ns_add_u32 s{sT2}, s{sT2}, s{sT}",
                       "v_lshlrev_b32 v26, 10, v20\nv_lshl_add_u32 v27, v21, 4, v26\nv_lshl_add_u32 v26, v21, 3, v26"])
            xa += [VM(f"buffer_load_dwordx2 {v(128 + 2 * i, 2)}, v26, {s(SX, 4)}, s{sT2} offen offset:{16 * i}", "x") for i in range(4)]
            fill.append(xa)
        gm_ = {0: r_[0:2] + take[0:1], 1: r_[2:4] + take[2:3], 2: r_[4:6] + take[1:2], 3: fill}
        if len(take) == 3:
            gm_[1], gm_[2] = r_[2:4] + take[1:2], r_[4:6] + take[2:3]
        E(place(mf(c), gm_))
    stamp(k, 1)
    dstamp(k, 7)
    E("s_barrier")
    E(f"s_lshl_b32 s{sT}, s{sMH}, 13\nv_add_u32 v28, s{sT}, v{vL16}\ns_lshl_b32 s{sT}, s{sMH}, 12\nv_add_u32 v31, s{sT}, v{vL16}\ns_nop 7")
    for qi in range(2):
        E(f"s_lshl_b32 s{sA}, s{sQH}, 1\ns_add_u32 s{sA}, s{sA}, {qi}\ns_cmp_eq_u32 s{sA}, s{sKQ}\ns_cbranch_scc1 K3_OWN{qi}")
        E(f"s_lshl_b32 s{sA}, s{sA}, 2\ns_add_u32 s{sA}, s{sA}, s{sKQ}\ns_lshl_b32 s{sA}, s{sA}, 13\ns_add_u32 s{sA}, s{sA}, s{sP}")
        for mi in range(2):
            b = ACC + (qi * 2 + mi) * 16
            for r in range(8):
                E(f"v_cvt_pk_bf16_f32 v{b + r}, v{b + 2 * r}, v{b + 2 * r + 1}")
            for q in range(2):
                E(f"buffer_store_dwordx4 {v(b + 4 * q, 4)}, v31, {s(SS, 4)}, s{sA} offen offset:{mi * 2048 + 1024 * q} sc1")
        E(f"s_branch K3_SENT{qi}")
        E(f"K3_OWN{qi}:")
        for mi in range(2):
            for q in range(4):
                E(f"ds_write_b128 v28, {v(ACC + (qi * 2 + mi) * 16 + 4 * q, 4)} offset:{mi * 4096 + 1024 * q}")
        E(f"K3_SENT{qi}:")
    E(WALL0, "s_barrier")
    stamp(k, 4)
    E(f"v_add_u32 v28, s{sW4}, v{vL16}\nv_mov_b32 v29, 0")
    for q in range(4):
        E(LG(f"ds_read_b128 {v(ACC + 4 * q, 4)}, v28 offset:{1024 * q}"))
    E(f"s_cmp_lg_u32 s{sW}, 0\ns_cbranch_scc1 K3_WAITED")
    E(f"v_mov_b32 v30, 1\ns_add_u32 s{sT}, s{sFL}, s{sKQ}\ns_mov_b64 exec, 1\nbuffer_store_byte v30, v29, {s(SS, 4)}, s{sT} offen sc0 sc1\ns_mov_b64 exec, -1")
    E("K3_POLL:")
    E(f"buffer_load_dword v30, v29, {s(SS, 4)}, s{sFL} offen sc0 sc1\ns_waitcnt vmcnt(0)")
    E("v_readfirstlane_b32 s47, v30\ns_cmp_eq_u32 s47, 0x01010101\ns_cbranch_scc1 K3_WAITED\ns_sleep 1\ns_branch K3_POLL")
    E("K3_WAITED:")
    E("s_barrier")
    stamp(k, 5)
    E(f"s_lshl_b32 s{sA}, s{sKQ}, 15\ns_add_u32 s{sA}, s{sA}, s{sP}\ns_lshl_b32 s{sT}, s{sW}, 11\ns_add_u32 s{sA}, s{sA}, s{sT}")
    for j in range(1, 4):
        E(f"s_add_u32 s{sT}, s{sKQ}, {j}\ns_and_b32 s{sT}, s{sT}, 3\ns_lshl_b32 s{sT}, s{sT}, 13\ns_add_u32 s{sT}, s{sT}, s{sA}")
        for q in range(2):
            E(VM(f"buffer_load_dwordx4 {v(ACC + 16 * j + 4 * q, 4)}, v{vL16}, {s(SS, 4)}, s{sT} offen offset:{1024 * q} sc1", f"pp{j}"))
    E(WLG0)
    for j in range(4):
        src = 128 if j == 0 else ACC + 16 * j
        if j:
            E(WVM(f"pp{j}"))
        for r in range(8):
            E(f"v_lshlrev_b32 v30, 16, v{src + r}\nv_and_b32 v31, 0xffff0000, v{src + r}")
            E(f"v_add_f32 v{ACC + 2 * r}, v{ACC + 2 * r}, v30\nv_add_f32 v{ACC + 2 * r + 1}, v{ACC + 2 * r + 1}, v31")
    for r in range(8):
        E(f"v_cvt_pk_bf16_f32 v{ACC + r}, v{ACC + 2 * r}, v{ACC + 2 * r + 1}")
    E("s_nop 1")
    for g in range(2):
        b = ACC + 4 * g
        E(f"v_permlane32_swap_b32 v{b}, v{b + 2}\nv_permlane32_swap_b32 v{b + 1}, v{b + 3}")
    E("s_nop 1")
    for g in range(2):
        E(VM(f"buffer_store_dwordx4 {v(ACC + 4 * g, 4)}, v27, {s(SOUT, 4)}, s{sT2} offen offset:{32 * g}"))
    if PROF:
        E(WVM0)
    stamp(k, 2)
    dstamp(k, 8)
    dstamp_store(k, SD, sW, 8)
    stamp_store(k, 2, SS, sW, 136)
    if merged:
        return
    E("K3_END:")
    E("s_endpgm")
    return k.text(160, 160)
```

```python
import sys, importlib
sys.path.insert(0, "gen")
NAME = "parallel_sum__compressed_kv_cla__mixer_gmlp__prompt"

def main(out=None, only=None):
    import k1
    import common
    kerns = [(common.KNAME if common.MERGE12 else "k1_kernel", k1, 256, 256, 163840)]
    try:
        import k2
        if common.MERGE12:
            raise ImportError
        kerns.append(("k2_kernel", k2, 256, 256, 163840))
    except ImportError:
        pass
    try:
        import k3, common
        if common.MERGE23:
            raise ImportError
        kerns.append(("k3_kernel", k3, 256, getattr(k3, "THREADS", 256), k3.LDS))
    except ImportError:
        pass
    ref = open(f"cdna_kernels/{NAME}.s.ref").read().split("\n")
    head = [l for l in ref if l.startswith(";") and "@launch" not in l and "Override launch" not in l and "grid=ceil" not in l]
    lines = list(head)
    for nm, mod, g, b, lds in kerns:
        lines.append(f"; @launch kernel={nm} grid=({g},1,1) block=({b},1,1) lds={lds}")
    lines.append('.amdgcn_target "amdgcn-amd-amdhsa--gfx950"')
    lines.append(".text")
    descs = []
    for nm, mod, g, b, lds in kerns:
        t, d = mod.build()
        lines.append(t)
        descs.append(d)
    lines.append("L_CODE_END:")
    lines.append("    s_endpgm")
    lines.append('.section .rodata,"a"')
    for d in descs:
        lines.append(".p2align 6")
        lines.append(d)
    path = out or f"cdna_kernels/{NAME}.s"
    open(path, "w").write("\n".join(lines) + "\n")
    print("wrote", path)

if __name__ == "__main__":
    main(*sys.argv[1:])
```

```python
from asmlib import *
from common import *

import os
KVST = os.environ.get("KVST", "sc1")
NOPF = os.environ.get("NOPF", "0") == "1"
EXP = os.environ.get("EXP", "")
SX, SC, SW, SI, SS, SD, SPF = 8, 12, 16, 20, 24, 28, 72
sW, sRB, sCB, sNB, sMB, sRS, sCH = 32, 33, 34, 35, 36, 37, 38
sT, sT2, sCK, sWK, sW8, sW2, sKO, sWI, sXN, sCNT, sONES, sWB, sDO = 56, 57, 58, 59, 60, 61, 62, 63, 64, 65, 66, 67, 68
sXO = 39

vCD = 1
vUD = 9
vCR = 17
vBR = 25
vL16 = 31
vF = 32
vT = 40
STG = 64
vQD, vQR, vPF = 64, 68, 76
WF = 96
ACC = (128, 192)
SLOT = 49152
UREG = (3, 4, 0, 1)


def A(ks, cs):
    return ('a', (ks * 32 + cs) * 4)


def seg_off(byte):
    return byte // 65536, byte % 65536


def a_dma(j):
    out = []
    base = (j % 3) * SLOT
    for i in range(8):
        g = []
        if i % 4 == 0:
            g += [I(f"s_add_u32 m0, s{sW8}, {base + (i // 4) * 4096}"), I(f"s_add_u32 s{sDO}, s{sCK}, {j * 128}")]
        g.append(VM(f"buffer_load_dwordx4 v{vCD + i}, {s(SC, 4)}, s{sDO} offen offset:{1024 * (i % 4)} lds", f"p{j}"))
        out.append(g)
    return out


def b_dma(j):
    out = []
    for i in range(4):
        g = []
        if i == 0:
            g += [I(f"s_add_u32 m0, s{sW2}, {(j % 3) * SLOT + 32768}"), I(f"s_add_u32 s{sDO}, s{sWB}, {j * 64 * 8192}")]
        g.append(VM(f"buffer_load_dwordx4 v{vQD + i}, {s(SW, 4)}, s{sDO} offen offset:{1024 * i} lds", f"p{j}"))
        out.append(g)
    return out


def unit_dma(u):
    out = []
    base = UREG[u] * 32768
    off = (u % 2) * 256 * 8192 + (2 + u // 2) * 128
    for i in range(8):
        g = []
        if i % 4 == 0:
            g += [I(f"s_add_u32 m0, s{sW8}, {base + (i // 4) * 4096}"), I(f"s_add_u32 s{sDO}, s{sWK}, {off}")]
        g.append(VM(f"buffer_load_dwordx4 v{vUD + i}, {s(SW, 4)}, s{sDO} offen offset:{1024 * (i % 4)} lds", f"u{u}"))
        out.append(g)
    return out


def zslot(z):
    return (z + 2) % 5


def z_dma(z, xn_only=False, w_only=False):
    out = []
    base = zslot(z) * 32768
    for p in range(2):
        if not xn_only:
            for i in range(3):
                g = []
                if i == 0:
                    g += [I(f"s_add_u32 m0, s{sW8}, {base + p * 4096}"), I(f"s_add_u32 s{sDO}, s{sWI}, {z * 64 * 2752 + p * 1376}")]
                g.append(VM(f"buffer_load_dwordx4 v{vCD + i}, {s(SI, 4)}, s{sDO} offen offset:{1024 * i} lds", f"z{z}"))
                out.append(g)
        if not w_only:
            out.append([I(f"s_add_u32 m0, s{sW8}, {base + p * 4096 + 3072}"), I(f"s_add_u32 s{sDO}, s{sXN}, {p * 32768 + z * 4096}"),
                        VM(f"buffer_load_dwordx4 v{vL16}, {s(SS, 4)}, s{sDO} offen sc1 lds", f"z{z}")])
    return out


def pa_reads(c):
    j, cs = c // 4, c % 4
    slot = j % 3
    sg, off = (0, slot * SLOT) if slot == 0 else (1, (slot - 1) * SLOT)
    out = [LG(f"ds_read_b128 {R(A(ks, c), 4)}, v{vCR + sg * 4 + cs} offset:{off + ks * 4096}", f"r{c}") for ks in range(2)]
    fb = WF + (c % 2) * 16
    for d in range(4):
        for sec in range(2):
            out.append(LG(f"ds_read_b64_tr_b16 {v(fb + 4 * d + 2 * sec, 2)}, v{vQR + sg * 4 + d} "
                          f"offset:{off + cs * 4096 + sec * 1024}", f"r{c}"))
    return out


def pa_mf(c, vtype):
    fb = WF + (c % 2) * 16
    out = []
    for d in range(4):
        for ks in range(2):
            cf, wf = A(ks, c), ('v', fb + 4 * d)
            X, Y = (cf, wf) if vtype else (wf, cf)
            out.append(mfma(('v', ACC[d // 2] + (ks * 2 + d % 2) * 16), X, Y, 0 if c == 0 else None))
    return out


def pb_reads(c):
    u = c // 16
    sg, off = seg_off(UREG[u] * 32768 + (c % 16) * 2048)
    fb = WF + (c % 4) * 8
    return [LG(f"ds_read_b64_tr_b16 {v(fb + 4 * d2 + 2 * sec, 2)}, v{vBR + sg * 2 + d2} offset:{off + sec * 512}", f"s{c}")
            for d2 in range(2) for sec in range(2)]


def pb_mf(c, vtype):
    p, cs = 2 + c // 32, c % 32
    fb = WF + (c % 4) * 8
    out = []
    for d2 in range(2):
        for ks in range(2):
            cf, wf = A(ks, cs), ('v', fb + 4 * d2)
            X, Y = (cf, wf) if vtype else (wf, cf)
            out.append(mfma(('v', ACC[p % 2] + (ks * 2 + d2) * 16), X, Y, 0 if cs == 0 else None))
    return out


def kv_epi(p, staged=False):
    out = []
    for ks in range(2):
        for d2 in range(2):
            for g in range(2):
                b = ACC[p % 2] + (ks * 2 + d2) * 16 + 8 * g
                grp = []
                if d2 == 0 and g == 0:
                    grp.append(I(f"s_add_u32 s{sT2}, s{sKO}, {(p // 2) * 64 * 8192 + ks * 8192 + (p % 2) * 4096}"))
                if staged:
                    b = STG + ((ks * 2 + d2) * 2 + g) * 4
                else:
                    grp += [I(f"v_cvt_pk_bf16_f32 v{b + i}, v{b + 2 * i}, v{b + 2 * i + 1}") for i in range(2)]
                    out.append(grp)
                    grp = [I(f"v_cvt_pk_bf16_f32 v{b + i}, v{b + 2 * i}, v{b + 2 * i + 1}") for i in range(2, 4)]
                grp.append(VM(f"buffer_store_dwordx4 {v(b, 4)}, v{vL16}, {s(SS, 4)}, s{sT2} offen offset:{(2 * d2 + g) * 1024} {KVST}", "st"))
                out.append(grp)
    return out


def XF(c):
    return A(c % 2, c // 2)


def xn_loads():
    out = []
    for c in range(32):
        g = []
        if c % 4 == 0:
            g.append(I(f"s_add_u32 s{sXO}, s{sXN}, {(c // 4) * 4096}"))
        g.append(VM(f"buffer_load_dwordx4 {R(XF(c), 4)}, v{vL16}, {s(SS, 4)}, s{sXO} offen offset:{(c % 4) * 1024} sc1", f"xn{c // 4}"))
        out.append(g)
    return out


def gelu(regs, vC0, vC1, tmp):
    out = []
    for i in range(0, len(regs), 4):
        g = regs[i:i + 4]
        t = [tmp + j for j in range(4)]
        for op in ("v_mul_f32 v{t}, v{x}, v{x}", "v_fma_f32 v{t}, v{t}, v{c1}, v{c0}", "v_mul_f32 v{t}, v{t}, v{x}",
                   "v_exp_f32 v{t}, v{t}", "v_add_f32 v{t}, 1.0, v{t}", "v_rcp_f32 v{t}, v{t}", "v_mul_f32 v{x}, v{x}, v{t}"):
            for x, tt in zip(g, t):
                out.append(op.format(t=tt, x=x, c0=vC0, c1=vC1))
    return out


def ln_code():
    o = []
    for i in range(4):
        o.append(f"v_mov_b32 v{48 + i}, 0")
    for r in range(2):
        for i in range(4):
            o.append(f"v_dot2_f32_bf16 v{48 + r}, v{40 + 4 * r + i}, s{sONES}, v{48 + r}")
            o.append(f"v_dot2_f32_bf16 v{50 + r}, v{40 + 4 * r + i}, v{40 + 4 * r + i}, v{50 + r}")
    o += ["s_nop 2", "v_permlane32_swap_b32 v48, v49", "v_permlane32_swap_b32 v50, v51", "s_nop 1",
          "v_add_f32 v48, v48, v49", "v_add_f32 v50, v50, v51", "s_nop 1",
          "v_permlane16_swap_b32 v48, v50", "s_nop 1", "v_add_f32 v48, v48, v50"]
    for sh in (8, 4, 2, 1):
        o += ["s_nop 1", f"v_add_f32_dpp v48, v48, v48 row_ror:{sh} row_mask:0xf bank_mask:0xf"]
    o += ["s_nop 1", f"v_mul_f32 v48, {fbits(1 / 512)}, v48", "s_nop 0",
          "v_readlane_b32 s40, v48, 0", "v_readlane_b32 s41, v48, 16", "v_readlane_b32 s42, v48, 32", "v_readlane_b32 s43, v48, 48",
          "s_nop 1"]
    for r in range(2):
        m, q = 40 + 2 * r, 41 + 2 * r
        a_, b_ = 52 + 2 * r, 53 + 2 * r
        o += [f"v_mov_b32 v{b_}, s{m}", f"v_mov_b32 v{a_}, s{q}", f"v_fma_f32 v{a_}, -v{b_}, v{b_}, v{a_}", f"v_max_f32 v{a_}, 0, v{a_}",
              f"v_add_f32 v{a_}, {fbits(LN_EPS)}, v{a_}", f"v_rsq_f32 v{a_}, v{a_}", "s_nop 0",
              f"v_mul_f32 v{b_}, v{b_}, v{a_}", f"v_sub_f32 v{b_}, 0, v{b_}"]
    for r in range(2):
        for i in range(4):
            x = 40 + 4 * r + i
            o += [f"v_lshlrev_b32 v56, 16, v{x}", f"v_and_b32 v57, 0xffff0000, v{x}",
                  f"v_fma_f32 v56, v56, v{52 + 2 * r}, v{53 + 2 * r}", f"v_fma_f32 v57, v57, v{52 + 2 * r}, v{53 + 2 * r}",
                  f"v_cvt_pk_bf16_f32 v{x}, v56, v57"]
    return o


def kv_phase(k, vtype):
    E = k.emit
    extra = {}

    def add(c, groups):
        extra.setdefault(c, []).extend(groups)

    def spread(c0, c1, groups):
        n = len(groups)
        for i, g in enumerate(groups):
            add(c0 + (i * (c1 - c0)) // n, [g])

    ldp = lambda sr, so, i: [VM(f"buffer_load_dwordx4 {v(vPF, 4)}, v{vL16}, {s(sr, 4)}, s{so} offen offset:{1024 * i}", "pf")]
    ldh = lambda sr, so, off: [I(f"s_add_u32 s{sT}, s{so}, {off}"), VM(f"buffer_load_dwordx4 {v(vPF, 4)}, v61, {s(sr, 4)}, s{sT} offen", "pf")]
    pf0 = [ldp(SC, 77, i) for i in range(2)] + [ldh(SPF, 76, 128 * 8192), ldh(SPF, 76, 256 * 8192)]
    pf1 = [ldh(SPF, 76, 384 * 8192)]
    pf2 = [ldh(SPF, 76, 256 + r * 128 * 8192) for r in range(4)] + [ldp(SI, 77, i) for i in range(2)]
    if "noown" in EXP:
        pf0, pf1, pf2 = [], [], []
    if "pfall" in EXP:
        pf0, pf1, pf2 = pf0 + pf1 + pf2, [], []
    if "pf01" in EXP:
        pf0, pf1 = pf0 + pf1, []
    add(1, pf1)
    if pf2:
        a_, b_ = [int(x) for x in os.environ.get("PF2", "8,20").split(",")]
        spread(a_, b_, pf2)
    ln = ln_code()
    lng = [[I(x) for x in ln[i:i + 4]] for i in range(0, len(ln), 4)]
    lng.append([LG("ds_write_b128 v58, v[40:43]"), LG("ds_write_b128 v58, v[44:47] offset:16")])
    xst = [[LG("ds_read_b128 v[40:43], v59", "xr"), LG("ds_read_b128 v[44:47], v59 offset:1024", "xr")],
           [WLG("xr"), VM(f"buffer_store_dwordx4 v[40:43], v62, {s(SS, 4)}, s69 offen sc1", "xs")],
           [I(f"v_add_u32 v62, 4096, v62"), VM(f"buffer_store_dwordx4 v[44:47], v62, {s(SS, 4)}, s69 offen sc1", "xs")]]
    if "noxs" not in EXP:
        spread(12, 15, xst)
    zf = [I("v_mov_b32 v60, 0"), I(f"s_lshl_b32 s{sT}, s{sCB}, 8"), I(f"s_add_u32 s{sT}, s{sT}, s{sRB}"), I(f"s_add_u32 s{sT}, s{sT}, {WS_FLAG2}"),
          I("s_mov_b64 exec, 1"), VMG(f"buffer_store_byte v60, v60, {s(SS, 4)}, s{sT} offen sc0 sc1", "fz")]
    for base, sh in ((WS_FCTX, 4), (WS_FU, 4), (WS_FP1, 4), (WS_FLAG3, 5)):
        zf += [I(f"s_lshl_b32 s{sT}, s2, {sh}"), I(f"s_add_u32 s{sT}, s{sT}, {base}"), VMG(f"buffer_store_dword v60, v60, {s(SS, 4)}, s{sT} offen sc0 sc1", "fz")]
    add(6, [wave0(sW, zf + [I("s_mov_b64 exec, -1")])])
    spread(0, 3, a_dma(2) + b_dma(2))
    spread(3, 11, lng)
    E(pf0)
    E(WVM("p0"), "s_barrier")
    stamp(k, 6)
    E(pa_reads(0))
    for c in range(32):
        E(WLG(f"r{c}"))
        fill = []
        if c % 4 == 3:
            j = c // 4
            lstamp(k, 63, 3 * j)
            if j < 7:
                E(WVM(f"p{j + 1}"))
            else:
                E(WVM("u0"))
            if j == 5:
                E(WVM("xs"))
            if j == 2:
                E(WLG0)
            lstamp(k, 63, 3 * j + 1)
            E("s_barrier")
            lstamp(k, 63, 3 * j + 2)
            if j + 3 < 8:
                post = a_dma(j + 3) + b_dma(j + 3)
            elif j == 5:
                post = unit_dma(0) + unit_dma(1)[:4]
            elif j == 6:
                post = unit_dma(1)[4:] + unit_dma(2)
            else:
                post = []
            if j == 5 and "noflag" not in EXP:
                post = post + [wave0(sW, [WVMG("fz")]), flag_set(sW, SD, 2, 46)]
            if j < 7:
                spread(c, c + 4, post)
        if c < 31:
            fill += pa_reads(c + 1)
            fill = interleave(fill, extra.get(c, []))
            E(weave(pa_mf(c, vtype), fill, 0, 8))
        else:
            m = pa_mf(c, vtype)
            stg = []
            for tl in range(4):
                for g in range(2):
                    b = ACC[0] + tl * 16 + 8 * g
                    stg += [I(f"v_cvt_pk_bf16_f32 v{STG + (tl * 2 + g) * 4 + i}, v{b + 2 * i}, v{b + 2 * i + 1}") for i in range(4)]
            order = [0, 2, 1, 3]
            E(m[:4], pb_reads(0), m[4], m[5])
            seq = [stg[o * 8:(o + 1) * 8] for o in order]
            E(seq[0], m[6], seq[1], m[7], pb_reads(1), seq[2], seq[3])
    stamp(k, 7)
    extra.clear()
    wi = []
    for i in range(3):
        wi.append([I(x) for x in (f"v_add_u32 v46, {64 * i}, v0", "v_mul_u32_u24 v47, 43691, v46", "v_lshrrev_b32 v47, 19, v47",
                                  "v_mul_u32_u24 v48, 12, v47")])
        wi.append([I(x) for x in ("v_sub_u32 v48, v46, v48", "v_mul_u32_u24 v47, 2752, v47", f"v_lshl_add_u32 v{vCD + i}, v48, 4, v47",
                                  f"v_subrev_u32 v{vCD + i}, {1024 * i}, v{vCD + i}")])
    wi.append([I(x) for x in (f"v_lshl_add_u32 v46, v{vF + 1}, 3, v{vF + 3}", "v_mul_u32_u24 v46, 192, v46",
                              f"v_lshl_add_u32 v46, v{vF + 5}, 5, v46", f"v_lshl_add_u32 v46, v{vF + 4}, 3, v46")])
    wi.append([I(x) for x in (f"s_lshl_b32 s{sT}, s{sCH}, 12", f"v_add_u32 v{vCR}, s{sT}, v46", f"v_add_u32 v{vCR + 1}, 0x10000, v{vCR}",
                              f"v_add_u32 v{vCR + 2}, 0x20000, v{vCR}")])
    wi.append([I(x) for x in (f"s_lshl_b32 s{sT}, s{sRS}, 12", f"s_add_u32 s{sT}, s{sT}, 3072", f"v_add_u32 v{vCR + 3}, s{sT}, v{vL16}",
                              f"v_add_u32 v{vCR + 4}, 0x10000, v{vCR + 3}", f"v_add_u32 v{vCR + 5}, 0x20000, v{vCR + 3}")])
    spread(0, 6, unit_dma(3))
    spread(0, 6, wi)
    spread(7, 13, z_dma(0, w_only=True))
    spread(0, 15, kv_epi(0, staged=True))
    spread(15, 32, kv_epi(1))
    spread(33, 64, kv_epi(2))
    if "noflag" not in EXP:
        if MERGE12:
            add(13, [poll_all_issue(sW, SD, "0", 4, 1, 50)])
            add(29, [poll_all_check(sW, SD, "0", 4, 1, 50, 0x01010101)])
        else:
            add(13, [flag_poll_issue(sW, SD, sCNT, 8, 50)])
            add(29, [flag_poll_check(sW, SD, sCNT, 50)])
    pf = [[I(f"s_mov_b32 s{SPF}, s44"), I(f"s_mov_b32 s{SPF + 1}, s45")] +
          [VM(f"buffer_load_dwordx4 v[52:55], v{vL16}, {s(SPF, 4)}, s70 offen", "pf")]]
    pf += [[VM(f"buffer_load_dwordx4 v[52:55], v{vL16}, {s(SPF, 4)}, s70 offen offset:{1024 * i}", "pf")] for i in range(1, 4)]
    if not NOPF:
        a_, b_ = [int(x) for x in os.environ.get("PFQ", "50,62").split(",")]
        spread(a_, b_, pf)
    for c in range(64):
        n = c + 2
        fill = []
        if n < 64:
            if n % 16 == 0:
                u = n // 16
                lstamp(k, 63, 21 + 3 * u)
                E(WLG(f"s{n - 1}"), WVM(f"u{u}"))
                lstamp(k, 63, 22 + 3 * u)
                E("s_barrier")
                lstamp(k, 63, 23 + 3 * u)
                if u == 1:
                    spread(c, c + 12, z_dma(1, w_only=True))
                elif u == 2:
                    spread(c, c + 14, z_dma(0, xn_only=True) + z_dma(1, xn_only=True) + z_dma(2))
                else:
                    spread(c, c + 14, z_dma(3))
            fill += pb_reads(n)
        E(WLG(f"s{c}"))
        if c == 32:
            stamp(k, 8)
        E(weave(pb_mf(c, vtype), interleave(fill, extra.get(c, [])), 0, 4))
    for c in extra:
        assert c < 64


def interleave(x, y):
    out = []
    n = max(len(x), len(y))
    for i in range(n):
        if i < len(x):
            out.append(x[i])
        if i < len(y):
            out.append(y[i])
    return out


def z_phase(k, z2):
    E = k.emit
    ZACC = ACC[0]
    LA = 3

    def fbuf(c):
        return (c % 4) * 16

    def reads(c):
        z, cs = c // 4, c % 4
        sg, off = seg_off(zslot(z) * 32768 + cs * 8192)
        fb = fbuf(c)
        out = [LG(f"ds_read_b128 {a(fb + 12, 4)}, v{vCR + 3 + sg} offset:{off}", f"y{c}")]
        out += [LG(f"ds_read_b64_tr_b16 {a(fb + 4 * f + 2 * sec, 2)}, v{vCR + sg} offset:{off + sec * 768 + f * 64}", f"y{c}")
                for f in range(3) for sec in range(2)]
        return out

    def mf(c):
        fb = fbuf(c)
        out = []
        for f in range(3):
            wf, xf = ('a', fb + 4 * f), ('a', fb + 12)
            X, Y = (xf, wf) if z2 else (wf, xf)
            out.append(mfma(('v', ZACC + 16 * f), X, Y, 0 if c == 0 else None))
        return out

    epi = kv_epi(3)
    lstamp(k, 63, 33)
    E(WVM("z0"), "s_barrier")
    lstamp(k, 63, 34)
    for c in range(LA):
        E(reads(c))
    pend = z_dma(4)
    for c in range(32):
        n = c + LA
        if n < 32 and n % 4 == 0:
            z = n // 4
            lstamp(k, 63, 33 + 3 * z)
            E(WLG(f"y{n - 1}"), WVM(f"z{z}"))
            lstamp(k, 63, 34 + 3 * z)
            E("s_barrier")
            if z + 4 < 8:
                pend = pend + z_dma(z + 4)
        E(WLG(f"y{c}"))
        r_ = reads(n) if n < 32 else []
        ZR = int(os.environ.get("ZR", "2"))
        ZE = int(os.environ.get("ZE", "16"))
        take, pend = pend[:ZR], pend[ZR:]
        gm_ = {i: r_[(i * 7) // 3:((i + 1) * 7) // 3] + take[i:i + 1] for i in range(3)}
        for e_ in range(16):
            if ZE + (e_ * (32 - ZE)) // 16 == c:
                gm_[2] = gm_[2] + [epi[e_]]
        E(place(mf(c), gm_))


def build():
    k = Kern(KNAME if MERGE12 else "k1_kernel")
    E = k.emit
    E("s_cmp_ge_u32 s2, 256\ns_cbranch_scc1 " + ("K2_END" if MERGE12 else "K1_END"))
    code_prefetch(k, "L_CODE_END", 0, 120)
    stamp_init(k)
    stamp(k, 0)
    E(f"s_load_dwordx4 s[40:43], s[0:1], {KA_X}")
    E(f"s_load_dwordx4 s[44:47], s[0:1], {KA_WUK}")
    E(f"s_load_dwordx2 s[48:49], s[0:1], {KA_WIN}")
    E(f"s_load_dwordx4 s[52:55], s[0:1], {KA_DBG}")
    E("v_lshrrev_b32 v1, 6, v0\nv_and_b32 v0, 63, v0")
    E(f"s_lshr_b32 s{sRB}, s2, 3\ns_and_b32 s{sCB}, s2, 7")
    E(f"v_readfirstlane_b32 s{sW}, v1")
    E(f"s_and_b32 s{sNB}, s{sRB}, 3\ns_lshl_b32 s{sT}, s{sCB}, 2\ns_add_u32 s{sNB}, s{sNB}, s{sT}")
    E(f"s_lshr_b32 s{sMB}, s{sRB}, 2")
    E(f"s_and_b32 s{sRS}, s{sW}, 1\ns_lshr_b32 s{sCH}, s{sW}, 1\ns_lshl_b32 s{sW8}, s{sW}, 13\ns_lshl_b32 s{sW2}, s{sW}, 12")
    f0 = vF
    E(f"v_and_b32 v{f0}, 31, v0\nv_lshrrev_b32 v{f0 + 1}, 5, v0\nv_lshrrev_b32 v{f0 + 2}, 4, v0")
    E(f"v_bfe_u32 v{f0 + 3}, v0, 2, 2\nv_and_b32 v{f0 + 4}, 3, v0\nv_bfe_u32 v{f0 + 5}, v0, 4, 1")
    E(f"v_lshlrev_b32 v{vL16}, 4, v0")
    E(f"v_lshrrev_b32 v46, 3, v0\nv_lshlrev_b32 v50, 13, v46\nv_lshlrev_b32 v46, 10, v46\nv_and_b32 v47, 7, v0\nv_xor_b32 v47, v47, v{f0 + 2}")
    E("v_lshl_add_u32 v48, v47, 4, v46\nv_xor_b32 v47, 4, v47\nv_lshl_add_u32 v49, v47, 4, v46")
    for i in range(8):
        E(f"v_add_u32 v{vCD + i}, {i * 8192 - (i % 4) * 1024}, v{48 + (i % 2)}")
    E(f"v_bfe_u32 v47, v0, 2, 1\nv_xor_b32 v47, v47, v{f0 + 5}\nv_lshl_add_u32 v50, v47, 6, v50\nv_lshl_add_u32 v50, v{f0 + 4}, 4, v50")
    for i in range(8):
        E(f"v_add_u32 v{vUD + i}, {i * 65536 - (i % 4) * 1024}, v50")
    E(f"s_lshl_b32 s{sCK}, s{sMB}, 18\ns_lshl_b32 s{sT}, s{sW}, 16\ns_add_u32 s{sCK}, s{sCK}, s{sT}")
    E(f"s_and_b32 s{sT}, s{sNB}, 15\ns_lshl_b32 s{sT}, s{sT}, 9\ns_lshl_b32 s{sWK}, s{sW}, 19\ns_add_u32 s{sWK}, s{sWK}, s{sT}")
    E(f"s_lshl_b32 s{sWB}, s{sW}, 17\ns_add_u32 s{sWB}, s{sWB}, s{sT}")
    E(f"s_lshl_b32 s{sT2}, s2, 13\ns_lshl_b32 s{sT}, s{sW}, 11\ns_add_u32 s{sT2}, s{sT2}, s{sT}")
    E(f"v_xor_b32 v46, v{f0 + 3}, v{f0 + 2}\nv_lshlrev_b32 v47, 13, v{f0 + 2}\nv_lshl_add_u32 v47, v46, 6, v47\nv_lshl_add_u32 v47, v{f0 + 4}, 4, v47")
    for i in range(4):
        E(f"v_add_u32 v{vQD + i}, {i * (32768 - 1024)}, v47")
    E("s_waitcnt lgkmcnt(0)")
    E(srd(SX, 40, 2048 * 1024), srd(SC, 42, 2048 * 1024))
    E(VM(f"buffer_load_dwordx4 v[40:43], v{vL16}, {s(SX, 4)}, s{sT2} offen", "x"))
    E(VM(f"buffer_load_dwordx4 v[44:47], v{vL16}, {s(SX, 4)}, s{sT2} offen offset:1024", "x"))
    E(f"s_cmp_lt_u32 s{sNB}, 16\ns_cselect_b32 s{SW}, s44, s46\ns_cselect_b32 s{SW + 1}, s45, s47")
    E(f"s_mov_b32 s{SW + 2}, {512 * 8192:#x}\ns_mov_b32 s{SW + 3}, 0x20000")
    for j in range(2):
        E(a_dma(j), b_dma(j))
    E(srd(SI, 48, 512 * 2752), srd(SS, 54, WS_SIZE), srd(SD, 52, 256))
    E(f"s_lshl_b32 s{sT}, s2, 2\ns_add_u32 s{sT}, s{sT}, s{sW}\ns_lshl_b32 s70, s{sT}, 12\ns_lshl_b32 s77, s{sT}, 11\ns_and_b32 s76, s77, 0xfffff")
    E(f"s_cmp_lt_u32 s2, 128\ns_cselect_b32 s{SPF}, s44, s46\ns_cselect_b32 s{SPF + 1}, s45, s47\ns_mov_b32 s{SPF + 2}, {512 * 8192:#x}\ns_mov_b32 s{SPF + 3}, 0x20000")
    E(f"v_lshlrev_b32 v61, 9, v{f0 + 2}\nv_and_b32 v48, 15, v0\nv_lshl_add_u32 v61, v48, 4, v61")
    E(f"s_load_dwordx2 s[44:45], s[0:1], {KA_WQ}")
    E(f"v_bfe_u32 v48, v0, 1, 3\nv_xor_b32 v48, v48, v{f0 + 1}\nv_lshlrev_b32 v49, 7, v{f0}\nv_add_u32 v49, s{sW8}, v49")
    for k16 in range(4):
        E(f"v_xor_b32 v50, {2 * k16}, v48\nv_lshl_add_u32 v{vCR + k16}, v50, 4, v49\nv_add_u32 v{vCR + 4 + k16}, {SLOT}, v{vCR + k16}")
    E(f"v_lshl_add_u32 v48, v{f0 + 1}, 3, v{f0 + 3}\nv_lshlrev_b32 v48, 8, v48\nv_lshl_add_u32 v48, v{f0 + 5}, 5, v48\nv_lshl_add_u32 v48, v{f0 + 4}, 3, v48\nv_add_u32 v48, 32768, v48")
    for d in range(4):
        E(f"v_xor_b32 v49, {d}, v{f0 + 3}\nv_lshl_add_u32 v{vQR + d}, v49, 6, v48\nv_add_u32 v{vQR + 4 + d}, {SLOT}, v{vQR + d}")
    E(f"v_lshl_add_u32 v48, v{f0 + 1}, 3, v{f0 + 3}\nv_lshlrev_b32 v48, 7, v48\nv_lshl_add_u32 v48, v{f0 + 5}, 5, v48\nv_lshl_add_u32 v48, v{f0 + 4}, 3, v48")
    E(f"v_lshrrev_b32 v49, 1, v{f0 + 3}\nv_lshl_add_u32 v{vBR}, v49, 6, v48\nv_xor_b32 v49, 1, v49\nv_lshl_add_u32 v{vBR + 1}, v49, 6, v48")
    for sg in (1, 2):
        for d2 in range(2):
            E(f"v_add_u32 v{vBR + 2 * sg + d2}, {sg * 65536}, v{vBR + d2}")
    E(f"s_lshl_b32 s{sKO}, s{sNB}, 7\ns_lshl_b32 s{sT}, s{sMB}, 3\ns_add_u32 s{sKO}, s{sKO}, s{sT}\ns_lshl_b32 s{sT}, s{sW}, 1\ns_add_u32 s{sKO}, s{sKO}, s{sT}")
    E(f"s_lshl_b32 s{sKO}, s{sKO}, 13\ns_add_u32 s{sKO}, s{sKO}, {WS_KF}")
    E(f"s_mul_i32 s{sWI}, s{sW}, {16 * 2752}\ns_mul_i32 s{sT}, s{sCB}, 192\ns_add_u32 s{sWI}, s{sWI}, s{sT}")
    E(f"s_lshl_b32 s{sXN}, s{sRB}, 16\ns_lshl_b32 s{sT}, s{sW}, 10\ns_add_u32 s{sXN}, s{sXN}, s{sT}\ns_add_u32 s{sXN}, s{sXN}, {WS_XN}")
    E(f"s_lshl_b32 s{sCNT}, s{sRB}, 3\ns_mov_b32 s{sONES}, 0x3f803f80")
    E(f"s_lshr_b32 s{sT2}, s2, 2\ns_lshl_b32 s{sT2}, s{sT2}, 15\ns_and_b32 s{sT}, s2, 3\ns_lshl_b32 s{sT}, s{sT}, 7\ns_add_u32 s{sT2}, s{sT2}, s{sT}")
    E(f"s_add_u32 s{sT2}, s{sT2}, s{sW8}\ns_add_u32 s69, s{sT2}, {WS_XN}")
    E(f"s_lshl_b32 s{sT}, s{sW}, 5\ns_add_u32 s{sT}, s{sT}, {3 * SLOT}\nv_lshlrev_b32 v58, 7, v0\nv_add_u32 v58, s{sT}, v58")
    E(f"s_lshl_b32 s{sT}, s{sW}, 11\ns_add_u32 s{sT}, s{sT}, {3 * SLOT}\nv_add_u32 v59, s{sT}, v{vL16}")
    E("v_lshrrev_b32 v62, 3, v0\nv_lshlrev_b32 v62, 9, v62\nv_and_b32 v48, 7, v0\nv_lshl_add_u32 v62, v48, 4, v62")
    E("s_waitcnt lgkmcnt(0)")
    stamp(k, 1)
    E(f"s_cmp_ge_u32 s{sNB}, 16\ns_cbranch_scc1 K1_V")
    st = (list(k.vm), list(k.lg))
    kv_phase(k, False)
    E("s_branch K1_Z")
    k.set_state(*st)
    E("K1_V:")
    kv_phase(k, True)
    E("K1_Z:")
    stamp(k, 2)
    E(f"s_cmp_eq_u32 s{sCH}, 1\ns_cbranch_scc1 K1_Z2")
    st = (list(k.vm), list(k.lg))
    ZACC = ACC[0]
    zr = list(range(ZACC, ZACC + 48))
    z_phase(k, False)
    stamp(k, 3)
    E(f"s_lshl_b32 s{sT}, s{sRB}, 1\ns_add_u32 s{sT}, s{sT}, s{sRS}\ns_mul_i32 s{sT}, s{sT}, 48")
    E(f"s_mul_i32 s{sT2}, s{sCB}, 6\ns_add_u32 s{sT}, s{sT}, s{sT2}\ns_lshl_b32 s{sT}, s{sT}, 10")
    E(f"s_add_u32 s96, s{sT}, {WS_Z1}\ns_add_u32 s97, s96, 4096\ns_nop 7")
    E(f"s_cmp_lg_u32 s{sCB}, 7\ns_cbranch_scc1 K1_ZJOIN")
    for r in zr[8:]:
        E(f"v_mov_b32 v{r}, 0")
    E("s_branch K1_ZJOIN")
    k.set_state(*st)
    E("K1_Z2:")
    z_phase(k, True)
    stamp(k, 3)
    E(f"s_mul_i32 s{sT}, s{sCB}, 384\ns_lshl_b32 s{sT2}, s{sRB}, 2\ns_add_u32 s{sT}, s{sT}, s{sT2}")
    E(f"s_lshl_b32 s{sT2}, s{sRS}, 1\ns_add_u32 s{sT}, s{sT}, s{sT2}\ns_lshl_b32 s{sT}, s{sT}, 10\ns_add_u32 s96, s{sT}, {WS_Z2R}")
    E(f"s_lshl_b32 s{sT}, s{sRB}, 1\ns_add_u32 s{sT}, s{sT}, s{sRS}\ns_lshl_b32 s{sT}, s{sT}, 11\ns_add_u32 s{sT}, s{sT}, {WS_STAT}")
    E(f"s_lshl_b32 s{sT2}, s{sCB}, 8\ns_add_u32 s97, s{sT}, s{sT2}")
    E(f"s_cmp_lg_u32 s{sCB}, 7\ns_cbranch_scc1 K1_ZJOIN")
    E(f"v_cmp_gt_u32 vcc, 16, v{vF}\ns_nop 1")
    for r in zr[:16]:
        E(f"v_cndmask_b32 v{r}, 0, v{r}, vcc")
    for r in zr[16:]:
        E(f"v_mov_b32 v{r}, 0")
    E("K1_ZJOIN:")
    stamp(k, 4)
    stamp(k, 5)
    lstamp_store(k, 0, 63, 59, SS, sW)
    stamp_store(k, 0, SS, sW, 96)
    import k2
    E("s_mov_b64 exec, -1")
    k2.build(k)
    return k.text(512, 256)


def z_epilogue(z2, SS_, vL, vr, vh, srs, scr):
    ZACC = ACC[0]
    T = 48
    o = flat([f"v_mov_b32 v{T + 4}, {fbits(GELU_C0)}\nv_mov_b32 v{T + 5}, {fbits(GELU_C1)}"])
    if not z2:
        for fg in range(6):
            b = ZACC + 8 * fg
            o += flat(gelu(list(range(b, b + 8)), T + 4, T + 5, T))
            o += [I(f"v_cvt_pk_bf16_f32 v{b + i}, v{b + 2 * i}, v{b + 2 * i + 1}") for i in range(4)]
            o.append(VM(f"buffer_store_dwordx4 {v(b, 4)}, v{vL}, {s(SS_, 4)}, s{96 if fg < 4 else 97} offen offset:{1024 * (fg % 4)} sc1", "zo"))
        o.append(VM(f"buffer_load_dword v252, v{vL}, {s(SS_, 4)}, s98 offen", "zo"))
        return o
    o += flat(gelu(list(range(ZACC, ZACC + 48)), T + 4, T + 5, T))
    o += flat([f"s_mul_i32 s98, s{srs}, 9216\ns_add_u32 s98, s98, {scr}",
               f"v_mul_u32_u24 v{T + 6}, {4 * 144}, v{vh}\nv_lshl_add_u32 v{T + 6}, v{vr}, 2, v{T + 6}\nv_add_u32 v{T + 6}, s98, v{T + 6}",
               f"v_mul_u32_u24 v{T + 7}, 144, v0\nv_add_u32 v{T + 7}, s98, v{T + 7}"])
    for r in range(16):
        z0, z1, z2_ = ZACC + r, ZACC + 16 + r, ZACC + 32 + r
        a_, b_ = T + 8 + 2 * (r % 4), T + 9 + 2 * (r % 4)
        srow = 8 * (r // 4) + r % 4
        o += flat([f"v_add_f32 v{a_}, v{z0}, v{z1}\nv_mul_f32 v{b_}, v{z0}, v{z0}\nv_add_f32 v{a_}, v{a_}, v{z2_}\nv_fmac_f32 v{b_}, v{z1}, v{z1}\nv_fmac_f32 v{b_}, v{z2_}, v{z2_}"])
        o += [LG(f"ds_write_b32 v{T + 6}, v{a_} offset:{srow * 144}"), LG(f"ds_write_b32 v{T + 6}, v{b_} offset:{(32 + srow) * 144}")]
    SQ = 64
    o += [LG(f"ds_read_b128 {v(SQ + 4 * i, 4)}, v{T + 7} offset:{16 * i}", "zq") for i in range(8)]
    for f in range(3):
        for g in range(2):
            b = ZACC + 16 * f + 8 * g
            o += [I(f"v_cvt_pk_bf16_f32 v{b + i}, v{b + 2 * i}, v{b + 2 * i + 1}") for i in range(4)]
            o += flat([f"s_nop 1\nv_permlane32_swap_b32 v{b}, v{b + 2}\nv_permlane32_swap_b32 v{b + 1}, v{b + 3}\ns_nop 1"])
            o.append(VM(f"buffer_store_dwordx4 {v(b, 4)}, v{vL}, {s(SS_, 4)}, s96 offen offset:{1024 * g} sc1", "zo"))
        if f < 2:
            o.append(I(f"s_add_u32 s96, s96, {128 * 1024}"))
    o += [I(f"v_lshlrev_b32 v{T + 6}, 2, v0"), WLG("zq")]
    for stride in (16, 8, 4, 2, 1):
        o += [I(f"v_add_f32 v{SQ + i}, v{SQ + i}, v{SQ + stride + i}") for i in range(stride)]
    o.append(VM(f"buffer_store_dword v{SQ}, v{T + 6}, {s(SS_, 4)}, s97 offen sc1", "zo"))
    return o
```

```python
from asmlib import *
from common import *
import os

THRESH = float(os.environ.get("THRESH", "32.0"))
BUDGET = int(os.environ.get("BUDGET", "25"))
EXP = os.environ.get("EXP2", "")

SQ, SP, SB, SS, SD = 8, 12, 16, 20, 24
sW, sHD, sPI, sG, sRS = 32, 33, 34, 35, 36
sT, sT2, sU, sSW, sSW2, sJUMP, sTL, sTD = 37, 38, 39, 40, 41, 42, 43, 44
sKN, sKO2, sVO, sVO2, sMK, sMV = 45, 46, 47, 48, 49, 50
sTH = (51, 52)
sLO = (53, 54)
sXN, sWQ, sWM, sW8, sDO = 55, 56, 57, 59, 58
sGP, sGZ, sGM, sFL, sPF, sEV, sDG = 60, 61, 62, 63, 76, 77, 31
NINF = "0xff800000"
SC1 = " sc1" if MERGE12 else ""

vL16, vKc, vKn, vVp, vVc, vD0, vNEG = 1, 2, 3, 4, 5, 6, 7
vLs = ((8, 9), (10, 11))
vNM = (12, 13)
vM = 14
vLSV = (30, 31)
vT = 20
vQD = 32
vQR = 36
S = (48, 64)
NEGM = (80, 96)
PB = 112
QBS = 144
ZT = 208
NEGB = 208
MSK = 224
vPL = 240
aO, aQ, aK, aV = 0, 128, 192, 224

KB0, VB0, SPARE = 0, 65536, 131072
NEG = -1.0e30


def P(buf, x, i=0):
    return PB + (buf * 2 + x) * 8 + i


def dma4(so, tag="kv"):
    return [VM(f"buffer_load_dwordx4 v{vL16}, {s(SS, 4)}, s{so} offen offset:{1024 * i}{SC1} lds", tag) for i in range(4)]


def qk(x, cin=None):
    return [mfma(('v', S[x]), ('a', aK + 4 * d), ('a', aQ + (x * 8 + d) * 4), ('v', NEGM[x] if cin is None else cin) if d == 0 else None)
            for d in range(8)]


def pv(x, buf):
    return [mfma(('a', aO + (x * 4 + ds) * 16), ('a', aV + (ds * 2 + g) * 4), ('v', P(buf, x, 4 * g)))
            for g in range(2) for ds in range(4)]


def kreads(areg, th):
    return [LG(f"ds_read_b128 {a(aK + 4 * d, 4)}, v{areg} offset:{th * 8192 + d * 1024}", "k") for d in range(8)]


def vreads(areg, th):
    return [LG(f"ds_read_b128 {a(aV + 4 * f, 4)}, v{areg} offset:{th * 8192 + f * 1024}", "v") for f in (0, 2, 4, 6, 1, 3, 5, 7)]


def sm_max(x):
    b, m = S[x], vM
    return [(4, I(t)) for t in (
        f"v_max3_f32 v{m}, v{b}, v{b + 1}, v{b + 2}", f"v_max3_f32 v{m + 1}, v{b + 3}, v{b + 4}, v{b + 5}",
        f"v_max3_f32 v{m + 2}, v{b + 6}, v{b + 7}, v{b + 8}", f"v_max3_f32 v{m + 3}, v{b + 9}, v{b + 10}, v{b + 11}",
        f"v_max3_f32 v{m + 4}, v{b + 12}, v{b + 13}, v{b + 14}", f"v_max3_f32 v{m}, v{m}, v{m + 1}, v{b + 15}",
        f"v_max3_f32 v{m + 2}, v{m + 2}, v{m + 3}, v{m + 4}", f"v_max_f32 v{m}, v{m}, v{m + 2}")]


def sm_chk(x, buf):
    return (8, [I(f"v_cmp_lt_f32 vcc, s{sTH[x]}, v{vM}"), I(f"s_cbranch_vccnz K2_RARE_{x}_{buf}"), I(f"K2_RET_{x}_{buf}:")])


def sm_fin(x, buf, i):
    b = S[x]
    return [(4, I(f"v_add_f32 v{vLs[x][0]}, v{vLs[x][0]}, v{b + 2 * i}")),
            (4, I(f"v_add_f32 v{vLs[x][1]}, v{vLs[x][1]}, v{b + 2 * i + 1}")),
            (4, I(f"v_cvt_pk_bf16_f32 v{P(buf, x, i)}, v{b + 2 * i}, v{b + 2 * i + 1}"))]


def sm_exp(x, buf):
    b = S[x]
    items = []
    for i in range(8):
        items.append((8, I(f"v_exp_f32 v{b + 2 * i}, v{b + 2 * i}")))
        items.append((8, I(f"v_exp_f32 v{b + 2 * i + 1}, v{b + 2 * i + 1}")))
        if i > 0:
            items += sm_fin(x, buf, i - 1)
    return items + sm_fin(x, buf, 7)


CAP = int(os.environ.get("CAP", "24"))


def schedule_loop(var='', pin=None):
    NG = 64
    T = NG + 16
    mem = [[] for _ in range(T)]
    alu = [[] for _ in range(T)]
    used = [0] * NG
    sfx = var
    diag, first = var == 'D', var == 'F'

    def fixed(g, cost, item, is_mem=True):
        (mem if is_mem else alu)[g].append(item)
        used[g % NG] += cost

    def spread_mem(g0, n, items):
        for i, r in enumerate(items):
            fixed(g0 + (i * n) // len(items), 4, r)

    spread_mem(0, 13, vreads(vVp, 1))
    spread_mem(16, 10, kreads(vKc, 1))
    spread_mem(32, 13, vreads(vVc, 0))
    spread_mem(48, 13, kreads(vKn, 0))
    BAR = int(os.environ.get("BAR", "27"))
    fixed(BAR, 8, [I("s_waitcnt vmcnt(1) lgkmcnt(0)"), ('reset',), I("s_barrier")])
    g = BAR + 1
    dgaps = []
    for so in (sKN, sKO2, sVO, sVO2):
        for d in dma4(so):
            fixed(g, 8, d)
            dgaps.append(g)
            g += 2
    fixed(g, 8, VM(f"buffer_load_dwordx4 {v(ZT + 40, 4)}, v{vL16}, {s(SP, 4)}, s{sPF} offen", "pf"))
    gpf = g
    tail = {15: [WLG("v")], 47: [WLG("v")], 63: []}
    for g_ in (15, 47):
        used[g_] += 4
    used[63] += 4 + 13 + 13
    if var:
        used[31] += 13
    jobs = []

    def job(name, cost, item, e, l, deps=(), later=None):
        jobs.append(dict(name=name, cost=cost, item=item, e=e, l=l, deps=list(deps), later=later))

    job("vo", 4, I(f"s_add_u32 s{sVO}, s{sKN}, {WS_VF - WS_KF}"), 0, BAR - 2)
    job("vo2", 4, I(f"s_add_u32 s{sVO2}, s{sKN}, {WS_VF - WS_KF + 4096}"), 0, BAR - 2)
    job("kn", 12, [I(f"s_cmp_eq_u32 s{sU}, s{sSW2}"), I(f"s_cselect_b32 s{sKO2}, s{sJUMP}, 0x4000"), I(f"s_add_u32 s{sKN}, s{sKN}, s{sKO2}")],
        0, BAR - 1, ["vo", "vo2"])
    job("ko2", 4, I(f"s_add_u32 s{sKO2}, s{sKN}, 4096"), 0, BAR, ["kn"])
    job("m0a", 4, I(f"s_mov_b32 m0, s{sMK}"), 0, BAR)
    job("m0b", 4, I(f"s_add_u32 m0, s{sMK}, 4096"), dgaps[3], dgaps[4] - 1)
    job("m0c", 4, I(f"s_mov_b32 m0, s{sMV}"), dgaps[7], dgaps[8] - 1)
    job("m0d", 4, I(f"s_add_u32 m0, s{sMV}, 4096"), dgaps[11], dgaps[12] - 1)
    job("pfa", 4, I(f"s_add_u32 s{sPF}, s{sPF}, 0x100000"), gpf, 63)
    job("xk", 4, I(f"s_xor_b32 s{sMK}, s{sMK}, 0x8000"), dgaps[4], 63, ["m0b"])
    job("xv", 4, I(f"s_xor_b32 s{sMV}, s{sMV}, 0x8000"), dgaps[12], 63, ["m0d"])
    job("vp", 4, I(f"v_mov_b32 v{vVp}, v{vVc}"), 13, 44)
    job("vc", 4, I(f"v_xor_b32 v{vVc}, 0x8000, v{vVc}"), 45, 63, ["vp"])
    job("kc", 4, I(f"v_xor_b32 v{vKc}, 0x8000, v{vKc}"), 26, 63)
    job("kx", 4, I(f"v_xor_b32 v{vKn}, 0x8000, v{vKn}"), 61, 63)
    job("tl", 4, I(f"s_add_u32 s{sTL}, s{sTL}, 1"), 56, 63)
    job("u", 4, I(f"s_add_u32 s{sU}, s{sU}, 1"), 32, 63)
    for half in range(2):
        G = 8 + 32 * half
        for x in range(2):
            e0 = G + 1 + 8 * x
            pre = f"{half}{x}"
            prev = [f"{half}0chk"] if x == 1 else []
            if diag and half == x:
                for r in range(16):
                    job(f"{pre}mk{r}", 4, I(f"v_min_f32 v{S[x] + r}, v{S[x] + r}, v{MSK + r}"), e0, e0 + 4, prev)
                prev = prev + [f"{pre}mk{r}" for r in range(16)]
            for i, (c, it) in enumerate(sm_max(x)):
                job(f"{pre}m{i}", c, it, e0, e0 + 5, prev + ([f"{pre}m{i - 1}"] if i else []))
            dl = G + 23 + 8 * x
            b_ = S[x]
            if first and half == 0:
                d_ = vT + x
                job(f"{pre}f0", 4, I(f"v_mov_b32 v{d_}, v{vM}"), e0, e0 + 8, [f"{pre}m7"])
                job(f"{pre}f1", 8, [I("s_nop 0"), I(f"v_permlane32_swap_b32 v{vM}, v{d_}")], e0, e0 + 9, [f"{pre}f0"], later=f"{pre}f0")
                job(f"{pre}chk", 12, [I(f"v_max_f32 v{d_}, v{d_}, v{vM}"), I(f"v_ceil_f32 v{d_}, v{d_}"), I(f"v_sub_f32 v{vNM[x]}, 0, v{d_}")],
                    e0, e0 + 10, [f"{pre}f1"], later=f"{pre}f1")
                job(f"{pre}ls", 12, [I(f"v_add_f32 v{vLSV[x]}, v{vLs[x][0]}, v{vLs[x][1]}"), I(f"v_mov_b32 v{vLs[x][0]}, 0"), I(f"v_mov_b32 v{vLs[x][1]}, 0")],
                    e0, e0 + 8)
                for r in range(16):
                    job(f"{pre}s{r}", 4, I(f"v_sub_f32 v{b_ + r}, v{b_ + r}, v{d_}"), e0, dl - 2, [f"{pre}chk", f"{pre}ls"])
                    job(f"{pre}n{r}", 4, I(f"v_mov_b32 v{NEGM[x] + r}, v{vNM[x]}"), e0, dl - 1, [f"{pre}chk"])
            else:
                job(f"{pre}cmp", 4, I(f"v_cmp_lt_f32 vcc, s{sTH[x]}, v{vM}"), e0, e0 + 5, [f"{pre}m7"])
                job(f"{pre}chk", 9, [I(f"s_cbranch_vccnz K2_RARE_{x}_{half}"), I(f"K2_RET{sfx}_{x}_{half}:")],
                    e0, e0 + 6, [f"{pre}cmp"], later=f"{pre}cmp")
            for r in range(16):
                job(f"{pre}e{r}", 8, I(f"v_exp_f32 v{b_ + r}, v{b_ + r}"), e0, dl - 1,
                    [f"{pre}s{r}" if (first and half == 0) else f"{pre}chk"] + ([f"{pre}e{r - 1}"] if r else []))
            for i in range(8):
                f3 = sm_fin(x, half, i)
                job(f"{pre}a{2 * i}", 4, f3[0][1], e0, dl, [f"{pre}e{2 * i + 1}"])
                job(f"{pre}a{2 * i + 1}", 4, f3[1][1], e0, dl, [f"{pre}a{2 * i}"])
                job(f"{pre}c{i}", 4, f3[2][1], e0, dl, [f"{pre}a{2 * i + 1}"])
    if pin is not None:
        for j in jobs:
            if j['name'] in pin:
                j['e'] = j['l'] = pin[j['name']]
            else:
                j['l'] = min(j['l'], 63)
    done = {}
    rest = list(jobs)
    order = list(range(9, NG + 9))
    remaining = sum(j['cost'] for j in jobs)
    for gi, g in enumerate(order):
        gm_ = g % NG
        free_after = sum(max(0, CAP - used[h % NG]) for h in order[gi + 1:])
        while True:
            cand = []
            for j in rest:
                e, l = j['e'], j['l']
                if l < 9 or (e < 9 and j['name'][0] not in "01" and False):
                    e, l = e + NG, l + NG
                if e <= g and all(d in done for d in j['deps']) and (j['later'] is None or done[j['later']] < g):
                    cand.append((l, j))
            if not cand:
                break
            cand.sort(key=lambda z: z[0])
            room = CAP - used[gm_]
            pick = None
            for l, j in cand:
                if j['cost'] <= room:
                    pick = j
                    break
            if pick is None:
                urgent = [j for l, j in cand if l <= g]
                if urgent:
                    pick = urgent[0]
                elif remaining > free_after and room > -4 and room + 4 >= min(j['cost'] for _, j in cand):
                    pick = min((j for _, j in cand), key=lambda j: j['cost'])
                else:
                    break
            alu[g].append(pick['item'])
            used[gm_] += pick['cost']
            remaining -= pick['cost']
            done[pick['name']] = g
            rest.remove(pick)
    assert not rest, [j['name'] for j in rest]
    for j in jobs:
        l = j['l'] + (NG if j['l'] < 9 else 0)
        assert done[j['name']] <= l, (j['name'], done[j['name']], l)
    est = sum(max(32, 8 + u) for u in used)
    if os.environ.get("SCHED"):
        print("loop estimate", est, used)
    wrapped = []
    for g in range(NG, T):
        wrapped += [it for it in alu[g] if "v_" in str(it) and "s_cselect" not in str(it)]
    gm = {}
    for g in range(NG):
        gm[g] = mem[g] + (alu[g + NG] if g + NG < T else []) + alu[g] + tail.get(g, [])
    return gm, wrapped, {n: g for n, g in done.items() if g >= NG}


def rare_ret(L):
    r = f"s_cmp_eq_u32 s{sDG}, 0\ns_cbranch_scc1 K2_RET_{L}\n"
    if L.endswith("_1"):
        r += f"s_cmp_eq_u32 s{sDG}, 2\ns_cbranch_scc1 K2_RETF_{L}\n"
    return r + f"s_branch K2_RETD_{L}"


def rare_path(k, x, buf):
    E = k.emit
    t = vT
    L = f"{x}_{buf}"
    E(f"K2_RARE_{L}:")
    E(f"s_mov_b32 s{sTH[x]}, {fbits(THRESH)}")
    E(f"v_mov_b32 v{t}, v{vM}\ns_nop 1\nv_permlane32_swap_b32 v{vM}, v{t}\ns_nop 1")
    E(f"v_max_f32 v{t}, v{t}, v{vM}\nv_ceil_f32 v{t}, v{t}\nv_max_f32 v{t}, s{sLO[x]}, v{t}")
    E(f"v_sub_f32 v{vNM[x]}, v{vNM[x]}, v{t}")
    for r in range(16):
        E(f"v_sub_f32 v{S[x] + r}, v{S[x] + r}, v{t}")
        E(f"v_mov_b32 v{NEGM[x] + r}, v{vNM[x]}")
    E(f"s_cmp_eq_u32 s{sLO[x]}, 0\ns_cbranch_scc1 K2_RSC_{L}")
    E(f"v_add_f32 v{vLSV[x]}, v{vLs[x][0]}, v{vLs[x][1]}\nv_mov_b32 v{vLs[x][0]}, 0\nv_mov_b32 v{vLs[x][1]}, 0")
    E(f"s_mov_b32 s{sLO[x]}, 0", rare_ret(L))
    E(f"K2_RSC_{L}:")
    E(f"v_sub_f32 v{t + 1}, 0, v{t}\nv_exp_f32 v{t + 1}, v{t + 1}\ns_nop 0")
    E(f"v_mul_f32 v{vLs[x][0]}, v{vLs[x][0]}, v{t + 1}\nv_mul_f32 v{vLs[x][1]}, v{vLs[x][1]}, v{t + 1}")
    for i in range(8):
        p = P(1 - buf, x, i)
        E(f"v_lshlrev_b32 v{t + 2}, 16, v{p}\nv_and_b32 v{t + 3}, 0xffff0000, v{p}")
        E(f"v_mul_f32 v{t + 2}, v{t + 2}, v{t + 1}\nv_mul_f32 v{t + 3}, v{t + 3}, v{t + 1}")
        E(f"v_cvt_pk_bf16_f32 v{p}, v{t + 2}, v{t + 3}")
    E("s_nop 15")
    for r in range(0, 64, 4):
        for i in range(4):
            E(f"v_accvgpr_read_b32 v{t + 2 + i}, a{aO + x * 64 + r + i}")
        for i in range(4):
            E(f"v_mul_f32 v{t + 2 + i}, v{t + 2 + i}, v{t + 1}")
        for i in range(4):
            E(f"v_accvgpr_write_b32 a{aO + x * 64 + r + i}, v{t + 2 + i}")
    E(rare_ret(L))


def ctx_addr(sqb_expr, x_in_addr):
    pass


def hooks(k):
    E = k.emit
    E("K2_EVENT:")
    if MERGE12:
        E(f"s_cmp_lg_u32 s{sU}, 1\ns_cbranch_scc1 K2_EV0\ns_cmp_lg_u32 s{sW}, 0\ns_cbranch_scc1 K2_EV0")
        E(f"v_mov_b32 v{vPL}, 1\nv_mov_b32 v{vPL + 1}, 0\ns_mov_b64 exec, 1\nbuffer_store_byte v{vPL}, v{vPL + 1}, {s(SS, 4)}, s{sGP} offen sc0 sc1\ns_mov_b64 exec, -1")
        E("K2_EV0:")
    E(f"s_mov_b32 s{sDG}, 0\ns_cmp_lg_u32 s{sU}, s{sSW}\ns_cbranch_scc1 K2_EV2")
    E(f"s_cmp_eq_u32 s{sG}, 0\ns_cbranch_scc1 K2_SW0")
    for r in range(64):
        E(f"v_accvgpr_write_b32 a{aQ + r}, v{QBS + r}")
    for r in range(32):
        E(f"v_mov_b32 v{NEGM[0] + r}, 0")
    E(f"v_mov_b32 v{vNM[0]}, 0\nv_mov_b32 v{vNM[1]}, 0")
    for x in range(2):
        E(f"s_mov_b32 s{sTH[x]}, {NINF}\ns_mov_b32 s{sLO[x]}, {NINF}")
    E(f"s_mov_b32 s{sTL}, 17\ns_sub_u32 s{sTD}, 15, s{sPI}\ns_lshl_b32 s{sTD}, s{sTD}, 1\ns_add_u32 s{sTD}, s{sTD}, s{sRS}")
    E("s_branch K2_EV2")
    E("K2_SW0:")
    E(f"s_cmp_eq_u32 s{sU}, 9\ns_cbranch_scc1 K2_SW1")
    E(f"v_and_b32 v{vPL}, 31, v0\nbuffer_load_ubyte v{vPL + 1}, v{vPL}, {s(SS, 4)}, s{sFL} offen sc0 sc1\ns_mov_b32 s{sSW}, 9\ns_branch K2_EV2")
    E("K2_SW1:\ns_waitcnt vmcnt(17)")
    E(f"v_cmp_ne_u32 vcc, 1, v{vPL + 1}\ns_nop 1\ns_cbranch_vccz K2_EV2")
    E(f"K2_FBLP:\ns_sleep 2\nbuffer_load_ubyte v{vPL + 1}, v{vPL}, {s(SS, 4)}, s{sFL} offen sc0 sc1\ns_waitcnt vmcnt(0)")
    E(f"v_cmp_ne_u32 vcc, 1, v{vPL + 1}\ns_nop 1\ns_cbranch_vccnz K2_FBLP")
    E("K2_EV2:")
    E(f"s_cmp_lt_u32 s{sTL}, s{sTD}\ns_cbranch_scc0 K2_EV3")
    E(f"s_cmp_eq_u32 s{sLO[0]}, 0\ns_cbranch_scc1 K2_EV4")
    for x in range(2):
        E(f"s_mov_b32 s{sTH[x]}, {fbits(THRESH)}\ns_mov_b32 s{sLO[x]}, 0")
    E(f"s_add_u32 s{sEV}, s{sU}, 1\ns_mov_b32 s{sDG}, 2\ns_branch K2_SWRETF")
    E("K2_EV4:")
    E(f"s_sub_u32 s{sEV}, s{sTD}, s{sTL}\ns_add_u32 s{sEV}, s{sEV}, s{sU}\ns_cmp_gt_u32 s{sSW}, s{sU}\ns_cselect_b32 s{sT}, s{sSW}, 99\ns_min_u32 s{sEV}, s{sEV}, s{sT}")
    E("s_branch K2_SWRET")
    E("K2_EV3:")
    E(f"s_add_u32 s{sEV}, s{sU}, 1\ns_mov_b32 s{sDG}, 1\ns_cmp_eq_u32 s{sTL}, s{sTD}\ns_cbranch_scc1 K2_SWRETD")
    for r in range(32):
        E(f"v_mov_b32 v{NEGM[0] + r}, v{vNEG}")
    E(f"s_mov_b32 s{sTH[0]}, 0x7f800000\ns_mov_b32 s{sTH[1]}, 0x7f800000\ns_branch K2_SWRETD")
    E("K2_FINB:")
    t = QBS
    E(f"s_cmp_eq_u32 s{sLO[0]}, 0\ns_cbranch_scc1 K2_FB1")
    for x in range(2):
        E(f"v_add_f32 v{vLSV[x]}, v{vLs[x][0]}, v{vLs[x][1]}\nv_mov_b32 v{vLs[x][0]}, 0\nv_mov_b32 v{vLs[x][1]}, 0\nv_sub_f32 v{vNM[x]}, 0, v{vNEG}")
    E("K2_FB1:")
    for x in range(2):
        E(f"v_mov_b32 v{t + 2 * x}, v{vLSV[x]}")
    E("s_nop 1")
    for x in range(2):
        E(f"v_permlane32_swap_b32 v{vLSV[x]}, v{t + 2 * x}")
    E("s_nop 1")
    for x in range(2):
        E(f"v_add_f32 v{t + 2 * x}, v{t + 2 * x}, v{vLSV[x]}\nv_rcp_f32 v{t + 2 * x}, v{t + 2 * x}")
    E(f"s_lshl_b32 s{sT}, s{sPI}, 2\ns_lshl_b32 s{sT2}, s{sRS}, 1\ns_add_u32 s{sT}, s{sT}, s{sT2}")
    for x in range(2):
        E(f"v_mov_b32 v{t + 2 * x + 1}, v{t + 2 * x}")
    E(f"s_mul_i32 s{sT}, s{sT}, {CTXU_STEPS}\ns_lshl_b32 s{sT2}, s{sHD}, 3\ns_add_u32 s{sT}, s{sT}, s{sT2}")
    E(f"s_lshl_b32 s{sT}, s{sT}, 10\ns_add_u32 s{sT}, s{sT}, {WS_CTXU}")
    for i in range(4):
        E(f"v_mov_b32 v{t + 4 + i}, 0")
    for x in range(2):
        for f in range(8):
            b = t + 8 + 8 * (f % 4)
            for i in range(8):
                E(f"v_accvgpr_read_b32 v{b + i}, a{aO + x * 64 + 8 * f + i}")
            if f % 2 == 1:
                E(mfma(('a', aO + x * 64 + 8 * (f - 1)), ('v', t + 4), ('v', t + 4), 0))
            for i in range(4):
                E(f"v_pk_mul_f32 {v(b + 2 * i, 2)}, {v(b + 2 * i, 2)}, {v(t + 2 * x, 2)}")
            for i in range(4):
                E(f"v_cvt_pk_bf16_f32 v{b + i}, v{b + 2 * i}, v{b + 2 * i + 1}")
            E(f"buffer_store_dwordx4 {v(b, 4)}, v{vL16}, {s(SS, 4)}, s{sT} offen offset:{1024 * (f % 4)} sc1")
            if f == 3:
                E(f"s_add_u32 s{sT}, s{sT}, 4096")
            if f == 7 and x == 0:
                E(f"s_add_u32 s{sT}, s{sT}, {CTXU_STEPS * 1024 - 4096}")
    E(f"s_cmp_eq_u32 s{sDG}, 2\ns_cbranch_scc1 K2_FBRETF\ns_branch K2_FBRETD")


QACC = 48
aXN = 0
aWF = 192


def wq_dma(j):
    out = []
    for i in range(4):
        g = []
        if i == 0:
            g += [I(f"s_add_u32 m0, s{sWM}, {j * 16384}"), I(f"s_add_u32 s{sDO}, s{sWQ}, {j * 64 * 8192}")]
        g.append(VM(f"buffer_load_dwordx4 v{vQD + i}, {s(SQ, 4)}, s{sDO} offen offset:{1024 * i} lds", f"wq{j}"))
        out.append(g)
    return out


def xn_loads(j):
    out = []
    for x in range(2):
        for cs in range(4):
            g = []
            if cs == 0:
                g.append(I(f"s_add_u32 s{sDO}, s{sXN}, {x * 32768 + j * 4096}"))
            g.append(VM(f"buffer_load_dwordx4 {a(aXN + (j % 4) * 32 + (x * 4 + cs) * 4, 4)}, v{vL16}, {s(SS, 4)}, "
                        f"s{sDO} offen offset:{1024 * cs}{SC1}", f"xn{j}"))
            out.append(g)
    return out


def znorm():
    ld = [[I(x) for x in (f"s_lshr_b32 s{sGM}, s2, 3", f"s_and_b32 s{sGP}, s2, 7", f"s_lshl_b32 s{sT}, s{sGM}, 1", f"s_add_u32 s{sT}, s{sT}, s{sG}",
                          f"s_lshl_b32 s{sT}, s{sT}, 11", f"s_add_u32 s{sT}, s{sT}, {WS_STAT}", f"v_lshlrev_b32 v{ZT}, 2, v0")]]
    for i in range(0, 8, 2):
        ld.append([VM(f"buffer_load_dword v{ZT + 4 + i + e}, v{ZT}, {s(SS, 4)}, s{sT} offen offset:{256 * (i + e)}{SC1}", "zn") for e in range(2)])
    ld.append([I(x) for x in (f"s_mul_i32 s{sGZ}, s{sGP}, 384", f"s_lshl_b32 s{sT}, s{sGM}, 2", f"s_add_u32 s{sGZ}, s{sGZ}, s{sT}",
                              f"s_add_u32 s{sGZ}, s{sGZ}, s{sW}", f"s_lshl_b32 s{sGZ}, s{sGZ}, 10")])
    for f in range(3):
        ld.append([I(f"s_add_u32 s{sT}, s{sGZ}, {WS_Z2R + f * 128 * 1024}"),
                   VM(f"buffer_load_dwordx4 {v(ZT + 12 + 4 * f, 4)}, v{vL16}, {s(SS, 4)}, s{sT} offen{SC1}", "zn")])
    z = ZT + 4
    AB = ZT + 24
    c = [WVM("zn")]
    c += flat([f"v_add_f32 v{z}, v{z}, v{z + 1}\nv_add_f32 v{z + 2}, v{z + 2}, v{z + 3}\nv_add_f32 v{z + 4}, v{z + 4}, v{z + 5}\nv_add_f32 v{z + 6}, v{z + 6}, v{z + 7}",
               f"v_add_f32 v{z}, v{z}, v{z + 2}\nv_add_f32 v{z + 4}, v{z + 4}, v{z + 6}\nv_add_f32 v{z}, v{z}, v{z + 4}",
               f"v_mul_f32 v{z}, {fbits(1 / 688)}, v{z}\nv_mov_b32 v{z + 1}, v{z}\ns_nop 1\nv_permlane32_swap_b32 v{z}, v{z + 1}\ns_nop 1",
               f"v_fma_f32 v{z + 1}, -v{z}, v{z}, v{z + 1}\nv_max_f32 v{z + 1}, 0, v{z + 1}\nv_add_f32 v{z + 1}, {fbits(LN_EPS)}, v{z + 1}\nv_rsq_f32 v{z + 1}, v{z + 1}\ns_nop 0",
               f"v_mul_f32 v{z}, v{z}, v{z + 1}\nv_sub_f32 v{z}, 0, v{z}",
               f"s_lshl_b32 s{sT}, s{sW}, 8\ns_add_u32 s{sT}, s{sT}, {SPARE}",
               f"v_lshlrev_b32 v{z + 2}, 2, v20\nv_add_u32 v{z + 2}, s{sT}, v{z + 2}"])
    c += [LG(f"ds_write_b32 v{z + 2}, v{z + 1}", "zw"), LG(f"ds_write_b32 v{z + 2}, v{z} offset:128", "zw")]
    c += flat([f"s_lshl_b32 s{sT2}, s{sRS}, 6\ns_add_u32 s{sT}, s{sT}, s{sT2}\nv_lshlrev_b32 v{z + 3}, 5, v21\nv_add_u32 v{z + 3}, s{sT}, v{z + 3}"])
    for i in range(2):
        c += [LG(f"ds_read_b128 {v(AB + 4 * i, 4)}, v{z + 3} offset:{16 * i}", "zr"),
              LG(f"ds_read_b128 {v(AB + 8 + 4 * i, 4)}, v{z + 3} offset:{128 + 16 * i}", "zr")]
    c += flat([f"s_lshl_b32 s{sGP}, s{sGP}, 8\ns_add_u32 s{sGP}, s{sGP}, s{sGM}\ns_add_u32 s{sGP}, s{sGP}, {WS_FLAG2}\ns_nop 0"])
    c += [WLG("zr")]
    for f in range(3):
        for i in range(4):
            x_ = ZT + 12 + 4 * f + i
            c += flat([f"v_lshlrev_b32 v{z}, 16, v{x_}\nv_and_b32 v{z + 1}, 0xffff0000, v{x_}",
                       f"v_fma_f32 v{z}, v{z}, v{AB + 2 * i}, v{AB + 8 + 2 * i}\nv_fma_f32 v{z + 1}, v{z + 1}, v{AB + 2 * i + 1}, v{AB + 9 + 2 * i}",
                       f"v_cvt_pk_bf16_f32 v{x_}, v{z}, v{z + 1}"])
        c += [I(f"s_add_u32 s{sT}, s{sGZ}, {WS_Z2N + f * 128 * 1024}"),
              VM(f"buffer_store_dwordx4 {v(ZT + 12 + 4 * f, 4)}, v{vL16}, {s(SS, 4)}, s{sT} offen sc1", "zs")]
    cg = [c[i:i + 4] for i in range(0, len(c), 4)]
    return ld, cg


def qproj(k):
    E = k.emit
    extra = {}

    def spread(c0, c1, groups):
        n = len(groups)
        for i, g in enumerate(groups):
            extra.setdefault(c0 + (i * (c1 - c0)) // n, []).append(g)

    def rd(c, fb):
        j, cs = c // 4, c % 4
        return [LG(f"ds_read_b64_tr_b16 {a(fb + 4 * d + 2 * sec, 2)}, v{vQR + (j // 4) * 4 + d} "
                   f"offset:{(j % 4) * 16384 + cs * 4096 + sec * 1024}", f"q{c}") for d in range(4) for sec in range(2)]

    def fbuf(c):
        return aWF + (c % 4) * 16

    def mf1(c, d, x):
        j, cs = c // 4, c % 4
        return mfma(('v', QACC + (x * 4 + d) * 16), ('a', fbuf(c) + 4 * d), ('a', aXN + (j % 4) * 32 + (x * 4 + cs) * 4),
                    0 if c == 0 else None)

    zl, zc = znorm()

    def kvpre(base, pre, so, so2, tag="kv"):
        d1, d2 = dma4(so, tag), dma4(so2, tag)
        return [[I(f"s_add_u32 m0, s{sW8}, {base}")] + [I(x) for x in pre] + [d1[0]]] + [[d] for d in d1[1:]] + \
               [[I(f"s_add_u32 m0, s{sW8}, {base + 4096}"), I("s_nop 0"), d2[0]]] + [[d] for d in d2[1:]]

    k0 = kvpre(0, [f"s_add_u32 s{sKO2}, s{sKN}, 4096"], sKN, sKO2, "k0")
    k1 = kvpre(32768, [f"s_add_u32 s{sVO}, s{sKN}, {WS_VF - WS_KF}", f"s_add_u32 s{sVO2}, s{sVO}, 4096",
                       f"s_add_u32 s{sKN}, s{sKN}, 0x4000", f"s_add_u32 s{sKO2}, s{sKN}, 4096"], sKN, sKO2)
    v0_ = kvpre(VB0, ["s_nop 0"], sVO, sVO2)
    q = []
    if MERGE12:
        order_ = ((0, wq_dma(2) + xn_loads(2) + wq_dma(3) + xn_loads(3) + wq_dma(4)), (4, xn_loads(4)), (0, wq_dma(5)), (8, xn_loads(5)),
                  (0, wq_dma(6)), (12, xn_loads(6)), (0, wq_dma(7)), (16, xn_loads(7)), (22, k0 + zl))
    else:
        order_ = ((0, wq_dma(2) + xn_loads(2) + wq_dma(3) + xn_loads(3) + wq_dma(4)), (4, xn_loads(4)), (0, wq_dma(5)), (8, xn_loads(5)),
                  (0, wq_dma(6) + zl), (12, xn_loads(6)), (0, wq_dma(7)), (16, xn_loads(7)), (6, k0), (14, k1))
    for e, grp in order_:
        q += [(e, g) for g in grp]
    RATE = 4
    c_ = 0
    n_ = 0
    for e, g in q:
        if e > c_:
            c_, n_ = e, 0
        extra.setdefault(c_, []).append(g)
        n_ += 1
        if n_ == RATE:
            c_, n_ = c_ + 1, 0
    assert c_ <= 27, c_
    valu = {}
    if not MERGE12:
        for i, g in enumerate(zc):
            valu.setdefault(19 + (i * 8) // len(zc), []).append(g)
    else:
        valu[18] = [[I(f"s_mov_b32 s{sT}, {WS_FP1}")] + poll_all_issue(sW, SS, f"s{sT}", 16, 4, 176)]

    E(WVM("wq0"), "s_barrier")
    stamp(k, 6)
    E(rd(0, fbuf(0)), rd(1, fbuf(1)))
    for c in range(28):
        j, cs = c // 4, c % 4
        n = c + 2
        if n % 4 == 0:
            lstamp(k, 19, 3 * (n // 4))
            E(WLG(f"q{n - 1}"), WVM(f"wq{n // 4}"))
            lstamp(k, 19, 3 * (n // 4) + 1)
            if MERGE12 and n == 24:
                E(poll_all_check(sW, SS, f"s{sT}", 16, 4, 176, 1))
            E("s_barrier")
            if MERGE12 and n == 4:
                E(f"s_lshl_b32 s{sT}, s2, 4\ns_add_u32 s{sT}, s{sT}, {WS_FP1}", flag_set(sW, SS, sT, 176))
        E(WLG(f"q{c}"))
        if cs == 0:
            E(WVM(f"xn{j}"))
            lstamp(k, 19, 3 * j + 2)
        r_ = rd(n, fbuf(n))
        ex, va = extra.get(c, []), valu.get(c, [])
        gm_ = {}
        for i in range(8):
            gm_[i] = [r_[i]] + ([ex[i // 2]] if (i % 2 == 0 and i // 2 < len(ex)) else []) + [va[z] for z in range(len(va)) if (z * 8) // len(va) == i]
        E(place([mf1(c, d, x) for d in range(4) for x in range(2)], gm_))
    E(rd(30, fbuf(30)), rd(31, fbuf(31)))
    E(f"v_mov_b32 v{vT}, {fbits(QSCALE)}\nv_mov_b32 v{vT + 1}, {fbits(QSCALE)}")
    E(f"v_add_u32 v{vT + 2}, s{sW8}, v{vL16}\nv_add_u32 v{vT + 3}, {SPARE}, v{vT + 2}\nv_add_u32 v{vT + 2}, {VB0 + 32768}, v{vT + 2}")
    E(WVM("xn7"), WLG0, "s_barrier")

    def epi(d, x):
        out = []
        for g in range(2):
            b = QACC + (x * 4 + d) * 16 + 8 * g
            out.append([I(f"v_mul_f32 v{b + i}, v{vT}, v{b + i}") for i in range(8)])
            out.append([I(f"v_cvt_pk_bf16_f32 v{b + i}, v{b + 2 * i}, v{b + 2 * i + 1}") for i in range(4)] +
                       [LG(f"ds_write_b128 v{vT + 3 - x}, {v(b, 4)} offset:{(2 * d + g) * 1024}")])
        return out

    tiles = [(d, x) for x in range(2) for d in range(4)]
    for i, (d, x) in enumerate(tiles):
        m = [mf1(c, d, x) for c in range(28, 32)]
        kv2 = (k1 + v0_)[2 * i:2 * i + 2] if MERGE12 else [v0_[i], []]
        if i == 0:
            E(m[0], kv2[0], m[1], m[2], kv2[1], m[3])
        else:
            e = epi(*tiles[i - 1])
            E(m[0], kv2[0], m[1], e[0], e[1], m[2], kv2[1], e[2], m[3], e[3])
    stamp(k, 7)
    E("s_nop 15")
    E(epi(*tiles[-1]))
    E(WVM("k0"), WVM("zs"), WLG0, "s_barrier")
    if not MERGE12:
        E(flag_set(sW, SS, sGP, ZT))
    k.zc = zc
    E(f"s_lshl_b32 s{sT}, s{sRS}, 13\nv_add_u32 v{vT + 4}, s{sT}, v{vL16}")
    E(f"v_add_u32 v{vT + 5}, {SPARE}, v{vT + 4}\nv_add_u32 v{vT + 4}, {VB0 + 32768}, v{vT + 4}")
    E(kreads(vKc, 0))
    for x in range(2):
        for f in range(8):
            E(LG(f"ds_read_b128 {a(aQ + (x * 8 + f) * 4, 4)}, v{vT + 3 - x} offset:{f * 1024}"))
    for x in range(2):
        for f in range(8):
            E(LG(f"ds_read_b128 {v(QBS + (x * 8 + f) * 4, 4)}, v{vT + 5 - x} offset:{f * 1024}"))


ZRING = (('v', 144), ('v', 192), ('a', 128), ('a', 176))
vWS = 48
vPD = 32
vPR = 40
NGS = 5


def g_slot(st):
    return (0, 1, 3, 2, 4)[st % NGS] * 32768


def zreg(st, i):
    kind, base = ZRING[st % 4]
    return (kind, base + i * 4)


def sprinkle(items, groups):
    items = flat(items)
    n, m = len(items), len(groups)
    out, gi = [], 0
    for i, it in enumerate(items):
        while gi < m and gi * n <= i * m:
            out.append(groups[gi])
            gi += 1
        out.append(it)
    return flat(out + groups[gi:])


def g_dma(st):
    out = []
    for i in range(8):
        g = []
        if i % 4 == 0:
            g += [I(f"s_add_u32 m0, s{sW8}, {g_slot(st) + (i // 4) * 4096}"), I(f"s_add_u32 s{sDO}, s{sGP}, {st * 128}")]
        g.append(VM(f"buffer_load_dwordx4 v{vPD + i}, {s(SP, 4)}, s{sDO} offen offset:{1024 * (i % 4)} lds", f"g{st}"))
        out.append(g)
    return out


def g_zl(st):
    out = []
    for f in range(3):
        for ks in range(4):
            g = []
            if ks == 0:
                g.append(I(f"s_add_u32 s{sGM}, s{sGZ}, {f * 128 * 1024 + st * 4096}"))
            g.append(VM(f"buffer_load_dwordx4 {R(zreg(st, f * 4 + ks), 4)}, v{vL16}, {s(SS, 4)}, "
                        f"s{sGM} offen offset:{1024 * ks} sc1", f"g{st}"))
            out.append(g)
    return out


def g_setup():
    o = [f"v_lshrrev_b32 v{ZT + 32}, 4, v0\nv_lshrrev_b32 v{ZT + 33}, 3, v0\nv_lshlrev_b32 v{ZT + 33}, 12, v{ZT + 33}\nv_and_b32 v{ZT + 34}, 7, v0\nv_xor_b32 v{ZT + 34}, v{ZT + 34}, v{ZT + 32}",
         f"v_lshl_add_u32 v{ZT + 35}, v{ZT + 34}, 4, v{ZT + 33}\nv_xor_b32 v{ZT + 34}, 4, v{ZT + 34}\nv_lshl_add_u32 v{ZT + 36}, v{ZT + 34}, 4, v{ZT + 33}"]
    for i in range(8):
        o.append(f"v_add_u32 v{vPD + i}, {i * 8 * 4096 - (i % 4) * 1024}, v{ZT + 35 + (i % 2)}")
    o.append(f"v_lshrrev_b32 v{ZT + 32}, 5, v0\nv_bfe_u32 v{ZT + 33}, v0, 1, 3\nv_xor_b32 v{ZT + 33}, v{ZT + 33}, v{ZT + 32}")
    o.append(f"v_and_b32 v{ZT + 34}, 31, v0\nv_lshlrev_b32 v{ZT + 34}, 7, v{ZT + 34}\nv_add_u32 v{ZT + 34}, s{sW8}, v{ZT + 34}")
    for ks in range(4):
        o.append(f"v_xor_b32 v{ZT + 35}, {2 * ks}, v{ZT + 33}\nv_lshl_add_u32 v{vPR + ks}, v{ZT + 35}, 4, v{ZT + 34}\nv_add_u32 v{vPR + 4 + ks}, 0x10000, v{vPR + ks}")
    o.append(f"s_lshl_b32 s{sGP}, s{sHD}, 18\ns_lshl_b32 s{sDO}, s{sW}, 10\ns_add_u32 s{sGP}, s{sGP}, s{sDO}")
    o.append(f"s_mul_i32 s{sGZ}, s{sPI}, 384\ns_lshl_b32 s{sGM}, s{sW}, 5\ns_add_u32 s{sGZ}, s{sGZ}, s{sGM}")
    o.append(f"s_lshl_b32 s{sGZ}, s{sGZ}, 10\ns_add_u32 s{sGZ}, s{sGZ}, {WS_Z2N}")
    return o


def merge(k, keep):
    E = k.emit
    send = 1 - keep
    t = vT
    wr = [LG(f"ds_write_b128 v{t + 4 + i // 8}, {a(aO + send * 64 + 4 * i, 4)} offset:{(i % 8) * 1024}") for i in range(16)]
    E(LG(f"ds_read_b64 {v(t + 8, 2)}, v{t + 4}", "mb"))
    d0, d1 = g_dma(0), g_dma(1)
    E(weave(pv(send, 1), d0, 0, 8))
    E(WLG("mb"))
    fac = [f"v_min_f32 v{t}, v{vNM[keep]}, v{t + 8}", f"v_sub_f32 v{t + 2}, v{t}, v{vNM[keep]}", f"v_sub_f32 v{t + 8}, v{t}, v{t + 8}",
           f"v_exp_f32 v{t + 2}, v{t + 2}", f"v_exp_f32 v{t + 8}, v{t + 8}", "s_nop 0",
           f"v_mul_f32 v{t}, v{vLs[keep][0]}, v{t + 2}", f"v_fmac_f32 v{t}, v{t + 9}, v{t + 8}", f"v_rcp_f32 v{t}, v{t}", "s_nop 0",
           f"v_mul_f32 v{t + 2}, v{t + 2}, v{t}", f"v_mul_f32 v{t + 8}, v{t + 8}, v{t}", f"v_mov_b32 v{t + 3}, v{t + 2}", f"v_mov_b32 v{t + 9}, v{t + 8}"]
    m = pv(keep, 1)
    E(m[0], d1[0], fac[:6], m[1], d1[1], fac[6:], weave(m[2:], interleave2(wr, d1[2:]), 0, 6))
    E(WLG0, "s_barrier")
    RX = S[0]
    for i in range(16):
        E(LG(f"ds_read_b128 {v(RX + 4 * i, 4)}, v{t + 6 + i // 8} offset:{(i % 8) * 1024}", f"rx{i}"))
    body = []
    for f in range(8):
        b = RX + 8 * f
        body += [I(f"v_accvgpr_read_b32 v{PB + i}, a{aO + keep * 64 + 8 * f + i}") for i in range(8)]
        body += [WLG(f"rx{2 * f + 1}")]
        body += [I(f"v_pk_mul_f32 {v(b + 2 * i, 2)}, {v(b + 2 * i, 2)}, {v(t + 8, 2)}") for i in range(4)]
        body += [I(f"v_pk_fma_f32 {v(b + 2 * i, 2)}, {v(PB + 2 * i, 2)}, {v(t + 2, 2)}, {v(b + 2 * i, 2)}") for i in range(4)]
        body += [I(f"v_cvt_pk_bf16_f32 v{PB + 8 + 4 * (f % 4) + i}, v{b + 2 * i}, v{b + 2 * i + 1}") for i in range(4)]
        body += [VM(f"buffer_store_dwordx4 {v(PB + 8 + 4 * (f % 4), 4)}, v{vL16}, {s(SS, 4)}, s{sT if f < 4 else sT2} offen offset:{1024 * (f % 4)} sc1", "cs")]
    E(sprinkle(body, g_zl(1)))


def interleave2(x, y):
    out = []
    n = max(len(x), len(y))
    for i in range(n):
        out += x[(i * len(x)) // n:((i + 1) * len(x)) // n] + y[(i * len(y)) // n:((i + 1) * len(y)) // n]
    return out


def gphase(k):
    E = k.emit

    def reads(st):
        o = g_slot(st)
        sg, off = (0, o) if o < 65536 else (1, o - 65536)
        out = []
        for ks in range(4):
            for ts in range(2):
                if off + ts * 4096 < 65536:
                    out.append(LG(f"ds_read_b128 {v(vWS + (st % 2) * 32 + (ts * 4 + ks) * 4, 4)}, v{vPR + sg * 4 + ks} "
                                  f"offset:{off + ts * 4096}", f"p{st}"))
                else:
                    out.append(LG(f"ds_read_b128 {v(vWS + (st % 2) * 32 + (ts * 4 + ks) * 4, 4)}, v{ZT + 40 + ks} "
                                  f"offset:{off - 65536 + ts * 4096}", f"p{st}"))
        return out

    def mf(st):
        return [mfma(('a', (ts * 3 + f) * 16), zreg(st, f * 4 + ks),
                     ('v', vWS + (st % 2) * 32 + (ts * 4 + ks) * 4), 0 if (st == 0 and ks == 0) else None)
                for ks in range(4) for f in range(3) for ts in range(2)]

    for ks in range(4):
        E(f"v_add_u32 v{ZT + 40 + ks}, 0x20000, v{vPR + ks}")
    E(f"s_load_dwordx2 s[64:65], s[0:1], {KA_WO}\ns_load_dwordx2 s[66:67], s[0:1], {KA_WOUT}", WLG0)
    E("s_barrier")
    E(WVM("g0"))
    stamp(k, 10)
    E(reads(0))
    sched = {st: g_dma(st + 2) + g_zl(st + 2) for st in range(6)}
    for st in range(8):
        E(WLG(f"p{st}"))
        ld = sched.get(st, [])
        m = mf(st)
        n1 = (len(ld) * 14) // 24
        first = weave(m[:14], ld[:n1], 0, 14)
        second = ([WVM(f"g{st + 1}")] + weave(m[14:], interleave2(reads(st + 1), ld[n1:]), 0, 9)) if st + 1 < 8 else m[14:]
        if st == 6:
            fin = flat([f"s_lshl_b32 s{sT}, s{sHD}, 1\ns_add_u32 s{sT}, s{sT}, s{sG}",
                        f"s_mul_i32 s{sT2}, s{sPI}, 6\ns_mul_i32 s{sGP}, s{sRS}, 3\ns_add_u32 s{sT2}, s{sT2}, s{sGP}",
                        f"s_mul_i32 s{sGP}, s{sT}, 48\ns_add_u32 s{sGP}, s{sGP}, s{sT2}\ns_lshl_b32 s{sGP}, s{sGP}, 10\ns_add_u32 s{sGP}, s{sGP}, {WS_Z1}",
                        f"s_mul_i32 s{sGZ}, s{sT}, {CTXU_STEPS}\ns_add_u32 s{sGZ}, s{sGZ}, s{sT2}\ns_add_u32 s{sGZ}, s{sGZ}, 256",
                        f"s_lshl_b32 s{sGZ}, s{sGZ}, 10\ns_add_u32 s{sGZ}, s{sGZ}, {WS_CTXU}",
                        f"s_lshl_b32 s{sT}, s{sT}, 6\nv_and_b32 v21, 31, v0\nv_lshlrev_b32 v21, 1, v21"])
            fin += [VM(f"buffer_load_dwordx4 {v(4 + 4 * i, 4)}, v{vL16}, {s(SS, 4)}, s{sGP} offen offset:{1024 * i}{SC1}", "fin") for i in range(3)]
            fin += [VM(f"buffer_load_ushort v16, v21, {s(SB, 4)}, s{sT} offen", "fin")]
            fin += flat([f"s_mov_b32 s{SQ}, s64\ns_mov_b32 s{SQ + 1}, s65\ns_mov_b32 s{SP}, s66\ns_mov_b32 s{SP + 1}, s67\ns_mov_b32 s{SP + 2}, {688 * 1024:#x}",
                         f"s_lshl_b32 s{sPF}, s2, 2\ns_add_u32 s{sPF}, s{sPF}, s{sW}\ns_lshl_b32 s{sT}, s{sPF}, 12\ns_lshl_b32 s{sPF}, s{sPF}, 10"])
            fin += [VM(f"buffer_load_dwordx4 {v(ZT + 32, 4)}, v{vL16}, {s(SQ, 4)}, s{sT} offen offset:{1024 * i}", "pf") for i in range(0 if "nowo" in EXP else 4)]
            fin += [VM(f"buffer_load_dwordx4 {v(ZT + 32, 4)}, v{vL16}, {s(SP, 4)}, s{sPF} offen", "pf")]
            fin += flat([f"v_add_u32 v20, s{sW8}, v{vL16}\nv_add_u32 v21, 0x10000, v20\ns_lshl_b32 s{sT}, s{sW}, 15\nv_add_u32 v25, s{sT}, v{vL16}"])
            for j in range(1, 4):
                fin += flat([f"s_add_u32 s{sT}, s{sW}, {j}\ns_and_b32 s{sT}, s{sT}, 3\ns_lshl_b32 s{sT}, s{sT}, 13\nv_add_u32 v{21 + j}, s{sT}, v25"])
            first = weave(m[:14], [fin[i:i + 3] for i in range(0, len(fin), 3)], 0, 14)
        if MERGE23 and st == 2:
            E(WVM("cs"), "s_barrier")
            E(f"s_lshl_b32 s{sT}, s{sPI}, 5\ns_add_u32 s{sT}, s{sT}, s{sHD}\ns_lshl_b32 s{sT}, s{sT}, 4\ns_add_u32 s{sT}, s{sT}, {WS_FCTX}")
            E(flag_set(sW, SS, sT, 17))
        if MERGE23 and st == 7:
            E(f"s_bfe_u32 s{sT}, s2, 0x10002\ns_lshl_b32 s{sT}, s{sT}, 3\ns_bfe_u32 s{sT2}, s2, 0x30003\ns_add_u32 s{sT}, s{sT}, s{sT2}\ns_sub_u32 s{sT2}, 15, s{sT}\ns_min_u32 s{sT}, s{sT}, s{sT2}")
            E(f"s_lshl_b32 s{sT}, s{sT}, 9\ns_and_b32 s{sT2}, s2, 3\ns_lshl_b32 s{sT2}, s{sT2}, 7\ns_add_u32 s{sT}, s{sT}, s{sT2}\ns_add_u32 s{sFL}, s{sT}, {WS_FCTX}")
            E(wave0(sW, [I("v_and_b32 v17, 7, v0"), I("v_lshlrev_b32 v17, 4, v17"),
                         VMG(f"buffer_load_ubyte v18, v17, {s(SS, 4)}, s{sFL} offen sc0 sc1", "poll")]))
        lstamp(k, 19, 32 + 3 * st)
        E(first)
        lstamp(k, 19, 33 + 3 * st)
        E(second[:1])
        lstamp(k, 19, 34 + 3 * st)
        E(second[1:])
    stamp(k, 11)
    E("s_nop 7")
    for d in range(4):
        E(f"s_cmp_eq_u32 s{sW}, {d}\ns_cbranch_scc1 K2_GO{d}")
        for i in range(3):
            fr = 3 * d + i
            for q in range(2):
                E(f"ds_write_b128 v{20 + d // 2}, {a(fr * 8 + 4 * q, 4)} offset:{(d % 2) * 32768 + (i * 2 + q) * 1024}")
        E(f"s_branch K2_GN{d}\nK2_GO{d}:")
        for i in range(3):
            for r in range(8):
                E(f"v_accvgpr_read_b32 v{48 + i * 32 + r}, a{(3 * d + i) * 8 + r}")
        E(f"K2_GN{d}:")
    if MERGE23:
        E(flag_poll_check(sW, SS, sFL, 17))
    E(WLG0, "s_barrier")
    for i in range(3):
        for j in range(1, 4):
            for q in range(2):
                E(LG(f"ds_read_b128 {v(48 + i * 32 + j * 8 + q * 4, 4)}, v{21 + j} offset:{(i * 2 + q) * 1024}", f"x{i}"))
    E(WVM("fin"), "v_lshlrev_b32 v16, 16, v16")
    for i in range(3):
        E(WLG(f"x{i}"))
        b = 48 + i * 32
        for r in range(8):
            E(f"v_add_f32 v{b + r}, v{b + r}, v{b + 8 + r}\nv_add_f32 v{b + 16 + r}, v{b + 16 + r}, v{b + 24 + r}")
        for r in range(8):
            E(f"v_add_f32 v{b + r}, v{b + r}, v16")
        for r in range(8):
            E(f"v_add_f32 v{b + r}, v{b + r}, v{b + 16 + r}")
        for r in range(4):
            z = 4 + 4 * i + r
            E(f"v_lshlrev_b32 v26, 16, v{z}\nv_and_b32 v27, 0xffff0000, v{z}")
            E(f"v_mul_f32 v{b + 2 * r}, v{b + 2 * r}, v26\nv_mul_f32 v{b + 2 * r + 1}, v{b + 2 * r + 1}, v27")
        for r in range(4):
            E(f"v_cvt_pk_bf16_f32 v{b + r}, v{b + 2 * r}, v{b + 2 * r + 1}")
        E(VM(f"buffer_store_dwordx4 {v(b, 4)}, v{vL16}, {s(SS, 4)}, s{sGZ} offen offset:{1024 * i} sc1", "us"))


def build(k=None):
    merged = k is not None
    if not merged:
        k = Kern("k2_kernel")
    E = k.emit
    if not merged:
        E("s_cmp_ge_u32 s2, 256\ns_cbranch_scc1 K2_END")
        code_prefetch(k, "L_CODE_END" if MERGE23 else "k3_kernel", 0, 248)
    stamp_init(k)
    stamp(k, 0)
    E(f"s_load_dwordx2 s[64:65], s[0:1], {KA_WQ}")
    E(f"s_load_dwordx4 s[72:75], s[0:1], {KA_DBG}")
    E(f"s_load_dwordx4 s[68:71], s[0:1], {KA_WSP}")
    if not merged:
        E("v_lshrrev_b32 v1, 6, v0\nv_and_b32 v0, 63, v0")
    E(f"s_and_b32 s{sHD}, s2, 7\ns_lshl_b32 s{sHD}, s{sHD}, 2\ns_lshr_b32 s{sT}, s2, 3\ns_lshr_b32 s{sPI}, s{sT}, 2")
    if not merged:
        E(f"v_readfirstlane_b32 s{sW}, v1")
    E(f"s_and_b32 s{sT}, s{sT}, 3\ns_add_u32 s{sHD}, s{sHD}, s{sT}")
    E(f"s_and_b32 s{sRS}, s{sW}, 1\ns_lshr_b32 s{sG}, s{sW}, 1\ns_lshl_b32 s{sW8}, s{sW}, 13")
    E(f"v_lshlrev_b32 v{vL16}, 4, v0")
    E("v_and_b32 v20, 31, v0\nv_lshrrev_b32 v21, 5, v0\nv_lshrrev_b32 v22, 4, v0")
    E("v_bfe_u32 v23, v0, 2, 2\nv_and_b32 v24, 3, v0\nv_bfe_u32 v25, v0, 4, 1")
    E("v_xor_b32 v26, v23, v22\nv_lshlrev_b32 v27, 13, v22\nv_lshl_add_u32 v27, v26, 6, v27\nv_lshl_add_u32 v27, v24, 4, v27")
    for i in range(4):
        E(f"v_add_u32 v{vQD + i}, {i * (32768 - 1024)}, v27")
    E(f"s_sub_u32 s{sT}, 15, s{sPI}\ns_cmp_eq_u32 s{sG}, 0\ns_cselect_b32 s{sT}, s{sT}, s{sPI}")
    E(f"s_lshl_b32 s{sTD}, s{sT}, 1\ns_add_u32 s{sTD}, s{sTD}, s{sRS}\ns_lshl_b32 s{sXN}, s{sTD}, 16\ns_add_u32 s{sXN}, s{sXN}, {WS_XN}")
    E(f"s_lshl_b32 s{sWQ}, s{sW}, 17\ns_lshl_b32 s{sT}, s{sHD}, 8\ns_add_u32 s{sWQ}, s{sWQ}, s{sT}\ns_lshl_b32 s{sWM}, s{sW}, 12")
    E("s_waitcnt lgkmcnt(0)")
    E(srd(SQ, 64, 512 * 8192), srd(SS, 74, WS_SIZE))
    if not merged:
        for j in range(2):
            E(wq_dma(j), xn_loads(j))
    E(srd(SP, 68, 2048 * 4096), srd(SB, 70, 4096), srd(SD, 72, 256))
    E("v_lshl_add_u32 v26, v21, 3, v23\nv_lshlrev_b32 v26, 8, v26\nv_lshl_add_u32 v26, v25, 5, v26\nv_lshl_add_u32 v26, v24, 3, v26")
    for d in range(4):
        E(f"v_xor_b32 v27, {d}, v23\nv_lshl_add_u32 v{vQR + d}, v27, 6, v26\nv_add_u32 v{vQR + 4 + d}, 0x10000, v{vQR + d}")
    E(f"s_lshl_b32 s{sT}, s{sG}, 14\nv_add_u32 v{vKc}, s{sT}, v{vL16}\nv_add_u32 v{vKn}, 32768, v{vKc}\nv_add_u32 v{vVc}, {VB0}, v{vKc}\nv_mov_b32 v{vVp}, v{vVc}")
    E(f"v_lshlrev_b32 v26, 2, v21\nv_sub_u32 v{vD0}, v20, v26\nv_mov_b32 v{vNEG}, {fbits(NEG)}")
    E(f"s_lshl_b32 s{sKN}, s{sHD}, 19\ns_lshl_b32 s{sT}, s{sRS}, 13\ns_add_u32 s{sKN}, s{sKN}, s{sT}\ns_add_u32 s{sKN}, s{sKN}, {WS_KF}")
    E(f"s_lshl_b32 s{sT}, s{sPI}, 1\ns_add_u32 s{sT}, s{sT}, 2\ns_sub_u32 s{sT2}, 18, s{sT}\ns_lshl_b32 s{sT2}, s{sT2}, 14")
    E(f"s_cmp_eq_u32 s{sG}, 0\ns_cselect_b32 s{sSW}, 8, s{sT}\ns_cselect_b32 s{sJUMP}, 0x4000, s{sT2}\ns_sub_u32 s{sSW2}, s{sSW}, 2")
    E(f"s_lshl_b32 s{sFL}, s{sPI}, 8\ns_add_u32 s{sFL}, s{sFL}, {WS_FLAG2}\ns_lshl_b32 s{sPF}, s2, 2\ns_add_u32 s{sPF}, s{sPF}, s{sW}\ns_lshl_b32 s{sPF}, s{sPF}, 10")
    if "nowsp" in EXP:
        E(f"s_mov_b32 s{sPF}, 0x1000000")
    if merged:
        import k1
        E(f"s_mov_b32 s98, 0x20000000\ns_cmp_eq_u32 s{sG}, 1\ns_cbranch_scc1 K2_ZE2")
        st0 = (list(k.vm), list(k.lg))
        E(k1.z_epilogue(False, SS, vL16, 20, 21, sRS, 0), "s_branch K2_ZE")
        k.set_state(*st0)
        E("K2_ZE2:")
        E(k1.z_epilogue(True, SS, vL16, 20, 21, sRS, 0))
        E("K2_ZE:")
        E("s_barrier")
        for j in range(2):
            E(wq_dma(j), xn_loads(j))
    stamp(k, 5)
    rstamp(k, 19, 24)
    qproj(k)
    if MERGE12:
        E(WLG0, "s_barrier")
        E("v_and_b32 v20, 31, v0\nv_lshrrev_b32 v21, 5, v0", k.zc)
    E(VM(f"buffer_load_dwordx4 {v(ZT + 40, 4)}, v{vL16}, {s(SP, 4)}, s{sPF} offen", "pf"), f"s_add_u32 s{sPF}, s{sPF}, 0x100000")
    gm, wrapped, pin = schedule_loop()
    gmd, wrapped_d, pin_d = schedule_loop('D', pin)
    gmf, wrapped_f, pin_f = schedule_loop('F', pin)
    assert pin == pin_d and pin == pin_f
    wtxt = [it[1] for it in flat(wrapped)]
    for r in range(16):
        E(f"v_mov_b32 v{P(1, 0) + r}, 0\nv_mov_b32 v{NEGM[0] + r}, 0\nv_mov_b32 v{NEGM[1] + r}, 0")
        late = f"v_exp_f32 v{S[1] + r}, v{S[1] + r}" in wtxt
        E(f"v_mov_b32 v{S[1] + r}, {'v%d' % vNEG if late else '0'}")
    assert not any(f"v{S[0] + r}," in w or w.endswith(f"v{S[0] + r}") for w in wtxt for r in range(16))
    for r in (8, 9, 10, 11, 12, 13):
        E(f"v_mov_b32 v{r}, 0")
    E(f"v_mov_b32 v{vT}, 0x7f800000")
    for r0 in range(0, 16, 4):
        for r in range(r0, r0 + 4):
            E(f"v_cmp_gt_i32 s[{64 + 2 * (r % 4)}:{65 + 2 * (r % 4)}], {8 * (r // 4) + r % 4}, v{vD0}\nv_mov_b32 v{NEGB + r}, v{vNEG}")
        for r in range(r0, r0 + 4):
            E(f"v_cndmask_b32 v{MSK + r}, v{vT}, v{vNEG}, s[{64 + 2 * (r % 4)}:{65 + 2 * (r % 4)}]")
    E(f"s_mov_b32 s{sEV}, 0\ns_mov_b32 s{sDG}, 0")
    for x in range(2):
        E(f"s_mov_b32 s{sTH[x]}, {NINF}\ns_mov_b32 s{sLO[x]}, {NINF}")
    for i in range(8):
        E(mfma(('a', aO + 16 * i), ('v', P(1, 0)), ('v', P(1, 0)), 0))
    E(f"s_mov_b32 s{sU}, 0\ns_mov_b32 s{sTL}, 0\ns_mov_b32 s{sMK}, s{sW8}\ns_add_u32 s{sMV}, s{sW8}, {VB0 + 32768}")
    E(WLG0)
    stamp(k, 1)
    rstamp(k, 19, 26)
    dstamp(k, 4)
    def body(gm_, sf):
        diag = sf == "D"
        k.set_state(["kv"] * 16 + ["pf"], ["k"] * 8)
        main = qk(0) + qk(1) + pv(0, 1) + pv(1, 1) + qk(0, NEGB if diag else None) + qk(1) + pv(0, 0) + pv(1, 0)
        gm_[-1] = [I(f"K2_SWRET{sf}:"), WLG("k")]
        if sf:
            gm_[31] = gm_[31] + [I(f"s_cmp_eq_u32 s{sU}, s{sSW}"), I("s_cbranch_scc1 K2_FINB"), I(f"K2_FBRET{sf}:")]
        gm_[63] = gm_[63] + [I(f"s_cmp_lt_u32 s{sU}, 17"), I("s_cbranch_scc1 K2_LOOP")]
        bd = place(main, gm_)

        def drop(it):
            tx = it[1] if len(it) > 1 and isinstance(it[1], str) else ""
            if "nodma" in EXP and ("buffer_load" in tx): return True
            if "nobar" in EXP and tx == "s_barrier": return True
            if "nowait" in EXP and ("s_waitcnt" in tx or it[0] in ('wlg',)): return True
            if "noread" in EXP and tx.startswith("ds_read"): return True
            if "nobr" in EXP and ("K2_RARE" in tx or "K2_FINB" in tx): return True
            return False
        E([it for it in bd if not drop(it)])

    E(".p2align 6")
    for _ in range(int(os.environ.get("PAD", "0"))):
        E("s_nop 0")
    E("K2_LOOP:")
    if PROF and os.environ.get("PROF2"):
        E("s_memtime s[78:79]", "s_waitcnt lgkmcnt(0)", f"s_mov_b32 m0, s{sU}", "s_nop 0", "v_writelane_b32 v255, s78, m0")
    E(f"s_cmp_eq_u32 s{sU}, s{sEV}\ns_cbranch_scc1 K2_EVENT")
    body(gm, '')
    E("K2_TAIL:")
    stamp(k, 8)
    rstamp(k, 19, 28)
    dstamp(k, 5)
    if PROF:
        E(f"s_lshl_b32 s78, s2, 2\ns_add_u32 s78, s78, s{sW}\ns_lshl_b32 s78, s78, 8\ns_add_u32 s78, s78, {WS_PROF + 0x100000}\nv_lshlrev_b32 v254, 2, v0")
        E(f"buffer_store_dword v255, v254, {s(SS, 4)}, s78 offen")
    E(vreads(vVp, 1))
    gs = g_setup()
    E(gs[-2:])
    t = vT
    tl = flat(wrapped)
    for x in range(2):
        tl += flat([f"v_add_f32 v{vLs[x][0]}, v{vLs[x][0]}, v{vLs[x][1]}"])
    for x in range(2):
        tl += flat([f"v_mov_b32 v{vLs[x][1]}, v{vLs[x][0]}"])
    tl += flat([f"v_add_u32 v{t + 4}, s{sW8}, v{vL16}\nv_and_b32 v{t + 5}, 0x18000, v{vVp}"])
    for x in range(2):
        tl += flat([f"v_permlane32_swap_b32 v{vLs[x][0]}, v{vLs[x][1]}"])
    tl += flat([f"v_add_u32 v{t + 5}, v{t + 5}, v{t + 4}\nv_add_u32 v{t + 4}, {SPARE}, v{t + 4}"])
    for x in range(2):
        tl += flat([f"v_add_f32 v{vLs[x][0]}, v{vLs[x][0]}, v{vLs[x][1]}"])
    tl += [[I(f"s_cmp_eq_u32 s{sG}, 0"), I("s_cselect_b64 vcc, -1, 0")]]
    tl += flat([f"v_xor_b32 v{t + 6}, 0x4000, v{t + 4}\nv_xor_b32 v{t + 7}, 0x4000, v{t + 5}",
                f"v_cndmask_b32 v{t + 8}, v{vNM[0]}, v{vNM[1]}, vcc\nv_cndmask_b32 v{t + 9}, v{vLs[0][0]}, v{vLs[1][0]}, vcc"])
    tl += [LG(f"ds_write_b64 v{t + 6}, {v(t + 8, 2)}")]
    tl += flat(gs[:-2])
    tl += flat([f"s_sub_u32 s{sT}, 15, s{sPI}\ns_lshl_b32 s{sT}, s{sT}, 2\ns_lshl_b32 s{sT2}, s{sRS}, 1\ns_add_u32 s{sT}, s{sT}, s{sT2}\ns_add_u32 s{sT}, s{sT}, s{sG}",
                f"s_mul_i32 s{sT}, s{sT}, {CTXU_STEPS}\ns_lshl_b32 s{sT2}, s{sHD}, 3\ns_add_u32 s{sT}, s{sT}, s{sT2}",
                f"s_lshl_b32 s{sT}, s{sT}, 10\ns_add_u32 s{sT}, s{sT}, {WS_CTXU}\ns_add_u32 s{sT2}, s{sT}, 4096"])
    zz = g_zl(0)
    out_, gi = [], 0
    for i, it in enumerate(tl):
        while gi < len(zz) and gi * len(tl) <= i * len(zz):
            out_.append(zz[gi])
            gi += 1
        out_.append(it)
    E(out_, zz[gi:])
    E(WVM("pf"), WLG0, "s_barrier")
    E(f"s_cmp_eq_u32 s{sG}, 1\ns_cbranch_scc1 K2_MERGE1")
    st = (list(k.vm), list(k.lg))
    merge(k, 0)
    E("s_branch K2_G")
    k.set_state(*st)
    E("K2_MERGE1:")
    merge(k, 1)
    E("K2_G:")
    stamp(k, 3)
    gphase(k)
    if PROF and not MERGE23:
        E(WVM0)
    stamp(k, 4)
    rstamp(k, 19, 30)
    dstamp(k, 6)
    lstamp_store(k, 1, 19, 28, SS, sW)
    if PROF:
        E(f"s_mov_b32 s95, s{sPI}")
    stamp_store(k, 1, SS, sW, 208)
    if MERGE23:
        import k3
        E(f"s_mov_b64 exec, -1\ns_lshl_b32 s{sT}, s{sHD}, 3\ns_add_u32 s{sT}, s{sT}, s{sPI}\ns_lshl_b32 s{sT}, s{sT}, 4\ns_add_u32 s50, s{sT}, {WS_FU}")
        k3.build(k)
    E("K2_END:")
    E("s_endpgm")
    for x in range(2):
        for buf in range(2):
            rare_path(k, x, buf)
    hooks(k)
    body(gmd, 'D')
    E("s_branch K2_TAIL")
    body(gmf, 'F')
    E("s_branch K2_TAIL")
    if merged:
        return
    return k.text(512, 256)
```

```python
def v(n, c=1):
    return f"v{n}" if c == 1 else f"v[{n}:{n + c - 1}]"


def a(n, c=1):
    return f"a{n}" if c == 1 else f"a[{n}:{n + c - 1}]"


def s(n, c=1):
    return f"s{n}" if c == 1 else f"s[{n}:{n + c - 1}]"


def R(spec, c=1):
    return (v if spec[0] == 'v' else a)(spec[1], c)


def I(text):
    return ('i', text)


def VM(text, tag=None):
    return ('vm', text, tag)


def LG(text, tag=None):
    return ('lg', text, tag)


def VMG(text, tag):
    return ('vmg', text, tag)


def WVMG(tag):
    return ('wvmg', tag)


def WVM(tag):
    return ('wvm', tag)


def WLG(tag):
    return ('wlg', tag)


WVM0 = ('wvm0',)
WLG0 = ('wlg0',)
WALL0 = ('wall0',)


def mfma(d, A, B, C=None):
    ds = R(d, 16)
    cs = ds if C is None else ("0" if C == 0 else R(C, 16))
    return ('i', f"v_mfma_f32_32x32x16_bf16 {ds}, {R(A, 4)}, {R(B, 4)}, {cs}")


def flat(items):
    out = []
    for it in items:
        if isinstance(it, list):
            out.extend(flat(it))
        elif isinstance(it, str):
            for line in it.split("\n"):
                line = line.strip()
                if line:
                    out.append(('i', line))
        else:
            out.append(it)
    return out


def weave(main, fillers, start=0, end=None, lead=False):
    n = len(main)
    if end is None:
        end = n
    gaps = [[] for _ in range(n + 1)]
    ng = end - start
    nf = len(fillers)
    for i, f in enumerate(fillers):
        g = start + (i * ng) // nf if nf else 0
        gaps[g + (0 if lead else 1)].append(f)
    out = list(gaps[0])
    for i, m in enumerate(main):
        out.append(m)
        out.extend(gaps[i + 1])
    return flat(out)


def place(main, gapmap):
    out = list(gapmap.get(-1, []))
    for i, m in enumerate(main):
        out.append(m)
        out.extend(gapmap.get(i, []))
    return flat(out)


class Kern:
    def __init__(self, name):
        self.name = name
        self.lines = []
        self.vm = []
        self.lg = []
        self.lg_has_smem = False

    def raw(self, text):
        self.lines.append(text)

    def label(self, name):
        self.lines.append(f"{name}:")

    def comment(self, text):
        self.lines.append(f"    ; {text}")

    def set_state(self, vm=None, lg=None):
        if vm is not None:
            self.vm = list(vm)
        if lg is not None:
            self.lg = list(lg)

    def _wait(self, fifo, tag, nm, mx):
        last = -1
        for i, t in enumerate(fifo):
            if t == tag:
                last = i
        if last < 0:
            return fifo
        n = sum(1 for t in fifo[last + 1:] if not (isinstance(t, tuple) and t[0] == 'ghost'))
        if n > mx:
            n = mx
            cnt = 0
            last = len(fifo)
            while cnt < mx:
                last -= 1
                if not (isinstance(fifo[last], tuple) and fifo[last][0] == 'ghost'):
                    cnt += 1
            last -= 1
        self.lines.append(f"    s_waitcnt {nm}({n})")
        return fifo[last + 1:]

    def _wait_ghost(self, tag):
        idx = [i for i, t in enumerate(self.vm) if t == ('ghost', tag)]
        if not idx:
            return
        n = len(self.vm) - 1 - idx[-1]
        self.lines.append(f"    s_waitcnt vmcnt({n})")
        self.vm = [t for i, t in enumerate(self.vm) if not (i <= idx[-1] and isinstance(t, tuple))]

    def emit(self, *items):
        for it in flat(list(items)):
            k = it[0]
            if k == 'i':
                if it[1].endswith(":"):
                    self.lines.append(it[1])
                else:
                    self.lines.append("    " + it[1])
            elif k == 'vm':
                if len(self.vm) >= 60:
                    keep = self.vm[-48:]
                    n = sum(1 for t in keep if not isinstance(t, tuple))
                    self.lines.append(f"    s_waitcnt vmcnt({n})    ; auto")
                    self.vm = [t for t in self.vm[:-48] if isinstance(t, tuple)] + keep
                self.lines.append("    " + it[1])
                self.vm.append(it[2])
                assert len(self.vm) <= 63, "vmcnt overflow"
            elif k == 'vmg':
                self.lines.append("    " + it[1])
                self.vm.append(('ghost', it[2]))
                assert len(self.vm) <= 63, "vmcnt overflow"
            elif k == 'wvmg':
                self._wait_ghost(it[1])
            elif k == 'lg':
                self.lines.append("    " + it[1])
                self.lg.append(it[2])
            elif k == 'wvm':
                self.vm = self._wait(self.vm, it[1], "vmcnt", 63)
            elif k == 'wlg':
                self.lg = self._wait(self.lg, it[1], "lgkmcnt", 15)
            elif k == 'wvm0':
                self.lines.append("    s_waitcnt vmcnt(0)")
                self.vm = []
            elif k == 'wlg0':
                self.lines.append("    s_waitcnt lgkmcnt(0)")
                self.lg = []
            elif k == 'reset':
                self.vm = self.vm[-1:]
                self.lg = []
            elif k == 'wall0':
                self.lines.append("    s_waitcnt vmcnt(0) lgkmcnt(0)")
                self.vm = []
                self.lg = []
            else:
                raise ValueError(it)

    def text(self, nvgpr, accum, nsgpr=102):
        t = [f".globl {self.name}", ".p2align 8", f".type {self.name},@function", f"{self.name}:"]
        t += self.lines
        desc = [
            f".amdhsa_kernel {self.name}",
            f"  .amdhsa_next_free_vgpr {nvgpr}",
            f"  .amdhsa_next_free_sgpr {nsgpr}",
            f"  .amdhsa_accum_offset {accum}",
            "  .amdhsa_group_segment_fixed_size 0",
            "  .amdhsa_kernarg_size 112",
            "  .amdhsa_user_sgpr_count 2",
            "  .amdhsa_user_sgpr_kernarg_segment_ptr 1",
            "  .amdhsa_system_sgpr_workgroup_id_x 1",
            ".end_amdhsa_kernel",
        ]
        return "\n".join(t), "\n".join(desc)


def srd(dst, ptr, nbytes):
    return [
        f"s_mov_b32 s{dst}, s{ptr}",
        f"s_mov_b32 s{dst + 1}, s{ptr + 1}",
        f"s_mov_b32 s{dst + 2}, {nbytes:#x}",
        f"s_mov_b32 s{dst + 3}, 0x20000",
    ]


def fbits(x):
    import struct
    return "0x%08x" % struct.unpack("<I", struct.pack("<f", x))[0]


import os
PROF = os.environ.get("PROF", "0") == "1"
WS_PROF = 0x8000000


def stamp(k, i):
    if not PROF:
        return
    k.emit("s_memtime s[78:79]", WLG0, f"s_mov_b32 s{80 + i}, s78")


def stamp_init(k):
    if not PROF:
        return
    for i in range(16):
        k.emit(f"s_mov_b32 s{80 + i}, 0")
    k.emit("s_memrealtime s[78:79]", WLG0, "s_mov_b32 s93, s78")


def stamp_store(k, kidx, SS, sW, vt):
    if not PROF:
        return
    k.emit("s_memrealtime s[78:79]", WLG0, "s_mov_b32 s94, s78")
    k.emit("s_memtime s[78:79]", WLG0, "s_mov_b32 s92, s78")
    k.emit("s_mov_b64 exec, -1")
    for i in range(16):
        k.emit(f"v_mov_b32 v{vt + i}, s{80 + i}")
    k.emit(f"s_lshl_b32 s78, s2, 2\ns_add_u32 s78, s78, s{sW}\ns_lshl_b32 s78, s78, 6\ns_add_u32 s78, s78, {WS_PROF + kidx * 65536}")
    k.emit(f"v_mov_b32 v{vt + 16}, 0\ns_mov_b64 exec, 1")
    for i in range(4):
        k.emit(f"buffer_store_dwordx4 v[{vt + 4 * i}:{vt + 4 * i + 3}], v{vt + 16}, s[{SS}:{SS + 3}], s78 offen offset:{16 * i}")


_uid = [0]


def wave0(sW, items):
    _uid[0] += 1
    lab = f"L_W0_{_uid[0]}"
    return [I(f"s_cmp_lg_u32 s{sW}, 0"), I(f"s_cbranch_scc1 {lab}")] + flat(items) + [I(f"{lab}:")]


def flag_set(sW, SD, sIDX, vt):
    return wave0(sW, [I(f"v_mov_b32 v{vt}, 1"), I(f"v_mov_b32 v{vt + 1}, 0"), I("s_mov_b64 exec, 1"),
                      VMG(f"buffer_store_byte v{vt}, v{vt + 1}, s[{SD}:{SD + 3}], s{sIDX} offen sc0 sc1", "flag"),
                      I("s_mov_b64 exec, -1")])


def flag_poll_issue(sW, SD, sIDX, n, vt):
    return wave0(sW, [I(f"v_and_b32 v{vt}, {n - 1}, v0"),
                      VMG(f"buffer_load_ubyte v{vt + 1}, v{vt}, s[{SD}:{SD + 3}], s{sIDX} offen sc0 sc1", "poll")])


def flag_poll_check(sW, SD, sIDX, vt):
    _uid[0] += 1
    u = _uid[0]
    return wave0(sW, [WVMG("poll"), I(f"v_cmp_ne_u32 vcc, 1, v{vt + 1}"), I("s_nop 1"), I(f"s_cbranch_vccz L_POK_{u}"),
                      I(f"L_PLP_{u}:"), I("s_sleep 2"),
                      I(f"buffer_load_ubyte v{vt + 1}, v{vt}, s[{SD}:{SD + 3}], s{sIDX} offen sc0 sc1"), I("s_waitcnt vmcnt(0)"),
                      I(f"v_cmp_ne_u32 vcc, 1, v{vt + 1}"), I("s_nop 1"), I(f"s_cbranch_vccnz L_PLP_{u}"),
                      I(f"L_POK_{u}:")])


def flag_acquired(sW):
    return wave0(sW, [WVMG("inv")])


def lstamp(k, vreg, idx):
    if PROF and os.environ.get("PROF2"):
        k.emit("s_memtime s[78:79]", WLG0, f"v_writelane_b32 v{vreg}, s78, {idx}")


def lstamp_store(k, kidx, vreg, vtmp, SS, sW):
    if PROF:
        k.emit(f"s_lshl_b32 s78, s2, 2\ns_add_u32 s78, s78, s{sW}\ns_lshl_b32 s78, s78, 8\ns_add_u32 s78, s78, {WS_PROF + 0x200000 + kidx * 0x100000}\nv_lshlrev_b32 v{vtmp}, 2, v0")
        k.emit(f"buffer_store_dword v{vreg}, v{vtmp}, s[{SS}:{SS + 3}], s78 offen")


CODEPF = os.environ.get("CODEPF", "1") == "1"


def code_prefetch(k, end_label, vtid, vdst, tag="cpf"):
    if not CODEPF:
        return
    lab = f"L_PC_{k.name}"
    k.emit("s_getpc_b64 s[96:97]", f"{lab}:")
    k.emit(f"s_mov_b32 s98, {end_label}-{lab}\ns_mov_b32 s99, 0x20000\ns_lshr_b32 s100, s2, 3\ns_lshl_b32 s100, s100, 12")
    k.emit(f"v_lshlrev_b32 v{vdst + 4}, 4, v{vtid}")
    k.emit(VM(f"buffer_load_dwordx4 v[{vdst}:{vdst + 3}], v{vdst + 4}, s[96:99], s100 offen", tag))


def rstamp(k, vreg, idx):
    if PROF:
        k.emit("s_memtime s[78:79]", WLG0, f"v_writelane_b32 v{vreg}, s78, {idx}")
        k.emit("s_memrealtime s[78:79]", WLG0, f"v_writelane_b32 v{vreg}, s78, {idx + 1}")


def poll_all_issue(sW, SR, soff, stride, n, vt):
    sh = stride.bit_length() - 1
    it = [I(f"v_lshlrev_b32 v{vt}, {sh}, v0")]
    for i in range(n):
        it.append(VMG(f"buffer_load_dword v{vt + 1 + i}, v{vt}, s[{SR}:{SR + 3}], {soff} offen offset:{64 * i * stride} sc0 sc1", "poll"))
    return wave0(sW, it)


def poll_all_check(sW, SR, soff, stride, n, vt, val):
    _uid[0] += 1
    u = _uid[0]

    def test(br):
        o = []
        for i in range(1, n):
            o.append(I(f"v_and_b32 v{vt + 1}, v{vt + 1}, v{vt + 1 + i}"))
        return o + [I(f"v_cmp_ne_u32 vcc, {val:#x}, v{vt + 1}"), I("s_nop 1"), I(br)]

    it = [WVMG("poll")] + test(f"s_cbranch_vccz L_POK_{u}") + [I(f"L_PLP_{u}:"), I("s_sleep 4")]
    for i in range(n):
        it.append(I(f"buffer_load_dword v{vt + 1 + i}, v{vt}, s[{SR}:{SR + 3}], {soff} offen offset:{64 * i * stride} sc0 sc1"))
    it += [I("s_waitcnt vmcnt(0)")] + test(f"s_cbranch_vccnz L_PLP_{u}") + [I(f"L_POK_{u}:")]
    return wave0(sW, it)


DBGT = os.environ.get("DBGT", "0") == "1"


def dstamp(k, i):
    if DBGT:
        k.emit("s_memrealtime s[78:79]", WLG0, f"s_mov_b32 s{80 + i}, s78")


def dstamp_store(k, SD, sW, n):
    if DBGT:
        k.emit(f"s_and_b32 s78, s2, 0xfb\ns_cmp_lg_u32 s78, 0\ns_cbranch_scc1 L_DBG_END\ns_cmp_lg_u32 s{sW}, 0\ns_cbranch_scc1 L_DBG_END")
        k.emit("s_lshl_b32 s78, s2, 3\nv_mov_b32 v150, 0\ns_mov_b64 exec, 1")
        for i in range(1, n + 1):
            k.emit(f"s_sub_u32 s79, s{80 + i}, s80\nv_mov_b32 v151, s79\nbuffer_store_dword v151, v150, s[{SD}:{SD + 3}], s78 offen offset:{4 * (i - 1)}")
        k.emit("L_DBG_END:")
```

```python
from asmlib import *
from common import *

import os
KVST = os.environ.get("KVST", "sc1")
NOPF = os.environ.get("NOPF", "0") == "1"
EXP = os.environ.get("EXP", "")
SX, SC, SW, SI, SS, SD, SPF = 8, 12, 16, 20, 24, 28, 72
sW, sRB, sCB, sNB, sMB, sRS, sCH = 32, 33, 34, 35, 36, 37, 38
sT, sT2, sCK, sWK, sW8, sW2, sKO, sWI, sXN, sCNT, sONES, sWB, sDO = 56, 57, 58, 59, 60, 61, 62, 63, 64, 65, 66, 67, 68
sXO = 39

vCD = 1
vUD = 9
vCR = 17
vBR = 25
vL16 = 31
vF = 32
vT = 40
STG = 64
vQD, vQR, vPF = 64, 68, 76
WF = 96
ACC = (128, 192)
SLOT = 49152
UREG = (3, 4, 0, 1)


def A(ks, cs):
    return ('a', (ks * 32 + cs) * 4)


def seg_off(byte):
    return byte // 65536, byte % 65536


def a_dma(j):
    out = []
    base = (j % 3) * SLOT
    for i in range(8):
        g = []
        if i % 4 == 0:
            g += [I(f"s_add_u32 m0, s{sW8}, {base + (i // 4) * 4096}"), I(f"s_add_u32 s{sDO}, s{sCK}, {j * 128}")]
        g.append(VM(f"buffer_load_dwordx4 v{vCD + i}, {s(SC, 4)}, s{sDO} offen offset:{1024 * (i % 4)} lds", f"p{j}"))
        out.append(g)
    return out


def b_dma(j):
    out = []
    for i in range(4):
        g = []
        if i == 0:
            g += [I(f"s_add_u32 m0, s{sW2}, {(j % 3) * SLOT + 32768}"), I(f"s_add_u32 s{sDO}, s{sWB}, {j * 64 * 8192}")]
        g.append(VM(f"buffer_load_dwordx4 v{vQD + i}, {s(SW, 4)}, s{sDO} offen offset:{1024 * i} lds", f"p{j}"))
        out.append(g)
    return out


def unit_dma(u):
    out = []
    base = UREG[u] * 32768
    off = (u % 2) * 256 * 8192 + (2 + u // 2) * 128
    for i in range(8):
        g = []
        if i % 4 == 0:
            g += [I(f"s_add_u32 m0, s{sW8}, {base + (i // 4) * 4096}"), I(f"s_add_u32 s{sDO}, s{sWK}, {off}")]
        g.append(VM(f"buffer_load_dwordx4 v{vUD + i}, {s(SW, 4)}, s{sDO} offen offset:{1024 * (i % 4)} lds", f"u{u}"))
        out.append(g)
    return out


def zslot(z):
    return (z + 2) % 5


def z_dma(z, xn_only=False, w_only=False):
    out = []
    base = zslot(z) * 32768
    for p in range(2):
        if not xn_only:
            for i in range(3):
                g = []
                if i == 0:
                    g += [I(f"s_add_u32 m0, s{sW8}, {base + p * 4096}"), I(f"s_add_u32 s{sDO}, s{sWI}, {z * 64 * 2752 + p * 1376}")]
                g.append(VM(f"buffer_load_dwordx4 v{vCD + i}, {s(SI, 4)}, s{sDO} offen offset:{1024 * i} lds", f"z{z}"))
                out.append(g)
        if not w_only:
            out.append([I(f"s_add_u32 m0, s{sW8}, {base + p * 4096 + 3072}"), I(f"s_add_u32 s{sDO}, s{sXN}, {p * 32768 + z * 4096}"),
                        VM(f"buffer_load_dwordx4 v{vL16}, {s(SS, 4)}, s{sDO} offen sc1 lds", f"z{z}")])
    return out


def pa_reads(c):
    j, cs = c // 4, c % 4
    slot = j % 3
    sg, off = (0, slot * SLOT) if slot == 0 else (1, (slot - 1) * SLOT)
    out = [LG(f"ds_read_b128 {R(A(ks, c), 4)}, v{vCR + sg * 4 + cs} offset:{off + ks * 4096}", f"r{c}") for ks in range(2)]
    fb = WF + (c % 2) * 16
    for d in range(4):
        for sec in range(2):
            out.append(LG(f"ds_read_b64_tr_b16 {v(fb + 4 * d + 2 * sec, 2)}, v{vQR + sg * 4 + d} "
                          f"offset:{off + cs * 4096 + sec * 1024}", f"r{c}"))
    return out


def pa_mf(c, vtype):
    fb = WF + (c % 2) * 16
    out = []
    for d in range(4):
        for ks in range(2):
            cf, wf = A(ks, c), ('v', fb + 4 * d)
            X, Y = (cf, wf) if vtype else (wf, cf)
            out.append(mfma(('v', ACC[d // 2] + (ks * 2 + d % 2) * 16), X, Y, 0 if c == 0 else None))
    return out


def pb_reads(c):
    u = c // 16
    sg, off = seg_off(UREG[u] * 32768 + (c % 16) * 2048)
    fb = WF + (c % 4) * 8
    return [LG(f"ds_read_b64_tr_b16 {v(fb + 4 * d2 + 2 * sec, 2)}, v{vBR + sg * 2 + d2} offset:{off + sec * 512}", f"s{c}")
            for d2 in range(2) for sec in range(2)]


def pb_mf(c, vtype):
    p, cs = 2 + c // 32, c % 32
    fb = WF + (c % 4) * 8
    out = []
    for d2 in range(2):
        for ks in range(2):
            cf, wf = A(ks, cs), ('v', fb + 4 * d2)
            X, Y = (cf, wf) if vtype else (wf, cf)
            out.append(mfma(('v', ACC[p % 2] + (ks * 2 + d2) * 16), X, Y, 0 if cs == 0 else None))
    return out


def kv_epi(p, staged=False):
    out = []
    for ks in range(2):
        for d2 in range(2):
            for g in range(2):
                b = ACC[p % 2] + (ks * 2 + d2) * 16 + 8 * g
                grp = []
                if d2 == 0 and g == 0:
                    grp.append(I(f"s_add_u32 s{sT2}, s{sKO}, {(p // 2) * 64 * 8192 + ks * 8192 + (p % 2) * 4096}"))
                if staged:
                    b = STG + ((ks * 2 + d2) * 2 + g) * 4
                else:
                    grp += [I(f"v_cvt_pk_bf16_f32 v{b + i}, v{b + 2 * i}, v{b + 2 * i + 1}") for i in range(2)]
                    out.append(grp)
                    grp = [I(f"v_cvt_pk_bf16_f32 v{b + i}, v{b + 2 * i}, v{b + 2 * i + 1}") for i in range(2, 4)]
                grp.append(VM(f"buffer_store_dwordx4 {v(b, 4)}, v{vL16}, {s(SS, 4)}, s{sT2} offen offset:{(2 * d2 + g) * 1024} {KVST}", "st"))
                out.append(grp)
    return out


def XF(c):
    return A(c % 2, c // 2)


def xn_loads():
    out = []
    for c in range(32):
        g = []
        if c % 4 == 0:
            g.append(I(f"s_add_u32 s{sXO}, s{sXN}, {(c // 4) * 4096}"))
        g.append(VM(f"buffer_load_dwordx4 {R(XF(c), 4)}, v{vL16}, {s(SS, 4)}, s{sXO} offen offset:{(c % 4) * 1024} sc1", f"xn{c // 4}"))
        out.append(g)
    return out


def gelu(regs, vC0, vC1, tmp):
    out = []
    for i in range(0, len(regs), 4):
        g = regs[i:i + 4]
        t = [tmp + j for j in range(4)]
        for op in ("v_mul_f32 v{t}, v{x}, v{x}", "v_fma_f32 v{t}, v{t}, v{c1}, v{c0}", "v_mul_f32 v{t}, v{t}, v{x}",
                   "v_exp_f32 v{t}, v{t}", "v_add_f32 v{t}, 1.0, v{t}", "v_rcp_f32 v{t}, v{t}", "v_mul_f32 v{x}, v{x}, v{t}"):
            for x, tt in zip(g, t):
                out.append(op.format(t=tt, x=x, c0=vC0, c1=vC1))
    return out


def ln_code():
    o = []
    for i in range(4):
        o.append(f"v_mov_b32 v{48 + i}, 0")
    for r in range(2):
        for i in range(4):
            o.append(f"v_dot2_f32_bf16 v{48 + r}, v{40 + 4 * r + i}, s{sONES}, v{48 + r}")
            o.append(f"v_dot2_f32_bf16 v{50 + r}, v{40 + 4 * r + i}, v{40 + 4 * r + i}, v{50 + r}")
    o += ["s_nop 2", "v_permlane32_swap_b32 v48, v49", "v_permlane32_swap_b32 v50, v51", "s_nop 1",
          "v_add_f32 v48, v48, v49", "v_add_f32 v50, v50, v51", "s_nop 1",
          "v_permlane16_swap_b32 v48, v50", "s_nop 1", "v_add_f32 v48, v48, v50"]
    for sh in (8, 4, 2, 1):
        o += ["s_nop 1", f"v_add_f32_dpp v48, v48, v48 row_ror:{sh} row_mask:0xf bank_mask:0xf"]
    o += ["s_nop 1", f"v_mul_f32 v48, {fbits(1 / 512)}, v48", "s_nop 0",
          "v_readlane_b32 s40, v48, 0", "v_readlane_b32 s41, v48, 16", "v_readlane_b32 s42, v48, 32", "v_readlane_b32 s43, v48, 48",
          "s_nop 1"]
    for r in range(2):
        m, q = 40 + 2 * r, 41 + 2 * r
        a_, b_ = 52 + 2 * r, 53 + 2 * r
        o += [f"v_mov_b32 v{b_}, s{m}", f"v_mov_b32 v{a_}, s{q}", f"v_fma_f32 v{a_}, -v{b_}, v{b_}, v{a_}", f"v_max_f32 v{a_}, 0, v{a_}",
              f"v_add_f32 v{a_}, {fbits(LN_EPS)}, v{a_}", f"v_rsq_f32 v{a_}, v{a_}", "s_nop 0",
              f"v_mul_f32 v{b_}, v{b_}, v{a_}", f"v_sub_f32 v{b_}, 0, v{b_}"]
    for r in range(2):
        for i in range(4):
            x = 40 + 4 * r + i
            o += [f"v_lshlrev_b32 v56, 16, v{x}", f"v_and_b32 v57, 0xffff0000, v{x}",
                  f"v_fma_f32 v56, v56, v{52 + 2 * r}, v{53 + 2 * r}", f"v_fma_f32 v57, v57, v{52 + 2 * r}, v{53 + 2 * r}",
                  f"v_cvt_pk_bf16_f32 v{x}, v56, v57"]
    return o


def kv_phase(k, vtype):
    E = k.emit
    extra = {}

    def add(c, groups):
        extra.setdefault(c, []).extend(groups)

    def spread(c0, c1, groups):
        n = len(groups)
        for i, g in enumerate(groups):
            add(c0 + (i * (c1 - c0)) // n, [g])

    ldp = lambda sr, so, i: [VM(f"buffer_load_dwordx4 {v(vPF, 4)}, v{vL16}, {s(sr, 4)}, s{so} offen offset:{1024 * i}", "pf")]
    ldh = lambda sr, so, off: [I(f"s_add_u32 s{sT}, s{so}, {off}"), VM(f"buffer_load_dwordx4 {v(vPF, 4)}, v61, {s(sr, 4)}, s{sT} offen", "pf")]
    pf0 = [ldp(SC, 77, i) for i in range(2)] + [ldh(SPF, 76, 128 * 8192), ldh(SPF, 76, 256 * 8192)]
    pf1 = [ldh(SPF, 76, 384 * 8192)]
    pf2 = [ldh(SPF, 76, 256 + r * 128 * 8192) for r in range(4)] + [ldp(SI, 77, i) for i in range(2)]
    if "noown" in EXP:
        pf0, pf1, pf2 = [], [], []
    if "pfall" in EXP:
        pf0, pf1, pf2 = pf0 + pf1 + pf2, [], []
    if "pf01" in EXP:
        pf0, pf1 = pf0 + pf1, []
    add(1, pf1)
    if pf2:
        a_, b_ = [int(x) for x in os.environ.get("PF2", "8,20").split(",")]
        spread(a_, b_, pf2)
    ln = ln_code()
    lng = [[I(x) for x in ln[i:i + 4]] for i in range(0, len(ln), 4)]
    lng.append([LG("ds_write_b128 v58, v[40:43]"), LG("ds_write_b128 v58, v[44:47] offset:16")])
    xst = [[LG("ds_read_b128 v[40:43], v59", "xr"), LG("ds_read_b128 v[44:47], v59 offset:1024", "xr")],
           [WLG("xr"), VM(f"buffer_store_dwordx4 v[40:43], v62, {s(SS, 4)}, s69 offen sc1", "xs")],
           [I(f"v_add_u32 v62, 4096, v62"), VM(f"buffer_store_dwordx4 v[44:47], v62, {s(SS, 4)}, s69 offen sc1", "xs")]]
    if "noxs" not in EXP:
        spread(12, 15, xst)
    zf = [I("v_mov_b32 v60, 0"), I(f"s_lshl_b32 s{sT}, s{sCB}, 8"), I(f"s_add_u32 s{sT}, s{sT}, s{sRB}"), I(f"s_add_u32 s{sT}, s{sT}, {WS_FLAG2}"),
          I("s_mov_b64 exec, 1"), VMG(f"buffer_store_byte v60, v60, {s(SS, 4)}, s{sT} offen sc0 sc1", "fz")]
    for base, sh in ((WS_FCTX, 4), (WS_FU, 4), (WS_FP1, 4), (WS_FLAG3, 5)):
        zf += [I(f"s_lshl_b32 s{sT}, s2, {sh}"), I(f"s_add_u32 s{sT}, s{sT}, {base}"), VMG(f"buffer_store_dword v60, v60, {s(SS, 4)}, s{sT} offen sc0 sc1", "fz")]
    add(6, [wave0(sW, zf + [I("s_mov_b64 exec, -1")])])
    spread(0, 3, a_dma(2) + b_dma(2))
    spread(3, 11, lng)
    E(pf0)
    E(WVM("p0"), "s_barrier")
    dstamp(k, 1)
    stamp(k, 6)
    E(pa_reads(0))
    for c in range(32):
        E(WLG(f"r{c}"))
        fill = []
        if c % 4 == 3:
            j = c // 4
            lstamp(k, 63, 3 * j)
            if j < 7:
                E(WVM(f"p{j + 1}"))
            else:
                E(WVM("u0"))
            if j == 5:
                E(WVM("xs"))
            if j == 2:
                E(WLG0)
            lstamp(k, 63, 3 * j + 1)
            E("s_barrier")
            lstamp(k, 63, 3 * j + 2)
            if j + 3 < 8:
                post = a_dma(j + 3) + b_dma(j + 3)
            elif j == 5:
                post = unit_dma(0) + unit_dma(1)[:4]
            elif j == 6:
                post = unit_dma(1)[4:] + unit_dma(2)
            else:
                post = []
            if j == 5 and "noflag" not in EXP:
                post = post + [wave0(sW, [WVMG("fz")]), flag_set(sW, SD, 2, 46)]
            if j < 7:
                spread(c, c + 4, post)
        if c < 31:
            fill += pa_reads(c + 1)
            fill = interleave(fill, extra.get(c, []))
            E(weave(pa_mf(c, vtype), fill, 0, 8))
        else:
            m = pa_mf(c, vtype)
            stg = []
            for tl in range(4):
                for g in range(2):
                    b = ACC[0] + tl * 16 + 8 * g
                    stg += [I(f"v_cvt_pk_bf16_f32 v{STG + (tl * 2 + g) * 4 + i}, v{b + 2 * i}, v{b + 2 * i + 1}") for i in range(4)]
            order = [0, 2, 1, 3]
            E(m[:4], pb_reads(0), m[4], m[5])
            seq = [stg[o * 8:(o + 1) * 8] for o in order]
            E(seq[0], m[6], seq[1], m[7], pb_reads(1), seq[2], seq[3])
    stamp(k, 7)
    dstamp(k, 2)
    extra.clear()
    wi = []
    for i in range(3):
        wi.append([I(x) for x in (f"v_add_u32 v46, {64 * i}, v0", "v_mul_u32_u24 v47, 43691, v46", "v_lshrrev_b32 v47, 19, v47",
                                  "v_mul_u32_u24 v48, 12, v47")])
        wi.append([I(x) for x in ("v_sub_u32 v48, v46, v48", "v_mul_u32_u24 v47, 2752, v47", f"v_lshl_add_u32 v{vCD + i}, v48, 4, v47",
                                  f"v_subrev_u32 v{vCD + i}, {1024 * i}, v{vCD + i}")])
    wi.append([I(x) for x in (f"v_lshl_add_u32 v46, v{vF + 1}, 3, v{vF + 3}", "v_mul_u32_u24 v46, 192, v46",
                              f"v_lshl_add_u32 v46, v{vF + 5}, 5, v46", f"v_lshl_add_u32 v46, v{vF + 4}, 3, v46")])
    wi.append([I(x) for x in (f"s_lshl_b32 s{sT}, s{sCH}, 12", f"v_add_u32 v{vCR}, s{sT}, v46", f"v_add_u32 v{vCR + 1}, 0x10000, v{vCR}",
                              f"v_add_u32 v{vCR + 2}, 0x20000, v{vCR}")])
    wi.append([I(x) for x in (f"s_lshl_b32 s{sT}, s{sRS}, 12", f"s_add_u32 s{sT}, s{sT}, 3072", f"v_add_u32 v{vCR + 3}, s{sT}, v{vL16}",
                              f"v_add_u32 v{vCR + 4}, 0x10000, v{vCR + 3}", f"v_add_u32 v{vCR + 5}, 0x20000, v{vCR + 3}")])
    spread(0, 6, unit_dma(3))
    spread(0, 6, wi)
    spread(7, 13, z_dma(0, w_only=True))
    spread(0, 15, kv_epi(0, staged=True))
    spread(15, 32, kv_epi(1))
    spread(33, 64, kv_epi(2))
    if "noflag" not in EXP:
        if MERGE12:
            add(13, [poll_all_issue(sW, SD, "0", 4, 1, 50)])
            add(29, [poll_all_check(sW, SD, "0", 4, 1, 50, 0x01010101)])
        else:
            add(13, [flag_poll_issue(sW, SD, sCNT, 8, 50)])
            add(29, [flag_poll_check(sW, SD, sCNT, 50)])
    pf = [[I(f"s_mov_b32 s{SPF}, s44"), I(f"s_mov_b32 s{SPF + 1}, s45")] +
          [VM(f"buffer_load_dwordx4 v[52:55], v{vL16}, {s(SPF, 4)}, s70 offen", "pf")]]
    pf += [[VM(f"buffer_load_dwordx4 v[52:55], v{vL16}, {s(SPF, 4)}, s70 offen offset:{1024 * i}", "pf")] for i in range(1, 4)]
    if not NOPF:
        a_, b_ = [int(x) for x in os.environ.get("PFQ", "50,62").split(",")]
        spread(a_, b_, pf)
    for c in range(64):
        n = c + 2
        fill = []
        if n < 64:
            if n % 16 == 0:
                u = n // 16
                lstamp(k, 63, 21 + 3 * u)
                E(WLG(f"s{n - 1}"), WVM(f"u{u}"))
                lstamp(k, 63, 22 + 3 * u)
                E("s_barrier")
                lstamp(k, 63, 23 + 3 * u)
                if u == 1:
                    spread(c, c + 12, z_dma(1, w_only=True))
                elif u == 2:
                    spread(c, c + 14, z_dma(0, xn_only=True) + z_dma(1, xn_only=True) + z_dma(2))
                else:
                    spread(c, c + 14, z_dma(3))
            fill += pb_reads(n)
        E(WLG(f"s{c}"))
        if c == 32:
            stamp(k, 8)
        E(weave(pb_mf(c, vtype), interleave(fill, extra.get(c, [])), 0, 4))
    for c in extra:
        assert c < 64


def interleave(x, y):
    out = []
    n = max(len(x), len(y))
    for i in range(n):
        if i < len(x):
            out.append(x[i])
        if i < len(y):
            out.append(y[i])
    return out


def z_phase(k, z2):
    E = k.emit
    ZACC = ACC[0]
    LA = 3

    def fbuf(c):
        return (c % 4) * 16

    def reads(c):
        z, cs = c // 4, c % 4
        sg, off = seg_off(zslot(z) * 32768 + cs * 8192)
        fb = fbuf(c)
        out = [LG(f"ds_read_b128 {a(fb + 12, 4)}, v{vCR + 3 + sg} offset:{off}", f"y{c}")]
        out += [LG(f"ds_read_b64_tr_b16 {a(fb + 4 * f + 2 * sec, 2)}, v{vCR + sg} offset:{off + sec * 768 + f * 64}", f"y{c}")
                for f in range(3) for sec in range(2)]
        return out

    def mf(c):
        fb = fbuf(c)
        out = []
        for f in range(3):
            wf, xf = ('a', fb + 4 * f), ('a', fb + 12)
            X, Y = (xf, wf) if z2 else (wf, xf)
            out.append(mfma(('v', ZACC + 16 * f), X, Y, 0 if c == 0 else None))
        return out

    epi = kv_epi(3)
    lstamp(k, 63, 33)
    E(WVM("z0"), "s_barrier")
    lstamp(k, 63, 34)
    for c in range(LA):
        E(reads(c))
    pend = z_dma(4)
    for c in range(32):
        n = c + LA
        if n < 32 and n % 4 == 0:
            z = n // 4
            lstamp(k, 63, 33 + 3 * z)
            E(WLG(f"y{n - 1}"), WVM(f"z{z}"))
            lstamp(k, 63, 34 + 3 * z)
            E("s_barrier")
            if z + 4 < 8:
                pend = pend + z_dma(z + 4)
        E(WLG(f"y{c}"))
        r_ = reads(n) if n < 32 else []
        ZR = int(os.environ.get("ZR", "2"))
        ZE = int(os.environ.get("ZE", "16"))
        take, pend = pend[:ZR], pend[ZR:]
        gm_ = {i: r_[(i * 7) // 3:((i + 1) * 7) // 3] + take[i:i + 1] for i in range(3)}
        for e_ in range(16):
            if ZE + (e_ * (32 - ZE)) // 16 == c:
                gm_[2] = gm_[2] + [epi[e_]]
        E(place(mf(c), gm_))


def build():
    k = Kern(KNAME if MERGE12 else "k1_kernel")
    E = k.emit
    E("s_cmp_ge_u32 s2, 256\ns_cbranch_scc1 " + ("K2_END" if MERGE12 else "K1_END"))
    code_prefetch(k, "L_CODE_END", 0, 120)
    stamp_init(k)
    dstamp(k, 0)
    stamp(k, 0)
    E(f"s_load_dwordx4 s[40:43], s[0:1], {KA_X}")
    E(f"s_load_dwordx4 s[44:47], s[0:1], {KA_WUK}")
    E(f"s_load_dwordx2 s[48:49], s[0:1], {KA_WIN}")
    E(f"s_load_dwordx4 s[52:55], s[0:1], {KA_DBG}")
    E("v_lshrrev_b32 v1, 6, v0\nv_and_b32 v0, 63, v0")
    E(f"s_lshr_b32 s{sRB}, s2, 3\ns_and_b32 s{sCB}, s2, 7")
    E(f"v_readfirstlane_b32 s{sW}, v1")
    E(f"s_and_b32 s{sNB}, s{sRB}, 3\ns_lshl_b32 s{sT}, s{sCB}, 2\ns_add_u32 s{sNB}, s{sNB}, s{sT}")
    E(f"s_lshr_b32 s{sMB}, s{sRB}, 2")
    E(f"s_and_b32 s{sRS}, s{sW}, 1\ns_lshr_b32 s{sCH}, s{sW}, 1\ns_lshl_b32 s{sW8}, s{sW}, 13\ns_lshl_b32 s{sW2}, s{sW}, 12")
    f0 = vF
    E(f"v_and_b32 v{f0}, 31, v0\nv_lshrrev_b32 v{f0 + 1}, 5, v0\nv_lshrrev_b32 v{f0 + 2}, 4, v0")
    E(f"v_bfe_u32 v{f0 + 3}, v0, 2, 2\nv_and_b32 v{f0 + 4}, 3, v0\nv_bfe_u32 v{f0 + 5}, v0, 4, 1")
    E(f"v_lshlrev_b32 v{vL16}, 4, v0")
    E(f"v_lshrrev_b32 v46, 3, v0\nv_lshlrev_b32 v50, 13, v46\nv_lshlrev_b32 v46, 10, v46\nv_and_b32 v47, 7, v0\nv_xor_b32 v47, v47, v{f0 + 2}")
    E("v_lshl_add_u32 v48, v47, 4, v46\nv_xor_b32 v47, 4, v47\nv_lshl_add_u32 v49, v47, 4, v46")
    for i in range(8):
        E(f"v_add_u32 v{vCD + i}, {i * 8192 - (i % 4) * 1024}, v{48 + (i % 2)}")
    E(f"v_bfe_u32 v47, v0, 2, 1\nv_xor_b32 v47, v47, v{f0 + 5}\nv_lshl_add_u32 v50, v47, 6, v50\nv_lshl_add_u32 v50, v{f0 + 4}, 4, v50")
    for i in range(8):
        E(f"v_add_u32 v{vUD + i}, {i * 65536 - (i % 4) * 1024}, v50")
    E(f"s_lshl_b32 s{sCK}, s{sMB}, 18\ns_lshl_b32 s{sT}, s{sW}, 16\ns_add_u32 s{sCK}, s{sCK}, s{sT}")
    E(f"s_and_b32 s{sT}, s{sNB}, 15\ns_lshl_b32 s{sT}, s{sT}, 9\ns_lshl_b32 s{sWK}, s{sW}, 19\ns_add_u32 s{sWK}, s{sWK}, s{sT}")
    E(f"s_lshl_b32 s{sWB}, s{sW}, 17\ns_add_u32 s{sWB}, s{sWB}, s{sT}")
    E(f"s_lshl_b32 s{sT2}, s2, 13\ns_lshl_b32 s{sT}, s{sW}, 11\ns_add_u32 s{sT2}, s{sT2}, s{sT}")
    E(f"v_xor_b32 v46, v{f0 + 3}, v{f0 + 2}\nv_lshlrev_b32 v47, 13, v{f0 + 2}\nv_lshl_add_u32 v47, v46, 6, v47\nv_lshl_add_u32 v47, v{f0 + 4}, 4, v47")
    for i in range(4):
        E(f"v_add_u32 v{vQD + i}, {i * (32768 - 1024)}, v47")
    E("s_waitcnt lgkmcnt(0)")
    E(srd(SX, 40, 2048 * 1024), srd(SC, 42, 2048 * 1024))
    E(VM(f"buffer_load_dwordx4 v[40:43], v{vL16}, {s(SX, 4)}, s{sT2} offen", "x"))
    E(VM(f"buffer_load_dwordx4 v[44:47], v{vL16}, {s(SX, 4)}, s{sT2} offen offset:1024", "x"))
    E(f"s_cmp_lt_u32 s{sNB}, 16\ns_cselect_b32 s{SW}, s44, s46\ns_cselect_b32 s{SW + 1}, s45, s47")
    E(f"s_mov_b32 s{SW + 2}, {512 * 8192:#x}\ns_mov_b32 s{SW + 3}, 0x20000")
    for j in range(2):
        E(a_dma(j), b_dma(j))
    E(srd(SI, 48, 512 * 2752), srd(SS, 54, WS_SIZE), srd(SD, 52, 256))
    E(f"s_lshl_b32 s{sT}, s2, 2\ns_add_u32 s{sT}, s{sT}, s{sW}\ns_lshl_b32 s70, s{sT}, 12\ns_lshl_b32 s77, s{sT}, 11\ns_and_b32 s76, s77, 0xfffff")
    E(f"s_cmp_lt_u32 s2, 128\ns_cselect_b32 s{SPF}, s44, s46\ns_cselect_b32 s{SPF + 1}, s45, s47\ns_mov_b32 s{SPF + 2}, {512 * 8192:#x}\ns_mov_b32 s{SPF + 3}, 0x20000")
    E(f"v_lshlrev_b32 v61, 9, v{f0 + 2}\nv_and_b32 v48, 15, v0\nv_lshl_add_u32 v61, v48, 4, v61")
    E(f"s_load_dwordx2 s[44:45], s[0:1], {KA_WQ}")
    E(f"v_bfe_u32 v48, v0, 1, 3\nv_xor_b32 v48, v48, v{f0 + 1}\nv_lshlrev_b32 v49, 7, v{f0}\nv_add_u32 v49, s{sW8}, v49")
    for k16 in range(4):
        E(f"v_xor_b32 v50, {2 * k16}, v48\nv_lshl_add_u32 v{vCR + k16}, v50, 4, v49\nv_add_u32 v{vCR + 4 + k16}, {SLOT}, v{vCR + k16}")
    E(f"v_lshl_add_u32 v48, v{f0 + 1}, 3, v{f0 + 3}\nv_lshlrev_b32 v48, 8, v48\nv_lshl_add_u32 v48, v{f0 + 5}, 5, v48\nv_lshl_add_u32 v48, v{f0 + 4}, 3, v48\nv_add_u32 v48, 32768, v48")
    for d in range(4):
        E(f"v_xor_b32 v49, {d}, v{f0 + 3}\nv_lshl_add_u32 v{vQR + d}, v49, 6, v48\nv_add_u32 v{vQR + 4 + d}, {SLOT}, v{vQR + d}")
    E(f"v_lshl_add_u32 v48, v{f0 + 1}, 3, v{f0 + 3}\nv_lshlrev_b32 v48, 7, v48\nv_lshl_add_u32 v48, v{f0 + 5}, 5, v48\nv_lshl_add_u32 v48, v{f0 + 4}, 3, v48")
    E(f"v_lshrrev_b32 v49, 1, v{f0 + 3}\nv_lshl_add_u32 v{vBR}, v49, 6, v48\nv_xor_b32 v49, 1, v49\nv_lshl_add_u32 v{vBR + 1}, v49, 6, v48")
    for sg in (1, 2):
        for d2 in range(2):
            E(f"v_add_u32 v{vBR + 2 * sg + d2}, {sg * 65536}, v{vBR + d2}")
    E(f"s_lshl_b32 s{sKO}, s{sNB}, 7\ns_lshl_b32 s{sT}, s{sMB}, 3\ns_add_u32 s{sKO}, s{sKO}, s{sT}\ns_lshl_b32 s{sT}, s{sW}, 1\ns_add_u32 s{sKO}, s{sKO}, s{sT}")
    E(f"s_lshl_b32 s{sKO}, s{sKO}, 13\ns_add_u32 s{sKO}, s{sKO}, {WS_KF}")
    E(f"s_mul_i32 s{sWI}, s{sW}, {16 * 2752}\ns_mul_i32 s{sT}, s{sCB}, 192\ns_add_u32 s{sWI}, s{sWI}, s{sT}")
    E(f"s_lshl_b32 s{sXN}, s{sRB}, 16\ns_lshl_b32 s{sT}, s{sW}, 10\ns_add_u32 s{sXN}, s{sXN}, s{sT}\ns_add_u32 s{sXN}, s{sXN}, {WS_XN}")
    E(f"s_lshl_b32 s{sCNT}, s{sRB}, 3\ns_mov_b32 s{sONES}, 0x3f803f80")
    E(f"s_lshr_b32 s{sT2}, s2, 2\ns_lshl_b32 s{sT2}, s{sT2}, 15\ns_and_b32 s{sT}, s2, 3\ns_lshl_b32 s{sT}, s{sT}, 7\ns_add_u32 s{sT2}, s{sT2}, s{sT}")
    E(f"s_add_u32 s{sT2}, s{sT2}, s{sW8}\ns_add_u32 s69, s{sT2}, {WS_XN}")
    E(f"s_lshl_b32 s{sT}, s{sW}, 5\ns_add_u32 s{sT}, s{sT}, {3 * SLOT}\nv_lshlrev_b32 v58, 7, v0\nv_add_u32 v58, s{sT}, v58")
    E(f"s_lshl_b32 s{sT}, s{sW}, 11\ns_add_u32 s{sT}, s{sT}, {3 * SLOT}\nv_add_u32 v59, s{sT}, v{vL16}")
    E("v_lshrrev_b32 v62, 3, v0\nv_lshlrev_b32 v62, 9, v62\nv_and_b32 v48, 7, v0\nv_lshl_add_u32 v62, v48, 4, v62")
    E("s_waitcnt lgkmcnt(0)")
    stamp(k, 1)
    E(f"s_cmp_ge_u32 s{sNB}, 16\ns_cbranch_scc1 K1_V")
    st = (list(k.vm), list(k.lg))
    kv_phase(k, False)
    E("s_branch K1_Z")
    k.set_state(*st)
    E("K1_V:")
    kv_phase(k, True)
    E("K1_Z:")
    stamp(k, 2)
    E(f"s_cmp_eq_u32 s{sCH}, 1\ns_cbranch_scc1 K1_Z2")
    st = (list(k.vm), list(k.lg))
    ZACC = ACC[0]
    zr = list(range(ZACC, ZACC + 48))
    z_phase(k, False)
    stamp(k, 3)
    E(f"s_lshl_b32 s{sT}, s{sRB}, 1\ns_add_u32 s{sT}, s{sT}, s{sRS}\ns_mul_i32 s{sT}, s{sT}, 48")
    E(f"s_mul_i32 s{sT2}, s{sCB}, 6\ns_add_u32 s{sT}, s{sT}, s{sT2}\ns_lshl_b32 s{sT}, s{sT}, 10")
    E(f"s_add_u32 s96, s{sT}, {WS_Z1}\ns_add_u32 s97, s96, 4096\ns_nop 7")
    E(f"s_cmp_lg_u32 s{sCB}, 7\ns_cbranch_scc1 K1_ZJOIN")
    for r in zr[8:]:
        E(f"v_mov_b32 v{r}, 0")
    E("s_branch K1_ZJOIN")
    k.set_state(*st)
    E("K1_Z2:")
    z_phase(k, True)
    stamp(k, 3)
    E(f"s_mul_i32 s{sT}, s{sCB}, 384\ns_lshl_b32 s{sT2}, s{sRB}, 2\ns_add_u32 s{sT}, s{sT}, s{sT2}")
    E(f"s_lshl_b32 s{sT2}, s{sRS}, 1\ns_add_u32 s{sT}, s{sT}, s{sT2}\ns_lshl_b32 s{sT}, s{sT}, 10\ns_add_u32 s96, s{sT}, {WS_Z2R}")
    E(f"s_lshl_b32 s{sT}, s{sRB}, 1\ns_add_u32 s{sT}, s{sT}, s{sRS}\ns_lshl_b32 s{sT}, s{sT}, 11\ns_add_u32 s{sT}, s{sT}, {WS_STAT}")
    E(f"s_lshl_b32 s{sT2}, s{sCB}, 8\ns_add_u32 s97, s{sT}, s{sT2}")
    E(f"s_cmp_lg_u32 s{sCB}, 7\ns_cbranch_scc1 K1_ZJOIN")
    E(f"v_cmp_gt_u32 vcc, 16, v{vF}\ns_nop 1")
    for r in zr[:16]:
        E(f"v_cndmask_b32 v{r}, 0, v{r}, vcc")
    for r in zr[16:]:
        E(f"v_mov_b32 v{r}, 0")
    E("K1_ZJOIN:")
    dstamp(k, 3)
    stamp(k, 4)
    stamp(k, 5)
    lstamp_store(k, 0, 63, 59, SS, sW)
    stamp_store(k, 0, SS, sW, 96)
    import k2
    E("s_mov_b64 exec, -1")
    k2.build(k)
    return k.text(512, 256)


def z_epilogue(z2, SS_, vL, vr, vh, srs, scr):
    ZACC = ACC[0]
    T = 48
    o = flat([f"v_mov_b32 v{T + 4}, {fbits(GELU_C0)}\nv_mov_b32 v{T + 5}, {fbits(GELU_C1)}"])
    if not z2:
        for fg in range(6):
            b = ZACC + 8 * fg
            o += flat(gelu(list(range(b, b + 8)), T + 4, T + 5, T))
            o += [I(f"v_cvt_pk_bf16_f32 v{b + i}, v{b + 2 * i}, v{b + 2 * i + 1}") for i in range(4)]
            o.append(VM(f"buffer_store_dwordx4 {v(b, 4)}, v{vL}, {s(SS_, 4)}, s{96 if fg < 4 else 97} offen offset:{1024 * (fg % 4)} sc1", "zo"))
        o.append(VM(f"buffer_load_dword v252, v{vL}, {s(SS_, 4)}, s98 offen", "zo"))
        return o
    o += flat(gelu(list(range(ZACC, ZACC + 48)), T + 4, T + 5, T))
    o += flat([f"s_mul_i32 s98, s{srs}, 9216\ns_add_u32 s98, s98, {scr}",
               f"v_mul_u32_u24 v{T + 6}, {4 * 144}, v{vh}\nv_lshl_add_u32 v{T + 6}, v{vr}, 2, v{T + 6}\nv_add_u32 v{T + 6}, s98, v{T + 6}",
               f"v_mul_u32_u24 v{T + 7}, 144, v0\nv_add_u32 v{T + 7}, s98, v{T + 7}"])
    for r in range(16):
        z0, z1, z2_ = ZACC + r, ZACC + 16 + r, ZACC + 32 + r
        a_, b_ = T + 8 + 2 * (r % 4), T + 9 + 2 * (r % 4)
        srow = 8 * (r // 4) + r % 4
        o += flat([f"v_add_f32 v{a_}, v{z0}, v{z1}\nv_mul_f32 v{b_}, v{z0}, v{z0}\nv_add_f32 v{a_}, v{a_}, v{z2_}\nv_fmac_f32 v{b_}, v{z1}, v{z1}\nv_fmac_f32 v{b_}, v{z2_}, v{z2_}"])
        o += [LG(f"ds_write_b32 v{T + 6}, v{a_} offset:{srow * 144}"), LG(f"ds_write_b32 v{T + 6}, v{b_} offset:{(32 + srow) * 144}")]
    SQ = 64
    o += [LG(f"ds_read_b128 {v(SQ + 4 * i, 4)}, v{T + 7} offset:{16 * i}", "zq") for i in range(8)]
    for f in range(3):
        for g in range(2):
            b = ZACC + 16 * f + 8 * g
            o += [I(f"v_cvt_pk_bf16_f32 v{b + i}, v{b + 2 * i}, v{b + 2 * i + 1}") for i in range(4)]
            o += flat([f"s_nop 1\nv_permlane32_swap_b32 v{b}, v{b + 2}\nv_permlane32_swap_b32 v{b + 1}, v{b + 3}\ns_nop 1"])
            o.append(VM(f"buffer_store_dwordx4 {v(b, 4)}, v{vL}, {s(SS_, 4)}, s96 offen offset:{1024 * g} sc1", "zo"))
        if f < 2:
            o.append(I(f"s_add_u32 s96, s96, {128 * 1024}"))
    o += [I(f"v_lshlrev_b32 v{T + 6}, 2, v0"), WLG("zq")]
    for stride in (16, 8, 4, 2, 1):
        o += [I(f"v_add_f32 v{SQ + i}, v{SQ + i}, v{SQ + stride + i}") for i in range(stride)]
    o.append(VM(f"buffer_store_dword v{SQ}, v{T + 6}, {s(SS_, 4)}, s97 offen sc1", "zo"))
    return o
```

```python
from asmlib import *
from common import *

import os
KVST = os.environ.get("KVST", "sc1")
NOPF = os.environ.get("NOPF", "0") == "1"
EXP = os.environ.get("EXP", "")
SX, SC, SW, SI, SS, SD, SPF = 8, 12, 16, 20, 24, 28, 72
sW, sRB, sCB, sNB, sMB, sRS, sCH = 32, 33, 34, 35, 36, 37, 38
sT, sT2, sCK, sWK, sW8, sW2, sKO, sWI, sXN, sCNT, sONES, sWB, sDO = 56, 57, 58, 59, 60, 61, 62, 63, 64, 65, 66, 67, 68
sXO = 39

vCD = 1
vUD = 9
vCR = 17
vBR = 25
vL16 = 31
vF = 32
vT = 40
STG = 64
vQD, vQR, vPF = 64, 68, 76
WF = 96
ACC = (128, 192)
SLOT = 49152
UREG = (3, 4, 0, 1)


def A(ks, cs):
    return ('a', (ks * 32 + cs) * 4)


def seg_off(byte):
    return byte // 65536, byte % 65536


def a_dma(j):
    out = []
    base = (j % 3) * SLOT
    for i in range(8):
        g = []
        if i % 4 == 0:
            g += [I(f"s_add_u32 m0, s{sW8}, {base + (i // 4) * 4096}"), I(f"s_add_u32 s{sDO}, s{sCK}, {j * 128}")]
        g.append(VM(f"buffer_load_dwordx4 v{vCD + i}, {s(SC, 4)}, s{sDO} offen offset:{1024 * (i % 4)} lds", f"p{j}"))
        out.append(g)
    return out


def b_dma(j):
    out = []
    for i in range(4):
        g = []
        if i == 0:
            g += [I(f"s_add_u32 m0, s{sW2}, {(j % 3) * SLOT + 32768}"), I(f"s_add_u32 s{sDO}, s{sWB}, {j * 64 * 8192}")]
        g.append(VM(f"buffer_load_dwordx4 v{vQD + i}, {s(SW, 4)}, s{sDO} offen offset:{1024 * i} lds", f"p{j}"))
        out.append(g)
    return out


def unit_dma(u):
    out = []
    base = UREG[u] * 32768
    off = (u % 2) * 256 * 8192 + (2 + u // 2) * 128
    for i in range(8):
        g = []
        if i % 4 == 0:
            g += [I(f"s_add_u32 m0, s{sW8}, {base + (i // 4) * 4096}"), I(f"s_add_u32 s{sDO}, s{sWK}, {off}")]
        g.append(VM(f"buffer_load_dwordx4 v{vUD + i}, {s(SW, 4)}, s{sDO} offen offset:{1024 * (i % 4)} lds", f"u{u}"))
        out.append(g)
    return out


def zslot(z):
    return (z + 2) % 5


def z_dma(z, xn_only=False, w_only=False):
    out = []
    base = zslot(z) * 32768
    for p in range(2):
        if not xn_only:
            for i in range(3):
                g = []
                if i == 0:
                    g += [I(f"s_add_u32 m0, s{sW8}, {base + p * 4096}"), I(f"s_add_u32 s{sDO}, s{sWI}, {z * 64 * 2752 + p * 1376}")]
                g.append(VM(f"buffer_load_dwordx4 v{vCD + i}, {s(SI, 4)}, s{sDO} offen offset:{1024 * i} lds", f"z{z}"))
                out.append(g)
        if not w_only:
            out.append([I(f"s_add_u32 m0, s{sW8}, {base + p * 4096 + 3072}"), I(f"s_add_u32 s{sDO}, s{sXN}, {p * 32768 + z * 4096}"),
                        VM(f"buffer_load_dwordx4 v{vL16}, {s(SS, 4)}, s{sDO} offen sc1 lds", f"z{z}")])
    return out


def pa_reads(c):
    j, cs = c // 4, c % 4
    slot = j % 3
    sg, off = (0, slot * SLOT) if slot == 0 else (1, (slot - 1) * SLOT)
    out = [LG(f"ds_read_b128 {R(A(ks, c), 4)}, v{vCR + sg * 4 + cs} offset:{off + ks * 4096}", f"r{c}") for ks in range(2)]
    fb = WF + (c % 2) * 16
    for d in range(4):
        for sec in range(2):
            out.append(LG(f"ds_read_b64_tr_b16 {v(fb + 4 * d + 2 * sec, 2)}, v{vQR + sg * 4 + d} "
                          f"offset:{off + cs * 4096 + sec * 1024}", f"r{c}"))
    return out


def pa_mf(c, vtype):
    fb = WF + (c % 2) * 16
    out = []
    for d in range(4):
        for ks in range(2):
            cf, wf = A(ks, c), ('v', fb + 4 * d)
            X, Y = (cf, wf) if vtype else (wf, cf)
            out.append(mfma(('v', ACC[d // 2] + (ks * 2 + d % 2) * 16), X, Y, 0 if c == 0 else None))
    return out


def pb_reads(c):
    u = c // 16
    sg, off = seg_off(UREG[u] * 32768 + (c % 16) * 2048)
    fb = WF + (c % 4) * 8
    return [LG(f"ds_read_b64_tr_b16 {v(fb + 4 * d2 + 2 * sec, 2)}, v{vBR + sg * 2 + d2} offset:{off + sec * 512}", f"s{c}")
            for d2 in range(2) for sec in range(2)]


def pb_mf(c, vtype):
    p, cs = 2 + c // 32, c % 32
    fb = WF + (c % 4) * 8
    out = []
    for d2 in range(2):
        for ks in range(2):
            cf, wf = A(ks, cs), ('v', fb + 4 * d2)
            X, Y = (cf, wf) if vtype else (wf, cf)
            out.append(mfma(('v', ACC[p % 2] + (ks * 2 + d2) * 16), X, Y, 0 if cs == 0 else None))
    return out


def kv_epi(p, staged=False):
    out = []
    for ks in range(2):
        for d2 in range(2):
            for g in range(2):
                b = ACC[p % 2] + (ks * 2 + d2) * 16 + 8 * g
                grp = []
                if d2 == 0 and g == 0:
                    grp.append(I(f"s_add_u32 s{sT2}, s{sKO}, {(p // 2) * 64 * 8192 + ks * 8192 + (p % 2) * 4096}"))
                if staged:
                    b = STG + ((ks * 2 + d2) * 2 + g) * 4
                else:
                    grp += [I(f"v_cvt_pk_bf16_f32 v{b + i}, v{b + 2 * i}, v{b + 2 * i + 1}") for i in range(2)]
                    out.append(grp)
                    grp = [I(f"v_cvt_pk_bf16_f32 v{b + i}, v{b + 2 * i}, v{b + 2 * i + 1}") for i in range(2, 4)]
                grp.append(VM(f"buffer_store_dwordx4 {v(b, 4)}, v{vL16}, {s(SS, 4)}, s{sT2} offen offset:{(2 * d2 + g) * 1024} {KVST}", "st"))
                out.append(grp)
    return out


def XF(c):
    return A(c % 2, c // 2)


def xn_loads():
    out = []
    for c in range(32):
        g = []
        if c % 4 == 0:
            g.append(I(f"s_add_u32 s{sXO}, s{sXN}, {(c // 4) * 4096}"))
        g.append(VM(f"buffer_load_dwordx4 {R(XF(c), 4)}, v{vL16}, {s(SS, 4)}, s{sXO} offen offset:{(c % 4) * 1024} sc1", f"xn{c // 4}"))
        out.append(g)
    return out


def gelu(regs, vC0, vC1, tmp):
    out = []
    for i in range(0, len(regs), 4):
        g = regs[i:i + 4]
        t = [tmp + j for j in range(4)]
        for op in ("v_mul_f32 v{t}, v{x}, v{x}", "v_fma_f32 v{t}, v{t}, v{c1}, v{c0}", "v_mul_f32 v{t}, v{t}, v{x}",
                   "v_exp_f32 v{t}, v{t}", "v_add_f32 v{t}, 1.0, v{t}", "v_rcp_f32 v{t}, v{t}", "v_mul_f32 v{x}, v{x}, v{t}"):
            for x, tt in zip(g, t):
                out.append(op.format(t=tt, x=x, c0=vC0, c1=vC1))
    return out


def ln_code():
    o = []
    for i in range(4):
        o.append(f"v_mov_b32 v{48 + i}, 0")
    for r in range(2):
        for i in range(4):
            o.append(f"v_dot2_f32_bf16 v{48 + r}, v{40 + 4 * r + i}, s{sONES}, v{48 + r}")
            o.append(f"v_dot2_f32_bf16 v{50 + r}, v{40 + 4 * r + i}, v{40 + 4 * r + i}, v{50 + r}")
    o += ["s_nop 2", "v_permlane32_swap_b32 v48, v49", "v_permlane32_swap_b32 v50, v51", "s_nop 1",
          "v_add_f32 v48, v48, v49", "v_add_f32 v50, v50, v51", "s_nop 1",
          "v_permlane16_swap_b32 v48, v50", "s_nop 1", "v_add_f32 v48, v48, v50"]
    for sh in (8, 4, 2, 1):
        o += ["s_nop 1", f"v_add_f32_dpp v48, v48, v48 row_ror:{sh} row_mask:0xf bank_mask:0xf"]
    o += ["s_nop 1", f"v_mul_f32 v48, {fbits(1 / 512)}, v48", "s_nop 0",
          "v_readlane_b32 s40, v48, 0", "v_readlane_b32 s41, v48, 16", "v_readlane_b32 s42, v48, 32", "v_readlane_b32 s43, v48, 48",
          "s_nop 1"]
    for r in range(2):
        m, q = 40 + 2 * r, 41 + 2 * r
        a_, b_ = 52 + 2 * r, 53 + 2 * r
        o += [f"v_mov_b32 v{b_}, s{m}", f"v_mov_b32 v{a_}, s{q}", f"v_fma_f32 v{a_}, -v{b_}, v{b_}, v{a_}", f"v_max_f32 v{a_}, 0, v{a_}",
              f"v_add_f32 v{a_}, {fbits(LN_EPS)}, v{a_}", f"v_rsq_f32 v{a_}, v{a_}", "s_nop 0",
              f"v_mul_f32 v{b_}, v{b_}, v{a_}", f"v_sub_f32 v{b_}, 0, v{b_}"]
    for r in range(2):
        for i in range(4):
            x = 40 + 4 * r + i
            o += [f"v_lshlrev_b32 v56, 16, v{x}", f"v_and_b32 v57, 0xffff0000, v{x}",
                  f"v_fma_f32 v56, v56, v{52 + 2 * r}, v{53 + 2 * r}", f"v_fma_f32 v57, v57, v{52 + 2 * r}, v{53 + 2 * r}",
                  f"v_cvt_pk_bf16_f32 v{x}, v56, v57"]
    return o


def kv_phase(k, vtype):
    E = k.emit
    extra = {}

    def add(c, groups):
        extra.setdefault(c, []).extend(groups)

    def spread(c0, c1, groups):
        n = len(groups)
        for i, g in enumerate(groups):
            add(c0 + (i * (c1 - c0)) // n, [g])

    ldp = lambda sr, so, i: [VM(f"buffer_load_dwordx4 {v(vPF, 4)}, v{vL16}, {s(sr, 4)}, s{so} offen offset:{1024 * i}", "pf")]
    lt = lambda vo, sr, so, off=0: [VM(f"buffer_load_dword v{vPF}, v{vo}, {s(sr, 4)}, s{so} offen offset:{off}", "pf")]
    pf0 = [lt(39, SC, 70), lt(61, SPF, 76)]
    pf1 = []
    pf2 = [lt(61, SPF, 76, 256), lt(39, SI, 70)]
    if "noown" in EXP:
        pf0, pf1, pf2 = [], [], []
    if "pfall" in EXP:
        pf0, pf1, pf2 = pf0 + pf1 + pf2, [], []
    if "pf01" in EXP:
        pf0, pf1 = pf0 + pf1, []
    add(1, pf1)
    if pf2:
        a_, b_ = [int(x) for x in os.environ.get("PF2", "8,9").split(",")]
        spread(a_, b_, pf2)
    ln = ln_code()
    lng = [[I(x) for x in ln[i:i + 4]] for i in range(0, len(ln), 4)]
    lng.append([LG("ds_write_b128 v58, v[40:43]"), LG("ds_write_b128 v58, v[44:47] offset:16")])
    xst = [[LG("ds_read_b128 v[40:43], v59", "xr"), LG("ds_read_b128 v[44:47], v59 offset:1024", "xr")],
           [WLG("xr"), VM(f"buffer_store_dwordx4 v[40:43], v62, {s(SS, 4)}, s69 offen sc1", "xs")],
           [I(f"v_add_u32 v62, 4096, v62"), VM(f"buffer_store_dwordx4 v[44:47], v62, {s(SS, 4)}, s69 offen sc1", "xs")]]
    if "noxs" not in EXP:
        spread(12, 15, xst)
    zf = [I("v_mov_b32 v60, 0"), I(f"s_lshl_b32 s{sT}, s{sCB}, 8"), I(f"s_add_u32 s{sT}, s{sT}, s{sRB}"), I(f"s_add_u32 s{sT}, s{sT}, {WS_FLAG2}"),
          I("s_mov_b64 exec, 1"), VMG(f"buffer_store_byte v60, v60, {s(SS, 4)}, s{sT} offen sc0 sc1", "fz")]
    for base, sh in ((WS_FCTX, 4), (WS_FU, 4), (WS_FP1, 4), (WS_FLAG3, 5)):
        zf += [I(f"s_lshl_b32 s{sT}, s2, {sh}"), I(f"s_add_u32 s{sT}, s{sT}, {base}"), VMG(f"buffer_store_dword v60, v60, {s(SS, 4)}, s{sT} offen sc0 sc1", "fz")]
    add(6, [wave0(sW, zf + [I("s_mov_b64 exec, -1")])])
    spread(0, 3, a_dma(2) + b_dma(2))
    spread(3, 11, lng)
    E(pf0)
    E(WVM("p0"), "s_barrier")
    dstamp(k, 1)
    stamp(k, 6)
    E(pa_reads(0))
    for c in range(32):
        E(WLG(f"r{c}"))
        fill = []
        if c % 4 == 3:
            j = c // 4
            lstamp(k, 63, 3 * j)
            if j < 7:
                E(WVM(f"p{j + 1}"))
            else:
                E(WVM("u0"))
            if j == 5:
                E(WVM("xs"))
            if j == 2:
                E(WLG0)
            lstamp(k, 63, 3 * j + 1)
            E("s_barrier")
            lstamp(k, 63, 3 * j + 2)
            if j + 3 < 8:
                post = a_dma(j + 3) + b_dma(j + 3)
            elif j == 5:
                post = unit_dma(0) + unit_dma(1)[:4]
            elif j == 6:
                post = unit_dma(1)[4:] + unit_dma(2)
            else:
                post = []
            if j == 5 and "noflag" not in EXP:
                post = post + [wave0(sW, [WVMG("fz")]), flag_set(sW, SD, 2, 46)]
            if j < 7:
                spread(c, c + 4, post)
        if c < 31:
            fill += pa_reads(c + 1)
            fill = interleave(fill, extra.get(c, []))
            E(weave(pa_mf(c, vtype), fill, 0, 8))
        else:
            m = pa_mf(c, vtype)
            stg = []
            for tl in range(4):
                for g in range(2):
                    b = ACC[0] + tl * 16 + 8 * g
                    stg += [I(f"v_cvt_pk_bf16_f32 v{STG + (tl * 2 + g) * 4 + i}, v{b + 2 * i}, v{b + 2 * i + 1}") for i in range(4)]
            order = [0, 2, 1, 3]
            E(m[:4], pb_reads(0), m[4], m[5])
            seq = [stg[o * 8:(o + 1) * 8] for o in order]
            E(seq[0], m[6], seq[1], m[7], pb_reads(1), seq[2], seq[3])
    stamp(k, 7)
    dstamp(k, 2)
    extra.clear()
    wi = []
    for i in range(3):
        wi.append([I(x) for x in (f"v_add_u32 v46, {64 * i}, v0", "v_mul_u32_u24 v47, 43691, v46", "v_lshrrev_b32 v47, 19, v47",
                                  "v_mul_u32_u24 v48, 12, v47")])
        wi.append([I(x) for x in ("v_sub_u32 v48, v46, v48", "v_mul_u32_u24 v47, 2752, v47", f"v_lshl_add_u32 v{vCD + i}, v48, 4, v47",
                                  f"v_subrev_u32 v{vCD + i}, {1024 * i}, v{vCD + i}")])
    wi.append([I(x) for x in (f"v_lshl_add_u32 v46, v{vF + 1}, 3, v{vF + 3}", "v_mul_u32_u24 v46, 192, v46",
                              f"v_lshl_add_u32 v46, v{vF + 5}, 5, v46", f"v_lshl_add_u32 v46, v{vF + 4}, 3, v46")])
    wi.append([I(x) for x in (f"s_lshl_b32 s{sT}, s{sCH}, 12", f"v_add_u32 v{vCR}, s{sT}, v46", f"v_add_u32 v{vCR + 1}, 0x10000, v{vCR}",
                              f"v_add_u32 v{vCR + 2}, 0x20000, v{vCR}")])
    wi.append([I(x) for x in (f"s_lshl_b32 s{sT}, s{sRS}, 12", f"s_add_u32 s{sT}, s{sT}, 3072", f"v_add_u32 v{vCR + 3}, s{sT}, v{vL16}",
                              f"v_add_u32 v{vCR + 4}, 0x10000, v{vCR + 3}", f"v_add_u32 v{vCR + 5}, 0x20000, v{vCR + 3}")])
    spread(0, 6, unit_dma(3))
    spread(0, 6, wi)
    spread(7, 13, z_dma(0, w_only=True))
    spread(0, 15, kv_epi(0, staged=True))
    spread(15, 32, kv_epi(1))
    spread(33, 64, kv_epi(2))
    if "noflag" not in EXP:
        if MERGE12:
            add(13, [poll_all_issue(sW, SD, "0", 4, 1, 50)])
            add(29, [poll_all_check(sW, SD, "0", 4, 1, 50, 0x01010101)])
        else:
            add(13, [flag_poll_issue(sW, SD, sCNT, 8, 50)])
            add(29, [flag_poll_check(sW, SD, sCNT, 50)])
    pf = [[I(f"s_mov_b32 s{SPF}, s44"), I(f"s_mov_b32 s{SPF + 1}, s45"), VM(f"buffer_load_dword v52, v39, {s(SPF, 4)}, s70 offen", "pf")]]
    if not NOPF:
        a_, b_ = [int(x) for x in os.environ.get("PFQ", "32,33").split(",")]
        spread(a_, b_, pf)
    for c in range(64):
        n = c + 2
        fill = []
        if n < 64:
            if n % 16 == 0:
                u = n // 16
                lstamp(k, 63, 21 + 3 * u)
                E(WLG(f"s{n - 1}"), WVM(f"u{u}"))
                lstamp(k, 63, 22 + 3 * u)
                E("s_barrier")
                lstamp(k, 63, 23 + 3 * u)
                if u == 1:
                    spread(c, c + 12, z_dma(1, w_only=True))
                elif u == 2:
                    spread(c, c + 14, z_dma(0, xn_only=True) + z_dma(1, xn_only=True) + z_dma(2))
                else:
                    spread(c, c + 14, z_dma(3))
            fill += pb_reads(n)
        E(WLG(f"s{c}"))
        if c == 32:
            stamp(k, 8)
        E(weave(pb_mf(c, vtype), interleave(fill, extra.get(c, [])), 0, 4))
    for c in extra:
        assert c < 64


def interleave(x, y):
    out = []
    n = max(len(x), len(y))
    for i in range(n):
        if i < len(x):
            out.append(x[i])
        if i < len(y):
            out.append(y[i])
    return out


def z_phase(k, z2):
    E = k.emit
    ZACC = ACC[0]
    LA = 3

    def fbuf(c):
        return (c % 4) * 16

    def reads(c):
        z, cs = c // 4, c % 4
        sg, off = seg_off(zslot(z) * 32768 + cs * 8192)
        fb = fbuf(c)
        out = [LG(f"ds_read_b128 {a(fb + 12, 4)}, v{vCR + 3 + sg} offset:{off}", f"y{c}")]
        out += [LG(f"ds_read_b64_tr_b16 {a(fb + 4 * f + 2 * sec, 2)}, v{vCR + sg} offset:{off + sec * 768 + f * 64}", f"y{c}")
                for f in range(3) for sec in range(2)]
        return out

    def mf(c):
        fb = fbuf(c)
        out = []
        for f in range(3):
            wf, xf = ('a', fb + 4 * f), ('a', fb + 12)
            X, Y = (xf, wf) if z2 else (wf, xf)
            out.append(mfma(('v', ZACC + 16 * f), X, Y, 0 if c == 0 else None))
        return out

    epi = kv_epi(3)
    lstamp(k, 63, 33)
    E(WVM("z0"), "s_barrier")
    lstamp(k, 63, 34)
    for c in range(LA):
        E(reads(c))
    pend = z_dma(4)
    for c in range(32):
        n = c + LA
        if n < 32 and n % 4 == 0:
            z = n // 4
            lstamp(k, 63, 33 + 3 * z)
            E(WLG(f"y{n - 1}"), WVM(f"z{z}"))
            lstamp(k, 63, 34 + 3 * z)
            E("s_barrier")
            if z + 4 < 8:
                pend = pend + z_dma(z + 4)
        E(WLG(f"y{c}"))
        r_ = reads(n) if n < 32 else []
        ZR = int(os.environ.get("ZR", "2"))
        ZE = int(os.environ.get("ZE", "16"))
        take, pend = pend[:ZR], pend[ZR:]
        gm_ = {i: r_[(i * 7) // 3:((i + 1) * 7) // 3] + take[i:i + 1] for i in range(3)}
        for e_ in range(16):
            if ZE + (e_ * (32 - ZE)) // 16 == c:
                gm_[2] = gm_[2] + [epi[e_]]
        E(place(mf(c), gm_))


def build():
    k = Kern(KNAME if MERGE12 else "k1_kernel")
    E = k.emit
    E("s_cmp_ge_u32 s2, 256\ns_cbranch_scc1 " + ("K2_END" if MERGE12 else "K1_END"))
    code_prefetch(k, "L_CODE_END", 0, 120)
    stamp_init(k)
    dstamp(k, 0)
    stamp(k, 0)
    E(f"s_load_dwordx4 s[40:43], s[0:1], {KA_X}")
    E(f"s_load_dwordx4 s[44:47], s[0:1], {KA_WUK}")
    E(f"s_load_dwordx2 s[48:49], s[0:1], {KA_WIN}")
    E(f"s_load_dwordx4 s[52:55], s[0:1], {KA_DBG}")
    E("v_lshrrev_b32 v1, 6, v0\nv_and_b32 v0, 63, v0")
    E(f"s_lshr_b32 s{sRB}, s2, 3\ns_and_b32 s{sCB}, s2, 7")
    E(f"v_readfirstlane_b32 s{sW}, v1")
    E(f"s_and_b32 s{sNB}, s{sRB}, 3\ns_lshl_b32 s{sT}, s{sCB}, 2\ns_add_u32 s{sNB}, s{sNB}, s{sT}")
    E(f"s_lshr_b32 s{sMB}, s{sRB}, 2")
    E(f"s_and_b32 s{sRS}, s{sW}, 1\ns_lshr_b32 s{sCH}, s{sW}, 1\ns_lshl_b32 s{sW8}, s{sW}, 13\ns_lshl_b32 s{sW2}, s{sW}, 12")
    f0 = vF
    E(f"v_and_b32 v{f0}, 31, v0\nv_lshrrev_b32 v{f0 + 1}, 5, v0\nv_lshrrev_b32 v{f0 + 2}, 4, v0")
    E(f"v_bfe_u32 v{f0 + 3}, v0, 2, 2\nv_and_b32 v{f0 + 4}, 3, v0\nv_bfe_u32 v{f0 + 5}, v0, 4, 1")
    E(f"v_lshlrev_b32 v{vL16}, 4, v0")
    E(f"v_lshrrev_b32 v46, 3, v0\nv_lshlrev_b32 v50, 13, v46\nv_lshlrev_b32 v46, 10, v46\nv_and_b32 v47, 7, v0\nv_xor_b32 v47, v47, v{f0 + 2}")
    E("v_lshl_add_u32 v48, v47, 4, v46\nv_xor_b32 v47, 4, v47\nv_lshl_add_u32 v49, v47, 4, v46")
    for i in range(8):
        E(f"v_add_u32 v{vCD + i}, {i * 8192 - (i % 4) * 1024}, v{48 + (i % 2)}")
    E(f"v_bfe_u32 v47, v0, 2, 1\nv_xor_b32 v47, v47, v{f0 + 5}\nv_lshl_add_u32 v50, v47, 6, v50\nv_lshl_add_u32 v50, v{f0 + 4}, 4, v50")
    for i in range(8):
        E(f"v_add_u32 v{vUD + i}, {i * 65536 - (i % 4) * 1024}, v50")
    E(f"s_lshl_b32 s{sCK}, s{sMB}, 18\ns_lshl_b32 s{sT}, s{sW}, 16\ns_add_u32 s{sCK}, s{sCK}, s{sT}")
    E(f"s_and_b32 s{sT}, s{sNB}, 15\ns_lshl_b32 s{sT}, s{sT}, 9\ns_lshl_b32 s{sWK}, s{sW}, 19\ns_add_u32 s{sWK}, s{sWK}, s{sT}")
    E(f"s_lshl_b32 s{sWB}, s{sW}, 17\ns_add_u32 s{sWB}, s{sWB}, s{sT}")
    E(f"s_lshl_b32 s{sT2}, s2, 13\ns_lshl_b32 s{sT}, s{sW}, 11\ns_add_u32 s{sT2}, s{sT2}, s{sT}")
    E(f"v_xor_b32 v46, v{f0 + 3}, v{f0 + 2}\nv_lshlrev_b32 v47, 13, v{f0 + 2}\nv_lshl_add_u32 v47, v46, 6, v47\nv_lshl_add_u32 v47, v{f0 + 4}, 4, v47")
    for i in range(4):
        E(f"v_add_u32 v{vQD + i}, {i * (32768 - 1024)}, v47")
    E("s_waitcnt lgkmcnt(0)")
    E(srd(SX, 40, 2048 * 1024), srd(SC, 42, 2048 * 1024))
    E(VM(f"buffer_load_dwordx4 v[40:43], v{vL16}, {s(SX, 4)}, s{sT2} offen", "x"))
    E(VM(f"buffer_load_dwordx4 v[44:47], v{vL16}, {s(SX, 4)}, s{sT2} offen offset:1024", "x"))
    E(f"s_cmp_lt_u32 s{sNB}, 16\ns_cselect_b32 s{SW}, s44, s46\ns_cselect_b32 s{SW + 1}, s45, s47")
    E(f"s_mov_b32 s{SW + 2}, {512 * 8192:#x}\ns_mov_b32 s{SW + 3}, 0x20000")
    for j in range(2):
        E(a_dma(j), b_dma(j))
    E(srd(SI, 48, 512 * 2752), srd(SS, 54, WS_SIZE), srd(SD, 52, 256))
    E(f"s_lshl_b32 s{sT}, s2, 2\ns_add_u32 s{sT}, s{sT}, s{sW}\ns_lshl_b32 s70, s{sT}, 12\ns_lshl_b32 s76, s{sT}, 13\ns_and_b32 s76, s76, 0x3fffff")
    E(f"s_cmp_lt_u32 s2, 128\ns_cselect_b32 s{SPF}, s44, s46\ns_cselect_b32 s{SPF + 1}, s45, s47\ns_mov_b32 s{SPF + 2}, {512 * 8192:#x}\ns_mov_b32 s{SPF + 3}, 0x20000")
    E(f"v_lshrrev_b32 v61, 2, v0\nv_lshlrev_b32 v61, 9, v61\nv_lshl_add_u32 v61, v{f0 + 4}, 6, v61\nv_lshlrev_b32 v39, 6, v0")
    E(f"s_load_dwordx2 s[44:45], s[0:1], {KA_WQ}")
    E(f"v_bfe_u32 v48, v0, 1, 3\nv_xor_b32 v48, v48, v{f0 + 1}\nv_lshlrev_b32 v49, 7, v{f0}\nv_add_u32 v49, s{sW8}, v49")
    for k16 in range(4):
        E(f"v_xor_b32 v50, {2 * k16}, v48\nv_lshl_add_u32 v{vCR + k16}, v50, 4, v49\nv_add_u32 v{vCR + 4 + k16}, {SLOT}, v{vCR + k16}")
    E(f"v_lshl_add_u32 v48, v{f0 + 1}, 3, v{f0 + 3}\nv_lshlrev_b32 v48, 8, v48\nv_lshl_add_u32 v48, v{f0 + 5}, 5, v48\nv_lshl_add_u32 v48, v{f0 + 4}, 3, v48\nv_add_u32 v48, 32768, v48")
    for d in range(4):
        E(f"v_xor_b32 v49, {d}, v{f0 + 3}\nv_lshl_add_u32 v{vQR + d}, v49, 6, v48\nv_add_u32 v{vQR + 4 + d}, {SLOT}, v{vQR + d}")
    E(f"v_lshl_add_u32 v48, v{f0 + 1}, 3, v{f0 + 3}\nv_lshlrev_b32 v48, 7, v48\nv_lshl_add_u32 v48, v{f0 + 5}, 5, v48\nv_lshl_add_u32 v48, v{f0 + 4}, 3, v48")
    E(f"v_lshrrev_b32 v49, 1, v{f0 + 3}\nv_lshl_add_u32 v{vBR}, v49, 6, v48\nv_xor_b32 v49, 1, v49\nv_lshl_add_u32 v{vBR + 1}, v49, 6, v48")
    for sg in (1, 2):
        for d2 in range(2):
            E(f"v_add_u32 v{vBR + 2 * sg + d2}, {sg * 65536}, v{vBR + d2}")
    E(f"s_lshl_b32 s{sKO}, s{sNB}, 7\ns_lshl_b32 s{sT}, s{sMB}, 3\ns_add_u32 s{sKO}, s{sKO}, s{sT}\ns_lshl_b32 s{sT}, s{sW}, 1\ns_add_u32 s{sKO}, s{sKO}, s{sT}")
    E(f"s_lshl_b32 s{sKO}, s{sKO}, 13\ns_add_u32 s{sKO}, s{sKO}, {WS_KF}")
    E(f"s_mul_i32 s{sWI}, s{sW}, {16 * 2752}\ns_mul_i32 s{sT}, s{sCB}, 192\ns_add_u32 s{sWI}, s{sWI}, s{sT}")
    E(f"s_lshl_b32 s{sXN}, s{sRB}, 16\ns_lshl_b32 s{sT}, s{sW}, 10\ns_add_u32 s{sXN}, s{sXN}, s{sT}\ns_add_u32 s{sXN}, s{sXN}, {WS_XN}")
    E(f"s_lshl_b32 s{sCNT}, s{sRB}, 3\ns_mov_b32 s{sONES}, 0x3f803f80")
    E(f"s_lshr_b32 s{sT2}, s2, 2\ns_lshl_b32 s{sT2}, s{sT2}, 15\ns_and_b32 s{sT}, s2, 3\ns_lshl_b32 s{sT}, s{sT}, 7\ns_add_u32 s{sT2}, s{sT2}, s{sT}")
    E(f"s_add_u32 s{sT2}, s{sT2}, s{sW8}\ns_add_u32 s69, s{sT2}, {WS_XN}")
    E(f"s_lshl_b32 s{sT}, s{sW}, 5\ns_add_u32 s{sT}, s{sT}, {3 * SLOT}\nv_lshlrev_b32 v58, 7, v0\nv_add_u32 v58, s{sT}, v58")
    E(f"s_lshl_b32 s{sT}, s{sW}, 11\ns_add_u32 s{sT}, s{sT}, {3 * SLOT}\nv_add_u32 v59, s{sT}, v{vL16}")
    E("v_lshrrev_b32 v62, 3, v0\nv_lshlrev_b32 v62, 9, v62\nv_and_b32 v48, 7, v0\nv_lshl_add_u32 v62, v48, 4, v62")
    E("s_waitcnt lgkmcnt(0)")
    stamp(k, 1)
    E(f"s_cmp_ge_u32 s{sNB}, 16\ns_cbranch_scc1 K1_V")
    st = (list(k.vm), list(k.lg))
    kv_phase(k, False)
    E("s_branch K1_Z")
    k.set_state(*st)
    E("K1_V:")
    kv_phase(k, True)
    E("K1_Z:")
    stamp(k, 2)
    E(f"s_cmp_eq_u32 s{sCH}, 1\ns_cbranch_scc1 K1_Z2")
    st = (list(k.vm), list(k.lg))
    ZACC = ACC[0]
    zr = list(range(ZACC, ZACC + 48))
    z_phase(k, False)
    stamp(k, 3)
    E(f"s_lshl_b32 s{sT}, s{sRB}, 1\ns_add_u32 s{sT}, s{sT}, s{sRS}\ns_mul_i32 s{sT}, s{sT}, 48")
    E(f"s_mul_i32 s{sT2}, s{sCB}, 6\ns_add_u32 s{sT}, s{sT}, s{sT2}\ns_lshl_b32 s{sT}, s{sT}, 10")
    E(f"s_add_u32 s96, s{sT}, {WS_Z1}\ns_add_u32 s97, s96, 4096\ns_nop 7")
    E(f"s_cmp_lg_u32 s{sCB}, 7\ns_cbranch_scc1 K1_ZJOIN")
    for r in zr[8:]:
        E(f"v_mov_b32 v{r}, 0")
    E("s_branch K1_ZJOIN")
    k.set_state(*st)
    E("K1_Z2:")
    z_phase(k, True)
    stamp(k, 3)
    E(f"s_mul_i32 s{sT}, s{sCB}, 384\ns_lshl_b32 s{sT2}, s{sRB}, 2\ns_add_u32 s{sT}, s{sT}, s{sT2}")
    E(f"s_lshl_b32 s{sT2}, s{sRS}, 1\ns_add_u32 s{sT}, s{sT}, s{sT2}\ns_lshl_b32 s{sT}, s{sT}, 10\ns_add_u32 s96, s{sT}, {WS_Z2R}")
    E(f"s_lshl_b32 s{sT}, s{sRB}, 1\ns_add_u32 s{sT}, s{sT}, s{sRS}\ns_lshl_b32 s{sT}, s{sT}, 11\ns_add_u32 s{sT}, s{sT}, {WS_STAT}")
    E(f"s_lshl_b32 s{sT2}, s{sCB}, 8\ns_add_u32 s97, s{sT}, s{sT2}")
    E(f"s_cmp_lg_u32 s{sCB}, 7\ns_cbranch_scc1 K1_ZJOIN")
    E(f"v_cmp_gt_u32 vcc, 16, v{vF}\ns_nop 1")
    for r in zr[:16]:
        E(f"v_cndmask_b32 v{r}, 0, v{r}, vcc")
    for r in zr[16:]:
        E(f"v_mov_b32 v{r}, 0")
    E("K1_ZJOIN:")
    dstamp(k, 3)
    stamp(k, 4)
    stamp(k, 5)
    lstamp_store(k, 0, 63, 59, SS, sW)
    stamp_store(k, 0, SS, sW, 96)
    import k2
    E("s_mov_b64 exec, -1")
    k2.build(k)
    return k.text(512, 256)


def z_epilogue(z2, SS_, vL, vr, vh, srs, scr):
    ZACC = ACC[0]
    T = 48
    o = flat([f"v_mov_b32 v{T + 4}, {fbits(GELU_C0)}\nv_mov_b32 v{T + 5}, {fbits(GELU_C1)}"])
    if not z2:
        for fg in range(6):
            b = ZACC + 8 * fg
            o += flat(gelu(list(range(b, b + 8)), T + 4, T + 5, T))
            o += [I(f"v_cvt_pk_bf16_f32 v{b + i}, v{b + 2 * i}, v{b + 2 * i + 1}") for i in range(4)]
            o.append(VM(f"buffer_store_dwordx4 {v(b, 4)}, v{vL}, {s(SS_, 4)}, s{96 if fg < 4 else 97} offen offset:{1024 * (fg % 4)} sc1", "zo"))
        o.append(VM(f"buffer_load_dword v252, v{vL}, {s(SS_, 4)}, s98 offen", "zo"))
        return o
    o += flat(gelu(list(range(ZACC, ZACC + 48)), T + 4, T + 5, T))
    o += flat([f"s_mul_i32 s98, s{srs}, 9216\ns_add_u32 s98, s98, {scr}",
               f"v_mul_u32_u24 v{T + 6}, {4 * 144}, v{vh}\nv_lshl_add_u32 v{T + 6}, v{vr}, 2, v{T + 6}\nv_add_u32 v{T + 6}, s98, v{T + 6}",
               f"v_mul_u32_u24 v{T + 7}, 144, v0\nv_add_u32 v{T + 7}, s98, v{T + 7}"])
    for r in range(16):
        z0, z1, z2_ = ZACC + r, ZACC + 16 + r, ZACC + 32 + r
        a_, b_ = T + 8 + 2 * (r % 4), T + 9 + 2 * (r % 4)
        srow = 8 * (r // 4) + r % 4
        o += flat([f"v_add_f32 v{a_}, v{z0}, v{z1}\nv_mul_f32 v{b_}, v{z0}, v{z0}\nv_add_f32 v{a_}, v{a_}, v{z2_}\nv_fmac_f32 v{b_}, v{z1}, v{z1}\nv_fmac_f32 v{b_}, v{z2_}, v{z2_}"])
        o += [LG(f"ds_write_b32 v{T + 6}, v{a_} offset:{srow * 144}"), LG(f"ds_write_b32 v{T + 6}, v{b_} offset:{(32 + srow) * 144}")]
    SQ = 64
    o += [LG(f"ds_read_b128 {v(SQ + 4 * i, 4)}, v{T + 7} offset:{16 * i}", "zq") for i in range(8)]
    for f in range(3):
        for g in range(2):
            b = ZACC + 16 * f + 8 * g
            o += [I(f"v_cvt_pk_bf16_f32 v{b + i}, v{b + 2 * i}, v{b + 2 * i + 1}") for i in range(4)]
            o += flat([f"s_nop 1\nv_permlane32_swap_b32 v{b}, v{b + 2}\nv_permlane32_swap_b32 v{b + 1}, v{b + 3}\ns_nop 1"])
            o.append(VM(f"buffer_store_dwordx4 {v(b, 4)}, v{vL}, {s(SS_, 4)}, s96 offen offset:{1024 * g} sc1", "zo"))
        if f < 2:
            o.append(I(f"s_add_u32 s96, s96, {128 * 1024}"))
    o += [I(f"v_lshlrev_b32 v{T + 6}, 2, v0"), WLG("zq")]
    for stride in (16, 8, 4, 2, 1):
        o += [I(f"v_add_f32 v{SQ + i}, v{SQ + i}, v{SQ + stride + i}") for i in range(stride)]
    o.append(VM(f"buffer_store_dword v{SQ}, v{T + 6}, {s(SS_, 4)}, s97 offen sc1", "zo"))
    return o
```

```python
from asmlib import *
from common import *
import os

THRESH = float(os.environ.get("THRESH", "32.0"))
BUDGET = int(os.environ.get("BUDGET", "25"))
EXP = os.environ.get("EXP2", "")

SQ, SP, SB, SS, SD = 8, 12, 16, 20, 24
sW, sHD, sPI, sG, sRS = 32, 33, 34, 35, 36
sT, sT2, sU, sSW, sSW2, sJUMP, sTL, sTD = 37, 38, 39, 40, 41, 42, 43, 44
sKN, sKO2, sVO, sVO2, sMK, sMV = 45, 46, 47, 48, 49, 50
sTH = (51, 52)
sLO = (53, 54)
sXN, sWQ, sWM, sW8, sDO = 55, 56, 57, 59, 58
sGP, sGZ, sGM, sFL, sPF, sEV, sDG = 60, 61, 62, 63, 76, 77, 31
NINF = "0xff800000"
SC1 = " sc1" if MERGE12 else ""

vL16, vKc, vKn, vVp, vVc, vD0, vNEG = 1, 2, 3, 4, 5, 6, 7
vLs = ((8, 9), (10, 11))
vNM = (12, 13)
vM = 14
vLSV = (30, 31)
vT = 20
vQD = 32
vQR = 36
S = (48, 64)
NEGM = (80, 96)
PB = 112
QBS = 144
ZT = 208
NEGB = 208
MSK = 224
vPL = 240
aO, aQ, aK, aV = 0, 128, 192, 224

KB0, VB0, SPARE = 0, 65536, 131072
NEG = -1.0e30


def P(buf, x, i=0):
    return PB + (buf * 2 + x) * 8 + i


def dma4(so, tag="kv"):
    return [VM(f"buffer_load_dwordx4 v{vL16}, {s(SS, 4)}, s{so} offen offset:{1024 * i}{SC1} lds", tag) for i in range(4)]


def qk(x, cin=None):
    return [mfma(('v', S[x]), ('a', aK + 4 * d), ('a', aQ + (x * 8 + d) * 4), ('v', NEGM[x] if cin is None else cin) if d == 0 else None)
            for d in range(8)]


def pv(x, buf):
    return [mfma(('a', aO + (x * 4 + ds) * 16), ('a', aV + (ds * 2 + g) * 4), ('v', P(buf, x, 4 * g)))
            for g in range(2) for ds in range(4)]


def kreads(areg, th):
    return [LG(f"ds_read_b128 {a(aK + 4 * d, 4)}, v{areg} offset:{th * 8192 + d * 1024}", "k") for d in range(8)]


def vreads(areg, th):
    return [LG(f"ds_read_b128 {a(aV + 4 * f, 4)}, v{areg} offset:{th * 8192 + f * 1024}", "v") for f in (0, 2, 4, 6, 1, 3, 5, 7)]


def sm_max(x):
    b, m = S[x], vM
    return [(4, I(t)) for t in (
        f"v_max3_f32 v{m}, v{b}, v{b + 1}, v{b + 2}", f"v_max3_f32 v{m + 1}, v{b + 3}, v{b + 4}, v{b + 5}",
        f"v_max3_f32 v{m + 2}, v{b + 6}, v{b + 7}, v{b + 8}", f"v_max3_f32 v{m + 3}, v{b + 9}, v{b + 10}, v{b + 11}",
        f"v_max3_f32 v{m + 4}, v{b + 12}, v{b + 13}, v{b + 14}", f"v_max3_f32 v{m}, v{m}, v{m + 1}, v{b + 15}",
        f"v_max3_f32 v{m + 2}, v{m + 2}, v{m + 3}, v{m + 4}", f"v_max_f32 v{m}, v{m}, v{m + 2}")]


def sm_chk(x, buf):
    return (8, [I(f"v_cmp_lt_f32 vcc, s{sTH[x]}, v{vM}"), I(f"s_cbranch_vccnz K2_RARE_{x}_{buf}"), I(f"K2_RET_{x}_{buf}:")])


def sm_fin(x, buf, i):
    b = S[x]
    return [(4, I(f"v_add_f32 v{vLs[x][0]}, v{vLs[x][0]}, v{b + 2 * i}")),
            (4, I(f"v_add_f32 v{vLs[x][1]}, v{vLs[x][1]}, v{b + 2 * i + 1}")),
            (4, I(f"v_cvt_pk_bf16_f32 v{P(buf, x, i)}, v{b + 2 * i}, v{b + 2 * i + 1}"))]


def sm_exp(x, buf):
    b = S[x]
    items = []
    for i in range(8):
        items.append((8, I(f"v_exp_f32 v{b + 2 * i}, v{b + 2 * i}")))
        items.append((8, I(f"v_exp_f32 v{b + 2 * i + 1}, v{b + 2 * i + 1}")))
        if i > 0:
            items += sm_fin(x, buf, i - 1)
    return items + sm_fin(x, buf, 7)


CAP = int(os.environ.get("CAP", "24"))


def schedule_loop(var='', pin=None):
    NG = 64
    T = NG + 16
    mem = [[] for _ in range(T)]
    alu = [[] for _ in range(T)]
    used = [0] * NG
    sfx = var
    diag, first = var == 'D', var == 'F'

    def fixed(g, cost, item, is_mem=True):
        (mem if is_mem else alu)[g].append(item)
        used[g % NG] += cost

    def spread_mem(g0, n, items):
        for i, r in enumerate(items):
            fixed(g0 + (i * n) // len(items), 4, r)

    spread_mem(0, 13, vreads(vVp, 1))
    spread_mem(16, 10, kreads(vKc, 1))
    spread_mem(32, 13, vreads(vVc, 0))
    spread_mem(48, 13, kreads(vKn, 0))
    BAR = int(os.environ.get("BAR", "27"))
    fixed(BAR, 8, [I("s_waitcnt vmcnt(1) lgkmcnt(0)"), ('reset',), I("s_barrier")])
    g = BAR + 1
    dgaps = []
    for so in (sKN, sKO2, sVO, sVO2):
        for d in dma4(so):
            fixed(g, 8, d)
            dgaps.append(g)
            g += 2
    fixed(g, 8, VM(f"buffer_load_dword v{ZT + 40}, v{ZT + 41}, {s(SD, 4)}, s{sPF} offen", "pf"))
    gpf = g
    tail = {15: [WLG("v")], 47: [WLG("v")], 63: []}
    for g_ in (15, 47):
        used[g_] += 4
    used[63] += 4 + 13 + 13
    if var:
        used[31] += 13
    jobs = []

    def job(name, cost, item, e, l, deps=(), later=None):
        jobs.append(dict(name=name, cost=cost, item=item, e=e, l=l, deps=list(deps), later=later))

    job("vo", 4, I(f"s_add_u32 s{sVO}, s{sKN}, {WS_VF - WS_KF}"), 0, BAR - 2)
    job("vo2", 4, I(f"s_add_u32 s{sVO2}, s{sKN}, {WS_VF - WS_KF + 4096}"), 0, BAR - 2)
    job("kn", 12, [I(f"s_cmp_eq_u32 s{sU}, s{sSW2}"), I(f"s_cselect_b32 s{sKO2}, s{sJUMP}, 0x4000"), I(f"s_add_u32 s{sKN}, s{sKN}, s{sKO2}")],
        0, BAR - 1, ["vo", "vo2"])
    job("ko2", 4, I(f"s_add_u32 s{sKO2}, s{sKN}, 4096"), 0, BAR, ["kn"])
    job("m0a", 4, I(f"s_mov_b32 m0, s{sMK}"), 0, BAR)
    job("m0b", 4, I(f"s_add_u32 m0, s{sMK}, 4096"), dgaps[3], dgaps[4] - 1)
    job("m0c", 4, I(f"s_mov_b32 m0, s{sMV}"), dgaps[7], dgaps[8] - 1)
    job("m0d", 4, I(f"s_add_u32 m0, s{sMV}, 4096"), dgaps[11], dgaps[12] - 1)
    job("pfa", 4, I(f"s_add_u32 s{sPF}, s{sPF}, 0x400000"), gpf, 63)
    job("xk", 4, I(f"s_xor_b32 s{sMK}, s{sMK}, 0x8000"), dgaps[4], 63, ["m0b"])
    job("xv", 4, I(f"s_xor_b32 s{sMV}, s{sMV}, 0x8000"), dgaps[12], 63, ["m0d"])
    job("vp", 4, I(f"v_mov_b32 v{vVp}, v{vVc}"), 13, 44)
    job("vc", 4, I(f"v_xor_b32 v{vVc}, 0x8000, v{vVc}"), 45, 63, ["vp"])
    job("kc", 4, I(f"v_xor_b32 v{vKc}, 0x8000, v{vKc}"), 26, 63)
    job("kx", 4, I(f"v_xor_b32 v{vKn}, 0x8000, v{vKn}"), 61, 63)
    job("tl", 4, I(f"s_add_u32 s{sTL}, s{sTL}, 1"), 56, 63)
    job("u", 4, I(f"s_add_u32 s{sU}, s{sU}, 1"), 32, 63)
    for half in range(2):
        G = 8 + 32 * half
        for x in range(2):
            e0 = G + 1 + 8 * x
            pre = f"{half}{x}"
            prev = [f"{half}0chk"] if x == 1 else []
            if diag and half == x:
                for r in range(16):
                    job(f"{pre}mk{r}", 4, I(f"v_min_f32 v{S[x] + r}, v{S[x] + r}, v{MSK + r}"), e0, e0 + 4, prev)
                prev = prev + [f"{pre}mk{r}" for r in range(16)]
            for i, (c, it) in enumerate(sm_max(x)):
                job(f"{pre}m{i}", c, it, e0, e0 + 5, prev + ([f"{pre}m{i - 1}"] if i else []))
            dl = G + 23 + 8 * x
            b_ = S[x]
            if first and half == 0:
                d_ = vT + x
                job(f"{pre}f0", 4, I(f"v_mov_b32 v{d_}, v{vM}"), e0, e0 + 8, [f"{pre}m7"])
                job(f"{pre}f1", 8, [I("s_nop 0"), I(f"v_permlane32_swap_b32 v{vM}, v{d_}")], e0, e0 + 9, [f"{pre}f0"], later=f"{pre}f0")
                job(f"{pre}chk", 12, [I(f"v_max_f32 v{d_}, v{d_}, v{vM}"), I(f"v_ceil_f32 v{d_}, v{d_}"), I(f"v_sub_f32 v{vNM[x]}, 0, v{d_}")],
                    e0, e0 + 10, [f"{pre}f1"], later=f"{pre}f1")
                job(f"{pre}ls", 12, [I(f"v_add_f32 v{vLSV[x]}, v{vLs[x][0]}, v{vLs[x][1]}"), I(f"v_mov_b32 v{vLs[x][0]}, 0"), I(f"v_mov_b32 v{vLs[x][1]}, 0")],
                    e0, e0 + 8)
                for r in range(16):
                    job(f"{pre}s{r}", 4, I(f"v_sub_f32 v{b_ + r}, v{b_ + r}, v{d_}"), e0, dl - 2, [f"{pre}chk", f"{pre}ls"])
                    job(f"{pre}n{r}", 4, I(f"v_mov_b32 v{NEGM[x] + r}, v{vNM[x]}"), e0, dl - 1, [f"{pre}chk"])
            else:
                job(f"{pre}cmp", 4, I(f"v_cmp_lt_f32 vcc, s{sTH[x]}, v{vM}"), e0, e0 + 5, [f"{pre}m7"])
                job(f"{pre}chk", 9, [I(f"s_cbranch_vccnz K2_RARE_{x}_{half}"), I(f"K2_RET{sfx}_{x}_{half}:")],
                    e0, e0 + 6, [f"{pre}cmp"], later=f"{pre}cmp")
            for r in range(16):
                job(f"{pre}e{r}", 8, I(f"v_exp_f32 v{b_ + r}, v{b_ + r}"), e0, dl - 1,
                    [f"{pre}s{r}" if (first and half == 0) else f"{pre}chk"] + ([f"{pre}e{r - 1}"] if r else []))
            for i in range(8):
                f3 = sm_fin(x, half, i)
                job(f"{pre}a{2 * i}", 4, f3[0][1], e0, dl, [f"{pre}e{2 * i + 1}"])
                job(f"{pre}a{2 * i + 1}", 4, f3[1][1], e0, dl, [f"{pre}a{2 * i}"])
                job(f"{pre}c{i}", 4, f3[2][1], e0, dl, [f"{pre}a{2 * i + 1}"])
    if pin is not None:
        for j in jobs:
            if j['name'] in pin:
                j['e'] = j['l'] = pin[j['name']]
            else:
                j['l'] = min(j['l'], 63)
    done = {}
    rest = list(jobs)
    order = list(range(9, NG + 9))
    remaining = sum(j['cost'] for j in jobs)
    for gi, g in enumerate(order):
        gm_ = g % NG
        free_after = sum(max(0, CAP - used[h % NG]) for h in order[gi + 1:])
        while True:
            cand = []
            for j in rest:
                e, l = j['e'], j['l']
                if l < 9 or (e < 9 and j['name'][0] not in "01" and False):
                    e, l = e + NG, l + NG
                if e <= g and all(d in done for d in j['deps']) and (j['later'] is None or done[j['later']] < g):
                    cand.append((l, j))
            if not cand:
                break
            cand.sort(key=lambda z: z[0])
            room = CAP - used[gm_]
            pick = None
            for l, j in cand:
                if j['cost'] <= room:
                    pick = j
                    break
            if pick is None:
                urgent = [j for l, j in cand if l <= g]
                if urgent:
                    pick = urgent[0]
                elif remaining > free_after and room > -4 and room + 4 >= min(j['cost'] for _, j in cand):
                    pick = min((j for _, j in cand), key=lambda j: j['cost'])
                else:
                    break
            alu[g].append(pick['item'])
            used[gm_] += pick['cost']
            remaining -= pick['cost']
            done[pick['name']] = g
            rest.remove(pick)
    assert not rest, [j['name'] for j in rest]
    for j in jobs:
        l = j['l'] + (NG if j['l'] < 9 else 0)
        assert done[j['name']] <= l, (j['name'], done[j['name']], l)
    est = sum(max(32, 8 + u) for u in used)
    if os.environ.get("SCHED"):
        print("loop estimate", est, used)
    wrapped = []
    for g in range(NG, T):
        wrapped += [it for it in alu[g] if "v_" in str(it) and "s_cselect" not in str(it)]
    gm = {}
    for g in range(NG):
        gm[g] = mem[g] + (alu[g + NG] if g + NG < T else []) + alu[g] + tail.get(g, [])
    return gm, wrapped, {n: g for n, g in done.items() if g >= NG}


def rare_ret(L):
    r = f"s_cmp_eq_u32 s{sDG}, 0\ns_cbranch_scc1 K2_RET_{L}\n"
    if L.endswith("_1"):
        r += f"s_cmp_eq_u32 s{sDG}, 2\ns_cbranch_scc1 K2_RETF_{L}\n"
    return r + f"s_branch K2_RETD_{L}"


def rare_path(k, x, buf):
    E = k.emit
    t = vT
    L = f"{x}_{buf}"
    E(f"K2_RARE_{L}:")
    E(f"s_mov_b32 s{sTH[x]}, {fbits(THRESH)}")
    E(f"v_mov_b32 v{t}, v{vM}\ns_nop 1\nv_permlane32_swap_b32 v{vM}, v{t}\ns_nop 1")
    E(f"v_max_f32 v{t}, v{t}, v{vM}\nv_ceil_f32 v{t}, v{t}\nv_max_f32 v{t}, s{sLO[x]}, v{t}")
    E(f"v_sub_f32 v{vNM[x]}, v{vNM[x]}, v{t}")
    for r in range(16):
        E(f"v_sub_f32 v{S[x] + r}, v{S[x] + r}, v{t}")
        E(f"v_mov_b32 v{NEGM[x] + r}, v{vNM[x]}")
    E(f"s_cmp_eq_u32 s{sLO[x]}, 0\ns_cbranch_scc1 K2_RSC_{L}")
    E(f"v_add_f32 v{vLSV[x]}, v{vLs[x][0]}, v{vLs[x][1]}\nv_mov_b32 v{vLs[x][0]}, 0\nv_mov_b32 v{vLs[x][1]}, 0")
    E(f"s_mov_b32 s{sLO[x]}, 0", rare_ret(L))
    E(f"K2_RSC_{L}:")
    E(f"v_sub_f32 v{t + 1}, 0, v{t}\nv_exp_f32 v{t + 1}, v{t + 1}\ns_nop 0")
    E(f"v_mul_f32 v{vLs[x][0]}, v{vLs[x][0]}, v{t + 1}\nv_mul_f32 v{vLs[x][1]}, v{vLs[x][1]}, v{t + 1}")
    for i in range(8):
        p = P(1 - buf, x, i)
        E(f"v_lshlrev_b32 v{t + 2}, 16, v{p}\nv_and_b32 v{t + 3}, 0xffff0000, v{p}")
        E(f"v_mul_f32 v{t + 2}, v{t + 2}, v{t + 1}\nv_mul_f32 v{t + 3}, v{t + 3}, v{t + 1}")
        E(f"v_cvt_pk_bf16_f32 v{p}, v{t + 2}, v{t + 3}")
    E("s_nop 15")
    for r in range(0, 64, 4):
        for i in range(4):
            E(f"v_accvgpr_read_b32 v{t + 2 + i}, a{aO + x * 64 + r + i}")
        for i in range(4):
            E(f"v_mul_f32 v{t + 2 + i}, v{t + 2 + i}, v{t + 1}")
        for i in range(4):
            E(f"v_accvgpr_write_b32 a{aO + x * 64 + r + i}, v{t + 2 + i}")
    E(rare_ret(L))


def ctx_addr(sqb_expr, x_in_addr):
    pass


def hooks(k):
    E = k.emit
    E("K2_EVENT:")
    if MERGE12:
        E(f"s_cmp_lg_u32 s{sU}, 1\ns_cbranch_scc1 K2_EV0")
        E(f"s_mov_b32 s{SD}, s28\ns_mov_b32 s{SD + 1}, s29\ns_mov_b32 s{SD + 2}, {4096 * 1024:#x}\ns_and_b32 s{sPF}, s{sPF}, 0x3fffff")
        E(f"s_cmp_lg_u32 s{sW}, 0\ns_cbranch_scc1 K2_EV0")
        E(f"v_mov_b32 v{vPL}, 1\nv_mov_b32 v{vPL + 1}, 0\ns_mov_b64 exec, 1\nbuffer_store_byte v{vPL}, v{vPL + 1}, {s(SS, 4)}, s{sGP} offen sc0 sc1\ns_mov_b64 exec, -1")
        E("K2_EV0:")
    E(f"s_mov_b32 s{sDG}, 0\ns_cmp_lg_u32 s{sU}, s{sSW}\ns_cbranch_scc1 K2_EV2")
    E(f"s_cmp_eq_u32 s{sG}, 0\ns_cbranch_scc1 K2_SW0")
    for r in range(64):
        E(f"v_accvgpr_write_b32 a{aQ + r}, v{QBS + r}")
    for r in range(32):
        E(f"v_mov_b32 v{NEGM[0] + r}, 0")
    E(f"v_mov_b32 v{vNM[0]}, 0\nv_mov_b32 v{vNM[1]}, 0")
    for x in range(2):
        E(f"s_mov_b32 s{sTH[x]}, {NINF}\ns_mov_b32 s{sLO[x]}, {NINF}")
    E(f"s_mov_b32 s{sTL}, 17\ns_sub_u32 s{sTD}, 15, s{sPI}\ns_lshl_b32 s{sTD}, s{sTD}, 1\ns_add_u32 s{sTD}, s{sTD}, s{sRS}")
    E("s_branch K2_EV2")
    E("K2_SW0:")
    E(f"s_cmp_eq_u32 s{sU}, 9\ns_cbranch_scc1 K2_SW1")
    E(f"v_and_b32 v{vPL}, 31, v0\nbuffer_load_ubyte v{vPL + 1}, v{vPL}, {s(SS, 4)}, s{sFL} offen sc0 sc1\ns_mov_b32 s{sSW}, 9")
    E(f"s_mov_b32 s{SD}, s100\ns_mov_b32 s{SD + 1}, s101\ns_mov_b32 s{SD + 2}, {688 * 1024:#x}\ns_lshl_b32 s{sPF}, s2, 1\ns_add_u32 s{sPF}, s{sPF}, s{sW}\ns_lshl_b32 s{sPF}, s{sPF}, 12\ns_branch K2_EV2")
    E("K2_SW1:\ns_waitcnt vmcnt(17)")
    E(f"v_cmp_ne_u32 vcc, 1, v{vPL + 1}\ns_nop 1\ns_cbranch_vccz K2_EV2")
    E(f"K2_FBLP:\ns_sleep 2\nbuffer_load_ubyte v{vPL + 1}, v{vPL}, {s(SS, 4)}, s{sFL} offen sc0 sc1\ns_waitcnt vmcnt(0)")
    E(f"v_cmp_ne_u32 vcc, 1, v{vPL + 1}\ns_nop 1\ns_cbranch_vccnz K2_FBLP")
    E("K2_EV2:")
    E(f"s_cmp_lt_u32 s{sTL}, s{sTD}\ns_cbranch_scc0 K2_EV3")
    E(f"s_cmp_eq_u32 s{sLO[0]}, 0\ns_cbranch_scc1 K2_EV4")
    for x in range(2):
        E(f"s_mov_b32 s{sTH[x]}, {fbits(THRESH)}\ns_mov_b32 s{sLO[x]}, 0")
    E(f"s_add_u32 s{sEV}, s{sU}, 1\ns_mov_b32 s{sDG}, 2\ns_branch K2_SWRETF")
    E("K2_EV4:")
    E(f"s_sub_u32 s{sEV}, s{sTD}, s{sTL}\ns_add_u32 s{sEV}, s{sEV}, s{sU}\ns_cmp_gt_u32 s{sSW}, s{sU}\ns_cselect_b32 s{sT}, s{sSW}, 99\ns_min_u32 s{sEV}, s{sEV}, s{sT}")
    E("s_branch K2_SWRET")
    E("K2_EV3:")
    E(f"s_add_u32 s{sEV}, s{sU}, 1\ns_mov_b32 s{sDG}, 1\ns_cmp_eq_u32 s{sTL}, s{sTD}\ns_cbranch_scc1 K2_SWRETD")
    for r in range(32):
        E(f"v_mov_b32 v{NEGM[0] + r}, v{vNEG}")
    E(f"s_mov_b32 s{sTH[0]}, 0x7f800000\ns_mov_b32 s{sTH[1]}, 0x7f800000\ns_branch K2_SWRETD")
    E("K2_FINB:")
    t = QBS
    E(f"s_cmp_eq_u32 s{sLO[0]}, 0\ns_cbranch_scc1 K2_FB1")
    for x in range(2):
        E(f"v_add_f32 v{vLSV[x]}, v{vLs[x][0]}, v{vLs[x][1]}\nv_mov_b32 v{vLs[x][0]}, 0\nv_mov_b32 v{vLs[x][1]}, 0\nv_sub_f32 v{vNM[x]}, 0, v{vNEG}")
    E("K2_FB1:")
    for x in range(2):
        E(f"v_mov_b32 v{t + 2 * x}, v{vLSV[x]}")
    E("s_nop 1")
    for x in range(2):
        E(f"v_permlane32_swap_b32 v{vLSV[x]}, v{t + 2 * x}")
    E("s_nop 1")
    for x in range(2):
        E(f"v_add_f32 v{t + 2 * x}, v{t + 2 * x}, v{vLSV[x]}\nv_rcp_f32 v{t + 2 * x}, v{t + 2 * x}")
    E(f"s_lshl_b32 s{sT}, s{sPI}, 2\ns_lshl_b32 s{sT2}, s{sRS}, 1\ns_add_u32 s{sT}, s{sT}, s{sT2}")
    for x in range(2):
        E(f"v_mov_b32 v{t + 2 * x + 1}, v{t + 2 * x}")
    E(f"s_mul_i32 s{sT}, s{sT}, {CTXU_STEPS}\ns_lshl_b32 s{sT2}, s{sHD}, 3\ns_add_u32 s{sT}, s{sT}, s{sT2}")
    E(f"s_lshl_b32 s{sT}, s{sT}, 10\ns_add_u32 s{sT}, s{sT}, {WS_CTXU}")
    for i in range(4):
        E(f"v_mov_b32 v{t + 4 + i}, 0")
    for x in range(2):
        for f in range(8):
            b = t + 8 + 8 * (f % 4)
            for i in range(8):
                E(f"v_accvgpr_read_b32 v{b + i}, a{aO + x * 64 + 8 * f + i}")
            if f % 2 == 1:
                E(mfma(('a', aO + x * 64 + 8 * (f - 1)), ('v', t + 4), ('v', t + 4), 0))
            for i in range(4):
                E(f"v_pk_mul_f32 {v(b + 2 * i, 2)}, {v(b + 2 * i, 2)}, {v(t + 2 * x, 2)}")
            for i in range(4):
                E(f"v_cvt_pk_bf16_f32 v{b + i}, v{b + 2 * i}, v{b + 2 * i + 1}")
            E(f"buffer_store_dwordx4 {v(b, 4)}, v{vL16}, {s(SS, 4)}, s{sT} offen offset:{1024 * (f % 4)} sc1")
            if f == 3:
                E(f"s_add_u32 s{sT}, s{sT}, 4096")
            if f == 7 and x == 0:
                E(f"s_add_u32 s{sT}, s{sT}, {CTXU_STEPS * 1024 - 4096}")
    E(f"s_cmp_eq_u32 s{sDG}, 2\ns_cbranch_scc1 K2_FBRETF\ns_branch K2_FBRETD")


QACC = 48
aXN = 0
aWF = 192


def wq_dma(j):
    out = []
    for i in range(4):
        g = []
        if i == 0:
            g += [I(f"s_add_u32 m0, s{sWM}, {j * 16384}"), I(f"s_add_u32 s{sDO}, s{sWQ}, {j * 64 * 8192}")]
        g.append(VM(f"buffer_load_dwordx4 v{vQD + i}, {s(SQ, 4)}, s{sDO} offen offset:{1024 * i} lds", f"wq{j}"))
        out.append(g)
    return out


def xn_loads(j):
    out = []
    for x in range(2):
        for cs in range(4):
            g = []
            if cs == 0:
                g.append(I(f"s_add_u32 s{sDO}, s{sXN}, {x * 32768 + j * 4096}"))
            g.append(VM(f"buffer_load_dwordx4 {a(aXN + (j % 4) * 32 + (x * 4 + cs) * 4, 4)}, v{vL16}, {s(SS, 4)}, "
                        f"s{sDO} offen offset:{1024 * cs}{SC1}", f"xn{j}"))
            out.append(g)
    return out


def znorm():
    ld = [[I(x) for x in (f"s_lshr_b32 s{sGM}, s2, 3", f"s_and_b32 s{sGP}, s2, 7", f"s_lshl_b32 s{sT}, s{sGM}, 1", f"s_add_u32 s{sT}, s{sT}, s{sG}",
                          f"s_lshl_b32 s{sT}, s{sT}, 11", f"s_add_u32 s{sT}, s{sT}, {WS_STAT}", f"v_lshlrev_b32 v{ZT}, 2, v0")]]
    for i in range(0, 8, 2):
        ld.append([VM(f"buffer_load_dword v{ZT + 4 + i + e}, v{ZT}, {s(SS, 4)}, s{sT} offen offset:{256 * (i + e)}{SC1}", "zn") for e in range(2)])
    ld.append([I(x) for x in (f"s_mul_i32 s{sGZ}, s{sGP}, 384", f"s_lshl_b32 s{sT}, s{sGM}, 2", f"s_add_u32 s{sGZ}, s{sGZ}, s{sT}",
                              f"s_add_u32 s{sGZ}, s{sGZ}, s{sW}", f"s_lshl_b32 s{sGZ}, s{sGZ}, 10")])
    for f in range(3):
        ld.append([I(f"s_add_u32 s{sT}, s{sGZ}, {WS_Z2R + f * 128 * 1024}"),
                   VM(f"buffer_load_dwordx4 {v(ZT + 12 + 4 * f, 4)}, v{vL16}, {s(SS, 4)}, s{sT} offen{SC1}", "zn")])
    z = ZT + 4
    AB = ZT + 24
    c = [WVM("zn")]
    c += flat([f"v_add_f32 v{z}, v{z}, v{z + 1}\nv_add_f32 v{z + 2}, v{z + 2}, v{z + 3}\nv_add_f32 v{z + 4}, v{z + 4}, v{z + 5}\nv_add_f32 v{z + 6}, v{z + 6}, v{z + 7}",
               f"v_add_f32 v{z}, v{z}, v{z + 2}\nv_add_f32 v{z + 4}, v{z + 4}, v{z + 6}\nv_add_f32 v{z}, v{z}, v{z + 4}",
               f"v_mul_f32 v{z}, {fbits(1 / 688)}, v{z}\nv_mov_b32 v{z + 1}, v{z}\ns_nop 1\nv_permlane32_swap_b32 v{z}, v{z + 1}\ns_nop 1",
               f"v_fma_f32 v{z + 1}, -v{z}, v{z}, v{z + 1}\nv_max_f32 v{z + 1}, 0, v{z + 1}\nv_add_f32 v{z + 1}, {fbits(LN_EPS)}, v{z + 1}\nv_rsq_f32 v{z + 1}, v{z + 1}\ns_nop 0",
               f"v_mul_f32 v{z}, v{z}, v{z + 1}\nv_sub_f32 v{z}, 0, v{z}",
               f"s_lshl_b32 s{sT}, s{sW}, 8\ns_add_u32 s{sT}, s{sT}, {SPARE}",
               f"v_lshlrev_b32 v{z + 2}, 2, v20\nv_add_u32 v{z + 2}, s{sT}, v{z + 2}"])
    c += [LG(f"ds_write_b32 v{z + 2}, v{z + 1}", "zw"), LG(f"ds_write_b32 v{z + 2}, v{z} offset:128", "zw")]
    c += flat([f"s_lshl_b32 s{sT2}, s{sRS}, 6\ns_add_u32 s{sT}, s{sT}, s{sT2}\nv_lshlrev_b32 v{z + 3}, 5, v21\nv_add_u32 v{z + 3}, s{sT}, v{z + 3}"])
    for i in range(2):
        c += [LG(f"ds_read_b128 {v(AB + 4 * i, 4)}, v{z + 3} offset:{16 * i}", "zr"),
              LG(f"ds_read_b128 {v(AB + 8 + 4 * i, 4)}, v{z + 3} offset:{128 + 16 * i}", "zr")]
    c += flat([f"s_lshl_b32 s{sGP}, s{sGP}, 8\ns_add_u32 s{sGP}, s{sGP}, s{sGM}\ns_add_u32 s{sGP}, s{sGP}, {WS_FLAG2}\ns_nop 0"])
    c += [WLG("zr")]
    for f in range(3):
        for i in range(4):
            x_ = ZT + 12 + 4 * f + i
            c += flat([f"v_lshlrev_b32 v{z}, 16, v{x_}\nv_and_b32 v{z + 1}, 0xffff0000, v{x_}",
                       f"v_fma_f32 v{z}, v{z}, v{AB + 2 * i}, v{AB + 8 + 2 * i}\nv_fma_f32 v{z + 1}, v{z + 1}, v{AB + 2 * i + 1}, v{AB + 9 + 2 * i}",
                       f"v_cvt_pk_bf16_f32 v{x_}, v{z}, v{z + 1}"])
        c += [I(f"s_add_u32 s{sT}, s{sGZ}, {WS_Z2N + f * 128 * 1024}"),
              VM(f"buffer_store_dwordx4 {v(ZT + 12 + 4 * f, 4)}, v{vL16}, {s(SS, 4)}, s{sT} offen sc1", "zs")]
    cg = [c[i:i + 4] for i in range(0, len(c), 4)]
    return ld, cg


def qproj(k):
    E = k.emit
    extra = {}

    def spread(c0, c1, groups):
        n = len(groups)
        for i, g in enumerate(groups):
            extra.setdefault(c0 + (i * (c1 - c0)) // n, []).append(g)

    def rd(c, fb):
        j, cs = c // 4, c % 4
        return [LG(f"ds_read_b64_tr_b16 {a(fb + 4 * d + 2 * sec, 2)}, v{vQR + (j // 4) * 4 + d} "
                   f"offset:{(j % 4) * 16384 + cs * 4096 + sec * 1024}", f"q{c}") for d in range(4) for sec in range(2)]

    def fbuf(c):
        return aWF + (c % 4) * 16

    def mf1(c, d, x):
        j, cs = c // 4, c % 4
        return mfma(('v', QACC + (x * 4 + d) * 16), ('a', fbuf(c) + 4 * d), ('a', aXN + (j % 4) * 32 + (x * 4 + cs) * 4),
                    0 if c == 0 else None)

    zl, zc = znorm()

    def kvpre(base, pre, so, so2, tag="kv"):
        d1, d2 = dma4(so, tag), dma4(so2, tag)
        return [[I(f"s_add_u32 m0, s{sW8}, {base}")] + [I(x) for x in pre] + [d1[0]]] + [[d] for d in d1[1:]] + \
               [[I(f"s_add_u32 m0, s{sW8}, {base + 4096}"), I("s_nop 0"), d2[0]]] + [[d] for d in d2[1:]]

    k0 = kvpre(0, [f"s_add_u32 s{sKO2}, s{sKN}, 4096"], sKN, sKO2, "k0")
    k1 = kvpre(32768, [f"s_add_u32 s{sVO}, s{sKN}, {WS_VF - WS_KF}", f"s_add_u32 s{sVO2}, s{sVO}, 4096",
                       f"s_add_u32 s{sKN}, s{sKN}, 0x4000", f"s_add_u32 s{sKO2}, s{sKN}, 4096"], sKN, sKO2)
    v0_ = kvpre(VB0, ["s_nop 0"], sVO, sVO2)
    q = []
    if MERGE12:
        order_ = ((0, wq_dma(2) + xn_loads(2) + wq_dma(3) + xn_loads(3) + wq_dma(4)), (4, xn_loads(4)), (0, wq_dma(5)), (8, xn_loads(5)),
                  (0, wq_dma(6)), (12, xn_loads(6)), (0, wq_dma(7)), (16, xn_loads(7)), (22, k0 + zl))
    else:
        order_ = ((0, wq_dma(2) + xn_loads(2) + wq_dma(3) + xn_loads(3) + wq_dma(4)), (4, xn_loads(4)), (0, wq_dma(5)), (8, xn_loads(5)),
                  (0, wq_dma(6) + zl), (12, xn_loads(6)), (0, wq_dma(7)), (16, xn_loads(7)), (6, k0), (14, k1))
    for e, grp in order_:
        q += [(e, g) for g in grp]
    RATE = 4
    c_ = 0
    n_ = 0
    for e, g in q:
        if e > c_:
            c_, n_ = e, 0
        extra.setdefault(c_, []).append(g)
        n_ += 1
        if n_ == RATE:
            c_, n_ = c_ + 1, 0
    assert c_ <= 27, c_
    valu = {}
    if not MERGE12:
        for i, g in enumerate(zc):
            valu.setdefault(19 + (i * 8) // len(zc), []).append(g)
    else:
        valu[18] = [[I(f"s_mov_b32 s{sT}, {WS_FP1}")] + poll_all_issue(sW, SS, f"s{sT}", 16, 4, 176)]

    E(WVM("wq0"), "s_barrier")
    stamp(k, 6)
    E(rd(0, fbuf(0)), rd(1, fbuf(1)))
    for c in range(28):
        j, cs = c // 4, c % 4
        n = c + 2
        if n % 4 == 0:
            lstamp(k, 19, 3 * (n // 4))
            E(WLG(f"q{n - 1}"), WVM(f"wq{n // 4}"))
            lstamp(k, 19, 3 * (n // 4) + 1)
            if MERGE12 and n == 24:
                E(poll_all_check(sW, SS, f"s{sT}", 16, 4, 176, 1))
            E("s_barrier")
            if MERGE12 and n == 4:
                E(f"s_lshl_b32 s{sT}, s2, 4\ns_add_u32 s{sT}, s{sT}, {WS_FP1}", flag_set(sW, SS, sT, 176))
        E(WLG(f"q{c}"))
        if cs == 0:
            E(WVM(f"xn{j}"))
            lstamp(k, 19, 3 * j + 2)
        r_ = rd(n, fbuf(n))
        ex, va = extra.get(c, []), valu.get(c, [])
        gm_ = {}
        for i in range(8):
            gm_[i] = [r_[i]] + ([ex[i // 2]] if (i % 2 == 0 and i // 2 < len(ex)) else []) + [va[z] for z in range(len(va)) if (z * 8) // len(va) == i]
        E(place([mf1(c, d, x) for d in range(4) for x in range(2)], gm_))
    E(rd(30, fbuf(30)), rd(31, fbuf(31)))
    E(f"v_mov_b32 v{vT}, {fbits(QSCALE)}\nv_mov_b32 v{vT + 1}, {fbits(QSCALE)}")
    E(f"v_add_u32 v{vT + 2}, s{sW8}, v{vL16}\nv_add_u32 v{vT + 3}, {SPARE}, v{vT + 2}\nv_add_u32 v{vT + 2}, {VB0 + 32768}, v{vT + 2}")
    E(WVM("xn7"), WLG0, "s_barrier")

    def epi(d, x):
        out = []
        for g in range(2):
            b = QACC + (x * 4 + d) * 16 + 8 * g
            out.append([I(f"v_mul_f32 v{b + i}, v{vT}, v{b + i}") for i in range(8)])
            out.append([I(f"v_cvt_pk_bf16_f32 v{b + i}, v{b + 2 * i}, v{b + 2 * i + 1}") for i in range(4)] +
                       [LG(f"ds_write_b128 v{vT + 3 - x}, {v(b, 4)} offset:{(2 * d + g) * 1024}")])
        return out

    tiles = [(d, x) for x in range(2) for d in range(4)]
    for i, (d, x) in enumerate(tiles):
        m = [mf1(c, d, x) for c in range(28, 32)]
        kv2 = (k1 + v0_)[2 * i:2 * i + 2] if MERGE12 else [v0_[i], []]
        if i == 0:
            E(m[0], kv2[0], m[1], m[2], kv2[1], m[3])
        else:
            e = epi(*tiles[i - 1])
            E(m[0], kv2[0], m[1], e[0], e[1], m[2], kv2[1], e[2], m[3], e[3])
    stamp(k, 7)
    E("s_nop 15")
    E(epi(*tiles[-1]))
    E(WVM("k0"), WVM("zs"), WLG0, "s_barrier")
    if not MERGE12:
        E(flag_set(sW, SS, sGP, ZT))
    k.zc = zc
    E(f"s_lshl_b32 s{sT}, s{sRS}, 13\nv_add_u32 v{vT + 4}, s{sT}, v{vL16}")
    E(f"v_add_u32 v{vT + 5}, {SPARE}, v{vT + 4}\nv_add_u32 v{vT + 4}, {VB0 + 32768}, v{vT + 4}")
    E(kreads(vKc, 0))
    for x in range(2):
        for f in range(8):
            E(LG(f"ds_read_b128 {a(aQ + (x * 8 + f) * 4, 4)}, v{vT + 3 - x} offset:{f * 1024}"))
    for x in range(2):
        for f in range(8):
            E(LG(f"ds_read_b128 {v(QBS + (x * 8 + f) * 4, 4)}, v{vT + 5 - x} offset:{f * 1024}"))


ZRING = (('v', 144), ('v', 192), ('a', 128), ('a', 176))
vWS = 48
vPD = 32
vPR = 40
NGS = 5


def g_slot(st):
    return (0, 1, 3, 2, 4)[st % NGS] * 32768


def zreg(st, i):
    kind, base = ZRING[st % 4]
    return (kind, base + i * 4)


def sprinkle(items, groups):
    items = flat(items)
    n, m = len(items), len(groups)
    out, gi = [], 0
    for i, it in enumerate(items):
        while gi < m and gi * n <= i * m:
            out.append(groups[gi])
            gi += 1
        out.append(it)
    return flat(out + groups[gi:])


def g_dma(st):
    out = []
    for i in range(8):
        g = []
        if i % 4 == 0:
            g += [I(f"s_add_u32 m0, s{sW8}, {g_slot(st) + (i // 4) * 4096}"), I(f"s_add_u32 s{sDO}, s{sGP}, {st * 128}")]
        g.append(VM(f"buffer_load_dwordx4 v{vPD + i}, {s(SP, 4)}, s{sDO} offen offset:{1024 * (i % 4)} lds", f"g{st}"))
        out.append(g)
    return out


def g_zl(st):
    out = []
    for f in range(3):
        for ks in range(4):
            g = []
            if ks == 0:
                g.append(I(f"s_add_u32 s{sGM}, s{sGZ}, {f * 128 * 1024 + st * 4096}"))
            g.append(VM(f"buffer_load_dwordx4 {R(zreg(st, f * 4 + ks), 4)}, v{vL16}, {s(SS, 4)}, "
                        f"s{sGM} offen offset:{1024 * ks} sc1", f"g{st}"))
            out.append(g)
    return out


def g_setup():
    o = [f"v_lshrrev_b32 v{ZT + 32}, 4, v0\nv_lshrrev_b32 v{ZT + 33}, 3, v0\nv_lshlrev_b32 v{ZT + 33}, 12, v{ZT + 33}\nv_and_b32 v{ZT + 34}, 7, v0\nv_xor_b32 v{ZT + 34}, v{ZT + 34}, v{ZT + 32}",
         f"v_lshl_add_u32 v{ZT + 35}, v{ZT + 34}, 4, v{ZT + 33}\nv_xor_b32 v{ZT + 34}, 4, v{ZT + 34}\nv_lshl_add_u32 v{ZT + 36}, v{ZT + 34}, 4, v{ZT + 33}"]
    for i in range(8):
        o.append(f"v_add_u32 v{vPD + i}, {i * 8 * 4096 - (i % 4) * 1024}, v{ZT + 35 + (i % 2)}")
    o.append(f"v_lshrrev_b32 v{ZT + 32}, 5, v0\nv_bfe_u32 v{ZT + 33}, v0, 1, 3\nv_xor_b32 v{ZT + 33}, v{ZT + 33}, v{ZT + 32}")
    o.append(f"v_and_b32 v{ZT + 34}, 31, v0\nv_lshlrev_b32 v{ZT + 34}, 7, v{ZT + 34}\nv_add_u32 v{ZT + 34}, s{sW8}, v{ZT + 34}")
    for ks in range(4):
        o.append(f"v_xor_b32 v{ZT + 35}, {2 * ks}, v{ZT + 33}\nv_lshl_add_u32 v{vPR + ks}, v{ZT + 35}, 4, v{ZT + 34}\nv_add_u32 v{vPR + 4 + ks}, 0x10000, v{vPR + ks}")
    o.append(f"s_lshl_b32 s{sGP}, s{sHD}, 18\ns_lshl_b32 s{sDO}, s{sW}, 10\ns_add_u32 s{sGP}, s{sGP}, s{sDO}")
    o.append(f"s_mul_i32 s{sGZ}, s{sPI}, 384\ns_lshl_b32 s{sGM}, s{sW}, 5\ns_add_u32 s{sGZ}, s{sGZ}, s{sGM}")
    o.append(f"s_lshl_b32 s{sGZ}, s{sGZ}, 10\ns_add_u32 s{sGZ}, s{sGZ}, {WS_Z2N}")
    return o


def merge(k, keep):
    E = k.emit
    send = 1 - keep
    t = vT
    wr = [LG(f"ds_write_b128 v{t + 4 + i // 8}, {a(aO + send * 64 + 4 * i, 4)} offset:{(i % 8) * 1024}") for i in range(16)]
    E(LG(f"ds_read_b64 {v(t + 8, 2)}, v{t + 4}", "mb"))
    d0, d1 = g_dma(0), g_dma(1)
    E(weave(pv(send, 1), d0, 0, 8))
    E(WLG("mb"))
    fac = [f"v_min_f32 v{t}, v{vNM[keep]}, v{t + 8}", f"v_sub_f32 v{t + 2}, v{t}, v{vNM[keep]}", f"v_sub_f32 v{t + 8}, v{t}, v{t + 8}",
           f"v_exp_f32 v{t + 2}, v{t + 2}", f"v_exp_f32 v{t + 8}, v{t + 8}", "s_nop 0",
           f"v_mul_f32 v{t}, v{vLs[keep][0]}, v{t + 2}", f"v_fmac_f32 v{t}, v{t + 9}, v{t + 8}", f"v_rcp_f32 v{t}, v{t}", "s_nop 0",
           f"v_mul_f32 v{t + 2}, v{t + 2}, v{t}", f"v_mul_f32 v{t + 8}, v{t + 8}, v{t}", f"v_mov_b32 v{t + 3}, v{t + 2}", f"v_mov_b32 v{t + 9}, v{t + 8}"]
    m = pv(keep, 1)
    E(m[0], d1[0], fac[:6], m[1], d1[1], fac[6:], weave(m[2:], interleave2(wr, d1[2:]), 0, 6))
    E(WLG0, "s_barrier")
    RX = S[0]
    for i in range(16):
        E(LG(f"ds_read_b128 {v(RX + 4 * i, 4)}, v{t + 6 + i // 8} offset:{(i % 8) * 1024}", f"rx{i}"))
    body = []
    for f in range(8):
        b = RX + 8 * f
        body += [I(f"v_accvgpr_read_b32 v{PB + i}, a{aO + keep * 64 + 8 * f + i}") for i in range(8)]
        body += [WLG(f"rx{2 * f + 1}")]
        body += [I(f"v_pk_mul_f32 {v(b + 2 * i, 2)}, {v(b + 2 * i, 2)}, {v(t + 8, 2)}") for i in range(4)]
        body += [I(f"v_pk_fma_f32 {v(b + 2 * i, 2)}, {v(PB + 2 * i, 2)}, {v(t + 2, 2)}, {v(b + 2 * i, 2)}") for i in range(4)]
        body += [I(f"v_cvt_pk_bf16_f32 v{PB + 8 + 4 * (f % 4) + i}, v{b + 2 * i}, v{b + 2 * i + 1}") for i in range(4)]
        body += [VM(f"buffer_store_dwordx4 {v(PB + 8 + 4 * (f % 4), 4)}, v{vL16}, {s(SS, 4)}, s{sT if f < 4 else sT2} offen offset:{1024 * (f % 4)} sc1", "cs")]
    E(sprinkle(body, g_zl(1)))


def interleave2(x, y):
    out = []
    n = max(len(x), len(y))
    for i in range(n):
        out += x[(i * len(x)) // n:((i + 1) * len(x)) // n] + y[(i * len(y)) // n:((i + 1) * len(y)) // n]
    return out


def gphase(k):
    E = k.emit

    def reads(st):
        o = g_slot(st)
        sg, off = (0, o) if o < 65536 else (1, o - 65536)
        out = []
        for ks in range(4):
            for ts in range(2):
                if off + ts * 4096 < 65536:
                    out.append(LG(f"ds_read_b128 {v(vWS + (st % 2) * 32 + (ts * 4 + ks) * 4, 4)}, v{vPR + sg * 4 + ks} "
                                  f"offset:{off + ts * 4096}", f"p{st}"))
                else:
                    out.append(LG(f"ds_read_b128 {v(vWS + (st % 2) * 32 + (ts * 4 + ks) * 4, 4)}, v{ZT + 40 + ks} "
                                  f"offset:{off - 65536 + ts * 4096}", f"p{st}"))
        return out

    def mf(st):
        return [mfma(('a', (ts * 3 + f) * 16), zreg(st, f * 4 + ks),
                     ('v', vWS + (st % 2) * 32 + (ts * 4 + ks) * 4), 0 if (st == 0 and ks == 0) else None)
                for ks in range(4) for f in range(3) for ts in range(2)]

    for ks in range(4):
        E(f"v_add_u32 v{ZT + 40 + ks}, 0x20000, v{vPR + ks}")
    E("s_barrier")
    E(WVM("g0"))
    stamp(k, 10)
    E(reads(0))
    sched = {st: g_dma(st + 2) + g_zl(st + 2) for st in range(6)}
    for st in range(8):
        E(WLG(f"p{st}"))
        ld = sched.get(st, [])
        m = mf(st)
        n1 = (len(ld) * 14) // 24
        first = weave(m[:14], ld[:n1], 0, 14)
        second = ([WVM(f"g{st + 1}")] + weave(m[14:], interleave2(reads(st + 1), ld[n1:]), 0, 9)) if st + 1 < 8 else m[14:]
        if st == 6:
            fin = flat([f"s_lshl_b32 s{sT}, s{sHD}, 1\ns_add_u32 s{sT}, s{sT}, s{sG}",
                        f"s_mul_i32 s{sT2}, s{sPI}, 6\ns_mul_i32 s{sGP}, s{sRS}, 3\ns_add_u32 s{sT2}, s{sT2}, s{sGP}",
                        f"s_mul_i32 s{sGP}, s{sT}, 48\ns_add_u32 s{sGP}, s{sGP}, s{sT2}\ns_lshl_b32 s{sGP}, s{sGP}, 10\ns_add_u32 s{sGP}, s{sGP}, {WS_Z1}",
                        f"s_mul_i32 s{sGZ}, s{sT}, {CTXU_STEPS}\ns_add_u32 s{sGZ}, s{sGZ}, s{sT2}\ns_add_u32 s{sGZ}, s{sGZ}, 256",
                        f"s_lshl_b32 s{sGZ}, s{sGZ}, 10\ns_add_u32 s{sGZ}, s{sGZ}, {WS_CTXU}",
                        f"s_lshl_b32 s{sT}, s{sT}, 6\nv_and_b32 v21, 31, v0\nv_lshlrev_b32 v21, 1, v21"])
            fin += [VM(f"buffer_load_dwordx4 {v(4 + 4 * i, 4)}, v{vL16}, {s(SS, 4)}, s{sGP} offen offset:{1024 * i}{SC1}", "fin") for i in range(3)]
            fin += [VM(f"buffer_load_ushort v16, v21, {s(SB, 4)}, s{sT} offen", "fin")]
            fin += flat([f"v_add_u32 v20, s{sW8}, v{vL16}\nv_add_u32 v21, 0x10000, v20\ns_lshl_b32 s{sT}, s{sW}, 15\nv_add_u32 v25, s{sT}, v{vL16}"])
            for j in range(1, 4):
                fin += flat([f"s_add_u32 s{sT}, s{sW}, {j}\ns_and_b32 s{sT}, s{sT}, 3\ns_lshl_b32 s{sT}, s{sT}, 13\nv_add_u32 v{21 + j}, s{sT}, v25"])
            first = weave(m[:14], [fin[i:i + 3] for i in range(0, len(fin), 3)], 0, 14)
        if MERGE23 and st == 2:
            E(WVM("cs"), "s_barrier")
            E(f"s_lshl_b32 s{sT}, s{sPI}, 5\ns_add_u32 s{sT}, s{sT}, s{sHD}\ns_lshl_b32 s{sT}, s{sT}, 4\ns_add_u32 s{sT}, s{sT}, {WS_FCTX}")
            E(flag_set(sW, SS, sT, 17))
        if MERGE23 and st == 7:
            E(f"s_bfe_u32 s{sT}, s2, 0x10002\ns_lshl_b32 s{sT}, s{sT}, 3\ns_bfe_u32 s{sT2}, s2, 0x30003\ns_add_u32 s{sT}, s{sT}, s{sT2}\ns_sub_u32 s{sT2}, 15, s{sT}\ns_min_u32 s{sT}, s{sT}, s{sT2}")
            E(f"s_lshl_b32 s{sT}, s{sT}, 9\ns_and_b32 s{sT2}, s2, 3\ns_lshl_b32 s{sT2}, s{sT2}, 7\ns_add_u32 s{sT}, s{sT}, s{sT2}\ns_add_u32 s{sFL}, s{sT}, {WS_FCTX}")
            E(wave0(sW, [I("v_and_b32 v17, 7, v0"), I("v_lshlrev_b32 v17, 4, v17"),
                         VMG(f"buffer_load_ubyte v18, v17, {s(SS, 4)}, s{sFL} offen sc0 sc1", "poll")]))
        lstamp(k, 19, 32 + 3 * st)
        E(first)
        lstamp(k, 19, 33 + 3 * st)
        E(second[:1])
        lstamp(k, 19, 34 + 3 * st)
        E(second[1:])
    stamp(k, 11)
    E("s_nop 7")
    for d in range(4):
        E(f"s_cmp_eq_u32 s{sW}, {d}\ns_cbranch_scc1 K2_GO{d}")
        for i in range(3):
            fr = 3 * d + i
            for q in range(2):
                E(f"ds_write_b128 v{20 + d // 2}, {a(fr * 8 + 4 * q, 4)} offset:{(d % 2) * 32768 + (i * 2 + q) * 1024}")
        E(f"s_branch K2_GN{d}\nK2_GO{d}:")
        for i in range(3):
            for r in range(8):
                E(f"v_accvgpr_read_b32 v{48 + i * 32 + r}, a{(3 * d + i) * 8 + r}")
        E(f"K2_GN{d}:")
    if MERGE23:
        E(flag_poll_check(sW, SS, sFL, 17))
    E(WLG0, "s_barrier")
    for i in range(3):
        for j in range(1, 4):
            for q in range(2):
                E(LG(f"ds_read_b128 {v(48 + i * 32 + j * 8 + q * 4, 4)}, v{21 + j} offset:{(i * 2 + q) * 1024}", f"x{i}"))
    E(WVM("fin"), "v_lshlrev_b32 v16, 16, v16")
    for i in range(3):
        E(WLG(f"x{i}"))
        b = 48 + i * 32
        for r in range(8):
            E(f"v_add_f32 v{b + r}, v{b + r}, v{b + 8 + r}\nv_add_f32 v{b + 16 + r}, v{b + 16 + r}, v{b + 24 + r}")
        for r in range(8):
            E(f"v_add_f32 v{b + r}, v{b + r}, v16")
        for r in range(8):
            E(f"v_add_f32 v{b + r}, v{b + r}, v{b + 16 + r}")
        for r in range(4):
            z = 4 + 4 * i + r
            E(f"v_lshlrev_b32 v26, 16, v{z}\nv_and_b32 v27, 0xffff0000, v{z}")
            E(f"v_mul_f32 v{b + 2 * r}, v{b + 2 * r}, v26\nv_mul_f32 v{b + 2 * r + 1}, v{b + 2 * r + 1}, v27")
        for r in range(4):
            E(f"v_cvt_pk_bf16_f32 v{b + r}, v{b + 2 * r}, v{b + 2 * r + 1}")
        E(VM(f"buffer_store_dwordx4 {v(b, 4)}, v{vL16}, {s(SS, 4)}, s{sGZ} offen offset:{1024 * i} sc1", "us"))


def build(k=None):
    merged = k is not None
    if not merged:
        k = Kern("k2_kernel")
    E = k.emit
    if not merged:
        E("s_cmp_ge_u32 s2, 256\ns_cbranch_scc1 K2_END")
        code_prefetch(k, "L_CODE_END" if MERGE23 else "k3_kernel", 0, 248)
    stamp_init(k)
    stamp(k, 0)
    E(f"s_load_dwordx2 s[64:65], s[0:1], {KA_WQ}")
    E(f"s_load_dwordx4 s[72:75], s[0:1], {KA_DBG}")
    E(f"s_load_dwordx4 s[68:71], s[0:1], {KA_WSP}")
    if not merged:
        E("v_lshrrev_b32 v1, 6, v0\nv_and_b32 v0, 63, v0")
    E(f"s_and_b32 s{sHD}, s2, 7\ns_lshl_b32 s{sHD}, s{sHD}, 2\ns_lshr_b32 s{sT}, s2, 3\ns_lshr_b32 s{sPI}, s{sT}, 2")
    if not merged:
        E(f"v_readfirstlane_b32 s{sW}, v1")
    E(f"s_and_b32 s{sT}, s{sT}, 3\ns_add_u32 s{sHD}, s{sHD}, s{sT}")
    E(f"s_and_b32 s{sRS}, s{sW}, 1\ns_lshr_b32 s{sG}, s{sW}, 1\ns_lshl_b32 s{sW8}, s{sW}, 13")
    E(f"v_lshlrev_b32 v{vL16}, 4, v0")
    E("v_and_b32 v20, 31, v0\nv_lshrrev_b32 v21, 5, v0\nv_lshrrev_b32 v22, 4, v0")
    E("v_bfe_u32 v23, v0, 2, 2\nv_and_b32 v24, 3, v0\nv_bfe_u32 v25, v0, 4, 1")
    E("v_xor_b32 v26, v23, v22\nv_lshlrev_b32 v27, 13, v22\nv_lshl_add_u32 v27, v26, 6, v27\nv_lshl_add_u32 v27, v24, 4, v27")
    for i in range(4):
        E(f"v_add_u32 v{vQD + i}, {i * (32768 - 1024)}, v27")
    E(f"s_sub_u32 s{sT}, 15, s{sPI}\ns_cmp_eq_u32 s{sG}, 0\ns_cselect_b32 s{sT}, s{sT}, s{sPI}")
    E(f"s_lshl_b32 s{sTD}, s{sT}, 1\ns_add_u32 s{sTD}, s{sTD}, s{sRS}\ns_lshl_b32 s{sXN}, s{sTD}, 16\ns_add_u32 s{sXN}, s{sXN}, {WS_XN}")
    E(f"s_lshl_b32 s{sWQ}, s{sW}, 17\ns_lshl_b32 s{sT}, s{sHD}, 8\ns_add_u32 s{sWQ}, s{sWQ}, s{sT}\ns_lshl_b32 s{sWM}, s{sW}, 12")
    E("s_waitcnt lgkmcnt(0)")
    E(srd(SQ, 64, 512 * 8192), srd(SS, 74, WS_SIZE))
    if not merged:
        for j in range(2):
            E(wq_dma(j), xn_loads(j))
    E(srd(SP, 68, 2048 * 4096), srd(SB, 70, 4096), srd(SD, 68, 2048 * 4096))
    E("v_lshl_add_u32 v26, v21, 3, v23\nv_lshlrev_b32 v26, 8, v26\nv_lshl_add_u32 v26, v25, 5, v26\nv_lshl_add_u32 v26, v24, 3, v26")
    for d in range(4):
        E(f"v_xor_b32 v27, {d}, v23\nv_lshl_add_u32 v{vQR + d}, v27, 6, v26\nv_add_u32 v{vQR + 4 + d}, 0x10000, v{vQR + d}")
    E(f"s_lshl_b32 s{sT}, s{sG}, 14\nv_add_u32 v{vKc}, s{sT}, v{vL16}\nv_add_u32 v{vKn}, 32768, v{vKc}\nv_add_u32 v{vVc}, {VB0}, v{vKc}\nv_mov_b32 v{vVp}, v{vVc}")
    E(f"v_lshlrev_b32 v26, 2, v21\nv_sub_u32 v{vD0}, v20, v26\nv_mov_b32 v{vNEG}, {fbits(NEG)}")
    E(f"s_lshl_b32 s{sKN}, s{sHD}, 19\ns_lshl_b32 s{sT}, s{sRS}, 13\ns_add_u32 s{sKN}, s{sKN}, s{sT}\ns_add_u32 s{sKN}, s{sKN}, {WS_KF}")
    E(f"s_lshl_b32 s{sT}, s{sPI}, 1\ns_add_u32 s{sT}, s{sT}, 2\ns_sub_u32 s{sT2}, 18, s{sT}\ns_lshl_b32 s{sT2}, s{sT2}, 14")
    E(f"s_cmp_eq_u32 s{sG}, 0\ns_cselect_b32 s{sSW}, 8, s{sT}\ns_cselect_b32 s{sJUMP}, 0x4000, s{sT2}\ns_sub_u32 s{sSW2}, s{sSW}, 2")
    E(f"s_lshl_b32 s{sFL}, s{sPI}, 8\ns_add_u32 s{sFL}, s{sFL}, {WS_FLAG2}\ns_lshl_b32 s{sPF}, s2, 2\ns_add_u32 s{sPF}, s{sPF}, s{sW}\ns_lshl_b32 s{sPF}, s{sPF}, 12\nv_lshlrev_b32 v{ZT + 41}, 6, v0")
    E(f"s_load_dwordx2 s[28:29], s[0:1], {KA_WO}\ns_load_dwordx2 s[100:101], s[0:1], {KA_WOUT}\ns_waitcnt lgkmcnt(0)")
    if "nowsp" in EXP:
        E(f"s_mov_b32 s{sPF}, 0x1000000")
    if merged:
        import k1
        E(f"s_mov_b32 s98, 0x20000000\ns_cmp_eq_u32 s{sG}, 1\ns_cbranch_scc1 K2_ZE2")
        st0 = (list(k.vm), list(k.lg))
        E(k1.z_epilogue(False, SS, vL16, 20, 21, sRS, 0), "s_branch K2_ZE")
        k.set_state(*st0)
        E("K2_ZE2:")
        E(k1.z_epilogue(True, SS, vL16, 20, 21, sRS, 0))
        E("K2_ZE:")
        E("s_barrier")
        for j in range(2):
            E(wq_dma(j), xn_loads(j))
    stamp(k, 5)
    rstamp(k, 19, 24)
    qproj(k)
    if MERGE12:
        E(WLG0, "s_barrier")
        E("v_and_b32 v20, 31, v0\nv_lshrrev_b32 v21, 5, v0", k.zc)
    E(VM(f"buffer_load_dword v{ZT + 40}, v{ZT + 41}, {s(SD, 4)}, s{sPF} offen", "pf"), f"s_add_u32 s{sPF}, s{sPF}, 0x400000")
    gm, wrapped, pin = schedule_loop()
    gmd, wrapped_d, pin_d = schedule_loop('D', pin)
    gmf, wrapped_f, pin_f = schedule_loop('F', pin)
    assert pin == pin_d and pin == pin_f
    wtxt = [it[1] for it in flat(wrapped)]
    for r in range(16):
        E(f"v_mov_b32 v{P(1, 0) + r}, 0\nv_mov_b32 v{NEGM[0] + r}, 0\nv_mov_b32 v{NEGM[1] + r}, 0")
        late = f"v_exp_f32 v{S[1] + r}, v{S[1] + r}" in wtxt
        E(f"v_mov_b32 v{S[1] + r}, {'v%d' % vNEG if late else '0'}")
    assert not any(f"v{S[0] + r}," in w or w.endswith(f"v{S[0] + r}") for w in wtxt for r in range(16))
    for r in (8, 9, 10, 11, 12, 13):
        E(f"v_mov_b32 v{r}, 0")
    E(f"v_mov_b32 v{vT}, 0x7f800000")
    for r0 in range(0, 16, 4):
        for r in range(r0, r0 + 4):
            E(f"v_cmp_gt_i32 s[{64 + 2 * (r % 4)}:{65 + 2 * (r % 4)}], {8 * (r // 4) + r % 4}, v{vD0}\nv_mov_b32 v{NEGB + r}, v{vNEG}")
        for r in range(r0, r0 + 4):
            E(f"v_cndmask_b32 v{MSK + r}, v{vT}, v{vNEG}, s[{64 + 2 * (r % 4)}:{65 + 2 * (r % 4)}]")
    E(f"s_mov_b32 s{sEV}, 0\ns_mov_b32 s{sDG}, 0")
    for x in range(2):
        E(f"s_mov_b32 s{sTH[x]}, {NINF}\ns_mov_b32 s{sLO[x]}, {NINF}")
    for i in range(8):
        E(mfma(('a', aO + 16 * i), ('v', P(1, 0)), ('v', P(1, 0)), 0))
    E(f"s_mov_b32 s{sU}, 0\ns_mov_b32 s{sTL}, 0\ns_mov_b32 s{sMK}, s{sW8}\ns_add_u32 s{sMV}, s{sW8}, {VB0 + 32768}")
    E(WLG0)
    stamp(k, 1)
    rstamp(k, 19, 26)
    dstamp(k, 4)
    def body(gm_, sf):
        diag = sf == "D"
        k.set_state(["kv"] * 16 + ["pf"], ["k"] * 8)
        main = qk(0) + qk(1) + pv(0, 1) + pv(1, 1) + qk(0, NEGB if diag else None) + qk(1) + pv(0, 0) + pv(1, 0)
        gm_[-1] = [I(f"K2_SWRET{sf}:"), WLG("k")]
        if sf:
            gm_[31] = gm_[31] + [I(f"s_cmp_eq_u32 s{sU}, s{sSW}"), I("s_cbranch_scc1 K2_FINB"), I(f"K2_FBRET{sf}:")]
        gm_[63] = gm_[63] + [I(f"s_cmp_lt_u32 s{sU}, 17"), I("s_cbranch_scc1 K2_LOOP")]
        bd = place(main, gm_)

        def drop(it):
            tx = it[1] if len(it) > 1 and isinstance(it[1], str) else ""
            if "nodma" in EXP and ("buffer_load" in tx): return True
            if "nobar" in EXP and tx == "s_barrier": return True
            if "nowait" in EXP and ("s_waitcnt" in tx or it[0] in ('wlg',)): return True
            if "noread" in EXP and tx.startswith("ds_read"): return True
            if "nobr" in EXP and ("K2_RARE" in tx or "K2_FINB" in tx): return True
            return False
        E([it for it in bd if not drop(it)])

    E(".p2align 6")
    for _ in range(int(os.environ.get("PAD", "0"))):
        E("s_nop 0")
    E("K2_LOOP:")
    if PROF and os.environ.get("PROF2"):
        E("s_memtime s[78:79]", "s_waitcnt lgkmcnt(0)", f"s_mov_b32 m0, s{sU}", "s_nop 0", "v_writelane_b32 v255, s78, m0")
    E(f"s_cmp_eq_u32 s{sU}, s{sEV}\ns_cbranch_scc1 K2_EVENT")
    body(gm, '')
    E("K2_TAIL:")
    stamp(k, 8)
    rstamp(k, 19, 28)
    dstamp(k, 5)
    if PROF:
        E(f"s_lshl_b32 s78, s2, 2\ns_add_u32 s78, s78, s{sW}\ns_lshl_b32 s78, s78, 8\ns_add_u32 s78, s78, {WS_PROF + 0x100000}\nv_lshlrev_b32 v254, 2, v0")
        E(f"buffer_store_dword v255, v254, {s(SS, 4)}, s78 offen")
    E(vreads(vVp, 1))
    gs = g_setup()
    E(gs[-2:])
    t = vT
    tl = flat(wrapped)
    for x in range(2):
        tl += flat([f"v_add_f32 v{vLs[x][0]}, v{vLs[x][0]}, v{vLs[x][1]}"])
    for x in range(2):
        tl += flat([f"v_mov_b32 v{vLs[x][1]}, v{vLs[x][0]}"])
    tl += flat([f"v_add_u32 v{t + 4}, s{sW8}, v{vL16}\nv_and_b32 v{t + 5}, 0x18000, v{vVp}"])
    for x in range(2):
        tl += flat([f"v_permlane32_swap_b32 v{vLs[x][0]}, v{vLs[x][1]}"])
    tl += flat([f"v_add_u32 v{t + 5}, v{t + 5}, v{t + 4}\nv_add_u32 v{t + 4}, {SPARE}, v{t + 4}"])
    for x in range(2):
        tl += flat([f"v_add_f32 v{vLs[x][0]}, v{vLs[x][0]}, v{vLs[x][1]}"])
    tl += [[I(f"s_cmp_eq_u32 s{sG}, 0"), I("s_cselect_b64 vcc, -1, 0")]]
    tl += flat([f"v_xor_b32 v{t + 6}, 0x4000, v{t + 4}\nv_xor_b32 v{t + 7}, 0x4000, v{t + 5}",
                f"v_cndmask_b32 v{t + 8}, v{vNM[0]}, v{vNM[1]}, vcc\nv_cndmask_b32 v{t + 9}, v{vLs[0][0]}, v{vLs[1][0]}, vcc"])
    tl += [LG(f"ds_write_b64 v{t + 6}, {v(t + 8, 2)}")]
    tl += flat(gs[:-2])
    tl += flat([f"s_sub_u32 s{sT}, 15, s{sPI}\ns_lshl_b32 s{sT}, s{sT}, 2\ns_lshl_b32 s{sT2}, s{sRS}, 1\ns_add_u32 s{sT}, s{sT}, s{sT2}\ns_add_u32 s{sT}, s{sT}, s{sG}",
                f"s_mul_i32 s{sT}, s{sT}, {CTXU_STEPS}\ns_lshl_b32 s{sT2}, s{sHD}, 3\ns_add_u32 s{sT}, s{sT}, s{sT2}",
                f"s_lshl_b32 s{sT}, s{sT}, 10\ns_add_u32 s{sT}, s{sT}, {WS_CTXU}\ns_add_u32 s{sT2}, s{sT}, 4096"])
    zz = g_zl(0)
    out_, gi = [], 0
    for i, it in enumerate(tl):
        while gi < len(zz) and gi * len(tl) <= i * len(zz):
            out_.append(zz[gi])
            gi += 1
        out_.append(it)
    E(out_, zz[gi:])
    E(WVM("pf"), WLG0, "s_barrier")
    E(f"s_cmp_eq_u32 s{sG}, 1\ns_cbranch_scc1 K2_MERGE1")
    st = (list(k.vm), list(k.lg))
    merge(k, 0)
    E("s_branch K2_G")
    k.set_state(*st)
    E("K2_MERGE1:")
    merge(k, 1)
    E("K2_G:")
    stamp(k, 3)
    gphase(k)
    if PROF and not MERGE23:
        E(WVM0)
    stamp(k, 4)
    rstamp(k, 19, 30)
    dstamp(k, 6)
    lstamp_store(k, 1, 19, 28, SS, sW)
    if PROF:
        E(f"s_mov_b32 s95, s{sPI}")
    stamp_store(k, 1, SS, sW, 208)
    if MERGE23:
        import k3
        E(f"s_mov_b64 exec, -1\ns_lshl_b32 s{sT}, s{sHD}, 3\ns_add_u32 s{sT}, s{sT}, s{sPI}\ns_lshl_b32 s{sT}, s{sT}, 4\ns_add_u32 s50, s{sT}, {WS_FU}")
        k3.build(k)
    E("K2_END:")
    E("s_endpgm")
    for x in range(2):
        for buf in range(2):
            rare_path(k, x, buf)
    hooks(k)
    body(gmd, 'D')
    E("s_branch K2_TAIL")
    body(gmf, 'F')
    E("s_branch K2_TAIL")
    if merged:
        return
    return k.text(512, 256)
```

```python
from asmlib import *
from common import *
import os

THRESH = float(os.environ.get("THRESH", "32.0"))
BUDGET = int(os.environ.get("BUDGET", "25"))
EXP = os.environ.get("EXP2", "")

SQ, SP, SB, SS, SD = 8, 12, 16, 20, 24
sW, sHD, sPI, sG, sRS = 32, 33, 34, 35, 36
sT, sT2, sU, sSW, sSW2, sJUMP, sTL, sTD = 37, 38, 39, 40, 41, 42, 43, 44
sKN, sKO2, sVO, sVO2, sMK, sMV = 45, 46, 47, 48, 49, 50
sTH = (51, 52)
sLO = (53, 54)
sXN, sWQ, sWM, sW8, sDO = 55, 56, 57, 59, 58
sGP, sGZ, sGM, sFL, sPF, sEV, sDG = 60, 61, 62, 63, 76, 77, 31
NINF = "0xff800000"
SC1 = " sc1" if MERGE12 else ""

vL16, vKc, vKn, vVp, vVc, vD0, vNEG = 1, 2, 3, 4, 5, 6, 7
vLs = ((8, 9), (10, 11))
vNM = (12, 13)
vM = 14
vLSV = (30, 31)
vT = 20
vQD = 32
vQR = 36
S = (48, 64)
NEGM = (80, 96)
PB = 112
QBS = 144
ZT = 208
NEGB = 208
MSK = 224
vPL = 240
aO, aQ, aK, aV = 0, 128, 192, 224

KB0, VB0, SPARE = 0, 65536, 131072
NEG = -1.0e30


def P(buf, x, i=0):
    return PB + (buf * 2 + x) * 8 + i


def dma4(so, tag="kv"):
    return [VM(f"buffer_load_dwordx4 v{vL16}, {s(SS, 4)}, s{so} offen offset:{1024 * i}{SC1} lds", tag) for i in range(4)]


def qk(x, cin=None):
    return [mfma(('v', S[x]), ('a', aK + 4 * d), ('a', aQ + (x * 8 + d) * 4), ('v', NEGM[x] if cin is None else cin) if d == 0 else None)
            for d in range(8)]


def pv(x, buf):
    return [mfma(('a', aO + (x * 4 + ds) * 16), ('a', aV + (ds * 2 + g) * 4), ('v', P(buf, x, 4 * g)))
            for g in range(2) for ds in range(4)]


def kreads(areg, th):
    return [LG(f"ds_read_b128 {a(aK + 4 * d, 4)}, v{areg} offset:{th * 8192 + d * 1024}", "k") for d in range(8)]


def vreads(areg, th):
    return [LG(f"ds_read_b128 {a(aV + 4 * f, 4)}, v{areg} offset:{th * 8192 + f * 1024}", "v") for f in (0, 2, 4, 6, 1, 3, 5, 7)]


def sm_max(x):
    b, m = S[x], vM
    return [(4, I(t)) for t in (
        f"v_max3_f32 v{m}, v{b}, v{b + 1}, v{b + 2}", f"v_max3_f32 v{m + 1}, v{b + 3}, v{b + 4}, v{b + 5}",
        f"v_max3_f32 v{m + 2}, v{b + 6}, v{b + 7}, v{b + 8}", f"v_max3_f32 v{m + 3}, v{b + 9}, v{b + 10}, v{b + 11}",
        f"v_max3_f32 v{m + 4}, v{b + 12}, v{b + 13}, v{b + 14}", f"v_max3_f32 v{m}, v{m}, v{m + 1}, v{b + 15}",
        f"v_max3_f32 v{m + 2}, v{m + 2}, v{m + 3}, v{m + 4}", f"v_max_f32 v{m}, v{m}, v{m + 2}")]


def sm_chk(x, buf):
    return (8, [I(f"v_cmp_lt_f32 vcc, s{sTH[x]}, v{vM}"), I(f"s_cbranch_vccnz K2_RARE_{x}_{buf}"), I(f"K2_RET_{x}_{buf}:")])


def sm_fin(x, buf, i):
    b = S[x]
    return [(4, I(f"v_add_f32 v{vLs[x][0]}, v{vLs[x][0]}, v{b + 2 * i}")),
            (4, I(f"v_add_f32 v{vLs[x][1]}, v{vLs[x][1]}, v{b + 2 * i + 1}")),
            (4, I(f"v_cvt_pk_bf16_f32 v{P(buf, x, i)}, v{b + 2 * i}, v{b + 2 * i + 1}"))]


def sm_exp(x, buf):
    b = S[x]
    items = []
    for i in range(8):
        items.append((8, I(f"v_exp_f32 v{b + 2 * i}, v{b + 2 * i}")))
        items.append((8, I(f"v_exp_f32 v{b + 2 * i + 1}, v{b + 2 * i + 1}")))
        if i > 0:
            items += sm_fin(x, buf, i - 1)
    return items + sm_fin(x, buf, 7)


CAP = int(os.environ.get("CAP", "24"))


def schedule_loop(var='', pin=None):
    NG = 64
    T = NG + 16
    mem = [[] for _ in range(T)]
    alu = [[] for _ in range(T)]
    used = [0] * NG
    sfx = var
    diag, first = var == 'D', var == 'F'

    def fixed(g, cost, item, is_mem=True):
        (mem if is_mem else alu)[g].append(item)
        used[g % NG] += cost

    def spread_mem(g0, n, items):
        for i, r in enumerate(items):
            fixed(g0 + (i * n) // len(items), 4, r)

    spread_mem(0, 13, vreads(vVp, 1))
    spread_mem(16, 10, kreads(vKc, 1))
    spread_mem(32, 13, vreads(vVc, 0))
    spread_mem(48, 13, kreads(vKn, 0))
    BAR = int(os.environ.get("BAR", "27"))
    fixed(BAR, 8, [I("s_waitcnt vmcnt(1) lgkmcnt(0)"), ('reset',), I("s_barrier")])
    g = BAR + 1
    dgaps = []
    for so in (sKN, sKO2, sVO, sVO2):
        for d in dma4(so):
            fixed(g, 8, d)
            dgaps.append(g)
            g += 2
    fixed(g, 8, VM(f"buffer_load_dword v{ZT + 40}, v{vL16}, {s(SD, 4)}, s{sPF} offen", "pf"))
    gpf = g
    tail = {15: [WLG("v")], 47: [WLG("v")], 63: []}
    for g_ in (15, 47):
        used[g_] += 4
    used[63] += 4 + 13 + 13
    if var:
        used[31] += 13
    jobs = []

    def job(name, cost, item, e, l, deps=(), later=None):
        jobs.append(dict(name=name, cost=cost, item=item, e=e, l=l, deps=list(deps), later=later))

    job("vo", 4, I(f"s_add_u32 s{sVO}, s{sKN}, {WS_VF - WS_KF}"), 0, BAR - 2)
    job("vo2", 4, I(f"s_add_u32 s{sVO2}, s{sKN}, {WS_VF - WS_KF + 4096}"), 0, BAR - 2)
    job("kn", 12, [I(f"s_cmp_eq_u32 s{sU}, s{sSW2}"), I(f"s_cselect_b32 s{sKO2}, s{sJUMP}, 0x4000"), I(f"s_add_u32 s{sKN}, s{sKN}, s{sKO2}")],
        0, BAR - 1, ["vo", "vo2"])
    job("ko2", 4, I(f"s_add_u32 s{sKO2}, s{sKN}, 4096"), 0, BAR, ["kn"])
    job("m0a", 4, I(f"s_mov_b32 m0, s{sMK}"), 0, BAR)
    job("m0b", 4, I(f"s_add_u32 m0, s{sMK}, 4096"), dgaps[3], dgaps[4] - 1)
    job("m0c", 4, I(f"s_mov_b32 m0, s{sMV}"), dgaps[7], dgaps[8] - 1)
    job("m0d", 4, I(f"s_add_u32 m0, s{sMV}, 4096"), dgaps[11], dgaps[12] - 1)
    job("pfa", 4, I(f"s_add_u32 s{sPF}, s{sPF}, s30"), gpf, 63)
    job("xk", 4, I(f"s_xor_b32 s{sMK}, s{sMK}, 0x8000"), dgaps[4], 63, ["m0b"])
    job("xv", 4, I(f"s_xor_b32 s{sMV}, s{sMV}, 0x8000"), dgaps[12], 63, ["m0d"])
    job("vp", 4, I(f"v_mov_b32 v{vVp}, v{vVc}"), 13, 44)
    job("vc", 4, I(f"v_xor_b32 v{vVc}, 0x8000, v{vVc}"), 45, 63, ["vp"])
    job("kc", 4, I(f"v_xor_b32 v{vKc}, 0x8000, v{vKc}"), 26, 63)
    job("kx", 4, I(f"v_xor_b32 v{vKn}, 0x8000, v{vKn}"), 61, 63)
    job("tl", 4, I(f"s_add_u32 s{sTL}, s{sTL}, 1"), 56, 63)
    job("u", 4, I(f"s_add_u32 s{sU}, s{sU}, 1"), 32, 63)
    for half in range(2):
        G = 8 + 32 * half
        for x in range(2):
            e0 = G + 1 + 8 * x
            pre = f"{half}{x}"
            prev = [f"{half}0chk"] if x == 1 else []
            if diag and half == x:
                for r in range(16):
                    job(f"{pre}mk{r}", 4, I(f"v_min_f32 v{S[x] + r}, v{S[x] + r}, v{MSK + r}"), e0, e0 + 4, prev)
                prev = prev + [f"{pre}mk{r}" for r in range(16)]
            for i, (c, it) in enumerate(sm_max(x)):
                job(f"{pre}m{i}", c, it, e0, e0 + 5, prev + ([f"{pre}m{i - 1}"] if i else []))
            dl = G + 23 + 8 * x
            b_ = S[x]
            if first and half == 0:
                d_ = vT + x
                job(f"{pre}f0", 4, I(f"v_mov_b32 v{d_}, v{vM}"), e0, e0 + 8, [f"{pre}m7"])
                job(f"{pre}f1", 8, [I("s_nop 0"), I(f"v_permlane32_swap_b32 v{vM}, v{d_}")], e0, e0 + 9, [f"{pre}f0"], later=f"{pre}f0")
                job(f"{pre}chk", 12, [I(f"v_max_f32 v{d_}, v{d_}, v{vM}"), I(f"v_ceil_f32 v{d_}, v{d_}"), I(f"v_sub_f32 v{vNM[x]}, 0, v{d_}")],
                    e0, e0 + 10, [f"{pre}f1"], later=f"{pre}f1")
                job(f"{pre}ls", 12, [I(f"v_add_f32 v{vLSV[x]}, v{vLs[x][0]}, v{vLs[x][1]}"), I(f"v_mov_b32 v{vLs[x][0]}, 0"), I(f"v_mov_b32 v{vLs[x][1]}, 0")],
                    e0, e0 + 8)
                for r in range(16):
                    job(f"{pre}s{r}", 4, I(f"v_sub_f32 v{b_ + r}, v{b_ + r}, v{d_}"), e0, dl - 2, [f"{pre}chk", f"{pre}ls"])
                    job(f"{pre}n{r}", 4, I(f"v_mov_b32 v{NEGM[x] + r}, v{vNM[x]}"), e0, dl - 1, [f"{pre}chk"])
            else:
                job(f"{pre}cmp", 4, I(f"v_cmp_lt_f32 vcc, s{sTH[x]}, v{vM}"), e0, e0 + 5, [f"{pre}m7"])
                job(f"{pre}chk", 9, [I(f"s_cbranch_vccnz K2_RARE_{x}_{half}"), I(f"K2_RET{sfx}_{x}_{half}:")],
                    e0, e0 + 6, [f"{pre}cmp"], later=f"{pre}cmp")
            for r in range(16):
                job(f"{pre}e{r}", 8, I(f"v_exp_f32 v{b_ + r}, v{b_ + r}"), e0, dl - 1,
                    [f"{pre}s{r}" if (first and half == 0) else f"{pre}chk"] + ([f"{pre}e{r - 1}"] if r else []))
            for i in range(8):
                f3 = sm_fin(x, half, i)
                job(f"{pre}a{2 * i}", 4, f3[0][1], e0, dl, [f"{pre}e{2 * i + 1}"])
                job(f"{pre}a{2 * i + 1}", 4, f3[1][1], e0, dl, [f"{pre}a{2 * i}"])
                job(f"{pre}c{i}", 4, f3[2][1], e0, dl, [f"{pre}a{2 * i + 1}"])
    if pin is not None:
        for j in jobs:
            if j['name'] in pin:
                j['e'] = j['l'] = pin[j['name']]
            else:
                j['l'] = min(j['l'], 63)
    done = {}
    rest = list(jobs)
    order = list(range(9, NG + 9))
    remaining = sum(j['cost'] for j in jobs)
    for gi, g in enumerate(order):
        gm_ = g % NG
        free_after = sum(max(0, CAP - used[h % NG]) for h in order[gi + 1:])
        while True:
            cand = []
            for j in rest:
                e, l = j['e'], j['l']
                if l < 9 or (e < 9 and j['name'][0] not in "01" and False):
                    e, l = e + NG, l + NG
                if e <= g and all(d in done for d in j['deps']) and (j['later'] is None or done[j['later']] < g):
                    cand.append((l, j))
            if not cand:
                break
            cand.sort(key=lambda z: z[0])
            room = CAP - used[gm_]
            pick = None
            for l, j in cand:
                if j['cost'] <= room:
                    pick = j
                    break
            if pick is None:
                urgent = [j for l, j in cand if l <= g]
                if urgent:
                    pick = urgent[0]
                elif remaining > free_after and room > -4 and room + 4 >= min(j['cost'] for _, j in cand):
                    pick = min((j for _, j in cand), key=lambda j: j['cost'])
                else:
                    break
            alu[g].append(pick['item'])
            used[gm_] += pick['cost']
            remaining -= pick['cost']
            done[pick['name']] = g
            rest.remove(pick)
    assert not rest, [j['name'] for j in rest]
    for j in jobs:
        l = j['l'] + (NG if j['l'] < 9 else 0)
        assert done[j['name']] <= l, (j['name'], done[j['name']], l)
    est = sum(max(32, 8 + u) for u in used)
    if os.environ.get("SCHED"):
        print("loop estimate", est, used)
    wrapped = []
    for g in range(NG, T):
        wrapped += [it for it in alu[g] if "v_" in str(it) and "s_cselect" not in str(it)]
    gm = {}
    for g in range(NG):
        gm[g] = mem[g] + (alu[g + NG] if g + NG < T else []) + alu[g] + tail.get(g, [])
    return gm, wrapped, {n: g for n, g in done.items() if g >= NG}


def rare_ret(L):
    r = f"s_cmp_eq_u32 s{sDG}, 0\ns_cbranch_scc1 K2_RET_{L}\n"
    if L.endswith("_1"):
        r += f"s_cmp_eq_u32 s{sDG}, 2\ns_cbranch_scc1 K2_RETF_{L}\n"
    return r + f"s_branch K2_RETD_{L}"


def rare_path(k, x, buf):
    E = k.emit
    t = vT
    L = f"{x}_{buf}"
    E(f"K2_RARE_{L}:")
    E(f"s_mov_b32 s{sTH[x]}, {fbits(THRESH)}")
    E(f"v_mov_b32 v{t}, v{vM}\ns_nop 1\nv_permlane32_swap_b32 v{vM}, v{t}\ns_nop 1")
    E(f"v_max_f32 v{t}, v{t}, v{vM}\nv_ceil_f32 v{t}, v{t}\nv_max_f32 v{t}, s{sLO[x]}, v{t}")
    E(f"v_sub_f32 v{vNM[x]}, v{vNM[x]}, v{t}")
    for r in range(16):
        E(f"v_sub_f32 v{S[x] + r}, v{S[x] + r}, v{t}")
        E(f"v_mov_b32 v{NEGM[x] + r}, v{vNM[x]}")
    E(f"s_cmp_eq_u32 s{sLO[x]}, 0\ns_cbranch_scc1 K2_RSC_{L}")
    E(f"v_add_f32 v{vLSV[x]}, v{vLs[x][0]}, v{vLs[x][1]}\nv_mov_b32 v{vLs[x][0]}, 0\nv_mov_b32 v{vLs[x][1]}, 0")
    E(f"s_mov_b32 s{sLO[x]}, 0", rare_ret(L))
    E(f"K2_RSC_{L}:")
    E(f"v_sub_f32 v{t + 1}, 0, v{t}\nv_exp_f32 v{t + 1}, v{t + 1}\ns_nop 0")
    E(f"v_mul_f32 v{vLs[x][0]}, v{vLs[x][0]}, v{t + 1}\nv_mul_f32 v{vLs[x][1]}, v{vLs[x][1]}, v{t + 1}")
    for i in range(8):
        p = P(1 - buf, x, i)
        E(f"v_lshlrev_b32 v{t + 2}, 16, v{p}\nv_and_b32 v{t + 3}, 0xffff0000, v{p}")
        E(f"v_mul_f32 v{t + 2}, v{t + 2}, v{t + 1}\nv_mul_f32 v{t + 3}, v{t + 3}, v{t + 1}")
        E(f"v_cvt_pk_bf16_f32 v{p}, v{t + 2}, v{t + 3}")
    E("s_nop 15")
    for r in range(0, 64, 4):
        for i in range(4):
            E(f"v_accvgpr_read_b32 v{t + 2 + i}, a{aO + x * 64 + r + i}")
        for i in range(4):
            E(f"v_mul_f32 v{t + 2 + i}, v{t + 2 + i}, v{t + 1}")
        for i in range(4):
            E(f"v_accvgpr_write_b32 a{aO + x * 64 + r + i}, v{t + 2 + i}")
    E(rare_ret(L))


def ctx_addr(sqb_expr, x_in_addr):
    pass


def hooks(k):
    E = k.emit
    E("K2_EVENT:")
    if MERGE12:
        E(f"s_cmp_lg_u32 s{sU}, 1\ns_cbranch_scc1 K2_EV0")
        E(f"s_cmp_lg_u32 s{sW}, 0\ns_cbranch_scc1 K2_EV0")
        E(f"v_mov_b32 v{vPL}, 1\nv_mov_b32 v{vPL + 1}, 0\ns_mov_b64 exec, 1\nbuffer_store_byte v{vPL}, v{vPL + 1}, {s(SS, 4)}, s{sGP} offen sc0 sc1\ns_mov_b64 exec, -1")
        E("K2_EV0:")
    E(f"s_mov_b32 s{sDG}, 0\ns_cmp_lg_u32 s{sU}, s{sSW}\ns_cbranch_scc1 K2_EV2")
    E(f"s_cmp_eq_u32 s{sG}, 0\ns_cbranch_scc1 K2_SW0")
    for r in range(64):
        E(f"v_accvgpr_write_b32 a{aQ + r}, v{QBS + r}")
    for r in range(32):
        E(f"v_mov_b32 v{NEGM[0] + r}, 0")
    E(f"v_mov_b32 v{vNM[0]}, 0\nv_mov_b32 v{vNM[1]}, 0")
    for x in range(2):
        E(f"s_mov_b32 s{sTH[x]}, {NINF}\ns_mov_b32 s{sLO[x]}, {NINF}")
    E(f"s_mov_b32 s{sTL}, 17\ns_sub_u32 s{sTD}, 15, s{sPI}\ns_lshl_b32 s{sTD}, s{sTD}, 1\ns_add_u32 s{sTD}, s{sTD}, s{sRS}")
    E("s_branch K2_EV2")
    E("K2_SW0:")
    E(f"s_cmp_eq_u32 s{sU}, 9\ns_cbranch_scc1 K2_SW1")
    E(f"v_and_b32 v{vPL}, 31, v0\nbuffer_load_ubyte v{vPL + 1}, v{vPL}, {s(SS, 4)}, s{sFL} offen sc0 sc1\ns_mov_b32 s{sSW}, 9")
    E(f"s_mov_b32 s{SD}, s28\ns_mov_b32 s{SD + 1}, s29\ns_mov_b32 s{SD + 2}, {4096 * 1024:#x}\ns_lshl_b32 s{sPF}, s2, 1\ns_add_u32 s{sPF}, s{sPF}, s{sW}\ns_lshl_b32 s{sPF}, s{sPF}, 10\ns_mov_b32 s30, 0x80000\ns_branch K2_EV2")
    E("K2_SW1:\ns_waitcnt vmcnt(17)")
    E(f"v_cmp_ne_u32 vcc, 1, v{vPL + 1}\ns_nop 1\ns_cbranch_vccz K2_EV2")
    E(f"K2_FBLP:\ns_sleep 2\nbuffer_load_ubyte v{vPL + 1}, v{vPL}, {s(SS, 4)}, s{sFL} offen sc0 sc1\ns_waitcnt vmcnt(0)")
    E(f"v_cmp_ne_u32 vcc, 1, v{vPL + 1}\ns_nop 1\ns_cbranch_vccnz K2_FBLP")
    E("K2_EV2:")
    E(f"s_cmp_lt_u32 s{sTL}, s{sTD}\ns_cbranch_scc0 K2_EV3")
    E(f"s_cmp_eq_u32 s{sLO[0]}, 0\ns_cbranch_scc1 K2_EV4")
    for x in range(2):
        E(f"s_mov_b32 s{sTH[x]}, {fbits(THRESH)}\ns_mov_b32 s{sLO[x]}, 0")
    E(f"s_add_u32 s{sEV}, s{sU}, 1\ns_mov_b32 s{sDG}, 2\ns_branch K2_SWRETF")
    E("K2_EV4:")
    E(f"s_sub_u32 s{sEV}, s{sTD}, s{sTL}\ns_add_u32 s{sEV}, s{sEV}, s{sU}\ns_cmp_gt_u32 s{sSW}, s{sU}\ns_cselect_b32 s{sT}, s{sSW}, 99\ns_min_u32 s{sEV}, s{sEV}, s{sT}")
    E("s_branch K2_SWRET")
    E("K2_EV3:")
    E(f"s_add_u32 s{sEV}, s{sU}, 1\ns_mov_b32 s{sDG}, 1\ns_cmp_eq_u32 s{sTL}, s{sTD}\ns_cbranch_scc1 K2_SWRETD")
    for r in range(32):
        E(f"v_mov_b32 v{NEGM[0] + r}, v{vNEG}")
    E(f"s_mov_b32 s{sTH[0]}, 0x7f800000\ns_mov_b32 s{sTH[1]}, 0x7f800000\ns_branch K2_SWRETD")
    E("K2_FINB:")
    t = QBS
    E(f"s_cmp_eq_u32 s{sLO[0]}, 0\ns_cbranch_scc1 K2_FB1")
    for x in range(2):
        E(f"v_add_f32 v{vLSV[x]}, v{vLs[x][0]}, v{vLs[x][1]}\nv_mov_b32 v{vLs[x][0]}, 0\nv_mov_b32 v{vLs[x][1]}, 0\nv_sub_f32 v{vNM[x]}, 0, v{vNEG}")
    E("K2_FB1:")
    for x in range(2):
        E(f"v_mov_b32 v{t + 2 * x}, v{vLSV[x]}")
    E("s_nop 1")
    for x in range(2):
        E(f"v_permlane32_swap_b32 v{vLSV[x]}, v{t + 2 * x}")
    E("s_nop 1")
    for x in range(2):
        E(f"v_add_f32 v{t + 2 * x}, v{t + 2 * x}, v{vLSV[x]}\nv_rcp_f32 v{t + 2 * x}, v{t + 2 * x}")
    E(f"s_lshl_b32 s{sT}, s{sPI}, 2\ns_lshl_b32 s{sT2}, s{sRS}, 1\ns_add_u32 s{sT}, s{sT}, s{sT2}")
    for x in range(2):
        E(f"v_mov_b32 v{t + 2 * x + 1}, v{t + 2 * x}")
    E(f"s_mul_i32 s{sT}, s{sT}, {CTXU_STEPS}\ns_lshl_b32 s{sT2}, s{sHD}, 3\ns_add_u32 s{sT}, s{sT}, s{sT2}")
    E(f"s_lshl_b32 s{sT}, s{sT}, 10\ns_add_u32 s{sT}, s{sT}, {WS_CTXU}")
    for i in range(4):
        E(f"v_mov_b32 v{t + 4 + i}, 0")
    for x in range(2):
        for f in range(8):
            b = t + 8 + 8 * (f % 4)
            for i in range(8):
                E(f"v_accvgpr_read_b32 v{b + i}, a{aO + x * 64 + 8 * f + i}")
            if f % 2 == 1:
                E(mfma(('a', aO + x * 64 + 8 * (f - 1)), ('v', t + 4), ('v', t + 4), 0))
            for i in range(4):
                E(f"v_pk_mul_f32 {v(b + 2 * i, 2)}, {v(b + 2 * i, 2)}, {v(t + 2 * x, 2)}")
            for i in range(4):
                E(f"v_cvt_pk_bf16_f32 v{b + i}, v{b + 2 * i}, v{b + 2 * i + 1}")
            E(f"buffer_store_dwordx4 {v(b, 4)}, v{vL16}, {s(SS, 4)}, s{sT} offen offset:{1024 * (f % 4)} sc1")
            if f == 3:
                E(f"s_add_u32 s{sT}, s{sT}, 4096")
            if f == 7 and x == 0:
                E(f"s_add_u32 s{sT}, s{sT}, {CTXU_STEPS * 1024 - 4096}")
    E(f"s_cmp_eq_u32 s{sDG}, 2\ns_cbranch_scc1 K2_FBRETF\ns_branch K2_FBRETD")


QACC = 48
aXN = 0
aWF = 192


def wq_dma(j):
    out = []
    for i in range(4):
        g = []
        if i == 0:
            g += [I(f"s_add_u32 m0, s{sWM}, {j * 16384}"), I(f"s_add_u32 s{sDO}, s{sWQ}, {j * 64 * 8192}")]
        g.append(VM(f"buffer_load_dwordx4 v{vQD + i}, {s(SQ, 4)}, s{sDO} offen offset:{1024 * i} lds", f"wq{j}"))
        out.append(g)
    return out


def xn_loads(j):
    out = []
    for x in range(2):
        for cs in range(4):
            g = []
            if cs == 0:
                g.append(I(f"s_add_u32 s{sDO}, s{sXN}, {x * 32768 + j * 4096}"))
            g.append(VM(f"buffer_load_dwordx4 {a(aXN + (j % 4) * 32 + (x * 4 + cs) * 4, 4)}, v{vL16}, {s(SS, 4)}, "
                        f"s{sDO} offen offset:{1024 * cs}{SC1}", f"xn{j}"))
            out.append(g)
    return out


def znorm():
    ld = [[I(x) for x in (f"s_lshr_b32 s{sGM}, s2, 3", f"s_and_b32 s{sGP}, s2, 7", f"s_lshl_b32 s{sT}, s{sGM}, 1", f"s_add_u32 s{sT}, s{sT}, s{sG}",
                          f"s_lshl_b32 s{sT}, s{sT}, 11", f"s_add_u32 s{sT}, s{sT}, {WS_STAT}", f"v_lshlrev_b32 v{ZT}, 2, v0")]]
    for i in range(0, 8, 2):
        ld.append([VM(f"buffer_load_dword v{ZT + 4 + i + e}, v{ZT}, {s(SS, 4)}, s{sT} offen offset:{256 * (i + e)}{SC1}", "zn") for e in range(2)])
    ld.append([I(x) for x in (f"s_mul_i32 s{sGZ}, s{sGP}, 384", f"s_lshl_b32 s{sT}, s{sGM}, 2", f"s_add_u32 s{sGZ}, s{sGZ}, s{sT}",
                              f"s_add_u32 s{sGZ}, s{sGZ}, s{sW}", f"s_lshl_b32 s{sGZ}, s{sGZ}, 10")])
    for f in range(3):
        ld.append([I(f"s_add_u32 s{sT}, s{sGZ}, {WS_Z2R + f * 128 * 1024}"),
                   VM(f"buffer_load_dwordx4 {v(ZT + 12 + 4 * f, 4)}, v{vL16}, {s(SS, 4)}, s{sT} offen{SC1}", "zn")])
    z = ZT + 4
    AB = ZT + 24
    c = [WVM("zn")]
    c += flat([f"v_add_f32 v{z}, v{z}, v{z + 1}\nv_add_f32 v{z + 2}, v{z + 2}, v{z + 3}\nv_add_f32 v{z + 4}, v{z + 4}, v{z + 5}\nv_add_f32 v{z + 6}, v{z + 6}, v{z + 7}",
               f"v_add_f32 v{z}, v{z}, v{z + 2}\nv_add_f32 v{z + 4}, v{z + 4}, v{z + 6}\nv_add_f32 v{z}, v{z}, v{z + 4}",
               f"v_mul_f32 v{z}, {fbits(1 / 688)}, v{z}\nv_mov_b32 v{z + 1}, v{z}\ns_nop 1\nv_permlane32_swap_b32 v{z}, v{z + 1}\ns_nop 1",
               f"v_fma_f32 v{z + 1}, -v{z}, v{z}, v{z + 1}\nv_max_f32 v{z + 1}, 0, v{z + 1}\nv_add_f32 v{z + 1}, {fbits(LN_EPS)}, v{z + 1}\nv_rsq_f32 v{z + 1}, v{z + 1}\ns_nop 0",
               f"v_mul_f32 v{z}, v{z}, v{z + 1}\nv_sub_f32 v{z}, 0, v{z}",
               f"s_lshl_b32 s{sT}, s{sW}, 8\ns_add_u32 s{sT}, s{sT}, {SPARE}",
               f"v_lshlrev_b32 v{z + 2}, 2, v20\nv_add_u32 v{z + 2}, s{sT}, v{z + 2}"])
    c += [LG(f"ds_write_b32 v{z + 2}, v{z + 1}", "zw"), LG(f"ds_write_b32 v{z + 2}, v{z} offset:128", "zw")]
    c += flat([f"s_lshl_b32 s{sT2}, s{sRS}, 6\ns_add_u32 s{sT}, s{sT}, s{sT2}\nv_lshlrev_b32 v{z + 3}, 5, v21\nv_add_u32 v{z + 3}, s{sT}, v{z + 3}"])
    for i in range(2):
        c += [LG(f"ds_read_b128 {v(AB + 4 * i, 4)}, v{z + 3} offset:{16 * i}", "zr"),
              LG(f"ds_read_b128 {v(AB + 8 + 4 * i, 4)}, v{z + 3} offset:{128 + 16 * i}", "zr")]
    c += flat([f"s_lshl_b32 s{sGP}, s{sGP}, 8\ns_add_u32 s{sGP}, s{sGP}, s{sGM}\ns_add_u32 s{sGP}, s{sGP}, {WS_FLAG2}\ns_nop 0"])
    c += [WLG("zr")]
    for f in range(3):
        for i in range(4):
            x_ = ZT + 12 + 4 * f + i
            c += flat([f"v_lshlrev_b32 v{z}, 16, v{x_}\nv_and_b32 v{z + 1}, 0xffff0000, v{x_}",
                       f"v_fma_f32 v{z}, v{z}, v{AB + 2 * i}, v{AB + 8 + 2 * i}\nv_fma_f32 v{z + 1}, v{z + 1}, v{AB + 2 * i + 1}, v{AB + 9 + 2 * i}",
                       f"v_cvt_pk_bf16_f32 v{x_}, v{z}, v{z + 1}"])
        c += [I(f"s_add_u32 s{sT}, s{sGZ}, {WS_Z2N + f * 128 * 1024}"),
              VM(f"buffer_store_dwordx4 {v(ZT + 12 + 4 * f, 4)}, v{vL16}, {s(SS, 4)}, s{sT} offen sc1", "zs")]
    cg = [c[i:i + 4] for i in range(0, len(c), 4)]
    return ld, cg


def qproj(k):
    E = k.emit
    extra = {}

    def spread(c0, c1, groups):
        n = len(groups)
        for i, g in enumerate(groups):
            extra.setdefault(c0 + (i * (c1 - c0)) // n, []).append(g)

    def rd(c, fb):
        j, cs = c // 4, c % 4
        return [LG(f"ds_read_b64_tr_b16 {a(fb + 4 * d + 2 * sec, 2)}, v{vQR + (j // 4) * 4 + d} "
                   f"offset:{(j % 4) * 16384 + cs * 4096 + sec * 1024}", f"q{c}") for d in range(4) for sec in range(2)]

    def fbuf(c):
        return aWF + (c % 4) * 16

    def mf1(c, d, x):
        j, cs = c // 4, c % 4
        return mfma(('v', QACC + (x * 4 + d) * 16), ('a', fbuf(c) + 4 * d), ('a', aXN + (j % 4) * 32 + (x * 4 + cs) * 4),
                    0 if c == 0 else None)

    zl, zc = znorm()

    def kvpre(base, pre, so, so2, tag="kv"):
        d1, d2 = dma4(so, tag), dma4(so2, tag)
        return [[I(f"s_add_u32 m0, s{sW8}, {base}")] + [I(x) for x in pre] + [d1[0]]] + [[d] for d in d1[1:]] + \
               [[I(f"s_add_u32 m0, s{sW8}, {base + 4096}"), I("s_nop 0"), d2[0]]] + [[d] for d in d2[1:]]

    k0 = kvpre(0, [f"s_add_u32 s{sKO2}, s{sKN}, 4096"], sKN, sKO2, "k0")
    k1 = kvpre(32768, [f"s_add_u32 s{sVO}, s{sKN}, {WS_VF - WS_KF}", f"s_add_u32 s{sVO2}, s{sVO}, 4096",
                       f"s_add_u32 s{sKN}, s{sKN}, 0x4000", f"s_add_u32 s{sKO2}, s{sKN}, 4096"], sKN, sKO2)
    v0_ = kvpre(VB0, ["s_nop 0"], sVO, sVO2)
    q = []
    if MERGE12:
        order_ = ((0, wq_dma(2) + xn_loads(2) + wq_dma(3) + xn_loads(3) + wq_dma(4)), (4, xn_loads(4)), (0, wq_dma(5)), (8, xn_loads(5)),
                  (0, wq_dma(6)), (12, xn_loads(6)), (0, wq_dma(7)), (16, xn_loads(7)), (22, k0 + zl))
    else:
        order_ = ((0, wq_dma(2) + xn_loads(2) + wq_dma(3) + xn_loads(3) + wq_dma(4)), (4, xn_loads(4)), (0, wq_dma(5)), (8, xn_loads(5)),
                  (0, wq_dma(6) + zl), (12, xn_loads(6)), (0, wq_dma(7)), (16, xn_loads(7)), (6, k0), (14, k1))
    for e, grp in order_:
        q += [(e, g) for g in grp]
    RATE = 4
    c_ = 0
    n_ = 0
    for e, g in q:
        if e > c_:
            c_, n_ = e, 0
        extra.setdefault(c_, []).append(g)
        n_ += 1
        if n_ == RATE:
            c_, n_ = c_ + 1, 0
    assert c_ <= 27, c_
    valu = {}
    if not MERGE12:
        for i, g in enumerate(zc):
            valu.setdefault(19 + (i * 8) // len(zc), []).append(g)
    else:
        valu[18] = [[I(f"s_mov_b32 s{sT}, {WS_FP1}")] + poll_all_issue(sW, SS, f"s{sT}", 16, 4, 176)]

    E(WVM("wq0"), "s_barrier")
    stamp(k, 6)
    E(rd(0, fbuf(0)), rd(1, fbuf(1)))
    for c in range(28):
        j, cs = c // 4, c % 4
        n = c + 2
        if n % 4 == 0:
            lstamp(k, 19, 3 * (n // 4))
            E(WLG(f"q{n - 1}"), WVM(f"wq{n // 4}"))
            lstamp(k, 19, 3 * (n // 4) + 1)
            if MERGE12 and n == 24:
                E(poll_all_check(sW, SS, f"s{sT}", 16, 4, 176, 1))
            E("s_barrier")
            if MERGE12 and n == 4:
                E(f"s_lshl_b32 s{sT}, s2, 4\ns_add_u32 s{sT}, s{sT}, {WS_FP1}", flag_set(sW, SS, sT, 176))
        E(WLG(f"q{c}"))
        if cs == 0:
            E(WVM(f"xn{j}"))
            lstamp(k, 19, 3 * j + 2)
        r_ = rd(n, fbuf(n))
        ex, va = extra.get(c, []), valu.get(c, [])
        gm_ = {}
        for i in range(8):
            gm_[i] = [r_[i]] + ([ex[i // 2]] if (i % 2 == 0 and i // 2 < len(ex)) else []) + [va[z] for z in range(len(va)) if (z * 8) // len(va) == i]
        E(place([mf1(c, d, x) for d in range(4) for x in range(2)], gm_))
    E(rd(30, fbuf(30)), rd(31, fbuf(31)))
    E(f"v_mov_b32 v{vT}, {fbits(QSCALE)}\nv_mov_b32 v{vT + 1}, {fbits(QSCALE)}")
    E(f"v_add_u32 v{vT + 2}, s{sW8}, v{vL16}\nv_add_u32 v{vT + 3}, {SPARE}, v{vT + 2}\nv_add_u32 v{vT + 2}, {VB0 + 32768}, v{vT + 2}")
    E(WVM("xn7"), WLG0, "s_barrier")

    def epi(d, x):
        out = []
        for g in range(2):
            b = QACC + (x * 4 + d) * 16 + 8 * g
            out.append([I(f"v_mul_f32 v{b + i}, v{vT}, v{b + i}") for i in range(8)])
            out.append([I(f"v_cvt_pk_bf16_f32 v{b + i}, v{b + 2 * i}, v{b + 2 * i + 1}") for i in range(4)] +
                       [LG(f"ds_write_b128 v{vT + 3 - x}, {v(b, 4)} offset:{(2 * d + g) * 1024}")])
        return out

    tiles = [(d, x) for x in range(2) for d in range(4)]
    for i, (d, x) in enumerate(tiles):
        m = [mf1(c, d, x) for c in range(28, 32)]
        kv2 = (k1 + v0_)[2 * i:2 * i + 2] if MERGE12 else [v0_[i], []]
        if i == 0:
            E(m[0], kv2[0], m[1], m[2], kv2[1], m[3])
        else:
            e = epi(*tiles[i - 1])
            E(m[0], kv2[0], m[1], e[0], e[1], m[2], kv2[1], e[2], m[3], e[3])
    stamp(k, 7)
    E("s_nop 15")
    E(epi(*tiles[-1]))
    E(WVM("k0"), WVM("zs"), WLG0, "s_barrier")
    if not MERGE12:
        E(flag_set(sW, SS, sGP, ZT))
    k.zc = zc
    E(f"s_lshl_b32 s{sT}, s{sRS}, 13\nv_add_u32 v{vT + 4}, s{sT}, v{vL16}")
    E(f"v_add_u32 v{vT + 5}, {SPARE}, v{vT + 4}\nv_add_u32 v{vT + 4}, {VB0 + 32768}, v{vT + 4}")
    E(kreads(vKc, 0))
    for x in range(2):
        for f in range(8):
            E(LG(f"ds_read_b128 {a(aQ + (x * 8 + f) * 4, 4)}, v{vT + 3 - x} offset:{f * 1024}"))
    for x in range(2):
        for f in range(8):
            E(LG(f"ds_read_b128 {v(QBS + (x * 8 + f) * 4, 4)}, v{vT + 5 - x} offset:{f * 1024}"))


ZRING = (('v', 144), ('v', 192), ('a', 128), ('a', 176))
vWS = 48
vPD = 32
vPR = 40
NGS = 5


def g_slot(st):
    return (0, 1, 3, 2, 4)[st % NGS] * 32768


def zreg(st, i):
    kind, base = ZRING[st % 4]
    return (kind, base + i * 4)


def sprinkle(items, groups):
    items = flat(items)
    n, m = len(items), len(groups)
    out, gi = [], 0
    for i, it in enumerate(items):
        while gi < m and gi * n <= i * m:
            out.append(groups[gi])
            gi += 1
        out.append(it)
    return flat(out + groups[gi:])


def g_dma(st):
    out = []
    for i in range(8):
        g = []
        if i % 4 == 0:
            g += [I(f"s_add_u32 m0, s{sW8}, {g_slot(st) + (i // 4) * 4096}"), I(f"s_add_u32 s{sDO}, s{sGP}, {st * 128}")]
        g.append(VM(f"buffer_load_dwordx4 v{vPD + i}, {s(SP, 4)}, s{sDO} offen offset:{1024 * (i % 4)} lds", f"g{st}"))
        out.append(g)
    return out


def g_zl(st):
    out = []
    for f in range(3):
        for ks in range(4):
            g = []
            if ks == 0:
                g.append(I(f"s_add_u32 s{sGM}, s{sGZ}, {f * 128 * 1024 + st * 4096}"))
            g.append(VM(f"buffer_load_dwordx4 {R(zreg(st, f * 4 + ks), 4)}, v{vL16}, {s(SS, 4)}, "
                        f"s{sGM} offen offset:{1024 * ks} sc1", f"g{st}"))
            out.append(g)
    return out


def g_setup():
    o = [f"v_lshrrev_b32 v{ZT + 32}, 4, v0\nv_lshrrev_b32 v{ZT + 33}, 3, v0\nv_lshlrev_b32 v{ZT + 33}, 12, v{ZT + 33}\nv_and_b32 v{ZT + 34}, 7, v0\nv_xor_b32 v{ZT + 34}, v{ZT + 34}, v{ZT + 32}",
         f"v_lshl_add_u32 v{ZT + 35}, v{ZT + 34}, 4, v{ZT + 33}\nv_xor_b32 v{ZT + 34}, 4, v{ZT + 34}\nv_lshl_add_u32 v{ZT + 36}, v{ZT + 34}, 4, v{ZT + 33}"]
    for i in range(8):
        o.append(f"v_add_u32 v{vPD + i}, {i * 8 * 4096 - (i % 4) * 1024}, v{ZT + 35 + (i % 2)}")
    o.append(f"v_lshrrev_b32 v{ZT + 32}, 5, v0\nv_bfe_u32 v{ZT + 33}, v0, 1, 3\nv_xor_b32 v{ZT + 33}, v{ZT + 33}, v{ZT + 32}")
    o.append(f"v_and_b32 v{ZT + 34}, 31, v0\nv_lshlrev_b32 v{ZT + 34}, 7, v{ZT + 34}\nv_add_u32 v{ZT + 34}, s{sW8}, v{ZT + 34}")
    for ks in range(4):
        o.append(f"v_xor_b32 v{ZT + 35}, {2 * ks}, v{ZT + 33}\nv_lshl_add_u32 v{vPR + ks}, v{ZT + 35}, 4, v{ZT + 34}\nv_add_u32 v{vPR + 4 + ks}, 0x10000, v{vPR + ks}")
    o.append(f"s_lshl_b32 s{sGP}, s{sHD}, 18\ns_lshl_b32 s{sDO}, s{sW}, 10\ns_add_u32 s{sGP}, s{sGP}, s{sDO}")
    o.append(f"s_mul_i32 s{sGZ}, s{sPI}, 384\ns_lshl_b32 s{sGM}, s{sW}, 5\ns_add_u32 s{sGZ}, s{sGZ}, s{sGM}")
    o.append(f"s_lshl_b32 s{sGZ}, s{sGZ}, 10\ns_add_u32 s{sGZ}, s{sGZ}, {WS_Z2N}")
    return o


def merge(k, keep):
    E = k.emit
    send = 1 - keep
    t = vT
    wr = [LG(f"ds_write_b128 v{t + 4 + i // 8}, {a(aO + send * 64 + 4 * i, 4)} offset:{(i % 8) * 1024}") for i in range(16)]
    E(LG(f"ds_read_b64 {v(t + 8, 2)}, v{t + 4}", "mb"))
    d0, d1 = g_dma(0), g_dma(1)
    E(weave(pv(send, 1), d0, 0, 8))
    E(WLG("mb"))
    fac = [f"v_min_f32 v{t}, v{vNM[keep]}, v{t + 8}", f"v_sub_f32 v{t + 2}, v{t}, v{vNM[keep]}", f"v_sub_f32 v{t + 8}, v{t}, v{t + 8}",
           f"v_exp_f32 v{t + 2}, v{t + 2}", f"v_exp_f32 v{t + 8}, v{t + 8}", "s_nop 0",
           f"v_mul_f32 v{t}, v{vLs[keep][0]}, v{t + 2}", f"v_fmac_f32 v{t}, v{t + 9}, v{t + 8}", f"v_rcp_f32 v{t}, v{t}", "s_nop 0",
           f"v_mul_f32 v{t + 2}, v{t + 2}, v{t}", f"v_mul_f32 v{t + 8}, v{t + 8}, v{t}", f"v_mov_b32 v{t + 3}, v{t + 2}", f"v_mov_b32 v{t + 9}, v{t + 8}"]
    m = pv(keep, 1)
    E(m[0], d1[0], fac[:6], m[1], d1[1], fac[6:], weave(m[2:], interleave2(wr, d1[2:]), 0, 6))
    E(WLG0, "s_barrier")
    RX = S[0]
    for i in range(16):
        E(LG(f"ds_read_b128 {v(RX + 4 * i, 4)}, v{t + 6 + i // 8} offset:{(i % 8) * 1024}", f"rx{i}"))
    body = []
    for f in range(8):
        b = RX + 8 * f
        body += [I(f"v_accvgpr_read_b32 v{PB + i}, a{aO + keep * 64 + 8 * f + i}") for i in range(8)]
        body += [WLG(f"rx{2 * f + 1}")]
        body += [I(f"v_pk_mul_f32 {v(b + 2 * i, 2)}, {v(b + 2 * i, 2)}, {v(t + 8, 2)}") for i in range(4)]
        body += [I(f"v_pk_fma_f32 {v(b + 2 * i, 2)}, {v(PB + 2 * i, 2)}, {v(t + 2, 2)}, {v(b + 2 * i, 2)}") for i in range(4)]
        body += [I(f"v_cvt_pk_bf16_f32 v{PB + 8 + 4 * (f % 4) + i}, v{b + 2 * i}, v{b + 2 * i + 1}") for i in range(4)]
        body += [VM(f"buffer_store_dwordx4 {v(PB + 8 + 4 * (f % 4), 4)}, v{vL16}, {s(SS, 4)}, s{sT if f < 4 else sT2} offen offset:{1024 * (f % 4)} sc1", "cs")]
    E(sprinkle(body, g_zl(1)))


def interleave2(x, y):
    out = []
    n = max(len(x), len(y))
    for i in range(n):
        out += x[(i * len(x)) // n:((i + 1) * len(x)) // n] + y[(i * len(y)) // n:((i + 1) * len(y)) // n]
    return out


def gphase(k):
    E = k.emit

    def reads(st):
        o = g_slot(st)
        sg, off = (0, o) if o < 65536 else (1, o - 65536)
        out = []
        for ks in range(4):
            for ts in range(2):
                if off + ts * 4096 < 65536:
                    out.append(LG(f"ds_read_b128 {v(vWS + (st % 2) * 32 + (ts * 4 + ks) * 4, 4)}, v{vPR + sg * 4 + ks} "
                                  f"offset:{off + ts * 4096}", f"p{st}"))
                else:
                    out.append(LG(f"ds_read_b128 {v(vWS + (st % 2) * 32 + (ts * 4 + ks) * 4, 4)}, v{ZT + 40 + ks} "
                                  f"offset:{off - 65536 + ts * 4096}", f"p{st}"))
        return out

    def mf(st):
        return [mfma(('a', (ts * 3 + f) * 16), zreg(st, f * 4 + ks),
                     ('v', vWS + (st % 2) * 32 + (ts * 4 + ks) * 4), 0 if (st == 0 and ks == 0) else None)
                for ks in range(4) for f in range(3) for ts in range(2)]

    for ks in range(4):
        E(f"v_add_u32 v{ZT + 40 + ks}, 0x20000, v{vPR + ks}")
    E("s_barrier")
    E(WVM("g0"))
    stamp(k, 10)
    E(reads(0))
    sched = {st: g_dma(st + 2) + g_zl(st + 2) for st in range(6)}
    for st in range(8):
        E(WLG(f"p{st}"))
        ld = sched.get(st, [])
        m = mf(st)
        n1 = (len(ld) * 14) // 24
        first = weave(m[:14], ld[:n1], 0, 14)
        second = ([WVM(f"g{st + 1}")] + weave(m[14:], interleave2(reads(st + 1), ld[n1:]), 0, 9)) if st + 1 < 8 else m[14:]
        if st == 6:
            fin = flat([f"s_lshl_b32 s{sT}, s{sHD}, 1\ns_add_u32 s{sT}, s{sT}, s{sG}",
                        f"s_mul_i32 s{sT2}, s{sPI}, 6\ns_mul_i32 s{sGP}, s{sRS}, 3\ns_add_u32 s{sT2}, s{sT2}, s{sGP}",
                        f"s_mul_i32 s{sGP}, s{sT}, 48\ns_add_u32 s{sGP}, s{sGP}, s{sT2}\ns_lshl_b32 s{sGP}, s{sGP}, 10\ns_add_u32 s{sGP}, s{sGP}, {WS_Z1}",
                        f"s_mul_i32 s{sGZ}, s{sT}, {CTXU_STEPS}\ns_add_u32 s{sGZ}, s{sGZ}, s{sT2}\ns_add_u32 s{sGZ}, s{sGZ}, 256",
                        f"s_lshl_b32 s{sGZ}, s{sGZ}, 10\ns_add_u32 s{sGZ}, s{sGZ}, {WS_CTXU}",
                        f"s_lshl_b32 s{sT}, s{sT}, 6\nv_and_b32 v21, 31, v0\nv_lshlrev_b32 v21, 1, v21"])
            fin += [VM(f"buffer_load_dwordx4 {v(4 + 4 * i, 4)}, v{vL16}, {s(SS, 4)}, s{sGP} offen offset:{1024 * i}{SC1}", "fin") for i in range(3)]
            fin += [VM(f"buffer_load_ushort v16, v21, {s(SB, 4)}, s{sT} offen", "fin")]
            fin += flat([f"s_mov_b32 s{SD}, s100\ns_mov_b32 s{SD + 1}, s101\ns_mov_b32 s{SD + 2}, {688 * 1024:#x}\ns_lshl_b32 s{sPF}, s2, 2\ns_add_u32 s{sPF}, s{sPF}, s{sW}\ns_lshl_b32 s{sPF}, s{sPF}, 10"])
            fin += [VM(f"buffer_load_dword v{ZT + 32}, v{vL16}, {s(SD, 4)}, s{sPF} offen", "pf")]
            fin += flat([f"v_add_u32 v20, s{sW8}, v{vL16}\nv_add_u32 v21, 0x10000, v20\ns_lshl_b32 s{sT}, s{sW}, 15\nv_add_u32 v25, s{sT}, v{vL16}"])
            for j in range(1, 4):
                fin += flat([f"s_add_u32 s{sT}, s{sW}, {j}\ns_and_b32 s{sT}, s{sT}, 3\ns_lshl_b32 s{sT}, s{sT}, 13\nv_add_u32 v{21 + j}, s{sT}, v25"])
            first = weave(m[:14], [fin[i:i + 3] for i in range(0, len(fin), 3)], 0, 14)
        if MERGE23 and st == 2:
            E(WVM("cs"), "s_barrier")
            E(f"s_lshl_b32 s{sT}, s{sPI}, 5\ns_add_u32 s{sT}, s{sT}, s{sHD}\ns_lshl_b32 s{sT}, s{sT}, 4\ns_add_u32 s{sT}, s{sT}, {WS_FCTX}")
            E(flag_set(sW, SS, sT, 17))
        if MERGE23 and st == 7:
            E(f"s_bfe_u32 s{sT}, s2, 0x10002\ns_lshl_b32 s{sT}, s{sT}, 3\ns_bfe_u32 s{sT2}, s2, 0x30003\ns_add_u32 s{sT}, s{sT}, s{sT2}\ns_sub_u32 s{sT2}, 15, s{sT}\ns_min_u32 s{sT}, s{sT}, s{sT2}")
            E(f"s_lshl_b32 s{sT}, s{sT}, 9\ns_and_b32 s{sT2}, s2, 3\ns_lshl_b32 s{sT2}, s{sT2}, 7\ns_add_u32 s{sT}, s{sT}, s{sT2}\ns_add_u32 s{sFL}, s{sT}, {WS_FCTX}")
            E(wave0(sW, [I("v_and_b32 v17, 7, v0"), I("v_lshlrev_b32 v17, 4, v17"),
                         VMG(f"buffer_load_ubyte v18, v17, {s(SS, 4)}, s{sFL} offen sc0 sc1", "poll")]))
        lstamp(k, 19, 32 + 3 * st)
        E(first)
        lstamp(k, 19, 33 + 3 * st)
        E(second[:1])
        lstamp(k, 19, 34 + 3 * st)
        E(second[1:])
    stamp(k, 11)
    E("s_nop 7")
    for d in range(4):
        E(f"s_cmp_eq_u32 s{sW}, {d}\ns_cbranch_scc1 K2_GO{d}")
        for i in range(3):
            fr = 3 * d + i
            for q in range(2):
                E(f"ds_write_b128 v{20 + d // 2}, {a(fr * 8 + 4 * q, 4)} offset:{(d % 2) * 32768 + (i * 2 + q) * 1024}")
        E(f"s_branch K2_GN{d}\nK2_GO{d}:")
        for i in range(3):
            for r in range(8):
                E(f"v_accvgpr_read_b32 v{48 + i * 32 + r}, a{(3 * d + i) * 8 + r}")
        E(f"K2_GN{d}:")
    if MERGE23:
        E(flag_poll_check(sW, SS, sFL, 17))
    E(WLG0, "s_barrier")
    for i in range(3):
        for j in range(1, 4):
            for q in range(2):
                E(LG(f"ds_read_b128 {v(48 + i * 32 + j * 8 + q * 4, 4)}, v{21 + j} offset:{(i * 2 + q) * 1024}", f"x{i}"))
    E(WVM("fin"), "v_lshlrev_b32 v16, 16, v16")
    for i in range(3):
        E(WLG(f"x{i}"))
        b = 48 + i * 32
        for r in range(8):
            E(f"v_add_f32 v{b + r}, v{b + r}, v{b + 8 + r}\nv_add_f32 v{b + 16 + r}, v{b + 16 + r}, v{b + 24 + r}")
        for r in range(8):
            E(f"v_add_f32 v{b + r}, v{b + r}, v16")
        for r in range(8):
            E(f"v_add_f32 v{b + r}, v{b + r}, v{b + 16 + r}")
        for r in range(4):
            z = 4 + 4 * i + r
            E(f"v_lshlrev_b32 v26, 16, v{z}\nv_and_b32 v27, 0xffff0000, v{z}")
            E(f"v_mul_f32 v{b + 2 * r}, v{b + 2 * r}, v26\nv_mul_f32 v{b + 2 * r + 1}, v{b + 2 * r + 1}, v27")
        for r in range(4):
            E(f"v_cvt_pk_bf16_f32 v{b + r}, v{b + 2 * r}, v{b + 2 * r + 1}")
        E(VM(f"buffer_store_dwordx4 {v(b, 4)}, v{vL16}, {s(SS, 4)}, s{sGZ} offen offset:{1024 * i} sc1", "us"))


def build(k=None):
    merged = k is not None
    if not merged:
        k = Kern("k2_kernel")
    E = k.emit
    if not merged:
        E("s_cmp_ge_u32 s2, 256\ns_cbranch_scc1 K2_END")
        code_prefetch(k, "L_CODE_END" if MERGE23 else "k3_kernel", 0, 248)
    stamp_init(k)
    stamp(k, 0)
    E(f"s_load_dwordx2 s[64:65], s[0:1], {KA_WQ}")
    E(f"s_load_dwordx4 s[72:75], s[0:1], {KA_DBG}")
    E(f"s_load_dwordx4 s[68:71], s[0:1], {KA_WSP}")
    if not merged:
        E("v_lshrrev_b32 v1, 6, v0\nv_and_b32 v0, 63, v0")
    E(f"s_and_b32 s{sHD}, s2, 7\ns_lshl_b32 s{sHD}, s{sHD}, 2\ns_lshr_b32 s{sT}, s2, 3\ns_lshr_b32 s{sPI}, s{sT}, 2")
    if not merged:
        E(f"v_readfirstlane_b32 s{sW}, v1")
    E(f"s_and_b32 s{sT}, s{sT}, 3\ns_add_u32 s{sHD}, s{sHD}, s{sT}")
    E(f"s_and_b32 s{sRS}, s{sW}, 1\ns_lshr_b32 s{sG}, s{sW}, 1\ns_lshl_b32 s{sW8}, s{sW}, 13")
    E(f"v_lshlrev_b32 v{vL16}, 4, v0")
    E("v_and_b32 v20, 31, v0\nv_lshrrev_b32 v21, 5, v0\nv_lshrrev_b32 v22, 4, v0")
    E("v_bfe_u32 v23, v0, 2, 2\nv_and_b32 v24, 3, v0\nv_bfe_u32 v25, v0, 4, 1")
    E("v_xor_b32 v26, v23, v22\nv_lshlrev_b32 v27, 13, v22\nv_lshl_add_u32 v27, v26, 6, v27\nv_lshl_add_u32 v27, v24, 4, v27")
    for i in range(4):
        E(f"v_add_u32 v{vQD + i}, {i * (32768 - 1024)}, v27")
    E(f"s_sub_u32 s{sT}, 15, s{sPI}\ns_cmp_eq_u32 s{sG}, 0\ns_cselect_b32 s{sT}, s{sT}, s{sPI}")
    E(f"s_lshl_b32 s{sTD}, s{sT}, 1\ns_add_u32 s{sTD}, s{sTD}, s{sRS}\ns_lshl_b32 s{sXN}, s{sTD}, 16\ns_add_u32 s{sXN}, s{sXN}, {WS_XN}")
    E(f"s_lshl_b32 s{sWQ}, s{sW}, 17\ns_lshl_b32 s{sT}, s{sHD}, 8\ns_add_u32 s{sWQ}, s{sWQ}, s{sT}\ns_lshl_b32 s{sWM}, s{sW}, 12")
    E("s_waitcnt lgkmcnt(0)")
    E(srd(SQ, 64, 512 * 8192), srd(SS, 74, WS_SIZE))
    if not merged:
        for j in range(2):
            E(wq_dma(j), xn_loads(j))
    E(srd(SP, 68, 2048 * 4096), srd(SB, 70, 4096), srd(SD, 68, 2048 * 4096))
    E("v_lshl_add_u32 v26, v21, 3, v23\nv_lshlrev_b32 v26, 8, v26\nv_lshl_add_u32 v26, v25, 5, v26\nv_lshl_add_u32 v26, v24, 3, v26")
    for d in range(4):
        E(f"v_xor_b32 v27, {d}, v23\nv_lshl_add_u32 v{vQR + d}, v27, 6, v26\nv_add_u32 v{vQR + 4 + d}, 0x10000, v{vQR + d}")
    E(f"s_lshl_b32 s{sT}, s{sG}, 14\nv_add_u32 v{vKc}, s{sT}, v{vL16}\nv_add_u32 v{vKn}, 32768, v{vKc}\nv_add_u32 v{vVc}, {VB0}, v{vKc}\nv_mov_b32 v{vVp}, v{vVc}")
    E(f"v_lshlrev_b32 v26, 2, v21\nv_sub_u32 v{vD0}, v20, v26\nv_mov_b32 v{vNEG}, {fbits(NEG)}")
    E(f"s_lshl_b32 s{sKN}, s{sHD}, 19\ns_lshl_b32 s{sT}, s{sRS}, 13\ns_add_u32 s{sKN}, s{sKN}, s{sT}\ns_add_u32 s{sKN}, s{sKN}, {WS_KF}")
    E(f"s_lshl_b32 s{sT}, s{sPI}, 1\ns_add_u32 s{sT}, s{sT}, 2\ns_sub_u32 s{sT2}, 18, s{sT}\ns_lshl_b32 s{sT2}, s{sT2}, 14")
    E(f"s_cmp_eq_u32 s{sG}, 0\ns_cselect_b32 s{sSW}, 8, s{sT}\ns_cselect_b32 s{sJUMP}, 0x4000, s{sT2}\ns_sub_u32 s{sSW2}, s{sSW}, 2")
    E(f"s_lshl_b32 s{sFL}, s{sPI}, 8\ns_add_u32 s{sFL}, s{sFL}, {WS_FLAG2}\ns_lshl_b32 s{sPF}, s2, 2\ns_add_u32 s{sPF}, s{sPF}, s{sW}\ns_lshl_b32 s{sPF}, s{sPF}, 10\ns_mov_b32 s30, 0x100000")
    E(f"s_load_dwordx2 s[28:29], s[0:1], {KA_WO}\ns_load_dwordx2 s[100:101], s[0:1], {KA_WOUT}\ns_waitcnt lgkmcnt(0)")
    if "nowsp" in EXP:
        E(f"s_mov_b32 s{sPF}, 0x1000000")
    if merged:
        import k1
        E(f"s_mov_b32 s98, 0x20000000\ns_cmp_eq_u32 s{sG}, 1\ns_cbranch_scc1 K2_ZE2")
        st0 = (list(k.vm), list(k.lg))
        E(k1.z_epilogue(False, SS, vL16, 20, 21, sRS, 0), "s_branch K2_ZE")
        k.set_state(*st0)
        E("K2_ZE2:")
        E(k1.z_epilogue(True, SS, vL16, 20, 21, sRS, 0))
        E("K2_ZE:")
        E("s_barrier")
        for j in range(2):
            E(wq_dma(j), xn_loads(j))
    stamp(k, 5)
    rstamp(k, 19, 24)
    qproj(k)
    if MERGE12:
        E(WLG0, "s_barrier")
        E("v_and_b32 v20, 31, v0\nv_lshrrev_b32 v21, 5, v0", k.zc)
    E(VM(f"buffer_load_dword v{ZT + 40}, v{vL16}, {s(SD, 4)}, s{sPF} offen", "pf"), f"s_add_u32 s{sPF}, s{sPF}, s30")
    gm, wrapped, pin = schedule_loop()
    gmd, wrapped_d, pin_d = schedule_loop('D', pin)
    gmf, wrapped_f, pin_f = schedule_loop('F', pin)
    assert pin == pin_d and pin == pin_f
    wtxt = [it[1] for it in flat(wrapped)]
    for r in range(16):
        E(f"v_mov_b32 v{P(1, 0) + r}, 0\nv_mov_b32 v{NEGM[0] + r}, 0\nv_mov_b32 v{NEGM[1] + r}, 0")
        late = f"v_exp_f32 v{S[1] + r}, v{S[1] + r}" in wtxt
        E(f"v_mov_b32 v{S[1] + r}, {'v%d' % vNEG if late else '0'}")
    assert not any(f"v{S[0] + r}," in w or w.endswith(f"v{S[0] + r}") for w in wtxt for r in range(16))
    for r in (8, 9, 10, 11, 12, 13):
        E(f"v_mov_b32 v{r}, 0")
    E(f"v_mov_b32 v{vT}, 0x7f800000")
    for r0 in range(0, 16, 4):
        for r in range(r0, r0 + 4):
            E(f"v_cmp_gt_i32 s[{64 + 2 * (r % 4)}:{65 + 2 * (r % 4)}], {8 * (r // 4) + r % 4}, v{vD0}\nv_mov_b32 v{NEGB + r}, v{vNEG}")
        for r in range(r0, r0 + 4):
            E(f"v_cndmask_b32 v{MSK + r}, v{vT}, v{vNEG}, s[{64 + 2 * (r % 4)}:{65 + 2 * (r % 4)}]")
    E(f"s_mov_b32 s{sEV}, 0\ns_mov_b32 s{sDG}, 0")
    for x in range(2):
        E(f"s_mov_b32 s{sTH[x]}, {NINF}\ns_mov_b32 s{sLO[x]}, {NINF}")
    for i in range(8):
        E(mfma(('a', aO + 16 * i), ('v', P(1, 0)), ('v', P(1, 0)), 0))
    E(f"s_mov_b32 s{sU}, 0\ns_mov_b32 s{sTL}, 0\ns_mov_b32 s{sMK}, s{sW8}\ns_add_u32 s{sMV}, s{sW8}, {VB0 + 32768}")
    E(WLG0)
    stamp(k, 1)
    rstamp(k, 19, 26)
    dstamp(k, 4)
    def body(gm_, sf):
        diag = sf == "D"
        k.set_state(["kv"] * 16 + ["pf"], ["k"] * 8)
        main = qk(0) + qk(1) + pv(0, 1) + pv(1, 1) + qk(0, NEGB if diag else None) + qk(1) + pv(0, 0) + pv(1, 0)
        gm_[-1] = [I(f"K2_SWRET{sf}:"), WLG("k")]
        if sf:
            gm_[31] = gm_[31] + [I(f"s_cmp_eq_u32 s{sU}, s{sSW}"), I("s_cbranch_scc1 K2_FINB"), I(f"K2_FBRET{sf}:")]
        gm_[63] = gm_[63] + [I(f"s_cmp_lt_u32 s{sU}, 17"), I("s_cbranch_scc1 K2_LOOP")]
        bd = place(main, gm_)

        def drop(it):
            tx = it[1] if len(it) > 1 and isinstance(it[1], str) else ""
            if "nodma" in EXP and ("buffer_load" in tx): return True
            if "nobar" in EXP and tx == "s_barrier": return True
            if "nowait" in EXP and ("s_waitcnt" in tx or it[0] in ('wlg',)): return True
            if "noread" in EXP and tx.startswith("ds_read"): return True
            if "nobr" in EXP and ("K2_RARE" in tx or "K2_FINB" in tx): return True
            return False
        E([it for it in bd if not drop(it)])

    E(".p2align 6")
    for _ in range(int(os.environ.get("PAD", "0"))):
        E("s_nop 0")
    E("K2_LOOP:")
    if PROF and os.environ.get("PROF2"):
        E("s_memtime s[78:79]", "s_waitcnt lgkmcnt(0)", f"s_mov_b32 m0, s{sU}", "s_nop 0", "v_writelane_b32 v255, s78, m0")
    E(f"s_cmp_eq_u32 s{sU}, s{sEV}\ns_cbranch_scc1 K2_EVENT")
    body(gm, '')
    E("K2_TAIL:")
    stamp(k, 8)
    rstamp(k, 19, 28)
    dstamp(k, 5)
    if PROF:
        E(f"s_lshl_b32 s78, s2, 2\ns_add_u32 s78, s78, s{sW}\ns_lshl_b32 s78, s78, 8\ns_add_u32 s78, s78, {WS_PROF + 0x100000}\nv_lshlrev_b32 v254, 2, v0")
        E(f"buffer_store_dword v255, v254, {s(SS, 4)}, s78 offen")
    E(vreads(vVp, 1))
    gs = g_setup()
    E(gs[-2:])
    t = vT
    tl = flat(wrapped)
    for x in range(2):
        tl += flat([f"v_add_f32 v{vLs[x][0]}, v{vLs[x][0]}, v{vLs[x][1]}"])
    for x in range(2):
        tl += flat([f"v_mov_b32 v{vLs[x][1]}, v{vLs[x][0]}"])
    tl += flat([f"v_add_u32 v{t + 4}, s{sW8}, v{vL16}\nv_and_b32 v{t + 5}, 0x18000, v{vVp}"])
    for x in range(2):
        tl += flat([f"v_permlane32_swap_b32 v{vLs[x][0]}, v{vLs[x][1]}"])
    tl += flat([f"v_add_u32 v{t + 5}, v{t + 5}, v{t + 4}\nv_add_u32 v{t + 4}, {SPARE}, v{t + 4}"])
    for x in range(2):
        tl += flat([f"v_add_f32 v{vLs[x][0]}, v{vLs[x][0]}, v{vLs[x][1]}"])
    tl += [[I(f"s_cmp_eq_u32 s{sG}, 0"), I("s_cselect_b64 vcc, -1, 0")]]
    tl += flat([f"v_xor_b32 v{t + 6}, 0x4000, v{t + 4}\nv_xor_b32 v{t + 7}, 0x4000, v{t + 5}",
                f"v_cndmask_b32 v{t + 8}, v{vNM[0]}, v{vNM[1]}, vcc\nv_cndmask_b32 v{t + 9}, v{vLs[0][0]}, v{vLs[1][0]}, vcc"])
    tl += [LG(f"ds_write_b64 v{t + 6}, {v(t + 8, 2)}")]
    tl += flat(gs[:-2])
    tl += flat([f"s_sub_u32 s{sT}, 15, s{sPI}\ns_lshl_b32 s{sT}, s{sT}, 2\ns_lshl_b32 s{sT2}, s{sRS}, 1\ns_add_u32 s{sT}, s{sT}, s{sT2}\ns_add_u32 s{sT}, s{sT}, s{sG}",
                f"s_mul_i32 s{sT}, s{sT}, {CTXU_STEPS}\ns_lshl_b32 s{sT2}, s{sHD}, 3\ns_add_u32 s{sT}, s{sT}, s{sT2}",
                f"s_lshl_b32 s{sT}, s{sT}, 10\ns_add_u32 s{sT}, s{sT}, {WS_CTXU}\ns_add_u32 s{sT2}, s{sT}, 4096"])
    zz = g_zl(0)
    out_, gi = [], 0
    for i, it in enumerate(tl):
        while gi < len(zz) and gi * len(tl) <= i * len(zz):
            out_.append(zz[gi])
            gi += 1
        out_.append(it)
    E(out_, zz[gi:])
    E(WVM("pf"), WLG0, "s_barrier")
    E(f"s_cmp_eq_u32 s{sG}, 1\ns_cbranch_scc1 K2_MERGE1")
    st = (list(k.vm), list(k.lg))
    merge(k, 0)
    E("s_branch K2_G")
    k.set_state(*st)
    E("K2_MERGE1:")
    merge(k, 1)
    E("K2_G:")
    stamp(k, 3)
    gphase(k)
    if PROF and not MERGE23:
        E(WVM0)
    stamp(k, 4)
    rstamp(k, 19, 30)
    dstamp(k, 6)
    lstamp_store(k, 1, 19, 28, SS, sW)
    if PROF:
        E(f"s_mov_b32 s95, s{sPI}")
    stamp_store(k, 1, SS, sW, 208)
    if MERGE23:
        import k3
        E(f"s_mov_b64 exec, -1\ns_lshl_b32 s{sT}, s{sHD}, 3\ns_add_u32 s{sT}, s{sT}, s{sPI}\ns_lshl_b32 s{sT}, s{sT}, 4\ns_add_u32 s50, s{sT}, {WS_FU}")
        k3.build(k)
    E("K2_END:")
    E("s_endpgm")
    for x in range(2):
        for buf in range(2):
            rare_path(k, x, buf)
    hooks(k)
    body(gmd, 'D')
    E("s_branch K2_TAIL")
    body(gmf, 'F')
    E("s_branch K2_TAIL")
    if merged:
        return
    return k.text(512, 256)
```

```python
from asmlib import *
from common import *

import os
KVST = os.environ.get("KVST", "sc1")
NOPF = os.environ.get("NOPF", "0") == "1"
EXP = os.environ.get("EXP", "")
LT = os.environ.get("LT", "0") == "1"
SX, SC, SW, SI, SS, SD, SPF = 8, 12, 16, 20, 24, 28, 72
sW, sRB, sCB, sNB, sMB, sRS, sCH = 32, 33, 34, 35, 36, 37, 38
sT, sT2, sCK, sWK, sW8, sW2, sKO, sWI, sXN, sCNT, sONES, sWB, sDO = 56, 57, 58, 59, 60, 61, 62, 63, 64, 65, 66, 67, 68
sXO = 39

vCD = 1
vUD = 9
vCR = 17
vBR = 25
vL16 = 31
vF = 32
vT = 40
STG = 64
vQD, vQR, vPF = 64, 68, 76
WF = 96
ACC = (128, 192)
SLOT = 49152
UREG = (3, 4, 0, 1)


def A(ks, cs):
    return ('a', (ks * 32 + cs) * 4)


def seg_off(byte):
    return byte // 65536, byte % 65536


def a_dma(j):
    out = []
    base = (j % 3) * SLOT
    for i in range(8):
        g = []
        if i % 4 == 0:
            g += [I(f"s_add_u32 m0, s{sW8}, {base + (i // 4) * 4096}"), I(f"s_add_u32 s{sDO}, s{sCK}, {j * 128}")]
        g.append(VM(f"buffer_load_dwordx4 v{vCD + i}, {s(SC, 4)}, s{sDO} offen offset:{1024 * (i % 4)} lds", f"p{j}"))
        out.append(g)
    return out


def b_dma(j):
    out = []
    for i in range(4):
        g = []
        if i == 0:
            g += [I(f"s_add_u32 m0, s{sW2}, {(j % 3) * SLOT + 32768}"), I(f"s_add_u32 s{sDO}, s{sWB}, {j * 64 * 8192}")]
        g.append(VM(f"buffer_load_dwordx4 v{vQD + i}, {s(SW, 4)}, s{sDO} offen offset:{1024 * i} lds", f"p{j}"))
        out.append(g)
    return out


def unit_dma(u):
    out = []
    base = UREG[u] * 32768
    off = (u % 2) * 256 * 8192 + (2 + u // 2) * 128
    for i in range(8):
        g = []
        if i % 4 == 0:
            g += [I(f"s_add_u32 m0, s{sW8}, {base + (i // 4) * 4096}"), I(f"s_add_u32 s{sDO}, s{sWK}, {off}")]
        g.append(VM(f"buffer_load_dwordx4 v{vUD + i}, {s(SW, 4)}, s{sDO} offen offset:{1024 * (i % 4)} lds", f"u{u}"))
        out.append(g)
    return out


def zslot(z):
    return (z + 2) % 5


def z_dma(z, xn_only=False, w_only=False):
    out = []
    base = zslot(z) * 32768
    for p in range(2):
        if not xn_only:
            for i in range(3):
                g = []
                if i == 0:
                    g += [I(f"s_add_u32 m0, s{sW8}, {base + p * 4096}"), I(f"s_add_u32 s{sDO}, s{sWI}, {z * 64 * 2752 + p * 1376}")]
                g.append(VM(f"buffer_load_dwordx4 v{vCD + i}, {s(SI, 4)}, s{sDO} offen offset:{1024 * i} lds", f"z{z}"))
                out.append(g)
        if not w_only:
            out.append([I(f"s_add_u32 m0, s{sW8}, {base + p * 4096 + 3072}"), I(f"s_add_u32 s{sDO}, s{sXN}, {p * 32768 + z * 4096}"),
                        VM(f"buffer_load_dwordx4 v{vL16}, {s(SS, 4)}, s{sDO} offen sc1 lds", f"z{z}")])
    return out


def pa_reads(c):
    j, cs = c // 4, c % 4
    slot = j % 3
    sg, off = (0, slot * SLOT) if slot == 0 else (1, (slot - 1) * SLOT)
    out = [LG(f"ds_read_b128 {R(A(ks, c), 4)}, v{vCR + sg * 4 + cs} offset:{off + ks * 4096}", f"r{c}") for ks in range(2)]
    fb = WF + (c % 2) * 16
    for d in range(4):
        for sec in range(2):
            out.append(LG(f"ds_read_b64_tr_b16 {v(fb + 4 * d + 2 * sec, 2)}, v{vQR + sg * 4 + d} "
                          f"offset:{off + cs * 4096 + sec * 1024}", f"r{c}"))
    return out


def pa_mf(c, vtype):
    fb = WF + (c % 2) * 16
    out = []
    for d in range(4):
        for ks in range(2):
            cf, wf = A(ks, c), ('v', fb + 4 * d)
            X, Y = (cf, wf) if vtype else (wf, cf)
            out.append(mfma(('v', ACC[d // 2] + (ks * 2 + d % 2) * 16), X, Y, 0 if c == 0 else None))
    return out


def pb_reads(c):
    u = c // 16
    sg, off = seg_off(UREG[u] * 32768 + (c % 16) * 2048)
    fb = WF + (c % 4) * 8
    return [LG(f"ds_read_b64_tr_b16 {v(fb + 4 * d2 + 2 * sec, 2)}, v{vBR + sg * 2 + d2} offset:{off + sec * 512}", f"s{c}")
            for d2 in range(2) for sec in range(2)]


def pb_mf(c, vtype):
    p, cs = 2 + c // 32, c % 32
    fb = WF + (c % 4) * 8
    out = []
    for d2 in range(2):
        for ks in range(2):
            cf, wf = A(ks, cs), ('v', fb + 4 * d2)
            X, Y = (cf, wf) if vtype else (wf, cf)
            out.append(mfma(('v', ACC[p % 2] + (ks * 2 + d2) * 16), X, Y, 0 if cs == 0 else None))
    return out


def kv_epi(p, staged=False):
    out = []
    for ks in range(2):
        for d2 in range(2):
            for g in range(2):
                b = ACC[p % 2] + (ks * 2 + d2) * 16 + 8 * g
                grp = []
                if d2 == 0 and g == 0:
                    grp.append(I(f"s_add_u32 s{sT2}, s{sKO}, {(p // 2) * 64 * 8192 + ks * 8192 + (p % 2) * 4096}"))
                if staged:
                    b = STG + ((ks * 2 + d2) * 2 + g) * 4
                else:
                    grp += [I(f"v_cvt_pk_bf16_f32 v{b + i}, v{b + 2 * i}, v{b + 2 * i + 1}") for i in range(2)]
                    out.append(grp)
                    grp = [I(f"v_cvt_pk_bf16_f32 v{b + i}, v{b + 2 * i}, v{b + 2 * i + 1}") for i in range(2, 4)]
                grp.append(VM(f"buffer_store_dwordx4 {v(b, 4)}, v{vL16}, {s(SS, 4)}, s{sT2} offen offset:{(2 * d2 + g) * 1024} {KVST}", "st"))
                out.append(grp)
    return out


def XF(c):
    return A(c % 2, c // 2)


def xn_loads():
    out = []
    for c in range(32):
        g = []
        if c % 4 == 0:
            g.append(I(f"s_add_u32 s{sXO}, s{sXN}, {(c // 4) * 4096}"))
        g.append(VM(f"buffer_load_dwordx4 {R(XF(c), 4)}, v{vL16}, {s(SS, 4)}, s{sXO} offen offset:{(c % 4) * 1024} sc1", f"xn{c // 4}"))
        out.append(g)
    return out


def gelu(regs, vC0, vC1, tmp):
    out = []
    for i in range(0, len(regs), 4):
        g = regs[i:i + 4]
        t = [tmp + j for j in range(4)]
        for op in ("v_mul_f32 v{t}, v{x}, v{x}", "v_fma_f32 v{t}, v{t}, v{c1}, v{c0}", "v_mul_f32 v{t}, v{t}, v{x}",
                   "v_exp_f32 v{t}, v{t}", "v_add_f32 v{t}, 1.0, v{t}", "v_rcp_f32 v{t}, v{t}", "v_mul_f32 v{x}, v{x}, v{t}"):
            for x, tt in zip(g, t):
                out.append(op.format(t=tt, x=x, c0=vC0, c1=vC1))
    return out


def ln_code():
    o = []
    for i in range(4):
        o.append(f"v_mov_b32 v{48 + i}, 0")
    for r in range(2):
        for i in range(4):
            o.append(f"v_dot2_f32_bf16 v{48 + r}, v{40 + 4 * r + i}, s{sONES}, v{48 + r}")
            o.append(f"v_dot2_f32_bf16 v{50 + r}, v{40 + 4 * r + i}, v{40 + 4 * r + i}, v{50 + r}")
    o += ["s_nop 2", "v_permlane32_swap_b32 v48, v49", "v_permlane32_swap_b32 v50, v51", "s_nop 1",
          "v_add_f32 v48, v48, v49", "v_add_f32 v50, v50, v51", "s_nop 1",
          "v_permlane16_swap_b32 v48, v50", "s_nop 1", "v_add_f32 v48, v48, v50"]
    for sh in (8, 4, 2, 1):
        o += ["s_nop 1", f"v_add_f32_dpp v48, v48, v48 row_ror:{sh} row_mask:0xf bank_mask:0xf"]
    o += ["s_nop 1", f"v_mul_f32 v48, {fbits(1 / 512)}, v48", "s_nop 0",
          "v_readlane_b32 s40, v48, 0", "v_readlane_b32 s41, v48, 16", "v_readlane_b32 s42, v48, 32", "v_readlane_b32 s43, v48, 48",
          "s_nop 1"]
    for r in range(2):
        m, q = 40 + 2 * r, 41 + 2 * r
        a_, b_ = 52 + 2 * r, 53 + 2 * r
        o += [f"v_mov_b32 v{b_}, s{m}", f"v_mov_b32 v{a_}, s{q}", f"v_fma_f32 v{a_}, -v{b_}, v{b_}, v{a_}", f"v_max_f32 v{a_}, 0, v{a_}",
              f"v_add_f32 v{a_}, {fbits(LN_EPS)}, v{a_}", f"v_rsq_f32 v{a_}, v{a_}", "s_nop 0",
              f"v_mul_f32 v{b_}, v{b_}, v{a_}", f"v_sub_f32 v{b_}, 0, v{b_}"]
    for r in range(2):
        for i in range(4):
            x = 40 + 4 * r + i
            o += [f"v_lshlrev_b32 v56, 16, v{x}", f"v_and_b32 v57, 0xffff0000, v{x}",
                  f"v_fma_f32 v56, v56, v{52 + 2 * r}, v{53 + 2 * r}", f"v_fma_f32 v57, v57, v{52 + 2 * r}, v{53 + 2 * r}",
                  f"v_cvt_pk_bf16_f32 v{x}, v56, v57"]
    return o


def kv_phase(k, vtype):
    E = k.emit
    extra = {}

    def add(c, groups):
        extra.setdefault(c, []).extend(groups)

    def spread(c0, c1, groups):
        n = len(groups)
        for i, g in enumerate(groups):
            add(c0 + (i * (c1 - c0)) // n, [g])

    ldp = lambda sr, so, i: [VM(f"buffer_load_dwordx4 {v(vPF, 4)}, v{vL16}, {s(sr, 4)}, s{so} offen offset:{1024 * i}", "pf")]
    lt = lambda vo, sr, so, off=0: [VM(f"buffer_load_dword v{vPF}, v{vo}, {s(sr, 4)}, s{so} offen offset:{off}", "pf")]
    pf0 = [lt(39, SC, 70), lt(61, SPF, 76)]
    pf1 = []
    pf2 = [lt(61, SPF, 76, 256), lt(39, SI, 70)]
    if not LT:
        ldh = lambda sr, so, off: [I(f"s_add_u32 s{sT}, s{so}, {off}"), VM(f"buffer_load_dwordx4 {v(vPF, 4)}, v61, {s(sr, 4)}, s{sT} offen", "pf")]
        pf0 = [ldp(SC, 77, i) for i in range(2)] + [ldh(SPF, 76, 128 * 8192), ldh(SPF, 76, 256 * 8192)]
        pf1 = [ldh(SPF, 76, 384 * 8192)]
        pf2 = [ldh(SPF, 76, 256 + r * 128 * 8192) for r in range(4)] + [ldp(SI, 77, i) for i in range(2)]
    if os.environ.get("PFQA", "1") == "1":
        pf2 = pf2 + [[I(f"s_mov_b32 s{SX}, s44"), I(f"s_mov_b32 s{SX + 1}, s45"), I(f"s_mov_b32 s{SX + 2}, {512 * 8192:#x}")] + lt(39, SX, 70)]
    if "noown" in EXP:
        pf0, pf1, pf2 = [], [], []
    if "pfall" in EXP:
        pf0, pf1, pf2 = pf0 + pf1 + pf2, [], []
    if "pf01" in EXP:
        pf0, pf1 = pf0 + pf1, []
    add(1, pf1)
    if pf2:
        a_, b_ = [int(x) for x in os.environ.get("PF2", "8,9").split(",")]
        spread(a_, b_, pf2)
    ln = ln_code()
    lng = [[I(x) for x in ln[i:i + 4]] for i in range(0, len(ln), 4)]
    lng.append([LG("ds_write_b128 v58, v[40:43]"), LG("ds_write_b128 v58, v[44:47] offset:16")])
    xst = [[LG("ds_read_b128 v[40:43], v59", "xr"), LG("ds_read_b128 v[44:47], v59 offset:1024", "xr")],
           [WLG("xr"), VM(f"buffer_store_dwordx4 v[40:43], v62, {s(SS, 4)}, s69 offen sc1", "xs")],
           [I(f"v_add_u32 v62, 4096, v62"), VM(f"buffer_store_dwordx4 v[44:47], v62, {s(SS, 4)}, s69 offen sc1", "xs")]]
    if "noxs" not in EXP:
        spread(12, 15, xst)
    zf = [I("v_mov_b32 v60, 0"), I(f"s_lshl_b32 s{sT}, s{sCB}, 8"), I(f"s_add_u32 s{sT}, s{sT}, s{sRB}"), I(f"s_add_u32 s{sT}, s{sT}, {WS_FLAG2}"),
          I("s_mov_b64 exec, 1"), VMG(f"buffer_store_byte v60, v60, {s(SS, 4)}, s{sT} offen sc0 sc1", "fz")]
    for base, sh in ((WS_FCTX, 4), (WS_FU, 4), (WS_FP1, 4), (WS_FLAG3, 5)):
        zf += [I(f"s_lshl_b32 s{sT}, s2, {sh}"), I(f"s_add_u32 s{sT}, s{sT}, {base}"), VMG(f"buffer_store_dword v60, v60, {s(SS, 4)}, s{sT} offen sc0 sc1", "fz")]
    add(6, [wave0(sW, zf + [I("s_mov_b64 exec, -1")])])
    spread(0, 3, a_dma(2) + b_dma(2))
    spread(3, 11, lng)
    E(pf0)
    E(WVM("p0"), "s_barrier")
    dstamp(k, 1)
    stamp(k, 6)
    E(pa_reads(0))
    for c in range(32):
        E(WLG(f"r{c}"))
        fill = []
        if c % 4 == 3:
            j = c // 4
            lstamp(k, 63, 3 * j)
            if j < 7:
                E(WVM(f"p{j + 1}"))
            else:
                E(WVM("u0"))
            if j == 5:
                E(WVM("xs"))
            if j == 2:
                E(WLG0)
            lstamp(k, 63, 3 * j + 1)
            E("s_barrier")
            lstamp(k, 63, 3 * j + 2)
            if j + 3 < 8:
                post = a_dma(j + 3) + b_dma(j + 3)
            elif j == 5:
                post = unit_dma(0) + unit_dma(1)[:4]
            elif j == 6:
                post = unit_dma(1)[4:] + unit_dma(2)
            else:
                post = []
            if j == 5 and "noflag" not in EXP:
                post = post + [wave0(sW, [WVMG("fz")]), flag_set(sW, SD, 2, 46)]
            if j < 7:
                spread(c, c + 4, post)
        if c < 31:
            fill += pa_reads(c + 1)
            fill = interleave(fill, extra.get(c, []))
            E(weave(pa_mf(c, vtype), fill, 0, 8))
        else:
            m = pa_mf(c, vtype)
            stg = []
            for tl in range(4):
                for g in range(2):
                    b = ACC[0] + tl * 16 + 8 * g
                    stg += [I(f"v_cvt_pk_bf16_f32 v{STG + (tl * 2 + g) * 4 + i}, v{b + 2 * i}, v{b + 2 * i + 1}") for i in range(4)]
            order = [0, 2, 1, 3]
            E(m[:4], pb_reads(0), m[4], m[5])
            seq = [stg[o * 8:(o + 1) * 8] for o in order]
            E(seq[0], m[6], seq[1], m[7], pb_reads(1), seq[2], seq[3])
    stamp(k, 7)
    dstamp(k, 2)
    extra.clear()
    wi = []
    for i in range(3):
        wi.append([I(x) for x in (f"v_add_u32 v46, {64 * i}, v0", "v_mul_u32_u24 v47, 43691, v46", "v_lshrrev_b32 v47, 19, v47",
                                  "v_mul_u32_u24 v48, 12, v47")])
        wi.append([I(x) for x in ("v_sub_u32 v48, v46, v48", "v_mul_u32_u24 v47, 2752, v47", f"v_lshl_add_u32 v{vCD + i}, v48, 4, v47",
                                  f"v_subrev_u32 v{vCD + i}, {1024 * i}, v{vCD + i}")])
    wi.append([I(x) for x in (f"v_lshl_add_u32 v46, v{vF + 1}, 3, v{vF + 3}", "v_mul_u32_u24 v46, 192, v46",
                              f"v_lshl_add_u32 v46, v{vF + 5}, 5, v46", f"v_lshl_add_u32 v46, v{vF + 4}, 3, v46")])
    wi.append([I(x) for x in (f"s_lshl_b32 s{sT}, s{sCH}, 12", f"v_add_u32 v{vCR}, s{sT}, v46", f"v_add_u32 v{vCR + 1}, 0x10000, v{vCR}",
                              f"v_add_u32 v{vCR + 2}, 0x20000, v{vCR}")])
    wi.append([I(x) for x in (f"s_lshl_b32 s{sT}, s{sRS}, 12", f"s_add_u32 s{sT}, s{sT}, 3072", f"v_add_u32 v{vCR + 3}, s{sT}, v{vL16}",
                              f"v_add_u32 v{vCR + 4}, 0x10000, v{vCR + 3}", f"v_add_u32 v{vCR + 5}, 0x20000, v{vCR + 3}")])
    spread(0, 6, unit_dma(3))
    spread(0, 6, wi)
    spread(7, 13, z_dma(0, w_only=True))
    spread(0, 15, kv_epi(0, staged=True))
    spread(15, 32, kv_epi(1))
    spread(33, 64, kv_epi(2))
    if "noflag" not in EXP:
        if MERGE12:
            add(13, [poll_all_issue(sW, SD, "0", 4, 1, 50)])
            add(29, [poll_all_check(sW, SD, "0", 4, 1, 50, 0x01010101)])
        else:
            add(13, [flag_poll_issue(sW, SD, sCNT, 8, 50)])
            add(29, [flag_poll_check(sW, SD, sCNT, 50)])
    pf = [[I(f"s_mov_b32 s{SPF}, s44"), I(f"s_mov_b32 s{SPF + 1}, s45"), VM(f"buffer_load_dword v52, v39, {s(SPF, 4)}, s70 offen", "pf")]]
    if not NOPF and os.environ.get("PFQA", "1") != "1":
        a_, b_ = [int(x) for x in os.environ.get("PFQ", "32,33").split(",")]
        spread(a_, b_, pf)
    for c in range(64):
        n = c + 2
        fill = []
        if n < 64:
            if n % 16 == 0:
                u = n // 16
                lstamp(k, 63, 21 + 3 * u)
                E(WLG(f"s{n - 1}"), WVM(f"u{u}"))
                lstamp(k, 63, 22 + 3 * u)
                E("s_barrier")
                lstamp(k, 63, 23 + 3 * u)
                if u == 1:
                    spread(c, c + 12, z_dma(1, w_only=True))
                elif u == 2:
                    spread(c, c + 14, z_dma(0, xn_only=True) + z_dma(1, xn_only=True) + z_dma(2))
                else:
                    spread(c, c + 14, z_dma(3))
            fill += pb_reads(n)
        E(WLG(f"s{c}"))
        if c == 32:
            stamp(k, 8)
        E(weave(pb_mf(c, vtype), interleave(fill, extra.get(c, [])), 0, 4))
    for c in extra:
        assert c < 64


def interleave(x, y):
    out = []
    n = max(len(x), len(y))
    for i in range(n):
        if i < len(x):
            out.append(x[i])
        if i < len(y):
            out.append(y[i])
    return out


def z_phase(k, z2):
    E = k.emit
    ZACC = ACC[0]
    LA = 3

    def fbuf(c):
        return (c % 4) * 16

    def reads(c):
        z, cs = c // 4, c % 4
        sg, off = seg_off(zslot(z) * 32768 + cs * 8192)
        fb = fbuf(c)
        out = [LG(f"ds_read_b128 {a(fb + 12, 4)}, v{vCR + 3 + sg} offset:{off}", f"y{c}")]
        out += [LG(f"ds_read_b64_tr_b16 {a(fb + 4 * f + 2 * sec, 2)}, v{vCR + sg} offset:{off + sec * 768 + f * 64}", f"y{c}")
                for f in range(3) for sec in range(2)]
        return out

    def mf(c):
        fb = fbuf(c)
        out = []
        for f in range(3):
            wf, xf = ('a', fb + 4 * f), ('a', fb + 12)
            X, Y = (xf, wf) if z2 else (wf, xf)
            out.append(mfma(('v', ZACC + 16 * f), X, Y, 0 if c == 0 else None))
        return out

    epi = kv_epi(3)
    lstamp(k, 63, 33)
    E(WVM("z0"), "s_barrier")
    lstamp(k, 63, 34)
    for c in range(LA):
        E(reads(c))
    pend = z_dma(4)
    for c in range(32):
        n = c + LA
        if n < 32 and n % 4 == 0:
            z = n // 4
            lstamp(k, 63, 33 + 3 * z)
            E(WLG(f"y{n - 1}"), WVM(f"z{z}"))
            lstamp(k, 63, 34 + 3 * z)
            E("s_barrier")
            if z + 4 < 8:
                pend = pend + z_dma(z + 4)
        E(WLG(f"y{c}"))
        r_ = reads(n) if n < 32 else []
        ZR = int(os.environ.get("ZR", "2"))
        ZE = int(os.environ.get("ZE", "16"))
        take, pend = pend[:ZR], pend[ZR:]
        gm_ = {i: r_[(i * 7) // 3:((i + 1) * 7) // 3] + take[i:i + 1] for i in range(3)}
        for e_ in range(16):
            if ZE + (e_ * (32 - ZE)) // 16 == c:
                gm_[2] = gm_[2] + [epi[e_]]
        E(place(mf(c), gm_))


def build():
    k = Kern(KNAME if MERGE12 else "k1_kernel")
    E = k.emit
    E("s_cmp_ge_u32 s2, 256\ns_cbranch_scc1 " + ("K2_END" if MERGE12 else "K1_END"))
    code_prefetch(k, "L_CODE_END", 0, 120)
    stamp_init(k)
    dstamp(k, 0)
    stamp(k, 0)
    E(f"s_load_dwordx4 s[40:43], s[0:1], {KA_X}")
    E(f"s_load_dwordx4 s[44:47], s[0:1], {KA_WUK}")
    E(f"s_load_dwordx2 s[48:49], s[0:1], {KA_WIN}")
    E(f"s_load_dwordx4 s[52:55], s[0:1], {KA_DBG}")
    E("v_lshrrev_b32 v1, 6, v0\nv_and_b32 v0, 63, v0")
    E(f"s_lshr_b32 s{sRB}, s2, 3\ns_and_b32 s{sCB}, s2, 7")
    E(f"v_readfirstlane_b32 s{sW}, v1")
    E(f"s_and_b32 s{sNB}, s{sRB}, 3\ns_lshl_b32 s{sT}, s{sCB}, 2\ns_add_u32 s{sNB}, s{sNB}, s{sT}")
    E(f"s_lshr_b32 s{sMB}, s{sRB}, 2")
    E(f"s_and_b32 s{sRS}, s{sW}, 1\ns_lshr_b32 s{sCH}, s{sW}, 1\ns_lshl_b32 s{sW8}, s{sW}, 13\ns_lshl_b32 s{sW2}, s{sW}, 12")
    f0 = vF
    E(f"v_and_b32 v{f0}, 31, v0\nv_lshrrev_b32 v{f0 + 1}, 5, v0\nv_lshrrev_b32 v{f0 + 2}, 4, v0")
    E(f"v_bfe_u32 v{f0 + 3}, v0, 2, 2\nv_and_b32 v{f0 + 4}, 3, v0\nv_bfe_u32 v{f0 + 5}, v0, 4, 1")
    E(f"v_lshlrev_b32 v{vL16}, 4, v0")
    E(f"v_lshrrev_b32 v46, 3, v0\nv_lshlrev_b32 v50, 13, v46\nv_lshlrev_b32 v46, 10, v46\nv_and_b32 v47, 7, v0\nv_xor_b32 v47, v47, v{f0 + 2}")
    E("v_lshl_add_u32 v48, v47, 4, v46\nv_xor_b32 v47, 4, v47\nv_lshl_add_u32 v49, v47, 4, v46")
    for i in range(8):
        E(f"v_add_u32 v{vCD + i}, {i * 8192 - (i % 4) * 1024}, v{48 + (i % 2)}")
    E(f"v_bfe_u32 v47, v0, 2, 1\nv_xor_b32 v47, v47, v{f0 + 5}\nv_lshl_add_u32 v50, v47, 6, v50\nv_lshl_add_u32 v50, v{f0 + 4}, 4, v50")
    for i in range(8):
        E(f"v_add_u32 v{vUD + i}, {i * 65536 - (i % 4) * 1024}, v50")
    E(f"s_lshl_b32 s{sCK}, s{sMB}, 18\ns_lshl_b32 s{sT}, s{sW}, 16\ns_add_u32 s{sCK}, s{sCK}, s{sT}")
    E(f"s_and_b32 s{sT}, s{sNB}, 15\ns_lshl_b32 s{sT}, s{sT}, 9\ns_lshl_b32 s{sWK}, s{sW}, 19\ns_add_u32 s{sWK}, s{sWK}, s{sT}")
    E(f"s_lshl_b32 s{sWB}, s{sW}, 17\ns_add_u32 s{sWB}, s{sWB}, s{sT}")
    E(f"s_lshl_b32 s{sT2}, s2, 13\ns_lshl_b32 s{sT}, s{sW}, 11\ns_add_u32 s{sT2}, s{sT2}, s{sT}")
    E(f"v_xor_b32 v46, v{f0 + 3}, v{f0 + 2}\nv_lshlrev_b32 v47, 13, v{f0 + 2}\nv_lshl_add_u32 v47, v46, 6, v47\nv_lshl_add_u32 v47, v{f0 + 4}, 4, v47")
    for i in range(4):
        E(f"v_add_u32 v{vQD + i}, {i * (32768 - 1024)}, v47")
    E("s_waitcnt lgkmcnt(0)")
    E(srd(SX, 40, 2048 * 1024), srd(SC, 42, 2048 * 1024))
    E(VM(f"buffer_load_dwordx4 v[40:43], v{vL16}, {s(SX, 4)}, s{sT2} offen", "x"))
    E(VM(f"buffer_load_dwordx4 v[44:47], v{vL16}, {s(SX, 4)}, s{sT2} offen offset:1024", "x"))
    E(f"s_cmp_lt_u32 s{sNB}, 16\ns_cselect_b32 s{SW}, s44, s46\ns_cselect_b32 s{SW + 1}, s45, s47")
    E(f"s_mov_b32 s{SW + 2}, {512 * 8192:#x}\ns_mov_b32 s{SW + 3}, 0x20000")
    for j in range(2):
        E(a_dma(j), b_dma(j))
    E(srd(SI, 48, 512 * 2752), srd(SS, 54, WS_SIZE), srd(SD, 52, 256))
    E(f"s_lshl_b32 s{sT}, s2, 2\ns_add_u32 s{sT}, s{sT}, s{sW}\ns_lshl_b32 s70, s{sT}, 12\ns_lshl_b32 s76, s{sT}, 13\ns_and_b32 s76, s76, 0x3fffff")
    if not LT:
        E(f"s_lshl_b32 s77, s{sT}, 11\ns_and_b32 s76, s77, 0xfffff")
    E(f"s_cmp_lt_u32 s2, 128\ns_cselect_b32 s{SPF}, s44, s46\ns_cselect_b32 s{SPF + 1}, s45, s47\ns_mov_b32 s{SPF + 2}, {512 * 8192:#x}\ns_mov_b32 s{SPF + 3}, 0x20000")
    E(f"v_lshrrev_b32 v61, 2, v0\nv_lshlrev_b32 v61, 9, v61\nv_lshl_add_u32 v61, v{f0 + 4}, 6, v61\nv_lshlrev_b32 v39, 6, v0")
    if not LT:
        E(f"v_lshlrev_b32 v61, 9, v{f0 + 2}\nv_and_b32 v48, 15, v0\nv_lshl_add_u32 v61, v48, 4, v61")
    E(f"s_load_dwordx2 s[44:45], s[0:1], {KA_WQ}")
    E(f"v_bfe_u32 v48, v0, 1, 3\nv_xor_b32 v48, v48, v{f0 + 1}\nv_lshlrev_b32 v49, 7, v{f0}\nv_add_u32 v49, s{sW8}, v49")
    for k16 in range(4):
        E(f"v_xor_b32 v50, {2 * k16}, v48\nv_lshl_add_u32 v{vCR + k16}, v50, 4, v49\nv_add_u32 v{vCR + 4 + k16}, {SLOT}, v{vCR + k16}")
    E(f"v_lshl_add_u32 v48, v{f0 + 1}, 3, v{f0 + 3}\nv_lshlrev_b32 v48, 8, v48\nv_lshl_add_u32 v48, v{f0 + 5}, 5, v48\nv_lshl_add_u32 v48, v{f0 + 4}, 3, v48\nv_add_u32 v48, 32768, v48")
    for d in range(4):
        E(f"v_xor_b32 v49, {d}, v{f0 + 3}\nv_lshl_add_u32 v{vQR + d}, v49, 6, v48\nv_add_u32 v{vQR + 4 + d}, {SLOT}, v{vQR + d}")
    E(f"v_lshl_add_u32 v48, v{f0 + 1}, 3, v{f0 + 3}\nv_lshlrev_b32 v48, 7, v48\nv_lshl_add_u32 v48, v{f0 + 5}, 5, v48\nv_lshl_add_u32 v48, v{f0 + 4}, 3, v48")
    E(f"v_lshrrev_b32 v49, 1, v{f0 + 3}\nv_lshl_add_u32 v{vBR}, v49, 6, v48\nv_xor_b32 v49, 1, v49\nv_lshl_add_u32 v{vBR + 1}, v49, 6, v48")
    for sg in (1, 2):
        for d2 in range(2):
            E(f"v_add_u32 v{vBR + 2 * sg + d2}, {sg * 65536}, v{vBR + d2}")
    E(f"s_lshl_b32 s{sKO}, s{sNB}, 7\ns_lshl_b32 s{sT}, s{sMB}, 3\ns_add_u32 s{sKO}, s{sKO}, s{sT}\ns_lshl_b32 s{sT}, s{sW}, 1\ns_add_u32 s{sKO}, s{sKO}, s{sT}")
    E(f"s_lshl_b32 s{sKO}, s{sKO}, 13\ns_add_u32 s{sKO}, s{sKO}, {WS_KF}")
    E(f"s_mul_i32 s{sWI}, s{sW}, {16 * 2752}\ns_mul_i32 s{sT}, s{sCB}, 192\ns_add_u32 s{sWI}, s{sWI}, s{sT}")
    E(f"s_lshl_b32 s{sXN}, s{sRB}, 16\ns_lshl_b32 s{sT}, s{sW}, 10\ns_add_u32 s{sXN}, s{sXN}, s{sT}\ns_add_u32 s{sXN}, s{sXN}, {WS_XN}")
    E(f"s_lshl_b32 s{sCNT}, s{sRB}, 3\ns_mov_b32 s{sONES}, 0x3f803f80")
    E(f"s_lshr_b32 s{sT2}, s2, 2\ns_lshl_b32 s{sT2}, s{sT2}, 15\ns_and_b32 s{sT}, s2, 3\ns_lshl_b32 s{sT}, s{sT}, 7\ns_add_u32 s{sT2}, s{sT2}, s{sT}")
    E(f"s_add_u32 s{sT2}, s{sT2}, s{sW8}\ns_add_u32 s69, s{sT2}, {WS_XN}")
    E(f"s_lshl_b32 s{sT}, s{sW}, 5\ns_add_u32 s{sT}, s{sT}, {3 * SLOT}\nv_lshlrev_b32 v58, 7, v0\nv_add_u32 v58, s{sT}, v58")
    E(f"s_lshl_b32 s{sT}, s{sW}, 11\ns_add_u32 s{sT}, s{sT}, {3 * SLOT}\nv_add_u32 v59, s{sT}, v{vL16}")
    E("v_lshrrev_b32 v62, 3, v0\nv_lshlrev_b32 v62, 9, v62\nv_and_b32 v48, 7, v0\nv_lshl_add_u32 v62, v48, 4, v62")
    E("s_waitcnt lgkmcnt(0)")
    stamp(k, 1)
    E(f"s_cmp_ge_u32 s{sNB}, 16\ns_cbranch_scc1 K1_V")
    st = (list(k.vm), list(k.lg))
    kv_phase(k, False)
    E("s_branch K1_Z")
    k.set_state(*st)
    E("K1_V:")
    kv_phase(k, True)
    E("K1_Z:")
    stamp(k, 2)
    E(f"s_cmp_eq_u32 s{sCH}, 1\ns_cbranch_scc1 K1_Z2")
    st = (list(k.vm), list(k.lg))
    ZACC = ACC[0]
    zr = list(range(ZACC, ZACC + 48))
    z_phase(k, False)
    stamp(k, 3)
    E(f"s_lshl_b32 s{sT}, s{sRB}, 1\ns_add_u32 s{sT}, s{sT}, s{sRS}\ns_mul_i32 s{sT}, s{sT}, 48")
    E(f"s_mul_i32 s{sT2}, s{sCB}, 6\ns_add_u32 s{sT}, s{sT}, s{sT2}\ns_lshl_b32 s{sT}, s{sT}, 10")
    E(f"s_add_u32 s96, s{sT}, {WS_Z1}\ns_add_u32 s97, s96, 4096\ns_nop 7")
    E(f"s_cmp_lg_u32 s{sCB}, 7\ns_cbranch_scc1 K1_ZJOIN")
    for r in zr[8:]:
        E(f"v_mov_b32 v{r}, 0")
    E("s_branch K1_ZJOIN")
    k.set_state(*st)
    E("K1_Z2:")
    z_phase(k, True)
    stamp(k, 3)
    E(f"s_mul_i32 s{sT}, s{sCB}, 384\ns_lshl_b32 s{sT2}, s{sRB}, 2\ns_add_u32 s{sT}, s{sT}, s{sT2}")
    E(f"s_lshl_b32 s{sT2}, s{sRS}, 1\ns_add_u32 s{sT}, s{sT}, s{sT2}\ns_lshl_b32 s{sT}, s{sT}, 10\ns_add_u32 s96, s{sT}, {WS_Z2R}")
    E(f"s_lshl_b32 s{sT}, s{sRB}, 1\ns_add_u32 s{sT}, s{sT}, s{sRS}\ns_lshl_b32 s{sT}, s{sT}, 11\ns_add_u32 s{sT}, s{sT}, {WS_STAT}")
    E(f"s_lshl_b32 s{sT2}, s{sCB}, 8\ns_add_u32 s97, s{sT}, s{sT2}")
    E(f"s_cmp_lg_u32 s{sCB}, 7\ns_cbranch_scc1 K1_ZJOIN")
    E(f"v_cmp_gt_u32 vcc, 16, v{vF}\ns_nop 1")
    for r in zr[:16]:
        E(f"v_cndmask_b32 v{r}, 0, v{r}, vcc")
    for r in zr[16:]:
        E(f"v_mov_b32 v{r}, 0")
    E("K1_ZJOIN:")
    dstamp(k, 3)
    stamp(k, 4)
    stamp(k, 5)
    lstamp_store(k, 0, 63, 59, SS, sW)
    stamp_store(k, 0, SS, sW, 96)
    import k2
    E("s_mov_b64 exec, -1")
    k2.build(k)
    return k.text(512, 256)


def z_epilogue(z2, SS_, vL, vr, vh, srs, scr):
    ZACC = ACC[0]
    T = 48
    o = flat([f"v_mov_b32 v{T + 4}, {fbits(GELU_C0)}\nv_mov_b32 v{T + 5}, {fbits(GELU_C1)}"])
    if not z2:
        for fg in range(6):
            b = ZACC + 8 * fg
            o += flat(gelu(list(range(b, b + 8)), T + 4, T + 5, T))
            o += [I(f"v_cvt_pk_bf16_f32 v{b + i}, v{b + 2 * i}, v{b + 2 * i + 1}") for i in range(4)]
            o.append(VM(f"buffer_store_dwordx4 {v(b, 4)}, v{vL}, {s(SS_, 4)}, s{96 if fg < 4 else 97} offen offset:{1024 * (fg % 4)} sc1", "zo"))
        o.append(VM(f"buffer_load_dword v252, v{vL}, {s(SS_, 4)}, s98 offen", "zo"))
        return o
    o += flat(gelu(list(range(ZACC, ZACC + 48)), T + 4, T + 5, T))
    o += flat([f"s_mul_i32 s98, s{srs}, 9216\ns_add_u32 s98, s98, {scr}",
               f"v_mul_u32_u24 v{T + 6}, {4 * 144}, v{vh}\nv_lshl_add_u32 v{T + 6}, v{vr}, 2, v{T + 6}\nv_add_u32 v{T + 6}, s98, v{T + 6}",
               f"v_mul_u32_u24 v{T + 7}, 144, v0\nv_add_u32 v{T + 7}, s98, v{T + 7}"])
    for r in range(16):
        z0, z1, z2_ = ZACC + r, ZACC + 16 + r, ZACC + 32 + r
        a_, b_ = T + 8 + 2 * (r % 4), T + 9 + 2 * (r % 4)
        srow = 8 * (r // 4) + r % 4
        o += flat([f"v_add_f32 v{a_}, v{z0}, v{z1}\nv_mul_f32 v{b_}, v{z0}, v{z0}\nv_add_f32 v{a_}, v{a_}, v{z2_}\nv_fmac_f32 v{b_}, v{z1}, v{z1}\nv_fmac_f32 v{b_}, v{z2_}, v{z2_}"])
        o += [LG(f"ds_write_b32 v{T + 6}, v{a_} offset:{srow * 144}"), LG(f"ds_write_b32 v{T + 6}, v{b_} offset:{(32 + srow) * 144}")]
    SQ = 64
    o += [LG(f"ds_read_b128 {v(SQ + 4 * i, 4)}, v{T + 7} offset:{16 * i}", "zq") for i in range(8)]
    for f in range(3):
        for g in range(2):
            b = ZACC + 16 * f + 8 * g
            o += [I(f"v_cvt_pk_bf16_f32 v{b + i}, v{b + 2 * i}, v{b + 2 * i + 1}") for i in range(4)]
            o += flat([f"s_nop 1\nv_permlane32_swap_b32 v{b}, v{b + 2}\nv_permlane32_swap_b32 v{b + 1}, v{b + 3}\ns_nop 1"])
            o.append(VM(f"buffer_store_dwordx4 {v(b, 4)}, v{vL}, {s(SS_, 4)}, s96 offen offset:{1024 * g} sc1", "zo"))
        if f < 2:
            o.append(I(f"s_add_u32 s96, s96, {128 * 1024}"))
    o += [I(f"v_lshlrev_b32 v{T + 6}, 2, v0"), WLG("zq")]
    for stride in (16, 8, 4, 2, 1):
        o += [I(f"v_add_f32 v{SQ + i}, v{SQ + i}, v{SQ + stride + i}") for i in range(stride)]
    o.append(VM(f"buffer_store_dword v{SQ}, v{T + 6}, {s(SS_, 4)}, s97 offen sc1", "zo"))
    return o
```

```python
from asmlib import *
from common import *
import os

THRESH = float(os.environ.get("THRESH", "32.0"))
BUDGET = int(os.environ.get("BUDGET", "25"))
EXP = os.environ.get("EXP2", "")

SQ, SP, SB, SS, SD = 8, 12, 16, 20, 24
sW, sHD, sPI, sG, sRS = 32, 33, 34, 35, 36
sT, sT2, sU, sSW, sSW2, sJUMP, sTL, sTD = 37, 38, 39, 40, 41, 42, 43, 44
sKN, sKO2, sVO, sVO2, sMK, sMV = 45, 46, 47, 48, 49, 50
sTH = (51, 52)
sLO = (53, 54)
sXN, sWQ, sWM, sW8, sDO = 55, 56, 57, 59, 58
sGP, sGZ, sGM, sFL, sPF, sEV, sDG = 60, 61, 62, 63, 76, 77, 31
NINF = "0xff800000"
SC1 = " sc1" if MERGE12 else ""

vL16, vKc, vKn, vVp, vVc, vD0, vNEG = 1, 2, 3, 4, 5, 6, 7
vLs = ((8, 9), (10, 11))
vNM = (12, 13)
vM = 14
vLSV = (30, 31)
vT = 20
vQD = 32
vQR = 36
S = (48, 64)
NEGM = (80, 96)
PB = 112
QBS = 144
ZT = 208
NEGB = 208
MSK = 224
vPL = 240
aO, aQ, aK, aV = 0, 128, 192, 224

KB0, VB0, SPARE = 0, 65536, 131072
NEG = -1.0e30


def P(buf, x, i=0):
    return PB + (buf * 2 + x) * 8 + i


def dma4(so, tag="kv"):
    return [VM(f"buffer_load_dwordx4 v{vL16}, {s(SS, 4)}, s{so} offen offset:{1024 * i}{SC1} lds", tag) for i in range(4)]


def qk(x, cin=None):
    return [mfma(('v', S[x]), ('a', aK + 4 * d), ('a', aQ + (x * 8 + d) * 4), ('v', NEGM[x] if cin is None else cin) if d == 0 else None)
            for d in range(8)]


def pv(x, buf):
    return [mfma(('a', aO + (x * 4 + ds) * 16), ('a', aV + (ds * 2 + g) * 4), ('v', P(buf, x, 4 * g)))
            for g in range(2) for ds in range(4)]


def kreads(areg, th):
    return [LG(f"ds_read_b128 {a(aK + 4 * d, 4)}, v{areg} offset:{th * 8192 + d * 1024}", "k") for d in range(8)]


def vreads(areg, th):
    return [LG(f"ds_read_b128 {a(aV + 4 * f, 4)}, v{areg} offset:{th * 8192 + f * 1024}", "v") for f in (0, 2, 4, 6, 1, 3, 5, 7)]


def sm_max(x):
    b, m = S[x], vM
    return [(4, I(t)) for t in (
        f"v_max3_f32 v{m}, v{b}, v{b + 1}, v{b + 2}", f"v_max3_f32 v{m + 1}, v{b + 3}, v{b + 4}, v{b + 5}",
        f"v_max3_f32 v{m + 2}, v{b + 6}, v{b + 7}, v{b + 8}", f"v_max3_f32 v{m + 3}, v{b + 9}, v{b + 10}, v{b + 11}",
        f"v_max3_f32 v{m + 4}, v{b + 12}, v{b + 13}, v{b + 14}", f"v_max3_f32 v{m}, v{m}, v{m + 1}, v{b + 15}",
        f"v_max3_f32 v{m + 2}, v{m + 2}, v{m + 3}, v{m + 4}", f"v_max_f32 v{m}, v{m}, v{m + 2}")]


def sm_chk(x, buf):
    return (8, [I(f"v_cmp_lt_f32 vcc, s{sTH[x]}, v{vM}"), I(f"s_cbranch_vccnz K2_RARE_{x}_{buf}"), I(f"K2_RET_{x}_{buf}:")])


def sm_fin(x, buf, i):
    b = S[x]
    return [(4, I(f"v_add_f32 v{vLs[x][0]}, v{vLs[x][0]}, v{b + 2 * i}")),
            (4, I(f"v_add_f32 v{vLs[x][1]}, v{vLs[x][1]}, v{b + 2 * i + 1}")),
            (4, I(f"v_cvt_pk_bf16_f32 v{P(buf, x, i)}, v{b + 2 * i}, v{b + 2 * i + 1}"))]


def sm_exp(x, buf):
    b = S[x]
    items = []
    for i in range(8):
        items.append((8, I(f"v_exp_f32 v{b + 2 * i}, v{b + 2 * i}")))
        items.append((8, I(f"v_exp_f32 v{b + 2 * i + 1}, v{b + 2 * i + 1}")))
        if i > 0:
            items += sm_fin(x, buf, i - 1)
    return items + sm_fin(x, buf, 7)


CAP = int(os.environ.get("CAP", "24"))


def schedule_loop(var='', pin=None):
    NG = 64
    T = NG + 16
    mem = [[] for _ in range(T)]
    alu = [[] for _ in range(T)]
    used = [0] * NG
    sfx = var
    diag, first = var == 'D', var == 'F'

    def fixed(g, cost, item, is_mem=True):
        (mem if is_mem else alu)[g].append(item)
        used[g % NG] += cost

    def spread_mem(g0, n, items):
        for i, r in enumerate(items):
            fixed(g0 + (i * n) // len(items), 4, r)

    spread_mem(0, 13, vreads(vVp, 1))
    spread_mem(16, 10, kreads(vKc, 1))
    spread_mem(32, 13, vreads(vVc, 0))
    spread_mem(48, 13, kreads(vKn, 0))
    BAR = int(os.environ.get("BAR", "27"))
    fixed(BAR, 8, [I("s_waitcnt vmcnt(1) lgkmcnt(0)"), ('reset',), I("s_barrier")])
    g = BAR + 1
    dgaps = []
    for so in (sKN, sKO2, sVO, sVO2):
        for d in dma4(so):
            fixed(g, 8, d)
            dgaps.append(g)
            g += 2
    fixed(g, 8, VM(f"buffer_load_dword v{ZT + 40}, v{vL16}, {s(SD, 4)}, s{sPF} offen", "pf"))
    gpf = g
    tail = {15: [WLG("v")], 47: [WLG("v")], 63: []}
    for g_ in (15, 47):
        used[g_] += 4
    used[63] += 4 + 13 + 13
    if var:
        used[31] += 13
    jobs = []

    def job(name, cost, item, e, l, deps=(), later=None):
        jobs.append(dict(name=name, cost=cost, item=item, e=e, l=l, deps=list(deps), later=later))

    job("vo", 4, I(f"s_add_u32 s{sVO}, s{sKN}, {WS_VF - WS_KF}"), 0, BAR - 2)
    job("vo2", 4, I(f"s_add_u32 s{sVO2}, s{sKN}, {WS_VF - WS_KF + 4096}"), 0, BAR - 2)
    job("kn", 12, [I(f"s_cmp_eq_u32 s{sU}, s{sSW2}"), I(f"s_cselect_b32 s{sKO2}, s{sJUMP}, 0x4000"), I(f"s_add_u32 s{sKN}, s{sKN}, s{sKO2}")],
        0, BAR - 1, ["vo", "vo2"])
    job("ko2", 4, I(f"s_add_u32 s{sKO2}, s{sKN}, 4096"), 0, BAR, ["kn"])
    job("m0a", 4, I(f"s_mov_b32 m0, s{sMK}"), 0, BAR)
    job("m0b", 4, I(f"s_add_u32 m0, s{sMK}, 4096"), dgaps[3], dgaps[4] - 1)
    job("m0c", 4, I(f"s_mov_b32 m0, s{sMV}"), dgaps[7], dgaps[8] - 1)
    job("m0d", 4, I(f"s_add_u32 m0, s{sMV}, 4096"), dgaps[11], dgaps[12] - 1)
    job("pfa", 4, I(f"s_add_u32 s{sPF}, s{sPF}, s30"), gpf, 63)
    job("xk", 4, I(f"s_xor_b32 s{sMK}, s{sMK}, 0x8000"), dgaps[4], 63, ["m0b"])
    job("xv", 4, I(f"s_xor_b32 s{sMV}, s{sMV}, 0x8000"), dgaps[12], 63, ["m0d"])
    job("vp", 4, I(f"v_mov_b32 v{vVp}, v{vVc}"), 13, 44)
    job("vc", 4, I(f"v_xor_b32 v{vVc}, 0x8000, v{vVc}"), 45, 63, ["vp"])
    job("kc", 4, I(f"v_xor_b32 v{vKc}, 0x8000, v{vKc}"), 26, 63)
    job("kx", 4, I(f"v_xor_b32 v{vKn}, 0x8000, v{vKn}"), 61, 63)
    job("tl", 4, I(f"s_add_u32 s{sTL}, s{sTL}, 1"), 56, 63)
    job("u", 4, I(f"s_add_u32 s{sU}, s{sU}, 1"), 32, 63)
    for half in range(2):
        G = 8 + 32 * half
        for x in range(2):
            e0 = G + 1 + 8 * x
            pre = f"{half}{x}"
            prev = [f"{half}0chk"] if x == 1 else []
            if diag and half == x:
                for r in range(16):
                    job(f"{pre}mk{r}", 4, I(f"v_min_f32 v{S[x] + r}, v{S[x] + r}, v{MSK + r}"), e0, e0 + 4, prev)
                prev = prev + [f"{pre}mk{r}" for r in range(16)]
            for i, (c, it) in enumerate(sm_max(x)):
                job(f"{pre}m{i}", c, it, e0, e0 + 5, prev + ([f"{pre}m{i - 1}"] if i else []))
            dl = G + 23 + 8 * x
            b_ = S[x]
            if first and half == 0:
                d_ = vT + x
                job(f"{pre}f0", 4, I(f"v_mov_b32 v{d_}, v{vM}"), e0, e0 + 8, [f"{pre}m7"])
                job(f"{pre}f1", 8, [I("s_nop 0"), I(f"v_permlane32_swap_b32 v{vM}, v{d_}")], e0, e0 + 9, [f"{pre}f0"], later=f"{pre}f0")
                job(f"{pre}chk", 12, [I(f"v_max_f32 v{d_}, v{d_}, v{vM}"), I(f"v_ceil_f32 v{d_}, v{d_}"), I(f"v_sub_f32 v{vNM[x]}, 0, v{d_}")],
                    e0, e0 + 10, [f"{pre}f1"], later=f"{pre}f1")
                job(f"{pre}ls", 12, [I(f"v_add_f32 v{vLSV[x]}, v{vLs[x][0]}, v{vLs[x][1]}"), I(f"v_mov_b32 v{vLs[x][0]}, 0"), I(f"v_mov_b32 v{vLs[x][1]}, 0")],
                    e0, e0 + 8)
                for r in range(16):
                    job(f"{pre}s{r}", 4, I(f"v_sub_f32 v{b_ + r}, v{b_ + r}, v{d_}"), e0, dl - 2, [f"{pre}chk", f"{pre}ls"])
                    job(f"{pre}n{r}", 4, I(f"v_mov_b32 v{NEGM[x] + r}, v{vNM[x]}"), e0, dl - 1, [f"{pre}chk"])
            else:
                job(f"{pre}cmp", 4, I(f"v_cmp_lt_f32 vcc, s{sTH[x]}, v{vM}"), e0, e0 + 5, [f"{pre}m7"])
                job(f"{pre}chk", 9, [I(f"s_cbranch_vccnz K2_RARE_{x}_{half}"), I(f"K2_RET{sfx}_{x}_{half}:")],
                    e0, e0 + 6, [f"{pre}cmp"], later=f"{pre}cmp")
            for r in range(16):
                job(f"{pre}e{r}", 8, I(f"v_exp_f32 v{b_ + r}, v{b_ + r}"), e0, dl - 1,
                    [f"{pre}s{r}" if (first and half == 0) else f"{pre}chk"] + ([f"{pre}e{r - 1}"] if r else []))
            for i in range(8):
                f3 = sm_fin(x, half, i)
                job(f"{pre}a{2 * i}", 4, f3[0][1], e0, dl, [f"{pre}e{2 * i + 1}"])
                job(f"{pre}a{2 * i + 1}", 4, f3[1][1], e0, dl, [f"{pre}a{2 * i}"])
                job(f"{pre}c{i}", 4, f3[2][1], e0, dl, [f"{pre}a{2 * i + 1}"])
    if pin is not None:
        for j in jobs:
            if j['name'] in pin:
                j['e'] = j['l'] = pin[j['name']]
            else:
                j['l'] = min(j['l'], 63)
    done = {}
    rest = list(jobs)
    order = list(range(9, NG + 9))
    remaining = sum(j['cost'] for j in jobs)
    for gi, g in enumerate(order):
        gm_ = g % NG
        free_after = sum(max(0, CAP - used[h % NG]) for h in order[gi + 1:])
        while True:
            cand = []
            for j in rest:
                e, l = j['e'], j['l']
                if l < 9 or (e < 9 and j['name'][0] not in "01" and False):
                    e, l = e + NG, l + NG
                if e <= g and all(d in done for d in j['deps']) and (j['later'] is None or done[j['later']] < g):
                    cand.append((l, j))
            if not cand:
                break
            cand.sort(key=lambda z: z[0])
            room = CAP - used[gm_]
            pick = None
            for l, j in cand:
                if j['cost'] <= room:
                    pick = j
                    break
            if pick is None:
                urgent = [j for l, j in cand if l <= g]
                if urgent:
                    pick = urgent[0]
                elif remaining > free_after and room > -4 and room + 4 >= min(j['cost'] for _, j in cand):
                    pick = min((j for _, j in cand), key=lambda j: j['cost'])
                else:
                    break
            alu[g].append(pick['item'])
            used[gm_] += pick['cost']
            remaining -= pick['cost']
            done[pick['name']] = g
            rest.remove(pick)
    assert not rest, [j['name'] for j in rest]
    for j in jobs:
        l = j['l'] + (NG if j['l'] < 9 else 0)
        assert done[j['name']] <= l, (j['name'], done[j['name']], l)
    est = sum(max(32, 8 + u) for u in used)
    if os.environ.get("SCHED"):
        print("loop estimate", est, used)
    wrapped = []
    for g in range(NG, T):
        wrapped += [it for it in alu[g] if "v_" in str(it) and "s_cselect" not in str(it)]
    gm = {}
    for g in range(NG):
        gm[g] = mem[g] + (alu[g + NG] if g + NG < T else []) + alu[g] + tail.get(g, [])
    return gm, wrapped, {n: g for n, g in done.items() if g >= NG}


def rare_ret(L):
    r = f"s_cmp_eq_u32 s{sDG}, 0\ns_cbranch_scc1 K2_RET_{L}\n"
    if L.endswith("_1"):
        r += f"s_cmp_eq_u32 s{sDG}, 2\ns_cbranch_scc1 K2_RETF_{L}\n"
    return r + f"s_branch K2_RETD_{L}"


def rare_path(k, x, buf):
    E = k.emit
    t = vT
    L = f"{x}_{buf}"
    E(f"K2_RARE_{L}:")
    E(f"s_mov_b32 s{sTH[x]}, {fbits(THRESH)}")
    E(f"v_mov_b32 v{t}, v{vM}\ns_nop 1\nv_permlane32_swap_b32 v{vM}, v{t}\ns_nop 1")
    E(f"v_max_f32 v{t}, v{t}, v{vM}\nv_ceil_f32 v{t}, v{t}\nv_max_f32 v{t}, s{sLO[x]}, v{t}")
    E(f"v_sub_f32 v{vNM[x]}, v{vNM[x]}, v{t}")
    for r in range(16):
        E(f"v_sub_f32 v{S[x] + r}, v{S[x] + r}, v{t}")
        E(f"v_mov_b32 v{NEGM[x] + r}, v{vNM[x]}")
    E(f"s_cmp_eq_u32 s{sLO[x]}, 0\ns_cbranch_scc1 K2_RSC_{L}")
    E(f"v_add_f32 v{vLSV[x]}, v{vLs[x][0]}, v{vLs[x][1]}\nv_mov_b32 v{vLs[x][0]}, 0\nv_mov_b32 v{vLs[x][1]}, 0")
    E(f"s_mov_b32 s{sLO[x]}, 0", rare_ret(L))
    E(f"K2_RSC_{L}:")
    E(f"v_sub_f32 v{t + 1}, 0, v{t}\nv_exp_f32 v{t + 1}, v{t + 1}\ns_nop 0")
    E(f"v_mul_f32 v{vLs[x][0]}, v{vLs[x][0]}, v{t + 1}\nv_mul_f32 v{vLs[x][1]}, v{vLs[x][1]}, v{t + 1}")
    for i in range(8):
        p = P(1 - buf, x, i)
        E(f"v_lshlrev_b32 v{t + 2}, 16, v{p}\nv_and_b32 v{t + 3}, 0xffff0000, v{p}")
        E(f"v_mul_f32 v{t + 2}, v{t + 2}, v{t + 1}\nv_mul_f32 v{t + 3}, v{t + 3}, v{t + 1}")
        E(f"v_cvt_pk_bf16_f32 v{p}, v{t + 2}, v{t + 3}")
    E("s_nop 15")
    for r in range(0, 64, 4):
        for i in range(4):
            E(f"v_accvgpr_read_b32 v{t + 2 + i}, a{aO + x * 64 + r + i}")
        for i in range(4):
            E(f"v_mul_f32 v{t + 2 + i}, v{t + 2 + i}, v{t + 1}")
        for i in range(4):
            E(f"v_accvgpr_write_b32 a{aO + x * 64 + r + i}, v{t + 2 + i}")
    E(rare_ret(L))


def ctx_addr(sqb_expr, x_in_addr):
    pass


def hooks(k):
    E = k.emit
    E("K2_EVENT:")
    if MERGE12:
        E(f"s_cmp_lg_u32 s{sU}, 1\ns_cbranch_scc1 K2_EV0")
        E(f"s_cmp_lg_u32 s{sW}, 0\ns_cbranch_scc1 K2_EV0")
        E(f"v_mov_b32 v{vPL}, 1\nv_mov_b32 v{vPL + 1}, 0\ns_mov_b64 exec, 1\nbuffer_store_byte v{vPL}, v{vPL + 1}, {s(SS, 4)}, s{sGP} offen sc0 sc1\ns_mov_b64 exec, -1")
        E("K2_EV0:")
    E(f"s_add_u32 s{sT}, s{sU}, 1\ns_cmp_eq_u32 s{sT}, s{sSW}\ns_cselect_b32 s{sT}, s{sG}, 0\ns_lshl_b32 s{sT}, s{sT}, 14\nv_add_u32 v{vKn}, s{sT}, v{vKn}")
    E(f"s_mov_b32 s{sDG}, 0\ns_cmp_lg_u32 s{sU}, s{sSW}\ns_cbranch_scc1 K2_EV2")
    E(f"s_cmp_eq_u32 s{sG}, 0\ns_cbranch_scc1 K2_SW0")
    E(f"v_add_u32 v{vKc}, 0x4000, v{vKc}\nv_add_u32 v{vVc}, 0x4000, v{vVc}\ns_mov_b32 s{sSW2}, 15\ns_mov_b32 s{sJUMP}, 0x20000000")
    for r in range(64):
        E(f"v_accvgpr_write_b32 a{aQ + r}, v{QBS + r}")
    for r in range(32):
        E(f"v_mov_b32 v{NEGM[0] + r}, 0")
    E(f"v_mov_b32 v{vNM[0]}, 0\nv_mov_b32 v{vNM[1]}, 0")
    for x in range(2):
        E(f"s_mov_b32 s{sTH[x]}, {NINF}\ns_mov_b32 s{sLO[x]}, {NINF}")
    E(f"s_mov_b32 s{sTL}, 17\ns_sub_u32 s{sTD}, 15, s{sPI}\ns_lshl_b32 s{sTD}, s{sTD}, 1\ns_add_u32 s{sTD}, s{sTD}, s{sRS}")
    E("s_branch K2_EV2")
    E("K2_SW0:")
    E(f"s_cmp_eq_u32 s{sU}, 9\ns_cbranch_scc1 K2_SW1")
    E(f"v_and_b32 v{vPL}, 31, v0\nbuffer_load_ubyte v{vPL + 1}, v{vPL}, {s(SS, 4)}, s{sFL} offen sc0 sc1\ns_mov_b32 s{sSW}, 9")
    E(f"s_mov_b32 s{SD}, s28\ns_mov_b32 s{SD + 1}, s29\ns_mov_b32 s{SD + 2}, {4096 * 1024:#x}\ns_lshl_b32 s{sPF}, s2, 1\ns_add_u32 s{sPF}, s{sPF}, s{sW}\ns_lshl_b32 s{sPF}, s{sPF}, 10\ns_mov_b32 s30, 0x80000\ns_branch K2_EV2")
    E("K2_SW1:\ns_waitcnt vmcnt(17)")
    E(f"v_cmp_ne_u32 vcc, 1, v{vPL + 1}\ns_nop 1\ns_cbranch_vccz K2_EV2")
    E(f"K2_FBLP:\ns_sleep 2\nbuffer_load_ubyte v{vPL + 1}, v{vPL}, {s(SS, 4)}, s{sFL} offen sc0 sc1\ns_waitcnt vmcnt(0)")
    E(f"v_cmp_ne_u32 vcc, 1, v{vPL + 1}\ns_nop 1\ns_cbranch_vccnz K2_FBLP")
    E("K2_EV2:")
    E(f"s_cmp_lt_u32 s{sTL}, s{sTD}\ns_cbranch_scc0 K2_EV3")
    E(f"s_cmp_eq_u32 s{sLO[0]}, 0\ns_cbranch_scc1 K2_EV4")
    for x in range(2):
        E(f"s_mov_b32 s{sTH[x]}, {fbits(THRESH)}\ns_mov_b32 s{sLO[x]}, 0")
    E(f"s_add_u32 s{sEV}, s{sU}, 1\ns_mov_b32 s{sDG}, 2\ns_branch K2_SWRETF")
    E("K2_EV4:")
    E(f"s_sub_u32 s{sEV}, s{sTD}, s{sTL}\ns_add_u32 s{sEV}, s{sEV}, s{sU}\ns_cmp_gt_u32 s{sSW}, s{sU}\ns_cselect_b32 s{sT}, s{sSW}, 99\ns_min_u32 s{sEV}, s{sEV}, s{sT}")
    E("s_branch K2_SWRET")
    E("K2_EV3:")
    E(f"s_add_u32 s{sEV}, s{sU}, 1\ns_mov_b32 s{sDG}, 1\ns_cmp_eq_u32 s{sTL}, s{sTD}\ns_cbranch_scc1 K2_SWRETD")
    for r in range(32):
        E(f"v_mov_b32 v{NEGM[0] + r}, v{vNEG}")
    E(f"s_mov_b32 s{sTH[0]}, 0x7f800000\ns_mov_b32 s{sTH[1]}, 0x7f800000\ns_branch K2_SWRETD")
    E("K2_FINB:")
    t = QBS
    E(f"s_cmp_eq_u32 s{sLO[0]}, 0\ns_cbranch_scc1 K2_FB1")
    for x in range(2):
        E(f"v_add_f32 v{vLSV[x]}, v{vLs[x][0]}, v{vLs[x][1]}\nv_mov_b32 v{vLs[x][0]}, 0\nv_mov_b32 v{vLs[x][1]}, 0\nv_sub_f32 v{vNM[x]}, 0, v{vNEG}")
    E("K2_FB1:")
    for x in range(2):
        E(f"v_mov_b32 v{t + 2 * x}, v{vLSV[x]}")
    E("s_nop 1")
    for x in range(2):
        E(f"v_permlane32_swap_b32 v{vLSV[x]}, v{t + 2 * x}")
    E("s_nop 1")
    for x in range(2):
        E(f"v_add_f32 v{t + 2 * x}, v{t + 2 * x}, v{vLSV[x]}\nv_rcp_f32 v{t + 2 * x}, v{t + 2 * x}")
    E(f"s_lshl_b32 s{sT}, s{sPI}, 2\ns_lshl_b32 s{sT2}, s{sRS}, 1\ns_add_u32 s{sT}, s{sT}, s{sT2}")
    for x in range(2):
        E(f"v_mov_b32 v{t + 2 * x + 1}, v{t + 2 * x}")
    E(f"s_mul_i32 s{sT}, s{sT}, {CTXU_STEPS}\ns_lshl_b32 s{sT2}, s{sHD}, 3\ns_add_u32 s{sT}, s{sT}, s{sT2}")
    E(f"s_lshl_b32 s{sT}, s{sT}, 10\ns_add_u32 s{sT}, s{sT}, {WS_CTXU}")
    for i in range(4):
        E(f"v_mov_b32 v{t + 4 + i}, 0")
    for x in range(2):
        for f in range(8):
            b = t + 8 + 8 * (f % 4)
            for i in range(8):
                E(f"v_accvgpr_read_b32 v{b + i}, a{aO + x * 64 + 8 * f + i}")
            if f % 2 == 1:
                E(mfma(('a', aO + x * 64 + 8 * (f - 1)), ('v', t + 4), ('v', t + 4), 0))
            for i in range(4):
                E(f"v_pk_mul_f32 {v(b + 2 * i, 2)}, {v(b + 2 * i, 2)}, {v(t + 2 * x, 2)}")
            for i in range(4):
                E(f"v_cvt_pk_bf16_f32 v{b + i}, v{b + 2 * i}, v{b + 2 * i + 1}")
            E(f"buffer_store_dwordx4 {v(b, 4)}, v{vL16}, {s(SS, 4)}, s{sT} offen offset:{1024 * (f % 4)} sc1")
            if f == 3:
                E(f"s_add_u32 s{sT}, s{sT}, 4096")
            if f == 7 and x == 0:
                E(f"s_add_u32 s{sT}, s{sT}, {CTXU_STEPS * 1024 - 4096}")
    E(f"s_cmp_eq_u32 s{sDG}, 2\ns_cbranch_scc1 K2_FBRETF\ns_branch K2_FBRETD")


QACC = 48
aXN = 0
aWF = 192


def wq_dma(j):
    out = []
    for i in range(4):
        g = []
        if i == 0:
            g += [I(f"s_add_u32 m0, s{sWM}, {j * 16384}"), I(f"s_add_u32 s{sDO}, s{sWQ}, {j * 64 * 8192}")]
        g.append(VM(f"buffer_load_dwordx4 v{vQD + i}, {s(SQ, 4)}, s{sDO} offen offset:{1024 * i} lds", f"wq{j}"))
        out.append(g)
    return out


def xn_loads(j):
    out = []
    for x in range(2):
        for cs in range(4):
            g = []
            if cs == 0:
                g.append(I(f"s_add_u32 s{sDO}, s{sXN}, {x * 32768 + j * 4096}"))
            g.append(VM(f"buffer_load_dwordx4 {a(aXN + (j % 4) * 32 + (x * 4 + cs) * 4, 4)}, v{vL16}, {s(SS, 4)}, "
                        f"s{sDO} offen offset:{1024 * cs}{SC1}", f"xn{j}"))
            out.append(g)
    return out


def znorm():
    ld = [[I(x) for x in (f"s_lshr_b32 s{sGM}, s2, 3", f"s_and_b32 s{sGP}, s2, 7", f"s_lshl_b32 s{sT}, s{sGM}, 1", f"s_add_u32 s{sT}, s{sT}, s{sG}",
                          f"s_lshl_b32 s{sT}, s{sT}, 11", f"s_add_u32 s{sT}, s{sT}, {WS_STAT}", f"v_lshlrev_b32 v{ZT}, 2, v0")]]
    for i in range(0, 8, 2):
        ld.append([VM(f"buffer_load_dword v{ZT + 4 + i + e}, v{ZT}, {s(SS, 4)}, s{sT} offen offset:{256 * (i + e)}{SC1}", "zn") for e in range(2)])
    ld.append([I(x) for x in (f"s_mul_i32 s{sGZ}, s{sGP}, 384", f"s_lshl_b32 s{sT}, s{sGM}, 2", f"s_add_u32 s{sGZ}, s{sGZ}, s{sT}",
                              f"s_add_u32 s{sGZ}, s{sGZ}, s{sW}", f"s_lshl_b32 s{sGZ}, s{sGZ}, 10")])
    for f in range(3):
        ld.append([I(f"s_add_u32 s{sT}, s{sGZ}, {WS_Z2R + f * 128 * 1024}"),
                   VM(f"buffer_load_dwordx4 {v(ZT + 12 + 4 * f, 4)}, v{vL16}, {s(SS, 4)}, s{sT} offen{SC1}", "zn")])
    z = ZT + 4
    AB = ZT + 24
    c = [WVM("zn")]
    c += flat([f"v_add_f32 v{z}, v{z}, v{z + 1}\nv_add_f32 v{z + 2}, v{z + 2}, v{z + 3}\nv_add_f32 v{z + 4}, v{z + 4}, v{z + 5}\nv_add_f32 v{z + 6}, v{z + 6}, v{z + 7}",
               f"v_add_f32 v{z}, v{z}, v{z + 2}\nv_add_f32 v{z + 4}, v{z + 4}, v{z + 6}\nv_add_f32 v{z}, v{z}, v{z + 4}",
               f"v_mul_f32 v{z}, {fbits(1 / 688)}, v{z}\nv_mov_b32 v{z + 1}, v{z}\ns_nop 1\nv_permlane32_swap_b32 v{z}, v{z + 1}\ns_nop 1",
               f"v_fma_f32 v{z + 1}, -v{z}, v{z}, v{z + 1}\nv_max_f32 v{z + 1}, 0, v{z + 1}\nv_add_f32 v{z + 1}, {fbits(LN_EPS)}, v{z + 1}\nv_rsq_f32 v{z + 1}, v{z + 1}\ns_nop 0",
               f"v_mul_f32 v{z}, v{z}, v{z + 1}\nv_sub_f32 v{z}, 0, v{z}",
               f"s_lshl_b32 s{sT}, s{sW}, 8\ns_add_u32 s{sT}, s{sT}, {SPARE}",
               f"v_lshlrev_b32 v{z + 2}, 2, v20\nv_add_u32 v{z + 2}, s{sT}, v{z + 2}"])
    c += [LG(f"ds_write_b32 v{z + 2}, v{z + 1}", "zw"), LG(f"ds_write_b32 v{z + 2}, v{z} offset:128", "zw")]
    c += flat([f"s_lshl_b32 s{sT2}, s{sRS}, 6\ns_add_u32 s{sT}, s{sT}, s{sT2}\nv_lshlrev_b32 v{z + 3}, 5, v21\nv_add_u32 v{z + 3}, s{sT}, v{z + 3}"])
    for i in range(2):
        c += [LG(f"ds_read_b128 {v(AB + 4 * i, 4)}, v{z + 3} offset:{16 * i}", "zr"),
              LG(f"ds_read_b128 {v(AB + 8 + 4 * i, 4)}, v{z + 3} offset:{128 + 16 * i}", "zr")]
    c += flat([f"s_lshl_b32 s{sGP}, s{sGP}, 8\ns_add_u32 s{sGP}, s{sGP}, s{sGM}\ns_add_u32 s{sGP}, s{sGP}, {WS_FLAG2}\ns_nop 0"])
    c += [WLG("zr")]
    for f in range(3):
        for i in range(4):
            x_ = ZT + 12 + 4 * f + i
            c += flat([f"v_lshlrev_b32 v{z}, 16, v{x_}\nv_and_b32 v{z + 1}, 0xffff0000, v{x_}",
                       f"v_fma_f32 v{z}, v{z}, v{AB + 2 * i}, v{AB + 8 + 2 * i}\nv_fma_f32 v{z + 1}, v{z + 1}, v{AB + 2 * i + 1}, v{AB + 9 + 2 * i}",
                       f"v_cvt_pk_bf16_f32 v{x_}, v{z}, v{z + 1}"])
        c += [I(f"s_add_u32 s{sT}, s{sGZ}, {WS_Z2N + f * 128 * 1024}"),
              VM(f"buffer_store_dwordx4 {v(ZT + 12 + 4 * f, 4)}, v{vL16}, {s(SS, 4)}, s{sT} offen sc1", "zs")]
    cg = [c[i:i + 4] for i in range(0, len(c), 4)]
    return ld, cg


def qproj(k):
    E = k.emit
    extra = {}

    def spread(c0, c1, groups):
        n = len(groups)
        for i, g in enumerate(groups):
            extra.setdefault(c0 + (i * (c1 - c0)) // n, []).append(g)

    def rd(c, fb):
        j, cs = c // 4, c % 4
        return [LG(f"ds_read_b64_tr_b16 {a(fb + 4 * d + 2 * sec, 2)}, v{vQR + (j // 4) * 4 + d} "
                   f"offset:{(j % 4) * 16384 + cs * 4096 + sec * 1024}", f"q{c}") for d in range(4) for sec in range(2)]

    def fbuf(c):
        return aWF + (c % 4) * 16

    def mf1(c, d, x):
        j, cs = c // 4, c % 4
        return mfma(('v', QACC + (x * 4 + d) * 16), ('a', fbuf(c) + 4 * d), ('a', aXN + (j % 4) * 32 + (x * 4 + cs) * 4),
                    0 if c == 0 else None)

    zl, zc = znorm()

    def kvpre(base, pre, so, so2, tag="kv"):
        d1, d2 = dma4(so, tag), dma4(so2, tag)
        return [[I(f"s_add_u32 m0, s{sW8}, {base}")] + [I(x) for x in pre] + [d1[0]]] + [[d] for d in d1[1:]] + \
               [[I(f"s_add_u32 m0, s{sW8}, {base + 4096}"), I("s_nop 0"), d2[0]]] + [[d] for d in d2[1:]]

    k0 = kvpre(0, [f"s_add_u32 s{sKO2}, s{sKN}, 4096"], sKN, sKO2, "k0")
    k1 = kvpre(32768, [f"s_add_u32 s{sVO}, s{sKN}, {WS_VF - WS_KF}", f"s_add_u32 s{sVO2}, s{sVO}, 4096",
                       f"s_add_u32 s{sKN}, s{sKN}, 0x4000", f"s_add_u32 s{sKO2}, s{sKN}, 4096"], sKN, sKO2)
    v0_ = kvpre(VB0, ["s_nop 0"], sVO, sVO2)
    q = []
    if MERGE12:
        order_ = ((0, wq_dma(2) + xn_loads(2) + wq_dma(3) + xn_loads(3) + wq_dma(4)), (4, xn_loads(4)), (0, wq_dma(5)), (8, xn_loads(5)),
                  (0, wq_dma(6)), (12, xn_loads(6)), (0, wq_dma(7)), (16, xn_loads(7)), (22, k0 + zl))
    else:
        order_ = ((0, wq_dma(2) + xn_loads(2) + wq_dma(3) + xn_loads(3) + wq_dma(4)), (4, xn_loads(4)), (0, wq_dma(5)), (8, xn_loads(5)),
                  (0, wq_dma(6) + zl), (12, xn_loads(6)), (0, wq_dma(7)), (16, xn_loads(7)), (6, k0), (14, k1))
    for e, grp in order_:
        q += [(e, g) for g in grp]
    RATE = 4
    c_ = 0
    n_ = 0
    for e, g in q:
        if e > c_:
            c_, n_ = e, 0
        extra.setdefault(c_, []).append(g)
        n_ += 1
        if n_ == RATE:
            c_, n_ = c_ + 1, 0
    assert c_ <= 27, c_
    valu = {}
    if not MERGE12:
        for i, g in enumerate(zc):
            valu.setdefault(19 + (i * 8) // len(zc), []).append(g)
    else:
        valu[18] = [[I(f"s_mov_b32 s{sT}, {WS_FP1}")] + poll_all_issue(sW, SS, f"s{sT}", 16, 4, 176)]

    E(WVM("wq0"), "s_barrier")
    stamp(k, 6)
    E(rd(0, fbuf(0)), rd(1, fbuf(1)))
    for c in range(28):
        j, cs = c // 4, c % 4
        n = c + 2
        if n % 4 == 0:
            lstamp(k, 19, 3 * (n // 4))
            E(WLG(f"q{n - 1}"), WVM(f"wq{n // 4}"))
            lstamp(k, 19, 3 * (n // 4) + 1)
            if MERGE12 and n == 24:
                E(poll_all_check(sW, SS, f"s{sT}", 16, 4, 176, 1))
            E("s_barrier")
            if MERGE12 and n == 4:
                E(f"s_lshl_b32 s{sT}, s2, 4\ns_add_u32 s{sT}, s{sT}, {WS_FP1}", flag_set(sW, SS, sT, 176))
        E(WLG(f"q{c}"))
        if cs == 0:
            E(WVM(f"xn{j}"))
            lstamp(k, 19, 3 * j + 2)
        r_ = rd(n, fbuf(n))
        ex, va = extra.get(c, []), valu.get(c, [])
        gm_ = {}
        for i in range(8):
            gm_[i] = [r_[i]] + ([ex[i // 2]] if (i % 2 == 0 and i // 2 < len(ex)) else []) + [va[z] for z in range(len(va)) if (z * 8) // len(va) == i]
        E(place([mf1(c, d, x) for d in range(4) for x in range(2)], gm_))
    E(rd(30, fbuf(30)), rd(31, fbuf(31)))
    E(f"v_mov_b32 v{vT}, {fbits(QSCALE)}\nv_mov_b32 v{vT + 1}, {fbits(QSCALE)}")
    E(f"v_add_u32 v{vT + 2}, s{sW8}, v{vL16}\nv_add_u32 v{vT + 3}, {SPARE}, v{vT + 2}\nv_add_u32 v{vT + 2}, {VB0 + 32768}, v{vT + 2}")
    E(WVM("xn7"), WLG0, "s_barrier")

    def epi(d, x):
        out = []
        for g in range(2):
            b = QACC + (x * 4 + d) * 16 + 8 * g
            out.append([I(f"v_mul_f32 v{b + i}, v{vT}, v{b + i}") for i in range(8)])
            out.append([I(f"v_cvt_pk_bf16_f32 v{b + i}, v{b + 2 * i}, v{b + 2 * i + 1}") for i in range(4)] +
                       [LG(f"ds_write_b128 v{vT + 3 - x}, {v(b, 4)} offset:{(2 * d + g) * 1024}")])
        return out

    tiles = [(d, x) for x in range(2) for d in range(4)]
    for i, (d, x) in enumerate(tiles):
        m = [mf1(c, d, x) for c in range(28, 32)]
        kv2 = (k1 + v0_)[2 * i:2 * i + 2] if MERGE12 else [v0_[i], []]
        if i == 0:
            E(m[0], kv2[0], m[1], m[2], kv2[1], m[3])
        else:
            e = epi(*tiles[i - 1])
            E(m[0], kv2[0], m[1], e[0], e[1], m[2], kv2[1], e[2], m[3], e[3])
    stamp(k, 7)
    E("s_nop 15")
    E(epi(*tiles[-1]))
    E(WVM("k0"), WVM("zs"), WLG0, "s_barrier")
    if not MERGE12:
        E(flag_set(sW, SS, sGP, ZT))
    k.zc = zc
    E(f"s_lshl_b32 s{sT}, s{sRS}, 13\nv_add_u32 v{vT + 4}, s{sT}, v{vL16}")
    E(f"v_add_u32 v{vT + 5}, {SPARE}, v{vT + 4}\nv_add_u32 v{vT + 4}, {VB0 + 32768}, v{vT + 4}")
    E(kreads(vKc, 0))
    for x in range(2):
        for f in range(8):
            E(LG(f"ds_read_b128 {a(aQ + (x * 8 + f) * 4, 4)}, v{vT + 3 - x} offset:{f * 1024}"))
    for x in range(2):
        for f in range(8):
            E(LG(f"ds_read_b128 {v(QBS + (x * 8 + f) * 4, 4)}, v{vT + 5 - x} offset:{f * 1024}"))


ZRING = (('v', 144), ('v', 192), ('a', 128), ('a', 176))
vWS = 48
vPD = 32
vPR = 40
NGS = 5


def g_slot(st):
    return (0, 1, 3, 2, 4)[st % NGS] * 32768


def zreg(st, i):
    kind, base = ZRING[st % 4]
    return (kind, base + i * 4)


def sprinkle(items, groups):
    items = flat(items)
    n, m = len(items), len(groups)
    out, gi = [], 0
    for i, it in enumerate(items):
        while gi < m and gi * n <= i * m:
            out.append(groups[gi])
            gi += 1
        out.append(it)
    return flat(out + groups[gi:])


def g_dma(st):
    out = []
    for i in range(8):
        g = []
        if i % 4 == 0:
            g += [I(f"s_add_u32 m0, s{sW8}, {g_slot(st) + (i // 4) * 4096}"), I(f"s_add_u32 s{sDO}, s{sGP}, {st * 128}")]
        g.append(VM(f"buffer_load_dwordx4 v{vPD + i}, {s(SP, 4)}, s{sDO} offen offset:{1024 * (i % 4)} lds", f"g{st}"))
        out.append(g)
    return out


def g_zl(st):
    out = []
    for f in range(3):
        for ks in range(4):
            g = []
            if ks == 0:
                g.append(I(f"s_add_u32 s{sGM}, s{sGZ}, {f * 128 * 1024 + st * 4096}"))
            g.append(VM(f"buffer_load_dwordx4 {R(zreg(st, f * 4 + ks), 4)}, v{vL16}, {s(SS, 4)}, "
                        f"s{sGM} offen offset:{1024 * ks} sc1", f"g{st}"))
            out.append(g)
    return out


def g_setup():
    o = [f"v_lshrrev_b32 v{ZT + 32}, 4, v0\nv_lshrrev_b32 v{ZT + 33}, 3, v0\nv_lshlrev_b32 v{ZT + 33}, 12, v{ZT + 33}\nv_and_b32 v{ZT + 34}, 7, v0\nv_xor_b32 v{ZT + 34}, v{ZT + 34}, v{ZT + 32}",
         f"v_lshl_add_u32 v{ZT + 35}, v{ZT + 34}, 4, v{ZT + 33}\nv_xor_b32 v{ZT + 34}, 4, v{ZT + 34}\nv_lshl_add_u32 v{ZT + 36}, v{ZT + 34}, 4, v{ZT + 33}"]
    for i in range(8):
        o.append(f"v_add_u32 v{vPD + i}, {i * 8 * 4096 - (i % 4) * 1024}, v{ZT + 35 + (i % 2)}")
    o.append(f"v_lshrrev_b32 v{ZT + 32}, 5, v0\nv_bfe_u32 v{ZT + 33}, v0, 1, 3\nv_xor_b32 v{ZT + 33}, v{ZT + 33}, v{ZT + 32}")
    o.append(f"v_and_b32 v{ZT + 34}, 31, v0\nv_lshlrev_b32 v{ZT + 34}, 7, v{ZT + 34}\nv_add_u32 v{ZT + 34}, s{sW8}, v{ZT + 34}")
    for ks in range(4):
        o.append(f"v_xor_b32 v{ZT + 35}, {2 * ks}, v{ZT + 33}\nv_lshl_add_u32 v{vPR + ks}, v{ZT + 35}, 4, v{ZT + 34}\nv_add_u32 v{vPR + 4 + ks}, 0x10000, v{vPR + ks}")
    o.append(f"s_lshl_b32 s{sGP}, s{sHD}, 18\ns_lshl_b32 s{sDO}, s{sW}, 10\ns_add_u32 s{sGP}, s{sGP}, s{sDO}")
    o.append(f"s_mul_i32 s{sGZ}, s{sPI}, 384\ns_lshl_b32 s{sGM}, s{sW}, 5\ns_add_u32 s{sGZ}, s{sGZ}, s{sGM}")
    o.append(f"s_lshl_b32 s{sGZ}, s{sGZ}, 10\ns_add_u32 s{sGZ}, s{sGZ}, {WS_Z2N}")
    return o


def merge(k, keep):
    E = k.emit
    send = 1 - keep
    t = vT
    wr = [LG(f"ds_write_b128 v{t + 4 + i // 8}, {a(aO + send * 64 + 4 * i, 4)} offset:{(i % 8) * 1024}") for i in range(16)]
    E(LG(f"ds_read_b64 {v(t + 8, 2)}, v{t + 4}", "mb"))
    d0, d1 = g_dma(0), g_dma(1)
    E(weave(pv(send, 1), d0, 0, 8))
    E(WLG("mb"))
    fac = [f"v_min_f32 v{t}, v{vNM[keep]}, v{t + 8}", f"v_sub_f32 v{t + 2}, v{t}, v{vNM[keep]}", f"v_sub_f32 v{t + 8}, v{t}, v{t + 8}",
           f"v_exp_f32 v{t + 2}, v{t + 2}", f"v_exp_f32 v{t + 8}, v{t + 8}", "s_nop 0",
           f"v_mul_f32 v{t}, v{vLs[keep][0]}, v{t + 2}", f"v_fmac_f32 v{t}, v{t + 9}, v{t + 8}", f"v_rcp_f32 v{t}, v{t}", "s_nop 0",
           f"v_mul_f32 v{t + 2}, v{t + 2}, v{t}", f"v_mul_f32 v{t + 8}, v{t + 8}, v{t}", f"v_mov_b32 v{t + 3}, v{t + 2}", f"v_mov_b32 v{t + 9}, v{t + 8}"]
    m = pv(keep, 1)
    E(m[0], d1[0], fac[:6], m[1], d1[1], fac[6:], weave(m[2:], interleave2(wr, d1[2:]), 0, 6))
    E(WLG0, "s_barrier")
    RX = S[0]
    for i in range(16):
        E(LG(f"ds_read_b128 {v(RX + 4 * i, 4)}, v{t + 6 + i // 8} offset:{(i % 8) * 1024}", f"rx{i}"))
    body = []
    for f in range(8):
        b = RX + 8 * f
        body += [I(f"v_accvgpr_read_b32 v{PB + i}, a{aO + keep * 64 + 8 * f + i}") for i in range(8)]
        body += [WLG(f"rx{2 * f + 1}")]
        body += [I(f"v_pk_mul_f32 {v(b + 2 * i, 2)}, {v(b + 2 * i, 2)}, {v(t + 8, 2)}") for i in range(4)]
        body += [I(f"v_pk_fma_f32 {v(b + 2 * i, 2)}, {v(PB + 2 * i, 2)}, {v(t + 2, 2)}, {v(b + 2 * i, 2)}") for i in range(4)]
        body += [I(f"v_cvt_pk_bf16_f32 v{PB + 8 + 4 * (f % 4) + i}, v{b + 2 * i}, v{b + 2 * i + 1}") for i in range(4)]
        body += [VM(f"buffer_store_dwordx4 {v(PB + 8 + 4 * (f % 4), 4)}, v{vL16}, {s(SS, 4)}, s{sT if f < 4 else sT2} offen offset:{1024 * (f % 4)} sc1", "cs")]
    E(sprinkle(body, g_zl(1)))


def interleave2(x, y):
    out = []
    n = max(len(x), len(y))
    for i in range(n):
        out += x[(i * len(x)) // n:((i + 1) * len(x)) // n] + y[(i * len(y)) // n:((i + 1) * len(y)) // n]
    return out


def gphase(k):
    E = k.emit

    def reads(st):
        o = g_slot(st)
        sg, off = (0, o) if o < 65536 else (1, o - 65536)
        out = []
        for ks in range(4):
            for ts in range(2):
                if off + ts * 4096 < 65536:
                    out.append(LG(f"ds_read_b128 {v(vWS + (st % 2) * 32 + (ts * 4 + ks) * 4, 4)}, v{vPR + sg * 4 + ks} "
                                  f"offset:{off + ts * 4096}", f"p{st}"))
                else:
                    out.append(LG(f"ds_read_b128 {v(vWS + (st % 2) * 32 + (ts * 4 + ks) * 4, 4)}, v{ZT + 40 + ks} "
                                  f"offset:{off - 65536 + ts * 4096}", f"p{st}"))
        return out

    def mf(st):
        return [mfma(('a', (ts * 3 + f) * 16), zreg(st, f * 4 + ks),
                     ('v', vWS + (st % 2) * 32 + (ts * 4 + ks) * 4), 0 if (st == 0 and ks == 0) else None)
                for ks in range(4) for f in range(3) for ts in range(2)]

    for ks in range(4):
        E(f"v_add_u32 v{ZT + 40 + ks}, 0x20000, v{vPR + ks}")
    E("s_barrier")
    E(WVM("g0"))
    stamp(k, 10)
    E(reads(0))
    sched = {st: g_dma(st + 2) + g_zl(st + 2) for st in range(6)}
    for st in range(8):
        E(WLG(f"p{st}"))
        ld = sched.get(st, [])
        m = mf(st)
        n1 = (len(ld) * 14) // 24
        first = weave(m[:14], ld[:n1], 0, 14)
        second = ([WVM(f"g{st + 1}")] + weave(m[14:], interleave2(reads(st + 1), ld[n1:]), 0, 9)) if st + 1 < 8 else m[14:]
        if st == 6:
            fin = flat([f"s_lshl_b32 s{sT}, s{sHD}, 1\ns_add_u32 s{sT}, s{sT}, s{sG}",
                        f"s_mul_i32 s{sT2}, s{sPI}, 6\ns_mul_i32 s{sGP}, s{sRS}, 3\ns_add_u32 s{sT2}, s{sT2}, s{sGP}",
                        f"s_mul_i32 s{sGP}, s{sT}, 48\ns_add_u32 s{sGP}, s{sGP}, s{sT2}\ns_lshl_b32 s{sGP}, s{sGP}, 10\ns_add_u32 s{sGP}, s{sGP}, {WS_Z1}",
                        f"s_mul_i32 s{sGZ}, s{sT}, {CTXU_STEPS}\ns_add_u32 s{sGZ}, s{sGZ}, s{sT2}\ns_add_u32 s{sGZ}, s{sGZ}, 256",
                        f"s_lshl_b32 s{sGZ}, s{sGZ}, 10\ns_add_u32 s{sGZ}, s{sGZ}, {WS_CTXU}",
                        f"s_lshl_b32 s{sT}, s{sT}, 6\nv_and_b32 v21, 31, v0\nv_lshlrev_b32 v21, 1, v21"])
            fin += [VM(f"buffer_load_dwordx4 {v(4 + 4 * i, 4)}, v{vL16}, {s(SS, 4)}, s{sGP} offen offset:{1024 * i}{SC1}", "fin") for i in range(3)]
            fin += [VM(f"buffer_load_ushort v16, v21, {s(SB, 4)}, s{sT} offen", "fin")]
            fin += flat([f"s_mov_b32 s{SD}, s100\ns_mov_b32 s{SD + 1}, s101\ns_mov_b32 s{SD + 2}, {688 * 1024:#x}\ns_lshl_b32 s{sPF}, s2, 2\ns_add_u32 s{sPF}, s{sPF}, s{sW}\ns_lshl_b32 s{sPF}, s{sPF}, 10"])
            fin += [VM(f"buffer_load_dword v{ZT + 32}, v{vL16}, {s(SD, 4)}, s{sPF} offen", "pf")]
            fin += flat([f"v_add_u32 v20, s{sW8}, v{vL16}\nv_add_u32 v21, 0x10000, v20\ns_lshl_b32 s{sT}, s{sW}, 15\nv_add_u32 v25, s{sT}, v{vL16}"])
            for j in range(1, 4):
                fin += flat([f"s_add_u32 s{sT}, s{sW}, {j}\ns_and_b32 s{sT}, s{sT}, 3\ns_lshl_b32 s{sT}, s{sT}, 13\nv_add_u32 v{21 + j}, s{sT}, v25"])
            first = weave(m[:14], [fin[i:i + 3] for i in range(0, len(fin), 3)], 0, 14)
        if MERGE23 and st == 2:
            E(WVM("cs"), "s_barrier")
            E(f"s_lshl_b32 s{sT}, s{sPI}, 5\ns_add_u32 s{sT}, s{sT}, s{sHD}\ns_lshl_b32 s{sT}, s{sT}, 4\ns_add_u32 s{sT}, s{sT}, {WS_FCTX}")
            E(flag_set(sW, SS, sT, 17))
        if MERGE23 and st == 7:
            E(f"s_bfe_u32 s{sT}, s2, 0x10002\ns_lshl_b32 s{sT}, s{sT}, 3\ns_bfe_u32 s{sT2}, s2, 0x30003\ns_add_u32 s{sT}, s{sT}, s{sT2}\ns_sub_u32 s{sT2}, 15, s{sT}\ns_min_u32 s{sT}, s{sT}, s{sT2}")
            E(f"s_lshl_b32 s{sT}, s{sT}, 9\ns_and_b32 s{sT2}, s2, 3\ns_lshl_b32 s{sT2}, s{sT2}, 7\ns_add_u32 s{sT}, s{sT}, s{sT2}\ns_add_u32 s{sFL}, s{sT}, {WS_FCTX}")
            E(wave0(sW, [I("v_and_b32 v17, 7, v0"), I("v_lshlrev_b32 v17, 4, v17"),
                         VMG(f"buffer_load_ubyte v18, v17, {s(SS, 4)}, s{sFL} offen sc0 sc1", "poll")]))
        lstamp(k, 19, 32 + 3 * st)
        E(first)
        lstamp(k, 19, 33 + 3 * st)
        E(second[:1])
        lstamp(k, 19, 34 + 3 * st)
        E(second[1:])
    stamp(k, 11)
    E("s_nop 7")
    for d in range(4):
        E(f"s_cmp_eq_u32 s{sW}, {d}\ns_cbranch_scc1 K2_GO{d}")
        for i in range(3):
            fr = 3 * d + i
            for q in range(2):
                E(f"ds_write_b128 v{20 + d // 2}, {a(fr * 8 + 4 * q, 4)} offset:{(d % 2) * 32768 + (i * 2 + q) * 1024}")
        E(f"s_branch K2_GN{d}\nK2_GO{d}:")
        for i in range(3):
            for r in range(8):
                E(f"v_accvgpr_read_b32 v{48 + i * 32 + r}, a{(3 * d + i) * 8 + r}")
        E(f"K2_GN{d}:")
    if MERGE23:
        E(flag_poll_check(sW, SS, sFL, 17))
    E(WLG0, "s_barrier")
    for i in range(3):
        for j in range(1, 4):
            for q in range(2):
                E(LG(f"ds_read_b128 {v(48 + i * 32 + j * 8 + q * 4, 4)}, v{21 + j} offset:{(i * 2 + q) * 1024}", f"x{i}"))
    E(WVM("fin"), "v_lshlrev_b32 v16, 16, v16")
    for i in range(3):
        E(WLG(f"x{i}"))
        b = 48 + i * 32
        for r in range(8):
            E(f"v_add_f32 v{b + r}, v{b + r}, v{b + 8 + r}\nv_add_f32 v{b + 16 + r}, v{b + 16 + r}, v{b + 24 + r}")
        for r in range(8):
            E(f"v_add_f32 v{b + r}, v{b + r}, v16")
        for r in range(8):
            E(f"v_add_f32 v{b + r}, v{b + r}, v{b + 16 + r}")
        for r in range(4):
            z = 4 + 4 * i + r
            E(f"v_lshlrev_b32 v26, 16, v{z}\nv_and_b32 v27, 0xffff0000, v{z}")
            E(f"v_mul_f32 v{b + 2 * r}, v{b + 2 * r}, v26\nv_mul_f32 v{b + 2 * r + 1}, v{b + 2 * r + 1}, v27")
        for r in range(4):
            E(f"v_cvt_pk_bf16_f32 v{b + r}, v{b + 2 * r}, v{b + 2 * r + 1}")
        E(VM(f"buffer_store_dwordx4 {v(b, 4)}, v{vL16}, {s(SS, 4)}, s{sGZ} offen offset:{1024 * i} sc1", "us"))


def build(k=None):
    merged = k is not None
    if not merged:
        k = Kern("k2_kernel")
    E = k.emit
    if not merged:
        E("s_cmp_ge_u32 s2, 256\ns_cbranch_scc1 K2_END")
        code_prefetch(k, "L_CODE_END" if MERGE23 else "k3_kernel", 0, 248)
    stamp_init(k)
    stamp(k, 0)
    E(f"s_load_dwordx2 s[64:65], s[0:1], {KA_WQ}")
    E(f"s_load_dwordx4 s[72:75], s[0:1], {KA_DBG}")
    E(f"s_load_dwordx4 s[68:71], s[0:1], {KA_WSP}")
    if not merged:
        E("v_lshrrev_b32 v1, 6, v0\nv_and_b32 v0, 63, v0")
    E(f"s_and_b32 s{sHD}, s2, 7\ns_lshl_b32 s{sHD}, s{sHD}, 2\ns_lshr_b32 s{sT}, s2, 3\ns_lshr_b32 s{sPI}, s{sT}, 2")
    if not merged:
        E(f"v_readfirstlane_b32 s{sW}, v1")
    E(f"s_and_b32 s{sT}, s{sT}, 3\ns_add_u32 s{sHD}, s{sHD}, s{sT}")
    E(f"s_and_b32 s{sRS}, s{sW}, 1\ns_lshr_b32 s{sG}, s{sW}, 1\ns_lshl_b32 s{sW8}, s{sW}, 13")
    E(f"v_lshlrev_b32 v{vL16}, 4, v0")
    E("v_and_b32 v20, 31, v0\nv_lshrrev_b32 v21, 5, v0\nv_lshrrev_b32 v22, 4, v0")
    E("v_bfe_u32 v23, v0, 2, 2\nv_and_b32 v24, 3, v0\nv_bfe_u32 v25, v0, 4, 1")
    E("v_xor_b32 v26, v23, v22\nv_lshlrev_b32 v27, 13, v22\nv_lshl_add_u32 v27, v26, 6, v27\nv_lshl_add_u32 v27, v24, 4, v27")
    for i in range(4):
        E(f"v_add_u32 v{vQD + i}, {i * (32768 - 1024)}, v27")
    E(f"s_sub_u32 s{sT}, 15, s{sPI}\ns_cmp_eq_u32 s{sG}, 0\ns_cselect_b32 s{sT}, s{sT}, s{sPI}")
    E(f"s_lshl_b32 s{sTD}, s{sT}, 1\ns_add_u32 s{sTD}, s{sTD}, s{sRS}\ns_lshl_b32 s{sXN}, s{sTD}, 16\ns_add_u32 s{sXN}, s{sXN}, {WS_XN}")
    E(f"s_lshl_b32 s{sWQ}, s{sW}, 17\ns_lshl_b32 s{sT}, s{sHD}, 8\ns_add_u32 s{sWQ}, s{sWQ}, s{sT}\ns_lshl_b32 s{sWM}, s{sW}, 12")
    E("s_waitcnt lgkmcnt(0)")
    E(srd(SQ, 64, 512 * 8192), srd(SS, 74, WS_SIZE))
    if not merged:
        for j in range(2):
            E(wq_dma(j), xn_loads(j))
    E(srd(SP, 68, 2048 * 4096), srd(SB, 70, 4096), srd(SD, 68, 2048 * 4096))
    E("v_lshl_add_u32 v26, v21, 3, v23\nv_lshlrev_b32 v26, 8, v26\nv_lshl_add_u32 v26, v25, 5, v26\nv_lshl_add_u32 v26, v24, 3, v26")
    for d in range(4):
        E(f"v_xor_b32 v27, {d}, v23\nv_lshl_add_u32 v{vQR + d}, v27, 6, v26\nv_add_u32 v{vQR + 4 + d}, 0x10000, v{vQR + d}")
    E(f"v_mov_b32 v{vKc}, v{vL16}\nv_add_u32 v{vKn}, 32768, v{vKc}\nv_add_u32 v{vVc}, {VB0}, v{vKc}\nv_mov_b32 v{vVp}, v{vVc}")
    E(f"v_lshlrev_b32 v26, 2, v21\nv_sub_u32 v{vD0}, v20, v26\nv_mov_b32 v{vNEG}, {fbits(NEG)}")
    E(f"s_lshl_b32 s{sKN}, s{sHD}, 19\ns_lshl_b32 s{sT}, s{sRS}, 13\ns_add_u32 s{sKN}, s{sKN}, s{sT}\ns_add_u32 s{sKN}, s{sKN}, {WS_KF}")
    E(f"s_lshl_b32 s{sT}, s{sPI}, 1\ns_add_u32 s{sT}, s{sT}, 2\ns_sub_u32 s{sT2}, 18, s{sT}\ns_lshl_b32 s{sT2}, s{sT2}, 14")
    E(f"s_sub_u32 s{sT2}, s{sT2}, 0x20000000\ns_sub_u32 s{sSW2}, s{sT}, 2\ns_lshl_b32 s{sU}, s{sG}, 29\ns_add_u32 s{sKN}, s{sKN}, s{sU}")
    E(f"s_cmp_eq_u32 s{sG}, 0\ns_cselect_b32 s{sSW}, 8, s{sT}\ns_cselect_b32 s{sJUMP}, 0x20000000, s{sT2}\ns_cselect_b32 s{sSW2}, 15, s{sSW2}")
    E(f"s_lshl_b32 s{sFL}, s{sPI}, 8\ns_add_u32 s{sFL}, s{sFL}, {WS_FLAG2}\ns_lshl_b32 s{sPF}, s2, 2\ns_add_u32 s{sPF}, s{sPF}, s{sW}\ns_lshl_b32 s{sPF}, s{sPF}, 10\ns_mov_b32 s30, 0x100000")
    E(f"s_load_dwordx2 s[28:29], s[0:1], {KA_WO}\ns_load_dwordx2 s[100:101], s[0:1], {KA_WOUT}\ns_waitcnt lgkmcnt(0)")
    if "nowsp" in EXP:
        E(f"s_mov_b32 s{sPF}, 0x1000000")
    if merged:
        import k1
        E(f"s_mov_b32 s98, 0x20000000\ns_cmp_eq_u32 s{sG}, 1\ns_cbranch_scc1 K2_ZE2")
        st0 = (list(k.vm), list(k.lg))
        E(k1.z_epilogue(False, SS, vL16, 20, 21, sRS, 0), "s_branch K2_ZE")
        k.set_state(*st0)
        E("K2_ZE2:")
        E(k1.z_epilogue(True, SS, vL16, 20, 21, sRS, 0))
        E("K2_ZE:")
        E("s_barrier")
        for j in range(2):
            E(wq_dma(j), xn_loads(j))
    stamp(k, 5)
    rstamp(k, 19, 24)
    qproj(k)
    if MERGE12:
        E(WLG0, "s_barrier")
        E("v_and_b32 v20, 31, v0\nv_lshrrev_b32 v21, 5, v0", k.zc)
    E(VM(f"buffer_load_dword v{ZT + 40}, v{vL16}, {s(SD, 4)}, s{sPF} offen", "pf"), f"s_add_u32 s{sPF}, s{sPF}, s30")
    gm, wrapped, pin = schedule_loop()
    gmd, wrapped_d, pin_d = schedule_loop('D', pin)
    gmf, wrapped_f, pin_f = schedule_loop('F', pin)
    assert pin == pin_d and pin == pin_f
    wtxt = [it[1] for it in flat(wrapped)]
    for r in range(16):
        E(f"v_mov_b32 v{P(1, 0) + r}, 0\nv_mov_b32 v{NEGM[0] + r}, 0\nv_mov_b32 v{NEGM[1] + r}, 0")
        late = f"v_exp_f32 v{S[1] + r}, v{S[1] + r}" in wtxt
        E(f"v_mov_b32 v{S[1] + r}, {'v%d' % vNEG if late else '0'}")
    assert not any(f"v{S[0] + r}," in w or w.endswith(f"v{S[0] + r}") for w in wtxt for r in range(16))
    for r in (8, 9, 10, 11, 12, 13):
        E(f"v_mov_b32 v{r}, 0")
    E(f"v_mov_b32 v{vT}, 0x7f800000")
    for r0 in range(0, 16, 4):
        for r in range(r0, r0 + 4):
            E(f"v_cmp_gt_i32 s[{64 + 2 * (r % 4)}:{65 + 2 * (r % 4)}], {8 * (r // 4) + r % 4}, v{vD0}\nv_mov_b32 v{NEGB + r}, v{vNEG}")
        for r in range(r0, r0 + 4):
            E(f"v_cndmask_b32 v{MSK + r}, v{vT}, v{vNEG}, s[{64 + 2 * (r % 4)}:{65 + 2 * (r % 4)}]")
    E(f"s_mov_b32 s{sEV}, 0\ns_mov_b32 s{sDG}, 0")
    for x in range(2):
        E(f"s_mov_b32 s{sTH[x]}, {NINF}\ns_mov_b32 s{sLO[x]}, {NINF}")
    for i in range(8):
        E(mfma(('a', aO + 16 * i), ('v', P(1, 0)), ('v', P(1, 0)), 0))
    E(f"s_mov_b32 s{sU}, 0\ns_mov_b32 s{sTL}, 0\ns_mov_b32 s{sMK}, s{sW8}\ns_add_u32 s{sMV}, s{sW8}, {VB0 + 32768}")
    E(WLG0)
    stamp(k, 1)
    rstamp(k, 19, 26)
    dstamp(k, 4)
    def body(gm_, sf):
        diag = sf == "D"
        k.set_state(["kv"] * 16 + ["pf"], ["k"] * 8)
        main = qk(0) + qk(1) + pv(0, 1) + pv(1, 1) + qk(0, NEGB if diag else None) + qk(1) + pv(0, 0) + pv(1, 0)
        gm_[-1] = [I(f"K2_SWRET{sf}:"), WLG("k")]
        if sf:
            gm_[31] = gm_[31] + [I(f"s_cmp_eq_u32 s{sU}, s{sSW}"), I("s_cbranch_scc1 K2_FINB"), I(f"K2_FBRET{sf}:")]
        gm_[63] = gm_[63] + [I(f"s_cmp_lt_u32 s{sU}, 17"), I("s_cbranch_scc1 K2_LOOP")]
        bd = place(main, gm_)

        def drop(it):
            tx = it[1] if len(it) > 1 and isinstance(it[1], str) else ""
            if "nodma" in EXP and ("buffer_load" in tx): return True
            if "nobar" in EXP and tx == "s_barrier": return True
            if "nowait" in EXP and ("s_waitcnt" in tx or it[0] in ('wlg',)): return True
            if "noread" in EXP and tx.startswith("ds_read"): return True
            if "nobr" in EXP and ("K2_RARE" in tx or "K2_FINB" in tx): return True
            return False
        E([it for it in bd if not drop(it)])

    E(".p2align 6")
    for _ in range(int(os.environ.get("PAD", "0"))):
        E("s_nop 0")
    E("K2_LOOP:")
    if PROF and os.environ.get("PROF2"):
        E("s_memtime s[78:79]", "s_waitcnt lgkmcnt(0)", f"s_mov_b32 m0, s{sU}", "s_nop 0", "v_writelane_b32 v255, s78, m0")
    E(f"s_cmp_eq_u32 s{sU}, s{sEV}\ns_cbranch_scc1 K2_EVENT")
    body(gm, '')
    E("K2_TAIL:")
    stamp(k, 8)
    rstamp(k, 19, 28)
    dstamp(k, 5)
    if PROF:
        E(f"s_lshl_b32 s78, s2, 2\ns_add_u32 s78, s78, s{sW}\ns_lshl_b32 s78, s78, 8\ns_add_u32 s78, s78, {WS_PROF + 0x100000}\nv_lshlrev_b32 v254, 2, v0")
        E(f"buffer_store_dword v255, v254, {s(SS, 4)}, s78 offen")
    E(vreads(vVp, 1))
    gs = g_setup()
    E(gs[-2:])
    t = vT
    tl = flat(wrapped)
    for x in range(2):
        tl += flat([f"v_add_f32 v{vLs[x][0]}, v{vLs[x][0]}, v{vLs[x][1]}"])
    for x in range(2):
        tl += flat([f"v_mov_b32 v{vLs[x][1]}, v{vLs[x][0]}"])
    tl += flat([f"v_add_u32 v{t + 4}, s{sW8}, v{vL16}\nv_and_b32 v{t + 5}, 0x18000, v{vVp}"])
    for x in range(2):
        tl += flat([f"v_permlane32_swap_b32 v{vLs[x][0]}, v{vLs[x][1]}"])
    tl += flat([f"v_add_u32 v{t + 5}, v{t + 5}, v{t + 4}\nv_add_u32 v{t + 4}, {SPARE}, v{t + 4}"])
    for x in range(2):
        tl += flat([f"v_add_f32 v{vLs[x][0]}, v{vLs[x][0]}, v{vLs[x][1]}"])
    tl += [[I(f"s_cmp_eq_u32 s{sG}, 0"), I("s_cselect_b64 vcc, -1, 0")]]
    tl += flat([f"v_xor_b32 v{t + 6}, 0x4000, v{t + 4}\nv_xor_b32 v{t + 7}, 0x4000, v{t + 5}",
                f"v_cndmask_b32 v{t + 8}, v{vNM[0]}, v{vNM[1]}, vcc\nv_cndmask_b32 v{t + 9}, v{vLs[0][0]}, v{vLs[1][0]}, vcc"])
    tl += [LG(f"ds_write_b64 v{t + 6}, {v(t + 8, 2)}")]
    tl += flat(gs[:-2])
    tl += flat([f"s_sub_u32 s{sT}, 15, s{sPI}\ns_lshl_b32 s{sT}, s{sT}, 2\ns_lshl_b32 s{sT2}, s{sRS}, 1\ns_add_u32 s{sT}, s{sT}, s{sT2}\ns_add_u32 s{sT}, s{sT}, s{sG}",
                f"s_mul_i32 s{sT}, s{sT}, {CTXU_STEPS}\ns_lshl_b32 s{sT2}, s{sHD}, 3\ns_add_u32 s{sT}, s{sT}, s{sT2}",
                f"s_lshl_b32 s{sT}, s{sT}, 10\ns_add_u32 s{sT}, s{sT}, {WS_CTXU}\ns_add_u32 s{sT2}, s{sT}, 4096"])
    zz = g_zl(0)
    out_, gi = [], 0
    for i, it in enumerate(tl):
        while gi < len(zz) and gi * len(tl) <= i * len(zz):
            out_.append(zz[gi])
            gi += 1
        out_.append(it)
    E(out_, zz[gi:])
    E(WVM("pf"), WLG0, "s_barrier")
    E(f"s_cmp_eq_u32 s{sG}, 1\ns_cbranch_scc1 K2_MERGE1")
    st = (list(k.vm), list(k.lg))
    merge(k, 0)
    E("s_branch K2_G")
    k.set_state(*st)
    E("K2_MERGE1:")
    merge(k, 1)
    E("K2_G:")
    stamp(k, 3)
    gphase(k)
    if PROF and not MERGE23:
        E(WVM0)
    stamp(k, 4)
    rstamp(k, 19, 30)
    dstamp(k, 6)
    lstamp_store(k, 1, 19, 28, SS, sW)
    if PROF:
        E(f"s_mov_b32 s95, s{sPI}")
    stamp_store(k, 1, SS, sW, 208)
    if MERGE23:
        import k3
        E(f"s_mov_b64 exec, -1\ns_lshl_b32 s{sT}, s{sHD}, 3\ns_add_u32 s{sT}, s{sT}, s{sPI}\ns_lshl_b32 s{sT}, s{sT}, 4\ns_add_u32 s50, s{sT}, {WS_FU}")
        k3.build(k)
    E("K2_END:")
    E("s_endpgm")
    for x in range(2):
        for buf in range(2):
            rare_path(k, x, buf)
    hooks(k)
    body(gmd, 'D')
    E("s_branch K2_TAIL")
    body(gmf, 'F')
    E("s_branch K2_TAIL")
    if merged:
        return
    return k.text(512, 256)
```

```python
from asmlib import *
from common import *
import os

THRESH = float(os.environ.get("THRESH", "32.0"))
BUDGET = int(os.environ.get("BUDGET", "25"))
EXP = os.environ.get("EXP2", "")

SQ, SP, SB, SS, SD = 8, 12, 16, 20, 24
sW, sHD, sPI, sG, sRS = 32, 33, 34, 35, 36
sT, sT2, sU, sSW, sSW2, sJUMP, sTL, sTD = 37, 38, 39, 40, 41, 42, 43, 44
sKN, sKO2, sVO, sVO2, sMK, sMV = 45, 46, 47, 48, 49, 50
sTH = (51, 52)
sLO = (53, 54)
sXN, sWQ, sWM, sW8, sDO = 55, 56, 57, 59, 58
sGP, sGZ, sGM, sFL, sPF, sEV, sDG = 60, 61, 62, 63, 76, 77, 31
NINF = "0xff800000"
SC1 = " sc1" if MERGE12 else ""

vL16, vKc, vKn, vVp, vVc, vD0, vNEG = 1, 2, 3, 4, 5, 6, 7
vLs = ((8, 9), (10, 11))
vNM = (12, 13)
vM = 14
vLSV = (30, 31)
vT = 20
vQD = 32
vQR = 36
S = (48, 64)
NEGM = (80, 96)
PB = 112
QBS = 144
ZT = 208
NEGB = 208
MSK = 224
vPL = 240
aO, aQ, aK, aV = 0, 128, 192, 224

KB0, VB0, SPARE = 0, 65536, 131072
NEG = -1.0e30


def P(buf, x, i=0):
    return PB + (buf * 2 + x) * 8 + i


def dma4(so, tag="kv"):
    return [VM(f"buffer_load_dwordx4 v{vL16}, {s(SS, 4)}, s{so} offen offset:{1024 * i}{SC1} lds", tag) for i in range(4)]


def qk(x, cin=None):
    return [mfma(('v', S[x]), ('a', aK + 4 * d), ('a', aQ + (x * 8 + d) * 4), ('v', NEGM[x] if cin is None else cin) if d == 0 else None)
            for d in range(8)]


def pv(x, buf):
    return [mfma(('a', aO + (x * 4 + ds) * 16), ('a', aV + (ds * 2 + g) * 4), ('v', P(buf, x, 4 * g)))
            for g in range(2) for ds in range(4)]


def kreads(areg, th):
    return [LG(f"ds_read_b128 {a(aK + 4 * d, 4)}, v{areg} offset:{th * 8192 + d * 1024}", "k") for d in range(8)]


def vreads(areg, th):
    return [LG(f"ds_read_b128 {a(aV + 4 * f, 4)}, v{areg} offset:{th * 8192 + f * 1024}", "v") for f in (0, 2, 4, 6, 1, 3, 5, 7)]


def sm_max(x):
    b, m = S[x], vM
    return [(4, I(t)) for t in (
        f"v_max3_f32 v{m}, v{b}, v{b + 1}, v{b + 2}", f"v_max3_f32 v{m + 1}, v{b + 3}, v{b + 4}, v{b + 5}",
        f"v_max3_f32 v{m + 2}, v{b + 6}, v{b + 7}, v{b + 8}", f"v_max3_f32 v{m + 3}, v{b + 9}, v{b + 10}, v{b + 11}",
        f"v_max3_f32 v{m + 4}, v{b + 12}, v{b + 13}, v{b + 14}", f"v_max3_f32 v{m}, v{m}, v{m + 1}, v{b + 15}",
        f"v_max3_f32 v{m + 2}, v{m + 2}, v{m + 3}, v{m + 4}", f"v_max_f32 v{m}, v{m}, v{m + 2}")]


def sm_chk(x, buf):
    return (8, [I(f"v_cmp_lt_f32 vcc, s{sTH[x]}, v{vM}"), I(f"s_cbranch_vccnz K2_RARE_{x}_{buf}"), I(f"K2_RET_{x}_{buf}:")])


def sm_fin(x, buf, i):
    b = S[x]
    return [(4, I(f"v_add_f32 v{vLs[x][0]}, v{vLs[x][0]}, v{b + 2 * i}")),
            (4, I(f"v_add_f32 v{vLs[x][1]}, v{vLs[x][1]}, v{b + 2 * i + 1}")),
            (4, I(f"v_cvt_pk_bf16_f32 v{P(buf, x, i)}, v{b + 2 * i}, v{b + 2 * i + 1}"))]


def sm_exp(x, buf):
    b = S[x]
    items = []
    for i in range(8):
        items.append((8, I(f"v_exp_f32 v{b + 2 * i}, v{b + 2 * i}")))
        items.append((8, I(f"v_exp_f32 v{b + 2 * i + 1}, v{b + 2 * i + 1}")))
        if i > 0:
            items += sm_fin(x, buf, i - 1)
    return items + sm_fin(x, buf, 7)


CAP = int(os.environ.get("CAP", "24"))


def schedule_loop(var='', pin=None):
    NG = 64
    T = NG + 16
    mem = [[] for _ in range(T)]
    alu = [[] for _ in range(T)]
    used = [0] * NG
    sfx = var
    diag, first, full = var == 'D', var == 'F', var == 'X'

    def fixed(g, cost, item, is_mem=True):
        (mem if is_mem else alu)[g].append(item)
        used[g % NG] += cost

    def spread_mem(g0, n, items):
        for i, r in enumerate(items):
            fixed(g0 + (i * n) // len(items), 4, r)

    spread_mem(0, 13, vreads(vVp, 1))
    if not full:
        spread_mem(16, 10, kreads(vKc, 1))
        spread_mem(32, 13, vreads(vVc, 0))
    spread_mem(48, 13, kreads(vKn, 0))
    BAR = int(os.environ.get("BAR", "27"))
    fixed(BAR, 8, [I("s_waitcnt vmcnt(1) lgkmcnt(0)"), ('reset',), I("s_barrier")])
    g = BAR + 1
    dgaps = []
    for so in (sKN, sKO2, sVO, sVO2):
        for d in dma4(so):
            fixed(g, 8, d)
            dgaps.append(g)
            g += 2
    fixed(g, 8, VM(f"buffer_load_dword v{ZT + 40}, v{vL16}, {s(SD, 4)}, s{sPF} offen", "pf"))
    gpf = g
    tail = {15: [WLG("v")], 47: [WLG("v")], 63: []}
    for g_ in (15, 47):
        used[g_] += 4
    used[63] += 4 + 13 + 13
    if var:
        used[31] += 13
    jobs = []

    def job(name, cost, item, e, l, deps=(), later=None):
        jobs.append(dict(name=name, cost=cost, item=item, e=e, l=l, deps=list(deps), later=later))

    job("vo", 4, I(f"s_add_u32 s{sVO}, s{sKN}, {WS_VF - WS_KF}"), 0, BAR - 2)
    job("vo2", 4, I(f"s_add_u32 s{sVO2}, s{sKN}, {WS_VF - WS_KF + 4096}"), 0, BAR - 2)
    job("kn", 12, [I(f"s_cmp_eq_u32 s{sU}, s{sSW2}"), I(f"s_cselect_b32 s{sKO2}, s{sJUMP}, 0x4000"), I(f"s_add_u32 s{sKN}, s{sKN}, s{sKO2}")],
        0, BAR - 1, ["vo", "vo2"])
    job("ko2", 4, I(f"s_add_u32 s{sKO2}, s{sKN}, 4096"), 0, BAR, ["kn"])
    job("m0a", 4, I(f"s_mov_b32 m0, s{sMK}"), 0, BAR)
    job("m0b", 4, I(f"s_add_u32 m0, s{sMK}, 4096"), dgaps[3], dgaps[4] - 1)
    job("m0c", 4, I(f"s_mov_b32 m0, s{sMV}"), dgaps[7], dgaps[8] - 1)
    job("m0d", 4, I(f"s_add_u32 m0, s{sMV}, 4096"), dgaps[11], dgaps[12] - 1)
    job("pfa", 4, I(f"s_add_u32 s{sPF}, s{sPF}, s30"), gpf, 63)
    job("xk", 4, I(f"s_xor_b32 s{sMK}, s{sMK}, 0x8000"), dgaps[4], 63, ["m0b"])
    job("xv", 4, I(f"s_xor_b32 s{sMV}, s{sMV}, 0x8000"), dgaps[12], 63, ["m0d"])
    job("vp", 4, I(f"v_mov_b32 v{vVp}, v{vVc}"), 13, 44)
    job("vc", 4, I(f"v_xor_b32 v{vVc}, 0x8000, v{vVc}"), 45, 63, ["vp"])
    job("kc", 4, I(f"v_xor_b32 v{vKc}, 0x8000, v{vKc}"), 26, 63)
    job("kx", 4, I(f"v_xor_b32 v{vKn}, 0x8000, v{vKn}"), 61, 63)
    job("tl", 4, I(f"s_add_u32 s{sTL}, s{sTL}, 1"), 56, 63)
    job("u", 4, I(f"s_add_u32 s{sU}, s{sU}, 1"), 32, 63)
    for half in range(2):
        G = 8 + 32 * half
        for x in range(2):
            e0 = G + 1 + 8 * x
            pre = f"{half}{x}"
            prev = [f"{half}0chk"] if x == 1 else []
            if diag and half == x:
                for r in range(16):
                    job(f"{pre}mk{r}", 4, I(f"v_min_f32 v{S[x] + r}, v{S[x] + r}, v{MSK + r}"), e0, e0 + 4, prev)
                prev = prev + [f"{pre}mk{r}" for r in range(16)]
            for i, (c, it) in enumerate(sm_max(x)):
                job(f"{pre}m{i}", c, it, e0, e0 + 5, prev + ([f"{pre}m{i - 1}"] if i else []))
            dl = G + 23 + 8 * x
            b_ = S[x]
            if first and half == 0:
                d_ = vT + x
                job(f"{pre}f0", 4, I(f"v_mov_b32 v{d_}, v{vM}"), e0, e0 + 8, [f"{pre}m7"])
                job(f"{pre}f1", 8, [I("s_nop 0"), I(f"v_permlane32_swap_b32 v{vM}, v{d_}")], e0, e0 + 9, [f"{pre}f0"], later=f"{pre}f0")
                job(f"{pre}chk", 12, [I(f"v_max_f32 v{d_}, v{d_}, v{vM}"), I(f"v_ceil_f32 v{d_}, v{d_}"), I(f"v_sub_f32 v{vNM[x]}, 0, v{d_}")],
                    e0, e0 + 10, [f"{pre}f1"], later=f"{pre}f1")
                job(f"{pre}ls", 12, [I(f"v_add_f32 v{vLSV[x]}, v{vLs[x][0]}, v{vLs[x][1]}"), I(f"v_mov_b32 v{vLs[x][0]}, 0"), I(f"v_mov_b32 v{vLs[x][1]}, 0")],
                    e0, e0 + 8)
                for r in range(16):
                    job(f"{pre}s{r}", 4, I(f"v_sub_f32 v{b_ + r}, v{b_ + r}, v{d_}"), e0, dl - 2, [f"{pre}chk", f"{pre}ls"])
                    job(f"{pre}n{r}", 4, I(f"v_mov_b32 v{NEGM[x] + r}, v{vNM[x]}"), e0, dl - 1, [f"{pre}chk"])
            else:
                job(f"{pre}cmp", 4, I(f"v_cmp_lt_f32 vcc, s{sTH[x]}, v{vM}"), e0, e0 + 5, [f"{pre}m7"])
                job(f"{pre}chk", 9, [I(f"s_cbranch_vccnz K2_RARE_{x}_{half}"), I(f"K2_RET{sfx}_{x}_{half}:")],
                    e0, e0 + 6, [f"{pre}cmp"], later=f"{pre}cmp")
            for r in range(16):
                job(f"{pre}e{r}", 8, I(f"v_exp_f32 v{b_ + r}, v{b_ + r}"), e0, dl - 1,
                    [f"{pre}s{r}" if (first and half == 0) else f"{pre}chk"] + ([f"{pre}e{r - 1}"] if r else []))
            for i in range(8):
                f3 = sm_fin(x, half, i)
                job(f"{pre}a{2 * i}", 4, f3[0][1], e0, dl, [f"{pre}e{2 * i + 1}"])
                job(f"{pre}a{2 * i + 1}", 4, f3[1][1], e0, dl, [f"{pre}a{2 * i}"])
                job(f"{pre}c{i}", 4, f3[2][1], e0, dl, [f"{pre}a{2 * i + 1}"])
    if diag:
        jobs[:] = [j for j in jobs if not j['name'].startswith("10")]
        for j in jobs:
            j['deps'] = [d for d in j['deps'] if not d.startswith("10")]
        for i in range(8):
            job(f"zp{i}", 4, I(f"v_mov_b32 v{P(1, 0, i)}, 0"), 32, 60)
    if full:
        jobs[:] = [j for j in jobs if j['name'][0] not in "01" or j['name'] in pin]
        names = {j['name'] for j in jobs}
        for j in jobs:
            j['deps'] = [d for d in j['deps'] if d in names]
            if j['later'] not in names:
                j['later'] = None
        for i in range(16):
            job(f"zp{i}", 4, I(f"v_mov_b32 v{P(1, 0, i)}, 0"), 34, 60)
            job(f"zs{i}", 4, I(f"v_mov_b32 v{S[1] + i}, {'v%d' % vNEG if f'11e{i}' in pin else '0'}"), 9, 60)
    if pin is not None:
        for j in jobs:
            if j['name'] in pin:
                j['e'] = j['l'] = pin[j['name']]
            else:
                j['l'] = min(j['l'], 63)
    done = {}
    rest = list(jobs)
    order = list(range(9, NG + 9))
    remaining = sum(j['cost'] for j in jobs)
    for gi, g in enumerate(order):
        gm_ = g % NG
        free_after = sum(max(0, CAP - used[h % NG]) for h in order[gi + 1:])
        while True:
            cand = []
            for j in rest:
                e, l = j['e'], j['l']
                if l < 9 or (e < 9 and j['name'][0] not in "01" and False):
                    e, l = e + NG, l + NG
                if e <= g and all(d in done for d in j['deps']) and (j['later'] is None or done[j['later']] < g):
                    cand.append((l, j))
            if not cand:
                break
            cand.sort(key=lambda z: z[0])
            room = CAP - used[gm_]
            pick = None
            for l, j in cand:
                if j['cost'] <= room:
                    pick = j
                    break
            if pick is None:
                urgent = [j for l, j in cand if l <= g]
                if urgent:
                    pick = urgent[0]
                elif remaining > free_after and room > -4 and room + 4 >= min(j['cost'] for _, j in cand):
                    pick = min((j for _, j in cand), key=lambda j: j['cost'])
                else:
                    break
            alu[g].append(pick['item'])
            used[gm_] += pick['cost']
            remaining -= pick['cost']
            done[pick['name']] = g
            rest.remove(pick)
    assert not rest, [j['name'] for j in rest]
    for j in jobs:
        l = j['l'] + (NG if j['l'] < 9 else 0)
        assert done[j['name']] <= l, (j['name'], done[j['name']], l)
    est = sum(max(32, 8 + u) for u in used)
    if os.environ.get("SCHED"):
        print("loop estimate", est, used)
    wrapped = []
    for g in range(NG, T):
        wrapped += [it for it in alu[g] if "v_" in str(it) and "s_cselect" not in str(it)]
    gm = {}
    for g in range(NG):
        gm[g] = mem[g] + (alu[g + NG] if g + NG < T else []) + alu[g] + tail.get(g, [])
    return gm, wrapped, {n: g for n, g in done.items() if g >= NG}


def rare_ret(L):
    r = f"s_cmp_eq_u32 s{sDG}, 0\ns_cbranch_scc1 K2_RET_{L}\n"
    if L.endswith("_1"):
        r += f"s_cmp_eq_u32 s{sDG}, 2\ns_cbranch_scc1 K2_RETF_{L}\n"
    if L == "0_1":
        return f"s_cmp_eq_u32 s{sDG}, 0\ns_cbranch_scc1 K2_RET_{L}\ns_branch K2_RETF_{L}"
    return r + f"s_branch K2_RETD_{L}"


def rare_path(k, x, buf):
    E = k.emit
    t = vT
    L = f"{x}_{buf}"
    E(f"K2_RARE_{L}:")
    E(f"s_mov_b32 s{sTH[x]}, {fbits(THRESH)}")
    E(f"v_mov_b32 v{t}, v{vM}\ns_nop 1\nv_permlane32_swap_b32 v{vM}, v{t}\ns_nop 1")
    E(f"v_max_f32 v{t}, v{t}, v{vM}\nv_ceil_f32 v{t}, v{t}\nv_max_f32 v{t}, s{sLO[x]}, v{t}")
    E(f"v_sub_f32 v{vNM[x]}, v{vNM[x]}, v{t}")
    for r in range(16):
        E(f"v_sub_f32 v{S[x] + r}, v{S[x] + r}, v{t}")
        E(f"v_mov_b32 v{NEGM[x] + r}, v{vNM[x]}")
    E(f"s_cmp_eq_u32 s{sLO[x]}, 0\ns_cbranch_scc1 K2_RSC_{L}")
    E(f"v_add_f32 v{vLSV[x]}, v{vLs[x][0]}, v{vLs[x][1]}\nv_mov_b32 v{vLs[x][0]}, 0\nv_mov_b32 v{vLs[x][1]}, 0")
    E(f"s_mov_b32 s{sLO[x]}, 0", rare_ret(L))
    E(f"K2_RSC_{L}:")
    E(f"v_sub_f32 v{t + 1}, 0, v{t}\nv_exp_f32 v{t + 1}, v{t + 1}\ns_nop 0")
    E(f"v_mul_f32 v{vLs[x][0]}, v{vLs[x][0]}, v{t + 1}\nv_mul_f32 v{vLs[x][1]}, v{vLs[x][1]}, v{t + 1}")
    for i in range(8):
        p = P(1 - buf, x, i)
        E(f"v_lshlrev_b32 v{t + 2}, 16, v{p}\nv_and_b32 v{t + 3}, 0xffff0000, v{p}")
        E(f"v_mul_f32 v{t + 2}, v{t + 2}, v{t + 1}\nv_mul_f32 v{t + 3}, v{t + 3}, v{t + 1}")
        E(f"v_cvt_pk_bf16_f32 v{p}, v{t + 2}, v{t + 3}")
    E("s_nop 15")
    for r in range(0, 64, 4):
        for i in range(4):
            E(f"v_accvgpr_read_b32 v{t + 2 + i}, a{aO + x * 64 + r + i}")
        for i in range(4):
            E(f"v_mul_f32 v{t + 2 + i}, v{t + 2 + i}, v{t + 1}")
        for i in range(4):
            E(f"v_accvgpr_write_b32 a{aO + x * 64 + r + i}, v{t + 2 + i}")
    E(rare_ret(L))


def ctx_addr(sqb_expr, x_in_addr):
    pass


def hooks(k):
    E = k.emit
    E("K2_EVENT:")
    if MERGE12:
        E(f"s_cmp_lg_u32 s{sU}, 1\ns_cbranch_scc1 K2_EV0")
        E(f"s_cmp_lg_u32 s{sW}, 0\ns_cbranch_scc1 K2_EV0")
        E(f"v_mov_b32 v{vPL}, 1\nv_mov_b32 v{vPL + 1}, 0\ns_mov_b64 exec, 1\nbuffer_store_byte v{vPL}, v{vPL + 1}, {s(SS, 4)}, s{sGP} offen sc0 sc1\ns_mov_b64 exec, -1")
        E("K2_EV0:")
    E(f"s_add_u32 s{sT}, s{sU}, 1\ns_cmp_eq_u32 s{sT}, s{sSW}\ns_cselect_b32 s{sT}, s{sG}, 0\ns_lshl_b32 s{sT}, s{sT}, 14\nv_add_u32 v{vKn}, s{sT}, v{vKn}")
    E(f"s_mov_b32 s{sDG}, 0\ns_cmp_lg_u32 s{sU}, s{sSW}\ns_cbranch_scc1 K2_EV2")
    E(f"s_cmp_eq_u32 s{sG}, 0\ns_cbranch_scc1 K2_SW0")
    E(f"v_add_u32 v{vKc}, 0x4000, v{vKc}\nv_add_u32 v{vVc}, 0x4000, v{vVc}\ns_mov_b32 s{sSW2}, 15\ns_mov_b32 s{sJUMP}, 0x20000000")
    for r in range(64):
        E(f"v_accvgpr_write_b32 a{aQ + r}, v{QBS + r}")
    for r in range(32):
        E(f"v_mov_b32 v{NEGM[0] + r}, 0")
    E(f"v_mov_b32 v{vNM[0]}, 0\nv_mov_b32 v{vNM[1]}, 0")
    for x in range(2):
        E(f"s_mov_b32 s{sTH[x]}, {NINF}\ns_mov_b32 s{sLO[x]}, {NINF}")
    E(f"s_mov_b32 s{sTL}, 17\ns_sub_u32 s{sTD}, 15, s{sPI}\ns_lshl_b32 s{sTD}, s{sTD}, 1\ns_add_u32 s{sTD}, s{sTD}, s{sRS}")
    E("s_branch K2_EV2")
    E("K2_SW0:")
    E(f"s_cmp_eq_u32 s{sU}, 9\ns_cbranch_scc1 K2_SW1")
    E(f"v_and_b32 v{vPL}, 31, v0\nbuffer_load_ubyte v{vPL + 1}, v{vPL}, {s(SS, 4)}, s{sFL} offen sc0 sc1\ns_mov_b32 s{sSW}, 9")
    E(f"s_mov_b32 s{SD}, s28\ns_mov_b32 s{SD + 1}, s29\ns_mov_b32 s{SD + 2}, {4096 * 1024:#x}\ns_lshl_b32 s{sPF}, s2, 1\ns_add_u32 s{sPF}, s{sPF}, s{sW}\ns_lshl_b32 s{sPF}, s{sPF}, 10\ns_mov_b32 s30, 0x80000\ns_branch K2_EV2")
    E("K2_SW1:\ns_waitcnt vmcnt(17)")
    E(f"v_cmp_ne_u32 vcc, 1, v{vPL + 1}\ns_nop 1\ns_cbranch_vccz K2_EV2")
    E(f"K2_FBLP:\ns_sleep 2\nbuffer_load_ubyte v{vPL + 1}, v{vPL}, {s(SS, 4)}, s{sFL} offen sc0 sc1\ns_waitcnt vmcnt(0)")
    E(f"v_cmp_ne_u32 vcc, 1, v{vPL + 1}\ns_nop 1\ns_cbranch_vccnz K2_FBLP")
    E("K2_EV2:")
    E(f"s_cmp_lt_u32 s{sTL}, s{sTD}\ns_cbranch_scc0 K2_EV3")
    E(f"s_cmp_eq_u32 s{sLO[0]}, 0\ns_cbranch_scc1 K2_EV4")
    for x in range(2):
        E(f"s_mov_b32 s{sTH[x]}, {fbits(THRESH)}\ns_mov_b32 s{sLO[x]}, 0")
    E(f"s_add_u32 s{sEV}, s{sU}, 1\ns_mov_b32 s{sDG}, 2\ns_branch K2_SWRETF")
    E("K2_EV4:")
    E(f"s_sub_u32 s{sEV}, s{sTD}, s{sTL}\ns_add_u32 s{sEV}, s{sEV}, s{sU}\ns_cmp_gt_u32 s{sSW}, s{sU}\ns_cselect_b32 s{sT}, s{sSW}, 99\ns_min_u32 s{sEV}, s{sEV}, s{sT}")
    E("s_branch K2_SWRET")
    E("K2_EV3:")
    E(f"s_add_u32 s{sEV}, s{sU}, 1\ns_mov_b32 s{sDG}, 1\ns_cmp_eq_u32 s{sTL}, s{sTD}\ns_cbranch_scc1 K2_SWRETD")
    E(f"s_mov_b32 s{sDG}, 3\ns_branch K2_SWRETX")
    E("K2_FINB:")
    t = QBS
    E(f"s_cmp_eq_u32 s{sLO[0]}, 0\ns_cbranch_scc1 K2_FB1")
    for x in range(2):
        E(f"v_add_f32 v{vLSV[x]}, v{vLs[x][0]}, v{vLs[x][1]}\nv_mov_b32 v{vLs[x][0]}, 0\nv_mov_b32 v{vLs[x][1]}, 0\nv_sub_f32 v{vNM[x]}, 0, v{vNEG}")
    E("K2_FB1:")
    for x in range(2):
        E(f"v_mov_b32 v{t + 2 * x}, v{vLSV[x]}")
    E("s_nop 1")
    for x in range(2):
        E(f"v_permlane32_swap_b32 v{vLSV[x]}, v{t + 2 * x}")
    E("s_nop 1")
    for x in range(2):
        E(f"v_add_f32 v{t + 2 * x}, v{t + 2 * x}, v{vLSV[x]}\nv_rcp_f32 v{t + 2 * x}, v{t + 2 * x}")
    E(f"s_lshl_b32 s{sT}, s{sPI}, 2\ns_lshl_b32 s{sT2}, s{sRS}, 1\ns_add_u32 s{sT}, s{sT}, s{sT2}")
    for x in range(2):
        E(f"v_mov_b32 v{t + 2 * x + 1}, v{t + 2 * x}")
    E(f"s_mul_i32 s{sT}, s{sT}, {CTXU_STEPS}\ns_lshl_b32 s{sT2}, s{sHD}, 3\ns_add_u32 s{sT}, s{sT}, s{sT2}")
    E(f"s_lshl_b32 s{sT}, s{sT}, 10\ns_add_u32 s{sT}, s{sT}, {WS_CTXU}")
    for i in range(4):
        E(f"v_mov_b32 v{t + 4 + i}, 0")
    for x in range(2):
        for f in range(8):
            b = t + 8 + 8 * (f % 4)
            for i in range(8):
                E(f"v_accvgpr_read_b32 v{b + i}, a{aO + x * 64 + 8 * f + i}")
            if f % 2 == 1:
                E(mfma(('a', aO + x * 64 + 8 * (f - 1)), ('v', t + 4), ('v', t + 4), 0))
            for i in range(4):
                E(f"v_pk_mul_f32 {v(b + 2 * i, 2)}, {v(b + 2 * i, 2)}, {v(t + 2 * x, 2)}")
            for i in range(4):
                E(f"v_cvt_pk_bf16_f32 v{b + i}, v{b + 2 * i}, v{b + 2 * i + 1}")
            E(f"buffer_store_dwordx4 {v(b, 4)}, v{vL16}, {s(SS, 4)}, s{sT} offen offset:{1024 * (f % 4)} sc1")
            if f == 3:
                E(f"s_add_u32 s{sT}, s{sT}, 4096")
            if f == 7 and x == 0:
                E(f"s_add_u32 s{sT}, s{sT}, {CTXU_STEPS * 1024 - 4096}")
    E(f"s_cmp_eq_u32 s{sDG}, 2\ns_cbranch_scc1 K2_FBRETF\ns_cmp_eq_u32 s{sDG}, 3\ns_cbranch_scc1 K2_FBRETX\ns_branch K2_FBRETD")


QACC = 48
aXN = 0
aWF = 192


def wq_dma(j):
    out = []
    for i in range(4):
        g = []
        if i == 0:
            g += [I(f"s_add_u32 m0, s{sWM}, {j * 16384}"), I(f"s_add_u32 s{sDO}, s{sWQ}, {j * 64 * 8192}")]
        g.append(VM(f"buffer_load_dwordx4 v{vQD + i}, {s(SQ, 4)}, s{sDO} offen offset:{1024 * i} lds", f"wq{j}"))
        out.append(g)
    return out


def xn_loads(j):
    out = []
    for x in range(2):
        for cs in range(4):
            g = []
            if cs == 0:
                g.append(I(f"s_add_u32 s{sDO}, s{sXN}, {x * 32768 + j * 4096}"))
            g.append(VM(f"buffer_load_dwordx4 {a(aXN + (j % 4) * 32 + (x * 4 + cs) * 4, 4)}, v{vL16}, {s(SS, 4)}, "
                        f"s{sDO} offen offset:{1024 * cs}{SC1}", f"xn{j}"))
            out.append(g)
    return out


def znorm():
    ld = [[I(x) for x in (f"s_lshr_b32 s{sGM}, s2, 3", f"s_and_b32 s{sGP}, s2, 7", f"s_lshl_b32 s{sT}, s{sGM}, 1", f"s_add_u32 s{sT}, s{sT}, s{sG}",
                          f"s_lshl_b32 s{sT}, s{sT}, 11", f"s_add_u32 s{sT}, s{sT}, {WS_STAT}", f"v_lshlrev_b32 v{ZT}, 2, v0")]]
    for i in range(0, 8, 2):
        ld.append([VM(f"buffer_load_dword v{ZT + 4 + i + e}, v{ZT}, {s(SS, 4)}, s{sT} offen offset:{256 * (i + e)}{SC1}", "zn") for e in range(2)])
    ld.append([I(x) for x in (f"s_mul_i32 s{sGZ}, s{sGP}, 384", f"s_lshl_b32 s{sT}, s{sGM}, 2", f"s_add_u32 s{sGZ}, s{sGZ}, s{sT}",
                              f"s_add_u32 s{sGZ}, s{sGZ}, s{sW}", f"s_lshl_b32 s{sGZ}, s{sGZ}, 10")])
    for f in range(3):
        ld.append([I(f"s_add_u32 s{sT}, s{sGZ}, {WS_Z2R + f * 128 * 1024}"),
                   VM(f"buffer_load_dwordx4 {v(ZT + 12 + 4 * f, 4)}, v{vL16}, {s(SS, 4)}, s{sT} offen{SC1}", "zn")])
    z = ZT + 4
    AB = ZT + 24
    c = [WVM("zn")]
    c += flat([f"v_add_f32 v{z}, v{z}, v{z + 1}\nv_add_f32 v{z + 2}, v{z + 2}, v{z + 3}\nv_add_f32 v{z + 4}, v{z + 4}, v{z + 5}\nv_add_f32 v{z + 6}, v{z + 6}, v{z + 7}",
               f"v_add_f32 v{z}, v{z}, v{z + 2}\nv_add_f32 v{z + 4}, v{z + 4}, v{z + 6}\nv_add_f32 v{z}, v{z}, v{z + 4}",
               f"v_mul_f32 v{z}, {fbits(1 / 688)}, v{z}\nv_mov_b32 v{z + 1}, v{z}\ns_nop 1\nv_permlane32_swap_b32 v{z}, v{z + 1}\ns_nop 1",
               f"v_fma_f32 v{z + 1}, -v{z}, v{z}, v{z + 1}\nv_max_f32 v{z + 1}, 0, v{z + 1}\nv_add_f32 v{z + 1}, {fbits(LN_EPS)}, v{z + 1}\nv_rsq_f32 v{z + 1}, v{z + 1}\ns_nop 0",
               f"v_mul_f32 v{z}, v{z}, v{z + 1}\nv_sub_f32 v{z}, 0, v{z}",
               f"s_lshl_b32 s{sT}, s{sW}, 8\ns_add_u32 s{sT}, s{sT}, {SPARE}",
               f"v_lshlrev_b32 v{z + 2}, 2, v20\nv_add_u32 v{z + 2}, s{sT}, v{z + 2}"])
    c += [LG(f"ds_write_b32 v{z + 2}, v{z + 1}", "zw"), LG(f"ds_write_b32 v{z + 2}, v{z} offset:128", "zw")]
    c += flat([f"s_lshl_b32 s{sT2}, s{sRS}, 6\ns_add_u32 s{sT}, s{sT}, s{sT2}\nv_lshlrev_b32 v{z + 3}, 5, v21\nv_add_u32 v{z + 3}, s{sT}, v{z + 3}"])
    for i in range(2):
        c += [LG(f"ds_read_b128 {v(AB + 4 * i, 4)}, v{z + 3} offset:{16 * i}", "zr"),
              LG(f"ds_read_b128 {v(AB + 8 + 4 * i, 4)}, v{z + 3} offset:{128 + 16 * i}", "zr")]
    c += flat([f"s_lshl_b32 s{sGP}, s{sGP}, 8\ns_add_u32 s{sGP}, s{sGP}, s{sGM}\ns_add_u32 s{sGP}, s{sGP}, {WS_FLAG2}\ns_nop 0"])
    c += [WLG("zr")]
    for f in range(3):
        for i in range(4):
            x_ = ZT + 12 + 4 * f + i
            c += flat([f"v_lshlrev_b32 v{z}, 16, v{x_}\nv_and_b32 v{z + 1}, 0xffff0000, v{x_}",
                       f"v_fma_f32 v{z}, v{z}, v{AB + 2 * i}, v{AB + 8 + 2 * i}\nv_fma_f32 v{z + 1}, v{z + 1}, v{AB + 2 * i + 1}, v{AB + 9 + 2 * i}",
                       f"v_cvt_pk_bf16_f32 v{x_}, v{z}, v{z + 1}"])
        c += [I(f"s_add_u32 s{sT}, s{sGZ}, {WS_Z2N + f * 128 * 1024}"),
              VM(f"buffer_store_dwordx4 {v(ZT + 12 + 4 * f, 4)}, v{vL16}, {s(SS, 4)}, s{sT} offen sc1", "zs")]
    cg = [c[i:i + 4] for i in range(0, len(c), 4)]
    return ld, cg


def qproj(k):
    E = k.emit
    extra = {}

    def spread(c0, c1, groups):
        n = len(groups)
        for i, g in enumerate(groups):
            extra.setdefault(c0 + (i * (c1 - c0)) // n, []).append(g)

    def rd(c, fb):
        j, cs = c // 4, c % 4
        return [LG(f"ds_read_b64_tr_b16 {a(fb + 4 * d + 2 * sec, 2)}, v{vQR + (j // 4) * 4 + d} "
                   f"offset:{(j % 4) * 16384 + cs * 4096 + sec * 1024}", f"q{c}") for d in range(4) for sec in range(2)]

    def fbuf(c):
        return aWF + (c % 4) * 16

    def mf1(c, d, x):
        j, cs = c // 4, c % 4
        return mfma(('v', QACC + (x * 4 + d) * 16), ('a', fbuf(c) + 4 * d), ('a', aXN + (j % 4) * 32 + (x * 4 + cs) * 4),
                    0 if c == 0 else None)

    zl, zc = znorm()

    def kvpre(base, pre, so, so2, tag="kv"):
        d1, d2 = dma4(so, tag), dma4(so2, tag)
        return [[I(f"s_add_u32 m0, s{sW8}, {base}")] + [I(x) for x in pre] + [d1[0]]] + [[d] for d in d1[1:]] + \
               [[I(f"s_add_u32 m0, s{sW8}, {base + 4096}"), I("s_nop 0"), d2[0]]] + [[d] for d in d2[1:]]

    k0 = kvpre(0, [f"s_add_u32 s{sKO2}, s{sKN}, 4096"], sKN, sKO2, "k0")
    k1 = kvpre(32768, [f"s_add_u32 s{sVO}, s{sKN}, {WS_VF - WS_KF}", f"s_add_u32 s{sVO2}, s{sVO}, 4096",
                       f"s_add_u32 s{sKN}, s{sKN}, 0x4000", f"s_add_u32 s{sKO2}, s{sKN}, 4096"], sKN, sKO2)
    v0_ = kvpre(VB0, ["s_nop 0"], sVO, sVO2)
    q = []
    if MERGE12:
        order_ = ((0, wq_dma(2) + xn_loads(2) + wq_dma(3) + xn_loads(3) + wq_dma(4)), (4, xn_loads(4)), (0, wq_dma(5)), (8, xn_loads(5)),
                  (0, wq_dma(6)), (12, xn_loads(6)), (0, wq_dma(7)), (16, xn_loads(7)), (22, k0 + zl))
    else:
        order_ = ((0, wq_dma(2) + xn_loads(2) + wq_dma(3) + xn_loads(3) + wq_dma(4)), (4, xn_loads(4)), (0, wq_dma(5)), (8, xn_loads(5)),
                  (0, wq_dma(6) + zl), (12, xn_loads(6)), (0, wq_dma(7)), (16, xn_loads(7)), (6, k0), (14, k1))
    for e, grp in order_:
        q += [(e, g) for g in grp]
    RATE = 4
    c_ = 0
    n_ = 0
    for e, g in q:
        if e > c_:
            c_, n_ = e, 0
        extra.setdefault(c_, []).append(g)
        n_ += 1
        if n_ == RATE:
            c_, n_ = c_ + 1, 0
    assert c_ <= 27, c_
    valu = {}
    if not MERGE12:
        for i, g in enumerate(zc):
            valu.setdefault(19 + (i * 8) // len(zc), []).append(g)
    else:
        valu[18] = [[I(f"s_mov_b32 s{sT}, {WS_FP1}")] + poll_all_issue(sW, SS, f"s{sT}", 16, 4, 176)]

    E(WVM("wq0"), "s_barrier")
    stamp(k, 6)
    E(rd(0, fbuf(0)), rd(1, fbuf(1)))
    for c in range(28):
        j, cs = c // 4, c % 4
        n = c + 2
        if n % 4 == 0:
            lstamp(k, 19, 3 * (n // 4))
            E(WLG(f"q{n - 1}"), WVM(f"wq{n // 4}"))
            lstamp(k, 19, 3 * (n // 4) + 1)
            if MERGE12 and n == 24:
                E(poll_all_check(sW, SS, f"s{sT}", 16, 4, 176, 1))
            E("s_barrier")
            if MERGE12 and n == 4:
                E(f"s_lshl_b32 s{sT}, s2, 4\ns_add_u32 s{sT}, s{sT}, {WS_FP1}", flag_set(sW, SS, sT, 176))
        E(WLG(f"q{c}"))
        if cs == 0:
            E(WVM(f"xn{j}"))
            lstamp(k, 19, 3 * j + 2)
        r_ = rd(n, fbuf(n))
        ex, va = extra.get(c, []), valu.get(c, [])
        gm_ = {}
        for i in range(8):
            gm_[i] = [r_[i]] + ([ex[i // 2]] if (i % 2 == 0 and i // 2 < len(ex)) else []) + [va[z] for z in range(len(va)) if (z * 8) // len(va) == i]
        E(place([mf1(c, d, x) for d in range(4) for x in range(2)], gm_))
    E(rd(30, fbuf(30)), rd(31, fbuf(31)))
    E(f"v_mov_b32 v{vT}, {fbits(QSCALE)}\nv_mov_b32 v{vT + 1}, {fbits(QSCALE)}")
    E(f"v_add_u32 v{vT + 2}, s{sW8}, v{vL16}\nv_add_u32 v{vT + 3}, {SPARE}, v{vT + 2}\nv_add_u32 v{vT + 2}, {VB0 + 32768}, v{vT + 2}")
    E(WVM("xn7"), WLG0, "s_barrier")

    def epi(d, x):
        out = []
        for g in range(2):
            b = QACC + (x * 4 + d) * 16 + 8 * g
            out.append([I(f"v_mul_f32 v{b + i}, v{vT}, v{b + i}") for i in range(8)])
            out.append([I(f"v_cvt_pk_bf16_f32 v{b + i}, v{b + 2 * i}, v{b + 2 * i + 1}") for i in range(4)] +
                       [LG(f"ds_write_b128 v{vT + 3 - x}, {v(b, 4)} offset:{(2 * d + g) * 1024}")])
        return out

    tiles = [(d, x) for x in range(2) for d in range(4)]
    for i, (d, x) in enumerate(tiles):
        m = [mf1(c, d, x) for c in range(28, 32)]
        kv2 = (k1 + v0_)[2 * i:2 * i + 2] if MERGE12 else [v0_[i], []]
        if i == 0:
            E(m[0], kv2[0], m[1], m[2], kv2[1], m[3])
        else:
            e = epi(*tiles[i - 1])
            E(m[0], kv2[0], m[1], e[0], e[1], m[2], kv2[1], e[2], m[3], e[3])
    stamp(k, 7)
    E("s_nop 15")
    E(epi(*tiles[-1]))
    E(WVM("k0"), WVM("zs"), WLG0, "s_barrier")
    if not MERGE12:
        E(flag_set(sW, SS, sGP, ZT))
    k.zc = zc
    E(f"s_lshl_b32 s{sT}, s{sRS}, 13\nv_add_u32 v{vT + 4}, s{sT}, v{vL16}")
    E(f"v_add_u32 v{vT + 5}, {SPARE}, v{vT + 4}\nv_add_u32 v{vT + 4}, {VB0 + 32768}, v{vT + 4}")
    E(kreads(vKc, 0))
    for x in range(2):
        for f in range(8):
            E(LG(f"ds_read_b128 {a(aQ + (x * 8 + f) * 4, 4)}, v{vT + 3 - x} offset:{f * 1024}"))
    for x in range(2):
        for f in range(8):
            E(LG(f"ds_read_b128 {v(QBS + (x * 8 + f) * 4, 4)}, v{vT + 5 - x} offset:{f * 1024}"))


ZRING = (('v', 144), ('v', 192), ('a', 128), ('a', 176))
vWS = 48
vPD = 32
vPR = 40
NGS = 5


def g_slot(st):
    return (0, 1, 3, 2, 4)[st % NGS] * 32768


def zreg(st, i):
    kind, base = ZRING[st % 4]
    return (kind, base + i * 4)


def sprinkle(items, groups):
    items = flat(items)
    n, m = len(items), len(groups)
    out, gi = [], 0
    for i, it in enumerate(items):
        while gi < m and gi * n <= i * m:
            out.append(groups[gi])
            gi += 1
        out.append(it)
    return flat(out + groups[gi:])


def g_dma(st):
    out = []
    for i in range(8):
        g = []
        if i % 4 == 0:
            g += [I(f"s_add_u32 m0, s{sW8}, {g_slot(st) + (i // 4) * 4096}"), I(f"s_add_u32 s{sDO}, s{sGP}, {st * 128}")]
        g.append(VM(f"buffer_load_dwordx4 v{vPD + i}, {s(SP, 4)}, s{sDO} offen offset:{1024 * (i % 4)} lds", f"g{st}"))
        out.append(g)
    return out


def g_zl(st):
    out = []
    for f in range(3):
        for ks in range(4):
            g = []
            if ks == 0:
                g.append(I(f"s_add_u32 s{sGM}, s{sGZ}, {f * 128 * 1024 + st * 4096}"))
            g.append(VM(f"buffer_load_dwordx4 {R(zreg(st, f * 4 + ks), 4)}, v{vL16}, {s(SS, 4)}, "
                        f"s{sGM} offen offset:{1024 * ks} sc1", f"g{st}"))
            out.append(g)
    return out


def g_setup():
    o = [f"v_lshrrev_b32 v{ZT + 32}, 4, v0\nv_lshrrev_b32 v{ZT + 33}, 3, v0\nv_lshlrev_b32 v{ZT + 33}, 12, v{ZT + 33}\nv_and_b32 v{ZT + 34}, 7, v0\nv_xor_b32 v{ZT + 34}, v{ZT + 34}, v{ZT + 32}",
         f"v_lshl_add_u32 v{ZT + 35}, v{ZT + 34}, 4, v{ZT + 33}\nv_xor_b32 v{ZT + 34}, 4, v{ZT + 34}\nv_lshl_add_u32 v{ZT + 36}, v{ZT + 34}, 4, v{ZT + 33}"]
    for i in range(8):
        o.append(f"v_add_u32 v{vPD + i}, {i * 8 * 4096 - (i % 4) * 1024}, v{ZT + 35 + (i % 2)}")
    o.append(f"v_lshrrev_b32 v{ZT + 32}, 5, v0\nv_bfe_u32 v{ZT + 33}, v0, 1, 3\nv_xor_b32 v{ZT + 33}, v{ZT + 33}, v{ZT + 32}")
    o.append(f"v_and_b32 v{ZT + 34}, 31, v0\nv_lshlrev_b32 v{ZT + 34}, 7, v{ZT + 34}\nv_add_u32 v{ZT + 34}, s{sW8}, v{ZT + 34}")
    for ks in range(4):
        o.append(f"v_xor_b32 v{ZT + 35}, {2 * ks}, v{ZT + 33}\nv_lshl_add_u32 v{vPR + ks}, v{ZT + 35}, 4, v{ZT + 34}\nv_add_u32 v{vPR + 4 + ks}, 0x10000, v{vPR + ks}")
    o.append(f"s_lshl_b32 s{sGP}, s{sHD}, 18\ns_lshl_b32 s{sDO}, s{sW}, 10\ns_add_u32 s{sGP}, s{sGP}, s{sDO}")
    o.append(f"s_mul_i32 s{sGZ}, s{sPI}, 384\ns_lshl_b32 s{sGM}, s{sW}, 5\ns_add_u32 s{sGZ}, s{sGZ}, s{sGM}")
    o.append(f"s_lshl_b32 s{sGZ}, s{sGZ}, 10\ns_add_u32 s{sGZ}, s{sGZ}, {WS_Z2N}")
    return o


def merge(k, keep):
    E = k.emit
    send = 1 - keep
    t = vT
    wr = [LG(f"ds_write_b128 v{t + 4 + i // 8}, {a(aO + send * 64 + 4 * i, 4)} offset:{(i % 8) * 1024}") for i in range(16)]
    E(LG(f"ds_read_b64 {v(t + 8, 2)}, v{t + 4}", "mb"))
    d0, d1 = g_dma(0), g_dma(1)
    E(weave(pv(send, 1), d0, 0, 8))
    E(WLG("mb"))
    fac = [f"v_min_f32 v{t}, v{vNM[keep]}, v{t + 8}", f"v_sub_f32 v{t + 2}, v{t}, v{vNM[keep]}", f"v_sub_f32 v{t + 8}, v{t}, v{t + 8}",
           f"v_exp_f32 v{t + 2}, v{t + 2}", f"v_exp_f32 v{t + 8}, v{t + 8}", "s_nop 0",
           f"v_mul_f32 v{t}, v{vLs[keep][0]}, v{t + 2}", f"v_fmac_f32 v{t}, v{t + 9}, v{t + 8}", f"v_rcp_f32 v{t}, v{t}", "s_nop 0",
           f"v_mul_f32 v{t + 2}, v{t + 2}, v{t}", f"v_mul_f32 v{t + 8}, v{t + 8}, v{t}", f"v_mov_b32 v{t + 3}, v{t + 2}", f"v_mov_b32 v{t + 9}, v{t + 8}"]
    m = pv(keep, 1)
    E(m[0], d1[0], fac[:6], m[1], d1[1], fac[6:], weave(m[2:], interleave2(wr, d1[2:]), 0, 6))
    E(WLG0, "s_barrier")
    RX = S[0]
    for i in range(16):
        E(LG(f"ds_read_b128 {v(RX + 4 * i, 4)}, v{t + 6 + i // 8} offset:{(i % 8) * 1024}", f"rx{i}"))
    body = []
    for f in range(8):
        b = RX + 8 * f
        body += [I(f"v_accvgpr_read_b32 v{PB + i}, a{aO + keep * 64 + 8 * f + i}") for i in range(8)]
        body += [WLG(f"rx{2 * f + 1}")]
        body += [I(f"v_pk_mul_f32 {v(b + 2 * i, 2)}, {v(b + 2 * i, 2)}, {v(t + 8, 2)}") for i in range(4)]
        body += [I(f"v_pk_fma_f32 {v(b + 2 * i, 2)}, {v(PB + 2 * i, 2)}, {v(t + 2, 2)}, {v(b + 2 * i, 2)}") for i in range(4)]
        body += [I(f"v_cvt_pk_bf16_f32 v{PB + 8 + 4 * (f % 4) + i}, v{b + 2 * i}, v{b + 2 * i + 1}") for i in range(4)]
        body += [VM(f"buffer_store_dwordx4 {v(PB + 8 + 4 * (f % 4), 4)}, v{vL16}, {s(SS, 4)}, s{sT if f < 4 else sT2} offen offset:{1024 * (f % 4)} sc1", "cs")]
    E(sprinkle(body, g_zl(1)))


def interleave2(x, y):
    out = []
    n = max(len(x), len(y))
    for i in range(n):
        out += x[(i * len(x)) // n:((i + 1) * len(x)) // n] + y[(i * len(y)) // n:((i + 1) * len(y)) // n]
    return out


def gphase(k):
    E = k.emit

    def reads(st):
        o = g_slot(st)
        sg, off = (0, o) if o < 65536 else (1, o - 65536)
        out = []
        for ks in range(4):
            for ts in range(2):
                if off + ts * 4096 < 65536:
                    out.append(LG(f"ds_read_b128 {v(vWS + (st % 2) * 32 + (ts * 4 + ks) * 4, 4)}, v{vPR + sg * 4 + ks} "
                                  f"offset:{off + ts * 4096}", f"p{st}"))
                else:
                    out.append(LG(f"ds_read_b128 {v(vWS + (st % 2) * 32 + (ts * 4 + ks) * 4, 4)}, v{ZT + 40 + ks} "
                                  f"offset:{off - 65536 + ts * 4096}", f"p{st}"))
        return out

    def mf(st):
        return [mfma(('a', (ts * 3 + f) * 16), zreg(st, f * 4 + ks),
                     ('v', vWS + (st % 2) * 32 + (ts * 4 + ks) * 4), 0 if (st == 0 and ks == 0) else None)
                for ks in range(4) for f in range(3) for ts in range(2)]

    for ks in range(4):
        E(f"v_add_u32 v{ZT + 40 + ks}, 0x20000, v{vPR + ks}")
    E("s_barrier")
    E(WVM("g0"))
    stamp(k, 10)
    E(reads(0))
    sched = {st: g_dma(st + 2) + g_zl(st + 2) for st in range(6)}
    for st in range(8):
        E(WLG(f"p{st}"))
        ld = sched.get(st, [])
        m = mf(st)
        n1 = (len(ld) * 14) // 24
        first = weave(m[:14], ld[:n1], 0, 14)
        second = ([WVM(f"g{st + 1}")] + weave(m[14:], interleave2(reads(st + 1), ld[n1:]), 0, 9)) if st + 1 < 8 else m[14:]
        if st == 6:
            fin = flat([f"s_lshl_b32 s{sT}, s{sHD}, 1\ns_add_u32 s{sT}, s{sT}, s{sG}",
                        f"s_mul_i32 s{sT2}, s{sPI}, 6\ns_mul_i32 s{sGP}, s{sRS}, 3\ns_add_u32 s{sT2}, s{sT2}, s{sGP}",
                        f"s_mul_i32 s{sGP}, s{sT}, 48\ns_add_u32 s{sGP}, s{sGP}, s{sT2}\ns_lshl_b32 s{sGP}, s{sGP}, 10\ns_add_u32 s{sGP}, s{sGP}, {WS_Z1}",
                        f"s_mul_i32 s{sGZ}, s{sT}, {CTXU_STEPS}\ns_add_u32 s{sGZ}, s{sGZ}, s{sT2}\ns_add_u32 s{sGZ}, s{sGZ}, 256",
                        f"s_lshl_b32 s{sGZ}, s{sGZ}, 10\ns_add_u32 s{sGZ}, s{sGZ}, {WS_CTXU}",
                        f"s_lshl_b32 s{sT}, s{sT}, 6\nv_and_b32 v21, 31, v0\nv_lshlrev_b32 v21, 1, v21"])
            fin += [VM(f"buffer_load_dwordx4 {v(4 + 4 * i, 4)}, v{vL16}, {s(SS, 4)}, s{sGP} offen offset:{1024 * i}{SC1}", "fin") for i in range(3)]
            fin += [VM(f"buffer_load_ushort v16, v21, {s(SB, 4)}, s{sT} offen", "fin")]
            fin += flat([f"s_mov_b32 s{SD}, s100\ns_mov_b32 s{SD + 1}, s101\ns_mov_b32 s{SD + 2}, {688 * 1024:#x}\ns_lshl_b32 s{sPF}, s2, 2\ns_add_u32 s{sPF}, s{sPF}, s{sW}\ns_lshl_b32 s{sPF}, s{sPF}, 10"])
            fin += [VM(f"buffer_load_dword v{ZT + 32}, v{vL16}, {s(SD, 4)}, s{sPF} offen", "pf")]
            fin += flat([f"v_add_u32 v20, s{sW8}, v{vL16}\nv_add_u32 v21, 0x10000, v20\ns_lshl_b32 s{sT}, s{sW}, 15\nv_add_u32 v25, s{sT}, v{vL16}"])
            for j in range(1, 4):
                fin += flat([f"s_add_u32 s{sT}, s{sW}, {j}\ns_and_b32 s{sT}, s{sT}, 3\ns_lshl_b32 s{sT}, s{sT}, 13\nv_add_u32 v{21 + j}, s{sT}, v25"])
            first = weave(m[:14], [fin[i:i + 3] for i in range(0, len(fin), 3)], 0, 14)
        if MERGE23 and st == 2:
            E(WVM("cs"), "s_barrier")
            E(f"s_lshl_b32 s{sT}, s{sPI}, 5\ns_add_u32 s{sT}, s{sT}, s{sHD}\ns_lshl_b32 s{sT}, s{sT}, 4\ns_add_u32 s{sT}, s{sT}, {WS_FCTX}")
            E(flag_set(sW, SS, sT, 17))
        if MERGE23 and st == 7:
            E(f"s_bfe_u32 s{sT}, s2, 0x10002\ns_lshl_b32 s{sT}, s{sT}, 3\ns_bfe_u32 s{sT2}, s2, 0x30003\ns_add_u32 s{sT}, s{sT}, s{sT2}\ns_sub_u32 s{sT2}, 15, s{sT}\ns_min_u32 s{sT}, s{sT}, s{sT2}")
            E(f"s_lshl_b32 s{sT}, s{sT}, 9\ns_and_b32 s{sT2}, s2, 3\ns_lshl_b32 s{sT2}, s{sT2}, 7\ns_add_u32 s{sT}, s{sT}, s{sT2}\ns_add_u32 s{sFL}, s{sT}, {WS_FCTX}")
            E(wave0(sW, [I("v_and_b32 v17, 7, v0"), I("v_lshlrev_b32 v17, 4, v17"),
                         VMG(f"buffer_load_ubyte v18, v17, {s(SS, 4)}, s{sFL} offen sc0 sc1", "poll")]))
        lstamp(k, 19, 32 + 3 * st)
        E(first)
        lstamp(k, 19, 33 + 3 * st)
        E(second[:1])
        lstamp(k, 19, 34 + 3 * st)
        E(second[1:])
    stamp(k, 11)
    E("s_nop 7")
    for d in range(4):
        E(f"s_cmp_eq_u32 s{sW}, {d}\ns_cbranch_scc1 K2_GO{d}")
        for i in range(3):
            fr = 3 * d + i
            for q in range(2):
                E(f"ds_write_b128 v{20 + d // 2}, {a(fr * 8 + 4 * q, 4)} offset:{(d % 2) * 32768 + (i * 2 + q) * 1024}")
        E(f"s_branch K2_GN{d}\nK2_GO{d}:")
        for i in range(3):
            for r in range(8):
                E(f"v_accvgpr_read_b32 v{48 + i * 32 + r}, a{(3 * d + i) * 8 + r}")
        E(f"K2_GN{d}:")
    if MERGE23:
        E(flag_poll_check(sW, SS, sFL, 17))
    E(WLG0, "s_barrier")
    for i in range(3):
        for j in range(1, 4):
            for q in range(2):
                E(LG(f"ds_read_b128 {v(48 + i * 32 + j * 8 + q * 4, 4)}, v{21 + j} offset:{(i * 2 + q) * 1024}", f"x{i}"))
    E(WVM("fin"), "v_lshlrev_b32 v16, 16, v16")
    for i in range(3):
        E(WLG(f"x{i}"))
        b = 48 + i * 32
        for r in range(8):
            E(f"v_add_f32 v{b + r}, v{b + r}, v{b + 8 + r}\nv_add_f32 v{b + 16 + r}, v{b + 16 + r}, v{b + 24 + r}")
        for r in range(8):
            E(f"v_add_f32 v{b + r}, v{b + r}, v16")
        for r in range(8):
            E(f"v_add_f32 v{b + r}, v{b + r}, v{b + 16 + r}")
        for r in range(4):
            z = 4 + 4 * i + r
            E(f"v_lshlrev_b32 v26, 16, v{z}\nv_and_b32 v27, 0xffff0000, v{z}")
            E(f"v_mul_f32 v{b + 2 * r}, v{b + 2 * r}, v26\nv_mul_f32 v{b + 2 * r + 1}, v{b + 2 * r + 1}, v27")
        for r in range(4):
            E(f"v_cvt_pk_bf16_f32 v{b + r}, v{b + 2 * r}, v{b + 2 * r + 1}")
        E(VM(f"buffer_store_dwordx4 {v(b, 4)}, v{vL16}, {s(SS, 4)}, s{sGZ} offen offset:{1024 * i} sc1", "us"))


def build(k=None):
    merged = k is not None
    if not merged:
        k = Kern("k2_kernel")
    E = k.emit
    if not merged:
        E("s_cmp_ge_u32 s2, 256\ns_cbranch_scc1 K2_END")
        code_prefetch(k, "L_CODE_END" if MERGE23 else "k3_kernel", 0, 248)
    stamp_init(k)
    stamp(k, 0)
    E(f"s_load_dwordx2 s[64:65], s[0:1], {KA_WQ}")
    E(f"s_load_dwordx4 s[72:75], s[0:1], {KA_DBG}")
    E(f"s_load_dwordx4 s[68:71], s[0:1], {KA_WSP}")
    if not merged:
        E("v_lshrrev_b32 v1, 6, v0\nv_and_b32 v0, 63, v0")
    E(f"s_and_b32 s{sHD}, s2, 7\ns_lshl_b32 s{sHD}, s{sHD}, 2\ns_lshr_b32 s{sT}, s2, 3\ns_lshr_b32 s{sPI}, s{sT}, 2")
    if not merged:
        E(f"v_readfirstlane_b32 s{sW}, v1")
    E(f"s_and_b32 s{sT}, s{sT}, 3\ns_add_u32 s{sHD}, s{sHD}, s{sT}")
    E(f"s_and_b32 s{sRS}, s{sW}, 1\ns_lshr_b32 s{sG}, s{sW}, 1\ns_lshl_b32 s{sW8}, s{sW}, 13")
    E(f"v_lshlrev_b32 v{vL16}, 4, v0")
    E("v_and_b32 v20, 31, v0\nv_lshrrev_b32 v21, 5, v0\nv_lshrrev_b32 v22, 4, v0")
    E("v_bfe_u32 v23, v0, 2, 2\nv_and_b32 v24, 3, v0\nv_bfe_u32 v25, v0, 4, 1")
    E("v_xor_b32 v26, v23, v22\nv_lshlrev_b32 v27, 13, v22\nv_lshl_add_u32 v27, v26, 6, v27\nv_lshl_add_u32 v27, v24, 4, v27")
    for i in range(4):
        E(f"v_add_u32 v{vQD + i}, {i * (32768 - 1024)}, v27")
    E(f"s_sub_u32 s{sT}, 15, s{sPI}\ns_cmp_eq_u32 s{sG}, 0\ns_cselect_b32 s{sT}, s{sT}, s{sPI}")
    E(f"s_lshl_b32 s{sTD}, s{sT}, 1\ns_add_u32 s{sTD}, s{sTD}, s{sRS}\ns_lshl_b32 s{sXN}, s{sTD}, 16\ns_add_u32 s{sXN}, s{sXN}, {WS_XN}")
    E(f"s_lshl_b32 s{sWQ}, s{sW}, 17\ns_lshl_b32 s{sT}, s{sHD}, 8\ns_add_u32 s{sWQ}, s{sWQ}, s{sT}\ns_lshl_b32 s{sWM}, s{sW}, 12")
    E("s_waitcnt lgkmcnt(0)")
    E(srd(SQ, 64, 512 * 8192), srd(SS, 74, WS_SIZE))
    if not merged:
        for j in range(2):
            E(wq_dma(j), xn_loads(j))
    E(srd(SP, 68, 2048 * 4096), srd(SB, 70, 4096), srd(SD, 68, 2048 * 4096))
    E("v_lshl_add_u32 v26, v21, 3, v23\nv_lshlrev_b32 v26, 8, v26\nv_lshl_add_u32 v26, v25, 5, v26\nv_lshl_add_u32 v26, v24, 3, v26")
    for d in range(4):
        E(f"v_xor_b32 v27, {d}, v23\nv_lshl_add_u32 v{vQR + d}, v27, 6, v26\nv_add_u32 v{vQR + 4 + d}, 0x10000, v{vQR + d}")
    E(f"v_mov_b32 v{vKc}, v{vL16}\nv_add_u32 v{vKn}, 32768, v{vKc}\nv_add_u32 v{vVc}, {VB0}, v{vKc}\nv_mov_b32 v{vVp}, v{vVc}")
    E(f"v_lshlrev_b32 v26, 2, v21\nv_sub_u32 v{vD0}, v20, v26\nv_mov_b32 v{vNEG}, {fbits(NEG)}")
    E(f"s_lshl_b32 s{sKN}, s{sHD}, 19\ns_lshl_b32 s{sT}, s{sRS}, 13\ns_add_u32 s{sKN}, s{sKN}, s{sT}\ns_add_u32 s{sKN}, s{sKN}, {WS_KF}")
    E(f"s_lshl_b32 s{sT}, s{sPI}, 1\ns_add_u32 s{sT}, s{sT}, 2\ns_sub_u32 s{sT2}, 18, s{sT}\ns_lshl_b32 s{sT2}, s{sT2}, 14")
    E(f"s_sub_u32 s{sT2}, s{sT2}, 0x20000000\ns_sub_u32 s{sSW2}, s{sT}, 2\ns_lshl_b32 s{sU}, s{sG}, 29\ns_add_u32 s{sKN}, s{sKN}, s{sU}")
    E(f"s_cmp_eq_u32 s{sG}, 0\ns_cselect_b32 s{sSW}, 8, s{sT}\ns_cselect_b32 s{sJUMP}, 0x20000000, s{sT2}\ns_cselect_b32 s{sSW2}, 15, s{sSW2}")
    E(f"s_lshl_b32 s{sFL}, s{sPI}, 8\ns_add_u32 s{sFL}, s{sFL}, {WS_FLAG2}\ns_lshl_b32 s{sPF}, s2, 2\ns_add_u32 s{sPF}, s{sPF}, s{sW}\ns_lshl_b32 s{sPF}, s{sPF}, 10\ns_mov_b32 s30, 0x100000")
    E(f"s_load_dwordx2 s[28:29], s[0:1], {KA_WO}\ns_load_dwordx2 s[100:101], s[0:1], {KA_WOUT}\ns_waitcnt lgkmcnt(0)")
    if "nowsp" in EXP:
        E(f"s_mov_b32 s{sPF}, 0x1000000")
    if merged:
        import k1
        E(f"s_mov_b32 s98, 0x20000000\ns_cmp_eq_u32 s{sG}, 1\ns_cbranch_scc1 K2_ZE2")
        st0 = (list(k.vm), list(k.lg))
        E(k1.z_epilogue(False, SS, vL16, 20, 21, sRS, 0), "s_branch K2_ZE")
        k.set_state(*st0)
        E("K2_ZE2:")
        E(k1.z_epilogue(True, SS, vL16, 20, 21, sRS, 0))
        E("K2_ZE:")
        E("s_barrier")
        for j in range(2):
            E(wq_dma(j), xn_loads(j))
    stamp(k, 5)
    rstamp(k, 19, 24)
    qproj(k)
    if MERGE12:
        E(WLG0, "s_barrier")
        E("v_and_b32 v20, 31, v0\nv_lshrrev_b32 v21, 5, v0", k.zc)
    E(VM(f"buffer_load_dword v{ZT + 40}, v{vL16}, {s(SD, 4)}, s{sPF} offen", "pf"), f"s_add_u32 s{sPF}, s{sPF}, s30")
    gm, wrapped, pin = schedule_loop()
    gmd, wrapped_d, pin_d = schedule_loop('D', pin)
    gmf, wrapped_f, pin_f = schedule_loop('F', pin)
    gmx, wrapped_x, pin_x = schedule_loop('X', pin)
    assert pin == pin_x
    assert pin == pin_d and pin == pin_f
    wtxt = [it[1] for it in flat(wrapped)]
    for r in range(16):
        E(f"v_mov_b32 v{P(1, 0) + r}, 0\nv_mov_b32 v{NEGM[0] + r}, 0\nv_mov_b32 v{NEGM[1] + r}, 0")
        late = f"v_exp_f32 v{S[1] + r}, v{S[1] + r}" in wtxt
        E(f"v_mov_b32 v{S[1] + r}, {'v%d' % vNEG if late else '0'}")
    assert not any(f"v{S[0] + r}," in w or w.endswith(f"v{S[0] + r}") for w in wtxt for r in range(16))
    for r in (8, 9, 10, 11, 12, 13):
        E(f"v_mov_b32 v{r}, 0")
    E(f"v_mov_b32 v{vT}, 0x7f800000")
    for r0 in range(0, 16, 4):
        for r in range(r0, r0 + 4):
            E(f"v_cmp_gt_i32 s[{64 + 2 * (r % 4)}:{65 + 2 * (r % 4)}], {8 * (r // 4) + r % 4}, v{vD0}")
        for r in range(r0, r0 + 4):
            E(f"v_cndmask_b32 v{MSK + r}, v{vT}, v{vNEG}, s[{64 + 2 * (r % 4)}:{65 + 2 * (r % 4)}]")
    E(f"s_mov_b32 s{sEV}, 0\ns_mov_b32 s{sDG}, 0")
    for x in range(2):
        E(f"s_mov_b32 s{sTH[x]}, {NINF}\ns_mov_b32 s{sLO[x]}, {NINF}")
    for i in range(8):
        E(mfma(('a', aO + 16 * i), ('v', P(1, 0)), ('v', P(1, 0)), 0))
    E(f"s_mov_b32 s{sU}, 0\ns_mov_b32 s{sTL}, 0\ns_mov_b32 s{sMK}, s{sW8}\ns_add_u32 s{sMV}, s{sW8}, {VB0 + 32768}")
    E(WLG0)
    stamp(k, 1)
    rstamp(k, 19, 26)
    dstamp(k, 4)
    def body(gm_, sf):
        diag = sf == "D"
        k.set_state(["kv"] * 16 + ["pf"], ["k"] * 8)
        main = qk(0) + qk(1) + pv(0, 1) + pv(1, 1) + qk(0) + qk(1) + pv(0, 0) + pv(1, 0)
        skip = set(range(32, 40)) if diag else (set(range(0, 16)) | set(range(32, 64))) if sf == 'X' else set()
        main = [I("s_nop 0") if i in skip else m for i, m in enumerate(main)]
        gm_[-1] = [I(f"K2_SWRET{sf}:"), WLG("k")]
        if sf:
            gm_[31] = gm_[31] + [I(f"s_cmp_eq_u32 s{sU}, s{sSW}"), I("s_cbranch_scc1 K2_FINB"), I(f"K2_FBRET{sf}:")]
        gm_[63] = gm_[63] + [I(f"s_cmp_lt_u32 s{sU}, 17"), I("s_cbranch_scc1 K2_LOOP")]
        bd = place(main, gm_)

        def drop(it):
            tx = it[1] if len(it) > 1 and isinstance(it[1], str) else ""
            if "nodma" in EXP and ("buffer_load" in tx): return True
            if "nobar" in EXP and tx == "s_barrier": return True
            if "nowait" in EXP and ("s_waitcnt" in tx or it[0] in ('wlg',)): return True
            if "noread" in EXP and tx.startswith("ds_read"): return True
            if "nobr" in EXP and ("K2_RARE" in tx or "K2_FINB" in tx): return True
            return False
        E([it for it in bd if not drop(it)])

    E(".p2align 6")
    for _ in range(int(os.environ.get("PAD", "0"))):
        E("s_nop 0")
    E("K2_LOOP:")
    if PROF and os.environ.get("PROF2"):
        E("s_memtime s[78:79]", "s_waitcnt lgkmcnt(0)", f"s_mov_b32 m0, s{sU}", "s_nop 0", "v_writelane_b32 v255, s78, m0")
    E(f"s_cmp_eq_u32 s{sU}, s{sEV}\ns_cbranch_scc1 K2_EVENT")
    body(gm, '')
    E("K2_TAIL:")
    stamp(k, 8)
    rstamp(k, 19, 28)
    dstamp(k, 5)
    if PROF:
        E(f"s_lshl_b32 s78, s2, 2\ns_add_u32 s78, s78, s{sW}\ns_lshl_b32 s78, s78, 8\ns_add_u32 s78, s78, {WS_PROF + 0x100000}\nv_lshlrev_b32 v254, 2, v0")
        E(f"buffer_store_dword v255, v254, {s(SS, 4)}, s78 offen")
    E(vreads(vVp, 1))
    gs = g_setup()
    E(gs[-2:])
    t = vT
    tl = flat(wrapped)
    for x in range(2):
        tl += flat([f"v_add_f32 v{vLs[x][0]}, v{vLs[x][0]}, v{vLs[x][1]}"])
    for x in range(2):
        tl += flat([f"v_mov_b32 v{vLs[x][1]}, v{vLs[x][0]}"])
    tl += flat([f"v_add_u32 v{t + 4}, s{sW8}, v{vL16}\nv_and_b32 v{t + 5}, 0x18000, v{vVp}"])
    for x in range(2):
        tl += flat([f"v_permlane32_swap_b32 v{vLs[x][0]}, v{vLs[x][1]}"])
    tl += flat([f"v_add_u32 v{t + 5}, v{t + 5}, v{t + 4}\nv_add_u32 v{t + 4}, {SPARE}, v{t + 4}"])
    for x in range(2):
        tl += flat([f"v_add_f32 v{vLs[x][0]}, v{vLs[x][0]}, v{vLs[x][1]}"])
    tl += [[I(f"s_cmp_eq_u32 s{sG}, 0"), I("s_cselect_b64 vcc, -1, 0")]]
    tl += flat([f"v_xor_b32 v{t + 6}, 0x4000, v{t + 4}\nv_xor_b32 v{t + 7}, 0x4000, v{t + 5}",
                f"v_cndmask_b32 v{t + 8}, v{vNM[0]}, v{vNM[1]}, vcc\nv_cndmask_b32 v{t + 9}, v{vLs[0][0]}, v{vLs[1][0]}, vcc"])
    tl += [LG(f"ds_write_b64 v{t + 6}, {v(t + 8, 2)}")]
    tl += flat(gs[:-2])
    tl += flat([f"s_sub_u32 s{sT}, 15, s{sPI}\ns_lshl_b32 s{sT}, s{sT}, 2\ns_lshl_b32 s{sT2}, s{sRS}, 1\ns_add_u32 s{sT}, s{sT}, s{sT2}\ns_add_u32 s{sT}, s{sT}, s{sG}",
                f"s_mul_i32 s{sT}, s{sT}, {CTXU_STEPS}\ns_lshl_b32 s{sT2}, s{sHD}, 3\ns_add_u32 s{sT}, s{sT}, s{sT2}",
                f"s_lshl_b32 s{sT}, s{sT}, 10\ns_add_u32 s{sT}, s{sT}, {WS_CTXU}\ns_add_u32 s{sT2}, s{sT}, 4096"])
    zz = g_zl(0)
    out_, gi = [], 0
    for i, it in enumerate(tl):
        while gi < len(zz) and gi * len(tl) <= i * len(zz):
            out_.append(zz[gi])
            gi += 1
        out_.append(it)
    E(out_, zz[gi:])
    E(WVM("pf"), WLG0, "s_barrier")
    E(f"s_cmp_eq_u32 s{sG}, 1\ns_cbranch_scc1 K2_MERGE1")
    st = (list(k.vm), list(k.lg))
    merge(k, 0)
    E("s_branch K2_G")
    k.set_state(*st)
    E("K2_MERGE1:")
    merge(k, 1)
    E("K2_G:")
    stamp(k, 3)
    gphase(k)
    if PROF and not MERGE23:
        E(WVM0)
    stamp(k, 4)
    rstamp(k, 19, 30)
    dstamp(k, 6)
    lstamp_store(k, 1, 19, 28, SS, sW)
    if PROF:
        E(f"s_mov_b32 s95, s{sPI}")
    stamp_store(k, 1, SS, sW, 208)
    if MERGE23:
        import k3
        E(f"s_mov_b64 exec, -1\ns_lshl_b32 s{sT}, s{sHD}, 3\ns_add_u32 s{sT}, s{sT}, s{sPI}\ns_lshl_b32 s{sT}, s{sT}, 4\ns_add_u32 s50, s{sT}, {WS_FU}")
        k3.build(k)
    E("K2_END:")
    E("s_endpgm")
    for x in range(2):
        for buf in range(2):
            rare_path(k, x, buf)
    hooks(k)
    body(gmd, 'D')
    E("s_branch K2_TAIL")
    body(gmf, 'F')
    E("s_branch K2_TAIL")
    body(gmx, 'X')
    E("s_branch K2_TAIL")
    if merged:
        return
    return k.text(512, 256)
```

```python
from asmlib import *
from common import *
import os

THRESH = float(os.environ.get("THRESH", "32.0"))
BUDGET = int(os.environ.get("BUDGET", "25"))
EXP = os.environ.get("EXP2", "")

SQ, SP, SB, SS, SD = 8, 12, 16, 20, 24
sW, sHD, sPI, sG, sRS = 32, 33, 34, 35, 36
sT, sT2, sU, sSW, sSW2, sJUMP, sTL, sTD = 37, 38, 39, 40, 41, 42, 43, 44
sKN, sKO2, sVO, sVO2, sMK, sMV = 45, 46, 47, 48, 49, 50
sTH = (51, 52)
sLO = (53, 54)
sXN, sWQ, sWM, sW8, sDO = 55, 56, 57, 59, 58
sGP, sGZ, sGM, sFL, sPF, sEV, sDG = 60, 61, 62, 63, 76, 77, 31
NINF = "0xff800000"
SC1 = " sc1" if MERGE12 else ""

vL16, vKc, vKn, vVp, vVc, vD0, vNEG = 1, 2, 3, 4, 5, 6, 7
vLs = ((8, 9), (10, 11))
vNM = (12, 13)
vM = 14
vLSV = (30, 31)
vT = 20
vQD = 32
vQR = 36
S = (48, 64)
NEGM = (80, 96)
PB = 112
QBS = 144
ZT = 208
NEGB = 208
MSK = 224
vPL = 240
aO, aQ, aK, aV = 0, 128, 192, 224

KB0, VB0, SPARE = 0, 65536, 131072
NEG = -1.0e30


def P(buf, x, i=0):
    return PB + (buf * 2 + x) * 8 + i


def dma4(so, tag="kv"):
    return [VM(f"buffer_load_dwordx4 v{vL16}, {s(SS, 4)}, s{so} offen offset:{1024 * i}{SC1} lds", tag) for i in range(4)]


def qk(x, cin=None):
    return [mfma(('v', S[x]), ('a', aK + 4 * d), ('a', aQ + (x * 8 + d) * 4), ('v', NEGM[x] if cin is None else cin) if d == 0 else None)
            for d in range(8)]


def pv(x, buf):
    return [mfma(('a', aO + (x * 4 + ds) * 16), ('a', aV + (ds * 2 + g) * 4), ('v', P(buf, x, 4 * g)))
            for g in range(2) for ds in range(4)]


def kreads(areg, th):
    return [LG(f"ds_read_b128 {a(aK + 4 * d, 4)}, v{areg} offset:{th * 8192 + d * 1024}", "k") for d in range(8)]


def vreads(areg, th):
    return [LG(f"ds_read_b128 {a(aV + 4 * f, 4)}, v{areg} offset:{th * 8192 + f * 1024}", "v") for f in (0, 2, 4, 6, 1, 3, 5, 7)]


def sm_max(x):
    b, m = S[x], vM
    return [(4, I(t)) for t in (
        f"v_max3_f32 v{m}, v{b}, v{b + 1}, v{b + 2}", f"v_max3_f32 v{m + 1}, v{b + 3}, v{b + 4}, v{b + 5}",
        f"v_max3_f32 v{m + 2}, v{b + 6}, v{b + 7}, v{b + 8}", f"v_max3_f32 v{m + 3}, v{b + 9}, v{b + 10}, v{b + 11}",
        f"v_max3_f32 v{m + 4}, v{b + 12}, v{b + 13}, v{b + 14}", f"v_max3_f32 v{m}, v{m}, v{m + 1}, v{b + 15}",
        f"v_max3_f32 v{m + 2}, v{m + 2}, v{m + 3}, v{m + 4}", f"v_max_f32 v{m}, v{m}, v{m + 2}")]


def sm_chk(x, buf):
    return (8, [I(f"v_cmp_lt_f32 vcc, s{sTH[x]}, v{vM}"), I(f"s_cbranch_vccnz K2_RARE_{x}_{buf}"), I(f"K2_RET_{x}_{buf}:")])


def sm_fin(x, buf, i):
    b = S[x]
    return [(4, I(f"v_add_f32 v{vLs[x][0]}, v{vLs[x][0]}, v{b + 2 * i}")),
            (4, I(f"v_add_f32 v{vLs[x][1]}, v{vLs[x][1]}, v{b + 2 * i + 1}")),
            (4, I(f"v_cvt_pk_bf16_f32 v{P(buf, x, i)}, v{b + 2 * i}, v{b + 2 * i + 1}"))]


def sm_exp(x, buf):
    b = S[x]
    items = []
    for i in range(8):
        items.append((8, I(f"v_exp_f32 v{b + 2 * i}, v{b + 2 * i}")))
        items.append((8, I(f"v_exp_f32 v{b + 2 * i + 1}, v{b + 2 * i + 1}")))
        if i > 0:
            items += sm_fin(x, buf, i - 1)
    return items + sm_fin(x, buf, 7)


CAP = int(os.environ.get("CAP", "24"))


def schedule_loop(var='', pin=None):
    NG = 64
    T = NG + 16
    mem = [[] for _ in range(T)]
    alu = [[] for _ in range(T)]
    used = [0] * NG
    sfx = var
    diag, first, full = var == 'D', var == 'F', var == 'X'

    def fixed(g, cost, item, is_mem=True):
        (mem if is_mem else alu)[g].append(item)
        used[g % NG] += cost

    def spread_mem(g0, n, items):
        for i, r in enumerate(items):
            fixed(g0 + (i * n) // len(items), 4, r)

    spread_mem(0, 13, vreads(vVp, 1))
    if not full:
        spread_mem(16, 10, kreads(vKc, 1))
        spread_mem(32, 13, vreads(vVc, 0))
    spread_mem(48, 13, kreads(vKn, 0))
    BAR = int(os.environ.get("BAR", "27"))
    fixed(BAR, 8, [I("s_waitcnt vmcnt(1) lgkmcnt(0)"), ('reset',), I("s_barrier")])
    g = BAR + 1
    dgaps = []
    for so in (sKN, sKO2, sVO, sVO2):
        for d in dma4(so):
            fixed(g, 8, d)
            dgaps.append(g)
            g += 2
    fixed(g, 8, VM(f"buffer_load_dword v{ZT + 40}, v{vL16}, {s(SD, 4)}, s{sPF} offen", "pf"))
    gpf = g
    tail = {15: [WLG("v")], 47: [WLG("v")], 63: []}
    for g_ in (15, 47):
        used[g_] += 4
    used[63] += 4 + 13 + 13
    if var:
        used[31] += 13
    jobs = []

    def job(name, cost, item, e, l, deps=(), later=None):
        jobs.append(dict(name=name, cost=cost, item=item, e=e, l=l, deps=list(deps), later=later))

    job("vo", 4, I(f"s_add_u32 s{sVO}, s{sKN}, {WS_VF - WS_KF}"), 0, BAR - 2)
    job("vo2", 4, I(f"s_add_u32 s{sVO2}, s{sKN}, {WS_VF - WS_KF + 4096}"), 0, BAR - 2)
    job("kn", 12, [I(f"s_cmp_eq_u32 s{sU}, s{sSW2}"), I(f"s_cselect_b32 s{sKO2}, s{sJUMP}, 0x4000"), I(f"s_add_u32 s{sKN}, s{sKN}, s{sKO2}")],
        0, BAR - 1, ["vo", "vo2"])
    job("ko2", 4, I(f"s_add_u32 s{sKO2}, s{sKN}, 4096"), 0, BAR, ["kn"])
    job("m0a", 4, I(f"s_mov_b32 m0, s{sMK}"), 0, BAR)
    job("m0b", 4, I(f"s_add_u32 m0, s{sMK}, 4096"), dgaps[3], dgaps[4] - 1)
    job("m0c", 4, I(f"s_mov_b32 m0, s{sMV}"), dgaps[7], dgaps[8] - 1)
    job("m0d", 4, I(f"s_add_u32 m0, s{sMV}, 4096"), dgaps[11], dgaps[12] - 1)
    job("pfa", 4, I(f"s_add_u32 s{sPF}, s{sPF}, s30"), gpf, 63)
    job("xk", 4, I(f"s_xor_b32 s{sMK}, s{sMK}, 0x8000"), dgaps[4], 63, ["m0b"])
    job("xv", 4, I(f"s_xor_b32 s{sMV}, s{sMV}, 0x8000"), dgaps[12], 63, ["m0d"])
    job("vp", 4, I(f"v_mov_b32 v{vVp}, v{vVc}"), 13, 44)
    job("vc", 4, I(f"v_xor_b32 v{vVc}, 0x8000, v{vVc}"), 45, 63, ["vp"])
    job("kc", 4, I(f"v_xor_b32 v{vKc}, 0x8000, v{vKc}"), 26, 63)
    job("kx", 4, I(f"v_xor_b32 v{vKn}, 0x8000, v{vKn}"), 61, 63)
    job("tl", 4, I(f"s_add_u32 s{sTL}, s{sTL}, 1"), 56, 63)
    job("u", 4, I(f"s_add_u32 s{sU}, s{sU}, 1"), 32, 63)
    for half in range(2):
        G = 8 + 32 * half
        for x in range(2):
            e0 = G + 1 + 8 * x
            pre = f"{half}{x}"
            prev = [f"{half}0chk"] if x == 1 else []
            if diag and half == x:
                for r in range(16):
                    job(f"{pre}mk{r}", 4, I(f"v_min_f32 v{S[x] + r}, v{S[x] + r}, v{MSK + r}"), e0, e0 + 4, prev)
                prev = prev + [f"{pre}mk{r}" for r in range(16)]
            for i, (c, it) in enumerate(sm_max(x)):
                job(f"{pre}m{i}", c, it, e0, e0 + 5, prev + ([f"{pre}m{i - 1}"] if i else []))
            dl = G + 23 + 8 * x
            b_ = S[x]
            if first and half == 0:
                d_ = vT + x
                job(f"{pre}f0", 4, I(f"v_mov_b32 v{d_}, v{vM}"), e0, e0 + 8, [f"{pre}m7"])
                job(f"{pre}f1", 8, [I("s_nop 0"), I(f"v_permlane32_swap_b32 v{vM}, v{d_}")], e0, e0 + 9, [f"{pre}f0"], later=f"{pre}f0")
                job(f"{pre}chk", 12, [I(f"v_max_f32 v{d_}, v{d_}, v{vM}"), I(f"v_ceil_f32 v{d_}, v{d_}"), I(f"v_sub_f32 v{vNM[x]}, 0, v{d_}")],
                    e0, e0 + 10, [f"{pre}f1"], later=f"{pre}f1")
                job(f"{pre}ls", 12, [I(f"v_add_f32 v{vLSV[x]}, v{vLs[x][0]}, v{vLs[x][1]}"), I(f"v_mov_b32 v{vLs[x][0]}, 0"), I(f"v_mov_b32 v{vLs[x][1]}, 0")],
                    e0, e0 + 8)
                for r in range(16):
                    job(f"{pre}s{r}", 4, I(f"v_sub_f32 v{b_ + r}, v{b_ + r}, v{d_}"), e0, dl - 2, [f"{pre}chk", f"{pre}ls"])
                    job(f"{pre}n{r}", 4, I(f"v_mov_b32 v{NEGM[x] + r}, v{vNM[x]}"), e0, dl - 1, [f"{pre}chk"])
            else:
                job(f"{pre}cmp", 4, I(f"v_cmp_lt_f32 vcc, s{sTH[x]}, v{vM}"), e0, e0 + 5, [f"{pre}m7"])
                job(f"{pre}chk", 9, [I(f"s_cbranch_vccnz K2_RARE_{x}_{half}"), I(f"K2_RET{sfx}_{x}_{half}:")],
                    e0, e0 + 6, [f"{pre}cmp"], later=f"{pre}cmp")
            for r in range(16):
                job(f"{pre}e{r}", 8, I(f"v_exp_f32 v{b_ + r}, v{b_ + r}"), e0, dl - 1,
                    [f"{pre}s{r}" if (first and half == 0) else f"{pre}chk"] + ([f"{pre}e{r - 1}"] if r else []))
            for i in range(8):
                f3 = sm_fin(x, half, i)
                job(f"{pre}a{2 * i}", 4, f3[0][1], e0, dl, [f"{pre}e{2 * i + 1}"])
                job(f"{pre}a{2 * i + 1}", 4, f3[1][1], e0, dl, [f"{pre}a{2 * i}"])
                job(f"{pre}c{i}", 4, f3[2][1], e0, dl, [f"{pre}a{2 * i + 1}"])
    if diag:
        jobs[:] = [j for j in jobs if not j['name'].startswith("10")]
        for j in jobs:
            j['deps'] = [d for d in j['deps'] if not d.startswith("10")]
        for i in range(8):
            job(f"zp{i}", 4, I(f"v_mov_b32 v{P(1, 0, i)}, 0"), 32, 60)
    if full:
        jobs[:] = [j for j in jobs if j['name'][0] not in "01" or j['name'] in pin]
        names = {j['name'] for j in jobs}
        for j in jobs:
            j['deps'] = [d for d in j['deps'] if d in names]
            if j['later'] not in names:
                j['later'] = None
        for i in range(16):
            job(f"zp{i}", 4, I(f"v_mov_b32 v{P(1, 0, i)}, 0"), 34, 60)
            job(f"zs{i}", 4, I(f"v_mov_b32 v{S[1] + i}, {'v%d' % vNEG if f'11e{i}' in pin else '0'}"), 9, 60)
    if pin is not None:
        for j in jobs:
            if j['name'] in pin:
                j['e'] = j['l'] = pin[j['name']]
            else:
                j['l'] = min(j['l'], 63)
    done = {}
    rest = list(jobs)
    order = list(range(9, NG + 9))
    remaining = sum(j['cost'] for j in jobs)
    for gi, g in enumerate(order):
        gm_ = g % NG
        free_after = sum(max(0, CAP - used[h % NG]) for h in order[gi + 1:])
        while True:
            cand = []
            for j in rest:
                e, l = j['e'], j['l']
                if l < 9 or (e < 9 and j['name'][0] not in "01" and False):
                    e, l = e + NG, l + NG
                if e <= g and all(d in done for d in j['deps']) and (j['later'] is None or done[j['later']] < g):
                    cand.append((l, j))
            if not cand:
                break
            cand.sort(key=lambda z: z[0])
            room = CAP - used[gm_]
            pick = None
            for l, j in cand:
                if j['cost'] <= room:
                    pick = j
                    break
            if pick is None:
                urgent = [j for l, j in cand if l <= g]
                if urgent:
                    pick = urgent[0]
                elif remaining > free_after and room > -4 and room + 4 >= min(j['cost'] for _, j in cand):
                    pick = min((j for _, j in cand), key=lambda j: j['cost'])
                else:
                    break
            alu[g].append(pick['item'])
            used[gm_] += pick['cost']
            remaining -= pick['cost']
            done[pick['name']] = g
            rest.remove(pick)
    assert not rest, [j['name'] for j in rest]
    for j in jobs:
        l = j['l'] + (NG if j['l'] < 9 else 0)
        assert done[j['name']] <= l, (j['name'], done[j['name']], l)
    est = sum(max(32, 8 + u) for u in used)
    if os.environ.get("SCHED"):
        print("loop estimate", est, used)
    wrapped = []
    for g in range(NG, T):
        wrapped += [it for it in alu[g] if "v_" in str(it) and "s_cselect" not in str(it)]
    gm = {}
    for g in range(NG):
        gm[g] = mem[g] + (alu[g + NG] if g + NG < T else []) + alu[g] + tail.get(g, [])
    return gm, wrapped, {n: g for n, g in done.items() if g >= NG}


def rare_ret(L):
    r = f"s_cmp_eq_u32 s{sDG}, 0\ns_cbranch_scc1 K2_RET_{L}\n"
    if L.endswith("_1"):
        r += f"s_cmp_eq_u32 s{sDG}, 2\ns_cbranch_scc1 K2_RETF_{L}\n"
    if L == "0_1":
        return f"s_cmp_eq_u32 s{sDG}, 0\ns_cbranch_scc1 K2_RET_{L}\ns_branch K2_RETF_{L}"
    return r + f"s_branch K2_RETD_{L}"


def rare_path(k, x, buf):
    E = k.emit
    t = vT
    L = f"{x}_{buf}"
    E(f"K2_RARE_{L}:")
    E(f"s_mov_b32 s{sTH[x]}, {fbits(THRESH)}")
    E(f"v_mov_b32 v{t}, v{vM}\ns_nop 1\nv_permlane32_swap_b32 v{vM}, v{t}\ns_nop 1")
    E(f"v_max_f32 v{t}, v{t}, v{vM}\nv_ceil_f32 v{t}, v{t}\nv_max_f32 v{t}, s{sLO[x]}, v{t}")
    E(f"v_sub_f32 v{vNM[x]}, v{vNM[x]}, v{t}")
    for r in range(16):
        E(f"v_sub_f32 v{S[x] + r}, v{S[x] + r}, v{t}")
        E(f"v_mov_b32 v{NEGM[x] + r}, v{vNM[x]}")
    E(f"s_cmp_eq_u32 s{sLO[x]}, 0\ns_cbranch_scc1 K2_RSC_{L}")
    E(f"v_add_f32 v{vLSV[x]}, v{vLs[x][0]}, v{vLs[x][1]}\nv_mov_b32 v{vLs[x][0]}, 0\nv_mov_b32 v{vLs[x][1]}, 0")
    E(f"s_mov_b32 s{sLO[x]}, 0", rare_ret(L))
    E(f"K2_RSC_{L}:")
    E(f"v_sub_f32 v{t + 1}, 0, v{t}\nv_exp_f32 v{t + 1}, v{t + 1}\ns_nop 0")
    E(f"v_mul_f32 v{vLs[x][0]}, v{vLs[x][0]}, v{t + 1}\nv_mul_f32 v{vLs[x][1]}, v{vLs[x][1]}, v{t + 1}")
    for i in range(8):
        p = P(1 - buf, x, i)
        E(f"v_lshlrev_b32 v{t + 2}, 16, v{p}\nv_and_b32 v{t + 3}, 0xffff0000, v{p}")
        E(f"v_mul_f32 v{t + 2}, v{t + 2}, v{t + 1}\nv_mul_f32 v{t + 3}, v{t + 3}, v{t + 1}")
        E(f"v_cvt_pk_bf16_f32 v{p}, v{t + 2}, v{t + 3}")
    E("s_nop 15")
    for r in range(0, 64, 4):
        for i in range(4):
            E(f"v_accvgpr_read_b32 v{t + 2 + i}, a{aO + x * 64 + r + i}")
        for i in range(4):
            E(f"v_mul_f32 v{t + 2 + i}, v{t + 2 + i}, v{t + 1}")
        for i in range(4):
            E(f"v_accvgpr_write_b32 a{aO + x * 64 + r + i}, v{t + 2 + i}")
    E(rare_ret(L))


def ctx_addr(sqb_expr, x_in_addr):
    pass


def hooks(k):
    E = k.emit
    E("K2_EVENT:")
    if MERGE12:
        E(f"s_cmp_lg_u32 s{sU}, 1\ns_cbranch_scc1 K2_EV0")
        E(f"s_cmp_lg_u32 s{sW}, 0\ns_cbranch_scc1 K2_EV0")
        E(f"v_mov_b32 v{vPL}, 1\nv_mov_b32 v{vPL + 1}, 0\ns_mov_b64 exec, 1\nbuffer_store_byte v{vPL}, v{vPL + 1}, {s(SS, 4)}, s{sGP} offen sc0 sc1\ns_mov_b64 exec, -1")
        E("K2_EV0:")
    E(f"s_add_u32 s{sT}, s{sU}, 1\ns_cmp_eq_u32 s{sT}, s{sSW}\ns_cselect_b32 s{sT}, s{sG}, 0\ns_lshl_b32 s{sT}, s{sT}, 14\nv_add_u32 v{vKn}, s{sT}, v{vKn}")
    E(f"s_mov_b32 s{sDG}, 0\ns_cmp_lg_u32 s{sU}, s{sSW}\ns_cbranch_scc1 K2_EV2")
    E(f"s_cmp_eq_u32 s{sG}, 0\ns_cbranch_scc1 K2_SW0")
    E(f"v_add_u32 v{vKc}, 0x4000, v{vKc}\nv_add_u32 v{vVc}, 0x4000, v{vVc}\ns_mov_b32 s{sSW2}, 15\ns_mov_b32 s{sJUMP}, 0x20000000")
    for r in range(64):
        E(f"v_accvgpr_write_b32 a{aQ + r}, v{QBS + r}")
    for r in range(32):
        E(f"v_mov_b32 v{NEGM[0] + r}, 0")
    E(f"v_mov_b32 v{vNM[0]}, 0\nv_mov_b32 v{vNM[1]}, 0")
    for x in range(2):
        E(f"s_mov_b32 s{sTH[x]}, {NINF}\ns_mov_b32 s{sLO[x]}, {NINF}")
    E(f"s_mov_b32 s{sTL}, 17\ns_sub_u32 s{sTD}, 15, s{sPI}\ns_lshl_b32 s{sTD}, s{sTD}, 1\ns_add_u32 s{sTD}, s{sTD}, s{sRS}")
    E("s_branch K2_EV2")
    E("K2_SW0:")
    E(f"s_cmp_eq_u32 s{sU}, 9\ns_cbranch_scc1 K2_SW1")
    E(f"v_and_b32 v{vPL}, 31, v0\nbuffer_load_ubyte v{vPL + 1}, v{vPL}, {s(SS, 4)}, s{sFL} offen sc0 sc1\ns_mov_b32 s{sSW}, 9")
    E(f"s_mov_b32 s{SD}, s28\ns_mov_b32 s{SD + 1}, s29\ns_mov_b32 s{SD + 2}, {4096 * 1024:#x}\ns_lshl_b32 s{sPF}, s2, 1\ns_add_u32 s{sPF}, s{sPF}, s{sW}\ns_lshl_b32 s{sPF}, s{sPF}, 10\ns_mov_b32 s30, 0x80000\ns_branch K2_EV2")
    E("K2_SW1:\ns_waitcnt vmcnt(17)")
    E(f"v_cmp_ne_u32 vcc, 1, v{vPL + 1}\ns_nop 1\ns_cbranch_vccz K2_EV2")
    E(f"K2_FBLP:\ns_sleep 2\nbuffer_load_ubyte v{vPL + 1}, v{vPL}, {s(SS, 4)}, s{sFL} offen sc0 sc1\ns_waitcnt vmcnt(0)")
    E(f"v_cmp_ne_u32 vcc, 1, v{vPL + 1}\ns_nop 1\ns_cbranch_vccnz K2_FBLP")
    E("K2_EV2:")
    E(f"s_cmp_lt_u32 s{sTL}, s{sTD}\ns_cbranch_scc0 K2_EV3")
    E(f"s_cmp_eq_u32 s{sLO[0]}, 0\ns_cbranch_scc1 K2_EV4")
    for x in range(2):
        E(f"s_mov_b32 s{sTH[x]}, {fbits(THRESH)}\ns_mov_b32 s{sLO[x]}, 0")
    E(f"s_add_u32 s{sEV}, s{sU}, 1\ns_mov_b32 s{sDG}, 2\ns_branch K2_SWRETF")
    E("K2_EV4:")
    E(f"s_sub_u32 s{sEV}, s{sTD}, s{sTL}\ns_add_u32 s{sEV}, s{sEV}, s{sU}\ns_cmp_gt_u32 s{sSW}, s{sU}\ns_cselect_b32 s{sT}, s{sSW}, 99\ns_min_u32 s{sEV}, s{sEV}, s{sT}")
    E("s_branch K2_SWRET")
    E("K2_EV3:")
    E(f"s_add_u32 s{sEV}, s{sU}, 1\ns_mov_b32 s{sDG}, 1\ns_cmp_eq_u32 s{sTL}, s{sTD}\ns_cbranch_scc1 K2_SWRETD")
    E(f"s_mov_b32 s{sDG}, 3\ns_branch K2_SWRETX")
    E("K2_FINB:")
    t = QBS
    E(f"s_cmp_eq_u32 s{sLO[0]}, 0\ns_cbranch_scc1 K2_FB1")
    for x in range(2):
        E(f"v_add_f32 v{vLSV[x]}, v{vLs[x][0]}, v{vLs[x][1]}\nv_mov_b32 v{vLs[x][0]}, 0\nv_mov_b32 v{vLs[x][1]}, 0\nv_sub_f32 v{vNM[x]}, 0, v{vNEG}")
    E("K2_FB1:")
    for x in range(2):
        E(f"v_mov_b32 v{t + 2 * x}, v{vLSV[x]}")
    E("s_nop 1")
    for x in range(2):
        E(f"v_permlane32_swap_b32 v{vLSV[x]}, v{t + 2 * x}")
    E("s_nop 1")
    for x in range(2):
        E(f"v_add_f32 v{t + 2 * x}, v{t + 2 * x}, v{vLSV[x]}\nv_rcp_f32 v{t + 2 * x}, v{t + 2 * x}")
    E(f"s_lshl_b32 s{sT}, s{sPI}, 2\ns_lshl_b32 s{sT2}, s{sRS}, 1\ns_add_u32 s{sT}, s{sT}, s{sT2}")
    for x in range(2):
        E(f"v_mov_b32 v{t + 2 * x + 1}, v{t + 2 * x}")
    E(f"s_mul_i32 s{sT}, s{sT}, {CTXU_STEPS}\ns_lshl_b32 s{sT2}, s{sHD}, 3\ns_add_u32 s{sT}, s{sT}, s{sT2}")
    E(f"s_lshl_b32 s{sT}, s{sT}, 10\ns_add_u32 s{sT}, s{sT}, {WS_CTXU}")
    for i in range(4):
        E(f"v_mov_b32 v{t + 4 + i}, 0")
    for x in range(2):
        for f in range(8):
            b = t + 8 + 8 * (f % 4)
            for i in range(8):
                E(f"v_accvgpr_read_b32 v{b + i}, a{aO + x * 64 + 8 * f + i}")
            if f % 2 == 1:
                E(mfma(('a', aO + x * 64 + 8 * (f - 1)), ('v', t + 4), ('v', t + 4), 0))
            for i in range(4):
                E(f"v_pk_mul_f32 {v(b + 2 * i, 2)}, {v(b + 2 * i, 2)}, {v(t + 2 * x, 2)}")
            for i in range(4):
                E(f"v_cvt_pk_bf16_f32 v{b + i}, v{b + 2 * i}, v{b + 2 * i + 1}")
            E(f"buffer_store_dwordx4 {v(b, 4)}, v{vL16}, {s(SS, 4)}, s{sT} offen offset:{1024 * (f % 4)} sc1")
            if f == 3:
                E(f"s_add_u32 s{sT}, s{sT}, 4096")
            if f == 7 and x == 0:
                E(f"s_add_u32 s{sT}, s{sT}, {CTXU_STEPS * 1024 - 4096}")
    E(f"s_cmp_eq_u32 s{sDG}, 2\ns_cbranch_scc1 K2_FBRETF\ns_cmp_eq_u32 s{sDG}, 3\ns_cbranch_scc1 K2_FBRETX\ns_branch K2_FBRETD")


QACC = 48
aXN = 0
aWF = 192


def wq_dma(j):
    out = []
    for i in range(4):
        g = []
        if i == 0:
            g += [I(f"s_add_u32 m0, s{sWM}, {j * 16384}"), I(f"s_add_u32 s{sDO}, s{sWQ}, {j * 64 * 8192}")]
        g.append(VM(f"buffer_load_dwordx4 v{vQD + i}, {s(SQ, 4)}, s{sDO} offen offset:{1024 * i} lds", f"wq{j}"))
        out.append(g)
    return out


def xn_loads(j):
    out = []
    for x in range(2):
        for cs in range(4):
            g = []
            if cs == 0:
                g.append(I(f"s_add_u32 s{sDO}, s{sXN}, {x * 32768 + j * 4096}"))
            g.append(VM(f"buffer_load_dwordx4 {a(aXN + (j % 4) * 32 + (x * 4 + cs) * 4, 4)}, v{vL16}, {s(SS, 4)}, "
                        f"s{sDO} offen offset:{1024 * cs}{SC1}", f"xn{j}"))
            out.append(g)
    return out


def znorm():
    ld = [[I(x) for x in (f"s_lshr_b32 s{sGM}, s2, 3", f"s_and_b32 s{sGP}, s2, 7", f"s_lshl_b32 s{sT}, s{sGM}, 1", f"s_add_u32 s{sT}, s{sT}, s{sG}",
                          f"s_lshl_b32 s{sT}, s{sT}, 11", f"s_add_u32 s{sT}, s{sT}, {WS_STAT}", f"v_lshlrev_b32 v{ZT}, 2, v0")]]
    for i in range(0, 8, 2):
        ld.append([VM(f"buffer_load_dword v{ZT + 4 + i + e}, v{ZT}, {s(SS, 4)}, s{sT} offen offset:{256 * (i + e)}{SC1}", "zn") for e in range(2)])
    ld.append([I(x) for x in (f"s_mul_i32 s{sGZ}, s{sGP}, 384", f"s_lshl_b32 s{sT}, s{sGM}, 2", f"s_add_u32 s{sGZ}, s{sGZ}, s{sT}",
                              f"s_add_u32 s{sGZ}, s{sGZ}, s{sW}", f"s_lshl_b32 s{sGZ}, s{sGZ}, 10")])
    for f in range(3):
        ld.append([I(f"s_add_u32 s{sT}, s{sGZ}, {WS_Z2R + f * 128 * 1024}"),
                   VM(f"buffer_load_dwordx4 {v(ZT + 12 + 4 * f, 4)}, v{vL16}, {s(SS, 4)}, s{sT} offen{SC1}", "zn")])
    z = ZT + 4
    AB = ZT + 24
    c = [WVM("zn")]
    c += flat([f"v_add_f32 v{z}, v{z}, v{z + 1}\nv_add_f32 v{z + 2}, v{z + 2}, v{z + 3}\nv_add_f32 v{z + 4}, v{z + 4}, v{z + 5}\nv_add_f32 v{z + 6}, v{z + 6}, v{z + 7}",
               f"v_add_f32 v{z}, v{z}, v{z + 2}\nv_add_f32 v{z + 4}, v{z + 4}, v{z + 6}\nv_add_f32 v{z}, v{z}, v{z + 4}",
               f"v_mul_f32 v{z}, {fbits(1 / 688)}, v{z}\nv_mov_b32 v{z + 1}, v{z}\ns_nop 1\nv_permlane32_swap_b32 v{z}, v{z + 1}\ns_nop 1",
               f"v_fma_f32 v{z + 1}, -v{z}, v{z}, v{z + 1}\nv_max_f32 v{z + 1}, 0, v{z + 1}\nv_add_f32 v{z + 1}, {fbits(LN_EPS)}, v{z + 1}\nv_rsq_f32 v{z + 1}, v{z + 1}\ns_nop 0",
               f"v_mul_f32 v{z}, v{z}, v{z + 1}\nv_sub_f32 v{z}, 0, v{z}",
               f"s_lshl_b32 s{sT}, s{sW}, 8\ns_add_u32 s{sT}, s{sT}, {SPARE}",
               f"v_lshlrev_b32 v{z + 2}, 2, v20\nv_add_u32 v{z + 2}, s{sT}, v{z + 2}"])
    c += [LG(f"ds_write_b32 v{z + 2}, v{z + 1}", "zw"), LG(f"ds_write_b32 v{z + 2}, v{z} offset:128", "zw")]
    c += flat([f"s_lshl_b32 s{sT2}, s{sRS}, 6\ns_add_u32 s{sT}, s{sT}, s{sT2}\nv_lshlrev_b32 v{z + 3}, 5, v21\nv_add_u32 v{z + 3}, s{sT}, v{z + 3}"])
    for i in range(2):
        c += [LG(f"ds_read_b128 {v(AB + 4 * i, 4)}, v{z + 3} offset:{16 * i}", "zr"),
              LG(f"ds_read_b128 {v(AB + 8 + 4 * i, 4)}, v{z + 3} offset:{128 + 16 * i}", "zr")]
    c += flat([f"s_lshl_b32 s{sGP}, s{sGP}, 8\ns_add_u32 s{sGP}, s{sGP}, s{sGM}\ns_add_u32 s{sGP}, s{sGP}, {WS_FLAG2}\ns_nop 0"])
    c += [WLG("zr")]
    for f in range(3):
        for i in range(4):
            x_ = ZT + 12 + 4 * f + i
            c += flat([f"v_lshlrev_b32 v{z}, 16, v{x_}\nv_and_b32 v{z + 1}, 0xffff0000, v{x_}",
                       f"v_fma_f32 v{z}, v{z}, v{AB + 2 * i}, v{AB + 8 + 2 * i}\nv_fma_f32 v{z + 1}, v{z + 1}, v{AB + 2 * i + 1}, v{AB + 9 + 2 * i}",
                       f"v_cvt_pk_bf16_f32 v{x_}, v{z}, v{z + 1}"])
        c += [I(f"s_add_u32 s{sT}, s{sGZ}, {WS_Z2N + f * 128 * 1024}"),
              VM(f"buffer_store_dwordx4 {v(ZT + 12 + 4 * f, 4)}, v{vL16}, {s(SS, 4)}, s{sT} offen sc1", "zs")]
    cg = [c[i:i + 4] for i in range(0, len(c), 4)]
    return ld, cg


def qproj(k):
    E = k.emit
    extra = {}

    def spread(c0, c1, groups):
        n = len(groups)
        for i, g in enumerate(groups):
            extra.setdefault(c0 + (i * (c1 - c0)) // n, []).append(g)

    def rd(c, fb):
        j, cs = c // 4, c % 4
        return [LG(f"ds_read_b64_tr_b16 {a(fb + 4 * d + 2 * sec, 2)}, v{vQR + (j // 4) * 4 + d} "
                   f"offset:{(j % 4) * 16384 + cs * 4096 + sec * 1024}", f"q{c}") for d in range(4) for sec in range(2)]

    def fbuf(c):
        return aWF + (c % 4) * 16

    def mf1(c, d, x):
        j, cs = c // 4, c % 4
        return mfma(('v', QACC + (x * 4 + d) * 16), ('a', fbuf(c) + 4 * d), ('a', aXN + (j % 4) * 32 + (x * 4 + cs) * 4),
                    0 if c == 0 else None)

    zl, zc = znorm()

    def kvpre(base, pre, so, so2, tag="kv"):
        d1, d2 = dma4(so, tag), dma4(so2, tag)
        return [[I(f"s_add_u32 m0, s{sW8}, {base}")] + [I(x) for x in pre] + [d1[0]]] + [[d] for d in d1[1:]] + \
               [[I(f"s_add_u32 m0, s{sW8}, {base + 4096}"), I("s_nop 0"), d2[0]]] + [[d] for d in d2[1:]]

    k0 = kvpre(0, [f"s_add_u32 s{sKO2}, s{sKN}, 4096"], sKN, sKO2, "k0")
    k1 = kvpre(32768, [f"s_add_u32 s{sVO}, s{sKN}, {WS_VF - WS_KF}", f"s_add_u32 s{sVO2}, s{sVO}, 4096",
                       f"s_add_u32 s{sKN}, s{sKN}, 0x4000", f"s_add_u32 s{sKO2}, s{sKN}, 4096"], sKN, sKO2)
    v0_ = kvpre(VB0, ["s_nop 0"], sVO, sVO2)
    q = []
    if MERGE12:
        order_ = ((0, wq_dma(2) + xn_loads(2) + wq_dma(3) + xn_loads(3) + wq_dma(4)), (4, xn_loads(4)), (0, wq_dma(5)), (8, xn_loads(5)),
                  (0, wq_dma(6)), (12, xn_loads(6)), (0, wq_dma(7)), (16, xn_loads(7)), (22, k0 + zl))
    else:
        order_ = ((0, wq_dma(2) + xn_loads(2) + wq_dma(3) + xn_loads(3) + wq_dma(4)), (4, xn_loads(4)), (0, wq_dma(5)), (8, xn_loads(5)),
                  (0, wq_dma(6) + zl), (12, xn_loads(6)), (0, wq_dma(7)), (16, xn_loads(7)), (6, k0), (14, k1))
    for e, grp in order_:
        q += [(e, g) for g in grp]
    RATE = 4
    c_ = 0
    n_ = 0
    for e, g in q:
        if e > c_:
            c_, n_ = e, 0
        extra.setdefault(c_, []).append(g)
        n_ += 1
        if n_ == RATE:
            c_, n_ = c_ + 1, 0
    assert c_ <= 27, c_
    valu = {}
    if not MERGE12:
        for i, g in enumerate(zc):
            valu.setdefault(19 + (i * 8) // len(zc), []).append(g)
    else:
        valu[18] = [[I(f"s_mov_b32 s{sT}, {WS_FP1}")] + poll_all_issue(sW, SS, f"s{sT}", 16, 4, 176)]

    E(WVM("wq0"), "s_barrier")
    stamp(k, 6)
    E(rd(0, fbuf(0)), rd(1, fbuf(1)))
    for c in range(28):
        j, cs = c // 4, c % 4
        n = c + 2
        if n % 4 == 0:
            lstamp(k, 19, 3 * (n // 4))
            E(WLG(f"q{n - 1}"), WVM(f"wq{n // 4}"))
            lstamp(k, 19, 3 * (n // 4) + 1)
            if MERGE12 and n == 24:
                E(poll_all_check(sW, SS, f"s{sT}", 16, 4, 176, 1))
            E("s_barrier")
            if MERGE12 and n == 4:
                E(f"s_lshl_b32 s{sT}, s2, 4\ns_add_u32 s{sT}, s{sT}, {WS_FP1}", flag_set(sW, SS, sT, 176))
        E(WLG(f"q{c}"))
        if cs == 0:
            E(WVM(f"xn{j}"))
            lstamp(k, 19, 3 * j + 2)
        r_ = rd(n, fbuf(n))
        ex, va = extra.get(c, []), valu.get(c, [])
        gm_ = {}
        for i in range(8):
            gm_[i] = [r_[i]] + ([ex[i // 2]] if (i % 2 == 0 and i // 2 < len(ex)) else []) + [va[z] for z in range(len(va)) if (z * 8) // len(va) == i]
        E(place([mf1(c, d, x) for d in range(4) for x in range(2)], gm_))
    E(rd(30, fbuf(30)), rd(31, fbuf(31)))
    E(f"v_mov_b32 v{vT}, {fbits(QSCALE)}\nv_mov_b32 v{vT + 1}, {fbits(QSCALE)}")
    E(f"v_add_u32 v{vT + 2}, s{sW8}, v{vL16}\nv_add_u32 v{vT + 3}, {SPARE}, v{vT + 2}\nv_add_u32 v{vT + 2}, {VB0 + 32768}, v{vT + 2}")
    E(WVM("xn7"), WLG0, "s_barrier")

    def epi(d, x):
        out = []
        for g in range(2):
            b = QACC + (x * 4 + d) * 16 + 8 * g
            out.append([I(f"v_mul_f32 v{b + i}, v{vT}, v{b + i}") for i in range(8)])
            out.append([I(f"v_cvt_pk_bf16_f32 v{b + i}, v{b + 2 * i}, v{b + 2 * i + 1}") for i in range(4)] +
                       [LG(f"ds_write_b128 v{vT + 3 - x}, {v(b, 4)} offset:{(2 * d + g) * 1024}")])
        return out

    tiles = [(d, x) for x in range(2) for d in range(4)]
    for i, (d, x) in enumerate(tiles):
        m = [mf1(c, d, x) for c in range(28, 32)]
        kv2 = (k1 + v0_)[2 * i:2 * i + 2] if MERGE12 else [v0_[i], []]
        if i == 0:
            E(m[0], kv2[0], m[1], m[2], kv2[1], m[3])
        else:
            e = epi(*tiles[i - 1])
            E(m[0], kv2[0], m[1], e[0], e[1], m[2], kv2[1], e[2], m[3], e[3])
    stamp(k, 7)
    E("s_nop 15")
    E(epi(*tiles[-1]))
    E(WVM("k0"), WVM("zs"), WLG0, "s_barrier")
    if not MERGE12:
        E(flag_set(sW, SS, sGP, ZT))
    k.zc = zc
    E(f"s_lshl_b32 s{sT}, s{sRS}, 13\nv_add_u32 v{vT + 4}, s{sT}, v{vL16}")
    E(f"v_add_u32 v{vT + 5}, {SPARE}, v{vT + 4}\nv_add_u32 v{vT + 4}, {VB0 + 32768}, v{vT + 4}")
    E(kreads(vKc, 0))
    for x in range(2):
        for f in range(8):
            E(LG(f"ds_read_b128 {a(aQ + (x * 8 + f) * 4, 4)}, v{vT + 3 - x} offset:{f * 1024}"))
    for x in range(2):
        for f in range(8):
            E(LG(f"ds_read_b128 {v(QBS + (x * 8 + f) * 4, 4)}, v{vT + 5 - x} offset:{f * 1024}"))


ZRING = (('v', 144), ('v', 192), ('a', 128), ('a', 176))
vWS = 48
vPD = 32
vPR = 40
NGS = 5


def g_slot(st):
    return (0, 1, 3, 2, 4)[st % NGS] * 32768


def zreg(st, i):
    kind, base = ZRING[st % 4]
    return (kind, base + i * 4)


def sprinkle(items, groups):
    items = flat(items)
    n, m = len(items), len(groups)
    out, gi = [], 0
    for i, it in enumerate(items):
        while gi < m and gi * n <= i * m:
            out.append(groups[gi])
            gi += 1
        out.append(it)
    return flat(out + groups[gi:])


def g_dma(st):
    out = []
    for i in range(8):
        g = []
        if i % 4 == 0:
            g += [I(f"s_add_u32 m0, s{sW8}, {g_slot(st) + (i // 4) * 4096}"), I(f"s_add_u32 s{sDO}, s{sGP}, {st * 128}")]
        g.append(VM(f"buffer_load_dwordx4 v{vPD + i}, {s(SP, 4)}, s{sDO} offen offset:{1024 * (i % 4)} lds", f"g{st}"))
        out.append(g)
    return out


def g_zl(st):
    out = []
    for f in range(3):
        for ks in range(4):
            g = []
            if ks == 0:
                g.append(I(f"s_add_u32 s{sGM}, s{sGZ}, {f * 128 * 1024 + st * 4096}"))
            g.append(VM(f"buffer_load_dwordx4 {R(zreg(st, f * 4 + ks), 4)}, v{vL16}, {s(SS, 4)}, "
                        f"s{sGM} offen offset:{1024 * ks} sc1", f"g{st}"))
            out.append(g)
    return out


def g_setup():
    o = [f"v_lshrrev_b32 v{ZT + 32}, 4, v0\nv_lshrrev_b32 v{ZT + 33}, 3, v0\nv_lshlrev_b32 v{ZT + 33}, 12, v{ZT + 33}\nv_and_b32 v{ZT + 34}, 7, v0\nv_xor_b32 v{ZT + 34}, v{ZT + 34}, v{ZT + 32}",
         f"v_lshl_add_u32 v{ZT + 35}, v{ZT + 34}, 4, v{ZT + 33}\nv_xor_b32 v{ZT + 34}, 4, v{ZT + 34}\nv_lshl_add_u32 v{ZT + 36}, v{ZT + 34}, 4, v{ZT + 33}"]
    for i in range(8):
        o.append(f"v_add_u32 v{vPD + i}, {i * 8 * 4096 - (i % 4) * 1024}, v{ZT + 35 + (i % 2)}")
    o.append(f"v_lshrrev_b32 v{ZT + 32}, 5, v0\nv_bfe_u32 v{ZT + 33}, v0, 1, 3\nv_xor_b32 v{ZT + 33}, v{ZT + 33}, v{ZT + 32}")
    o.append(f"v_and_b32 v{ZT + 34}, 31, v0\nv_lshlrev_b32 v{ZT + 34}, 7, v{ZT + 34}\nv_add_u32 v{ZT + 34}, s{sW8}, v{ZT + 34}")
    for ks in range(4):
        o.append(f"v_xor_b32 v{ZT + 35}, {2 * ks}, v{ZT + 33}\nv_lshl_add_u32 v{vPR + ks}, v{ZT + 35}, 4, v{ZT + 34}\nv_add_u32 v{vPR + 4 + ks}, 0x10000, v{vPR + ks}")
    o.append(f"s_lshl_b32 s{sGP}, s{sHD}, 18\ns_lshl_b32 s{sDO}, s{sW}, 10\ns_add_u32 s{sGP}, s{sGP}, s{sDO}")
    o.append(f"s_mul_i32 s{sGZ}, s{sPI}, 384\ns_lshl_b32 s{sGM}, s{sW}, 5\ns_add_u32 s{sGZ}, s{sGZ}, s{sGM}")
    o.append(f"s_lshl_b32 s{sGZ}, s{sGZ}, 10\ns_add_u32 s{sGZ}, s{sGZ}, {WS_Z2N}")
    return o


def merge(k, keep):
    E = k.emit
    send = 1 - keep
    t = vT
    wr = [LG(f"ds_write_b128 v{t + 4 + i // 8}, {a(aO + send * 64 + 4 * i, 4)} offset:{(i % 8) * 1024}") for i in range(16)]
    E(LG(f"ds_read_b64 {v(t + 8, 2)}, v{t + 4}", "mb"))
    d0, d1 = g_dma(0), g_dma(1)
    E(weave(pv(send, 1), d0, 0, 8))
    E(WLG("mb"))
    fac = [f"v_min_f32 v{t}, v{vNM[keep]}, v{t + 8}", f"v_sub_f32 v{t + 2}, v{t}, v{vNM[keep]}", f"v_sub_f32 v{t + 8}, v{t}, v{t + 8}",
           f"v_exp_f32 v{t + 2}, v{t + 2}", f"v_exp_f32 v{t + 8}, v{t + 8}", "s_nop 0",
           f"v_mul_f32 v{t}, v{vLs[keep][0]}, v{t + 2}", f"v_fmac_f32 v{t}, v{t + 9}, v{t + 8}", f"v_rcp_f32 v{t}, v{t}", "s_nop 0",
           f"v_mul_f32 v{t + 2}, v{t + 2}, v{t}", f"v_mul_f32 v{t + 8}, v{t + 8}, v{t}", f"v_mov_b32 v{t + 3}, v{t + 2}", f"v_mov_b32 v{t + 9}, v{t + 8}"]
    m = pv(keep, 1)
    E(m[0], d1[0], fac[:6], m[1], d1[1], fac[6:], weave(m[2:], interleave2(wr, d1[2:]), 0, 6))
    E(WLG0, "s_barrier")
    RX = S[0]
    for i in range(16):
        E(LG(f"ds_read_b128 {v(RX + 4 * i, 4)}, v{t + 6 + i // 8} offset:{(i % 8) * 1024}", f"rx{i}"))
    body = []
    for f in range(8):
        b = RX + 8 * f
        body += [I(f"v_accvgpr_read_b32 v{PB + i}, a{aO + keep * 64 + 8 * f + i}") for i in range(8)]
        body += [WLG(f"rx{2 * f + 1}")]
        body += [I(f"v_pk_mul_f32 {v(b + 2 * i, 2)}, {v(b + 2 * i, 2)}, {v(t + 8, 2)}") for i in range(4)]
        body += [I(f"v_pk_fma_f32 {v(b + 2 * i, 2)}, {v(PB + 2 * i, 2)}, {v(t + 2, 2)}, {v(b + 2 * i, 2)}") for i in range(4)]
        body += [I(f"v_cvt_pk_bf16_f32 v{PB + 8 + 4 * (f % 4) + i}, v{b + 2 * i}, v{b + 2 * i + 1}") for i in range(4)]
        body += [VM(f"buffer_store_dwordx4 {v(PB + 8 + 4 * (f % 4), 4)}, v{vL16}, {s(SS, 4)}, s{sT if f < 4 else sT2} offen offset:{1024 * (f % 4)} sc1", "cs")]
    E(sprinkle(body, g_zl(1)))


def interleave2(x, y):
    out = []
    n = max(len(x), len(y))
    for i in range(n):
        out += x[(i * len(x)) // n:((i + 1) * len(x)) // n] + y[(i * len(y)) // n:((i + 1) * len(y)) // n]
    return out


def gphase(k):
    E = k.emit

    def reads(st):
        o = g_slot(st)
        sg, off = (0, o) if o < 65536 else (1, o - 65536)
        out = []
        for ks in range(4):
            for ts in range(2):
                if off + ts * 4096 < 65536:
                    out.append(LG(f"ds_read_b128 {v(vWS + (st % 2) * 32 + (ts * 4 + ks) * 4, 4)}, v{vPR + sg * 4 + ks} "
                                  f"offset:{off + ts * 4096}", f"p{st}"))
                else:
                    out.append(LG(f"ds_read_b128 {v(vWS + (st % 2) * 32 + (ts * 4 + ks) * 4, 4)}, v{ZT + 40 + ks} "
                                  f"offset:{off - 65536 + ts * 4096}", f"p{st}"))
        return out

    def mf(st):
        return [mfma(('a', (ts * 3 + f) * 16), zreg(st, f * 4 + ks),
                     ('v', vWS + (st % 2) * 32 + (ts * 4 + ks) * 4), 0 if (st == 0 and ks == 0) else None)
                for ks in range(4) for f in range(3) for ts in range(2)]

    for ks in range(4):
        E(f"v_add_u32 v{ZT + 40 + ks}, 0x20000, v{vPR + ks}")
    E("s_barrier")
    E(WVM("g0"))
    stamp(k, 10)
    E(reads(0))
    sched = {st: g_dma(st + 2) + g_zl(st + 2) for st in range(6)}
    for st in range(8):
        E(WLG(f"p{st}"))
        ld = sched.get(st, [])
        m = mf(st)
        n1 = (len(ld) * 14) // 24
        first = weave(m[:14], ld[:n1], 0, 14)
        second = ([WVM(f"g{st + 1}")] + weave(m[14:], interleave2(reads(st + 1), ld[n1:]), 0, 9)) if st + 1 < 8 else m[14:]
        if st == 6:
            fin = flat([f"s_lshl_b32 s{sT}, s{sHD}, 1\ns_add_u32 s{sT}, s{sT}, s{sG}",
                        f"s_mul_i32 s{sT2}, s{sPI}, 6\ns_mul_i32 s{sGP}, s{sRS}, 3\ns_add_u32 s{sT2}, s{sT2}, s{sGP}",
                        f"s_mul_i32 s{sGP}, s{sT}, 48\ns_add_u32 s{sGP}, s{sGP}, s{sT2}\ns_lshl_b32 s{sGP}, s{sGP}, 10\ns_add_u32 s{sGP}, s{sGP}, {WS_Z1}",
                        f"s_mul_i32 s{sGZ}, s{sT}, {CTXU_STEPS}\ns_add_u32 s{sGZ}, s{sGZ}, s{sT2}\ns_add_u32 s{sGZ}, s{sGZ}, 256",
                        f"s_lshl_b32 s{sGZ}, s{sGZ}, 10\ns_add_u32 s{sGZ}, s{sGZ}, {WS_CTXU}",
                        f"s_lshl_b32 s{sT}, s{sT}, 6\nv_and_b32 v21, 31, v0\nv_lshlrev_b32 v21, 1, v21"])
            fin += [VM(f"buffer_load_dwordx4 {v(4 + 4 * i, 4)}, v{vL16}, {s(SS, 4)}, s{sGP} offen offset:{1024 * i}{SC1}", "fin") for i in range(3)]
            fin += [VM(f"buffer_load_ushort v16, v21, {s(SB, 4)}, s{sT} offen", "fin")]
            fin += flat([f"s_mov_b32 s{SD}, s100\ns_mov_b32 s{SD + 1}, s101\ns_mov_b32 s{SD + 2}, {688 * 1024:#x}\ns_lshl_b32 s{sPF}, s2, 2\ns_add_u32 s{sPF}, s{sPF}, s{sW}\ns_lshl_b32 s{sPF}, s{sPF}, 10"])
            fin += [VM(f"buffer_load_dword v{ZT + 32}, v{vL16}, {s(SD, 4)}, s{sPF} offen", "pf")]
            fin += flat([f"v_add_u32 v20, s{sW8}, v{vL16}\nv_add_u32 v21, 0x10000, v20\ns_lshl_b32 s{sT}, s{sW}, 15\nv_add_u32 v25, s{sT}, v{vL16}"])
            for j in range(1, 4):
                fin += flat([f"s_add_u32 s{sT}, s{sW}, {j}\ns_and_b32 s{sT}, s{sT}, 3\ns_lshl_b32 s{sT}, s{sT}, 13\nv_add_u32 v{21 + j}, s{sT}, v25"])
            first = weave(m[:14], [fin[i:i + 3] for i in range(0, len(fin), 3)], 0, 14)
        if MERGE23 and st == 2:
            E(WVM("cs"), "s_barrier")
            E(f"s_lshl_b32 s{sT}, s{sPI}, 5\ns_add_u32 s{sT}, s{sT}, s{sHD}\ns_lshl_b32 s{sT}, s{sT}, 4\ns_add_u32 s{sT}, s{sT}, {WS_FCTX}")
            E(flag_set(sW, SS, sT, 17))
        if MERGE23 and st == 7:
            E(f"s_bfe_u32 s{sT}, s2, 0x10002\ns_lshl_b32 s{sT}, s{sT}, 3\ns_bfe_u32 s{sT2}, s2, 0x30003\ns_add_u32 s{sT}, s{sT}, s{sT2}\ns_sub_u32 s{sT2}, 15, s{sT}\ns_min_u32 s{sT}, s{sT}, s{sT2}")
            E(f"s_lshl_b32 s{sT}, s{sT}, 9\ns_and_b32 s{sT2}, s2, 3\ns_lshl_b32 s{sT2}, s{sT2}, 7\ns_add_u32 s{sT}, s{sT}, s{sT2}\ns_add_u32 s{sFL}, s{sT}, {WS_FCTX}")
            E(wave0(sW, [I("v_and_b32 v17, 7, v0"), I("v_lshlrev_b32 v17, 4, v17"),
                         VMG(f"buffer_load_ubyte v18, v17, {s(SS, 4)}, s{sFL} offen sc0 sc1", "poll")]))
        if MERGE23 and st == 7:
            import k3
            p3 = flat([f"s_lshl_b32 s{sT}, s{sHD}, 3\ns_add_u32 s{sT}, s{sT}, s{sPI}\ns_lshl_b32 s{sT}, s{sT}, 4\ns_add_u32 s50, s{sT}, {WS_FU}\ns_mov_b32 s53, s{sPI}"]) + k3.pre()
            first = weave(m[:14], [p3[i:i + 4] for i in range(0, len(p3), 4)], 0, 14)
        lstamp(k, 19, 32 + 3 * st)
        E(first)
        lstamp(k, 19, 33 + 3 * st)
        E(second[:1])
        lstamp(k, 19, 34 + 3 * st)
        E(second[1:])
    stamp(k, 11)
    E("s_nop 7")
    for d in range(4):
        E(f"s_cmp_eq_u32 s{sW}, {d}\ns_cbranch_scc1 K2_GO{d}")
        for i in range(3):
            fr = 3 * d + i
            for q in range(2):
                E(f"ds_write_b128 v{20 + d // 2}, {a(fr * 8 + 4 * q, 4)} offset:{(d % 2) * 32768 + (i * 2 + q) * 1024}")
        E(f"s_branch K2_GN{d}\nK2_GO{d}:")
        for i in range(3):
            for r in range(8):
                E(f"v_accvgpr_read_b32 v{48 + i * 32 + r}, a{(3 * d + i) * 8 + r}")
        E(f"K2_GN{d}:")
    if MERGE23:
        E(flag_poll_check(sW, SS, sFL, 17), k3.pre2())
    E(WLG0, "s_barrier")
    if MERGE23:
        E(k3.dma(0))
    for i in range(3):
        for j in range(1, 4):
            for q in range(2):
                E(LG(f"ds_read_b128 {v(48 + i * 32 + j * 8 + q * 4, 4)}, v{21 + j} offset:{(i * 2 + q) * 1024}", f"x{i}"))
    E(WVM("fin"), "v_lshlrev_b32 v16, 16, v16")
    for i in range(3):
        E(WLG(f"x{i}"))
        b = 48 + i * 32
        for r in range(8):
            E(f"v_add_f32 v{b + r}, v{b + r}, v{b + 8 + r}\nv_add_f32 v{b + 16 + r}, v{b + 16 + r}, v{b + 24 + r}")
        for r in range(8):
            E(f"v_add_f32 v{b + r}, v{b + r}, v16")
        for r in range(8):
            E(f"v_add_f32 v{b + r}, v{b + r}, v{b + 16 + r}")
        for r in range(4):
            z = 4 + 4 * i + r
            E(f"v_lshlrev_b32 v26, 16, v{z}\nv_and_b32 v27, 0xffff0000, v{z}")
            E(f"v_mul_f32 v{b + 2 * r}, v{b + 2 * r}, v26\nv_mul_f32 v{b + 2 * r + 1}, v{b + 2 * r + 1}, v27")
        for r in range(4):
            E(f"v_cvt_pk_bf16_f32 v{b + r}, v{b + 2 * r}, v{b + 2 * r + 1}")
        E(VM(f"buffer_store_dwordx4 {v(b, 4)}, v{vL16}, {s(SS, 4)}, s{sGZ} offen offset:{1024 * i} sc1", "us"))


def build(k=None):
    merged = k is not None
    if not merged:
        k = Kern("k2_kernel")
    E = k.emit
    if not merged:
        E("s_cmp_ge_u32 s2, 256\ns_cbranch_scc1 K2_END")
        code_prefetch(k, "L_CODE_END" if MERGE23 else "k3_kernel", 0, 248)
    stamp_init(k)
    stamp(k, 0)
    E(f"s_load_dwordx2 s[64:65], s[0:1], {KA_WQ}")
    E(f"s_load_dwordx4 s[72:75], s[0:1], {KA_DBG}")
    E(f"s_load_dwordx4 s[68:71], s[0:1], {KA_WSP}")
    if not merged:
        E("v_lshrrev_b32 v1, 6, v0\nv_and_b32 v0, 63, v0")
    E(f"s_and_b32 s{sHD}, s2, 7\ns_lshl_b32 s{sHD}, s{sHD}, 2\ns_lshr_b32 s{sT}, s2, 3\ns_lshr_b32 s{sPI}, s{sT}, 2")
    if not merged:
        E(f"v_readfirstlane_b32 s{sW}, v1")
    E(f"s_and_b32 s{sT}, s{sT}, 3\ns_add_u32 s{sHD}, s{sHD}, s{sT}")
    E(f"s_and_b32 s{sRS}, s{sW}, 1\ns_lshr_b32 s{sG}, s{sW}, 1\ns_lshl_b32 s{sW8}, s{sW}, 13")
    E(f"v_lshlrev_b32 v{vL16}, 4, v0")
    E("v_and_b32 v20, 31, v0\nv_lshrrev_b32 v21, 5, v0\nv_lshrrev_b32 v22, 4, v0")
    E("v_bfe_u32 v23, v0, 2, 2\nv_and_b32 v24, 3, v0\nv_bfe_u32 v25, v0, 4, 1")
    E("v_xor_b32 v26, v23, v22\nv_lshlrev_b32 v27, 13, v22\nv_lshl_add_u32 v27, v26, 6, v27\nv_lshl_add_u32 v27, v24, 4, v27")
    for i in range(4):
        E(f"v_add_u32 v{vQD + i}, {i * (32768 - 1024)}, v27")
    E(f"s_sub_u32 s{sT}, 15, s{sPI}\ns_cmp_eq_u32 s{sG}, 0\ns_cselect_b32 s{sT}, s{sT}, s{sPI}")
    E(f"s_lshl_b32 s{sTD}, s{sT}, 1\ns_add_u32 s{sTD}, s{sTD}, s{sRS}\ns_lshl_b32 s{sXN}, s{sTD}, 16\ns_add_u32 s{sXN}, s{sXN}, {WS_XN}")
    E(f"s_lshl_b32 s{sWQ}, s{sW}, 17\ns_lshl_b32 s{sT}, s{sHD}, 8\ns_add_u32 s{sWQ}, s{sWQ}, s{sT}\ns_lshl_b32 s{sWM}, s{sW}, 12")
    E("s_waitcnt lgkmcnt(0)")
    E(srd(SQ, 64, 512 * 8192), srd(SS, 74, WS_SIZE))
    if not merged:
        for j in range(2):
            E(wq_dma(j), xn_loads(j))
    E(srd(SP, 68, 2048 * 4096), srd(SB, 70, 4096), srd(SD, 68, 2048 * 4096))
    E("v_lshl_add_u32 v26, v21, 3, v23\nv_lshlrev_b32 v26, 8, v26\nv_lshl_add_u32 v26, v25, 5, v26\nv_lshl_add_u32 v26, v24, 3, v26")
    for d in range(4):
        E(f"v_xor_b32 v27, {d}, v23\nv_lshl_add_u32 v{vQR + d}, v27, 6, v26\nv_add_u32 v{vQR + 4 + d}, 0x10000, v{vQR + d}")
    E(f"v_mov_b32 v{vKc}, v{vL16}\nv_add_u32 v{vKn}, 32768, v{vKc}\nv_add_u32 v{vVc}, {VB0}, v{vKc}\nv_mov_b32 v{vVp}, v{vVc}")
    E(f"v_lshlrev_b32 v26, 2, v21\nv_sub_u32 v{vD0}, v20, v26\nv_mov_b32 v{vNEG}, {fbits(NEG)}")
    E(f"s_lshl_b32 s{sKN}, s{sHD}, 19\ns_lshl_b32 s{sT}, s{sRS}, 13\ns_add_u32 s{sKN}, s{sKN}, s{sT}\ns_add_u32 s{sKN}, s{sKN}, {WS_KF}")
    E(f"s_lshl_b32 s{sT}, s{sPI}, 1\ns_add_u32 s{sT}, s{sT}, 2\ns_sub_u32 s{sT2}, 18, s{sT}\ns_lshl_b32 s{sT2}, s{sT2}, 14")
    E(f"s_sub_u32 s{sT2}, s{sT2}, 0x20000000\ns_sub_u32 s{sSW2}, s{sT}, 2\ns_lshl_b32 s{sU}, s{sG}, 29\ns_add_u32 s{sKN}, s{sKN}, s{sU}")
    E(f"s_cmp_eq_u32 s{sG}, 0\ns_cselect_b32 s{sSW}, 8, s{sT}\ns_cselect_b32 s{sJUMP}, 0x20000000, s{sT2}\ns_cselect_b32 s{sSW2}, 15, s{sSW2}")
    E(f"s_lshl_b32 s{sFL}, s{sPI}, 8\ns_add_u32 s{sFL}, s{sFL}, {WS_FLAG2}\ns_lshl_b32 s{sPF}, s2, 2\ns_add_u32 s{sPF}, s{sPF}, s{sW}\ns_lshl_b32 s{sPF}, s{sPF}, 10\ns_mov_b32 s30, 0x100000")
    E(f"s_load_dwordx2 s[28:29], s[0:1], {KA_WO}\ns_load_dwordx2 s[100:101], s[0:1], {KA_WOUT}\ns_waitcnt lgkmcnt(0)")
    if "nowsp" in EXP:
        E(f"s_mov_b32 s{sPF}, 0x1000000")
    if merged:
        import k1
        E(f"s_mov_b32 s98, 0x20000000\ns_cmp_eq_u32 s{sG}, 1\ns_cbranch_scc1 K2_ZE2")
        st0 = (list(k.vm), list(k.lg))
        E(k1.z_epilogue(False, SS, vL16, 20, 21, sRS, 0), "s_branch K2_ZE")
        k.set_state(*st0)
        E("K2_ZE2:")
        E(k1.z_epilogue(True, SS, vL16, 20, 21, sRS, 0))
        E("K2_ZE:")
        E("s_barrier")
        for j in range(2):
            E(wq_dma(j), xn_loads(j))
    stamp(k, 5)
    rstamp(k, 19, 24)
    qproj(k)
    if MERGE12:
        E(WLG0, "s_barrier")
        E("v_and_b32 v20, 31, v0\nv_lshrrev_b32 v21, 5, v0", k.zc)
    E(VM(f"buffer_load_dword v{ZT + 40}, v{vL16}, {s(SD, 4)}, s{sPF} offen", "pf"), f"s_add_u32 s{sPF}, s{sPF}, s30")
    gm, wrapped, pin = schedule_loop()
    gmd, wrapped_d, pin_d = schedule_loop('D', pin)
    gmf, wrapped_f, pin_f = schedule_loop('F', pin)
    gmx, wrapped_x, pin_x = schedule_loop('X', pin)
    assert pin == pin_x
    assert pin == pin_d and pin == pin_f
    wtxt = [it[1] for it in flat(wrapped)]
    for r in range(16):
        E(f"v_mov_b32 v{P(1, 0) + r}, 0\nv_mov_b32 v{NEGM[0] + r}, 0\nv_mov_b32 v{NEGM[1] + r}, 0")
        late = f"v_exp_f32 v{S[1] + r}, v{S[1] + r}" in wtxt
        E(f"v_mov_b32 v{S[1] + r}, {'v%d' % vNEG if late else '0'}")
    assert not any(f"v{S[0] + r}," in w or w.endswith(f"v{S[0] + r}") for w in wtxt for r in range(16))
    for r in (8, 9, 10, 11, 12, 13):
        E(f"v_mov_b32 v{r}, 0")
    E(f"v_mov_b32 v{vT}, 0x7f800000")
    for r0 in range(0, 16, 4):
        for r in range(r0, r0 + 4):
            E(f"v_cmp_gt_i32 s[{64 + 2 * (r % 4)}:{65 + 2 * (r % 4)}], {8 * (r // 4) + r % 4}, v{vD0}")
        for r in range(r0, r0 + 4):
            E(f"v_cndmask_b32 v{MSK + r}, v{vT}, v{vNEG}, s[{64 + 2 * (r % 4)}:{65 + 2 * (r % 4)}]")
    E(f"s_mov_b32 s{sEV}, 0\ns_mov_b32 s{sDG}, 0")
    for x in range(2):
        E(f"s_mov_b32 s{sTH[x]}, {NINF}\ns_mov_b32 s{sLO[x]}, {NINF}")
    for i in range(8):
        E(mfma(('a', aO + 16 * i), ('v', P(1, 0)), ('v', P(1, 0)), 0))
    E(f"s_mov_b32 s{sU}, 0\ns_mov_b32 s{sTL}, 0\ns_mov_b32 s{sMK}, s{sW8}\ns_add_u32 s{sMV}, s{sW8}, {VB0 + 32768}")
    E(WLG0)
    stamp(k, 1)
    rstamp(k, 19, 26)
    dstamp(k, 4)
    def body(gm_, sf):
        diag = sf == "D"
        k.set_state(["kv"] * 16 + ["pf"], ["k"] * 8)
        main = qk(0) + qk(1) + pv(0, 1) + pv(1, 1) + qk(0) + qk(1) + pv(0, 0) + pv(1, 0)
        skip = set(range(32, 40)) if diag else (set(range(0, 16)) | set(range(32, 64))) if sf == 'X' else set()
        main = [I("s_nop 0") if i in skip else m for i, m in enumerate(main)]
        gm_[-1] = [I(f"K2_SWRET{sf}:"), WLG("k")]
        if sf:
            gm_[31] = gm_[31] + [I(f"s_cmp_eq_u32 s{sU}, s{sSW}"), I("s_cbranch_scc1 K2_FINB"), I(f"K2_FBRET{sf}:")]
        gm_[63] = gm_[63] + [I(f"s_cmp_lt_u32 s{sU}, 17"), I("s_cbranch_scc1 K2_LOOP")]
        bd = place(main, gm_)

        def drop(it):
            tx = it[1] if len(it) > 1 and isinstance(it[1], str) else ""
            if "nodma" in EXP and ("buffer_load" in tx): return True
            if "nobar" in EXP and tx == "s_barrier": return True
            if "nowait" in EXP and ("s_waitcnt" in tx or it[0] in ('wlg',)): return True
            if "noread" in EXP and tx.startswith("ds_read"): return True
            if "nobr" in EXP and ("K2_RARE" in tx or "K2_FINB" in tx): return True
            return False
        E([it for it in bd if not drop(it)])

    E(".p2align 6")
    for _ in range(int(os.environ.get("PAD", "0"))):
        E("s_nop 0")
    E("K2_LOOP:")
    if PROF and os.environ.get("PROF2"):
        E("s_memtime s[78:79]", "s_waitcnt lgkmcnt(0)", f"s_mov_b32 m0, s{sU}", "s_nop 0", "v_writelane_b32 v255, s78, m0")
    E(f"s_cmp_eq_u32 s{sU}, s{sEV}\ns_cbranch_scc1 K2_EVENT")
    body(gm, '')
    E("K2_TAIL:")
    stamp(k, 8)
    rstamp(k, 19, 28)
    dstamp(k, 5)
    if PROF:
        E(f"s_lshl_b32 s78, s2, 2\ns_add_u32 s78, s78, s{sW}\ns_lshl_b32 s78, s78, 8\ns_add_u32 s78, s78, {WS_PROF + 0x100000}\nv_lshlrev_b32 v254, 2, v0")
        E(f"buffer_store_dword v255, v254, {s(SS, 4)}, s78 offen")
    E(vreads(vVp, 1))
    gs = g_setup()
    E(gs[-2:])
    t = vT
    tl = flat(wrapped)
    for x in range(2):
        tl += flat([f"v_add_f32 v{vLs[x][0]}, v{vLs[x][0]}, v{vLs[x][1]}"])
    for x in range(2):
        tl += flat([f"v_mov_b32 v{vLs[x][1]}, v{vLs[x][0]}"])
    tl += flat([f"v_add_u32 v{t + 4}, s{sW8}, v{vL16}\nv_and_b32 v{t + 5}, 0x18000, v{vVp}"])
    for x in range(2):
        tl += flat([f"v_permlane32_swap_b32 v{vLs[x][0]}, v{vLs[x][1]}"])
    tl += flat([f"v_add_u32 v{t + 5}, v{t + 5}, v{t + 4}\nv_add_u32 v{t + 4}, {SPARE}, v{t + 4}"])
    for x in range(2):
        tl += flat([f"v_add_f32 v{vLs[x][0]}, v{vLs[x][0]}, v{vLs[x][1]}"])
    tl += [[I(f"s_cmp_eq_u32 s{sG}, 0"), I("s_cselect_b64 vcc, -1, 0")]]
    tl += flat([f"v_xor_b32 v{t + 6}, 0x4000, v{t + 4}\nv_xor_b32 v{t + 7}, 0x4000, v{t + 5}",
                f"v_cndmask_b32 v{t + 8}, v{vNM[0]}, v{vNM[1]}, vcc\nv_cndmask_b32 v{t + 9}, v{vLs[0][0]}, v{vLs[1][0]}, vcc"])
    tl += [LG(f"ds_write_b64 v{t + 6}, {v(t + 8, 2)}")]
    tl += flat(gs[:-2])
    tl += flat([f"s_sub_u32 s{sT}, 15, s{sPI}\ns_lshl_b32 s{sT}, s{sT}, 2\ns_lshl_b32 s{sT2}, s{sRS}, 1\ns_add_u32 s{sT}, s{sT}, s{sT2}\ns_add_u32 s{sT}, s{sT}, s{sG}",
                f"s_mul_i32 s{sT}, s{sT}, {CTXU_STEPS}\ns_lshl_b32 s{sT2}, s{sHD}, 3\ns_add_u32 s{sT}, s{sT}, s{sT2}",
                f"s_lshl_b32 s{sT}, s{sT}, 10\ns_add_u32 s{sT}, s{sT}, {WS_CTXU}\ns_add_u32 s{sT2}, s{sT}, 4096"])
    zz = g_zl(0)
    out_, gi = [], 0
    for i, it in enumerate(tl):
        while gi < len(zz) and gi * len(tl) <= i * len(zz):
            out_.append(zz[gi])
            gi += 1
        out_.append(it)
    E(out_, zz[gi:])
    E(WVM("pf"), WLG0, "s_barrier")
    E(f"s_cmp_eq_u32 s{sG}, 1\ns_cbranch_scc1 K2_MERGE1")
    st = (list(k.vm), list(k.lg))
    merge(k, 0)
    E("s_branch K2_G")
    k.set_state(*st)
    E("K2_MERGE1:")
    merge(k, 1)
    E("K2_G:")
    stamp(k, 3)
    gphase(k)
    if PROF and not MERGE23:
        E(WVM0)
    stamp(k, 4)
    rstamp(k, 19, 30)
    dstamp(k, 6)
    lstamp_store(k, 1, 19, 28, SS, sW)
    if PROF:
        E(f"s_mov_b32 s95, s53")
    stamp_store(k, 1, SS, sW, 208)
    if MERGE23:
        import k3
        E("s_mov_b64 exec, -1")
        k3.build(k)
    E("K2_END:")
    E("s_endpgm")
    for x in range(2):
        for buf in range(2):
            rare_path(k, x, buf)
    hooks(k)
    body(gmd, 'D')
    E("s_branch K2_TAIL")
    body(gmf, 'F')
    E("s_branch K2_TAIL")
    body(gmx, 'X')
    E("s_branch K2_TAIL")
    if merged:
        return
    return k.text(512, 256)
```

```python
from asmlib import *
from common import *

LDS = 163840
THREADS = 256
SO, SU, SX, SOUT, SS, SD = 8, 12, 16, 20, 24, 28
sW, sT, sT2, sRBk, sCBk, sKQ, sA, sAU, sB, sBU, sW4, sQH, sMH, sP, sFL = 32, 33, 34, 35, 36, 37, 38, 39, 40, 41, 42, 43, 44, 45, 46
vL16 = 1
vBD = 160
vAR = 6
vBR = 10
FB = 32
ACC = 64
NST = 19
NSLOT = 5


SOFF = 4


def slot(st):
    return ((st + SOFF) % NSLOT) * 32768


def pre():
    o = flat([f"s_load_dwordx2 s[64:65], s[0:1], {KA_WO}", f"s_load_dwordx4 s[68:71], s[0:1], {KA_WOUT}",
              f"s_load_dwordx4 s[72:75], s[0:1], {KA_DBG}", f"s_load_dwordx2 s[66:67], s[0:1], {KA_X}",
              f"s_and_b32 s{sKQ}, s2, 3\ns_bfe_u32 s{sRBk}, s2, 0x10002\ns_lshl_b32 s{sRBk}, s{sRBk}, 3\ns_bfe_u32 s{sT}, s2, 0x30003\ns_add_u32 s{sRBk}, s{sRBk}, s{sT}",
              f"s_lshr_b32 s{sCBk}, s2, 6",
              "v_lshrrev_b32 v152, 4, v0\nv_bfe_u32 v153, v0, 2, 2\nv_and_b32 v154, 3, v0",
              "v_xor_b32 v156, v153, v152\nv_lshlrev_b32 v157, 10, v152\nv_lshl_add_u32 v157, v156, 6, v157\nv_lshl_add_u32 v157, v154, 4, v157"])
    o += [I(f"v_add_u32 v{vBD + i}, {i * 3072}, v157") for i in range(4)]
    o += flat([f"s_lshl_b32 s{sW4}, s{sW}, 12\ns_and_b32 s{sQH}, s{sW}, 1\ns_lshr_b32 s{sMH}, s{sW}, 1",
               f"s_lshl_b32 s{sA}, s{sRBk}, 2\ns_add_u32 s{sA}, s{sA}, s{sW}\ns_mul_i32 s{sA}, s{sA}, {CTXU_STEPS}",
               f"s_mul_i32 s{sT}, s{sKQ}, 12\ns_add_u32 s{sAU}, s{sA}, s{sT}\ns_add_u32 s{sAU}, s{sAU}, 256\ns_lshl_b32 s{sT}, s{sKQ}, 6\ns_add_u32 s{sA}, s{sA}, s{sT}",
               f"s_lshl_b32 s{sA}, s{sA}, 10\ns_add_u32 s{sA}, s{sA}, {WS_CTXU}\ns_lshl_b32 s{sAU}, s{sAU}, 10\ns_add_u32 s{sAU}, s{sAU}, {WS_CTXU}",
               f"s_lshl_b32 s{sT}, s{sCBk}, 8\ns_lshl_b32 s{sT2}, s{sW}, 14\ns_add_u32 s{sT}, s{sT}, s{sT2}\ns_lshl_b32 s{sB}, s{sKQ}, 20\ns_add_u32 s{sB}, s{sB}, s{sT}",
               f"s_mul_i32 s{sBU}, s{sKQ}, {192 * 1024}\ns_add_u32 s{sBU}, s{sBU}, s{sT}"])
    return o


def pre2():
    return [WLG0] + flat([srd(SO, 64, 4096 * 1024), srd(SS, 74, WS_SIZE)])


def dma(st):
    out = []
    base = slot(st)
    sa, offa = (sA, st * 4096) if st < 16 else (sAU, (st - 16) * 4096)
    srd_, sb, offb = (SO, sB, st * 65536) if st < 16 else (SU, sBU, (st - 16) * 65536)
    for i in range(4):
        g = []
        if i == 0:
            g += [I(f"s_add_u32 m0, s{sW4}, {base}"), I(f"s_add_u32 s{sT}, s{sa}, {offa}")]
        g.append(VM(f"buffer_load_dwordx4 v{vL16}, {s(SS, 4)}, s{sT} offen offset:{1024 * i} sc1 lds", f"h{st}"))
        out.append(g)
    for i in range(4):
        g = []
        if i == 0:
            g += [I(f"s_add_u32 m0, s{sW4}, {base + 16384}"), I(f"s_add_u32 s{sT}, s{sb}, {offb}")]
        g.append(VM(f"buffer_load_dwordx4 v{vBD + i}, {s(srd_, 4)}, s{sT} offen offset:{1024 * i} lds", f"h{st}"))
        out.append(g)
    return out


def build(k):
    merged = True
    E = k.emit
    stamp_init(k)
    stamp(k, 0)

    def reads(c):
        st, ks = c // 4, c % 4
        byte = slot(st)
        sg, off = byte // 65536, byte % 65536
        fb = FB + (c % 2) * 16
        out = [LG(f"ds_read_b128 {v(fb + 4 * qi, 4)}, v{vAR + sg} offset:{off + qi * 4096 + ks * 1024}", f"r{c}") for qi in range(2)]
        for mi in range(2):
            for sec in range(2):
                out.append(LG(f"ds_read_b64_tr_b16 {v(fb + 8 + 4 * mi + 2 * sec, 2)}, v{vBR + sg * 2 + mi} "
                              f"offset:{off + ks * 4096 + sec * 2048}", f"r{c}"))
        return out

    def mf(c):
        fb = FB + (c % 2) * 16
        return [mfma(('v', ACC + (qi * 2 + mi) * 16), ('v', fb + 8 + 4 * mi), ('v', fb + 4 * qi), 0 if c == 0 else None)
                for mi in range(2) for qi in range(2)]

    E("s_barrier")
    E(dma(1))
    E("v_and_b32 v20, 31, v0\nv_lshrrev_b32 v21, 5, v0\nv_bfe_u32 v23, v0, 2, 2\nv_and_b32 v24, 3, v0\nv_bfe_u32 v25, v0, 4, 1")
    E(srd(SU, 68, 688 * 1024), srd(SX, 66, 2048 * 1024), srd(SOUT, 70, 2048 * 1024), srd(SD, 72, 256))
    E(f"s_lshl_b32 s{sT}, s{sQH}, 13\nv_add_u32 v{vAR}, s{sT}, v{vL16}\nv_add_u32 v{vAR + 1}, 0x10000, v{vAR}\nv_add_u32 v{vAR + 2}, 0x20000, v{vAR}")
    E("v_lshl_add_u32 v26, v21, 2, v23\nv_lshlrev_b32 v26, 8, v26\nv_lshl_add_u32 v26, v25, 5, v26\nv_lshl_add_u32 v26, v24, 3, v26\nv_add_u32 v26, 16384, v26")
    E(f"s_lshl_b32 s{sT}, s{sMH}, 1\nv_xor_b32 v27, s{sT}, v23\nv_lshl_add_u32 v{vBR}, v27, 6, v26\nv_xor_b32 v27, 1, v27\nv_lshl_add_u32 v{vBR + 1}, v27, 6, v26")
    for sg in (1, 2):
        for mi in range(2):
            E(f"v_add_u32 v{vBR + 2 * sg + mi}, {sg * 65536}, v{vBR + mi}")
    E(f"s_lshr_b32 s{sP}, s2, 2\ns_lshl_b32 s{sP}, s{sP}, 17\ns_add_u32 s{sP}, s{sP}, {WS_PART2 if merged else WS_PART}\ns_lshr_b32 s{sFL}, s2, 2\ns_lshl_b32 s{sFL}, s{sFL}, 7\ns_add_u32 s{sFL}, s{sFL}, {WS_FLAG3}")
    E(WVM("h0"), "s_barrier")
    stamp(k, 3)
    E(reads(0))
    pend = dma(2) + dma(3) + dma(4)
    NC = NST * 4
    for c in range(NC):
        E(WLG(f"r{c}"))
        if c % 4 == 3 and c + 1 < NC:
            st = c // 4
            E(WVM(f"h{st + 1}"))
            if merged and st == 10:
                E(flag_poll_check(sW, SS, 51, 140))
            E("s_barrier")
            if merged and st == 0:
                E(flag_set(sW, SS, 50, 140))
            if merged and st == 7:
                E(f"s_lshl_b32 s51, s{sRBk}, 8\ns_lshl_b32 s52, s{sKQ}, 5\ns_add_u32 s51, s51, s52\ns_add_u32 s51, s51, {WS_FU}")
                E(wave0(sW, [I("v_and_b32 v140, 1, v0"), I("v_lshlrev_b32 v140, 7, v140"), I("v_and_b32 v141, 2, v0"), I("v_lshl_add_u32 v140, v141, 3, v140"),
                             VMG(f"buffer_load_ubyte v141, v140, {s(SS, 4)}, s51 offen sc0 sc1", "poll")]))
            if st + NSLOT < NST:
                pend = pend + dma(st + NSLOT)
        r_ = reads(c + 1) if c + 1 < NC else []
        nt = 3 if len(pend) > 8 else 2
        take, pend = pend[:nt], pend[nt:]
        fill = []
        if c == NC - 8:
            xa = flat([f"s_lshl_b32 s{sT2}, s{sRBk}, 17\ns_lshl_b32 s{sT}, s{sKQ}, 15\ns_add_u32 s{sT2}, s{sT2}, s{sT}\ns_lshl_b32 s{sT}, s{sCBk}, 8",
                       f"s_add_u32 s{sT2}, s{sT2}, s{sT}\ns_lshl_b32 s{sT}, s{sW}, 6\ns_add_u32 s{sT2}, s{sT2}, s{sT}",
                       "v_lshlrev_b32 v26, 10, v20\nv_lshl_add_u32 v27, v21, 4, v26\nv_lshl_add_u32 v26, v21, 3, v26"])
            xa += [VM(f"buffer_load_dwordx2 {v(128 + 2 * i, 2)}, v26, {s(SX, 4)}, s{sT2} offen offset:{16 * i}", "x") for i in range(4)]
            fill.append(xa)
        gm_ = {0: r_[0:2] + take[0:1], 1: r_[2:4] + take[2:3], 2: r_[4:6] + take[1:2], 3: fill}
        if len(take) == 3:
            gm_[1], gm_[2] = r_[2:4] + take[1:2], r_[4:6] + take[2:3]
        E(place(mf(c), gm_))
    stamp(k, 1)
    dstamp(k, 7)
    E("s_barrier")
    E(f"s_lshl_b32 s{sT}, s{sMH}, 13\nv_add_u32 v28, s{sT}, v{vL16}\ns_lshl_b32 s{sT}, s{sMH}, 12\nv_add_u32 v31, s{sT}, v{vL16}\ns_nop 7")
    for qi in range(2):
        E(f"s_lshl_b32 s{sA}, s{sQH}, 1\ns_add_u32 s{sA}, s{sA}, {qi}\ns_cmp_eq_u32 s{sA}, s{sKQ}\ns_cbranch_scc1 K3_OWN{qi}")
        E(f"s_lshl_b32 s{sA}, s{sA}, 2\ns_add_u32 s{sA}, s{sA}, s{sKQ}\ns_lshl_b32 s{sA}, s{sA}, 13\ns_add_u32 s{sA}, s{sA}, s{sP}")
        for mi in range(2):
            b = ACC + (qi * 2 + mi) * 16
            for r in range(8):
                E(f"v_cvt_pk_bf16_f32 v{b + r}, v{b + 2 * r}, v{b + 2 * r + 1}")
            for q in range(2):
                E(f"buffer_store_dwordx4 {v(b + 4 * q, 4)}, v31, {s(SS, 4)}, s{sA} offen offset:{mi * 2048 + 1024 * q} sc1")
        E(f"s_branch K3_SENT{qi}")
        E(f"K3_OWN{qi}:")
        for mi in range(2):
            for q in range(4):
                E(f"ds_write_b128 v28, {v(ACC + (qi * 2 + mi) * 16 + 4 * q, 4)} offset:{mi * 4096 + 1024 * q}")
        E(f"K3_SENT{qi}:")
    E(WALL0, "s_barrier")
    stamp(k, 4)
    E(f"v_add_u32 v28, s{sW4}, v{vL16}\nv_mov_b32 v29, 0")
    for q in range(4):
        E(LG(f"ds_read_b128 {v(ACC + 4 * q, 4)}, v28 offset:{1024 * q}"))
    E(f"s_cmp_lg_u32 s{sW}, 0\ns_cbranch_scc1 K3_WAITED")
    E(f"v_mov_b32 v30, 1\ns_add_u32 s{sT}, s{sFL}, s{sKQ}\ns_mov_b64 exec, 1\nbuffer_store_byte v30, v29, {s(SS, 4)}, s{sT} offen sc0 sc1\ns_mov_b64 exec, -1")
    E("K3_POLL:")
    E(f"buffer_load_dword v30, v29, {s(SS, 4)}, s{sFL} offen sc0 sc1\ns_waitcnt vmcnt(0)")
    E("v_readfirstlane_b32 s47, v30\ns_cmp_eq_u32 s47, 0x01010101\ns_cbranch_scc1 K3_WAITED\ns_sleep 1\ns_branch K3_POLL")
    E("K3_WAITED:")
    E("s_barrier")
    stamp(k, 5)
    E(f"s_lshl_b32 s{sA}, s{sKQ}, 15\ns_add_u32 s{sA}, s{sA}, s{sP}\ns_lshl_b32 s{sT}, s{sW}, 11\ns_add_u32 s{sA}, s{sA}, s{sT}")
    for j in range(1, 4):
        E(f"s_add_u32 s{sT}, s{sKQ}, {j}\ns_and_b32 s{sT}, s{sT}, 3\ns_lshl_b32 s{sT}, s{sT}, 13\ns_add_u32 s{sT}, s{sT}, s{sA}")
        for q in range(2):
            E(VM(f"buffer_load_dwordx4 {v(ACC + 16 * j + 4 * q, 4)}, v{vL16}, {s(SS, 4)}, s{sT} offen offset:{1024 * q} sc1", f"pp{j}"))
    E(WLG0)
    for j in range(4):
        src = 128 if j == 0 else ACC + 16 * j
        if j:
            E(WVM(f"pp{j}"))
        for r in range(8):
            E(f"v_lshlrev_b32 v30, 16, v{src + r}\nv_and_b32 v31, 0xffff0000, v{src + r}")
            E(f"v_add_f32 v{ACC + 2 * r}, v{ACC + 2 * r}, v30\nv_add_f32 v{ACC + 2 * r + 1}, v{ACC + 2 * r + 1}, v31")
    for r in range(8):
        E(f"v_cvt_pk_bf16_f32 v{ACC + r}, v{ACC + 2 * r}, v{ACC + 2 * r + 1}")
    E("s_nop 1")
    for g in range(2):
        b = ACC + 4 * g
        E(f"v_permlane32_swap_b32 v{b}, v{b + 2}\nv_permlane32_swap_b32 v{b + 1}, v{b + 3}")
    E("s_nop 1")
    for g in range(2):
        E(VM(f"buffer_store_dwordx4 {v(ACC + 4 * g, 4)}, v27, {s(SOUT, 4)}, s{sT2} offen offset:{32 * g}"))
    if PROF:
        E(WVM0)
    stamp(k, 2)
    dstamp(k, 8)
    dstamp_store(k, SD, sW, 8)
    stamp_store(k, 2, SS, sW, 136)
    if merged:
        return
    E("K3_END:")
    E("s_endpgm")
    return k.text(160, 160)
```

```python
from asmlib import *
from common import *
import os

THRESH = float(os.environ.get("THRESH", "32.0"))
BUDGET = int(os.environ.get("BUDGET", "25"))
EXP = os.environ.get("EXP2", "")

SQ, SP, SB, SS, SD = 8, 12, 16, 20, 24
sW, sHD, sPI, sG, sRS = 32, 33, 34, 35, 36
sT, sT2, sU, sSW, sSW2, sJUMP, sTL, sTD = 37, 38, 39, 40, 41, 42, 43, 44
sKN, sKO2, sVO, sVO2, sMK, sMV = 45, 46, 47, 48, 49, 50
sTH = (51, 52)
sLO = (53, 54)
sXN, sWQ, sWM, sW8, sDO = 55, 56, 57, 59, 58
sGP, sGZ, sGM, sFL, sPF, sEV, sDG = 60, 61, 62, 63, 76, 77, 31
NINF = "0xff800000"
SC1 = " sc1" if MERGE12 else ""

vL16, vKc, vKn, vVp, vVc, vD0, vNEG = 1, 2, 3, 4, 5, 6, 7
vLs = ((8, 9), (10, 11))
vNM = (12, 13)
vM = 14
vLSV = (30, 31)
vT = 20
vQD = 32
vQR = 36
S = (48, 64)
NEGM = (80, 96)
PB = 112
QBS = 144
ZT = 208
NEGB = 208
MSK = 224
vPL = 240
aO, aQ, aK, aV = 0, 128, 192, 224

KB0, VB0, SPARE = 0, 65536, 131072
NEG = -1.0e30


def P(buf, x, i=0):
    return PB + (buf * 2 + x) * 8 + i


def dma4(so, tag="kv"):
    return [VM(f"buffer_load_dwordx4 v{vL16}, {s(SS, 4)}, s{so} offen offset:{1024 * i}{SC1} lds", tag) for i in range(4)]


def qk(x, cin=None):
    return [mfma(('v', S[x]), ('a', aK + 4 * d), ('a', aQ + (x * 8 + d) * 4), ('v', NEGM[x] if cin is None else cin) if d == 0 else None)
            for d in range(8)]


def pv(x, buf):
    return [mfma(('a', aO + (x * 4 + ds) * 16), ('a', aV + (ds * 2 + g) * 4), ('v', P(buf, x, 4 * g)))
            for g in range(2) for ds in range(4)]


def kreads(areg, th):
    return [LG(f"ds_read_b128 {a(aK + 4 * d, 4)}, v{areg} offset:{th * 8192 + d * 1024}", "k") for d in range(8)]


def vreads(areg, th):
    return [LG(f"ds_read_b128 {a(aV + 4 * f, 4)}, v{areg} offset:{th * 8192 + f * 1024}", "v") for f in (0, 2, 4, 6, 1, 3, 5, 7)]


def sm_max(x):
    b, m = S[x], vM
    return [(4, I(t)) for t in (
        f"v_max3_f32 v{m}, v{b}, v{b + 1}, v{b + 2}", f"v_max3_f32 v{m + 1}, v{b + 3}, v{b + 4}, v{b + 5}",
        f"v_max3_f32 v{m + 2}, v{b + 6}, v{b + 7}, v{b + 8}", f"v_max3_f32 v{m + 3}, v{b + 9}, v{b + 10}, v{b + 11}",
        f"v_max3_f32 v{m + 4}, v{b + 12}, v{b + 13}, v{b + 14}", f"v_max3_f32 v{m}, v{m}, v{m + 1}, v{b + 15}",
        f"v_max3_f32 v{m + 2}, v{m + 2}, v{m + 3}, v{m + 4}", f"v_max_f32 v{m}, v{m}, v{m + 2}")]


def sm_chk(x, buf):
    return (8, [I(f"v_cmp_lt_f32 vcc, s{sTH[x]}, v{vM}"), I(f"s_cbranch_vccnz K2_RARE_{x}_{buf}"), I(f"K2_RET_{x}_{buf}:")])


def sm_fin(x, buf, i):
    b = S[x]
    return [(4, I(f"v_add_f32 v{vLs[x][0]}, v{vLs[x][0]}, v{b + 2 * i}")),
            (4, I(f"v_add_f32 v{vLs[x][1]}, v{vLs[x][1]}, v{b + 2 * i + 1}")),
            (4, I(f"v_cvt_pk_bf16_f32 v{P(buf, x, i)}, v{b + 2 * i}, v{b + 2 * i + 1}"))]


def sm_exp(x, buf):
    b = S[x]
    items = []
    for i in range(8):
        items.append((8, I(f"v_exp_f32 v{b + 2 * i}, v{b + 2 * i}")))
        items.append((8, I(f"v_exp_f32 v{b + 2 * i + 1}, v{b + 2 * i + 1}")))
        if i > 0:
            items += sm_fin(x, buf, i - 1)
    return items + sm_fin(x, buf, 7)


CAP = int(os.environ.get("CAP", "24"))


def schedule_loop(var='', pin=None):
    NG = 64
    T = NG + 16
    mem = [[] for _ in range(T)]
    alu = [[] for _ in range(T)]
    used = [0] * NG
    sfx = var
    diag, first, full = var == 'D', var == 'F', var == 'X'

    def fixed(g, cost, item, is_mem=True):
        (mem if is_mem else alu)[g].append(item)
        used[g % NG] += cost

    def spread_mem(g0, n, items):
        for i, r in enumerate(items):
            fixed(g0 + (i * n) // len(items), 4, r)

    spread_mem(0, 13, vreads(vVp, 1))
    if not full:
        spread_mem(16, 10, kreads(vKc, 1))
        spread_mem(32, 13, vreads(vVc, 0))
    spread_mem(48, 13, kreads(vKn, 0))
    BAR = int(os.environ.get("BAR", "27"))
    fixed(BAR, 8, [I("s_waitcnt vmcnt(1) lgkmcnt(0)"), ('reset',), I("s_barrier")])
    g = BAR + 1
    dgaps = []
    for so in (sKN, sKO2, sVO, sVO2):
        for d in dma4(so):
            fixed(g, 8, d)
            dgaps.append(g)
            g += 2
    fixed(g, 8, VM(f"buffer_load_dword v{ZT + 40}, v{vL16}, {s(SD, 4)}, s{sPF} offen", "pf"))
    gpf = g
    tail = {15: [WLG("v")], 47: [WLG("v")], 63: []}
    for g_ in (15, 47):
        used[g_] += 4
    used[63] += 4 + 13 + 13
    if var:
        used[31] += 13
    jobs = []

    def job(name, cost, item, e, l, deps=(), later=None):
        jobs.append(dict(name=name, cost=cost, item=item, e=e, l=l, deps=list(deps), later=later))

    job("vo", 4, I(f"s_add_u32 s{sVO}, s{sKN}, {WS_VF - WS_KF}"), 0, BAR - 2)
    job("vo2", 4, I(f"s_add_u32 s{sVO2}, s{sKN}, {WS_VF - WS_KF + 4096}"), 0, BAR - 2)
    job("kn", 12, [I(f"s_cmp_eq_u32 s{sU}, s{sSW2}"), I(f"s_cselect_b32 s{sKO2}, s{sJUMP}, 0x4000"), I(f"s_add_u32 s{sKN}, s{sKN}, s{sKO2}")],
        0, BAR - 1, ["vo", "vo2"])
    job("ko2", 4, I(f"s_add_u32 s{sKO2}, s{sKN}, 4096"), 0, BAR, ["kn"])
    job("m0a", 4, I(f"s_mov_b32 m0, s{sMK}"), 0, BAR)
    job("m0b", 4, I(f"s_add_u32 m0, s{sMK}, 4096"), dgaps[3], dgaps[4] - 1)
    job("m0c", 4, I(f"s_mov_b32 m0, s{sMV}"), dgaps[7], dgaps[8] - 1)
    job("m0d", 4, I(f"s_add_u32 m0, s{sMV}, 4096"), dgaps[11], dgaps[12] - 1)
    job("pfa", 4, I(f"s_add_u32 s{sPF}, s{sPF}, s30"), gpf, 63)
    job("xk", 4, I(f"s_xor_b32 s{sMK}, s{sMK}, 0x8000"), dgaps[4], 63, ["m0b"])
    job("xv", 4, I(f"s_xor_b32 s{sMV}, s{sMV}, 0x8000"), dgaps[12], 63, ["m0d"])
    job("vp", 4, I(f"v_mov_b32 v{vVp}, v{vVc}"), 13, 44)
    job("vc", 4, I(f"v_xor_b32 v{vVc}, 0x8000, v{vVc}"), 45, 63, ["vp"])
    job("kc", 4, I(f"v_xor_b32 v{vKc}, 0x8000, v{vKc}"), 26, 63)
    job("kx", 4, I(f"v_xor_b32 v{vKn}, 0x8000, v{vKn}"), 61, 63)
    job("tl", 4, I(f"s_add_u32 s{sTL}, s{sTL}, 1"), 56, 63)
    job("u", 4, I(f"s_add_u32 s{sU}, s{sU}, 1"), 32, 63)
    for half in range(2):
        G = 8 + 32 * half
        for x in range(2):
            e0 = G + 1 + 8 * x
            pre = f"{half}{x}"
            prev = [f"{half}0chk"] if x == 1 else []
            if diag and half == x:
                for r in range(16):
                    job(f"{pre}mk{r}", 4, I(f"v_min_f32 v{S[x] + r}, v{S[x] + r}, v{MSK + r}"), e0, e0 + 4, prev)
                prev = prev + [f"{pre}mk{r}" for r in range(16)]
            for i, (c, it) in enumerate(sm_max(x)):
                job(f"{pre}m{i}", c, it, e0, e0 + 5, prev + ([f"{pre}m{i - 1}"] if i else []))
            dl = G + 23 + 8 * x
            b_ = S[x]
            if first and half == 0:
                d_ = vT + x
                job(f"{pre}f0", 4, I(f"v_mov_b32 v{d_}, v{vM}"), e0, e0 + 8, [f"{pre}m7"])
                job(f"{pre}f1", 8, [I("s_nop 0"), I(f"v_permlane32_swap_b32 v{vM}, v{d_}")], e0, e0 + 9, [f"{pre}f0"], later=f"{pre}f0")
                job(f"{pre}chk", 12, [I(f"v_max_f32 v{d_}, v{d_}, v{vM}"), I(f"v_ceil_f32 v{d_}, v{d_}"), I(f"v_sub_f32 v{vNM[x]}, 0, v{d_}")],
                    e0, e0 + 10, [f"{pre}f1"], later=f"{pre}f1")
                job(f"{pre}ls", 12, [I(f"v_add_f32 v{vLSV[x]}, v{vLs[x][0]}, v{vLs[x][1]}"), I(f"v_mov_b32 v{vLs[x][0]}, 0"), I(f"v_mov_b32 v{vLs[x][1]}, 0")],
                    e0, e0 + 8)
                for r in range(16):
                    job(f"{pre}s{r}", 4, I(f"v_sub_f32 v{b_ + r}, v{b_ + r}, v{d_}"), e0, dl - 2, [f"{pre}chk", f"{pre}ls"])
                    job(f"{pre}n{r}", 4, I(f"v_mov_b32 v{NEGM[x] + r}, v{vNM[x]}"), e0, dl - 1, [f"{pre}chk"])
            else:
                job(f"{pre}cmp", 4, I(f"v_cmp_lt_f32 vcc, s{sTH[x]}, v{vM}"), e0, e0 + 5, [f"{pre}m7"])
                job(f"{pre}chk", 9, [I(f"s_cbranch_vccnz K2_RARE_{x}_{half}"), I(f"K2_RET{sfx}_{x}_{half}:")],
                    e0, e0 + 6, [f"{pre}cmp"], later=f"{pre}cmp")
            for r in range(16):
                job(f"{pre}e{r}", 8, I(f"v_exp_f32 v{b_ + r}, v{b_ + r}"), e0, dl - 1,
                    [f"{pre}s{r}" if (first and half == 0) else f"{pre}chk"] + ([f"{pre}e{r - 1}"] if r else []))
            for i in range(8):
                f3 = sm_fin(x, half, i)
                job(f"{pre}a{2 * i}", 4, f3[0][1], e0, dl, [f"{pre}e{2 * i + 1}"])
                job(f"{pre}a{2 * i + 1}", 4, f3[1][1], e0, dl, [f"{pre}a{2 * i}"])
                job(f"{pre}c{i}", 4, f3[2][1], e0, dl, [f"{pre}a{2 * i + 1}"])
    if diag:
        jobs[:] = [j for j in jobs if not j['name'].startswith("10")]
        for j in jobs:
            j['deps'] = [d for d in j['deps'] if not d.startswith("10")]
        for i in range(8):
            job(f"zp{i}", 4, I(f"v_mov_b32 v{P(1, 0, i)}, 0"), 32, 60)
    if full:
        jobs[:] = [j for j in jobs if j['name'][0] not in "01" or j['name'] in pin]
        names = {j['name'] for j in jobs}
        for j in jobs:
            j['deps'] = [d for d in j['deps'] if d in names]
            if j['later'] not in names:
                j['later'] = None
        for i in range(16):
            job(f"zp{i}", 4, I(f"v_mov_b32 v{P(1, 0, i)}, 0"), 34, 60)
            job(f"zs{i}", 4, I(f"v_mov_b32 v{S[1] + i}, {'v%d' % vNEG if f'11e{i}' in pin else '0'}"), 9, 60)
    if pin is not None:
        for j in jobs:
            if j['name'] in pin:
                j['e'] = j['l'] = pin[j['name']]
            else:
                j['l'] = min(j['l'], 63)
    done = {}
    rest = list(jobs)
    order = list(range(9, NG + 9))
    remaining = sum(j['cost'] for j in jobs)
    for gi, g in enumerate(order):
        gm_ = g % NG
        free_after = sum(max(0, CAP - used[h % NG]) for h in order[gi + 1:])
        while True:
            cand = []
            for j in rest:
                e, l = j['e'], j['l']
                if l < 9 or (e < 9 and j['name'][0] not in "01" and False):
                    e, l = e + NG, l + NG
                if e <= g and all(d in done for d in j['deps']) and (j['later'] is None or done[j['later']] < g):
                    cand.append((l, j))
            if not cand:
                break
            cand.sort(key=lambda z: z[0])
            room = CAP - used[gm_]
            pick = None
            for l, j in cand:
                if j['cost'] <= room:
                    pick = j
                    break
            if pick is None:
                urgent = [j for l, j in cand if l <= g]
                if urgent:
                    pick = urgent[0]
                elif remaining > free_after and room > -4 and room + 4 >= min(j['cost'] for _, j in cand):
                    pick = min((j for _, j in cand), key=lambda j: j['cost'])
                else:
                    break
            alu[g].append(pick['item'])
            used[gm_] += pick['cost']
            remaining -= pick['cost']
            done[pick['name']] = g
            rest.remove(pick)
    assert not rest, [j['name'] for j in rest]
    for j in jobs:
        l = j['l'] + (NG if j['l'] < 9 else 0)
        assert done[j['name']] <= l, (j['name'], done[j['name']], l)
    est = sum(max(32, 8 + u) for u in used)
    if os.environ.get("SCHED"):
        print("loop estimate", est, used)
    wrapped = []
    for g in range(NG, T):
        wrapped += [it for it in alu[g] if "v_" in str(it) and "s_cselect" not in str(it)]
    gm = {}
    for g in range(NG):
        gm[g] = mem[g] + (alu[g + NG] if g + NG < T else []) + alu[g] + tail.get(g, [])
    return gm, wrapped, {n: g for n, g in done.items() if g >= NG}


def rare_ret(L):
    r = f"s_cmp_eq_u32 s{sDG}, 0\ns_cbranch_scc1 K2_RET_{L}\n"
    if L.endswith("_1"):
        r += f"s_cmp_eq_u32 s{sDG}, 2\ns_cbranch_scc1 K2_RETF_{L}\n"
    if L == "0_1":
        return f"s_cmp_eq_u32 s{sDG}, 0\ns_cbranch_scc1 K2_RET_{L}\ns_branch K2_RETF_{L}"
    return r + f"s_branch K2_RETD_{L}"


def rare_path(k, x, buf):
    E = k.emit
    t = vT
    L = f"{x}_{buf}"
    E(f"K2_RARE_{L}:")
    E(f"s_mov_b32 s{sTH[x]}, {fbits(THRESH)}")
    E(f"v_mov_b32 v{t}, v{vM}\ns_nop 1\nv_permlane32_swap_b32 v{vM}, v{t}\ns_nop 1")
    E(f"v_max_f32 v{t}, v{t}, v{vM}\nv_ceil_f32 v{t}, v{t}\nv_max_f32 v{t}, s{sLO[x]}, v{t}")
    E(f"v_sub_f32 v{vNM[x]}, v{vNM[x]}, v{t}")
    for r in range(16):
        E(f"v_sub_f32 v{S[x] + r}, v{S[x] + r}, v{t}")
        E(f"v_mov_b32 v{NEGM[x] + r}, v{vNM[x]}")
    E(f"s_cmp_eq_u32 s{sLO[x]}, 0\ns_cbranch_scc1 K2_RSC_{L}")
    E(f"v_add_f32 v{vLSV[x]}, v{vLs[x][0]}, v{vLs[x][1]}\nv_mov_b32 v{vLs[x][0]}, 0\nv_mov_b32 v{vLs[x][1]}, 0")
    E(f"s_mov_b32 s{sLO[x]}, 0", rare_ret(L))
    E(f"K2_RSC_{L}:")
    E(f"v_sub_f32 v{t + 1}, 0, v{t}\nv_exp_f32 v{t + 1}, v{t + 1}\ns_nop 0")
    E(f"v_mul_f32 v{vLs[x][0]}, v{vLs[x][0]}, v{t + 1}\nv_mul_f32 v{vLs[x][1]}, v{vLs[x][1]}, v{t + 1}")
    for i in range(8):
        p = P(1 - buf, x, i)
        E(f"v_lshlrev_b32 v{t + 2}, 16, v{p}\nv_and_b32 v{t + 3}, 0xffff0000, v{p}")
        E(f"v_mul_f32 v{t + 2}, v{t + 2}, v{t + 1}\nv_mul_f32 v{t + 3}, v{t + 3}, v{t + 1}")
        E(f"v_cvt_pk_bf16_f32 v{p}, v{t + 2}, v{t + 3}")
    E("s_nop 15")
    for r in range(0, 64, 4):
        for i in range(4):
            E(f"v_accvgpr_read_b32 v{t + 2 + i}, a{aO + x * 64 + r + i}")
        for i in range(4):
            E(f"v_mul_f32 v{t + 2 + i}, v{t + 2 + i}, v{t + 1}")
        for i in range(4):
            E(f"v_accvgpr_write_b32 a{aO + x * 64 + r + i}, v{t + 2 + i}")
    E(rare_ret(L))


def ctx_addr(sqb_expr, x_in_addr):
    pass


def hooks(k):
    E = k.emit
    E("K2_EVENT:")
    if MERGE12:
        E(f"s_cmp_lg_u32 s{sU}, 1\ns_cbranch_scc1 K2_EV0")
        E(f"s_cmp_lg_u32 s{sW}, 0\ns_cbranch_scc1 K2_EV0")
        E(f"v_mov_b32 v{vPL}, 1\nv_mov_b32 v{vPL + 1}, 0\ns_mov_b64 exec, 1\nbuffer_store_byte v{vPL}, v{vPL + 1}, {s(SS, 4)}, s{sGP} offen sc0 sc1\ns_mov_b64 exec, -1")
        E("K2_EV0:")
    E(f"s_add_u32 s{sT}, s{sU}, 1\ns_cmp_eq_u32 s{sT}, s{sSW}\ns_cselect_b32 s{sT}, s{sG}, 0\ns_lshl_b32 s{sT}, s{sT}, 14\nv_add_u32 v{vKn}, s{sT}, v{vKn}")
    E(f"s_mov_b32 s{sDG}, 0\ns_cmp_lg_u32 s{sU}, s{sSW}\ns_cbranch_scc1 K2_EV2")
    E(f"s_cmp_eq_u32 s{sG}, 0\ns_cbranch_scc1 K2_SW0")
    E(f"v_add_u32 v{vKc}, 0x4000, v{vKc}\nv_add_u32 v{vVc}, 0x4000, v{vVc}\ns_mov_b32 s{sSW2}, 15\ns_mov_b32 s{sJUMP}, 0x20000000")
    for r in range(64):
        E(f"v_accvgpr_write_b32 a{aQ + r}, v{QBS + r}")
    for r in range(32):
        E(f"v_mov_b32 v{NEGM[0] + r}, 0")
    E(f"v_mov_b32 v{vNM[0]}, 0\nv_mov_b32 v{vNM[1]}, 0")
    for x in range(2):
        E(f"s_mov_b32 s{sTH[x]}, {NINF}\ns_mov_b32 s{sLO[x]}, {NINF}")
    E(f"s_mov_b32 s{sTL}, 17\ns_sub_u32 s{sTD}, 15, s{sPI}\ns_lshl_b32 s{sTD}, s{sTD}, 1\ns_add_u32 s{sTD}, s{sTD}, s{sRS}")
    E("s_branch K2_EV2")
    E("K2_SW0:")
    E(f"s_cmp_eq_u32 s{sU}, 9\ns_cbranch_scc1 K2_SW1")
    E(f"v_and_b32 v{vPL}, 31, v0\nbuffer_load_ubyte v{vPL + 1}, v{vPL}, {s(SS, 4)}, s{sFL} offen sc0 sc1\ns_mov_b32 s{sSW}, 9")
    E(f"s_mov_b32 s{SD}, s28\ns_mov_b32 s{SD + 1}, s29\ns_mov_b32 s{SD + 2}, {4096 * 1024:#x}\ns_lshl_b32 s{sPF}, s2, 1\ns_add_u32 s{sPF}, s{sPF}, s{sW}\ns_lshl_b32 s{sPF}, s{sPF}, 10\ns_mov_b32 s30, 0x80000\ns_branch K2_EV2")
    E("K2_SW1:\ns_waitcnt vmcnt(17)")
    E(f"v_cmp_ne_u32 vcc, 1, v{vPL + 1}\ns_nop 1\ns_cbranch_vccz K2_EV2")
    E(f"K2_FBLP:\ns_sleep 2\nbuffer_load_ubyte v{vPL + 1}, v{vPL}, {s(SS, 4)}, s{sFL} offen sc0 sc1\ns_waitcnt vmcnt(0)")
    E(f"v_cmp_ne_u32 vcc, 1, v{vPL + 1}\ns_nop 1\ns_cbranch_vccnz K2_FBLP")
    E("K2_EV2:")
    E(f"s_cmp_lt_u32 s{sTL}, s{sTD}\ns_cbranch_scc0 K2_EV3")
    E(f"s_cmp_eq_u32 s{sLO[0]}, 0\ns_cbranch_scc1 K2_EV4")
    for x in range(2):
        E(f"s_mov_b32 s{sTH[x]}, {fbits(THRESH)}\ns_mov_b32 s{sLO[x]}, 0")
    E(f"s_add_u32 s{sEV}, s{sU}, 1\ns_mov_b32 s{sDG}, 2\ns_branch K2_SWRETF")
    E("K2_EV4:")
    E(f"s_sub_u32 s{sEV}, s{sTD}, s{sTL}\ns_add_u32 s{sEV}, s{sEV}, s{sU}\ns_cmp_gt_u32 s{sSW}, s{sU}\ns_cselect_b32 s{sT}, s{sSW}, 99\ns_min_u32 s{sEV}, s{sEV}, s{sT}")
    E("s_branch K2_SWRET")
    E("K2_EV3:")
    E(f"s_add_u32 s{sEV}, s{sU}, 1\ns_mov_b32 s{sDG}, 1\ns_cmp_eq_u32 s{sTL}, s{sTD}\ns_cbranch_scc1 K2_SWRETD")
    E(f"s_mov_b32 s{sDG}, 3\ns_branch K2_SWRETX")
    E("K2_FINB:")
    t = QBS
    E(f"s_cmp_eq_u32 s{sLO[0]}, 0\ns_cbranch_scc1 K2_FB1")
    for x in range(2):
        E(f"v_add_f32 v{vLSV[x]}, v{vLs[x][0]}, v{vLs[x][1]}\nv_mov_b32 v{vLs[x][0]}, 0\nv_mov_b32 v{vLs[x][1]}, 0\nv_sub_f32 v{vNM[x]}, 0, v{vNEG}")
    E("K2_FB1:")
    for x in range(2):
        E(f"v_mov_b32 v{t + 2 * x}, v{vLSV[x]}")
    E("s_nop 1")
    for x in range(2):
        E(f"v_permlane32_swap_b32 v{vLSV[x]}, v{t + 2 * x}")
    E("s_nop 1")
    for x in range(2):
        E(f"v_add_f32 v{t + 2 * x}, v{t + 2 * x}, v{vLSV[x]}\nv_rcp_f32 v{t + 2 * x}, v{t + 2 * x}")
    E(f"s_lshl_b32 s{sT}, s{sPI}, 2\ns_lshl_b32 s{sT2}, s{sRS}, 1\ns_add_u32 s{sT}, s{sT}, s{sT2}")
    for x in range(2):
        E(f"v_mov_b32 v{t + 2 * x + 1}, v{t + 2 * x}")
    E(f"s_mul_i32 s{sT}, s{sT}, {CTXU_STEPS}\ns_lshl_b32 s{sT2}, s{sHD}, 3\ns_add_u32 s{sT}, s{sT}, s{sT2}")
    E(f"s_lshl_b32 s{sT}, s{sT}, 10\ns_add_u32 s{sT}, s{sT}, {WS_CTXU}")
    for i in range(4):
        E(f"v_mov_b32 v{t + 4 + i}, 0")
    for x in range(2):
        for f in range(8):
            b = t + 8 + 8 * (f % 4)
            for i in range(8):
                E(f"v_accvgpr_read_b32 v{b + i}, a{aO + x * 64 + 8 * f + i}")
            if f % 2 == 1:
                E(mfma(('a', aO + x * 64 + 8 * (f - 1)), ('v', t + 4), ('v', t + 4), 0))
            for i in range(4):
                E(f"v_pk_mul_f32 {v(b + 2 * i, 2)}, {v(b + 2 * i, 2)}, {v(t + 2 * x, 2)}")
            for i in range(4):
                E(f"v_cvt_pk_bf16_f32 v{b + i}, v{b + 2 * i}, v{b + 2 * i + 1}")
            E(f"buffer_store_dwordx4 {v(b, 4)}, v{vL16}, {s(SS, 4)}, s{sT} offen offset:{1024 * (f % 4)} sc1")
            if f == 3:
                E(f"s_add_u32 s{sT}, s{sT}, 4096")
            if f == 7 and x == 0:
                E(f"s_add_u32 s{sT}, s{sT}, {CTXU_STEPS * 1024 - 4096}")
    E(f"s_cmp_eq_u32 s{sDG}, 2\ns_cbranch_scc1 K2_FBRETF\ns_cmp_eq_u32 s{sDG}, 3\ns_cbranch_scc1 K2_FBRETX\ns_branch K2_FBRETD")


QACC = 48
aXN = 0
aWF = 192


def wq_dma(j):
    out = []
    for i in range(4):
        g = []
        if i == 0:
            g += [I(f"s_add_u32 m0, s{sWM}, {j * 16384}"), I(f"s_add_u32 s{sDO}, s{sWQ}, {j * 64 * 8192}")]
        g.append(VM(f"buffer_load_dwordx4 v{vQD + i}, {s(SQ, 4)}, s{sDO} offen offset:{1024 * i} lds", f"wq{j}"))
        out.append(g)
    return out


def xn_loads(j):
    out = []
    for x in range(2):
        for cs in range(4):
            g = []
            if cs == 0:
                g.append(I(f"s_add_u32 s{sDO}, s{sXN}, {x * 32768 + j * 4096}"))
            g.append(VM(f"buffer_load_dwordx4 {a(aXN + (j % 4) * 32 + (x * 4 + cs) * 4, 4)}, v{vL16}, {s(SS, 4)}, "
                        f"s{sDO} offen offset:{1024 * cs}{SC1}", f"xn{j}"))
            out.append(g)
    return out


def znorm():
    ld = [[I(x) for x in (f"s_lshr_b32 s{sGM}, s2, 3", f"s_and_b32 s{sGP}, s2, 7", f"s_lshl_b32 s{sT}, s{sGM}, 1", f"s_add_u32 s{sT}, s{sT}, s{sG}",
                          f"s_lshl_b32 s{sT}, s{sT}, 11", f"s_add_u32 s{sT}, s{sT}, {WS_STAT}", f"v_lshlrev_b32 v{ZT}, 2, v0")]]
    for i in range(0, 8, 2):
        ld.append([VM(f"buffer_load_dword v{ZT + 4 + i + e}, v{ZT}, {s(SS, 4)}, s{sT} offen offset:{256 * (i + e)}{SC1}", "zn") for e in range(2)])
    ld.append([I(x) for x in (f"s_mul_i32 s{sGZ}, s{sGP}, 384", f"s_lshl_b32 s{sT}, s{sGM}, 2", f"s_add_u32 s{sGZ}, s{sGZ}, s{sT}",
                              f"s_add_u32 s{sGZ}, s{sGZ}, s{sW}", f"s_lshl_b32 s{sGZ}, s{sGZ}, 10")])
    for f in range(3):
        ld.append([I(f"s_add_u32 s{sT}, s{sGZ}, {WS_Z2R + f * 128 * 1024}"),
                   VM(f"buffer_load_dwordx4 {v(ZT + 12 + 4 * f, 4)}, v{vL16}, {s(SS, 4)}, s{sT} offen{SC1}", "zn")])
    z = ZT + 4
    AB = ZT + 24
    c = [WVM("zn")]
    c += flat([f"v_add_f32 v{z}, v{z}, v{z + 1}\nv_add_f32 v{z + 2}, v{z + 2}, v{z + 3}\nv_add_f32 v{z + 4}, v{z + 4}, v{z + 5}\nv_add_f32 v{z + 6}, v{z + 6}, v{z + 7}",
               f"v_add_f32 v{z}, v{z}, v{z + 2}\nv_add_f32 v{z + 4}, v{z + 4}, v{z + 6}\nv_add_f32 v{z}, v{z}, v{z + 4}",
               f"v_mul_f32 v{z}, {fbits(1 / 688)}, v{z}\nv_mov_b32 v{z + 1}, v{z}\ns_nop 1\nv_permlane32_swap_b32 v{z}, v{z + 1}\ns_nop 1",
               f"v_fma_f32 v{z + 1}, -v{z}, v{z}, v{z + 1}\nv_max_f32 v{z + 1}, 0, v{z + 1}\nv_add_f32 v{z + 1}, {fbits(LN_EPS)}, v{z + 1}\nv_rsq_f32 v{z + 1}, v{z + 1}\ns_nop 0",
               f"v_mul_f32 v{z}, v{z}, v{z + 1}\nv_sub_f32 v{z}, 0, v{z}",
               f"s_lshl_b32 s{sT}, s{sW}, 8\ns_add_u32 s{sT}, s{sT}, {SPARE}",
               f"v_lshlrev_b32 v{z + 2}, 2, v20\nv_add_u32 v{z + 2}, s{sT}, v{z + 2}"])
    c += [LG(f"ds_write_b32 v{z + 2}, v{z + 1}", "zw"), LG(f"ds_write_b32 v{z + 2}, v{z} offset:128", "zw")]
    c += flat([f"s_lshl_b32 s{sT2}, s{sRS}, 6\ns_add_u32 s{sT}, s{sT}, s{sT2}\nv_lshlrev_b32 v{z + 3}, 5, v21\nv_add_u32 v{z + 3}, s{sT}, v{z + 3}"])
    for i in range(2):
        c += [LG(f"ds_read_b128 {v(AB + 4 * i, 4)}, v{z + 3} offset:{16 * i}", "zr"),
              LG(f"ds_read_b128 {v(AB + 8 + 4 * i, 4)}, v{z + 3} offset:{128 + 16 * i}", "zr")]
    c += flat([f"s_lshl_b32 s{sGP}, s{sGP}, 8\ns_add_u32 s{sGP}, s{sGP}, s{sGM}\ns_add_u32 s{sGP}, s{sGP}, {WS_FLAG2}\ns_nop 0"])
    c += [WLG("zr")]
    for f in range(3):
        for i in range(4):
            x_ = ZT + 12 + 4 * f + i
            c += flat([f"v_lshlrev_b32 v{z}, 16, v{x_}\nv_and_b32 v{z + 1}, 0xffff0000, v{x_}",
                       f"v_fma_f32 v{z}, v{z}, v{AB + 2 * i}, v{AB + 8 + 2 * i}\nv_fma_f32 v{z + 1}, v{z + 1}, v{AB + 2 * i + 1}, v{AB + 9 + 2 * i}",
                       f"v_cvt_pk_bf16_f32 v{x_}, v{z}, v{z + 1}"])
        c += [I(f"s_add_u32 s{sT}, s{sGZ}, {WS_Z2N + f * 128 * 1024}"),
              VM(f"buffer_store_dwordx4 {v(ZT + 12 + 4 * f, 4)}, v{vL16}, {s(SS, 4)}, s{sT} offen sc1", "zs")]
    cg = [c[i:i + 4] for i in range(0, len(c), 4)]
    return ld, cg


def qproj(k):
    E = k.emit
    extra = {}

    def spread(c0, c1, groups):
        n = len(groups)
        for i, g in enumerate(groups):
            extra.setdefault(c0 + (i * (c1 - c0)) // n, []).append(g)

    def rd(c, fb):
        j, cs = c // 4, c % 4
        return [LG(f"ds_read_b64_tr_b16 {a(fb + 4 * d + 2 * sec, 2)}, v{vQR + (j // 4) * 4 + d} "
                   f"offset:{(j % 4) * 16384 + cs * 4096 + sec * 1024}", f"q{c}") for d in range(4) for sec in range(2)]

    def fbuf(c):
        return aWF + (c % 4) * 16

    def mf1(c, d, x):
        j, cs = c // 4, c % 4
        return mfma(('v', QACC + (x * 4 + d) * 16), ('a', fbuf(c) + 4 * d), ('a', aXN + (j % 4) * 32 + (x * 4 + cs) * 4),
                    0 if c == 0 else None)

    zl, zc = znorm()

    def kvpre(base, pre, so, so2, tag="kv"):
        d1, d2 = dma4(so, tag), dma4(so2, tag)
        return [[I(f"s_add_u32 m0, s{sW8}, {base}")] + [I(x) for x in pre] + [d1[0]]] + [[d] for d in d1[1:]] + \
               [[I(f"s_add_u32 m0, s{sW8}, {base + 4096}"), I("s_nop 0"), d2[0]]] + [[d] for d in d2[1:]]

    k0 = kvpre(0, [f"s_add_u32 s{sKO2}, s{sKN}, 4096"], sKN, sKO2, "k0")
    k1 = kvpre(32768, [f"s_add_u32 s{sVO}, s{sKN}, {WS_VF - WS_KF}", f"s_add_u32 s{sVO2}, s{sVO}, 4096",
                       f"s_add_u32 s{sKN}, s{sKN}, 0x4000", f"s_add_u32 s{sKO2}, s{sKN}, 4096"], sKN, sKO2)
    v0_ = kvpre(VB0, ["s_nop 0"], sVO, sVO2)
    q = []
    if MERGE12:
        order_ = ((0, wq_dma(2) + xn_loads(2) + wq_dma(3) + xn_loads(3) + wq_dma(4)), (4, xn_loads(4)), (0, wq_dma(5)), (8, xn_loads(5)),
                  (0, wq_dma(6)), (12, xn_loads(6)), (0, wq_dma(7)), (16, xn_loads(7)), (22, k0 + zl))
    else:
        order_ = ((0, wq_dma(2) + xn_loads(2) + wq_dma(3) + xn_loads(3) + wq_dma(4)), (4, xn_loads(4)), (0, wq_dma(5)), (8, xn_loads(5)),
                  (0, wq_dma(6) + zl), (12, xn_loads(6)), (0, wq_dma(7)), (16, xn_loads(7)), (6, k0), (14, k1))
    for e, grp in order_:
        q += [(e, g) for g in grp]
    RATE = 4
    c_ = 0
    n_ = 0
    for e, g in q:
        if e > c_:
            c_, n_ = e, 0
        extra.setdefault(c_, []).append(g)
        n_ += 1
        if n_ == RATE:
            c_, n_ = c_ + 1, 0
    assert c_ <= 27, c_
    valu = {}
    if not MERGE12:
        for i, g in enumerate(zc):
            valu.setdefault(19 + (i * 8) // len(zc), []).append(g)
    else:
        valu[18] = [[I(f"s_mov_b32 s{sT}, {WS_FP1}")] + poll_all_issue(sW, SS, f"s{sT}", 16, 4, 176)]

    E(WVM("wq0"), "s_barrier")
    stamp(k, 6)
    E(rd(0, fbuf(0)), rd(1, fbuf(1)))
    for c in range(28):
        j, cs = c // 4, c % 4
        n = c + 2
        if n % 4 == 0:
            lstamp(k, 19, 3 * (n // 4))
            E(WLG(f"q{n - 1}"), WVM(f"wq{n // 4}"))
            lstamp(k, 19, 3 * (n // 4) + 1)
            if MERGE12 and n == 24:
                E(poll_all_check(sW, SS, f"s{sT}", 16, 4, 176, 1))
            E("s_barrier")
            if MERGE12 and n == 4:
                E(f"s_lshl_b32 s{sT}, s2, 4\ns_add_u32 s{sT}, s{sT}, {WS_FP1}", flag_set(sW, SS, sT, 176))
        E(WLG(f"q{c}"))
        if cs == 0:
            E(WVM(f"xn{j}"))
            lstamp(k, 19, 3 * j + 2)
        r_ = rd(n, fbuf(n))
        ex, va = extra.get(c, []), valu.get(c, [])
        gm_ = {}
        for i in range(8):
            gm_[i] = [r_[i]] + ([ex[i // 2]] if (i % 2 == 0 and i // 2 < len(ex)) else []) + [va[z] for z in range(len(va)) if (z * 8) // len(va) == i]
        E(place([mf1(c, d, x) for d in range(4) for x in range(2)], gm_))
    E(rd(30, fbuf(30)), rd(31, fbuf(31)))
    E(f"v_mov_b32 v{vT}, {fbits(QSCALE)}\nv_mov_b32 v{vT + 1}, {fbits(QSCALE)}")
    E(f"v_add_u32 v{vT + 2}, s{sW8}, v{vL16}\nv_add_u32 v{vT + 3}, {SPARE}, v{vT + 2}\nv_add_u32 v{vT + 2}, {VB0 + 32768}, v{vT + 2}")
    E(WVM("xn7"), WLG0, "s_barrier")

    def epi(d, x):
        out = []
        for g in range(2):
            b = QACC + (x * 4 + d) * 16 + 8 * g
            out.append([I(f"v_mul_f32 v{b + i}, v{vT}, v{b + i}") for i in range(8)])
            out.append([I(f"v_cvt_pk_bf16_f32 v{b + i}, v{b + 2 * i}, v{b + 2 * i + 1}") for i in range(4)] +
                       [LG(f"ds_write_b128 v{vT + 3 - x}, {v(b, 4)} offset:{(2 * d + g) * 1024}")])
        return out

    tiles = [(d, x) for x in range(2) for d in range(4)]
    for i, (d, x) in enumerate(tiles):
        m = [mf1(c, d, x) for c in range(28, 32)]
        kv2 = (k1 + v0_)[2 * i:2 * i + 2] if MERGE12 else [v0_[i], []]
        if i == 0:
            E(m[0], kv2[0], m[1], m[2], kv2[1], m[3])
        else:
            e = epi(*tiles[i - 1])
            E(m[0], kv2[0], m[1], e[0], e[1], m[2], kv2[1], e[2], m[3], e[3])
    stamp(k, 7)
    E("s_nop 15")
    E(epi(*tiles[-1]))
    E(WVM("k0"), WVM("zs"), WLG0, "s_barrier")
    if not MERGE12:
        E(flag_set(sW, SS, sGP, ZT))
    k.zc = zc
    E(f"s_lshl_b32 s{sT}, s{sRS}, 13\nv_add_u32 v{vT + 4}, s{sT}, v{vL16}")
    E(f"v_add_u32 v{vT + 5}, {SPARE}, v{vT + 4}\nv_add_u32 v{vT + 4}, {VB0 + 32768}, v{vT + 4}")
    E(kreads(vKc, 0))
    for x in range(2):
        for f in range(8):
            E(LG(f"ds_read_b128 {a(aQ + (x * 8 + f) * 4, 4)}, v{vT + 3 - x} offset:{f * 1024}"))
    for x in range(2):
        for f in range(8):
            E(LG(f"ds_read_b128 {v(QBS + (x * 8 + f) * 4, 4)}, v{vT + 5 - x} offset:{f * 1024}"))


ZRING = (('v', 144), ('v', 192), ('a', 128), ('a', 176))
vWS = 48
vPD = 32
vPR = 40
NGS = 5


def g_slot(st):
    return (st % 3) * 32768


def zreg(st, i):
    kind, base = ZRING[st % 4]
    return (kind, base + i * 4)


def sprinkle(items, groups):
    items = flat(items)
    n, m = len(items), len(groups)
    out, gi = [], 0
    for i, it in enumerate(items):
        while gi < m and gi * n <= i * m:
            out.append(groups[gi])
            gi += 1
        out.append(it)
    return flat(out + groups[gi:])


def g_dma(st):
    out = []
    for i in range(8):
        g = []
        if i % 4 == 0:
            g += [I(f"s_add_u32 m0, s{sW8}, {g_slot(st) + (i // 4) * 4096}"), I(f"s_add_u32 s{sDO}, s{sGP}, {st * 128}")]
        g.append(VM(f"buffer_load_dwordx4 v{vPD + i}, {s(SP, 4)}, s{sDO} offen offset:{1024 * (i % 4)} lds", f"g{st}"))
        out.append(g)
    return out


def g_zl(st):
    out = []
    for f in range(3):
        for ks in range(4):
            g = []
            if ks == 0:
                g.append(I(f"s_add_u32 s{sGM}, s{sGZ}, {f * 128 * 1024 + st * 4096}"))
            g.append(VM(f"buffer_load_dwordx4 {R(zreg(st, f * 4 + ks), 4)}, v{vL16}, {s(SS, 4)}, "
                        f"s{sGM} offen offset:{1024 * ks} sc1", f"g{st}"))
            out.append(g)
    return out


def g_setup():
    o = [f"v_lshrrev_b32 v{ZT + 32}, 4, v0\nv_lshrrev_b32 v{ZT + 33}, 3, v0\nv_lshlrev_b32 v{ZT + 33}, 12, v{ZT + 33}\nv_and_b32 v{ZT + 34}, 7, v0\nv_xor_b32 v{ZT + 34}, v{ZT + 34}, v{ZT + 32}",
         f"v_lshl_add_u32 v{ZT + 35}, v{ZT + 34}, 4, v{ZT + 33}\nv_xor_b32 v{ZT + 34}, 4, v{ZT + 34}\nv_lshl_add_u32 v{ZT + 36}, v{ZT + 34}, 4, v{ZT + 33}"]
    for i in range(8):
        o.append(f"v_add_u32 v{vPD + i}, {i * 8 * 4096 - (i % 4) * 1024}, v{ZT + 35 + (i % 2)}")
    o.append(f"v_lshrrev_b32 v{ZT + 32}, 5, v0\nv_bfe_u32 v{ZT + 33}, v0, 1, 3\nv_xor_b32 v{ZT + 33}, v{ZT + 33}, v{ZT + 32}")
    o.append(f"v_and_b32 v{ZT + 34}, 31, v0\nv_lshlrev_b32 v{ZT + 34}, 7, v{ZT + 34}\nv_add_u32 v{ZT + 34}, s{sW8}, v{ZT + 34}")
    for ks in range(4):
        o.append(f"v_xor_b32 v{ZT + 35}, {2 * ks}, v{ZT + 33}\nv_lshl_add_u32 v{vPR + ks}, v{ZT + 35}, 4, v{ZT + 34}\nv_add_u32 v{vPR + 4 + ks}, 0x10000, v{vPR + ks}")
    o.append(f"s_lshl_b32 s{sGP}, s{sHD}, 18\ns_lshl_b32 s{sDO}, s{sW}, 10\ns_add_u32 s{sGP}, s{sGP}, s{sDO}")
    o.append(f"s_mul_i32 s{sGZ}, s{sPI}, 384\ns_lshl_b32 s{sGM}, s{sW}, 5\ns_add_u32 s{sGZ}, s{sGZ}, s{sGM}")
    o.append(f"s_lshl_b32 s{sGZ}, s{sGZ}, 10\ns_add_u32 s{sGZ}, s{sGZ}, {WS_Z2N}")
    return o


def merge(k, keep):
    E = k.emit
    send = 1 - keep
    t = vT
    wr = [LG(f"ds_write_b128 v{t + 4 + i // 8}, {a(aO + send * 64 + 4 * i, 4)} offset:{(i % 8) * 1024}") for i in range(16)]
    E(LG(f"ds_read_b64 {v(t + 8, 2)}, v{t + 4}", "mb"))
    d0, d1 = g_dma(0), g_dma(1)
    E(weave(pv(send, 1), d0, 0, 8))
    E(WLG("mb"))
    fac = [f"v_min_f32 v{t}, v{vNM[keep]}, v{t + 8}", f"v_sub_f32 v{t + 2}, v{t}, v{vNM[keep]}", f"v_sub_f32 v{t + 8}, v{t}, v{t + 8}",
           f"v_exp_f32 v{t + 2}, v{t + 2}", f"v_exp_f32 v{t + 8}, v{t + 8}", "s_nop 0",
           f"v_mul_f32 v{t}, v{vLs[keep][0]}, v{t + 2}", f"v_fmac_f32 v{t}, v{t + 9}, v{t + 8}", f"v_rcp_f32 v{t}, v{t}", "s_nop 0",
           f"v_mul_f32 v{t + 2}, v{t + 2}, v{t}", f"v_mul_f32 v{t + 8}, v{t + 8}, v{t}", f"v_mov_b32 v{t + 3}, v{t + 2}", f"v_mov_b32 v{t + 9}, v{t + 8}"]
    m = pv(keep, 1)
    E(m[0], d1[0], fac[:6], m[1], d1[1], fac[6:], weave(m[2:], interleave2(wr, d1[2:]), 0, 6))
    E(WLG0, "s_barrier")
    RX = S[0]
    for i in range(16):
        E(LG(f"ds_read_b128 {v(RX + 4 * i, 4)}, v{t + 6 + i // 8} offset:{(i % 8) * 1024}", f"rx{i}"))
    body = []
    for f in range(8):
        b = RX + 8 * f
        body += [I(f"v_accvgpr_read_b32 v{PB + i}, a{aO + keep * 64 + 8 * f + i}") for i in range(8)]
        body += [WLG(f"rx{2 * f + 1}")]
        body += [I(f"v_pk_mul_f32 {v(b + 2 * i, 2)}, {v(b + 2 * i, 2)}, {v(t + 8, 2)}") for i in range(4)]
        body += [I(f"v_pk_fma_f32 {v(b + 2 * i, 2)}, {v(PB + 2 * i, 2)}, {v(t + 2, 2)}, {v(b + 2 * i, 2)}") for i in range(4)]
        body += [I(f"v_cvt_pk_bf16_f32 v{PB + 8 + 4 * (f % 4) + i}, v{b + 2 * i}, v{b + 2 * i + 1}") for i in range(4)]
        body += [VM(f"buffer_store_dwordx4 {v(PB + 8 + 4 * (f % 4), 4)}, v{vL16}, {s(SS, 4)}, s{sT if f < 4 else sT2} offen offset:{1024 * (f % 4)} sc1", "cs")]
    E(sprinkle(body, g_zl(1)))


def interleave2(x, y):
    out = []
    n = max(len(x), len(y))
    for i in range(n):
        out += x[(i * len(x)) // n:((i + 1) * len(x)) // n] + y[(i * len(y)) // n:((i + 1) * len(y)) // n]
    return out


def gphase(k):
    E = k.emit

    def reads(st):
        o = g_slot(st)
        sg, off = (0, o) if o < 65536 else (1, o - 65536)
        out = []
        for ks in range(4):
            for ts in range(2):
                if off + ts * 4096 < 65536:
                    out.append(LG(f"ds_read_b128 {v(vWS + (st % 2) * 32 + (ts * 4 + ks) * 4, 4)}, v{vPR + sg * 4 + ks} "
                                  f"offset:{off + ts * 4096}", f"p{st}"))
                else:
                    out.append(LG(f"ds_read_b128 {v(vWS + (st % 2) * 32 + (ts * 4 + ks) * 4, 4)}, v{ZT + 40 + ks} "
                                  f"offset:{off - 65536 + ts * 4096}", f"p{st}"))
        return out

    def mf(st):
        return [mfma(('a', (ts * 3 + f) * 16), zreg(st, f * 4 + ks),
                     ('v', vWS + (st % 2) * 32 + (ts * 4 + ks) * 4), 0 if (st == 0 and ks == 0) else None)
                for ks in range(4) for f in range(3) for ts in range(2)]

    for ks in range(4):
        E(f"v_add_u32 v{ZT + 40 + ks}, 0x20000, v{vPR + ks}")
    E("s_barrier")
    E(WVM("g0"))
    stamp(k, 10)
    E(reads(0))
    sched = {st: g_dma(st + 2) + g_zl(st + 2) for st in range(6)}
    for st in range(8):
        E(WLG(f"p{st}"))
        ld = sched.get(st, [])
        m = mf(st)
        n1 = (len(ld) * 14) // 24
        first = weave(m[:14], ld[:n1], 0, 14)
        second = ([WVM(f"g{st + 1}")] + weave(m[14:], interleave2(reads(st + 1), ld[n1:]), 0, 9)) if st + 1 < 8 else m[14:]
        if st == 6:
            fin = flat([f"s_lshl_b32 s{sT}, s{sHD}, 1\ns_add_u32 s{sT}, s{sT}, s{sG}",
                        f"s_mul_i32 s{sT2}, s{sPI}, 6\ns_mul_i32 s{sGP}, s{sRS}, 3\ns_add_u32 s{sT2}, s{sT2}, s{sGP}",
                        f"s_mul_i32 s{sGP}, s{sT}, 48\ns_add_u32 s{sGP}, s{sGP}, s{sT2}\ns_lshl_b32 s{sGP}, s{sGP}, 10\ns_add_u32 s{sGP}, s{sGP}, {WS_Z1}",
                        f"s_mul_i32 s{sGZ}, s{sT}, {CTXU_STEPS}\ns_add_u32 s{sGZ}, s{sGZ}, s{sT2}\ns_add_u32 s{sGZ}, s{sGZ}, 256",
                        f"s_lshl_b32 s{sGZ}, s{sGZ}, 10\ns_add_u32 s{sGZ}, s{sGZ}, {WS_CTXU}",
                        f"s_lshl_b32 s{sT}, s{sT}, 6\nv_and_b32 v21, 31, v0\nv_lshlrev_b32 v21, 1, v21"])
            fin += [VM(f"buffer_load_dwordx4 {v(4 + 4 * i, 4)}, v{vL16}, {s(SS, 4)}, s{sGP} offen offset:{1024 * i}{SC1}", "fin") for i in range(3)]
            fin += [VM(f"buffer_load_ushort v16, v21, {s(SB, 4)}, s{sT} offen", "fin")]
            fin += flat([f"s_mov_b32 s{SD}, s100\ns_mov_b32 s{SD + 1}, s101\ns_mov_b32 s{SD + 2}, {688 * 1024:#x}\ns_lshl_b32 s{sPF}, s2, 2\ns_add_u32 s{sPF}, s{sPF}, s{sW}\ns_lshl_b32 s{sPF}, s{sPF}, 10"])
            fin += [VM(f"buffer_load_dword v{ZT + 32}, v{vL16}, {s(SD, 4)}, s{sPF} offen", "pf")]
            for d in range(4):
                fin += flat([f"s_sub_u32 s{sT}, {d + 3}, s{sW}\ns_and_b32 s{sT}, s{sT}, 3\ns_lshl_b32 s{sT}, s{sT}, 15\ns_add_u32 s{sT}, s{sT}, s{sW8}\nv_add_u32 v{28 + d}, s{sT}, v{vL16}"])
            for j in range(1, 4):
                fin += flat([f"s_add_u32 s{sT}, s{sW}, {j}\ns_and_b32 s{sT}, s{sT}, 3\ns_lshl_b32 s{sT}, s{sT}, 13\ns_add_u32 s{sT}, s{sT}, {(3 - j) * 32768}\nv_add_u32 v{21 + j}, s{sT}, v{vL16}"])
            first = weave(m[:14], [fin[i:i + 3] for i in range(0, len(fin), 3)], 0, 14)
        if MERGE23 and st == 2:
            E(WVM("cs"), "s_barrier")
            E(f"s_lshl_b32 s{sT}, s{sPI}, 5\ns_add_u32 s{sT}, s{sT}, s{sHD}\ns_lshl_b32 s{sT}, s{sT}, 4\ns_add_u32 s{sT}, s{sT}, {WS_FCTX}")
            E(flag_set(sW, SS, sT, 17))
        if MERGE23 and st == 4:
            E(f"s_bfe_u32 s{sT}, s2, 0x10002\ns_lshl_b32 s{sT}, s{sT}, 3\ns_bfe_u32 s{sT2}, s2, 0x30003\ns_add_u32 s{sT}, s{sT}, s{sT2}\ns_sub_u32 s{sT2}, 15, s{sT}\ns_min_u32 s{sT}, s{sT}, s{sT2}")
            E(f"s_lshl_b32 s{sT}, s{sT}, 9\ns_and_b32 s{sT2}, s2, 3\ns_lshl_b32 s{sT2}, s{sT2}, 7\ns_add_u32 s{sT}, s{sT}, s{sT2}\ns_add_u32 s{sFL}, s{sT}, {WS_FCTX}")
            E(wave0(sW, [I("v_and_b32 v17, 7, v0"), I("v_lshlrev_b32 v17, 4, v17"),
                         VMG(f"buffer_load_ubyte v18, v17, {s(SS, 4)}, s{sFL} offen sc0 sc1", "poll")]))
        if MERGE23 and st == 6:
            import k3
            p3 = fin + flat([f"s_lshl_b32 s{sT}, s{sHD}, 3\ns_add_u32 s{sT}, s{sT}, s{sPI}\ns_lshl_b32 s{sT}, s{sT}, 4\ns_add_u32 s50, s{sT}, {WS_FU}\ns_mov_b32 s53, s{sPI}"]) + k3.pre()
            first = weave(m[:14], [p3[i:i + 5] for i in range(0, len(p3), 5)], 0, 14)
            first += flag_poll_check(sW, SS, sFL, 17) + k3.pre2() + [I("s_barrier")]
            second = [WVM("g7")] + weave(m[14:], interleave2(reads(7), k3.dma(0)[:5]), 0, 9)
        if MERGE23 and st == 7:
            first = weave(m[:14], k3.dma(0)[5:] + k3.dma(1)[:4], 0, 14)
            second = weave(m[14:], k3.dma(1)[4:], 0, 9)
        lstamp(k, 19, 32 + 3 * st)
        E(first)
        lstamp(k, 19, 33 + 3 * st)
        E(second[:1])
        lstamp(k, 19, 34 + 3 * st)
        E(second[1:])
    stamp(k, 11)
    E("s_nop 7")
    for d in range(4):
        E(f"s_cmp_eq_u32 s{sW}, {d}\ns_cbranch_scc1 K2_GO{d}")
        for i in range(3):
            fr = 3 * d + i
            for q in range(2):
                E(f"ds_write_b128 v{28 + d}, {a(fr * 8 + 4 * q, 4)} offset:{(i * 2 + q) * 1024}")
        E(f"s_branch K2_GN{d}\nK2_GO{d}:")
        for i in range(3):
            for r in range(8):
                E(f"v_accvgpr_read_b32 v{48 + i * 32 + r}, a{(3 * d + i) * 8 + r}")
        E(f"K2_GN{d}:")
    if MERGE23:
        pass
    E(WLG0, "s_barrier")
    for i in range(3):
        for j in range(1, 4):
            for q in range(2):
                E(LG(f"ds_read_b128 {v(48 + i * 32 + j * 8 + q * 4, 4)}, v{21 + j} offset:{(i * 2 + q) * 1024}", f"x{i}"))
    E(WVM("fin"), "v_lshlrev_b32 v16, 16, v16")
    for i in range(3):
        E(WLG(f"x{i}"))
        b = 48 + i * 32
        for r in range(8):
            E(f"v_add_f32 v{b + r}, v{b + r}, v{b + 8 + r}\nv_add_f32 v{b + 16 + r}, v{b + 16 + r}, v{b + 24 + r}")
        for r in range(8):
            E(f"v_add_f32 v{b + r}, v{b + r}, v16")
        for r in range(8):
            E(f"v_add_f32 v{b + r}, v{b + r}, v{b + 16 + r}")
        for r in range(4):
            z = 4 + 4 * i + r
            E(f"v_lshlrev_b32 v26, 16, v{z}\nv_and_b32 v27, 0xffff0000, v{z}")
            E(f"v_mul_f32 v{b + 2 * r}, v{b + 2 * r}, v26\nv_mul_f32 v{b + 2 * r + 1}, v{b + 2 * r + 1}, v27")
        for r in range(4):
            E(f"v_cvt_pk_bf16_f32 v{b + r}, v{b + 2 * r}, v{b + 2 * r + 1}")
        E(VM(f"buffer_store_dwordx4 {v(b, 4)}, v{vL16}, {s(SS, 4)}, s{sGZ} offen offset:{1024 * i} sc1", "us"))


def build(k=None):
    merged = k is not None
    if not merged:
        k = Kern("k2_kernel")
    E = k.emit
    if not merged:
        E("s_cmp_ge_u32 s2, 256\ns_cbranch_scc1 K2_END")
        code_prefetch(k, "L_CODE_END" if MERGE23 else "k3_kernel", 0, 248)
    stamp_init(k)
    stamp(k, 0)
    E(f"s_load_dwordx2 s[64:65], s[0:1], {KA_WQ}")
    E(f"s_load_dwordx4 s[72:75], s[0:1], {KA_DBG}")
    E(f"s_load_dwordx4 s[68:71], s[0:1], {KA_WSP}")
    if not merged:
        E("v_lshrrev_b32 v1, 6, v0\nv_and_b32 v0, 63, v0")
    E(f"s_and_b32 s{sHD}, s2, 7\ns_lshl_b32 s{sHD}, s{sHD}, 2\ns_lshr_b32 s{sT}, s2, 3\ns_lshr_b32 s{sPI}, s{sT}, 2")
    if not merged:
        E(f"v_readfirstlane_b32 s{sW}, v1")
    E(f"s_and_b32 s{sT}, s{sT}, 3\ns_add_u32 s{sHD}, s{sHD}, s{sT}")
    E(f"s_and_b32 s{sRS}, s{sW}, 1\ns_lshr_b32 s{sG}, s{sW}, 1\ns_lshl_b32 s{sW8}, s{sW}, 13")
    E(f"v_lshlrev_b32 v{vL16}, 4, v0")
    E("v_and_b32 v20, 31, v0\nv_lshrrev_b32 v21, 5, v0\nv_lshrrev_b32 v22, 4, v0")
    E("v_bfe_u32 v23, v0, 2, 2\nv_and_b32 v24, 3, v0\nv_bfe_u32 v25, v0, 4, 1")
    E("v_xor_b32 v26, v23, v22\nv_lshlrev_b32 v27, 13, v22\nv_lshl_add_u32 v27, v26, 6, v27\nv_lshl_add_u32 v27, v24, 4, v27")
    for i in range(4):
        E(f"v_add_u32 v{vQD + i}, {i * (32768 - 1024)}, v27")
    E(f"s_sub_u32 s{sT}, 15, s{sPI}\ns_cmp_eq_u32 s{sG}, 0\ns_cselect_b32 s{sT}, s{sT}, s{sPI}")
    E(f"s_lshl_b32 s{sTD}, s{sT}, 1\ns_add_u32 s{sTD}, s{sTD}, s{sRS}\ns_lshl_b32 s{sXN}, s{sTD}, 16\ns_add_u32 s{sXN}, s{sXN}, {WS_XN}")
    E(f"s_lshl_b32 s{sWQ}, s{sW}, 17\ns_lshl_b32 s{sT}, s{sHD}, 8\ns_add_u32 s{sWQ}, s{sWQ}, s{sT}\ns_lshl_b32 s{sWM}, s{sW}, 12")
    E("s_waitcnt lgkmcnt(0)")
    E(srd(SQ, 64, 512 * 8192), srd(SS, 74, WS_SIZE))
    if not merged:
        for j in range(2):
            E(wq_dma(j), xn_loads(j))
    E(srd(SP, 68, 2048 * 4096), srd(SB, 70, 4096), srd(SD, 68, 2048 * 4096))
    E("v_lshl_add_u32 v26, v21, 3, v23\nv_lshlrev_b32 v26, 8, v26\nv_lshl_add_u32 v26, v25, 5, v26\nv_lshl_add_u32 v26, v24, 3, v26")
    for d in range(4):
        E(f"v_xor_b32 v27, {d}, v23\nv_lshl_add_u32 v{vQR + d}, v27, 6, v26\nv_add_u32 v{vQR + 4 + d}, 0x10000, v{vQR + d}")
    E(f"v_mov_b32 v{vKc}, v{vL16}\nv_add_u32 v{vKn}, 32768, v{vKc}\nv_add_u32 v{vVc}, {VB0}, v{vKc}\nv_mov_b32 v{vVp}, v{vVc}")
    E(f"v_lshlrev_b32 v26, 2, v21\nv_sub_u32 v{vD0}, v20, v26\nv_mov_b32 v{vNEG}, {fbits(NEG)}")
    E(f"s_lshl_b32 s{sKN}, s{sHD}, 19\ns_lshl_b32 s{sT}, s{sRS}, 13\ns_add_u32 s{sKN}, s{sKN}, s{sT}\ns_add_u32 s{sKN}, s{sKN}, {WS_KF}")
    E(f"s_lshl_b32 s{sT}, s{sPI}, 1\ns_add_u32 s{sT}, s{sT}, 2\ns_sub_u32 s{sT2}, 18, s{sT}\ns_lshl_b32 s{sT2}, s{sT2}, 14")
    E(f"s_sub_u32 s{sT2}, s{sT2}, 0x20000000\ns_sub_u32 s{sSW2}, s{sT}, 2\ns_lshl_b32 s{sU}, s{sG}, 29\ns_add_u32 s{sKN}, s{sKN}, s{sU}")
    E(f"s_cmp_eq_u32 s{sG}, 0\ns_cselect_b32 s{sSW}, 8, s{sT}\ns_cselect_b32 s{sJUMP}, 0x20000000, s{sT2}\ns_cselect_b32 s{sSW2}, 15, s{sSW2}")
    E(f"s_lshl_b32 s{sFL}, s{sPI}, 8\ns_add_u32 s{sFL}, s{sFL}, {WS_FLAG2}\ns_lshl_b32 s{sPF}, s2, 2\ns_add_u32 s{sPF}, s{sPF}, s{sW}\ns_lshl_b32 s{sPF}, s{sPF}, 10\ns_mov_b32 s30, 0x100000")
    E(f"s_load_dwordx2 s[28:29], s[0:1], {KA_WO}\ns_load_dwordx2 s[100:101], s[0:1], {KA_WOUT}\ns_waitcnt lgkmcnt(0)")
    if "nowsp" in EXP:
        E(f"s_mov_b32 s{sPF}, 0x1000000")
    if merged:
        import k1
        E(f"s_mov_b32 s98, 0x20000000\ns_cmp_eq_u32 s{sG}, 1\ns_cbranch_scc1 K2_ZE2")
        st0 = (list(k.vm), list(k.lg))
        E(k1.z_epilogue(False, SS, vL16, 20, 21, sRS, 0), "s_branch K2_ZE")
        k.set_state(*st0)
        E("K2_ZE2:")
        E(k1.z_epilogue(True, SS, vL16, 20, 21, sRS, 0))
        E("K2_ZE:")
        E("s_barrier")
        for j in range(2):
            E(wq_dma(j), xn_loads(j))
    stamp(k, 5)
    rstamp(k, 19, 24)
    qproj(k)
    if MERGE12:
        E(WLG0, "s_barrier")
        E("v_and_b32 v20, 31, v0\nv_lshrrev_b32 v21, 5, v0", k.zc)
    E(VM(f"buffer_load_dword v{ZT + 40}, v{vL16}, {s(SD, 4)}, s{sPF} offen", "pf"), f"s_add_u32 s{sPF}, s{sPF}, s30")
    gm, wrapped, pin = schedule_loop()
    gmd, wrapped_d, pin_d = schedule_loop('D', pin)
    gmf, wrapped_f, pin_f = schedule_loop('F', pin)
    gmx, wrapped_x, pin_x = schedule_loop('X', pin)
    assert pin == pin_x
    assert pin == pin_d and pin == pin_f
    wtxt = [it[1] for it in flat(wrapped)]
    for r in range(16):
        E(f"v_mov_b32 v{P(1, 0) + r}, 0\nv_mov_b32 v{NEGM[0] + r}, 0\nv_mov_b32 v{NEGM[1] + r}, 0")
        late = f"v_exp_f32 v{S[1] + r}, v{S[1] + r}" in wtxt
        E(f"v_mov_b32 v{S[1] + r}, {'v%d' % vNEG if late else '0'}")
    assert not any(f"v{S[0] + r}," in w or w.endswith(f"v{S[0] + r}") for w in wtxt for r in range(16))
    for r in (8, 9, 10, 11, 12, 13):
        E(f"v_mov_b32 v{r}, 0")
    E(f"v_mov_b32 v{vT}, 0x7f800000")
    for r0 in range(0, 16, 4):
        for r in range(r0, r0 + 4):
            E(f"v_cmp_gt_i32 s[{64 + 2 * (r % 4)}:{65 + 2 * (r % 4)}], {8 * (r // 4) + r % 4}, v{vD0}")
        for r in range(r0, r0 + 4):
            E(f"v_cndmask_b32 v{MSK + r}, v{vT}, v{vNEG}, s[{64 + 2 * (r % 4)}:{65 + 2 * (r % 4)}]")
    E(f"s_mov_b32 s{sEV}, 0\ns_mov_b32 s{sDG}, 0")
    for x in range(2):
        E(f"s_mov_b32 s{sTH[x]}, {NINF}\ns_mov_b32 s{sLO[x]}, {NINF}")
    for i in range(8):
        E(mfma(('a', aO + 16 * i), ('v', P(1, 0)), ('v', P(1, 0)), 0))
    E(f"s_mov_b32 s{sU}, 0\ns_mov_b32 s{sTL}, 0\ns_mov_b32 s{sMK}, s{sW8}\ns_add_u32 s{sMV}, s{sW8}, {VB0 + 32768}")
    E(WLG0)
    stamp(k, 1)
    rstamp(k, 19, 26)
    dstamp(k, 4)
    def body(gm_, sf):
        diag = sf == "D"
        k.set_state(["kv"] * 16 + ["pf"], ["k"] * 8)
        main = qk(0) + qk(1) + pv(0, 1) + pv(1, 1) + qk(0) + qk(1) + pv(0, 0) + pv(1, 0)
        skip = set(range(32, 40)) if diag else (set(range(0, 16)) | set(range(32, 64))) if sf == 'X' else set()
        main = [I("s_nop 0") if i in skip else m for i, m in enumerate(main)]
        gm_[-1] = [I(f"K2_SWRET{sf}:"), WLG("k")]
        if sf:
            gm_[31] = gm_[31] + [I(f"s_cmp_eq_u32 s{sU}, s{sSW}"), I("s_cbranch_scc1 K2_FINB"), I(f"K2_FBRET{sf}:")]
        gm_[63] = gm_[63] + [I(f"s_cmp_lt_u32 s{sU}, 17"), I("s_cbranch_scc1 K2_LOOP")]
        bd = place(main, gm_)

        def drop(it):
            tx = it[1] if len(it) > 1 and isinstance(it[1], str) else ""
            if "nodma" in EXP and ("buffer_load" in tx): return True
            if "nobar" in EXP and tx == "s_barrier": return True
            if "nowait" in EXP and ("s_waitcnt" in tx or it[0] in ('wlg',)): return True
            if "noread" in EXP and tx.startswith("ds_read"): return True
            if "nobr" in EXP and ("K2_RARE" in tx or "K2_FINB" in tx): return True
            return False
        E([it for it in bd if not drop(it)])

    E(".p2align 6")
    for _ in range(int(os.environ.get("PAD", "0"))):
        E("s_nop 0")
    E("K2_LOOP:")
    if PROF and os.environ.get("PROF2"):
        E("s_memtime s[78:79]", "s_waitcnt lgkmcnt(0)", f"s_mov_b32 m0, s{sU}", "s_nop 0", "v_writelane_b32 v255, s78, m0")
    E(f"s_cmp_eq_u32 s{sU}, s{sEV}\ns_cbranch_scc1 K2_EVENT")
    body(gm, '')
    E("K2_TAIL:")
    stamp(k, 8)
    rstamp(k, 19, 28)
    dstamp(k, 5)
    if PROF:
        E(f"s_lshl_b32 s78, s2, 2\ns_add_u32 s78, s78, s{sW}\ns_lshl_b32 s78, s78, 8\ns_add_u32 s78, s78, {WS_PROF + 0x100000}\nv_lshlrev_b32 v254, 2, v0")
        E(f"buffer_store_dword v255, v254, {s(SS, 4)}, s78 offen")
    E(vreads(vVp, 1))
    gs = g_setup()
    E(gs[-2:])
    t = vT
    tl = flat(wrapped)
    for x in range(2):
        tl += flat([f"v_add_f32 v{vLs[x][0]}, v{vLs[x][0]}, v{vLs[x][1]}"])
    for x in range(2):
        tl += flat([f"v_mov_b32 v{vLs[x][1]}, v{vLs[x][0]}"])
    tl += flat([f"v_add_u32 v{t + 4}, s{sW8}, v{vL16}\nv_and_b32 v{t + 5}, 0x18000, v{vVp}"])
    for x in range(2):
        tl += flat([f"v_permlane32_swap_b32 v{vLs[x][0]}, v{vLs[x][1]}"])
    tl += flat([f"v_add_u32 v{t + 5}, v{t + 5}, v{t + 4}\nv_add_u32 v{t + 4}, {SPARE}, v{t + 4}"])
    for x in range(2):
        tl += flat([f"v_add_f32 v{vLs[x][0]}, v{vLs[x][0]}, v{vLs[x][1]}"])
    tl += [[I(f"s_cmp_eq_u32 s{sG}, 0"), I("s_cselect_b64 vcc, -1, 0")]]
    tl += flat([f"v_xor_b32 v{t + 6}, 0x4000, v{t + 4}\nv_xor_b32 v{t + 7}, 0x4000, v{t + 5}",
                f"v_cndmask_b32 v{t + 8}, v{vNM[0]}, v{vNM[1]}, vcc\nv_cndmask_b32 v{t + 9}, v{vLs[0][0]}, v{vLs[1][0]}, vcc"])
    tl += [LG(f"ds_write_b64 v{t + 6}, {v(t + 8, 2)}")]
    tl += flat(gs[:-2])
    tl += flat([f"s_sub_u32 s{sT}, 15, s{sPI}\ns_lshl_b32 s{sT}, s{sT}, 2\ns_lshl_b32 s{sT2}, s{sRS}, 1\ns_add_u32 s{sT}, s{sT}, s{sT2}\ns_add_u32 s{sT}, s{sT}, s{sG}",
                f"s_mul_i32 s{sT}, s{sT}, {CTXU_STEPS}\ns_lshl_b32 s{sT2}, s{sHD}, 3\ns_add_u32 s{sT}, s{sT}, s{sT2}",
                f"s_lshl_b32 s{sT}, s{sT}, 10\ns_add_u32 s{sT}, s{sT}, {WS_CTXU}\ns_add_u32 s{sT2}, s{sT}, 4096"])
    zz = g_zl(0)
    out_, gi = [], 0
    for i, it in enumerate(tl):
        while gi < len(zz) and gi * len(tl) <= i * len(zz):
            out_.append(zz[gi])
            gi += 1
        out_.append(it)
    E(out_, zz[gi:])
    E(WVM("pf"), WLG0, "s_barrier")
    E(f"s_cmp_eq_u32 s{sG}, 1\ns_cbranch_scc1 K2_MERGE1")
    st = (list(k.vm), list(k.lg))
    merge(k, 0)
    E("s_branch K2_G")
    k.set_state(*st)
    E("K2_MERGE1:")
    merge(k, 1)
    E("K2_G:")
    stamp(k, 3)
    gphase(k)
    if PROF and not MERGE23:
        E(WVM0)
    stamp(k, 4)
    rstamp(k, 19, 30)
    dstamp(k, 6)
    lstamp_store(k, 1, 19, 20, SS, sW)
    if PROF:
        E(f"s_mov_b32 s95, s53")
    stamp_store(k, 1, SS, sW, 208)
    if MERGE23:
        import k3
        E("s_mov_b64 exec, -1")
        k3.build(k)
    E("K2_END:")
    E("s_endpgm")
    for x in range(2):
        for buf in range(2):
            rare_path(k, x, buf)
    hooks(k)
    body(gmd, 'D')
    E("s_branch K2_TAIL")
    body(gmf, 'F')
    E("s_branch K2_TAIL")
    body(gmx, 'X')
    E("s_branch K2_TAIL")
    if merged:
        return
    return k.text(512, 256)
```

```python
from asmlib import *
from common import *

LDS = 163840
THREADS = 256
SO, SU, SX, SOUT, SS, SD = 8, 12, 16, 20, 24, 28
sW, sT, sT2, sRBk, sCBk, sKQ, sA, sAU, sB, sBU, sW4, sQH, sMH, sP, sFL = 32, 33, 34, 35, 36, 37, 38, 39, 40, 41, 42, 43, 44, 45, 46
vL16 = 1
vBD = 160
vAR = 6
vBR = 10
FB = 32
ACC = 64
NST = 19
NSLOT = 5


SOFF = 3


def slot(st):
    return ((st + SOFF) % NSLOT) * 32768


def pre():
    o = flat([f"s_load_dwordx2 s[64:65], s[0:1], {KA_WO}", f"s_load_dwordx4 s[68:71], s[0:1], {KA_WOUT}",
              f"s_load_dwordx4 s[72:75], s[0:1], {KA_DBG}", f"s_load_dwordx2 s[66:67], s[0:1], {KA_X}",
              f"s_and_b32 s{sKQ}, s2, 3\ns_bfe_u32 s{sRBk}, s2, 0x10002\ns_lshl_b32 s{sRBk}, s{sRBk}, 3\ns_bfe_u32 s{sT}, s2, 0x30003\ns_add_u32 s{sRBk}, s{sRBk}, s{sT}",
              f"s_lshr_b32 s{sCBk}, s2, 6",
              "v_lshrrev_b32 v152, 4, v0\nv_bfe_u32 v153, v0, 2, 2\nv_and_b32 v154, 3, v0",
              "v_xor_b32 v156, v153, v152\nv_lshlrev_b32 v157, 10, v152\nv_lshl_add_u32 v157, v156, 6, v157\nv_lshl_add_u32 v157, v154, 4, v157"])
    o += [I(f"v_add_u32 v{vBD + i}, {i * 3072}, v157") for i in range(4)]
    o += flat([f"s_lshl_b32 s{sW4}, s{sW}, 12\ns_and_b32 s{sQH}, s{sW}, 1\ns_lshr_b32 s{sMH}, s{sW}, 1",
               f"s_lshl_b32 s{sA}, s{sRBk}, 2\ns_add_u32 s{sA}, s{sA}, s{sW}\ns_mul_i32 s{sA}, s{sA}, {CTXU_STEPS}",
               f"s_mul_i32 s{sT}, s{sKQ}, 12\ns_add_u32 s{sAU}, s{sA}, s{sT}\ns_add_u32 s{sAU}, s{sAU}, 256\ns_lshl_b32 s{sT}, s{sKQ}, 6\ns_add_u32 s{sA}, s{sA}, s{sT}",
               f"s_lshl_b32 s{sA}, s{sA}, 10\ns_add_u32 s{sA}, s{sA}, {WS_CTXU}\ns_lshl_b32 s{sAU}, s{sAU}, 10\ns_add_u32 s{sAU}, s{sAU}, {WS_CTXU}",
               f"s_lshl_b32 s{sT}, s{sCBk}, 8\ns_lshl_b32 s{sT2}, s{sW}, 14\ns_add_u32 s{sT}, s{sT}, s{sT2}\ns_lshl_b32 s{sB}, s{sKQ}, 20\ns_add_u32 s{sB}, s{sB}, s{sT}",
               f"s_mul_i32 s{sBU}, s{sKQ}, {192 * 1024}\ns_add_u32 s{sBU}, s{sBU}, s{sT}"])
    return o


def pre2():
    return [WLG0] + flat([srd(SO, 64, 4096 * 1024), srd(SS, 74, WS_SIZE)])


def dma(st):
    out = []
    base = slot(st)
    sa, offa = (sA, st * 4096) if st < 16 else (sAU, (st - 16) * 4096)
    srd_, sb, offb = (SO, sB, st * 65536) if st < 16 else (SU, sBU, (st - 16) * 65536)
    for i in range(4):
        g = []
        if i == 0:
            g += [I(f"s_add_u32 m0, s{sW4}, {base}"), I(f"s_add_u32 s{sT}, s{sa}, {offa}")]
        g.append(VM(f"buffer_load_dwordx4 v{vL16}, {s(SS, 4)}, s{sT} offen offset:{1024 * i} sc1 lds", f"h{st}"))
        out.append(g)
    for i in range(4):
        g = []
        if i == 0:
            g += [I(f"s_add_u32 m0, s{sW4}, {base + 16384}"), I(f"s_add_u32 s{sT}, s{sb}, {offb}")]
        g.append(VM(f"buffer_load_dwordx4 v{vBD + i}, {s(srd_, 4)}, s{sT} offen offset:{1024 * i} lds", f"h{st}"))
        out.append(g)
    return out


def build(k):
    merged = True
    E = k.emit
    stamp_init(k)
    stamp(k, 0)

    def reads(c):
        st, ks = c // 4, c % 4
        byte = slot(st)
        sg, off = byte // 65536, byte % 65536
        fb = FB + (c % 2) * 16
        out = [LG(f"ds_read_b128 {v(fb + 4 * qi, 4)}, v{vAR + sg} offset:{off + qi * 4096 + ks * 1024}", f"r{c}") for qi in range(2)]
        for mi in range(2):
            for sec in range(2):
                out.append(LG(f"ds_read_b64_tr_b16 {v(fb + 8 + 4 * mi + 2 * sec, 2)}, v{vBR + sg * 2 + mi} "
                              f"offset:{off + ks * 4096 + sec * 2048}", f"r{c}"))
        return out

    def mf(c):
        fb = FB + (c % 2) * 16
        return [mfma(('v', ACC + (qi * 2 + mi) * 16), ('v', fb + 8 + 4 * mi), ('v', fb + 4 * qi), 0 if c == 0 else None)
                for mi in range(2) for qi in range(2)]

    E("s_barrier")
    E(dma(2))
    E("v_and_b32 v20, 31, v0\nv_lshrrev_b32 v21, 5, v0\nv_bfe_u32 v23, v0, 2, 2\nv_and_b32 v24, 3, v0\nv_bfe_u32 v25, v0, 4, 1")
    E(srd(SU, 68, 688 * 1024), srd(SX, 66, 2048 * 1024), srd(SOUT, 70, 2048 * 1024), srd(SD, 72, 256))
    E(f"s_lshl_b32 s{sT}, s{sQH}, 13\nv_add_u32 v{vAR}, s{sT}, v{vL16}\nv_add_u32 v{vAR + 1}, 0x10000, v{vAR}\nv_add_u32 v{vAR + 2}, 0x20000, v{vAR}")
    E("v_lshl_add_u32 v26, v21, 2, v23\nv_lshlrev_b32 v26, 8, v26\nv_lshl_add_u32 v26, v25, 5, v26\nv_lshl_add_u32 v26, v24, 3, v26\nv_add_u32 v26, 16384, v26")
    E(f"s_lshl_b32 s{sT}, s{sMH}, 1\nv_xor_b32 v27, s{sT}, v23\nv_lshl_add_u32 v{vBR}, v27, 6, v26\nv_xor_b32 v27, 1, v27\nv_lshl_add_u32 v{vBR + 1}, v27, 6, v26")
    for sg in (1, 2):
        for mi in range(2):
            E(f"v_add_u32 v{vBR + 2 * sg + mi}, {sg * 65536}, v{vBR + mi}")
    E(f"s_lshr_b32 s{sP}, s2, 2\ns_lshl_b32 s{sP}, s{sP}, 17\ns_add_u32 s{sP}, s{sP}, {WS_PART2 if merged else WS_PART}\ns_lshr_b32 s{sFL}, s2, 2\ns_lshl_b32 s{sFL}, s{sFL}, 7\ns_add_u32 s{sFL}, s{sFL}, {WS_FLAG3}")
    E(WVM("h0"), "s_barrier")
    stamp(k, 3)
    E(reads(0))
    pend = dma(3) + dma(4)
    NC = NST * 4
    for c in range(NC):
        E(WLG(f"r{c}"))
        if c % 4 == 3 and c + 1 < NC:
            st = c // 4
            E(WVM(f"h{st + 1}"))
            if merged and st == 10:
                E(flag_poll_check(sW, SS, 51, 140))
            E("s_barrier")
            if merged and st == 1:
                E(flag_set(sW, SS, 50, 140))
            if merged and st == 7:
                E(f"s_lshl_b32 s51, s{sRBk}, 8\ns_lshl_b32 s52, s{sKQ}, 5\ns_add_u32 s51, s51, s52\ns_add_u32 s51, s51, {WS_FU}")
                E(wave0(sW, [I("v_and_b32 v140, 1, v0"), I("v_lshlrev_b32 v140, 7, v140"), I("v_and_b32 v141, 2, v0"), I("v_lshl_add_u32 v140, v141, 3, v140"),
                             VMG(f"buffer_load_ubyte v141, v140, {s(SS, 4)}, s51 offen sc0 sc1", "poll")]))
            if st + NSLOT < NST:
                pend = pend + dma(st + NSLOT)
        r_ = reads(c + 1) if c + 1 < NC else []
        nt = 3 if len(pend) > 8 else 2
        take, pend = pend[:nt], pend[nt:]
        fill = []
        if c == NC - 8:
            xa = flat([f"s_lshl_b32 s{sT2}, s{sRBk}, 17\ns_lshl_b32 s{sT}, s{sKQ}, 15\ns_add_u32 s{sT2}, s{sT2}, s{sT}\ns_lshl_b32 s{sT}, s{sCBk}, 8",
                       f"s_add_u32 s{sT2}, s{sT2}, s{sT}\ns_lshl_b32 s{sT}, s{sW}, 6\ns_add_u32 s{sT2}, s{sT2}, s{sT}",
                       "v_lshlrev_b32 v26, 10, v20\nv_lshl_add_u32 v27, v21, 4, v26\nv_lshl_add_u32 v26, v21, 3, v26"])
            xa += [VM(f"buffer_load_dwordx2 {v(128 + 2 * i, 2)}, v26, {s(SX, 4)}, s{sT2} offen offset:{16 * i}", "x") for i in range(4)]
            fill.append(xa)
        gm_ = {0: r_[0:2] + take[0:1], 1: r_[2:4] + take[2:3], 2: r_[4:6] + take[1:2], 3: fill}
        if len(take) == 3:
            gm_[1], gm_[2] = r_[2:4] + take[1:2], r_[4:6] + take[2:3]
        E(place(mf(c), gm_))
    stamp(k, 1)
    dstamp(k, 7)
    E("s_barrier")
    E(f"s_lshl_b32 s{sT}, s{sMH}, 13\nv_add_u32 v28, s{sT}, v{vL16}\ns_lshl_b32 s{sT}, s{sMH}, 12\nv_add_u32 v31, s{sT}, v{vL16}\ns_nop 7")
    for qi in range(2):
        E(f"s_lshl_b32 s{sA}, s{sQH}, 1\ns_add_u32 s{sA}, s{sA}, {qi}\ns_cmp_eq_u32 s{sA}, s{sKQ}\ns_cbranch_scc1 K3_OWN{qi}")
        E(f"s_lshl_b32 s{sA}, s{sA}, 2\ns_add_u32 s{sA}, s{sA}, s{sKQ}\ns_lshl_b32 s{sA}, s{sA}, 13\ns_add_u32 s{sA}, s{sA}, s{sP}")
        for mi in range(2):
            b = ACC + (qi * 2 + mi) * 16
            for r in range(8):
                E(f"v_cvt_pk_bf16_f32 v{b + r}, v{b + 2 * r}, v{b + 2 * r + 1}")
            for q in range(2):
                E(f"buffer_store_dwordx4 {v(b + 4 * q, 4)}, v31, {s(SS, 4)}, s{sA} offen offset:{mi * 2048 + 1024 * q} sc1")
        E(f"s_branch K3_SENT{qi}")
        E(f"K3_OWN{qi}:")
        for mi in range(2):
            for q in range(4):
                E(f"ds_write_b128 v28, {v(ACC + (qi * 2 + mi) * 16 + 4 * q, 4)} offset:{mi * 4096 + 1024 * q}")
        E(f"K3_SENT{qi}:")
    E(WALL0, "s_barrier")
    stamp(k, 4)
    E(f"v_add_u32 v28, s{sW4}, v{vL16}\nv_mov_b32 v29, 0")
    for q in range(4):
        E(LG(f"ds_read_b128 {v(ACC + 4 * q, 4)}, v28 offset:{1024 * q}"))
    E(f"s_cmp_lg_u32 s{sW}, 0\ns_cbranch_scc1 K3_WAITED")
    E(f"v_mov_b32 v30, 1\ns_add_u32 s{sT}, s{sFL}, s{sKQ}\ns_mov_b64 exec, 1\nbuffer_store_byte v30, v29, {s(SS, 4)}, s{sT} offen sc0 sc1\ns_mov_b64 exec, -1")
    E("K3_POLL:")
    E(f"buffer_load_dword v30, v29, {s(SS, 4)}, s{sFL} offen sc0 sc1\ns_waitcnt vmcnt(0)")
    E("v_readfirstlane_b32 s47, v30\ns_cmp_eq_u32 s47, 0x01010101\ns_cbranch_scc1 K3_WAITED\ns_sleep 1\ns_branch K3_POLL")
    E("K3_WAITED:")
    E("s_barrier")
    stamp(k, 5)
    E(f"s_lshl_b32 s{sA}, s{sKQ}, 15\ns_add_u32 s{sA}, s{sA}, s{sP}\ns_lshl_b32 s{sT}, s{sW}, 11\ns_add_u32 s{sA}, s{sA}, s{sT}")
    for j in range(1, 4):
        E(f"s_add_u32 s{sT}, s{sKQ}, {j}\ns_and_b32 s{sT}, s{sT}, 3\ns_lshl_b32 s{sT}, s{sT}, 13\ns_add_u32 s{sT}, s{sT}, s{sA}")
        for q in range(2):
            E(VM(f"buffer_load_dwordx4 {v(ACC + 16 * j + 4 * q, 4)}, v{vL16}, {s(SS, 4)}, s{sT} offen offset:{1024 * q} sc1", f"pp{j}"))
    E(WLG0)
    for j in range(4):
        src = 128 if j == 0 else ACC + 16 * j
        if j:
            E(WVM(f"pp{j}"))
        for r in range(8):
            E(f"v_lshlrev_b32 v30, 16, v{src + r}\nv_and_b32 v31, 0xffff0000, v{src + r}")
            E(f"v_add_f32 v{ACC + 2 * r}, v{ACC + 2 * r}, v30\nv_add_f32 v{ACC + 2 * r + 1}, v{ACC + 2 * r + 1}, v31")
    for r in range(8):
        E(f"v_cvt_pk_bf16_f32 v{ACC + r}, v{ACC + 2 * r}, v{ACC + 2 * r + 1}")
    E("s_nop 1")
    for g in range(2):
        b = ACC + 4 * g
        E(f"v_permlane32_swap_b32 v{b}, v{b + 2}\nv_permlane32_swap_b32 v{b + 1}, v{b + 3}")
    E("s_nop 1")
    for g in range(2):
        E(VM(f"buffer_store_dwordx4 {v(ACC + 4 * g, 4)}, v27, {s(SOUT, 4)}, s{sT2} offen offset:{32 * g}"))
    if PROF:
        E(WVM0)
    stamp(k, 2)
    dstamp(k, 8)
    dstamp_store(k, SD, sW, 8)
    stamp_store(k, 2, SS, sW, 136)
    if merged:
        return
    E("K3_END:")
    E("s_endpgm")
    return k.text(160, 160)
```

```python
from asmlib import *
from common import *
import os

THRESH = float(os.environ.get("THRESH", "32.0"))
BUDGET = int(os.environ.get("BUDGET", "25"))
EXP = os.environ.get("EXP2", "")

SQ, SP, SB, SS, SD = 8, 12, 16, 20, 24
sW, sHD, sPI, sG, sRS = 32, 33, 34, 35, 36
sT, sT2, sU, sSW, sSW2, sJUMP, sTL, sTD = 37, 38, 39, 40, 41, 42, 43, 44
sKN, sKO2, sVO, sVO2, sMK, sMV = 45, 46, 47, 48, 49, 50
sTH = (51, 52)
sLO = (53, 54)
sXN, sWQ, sWM, sW8, sDO = 55, 56, 57, 59, 58
sGP, sGZ, sGM, sFL, sPF, sEV, sDG = 60, 61, 62, 63, 76, 77, 31
NINF = "0xff800000"
SC1 = " sc1" if MERGE12 else ""

vL16, vKc, vKn, vVp, vVc, vD0, vNEG = 1, 2, 3, 4, 5, 6, 7
vLs = ((8, 9), (10, 11))
vNM = (12, 13)
vM = 14
vLSV = (30, 31)
vT = 20
vQD = 32
vQR = 36
S = (48, 64)
NEGM = (80, 96)
PB = 112
QBS = 144
ZT = 208
NEGB = 208
MSK = 224
vPL = 240
aO, aQ, aK, aV = 0, 128, 192, 224

KB0, VB0, SPARE = 0, 65536, 131072
NEG = -1.0e30


def P(buf, x, i=0):
    return PB + (buf * 2 + x) * 8 + i


def dma4(so, tag="kv"):
    return [VM(f"buffer_load_dwordx4 v{vL16}, {s(SS, 4)}, s{so} offen offset:{1024 * i}{SC1} lds", tag) for i in range(4)]


def qk(x, cin=None):
    return [mfma(('v', S[x]), ('a', aK + 4 * d), ('a', aQ + (x * 8 + d) * 4), ('v', NEGM[x] if cin is None else cin) if d == 0 else None)
            for d in range(8)]


def pv(x, buf):
    return [mfma(('a', aO + (x * 4 + ds) * 16), ('a', aV + (ds * 2 + g) * 4), ('v', P(buf, x, 4 * g)))
            for g in range(2) for ds in range(4)]


def kreads(areg, th):
    return [LG(f"ds_read_b128 {a(aK + 4 * d, 4)}, v{areg} offset:{th * 8192 + d * 1024}", "k") for d in range(8)]


def vreads(areg, th):
    return [LG(f"ds_read_b128 {a(aV + 4 * f, 4)}, v{areg} offset:{th * 8192 + f * 1024}", "v") for f in (0, 2, 4, 6, 1, 3, 5, 7)]


def sm_max(x):
    b, m = S[x], vM
    return [(4, I(t)) for t in (
        f"v_max3_f32 v{m}, v{b}, v{b + 1}, v{b + 2}", f"v_max3_f32 v{m + 1}, v{b + 3}, v{b + 4}, v{b + 5}",
        f"v_max3_f32 v{m + 2}, v{b + 6}, v{b + 7}, v{b + 8}", f"v_max3_f32 v{m + 3}, v{b + 9}, v{b + 10}, v{b + 11}",
        f"v_max3_f32 v{m + 4}, v{b + 12}, v{b + 13}, v{b + 14}", f"v_max3_f32 v{m}, v{m}, v{m + 1}, v{b + 15}",
        f"v_max3_f32 v{m + 2}, v{m + 2}, v{m + 3}, v{m + 4}", f"v_max_f32 v{m}, v{m}, v{m + 2}")]


def sm_chk(x, buf):
    return (8, [I(f"v_cmp_lt_f32 vcc, s{sTH[x]}, v{vM}"), I(f"s_cbranch_vccnz K2_RARE_{x}_{buf}"), I(f"K2_RET_{x}_{buf}:")])


def sm_fin(x, buf, i):
    b = S[x]
    return [(4, I(f"v_add_f32 v{vLs[x][0]}, v{vLs[x][0]}, v{b + 2 * i}")),
            (4, I(f"v_add_f32 v{vLs[x][1]}, v{vLs[x][1]}, v{b + 2 * i + 1}")),
            (4, I(f"v_cvt_pk_bf16_f32 v{P(buf, x, i)}, v{b + 2 * i}, v{b + 2 * i + 1}"))]


def sm_exp(x, buf):
    b = S[x]
    items = []
    for i in range(8):
        items.append((8, I(f"v_exp_f32 v{b + 2 * i}, v{b + 2 * i}")))
        items.append((8, I(f"v_exp_f32 v{b + 2 * i + 1}, v{b + 2 * i + 1}")))
        if i > 0:
            items += sm_fin(x, buf, i - 1)
    return items + sm_fin(x, buf, 7)


CAP = int(os.environ.get("CAP", "24"))


def schedule_loop(var='', pin=None):
    NG = 64
    T = NG + 16
    mem = [[] for _ in range(T)]
    alu = [[] for _ in range(T)]
    used = [0] * NG
    sfx = var
    diag, first, full = var == 'D', var == 'F', var == 'X'

    def fixed(g, cost, item, is_mem=True):
        (mem if is_mem else alu)[g].append(item)
        used[g % NG] += cost

    def spread_mem(g0, n, items):
        for i, r in enumerate(items):
            fixed(g0 + (i * n) // len(items), 4, r)

    spread_mem(0, 13, vreads(vVp, 1))
    if not full:
        spread_mem(16, 10, kreads(vKc, 1))
        spread_mem(32, 13, vreads(vVc, 0))
    spread_mem(48, 13, kreads(vKn, 0))
    BAR = int(os.environ.get("BAR", "27"))
    fixed(BAR, 8, [I("s_waitcnt vmcnt(1) lgkmcnt(0)"), ('reset',), I("s_barrier")])
    g = BAR + 1
    dgaps = []
    for so in (sKN, sKO2, sVO, sVO2):
        for d in dma4(so):
            fixed(g, 8, d)
            dgaps.append(g)
            g += 2
    fixed(g, 8, VM(f"buffer_load_dword v{ZT + 40}, v{vL16}, {s(SD, 4)}, s{sPF} offen", "pf"))
    gpf = g
    tail = {15: [WLG("v")], 47: [WLG("v")], 63: []}
    for g_ in (15, 47):
        used[g_] += 4
    used[63] += 4 + 13 + 13
    if var:
        used[31] += 13
    jobs = []

    def job(name, cost, item, e, l, deps=(), later=None):
        jobs.append(dict(name=name, cost=cost, item=item, e=e, l=l, deps=list(deps), later=later))

    job("vo", 4, I(f"s_add_u32 s{sVO}, s{sKN}, {WS_VF - WS_KF}"), 0, BAR - 2)
    job("vo2", 4, I(f"s_add_u32 s{sVO2}, s{sKN}, {WS_VF - WS_KF + 4096}"), 0, BAR - 2)
    job("kn", 12, [I(f"s_cmp_eq_u32 s{sU}, s{sSW2}"), I(f"s_cselect_b32 s{sKO2}, s{sJUMP}, 0x4000"), I(f"s_add_u32 s{sKN}, s{sKN}, s{sKO2}")],
        0, BAR - 1, ["vo", "vo2"])
    job("ko2", 4, I(f"s_add_u32 s{sKO2}, s{sKN}, 4096"), 0, BAR, ["kn"])
    job("m0a", 4, I(f"s_mov_b32 m0, s{sMK}"), 0, BAR)
    job("m0b", 4, I(f"s_add_u32 m0, s{sMK}, 4096"), dgaps[3], dgaps[4] - 1)
    job("m0c", 4, I(f"s_mov_b32 m0, s{sMV}"), dgaps[7], dgaps[8] - 1)
    job("m0d", 4, I(f"s_add_u32 m0, s{sMV}, 4096"), dgaps[11], dgaps[12] - 1)
    job("pfa", 4, I(f"s_add_u32 s{sPF}, s{sPF}, s30"), gpf, 63)
    job("xk", 4, I(f"s_xor_b32 s{sMK}, s{sMK}, 0x8000"), dgaps[4], 63, ["m0b"])
    job("xv", 4, I(f"s_xor_b32 s{sMV}, s{sMV}, 0x8000"), dgaps[12], 63, ["m0d"])
    job("vp", 4, I(f"v_mov_b32 v{vVp}, v{vVc}"), 13, 44)
    job("vc", 4, I(f"v_xor_b32 v{vVc}, 0x8000, v{vVc}"), 45, 63, ["vp"])
    job("kc", 4, I(f"v_xor_b32 v{vKc}, 0x8000, v{vKc}"), 26, 63)
    job("kx", 4, I(f"v_xor_b32 v{vKn}, 0x8000, v{vKn}"), 61, 63)
    job("tl", 4, I(f"s_add_u32 s{sTL}, s{sTL}, 1"), 56, 63)
    job("u", 4, I(f"s_add_u32 s{sU}, s{sU}, 1"), 32, 63)
    for half in range(2):
        G = 8 + 32 * half
        for x in range(2):
            e0 = G + 1 + 8 * x
            pre = f"{half}{x}"
            prev = [f"{half}0chk"] if x == 1 else []
            if diag and half == x:
                for r in range(16):
                    job(f"{pre}mk{r}", 4, I(f"v_min_f32 v{S[x] + r}, v{S[x] + r}, v{MSK + r}"), e0, e0 + 4, prev)
                prev = prev + [f"{pre}mk{r}" for r in range(16)]
            for i, (c, it) in enumerate(sm_max(x)):
                job(f"{pre}m{i}", c, it, e0, e0 + 5, prev + ([f"{pre}m{i - 1}"] if i else []))
            dl = G + 23 + 8 * x
            b_ = S[x]
            if first and half == 0:
                d_ = vT + x
                job(f"{pre}f0", 4, I(f"v_mov_b32 v{d_}, v{vM}"), e0, e0 + 8, [f"{pre}m7"])
                job(f"{pre}f1", 8, [I("s_nop 0"), I(f"v_permlane32_swap_b32 v{vM}, v{d_}")], e0, e0 + 9, [f"{pre}f0"], later=f"{pre}f0")
                job(f"{pre}chk", 12, [I(f"v_max_f32 v{d_}, v{d_}, v{vM}"), I(f"v_ceil_f32 v{d_}, v{d_}"), I(f"v_sub_f32 v{vNM[x]}, 0, v{d_}")],
                    e0, e0 + 10, [f"{pre}f1"], later=f"{pre}f1")
                job(f"{pre}ls", 12, [I(f"v_add_f32 v{vLSV[x]}, v{vLs[x][0]}, v{vLs[x][1]}"), I(f"v_mov_b32 v{vLs[x][0]}, 0"), I(f"v_mov_b32 v{vLs[x][1]}, 0")],
                    e0, e0 + 8)
                for r in range(16):
                    job(f"{pre}s{r}", 4, I(f"v_sub_f32 v{b_ + r}, v{b_ + r}, v{d_}"), e0, dl - 2, [f"{pre}chk", f"{pre}ls"])
                    job(f"{pre}n{r}", 4, I(f"v_mov_b32 v{NEGM[x] + r}, v{vNM[x]}"), e0, dl - 1, [f"{pre}chk"])
            else:
                job(f"{pre}cmp", 4, I(f"v_cmp_lt_f32 vcc, s{sTH[x]}, v{vM}"), e0, e0 + 5, [f"{pre}m7"])
                job(f"{pre}chk", 9, [I(f"s_cbranch_vccnz K2_RARE_{x}_{half}"), I(f"K2_RET{sfx}_{x}_{half}:")],
                    e0, e0 + 6, [f"{pre}cmp"], later=f"{pre}cmp")
            for r in range(16):
                job(f"{pre}e{r}", 8, I(f"v_exp_f32 v{b_ + r}, v{b_ + r}"), e0, dl - 1,
                    [f"{pre}s{r}" if (first and half == 0) else f"{pre}chk"] + ([f"{pre}e{r - 1}"] if r else []))
            for i in range(8):
                f3 = sm_fin(x, half, i)
                job(f"{pre}a{2 * i}", 4, f3[0][1], e0, dl, [f"{pre}e{2 * i + 1}"])
                job(f"{pre}a{2 * i + 1}", 4, f3[1][1], e0, dl, [f"{pre}a{2 * i}"])
                job(f"{pre}c{i}", 4, f3[2][1], e0, dl, [f"{pre}a{2 * i + 1}"])
    if diag:
        jobs[:] = [j for j in jobs if not j['name'].startswith("10")]
        for j in jobs:
            j['deps'] = [d for d in j['deps'] if not d.startswith("10")]
        for i in range(8):
            job(f"zp{i}", 4, I(f"v_mov_b32 v{P(1, 0, i)}, 0"), 32, 60)
    if full:
        jobs[:] = [j for j in jobs if j['name'][0] not in "01" or j['name'] in pin]
        names = {j['name'] for j in jobs}
        for j in jobs:
            j['deps'] = [d for d in j['deps'] if d in names]
            if j['later'] not in names:
                j['later'] = None
        for i in range(16):
            job(f"zp{i}", 4, I(f"v_mov_b32 v{P(1, 0, i)}, 0"), 34, 60)
            job(f"zs{i}", 4, I(f"v_mov_b32 v{S[1] + i}, {'v%d' % vNEG if f'11e{i}' in pin else '0'}"), 9, 60)
    if pin is not None:
        for j in jobs:
            if j['name'] in pin:
                j['e'] = j['l'] = pin[j['name']]
            else:
                j['l'] = min(j['l'], 63)
    done = {}
    rest = list(jobs)
    order = list(range(9, NG + 9))
    remaining = sum(j['cost'] for j in jobs)
    for gi, g in enumerate(order):
        gm_ = g % NG
        free_after = sum(max(0, CAP - used[h % NG]) for h in order[gi + 1:])
        while True:
            cand = []
            for j in rest:
                e, l = j['e'], j['l']
                if l < 9 or (e < 9 and j['name'][0] not in "01" and False):
                    e, l = e + NG, l + NG
                if e <= g and all(d in done for d in j['deps']) and (j['later'] is None or done[j['later']] < g):
                    cand.append((l, j))
            if not cand:
                break
            cand.sort(key=lambda z: z[0])
            room = CAP - used[gm_]
            pick = None
            for l, j in cand:
                if j['cost'] <= room:
                    pick = j
                    break
            if pick is None:
                urgent = [j for l, j in cand if l <= g]
                if urgent:
                    pick = urgent[0]
                elif remaining > free_after and room > -4 and room + 4 >= min(j['cost'] for _, j in cand):
                    pick = min((j for _, j in cand), key=lambda j: j['cost'])
                else:
                    break
            alu[g].append(pick['item'])
            used[gm_] += pick['cost']
            remaining -= pick['cost']
            done[pick['name']] = g
            rest.remove(pick)
    assert not rest, [j['name'] for j in rest]
    for j in jobs:
        l = j['l'] + (NG if j['l'] < 9 else 0)
        assert done[j['name']] <= l, (j['name'], done[j['name']], l)
    est = sum(max(32, 8 + u) for u in used)
    if os.environ.get("SCHED"):
        print("loop estimate", est, used)
    wrapped = []
    for g in range(NG, T):
        wrapped += [it for it in alu[g] if "v_" in str(it) and "s_cselect" not in str(it)]
    gm = {}
    for g in range(NG):
        gm[g] = mem[g] + (alu[g + NG] if g + NG < T else []) + alu[g] + tail.get(g, [])
    return gm, wrapped, {n: g for n, g in done.items() if g >= NG}


def rare_ret(L):
    r = f"s_cmp_eq_u32 s{sDG}, 0\ns_cbranch_scc1 K2_RET_{L}\n"
    if L.endswith("_1"):
        r += f"s_cmp_eq_u32 s{sDG}, 2\ns_cbranch_scc1 K2_RETF_{L}\n"
    if L == "0_1":
        return f"s_cmp_eq_u32 s{sDG}, 0\ns_cbranch_scc1 K2_RET_{L}\ns_branch K2_RETF_{L}"
    return r + f"s_branch K2_RETD_{L}"


def rare_path(k, x, buf):
    E = k.emit
    t = vT
    L = f"{x}_{buf}"
    E(f"K2_RARE_{L}:")
    E(f"s_mov_b32 s{sTH[x]}, {fbits(THRESH)}")
    E(f"v_mov_b32 v{t}, v{vM}\ns_nop 1\nv_permlane32_swap_b32 v{vM}, v{t}\ns_nop 1")
    E(f"v_max_f32 v{t}, v{t}, v{vM}\nv_ceil_f32 v{t}, v{t}\nv_max_f32 v{t}, s{sLO[x]}, v{t}")
    E(f"v_sub_f32 v{vNM[x]}, v{vNM[x]}, v{t}")
    for r in range(16):
        E(f"v_sub_f32 v{S[x] + r}, v{S[x] + r}, v{t}")
        E(f"v_mov_b32 v{NEGM[x] + r}, v{vNM[x]}")
    E(f"s_cmp_eq_u32 s{sLO[x]}, 0\ns_cbranch_scc1 K2_RSC_{L}")
    E(f"v_add_f32 v{vLSV[x]}, v{vLs[x][0]}, v{vLs[x][1]}\nv_mov_b32 v{vLs[x][0]}, 0\nv_mov_b32 v{vLs[x][1]}, 0")
    E(f"s_mov_b32 s{sLO[x]}, 0", rare_ret(L))
    E(f"K2_RSC_{L}:")
    E(f"v_sub_f32 v{t + 1}, 0, v{t}\nv_exp_f32 v{t + 1}, v{t + 1}\ns_nop 0")
    E(f"v_mul_f32 v{vLs[x][0]}, v{vLs[x][0]}, v{t + 1}\nv_mul_f32 v{vLs[x][1]}, v{vLs[x][1]}, v{t + 1}")
    for i in range(8):
        p = P(1 - buf, x, i)
        E(f"v_lshlrev_b32 v{t + 2}, 16, v{p}\nv_and_b32 v{t + 3}, 0xffff0000, v{p}")
        E(f"v_mul_f32 v{t + 2}, v{t + 2}, v{t + 1}\nv_mul_f32 v{t + 3}, v{t + 3}, v{t + 1}")
        E(f"v_cvt_pk_bf16_f32 v{p}, v{t + 2}, v{t + 3}")
    E("s_nop 15")
    for r in range(0, 64, 4):
        for i in range(4):
            E(f"v_accvgpr_read_b32 v{t + 2 + i}, a{aO + x * 64 + r + i}")
        for i in range(4):
            E(f"v_mul_f32 v{t + 2 + i}, v{t + 2 + i}, v{t + 1}")
        for i in range(4):
            E(f"v_accvgpr_write_b32 a{aO + x * 64 + r + i}, v{t + 2 + i}")
    E(rare_ret(L))


def ctx_addr(sqb_expr, x_in_addr):
    pass


def hooks(k):
    E = k.emit
    E("K2_EVENT:")
    E(f"s_add_u32 s{sT}, s{sU}, 1\ns_cmp_eq_u32 s{sT}, s{sSW}\ns_cselect_b32 s{sT}, s{sG}, 0\ns_lshl_b32 s{sT}, s{sT}, 14\nv_add_u32 v{vKn}, s{sT}, v{vKn}")
    E(f"s_mov_b32 s{sDG}, 0\ns_cmp_lg_u32 s{sU}, s{sSW}\ns_cbranch_scc1 K2_EV2")
    E(f"s_cmp_eq_u32 s{sG}, 0\ns_cbranch_scc1 K2_SW0")
    E(f"v_add_u32 v{vKc}, 0x4000, v{vKc}\nv_add_u32 v{vVc}, 0x4000, v{vVc}\ns_mov_b32 s{sSW2}, 15\ns_mov_b32 s{sJUMP}, 0x20000000")
    for r in range(64):
        E(f"v_accvgpr_write_b32 a{aQ + r}, v{QBS + r}")
    for r in range(32):
        E(f"v_mov_b32 v{NEGM[0] + r}, 0")
    E(f"v_mov_b32 v{vNM[0]}, 0\nv_mov_b32 v{vNM[1]}, 0")
    for x in range(2):
        E(f"s_mov_b32 s{sTH[x]}, {NINF}\ns_mov_b32 s{sLO[x]}, {NINF}")
    E(f"s_mov_b32 s{sTL}, 17\ns_sub_u32 s{sTD}, 15, s{sPI}\ns_lshl_b32 s{sTD}, s{sTD}, 1\ns_add_u32 s{sTD}, s{sTD}, s{sRS}")
    E("s_branch K2_EV2")
    E("K2_SW0:")
    E(f"s_cmp_eq_u32 s{sU}, 13\ns_cbranch_scc1 K2_SW1\ns_cmp_eq_u32 s{sU}, 12\ns_cbranch_scc1 K2_SW2")
    E(f"s_mov_b32 s{SD}, s28\ns_mov_b32 s{SD + 1}, s29\ns_mov_b32 s{SD + 2}, {4096 * 1024:#x}\ns_lshl_b32 s{sPF}, s2, 1\ns_add_u32 s{sPF}, s{sPF}, s{sW}\ns_lshl_b32 s{sPF}, s{sPF}, 10\ns_mov_b32 s30, 0x80000")
    E(f"s_mov_b32 s{sSW}, 12\ns_cmp_lg_u32 s{sW}, 0\ns_cbranch_scc1 K2_EV2")
    E(f"v_mov_b32 v{vPL}, 1\nv_mov_b32 v{vPL + 1}, 0\ns_mov_b64 exec, 1\nbuffer_store_byte v{vPL}, v{vPL + 1}, {s(SS, 4)}, s{sGP} offen sc0 sc1\ns_mov_b64 exec, -1\ns_branch K2_EV2")
    E("K2_SW2:")
    E(f"v_and_b32 v{vPL}, 31, v0\nbuffer_load_ubyte v{vPL + 1}, v{vPL}, {s(SS, 4)}, s{sFL} offen sc0 sc1\ns_mov_b32 s{sSW}, 13\ns_branch K2_EV2")
    E("K2_SW1:\ns_waitcnt vmcnt(17)")
    E(f"v_cmp_ne_u32 vcc, 1, v{vPL + 1}\ns_nop 1\ns_cbranch_vccz K2_EV2")
    E(f"K2_FBLP:\ns_sleep 2\nbuffer_load_ubyte v{vPL + 1}, v{vPL}, {s(SS, 4)}, s{sFL} offen sc0 sc1\ns_waitcnt vmcnt(0)")
    E(f"v_cmp_ne_u32 vcc, 1, v{vPL + 1}\ns_nop 1\ns_cbranch_vccnz K2_FBLP")
    E("K2_EV2:")
    E(f"s_cmp_lt_u32 s{sTL}, s{sTD}\ns_cbranch_scc0 K2_EV3")
    E(f"s_cmp_eq_u32 s{sLO[0]}, 0\ns_cbranch_scc1 K2_EV4")
    for x in range(2):
        E(f"s_mov_b32 s{sTH[x]}, {fbits(THRESH)}\ns_mov_b32 s{sLO[x]}, 0")
    E(f"s_add_u32 s{sEV}, s{sU}, 1\ns_mov_b32 s{sDG}, 2\ns_branch K2_SWRETF")
    E("K2_EV4:")
    E(f"s_sub_u32 s{sEV}, s{sTD}, s{sTL}\ns_add_u32 s{sEV}, s{sEV}, s{sU}\ns_cmp_gt_u32 s{sSW}, s{sU}\ns_cselect_b32 s{sT}, s{sSW}, 99\ns_min_u32 s{sEV}, s{sEV}, s{sT}")
    E("s_branch K2_SWRET")
    E("K2_EV3:")
    E(f"s_add_u32 s{sEV}, s{sU}, 1\ns_mov_b32 s{sDG}, 1\ns_cmp_eq_u32 s{sTL}, s{sTD}\ns_cbranch_scc1 K2_SWRETD")
    E(f"s_mov_b32 s{sDG}, 3\ns_branch K2_SWRETX")
    E("K2_FINB:")
    E(f"s_cmp_lg_u32 s{sU}, 0\ns_cbranch_scc1 K2_FBB")
    for f in range(3):
        E(f"s_add_u32 s{sT}, s{sGZ}, {WS_Z2N + f * 128 * 1024}\nbuffer_store_dwordx4 {v(208 + 4 * f, 4)}, v{vL16}, {s(SS, 4)}, s{sT} offen sc1")
    E(f"s_cmp_eq_u32 s{sG}, 0\ns_cselect_b32 s99, 99, s{sSW}\ns_branch K2_FBX")
    E("K2_FBB:")
    t = QBS
    E(f"s_cmp_eq_u32 s{sLO[0]}, 0\ns_cbranch_scc1 K2_FB1")
    for x in range(2):
        E(f"v_add_f32 v{vLSV[x]}, v{vLs[x][0]}, v{vLs[x][1]}\nv_mov_b32 v{vLs[x][0]}, 0\nv_mov_b32 v{vLs[x][1]}, 0\nv_sub_f32 v{vNM[x]}, 0, v{vNEG}")
    E("K2_FB1:")
    for x in range(2):
        E(f"v_mov_b32 v{t + 2 * x}, v{vLSV[x]}")
    E("s_nop 1")
    for x in range(2):
        E(f"v_permlane32_swap_b32 v{vLSV[x]}, v{t + 2 * x}")
    E("s_nop 1")
    for x in range(2):
        E(f"v_add_f32 v{t + 2 * x}, v{t + 2 * x}, v{vLSV[x]}\nv_rcp_f32 v{t + 2 * x}, v{t + 2 * x}")
    E(f"s_lshl_b32 s{sT}, s{sPI}, 2\ns_lshl_b32 s{sT2}, s{sRS}, 1\ns_add_u32 s{sT}, s{sT}, s{sT2}")
    for x in range(2):
        E(f"v_mov_b32 v{t + 2 * x + 1}, v{t + 2 * x}")
    E(f"s_mul_i32 s{sT}, s{sT}, {CTXU_STEPS}\ns_lshl_b32 s{sT2}, s{sHD}, 3\ns_add_u32 s{sT}, s{sT}, s{sT2}")
    E(f"s_lshl_b32 s{sT}, s{sT}, 10\ns_add_u32 s{sT}, s{sT}, {WS_CTXU}")
    for i in range(4):
        E(f"v_mov_b32 v{t + 4 + i}, 0")
    for x in range(2):
        for f in range(8):
            b = t + 8 + 8 * (f % 4)
            for i in range(8):
                E(f"v_accvgpr_read_b32 v{b + i}, a{aO + x * 64 + 8 * f + i}")
            if f % 2 == 1:
                E(mfma(('a', aO + x * 64 + 8 * (f - 1)), ('v', t + 4), ('v', t + 4), 0))
            for i in range(4):
                E(f"v_pk_mul_f32 {v(b + 2 * i, 2)}, {v(b + 2 * i, 2)}, {v(t + 2 * x, 2)}")
            for i in range(4):
                E(f"v_cvt_pk_bf16_f32 v{b + i}, v{b + 2 * i}, v{b + 2 * i + 1}")
            E(f"buffer_store_dwordx4 {v(b, 4)}, v{vL16}, {s(SS, 4)}, s{sT} offen offset:{1024 * (f % 4)} sc1")
            if f == 3:
                E(f"s_add_u32 s{sT}, s{sT}, 4096")
            if f == 7 and x == 0:
                E(f"s_add_u32 s{sT}, s{sT}, {CTXU_STEPS * 1024 - 4096}")
    E("K2_FBX:")
    E(f"s_cmp_eq_u32 s{sDG}, 2\ns_cbranch_scc1 K2_FBRETF\ns_cmp_eq_u32 s{sDG}, 3\ns_cbranch_scc1 K2_FBRETX\ns_branch K2_FBRETD")


QACC = 48
aXN = 0
aWF = 192


def wq_dma(j):
    out = []
    for i in range(4):
        g = []
        if i == 0:
            g += [I(f"s_add_u32 m0, s{sWM}, {j * 16384}"), I(f"s_add_u32 s{sDO}, s{sWQ}, {j * 64 * 8192}")]
        g.append(VM(f"buffer_load_dwordx4 v{vQD + i}, {s(SQ, 4)}, s{sDO} offen offset:{1024 * i} lds", f"wq{j}"))
        out.append(g)
    return out


def xn_loads(j):
    out = []
    for x in range(2):
        for cs in range(4):
            g = []
            if cs == 0:
                g.append(I(f"s_add_u32 s{sDO}, s{sXN}, {x * 32768 + j * 4096}"))
            g.append(VM(f"buffer_load_dwordx4 {a(aXN + (j % 4) * 32 + (x * 4 + cs) * 4, 4)}, v{vL16}, {s(SS, 4)}, "
                        f"s{sDO} offen offset:{1024 * cs}{SC1}", f"xn{j}"))
            out.append(g)
    return out


def znorm():
    ZT = 220 - 4
    ZF = 208 - 12
    ld = [[I(x) for x in (f"s_lshr_b32 s{sGM}, s2, 3", f"s_and_b32 s{sGP}, s2, 7", f"s_lshl_b32 s{sT}, s{sGM}, 1", f"s_add_u32 s{sT}, s{sT}, s{sG}",
                          f"s_lshl_b32 s{sT}, s{sT}, 11", f"s_add_u32 s{sT}, s{sT}, {WS_STAT}", f"v_lshlrev_b32 v{ZT + 12}, 2, v0")]]
    for i in range(0, 8, 2):
        ld.append([VM(f"buffer_load_dword v{ZT + 4 + i + e}, v{ZT + 12}, {s(SS, 4)}, s{sT} offen offset:{256 * (i + e)}{SC1}", "zn") for e in range(2)])
    ld.append([I(x) for x in (f"s_mul_i32 s{sGZ}, s{sGP}, 384", f"s_lshl_b32 s{sT}, s{sGM}, 2", f"s_add_u32 s{sGZ}, s{sGZ}, s{sT}",
                              f"s_add_u32 s{sGZ}, s{sGZ}, s{sW}", f"s_lshl_b32 s{sGZ}, s{sGZ}, 10")])
    for f in range(3):
        ld.append([I(f"s_add_u32 s{sT}, s{sGZ}, {WS_Z2R + f * 128 * 1024}"),
                   VM(f"buffer_load_dwordx4 {v(ZF + 12 + 4 * f, 4)}, v{vL16}, {s(SS, 4)}, s{sT} offen{SC1}", "zn")])
    z = ZT + 4
    AB = 232
    c = [WVM("zn")]
    c += flat([f"v_add_f32 v{z}, v{z}, v{z + 1}\nv_add_f32 v{z + 2}, v{z + 2}, v{z + 3}\nv_add_f32 v{z + 4}, v{z + 4}, v{z + 5}\nv_add_f32 v{z + 6}, v{z + 6}, v{z + 7}",
               f"v_add_f32 v{z}, v{z}, v{z + 2}\nv_add_f32 v{z + 4}, v{z + 4}, v{z + 6}\nv_add_f32 v{z}, v{z}, v{z + 4}",
               f"v_mul_f32 v{z}, {fbits(1 / 688)}, v{z}\nv_mov_b32 v{z + 1}, v{z}\ns_nop 1\nv_permlane32_swap_b32 v{z}, v{z + 1}\ns_nop 1",
               f"v_fma_f32 v{z + 1}, -v{z}, v{z}, v{z + 1}\nv_max_f32 v{z + 1}, 0, v{z + 1}\nv_add_f32 v{z + 1}, {fbits(LN_EPS)}, v{z + 1}\nv_rsq_f32 v{z + 1}, v{z + 1}\ns_nop 0",
               f"v_mul_f32 v{z}, v{z}, v{z + 1}\nv_sub_f32 v{z}, 0, v{z}",
               f"s_lshl_b32 s{sT}, s{sW}, 8\ns_add_u32 s{sT}, s{sT}, {SPARE}",
               f"v_lshlrev_b32 v{z + 2}, 2, v20\nv_add_u32 v{z + 2}, s{sT}, v{z + 2}"])
    c += [LG(f"ds_write_b32 v{z + 2}, v{z + 1}", "zw"), LG(f"ds_write_b32 v{z + 2}, v{z} offset:128", "zw")]
    c += flat([f"s_lshl_b32 s{sT2}, s{sRS}, 6\ns_add_u32 s{sT}, s{sT}, s{sT2}\nv_lshlrev_b32 v{z + 3}, 5, v21\nv_add_u32 v{z + 3}, s{sT}, v{z + 3}"])
    for i in range(2):
        c += [LG(f"ds_read_b128 {v(AB + 4 * i, 4)}, v{z + 3} offset:{16 * i}", "zr"),
              LG(f"ds_read_b128 {v(AB + 8 + 4 * i, 4)}, v{z + 3} offset:{128 + 16 * i}", "zr")]
    c += flat([f"s_lshl_b32 s{sGP}, s{sGP}, 8\ns_add_u32 s{sGP}, s{sGP}, s{sGM}\ns_add_u32 s{sGP}, s{sGP}, {WS_FLAG2}\ns_nop 0"])
    c += [WLG("zr")]
    for f in range(3):
        for i in range(4):
            x_ = ZF + 12 + 4 * f + i
            c += flat([f"v_lshlrev_b32 v{z}, 16, v{x_}\nv_and_b32 v{z + 1}, 0xffff0000, v{x_}",
                       f"v_fma_f32 v{z}, v{z}, v{AB + 2 * i}, v{AB + 8 + 2 * i}\nv_fma_f32 v{z + 1}, v{z + 1}, v{AB + 2 * i + 1}, v{AB + 9 + 2 * i}",
                       f"v_cvt_pk_bf16_f32 v{x_}, v{z}, v{z + 1}"])
        if not MERGE12:
            c += [I(f"s_add_u32 s{sT}, s{sGZ}, {WS_Z2N + f * 128 * 1024}"),
                  VM(f"buffer_store_dwordx4 {v(ZF + 12 + 4 * f, 4)}, v{vL16}, {s(SS, 4)}, s{sT} offen sc1", "zs")]
    cg = [c[i:i + 4] for i in range(0, len(c), 4)]
    return ld, cg


def qproj(k):
    E = k.emit
    extra = {}

    def spread(c0, c1, groups):
        n = len(groups)
        for i, g in enumerate(groups):
            extra.setdefault(c0 + (i * (c1 - c0)) // n, []).append(g)

    def rd(c, fb):
        j, cs = c // 4, c % 4
        return [LG(f"ds_read_b64_tr_b16 {a(fb + 4 * d + 2 * sec, 2)}, v{vQR + (j // 4) * 4 + d} "
                   f"offset:{(j % 4) * 16384 + cs * 4096 + sec * 1024}", f"q{c}") for d in range(4) for sec in range(2)]

    def fbuf(c):
        return aWF + (c % 4) * 16

    def mf1(c, d, x):
        j, cs = c // 4, c % 4
        return mfma(('v', QACC + (x * 4 + d) * 16), ('a', fbuf(c) + 4 * d), ('a', aXN + (j % 4) * 32 + (x * 4 + cs) * 4),
                    0 if c == 0 else None)

    zl, zc = znorm()

    def kvpre(base, pre, so, so2, tag="kv"):
        d1, d2 = dma4(so, tag), dma4(so2, tag)
        return [[I(f"s_add_u32 m0, s{sW8}, {base}")] + [I(x) for x in pre] + [d1[0]]] + [[d] for d in d1[1:]] + \
               [[I(f"s_add_u32 m0, s{sW8}, {base + 4096}"), I("s_nop 0"), d2[0]]] + [[d] for d in d2[1:]]

    k0 = kvpre(0, [f"s_add_u32 s{sKO2}, s{sKN}, 4096"], sKN, sKO2, "k0")
    k1 = kvpre(32768, [f"s_add_u32 s{sVO}, s{sKN}, {WS_VF - WS_KF}", f"s_add_u32 s{sVO2}, s{sVO}, 4096",
                       f"s_add_u32 s{sKN}, s{sKN}, 0x4000", f"s_add_u32 s{sKO2}, s{sKN}, 4096"], sKN, sKO2)
    v0_ = kvpre(VB0, ["s_nop 0"], sVO, sVO2)
    q = []
    if MERGE12:
        order_ = ((0, wq_dma(2) + xn_loads(2) + wq_dma(3) + xn_loads(3) + wq_dma(4)), (4, xn_loads(4)), (0, wq_dma(5)), (8, xn_loads(5)),
                  (0, wq_dma(6)), (12, xn_loads(6)), (0, wq_dma(7)), (16, xn_loads(7)), (22, k0 + zl))
    else:
        order_ = ((0, wq_dma(2) + xn_loads(2) + wq_dma(3) + xn_loads(3) + wq_dma(4)), (4, xn_loads(4)), (0, wq_dma(5)), (8, xn_loads(5)),
                  (0, wq_dma(6) + zl), (12, xn_loads(6)), (0, wq_dma(7)), (16, xn_loads(7)), (6, k0), (14, k1))
    for e, grp in order_:
        q += [(e, g) for g in grp]
    RATE = 4
    c_ = 0
    n_ = 0
    for e, g in q:
        if e > c_:
            c_, n_ = e, 0
        extra.setdefault(c_, []).append(g)
        n_ += 1
        if n_ == RATE:
            c_, n_ = c_ + 1, 0
    assert c_ <= 27, c_
    valu = {}
    if not MERGE12:
        for i, g in enumerate(zc):
            valu.setdefault(19 + (i * 8) // len(zc), []).append(g)
    else:
        valu[18] = [[I(f"s_mov_b32 s{sT}, {WS_FP1}")] + poll_all_issue(sW, SS, f"s{sT}", 16, 4, 176)]

    E(WVM("wq0"), "s_barrier")
    stamp(k, 6)
    E(rd(0, fbuf(0)), rd(1, fbuf(1)))
    for c in range(28):
        j, cs = c // 4, c % 4
        n = c + 2
        if n % 4 == 0:
            lstamp(k, 19, 3 * (n // 4))
            E(WLG(f"q{n - 1}"), WVM(f"wq{n // 4}"))
            lstamp(k, 19, 3 * (n // 4) + 1)
            if MERGE12 and n == 24:
                E(poll_all_check(sW, SS, f"s{sT}", 16, 4, 176, 1))
            E("s_barrier")
            if MERGE12 and n == 4:
                E(f"s_lshl_b32 s{sT}, s2, 4\ns_add_u32 s{sT}, s{sT}, {WS_FP1}", flag_set(sW, SS, sT, 176))
        E(WLG(f"q{c}"))
        if cs == 0:
            E(WVM(f"xn{j}"))
            lstamp(k, 19, 3 * j + 2)
        r_ = rd(n, fbuf(n))
        ex, va = extra.get(c, []), valu.get(c, [])
        gm_ = {}
        for i in range(8):
            gm_[i] = [r_[i]] + ([ex[i // 2]] if (i % 2 == 0 and i // 2 < len(ex)) else []) + [va[z] for z in range(len(va)) if (z * 8) // len(va) == i]
        E(place([mf1(c, d, x) for d in range(4) for x in range(2)], gm_))
    E(rd(30, fbuf(30)), rd(31, fbuf(31)))
    E(f"v_mov_b32 v{vT}, {fbits(QSCALE)}\nv_mov_b32 v{vT + 1}, {fbits(QSCALE)}")
    E(f"v_add_u32 v{vT + 2}, s{sW8}, v{vL16}\nv_add_u32 v{vT + 3}, {SPARE}, v{vT + 2}\nv_add_u32 v{vT + 2}, {VB0 + 32768}, v{vT + 2}")
    E(WVM("xn7"), WLG0, "s_barrier")

    def epi(d, x):
        out = []
        for g in range(2):
            b = QACC + (x * 4 + d) * 16 + 8 * g
            out.append([I(f"v_mul_f32 v{b + i}, v{vT}, v{b + i}") for i in range(8)])
            out.append([I(f"v_cvt_pk_bf16_f32 v{b + i}, v{b + 2 * i}, v{b + 2 * i + 1}") for i in range(4)] +
                       [LG(f"ds_write_b128 v{vT + 3 - x}, {v(b, 4)} offset:{(2 * d + g) * 1024}")])
        return out

    tiles = [(d, x) for x in range(2) for d in range(4)]
    for i, (d, x) in enumerate(tiles):
        m = [mf1(c, d, x) for c in range(28, 32)]
        kv2 = (k1 + v0_)[2 * i:2 * i + 2] if MERGE12 else [v0_[i], []]
        if i == 0:
            E(m[0], kv2[0], m[1], m[2], kv2[1], m[3])
        else:
            e = epi(*tiles[i - 1])
            E(m[0], kv2[0], m[1], e[0], e[1], m[2], kv2[1], e[2], m[3], e[3])
    stamp(k, 7)
    E("s_nop 15")
    E(epi(*tiles[-1]))
    E(WVM("k0"), WVM("zs"), WLG0, "s_barrier")
    if not MERGE12:
        E(flag_set(sW, SS, sGP, ZT))
    k.zc = zc
    E(f"s_lshl_b32 s{sT}, s{sRS}, 13\nv_add_u32 v{vT + 4}, s{sT}, v{vL16}")
    E(f"v_add_u32 v{vT + 5}, {SPARE}, v{vT + 4}\nv_add_u32 v{vT + 4}, {VB0 + 32768}, v{vT + 4}")
    E(kreads(vKc, 0))
    for x in range(2):
        for f in range(8):
            E(LG(f"ds_read_b128 {a(aQ + (x * 8 + f) * 4, 4)}, v{vT + 3 - x} offset:{f * 1024}"))
    for x in range(2):
        for f in range(8):
            E(LG(f"ds_read_b128 {v(QBS + (x * 8 + f) * 4, 4)}, v{vT + 5 - x} offset:{f * 1024}"))


ZRING = (('v', 144), ('v', 192), ('a', 128), ('a', 176))
vWS = 48
vPD = 32
vPR = 40
NGS = 5


def g_slot(st):
    return (st % 3) * 32768


def zreg(st, i):
    kind, base = ZRING[st % 4]
    return (kind, base + i * 4)


def sprinkle(items, groups):
    items = flat(items)
    n, m = len(items), len(groups)
    out, gi = [], 0
    for i, it in enumerate(items):
        while gi < m and gi * n <= i * m:
            out.append(groups[gi])
            gi += 1
        out.append(it)
    return flat(out + groups[gi:])


def g_dma(st):
    out = []
    for i in range(8):
        g = []
        if i % 4 == 0:
            g += [I(f"s_add_u32 m0, s{sW8}, {g_slot(st) + (i // 4) * 4096}"), I(f"s_add_u32 s{sDO}, s{sGP}, {st * 128}")]
        g.append(VM(f"buffer_load_dwordx4 v{vPD + i}, {s(SP, 4)}, s{sDO} offen offset:{1024 * (i % 4)} lds", f"g{st}"))
        out.append(g)
    return out


def g_zl(st):
    out = []
    for f in range(3):
        for ks in range(4):
            g = []
            if ks == 0:
                g.append(I(f"s_add_u32 s{sGM}, s{sGZ}, {f * 128 * 1024 + st * 4096}"))
            g.append(VM(f"buffer_load_dwordx4 {R(zreg(st, f * 4 + ks), 4)}, v{vL16}, {s(SS, 4)}, "
                        f"s{sGM} offen offset:{1024 * ks} sc1", f"g{st}"))
            out.append(g)
    return out


def g_setup():
    o = [f"v_lshrrev_b32 v{ZT + 32}, 4, v0\nv_lshrrev_b32 v{ZT + 33}, 3, v0\nv_lshlrev_b32 v{ZT + 33}, 12, v{ZT + 33}\nv_and_b32 v{ZT + 34}, 7, v0\nv_xor_b32 v{ZT + 34}, v{ZT + 34}, v{ZT + 32}",
         f"v_lshl_add_u32 v{ZT + 35}, v{ZT + 34}, 4, v{ZT + 33}\nv_xor_b32 v{ZT + 34}, 4, v{ZT + 34}\nv_lshl_add_u32 v{ZT + 36}, v{ZT + 34}, 4, v{ZT + 33}"]
    for i in range(8):
        o.append(f"v_add_u32 v{vPD + i}, {i * 8 * 4096 - (i % 4) * 1024}, v{ZT + 35 + (i % 2)}")
    o.append(f"v_lshrrev_b32 v{ZT + 32}, 5, v0\nv_bfe_u32 v{ZT + 33}, v0, 1, 3\nv_xor_b32 v{ZT + 33}, v{ZT + 33}, v{ZT + 32}")
    o.append(f"v_and_b32 v{ZT + 34}, 31, v0\nv_lshlrev_b32 v{ZT + 34}, 7, v{ZT + 34}\nv_add_u32 v{ZT + 34}, s{sW8}, v{ZT + 34}")
    for ks in range(4):
        o.append(f"v_xor_b32 v{ZT + 35}, {2 * ks}, v{ZT + 33}\nv_lshl_add_u32 v{vPR + ks}, v{ZT + 35}, 4, v{ZT + 34}\nv_add_u32 v{vPR + 4 + ks}, 0x10000, v{vPR + ks}")
    o.append(f"s_lshl_b32 s{sGP}, s{sHD}, 18\ns_lshl_b32 s{sDO}, s{sW}, 10\ns_add_u32 s{sGP}, s{sGP}, s{sDO}")
    o.append(f"s_mul_i32 s{sGZ}, s{sPI}, 384\ns_lshl_b32 s{sGM}, s{sW}, 5\ns_add_u32 s{sGZ}, s{sGZ}, s{sGM}")
    o.append(f"s_lshl_b32 s{sGZ}, s{sGZ}, 10\ns_add_u32 s{sGZ}, s{sGZ}, {WS_Z2N}")
    return o


def merge(k, keep):
    E = k.emit
    send = 1 - keep
    t = vT
    wr = [LG(f"ds_write_b128 v{t + 4 + i // 8}, {a(aO + send * 64 + 4 * i, 4)} offset:{(i % 8) * 1024}") for i in range(16)]
    E(LG(f"ds_read_b64 {v(t + 8, 2)}, v{t + 4}", "mb"))
    d0, d1 = g_dma(0), g_dma(1)
    E(weave(pv(send, 1), d0, 0, 8))
    E(WLG("mb"))
    fac = [f"v_min_f32 v{t}, v{vNM[keep]}, v{t + 8}", f"v_sub_f32 v{t + 2}, v{t}, v{vNM[keep]}", f"v_sub_f32 v{t + 8}, v{t}, v{t + 8}",
           f"v_exp_f32 v{t + 2}, v{t + 2}", f"v_exp_f32 v{t + 8}, v{t + 8}", "s_nop 0",
           f"v_mul_f32 v{t}, v{vLs[keep][0]}, v{t + 2}", f"v_fmac_f32 v{t}, v{t + 9}, v{t + 8}", f"v_rcp_f32 v{t}, v{t}", "s_nop 0",
           f"v_mul_f32 v{t + 2}, v{t + 2}, v{t}", f"v_mul_f32 v{t + 8}, v{t + 8}, v{t}", f"v_mov_b32 v{t + 3}, v{t + 2}", f"v_mov_b32 v{t + 9}, v{t + 8}"]
    m = pv(keep, 1)
    E(m[0], d1[0], fac[:6], m[1], d1[1], fac[6:], weave(m[2:], interleave2(wr, d1[2:]), 0, 6))
    E(WLG0, "s_barrier")
    RX = S[0]
    for i in range(16):
        E(LG(f"ds_read_b128 {v(RX + 4 * i, 4)}, v{t + 6 + i // 8} offset:{(i % 8) * 1024}", f"rx{i}"))
    body = []
    for f in range(8):
        b = RX + 8 * f
        body += [I(f"v_accvgpr_read_b32 v{PB + i}, a{aO + keep * 64 + 8 * f + i}") for i in range(8)]
        body += [WLG(f"rx{2 * f + 1}")]
        body += [I(f"v_pk_mul_f32 {v(b + 2 * i, 2)}, {v(b + 2 * i, 2)}, {v(t + 8, 2)}") for i in range(4)]
        body += [I(f"v_pk_fma_f32 {v(b + 2 * i, 2)}, {v(PB + 2 * i, 2)}, {v(t + 2, 2)}, {v(b + 2 * i, 2)}") for i in range(4)]
        body += [I(f"v_cvt_pk_bf16_f32 v{PB + 8 + 4 * (f % 4) + i}, v{b + 2 * i}, v{b + 2 * i + 1}") for i in range(4)]
        body += [VM(f"buffer_store_dwordx4 {v(PB + 8 + 4 * (f % 4), 4)}, v{vL16}, {s(SS, 4)}, s{sT if f < 4 else sT2} offen offset:{1024 * (f % 4)} sc1", "cs")]
    E(sprinkle(body, g_zl(1)))


def interleave2(x, y):
    out = []
    n = max(len(x), len(y))
    for i in range(n):
        out += x[(i * len(x)) // n:((i + 1) * len(x)) // n] + y[(i * len(y)) // n:((i + 1) * len(y)) // n]
    return out


def gphase(k):
    E = k.emit

    def reads(st):
        o = g_slot(st)
        sg, off = (0, o) if o < 65536 else (1, o - 65536)
        out = []
        for ks in range(4):
            for ts in range(2):
                if off + ts * 4096 < 65536:
                    out.append(LG(f"ds_read_b128 {v(vWS + (st % 2) * 32 + (ts * 4 + ks) * 4, 4)}, v{vPR + sg * 4 + ks} "
                                  f"offset:{off + ts * 4096}", f"p{st}"))
                else:
                    out.append(LG(f"ds_read_b128 {v(vWS + (st % 2) * 32 + (ts * 4 + ks) * 4, 4)}, v{ZT + 40 + ks} "
                                  f"offset:{off - 65536 + ts * 4096}", f"p{st}"))
        return out

    def mf(st):
        return [mfma(('a', (ts * 3 + f) * 16), zreg(st, f * 4 + ks),
                     ('v', vWS + (st % 2) * 32 + (ts * 4 + ks) * 4), 0 if (st == 0 and ks == 0) else None)
                for ks in range(4) for f in range(3) for ts in range(2)]

    for ks in range(4):
        E(f"v_add_u32 v{ZT + 40 + ks}, 0x20000, v{vPR + ks}")
    E("s_barrier")
    E(WVM("g0"))
    stamp(k, 10)
    E(reads(0))
    sched = {st: g_dma(st + 2) + g_zl(st + 2) for st in range(6)}
    for st in range(8):
        E(WLG(f"p{st}"))
        ld = sched.get(st, [])
        m = mf(st)
        n1 = (len(ld) * 14) // 24
        first = weave(m[:14], ld[:n1], 0, 14)
        second = ([WVM(f"g{st + 1}")] + weave(m[14:], interleave2(reads(st + 1), ld[n1:]), 0, 9)) if st + 1 < 8 else m[14:]
        if st == 6:
            fin = flat([f"s_lshl_b32 s{sT}, s{sHD}, 1\ns_add_u32 s{sT}, s{sT}, s{sG}",
                        f"s_mul_i32 s{sT2}, s{sPI}, 6\ns_mul_i32 s{sGP}, s{sRS}, 3\ns_add_u32 s{sT2}, s{sT2}, s{sGP}",
                        f"s_mul_i32 s{sGP}, s{sT}, 48\ns_add_u32 s{sGP}, s{sGP}, s{sT2}\ns_lshl_b32 s{sGP}, s{sGP}, 10\ns_add_u32 s{sGP}, s{sGP}, {WS_Z1}",
                        f"s_mul_i32 s{sGZ}, s{sT}, {CTXU_STEPS}\ns_add_u32 s{sGZ}, s{sGZ}, s{sT2}\ns_add_u32 s{sGZ}, s{sGZ}, 256",
                        f"s_lshl_b32 s{sGZ}, s{sGZ}, 10\ns_add_u32 s{sGZ}, s{sGZ}, {WS_CTXU}",
                        f"s_lshl_b32 s{sT}, s{sT}, 6\nv_and_b32 v21, 31, v0\nv_lshlrev_b32 v21, 1, v21"])
            fin += [VM(f"buffer_load_dwordx4 {v(4 + 4 * i, 4)}, v{vL16}, {s(SS, 4)}, s{sGP} offen offset:{1024 * i}{SC1}", "fin") for i in range(3)]
            fin += [VM(f"buffer_load_ushort v16, v21, {s(SB, 4)}, s{sT} offen", "fin")]
            fin += flat([f"s_mov_b32 s{SD}, s100\ns_mov_b32 s{SD + 1}, s101\ns_mov_b32 s{SD + 2}, {688 * 1024:#x}\ns_lshl_b32 s{sPF}, s2, 2\ns_add_u32 s{sPF}, s{sPF}, s{sW}\ns_lshl_b32 s{sPF}, s{sPF}, 10"])
            fin += [VM(f"buffer_load_dword v{ZT + 32}, v{vL16}, {s(SD, 4)}, s{sPF} offen", "pf")]
            for d in range(4):
                fin += flat([f"s_sub_u32 s{sT}, {d + 3}, s{sW}\ns_and_b32 s{sT}, s{sT}, 3\ns_lshl_b32 s{sT}, s{sT}, 15\ns_add_u32 s{sT}, s{sT}, s{sW8}\nv_add_u32 v{28 + d}, s{sT}, v{vL16}"])
            for j in range(1, 4):
                fin += flat([f"s_add_u32 s{sT}, s{sW}, {j}\ns_and_b32 s{sT}, s{sT}, 3\ns_lshl_b32 s{sT}, s{sT}, 13\ns_add_u32 s{sT}, s{sT}, {(3 - j) * 32768}\nv_add_u32 v{21 + j}, s{sT}, v{vL16}"])
            first = weave(m[:14], [fin[i:i + 3] for i in range(0, len(fin), 3)], 0, 14)
        if MERGE23 and st == 2:
            E(WVM("cs"), "s_barrier")
            E(f"s_lshl_b32 s{sT}, s{sPI}, 5\ns_add_u32 s{sT}, s{sT}, s{sHD}\ns_lshl_b32 s{sT}, s{sT}, 4\ns_add_u32 s{sT}, s{sT}, {WS_FCTX}")
            E(flag_set(sW, SS, sT, 17))
        if MERGE23 and st == 4:
            E(f"s_bfe_u32 s{sT}, s2, 0x10002\ns_lshl_b32 s{sT}, s{sT}, 3\ns_bfe_u32 s{sT2}, s2, 0x30003\ns_add_u32 s{sT}, s{sT}, s{sT2}\ns_sub_u32 s{sT2}, 15, s{sT}\ns_min_u32 s{sT}, s{sT}, s{sT2}")
            E(f"s_lshl_b32 s{sT}, s{sT}, 9\ns_and_b32 s{sT2}, s2, 3\ns_lshl_b32 s{sT2}, s{sT2}, 7\ns_add_u32 s{sT}, s{sT}, s{sT2}\ns_add_u32 s{sFL}, s{sT}, {WS_FCTX}")
            E(wave0(sW, [I("v_and_b32 v17, 7, v0"), I("v_lshlrev_b32 v17, 4, v17"),
                         VMG(f"buffer_load_ubyte v18, v17, {s(SS, 4)}, s{sFL} offen sc0 sc1", "poll")]))
        if MERGE23 and st == 6:
            import k3
            p3 = fin + flat([f"s_lshl_b32 s{sT}, s{sHD}, 3\ns_add_u32 s{sT}, s{sT}, s{sPI}\ns_lshl_b32 s{sT}, s{sT}, 4\ns_add_u32 s50, s{sT}, {WS_FU}\ns_mov_b32 s53, s{sPI}"]) + k3.pre()
            first = weave(m[:14], [p3[i:i + 5] for i in range(0, len(p3), 5)], 0, 14)
            first += flag_poll_check(sW, SS, sFL, 17) + k3.pre2() + [I("s_barrier")]
            second = [WVM("g7")] + weave(m[14:], interleave2(reads(7), k3.dma(0)[:5]), 0, 9)
        if MERGE23 and st == 7:
            first = weave(m[:14], k3.dma(0)[5:] + k3.dma(1)[:4], 0, 14)
            second = weave(m[14:], k3.dma(1)[4:], 0, 9)
        lstamp(k, 19, 32 + 3 * st)
        E(first)
        lstamp(k, 19, 33 + 3 * st)
        E(second[:1])
        lstamp(k, 19, 34 + 3 * st)
        E(second[1:])
    stamp(k, 11)
    E("s_nop 7")
    for d in range(4):
        E(f"s_cmp_eq_u32 s{sW}, {d}\ns_cbranch_scc1 K2_GO{d}")
        for i in range(3):
            fr = 3 * d + i
            for q in range(2):
                E(f"ds_write_b128 v{28 + d}, {a(fr * 8 + 4 * q, 4)} offset:{(i * 2 + q) * 1024}")
        E(f"s_branch K2_GN{d}\nK2_GO{d}:")
        for i in range(3):
            for r in range(8):
                E(f"v_accvgpr_read_b32 v{48 + i * 32 + r}, a{(3 * d + i) * 8 + r}")
        E(f"K2_GN{d}:")
    if MERGE23:
        pass
    E(WLG0, "s_barrier")
    for i in range(3):
        for j in range(1, 4):
            for q in range(2):
                E(LG(f"ds_read_b128 {v(48 + i * 32 + j * 8 + q * 4, 4)}, v{21 + j} offset:{(i * 2 + q) * 1024}", f"x{i}"))
    E(WVM("fin"), "v_lshlrev_b32 v16, 16, v16")
    for i in range(3):
        E(WLG(f"x{i}"))
        b = 48 + i * 32
        for r in range(8):
            E(f"v_add_f32 v{b + r}, v{b + r}, v{b + 8 + r}\nv_add_f32 v{b + 16 + r}, v{b + 16 + r}, v{b + 24 + r}")
        for r in range(8):
            E(f"v_add_f32 v{b + r}, v{b + r}, v16")
        for r in range(8):
            E(f"v_add_f32 v{b + r}, v{b + r}, v{b + 16 + r}")
        for r in range(4):
            z = 4 + 4 * i + r
            E(f"v_lshlrev_b32 v26, 16, v{z}\nv_and_b32 v27, 0xffff0000, v{z}")
            E(f"v_mul_f32 v{b + 2 * r}, v{b + 2 * r}, v26\nv_mul_f32 v{b + 2 * r + 1}, v{b + 2 * r + 1}, v27")
        for r in range(4):
            E(f"v_cvt_pk_bf16_f32 v{b + r}, v{b + 2 * r}, v{b + 2 * r + 1}")
        E(VM(f"buffer_store_dwordx4 {v(b, 4)}, v{vL16}, {s(SS, 4)}, s{sGZ} offen offset:{1024 * i} sc1", "us"))


def build(k=None):
    merged = k is not None
    if not merged:
        k = Kern("k2_kernel")
    E = k.emit
    if not merged:
        E("s_cmp_ge_u32 s2, 256\ns_cbranch_scc1 K2_END")
        code_prefetch(k, "L_CODE_END" if MERGE23 else "k3_kernel", 0, 248)
    stamp_init(k)
    stamp(k, 0)
    E(f"s_load_dwordx2 s[64:65], s[0:1], {KA_WQ}")
    E(f"s_load_dwordx4 s[72:75], s[0:1], {KA_DBG}")
    E(f"s_load_dwordx4 s[68:71], s[0:1], {KA_WSP}")
    if not merged:
        E("v_lshrrev_b32 v1, 6, v0\nv_and_b32 v0, 63, v0")
    E(f"s_and_b32 s{sHD}, s2, 7\ns_lshl_b32 s{sHD}, s{sHD}, 2\ns_lshr_b32 s{sT}, s2, 3\ns_lshr_b32 s{sPI}, s{sT}, 2")
    if not merged:
        E(f"v_readfirstlane_b32 s{sW}, v1")
    E(f"s_and_b32 s{sT}, s{sT}, 3\ns_add_u32 s{sHD}, s{sHD}, s{sT}")
    E(f"s_and_b32 s{sRS}, s{sW}, 1\ns_lshr_b32 s{sG}, s{sW}, 1\ns_lshl_b32 s{sW8}, s{sW}, 13")
    E(f"v_lshlrev_b32 v{vL16}, 4, v0")
    E("v_and_b32 v20, 31, v0\nv_lshrrev_b32 v21, 5, v0\nv_lshrrev_b32 v22, 4, v0")
    E("v_bfe_u32 v23, v0, 2, 2\nv_and_b32 v24, 3, v0\nv_bfe_u32 v25, v0, 4, 1")
    E("v_xor_b32 v26, v23, v22\nv_lshlrev_b32 v27, 13, v22\nv_lshl_add_u32 v27, v26, 6, v27\nv_lshl_add_u32 v27, v24, 4, v27")
    for i in range(4):
        E(f"v_add_u32 v{vQD + i}, {i * (32768 - 1024)}, v27")
    E(f"s_sub_u32 s{sT}, 15, s{sPI}\ns_cmp_eq_u32 s{sG}, 0\ns_cselect_b32 s{sT}, s{sT}, s{sPI}")
    E(f"s_lshl_b32 s{sTD}, s{sT}, 1\ns_add_u32 s{sTD}, s{sTD}, s{sRS}\ns_lshl_b32 s{sXN}, s{sTD}, 16\ns_add_u32 s{sXN}, s{sXN}, {WS_XN}")
    E(f"s_lshl_b32 s{sWQ}, s{sW}, 17\ns_lshl_b32 s{sT}, s{sHD}, 8\ns_add_u32 s{sWQ}, s{sWQ}, s{sT}\ns_lshl_b32 s{sWM}, s{sW}, 12")
    E("s_waitcnt lgkmcnt(0)")
    E(srd(SQ, 64, 512 * 8192), srd(SS, 74, WS_SIZE))
    if not merged:
        for j in range(2):
            E(wq_dma(j), xn_loads(j))
    E(srd(SP, 68, 2048 * 4096), srd(SB, 70, 4096), srd(SD, 68, 2048 * 4096))
    E("v_lshl_add_u32 v26, v21, 3, v23\nv_lshlrev_b32 v26, 8, v26\nv_lshl_add_u32 v26, v25, 5, v26\nv_lshl_add_u32 v26, v24, 3, v26")
    for d in range(4):
        E(f"v_xor_b32 v27, {d}, v23\nv_lshl_add_u32 v{vQR + d}, v27, 6, v26\nv_add_u32 v{vQR + 4 + d}, 0x10000, v{vQR + d}")
    E(f"v_mov_b32 v{vKc}, v{vL16}\nv_add_u32 v{vKn}, 32768, v{vKc}\nv_add_u32 v{vVc}, {VB0}, v{vKc}\nv_mov_b32 v{vVp}, v{vVc}")
    E(f"v_lshlrev_b32 v26, 2, v21\nv_sub_u32 v{vD0}, v20, v26\nv_mov_b32 v{vNEG}, {fbits(NEG)}")
    E(f"s_lshl_b32 s{sKN}, s{sHD}, 19\ns_lshl_b32 s{sT}, s{sRS}, 13\ns_add_u32 s{sKN}, s{sKN}, s{sT}\ns_add_u32 s{sKN}, s{sKN}, {WS_KF}")
    E(f"s_lshl_b32 s{sT}, s{sPI}, 1\ns_add_u32 s{sT}, s{sT}, 2\ns_sub_u32 s{sT2}, 18, s{sT}\ns_lshl_b32 s{sT2}, s{sT2}, 14")
    E(f"s_sub_u32 s{sT2}, s{sT2}, 0x20000000\ns_sub_u32 s{sSW2}, s{sT}, 2\ns_lshl_b32 s{sU}, s{sG}, 29\ns_add_u32 s{sKN}, s{sKN}, s{sU}")
    E(f"s_cmp_eq_u32 s{sG}, 0\ns_cselect_b32 s{sSW}, 8, s{sT}\ns_cselect_b32 s{sJUMP}, 0x20000000, s{sT2}\ns_cselect_b32 s{sSW2}, 15, s{sSW2}")
    E(f"s_lshl_b32 s{sFL}, s{sPI}, 8\ns_add_u32 s{sFL}, s{sFL}, {WS_FLAG2}\ns_lshl_b32 s{sPF}, s2, 2\ns_add_u32 s{sPF}, s{sPF}, s{sW}\ns_lshl_b32 s{sPF}, s{sPF}, 10\ns_mov_b32 s30, 0x100000")
    E(f"s_load_dwordx2 s[28:29], s[0:1], {KA_WO}\ns_load_dwordx2 s[100:101], s[0:1], {KA_WOUT}\ns_waitcnt lgkmcnt(0)")
    if "nowsp" in EXP:
        E(f"s_mov_b32 s{sPF}, 0x1000000")
    if merged:
        import k1
        E(f"s_mov_b32 s98, 0x20000000\ns_cmp_eq_u32 s{sG}, 1\ns_cbranch_scc1 K2_ZE2")
        st0 = (list(k.vm), list(k.lg))
        E(k1.z_epilogue(False, SS, vL16, 20, 21, sRS, 0), "s_branch K2_ZE")
        k.set_state(*st0)
        E("K2_ZE2:")
        E(k1.z_epilogue(True, SS, vL16, 20, 21, sRS, 0))
        E("K2_ZE:")
        E("s_barrier")
        for j in range(2):
            E(wq_dma(j), xn_loads(j))
    stamp(k, 5)
    rstamp(k, 19, 24)
    qproj(k)
    if MERGE12:
        E(WLG0, "s_barrier")
        E("v_and_b32 v20, 31, v0\nv_lshrrev_b32 v21, 5, v0", k.zc)
    E(VM(f"buffer_load_dword v{ZT + 40}, v{vL16}, {s(SD, 4)}, s{sPF} offen", "pf"), f"s_add_u32 s{sPF}, s{sPF}, s30")
    gm, wrapped, pin = schedule_loop()
    gmd, wrapped_d, pin_d = schedule_loop('D', pin)
    gmf, wrapped_f, pin_f = schedule_loop('F', pin)
    gmx, wrapped_x, pin_x = schedule_loop('X', pin)
    assert pin == pin_x
    assert pin == pin_d and pin == pin_f
    wtxt = [it[1] for it in flat(wrapped)]
    for r in range(16):
        E(f"v_mov_b32 v{P(1, 0) + r}, 0\nv_mov_b32 v{NEGM[0] + r}, 0\nv_mov_b32 v{NEGM[1] + r}, 0")
        late = f"v_exp_f32 v{S[1] + r}, v{S[1] + r}" in wtxt
        E(f"v_mov_b32 v{S[1] + r}, {'v%d' % vNEG if late else '0'}")
    assert not any(f"v{S[0] + r}," in w or w.endswith(f"v{S[0] + r}") for w in wtxt for r in range(16))
    for r in (8, 9, 10, 11, 12, 13):
        E(f"v_mov_b32 v{r}, 0")
    E(f"v_mov_b32 v{vT}, 0x7f800000")
    for r0 in range(0, 16, 4):
        for r in range(r0, r0 + 4):
            E(f"v_cmp_gt_i32 s[{64 + 2 * (r % 4)}:{65 + 2 * (r % 4)}], {8 * (r // 4) + r % 4}, v{vD0}")
        for r in range(r0, r0 + 4):
            E(f"v_cndmask_b32 v{MSK + r}, v{vT}, v{vNEG}, s[{64 + 2 * (r % 4)}:{65 + 2 * (r % 4)}]")
    E(f"s_mov_b32 s{sEV}, 0\ns_mov_b32 s{sDG}, 0\ns_mov_b32 s99, 0")
    for x in range(2):
        E(f"s_mov_b32 s{sTH[x]}, {NINF}\ns_mov_b32 s{sLO[x]}, {NINF}")
    for i in range(8):
        E(mfma(('a', aO + 16 * i), ('v', P(1, 0)), ('v', P(1, 0)), 0))
    E(f"s_mov_b32 s{sU}, 0\ns_mov_b32 s{sTL}, 0\ns_mov_b32 s{sMK}, s{sW8}\ns_add_u32 s{sMV}, s{sW8}, {VB0 + 32768}")
    E(WLG0)
    stamp(k, 1)
    rstamp(k, 19, 26)
    dstamp(k, 4)
    def body(gm_, sf):
        diag = sf == "D"
        k.set_state(["kv"] * 16 + ["pf"], ["k"] * 8)
        main = qk(0) + qk(1) + pv(0, 1) + pv(1, 1) + qk(0) + qk(1) + pv(0, 0) + pv(1, 0)
        skip = set(range(32, 40)) if diag else (set(range(0, 16)) | set(range(32, 64))) if sf == 'X' else set()
        main = [I("s_nop 0") if i in skip else m for i, m in enumerate(main)]
        gm_[-1] = [I(f"K2_SWRET{sf}:"), WLG("k")]
        if sf:
            gm_[31] = gm_[31] + [I(f"s_cmp_eq_u32 s{sU}, s99"), I("s_cbranch_scc1 K2_FINB"), I(f"K2_FBRET{sf}:")]
        gm_[63] = gm_[63] + [I(f"s_cmp_lt_u32 s{sU}, 17"), I("s_cbranch_scc1 K2_LOOP")]
        bd = place(main, gm_)

        def drop(it):
            tx = it[1] if len(it) > 1 and isinstance(it[1], str) else ""
            if "nodma" in EXP and ("buffer_load" in tx): return True
            if "nobar" in EXP and tx == "s_barrier": return True
            if "nowait" in EXP and ("s_waitcnt" in tx or it[0] in ('wlg',)): return True
            if "noread" in EXP and tx.startswith("ds_read"): return True
            if "nobr" in EXP and ("K2_RARE" in tx or "K2_FINB" in tx): return True
            return False
        E([it for it in bd if not drop(it)])

    E(".p2align 6")
    for _ in range(int(os.environ.get("PAD", "0"))):
        E("s_nop 0")
    E("K2_LOOP:")
    if PROF and os.environ.get("PROF2"):
        E("s_memtime s[78:79]", "s_waitcnt lgkmcnt(0)", f"s_mov_b32 m0, s{sU}", "s_nop 0", "v_writelane_b32 v255, s78, m0")
    E(f"s_cmp_eq_u32 s{sU}, s{sEV}\ns_cbranch_scc1 K2_EVENT")
    body(gm, '')
    E("K2_TAIL:")
    stamp(k, 8)
    rstamp(k, 19, 28)
    dstamp(k, 5)
    if PROF:
        E(f"s_lshl_b32 s78, s2, 2\ns_add_u32 s78, s78, s{sW}\ns_lshl_b32 s78, s78, 8\ns_add_u32 s78, s78, {WS_PROF + 0x100000}\nv_lshlrev_b32 v254, 2, v0")
        E(f"buffer_store_dword v255, v254, {s(SS, 4)}, s78 offen")
    E(vreads(vVp, 1))
    gs = g_setup()
    E(gs[-2:])
    t = vT
    tl = flat(wrapped)
    for x in range(2):
        tl += flat([f"v_add_f32 v{vLs[x][0]}, v{vLs[x][0]}, v{vLs[x][1]}"])
    for x in range(2):
        tl += flat([f"v_mov_b32 v{vLs[x][1]}, v{vLs[x][0]}"])
    tl += flat([f"v_add_u32 v{t + 4}, s{sW8}, v{vL16}\nv_and_b32 v{t + 5}, 0x18000, v{vVp}"])
    for x in range(2):
        tl += flat([f"v_permlane32_swap_b32 v{vLs[x][0]}, v{vLs[x][1]}"])
    tl += flat([f"v_add_u32 v{t + 5}, v{t + 5}, v{t + 4}\nv_add_u32 v{t + 4}, {SPARE}, v{t + 4}"])
    for x in range(2):
        tl += flat([f"v_add_f32 v{vLs[x][0]}, v{vLs[x][0]}, v{vLs[x][1]}"])
    tl += [[I(f"s_cmp_eq_u32 s{sG}, 0"), I("s_cselect_b64 vcc, -1, 0")]]
    tl += flat([f"v_xor_b32 v{t + 6}, 0x4000, v{t + 4}\nv_xor_b32 v{t + 7}, 0x4000, v{t + 5}",
                f"v_cndmask_b32 v{t + 8}, v{vNM[0]}, v{vNM[1]}, vcc\nv_cndmask_b32 v{t + 9}, v{vLs[0][0]}, v{vLs[1][0]}, vcc"])
    tl += [LG(f"ds_write_b64 v{t + 6}, {v(t + 8, 2)}")]
    tl += flat(gs[:-2])
    tl += flat([f"s_sub_u32 s{sT}, 15, s{sPI}\ns_lshl_b32 s{sT}, s{sT}, 2\ns_lshl_b32 s{sT2}, s{sRS}, 1\ns_add_u32 s{sT}, s{sT}, s{sT2}\ns_add_u32 s{sT}, s{sT}, s{sG}",
                f"s_mul_i32 s{sT}, s{sT}, {CTXU_STEPS}\ns_lshl_b32 s{sT2}, s{sHD}, 3\ns_add_u32 s{sT}, s{sT}, s{sT2}",
                f"s_lshl_b32 s{sT}, s{sT}, 10\ns_add_u32 s{sT}, s{sT}, {WS_CTXU}\ns_add_u32 s{sT2}, s{sT}, 4096"])
    zz = g_zl(0)
    out_, gi = [], 0
    for i, it in enumerate(tl):
        while gi < len(zz) and gi * len(tl) <= i * len(zz):
            out_.append(zz[gi])
            gi += 1
        out_.append(it)
    E(out_, zz[gi:])
    E(WVM("pf"), WLG0, "s_barrier")
    E(f"s_cmp_eq_u32 s{sG}, 1\ns_cbranch_scc1 K2_MERGE1")
    st = (list(k.vm), list(k.lg))
    merge(k, 0)
    E("s_branch K2_G")
    k.set_state(*st)
    E("K2_MERGE1:")
    merge(k, 1)
    E("K2_G:")
    stamp(k, 3)
    gphase(k)
    if PROF and not MERGE23:
        E(WVM0)
    stamp(k, 4)
    rstamp(k, 19, 30)
    dstamp(k, 6)
    lstamp_store(k, 1, 19, 20, SS, sW)
    if PROF:
        E(f"s_mov_b32 s95, s53")
    stamp_store(k, 1, SS, sW, 208)
    if MERGE23:
        import k3
        E("s_mov_b64 exec, -1")
        k3.build(k)
    E("K2_END:")
    E("s_endpgm")
    for x in range(2):
        for buf in range(2):
            rare_path(k, x, buf)
    hooks(k)
    body(gmd, 'D')
    E("s_branch K2_TAIL")
    body(gmf, 'F')
    E("s_branch K2_TAIL")
    body(gmx, 'X')
    E("s_branch K2_TAIL")
    if merged:
        return
    return k.text(512, 256)
```

```python
import sys, importlib
sys.path.insert(0, "gen")
NAME = "parallel_sum__compressed_kv_cla__mixer_gmlp__prompt"

def main(out=None, only=None):
    import k1
    import common
    kerns = [(common.KNAME if common.MERGE12 else "k1_kernel", k1, 256, 256, 163840)]
    try:
        import k2
        if common.MERGE12:
            raise ImportError
        kerns.append(("k2_kernel", k2, 256, 256, 163840))
    except ImportError:
        pass
    try:
        import k3, common
        if common.MERGE23:
            raise ImportError
        kerns.append(("k3_kernel", k3, 256, getattr(k3, "THREADS", 256), k3.LDS))
    except ImportError:
        pass
    ref = open(f"cdna_kernels/{NAME}.s.ref").read().split("\n")
    head = [l for l in ref if l.startswith(";") and "@launch" not in l and "Override launch" not in l and "grid=ceil" not in l]
    lines = list(head)
    for nm, mod, g, b, lds in kerns:
        if len(kerns) == 1:
            lines.append(f"; @launch grid=({g},1,1) block=({b},1,1) lds={lds}")
        else:
            lines.append(f"; @launch kernel={nm} grid=({g},1,1) block=({b},1,1) lds={lds}")
    lines.append('.amdgcn_target "amdgcn-amd-amdhsa--gfx950"')
    lines.append(".text")
    descs = []
    for nm, mod, g, b, lds in kerns:
        t, d = mod.build()
        lines.append(t)
        descs.append(d)
    lines.append("L_CODE_END:")
    lines.append("    s_endpgm")
    lines.append('.section .rodata,"a"')
    for d in descs:
        lines.append(".p2align 6")
        lines.append(d)
    path = out or f"cdna_kernels/{NAME}.s"
    open(path, "w").write("\n".join(lines) + "\n")
    print("wrote", path)

if __name__ == "__main__":
    main(*sys.argv[1:])
```

```python
from asmlib import *
from common import *
import os

THRESH = float(os.environ.get("THRESH", "32.0"))
BUDGET = int(os.environ.get("BUDGET", "25"))
EXP = os.environ.get("EXP2", "")

SQ, SP, SB, SS, SD = 8, 12, 16, 20, 24
sW, sHD, sPI, sG, sRS = 32, 33, 34, 35, 36
sT, sT2, sU, sSW, sSW2, sJUMP, sTL, sTD = 37, 38, 39, 40, 41, 42, 43, 44
sKN, sKO2, sVO, sVO2, sMK, sMV = 45, 46, 47, 48, 49, 50
sTH = (51, 52)
sLO = (53, 54)
sXN, sWQ, sWM, sW8, sDO = 55, 56, 57, 59, 58
sGP, sGZ, sGM, sFL, sPF, sEV, sDG = 60, 61, 62, 63, 76, 77, 31
NINF = "0xff800000"
SC1 = " sc1" if MERGE12 else ""

vL16, vKc, vKn, vVp, vVc, vD0, vNEG = 1, 2, 3, 4, 5, 6, 7
vLs = ((8, 9), (10, 11))
vNM = (12, 13)
vM = 14
vLSV = (30, 31)
vT = 20
vQD = 32
vQR = 36
S = (48, 64)
NEGM = (80, 96)
PB = 112
QBS = 144
ZT = 208
NEGB = 208
MSK = 224
vPL = 240
aO, aQ, aK, aV = 0, 128, 192, 224

KB0, VB0, SPARE = 0, 65536, 131072
NEG = -1.0e30


def P(buf, x, i=0):
    return PB + (buf * 2 + x) * 8 + i


def dma4(so, tag="kv"):
    return [VM(f"buffer_load_dwordx4 v{vL16}, {s(SS, 4)}, s{so} offen offset:{1024 * i}{SC1} lds", tag) for i in range(4)]


def qk(x, cin=None):
    return [mfma(('v', S[x]), ('a', aK + 4 * d), ('a', aQ + (x * 8 + d) * 4), ('v', NEGM[x] if cin is None else cin) if d == 0 else None)
            for d in range(8)]


def pv(x, buf):
    return [mfma(('a', aO + (x * 4 + ds) * 16), ('a', aV + (ds * 2 + g) * 4), ('v', P(buf, x, 4 * g)))
            for g in range(2) for ds in range(4)]


def kreads(areg, th):
    return [LG(f"ds_read_b128 {a(aK + 4 * d, 4)}, v{areg} offset:{th * 8192 + d * 1024}", "k") for d in range(8)]


def vreads(areg, th):
    return [LG(f"ds_read_b128 {a(aV + 4 * f, 4)}, v{areg} offset:{th * 8192 + f * 1024}", "v") for f in (0, 2, 4, 6, 1, 3, 5, 7)]


def sm_max(x):
    b, m = S[x], vM
    return [(4, I(t)) for t in (
        f"v_max3_f32 v{m}, v{b}, v{b + 1}, v{b + 2}", f"v_max3_f32 v{m + 1}, v{b + 3}, v{b + 4}, v{b + 5}",
        f"v_max3_f32 v{m + 2}, v{b + 6}, v{b + 7}, v{b + 8}", f"v_max3_f32 v{m + 3}, v{b + 9}, v{b + 10}, v{b + 11}",
        f"v_max3_f32 v{m + 4}, v{b + 12}, v{b + 13}, v{b + 14}", f"v_max3_f32 v{m}, v{m}, v{m + 1}, v{b + 15}",
        f"v_max3_f32 v{m + 2}, v{m + 2}, v{m + 3}, v{m + 4}", f"v_max_f32 v{m}, v{m}, v{m + 2}")]


def sm_chk(x, buf):
    return (8, [I(f"v_cmp_lt_f32 vcc, s{sTH[x]}, v{vM}"), I(f"s_cbranch_vccnz K2_RARE_{x}_{buf}"), I(f"K2_RET_{x}_{buf}:")])


def sm_fin(x, buf, i):
    b = S[x]
    return [(4, I(f"v_add_f32 v{vLs[x][0]}, v{vLs[x][0]}, v{b + 2 * i}")),
            (4, I(f"v_add_f32 v{vLs[x][1]}, v{vLs[x][1]}, v{b + 2 * i + 1}")),
            (4, I(f"v_cvt_pk_bf16_f32 v{P(buf, x, i)}, v{b + 2 * i}, v{b + 2 * i + 1}"))]


def sm_exp(x, buf):
    b = S[x]
    items = []
    for i in range(8):
        items.append((8, I(f"v_exp_f32 v{b + 2 * i}, v{b + 2 * i}")))
        items.append((8, I(f"v_exp_f32 v{b + 2 * i + 1}, v{b + 2 * i + 1}")))
        if i > 0:
            items += sm_fin(x, buf, i - 1)
    return items + sm_fin(x, buf, 7)


CAP = int(os.environ.get("CAP", "24"))


def schedule_loop(var='', pin=None):
    NG = 64
    T = NG + 16
    mem = [[] for _ in range(T)]
    alu = [[] for _ in range(T)]
    used = [0] * NG
    sfx = var
    diag, first, full = var == 'D', var == 'F', var == 'X'

    def fixed(g, cost, item, is_mem=True):
        (mem if is_mem else alu)[g].append(item)
        used[g % NG] += cost

    def spread_mem(g0, n, items):
        for i, r in enumerate(items):
            fixed(g0 + (i * n) // len(items), 4, r)

    spread_mem(0, 13, vreads(vVp, 1))
    if not full:
        spread_mem(16, 10, kreads(vKc, 1))
        spread_mem(32, 13, vreads(vVc, 0))
    spread_mem(48, 13, kreads(vKn, 0))
    BAR = int(os.environ.get("BAR", "27"))
    fixed(BAR, 8, [I("s_waitcnt vmcnt(1) lgkmcnt(0)"), ('reset',), I("s_barrier")])
    g = BAR + 1
    dgaps = []
    for so in (sKN, sKO2, sVO, sVO2):
        for d in dma4(so):
            fixed(g, 8, d)
            dgaps.append(g)
            g += 2
    fixed(g, 8, VM(f"buffer_load_dword v{ZT + 40}, v{vL16}, {s(SD, 4)}, s{sPF} offen", "pf"))
    gpf = g
    tail = {15: [WLG("v")], 47: [WLG("v")], 63: []}
    for g_ in (15, 47):
        used[g_] += 4
    used[63] += 4 + 13 + 13
    if var:
        used[31] += 13
    jobs = []

    def job(name, cost, item, e, l, deps=(), later=None):
        jobs.append(dict(name=name, cost=cost, item=item, e=e, l=l, deps=list(deps), later=later))

    job("vo", 4, I(f"s_add_u32 s{sVO}, s{sKN}, {WS_VF - WS_KF}"), 0, BAR - 2)
    job("vo2", 4, I(f"s_add_u32 s{sVO2}, s{sKN}, {WS_VF - WS_KF + 4096}"), 0, BAR - 2)
    job("kn", 12, [I(f"s_cmp_eq_u32 s{sU}, s{sSW2}"), I(f"s_cselect_b32 s{sKO2}, s{sJUMP}, 0x4000"), I(f"s_add_u32 s{sKN}, s{sKN}, s{sKO2}")],
        0, BAR - 1, ["vo", "vo2"])
    job("ko2", 4, I(f"s_add_u32 s{sKO2}, s{sKN}, 4096"), 0, BAR, ["kn"])
    job("m0a", 4, I(f"s_mov_b32 m0, s{sMK}"), 0, BAR)
    job("m0b", 4, I(f"s_add_u32 m0, s{sMK}, 4096"), dgaps[3], dgaps[4] - 1)
    job("m0c", 4, I(f"s_mov_b32 m0, s{sMV}"), dgaps[7], dgaps[8] - 1)
    job("m0d", 4, I(f"s_add_u32 m0, s{sMV}, 4096"), dgaps[11], dgaps[12] - 1)
    job("pfa", 4, I(f"s_add_u32 s{sPF}, s{sPF}, s30"), gpf, 63)
    job("xk", 4, I(f"s_xor_b32 s{sMK}, s{sMK}, 0x8000"), dgaps[4], 63, ["m0b"])
    job("xv", 4, I(f"s_xor_b32 s{sMV}, s{sMV}, 0x8000"), dgaps[12], 63, ["m0d"])
    job("vp", 4, I(f"v_mov_b32 v{vVp}, v{vVc}"), 13, 44)
    job("vc", 4, I(f"v_xor_b32 v{vVc}, 0x8000, v{vVc}"), 45, 63, ["vp"])
    job("kc", 4, I(f"v_xor_b32 v{vKc}, 0x8000, v{vKc}"), 26, 63)
    job("kx", 4, I(f"v_xor_b32 v{vKn}, 0x8000, v{vKn}"), 61, 63)
    job("tl", 4, I(f"s_add_u32 s{sTL}, s{sTL}, 1"), 56, 63)
    job("u", 4, I(f"s_add_u32 s{sU}, s{sU}, 1"), 32, 63)
    for half in range(2):
        G = 8 + 32 * half
        for x in range(2):
            e0 = G + 1 + 8 * x
            pre = f"{half}{x}"
            prev = [f"{half}0chk"] if x == 1 else []
            if diag and half == x:
                for r in range(16):
                    job(f"{pre}mk{r}", 4, I(f"v_min_f32 v{S[x] + r}, v{S[x] + r}, v{MSK + r}"), e0, e0 + 4, prev)
                prev = prev + [f"{pre}mk{r}" for r in range(16)]
            for i, (c, it) in enumerate(sm_max(x)):
                job(f"{pre}m{i}", c, it, e0, e0 + 5, prev + ([f"{pre}m{i - 1}"] if i else []))
            dl = G + 23 + 8 * x
            b_ = S[x]
            if first and half == 0:
                d_ = vT + x
                job(f"{pre}f0", 4, I(f"v_mov_b32 v{d_}, v{vM}"), e0, e0 + 8, [f"{pre}m7"])
                job(f"{pre}f1", 8, [I("s_nop 0"), I(f"v_permlane32_swap_b32 v{vM}, v{d_}")], e0, e0 + 9, [f"{pre}f0"], later=f"{pre}f0")
                job(f"{pre}chk", 12, [I(f"v_max_f32 v{d_}, v{d_}, v{vM}"), I(f"v_ceil_f32 v{d_}, v{d_}"), I(f"v_sub_f32 v{vNM[x]}, 0, v{d_}")],
                    e0, e0 + 10, [f"{pre}f1"], later=f"{pre}f1")
                job(f"{pre}ls", 12, [I(f"v_add_f32 v{vLSV[x]}, v{vLs[x][0]}, v{vLs[x][1]}"), I(f"v_mov_b32 v{vLs[x][0]}, 0"), I(f"v_mov_b32 v{vLs[x][1]}, 0")],
                    e0, e0 + 8)
                for r in range(16):
                    job(f"{pre}s{r}", 4, I(f"v_sub_f32 v{b_ + r}, v{b_ + r}, v{d_}"), e0, dl - 2, [f"{pre}chk", f"{pre}ls"])
                    job(f"{pre}n{r}", 4, I(f"v_mov_b32 v{NEGM[x] + r}, v{vNM[x]}"), e0, dl - 1, [f"{pre}chk"])
            else:
                job(f"{pre}cmp", 4, I(f"v_cmp_lt_f32 vcc, s{sTH[x]}, v{vM}"), e0, e0 + 5, [f"{pre}m7"])
                job(f"{pre}chk", 9, [I(f"s_cbranch_vccnz K2_RARE_{x}_{half}"), I(f"K2_RET{sfx}_{x}_{half}:")],
                    e0, e0 + 6, [f"{pre}cmp"], later=f"{pre}cmp")
            for r in range(16):
                job(f"{pre}e{r}", 8, I(f"v_exp_f32 v{b_ + r}, v{b_ + r}"), e0, dl - 1,
                    [f"{pre}s{r}" if (first and half == 0) else f"{pre}chk"] + ([f"{pre}e{r - 1}"] if r else []))
            for i in range(8):
                f3 = sm_fin(x, half, i)
                job(f"{pre}a{2 * i}", 4, f3[0][1], e0, dl, [f"{pre}e{2 * i + 1}"])
                job(f"{pre}a{2 * i + 1}", 4, f3[1][1], e0, dl, [f"{pre}a{2 * i}"])
                job(f"{pre}c{i}", 4, f3[2][1], e0, dl, [f"{pre}a{2 * i + 1}"])
    if diag:
        jobs[:] = [j for j in jobs if not j['name'].startswith("10")]
        for j in jobs:
            j['deps'] = [d for d in j['deps'] if not d.startswith("10")]
        for i in range(8):
            job(f"zp{i}", 4, I(f"v_mov_b32 v{P(1, 0, i)}, 0"), 32, 60)
    if full:
        jobs[:] = [j for j in jobs if j['name'][0] not in "01" or j['name'] in pin]
        names = {j['name'] for j in jobs}
        for j in jobs:
            j['deps'] = [d for d in j['deps'] if d in names]
            if j['later'] not in names:
                j['later'] = None
        for i in range(16):
            job(f"zp{i}", 4, I(f"v_mov_b32 v{P(1, 0, i)}, 0"), 34, 60)
            job(f"zs{i}", 4, I(f"v_mov_b32 v{S[1] + i}, {'v%d' % vNEG if f'11e{i}' in pin else '0'}"), 9, 60)
    if pin is not None:
        for j in jobs:
            if j['name'] in pin:
                j['e'] = j['l'] = pin[j['name']]
            else:
                j['l'] = min(j['l'], 63)
    done = {}
    rest = list(jobs)
    order = list(range(9, NG + 9))
    remaining = sum(j['cost'] for j in jobs)
    for gi, g in enumerate(order):
        gm_ = g % NG
        free_after = sum(max(0, CAP - used[h % NG]) for h in order[gi + 1:])
        while True:
            cand = []
            for j in rest:
                e, l = j['e'], j['l']
                if l < 9 or (e < 9 and j['name'][0] not in "01" and False):
                    e, l = e + NG, l + NG
                if e <= g and all(d in done for d in j['deps']) and (j['later'] is None or done[j['later']] < g):
                    cand.append((l, j))
            if not cand:
                break
            cand.sort(key=lambda z: z[0])
            room = CAP - used[gm_]
            pick = None
            for l, j in cand:
                if j['cost'] <= room:
                    pick = j
                    break
            if pick is None:
                urgent = [j for l, j in cand if l <= g]
                if urgent:
                    pick = urgent[0]
                elif remaining > free_after and room > -4 and room + 4 >= min(j['cost'] for _, j in cand):
                    pick = min((j for _, j in cand), key=lambda j: j['cost'])
                else:
                    break
            alu[g].append(pick['item'])
            used[gm_] += pick['cost']
            remaining -= pick['cost']
            done[pick['name']] = g
            rest.remove(pick)
    assert not rest, [j['name'] for j in rest]
    for j in jobs:
        l = j['l'] + (NG if j['l'] < 9 else 0)
        assert done[j['name']] <= l, (j['name'], done[j['name']], l)
    est = sum(max(32, 8 + u) for u in used)
    if os.environ.get("SCHED"):
        print("loop estimate", est, used)
    wrapped = []
    for g in range(NG, T):
        wrapped += [it for it in alu[g] if "v_" in str(it) and "s_cselect" not in str(it)]
    gm = {}
    for g in range(NG):
        gm[g] = mem[g] + (alu[g + NG] if g + NG < T else []) + alu[g] + tail.get(g, [])
    return gm, wrapped, {n: g for n, g in done.items() if g >= NG}


def rare_ret(L):
    r = f"s_cmp_eq_u32 s{sDG}, 0\ns_cbranch_scc1 K2_RET_{L}\n"
    if L.endswith("_1"):
        r += f"s_cmp_eq_u32 s{sDG}, 2\ns_cbranch_scc1 K2_RETF_{L}\n"
    if L == "0_1":
        return f"s_cmp_eq_u32 s{sDG}, 0\ns_cbranch_scc1 K2_RET_{L}\ns_branch K2_RETF_{L}"
    return r + f"s_branch K2_RETD_{L}"


def rare_path(k, x, buf):
    E = k.emit
    t = vT
    L = f"{x}_{buf}"
    E(f"K2_RARE_{L}:")
    E(f"s_mov_b32 s{sTH[x]}, {fbits(THRESH)}")
    E(f"v_mov_b32 v{t}, v{vM}\ns_nop 1\nv_permlane32_swap_b32 v{vM}, v{t}\ns_nop 1")
    E(f"v_max_f32 v{t}, v{t}, v{vM}\nv_ceil_f32 v{t}, v{t}\nv_max_f32 v{t}, s{sLO[x]}, v{t}")
    E(f"v_sub_f32 v{vNM[x]}, v{vNM[x]}, v{t}")
    for r in range(16):
        E(f"v_sub_f32 v{S[x] + r}, v{S[x] + r}, v{t}")
        E(f"v_mov_b32 v{NEGM[x] + r}, v{vNM[x]}")
    E(f"s_cmp_eq_u32 s{sLO[x]}, 0\ns_cbranch_scc1 K2_RSC_{L}")
    E(f"v_add_f32 v{vLSV[x]}, v{vLs[x][0]}, v{vLs[x][1]}\nv_mov_b32 v{vLs[x][0]}, 0\nv_mov_b32 v{vLs[x][1]}, 0")
    E(f"s_mov_b32 s{sLO[x]}, 0", rare_ret(L))
    E(f"K2_RSC_{L}:")
    E(f"v_sub_f32 v{t + 1}, 0, v{t}\nv_exp_f32 v{t + 1}, v{t + 1}\ns_nop 0")
    E(f"v_mul_f32 v{vLs[x][0]}, v{vLs[x][0]}, v{t + 1}\nv_mul_f32 v{vLs[x][1]}, v{vLs[x][1]}, v{t + 1}")
    for i in range(8):
        p = P(1 - buf, x, i)
        E(f"v_lshlrev_b32 v{t + 2}, 16, v{p}\nv_and_b32 v{t + 3}, 0xffff0000, v{p}")
        E(f"v_mul_f32 v{t + 2}, v{t + 2}, v{t + 1}\nv_mul_f32 v{t + 3}, v{t + 3}, v{t + 1}")
        E(f"v_cvt_pk_bf16_f32 v{p}, v{t + 2}, v{t + 3}")
    E("s_nop 15")
    for r in range(0, 64, 4):
        for i in range(4):
            E(f"v_accvgpr_read_b32 v{t + 2 + i}, a{aO + x * 64 + r + i}")
        for i in range(4):
            E(f"v_mul_f32 v{t + 2 + i}, v{t + 2 + i}, v{t + 1}")
        for i in range(4):
            E(f"v_accvgpr_write_b32 a{aO + x * 64 + r + i}, v{t + 2 + i}")
    E(rare_ret(L))


def ctx_addr(sqb_expr, x_in_addr):
    pass


def hooks(k):
    E = k.emit
    E("K2_EVENT:")
    E(f"s_add_u32 s{sT}, s{sU}, 1\ns_cmp_eq_u32 s{sT}, s{sSW}\ns_cselect_b32 s{sT}, s{sG}, 0\ns_lshl_b32 s{sT}, s{sT}, 14\nv_add_u32 v{vKn}, s{sT}, v{vKn}")
    E(f"s_mov_b32 s{sDG}, 0\ns_cmp_lg_u32 s{sU}, s{sSW}\ns_cbranch_scc1 K2_EV2")
    E(f"s_cmp_eq_u32 s{sG}, 0\ns_cbranch_scc1 K2_SW0")
    E(f"v_add_u32 v{vKc}, 0x4000, v{vKc}\nv_add_u32 v{vVc}, 0x4000, v{vVc}\ns_mov_b32 s{sSW2}, 15\ns_mov_b32 s{sJUMP}, 0x20000000")
    for r in range(64):
        E(f"v_accvgpr_write_b32 a{aQ + r}, v{QBS + r}")
    for r in range(32):
        E(f"v_mov_b32 v{NEGM[0] + r}, 0")
    E(f"v_mov_b32 v{vNM[0]}, 0\nv_mov_b32 v{vNM[1]}, 0")
    for x in range(2):
        E(f"s_mov_b32 s{sTH[x]}, {NINF}\ns_mov_b32 s{sLO[x]}, {NINF}")
    E(f"s_mov_b32 s{sTL}, 17\ns_sub_u32 s{sTD}, 15, s{sPI}\ns_lshl_b32 s{sTD}, s{sTD}, 1\ns_add_u32 s{sTD}, s{sTD}, s{sRS}")
    E("s_branch K2_EV2")
    E("K2_SW0:")
    E(f"s_cmp_eq_u32 s{sU}, 13\ns_cbranch_scc1 K2_SW1\ns_cmp_eq_u32 s{sU}, 12\ns_cbranch_scc1 K2_SW2")
    E(f"s_mov_b32 s{SD}, s28\ns_mov_b32 s{SD + 1}, s29\ns_mov_b32 s{SD + 2}, {4096 * 1024:#x}\ns_lshl_b32 s{sPF}, s2, 1\ns_add_u32 s{sPF}, s{sPF}, s{sW}\ns_lshl_b32 s{sPF}, s{sPF}, 10\ns_mov_b32 s30, 0x80000")
    E(f"s_mov_b32 s{sSW}, 12\ns_cmp_lg_u32 s{sW}, 0\ns_cbranch_scc1 K2_EV2")
    E(f"v_mov_b32 v{vPL}, 1\nv_mov_b32 v{vPL + 1}, 0\ns_mov_b64 exec, 1\nbuffer_store_byte v{vPL}, v{vPL + 1}, {s(SS, 4)}, s{sGP} offen sc0 sc1\ns_mov_b64 exec, -1\ns_branch K2_EV2")
    E("K2_SW2:")
    E(f"v_and_b32 v{vPL}, 31, v0\nbuffer_load_ubyte v{vPL + 1}, v{vPL}, {s(SS, 4)}, s{sFL} offen sc0 sc1\ns_mov_b32 s{sSW}, 13\ns_branch K2_EV2")
    E("K2_SW1:\ns_waitcnt vmcnt(17)")
    E(f"v_cmp_ne_u32 vcc, 1, v{vPL + 1}\ns_nop 1\ns_cbranch_vccz K2_EV2")
    E(f"K2_FBLP:\ns_sleep 2\nbuffer_load_ubyte v{vPL + 1}, v{vPL}, {s(SS, 4)}, s{sFL} offen sc0 sc1\ns_waitcnt vmcnt(0)")
    E(f"v_cmp_ne_u32 vcc, 1, v{vPL + 1}\ns_nop 1\ns_cbranch_vccnz K2_FBLP")
    E("K2_EV2:")
    E(f"s_cmp_lt_u32 s{sTL}, s{sTD}\ns_cbranch_scc0 K2_EV3")
    E(f"s_cmp_eq_u32 s{sLO[0]}, 0\ns_cbranch_scc1 K2_EV4")
    for x in range(2):
        E(f"s_mov_b32 s{sTH[x]}, {fbits(THRESH)}\ns_mov_b32 s{sLO[x]}, 0")
    E(f"s_add_u32 s{sEV}, s{sU}, 1\ns_mov_b32 s{sDG}, 2\ns_branch K2_SWRETF")
    E("K2_EV4:")
    E(f"s_sub_u32 s{sEV}, s{sTD}, s{sTL}\ns_add_u32 s{sEV}, s{sEV}, s{sU}\ns_cmp_gt_u32 s{sSW}, s{sU}\ns_cselect_b32 s{sT}, s{sSW}, 99\ns_min_u32 s{sEV}, s{sEV}, s{sT}")
    E("s_branch K2_SWRET")
    E("K2_EV3:")
    E(f"s_add_u32 s{sEV}, s{sU}, 1\ns_mov_b32 s{sDG}, 1\ns_cmp_eq_u32 s{sTL}, s{sTD}\ns_cbranch_scc1 K2_SWRETD")
    E(f"s_mov_b32 s{sDG}, 3\ns_branch K2_SWRETX")
    E("K2_FINB:")
    E(f"s_cmp_lg_u32 s{sU}, 0\ns_cbranch_scc1 K2_FBB")
    for f in range(3):
        E(f"s_add_u32 s{sT}, s{sGZ}, {WS_Z2N + f * 128 * 1024}\nbuffer_store_dwordx4 {v(208 + 4 * f, 4)}, v{vL16}, {s(SS, 4)}, s{sT} offen sc1")
    E(f"s_cmp_eq_u32 s{sG}, 0\ns_cselect_b32 s99, 99, s{sSW}\ns_branch K2_FBX")
    E("K2_FBB:")
    t = QBS
    E(f"s_cmp_eq_u32 s{sLO[0]}, 0\ns_cbranch_scc1 K2_FB1")
    for x in range(2):
        E(f"v_add_f32 v{vLSV[x]}, v{vLs[x][0]}, v{vLs[x][1]}\nv_mov_b32 v{vLs[x][0]}, 0\nv_mov_b32 v{vLs[x][1]}, 0\nv_sub_f32 v{vNM[x]}, 0, v{vNEG}")
    E("K2_FB1:")
    for x in range(2):
        E(f"v_mov_b32 v{t + 2 * x}, v{vLSV[x]}")
    E("s_nop 1")
    for x in range(2):
        E(f"v_permlane32_swap_b32 v{vLSV[x]}, v{t + 2 * x}")
    E("s_nop 1")
    for x in range(2):
        E(f"v_add_f32 v{t + 2 * x}, v{t + 2 * x}, v{vLSV[x]}\nv_rcp_f32 v{t + 2 * x}, v{t + 2 * x}")
    E(f"s_lshl_b32 s{sT}, s{sPI}, 2\ns_lshl_b32 s{sT2}, s{sRS}, 1\ns_add_u32 s{sT}, s{sT}, s{sT2}")
    for x in range(2):
        E(f"v_mov_b32 v{t + 2 * x + 1}, v{t + 2 * x}")
    E(f"s_mul_i32 s{sT}, s{sT}, {CTXU_STEPS}\ns_lshl_b32 s{sT2}, s{sHD}, 3\ns_add_u32 s{sT}, s{sT}, s{sT2}")
    E(f"s_lshl_b32 s{sT}, s{sT}, 10\ns_add_u32 s{sT}, s{sT}, {WS_CTXU}")
    for i in range(4):
        E(f"v_mov_b32 v{t + 4 + i}, 0")
    for x in range(2):
        for f in range(8):
            b = t + 8 + 8 * (f % 4)
            for i in range(8):
                E(f"v_accvgpr_read_b32 v{b + i}, a{aO + x * 64 + 8 * f + i}")
            if f % 2 == 1:
                E(mfma(('a', aO + x * 64 + 8 * (f - 1)), ('v', t + 4), ('v', t + 4), 0))
            for i in range(4):
                E(f"v_pk_mul_f32 {v(b + 2 * i, 2)}, {v(b + 2 * i, 2)}, {v(t + 2 * x, 2)}")
            for i in range(4):
                E(f"v_cvt_pk_bf16_f32 v{b + i}, v{b + 2 * i}, v{b + 2 * i + 1}")
            E(f"buffer_store_dwordx4 {v(b, 4)}, v{vL16}, {s(SS, 4)}, s{sT} offen offset:{1024 * (f % 4)} sc1")
            if f == 3:
                E(f"s_add_u32 s{sT}, s{sT}, 4096")
            if f == 7 and x == 0:
                E(f"s_add_u32 s{sT}, s{sT}, {CTXU_STEPS * 1024 - 4096}")
    E("K2_FBX:")
    E(f"s_cmp_eq_u32 s{sDG}, 2\ns_cbranch_scc1 K2_FBRETF\ns_cmp_eq_u32 s{sDG}, 3\ns_cbranch_scc1 K2_FBRETX\ns_branch K2_FBRETD")


QACC = 48
aXN = 0
aWF = 192


def wq_dma(j):
    out = []
    for i in range(4):
        g = []
        if i == 0:
            g += [I(f"s_add_u32 m0, s{sWM}, {j * 16384}"), I(f"s_add_u32 s{sDO}, s{sWQ}, {j * 64 * 8192}")]
        g.append(VM(f"buffer_load_dwordx4 v{vQD + i}, {s(SQ, 4)}, s{sDO} offen offset:{1024 * i} lds", f"wq{j}"))
        out.append(g)
    return out


def xn_loads(j):
    out = []
    for x in range(2):
        for cs in range(4):
            g = []
            if cs == 0:
                g.append(I(f"s_add_u32 s{sDO}, s{sXN}, {x * 32768 + j * 4096}"))
            g.append(VM(f"buffer_load_dwordx4 {a(aXN + (j % 4) * 32 + (x * 4 + cs) * 4, 4)}, v{vL16}, {s(SS, 4)}, "
                        f"s{sDO} offen offset:{1024 * cs}{SC1}", f"xn{j}"))
            out.append(g)
    return out


def znorm():
    ZT = 220 - 4
    ZF = 208 - 12
    ld = [[I(x) for x in (f"s_lshr_b32 s{sGM}, s2, 3", f"s_and_b32 s{sGP}, s2, 7", f"s_lshl_b32 s{sT}, s{sGM}, 1", f"s_add_u32 s{sT}, s{sT}, s{sG}",
                          f"s_lshl_b32 s{sT}, s{sT}, 11", f"s_add_u32 s{sT}, s{sT}, {WS_STAT}", f"v_lshlrev_b32 v{ZT + 12}, 2, v0")]]
    for i in range(0, 8, 2):
        ld.append([VM(f"buffer_load_dword v{ZT + 4 + i + e}, v{ZT + 12}, {s(SS, 4)}, s{sT} offen offset:{256 * (i + e)}{SC1}", "zn") for e in range(2)])
    ld.append([I(x) for x in (f"s_mul_i32 s{sGZ}, s{sGP}, 384", f"s_lshl_b32 s{sT}, s{sGM}, 2", f"s_add_u32 s{sGZ}, s{sGZ}, s{sT}",
                              f"s_add_u32 s{sGZ}, s{sGZ}, s{sW}", f"s_lshl_b32 s{sGZ}, s{sGZ}, 10")])
    for f in range(3):
        ld.append([I(f"s_add_u32 s{sT}, s{sGZ}, {WS_Z2R + f * 128 * 1024}"),
                   VM(f"buffer_load_dwordx4 {v(ZF + 12 + 4 * f, 4)}, v{vL16}, {s(SS, 4)}, s{sT} offen{SC1}", "zn")])
    z = ZT + 4
    AB = 232
    c = [WVM("zn")]
    c += flat([f"v_add_f32 v{z}, v{z}, v{z + 1}\nv_add_f32 v{z + 2}, v{z + 2}, v{z + 3}\nv_add_f32 v{z + 4}, v{z + 4}, v{z + 5}\nv_add_f32 v{z + 6}, v{z + 6}, v{z + 7}",
               f"v_add_f32 v{z}, v{z}, v{z + 2}\nv_add_f32 v{z + 4}, v{z + 4}, v{z + 6}\nv_add_f32 v{z}, v{z}, v{z + 4}",
               f"v_mul_f32 v{z}, {fbits(1 / 688)}, v{z}\nv_mov_b32 v{z + 1}, v{z}\ns_nop 1\nv_permlane32_swap_b32 v{z}, v{z + 1}\ns_nop 1",
               f"v_fma_f32 v{z + 1}, -v{z}, v{z}, v{z + 1}\nv_max_f32 v{z + 1}, 0, v{z + 1}\nv_add_f32 v{z + 1}, {fbits(LN_EPS)}, v{z + 1}\nv_rsq_f32 v{z + 1}, v{z + 1}\ns_nop 0",
               f"v_mul_f32 v{z}, v{z}, v{z + 1}\nv_sub_f32 v{z}, 0, v{z}",
               f"s_lshl_b32 s{sT}, s{sW}, 8\ns_add_u32 s{sT}, s{sT}, {SPARE}",
               f"v_lshlrev_b32 v{z + 2}, 2, v20\nv_add_u32 v{z + 2}, s{sT}, v{z + 2}"])
    c += [LG(f"ds_write_b32 v{z + 2}, v{z + 1}", "zw"), LG(f"ds_write_b32 v{z + 2}, v{z} offset:128", "zw")]
    c += flat([f"s_lshl_b32 s{sT2}, s{sRS}, 6\ns_add_u32 s{sT}, s{sT}, s{sT2}\nv_lshlrev_b32 v{z + 3}, 5, v21\nv_add_u32 v{z + 3}, s{sT}, v{z + 3}"])
    for i in range(2):
        c += [LG(f"ds_read_b128 {v(AB + 4 * i, 4)}, v{z + 3} offset:{16 * i}", "zr"),
              LG(f"ds_read_b128 {v(AB + 8 + 4 * i, 4)}, v{z + 3} offset:{128 + 16 * i}", "zr")]
    c += flat([f"s_lshl_b32 s{sGP}, s{sGP}, 8\ns_add_u32 s{sGP}, s{sGP}, s{sGM}\ns_add_u32 s{sGP}, s{sGP}, {WS_FLAG2}\ns_nop 0"])
    c += [WLG("zr")]
    for f in range(3):
        for i in range(4):
            x_ = ZF + 12 + 4 * f + i
            c += flat([f"v_lshlrev_b32 v{z}, 16, v{x_}\nv_and_b32 v{z + 1}, 0xffff0000, v{x_}",
                       f"v_fma_f32 v{z}, v{z}, v{AB + 2 * i}, v{AB + 8 + 2 * i}\nv_fma_f32 v{z + 1}, v{z + 1}, v{AB + 2 * i + 1}, v{AB + 9 + 2 * i}",
                       f"v_cvt_pk_bf16_f32 v{x_}, v{z}, v{z + 1}"])
        if not MERGE12:
            c += [I(f"s_add_u32 s{sT}, s{sGZ}, {WS_Z2N + f * 128 * 1024}"),
                  VM(f"buffer_store_dwordx4 {v(ZF + 12 + 4 * f, 4)}, v{vL16}, {s(SS, 4)}, s{sT} offen sc1", "zs")]
    cg = [c[i:i + 4] for i in range(0, len(c), 4)]
    return ld, cg


def qproj(k):
    E = k.emit
    extra = {}

    def spread(c0, c1, groups):
        n = len(groups)
        for i, g in enumerate(groups):
            extra.setdefault(c0 + (i * (c1 - c0)) // n, []).append(g)

    def rd(c, fb):
        j, cs = c // 4, c % 4
        return [LG(f"ds_read_b64_tr_b16 {a(fb + 4 * d + 2 * sec, 2)}, v{vQR + (j // 4) * 4 + d} "
                   f"offset:{(j % 4) * 16384 + cs * 4096 + sec * 1024}", f"q{c}") for d in range(4) for sec in range(2)]

    def fbuf(c):
        return aWF + (c % 4) * 16

    def mf1(c, d, x):
        j, cs = c // 4, c % 4
        return mfma(('v', QACC + (x * 4 + d) * 16), ('a', fbuf(c) + 4 * d), ('a', aXN + (j % 4) * 32 + (x * 4 + cs) * 4),
                    0 if c == 0 else None)

    zl, zc = znorm()

    def kvpre(base, pre, so, so2, tag="kv"):
        d1, d2 = dma4(so, tag), dma4(so2, tag)
        return [[I(f"s_add_u32 m0, s{sW8}, {base}")] + [I(x) for x in pre] + [d1[0]]] + [[d] for d in d1[1:]] + \
               [[I(f"s_add_u32 m0, s{sW8}, {base + 4096}"), I("s_nop 0"), d2[0]]] + [[d] for d in d2[1:]]

    k0 = kvpre(0, [f"s_add_u32 s{sKO2}, s{sKN}, 4096"], sKN, sKO2, "k0")
    k1 = kvpre(32768, [f"s_add_u32 s{sVO}, s{sKN}, {WS_VF - WS_KF}", f"s_add_u32 s{sVO2}, s{sVO}, 4096",
                       f"s_add_u32 s{sKN}, s{sKN}, 0x4000", f"s_add_u32 s{sKO2}, s{sKN}, 4096"], sKN, sKO2)
    v0_ = kvpre(VB0, ["s_nop 0"], sVO, sVO2)
    q = []
    if MERGE12:
        order_ = ((0, wq_dma(2) + xn_loads(2) + wq_dma(3) + xn_loads(3) + wq_dma(4)), (4, xn_loads(4)), (0, wq_dma(5)), (8, xn_loads(5)),
                  (0, wq_dma(6)), (12, xn_loads(6)), (0, wq_dma(7)), (16, xn_loads(7)), (22, k0 + zl))
    else:
        order_ = ((0, wq_dma(2) + xn_loads(2) + wq_dma(3) + xn_loads(3) + wq_dma(4)), (4, xn_loads(4)), (0, wq_dma(5)), (8, xn_loads(5)),
                  (0, wq_dma(6) + zl), (12, xn_loads(6)), (0, wq_dma(7)), (16, xn_loads(7)), (6, k0), (14, k1))
    for e, grp in order_:
        q += [(e, g) for g in grp]
    RATE = 4
    c_ = 0
    n_ = 0
    for e, g in q:
        if e > c_:
            c_, n_ = e, 0
        extra.setdefault(c_, []).append(g)
        n_ += 1
        if n_ == RATE:
            c_, n_ = c_ + 1, 0
    assert c_ <= 27, c_
    valu = {}
    if not MERGE12:
        for i, g in enumerate(zc):
            valu.setdefault(19 + (i * 8) // len(zc), []).append(g)
    else:
        valu[18] = [[I(f"s_mov_b32 s{sT}, {WS_FP1}")] + poll_all_issue(sW, SS, f"s{sT}", 16, 4, 176)]

    E(WVM("wq0"), "s_barrier")
    stamp(k, 6)
    E(rd(0, fbuf(0)), rd(1, fbuf(1)))
    for c in range(28):
        j, cs = c // 4, c % 4
        n = c + 2
        if n % 4 == 0:
            lstamp(k, 19, 3 * (n // 4))
            E(WLG(f"q{n - 1}"), WVM(f"wq{n // 4}"))
            lstamp(k, 19, 3 * (n // 4) + 1)
            if MERGE12 and n == 4:
                E(WVM("zo"))
            if MERGE12 and n == 24:
                E(poll_all_check(sW, SS, f"s{sT}", 16, 4, 176, 1))
            E("s_barrier")
            if MERGE12 and n == 4:
                E(f"s_lshl_b32 s{sT}, s2, 4\ns_add_u32 s{sT}, s{sT}, {WS_FP1}", flag_set(sW, SS, sT, 176))
        E(WLG(f"q{c}"))
        if cs == 0:
            E(WVM(f"xn{j}"))
            lstamp(k, 19, 3 * j + 2)
        r_ = rd(n, fbuf(n))
        ex, va = extra.get(c, []), valu.get(c, [])
        gm_ = {}
        for i in range(8):
            gm_[i] = [r_[i]] + ([ex[i // 2]] if (i % 2 == 0 and i // 2 < len(ex)) else []) + [va[z] for z in range(len(va)) if (z * 8) // len(va) == i]
        E(place([mf1(c, d, x) for d in range(4) for x in range(2)], gm_))
    E(rd(30, fbuf(30)), rd(31, fbuf(31)))
    E(f"v_mov_b32 v{vT}, {fbits(QSCALE)}\nv_mov_b32 v{vT + 1}, {fbits(QSCALE)}")
    E(f"v_add_u32 v{vT + 2}, s{sW8}, v{vL16}\nv_add_u32 v{vT + 3}, {SPARE}, v{vT + 2}\nv_add_u32 v{vT + 2}, {VB0 + 32768}, v{vT + 2}")
    E(WVM("xn7"), WLG0, "s_barrier")

    def epi(d, x):
        out = []
        for g in range(2):
            b = QACC + (x * 4 + d) * 16 + 8 * g
            out.append([I(f"v_mul_f32 v{b + i}, v{vT}, v{b + i}") for i in range(8)])
            out.append([I(f"v_cvt_pk_bf16_f32 v{b + i}, v{b + 2 * i}, v{b + 2 * i + 1}") for i in range(4)] +
                       [LG(f"ds_write_b128 v{vT + 3 - x}, {v(b, 4)} offset:{(2 * d + g) * 1024}")])
        return out

    tiles = [(d, x) for x in range(2) for d in range(4)]
    for i, (d, x) in enumerate(tiles):
        m = [mf1(c, d, x) for c in range(28, 32)]
        kv2 = (k1 + v0_)[2 * i:2 * i + 2] if MERGE12 else [v0_[i], []]
        if i == 0:
            E(m[0], kv2[0], m[1], m[2], kv2[1], m[3])
        else:
            e = epi(*tiles[i - 1])
            E(m[0], kv2[0], m[1], e[0], e[1], m[2], kv2[1], e[2], m[3], e[3])
    stamp(k, 7)
    E("s_nop 15")
    E(epi(*tiles[-1]))
    E(WVM("k0"), WVM("zs"), WLG0, "s_barrier")
    if not MERGE12:
        E(flag_set(sW, SS, sGP, ZT))
    k.zc = zc
    E(f"s_lshl_b32 s{sT}, s{sRS}, 13\nv_add_u32 v{vT + 4}, s{sT}, v{vL16}")
    E(f"v_add_u32 v{vT + 5}, {SPARE}, v{vT + 4}\nv_add_u32 v{vT + 4}, {VB0 + 32768}, v{vT + 4}")
    E(kreads(vKc, 0))
    for x in range(2):
        for f in range(8):
            E(LG(f"ds_read_b128 {a(aQ + (x * 8 + f) * 4, 4)}, v{vT + 3 - x} offset:{f * 1024}"))
    for x in range(2):
        for f in range(8):
            E(LG(f"ds_read_b128 {v(QBS + (x * 8 + f) * 4, 4)}, v{vT + 5 - x} offset:{f * 1024}"))


ZRING = (('v', 144), ('v', 192), ('a', 128), ('a', 176))
vWS = 48
vPD = 32
vPR = 40
NGS = 5


def g_slot(st):
    return (st % 3) * 32768


def zreg(st, i):
    kind, base = ZRING[st % 4]
    return (kind, base + i * 4)


def sprinkle(items, groups):
    items = flat(items)
    n, m = len(items), len(groups)
    out, gi = [], 0
    for i, it in enumerate(items):
        while gi < m and gi * n <= i * m:
            out.append(groups[gi])
            gi += 1
        out.append(it)
    return flat(out + groups[gi:])


def g_dma(st):
    out = []
    for i in range(8):
        g = []
        if i % 4 == 0:
            g += [I(f"s_add_u32 m0, s{sW8}, {g_slot(st) + (i // 4) * 4096}"), I(f"s_add_u32 s{sDO}, s{sGP}, {st * 128}")]
        g.append(VM(f"buffer_load_dwordx4 v{vPD + i}, {s(SP, 4)}, s{sDO} offen offset:{1024 * (i % 4)} lds", f"g{st}"))
        out.append(g)
    return out


def g_zl(st):
    out = []
    for f in range(3):
        for ks in range(4):
            g = []
            if ks == 0:
                g.append(I(f"s_add_u32 s{sGM}, s{sGZ}, {f * 128 * 1024 + st * 4096}"))
            g.append(VM(f"buffer_load_dwordx4 {R(zreg(st, f * 4 + ks), 4)}, v{vL16}, {s(SS, 4)}, "
                        f"s{sGM} offen offset:{1024 * ks} sc1", f"g{st}"))
            out.append(g)
    return out


def g_setup():
    o = [f"v_lshrrev_b32 v{ZT + 32}, 4, v0\nv_lshrrev_b32 v{ZT + 33}, 3, v0\nv_lshlrev_b32 v{ZT + 33}, 12, v{ZT + 33}\nv_and_b32 v{ZT + 34}, 7, v0\nv_xor_b32 v{ZT + 34}, v{ZT + 34}, v{ZT + 32}",
         f"v_lshl_add_u32 v{ZT + 35}, v{ZT + 34}, 4, v{ZT + 33}\nv_xor_b32 v{ZT + 34}, 4, v{ZT + 34}\nv_lshl_add_u32 v{ZT + 36}, v{ZT + 34}, 4, v{ZT + 33}"]
    for i in range(8):
        o.append(f"v_add_u32 v{vPD + i}, {i * 8 * 4096 - (i % 4) * 1024}, v{ZT + 35 + (i % 2)}")
    o.append(f"v_lshrrev_b32 v{ZT + 32}, 5, v0\nv_bfe_u32 v{ZT + 33}, v0, 1, 3\nv_xor_b32 v{ZT + 33}, v{ZT + 33}, v{ZT + 32}")
    o.append(f"v_and_b32 v{ZT + 34}, 31, v0\nv_lshlrev_b32 v{ZT + 34}, 7, v{ZT + 34}\nv_add_u32 v{ZT + 34}, s{sW8}, v{ZT + 34}")
    for ks in range(4):
        o.append(f"v_xor_b32 v{ZT + 35}, {2 * ks}, v{ZT + 33}\nv_lshl_add_u32 v{vPR + ks}, v{ZT + 35}, 4, v{ZT + 34}\nv_add_u32 v{vPR + 4 + ks}, 0x10000, v{vPR + ks}")
    o.append(f"s_lshl_b32 s{sGP}, s{sHD}, 18\ns_lshl_b32 s{sDO}, s{sW}, 10\ns_add_u32 s{sGP}, s{sGP}, s{sDO}")
    o.append(f"s_mul_i32 s{sGZ}, s{sPI}, 384\ns_lshl_b32 s{sGM}, s{sW}, 5\ns_add_u32 s{sGZ}, s{sGZ}, s{sGM}")
    o.append(f"s_lshl_b32 s{sGZ}, s{sGZ}, 10\ns_add_u32 s{sGZ}, s{sGZ}, {WS_Z2N}")
    return o


def merge(k, keep):
    E = k.emit
    send = 1 - keep
    t = vT
    wr = [LG(f"ds_write_b128 v{t + 4 + i // 8}, {a(aO + send * 64 + 4 * i, 4)} offset:{(i % 8) * 1024}") for i in range(16)]
    E(LG(f"ds_read_b64 {v(t + 8, 2)}, v{t + 4}", "mb"))
    d0, d1 = g_dma(0), g_dma(1)
    E(weave(pv(send, 1), d0, 0, 8))
    E(WLG("mb"))
    fac = [f"v_min_f32 v{t}, v{vNM[keep]}, v{t + 8}", f"v_sub_f32 v{t + 2}, v{t}, v{vNM[keep]}", f"v_sub_f32 v{t + 8}, v{t}, v{t + 8}",
           f"v_exp_f32 v{t + 2}, v{t + 2}", f"v_exp_f32 v{t + 8}, v{t + 8}", "s_nop 0",
           f"v_mul_f32 v{t}, v{vLs[keep][0]}, v{t + 2}", f"v_fmac_f32 v{t}, v{t + 9}, v{t + 8}", f"v_rcp_f32 v{t}, v{t}", "s_nop 0",
           f"v_mul_f32 v{t + 2}, v{t + 2}, v{t}", f"v_mul_f32 v{t + 8}, v{t + 8}, v{t}", f"v_mov_b32 v{t + 3}, v{t + 2}", f"v_mov_b32 v{t + 9}, v{t + 8}"]
    m = pv(keep, 1)
    E(m[0], d1[0], fac[:6], m[1], d1[1], fac[6:], weave(m[2:], interleave2(wr, d1[2:]), 0, 6))
    E(WLG0, "s_barrier")
    RX = S[0]
    for i in range(16):
        E(LG(f"ds_read_b128 {v(RX + 4 * i, 4)}, v{t + 6 + i // 8} offset:{(i % 8) * 1024}", f"rx{i}"))
    body = []
    for f in range(8):
        b = RX + 8 * f
        body += [I(f"v_accvgpr_read_b32 v{PB + i}, a{aO + keep * 64 + 8 * f + i}") for i in range(8)]
        body += [WLG(f"rx{2 * f + 1}")]
        body += [I(f"v_pk_mul_f32 {v(b + 2 * i, 2)}, {v(b + 2 * i, 2)}, {v(t + 8, 2)}") for i in range(4)]
        body += [I(f"v_pk_fma_f32 {v(b + 2 * i, 2)}, {v(PB + 2 * i, 2)}, {v(t + 2, 2)}, {v(b + 2 * i, 2)}") for i in range(4)]
        body += [I(f"v_cvt_pk_bf16_f32 v{PB + 8 + 4 * (f % 4) + i}, v{b + 2 * i}, v{b + 2 * i + 1}") for i in range(4)]
        body += [VM(f"buffer_store_dwordx4 {v(PB + 8 + 4 * (f % 4), 4)}, v{vL16}, {s(SS, 4)}, s{sT if f < 4 else sT2} offen offset:{1024 * (f % 4)} sc1", "cs")]
    E(sprinkle(body, g_zl(1)))


def interleave2(x, y):
    out = []
    n = max(len(x), len(y))
    for i in range(n):
        out += x[(i * len(x)) // n:((i + 1) * len(x)) // n] + y[(i * len(y)) // n:((i + 1) * len(y)) // n]
    return out


def gphase(k):
    E = k.emit

    def reads(st):
        o = g_slot(st)
        sg, off = (0, o) if o < 65536 else (1, o - 65536)
        out = []
        for ks in range(4):
            for ts in range(2):
                if off + ts * 4096 < 65536:
                    out.append(LG(f"ds_read_b128 {v(vWS + (st % 2) * 32 + (ts * 4 + ks) * 4, 4)}, v{vPR + sg * 4 + ks} "
                                  f"offset:{off + ts * 4096}", f"p{st}"))
                else:
                    out.append(LG(f"ds_read_b128 {v(vWS + (st % 2) * 32 + (ts * 4 + ks) * 4, 4)}, v{ZT + 40 + ks} "
                                  f"offset:{off - 65536 + ts * 4096}", f"p{st}"))
        return out

    def mf(st):
        return [mfma(('a', (ts * 3 + f) * 16), zreg(st, f * 4 + ks),
                     ('v', vWS + (st % 2) * 32 + (ts * 4 + ks) * 4), 0 if (st == 0 and ks == 0) else None)
                for ks in range(4) for f in range(3) for ts in range(2)]

    for ks in range(4):
        E(f"v_add_u32 v{ZT + 40 + ks}, 0x20000, v{vPR + ks}")
    E("s_barrier")
    E(WVM("g0"))
    stamp(k, 10)
    E(reads(0))
    sched = {st: g_dma(st + 2) + g_zl(st + 2) for st in range(6)}
    for st in range(8):
        E(WLG(f"p{st}"))
        ld = sched.get(st, [])
        m = mf(st)
        n1 = (len(ld) * 14) // 24
        first = weave(m[:14], ld[:n1], 0, 14)
        second = ([WVM(f"g{st + 1}")] + weave(m[14:], interleave2(reads(st + 1), ld[n1:]), 0, 9)) if st + 1 < 8 else m[14:]
        if st == 6:
            fin = flat([f"s_lshl_b32 s{sT}, s{sHD}, 1\ns_add_u32 s{sT}, s{sT}, s{sG}",
                        f"s_mul_i32 s{sT2}, s{sPI}, 6\ns_mul_i32 s{sGP}, s{sRS}, 3\ns_add_u32 s{sT2}, s{sT2}, s{sGP}",
                        f"s_mul_i32 s{sGP}, s{sT}, 48\ns_add_u32 s{sGP}, s{sGP}, s{sT2}\ns_lshl_b32 s{sGP}, s{sGP}, 10\ns_add_u32 s{sGP}, s{sGP}, {WS_Z1}",
                        f"s_mul_i32 s{sGZ}, s{sT}, {CTXU_STEPS}\ns_add_u32 s{sGZ}, s{sGZ}, s{sT2}\ns_add_u32 s{sGZ}, s{sGZ}, 256",
                        f"s_lshl_b32 s{sGZ}, s{sGZ}, 10\ns_add_u32 s{sGZ}, s{sGZ}, {WS_CTXU}",
                        f"s_lshl_b32 s{sT}, s{sT}, 6\nv_and_b32 v21, 31, v0\nv_lshlrev_b32 v21, 1, v21"])
            fin += [VM(f"buffer_load_dwordx4 {v(4 + 4 * i, 4)}, v{vL16}, {s(SS, 4)}, s{sGP} offen offset:{1024 * i}{SC1}", "fin") for i in range(3)]
            fin += [VM(f"buffer_load_ushort v16, v21, {s(SB, 4)}, s{sT} offen", "fin")]
            fin += flat([f"s_mov_b32 s{SD}, s100\ns_mov_b32 s{SD + 1}, s101\ns_mov_b32 s{SD + 2}, {688 * 1024:#x}\ns_lshl_b32 s{sPF}, s2, 2\ns_add_u32 s{sPF}, s{sPF}, s{sW}\ns_lshl_b32 s{sPF}, s{sPF}, 10"])
            fin += [VM(f"buffer_load_dword v{ZT + 32}, v{vL16}, {s(SD, 4)}, s{sPF} offen", "pf")]
            for d in range(4):
                fin += flat([f"s_sub_u32 s{sT}, {d + 3}, s{sW}\ns_and_b32 s{sT}, s{sT}, 3\ns_lshl_b32 s{sT}, s{sT}, 15\ns_add_u32 s{sT}, s{sT}, s{sW8}\nv_add_u32 v{28 + d}, s{sT}, v{vL16}"])
            for j in range(1, 4):
                fin += flat([f"s_add_u32 s{sT}, s{sW}, {j}\ns_and_b32 s{sT}, s{sT}, 3\ns_lshl_b32 s{sT}, s{sT}, 13\ns_add_u32 s{sT}, s{sT}, {(3 - j) * 32768}\nv_add_u32 v{21 + j}, s{sT}, v{vL16}"])
            first = weave(m[:14], [fin[i:i + 3] for i in range(0, len(fin), 3)], 0, 14)
        if MERGE23 and st == 2:
            E(WVM("cs"), "s_barrier")
            E(f"s_lshl_b32 s{sT}, s{sPI}, 5\ns_add_u32 s{sT}, s{sT}, s{sHD}\ns_lshl_b32 s{sT}, s{sT}, 4\ns_add_u32 s{sT}, s{sT}, {WS_FCTX}")
            E(flag_set(sW, SS, sT, 17))
        if MERGE23 and st == 4:
            E(f"s_bfe_u32 s{sT}, s2, 0x10002\ns_lshl_b32 s{sT}, s{sT}, 3\ns_bfe_u32 s{sT2}, s2, 0x30003\ns_add_u32 s{sT}, s{sT}, s{sT2}\ns_sub_u32 s{sT2}, 15, s{sT}\ns_min_u32 s{sT}, s{sT}, s{sT2}")
            E(f"s_lshl_b32 s{sT}, s{sT}, 9\ns_and_b32 s{sT2}, s2, 3\ns_lshl_b32 s{sT2}, s{sT2}, 7\ns_add_u32 s{sT}, s{sT}, s{sT2}\ns_add_u32 s{sFL}, s{sT}, {WS_FCTX}")
            E(wave0(sW, [I("v_and_b32 v17, 7, v0"), I("v_lshlrev_b32 v17, 4, v17"),
                         VMG(f"buffer_load_ubyte v18, v17, {s(SS, 4)}, s{sFL} offen sc0 sc1", "poll")]))
        if MERGE23 and st == 6:
            import k3
            p3 = fin + flat([f"s_lshl_b32 s{sT}, s{sHD}, 3\ns_add_u32 s{sT}, s{sT}, s{sPI}\ns_lshl_b32 s{sT}, s{sT}, 4\ns_add_u32 s50, s{sT}, {WS_FU}\ns_mov_b32 s53, s{sPI}"]) + k3.pre()
            first = weave(m[:14], [p3[i:i + 5] for i in range(0, len(p3), 5)], 0, 14)
            first += flag_poll_check(sW, SS, sFL, 17) + k3.pre2() + [I("s_barrier")]
            second = [WVM("g7")] + weave(m[14:], interleave2(reads(7), k3.dma(0)[:5]), 0, 9)
        if MERGE23 and st == 7:
            first = weave(m[:14], k3.dma(0)[5:] + k3.dma(1)[:4], 0, 14)
            second = weave(m[14:], k3.dma(1)[4:], 0, 9)
        lstamp(k, 19, 32 + 3 * st)
        E(first)
        lstamp(k, 19, 33 + 3 * st)
        E(second[:1])
        lstamp(k, 19, 34 + 3 * st)
        E(second[1:])
    stamp(k, 11)
    E("s_nop 7")
    for d in range(4):
        E(f"s_cmp_eq_u32 s{sW}, {d}\ns_cbranch_scc1 K2_GO{d}")
        for i in range(3):
            fr = 3 * d + i
            for q in range(2):
                E(f"ds_write_b128 v{28 + d}, {a(fr * 8 + 4 * q, 4)} offset:{(i * 2 + q) * 1024}")
        E(f"s_branch K2_GN{d}\nK2_GO{d}:")
        for i in range(3):
            for r in range(8):
                E(f"v_accvgpr_read_b32 v{48 + i * 32 + r}, a{(3 * d + i) * 8 + r}")
        E(f"K2_GN{d}:")
    if MERGE23:
        pass
    E(WLG0, "s_barrier")
    for i in range(3):
        for j in range(1, 4):
            for q in range(2):
                E(LG(f"ds_read_b128 {v(48 + i * 32 + j * 8 + q * 4, 4)}, v{21 + j} offset:{(i * 2 + q) * 1024}", f"x{i}"))
    E(WVM("fin"), "v_lshlrev_b32 v16, 16, v16")
    for i in range(3):
        E(WLG(f"x{i}"))
        b = 48 + i * 32
        for r in range(8):
            E(f"v_add_f32 v{b + r}, v{b + r}, v{b + 8 + r}\nv_add_f32 v{b + 16 + r}, v{b + 16 + r}, v{b + 24 + r}")
        for r in range(8):
            E(f"v_add_f32 v{b + r}, v{b + r}, v16")
        for r in range(8):
            E(f"v_add_f32 v{b + r}, v{b + r}, v{b + 16 + r}")
        for r in range(4):
            z = 4 + 4 * i + r
            E(f"v_lshlrev_b32 v26, 16, v{z}\nv_and_b32 v27, 0xffff0000, v{z}")
            E(f"v_mul_f32 v{b + 2 * r}, v{b + 2 * r}, v26\nv_mul_f32 v{b + 2 * r + 1}, v{b + 2 * r + 1}, v27")
        for r in range(4):
            E(f"v_cvt_pk_bf16_f32 v{b + r}, v{b + 2 * r}, v{b + 2 * r + 1}")
        E(VM(f"buffer_store_dwordx4 {v(b, 4)}, v{vL16}, {s(SS, 4)}, s{sGZ} offen offset:{1024 * i} sc1", "us"))


def build(k=None):
    merged = k is not None
    if not merged:
        k = Kern("k2_kernel")
    E = k.emit
    if not merged:
        E("s_cmp_ge_u32 s2, 256\ns_cbranch_scc1 K2_END")
        code_prefetch(k, "L_CODE_END" if MERGE23 else "k3_kernel", 0, 248)
    stamp_init(k)
    stamp(k, 0)
    E(f"s_load_dwordx2 s[64:65], s[0:1], {KA_WQ}")
    E(f"s_load_dwordx4 s[72:75], s[0:1], {KA_DBG}")
    E(f"s_load_dwordx4 s[68:71], s[0:1], {KA_WSP}")
    if not merged:
        E("v_lshrrev_b32 v1, 6, v0\nv_and_b32 v0, 63, v0")
    E(f"s_and_b32 s{sHD}, s2, 7\ns_lshl_b32 s{sHD}, s{sHD}, 2\ns_lshr_b32 s{sT}, s2, 3\ns_lshr_b32 s{sPI}, s{sT}, 2")
    if not merged:
        E(f"v_readfirstlane_b32 s{sW}, v1")
    E(f"s_and_b32 s{sT}, s{sT}, 3\ns_add_u32 s{sHD}, s{sHD}, s{sT}")
    E(f"s_and_b32 s{sRS}, s{sW}, 1\ns_lshr_b32 s{sG}, s{sW}, 1\ns_lshl_b32 s{sW8}, s{sW}, 13")
    E(f"v_lshlrev_b32 v{vL16}, 4, v0")
    E("v_and_b32 v20, 31, v0\nv_lshrrev_b32 v21, 5, v0\nv_lshrrev_b32 v22, 4, v0")
    E("v_bfe_u32 v23, v0, 2, 2\nv_and_b32 v24, 3, v0\nv_bfe_u32 v25, v0, 4, 1")
    E("v_xor_b32 v26, v23, v22\nv_lshlrev_b32 v27, 13, v22\nv_lshl_add_u32 v27, v26, 6, v27\nv_lshl_add_u32 v27, v24, 4, v27")
    for i in range(4):
        E(f"v_add_u32 v{vQD + i}, {i * (32768 - 1024)}, v27")
    E(f"s_sub_u32 s{sT}, 15, s{sPI}\ns_cmp_eq_u32 s{sG}, 0\ns_cselect_b32 s{sT}, s{sT}, s{sPI}")
    E(f"s_lshl_b32 s{sTD}, s{sT}, 1\ns_add_u32 s{sTD}, s{sTD}, s{sRS}\ns_lshl_b32 s{sXN}, s{sTD}, 16\ns_add_u32 s{sXN}, s{sXN}, {WS_XN}")
    E(f"s_lshl_b32 s{sWQ}, s{sW}, 17\ns_lshl_b32 s{sT}, s{sHD}, 8\ns_add_u32 s{sWQ}, s{sWQ}, s{sT}\ns_lshl_b32 s{sWM}, s{sW}, 12")
    E("s_waitcnt lgkmcnt(0)")
    E(srd(SQ, 64, 512 * 8192), srd(SS, 74, WS_SIZE))
    if not merged:
        for j in range(2):
            E(wq_dma(j), xn_loads(j))
    E(srd(SP, 68, 2048 * 4096), srd(SB, 70, 4096), srd(SD, 68, 2048 * 4096))
    E("v_lshl_add_u32 v26, v21, 3, v23\nv_lshlrev_b32 v26, 8, v26\nv_lshl_add_u32 v26, v25, 5, v26\nv_lshl_add_u32 v26, v24, 3, v26")
    for d in range(4):
        E(f"v_xor_b32 v27, {d}, v23\nv_lshl_add_u32 v{vQR + d}, v27, 6, v26\nv_add_u32 v{vQR + 4 + d}, 0x10000, v{vQR + d}")
    E(f"v_mov_b32 v{vKc}, v{vL16}\nv_add_u32 v{vKn}, 32768, v{vKc}\nv_add_u32 v{vVc}, {VB0}, v{vKc}\nv_mov_b32 v{vVp}, v{vVc}")
    E(f"v_lshlrev_b32 v26, 2, v21\nv_sub_u32 v{vD0}, v20, v26\nv_mov_b32 v{vNEG}, {fbits(NEG)}")
    E(f"s_lshl_b32 s{sKN}, s{sHD}, 19\ns_lshl_b32 s{sT}, s{sRS}, 13\ns_add_u32 s{sKN}, s{sKN}, s{sT}\ns_add_u32 s{sKN}, s{sKN}, {WS_KF}")
    E(f"s_lshl_b32 s{sT}, s{sPI}, 1\ns_add_u32 s{sT}, s{sT}, 2\ns_sub_u32 s{sT2}, 18, s{sT}\ns_lshl_b32 s{sT2}, s{sT2}, 14")
    E(f"s_sub_u32 s{sT2}, s{sT2}, 0x20000000\ns_sub_u32 s{sSW2}, s{sT}, 2\ns_lshl_b32 s{sU}, s{sG}, 29\ns_add_u32 s{sKN}, s{sKN}, s{sU}")
    E(f"s_cmp_eq_u32 s{sG}, 0\ns_cselect_b32 s{sSW}, 8, s{sT}\ns_cselect_b32 s{sJUMP}, 0x20000000, s{sT2}\ns_cselect_b32 s{sSW2}, 15, s{sSW2}")
    E(f"s_lshl_b32 s{sFL}, s{sPI}, 8\ns_add_u32 s{sFL}, s{sFL}, {WS_FLAG2}\ns_lshl_b32 s{sPF}, s2, 2\ns_add_u32 s{sPF}, s{sPF}, s{sW}\ns_lshl_b32 s{sPF}, s{sPF}, 10\ns_mov_b32 s30, 0x100000")
    E(f"s_load_dwordx2 s[28:29], s[0:1], {KA_WO}\ns_load_dwordx2 s[100:101], s[0:1], {KA_WOUT}\ns_waitcnt lgkmcnt(0)")
    if "nowsp" in EXP:
        E(f"s_mov_b32 s{sPF}, 0x1000000")
    if merged:
        import k1
        NE = int(os.environ.get("NE", "1"))
        for j in range(NE):
            E(wq_dma(j), xn_loads(j))
        E(f"s_mov_b32 s98, 0x20000000\ns_cmp_eq_u32 s{sG}, 1\ns_cbranch_scc1 K2_ZE2")
        st0 = (list(k.vm), list(k.lg))
        E(k1.z_epilogue(False, SS, vL16, 20, 21, sRS, 98304), "s_branch K2_ZE")
        k.set_state(*st0)
        E("K2_ZE2:")
        E(k1.z_epilogue(True, SS, vL16, 20, 21, sRS, 98304))
        E("K2_ZE:")
        for j in range(NE, 2):
            E(wq_dma(j), xn_loads(j))
    stamp(k, 5)
    rstamp(k, 19, 24)
    qproj(k)
    if MERGE12:
        E(WLG0, "s_barrier")
        E("v_and_b32 v20, 31, v0\nv_lshrrev_b32 v21, 5, v0", k.zc)
    E(VM(f"buffer_load_dword v{ZT + 40}, v{vL16}, {s(SD, 4)}, s{sPF} offen", "pf"), f"s_add_u32 s{sPF}, s{sPF}, s30")
    gm, wrapped, pin = schedule_loop()
    gmd, wrapped_d, pin_d = schedule_loop('D', pin)
    gmf, wrapped_f, pin_f = schedule_loop('F', pin)
    gmx, wrapped_x, pin_x = schedule_loop('X', pin)
    assert pin == pin_x
    assert pin == pin_d and pin == pin_f
    wtxt = [it[1] for it in flat(wrapped)]
    for r in range(16):
        E(f"v_mov_b32 v{P(1, 0) + r}, 0\nv_mov_b32 v{NEGM[0] + r}, 0\nv_mov_b32 v{NEGM[1] + r}, 0")
        late = f"v_exp_f32 v{S[1] + r}, v{S[1] + r}" in wtxt
        E(f"v_mov_b32 v{S[1] + r}, {'v%d' % vNEG if late else '0'}")
    assert not any(f"v{S[0] + r}," in w or w.endswith(f"v{S[0] + r}") for w in wtxt for r in range(16))
    for r in (8, 9, 10, 11, 12, 13):
        E(f"v_mov_b32 v{r}, 0")
    E(f"v_mov_b32 v{vT}, 0x7f800000")
    for r0 in range(0, 16, 4):
        for r in range(r0, r0 + 4):
            E(f"v_cmp_gt_i32 s[{64 + 2 * (r % 4)}:{65 + 2 * (r % 4)}], {8 * (r // 4) + r % 4}, v{vD0}")
        for r in range(r0, r0 + 4):
            E(f"v_cndmask_b32 v{MSK + r}, v{vT}, v{vNEG}, s[{64 + 2 * (r % 4)}:{65 + 2 * (r % 4)}]")
    E(f"s_mov_b32 s{sEV}, 0\ns_mov_b32 s{sDG}, 0\ns_mov_b32 s99, 0")
    for x in range(2):
        E(f"s_mov_b32 s{sTH[x]}, {NINF}\ns_mov_b32 s{sLO[x]}, {NINF}")
    for i in range(8):
        E(mfma(('a', aO + 16 * i), ('v', P(1, 0)), ('v', P(1, 0)), 0))
    E(f"s_mov_b32 s{sU}, 0\ns_mov_b32 s{sTL}, 0\ns_mov_b32 s{sMK}, s{sW8}\ns_add_u32 s{sMV}, s{sW8}, {VB0 + 32768}")
    E(WLG0)
    stamp(k, 1)
    rstamp(k, 19, 26)
    dstamp(k, 4)
    def body(gm_, sf):
        diag = sf == "D"
        k.set_state(["kv"] * 16 + ["pf"], ["k"] * 8)
        main = qk(0) + qk(1) + pv(0, 1) + pv(1, 1) + qk(0) + qk(1) + pv(0, 0) + pv(1, 0)
        skip = set(range(32, 40)) if diag else (set(range(0, 16)) | set(range(32, 64))) if sf == 'X' else set()
        main = [I("s_nop 0") if i in skip else m for i, m in enumerate(main)]
        gm_[-1] = [I(f"K2_SWRET{sf}:"), WLG("k")]
        if sf:
            gm_[31] = gm_[31] + [I(f"s_cmp_eq_u32 s{sU}, s99"), I("s_cbranch_scc1 K2_FINB"), I(f"K2_FBRET{sf}:")]
        gm_[63] = gm_[63] + [I(f"s_cmp_lt_u32 s{sU}, 17"), I("s_cbranch_scc1 K2_LOOP")]
        bd = place(main, gm_)

        def drop(it):
            tx = it[1] if len(it) > 1 and isinstance(it[1], str) else ""
            if "nodma" in EXP and ("buffer_load" in tx): return True
            if "nobar" in EXP and tx == "s_barrier": return True
            if "nowait" in EXP and ("s_waitcnt" in tx or it[0] in ('wlg',)): return True
            if "noread" in EXP and tx.startswith("ds_read"): return True
            if "nobr" in EXP and ("K2_RARE" in tx or "K2_FINB" in tx): return True
            return False
        bd = [it for it in bd if not drop(it)]
        bd = [it for i, it in enumerate(bd) if not (it == I("s_nop 0") and i and bd[i - 1] == I("s_nop 0"))]
        E(bd)

    E(".p2align 6")
    for _ in range(int(os.environ.get("PAD", "0"))):
        E("s_nop 0")
    E("K2_LOOP:")
    if PROF and os.environ.get("PROF2"):
        E("s_memtime s[78:79]", "s_waitcnt lgkmcnt(0)", f"s_mov_b32 m0, s{sU}", "s_nop 0", "v_writelane_b32 v255, s78, m0")
    E(f"s_cmp_eq_u32 s{sU}, s{sEV}\ns_cbranch_scc1 K2_EVENT")
    body(gm, '')
    E("K2_TAIL:")
    stamp(k, 8)
    rstamp(k, 19, 28)
    dstamp(k, 5)
    if PROF:
        E(f"s_lshl_b32 s78, s2, 2\ns_add_u32 s78, s78, s{sW}\ns_lshl_b32 s78, s78, 8\ns_add_u32 s78, s78, {WS_PROF + 0x100000}\nv_lshlrev_b32 v254, 2, v0")
        E(f"buffer_store_dword v255, v254, {s(SS, 4)}, s78 offen")
    E(vreads(vVp, 1))
    gs = g_setup()
    E(gs[-2:])
    t = vT
    tl = flat(wrapped)
    for x in range(2):
        tl += flat([f"v_add_f32 v{vLs[x][0]}, v{vLs[x][0]}, v{vLs[x][1]}"])
    for x in range(2):
        tl += flat([f"v_mov_b32 v{vLs[x][1]}, v{vLs[x][0]}"])
    tl += flat([f"v_add_u32 v{t + 4}, s{sW8}, v{vL16}\nv_and_b32 v{t + 5}, 0x18000, v{vVp}"])
    for x in range(2):
        tl += flat([f"v_permlane32_swap_b32 v{vLs[x][0]}, v{vLs[x][1]}"])
    tl += flat([f"v_add_u32 v{t + 5}, v{t + 5}, v{t + 4}\nv_add_u32 v{t + 4}, {SPARE}, v{t + 4}"])
    for x in range(2):
        tl += flat([f"v_add_f32 v{vLs[x][0]}, v{vLs[x][0]}, v{vLs[x][1]}"])
    tl += [[I(f"s_cmp_eq_u32 s{sG}, 0"), I("s_cselect_b64 vcc, -1, 0")]]
    tl += flat([f"v_xor_b32 v{t + 6}, 0x4000, v{t + 4}\nv_xor_b32 v{t + 7}, 0x4000, v{t + 5}",
                f"v_cndmask_b32 v{t + 8}, v{vNM[0]}, v{vNM[1]}, vcc\nv_cndmask_b32 v{t + 9}, v{vLs[0][0]}, v{vLs[1][0]}, vcc"])
    tl += [LG(f"ds_write_b64 v{t + 6}, {v(t + 8, 2)}")]
    tl += flat(gs[:-2])
    tl += flat([f"s_sub_u32 s{sT}, 15, s{sPI}\ns_lshl_b32 s{sT}, s{sT}, 2\ns_lshl_b32 s{sT2}, s{sRS}, 1\ns_add_u32 s{sT}, s{sT}, s{sT2}\ns_add_u32 s{sT}, s{sT}, s{sG}",
                f"s_mul_i32 s{sT}, s{sT}, {CTXU_STEPS}\ns_lshl_b32 s{sT2}, s{sHD}, 3\ns_add_u32 s{sT}, s{sT}, s{sT2}",
                f"s_lshl_b32 s{sT}, s{sT}, 10\ns_add_u32 s{sT}, s{sT}, {WS_CTXU}\ns_add_u32 s{sT2}, s{sT}, 4096"])
    zz = g_zl(0)
    out_, gi = [], 0
    for i, it in enumerate(tl):
        while gi < len(zz) and gi * len(tl) <= i * len(zz):
            out_.append(zz[gi])
            gi += 1
        out_.append(it)
    E(out_, zz[gi:])
    E(WVM("pf"), WLG0, "s_barrier")
    E(f"s_cmp_eq_u32 s{sG}, 1\ns_cbranch_scc1 K2_MERGE1")
    st = (list(k.vm), list(k.lg))
    merge(k, 0)
    E("s_branch K2_G")
    k.set_state(*st)
    E("K2_MERGE1:")
    merge(k, 1)
    E("K2_G:")
    stamp(k, 3)
    gphase(k)
    if PROF and not MERGE23:
        E(WVM0)
    stamp(k, 4)
    rstamp(k, 19, 30)
    dstamp(k, 6)
    lstamp_store(k, 1, 19, 20, SS, sW)
    if PROF:
        E(f"s_mov_b32 s95, s53")
    stamp_store(k, 1, SS, sW, 208)
    if MERGE23:
        import k3
        E("s_mov_b64 exec, -1")
        k3.build(k)
    E("K2_END:")
    E("s_endpgm")
    for x in range(2):
        for buf in range(2):
            rare_path(k, x, buf)
    hooks(k)
    body(gmd, 'D')
    E("s_branch K2_TAIL")
    body(gmf, 'F')
    E("s_branch K2_TAIL")
    body(gmx, 'X')
    E("s_branch K2_TAIL")
    if merged:
        return
    return k.text(512, 256)
```

```python
from asmlib import *
from common import *

import os
KVST = os.environ.get("KVST", "sc1")
NOPF = os.environ.get("NOPF", "0") == "1"
EXP = os.environ.get("EXP", "")
LT = os.environ.get("LT", "0") == "1"
SX, SC, SW, SI, SS, SD, SPF = 8, 12, 16, 20, 24, 28, 72
sW, sRB, sCB, sNB, sMB, sRS, sCH = 32, 33, 34, 35, 36, 37, 38
sT, sT2, sCK, sWK, sW8, sW2, sKO, sWI, sXN, sCNT, sONES, sWB, sDO = 56, 57, 58, 59, 60, 61, 62, 63, 64, 65, 66, 67, 68
sXO = 39

vCD = 1
vUD = 9
vCR = 17
vBR = 25
vL16 = 31
vF = 32
vT = 40
STG = 64
vQD, vQR, vPF = 64, 68, 76
WF = 96
ACC = (192, 128)
SLOT = 49152
UREG = (3, 4, 0, 1)


def A(ks, cs):
    return ('a', (ks * 32 + cs) * 4)


def seg_off(byte):
    return byte // 65536, byte % 65536


def a_dma(j):
    out = []
    base = (j % 3) * SLOT
    for i in range(8):
        g = []
        if i % 4 == 0:
            g += [I(f"s_add_u32 m0, s{sW8}, {base + (i // 4) * 4096}"), I(f"s_add_u32 s{sDO}, s{sCK}, {j * 128}")]
        g.append(VM(f"buffer_load_dwordx4 v{vCD + i}, {s(SC, 4)}, s{sDO} offen offset:{1024 * (i % 4)} lds", f"p{j}"))
        out.append(g)
    return out


def b_dma(j):
    out = []
    for i in range(4):
        g = []
        if i == 0:
            g += [I(f"s_add_u32 m0, s{sW2}, {(j % 3) * SLOT + 32768}"), I(f"s_add_u32 s{sDO}, s{sWB}, {j * 64 * 8192}")]
        g.append(VM(f"buffer_load_dwordx4 v{vQD + i}, {s(SW, 4)}, s{sDO} offen offset:{1024 * i} lds", f"p{j}"))
        out.append(g)
    return out


def unit_dma(u):
    out = []
    base = UREG[u] * 32768
    off = (u % 2) * 256 * 8192 + (2 + u // 2) * 128
    for i in range(8):
        g = []
        if i % 4 == 0:
            g += [I(f"s_add_u32 m0, s{sW8}, {base + (i // 4) * 4096}"), I(f"s_add_u32 s{sDO}, s{sWK}, {off}")]
        g.append(VM(f"buffer_load_dwordx4 v{vUD + i}, {s(SW, 4)}, s{sDO} offen offset:{1024 * (i % 4)} lds", f"u{u}"))
        out.append(g)
    return out


def zslot(z):
    return (z + 2) % 5


def z_dma(z, xn_only=False, w_only=False):
    out = []
    base = zslot(z) * 32768
    for p in range(2):
        if not xn_only:
            for i in range(3):
                g = []
                if i == 0:
                    g += [I(f"s_add_u32 m0, s{sW8}, {base + p * 4096}"), I(f"s_add_u32 s{sDO}, s{sWI}, {z * 64 * 2752 + p * 1376}")]
                g.append(VM(f"buffer_load_dwordx4 v{vCD + i}, {s(SI, 4)}, s{sDO} offen offset:{1024 * i} lds", f"z{z}"))
                out.append(g)
        if not w_only:
            out.append([I(f"s_add_u32 m0, s{sW8}, {base + p * 4096 + 3072}"), I(f"s_add_u32 s{sDO}, s{sXN}, {p * 32768 + z * 4096}"),
                        VM(f"buffer_load_dwordx4 v{vL16}, {s(SS, 4)}, s{sDO} offen sc1 lds", f"z{z}")])
    return out


def pa_reads(c):
    j, cs = c // 4, c % 4
    slot = j % 3
    sg, off = (0, slot * SLOT) if slot == 0 else (1, (slot - 1) * SLOT)
    out = [LG(f"ds_read_b128 {R(A(ks, c), 4)}, v{vCR + sg * 4 + cs} offset:{off + ks * 4096}", f"r{c}") for ks in range(2)]
    fb = WF + (c % 2) * 16
    for d in range(4):
        for sec in range(2):
            out.append(LG(f"ds_read_b64_tr_b16 {v(fb + 4 * d + 2 * sec, 2)}, v{vQR + sg * 4 + d} "
                          f"offset:{off + cs * 4096 + sec * 1024}", f"r{c}"))
    return out


def pa_mf(c, vtype):
    fb = WF + (c % 2) * 16
    out = []
    for d in range(4):
        for ks in range(2):
            cf, wf = A(ks, c), ('v', fb + 4 * d)
            X, Y = (cf, wf) if vtype else (wf, cf)
            out.append(mfma(('v', ACC[d // 2] + (ks * 2 + d % 2) * 16), X, Y, 0 if c == 0 else None))
    return out


def pb_reads(c):
    u = c // 16
    sg, off = seg_off(UREG[u] * 32768 + (c % 16) * 2048)
    fb = WF + (c % 4) * 8
    return [LG(f"ds_read_b64_tr_b16 {v(fb + 4 * d2 + 2 * sec, 2)}, v{vBR + sg * 2 + d2} offset:{off + sec * 512}", f"s{c}")
            for d2 in range(2) for sec in range(2)]


def pb_mf(c, vtype):
    p, cs = 2 + c // 32, c % 32
    fb = WF + (c % 4) * 8
    out = []
    for d2 in range(2):
        for ks in range(2):
            cf, wf = A(ks, cs), ('v', fb + 4 * d2)
            X, Y = (cf, wf) if vtype else (wf, cf)
            out.append(mfma(('v', ACC[p % 2] + (ks * 2 + d2) * 16), X, Y, 0 if cs == 0 else None))
    return out


def kv_epi(p, staged=False):
    out = []
    for ks in range(2):
        for d2 in range(2):
            for g in range(2):
                b = ACC[p % 2] + (ks * 2 + d2) * 16 + 8 * g
                grp = []
                if d2 == 0 and g == 0:
                    grp.append(I(f"s_add_u32 s{sT2}, s{sKO}, {(p // 2) * 64 * 8192 + ks * 8192 + (p % 2) * 4096}"))
                if staged:
                    b = STG + ((ks * 2 + d2) * 2 + g) * 4
                else:
                    grp += [I(f"v_cvt_pk_bf16_f32 v{b + i}, v{b + 2 * i}, v{b + 2 * i + 1}") for i in range(2)]
                    out.append(grp)
                    grp = [I(f"v_cvt_pk_bf16_f32 v{b + i}, v{b + 2 * i}, v{b + 2 * i + 1}") for i in range(2, 4)]
                grp.append(VM(f"buffer_store_dwordx4 {v(b, 4)}, v{vL16}, {s(SS, 4)}, s{sT2} offen offset:{(2 * d2 + g) * 1024} {KVST}", "st"))
                out.append(grp)
    return out


def XF(c):
    return A(c % 2, c // 2)


def xn_loads():
    out = []
    for c in range(32):
        g = []
        if c % 4 == 0:
            g.append(I(f"s_add_u32 s{sXO}, s{sXN}, {(c // 4) * 4096}"))
        g.append(VM(f"buffer_load_dwordx4 {R(XF(c), 4)}, v{vL16}, {s(SS, 4)}, s{sXO} offen offset:{(c % 4) * 1024} sc1", f"xn{c // 4}"))
        out.append(g)
    return out


def gelu(regs, vC0, vC1, tmp):
    out = []
    for i in range(0, len(regs), 4):
        g = regs[i:i + 4]
        t = [tmp + j for j in range(4)]
        for op in ("v_mul_f32 v{t}, v{x}, v{x}", "v_fma_f32 v{t}, v{t}, v{c1}, v{c0}", "v_mul_f32 v{t}, v{t}, v{x}",
                   "v_exp_f32 v{t}, v{t}", "v_add_f32 v{t}, 1.0, v{t}", "v_rcp_f32 v{t}, v{t}", "v_mul_f32 v{x}, v{x}, v{t}"):
            for x, tt in zip(g, t):
                out.append(op.format(t=tt, x=x, c0=vC0, c1=vC1))
    return out


def ln_code():
    o = []
    for i in range(4):
        o.append(f"v_mov_b32 v{48 + i}, 0")
    for r in range(2):
        for i in range(4):
            o.append(f"v_dot2_f32_bf16 v{48 + r}, v{40 + 4 * r + i}, s{sONES}, v{48 + r}")
            o.append(f"v_dot2_f32_bf16 v{50 + r}, v{40 + 4 * r + i}, v{40 + 4 * r + i}, v{50 + r}")
    o += ["s_nop 2", "v_permlane32_swap_b32 v48, v49", "v_permlane32_swap_b32 v50, v51", "s_nop 1",
          "v_add_f32 v48, v48, v49", "v_add_f32 v50, v50, v51", "s_nop 1",
          "v_permlane16_swap_b32 v48, v50", "s_nop 1", "v_add_f32 v48, v48, v50"]
    for sh in (8, 4, 2, 1):
        o += ["s_nop 1", f"v_add_f32_dpp v48, v48, v48 row_ror:{sh} row_mask:0xf bank_mask:0xf"]
    o += ["s_nop 1", f"v_mul_f32 v48, {fbits(1 / 512)}, v48", "s_nop 0",
          "v_readlane_b32 s40, v48, 0", "v_readlane_b32 s41, v48, 16", "v_readlane_b32 s42, v48, 32", "v_readlane_b32 s43, v48, 48",
          "s_nop 1"]
    for r in range(2):
        m, q = 40 + 2 * r, 41 + 2 * r
        a_, b_ = 52 + 2 * r, 53 + 2 * r
        o += [f"v_mov_b32 v{b_}, s{m}", f"v_mov_b32 v{a_}, s{q}", f"v_fma_f32 v{a_}, -v{b_}, v{b_}, v{a_}", f"v_max_f32 v{a_}, 0, v{a_}",
              f"v_add_f32 v{a_}, {fbits(LN_EPS)}, v{a_}", f"v_rsq_f32 v{a_}, v{a_}", "s_nop 0",
              f"v_mul_f32 v{b_}, v{b_}, v{a_}", f"v_sub_f32 v{b_}, 0, v{b_}"]
    for r in range(2):
        for i in range(4):
            x = 40 + 4 * r + i
            o += [f"v_lshlrev_b32 v56, 16, v{x}", f"v_and_b32 v57, 0xffff0000, v{x}",
                  f"v_fma_f32 v56, v56, v{52 + 2 * r}, v{53 + 2 * r}", f"v_fma_f32 v57, v57, v{52 + 2 * r}, v{53 + 2 * r}",
                  f"v_cvt_pk_bf16_f32 v{x}, v56, v57"]
    return o


def kv_phase(k, vtype):
    E = k.emit
    extra = {}

    def add(c, groups):
        extra.setdefault(c, []).extend(groups)

    def spread(c0, c1, groups):
        n = len(groups)
        for i, g in enumerate(groups):
            add(c0 + (i * (c1 - c0)) // n, [g])

    ldp = lambda sr, so, i: [VM(f"buffer_load_dwordx4 {v(vPF, 4)}, v{vL16}, {s(sr, 4)}, s{so} offen offset:{1024 * i}", "pf")]
    lt = lambda vo, sr, so, off=0: [VM(f"buffer_load_dword v{vPF}, v{vo}, {s(sr, 4)}, s{so} offen offset:{off}", "pf")]
    pf0 = [lt(39, SC, 70), lt(61, SPF, 76)]
    pf1 = []
    pf2 = [lt(61, SPF, 76, 256), lt(39, SI, 70)]
    if not LT:
        ldh = lambda sr, so, off: [I(f"s_add_u32 s{sT}, s{so}, {off}"), VM(f"buffer_load_dwordx4 {v(vPF, 4)}, v61, {s(sr, 4)}, s{sT} offen", "pf")]
        pf0 = [ldp(SC, 77, i) for i in range(2)] + [ldh(SPF, 76, 128 * 8192), ldh(SPF, 76, 256 * 8192)]
        pf1 = [ldh(SPF, 76, 384 * 8192)]
        pf2 = [ldh(SPF, 76, 256 + r * 128 * 8192) for r in range(4)] + [ldp(SI, 77, i) for i in range(2)]
    if os.environ.get("PFQA", "1") == "1":
        pf2 = pf2 + [[I(f"s_mov_b32 s{SX}, s44"), I(f"s_mov_b32 s{SX + 1}, s45"), I(f"s_mov_b32 s{SX + 2}, {512 * 8192:#x}")] + lt(39, SX, 70)]
    if "noown" in EXP:
        pf0, pf1, pf2 = [], [], []
    if "pfall" in EXP:
        pf0, pf1, pf2 = pf0 + pf1 + pf2, [], []
    if "pf01" in EXP:
        pf0, pf1 = pf0 + pf1, []
    add(1, pf1)
    if pf2:
        a_, b_ = [int(x) for x in os.environ.get("PF2", "8,9").split(",")]
        spread(a_, b_, pf2)
    ln = ln_code()
    lng = [[I(x) for x in ln[i:i + 4]] for i in range(0, len(ln), 4)]
    lng.append([LG("ds_write_b128 v58, v[40:43]"), LG("ds_write_b128 v58, v[44:47] offset:16")])
    xst = [[LG("ds_read_b128 v[40:43], v59", "xr"), LG("ds_read_b128 v[44:47], v59 offset:1024", "xr")],
           [WLG("xr"), VM(f"buffer_store_dwordx4 v[40:43], v62, {s(SS, 4)}, s69 offen sc1", "xs")],
           [I(f"v_add_u32 v62, 4096, v62"), VM(f"buffer_store_dwordx4 v[44:47], v62, {s(SS, 4)}, s69 offen sc1", "xs")]]
    if "noxs" not in EXP:
        spread(12, 15, xst)
    zf = [I("v_mov_b32 v60, 0"), I(f"s_lshl_b32 s{sT}, s{sCB}, 8"), I(f"s_add_u32 s{sT}, s{sT}, s{sRB}"), I(f"s_add_u32 s{sT}, s{sT}, {WS_FLAG2}"),
          I("s_mov_b64 exec, 1"), VMG(f"buffer_store_byte v60, v60, {s(SS, 4)}, s{sT} offen sc0 sc1", "fz")]
    for base, sh in ((WS_FCTX, 4), (WS_FU, 4), (WS_FP1, 4), (WS_FZ, 4), (WS_FLAG3, 5)):
        zf += [I(f"s_lshl_b32 s{sT}, s2, {sh}"), I(f"s_add_u32 s{sT}, s{sT}, {base}"), VMG(f"buffer_store_dword v60, v60, {s(SS, 4)}, s{sT} offen sc0 sc1", "fz")]
    add(6, [wave0(sW, zf + [I("s_mov_b64 exec, -1")])])
    spread(0, 3, a_dma(2) + b_dma(2))
    spread(3, 11, lng)
    E(pf0)
    E(WVM("p0"), "s_barrier")
    dstamp(k, 1)
    stamp(k, 6)
    E(pa_reads(0))
    for c in range(32):
        E(WLG(f"r{c}"))
        fill = []
        if c % 4 == 3:
            j = c // 4
            lstamp(k, 63, 3 * j)
            if j < 7:
                E(WVM(f"p{j + 1}"))
            else:
                E(WVM("u0"))
            if j == 5:
                E(WVM("xs"))
            if j == 2:
                E(WLG0)
            lstamp(k, 63, 3 * j + 1)
            E("s_barrier")
            lstamp(k, 63, 3 * j + 2)
            if j + 3 < 8:
                post = a_dma(j + 3) + b_dma(j + 3)
            elif j == 5:
                post = unit_dma(0) + unit_dma(1)[:4]
            elif j == 6:
                post = unit_dma(1)[4:] + unit_dma(2)
            else:
                post = []
            if j == 5 and "noflag" not in EXP:
                post = post + [wave0(sW, [WVMG("fz")]), flag_set(sW, SD, 2, 46)]
            if j < 7:
                spread(c, c + 4, post)
        if c < 31:
            fill += pa_reads(c + 1)
            fill = interleave(fill, extra.get(c, []))
            E(weave(pa_mf(c, vtype), fill, 0, 8))
        else:
            m = pa_mf(c, vtype)
            stg = []
            for tl in range(4):
                for g in range(2):
                    b = ACC[0] + tl * 16 + 8 * g
                    stg += [I(f"v_cvt_pk_bf16_f32 v{STG + (tl * 2 + g) * 4 + i}, v{b + 2 * i}, v{b + 2 * i + 1}") for i in range(4)]
            order = [0, 2, 1, 3]
            E(m[:4], pb_reads(0), m[4], m[5])
            seq = [stg[o * 8:(o + 1) * 8] for o in order]
            E(seq[0], m[6], seq[1], m[7], pb_reads(1), seq[2], seq[3])
    stamp(k, 7)
    dstamp(k, 2)
    extra.clear()
    wi = []
    for i in range(3):
        wi.append([I(x) for x in (f"v_add_u32 v46, {64 * i}, v0", "v_mul_u32_u24 v47, 43691, v46", "v_lshrrev_b32 v47, 19, v47",
                                  "v_mul_u32_u24 v48, 12, v47")])
        wi.append([I(x) for x in ("v_sub_u32 v48, v46, v48", "v_mul_u32_u24 v47, 2752, v47", f"v_lshl_add_u32 v{vCD + i}, v48, 4, v47",
                                  f"v_subrev_u32 v{vCD + i}, {1024 * i}, v{vCD + i}")])
    wi.append([I(x) for x in (f"v_lshl_add_u32 v46, v{vF + 1}, 3, v{vF + 3}", "v_mul_u32_u24 v46, 192, v46",
                              f"v_lshl_add_u32 v46, v{vF + 5}, 5, v46", f"v_lshl_add_u32 v46, v{vF + 4}, 3, v46")])
    wi.append([I(x) for x in (f"s_lshl_b32 s{sT}, s{sCH}, 12", f"v_add_u32 v{vCR}, s{sT}, v46", f"v_add_u32 v{vCR + 1}, 0x10000, v{vCR}",
                              f"v_add_u32 v{vCR + 2}, 0x20000, v{vCR}")])
    wi.append([I(x) for x in (f"s_lshl_b32 s{sT}, s{sRS}, 12", f"s_add_u32 s{sT}, s{sT}, 3072", f"v_add_u32 v{vCR + 3}, s{sT}, v{vL16}",
                              f"v_add_u32 v{vCR + 4}, 0x10000, v{vCR + 3}", f"v_add_u32 v{vCR + 5}, 0x20000, v{vCR + 3}")])
    spread(0, 6, unit_dma(3))
    spread(0, 6, wi)
    spread(7, 13, z_dma(0, w_only=True))
    spread(0, 15, kv_epi(0, staged=True))
    spread(15, 32, kv_epi(1))
    spread(33, 64, kv_epi(2))
    if "noflag" not in EXP:
        if MERGE12:
            add(13, [poll_all_issue(sW, SD, "0", 4, 1, 50)])
            add(29, [poll_all_check(sW, SD, "0", 4, 1, 50, 0x01010101)])
        else:
            add(13, [flag_poll_issue(sW, SD, sCNT, 8, 50)])
            add(29, [flag_poll_check(sW, SD, sCNT, 50)])
    pf = [[I(f"s_mov_b32 s{SPF}, s44"), I(f"s_mov_b32 s{SPF + 1}, s45"), VM(f"buffer_load_dword v52, v39, {s(SPF, 4)}, s70 offen", "pf")]]
    if not NOPF and os.environ.get("PFQA", "1") != "1":
        a_, b_ = [int(x) for x in os.environ.get("PFQ", "32,33").split(",")]
        spread(a_, b_, pf)
    for c in range(64):
        n = c + 2
        fill = []
        if n < 64:
            if n % 16 == 0:
                u = n // 16
                lstamp(k, 63, 21 + 3 * u)
                E(WLG(f"s{n - 1}"), WVM(f"u{u}"))
                lstamp(k, 63, 22 + 3 * u)
                E("s_barrier")
                lstamp(k, 63, 23 + 3 * u)
                if u == 1:
                    spread(c, c + 12, z_dma(1, w_only=True))
                elif u == 2:
                    spread(c, c + 14, z_dma(0, xn_only=True) + z_dma(1, xn_only=True) + z_dma(2))
                else:
                    spread(c, c + 14, z_dma(3))
            fill += pb_reads(n)
        E(WLG(f"s{c}"))
        if c == 32:
            stamp(k, 8)
        E(weave(pb_mf(c, vtype), interleave(fill, extra.get(c, [])), 0, 4))
    for c in extra:
        assert c < 64


def interleave(x, y):
    out = []
    n = max(len(x), len(y))
    for i in range(n):
        if i < len(x):
            out.append(x[i])
        if i < len(y):
            out.append(y[i])
    return out


def z_phase(k, z2):
    E = k.emit
    ZACC = ACC[0]
    LA = 3

    def fbuf(c):
        return (c % 4) * 16

    def reads(c):
        z, cs = c // 4, c % 4
        sg, off = seg_off(zslot(z) * 32768 + cs * 8192)
        fb = fbuf(c)
        out = [LG(f"ds_read_b128 {a(fb + 12, 4)}, v{vCR + 3 + sg} offset:{off}", f"y{c}")]
        out += [LG(f"ds_read_b64_tr_b16 {a(fb + 4 * f + 2 * sec, 2)}, v{vCR + sg} offset:{off + sec * 768 + f * 64}", f"y{c}")
                for f in range(3) for sec in range(2)]
        return out

    def mf(c):
        fb = fbuf(c)
        out = []
        for f in range(3):
            wf, xf = ('a', fb + 4 * f), ('a', fb + 12)
            X, Y = (xf, wf) if z2 else (wf, xf)
            out.append(mfma(('v', ZACC + 16 * f), X, Y, 0 if c == 0 else None))
        return out

    epi = kv_epi(3)
    lstamp(k, 63, 33)
    E(WVM("z0"), "s_barrier")
    lstamp(k, 63, 34)
    for c in range(LA):
        E(reads(c))
    pend = z_dma(4)
    for c in range(32):
        n = c + LA
        if n < 32 and n % 4 == 0:
            z = n // 4
            lstamp(k, 63, 33 + 3 * z)
            E(WLG(f"y{n - 1}"), WVM(f"z{z}"))
            lstamp(k, 63, 34 + 3 * z)
            E("s_barrier")
            if z + 4 < 8:
                pend = pend + z_dma(z + 4)
        E(WLG(f"y{c}"))
        r_ = reads(n) if n < 32 else []
        ZR = int(os.environ.get("ZR", "2"))
        ZE = int(os.environ.get("ZE", "16"))
        take, pend = pend[:ZR], pend[ZR:]
        gm_ = {i: r_[(i * 7) // 3:((i + 1) * 7) // 3] + take[i:i + 1] for i in range(3)}
        for e_ in range(16):
            if ZE + (e_ * (32 - ZE)) // 16 == c:
                gm_[2] = gm_[2] + [epi[e_]]
        E(place(mf(c), gm_))


def build():
    k = Kern(KNAME if MERGE12 else "k1_kernel")
    E = k.emit
    E("s_cmp_ge_u32 s2, 256\ns_cbranch_scc1 " + ("K2_END" if MERGE12 else "K1_END"))
    code_prefetch(k, "L_CODE_END", 0, 120)
    stamp_init(k)
    dstamp(k, 0)
    stamp(k, 0)
    E(f"s_load_dwordx4 s[40:43], s[0:1], {KA_X}")
    E(f"s_load_dwordx4 s[44:47], s[0:1], {KA_WUK}")
    E(f"s_load_dwordx2 s[48:49], s[0:1], {KA_WIN}")
    E(f"s_load_dwordx4 s[52:55], s[0:1], {KA_DBG}")
    E("v_lshrrev_b32 v1, 6, v0\nv_and_b32 v0, 63, v0")
    E(f"s_lshr_b32 s{sRB}, s2, 3\ns_and_b32 s{sCB}, s2, 7")
    E(f"v_readfirstlane_b32 s{sW}, v1")
    E(f"s_and_b32 s{sNB}, s{sRB}, 3\ns_lshl_b32 s{sT}, s{sCB}, 2\ns_add_u32 s{sNB}, s{sNB}, s{sT}")
    E(f"s_lshr_b32 s{sMB}, s{sRB}, 2")
    E(f"s_and_b32 s{sRS}, s{sW}, 1\ns_lshr_b32 s{sCH}, s{sW}, 1\ns_lshl_b32 s{sW8}, s{sW}, 13\ns_lshl_b32 s{sW2}, s{sW}, 12")
    f0 = vF
    E(f"v_and_b32 v{f0}, 31, v0\nv_lshrrev_b32 v{f0 + 1}, 5, v0\nv_lshrrev_b32 v{f0 + 2}, 4, v0")
    E(f"v_bfe_u32 v{f0 + 3}, v0, 2, 2\nv_and_b32 v{f0 + 4}, 3, v0\nv_bfe_u32 v{f0 + 5}, v0, 4, 1")
    E(f"v_lshlrev_b32 v{vL16}, 4, v0")
    E(f"v_lshrrev_b32 v46, 3, v0\nv_lshlrev_b32 v50, 13, v46\nv_lshlrev_b32 v46, 10, v46\nv_and_b32 v47, 7, v0\nv_xor_b32 v47, v47, v{f0 + 2}")
    E("v_lshl_add_u32 v48, v47, 4, v46\nv_xor_b32 v47, 4, v47\nv_lshl_add_u32 v49, v47, 4, v46")
    for i in range(8):
        E(f"v_add_u32 v{vCD + i}, {i * 8192 - (i % 4) * 1024}, v{48 + (i % 2)}")
    E(f"v_bfe_u32 v47, v0, 2, 1\nv_xor_b32 v47, v47, v{f0 + 5}\nv_lshl_add_u32 v50, v47, 6, v50\nv_lshl_add_u32 v50, v{f0 + 4}, 4, v50")
    for i in range(8):
        E(f"v_add_u32 v{vUD + i}, {i * 65536 - (i % 4) * 1024}, v50")
    E(f"s_lshl_b32 s{sCK}, s{sMB}, 18\ns_lshl_b32 s{sT}, s{sW}, 16\ns_add_u32 s{sCK}, s{sCK}, s{sT}")
    E(f"s_and_b32 s{sT}, s{sNB}, 15\ns_lshl_b32 s{sT}, s{sT}, 9\ns_lshl_b32 s{sWK}, s{sW}, 19\ns_add_u32 s{sWK}, s{sWK}, s{sT}")
    E(f"s_lshl_b32 s{sWB}, s{sW}, 17\ns_add_u32 s{sWB}, s{sWB}, s{sT}")
    E(f"s_lshl_b32 s{sT2}, s2, 13\ns_lshl_b32 s{sT}, s{sW}, 11\ns_add_u32 s{sT2}, s{sT2}, s{sT}")
    E(f"v_xor_b32 v46, v{f0 + 3}, v{f0 + 2}\nv_lshlrev_b32 v47, 13, v{f0 + 2}\nv_lshl_add_u32 v47, v46, 6, v47\nv_lshl_add_u32 v47, v{f0 + 4}, 4, v47")
    for i in range(4):
        E(f"v_add_u32 v{vQD + i}, {i * (32768 - 1024)}, v47")
    E("s_waitcnt lgkmcnt(0)")
    E(srd(SX, 40, 2048 * 1024), srd(SC, 42, 2048 * 1024))
    E(VM(f"buffer_load_dwordx4 v[40:43], v{vL16}, {s(SX, 4)}, s{sT2} offen", "x"))
    E(VM(f"buffer_load_dwordx4 v[44:47], v{vL16}, {s(SX, 4)}, s{sT2} offen offset:1024", "x"))
    E(f"s_cmp_lt_u32 s{sNB}, 16\ns_cselect_b32 s{SW}, s44, s46\ns_cselect_b32 s{SW + 1}, s45, s47")
    E(f"s_mov_b32 s{SW + 2}, {512 * 8192:#x}\ns_mov_b32 s{SW + 3}, 0x20000")
    for j in range(2):
        E(a_dma(j), b_dma(j))
    E(srd(SI, 48, 512 * 2752), srd(SS, 54, WS_SIZE), srd(SD, 52, 256))
    E(f"s_lshl_b32 s{sT}, s2, 2\ns_add_u32 s{sT}, s{sT}, s{sW}\ns_lshl_b32 s70, s{sT}, 12\ns_lshl_b32 s76, s{sT}, 13\ns_and_b32 s76, s76, 0x3fffff")
    if not LT:
        E(f"s_lshl_b32 s77, s{sT}, 11\ns_and_b32 s76, s77, 0xfffff")
    E(f"s_cmp_lt_u32 s2, 128\ns_cselect_b32 s{SPF}, s44, s46\ns_cselect_b32 s{SPF + 1}, s45, s47\ns_mov_b32 s{SPF + 2}, {512 * 8192:#x}\ns_mov_b32 s{SPF + 3}, 0x20000")
    E(f"v_lshrrev_b32 v61, 2, v0\nv_lshlrev_b32 v61, 9, v61\nv_lshl_add_u32 v61, v{f0 + 4}, 6, v61\nv_lshlrev_b32 v39, 6, v0")
    if not LT:
        E(f"v_lshlrev_b32 v61, 9, v{f0 + 2}\nv_and_b32 v48, 15, v0\nv_lshl_add_u32 v61, v48, 4, v61")
    E(f"s_load_dwordx2 s[44:45], s[0:1], {KA_WQ}")
    E(f"v_bfe_u32 v48, v0, 1, 3\nv_xor_b32 v48, v48, v{f0 + 1}\nv_lshlrev_b32 v49, 7, v{f0}\nv_add_u32 v49, s{sW8}, v49")
    for k16 in range(4):
        E(f"v_xor_b32 v50, {2 * k16}, v48\nv_lshl_add_u32 v{vCR + k16}, v50, 4, v49\nv_add_u32 v{vCR + 4 + k16}, {SLOT}, v{vCR + k16}")
    E(f"v_lshl_add_u32 v48, v{f0 + 1}, 3, v{f0 + 3}\nv_lshlrev_b32 v48, 8, v48\nv_lshl_add_u32 v48, v{f0 + 5}, 5, v48\nv_lshl_add_u32 v48, v{f0 + 4}, 3, v48\nv_add_u32 v48, 32768, v48")
    for d in range(4):
        E(f"v_xor_b32 v49, {d}, v{f0 + 3}\nv_lshl_add_u32 v{vQR + d}, v49, 6, v48\nv_add_u32 v{vQR + 4 + d}, {SLOT}, v{vQR + d}")
    E(f"v_lshl_add_u32 v48, v{f0 + 1}, 3, v{f0 + 3}\nv_lshlrev_b32 v48, 7, v48\nv_lshl_add_u32 v48, v{f0 + 5}, 5, v48\nv_lshl_add_u32 v48, v{f0 + 4}, 3, v48")
    E(f"v_lshrrev_b32 v49, 1, v{f0 + 3}\nv_lshl_add_u32 v{vBR}, v49, 6, v48\nv_xor_b32 v49, 1, v49\nv_lshl_add_u32 v{vBR + 1}, v49, 6, v48")
    for sg in (1, 2):
        for d2 in range(2):
            E(f"v_add_u32 v{vBR + 2 * sg + d2}, {sg * 65536}, v{vBR + d2}")
    E(f"s_lshl_b32 s{sKO}, s{sNB}, 7\ns_lshl_b32 s{sT}, s{sMB}, 3\ns_add_u32 s{sKO}, s{sKO}, s{sT}\ns_lshl_b32 s{sT}, s{sW}, 1\ns_add_u32 s{sKO}, s{sKO}, s{sT}")
    E(f"s_lshl_b32 s{sKO}, s{sKO}, 13\ns_add_u32 s{sKO}, s{sKO}, {WS_KF}")
    E(f"s_mul_i32 s{sWI}, s{sW}, {16 * 2752}\ns_mul_i32 s{sT}, s{sCB}, 192\ns_add_u32 s{sWI}, s{sWI}, s{sT}")
    E(f"s_lshl_b32 s{sXN}, s{sRB}, 16\ns_lshl_b32 s{sT}, s{sW}, 10\ns_add_u32 s{sXN}, s{sXN}, s{sT}\ns_add_u32 s{sXN}, s{sXN}, {WS_XN}")
    E(f"s_lshl_b32 s{sCNT}, s{sRB}, 3\ns_mov_b32 s{sONES}, 0x3f803f80")
    E(f"s_lshr_b32 s{sT2}, s2, 2\ns_lshl_b32 s{sT2}, s{sT2}, 15\ns_and_b32 s{sT}, s2, 3\ns_lshl_b32 s{sT}, s{sT}, 7\ns_add_u32 s{sT2}, s{sT2}, s{sT}")
    E(f"s_add_u32 s{sT2}, s{sT2}, s{sW8}\ns_add_u32 s69, s{sT2}, {WS_XN}")
    E(f"s_lshl_b32 s{sT}, s{sW}, 5\ns_add_u32 s{sT}, s{sT}, {3 * SLOT}\nv_lshlrev_b32 v58, 7, v0\nv_add_u32 v58, s{sT}, v58")
    E(f"s_lshl_b32 s{sT}, s{sW}, 11\ns_add_u32 s{sT}, s{sT}, {3 * SLOT}\nv_add_u32 v59, s{sT}, v{vL16}")
    E("v_lshrrev_b32 v62, 3, v0\nv_lshlrev_b32 v62, 9, v62\nv_and_b32 v48, 7, v0\nv_lshl_add_u32 v62, v48, 4, v62")
    E("s_waitcnt lgkmcnt(0)")
    stamp(k, 1)
    E(f"s_cmp_ge_u32 s{sNB}, 16\ns_cbranch_scc1 K1_V")
    st = (list(k.vm), list(k.lg))
    kv_phase(k, False)
    E("s_branch K1_Z")
    k.set_state(*st)
    E("K1_V:")
    kv_phase(k, True)
    E("K1_Z:")
    stamp(k, 2)
    E(f"s_cmp_eq_u32 s{sCH}, 1\ns_cbranch_scc1 K1_Z2")
    st = (list(k.vm), list(k.lg))
    ZACC = ACC[0]
    zr = list(range(ZACC, ZACC + 48))
    z_phase(k, False)
    stamp(k, 3)
    E(f"s_lshl_b32 s{sT}, s{sRB}, 1\ns_add_u32 s{sT}, s{sT}, s{sRS}\ns_mul_i32 s{sT}, s{sT}, 48")
    E(f"s_mul_i32 s{sT2}, s{sCB}, 6\ns_add_u32 s{sT}, s{sT}, s{sT2}\ns_lshl_b32 s{sT}, s{sT}, 10")
    E(f"s_add_u32 s96, s{sT}, {WS_Z1}\ns_add_u32 s97, s96, 4096\ns_nop 7")
    E(f"s_cmp_lg_u32 s{sCB}, 7\ns_cbranch_scc1 K1_ZJOIN")
    for r in zr[8:]:
        E(f"v_mov_b32 v{r}, 0")
    E("s_branch K1_ZJOIN")
    k.set_state(*st)
    E("K1_Z2:")
    z_phase(k, True)
    stamp(k, 3)
    E(f"s_mul_i32 s{sT}, s{sCB}, 384\ns_lshl_b32 s{sT2}, s{sRB}, 2\ns_add_u32 s{sT}, s{sT}, s{sT2}")
    E(f"s_lshl_b32 s{sT2}, s{sRS}, 1\ns_add_u32 s{sT}, s{sT}, s{sT2}\ns_lshl_b32 s{sT}, s{sT}, 10\ns_add_u32 s96, s{sT}, {WS_Z2R}")
    E(f"s_lshl_b32 s{sT}, s{sRB}, 1\ns_add_u32 s{sT}, s{sT}, s{sRS}\ns_lshl_b32 s{sT}, s{sT}, 11\ns_add_u32 s{sT}, s{sT}, {WS_STAT}")
    E(f"s_lshl_b32 s{sT2}, s{sCB}, 8\ns_add_u32 s97, s{sT}, s{sT2}")
    E(f"s_cmp_lg_u32 s{sCB}, 7\ns_cbranch_scc1 K1_ZJOIN")
    E(f"v_cmp_gt_u32 vcc, 16, v{vF}\ns_nop 1")
    for r in zr[:16]:
        E(f"v_cndmask_b32 v{r}, 0, v{r}, vcc")
    for r in zr[16:]:
        E(f"v_mov_b32 v{r}, 0")
    E("K1_ZJOIN:")
    dstamp(k, 3)
    stamp(k, 4)
    stamp(k, 5)
    lstamp_store(k, 0, 63, 59, SS, sW)
    stamp_store(k, 0, SS, sW, 96)
    import k2
    E("s_mov_b64 exec, -1")
    k2.build(k)
    return k.text(512, 256)


def z_epilogue(z2, SS_, vL, vr, vh, srs, scr):
    ZACC = ACC[0]
    T = 176
    o = flat([f"v_mov_b32 v{T + 4}, {fbits(GELU_C0)}\nv_mov_b32 v{T + 5}, {fbits(GELU_C1)}"])
    if not z2:
        for fg in range(6):
            b = ZACC + 8 * fg
            o += flat(gelu(list(range(b, b + 8)), T + 4, T + 5, T))
            o += [I(f"v_cvt_pk_bf16_f32 v{b + i}, v{b + 2 * i}, v{b + 2 * i + 1}") for i in range(4)]
            o.append(VM(f"buffer_store_dwordx4 {v(b, 4)}, v{vL}, {s(SS_, 4)}, s{96 if fg < 4 else 97} offen offset:{1024 * (fg % 4)} sc1", "zo"))
        return o
    o += flat(gelu(list(range(ZACC, ZACC + 48)), T + 4, T + 5, T))
    o += flat([f"s_mul_i32 s98, s{srs}, 9216\ns_add_u32 s98, s98, {scr}",
               f"v_mul_u32_u24 v{T + 6}, {4 * 144}, v{vh}\nv_lshl_add_u32 v{T + 6}, v{vr}, 2, v{T + 6}\nv_add_u32 v{T + 6}, s98, v{T + 6}",
               f"v_mul_u32_u24 v{T + 7}, 144, v0\nv_add_u32 v{T + 7}, s98, v{T + 7}"])
    for r in range(16):
        z0, z1, z2_ = ZACC + r, ZACC + 16 + r, ZACC + 32 + r
        a_, b_ = T + 8 + 2 * (r % 4), T + 9 + 2 * (r % 4)
        srow = 8 * (r // 4) + r % 4
        o += flat([f"v_add_f32 v{a_}, v{z0}, v{z1}\nv_mul_f32 v{b_}, v{z0}, v{z0}\nv_add_f32 v{a_}, v{a_}, v{z2_}\nv_fmac_f32 v{b_}, v{z1}, v{z1}\nv_fmac_f32 v{b_}, v{z2_}, v{z2_}"])
        o += [LG(f"ds_write_b32 v{T + 6}, v{a_} offset:{srow * 144}"), LG(f"ds_write_b32 v{T + 6}, v{b_} offset:{(32 + srow) * 144}")]
    SQ = ZACC
    for f in range(3):
        for g in range(2):
            b = ZACC + 16 * f + 8 * g
            o += [I(f"v_cvt_pk_bf16_f32 v{b + i}, v{b + 2 * i}, v{b + 2 * i + 1}") for i in range(4)]
            o += flat([f"s_nop 1\nv_permlane32_swap_b32 v{b}, v{b + 2}\nv_permlane32_swap_b32 v{b + 1}, v{b + 3}\ns_nop 1"])
            o.append(VM(f"buffer_store_dwordx4 {v(b, 4)}, v{vL}, {s(SS_, 4)}, s96 offen offset:{1024 * g} sc1", "zo"))
        if f < 2:
            o.append(I(f"s_add_u32 s96, s96, {128 * 1024}"))
    o += [I(f"v_lshlrev_b32 v{T + 6}, 2, v0"), I("s_nop 0")]
    o += [LG(f"ds_read_b128 {v(SQ + 4 * i, 4)}, v{T + 7} offset:{16 * i}", "zq") for i in range(8)]
    o += [I("s_nop 0")] * 6 + [WLG("zq")]
    for stride in (16, 8, 4, 2, 1):
        o += [I(f"v_add_f32 v{SQ + i}, v{SQ + i}, v{SQ + stride + i}") for i in range(stride)]
    o.append(VM(f"buffer_store_dword v{SQ}, v{T + 6}, {s(SS_, 4)}, s97 offen sc1", "zo"))
    return o
```

```python
from asmlib import *
from common import *
import os

THRESH = float(os.environ.get("THRESH", "32.0"))
BUDGET = int(os.environ.get("BUDGET", "25"))
EXP = os.environ.get("EXP2", "")
CPF2 = os.environ.get("CPF2", "1") == "1"

SQ, SP, SB, SS, SD = 8, 12, 16, 20, 24
sW, sHD, sPI, sG, sRS = 32, 33, 34, 35, 36
sT, sT2, sU, sSW, sSW2, sJUMP, sTL, sTD = 37, 38, 39, 40, 41, 42, 43, 44
sKN, sKO2, sVO, sVO2, sMK, sMV = 45, 46, 47, 48, 49, 50
sTH = (51, 52)
sLO = (53, 54)
sXN, sWQ, sWM, sW8, sDO = 55, 56, 57, 59, 58
sGP, sGZ, sGM, sFL, sPF, sEV, sDG = 60, 61, 62, 63, 76, 77, 31
NINF = "0xff800000"
SC1 = " sc1" if MERGE12 else ""

vL16, vKc, vKn, vVp, vVc, vD0, vNEG = 1, 2, 3, 4, 5, 6, 7
vLs = ((8, 9), (10, 11))
vNM = (12, 13)
vM = 14
vLSV = (30, 31)
vT = 20
vQD = 32
vQR = 36
S = (48, 64)
NEGM = (80, 96)
PB = 112
QBS = 144
ZT = 208
NEGB = 208
MSK = 224
vPL = 240
aO, aQ, aK, aV = 0, 128, 192, 224

KB0, VB0, SPARE = 0, 65536, 131072
NEG = -1.0e30


def P(buf, x, i=0):
    return PB + (buf * 2 + x) * 8 + i


def dma4(so, tag="kv"):
    return [VM(f"buffer_load_dwordx4 v{vL16}, {s(SS, 4)}, s{so} offen offset:{1024 * i}{SC1} lds", tag) for i in range(4)]


def qk(x, cin=None):
    return [mfma(('v', S[x]), ('a', aK + 4 * d), ('a', aQ + (x * 8 + d) * 4), ('v', NEGM[x] if cin is None else cin) if d == 0 else None)
            for d in range(8)]


def pv(x, buf):
    return [mfma(('a', aO + (x * 4 + ds) * 16), ('a', aV + (ds * 2 + g) * 4), ('v', P(buf, x, 4 * g)))
            for g in range(2) for ds in range(4)]


def kreads(areg, th):
    return [LG(f"ds_read_b128 {a(aK + 4 * d, 4)}, v{areg} offset:{th * 8192 + d * 1024}", "k") for d in range(8)]


def vreads(areg, th):
    return [LG(f"ds_read_b128 {a(aV + 4 * f, 4)}, v{areg} offset:{th * 8192 + f * 1024}", "v") for f in (0, 2, 4, 6, 1, 3, 5, 7)]


def sm_max(x):
    b, m = S[x], vM
    return [(4, I(t)) for t in (
        f"v_max3_f32 v{m}, v{b}, v{b + 1}, v{b + 2}", f"v_max3_f32 v{m + 1}, v{b + 3}, v{b + 4}, v{b + 5}",
        f"v_max3_f32 v{m + 2}, v{b + 6}, v{b + 7}, v{b + 8}", f"v_max3_f32 v{m + 3}, v{b + 9}, v{b + 10}, v{b + 11}",
        f"v_max3_f32 v{m + 4}, v{b + 12}, v{b + 13}, v{b + 14}", f"v_max3_f32 v{m}, v{m}, v{m + 1}, v{b + 15}",
        f"v_max3_f32 v{m + 2}, v{m + 2}, v{m + 3}, v{m + 4}", f"v_max_f32 v{m}, v{m}, v{m + 2}")]


def sm_chk(x, buf):
    return (8, [I(f"v_cmp_lt_f32 vcc, s{sTH[x]}, v{vM}"), I(f"s_cbranch_vccnz K2_RARE_{x}_{buf}"), I(f"K2_RET_{x}_{buf}:")])


def sm_fin(x, buf, i):
    b = S[x]
    return [(4, I(f"v_add_f32 v{vLs[x][0]}, v{vLs[x][0]}, v{b + 2 * i}")),
            (4, I(f"v_add_f32 v{vLs[x][1]}, v{vLs[x][1]}, v{b + 2 * i + 1}")),
            (4, I(f"v_cvt_pk_bf16_f32 v{P(buf, x, i)}, v{b + 2 * i}, v{b + 2 * i + 1}"))]


def sm_exp(x, buf):
    b = S[x]
    items = []
    for i in range(8):
        items.append((8, I(f"v_exp_f32 v{b + 2 * i}, v{b + 2 * i}")))
        items.append((8, I(f"v_exp_f32 v{b + 2 * i + 1}, v{b + 2 * i + 1}")))
        if i > 0:
            items += sm_fin(x, buf, i - 1)
    return items + sm_fin(x, buf, 7)


CAP = int(os.environ.get("CAP", "24"))


def schedule_loop(var='', pin=None):
    NG = 64
    T = NG + 16
    mem = [[] for _ in range(T)]
    alu = [[] for _ in range(T)]
    used = [0] * NG
    sfx = var
    diag, first, full = var == 'D', var == 'F', var == 'X'

    def fixed(g, cost, item, is_mem=True):
        (mem if is_mem else alu)[g].append(item)
        used[g % NG] += cost

    def spread_mem(g0, n, items):
        for i, r in enumerate(items):
            fixed(g0 + (i * n) // len(items), 4, r)

    spread_mem(0, 13, vreads(vVp, 1))
    if not full:
        spread_mem(16, 10, kreads(vKc, 1))
        spread_mem(32, 13, vreads(vVc, 0))
    spread_mem(48, 13, kreads(vKn, 0))
    BAR = int(os.environ.get("BAR", "27"))
    fixed(BAR, 8, [I("s_waitcnt vmcnt(1) lgkmcnt(0)"), ('reset',), I("s_barrier")])
    g = BAR + 1
    dgaps = []
    for so in (sKN, sKO2, sVO, sVO2):
        for d in dma4(so):
            fixed(g, 8, d)
            dgaps.append(g)
            g += 2
    fixed(g, 8, VM(f"buffer_load_dword v{ZT + 40}, v{vL16}, {s(SD, 4)}, s{sPF} offen", "pf"))
    gpf = g
    tail = {15: [WLG("v")], 47: [WLG("v")], 63: []}
    for g_ in (15, 47):
        used[g_] += 4
    used[63] += 4 + 13 + 13
    if var:
        used[31] += 13
    jobs = []

    def job(name, cost, item, e, l, deps=(), later=None):
        jobs.append(dict(name=name, cost=cost, item=item, e=e, l=l, deps=list(deps), later=later))

    job("vo", 4, I(f"s_add_u32 s{sVO}, s{sKN}, {WS_VF - WS_KF}"), 0, BAR - 2)
    job("vo2", 4, I(f"s_add_u32 s{sVO2}, s{sKN}, {WS_VF - WS_KF + 4096}"), 0, BAR - 2)
    job("kn", 12, [I(f"s_cmp_eq_u32 s{sU}, s{sSW2}"), I(f"s_cselect_b32 s{sKO2}, s{sJUMP}, 0x4000"), I(f"s_add_u32 s{sKN}, s{sKN}, s{sKO2}")],
        0, BAR - 1, ["vo", "vo2"])
    job("ko2", 4, I(f"s_add_u32 s{sKO2}, s{sKN}, 4096"), 0, BAR, ["kn"])
    job("m0a", 4, I(f"s_mov_b32 m0, s{sMK}"), 0, BAR)
    job("m0b", 4, I(f"s_add_u32 m0, s{sMK}, 4096"), dgaps[3], dgaps[4] - 1)
    job("m0c", 4, I(f"s_mov_b32 m0, s{sMV}"), dgaps[7], dgaps[8] - 1)
    job("m0d", 4, I(f"s_add_u32 m0, s{sMV}, 4096"), dgaps[11], dgaps[12] - 1)
    job("pfa", 4, I(f"s_add_u32 s{sPF}, s{sPF}, s30"), gpf, 63)
    job("xk", 4, I(f"s_xor_b32 s{sMK}, s{sMK}, 0x8000"), dgaps[4], 63, ["m0b"])
    job("xv", 4, I(f"s_xor_b32 s{sMV}, s{sMV}, 0x8000"), dgaps[12], 63, ["m0d"])
    job("vp", 4, I(f"v_mov_b32 v{vVp}, v{vVc}"), 13, 44)
    job("vc", 4, I(f"v_xor_b32 v{vVc}, 0x8000, v{vVc}"), 45, 63, ["vp"])
    job("kc", 4, I(f"v_xor_b32 v{vKc}, 0x8000, v{vKc}"), 26, 63)
    job("kx", 4, I(f"v_xor_b32 v{vKn}, 0x8000, v{vKn}"), 61, 63)
    job("tl", 4, I(f"s_add_u32 s{sTL}, s{sTL}, 1"), 56, 63)
    job("u", 4, I(f"s_add_u32 s{sU}, s{sU}, 1"), 32, 63)
    for half in range(2):
        G = 8 + 32 * half
        for x in range(2):
            e0 = G + 1 + 8 * x
            pre = f"{half}{x}"
            prev = [f"{half}0chk"] if x == 1 else []
            if diag and half == x:
                for r in range(16):
                    job(f"{pre}mk{r}", 4, I(f"v_min_f32 v{S[x] + r}, v{S[x] + r}, v{MSK + r}"), e0, e0 + 4, prev)
                prev = prev + [f"{pre}mk{r}" for r in range(16)]
            for i, (c, it) in enumerate(sm_max(x)):
                job(f"{pre}m{i}", c, it, e0, e0 + 5, prev + ([f"{pre}m{i - 1}"] if i else []))
            dl = G + 23 + 8 * x
            b_ = S[x]
            if first and half == 0:
                d_ = vT + x
                job(f"{pre}f0", 4, I(f"v_mov_b32 v{d_}, v{vM}"), e0, e0 + 8, [f"{pre}m7"])
                job(f"{pre}f1", 8, [I("s_nop 0"), I(f"v_permlane32_swap_b32 v{vM}, v{d_}")], e0, e0 + 9, [f"{pre}f0"], later=f"{pre}f0")
                job(f"{pre}chk", 12, [I(f"v_max_f32 v{d_}, v{d_}, v{vM}"), I(f"v_ceil_f32 v{d_}, v{d_}"), I(f"v_sub_f32 v{vNM[x]}, 0, v{d_}")],
                    e0, e0 + 10, [f"{pre}f1"], later=f"{pre}f1")
                job(f"{pre}ls", 12, [I(f"v_add_f32 v{vLSV[x]}, v{vLs[x][0]}, v{vLs[x][1]}"), I(f"v_mov_b32 v{vLs[x][0]}, 0"), I(f"v_mov_b32 v{vLs[x][1]}, 0")],
                    e0, e0 + 8)
                for r in range(16):
                    job(f"{pre}s{r}", 4, I(f"v_sub_f32 v{b_ + r}, v{b_ + r}, v{d_}"), e0, dl - 2, [f"{pre}chk", f"{pre}ls"])
                    job(f"{pre}n{r}", 4, I(f"v_mov_b32 v{NEGM[x] + r}, v{vNM[x]}"), e0, dl - 1, [f"{pre}chk"])
            else:
                job(f"{pre}cmp", 4, I(f"v_cmp_lt_f32 vcc, s{sTH[x]}, v{vM}"), e0, e0 + 5, [f"{pre}m7"])
                job(f"{pre}chk", 9, [I(f"s_cbranch_vccnz K2_RARE_{x}_{half}"), I(f"K2_RET{sfx}_{x}_{half}:")],
                    e0, e0 + 6, [f"{pre}cmp"], later=f"{pre}cmp")
            for r in range(16):
                job(f"{pre}e{r}", 8, I(f"v_exp_f32 v{b_ + r}, v{b_ + r}"), e0, dl - 1,
                    [f"{pre}s{r}" if (first and half == 0) else f"{pre}chk"] + ([f"{pre}e{r - 1}"] if r else []))
            for i in range(8):
                f3 = sm_fin(x, half, i)
                job(f"{pre}a{2 * i}", 4, f3[0][1], e0, dl, [f"{pre}e{2 * i + 1}"])
                job(f"{pre}a{2 * i + 1}", 4, f3[1][1], e0, dl, [f"{pre}a{2 * i}"])
                job(f"{pre}c{i}", 4, f3[2][1], e0, dl, [f"{pre}a{2 * i + 1}"])
    if diag:
        jobs[:] = [j for j in jobs if not j['name'].startswith("10")]
        for j in jobs:
            j['deps'] = [d for d in j['deps'] if not d.startswith("10")]
        for i in range(8):
            job(f"zp{i}", 4, I(f"v_mov_b32 v{P(1, 0, i)}, 0"), 32, 60)
    if full:
        jobs[:] = [j for j in jobs if j['name'][0] not in "01" or j['name'] in pin]
        names = {j['name'] for j in jobs}
        for j in jobs:
            j['deps'] = [d for d in j['deps'] if d in names]
            if j['later'] not in names:
                j['later'] = None
        for i in range(16):
            job(f"zp{i}", 4, I(f"v_mov_b32 v{P(1, 0, i)}, 0"), 34, 60)
            job(f"zs{i}", 4, I(f"v_mov_b32 v{S[1] + i}, {'v%d' % vNEG if f'11e{i}' in pin else '0'}"), 9, 60)
    if pin is not None:
        for j in jobs:
            if j['name'] in pin:
                j['e'] = j['l'] = pin[j['name']]
            else:
                j['l'] = min(j['l'], 63)
    done = {}
    rest = list(jobs)
    order = list(range(9, NG + 9))
    remaining = sum(j['cost'] for j in jobs)
    for gi, g in enumerate(order):
        gm_ = g % NG
        free_after = sum(max(0, CAP - used[h % NG]) for h in order[gi + 1:])
        while True:
            cand = []
            for j in rest:
                e, l = j['e'], j['l']
                if l < 9 or (e < 9 and j['name'][0] not in "01" and False):
                    e, l = e + NG, l + NG
                if e <= g and all(d in done for d in j['deps']) and (j['later'] is None or done[j['later']] < g):
                    cand.append((l, j))
            if not cand:
                break
            cand.sort(key=lambda z: z[0])
            room = CAP - used[gm_]
            pick = None
            for l, j in cand:
                if j['cost'] <= room:
                    pick = j
                    break
            if pick is None:
                urgent = [j for l, j in cand if l <= g]
                if urgent:
                    pick = urgent[0]
                elif remaining > free_after and room > -4 and room + 4 >= min(j['cost'] for _, j in cand):
                    pick = min((j for _, j in cand), key=lambda j: j['cost'])
                else:
                    break
            alu[g].append(pick['item'])
            used[gm_] += pick['cost']
            remaining -= pick['cost']
            done[pick['name']] = g
            rest.remove(pick)
    assert not rest, [j['name'] for j in rest]
    for j in jobs:
        l = j['l'] + (NG if j['l'] < 9 else 0)
        assert done[j['name']] <= l, (j['name'], done[j['name']], l)
    est = sum(max(32, 8 + u) for u in used)
    if os.environ.get("SCHED"):
        print("loop estimate", est, used)
    wrapped = []
    for g in range(NG, T):
        wrapped += [it for it in alu[g] if "v_" in str(it) and "s_cselect" not in str(it)]
    gm = {}
    for g in range(NG):
        gm[g] = mem[g] + (alu[g + NG] if g + NG < T else []) + alu[g] + tail.get(g, [])
    return gm, wrapped, {n: g for n, g in done.items() if g >= NG}


def rare_ret(L):
    r = f"s_cmp_eq_u32 s{sDG}, 0\ns_cbranch_scc1 K2_RET_{L}\n"
    if L.endswith("_1"):
        r += f"s_cmp_eq_u32 s{sDG}, 2\ns_cbranch_scc1 K2_RETF_{L}\n"
    if L == "0_1":
        return f"s_cmp_eq_u32 s{sDG}, 0\ns_cbranch_scc1 K2_RET_{L}\ns_branch K2_RETF_{L}"
    return r + f"s_branch K2_RETD_{L}"


def rare_path(k, x, buf):
    E = k.emit
    t = vT
    L = f"{x}_{buf}"
    E(f"K2_RARE_{L}:")
    E(f"s_mov_b32 s{sTH[x]}, {fbits(THRESH)}")
    E(f"v_mov_b32 v{t}, v{vM}\ns_nop 1\nv_permlane32_swap_b32 v{vM}, v{t}\ns_nop 1")
    E(f"v_max_f32 v{t}, v{t}, v{vM}\nv_ceil_f32 v{t}, v{t}\nv_max_f32 v{t}, s{sLO[x]}, v{t}")
    E(f"v_sub_f32 v{vNM[x]}, v{vNM[x]}, v{t}")
    for r in range(16):
        E(f"v_sub_f32 v{S[x] + r}, v{S[x] + r}, v{t}")
        E(f"v_mov_b32 v{NEGM[x] + r}, v{vNM[x]}")
    E(f"s_cmp_eq_u32 s{sLO[x]}, 0\ns_cbranch_scc1 K2_RSC_{L}")
    E(f"v_add_f32 v{vLSV[x]}, v{vLs[x][0]}, v{vLs[x][1]}\nv_mov_b32 v{vLs[x][0]}, 0\nv_mov_b32 v{vLs[x][1]}, 0")
    E(f"s_mov_b32 s{sLO[x]}, 0", rare_ret(L))
    E(f"K2_RSC_{L}:")
    E(f"v_sub_f32 v{t + 1}, 0, v{t}\nv_exp_f32 v{t + 1}, v{t + 1}\ns_nop 0")
    E(f"v_mul_f32 v{vLs[x][0]}, v{vLs[x][0]}, v{t + 1}\nv_mul_f32 v{vLs[x][1]}, v{vLs[x][1]}, v{t + 1}")
    for i in range(8):
        p = P(1 - buf, x, i)
        E(f"v_lshlrev_b32 v{t + 2}, 16, v{p}\nv_and_b32 v{t + 3}, 0xffff0000, v{p}")
        E(f"v_mul_f32 v{t + 2}, v{t + 2}, v{t + 1}\nv_mul_f32 v{t + 3}, v{t + 3}, v{t + 1}")
        E(f"v_cvt_pk_bf16_f32 v{p}, v{t + 2}, v{t + 3}")
    E("s_nop 15")
    for r in range(0, 64, 4):
        for i in range(4):
            E(f"v_accvgpr_read_b32 v{t + 2 + i}, a{aO + x * 64 + r + i}")
        for i in range(4):
            E(f"v_mul_f32 v{t + 2 + i}, v{t + 2 + i}, v{t + 1}")
        for i in range(4):
            E(f"v_accvgpr_write_b32 a{aO + x * 64 + r + i}, v{t + 2 + i}")
    E(rare_ret(L))


def ctx_addr(sqb_expr, x_in_addr):
    pass


def hooks(k):
    E = k.emit
    E("K2_EVENT:")
    zl, zc = znorm()
    Z0 = int(os.environ.get("Z0", "3"))
    E(f"s_sub_u32 s{sT}, s{sU}, {Z0}\ns_cmp_gt_u32 s{sT}, 2\ns_cbranch_scc1 K2_EV0\ns_cmp_eq_u32 s{sT}, 2\ns_cbranch_scc1 K2_ZN2\ns_cmp_eq_u32 s{sT}, 1\ns_cbranch_scc1 K2_ZN0")
    E(f"s_lshr_b32 s98, s2, 3\ns_lshl_b32 s98, s98, 7\ns_add_u32 s98, s98, {WS_FZ}\nv_and_b32 v{vPL}, 7, v0\nv_lshlrev_b32 v{vPL}, 4, v{vPL}")
    E(f"buffer_load_ubyte v{vPL + 1}, v{vPL}, {s(SS, 4)}, s98 offen sc0 sc1\ns_branch K2_EV0")
    E(f"K2_ZN0:\ns_waitcnt vmcnt(17)\nv_cmp_ne_u32 vcc, 1, v{vPL + 1}\ns_nop 1\ns_cbranch_vccz K2_ZN1")
    E(f"K2_ZNLP:\ns_sleep 2\nbuffer_load_ubyte v{vPL + 1}, v{vPL}, {s(SS, 4)}, s98 offen sc0 sc1\ns_waitcnt vmcnt(0)")
    E(f"v_cmp_ne_u32 vcc, 1, v{vPL + 1}\ns_nop 1\ns_cbranch_vccnz K2_ZNLP")
    E("K2_ZN1:", zl, "s_branch K2_EV0")
    E("K2_ZN2:", zc)
    E("K2_EV0:")
    E(f"s_add_u32 s{sT}, s{sU}, 1\ns_cmp_eq_u32 s{sT}, s{sSW}\ns_cselect_b32 s{sT}, s{sG}, 0\ns_lshl_b32 s{sT}, s{sT}, 14\nv_add_u32 v{vKn}, s{sT}, v{vKn}")
    E(f"s_mov_b32 s{sDG}, 0\ns_cmp_lg_u32 s{sU}, s{sSW}\ns_cbranch_scc1 K2_EV2")
    E(f"s_cmp_eq_u32 s{sG}, 0\ns_cbranch_scc1 K2_SW0")
    E(f"v_add_u32 v{vKc}, 0x4000, v{vKc}\nv_add_u32 v{vVc}, 0x4000, v{vVc}\ns_mov_b32 s{sSW2}, 15\ns_mov_b32 s{sJUMP}, 0x20000000")
    for r in range(64):
        E(f"v_accvgpr_write_b32 a{aQ + r}, v{QBS + r}")
    for r in range(32):
        E(f"v_mov_b32 v{NEGM[0] + r}, 0")
    E(f"v_mov_b32 v{vNM[0]}, 0\nv_mov_b32 v{vNM[1]}, 0")
    for x in range(2):
        E(f"s_mov_b32 s{sTH[x]}, {NINF}\ns_mov_b32 s{sLO[x]}, {NINF}")
    E(f"s_mov_b32 s{sTL}, 17\ns_sub_u32 s{sTD}, 15, s{sPI}\ns_lshl_b32 s{sTD}, s{sTD}, 1\ns_add_u32 s{sTD}, s{sTD}, s{sRS}")
    E("s_branch K2_EV2")
    E("K2_SW0:")
    E(f"s_cmp_eq_u32 s{sU}, 13\ns_cbranch_scc1 K2_SW1\ns_cmp_eq_u32 s{sU}, 12\ns_cbranch_scc1 K2_SW2")
    E(f"s_mov_b32 s{SD}, s28\ns_mov_b32 s{SD + 1}, s29\ns_mov_b32 s{SD + 2}, {4096 * 1024:#x}\ns_lshl_b32 s{sPF}, s2, 1\ns_add_u32 s{sPF}, s{sPF}, s{sW}\ns_lshl_b32 s{sPF}, s{sPF}, 10\ns_mov_b32 s30, 0x80000")
    E(f"s_mov_b32 s{sSW}, 12\ns_cmp_lg_u32 s{sW}, 0\ns_cbranch_scc1 K2_EV2")
    E(f"v_mov_b32 v{vPL}, 1\nv_mov_b32 v{vPL + 1}, 0\ns_mov_b64 exec, 1\nbuffer_store_byte v{vPL}, v{vPL + 1}, {s(SS, 4)}, s{sGP} offen sc0 sc1\ns_mov_b64 exec, -1\ns_branch K2_EV2")
    E("K2_SW2:")
    E(f"v_and_b32 v{vPL}, 31, v0\nbuffer_load_ubyte v{vPL + 1}, v{vPL}, {s(SS, 4)}, s{sFL} offen sc0 sc1\ns_mov_b32 s{sSW}, 13\ns_branch K2_EV2")
    E("K2_SW1:\ns_waitcnt vmcnt(17)")
    E(f"v_cmp_ne_u32 vcc, 1, v{vPL + 1}\ns_nop 1\ns_cbranch_vccz K2_EV2")
    E(f"K2_FBLP:\ns_sleep 2\nbuffer_load_ubyte v{vPL + 1}, v{vPL}, {s(SS, 4)}, s{sFL} offen sc0 sc1\ns_waitcnt vmcnt(0)")
    E(f"v_cmp_ne_u32 vcc, 1, v{vPL + 1}\ns_nop 1\ns_cbranch_vccnz K2_FBLP")
    E("K2_EV2:")
    E(f"s_cmp_lt_u32 s{sTL}, s{sTD}\ns_cbranch_scc0 K2_EV3")
    E(f"s_cmp_eq_u32 s{sLO[0]}, 0\ns_cbranch_scc1 K2_EV4")
    for x in range(2):
        E(f"s_mov_b32 s{sTH[x]}, {fbits(THRESH)}\ns_mov_b32 s{sLO[x]}, 0")
    E(f"s_add_u32 s{sEV}, s{sU}, 1\ns_mov_b32 s{sDG}, 2\ns_branch K2_SWRETF")
    E("K2_EV4:")
    E(f"s_sub_u32 s{sEV}, s{sTD}, s{sTL}\ns_add_u32 s{sEV}, s{sEV}, s{sU}\ns_cmp_gt_u32 s{sSW}, s{sU}\ns_cselect_b32 s{sT}, s{sSW}, 99\ns_min_u32 s{sEV}, s{sEV}, s{sT}")
    E(f"s_add_u32 s{sT}, s{sU}, 1\ns_max_u32 s{sT}, s{sT}, {Z0}\ns_cmp_le_u32 s{sT}, {Z0 + 2}\ns_cselect_b32 s{sT}, s{sT}, 99\ns_min_u32 s{sEV}, s{sEV}, s{sT}")
    E("s_branch K2_SWRET")
    E("K2_EV3:")
    E(f"s_add_u32 s{sEV}, s{sU}, 1\ns_mov_b32 s{sDG}, 1\ns_cmp_eq_u32 s{sTL}, s{sTD}\ns_cbranch_scc1 K2_SWRETD")
    E(f"s_mov_b32 s{sDG}, 3\ns_branch K2_SWRETX")
    E("K2_FINB:")
    E("K2_FBB:")
    t = QBS
    E(f"s_cmp_eq_u32 s{sLO[0]}, 0\ns_cbranch_scc1 K2_FB1")
    for x in range(2):
        E(f"v_add_f32 v{vLSV[x]}, v{vLs[x][0]}, v{vLs[x][1]}\nv_mov_b32 v{vLs[x][0]}, 0\nv_mov_b32 v{vLs[x][1]}, 0\nv_sub_f32 v{vNM[x]}, 0, v{vNEG}")
    E("K2_FB1:")
    for x in range(2):
        E(f"v_mov_b32 v{t + 2 * x}, v{vLSV[x]}")
    E("s_nop 1")
    for x in range(2):
        E(f"v_permlane32_swap_b32 v{vLSV[x]}, v{t + 2 * x}")
    E("s_nop 1")
    for x in range(2):
        E(f"v_add_f32 v{t + 2 * x}, v{t + 2 * x}, v{vLSV[x]}\nv_rcp_f32 v{t + 2 * x}, v{t + 2 * x}")
    E(f"s_lshl_b32 s{sT}, s{sPI}, 2\ns_lshl_b32 s{sT2}, s{sRS}, 1\ns_add_u32 s{sT}, s{sT}, s{sT2}")
    for x in range(2):
        E(f"v_mov_b32 v{t + 2 * x + 1}, v{t + 2 * x}")
    E(f"s_mul_i32 s{sT}, s{sT}, {CTXU_STEPS}\ns_lshl_b32 s{sT2}, s{sHD}, 3\ns_add_u32 s{sT}, s{sT}, s{sT2}")
    E(f"s_lshl_b32 s{sT}, s{sT}, 10\ns_add_u32 s{sT}, s{sT}, {WS_CTXU}")
    for i in range(4):
        E(f"v_mov_b32 v{t + 4 + i}, 0")
    for x in range(2):
        for f in range(8):
            b = t + 8 + 8 * (f % 4)
            for i in range(8):
                E(f"v_accvgpr_read_b32 v{b + i}, a{aO + x * 64 + 8 * f + i}")
            if f % 2 == 1:
                E(mfma(('a', aO + x * 64 + 8 * (f - 1)), ('v', t + 4), ('v', t + 4), 0))
            for i in range(4):
                E(f"v_pk_mul_f32 {v(b + 2 * i, 2)}, {v(b + 2 * i, 2)}, {v(t + 2 * x, 2)}")
            for i in range(4):
                E(f"v_cvt_pk_bf16_f32 v{b + i}, v{b + 2 * i}, v{b + 2 * i + 1}")
            E(f"buffer_store_dwordx4 {v(b, 4)}, v{vL16}, {s(SS, 4)}, s{sT} offen offset:{1024 * (f % 4)} sc1")
            if f == 3:
                E(f"s_add_u32 s{sT}, s{sT}, 4096")
            if f == 7 and x == 0:
                E(f"s_add_u32 s{sT}, s{sT}, {CTXU_STEPS * 1024 - 4096}")
    E("K2_FBX:")
    E(f"s_cmp_eq_u32 s{sDG}, 2\ns_cbranch_scc1 K2_FBRETF\ns_cmp_eq_u32 s{sDG}, 3\ns_cbranch_scc1 K2_FBRETX\ns_branch K2_FBRETD")


QACC = 48
aXN = 0
aWF = 192


def wq_dma(j):
    out = []
    for i in range(4):
        g = []
        if i == 0:
            g += [I(f"s_add_u32 m0, s{sWM}, {j * 16384}"), I(f"s_add_u32 s{sDO}, s{sWQ}, {j * 64 * 8192}")]
        g.append(VM(f"buffer_load_dwordx4 v{vQD + i}, {s(SQ, 4)}, s{sDO} offen offset:{1024 * i} lds", f"wq{j}"))
        out.append(g)
    return out


def xn_loads(j):
    out = []
    for x in range(2):
        for cs in range(4):
            g = []
            if cs == 0:
                g.append(I(f"s_add_u32 s{sDO}, s{sXN}, {x * 32768 + j * 4096}"))
            g.append(VM(f"buffer_load_dwordx4 {a(aXN + (j % 4) * 32 + (x * 4 + cs) * 4, 4)}, v{vL16}, {s(SS, 4)}, "
                        f"s{sDO} offen offset:{1024 * cs}{SC1}", f"xn{j}"))
            out.append(g)
    return out


def znorm():
    z, va = 32, 40
    ZF = 208
    A_ = (240, 244)
    B_ = (220, 44)
    ld = flat([f"s_lshr_b32 s{sGM}, s2, 3\ns_and_b32 s{sGP}, s2, 7\ns_lshl_b32 s{sT}, s{sGM}, 1\ns_add_u32 s{sT}, s{sT}, s{sG}",
               f"s_lshl_b32 s{sT}, s{sT}, 11\ns_add_u32 s{sT}, s{sT}, {WS_STAT}\nv_lshlrev_b32 v{va}, 2, v0"])
    ld += [I(f"buffer_load_dword v{z + i}, v{va}, {s(SS, 4)}, s{sT} offen offset:{256 * i} sc1") for i in range(8)]
    ld += flat([f"s_mul_i32 s{sGZ}, s{sGP}, 384\ns_lshl_b32 s{sT}, s{sGM}, 2\ns_add_u32 s{sGZ}, s{sGZ}, s{sT}\ns_add_u32 s{sGZ}, s{sGZ}, s{sW}\ns_lshl_b32 s{sGZ}, s{sGZ}, 10"])
    for f in range(3):
        ld += flat([f"s_add_u32 s{sT}, s{sGZ}, {WS_Z2R + f * 128 * 1024}\nbuffer_load_dwordx4 {v(ZF + 4 * f, 4)}, v{vL16}, {s(SS, 4)}, s{sT} offen sc1"])
    ld += flat([f"s_lshl_b32 s{sGP}, s{sGP}, 8\ns_add_u32 s{sGP}, s{sGP}, s{sGM}\ns_add_u32 s{sGP}, s{sGP}, {WS_FLAG2}"])
    c = flat(["s_waitcnt vmcnt(17)",
              f"v_add_f32 v{z}, v{z}, v{z + 1}\nv_add_f32 v{z + 2}, v{z + 2}, v{z + 3}\nv_add_f32 v{z + 4}, v{z + 4}, v{z + 5}\nv_add_f32 v{z + 6}, v{z + 6}, v{z + 7}",
              f"v_add_f32 v{z}, v{z}, v{z + 2}\nv_add_f32 v{z + 4}, v{z + 4}, v{z + 6}\nv_add_f32 v{z}, v{z}, v{z + 4}",
              f"v_mul_f32 v{z}, {fbits(1 / 688)}, v{z}\nv_mov_b32 v{z + 1}, v{z}\ns_lshl_b32 s{sT}, s{sW}, 8\ns_add_u32 s{sT}, s{sT}, {SPARE}\nv_permlane32_swap_b32 v{z}, v{z + 1}",
              f"v_and_b32 v{va}, 31, v0\nv_lshrrev_b32 v{va + 1}, 5, v0",
              f"v_fma_f32 v{z + 1}, -v{z}, v{z}, v{z + 1}\nv_max_f32 v{z + 1}, 0, v{z + 1}\nv_add_f32 v{z + 1}, {fbits(LN_EPS)}, v{z + 1}\nv_rsq_f32 v{z + 1}, v{z + 1}",
              f"v_lshlrev_b32 v{va}, 2, v{va}\nv_add_u32 v{va}, s{sT}, v{va}",
              f"v_mul_f32 v{z}, v{z}, v{z + 1}\nv_sub_f32 v{z}, 0, v{z}",
              f"ds_write_b32 v{va}, v{z + 1}\nds_write_b32 v{va}, v{z} offset:128",
              f"s_lshl_b32 s{sT2}, s{sRS}, 6\ns_add_u32 s{sT}, s{sT}, s{sT2}\nv_lshlrev_b32 v{va + 1}, 5, v{va + 1}\nv_add_u32 v{va + 1}, s{sT}, v{va + 1}"])
    for i in range(2):
        c += flat([f"ds_read_b128 {v(A_[i], 4)}, v{va + 1} offset:{16 * i}\nds_read_b128 {v(B_[i], 4)}, v{va + 1} offset:{128 + 16 * i}"])
    c += [I("s_waitcnt lgkmcnt(0)")]
    for f in range(3):
        for i in range(4):
            x_ = ZF + 4 * f + i
            a0, b0 = A_[i // 2] + 2 * (i % 2), B_[i // 2] + 2 * (i % 2)
            c += flat([f"v_lshlrev_b32 v{z}, 16, v{x_}\nv_and_b32 v{z + 1}, 0xffff0000, v{x_}",
                       f"v_fma_f32 v{z}, v{z}, v{a0}, v{b0}\nv_fma_f32 v{z + 1}, v{z + 1}, v{a0 + 1}, v{b0 + 1}\nv_cvt_pk_bf16_f32 v{x_}, v{z}, v{z + 1}"])
        c += flat([f"s_add_u32 s{sT}, s{sGZ}, {WS_Z2N + f * 128 * 1024}\nbuffer_store_dwordx4 {v(ZF + 4 * f, 4)}, v{vL16}, {s(SS, 4)}, s{sT} offen sc1"])
    return ld, c


def qproj(k):
    E = k.emit
    extra = {}

    def spread(c0, c1, groups):
        n = len(groups)
        for i, g in enumerate(groups):
            extra.setdefault(c0 + (i * (c1 - c0)) // n, []).append(g)

    def rd(c, fb):
        j, cs = c // 4, c % 4
        return [LG(f"ds_read_b64_tr_b16 {a(fb + 4 * d + 2 * sec, 2)}, v{vQR + (j // 4) * 4 + d} "
                   f"offset:{(j % 4) * 16384 + cs * 4096 + sec * 1024}", f"q{c}") for d in range(4) for sec in range(2)]

    def fbuf(c):
        return aWF + (c % 4) * 16

    def mf1(c, d, x):
        j, cs = c // 4, c % 4
        return mfma(('v', QACC + (x * 4 + d) * 16), ('a', fbuf(c) + 4 * d), ('a', aXN + (j % 4) * 32 + (x * 4 + cs) * 4),
                    0 if c == 0 else None)

    def kvpre(base, pre, so, so2, tag="kv"):
        d1, d2 = dma4(so, tag), dma4(so2, tag)
        return [[I(f"s_add_u32 m0, s{sW8}, {base}")] + [I(x) for x in pre] + [d1[0]]] + [[d] for d in d1[1:]] + \
               [[I(f"s_add_u32 m0, s{sW8}, {base + 4096}"), I("s_nop 0"), d2[0]]] + [[d] for d in d2[1:]]

    k0 = kvpre(0, [f"s_add_u32 s{sKO2}, s{sKN}, 4096"], sKN, sKO2, "k0")
    k1 = kvpre(32768, [f"s_add_u32 s{sVO}, s{sKN}, {WS_VF - WS_KF}", f"s_add_u32 s{sVO2}, s{sVO}, 4096",
                       f"s_add_u32 s{sKN}, s{sKN}, 0x4000", f"s_add_u32 s{sKO2}, s{sKN}, 4096"], sKN, sKO2)
    v0_ = kvpre(VB0, ["s_nop 0"], sVO, sVO2)
    CHK = int(os.environ.get('CHK', '16'))
    NV = int(os.environ.get('NV', '8'))
    q = []
    order_ = ((0, wq_dma(2) + xn_loads(2) + wq_dma(3) + xn_loads(3) + wq_dma(4)), (4, xn_loads(4)), (0, wq_dma(5)), (8, xn_loads(5)),
              (0, wq_dma(6) + ([[VM(f"buffer_load_dword v252, v{vL16}, s[64:67], s68 offen", 'cp')]] if CPF2 else [])), (12, xn_loads(6)), (0, wq_dma(7)), (16, xn_loads(7)), (CHK - 2, k0 + k1), (22, v0_[:NV]))
    for e, grp in order_:
        q += [(e, g) for g in grp]
    RATE = 4
    c_ = 0
    n_ = 0
    for e, g in q:
        if e > c_:
            c_, n_ = e, 0
        extra.setdefault(c_, []).append(g)
        n_ += 1
        if n_ == RATE:
            c_, n_ = c_ + 1, 0
    assert c_ <= 27, c_
    import k1 as K1
    E(WVM("wq0"), "s_barrier")
    stamp(k, 6)
    E(rd(0, fbuf(0)), rd(1, fbuf(1)))
    E(f"s_cmp_eq_u32 s{sG}, 1\ns_cbranch_scc1 K2_QP1")
    st0 = (list(k.vm), list(k.lg))
    ends = []
    for var in range(2):
        k.set_state(*st0)
        if var:
            E("K2_QP1:")
        ze = K1.z_epilogue(bool(var), SS, vL16, 20, 21, sRS, SPARE)
        NZ = 23 * 8
        for c in range(28):
            j, cs = c // 4, c % 4
            n = c + 2
            if n % 4 == 0:
                lstamp(k, 19, 3 * (n // 4))
                E(WLG(f"q{n - 1}"), WVM(f"wq{n // 4}"))
                lstamp(k, 19, 3 * (n // 4) + 1)
                if n == CHK:
                    E(poll_all_check(sW, SS, f"s{sT}", 16, 4, 240, 1))
                if n == 28:
                    E(WVM("zo"))
                E("s_barrier")
                if n in (4, 28):
                    E(f"s_lshl_b32 s{sT}, s2, 4\ns_add_u32 s{sT}, s{sT}, {WS_FP1 if n == 4 else WS_FZ}", flag_set(sW, SS, sT, 246))
            E(WLG(f"q{c}"))
            if cs == 0:
                E(WVM(f"xn{j}"))
                lstamp(k, 19, 3 * j + 2)
            r_ = rd(n, fbuf(n))
            ex = extra.get(c, [])
            gm_ = {}
            for i in range(8):
                gi = c * 8 + i
                zi = ze[(gi * len(ze)) // NZ:((gi + 1) * len(ze)) // NZ] if gi < NZ else []
                gm_[i] = [r_[i]] + ([ex[i // 2]] if (i % 2 == 0 and i // 2 < len(ex)) else []) + zi
            if c == CHK - 5:
                gm_[3] = gm_[3] + [I(f"s_mov_b32 s{sT}, {WS_FP1}")] + poll_all_issue(sW, SS, f"s{sT}", 16, 4, 240)
            E(place([mf1(c, d, x) for d in range(4) for x in range(2)], gm_))
        ends.append((list(k.vm), list(k.lg)))
        if not var:
            E("s_branch K2_QPJ")
    assert ends[0] == ends[1], ends
    E("K2_QPJ:")
    E(rd(30, fbuf(30)), rd(31, fbuf(31)))
    E(f"v_mov_b32 v{vT}, {fbits(QSCALE)}\nv_mov_b32 v{vT + 1}, {fbits(QSCALE)}")
    E(f"v_add_u32 v{vT + 2}, s{sW8}, v{vL16}\nv_add_u32 v{vT + 3}, {SPARE}, v{vT + 2}\nv_add_u32 v{vT + 2}, {VB0 + 32768}, v{vT + 2}")
    E(WVM("xn7"), WLG0, "s_barrier")

    def epi(d, x):
        out = []
        for g in range(2):
            b = QACC + (x * 4 + d) * 16 + 8 * g
            out.append([I(f"v_mul_f32 v{b + i}, v{vT}, v{b + i}") for i in range(8)])
            out.append([I(f"v_cvt_pk_bf16_f32 v{b + i}, v{b + 2 * i}, v{b + 2 * i + 1}") for i in range(4)] +
                       [LG(f"ds_write_b128 v{vT + 3 - x}, {v(b, 4)} offset:{(2 * d + g) * 1024}")])
        return out

    tiles = [(d, x) for x in range(2) for d in range(4)]
    for i, (d, x) in enumerate(tiles):
        m = [mf1(c, d, x) for c in range(28, 32)]
        kv2 = [(v0_[NV:] + [[]] * 8)[i], []]
        if i == 0:
            E(m[0], kv2[0], m[1], m[2], kv2[1], m[3])
        else:
            e = epi(*tiles[i - 1])
            E(m[0], kv2[0], m[1], e[0], e[1], m[2], kv2[1], e[2], m[3], e[3])
    stamp(k, 7)
    E("s_nop 15")
    E(epi(*tiles[-1]))
    E(WVM("k0"), WLG0, "s_barrier")
    E(f"s_lshl_b32 s{sT}, s{sRS}, 13\nv_add_u32 v{vT + 4}, s{sT}, v{vL16}")
    E(f"v_add_u32 v{vT + 5}, {SPARE}, v{vT + 4}\nv_add_u32 v{vT + 4}, {VB0 + 32768}, v{vT + 4}")
    E(kreads(vKc, 0))
    for x in range(2):
        for f in range(8):
            E(LG(f"ds_read_b128 {a(aQ + (x * 8 + f) * 4, 4)}, v{vT + 3 - x} offset:{f * 1024}"))
    for x in range(2):
        for f in range(8):
            E(LG(f"ds_read_b128 {v(QBS + (x * 8 + f) * 4, 4)}, v{vT + 5 - x} offset:{f * 1024}"))


ZRING = (('v', 144), ('v', 192), ('a', 128), ('a', 176))
vWS = 48
vPD = 32
vPR = 40
NGS = 5


def g_slot(st):
    return (st % 3) * 32768


def zreg(st, i):
    kind, base = ZRING[st % 4]
    return (kind, base + i * 4)


def sprinkle(items, groups):
    items = flat(items)
    n, m = len(items), len(groups)
    out, gi = [], 0
    for i, it in enumerate(items):
        while gi < m and gi * n <= i * m:
            out.append(groups[gi])
            gi += 1
        out.append(it)
    return flat(out + groups[gi:])


def g_dma(st):
    out = []
    for i in range(8):
        g = []
        if i % 4 == 0:
            g += [I(f"s_add_u32 m0, s{sW8}, {g_slot(st) + (i // 4) * 4096}"), I(f"s_add_u32 s{sDO}, s{sGP}, {st * 128}")]
        g.append(VM(f"buffer_load_dwordx4 v{vPD + i}, {s(SP, 4)}, s{sDO} offen offset:{1024 * (i % 4)} lds", f"g{st}"))
        out.append(g)
    return out


def g_zl(st):
    out = []
    for f in range(3):
        for ks in range(4):
            g = []
            if ks == 0:
                g.append(I(f"s_add_u32 s{sGM}, s{sGZ if f == 0 else 98}, {f * 128 * 1024 + st * 4096}"))
            g.append(VM(f"buffer_load_dwordx4 {R(zreg(st, f * 4 + ks), 4)}, v{vL16}, {s(SS, 4)}, "
                        f"s{sGM} offen offset:{1024 * ks} sc1", f"g{st}"))
            out.append(g)
    return out


def g_setup():
    o = [f"v_lshrrev_b32 v{ZT + 32}, 4, v0\nv_lshrrev_b32 v{ZT + 33}, 3, v0\nv_lshlrev_b32 v{ZT + 33}, 12, v{ZT + 33}\nv_and_b32 v{ZT + 34}, 7, v0\nv_xor_b32 v{ZT + 34}, v{ZT + 34}, v{ZT + 32}",
         f"v_lshl_add_u32 v{ZT + 35}, v{ZT + 34}, 4, v{ZT + 33}\nv_xor_b32 v{ZT + 34}, 4, v{ZT + 34}\nv_lshl_add_u32 v{ZT + 36}, v{ZT + 34}, 4, v{ZT + 33}"]
    for i in range(8):
        o.append(f"v_add_u32 v{vPD + i}, {i * 8 * 4096 - (i % 4) * 1024}, v{ZT + 35 + (i % 2)}")
    o.append(f"v_lshrrev_b32 v{ZT + 32}, 5, v0\nv_bfe_u32 v{ZT + 33}, v0, 1, 3\nv_xor_b32 v{ZT + 33}, v{ZT + 33}, v{ZT + 32}")
    o.append(f"v_and_b32 v{ZT + 34}, 31, v0\nv_lshlrev_b32 v{ZT + 34}, 7, v{ZT + 34}\nv_add_u32 v{ZT + 34}, s{sW8}, v{ZT + 34}")
    for ks in range(4):
        o.append(f"v_xor_b32 v{ZT + 35}, {2 * ks}, v{ZT + 33}\nv_lshl_add_u32 v{vPR + ks}, v{ZT + 35}, 4, v{ZT + 34}\nv_add_u32 v{vPR + 4 + ks}, 0x10000, v{vPR + ks}")
    o.append(f"s_lshl_b32 s{sGP}, s{sHD}, 18\ns_lshl_b32 s{sDO}, s{sW}, 10\ns_add_u32 s{sGP}, s{sGP}, s{sDO}")
    o.append(f"s_mul_i32 s{sGZ}, s{sPI}, 384\ns_lshl_b32 s{sGM}, s{sW}, 5\ns_add_u32 s{sGZ}, s{sGZ}, s{sGM}")
    o.append(f"s_lshl_b32 s{sGZ}, s{sGZ}, 10\ns_add_u32 s{sGZ}, s{sGZ}, {WS_Z2N}\ns_cmp_eq_u32 s{sPI}, 7\ns_cselect_b32 s98, 0x20000000, s{sGZ}")
    return o


def merge(k, keep):
    E = k.emit
    send = 1 - keep
    t = vT
    wr = [LG(f"ds_write_b128 v{t + 4 + i // 8}, {a(aO + send * 64 + 4 * i, 4)} offset:{(i % 8) * 1024}") for i in range(16)]
    E(LG(f"ds_read_b64 {v(t + 8, 2)}, v{t + 4}", "mb"))
    d0, d1 = g_dma(0), g_dma(1)
    E(weave(pv(send, 1), d0, 0, 8))
    E(WLG("mb"))
    fac = [f"v_min_f32 v{t}, v{vNM[keep]}, v{t + 8}", f"v_sub_f32 v{t + 2}, v{t}, v{vNM[keep]}", f"v_sub_f32 v{t + 8}, v{t}, v{t + 8}",
           f"v_exp_f32 v{t + 2}, v{t + 2}", f"v_exp_f32 v{t + 8}, v{t + 8}", "s_nop 0",
           f"v_mul_f32 v{t}, v{vLs[keep][0]}, v{t + 2}", f"v_fmac_f32 v{t}, v{t + 9}, v{t + 8}", f"v_rcp_f32 v{t}, v{t}", "s_nop 0",
           f"v_mul_f32 v{t + 2}, v{t + 2}, v{t}", f"v_mul_f32 v{t + 8}, v{t + 8}, v{t}", f"v_mov_b32 v{t + 3}, v{t + 2}", f"v_mov_b32 v{t + 9}, v{t + 8}"]
    m = pv(keep, 1)
    E(m[0], d1[0], fac[:6], m[1], d1[1], fac[6:], weave(m[2:], interleave2(wr, d1[2:]), 0, 6))
    E(WLG0, "s_barrier")
    RX = S[0]
    for i in range(16):
        E(LG(f"ds_read_b128 {v(RX + 4 * i, 4)}, v{t + 6 + i // 8} offset:{(i % 8) * 1024}", f"rx{i}"))
    body = []
    for f in range(8):
        b = RX + 8 * f
        body += [I(f"v_accvgpr_read_b32 v{PB + i}, a{aO + keep * 64 + 8 * f + i}") for i in range(8)]
        body += [WLG(f"rx{2 * f + 1}")]
        body += [I(f"v_pk_mul_f32 {v(b + 2 * i, 2)}, {v(b + 2 * i, 2)}, {v(t + 8, 2)}") for i in range(4)]
        body += [I(f"v_pk_fma_f32 {v(b + 2 * i, 2)}, {v(PB + 2 * i, 2)}, {v(t + 2, 2)}, {v(b + 2 * i, 2)}") for i in range(4)]
        body += [I(f"v_cvt_pk_bf16_f32 v{PB + 8 + 4 * (f % 4) + i}, v{b + 2 * i}, v{b + 2 * i + 1}") for i in range(4)]
        body += [VM(f"buffer_store_dwordx4 {v(PB + 8 + 4 * (f % 4), 4)}, v{vL16}, {s(SS, 4)}, s{sT if f < 4 else sT2} offen offset:{1024 * (f % 4)} sc1", "cs")]
    E(sprinkle(body, g_zl(1)))


def interleave2(x, y):
    out = []
    n = max(len(x), len(y))
    for i in range(n):
        out += x[(i * len(x)) // n:((i + 1) * len(x)) // n] + y[(i * len(y)) // n:((i + 1) * len(y)) // n]
    return out


def gphase(k):
    E = k.emit

    def reads(st):
        o = g_slot(st)
        sg, off = (0, o) if o < 65536 else (1, o - 65536)
        out = []
        for ks in range(4):
            for ts in range(2):
                if off + ts * 4096 < 65536:
                    out.append(LG(f"ds_read_b128 {v(vWS + (st % 2) * 32 + (ts * 4 + ks) * 4, 4)}, v{vPR + sg * 4 + ks} "
                                  f"offset:{off + ts * 4096}", f"p{st}"))
                else:
                    out.append(LG(f"ds_read_b128 {v(vWS + (st % 2) * 32 + (ts * 4 + ks) * 4, 4)}, v{ZT + 40 + ks} "
                                  f"offset:{off - 65536 + ts * 4096}", f"p{st}"))
        return out

    def mf(st):
        return [mfma(('a', (ts * 3 + f) * 16), zreg(st, f * 4 + ks),
                     ('v', vWS + (st % 2) * 32 + (ts * 4 + ks) * 4), 0 if (st == 0 and ks == 0) else None)
                for ks in range(4) for f in range(3) for ts in range(2)]

    for ks in range(4):
        E(f"v_add_u32 v{ZT + 40 + ks}, 0x20000, v{vPR + ks}")
    E("s_barrier")
    E(WVM("g0"))
    stamp(k, 10)
    E(reads(0))
    sched = {st: g_dma(st + 2) + g_zl(st + 2) for st in range(6)}
    for st in range(8):
        E(WLG(f"p{st}"))
        ld = sched.get(st, [])
        m = mf(st)
        n1 = (len(ld) * 14) // 24
        first = weave(m[:14], ld[:n1], 0, 14)
        second = ([WVM(f"g{st + 1}")] + weave(m[14:], interleave2(reads(st + 1), ld[n1:]), 0, 9)) if st + 1 < 8 else m[14:]
        if st == 6:
            fin = flat([f"s_lshl_b32 s{sT}, s{sHD}, 1\ns_add_u32 s{sT}, s{sT}, s{sG}",
                        f"s_mul_i32 s{sT2}, s{sPI}, 6\ns_mul_i32 s{sGP}, s{sRS}, 3\ns_add_u32 s{sT2}, s{sT2}, s{sGP}",
                        f"s_mul_i32 s{sGP}, s{sT}, 48\ns_add_u32 s{sGP}, s{sGP}, s{sT2}\ns_lshl_b32 s{sGP}, s{sGP}, 10\ns_add_u32 s{sGP}, s{sGP}, {WS_Z1}",
                        f"s_mul_i32 s{sGZ}, s{sT}, {CTXU_STEPS}\ns_add_u32 s{sGZ}, s{sGZ}, s{sT2}\ns_add_u32 s{sGZ}, s{sGZ}, 256",
                        f"s_lshl_b32 s{sGZ}, s{sGZ}, 10\ns_add_u32 s{sGZ}, s{sGZ}, {WS_CTXU}",
                        f"s_lshl_b32 s{sT}, s{sT}, 6\nv_and_b32 v21, 31, v0\nv_lshlrev_b32 v21, 1, v21"])
            fin += [VM(f"buffer_load_dwordx4 {v(4 + 4 * i, 4)}, v{vL16}, {s(SS, 4)}, s{sGP} offen offset:{1024 * i}{SC1}", "fin") for i in range(3)]
            fin += [VM(f"buffer_load_ushort v16, v21, {s(SB, 4)}, s{sT} offen", "fin")]
            fin += flat([f"s_mov_b32 s{SD}, s100\ns_mov_b32 s{SD + 1}, s101\ns_mov_b32 s{SD + 2}, {688 * 1024:#x}\ns_lshl_b32 s{sPF}, s2, 2\ns_add_u32 s{sPF}, s{sPF}, s{sW}\ns_lshl_b32 s{sPF}, s{sPF}, 10"])
            fin += [VM(f"buffer_load_dword v{ZT + 32}, v{vL16}, {s(SD, 4)}, s{sPF} offen", "pf")]
            for d in range(4):
                fin += flat([f"s_sub_u32 s{sT}, {d + 3}, s{sW}\ns_and_b32 s{sT}, s{sT}, 3\ns_lshl_b32 s{sT}, s{sT}, 15\ns_add_u32 s{sT}, s{sT}, s{sW8}\nv_add_u32 v{28 + d}, s{sT}, v{vL16}"])
            for j in range(1, 4):
                fin += flat([f"s_add_u32 s{sT}, s{sW}, {j}\ns_and_b32 s{sT}, s{sT}, 3\ns_lshl_b32 s{sT}, s{sT}, 13\ns_add_u32 s{sT}, s{sT}, {(3 - j) * 32768}\nv_add_u32 v{21 + j}, s{sT}, v{vL16}"])
            first = weave(m[:14], [fin[i:i + 3] for i in range(0, len(fin), 3)], 0, 14)
        if MERGE23 and st == 2:
            E(WVM("cs"), "s_barrier")
            E(f"s_lshl_b32 s{sT}, s{sPI}, 5\ns_add_u32 s{sT}, s{sT}, s{sHD}\ns_lshl_b32 s{sT}, s{sT}, 4\ns_add_u32 s{sT}, s{sT}, {WS_FCTX}")
            E(flag_set(sW, SS, sT, 17))
        if MERGE23 and st == 4:
            E(f"s_bfe_u32 s{sT}, s2, 0x10002\ns_lshl_b32 s{sT}, s{sT}, 3\ns_bfe_u32 s{sT2}, s2, 0x30003\ns_add_u32 s{sT}, s{sT}, s{sT2}\ns_sub_u32 s{sT2}, 15, s{sT}\ns_min_u32 s{sT}, s{sT}, s{sT2}")
            E(f"s_lshl_b32 s{sT}, s{sT}, 9\ns_and_b32 s{sT2}, s2, 3\ns_lshl_b32 s{sT2}, s{sT2}, 7\ns_add_u32 s{sT}, s{sT}, s{sT2}\ns_add_u32 s{sFL}, s{sT}, {WS_FCTX}")
            E(wave0(sW, [I("v_and_b32 v17, 7, v0"), I("v_lshlrev_b32 v17, 4, v17"),
                         VMG(f"buffer_load_ubyte v18, v17, {s(SS, 4)}, s{sFL} offen sc0 sc1", "poll")]))
        if MERGE23 and st == 6:
            import k3
            p3 = fin + flat([f"s_lshl_b32 s{sT}, s{sHD}, 3\ns_add_u32 s{sT}, s{sT}, s{sPI}\ns_lshl_b32 s{sT}, s{sT}, 4\ns_add_u32 s50, s{sT}, {WS_FU}\ns_mov_b32 s53, s{sPI}"]) + k3.pre()
            first = weave(m[:14], [p3[i:i + 5] for i in range(0, len(p3), 5)], 0, 14)
            first += flag_poll_check(sW, SS, sFL, 17) + k3.pre2() + [I("s_barrier")]
            second = [WVM("g7")] + weave(m[14:], interleave2(reads(7), k3.dma(0)[:5]), 0, 9)
        if MERGE23 and st == 7:
            first = weave(m[:14], k3.dma(0)[5:] + k3.dma(1)[:4], 0, 14)
            second = weave(m[14:], k3.dma(1)[4:], 0, 9)
        lstamp(k, 19, 32 + 3 * st)
        E(first)
        lstamp(k, 19, 33 + 3 * st)
        E(second[:1])
        lstamp(k, 19, 34 + 3 * st)
        E(second[1:])
    stamp(k, 11)
    E("s_nop 7")
    for d in range(4):
        E(f"s_cmp_eq_u32 s{sW}, {d}\ns_cbranch_scc1 K2_GO{d}")
        for i in range(3):
            fr = 3 * d + i
            for q in range(2):
                E(f"ds_write_b128 v{28 + d}, {a(fr * 8 + 4 * q, 4)} offset:{(i * 2 + q) * 1024}")
        E(f"s_branch K2_GN{d}\nK2_GO{d}:")
        for i in range(3):
            for r in range(8):
                E(f"v_accvgpr_read_b32 v{48 + i * 32 + r}, a{(3 * d + i) * 8 + r}")
        E(f"K2_GN{d}:")
    if MERGE23:
        pass
    E(WLG0, "s_barrier")
    for i in range(3):
        for j in range(1, 4):
            for q in range(2):
                E(LG(f"ds_read_b128 {v(48 + i * 32 + j * 8 + q * 4, 4)}, v{21 + j} offset:{(i * 2 + q) * 1024}", f"x{i}"))
    E(WVM("fin"), "v_lshlrev_b32 v16, 16, v16")
    for i in range(3):
        E(WLG(f"x{i}"))
        b = 48 + i * 32
        for r in range(8):
            E(f"v_add_f32 v{b + r}, v{b + r}, v{b + 8 + r}\nv_add_f32 v{b + 16 + r}, v{b + 16 + r}, v{b + 24 + r}")
        for r in range(8):
            E(f"v_add_f32 v{b + r}, v{b + r}, v16")
        for r in range(8):
            E(f"v_add_f32 v{b + r}, v{b + r}, v{b + 16 + r}")
        for r in range(4):
            z = 4 + 4 * i + r
            E(f"v_lshlrev_b32 v26, 16, v{z}\nv_and_b32 v27, 0xffff0000, v{z}")
            E(f"v_mul_f32 v{b + 2 * r}, v{b + 2 * r}, v26\nv_mul_f32 v{b + 2 * r + 1}, v{b + 2 * r + 1}, v27")
        for r in range(4):
            E(f"v_cvt_pk_bf16_f32 v{b + r}, v{b + 2 * r}, v{b + 2 * r + 1}")
        E(VM(f"buffer_store_dwordx4 {v(b, 4)}, v{vL16}, {s(SS, 4)}, s{sGZ} offen offset:{1024 * i} sc1", "us"))


def build(k=None):
    merged = k is not None
    if not merged:
        k = Kern("k2_kernel")
    E = k.emit
    if not merged:
        E("s_cmp_ge_u32 s2, 256\ns_cbranch_scc1 K2_END")
        code_prefetch(k, "L_CODE_END" if MERGE23 else "k3_kernel", 0, 248)
    stamp_init(k)
    stamp(k, 0)
    E(f"s_load_dwordx2 s[64:65], s[0:1], {KA_WQ}")
    E(f"s_load_dwordx4 s[72:75], s[0:1], {KA_DBG}")
    E(f"s_load_dwordx4 s[68:71], s[0:1], {KA_WSP}")
    if not merged:
        E("v_lshrrev_b32 v1, 6, v0\nv_and_b32 v0, 63, v0")
    E(f"s_and_b32 s{sHD}, s2, 7\ns_lshl_b32 s{sHD}, s{sHD}, 2\ns_lshr_b32 s{sT}, s2, 3\ns_lshr_b32 s{sPI}, s{sT}, 2")
    if not merged:
        E(f"v_readfirstlane_b32 s{sW}, v1")
    E(f"s_and_b32 s{sT}, s{sT}, 3\ns_add_u32 s{sHD}, s{sHD}, s{sT}")
    E(f"s_and_b32 s{sRS}, s{sW}, 1\ns_lshr_b32 s{sG}, s{sW}, 1\ns_lshl_b32 s{sW8}, s{sW}, 13")
    E(f"v_lshlrev_b32 v{vL16}, 4, v0")
    E("v_and_b32 v20, 31, v0\nv_lshrrev_b32 v21, 5, v0\nv_lshrrev_b32 v22, 4, v0")
    E("v_bfe_u32 v23, v0, 2, 2\nv_and_b32 v24, 3, v0\nv_bfe_u32 v25, v0, 4, 1")
    E("v_xor_b32 v26, v23, v22\nv_lshlrev_b32 v27, 13, v22\nv_lshl_add_u32 v27, v26, 6, v27\nv_lshl_add_u32 v27, v24, 4, v27")
    for i in range(4):
        E(f"v_add_u32 v{vQD + i}, {i * (32768 - 1024)}, v27")
    E(f"s_sub_u32 s{sT}, 15, s{sPI}\ns_cmp_eq_u32 s{sG}, 0\ns_cselect_b32 s{sT}, s{sT}, s{sPI}")
    E(f"s_lshl_b32 s{sTD}, s{sT}, 1\ns_add_u32 s{sTD}, s{sTD}, s{sRS}\ns_lshl_b32 s{sXN}, s{sTD}, 16\ns_add_u32 s{sXN}, s{sXN}, {WS_XN}")
    E(f"s_lshl_b32 s{sWQ}, s{sW}, 17\ns_lshl_b32 s{sT}, s{sHD}, 8\ns_add_u32 s{sWQ}, s{sWQ}, s{sT}\ns_lshl_b32 s{sWM}, s{sW}, 12")
    E("s_waitcnt lgkmcnt(0)")
    E(srd(SQ, 64, 512 * 8192), srd(SS, 74, WS_SIZE))
    if not merged:
        for j in range(2):
            E(wq_dma(j), xn_loads(j))
    E(srd(SP, 68, 2048 * 4096), srd(SB, 70, 4096), srd(SD, 68, 2048 * 4096))
    E("v_lshl_add_u32 v26, v21, 3, v23\nv_lshlrev_b32 v26, 8, v26\nv_lshl_add_u32 v26, v25, 5, v26\nv_lshl_add_u32 v26, v24, 3, v26")
    for d in range(4):
        E(f"v_xor_b32 v27, {d}, v23\nv_lshl_add_u32 v{vQR + d}, v27, 6, v26\nv_add_u32 v{vQR + 4 + d}, 0x10000, v{vQR + d}")
    E(f"v_mov_b32 v{vKc}, v{vL16}\nv_add_u32 v{vKn}, 32768, v{vKc}\nv_add_u32 v{vVc}, {VB0}, v{vKc}\nv_mov_b32 v{vVp}, v{vVc}")
    E(f"v_lshlrev_b32 v26, 2, v21\nv_sub_u32 v{vD0}, v20, v26\nv_mov_b32 v{vNEG}, {fbits(NEG)}")
    E(f"s_lshl_b32 s{sKN}, s{sHD}, 19\ns_lshl_b32 s{sT}, s{sRS}, 13\ns_add_u32 s{sKN}, s{sKN}, s{sT}\ns_add_u32 s{sKN}, s{sKN}, {WS_KF}")
    E(f"s_lshl_b32 s{sT}, s{sPI}, 1\ns_add_u32 s{sT}, s{sT}, 2\ns_sub_u32 s{sT2}, 18, s{sT}\ns_lshl_b32 s{sT2}, s{sT2}, 14")
    E(f"s_sub_u32 s{sT2}, s{sT2}, 0x20000000\ns_sub_u32 s{sSW2}, s{sT}, 2\ns_lshl_b32 s{sU}, s{sG}, 29\ns_add_u32 s{sKN}, s{sKN}, s{sU}")
    E(f"s_cmp_eq_u32 s{sG}, 0\ns_cselect_b32 s{sSW}, 8, s{sT}\ns_cselect_b32 s{sJUMP}, 0x20000000, s{sT2}\ns_cselect_b32 s{sSW2}, 15, s{sSW2}")
    E(f"s_lshl_b32 s{sFL}, s{sPI}, 8\ns_add_u32 s{sFL}, s{sFL}, {WS_FLAG2}\ns_lshl_b32 s{sPF}, s2, 2\ns_add_u32 s{sPF}, s{sPF}, s{sW}\ns_lshl_b32 s{sPF}, s{sPF}, 10\ns_mov_b32 s30, 0x100000")
    E(f"s_load_dwordx2 s[28:29], s[0:1], {KA_WO}\ns_load_dwordx2 s[100:101], s[0:1], {KA_WOUT}\ns_waitcnt lgkmcnt(0)")
    if "nowsp" in EXP:
        E(f"s_mov_b32 s{sPF}, 0x1000000")
    if merged:
        import k1
        if CPF2:
            E("s_getpc_b64 s[64:65]", "L_PC2:", "s_add_u32 s64, s64, K2_LOOP-L_PC2\ns_addc_u32 s65, s65, 0\ns_mov_b32 s66, L_CODE_END-K2_LOOP\ns_mov_b32 s67, 0x20000")
            E(f"s_lshr_b32 s68, s2, 3\ns_lshl_b32 s68, s68, 2\ns_add_u32 s68, s68, s{sW}\ns_lshl_b32 s68, s68, 10")
        for j in range(2):
            E(wq_dma(j), xn_loads(j))
    stamp(k, 5)
    rstamp(k, 19, 24)
    qproj(k)
    E(VM(f"buffer_load_dword v{ZT + 40}, v{vL16}, {s(SD, 4)}, s{sPF} offen", "pf"), f"s_add_u32 s{sPF}, s{sPF}, s30")
    gm, wrapped, pin = schedule_loop()
    gmd, wrapped_d, pin_d = schedule_loop('D', pin)
    gmf, wrapped_f, pin_f = schedule_loop('F', pin)
    gmx, wrapped_x, pin_x = schedule_loop('X', pin)
    assert pin == pin_x
    assert pin == pin_d and pin == pin_f
    wtxt = [it[1] for it in flat(wrapped)]
    for r in range(16):
        E(f"v_mov_b32 v{P(1, 0) + r}, 0\nv_mov_b32 v{NEGM[0] + r}, 0\nv_mov_b32 v{NEGM[1] + r}, 0")
        late = f"v_exp_f32 v{S[1] + r}, v{S[1] + r}" in wtxt
        E(f"v_mov_b32 v{S[1] + r}, {'v%d' % vNEG if late else '0'}")
    assert not any(f"v{S[0] + r}," in w or w.endswith(f"v{S[0] + r}") for w in wtxt for r in range(16))
    for r in (8, 9, 10, 11, 12, 13):
        E(f"v_mov_b32 v{r}, 0")
    E(f"v_mov_b32 v{vT}, 0x7f800000")
    for r0 in range(0, 16, 4):
        for r in range(r0, r0 + 4):
            E(f"v_cmp_gt_i32 s[{64 + 2 * (r % 4)}:{65 + 2 * (r % 4)}], {8 * (r // 4) + r % 4}, v{vD0}")
        for r in range(r0, r0 + 4):
            E(f"v_cndmask_b32 v{MSK + r}, v{vT}, v{vNEG}, s[{64 + 2 * (r % 4)}:{65 + 2 * (r % 4)}]")
    E(f"s_mov_b32 s{sEV}, 0\ns_mov_b32 s{sDG}, 0\ns_cmp_eq_u32 s{sG}, 0\ns_cselect_b32 s99, 99, s{sSW}")
    for x in range(2):
        E(f"s_mov_b32 s{sTH[x]}, {NINF}\ns_mov_b32 s{sLO[x]}, {NINF}")
    for i in range(8):
        E(mfma(('a', aO + 16 * i), ('v', P(1, 0)), ('v', P(1, 0)), 0))
    E(f"s_mov_b32 s{sU}, 0\ns_mov_b32 s{sTL}, 0\ns_mov_b32 s{sMK}, s{sW8}\ns_add_u32 s{sMV}, s{sW8}, {VB0 + 32768}")
    E(WLG0)
    stamp(k, 1)
    rstamp(k, 19, 26)
    dstamp(k, 4)
    def body(gm_, sf):
        diag = sf == "D"
        k.set_state(["kv"] * 16 + ["pf"], ["k"] * 8)
        main = qk(0) + qk(1) + pv(0, 1) + pv(1, 1) + qk(0) + qk(1) + pv(0, 0) + pv(1, 0)
        skip = set(range(32, 40)) if diag else (set(range(0, 16)) | set(range(32, 64))) if sf == 'X' else set()
        main = [I("s_nop 0") if i in skip else m for i, m in enumerate(main)]
        gm_[-1] = [I(f"K2_SWRET{sf}:"), WLG("k")]
        if sf:
            gm_[31] = gm_[31] + [I(f"s_cmp_eq_u32 s{sU}, s99"), I("s_cbranch_scc1 K2_FINB"), I(f"K2_FBRET{sf}:")]
        gm_[63] = gm_[63] + [I(f"s_cmp_lt_u32 s{sU}, 17"), I("s_cbranch_scc1 K2_LOOP")]
        bd = place(main, gm_)

        def drop(it):
            tx = it[1] if len(it) > 1 and isinstance(it[1], str) else ""
            if "nodma" in EXP and ("buffer_load" in tx): return True
            if "nobar" in EXP and tx == "s_barrier": return True
            if "nowait" in EXP and ("s_waitcnt" in tx or it[0] in ('wlg',)): return True
            if "noread" in EXP and tx.startswith("ds_read"): return True
            if "nobr" in EXP and ("K2_RARE" in tx or "K2_FINB" in tx): return True
            return False
        bd = [it for it in bd if not drop(it)]
        bd = [it for i, it in enumerate(bd) if not (it == I("s_nop 0") and i and bd[i - 1] == I("s_nop 0"))]
        E(bd)

    E(".p2align 6")
    for _ in range(int(os.environ.get("PAD", "0"))):
        E("s_nop 0")
    E("K2_LOOP:")
    if PROF and os.environ.get("PROF2"):
        E("s_memtime s[78:79]", "s_waitcnt lgkmcnt(0)", f"s_mov_b32 m0, s{sU}", "s_nop 0", "v_writelane_b32 v255, s78, m0")
    E(f"s_cmp_eq_u32 s{sU}, s{sEV}\ns_cbranch_scc1 K2_EVENT")
    body(gm, '')
    E("K2_TAIL:")
    stamp(k, 8)
    rstamp(k, 19, 28)
    dstamp(k, 5)
    if PROF:
        E(f"s_lshl_b32 s78, s2, 2\ns_add_u32 s78, s78, s{sW}\ns_lshl_b32 s78, s78, 8\ns_add_u32 s78, s78, {WS_PROF + 0x100000}\nv_lshlrev_b32 v254, 2, v0")
        E(f"buffer_store_dword v255, v254, {s(SS, 4)}, s78 offen")
    E(vreads(vVp, 1))
    gs = g_setup()
    E(gs[-2:])
    t = vT
    tl = flat(wrapped)
    for x in range(2):
        tl += flat([f"v_add_f32 v{vLs[x][0]}, v{vLs[x][0]}, v{vLs[x][1]}"])
    for x in range(2):
        tl += flat([f"v_mov_b32 v{vLs[x][1]}, v{vLs[x][0]}"])
    tl += flat([f"v_add_u32 v{t + 4}, s{sW8}, v{vL16}\nv_and_b32 v{t + 5}, 0x18000, v{vVp}"])
    for x in range(2):
        tl += flat([f"v_permlane32_swap_b32 v{vLs[x][0]}, v{vLs[x][1]}"])
    tl += flat([f"v_add_u32 v{t + 5}, v{t + 5}, v{t + 4}\nv_add_u32 v{t + 4}, {SPARE}, v{t + 4}"])
    for x in range(2):
        tl += flat([f"v_add_f32 v{vLs[x][0]}, v{vLs[x][0]}, v{vLs[x][1]}"])
    tl += [[I(f"s_cmp_eq_u32 s{sG}, 0"), I("s_cselect_b64 vcc, -1, 0")]]
    tl += flat([f"v_xor_b32 v{t + 6}, 0x4000, v{t + 4}\nv_xor_b32 v{t + 7}, 0x4000, v{t + 5}",
                f"v_cndmask_b32 v{t + 8}, v{vNM[0]}, v{vNM[1]}, vcc\nv_cndmask_b32 v{t + 9}, v{vLs[0][0]}, v{vLs[1][0]}, vcc"])
    tl += [LG(f"ds_write_b64 v{t + 6}, {v(t + 8, 2)}")]
    tl += flat(gs[:-2])
    tl += flat([f"s_sub_u32 s{sT}, 15, s{sPI}\ns_lshl_b32 s{sT}, s{sT}, 2\ns_lshl_b32 s{sT2}, s{sRS}, 1\ns_add_u32 s{sT}, s{sT}, s{sT2}\ns_add_u32 s{sT}, s{sT}, s{sG}",
                f"s_mul_i32 s{sT}, s{sT}, {CTXU_STEPS}\ns_lshl_b32 s{sT2}, s{sHD}, 3\ns_add_u32 s{sT}, s{sT}, s{sT2}",
                f"s_lshl_b32 s{sT}, s{sT}, 10\ns_add_u32 s{sT}, s{sT}, {WS_CTXU}\ns_add_u32 s{sT2}, s{sT}, 4096"])
    zz = g_zl(0)
    out_, gi = [], 0
    for i, it in enumerate(tl):
        while gi < len(zz) and gi * len(tl) <= i * len(zz):
            out_.append(zz[gi])
            gi += 1
        out_.append(it)
    E(out_, zz[gi:])
    E(WVM("pf"), WLG0, "s_barrier")
    E(f"s_cmp_eq_u32 s{sG}, 1\ns_cbranch_scc1 K2_MERGE1")
    st = (list(k.vm), list(k.lg))
    merge(k, 0)
    E("s_branch K2_G")
    k.set_state(*st)
    E("K2_MERGE1:")
    merge(k, 1)
    E("K2_G:")
    stamp(k, 3)
    gphase(k)
    if PROF and not MERGE23:
        E(WVM0)
    stamp(k, 4)
    rstamp(k, 19, 30)
    dstamp(k, 6)
    lstamp_store(k, 1, 19, 20, SS, sW)
    if PROF:
        E(f"s_mov_b32 s95, s53")
    stamp_store(k, 1, SS, sW, 208)
    if MERGE23:
        import k3
        E("s_mov_b64 exec, -1")
        k3.build(k)
    E("K2_END:")
    E("s_endpgm")
    for x in range(2):
        for buf in range(2):
            rare_path(k, x, buf)
    hooks(k)
    body(gmd, 'D')
    E("s_branch K2_TAIL")
    body(gmf, 'F')
    E("s_branch K2_TAIL")
    body(gmx, 'X')
    E("s_branch K2_TAIL")
    if merged:
        return
    return k.text(512, 256)
```

```python
from asmlib import *
from common import *

import os
KVST = os.environ.get("KVST", "sc1")
NOPF = os.environ.get("NOPF", "0") == "1"
EXP = os.environ.get("EXP", "")
LT = os.environ.get("LT", "0") == "1"
SX, SC, SW, SI, SS, SD, SPF = 8, 12, 16, 20, 24, 28, 72
sW, sRB, sCB, sNB, sMB, sRS, sCH = 32, 33, 34, 35, 36, 37, 38
sT, sT2, sCK, sWK, sW8, sW2, sKO, sWI, sXN, sCNT, sONES, sWB, sDO = 56, 57, 58, 59, 60, 61, 62, 63, 64, 65, 66, 67, 68
sXO = 39

vCD = 1
vUD = 9
vCR = 17
vBR = 25
vL16 = 31
vF = 32
vT = 40
STG = 64
vQD, vQR, vPF = 64, 68, 76
WF = 96
ACC = (192, 128)
SLOT = 49152
UREG = (3, 4, 0, 1)


def A(ks, cs):
    return ('a', (ks * 32 + cs) * 4)


def seg_off(byte):
    return byte // 65536, byte % 65536


def a_dma(j):
    out = []
    base = (j % 3) * SLOT
    for i in range(8):
        g = []
        if i % 4 == 0:
            g += [I(f"s_add_u32 m0, s{sW8}, {base + (i // 4) * 4096}"), I(f"s_add_u32 s{sDO}, s{sCK}, {j * 128}")]
        g.append(VM(f"buffer_load_dwordx4 v{vCD + i}, {s(SC, 4)}, s{sDO} offen offset:{1024 * (i % 4)} lds", f"p{j}"))
        out.append(g)
    return out


def b_dma(j):
    out = []
    for i in range(4):
        g = []
        if i == 0:
            g += [I(f"s_add_u32 m0, s{sW2}, {(j % 3) * SLOT + 32768}"), I(f"s_add_u32 s{sDO}, s{sWB}, {j * 64 * 8192}")]
        g.append(VM(f"buffer_load_dwordx4 v{vQD + i}, {s(SW, 4)}, s{sDO} offen offset:{1024 * i} lds", f"p{j}"))
        out.append(g)
    return out


def unit_dma(u):
    out = []
    base = UREG[u] * 32768
    off = (u % 2) * 256 * 8192 + (2 + u // 2) * 128
    for i in range(8):
        g = []
        if i % 4 == 0:
            g += [I(f"s_add_u32 m0, s{sW8}, {base + (i // 4) * 4096}"), I(f"s_add_u32 s{sDO}, s{sWK}, {off}")]
        g.append(VM(f"buffer_load_dwordx4 v{vUD + i}, {s(SW, 4)}, s{sDO} offen offset:{1024 * (i % 4)} lds", f"u{u}"))
        out.append(g)
    return out


def zslot(z):
    return (z + 2) % 5


def z_dma(z, xn_only=False, w_only=False):
    out = []
    base = zslot(z) * 32768
    for p in range(2):
        if not xn_only:
            for i in range(3):
                g = []
                if i == 0:
                    g += [I(f"s_add_u32 m0, s{sW8}, {base + p * 4096}"), I(f"s_add_u32 s{sDO}, s{sWI}, {z * 64 * 2752 + p * 1376}")]
                g.append(VM(f"buffer_load_dwordx4 v{vCD + i}, {s(SI, 4)}, s{sDO} offen offset:{1024 * i} lds", f"z{z}"))
                out.append(g)
        if not w_only:
            out.append([I(f"s_add_u32 m0, s{sW8}, {base + p * 4096 + 3072}"), I(f"s_add_u32 s{sDO}, s{sXN}, {p * 32768 + z * 4096}"),
                        VM(f"buffer_load_dwordx4 v{vL16}, {s(SS, 4)}, s{sDO} offen sc1 lds", f"z{z}")])
    return out


def pa_reads(c):
    j, cs = c // 4, c % 4
    slot = j % 3
    sg, off = (0, slot * SLOT) if slot == 0 else (1, (slot - 1) * SLOT)
    out = [LG(f"ds_read_b128 {R(A(ks, c), 4)}, v{vCR + sg * 4 + cs} offset:{off + ks * 4096}", f"r{c}") for ks in range(2)]
    fb = WF + (c % 2) * 16
    for d in range(4):
        for sec in range(2):
            out.append(LG(f"ds_read_b64_tr_b16 {v(fb + 4 * d + 2 * sec, 2)}, v{vQR + sg * 4 + d} "
                          f"offset:{off + cs * 4096 + sec * 1024}", f"r{c}"))
    return out


def pa_mf(c, vtype):
    fb = WF + (c % 2) * 16
    out = []
    for d in range(4):
        for ks in range(2):
            cf, wf = A(ks, c), ('v', fb + 4 * d)
            X, Y = (cf, wf) if vtype else (wf, cf)
            out.append(mfma(('v', ACC[d // 2] + (ks * 2 + d % 2) * 16), X, Y, 0 if c == 0 else None))
    return out


def pb_reads(c):
    u = c // 16
    sg, off = seg_off(UREG[u] * 32768 + (c % 16) * 2048)
    fb = WF + (c % 4) * 8
    return [LG(f"ds_read_b64_tr_b16 {v(fb + 4 * d2 + 2 * sec, 2)}, v{vBR + sg * 2 + d2} offset:{off + sec * 512}", f"s{c}")
            for d2 in range(2) for sec in range(2)]


def pb_mf(c, vtype):
    p, cs = 2 + c // 32, c % 32
    fb = WF + (c % 4) * 8
    out = []
    for d2 in range(2):
        for ks in range(2):
            cf, wf = A(ks, cs), ('v', fb + 4 * d2)
            X, Y = (cf, wf) if vtype else (wf, cf)
            out.append(mfma(('v', ACC[p % 2] + (ks * 2 + d2) * 16), X, Y, 0 if cs == 0 else None))
    return out


def kv_epi(p, staged=False):
    out = []
    for ks in range(2):
        for d2 in range(2):
            for g in range(2):
                b = ACC[p % 2] + (ks * 2 + d2) * 16 + 8 * g
                grp = []
                if d2 == 0 and g == 0:
                    grp.append(I(f"s_add_u32 s{sT2}, s{sKO}, {(p // 2) * 64 * 8192 + ks * 8192 + (p % 2) * 4096}"))
                if staged:
                    b = STG + ((ks * 2 + d2) * 2 + g) * 4
                else:
                    grp += [I(f"v_cvt_pk_bf16_f32 v{b + i}, v{b + 2 * i}, v{b + 2 * i + 1}") for i in range(2)]
                    out.append(grp)
                    grp = [I(f"v_cvt_pk_bf16_f32 v{b + i}, v{b + 2 * i}, v{b + 2 * i + 1}") for i in range(2, 4)]
                grp.append(VM(f"buffer_store_dwordx4 {v(b, 4)}, v{vL16}, {s(SS, 4)}, s{sT2} offen offset:{(2 * d2 + g) * 1024} {KVST}", "st"))
                out.append(grp)
    return out


def XF(c):
    return A(c % 2, c // 2)


def xn_loads():
    out = []
    for c in range(32):
        g = []
        if c % 4 == 0:
            g.append(I(f"s_add_u32 s{sXO}, s{sXN}, {(c // 4) * 4096}"))
        g.append(VM(f"buffer_load_dwordx4 {R(XF(c), 4)}, v{vL16}, {s(SS, 4)}, s{sXO} offen offset:{(c % 4) * 1024} sc1", f"xn{c // 4}"))
        out.append(g)
    return out


def gelu(regs, vC0, vC1, tmp):
    out = []
    for i in range(0, len(regs), 4):
        g = regs[i:i + 4]
        t = [tmp + j for j in range(4)]
        for op in ("v_mul_f32 v{t}, v{x}, v{x}", "v_fma_f32 v{t}, v{t}, v{c1}, v{c0}", "v_mul_f32 v{t}, v{t}, v{x}",
                   "v_exp_f32 v{t}, v{t}", "v_add_f32 v{t}, 1.0, v{t}", "v_rcp_f32 v{t}, v{t}", "v_mul_f32 v{x}, v{x}, v{t}"):
            for x, tt in zip(g, t):
                out.append(op.format(t=tt, x=x, c0=vC0, c1=vC1))
    return out


def ln_code():
    o = []
    for i in range(4):
        o.append(f"v_mov_b32 v{48 + i}, 0")
    for r in range(2):
        for i in range(4):
            o.append(f"v_dot2_f32_bf16 v{48 + r}, v{40 + 4 * r + i}, s{sONES}, v{48 + r}")
            o.append(f"v_dot2_f32_bf16 v{50 + r}, v{40 + 4 * r + i}, v{40 + 4 * r + i}, v{50 + r}")
    o += ["s_nop 2", "v_permlane32_swap_b32 v48, v49", "v_permlane32_swap_b32 v50, v51", "s_nop 1",
          "v_add_f32 v48, v48, v49", "v_add_f32 v50, v50, v51", "s_nop 1",
          "v_permlane16_swap_b32 v48, v50", "s_nop 1", "v_add_f32 v48, v48, v50"]
    for sh in (8, 4, 2, 1):
        o += ["s_nop 1", f"v_add_f32_dpp v48, v48, v48 row_ror:{sh} row_mask:0xf bank_mask:0xf"]
    o += ["s_nop 1", f"v_mul_f32 v48, {fbits(1 / 512)}, v48", "s_nop 0",
          "v_readlane_b32 s40, v48, 0", "v_readlane_b32 s41, v48, 16", "v_readlane_b32 s42, v48, 32", "v_readlane_b32 s43, v48, 48",
          "s_nop 1"]
    for r in range(2):
        m, q = 40 + 2 * r, 41 + 2 * r
        a_, b_ = 52 + 2 * r, 53 + 2 * r
        o += [f"v_mov_b32 v{b_}, s{m}", f"v_mov_b32 v{a_}, s{q}", f"v_fma_f32 v{a_}, -v{b_}, v{b_}, v{a_}", f"v_max_f32 v{a_}, 0, v{a_}",
              f"v_add_f32 v{a_}, {fbits(LN_EPS)}, v{a_}", f"v_rsq_f32 v{a_}, v{a_}", "s_nop 0",
              f"v_mul_f32 v{b_}, v{b_}, v{a_}", f"v_sub_f32 v{b_}, 0, v{b_}"]
    for r in range(2):
        for i in range(4):
            x = 40 + 4 * r + i
            o += [f"v_lshlrev_b32 v56, 16, v{x}", f"v_and_b32 v57, 0xffff0000, v{x}",
                  f"v_fma_f32 v56, v56, v{52 + 2 * r}, v{53 + 2 * r}", f"v_fma_f32 v57, v57, v{52 + 2 * r}, v{53 + 2 * r}",
                  f"v_cvt_pk_bf16_f32 v{x}, v56, v57"]
    return o


def kv_phase(k, vtype):
    E = k.emit
    extra = {}

    def add(c, groups):
        extra.setdefault(c, []).extend(groups)

    def spread(c0, c1, groups):
        n = len(groups)
        for i, g in enumerate(groups):
            add(c0 + (i * (c1 - c0)) // n, [g])

    ldp = lambda sr, so, i: [VM(f"buffer_load_dwordx4 {v(vPF, 4)}, v{vL16}, {s(sr, 4)}, s{so} offen offset:{1024 * i}", "pf")]
    lt = lambda vo, sr, so, off=0: [VM(f"buffer_load_dword v{vPF}, v{vo}, {s(sr, 4)}, s{so} offen offset:{off}", "pf")]
    pf0 = [lt(39, SC, 70), lt(61, SPF, 76)]
    pf1 = []
    pf2 = [lt(61, SPF, 76, 256), lt(39, SI, 70)]
    if not LT:
        ldh = lambda sr, so, off: [I(f"s_add_u32 s{sT}, s{so}, {off}"), VM(f"buffer_load_dwordx4 {v(vPF, 4)}, v61, {s(sr, 4)}, s{sT} offen", "pf")]
        pf0 = [ldp(SC, 77, i) for i in range(2)] + [ldh(SPF, 76, 128 * 8192), ldh(SPF, 76, 256 * 8192)]
        pf1 = [ldh(SPF, 76, 384 * 8192)]
        pf2 = [ldh(SPF, 76, 256 + r * 128 * 8192) for r in range(4)] + [ldp(SI, 77, i) for i in range(2)]
    if os.environ.get("PFQA", "1") == "1":
        pf2 = pf2 + [[I(f"s_mov_b32 s{SX}, s44"), I(f"s_mov_b32 s{SX + 1}, s45"), I(f"s_mov_b32 s{SX + 2}, {512 * 8192:#x}")] + lt(39, SX, 70)]
    if "noown" in EXP:
        pf0, pf1, pf2 = [], [], []
    if "pfall" in EXP:
        pf0, pf1, pf2 = pf0 + pf1 + pf2, [], []
    if "pf01" in EXP:
        pf0, pf1 = pf0 + pf1, []
    add(1, pf1)
    if pf2:
        a_, b_ = [int(x) for x in os.environ.get("PF2", "8,9").split(",")]
        spread(a_, b_, pf2)
    ln = ln_code()
    lng = [[I(x) for x in ln[i:i + 4]] for i in range(0, len(ln), 4)]
    lng.append([LG("ds_write_b128 v58, v[40:43]"), LG("ds_write_b128 v58, v[44:47] offset:16")])
    xst = [[LG("ds_read_b128 v[40:43], v59", "xr"), LG("ds_read_b128 v[44:47], v59 offset:1024", "xr")],
           [WLG("xr"), VM(f"buffer_store_dwordx4 v[40:43], v62, {s(SS, 4)}, s69 offen sc1", "xs")],
           [I(f"v_add_u32 v62, 4096, v62"), VM(f"buffer_store_dwordx4 v[44:47], v62, {s(SS, 4)}, s69 offen sc1", "xs")]]
    if "noxs" not in EXP:
        spread(12, 15, xst)
    zf = [I("v_mov_b32 v60, 0"), I(f"s_lshl_b32 s{sT}, s{sCB}, 8"), I(f"s_add_u32 s{sT}, s{sT}, s{sRB}"), I(f"s_add_u32 s{sT}, s{sT}, {WS_FLAG2}"),
          I("s_mov_b64 exec, 1"), VMG(f"buffer_store_byte v60, v60, {s(SS, 4)}, s{sT} offen sc0 sc1", "fz")]
    for base, sh in ((WS_FCTX, 4), (WS_FU, 4), (WS_FP1, 4), (WS_FZ, 4), (WS_FLAG3, 5)):
        zf += [I(f"s_lshl_b32 s{sT}, s2, {sh}"), I(f"s_add_u32 s{sT}, s{sT}, {base}"), VMG(f"buffer_store_dword v60, v60, {s(SS, 4)}, s{sT} offen sc0 sc1", "fz")]
    add(6, [wave0(sW, zf + [I("s_mov_b64 exec, -1")])])
    spread(0, 3, a_dma(2) + b_dma(2))
    spread(3, 11, lng)
    E(pf0)
    E(WVM("p0"), "s_barrier")
    dstamp(k, 1)
    stamp(k, 6)
    E(pa_reads(0))
    for c in range(32):
        E(WLG(f"r{c}"))
        fill = []
        if c % 4 == 3:
            j = c // 4
            lstamp(k, 63, 3 * j)
            if j < 7:
                E(WVM(f"p{j + 1}"))
            else:
                E(WVM("u0"))
            if j == 5:
                E(WVM("xs"))
            if j == 2:
                E(WLG0)
            lstamp(k, 63, 3 * j + 1)
            E("s_barrier")
            lstamp(k, 63, 3 * j + 2)
            if j + 3 < 8:
                post = a_dma(j + 3) + b_dma(j + 3)
            elif j == 5:
                post = unit_dma(0) + unit_dma(1)[:4]
            elif j == 6:
                post = unit_dma(1)[4:] + unit_dma(2)
            else:
                post = []
            if j == 5 and "noflag" not in EXP:
                post = post + [wave0(sW, [WVMG("fz")]), flag_set(sW, SD, 2, 46)]
            if j < 7:
                spread(c, c + 4, post)
        if c < 31:
            fill += pa_reads(c + 1)
            fill = interleave(fill, extra.get(c, []))
            E(weave(pa_mf(c, vtype), fill, 0, 8))
        else:
            m = pa_mf(c, vtype)
            stg = []
            for tl in range(4):
                for g in range(2):
                    b = ACC[0] + tl * 16 + 8 * g
                    stg += [I(f"v_cvt_pk_bf16_f32 v{STG + (tl * 2 + g) * 4 + i}, v{b + 2 * i}, v{b + 2 * i + 1}") for i in range(4)]
            order = [0, 2, 1, 3]
            E(m[:4], pb_reads(0), m[4], m[5])
            seq = [stg[o * 8:(o + 1) * 8] for o in order]
            E(seq[0], m[6], seq[1], m[7], pb_reads(1), seq[2], seq[3])
    stamp(k, 7)
    dstamp(k, 2)
    extra.clear()
    wi = []
    for i in range(3):
        wi.append([I(x) for x in (f"v_add_u32 v46, {64 * i}, v0", "v_mul_u32_u24 v47, 43691, v46", "v_lshrrev_b32 v47, 19, v47",
                                  "v_mul_u32_u24 v48, 12, v47")])
        wi.append([I(x) for x in ("v_sub_u32 v48, v46, v48", "v_mul_u32_u24 v47, 2752, v47", f"v_lshl_add_u32 v{vCD + i}, v48, 4, v47",
                                  f"v_subrev_u32 v{vCD + i}, {1024 * i}, v{vCD + i}")])
        wi.append([I(x) for x in (f"s_cmp_eq_u32 s{sCB}, 7", f"s_cselect_b32 s{sT}, 2, 12", f"v_cmp_le_u32 vcc, s{sT}, v48", "v_mov_b32 v47, 0x40000000",
                                  "s_nop 0", f"v_cndmask_b32 v{vCD + i}, v{vCD + i}, v47, vcc")])
    wi.append([I(x) for x in (f"v_lshl_add_u32 v46, v{vF + 1}, 3, v{vF + 3}", "v_mul_u32_u24 v46, 192, v46",
                              f"v_lshl_add_u32 v46, v{vF + 5}, 5, v46", f"v_lshl_add_u32 v46, v{vF + 4}, 3, v46")])
    wi.append([I(x) for x in (f"s_lshl_b32 s{sT}, s{sCH}, 12", f"v_add_u32 v{vCR}, s{sT}, v46", f"v_add_u32 v{vCR + 1}, 0x10000, v{vCR}",
                              f"v_add_u32 v{vCR + 2}, 0x20000, v{vCR}")])
    wi.append([I(x) for x in (f"s_lshl_b32 s{sT}, s{sRS}, 12", f"s_add_u32 s{sT}, s{sT}, 3072", f"v_add_u32 v{vCR + 3}, s{sT}, v{vL16}",
                              f"v_add_u32 v{vCR + 4}, 0x10000, v{vCR + 3}", f"v_add_u32 v{vCR + 5}, 0x20000, v{vCR + 3}")])
    spread(0, 6, unit_dma(3))
    spread(0, 6, wi)
    spread(7, 13, z_dma(0, w_only=True))
    spread(0, 15, kv_epi(0, staged=True))
    spread(15, 32, kv_epi(1))
    spread(33, 64, kv_epi(2))
    if "noflag" not in EXP:
        if MERGE12:
            add(13, [poll_all_issue(sW, SD, "0", 4, 1, 50)])
            add(29, [poll_all_check(sW, SD, "0", 4, 1, 50, 0x01010101)])
        else:
            add(13, [flag_poll_issue(sW, SD, sCNT, 8, 50)])
            add(29, [flag_poll_check(sW, SD, sCNT, 50)])
    pf = [[I(f"s_mov_b32 s{SPF}, s44"), I(f"s_mov_b32 s{SPF + 1}, s45"), VM(f"buffer_load_dword v52, v39, {s(SPF, 4)}, s70 offen", "pf")]]
    if not NOPF and os.environ.get("PFQA", "1") != "1":
        a_, b_ = [int(x) for x in os.environ.get("PFQ", "32,33").split(",")]
        spread(a_, b_, pf)
    for c in range(64):
        n = c + 2
        fill = []
        if n < 64:
            if n % 16 == 0:
                u = n // 16
                lstamp(k, 63, 21 + 3 * u)
                E(WLG(f"s{n - 1}"), WVM(f"u{u}"))
                lstamp(k, 63, 22 + 3 * u)
                E("s_barrier")
                lstamp(k, 63, 23 + 3 * u)
                if u == 1:
                    spread(c, c + 12, z_dma(1, w_only=True))
                elif u == 2:
                    spread(c, c + 14, z_dma(0, xn_only=True) + z_dma(1, xn_only=True) + z_dma(2))
                else:
                    spread(c, c + 14, z_dma(3))
            fill += pb_reads(n)
        E(WLG(f"s{c}"))
        if c == 32:
            stamp(k, 8)
        E(weave(pb_mf(c, vtype), interleave(fill, extra.get(c, [])), 0, 4))
    for c in extra:
        assert c < 64


def interleave(x, y):
    out = []
    n = max(len(x), len(y))
    for i in range(n):
        if i < len(x):
            out.append(x[i])
        if i < len(y):
            out.append(y[i])
    return out


def z_phase(k, z2):
    E = k.emit
    ZACC = ACC[0]
    LA = 3

    def fbuf(c):
        return (c % 4) * 16

    def reads(c):
        z, cs = c // 4, c % 4
        sg, off = seg_off(zslot(z) * 32768 + cs * 8192)
        fb = fbuf(c)
        out = [LG(f"ds_read_b128 {a(fb + 12, 4)}, v{vCR + 3 + sg} offset:{off}", f"y{c}")]
        out += [LG(f"ds_read_b64_tr_b16 {a(fb + 4 * f + 2 * sec, 2)}, v{vCR + sg} offset:{off + sec * 768 + f * 64}", f"y{c}")
                for f in range(3) for sec in range(2)]
        return out

    def mf(c):
        fb = fbuf(c)
        out = []
        for f in range(3):
            wf, xf = ('a', fb + 4 * f), ('a', fb + 12)
            X, Y = (xf, wf) if z2 else (wf, xf)
            out.append(mfma(('v', ZACC + 16 * f), X, Y, 0 if c == 0 else None))
        return out

    epi = kv_epi(3)
    lstamp(k, 63, 33)
    E(WVM("z0"), "s_barrier")
    lstamp(k, 63, 34)
    for c in range(LA):
        E(reads(c))
    pend = z_dma(4)
    for c in range(32):
        n = c + LA
        if n < 32 and n % 4 == 0:
            z = n // 4
            lstamp(k, 63, 33 + 3 * z)
            E(WLG(f"y{n - 1}"), WVM(f"z{z}"))
            lstamp(k, 63, 34 + 3 * z)
            E("s_barrier")
            if z + 4 < 8:
                pend = pend + z_dma(z + 4)
        E(WLG(f"y{c}"))
        r_ = reads(n) if n < 32 else []
        ZR = int(os.environ.get("ZR", "2"))
        ZE = int(os.environ.get("ZE", "16"))
        take, pend = pend[:ZR], pend[ZR:]
        gm_ = {i: r_[(i * 7) // 3:((i + 1) * 7) // 3] + take[i:i + 1] for i in range(3)}
        for e_ in range(16):
            if ZE + (e_ * (32 - ZE)) // 16 == c:
                gm_[2] = gm_[2] + [epi[e_]]
        E(place(mf(c), gm_))


def build():
    k = Kern(KNAME if MERGE12 else "k1_kernel")
    E = k.emit
    E("s_cmp_ge_u32 s2, 256\ns_cbranch_scc1 " + ("K2_END" if MERGE12 else "K1_END"))
    code_prefetch(k, "L_CODE_END", 0, 120)
    stamp_init(k)
    dstamp(k, 0)
    stamp(k, 0)
    E(f"s_load_dwordx4 s[40:43], s[0:1], {KA_X}")
    E(f"s_load_dwordx4 s[44:47], s[0:1], {KA_WUK}")
    E(f"s_load_dwordx2 s[48:49], s[0:1], {KA_WIN}")
    E(f"s_load_dwordx4 s[52:55], s[0:1], {KA_DBG}")
    E("v_lshrrev_b32 v1, 6, v0\nv_and_b32 v0, 63, v0")
    E(f"s_lshr_b32 s{sRB}, s2, 3\ns_and_b32 s{sCB}, s2, 7")
    E(f"v_readfirstlane_b32 s{sW}, v1")
    E(f"s_and_b32 s{sNB}, s{sRB}, 3\ns_lshl_b32 s{sT}, s{sCB}, 2\ns_add_u32 s{sNB}, s{sNB}, s{sT}")
    E(f"s_lshr_b32 s{sMB}, s{sRB}, 2")
    E(f"s_and_b32 s{sRS}, s{sW}, 1\ns_lshr_b32 s{sCH}, s{sW}, 1\ns_lshl_b32 s{sW8}, s{sW}, 13\ns_lshl_b32 s{sW2}, s{sW}, 12")
    f0 = vF
    E(f"v_and_b32 v{f0}, 31, v0\nv_lshrrev_b32 v{f0 + 1}, 5, v0\nv_lshrrev_b32 v{f0 + 2}, 4, v0")
    E(f"v_bfe_u32 v{f0 + 3}, v0, 2, 2\nv_and_b32 v{f0 + 4}, 3, v0\nv_bfe_u32 v{f0 + 5}, v0, 4, 1")
    E(f"v_lshlrev_b32 v{vL16}, 4, v0")
    E(f"v_lshrrev_b32 v46, 3, v0\nv_lshlrev_b32 v50, 13, v46\nv_lshlrev_b32 v46, 10, v46\nv_and_b32 v47, 7, v0\nv_xor_b32 v47, v47, v{f0 + 2}")
    E("v_lshl_add_u32 v48, v47, 4, v46\nv_xor_b32 v47, 4, v47\nv_lshl_add_u32 v49, v47, 4, v46")
    for i in range(8):
        E(f"v_add_u32 v{vCD + i}, {i * 8192 - (i % 4) * 1024}, v{48 + (i % 2)}")
    E(f"v_bfe_u32 v47, v0, 2, 1\nv_xor_b32 v47, v47, v{f0 + 5}\nv_lshl_add_u32 v50, v47, 6, v50\nv_lshl_add_u32 v50, v{f0 + 4}, 4, v50")
    for i in range(8):
        E(f"v_add_u32 v{vUD + i}, {i * 65536 - (i % 4) * 1024}, v50")
    E(f"s_lshl_b32 s{sCK}, s{sMB}, 18\ns_lshl_b32 s{sT}, s{sW}, 16\ns_add_u32 s{sCK}, s{sCK}, s{sT}")
    E(f"s_and_b32 s{sT}, s{sNB}, 15\ns_lshl_b32 s{sT}, s{sT}, 9\ns_lshl_b32 s{sWK}, s{sW}, 19\ns_add_u32 s{sWK}, s{sWK}, s{sT}")
    E(f"s_lshl_b32 s{sWB}, s{sW}, 17\ns_add_u32 s{sWB}, s{sWB}, s{sT}")
    E(f"s_lshl_b32 s{sT2}, s2, 13\ns_lshl_b32 s{sT}, s{sW}, 11\ns_add_u32 s{sT2}, s{sT2}, s{sT}")
    E(f"v_xor_b32 v46, v{f0 + 3}, v{f0 + 2}\nv_lshlrev_b32 v47, 13, v{f0 + 2}\nv_lshl_add_u32 v47, v46, 6, v47\nv_lshl_add_u32 v47, v{f0 + 4}, 4, v47")
    for i in range(4):
        E(f"v_add_u32 v{vQD + i}, {i * (32768 - 1024)}, v47")
    E("s_waitcnt lgkmcnt(0)")
    E(srd(SX, 40, 2048 * 1024), srd(SC, 42, 2048 * 1024))
    E(VM(f"buffer_load_dwordx4 v[40:43], v{vL16}, {s(SX, 4)}, s{sT2} offen", "x"))
    E(VM(f"buffer_load_dwordx4 v[44:47], v{vL16}, {s(SX, 4)}, s{sT2} offen offset:1024", "x"))
    E(f"s_cmp_lt_u32 s{sNB}, 16\ns_cselect_b32 s{SW}, s44, s46\ns_cselect_b32 s{SW + 1}, s45, s47")
    E(f"s_mov_b32 s{SW + 2}, {512 * 8192:#x}\ns_mov_b32 s{SW + 3}, 0x20000")
    for j in range(2):
        E(a_dma(j), b_dma(j))
    E(srd(SI, 48, 512 * 2752), srd(SS, 54, WS_SIZE), srd(SD, 52, 256))
    E(f"s_lshl_b32 s{sT}, s2, 2\ns_add_u32 s{sT}, s{sT}, s{sW}\ns_lshl_b32 s70, s{sT}, 12\ns_lshl_b32 s76, s{sT}, 13\ns_and_b32 s76, s76, 0x3fffff")
    if not LT:
        E(f"s_lshl_b32 s77, s{sT}, 11\ns_and_b32 s76, s77, 0xfffff")
    E(f"s_cmp_lt_u32 s2, 128\ns_cselect_b32 s{SPF}, s44, s46\ns_cselect_b32 s{SPF + 1}, s45, s47\ns_mov_b32 s{SPF + 2}, {512 * 8192:#x}\ns_mov_b32 s{SPF + 3}, 0x20000")
    E(f"v_lshrrev_b32 v61, 2, v0\nv_lshlrev_b32 v61, 9, v61\nv_lshl_add_u32 v61, v{f0 + 4}, 6, v61\nv_lshlrev_b32 v39, 6, v0")
    if not LT:
        E(f"v_lshlrev_b32 v61, 9, v{f0 + 2}\nv_and_b32 v48, 15, v0\nv_lshl_add_u32 v61, v48, 4, v61")
    E(f"s_load_dwordx2 s[44:45], s[0:1], {KA_WQ}")
    E(f"v_bfe_u32 v48, v0, 1, 3\nv_xor_b32 v48, v48, v{f0 + 1}\nv_lshlrev_b32 v49, 7, v{f0}\nv_add_u32 v49, s{sW8}, v49")
    for k16 in range(4):
        E(f"v_xor_b32 v50, {2 * k16}, v48\nv_lshl_add_u32 v{vCR + k16}, v50, 4, v49\nv_add_u32 v{vCR + 4 + k16}, {SLOT}, v{vCR + k16}")
    E(f"v_lshl_add_u32 v48, v{f0 + 1}, 3, v{f0 + 3}\nv_lshlrev_b32 v48, 8, v48\nv_lshl_add_u32 v48, v{f0 + 5}, 5, v48\nv_lshl_add_u32 v48, v{f0 + 4}, 3, v48\nv_add_u32 v48, 32768, v48")
    for d in range(4):
        E(f"v_xor_b32 v49, {d}, v{f0 + 3}\nv_lshl_add_u32 v{vQR + d}, v49, 6, v48\nv_add_u32 v{vQR + 4 + d}, {SLOT}, v{vQR + d}")
    E(f"v_lshl_add_u32 v48, v{f0 + 1}, 3, v{f0 + 3}\nv_lshlrev_b32 v48, 7, v48\nv_lshl_add_u32 v48, v{f0 + 5}, 5, v48\nv_lshl_add_u32 v48, v{f0 + 4}, 3, v48")
    E(f"v_lshrrev_b32 v49, 1, v{f0 + 3}\nv_lshl_add_u32 v{vBR}, v49, 6, v48\nv_xor_b32 v49, 1, v49\nv_lshl_add_u32 v{vBR + 1}, v49, 6, v48")
    for sg in (1, 2):
        for d2 in range(2):
            E(f"v_add_u32 v{vBR + 2 * sg + d2}, {sg * 65536}, v{vBR + d2}")
    E(f"s_lshl_b32 s{sKO}, s{sNB}, 7\ns_lshl_b32 s{sT}, s{sMB}, 3\ns_add_u32 s{sKO}, s{sKO}, s{sT}\ns_lshl_b32 s{sT}, s{sW}, 1\ns_add_u32 s{sKO}, s{sKO}, s{sT}")
    E(f"s_lshl_b32 s{sKO}, s{sKO}, 13\ns_add_u32 s{sKO}, s{sKO}, {WS_KF}")
    E(f"s_mul_i32 s{sWI}, s{sW}, {16 * 2752}\ns_mul_i32 s{sT}, s{sCB}, 192\ns_add_u32 s{sWI}, s{sWI}, s{sT}")
    E(f"s_lshl_b32 s{sXN}, s{sRB}, 16\ns_lshl_b32 s{sT}, s{sW}, 10\ns_add_u32 s{sXN}, s{sXN}, s{sT}\ns_add_u32 s{sXN}, s{sXN}, {WS_XN}")
    E(f"s_lshl_b32 s{sCNT}, s{sRB}, 3\ns_mov_b32 s{sONES}, 0x3f803f80")
    E(f"s_lshr_b32 s{sT2}, s2, 2\ns_lshl_b32 s{sT2}, s{sT2}, 15\ns_and_b32 s{sT}, s2, 3\ns_lshl_b32 s{sT}, s{sT}, 7\ns_add_u32 s{sT2}, s{sT2}, s{sT}")
    E(f"s_add_u32 s{sT2}, s{sT2}, s{sW8}\ns_add_u32 s69, s{sT2}, {WS_XN}")
    E(f"s_lshl_b32 s{sT}, s{sW}, 5\ns_add_u32 s{sT}, s{sT}, {3 * SLOT}\nv_lshlrev_b32 v58, 7, v0\nv_add_u32 v58, s{sT}, v58")
    E(f"s_lshl_b32 s{sT}, s{sW}, 11\ns_add_u32 s{sT}, s{sT}, {3 * SLOT}\nv_add_u32 v59, s{sT}, v{vL16}")
    E("v_lshrrev_b32 v62, 3, v0\nv_lshlrev_b32 v62, 9, v62\nv_and_b32 v48, 7, v0\nv_lshl_add_u32 v62, v48, 4, v62")
    E("s_waitcnt lgkmcnt(0)")
    stamp(k, 1)
    E(f"s_cmp_ge_u32 s{sNB}, 16\ns_cbranch_scc1 K1_V")
    st = (list(k.vm), list(k.lg))
    kv_phase(k, False)
    E("s_branch K1_Z")
    k.set_state(*st)
    E("K1_V:")
    kv_phase(k, True)
    E("K1_Z:")
    stamp(k, 2)
    E(f"s_cmp_eq_u32 s{sCH}, 1\ns_cbranch_scc1 K1_Z2")
    st = (list(k.vm), list(k.lg))
    ZACC = ACC[0]
    zr = list(range(ZACC, ZACC + 48))
    z_phase(k, False)
    stamp(k, 3)
    E(f"s_lshl_b32 s{sT}, s{sRB}, 1\ns_add_u32 s{sT}, s{sT}, s{sRS}\ns_mul_i32 s{sT}, s{sT}, 48")
    E(f"s_mul_i32 s{sT2}, s{sCB}, 6\ns_add_u32 s{sT}, s{sT}, s{sT2}\ns_lshl_b32 s{sT}, s{sT}, 10")
    E(f"s_add_u32 s96, s{sT}, {WS_Z1}\ns_add_u32 s97, s96, 4096\ns_nop 7")
    E("s_branch K1_ZJOIN")
    k.set_state(*st)
    E("K1_Z2:")
    z_phase(k, True)
    stamp(k, 3)
    E(f"s_mul_i32 s{sT}, s{sCB}, 384\ns_lshl_b32 s{sT2}, s{sRB}, 2\ns_add_u32 s{sT}, s{sT}, s{sT2}")
    E(f"s_lshl_b32 s{sT2}, s{sRS}, 1\ns_add_u32 s{sT}, s{sT}, s{sT2}\ns_lshl_b32 s{sT}, s{sT}, 10\ns_add_u32 s96, s{sT}, {WS_Z2R}")
    E(f"s_lshl_b32 s{sT}, s{sRB}, 1\ns_add_u32 s{sT}, s{sT}, s{sRS}\ns_lshl_b32 s{sT}, s{sT}, 11\ns_add_u32 s{sT}, s{sT}, {WS_STAT}")
    E(f"s_lshl_b32 s{sT2}, s{sCB}, 8\ns_add_u32 s97, s{sT}, s{sT2}")
    E("K1_ZJOIN:")
    dstamp(k, 3)
    stamp(k, 4)
    stamp(k, 5)
    lstamp_store(k, 0, 63, 59, SS, sW)
    stamp_store(k, 0, SS, sW, 96)
    import k2
    E("s_mov_b64 exec, -1")
    k2.build(k)
    return k.text(512, 256)


def z_epilogue(z2, SS_, vL, vr, vh, srs, scr):
    ZACC = ACC[0]
    T = 176
    o = flat([f"v_mov_b32 v{T + 4}, {fbits(GELU_C0)}\nv_mov_b32 v{T + 5}, {fbits(GELU_C1)}"])
    if not z2:
        for fg in range(6):
            b = ZACC + 8 * fg
            o += flat(gelu(list(range(b, b + 8)), T + 4, T + 5, T))
            o += [I(f"v_cvt_pk_bf16_f32 v{b + i}, v{b + 2 * i}, v{b + 2 * i + 1}") for i in range(4)]
            o.append(VM(f"buffer_store_dwordx4 {v(b, 4)}, v{vL}, {s(SS_, 4)}, s{96 if fg < 4 else 97} offen offset:{1024 * (fg % 4)} sc1", "zo"))
        return o
    o += flat(gelu(list(range(ZACC, ZACC + 48)), T + 4, T + 5, T))
    o += flat([f"s_mul_i32 s98, s{srs}, 9216\ns_add_u32 s98, s98, {scr}",
               f"v_mul_u32_u24 v{T + 6}, {4 * 144}, v{vh}\nv_lshl_add_u32 v{T + 6}, v{vr}, 2, v{T + 6}\nv_add_u32 v{T + 6}, s98, v{T + 6}",
               f"v_mul_u32_u24 v{T + 7}, 144, v0\nv_add_u32 v{T + 7}, s98, v{T + 7}"])
    for r in range(16):
        z0, z1, z2_ = ZACC + r, ZACC + 16 + r, ZACC + 32 + r
        a_, b_ = T + 8 + 2 * (r % 4), T + 9 + 2 * (r % 4)
        srow = 8 * (r // 4) + r % 4
        o += flat([f"v_add_f32 v{a_}, v{z0}, v{z1}\nv_mul_f32 v{b_}, v{z0}, v{z0}\nv_add_f32 v{a_}, v{a_}, v{z2_}\nv_fmac_f32 v{b_}, v{z1}, v{z1}\nv_fmac_f32 v{b_}, v{z2_}, v{z2_}"])
        o += [LG(f"ds_write_b32 v{T + 6}, v{a_} offset:{srow * 144}"), LG(f"ds_write_b32 v{T + 6}, v{b_} offset:{(32 + srow) * 144}")]
    SQ = ZACC
    for f in range(3):
        for g in range(2):
            b = ZACC + 16 * f + 8 * g
            o += [I(f"v_cvt_pk_bf16_f32 v{b + i}, v{b + 2 * i}, v{b + 2 * i + 1}") for i in range(4)]
            o += flat([f"s_nop 1\nv_permlane32_swap_b32 v{b}, v{b + 2}\nv_permlane32_swap_b32 v{b + 1}, v{b + 3}\ns_nop 1"])
            o.append(VM(f"buffer_store_dwordx4 {v(b, 4)}, v{vL}, {s(SS_, 4)}, s96 offen offset:{1024 * g} sc1", "zo"))
        if f < 2:
            o.append(I(f"s_add_u32 s96, s96, {128 * 1024}"))
    o += [I(f"v_lshlrev_b32 v{T + 6}, 2, v0"), I("s_nop 0")]
    o += [LG(f"ds_read_b128 {v(SQ + 4 * i, 4)}, v{T + 7} offset:{16 * i}", "zq") for i in range(8)]
    o += [WLG("zq")]
    for stride in (16, 8, 4, 2, 1):
        o += [I(f"v_add_f32 v{SQ + i}, v{SQ + i}, v{SQ + stride + i}") for i in range(stride)]
    o.append(VM(f"buffer_store_dword v{SQ}, v{T + 6}, {s(SS_, 4)}, s97 offen sc1", "zo"))
    return o
```
